```python
import torch

def _softmax(x, axis=-1):
    return torch.softmax(x, dim=axis)
def _gelu(x):
    return torch.nn.functional.gelu(x, approximate="tanh")
def _silu(x):
    return torch.nn.functional.silu(x)
def _sigmoid(x):
    return torch.sigmoid(x)
def _layernorm(x, axis=-1, eps=1e-5):
    m = x.mean(dim=axis, keepdim=True)
    v = x.var(dim=axis, keepdim=True, unbiased=False)
    return (x - m) / torch.sqrt(v + eps)
def _scatter_add(tgt, idx, src, axis=0):
    return tgt.clone().index_add_(axis, idx, src)
def _segment_sum(src, seg, n):
    out = torch.zeros((n,) + src.shape[1:], dtype=src.dtype)
    return out.index_add_(0, seg, src)
def _pad(x, pw):
    flat = tuple(v for pair in reversed(pw) for v in pair)
    return torch.nn.functional.pad(x, flat)

kernel_name = 'recurrent_scan__compressed_kv_cla__moe_arch_mod__prompt'

def setup_inputs():

    _w = (lambda a: (lambda t: t.to(torch.bfloat16) if t.is_floating_point() else t)(torch.as_tensor(a)))
    def _A_setup():
        B, H, Sq, Sk, D, M = 1, 32, 2048, 2048, 128, 1024
        Dc = 4 * D
        return {
            "x": _w((lambda *s: torch.randn(*s, dtype=torch.bfloat16) * 0.05)(B, Sq, M)),
            "c_kv": _w((lambda *s: torch.randn(*s, dtype=torch.bfloat16) * 0.2)(B, Sk, Dc)),
            "w_q": _w((lambda *s: torch.randn(*s, dtype=torch.bfloat16) * 3.2)(M, H, D) * (M ** -0.5)),
            "w_uk": _w((lambda *s: torch.randn(*s, dtype=torch.bfloat16) * 3.2)(Dc, H, D) * (Dc ** -0.5)),
            "w_uv": _w((lambda *s: torch.randn(*s, dtype=torch.bfloat16) * 0.2)(Dc, H, D) * (Dc ** -0.5)),
            "w_o": _w((lambda *s: torch.randn(*s, dtype=torch.bfloat16) * 0.2)(H, D, M) * ((H * D) ** -0.5)),
        }
    _A_in = _A_setup()

    def _B_setup():
        B, S, D, F, C = 1, 2048, 1024, 3584, 2
        return {
            "x": _w((lambda *s: torch.randn(*s, dtype=torch.bfloat16) * 0.05)(B, S, D)),
            "w_r": _w((lambda *s: torch.randn(*s, dtype=torch.bfloat16) * 0.2)(D)),
            "w_gate": _w((lambda *s: torch.randn(*s, dtype=torch.bfloat16) * 0.1)(D, F)),
            "w_up": _w((lambda *s: torch.randn(*s, dtype=torch.bfloat16) * 0.1)(D, F)),
            "w_down": _w((lambda *s: torch.randn(*s, dtype=torch.bfloat16) * 0.1)(F, D)),
        }
    _B_in = _B_setup()

    return {
        "A_x": _A_in["x"],
        "A_c_kv": _A_in["c_kv"],
        "A_w_q": _A_in["w_q"],
        "A_w_uk": _A_in["w_uk"],
        "A_w_uv": _A_in["w_uv"],
        "A_w_o": _A_in["w_o"],
        "B_x": _B_in["x"],
        "B_w_r": _B_in["w_r"],
        "B_w_gate": _B_in["w_gate"],
        "B_w_up": _B_in["w_up"],
        "B_w_down": _B_in["w_down"],
    }

def reference(A_x, A_c_kv, A_w_q, A_w_uk, A_w_uv, A_w_o, B_x, B_w_r, B_w_gate, B_w_up, B_w_down):
    def _A_ref(x, c_kv, w_q, w_uk, w_uv, w_o):
        B, Sq, M = x.shape[0], x.shape[1], x.shape[2]
        Sk = c_kv.shape[1]
        H, D = w_q.shape[1], w_q.shape[2]
        q = torch.einsum("bqm,mhd->bhqd", x, w_q)
        k = torch.einsum("bkc,chd->bhkd", c_kv, w_uk)
        v = torch.einsum("bkc,chd->bhkd", c_kv, w_uv)
        scores = torch.einsum("bhqd,bhkd->bhqk", q, k) * (D ** -0.5)
        off = Sk - Sq
        qi = torch.arange(Sq)[:, None]
        kj = torch.arange(Sk)[None, :]
        cmask = kj <= (qi + off)
        scores = torch.where(cmask[None, None], scores, -1e9)
        p = _softmax(scores, axis=-1)
        ctx = torch.einsum("bhqk,bhkd->bhqd", p, v)
        return torch.einsum("bhqd,hdm->bqm", ctx, w_o)

    def _B_ref(x, w_r, w_gate, w_up, w_down):
        B, S, D = x.shape
        C = 2
        r = x @ w_r
        idx = torch.argsort(-r, axis=-1)[:, :C]
        idx_e = (lambda x, n, axis: torch.repeat_interleave(x, n, dim=axis))(idx.reshape(B, C, 1), D, axis=2)
        x_sel = (lambda x, i, axis: torch.take_along_dim(x, i, dim=axis))(x, idx_e, axis=1)
        g = _silu(x_sel @ w_gate)
        u = x_sel @ w_up
        y = (g * u) @ w_down
        r_sel = _sigmoid((lambda x, i, axis: torch.take_along_dim(x, i, dim=axis))(r, idx, axis=1))
        y = y * r_sel.reshape(B, C, 1)
        b_off = (torch.arange(B) * S).reshape(B, 1)
        flat_idx = (idx + b_off).reshape(B * C)
        zero = (x * 0.0).reshape(B * S, D)
        upd = _scatter_add(zero, flat_idx, y.reshape(B * C, D), axis=0)
        return x + upd.reshape(B, S, D)

    x = A_x
    xn = _layernorm(x, axis=-1)
    s = _A_ref(xn, A_c_kv, A_w_q, A_w_uk, A_w_uv, A_w_o)
    g = _silu(_B_ref(xn, B_w_r, B_w_gate, B_w_up, B_w_down))
    return x + s * g
```

```python
import re, sys

TRANS = ('v_exp_f32', 'v_log_f32', 'v_rcp_f32', 'v_rsq_f32', 'v_sqrt_f32', 'v_sin_f32', 'v_cos_f32')
RX = re.compile(r'^(v|a|s)(\d+)$|^(v|a|s)\[(\d+):(\d+)\]$')

def regs_of(tok):
    t = tok.strip()
    t = t.lstrip('-')
    if t.startswith('abs(') and t.endswith(')'): t = t[4:-1]
    if t.startswith('|') and t.endswith('|'): t = t[1:-1]
    if t in ('vcc', 'exec'): return [t]
    if t in ('vcc_lo', 'vcc_hi'): return ['vcc']
    if t in ('exec_lo', 'exec_hi'): return ['exec']
    if t == 'm0': return ['m0']
    m = RX.match(t)
    if not m: return []
    if m.group(1): return [m.group(1) + m.group(2)]
    return [m.group(3) + str(i) for i in range(int(m.group(4)), int(m.group(5)) + 1)]

class I:
    __slots__ = ('text', 'mn', 'cls', 'defs', 'uses', 'srcA', 'srcB', 'srcC', 'passes', 'states', 'target', 'cond',
                 'dpp', 'lds', 'wide', 'data', 'vm', 'lgkm', 'ln', 'lanesel', 'ldst')

def parse(text, ln):
    i = I(); i.text = text; i.ln = ln
    parts = text.split(None, 1)
    mn = parts[0]; rest = parts[1] if len(parts) > 1 else ''
    mn = re.sub(r'_(e32|e64|dpp|sdwa)$', '', mn)
    i.mn = mn
    ops = [o.strip() for o in rest.split(',')] if rest else []
    mods = ''
    if ops:
        lp = ops[-1].split(None, 1)
        ops[-1] = lp[0]; mods = lp[1] if len(lp) > 1 else ''
    R = [regs_of(o) for o in ops]
    flat = lambda L: [r for x in L for r in x]
    i.defs = []; i.uses = []; i.srcA = i.srcB = i.srcC = (); i.passes = 0; i.states = 1; i.target = None; i.cond = False
    i.dpp = 'quad_perm' in mods or 'row_' in mods or 'wave_' in mods
    i.lds = False; i.wide = False; i.data = (); i.vm = None; i.lgkm = None; i.lanesel = (); i.ldst = ()
    if mn.startswith('v_mfma'):
        i.cls = 'mfma'; i.defs = R[0]; i.srcA, i.srcB, i.srcC = R[1], R[2], R[3]; i.uses = flat(R[1:])
        i.passes = 8 if '32x32' in mn else 4
    elif mn.startswith('v_'):
        i.cls = 'trans' if mn in TRANS else 'valu'
        if mn == 'v_nop': pass
        elif (mn.startswith('v_permlane') and 'swap' in mn) or mn == 'v_swap_b32':
            i.defs = flat(R); i.uses = flat(R)
        else:
            i.defs = R[0]; i.uses = flat(R[1:])
            if mn.startswith(('v_fmac', 'v_mac', 'v_dot2c', 'v_pk_fmac')) or i.dpp or mn == 'v_writelane_b32': i.uses = i.uses + R[0]
            if mn.startswith('v_cndmask') and len(ops) == 3: i.uses = i.uses + ['vcc']
            if mn in ('v_add_co_u32', 'v_sub_co_u32', 'v_addc_co_u32', 'v_subb_co_u32', 'v_mad_u64_u32'):
                i.defs = R[0] + R[1]; i.uses = flat(R[2:])
            if mn in ('v_readlane_b32', 'v_writelane_b32'): i.lanesel = R[2]
            if mn.startswith('v_cmpx'): i.defs = i.defs + ['exec']
    elif mn.startswith('ds_'):
        i.cls = 'ds'
        if mn.startswith('ds_read') or mn.startswith(('ds_bpermute', 'ds_permute', 'ds_swizzle')) or '_rtn' in mn:
            i.ldst = R[0]; i.uses = flat(R[1:])
        else:
            i.uses = flat(R)
    elif mn.startswith(('buffer_', 'global_')):
        i.cls = 'vmem'
        ml = mods.split()
        if mn.startswith(('buffer_wbl2', 'buffer_inv')): pass
        elif 'load' in mn:
            if 'lds' in ml or '_lds_' in mn:
                i.lds = True; i.uses = flat(R) + ['m0']
            else:
                i.ldst = R[0]; i.uses = flat(R[1:])
        elif 'atomic' in mn:
            i.uses = flat(R)
            if 'sc0' in ml: i.ldst = R[0]
        else:
            i.uses = flat(R)
            if mn.endswith(('x3', 'x4')):
                i.wide = True; i.data = R[0] if mn.startswith('buffer') else R[1]
    elif mn == 's_waitcnt':
        i.cls = 'wait'
        m = re.search(r'vmcnt\((\d+)\)', rest); i.vm = int(m.group(1)) if m else None
        m = re.search(r'lgkmcnt\((\d+)\)', rest); i.lgkm = int(m.group(1)) if m else None
    elif mn == 's_nop':
        i.cls = 'nop'; i.states = int(rest, 0) + 1
    elif mn in ('s_barrier', 's_setprio', 's_sleep'):
        i.cls = 'misc'
    elif mn == 's_endpgm':
        i.cls = 'end'
    elif mn == 's_branch' or mn.startswith('s_cbranch'):
        i.cls = 'branch'; i.target = rest.strip(); i.cond = mn != 's_branch'
        if 'vcc' in mn: i.uses = ['vcc']
    elif mn.startswith(('s_load', 's_buffer_load', 's_memtime', 's_memrealtime', 's_atomic')):
        i.cls = 'smem'; i.ldst = R[0]; i.uses = flat(R[1:])
    elif mn.startswith('s_'):
        i.cls = 'salu'
        if mn.startswith(('s_cmp', 's_bitcmp')): i.uses = flat(R)
        else:
            i.defs = R[0]; i.uses = flat(R[1:])
            if 'saveexec' in mn: i.defs = i.defs + ['exec']; i.uses = i.uses + ['exec']
            if mn in ('s_addk_i32', 's_mulk_i32'): i.uses = i.uses + R[0]
    else:
        raise ValueError('unknown instruction: ' + text)
    return i

def need(p, c):
    n = 0
    pv = p.cls in ('valu', 'trans'); cv = c.cls in ('valu', 'trans')
    pd = set(p.defs)
    if pv:
        vg = {r for r in pd if r[0] in 'va' and r != 'vcc'}
        sg = pd - vg
        if c.cls == 'mfma' and vg & set(c.uses): n = max(n, 2)
        if c.cls == 'mfma' and 'exec' in pd: n = max(n, 4)
        if p.cls == 'trans' and c.cls == 'valu' and vg & set(c.uses): n = max(n, 1)
        if cv and c.dpp and vg & set(c.uses): n = max(n, 2)
        if cv and c.mn.startswith('v_permlane') and vg & set(c.uses): n = max(n, 2)
        if cv and c.mn in ('v_readlane_b32', 'v_readfirstlane_b32') and vg & set(c.uses): n = max(n, 1)
        if sg:
            if cv and sg & set(c.uses): n = max(n, 2)
            if cv and sg & set(c.lanesel): n = max(n, 4)
            if c.cls == 'vmem' and sg & set(c.uses): n = max(n, 5)
    if p.cls == 'salu' and 'm0' in pd and c.cls == 'vmem' and c.lds: n = max(n, 1)
    if p.cls == 'vmem' and p.wide and set(p.data) & (set(c.defs) | set(c.ldst)):
        n = max(n, 2 if cv else 1)
    if p.cls == 'mfma':
        big = {4: 8, 8: 12}[p.passes]
        if c.cls == 'mfma':
            if pd & (set(c.srcA) | set(c.srcB)): n = max(n, big)
            if pd & set(c.srcC) and not (list(c.srcC) == list(p.defs) and c.passes == p.passes): n = max(n, big - 2)
            if pd & set(c.defs) and not (pd & set(c.srcC)): n = max(n, big)
        elif cv:
            if pd & (set(c.uses) | set(c.defs)): n = max(n, big)
            if set(p.srcC) & set(c.defs): n = max(n, {4: 3, 8: 7}[p.passes])
        elif c.cls in ('vmem', 'ds'):
            if pd & (set(c.uses) | set(c.ldst)): n = max(n, big)
    return n

def check_kernel(name, lines, maxstates=400000):
    ins = []; labels = {}
    for ln, t in lines:
        t = t.split(';')[0].strip()
        if not t or t.startswith('.'): continue
        if t.endswith(':'): labels[t[:-1]] = len(ins); continue
        ins.append(parse(t, ln))
    errs = {}
    def err(c, msg):
        errs.setdefault((c.ln, msg.split(' [')[0]), f'{name}: line {c.ln}: {c.text}  <-- {msg}')
    seen = set()
    work = [(0, (), (), (), ())]
    nst = 0
    while work:
        pc, win, vmq, dsq, sm = work.pop()
        while True:
            if pc >= len(ins): err(ins[-1], 'runs off the end'); break
            c = ins[pc]
            if pc in LBL(labels) or c.cls == 'branch':
                key = (pc, win, vmq, dsq, sm)
                if key in seen: break
                seen.add(key); nst += 1
                if nst > maxstates: print(name, 'state limit hit'); return list(errs.values())
            for idx, d in win:
                n = need(ins[idx], c)
                if d < n: err(c, f'hazard needs {n} has {d} after line {ins[idx].ln} [{ins[idx].text}]')
            touched = set(c.uses) | set(c.defs)
            for q, nm in ((vmq, 'vm'), (dsq, 'ds')):
                for e in q:
                    if e and touched & e: err(c, f'touches pending {nm} load dest [{sorted(touched & e)[:4]}]')
                    if e and set(c.ldst) & e and not ((nm == 'vm' and c.cls == 'vmem') or (nm == 'ds' and c.cls == 'ds')):
                        err(c, f'load WAW with pending {nm} load')
            for e in sm:
                if (touched | set(c.ldst)) & e: err(c, 'touches pending smem dest')
            if c.cls == 'wait':
                if c.vm is not None and len(vmq) > c.vm: vmq = vmq[len(vmq) - c.vm:] if c.vm else ()
                if c.lgkm is not None:
                    if c.lgkm == 0: dsq = (); sm = ()
                    elif not sm and len(dsq) > c.lgkm: dsq = dsq[len(dsq) - c.lgkm:]
            elif c.cls == 'vmem':
                vmq = vmq + (frozenset(c.ldst),)
                if len(vmq) > 63: err(c, 'more than 63 vmem ops possibly outstanding'); vmq = vmq[-63:]
            elif c.cls == 'ds':
                dsq = dsq + (frozenset(c.ldst),)
                if len(dsq) > 15: err(c, 'more than 15 lds ops possibly outstanding'); dsq = dsq[-15:]
            elif c.cls == 'smem':
                sm = sm + (frozenset(c.ldst),)
            while vmq and not vmq[0] and not STRICT_COUNT: vmq = vmq[1:]
            while dsq and not dsq[0] and not STRICT_COUNT: dsq = dsq[1:]
            win = tuple((idx, d + c.states) for idx, d in win if d + c.states < 13)
            if c.cls in ('mfma', 'valu', 'trans', 'salu') or (c.cls == 'vmem' and c.wide):
                win = win + ((pc, 0),)
            if c.cls == 'end': break
            if c.cls == 'branch':
                tgt = labels[c.target]
                if c.cond: work.append((pc + 1, win, vmq, dsq, sm))
                pc = tgt
            else:
                pc += 1
    return list(errs.values())

STRICT_COUNT = False
_lc = {}
def LBL(labels):
    k = id(labels)
    if k not in _lc: _lc[k] = set(labels.values())
    return _lc[k]

def check_text(text):
    kernels = []; cur = None
    for ln, t in enumerate(text.split('\n'), 1):
        s = t.strip()
        if s.startswith('.section'): break
        if re.match(r'^\w+_kernel:$', s):
            cur = (s[:-1], []); kernels.append(cur); continue
        if cur: cur[1].append((ln, t))
    allerr = []
    for name, lines in kernels:
        allerr += check_kernel(name, lines)
    return allerr

if __name__ == '__main__':
    e = check_text(open(sys.argv[1]).read())
    for x in e[:60]: print(x)
    print(len(e), 'issues')
```

```python
from check import parse, need

def R(p, a, n=1):
    return f"{p}[{a}:{a+n-1}]" if n > 1 else f"{p}{a}"
def V(a, n=1): return R('v', a, n)
def A(a, n=1): return R('a', a, n)
def S(a, n=1): return R('s', a, n)

class Asm:
    def __init__(self, name):
        self.name = name
        self.lines = []
        self.win = []
        self.nl = 0
        self.hot = False
        self.hot_nops = 0
        self.vq = []
        self.dq = []
    def raw(self, s): self.lines.append(s)
    def c(self, s): self.lines.append("  ; " + s)
    def e(self, s, tag=None):
        i = parse(s, 0)
        pad = 0
        for p, d in self.win:
            n = need(p, i)
            if n - d > pad: pad = n - d
        if pad:
            if self.hot:
                self.hot_nops += 1
                print(f"[{self.name}] hot nop({pad}) before: {s}")
            self._adv(parse(f"s_nop {pad-1}", 0), f"s_nop {pad-1}")
        self._adv(i, s)
        if i.cls == 'vmem': self.vq.append(tag)
        elif i.cls == 'ds': self.dq.append(tag)
        elif i.cls == 'wait':
            if i.vm is not None and len(self.vq) > i.vm: self.vq = self.vq[len(self.vq) - i.vm:] if i.vm else []
            if i.lgkm is not None and len(self.dq) > i.lgkm: self.dq = self.dq[len(self.dq) - i.lgkm:] if i.lgkm else []
    def _adv(self, i, s):
        self.lines.append("  " + s)
        self.win = [(p, d + i.states) for p, d in self.win if d + i.states < 13]
        if i.cls in ('mfma', 'valu', 'trans', 'salu') or (i.cls == 'vmem' and i.wide):
            self.win.append((i, 0))
    def vm_n(self, tag):
        idx = [n for n, t in enumerate(self.vq) if t == tag]
        return None if not idx else len(self.vq) - 1 - idx[-1]
    def ds_n(self, tag):
        idx = [n for n, t in enumerate(self.dq) if t == tag]
        return None if not idx else len(self.dq) - 1 - idx[-1]
    def wait_vm(self, tag):
        n = self.vm_n(tag)
        if n is not None: self.e(f"s_waitcnt vmcnt({min(n, 63)})")
    def wait_ds(self, tag):
        n = self.ds_n(tag)
        if n is not None: self.e(f"s_waitcnt lgkmcnt({min(n, 15)})")
    def label(self, l):
        self.lines.append(l + ":")
    def newlabel(self, base):
        self.nl += 1
        return f"L_{self.name}_{base}{self.nl}"
    def srd(self, d, base, nbytes, add=None):
        if add is not None and add != 0:
            self.e(f"s_add_u32 s{d}, s{base}, {add}")
            self.e(f"s_addc_u32 s{d+1}, s{base+1}, 0")
            self.e(f"s_and_b32 s{d+1}, s{d+1}, 0xffff")
        else:
            self.e(f"s_mov_b32 s{d}, s{base}")
            self.e(f"s_and_b32 s{d+1}, s{base+1}, 0xffff")
        self.e(f"s_mov_b32 s{d+2}, {nbytes}")
        self.e(f"s_mov_b32 s{d+3}, 0x20000")
    def stamp(self, on):
        if not on: return
        n = getattr(self, 'nstamp', 0); self.nstamp = n + 1
        assert n < 16
        self.e("s_memtime s[96:97]")
        self.e("s_memrealtime s[98:99]")
        self.e("s_waitcnt lgkmcnt(0)")
        self.e(f"s_mov_b32 s{64+2*n}, s96")
        self.e(f"s_mov_b32 s{65+2*n}, s98")
    def stamp_dump(self, on, wsptr, kidx, wave_sgpr, n=None):
        if not on: return
        n = n or self.nstamp
        L = self.newlabel("nodump")
        self.e(f"s_cmp_lg_u32 s{wave_sgpr}, 0")
        self.e(f"s_cbranch_scc1 {L}")
        self.srd(96, wsptr, 65536, (60 << 20) + kidx * 65536)
        self.e("s_lshl_b32 s3, s2, 7")
        self.e("v_mov_b32 v0, s3")
        self.e("s_mov_b64 exec, 1")
        for j in range(n):
            self.e(f"v_mov_b32 v2, s{64+2*j}")
            self.e(f"v_mov_b32 v3, s{65+2*j}")
            self.e(f"buffer_store_dwordx2 v[2:3], v0, s[96:99], 0 offen offset:{8*j}")
        self.label(L)
    def wrap(self, arch_vgprs, agprs, sgprs=102):
        acc = (arch_vgprs + 3) // 4 * 4
        nfv = acc + agprs if agprs else arch_vgprs
        n = self.name
        code = [f".globl {n}", ".p2align 8", f".type {n},@function", f"{n}:"] + self.lines
        kd = [".p2align 6", f".amdhsa_kernel {n}", f"  .amdhsa_next_free_vgpr {nfv}", f"  .amdhsa_next_free_sgpr {sgprs}",
              f"  .amdhsa_accum_offset {acc}", "  .amdhsa_group_segment_fixed_size 0", "  .amdhsa_kernarg_size 112",
              "  .amdhsa_user_sgpr_count 2", "  .amdhsa_user_sgpr_kernarg_segment_ptr 1",
              "  .amdhsa_system_sgpr_workgroup_id_x 1", ".end_amdhsa_kernel"]
        return "\n".join(code), "\n".join(kd)

def mfma(d, a, b, c):
    return f"v_mfma_f32_16x16x32_bf16 {d}, {a}, {b}, {c}"

def build(parts, launches):
    out = ["; generated by gen/gen2.py"] + launches
    out += ['.amdgcn_target "amdgcn-amd-amdhsa--gfx950"', ".text"]
    out += [p[0] for p in parts]
    out.append('.section .rodata,"a"')
    out += [p[1] for p in parts]
    return "\n".join(out) + "\n"
```

```python
from fw import *
from layout import *

K1_LDS = 131072 + 16384 + 1024

def xlane_sum8(k, v, t):
    k.e(f"v_add_f32_dpp {v}, {v}, {v} row_ror:8 row_mask:0xf bank_mask:0xf")
    k.e(f"v_mov_b32 {t}, {v}")
    k.e(f"v_permlane16_swap_b32 {t}, {v}")
    k.e(f"v_add_f32 {v}, {v}, {t}")
    k.e(f"v_mov_b32 {t}, {v}")
    k.e(f"v_permlane32_swap_b32 {t}, {v}")
    k.e(f"v_add_f32 {v}, {v}, {t}")

def gen_k1(opt):
    k = Asm("kv_kernel")
    VOA, VOW, AD = 2, 6, 10
    TMP = 30
    PFO = 47
    NV_ACC = 52
    def acc(it, jd):
        b = it * 8 + jd
        return V(48 + 4 * b, 4) if b < NV_ACC else A(128 + 4 * (b - NV_ACC), 4)
    def accreg(it, jd):
        b = it * 8 + jd
        return ('v', 48 + 4 * b) if b < NV_ACC else ('a', 128 + 4 * (b - NV_ACC))
    FA = lambda ks, i: 64 * ks + 4 * i
    FW = lambda ks, j: 64 * ks + 32 + 4 * j

    k.e("s_cmp_ge_u32 s2, 256")
    k.e("s_cbranch_scc1 L_k1_end")
    ST = 'stamp' in opt
    k.stamp(ST)
    k.e("s_load_dwordx4 s[4:7], s[0:1], 0")
    k.e("s_load_dwordx4 s[40:43], s[0:1], 24")
    k.e("s_load_dwordx2 s[44:45], s[0:1], 56")
    k.e("s_load_dwordx2 s[46:47], s[0:1], 104")
    k.e("v_lshrrev_b32 v1, 6, v0")
    k.e("v_and_b32 v0, 63, v0")
    k.e("v_readfirstlane_b32 s32, v1")
    k.e("s_lshr_b32 s3, s2, 3")
    k.e("s_and_b32 s33, s3, 7")
    k.e("s_lshr_b32 s3, s3, 3")
    k.e("s_lshr_b32 s35, s3, 1")
    k.e("s_and_b32 s3, s3, 1")
    k.e("s_and_b32 s34, s2, 7")
    k.e("s_lshl_b32 s34, s34, 1")
    k.e("s_add_u32 s34, s34, s3")
    for j in range(4):
        k.e(f"s_mov_b32 s{48+j}, {j*7168}")
        k.e(f"s_mov_b32 s{52+j}, {j*15360}")
    k.e("s_lshl_b32 s56, s32, 13")
    k.e("s_add_u32 s57, s56, 32768")
    k.e("v_lshrrev_b32 v30, 3, v0")
    k.e("s_lshl_b32 s3, s32, 6")
    k.e("v_add_u32 v30, s3, v30")
    k.e("v_lshlrev_b32 v30, 10, v30")
    k.e("v_and_b32 v31, 7, v0")
    k.e("v_lshrrev_b32 v32, 4, v0")
    k.e("v_xor_b32 v31, v31, v32")
    k.e(f"v_lshl_add_u32 v{VOA}, v31, 4, v30")
    k.e("v_xor_b32 v31, 4, v31")
    k.e(f"v_lshl_add_u32 v{VOA+1}, v31, 4, v30")
    k.e(f"v_add_u32 v{VOA+2}, 32768, v{VOA}")
    k.e(f"v_add_u32 v{VOA+3}, 32768, v{VOA+1}")
    k.e("v_lshrrev_b32 v33, 5, v0")
    k.e("s_lshl_b32 s3, s32, 4")
    k.e("v_add_u32 v30, s3, v33")
    k.e("v_lshlrev_b32 v30, 13, v30")
    k.e("v_and_b32 v31, 31, v0")
    k.e("v_lshlrev_b32 v34, 1, v33")
    k.e("v_xor_b32 v31, v31, v34")
    for hi in range(2):
        for par in range(2):
            k.e(f"v_xor_b32 v34, {(2*par + 4*hi) << 1}, v31")
            k.e(f"v_lshl_add_u32 v{VOW + par + 2*hi}, v34, 4, v30")
            if hi: k.e(f"v_add_u32 v{VOW + par + 2*hi}, {8*8192}, v{VOW + par + 2*hi}")
    k.e("v_lshlrev_b32 v35, 11, v33")
    k.e("v_and_b32 v31, 31, v0")
    k.e("v_lshl_add_u32 v35, v31, 4, v35")
    k.e("v_lshrrev_b32 v36, 3, v0")
    k.e("v_lshlrev_b32 v36, 4, v36")
    k.e("s_waitcnt lgkmcnt(0)")
    k.stamp(ST)
    k.srd(16, 4, 4194304)
    k.srd(28, 44, 2048)
    k.e("s_lshl_b32 s36, s2, 14")
    k.e("s_lshl_b32 s37, s32, 9")
    k.e("s_add_u32 s36, s36, s37")
    k.e("s_lshl_b32 s38, s32, 12")
    k.e("s_add_u32 s38, s38, 131072")
    k.e("s_mov_b32 m0, s38")
    for i in range(4):
        k.e(f"s_add_u32 s3, s36, {i*3072}")
        k.e(f"buffer_load_dwordx4 v35, s[16:19], s3 offen offset:{i*1024}{opt.get('x_ld', '')} lds", tag='x')
    WR = 224
    for i in range(4):
        k.e(f"buffer_load_dwordx4 {V(WR+4*i,4)}, v36, s[28:31], s37 offen offset:{i*128}", tag='x')
    k.stamp(ST)
    k.e("s_lshl_b32 s3, s33, 18")
    k.srd(8, 6, 262144, "s3")
    k.e("s_cmp_eq_u32 s35, 0")
    k.e("s_cselect_b32 s40, s40, s42")
    k.e("s_cselect_b32 s41, s41, s43")
    k.e("s_lshl_b32 s3, s34, 9")
    k.srd(12, 40, 0, "s3")
    k.e("s_sub_u32 s14, 4194304, s3")
    k.srd(20, 46, 8 << 20)
    k.srd(24, 46, 32 << 20, WS_KV)

    def dma_ops(buf):
        ops = []
        for (base, vo, so, srd, fl) in ((57, VOW, 52, 12, opt.get('w_ld', '')), (56, VOA, 48, 8, opt.get('a_ld', ''))):
            for hi in range(2):
                ops.append(('s', f"s_add_u32 m0, s{base}, {buf*65536 + hi*4096}"))
                for lo in range(4):
                    ops.append(('g', f"buffer_load_dwordx4 v{vo + (lo&1) + 2*hi}, {S(srd,4)}, s{so+lo} offen offset:{lo*1024}{fl} lds"))
        return ops
    def adv_ops():
        return [f"v_add_u32 v{VOW+j}, {64*8192}, v{VOW+j}" for j in range(4)] + [f"v_add_u32 v{VOA+j}, 128, v{VOA+j}" for j in range(4)]
    def issue_stage(st):
        for t, s in dma_ops(st): k.e(s, tag=f'st{st}')
        for s in adv_ops(): k.e(s)
    PFV = 30 if False else 1
    def pf_setup():
        k.e("s_cmp_lt_u32 s32, 2")
        for j in range(3): k.e(f"s_cselect_b32 s{60+j}, s{8+j}, s{12+j}")
        k.e("s_mov_b32 s63, 0x20000")
        k.e(f"s_mov_b32 s59, {64*8192}")
        k.e(f"s_cselect_b32 s59, 128, s59")
        k.e("s_lshr_b32 s3, s2, 6")
        k.e("s_lshl_b32 s3, s3, 1")
        k.e("s_add_u32 s3, s3, s32")
        k.e("s_lshl_b32 s3, s3, 15")
        k.e("s_add_u32 s3, s3, 256")
        k.e("v_lshlrev_b32 v37, 10, v0")
        k.e("v_add_u32 v37, s3, v37")
        k.e("v_lshrrev_b32 v38, 2, v0")
        k.e("v_lshlrev_b32 v38, 13, v38")
        k.e("v_and_b32 v39, 3, v0")
        k.e("v_lshl_add_u32 v38, v39, 7, v38")
        k.e("s_lshl_b32 s39, s33, 1")
        k.e("s_add_u32 s39, s39, s32")
        k.e("s_lshl_b32 s39, s39, 15")
        k.e(f"s_add_u32 s39, s39, {120*8192}")
        k.e("v_add_u32 v38, s39, v38")
        k.e("s_cmp_lt_u32 s32, 2")
        k.e("s_cselect_b64 vcc, -1, 0")
        k.e("s_cselect_b32 s3, 32, 16")
        k.e(f"v_cndmask_b32 v{PFO}, v38, v37, vcc")
        k.e("v_cmp_gt_u32 vcc, s3, v0")
        k.e("v_mov_b32 v37, 0x7ff00000")
        k.e(f"v_cndmask_b32 v{PFO}, v37, v{PFO}, vcc")
    def pf_ops():
        return [f"buffer_load_dword v1, v{PFO}, s[60:63], 0 offen{opt.get('pf_ld', '')}", f"v_add_u32 v{PFO}, s59, v{PFO}"]
    def prefetch():
        pf_setup()
        for _ in range(2):
            for s in pf_ops(): k.e(s, tag='pf')
    PF = opt.get('pf', '0')
    if PF == '1': prefetch()
    issue_stage(0)
    k.stamp(ST)
    if PF == '2': prefetch()
    if opt.get('st1', '0') == '0': issue_stage(1)
    if PF == '3': prefetch()
    k.stamp(ST)
    k.e("v_and_b32 v30, 15, v0")
    k.e("s_lshr_b32 s3, s32, 1")
    k.e("s_lshl_b32 s3, s3, 14")
    k.e("v_lshlrev_b32 v31, 7, v30")
    k.e("v_add_u32 v31, s3, v31")
    k.e("v_lshrrev_b32 v33, 1, v30")
    k.e("v_xor_b32 v33, v33, v32")
    k.e(f"v_lshl_add_u32 v{AD}, v33, 4, v31")
    k.e("v_xor_b32 v33, 4, v33")
    k.e(f"v_lshl_add_u32 v{AD+1}, v33, 4, v31")
    k.e("v_lshrrev_b32 v30, 2, v30")
    k.e("v_lshl_add_u32 v31, v32, 3, v30")
    k.e("v_lshlrev_b32 v31, 9, v31")
    k.e("v_and_b32 v33, 3, v0")
    k.e("v_lshl_add_u32 v31, v33, 3, v31")
    k.e("s_and_b32 s3, s32, 1")
    k.e("s_lshl_b32 s3, s3, 8")
    k.e("s_add_u32 s3, s3, 32768")
    k.e("v_add_u32 v31, s3, v31")
    k.e("v_and_b32 v33, 1, v32")
    k.e("v_lshl_add_u32 v30, v33, 2, v30")
    for jj in range(8):
        k.e(f"v_xor_b32 v33, {jj}, v30")
        k.e(f"v_lshl_add_u32 v{AD+2+jj}, v33, 5, v31")
    for j in range(10):
        k.e(f"v_add_u32 v{AD+10+j}, 65536, v{AD+j}")
    LN_LO = 160
    for r in range(48, LN_LO): k.e(f"v_mov_b32 v{r}, 0")
    for r in range(128, 176): k.e(f"v_accvgpr_write_b32 a{r}, 0")

    XR, XF = 240, 160
    k.e("v_and_b32 v30, 7, v0")
    k.e("v_lshrrev_b32 v31, 3, v0")
    k.e("v_lshlrev_b32 v33, 9, v30")
    k.e("v_lshl_add_u32 v33, v31, 4, v33")
    k.e("v_add_u32 v33, s38, v33")
    k.e("v_lshlrev_b32 v34, 4, v30")
    k.e("v_add_u32 v34, 147456, v34")
    k.e("s_lshl_b32 s3, s32, 2")
    k.e("v_add_u32 v35, s3, v34")
    k.stamp(ST)
    k.wait_vm('x')
    k.stamp(ST)
    for i in range(4):
        k.e(f"ds_read_b128 {V(XR+4*i,4)}, v33 offset:{i*128}")
    for i in range(16):
        k.e(f"v_lshlrev_b32 v{192+2*i}, 16, v{WR+i}")
        k.e(f"v_and_b32 v{193+2*i}, 0xffff0000, v{WR+i}")
    k.e("s_waitcnt lgkmcnt(0)")
    for i in range(16):
        k.e(f"v_lshlrev_b32 v{XF+2*i}, 16, v{XR+i}")
        k.e(f"v_and_b32 v{XF+2*i+1}, 0xffff0000, v{XR+i}")
    def exchange(v, rnd):
        xlane_sum8(k, v, "v37")
        k.e(f"ds_write_b32 v35, {v} offset:{rnd*128}")
        k.e("s_waitcnt lgkmcnt(0)")
        k.e("s_barrier")
        k.e(f"ds_read_b128 v[40:43], v34 offset:{rnd*128}")
        k.e("s_waitcnt lgkmcnt(0)")
        k.e("v_add_f32 v40, v40, v41")
        k.e("v_add_f32 v42, v42, v43")
        k.e(f"v_add_f32 {v}, v40, v42")
    k.e(f"v_add_f32 v38, v{XF}, v{XF+1}")
    k.e(f"v_add_f32 v39, v{XF+2}, v{XF+3}")
    for i in range(4, 32, 2):
        k.e(f"v_add_f32 v38, v38, v{XF+i}")
        k.e(f"v_add_f32 v39, v39, v{XF+i+1}")
    k.e("v_add_f32 v38, v38, v39")
    exchange("v38", 0)
    if opt.get('st1', '0') == '1': issue_stage(1)
    k.e("v_mul_f32 v38, 0x3a800000, v38")
    k.e(f"v_sub_f32 v44, v{XF}, v38")
    k.e(f"v_sub_f32 v45, v{XF+1}, v38")
    k.e("v_mul_f32 v39, v44, v44")
    k.e("v_mul_f32 v46, v45, v45")
    for i in range(2, 32, 2):
        k.e(f"v_sub_f32 v44, v{XF+i}, v38")
        k.e(f"v_sub_f32 v45, v{XF+i+1}, v38")
        k.e("v_fmac_f32 v39, v44, v44")
        k.e("v_fmac_f32 v46, v45, v45")
    k.e("v_add_f32 v39, v39, v46")
    exchange("v39", 1)
    k.e("v_mul_f32 v39, 0x3a800000, v39")
    k.e("v_cvt_pk_bf16_f32 v44, v38, v39")
    k.e("v_lshlrev_b32 v38, 16, v44")
    k.e("v_and_b32 v39, 0xffff0000, v44")
    k.e("v_add_f32 v39, 0x3727c5ac, v39")
    k.e("v_cvt_pk_bf16_f32 v44, v39, v39")
    k.e("v_lshlrev_b32 v39, 16, v44")
    k.e("v_sqrt_f32 v39, v39")
    k.e("v_cvt_pk_bf16_f32 v44, v39, v39")
    k.e("v_lshlrev_b32 v44, 16, v44")
    k.e("v_rcp_f32 v39, v44")
    k.e("v_fma_f32 v45, -v44, v39, 1.0")
    k.e("v_fma_f32 v39, v45, v39, v39")
    for i in range(16):
        a, b = XF + 2*i, XF + 2*i + 1
        k.e(f"v_sub_f32 v{a}, v{a}, v38")
        k.e(f"v_sub_f32 v{b}, v{b}, v38")
        k.e(f"v_cvt_pk_bf16_f32 v44, v{a}, v{b}")
        k.e(f"v_lshlrev_b32 v{a}, 16, v44")
        k.e(f"v_and_b32 v{b}, 0xffff0000, v44")
        k.e(f"v_mul_f32 v{a}, v{a}, v39")
        k.e(f"v_mul_f32 v{b}, v{b}, v39")
        k.e(f"v_cvt_pk_bf16_f32 v{XR+i}, v{a}, v{b}")
        k.e(f"v_lshlrev_b32 v{a}, 16, v{XR+i}")
        k.e(f"v_and_b32 v{b}, 0xffff0000, v{XR+i}")
    k.e("v_lshlrev_b32 v44, 8, v31")
    k.e("v_lshl_add_u32 v44, v30, 4, v44")
    k.e("s_lshr_b32 s3, s2, 1")
    k.e("s_lshl_b32 s3, s3, 15")
    k.e("s_add_u32 s3, s3, s56")
    k.e("s_and_b32 s39, s2, 1")
    k.e("s_lshl_b32 s39, s39, 7")
    k.e("s_add_u32 s3, s3, s39")
    k.e("s_add_u32 s39, s3, 4096")
    for i in range(4):
        k.e(f"buffer_store_dwordx4 {V(XR+4*i,4)}, v44, s[20:23], s{3 if i < 2 else 39} offen offset:{(i&1)*2048}")
    k.e(f"v_mul_f32 v45, v{XF}, v192")
    k.e(f"v_mul_f32 v46, v{XF+1}, v193")
    for i in range(2, 32, 2):
        k.e(f"v_fmac_f32 v45, v{XF+i}, v{192+i}")
        k.e(f"v_fmac_f32 v46, v{XF+i+1}, v{193+i}")
    k.e("v_add_f32 v45, v45, v46")
    exchange("v45", 2)
    k.e("v_cvt_pk_bf16_f32 v45, v45, v45")
    k.e("v_ashrrev_i32 v46, 31, v45")
    k.e("v_or_b32 v46, 0x80000000, v46")
    k.e("v_xor_b32 v45, v45, v46")
    k.e("v_and_b32 v45, 0xffff0000, v45")
    k.e("s_lshl_b32 s3, s2, 3")
    k.e("v_add_u32 v46, s3, v30")
    k.e("v_sub_u32 v44, 0xffff, v46")
    k.e("v_or_b32 v45, v45, v44")
    k.e("v_lshlrev_b32 v44, 2, v46")
    k.e("v_lshlrev_b32 v46, 3, v46")
    k.e(f"s_mov_b32 s3, {WS_KEYS}")
    k.e(f"s_mov_b32 s39, {WS_STATS}")
    k.e("s_cmp_lg_u32 s32, 0")
    k.e("s_cbranch_scc1 L_k1_nokey")
    k.e("s_mov_b64 exec, 0xff")
    k.e("buffer_store_dword v45, v44, s[20:23], s3 offen", tag='w0only')
    k.e("buffer_store_dwordx2 v[38:39], v46, s[20:23], s39 offen", tag='w0only')
    k.e("s_mov_b64 exec, -1")
    k.label("L_k1_nokey")
    for r in range(LN_LO, 256): k.e(f"v_mov_b32 v{r}, 0")

    def reads(ks, buf):
        a = AD + 10 * buf
        ra = [f"ds_read_b128 {A(FA(ks,i),4)}, v{a+ks} offset:{i*2048}" for i in range(8)]
        rw = [[f"ds_read_b64_tr_b16 {A(FW(ks,j)+2*rd,2)}, v{a+2+j} offset:{ks*16384+rd*2048}" for rd in range(2)] for j in range(8)]
        out = []
        for j in range(8):
            out.append(rw[j]); out.append([ra[j]])
        return out
    k.stamp(ST)
    k.vq = [t for t in k.vq if t != 'w0only']
    k.e(f"s_waitcnt vmcnt({k.vm_n('st0')})")
    k.e("s_barrier")
    k.stamp(ST)
    n = 0
    for grp in reads(0, 0):
        for s in grp:
            k.e(s); n += 1
            if n == 12: k.e("s_waitcnt lgkmcnt(2)")
    k.e("s_cmp_lg_u32 s35, 0")
    k.e("s_cbranch_scc1 L_k1_vpath")

    def kstep(isV, ks, gaps, pre):
        for s in pre: k.e(s)
        order = [(it, jd, ks) for it in range(8) for jd in range(8)]
        ot = opt.get('order', '')
        if ot == 'chain': order = [(it, jd, q) for it in range(4 * ks, 4 * ks + 4) for jd in range(8) for q in range(2)]
        if ot == 'chainsnake': order = [(it, jd, q ^ (jd & 1)) for it in range(4 * ks, 4 * ks + 4) for jd in range(8) for q in range(2)]
        if ot == 'snake': order = [(it, jd if it % 2 == 0 else 7 - jd, ks) for it in range(8) for jd in range(8)]
        if ot == 'jouter': order = [(it, jd, ks) for jd in range(8) for it in range(8)]
        for n, (it, jd, q) in enumerate(order):
            fa, fw_ = A(FA(q, it), 4), A(FW(q, jd), 4)
            k.e(mfma(acc(it, jd), fa, fw_, acc(it, jd)) if isV else mfma(acc(it, jd), fw_, fa, acc(it, jd)))
            for s in gaps.get(n, []):
                if 'nods' in opt and s.startswith('ds_'): continue
                if 'nodma' in opt and s.startswith('buffer_'): continue
                k.e(s)
    DS = int(opt.get('dspace', 4))
    def stage(isV, p, dma, last, pf, pfprev):
        g = {}
        for n, grp in enumerate(reads(1, p)):
            g[2 * n + 1] = (["s_waitcnt lgkmcnt(6)"] if n % 4 == 3 else []) + grp
        kstep(isV, 0, g, ["s_waitcnt lgkmcnt(0)"])
        g = {}
        rd = [] if last else reads(0, p ^ 1)
        vw = 1 if pfprev else 0
        if dma:
            gi = 0
            first = True
            for t, s in dma_ops(p):
                if t == 's':
                    if first: pre_m0 = s; first = False
                    else: g.setdefault(gi - 1, []).insert(0, s)
                else:
                    g[gi] = [s]; gi += DS
            for n, grp in enumerate(rd):
                lst = g.setdefault(2 * n + 1, [])
                if n % 4 == 2: lst.append("s_waitcnt lgkmcnt(6)")
                lst += grp
            adv = adv_ops()
            free = [x for x in range(8 * DS - DS + 1, 64) if x not in g]
            for n, s in enumerate(adv[:4]): g.setdefault(free[n // 2], []).append(s)
            lastg = 15 * DS
            if pf:
                g[lastg + 2] = [pf_ops()[0]]
                g[lastg + 3] = adv[4:6] + adv[6:8] + [pf_ops()[1]] if lastg + 3 == 63 else adv[4:6]
                if lastg + 3 < 63:
                    g[lastg + 4] = adv[6:8]; g[lastg + 5] = [pf_ops()[1]]

            else:
                g[lastg + 1] = g.get(lastg + 1, []) + adv[4:6]; g[lastg + 2] = adv[6:8]
            pre = [f"s_waitcnt vmcnt({vw}) lgkmcnt(0)", pre_m0, "s_barrier"]
        else:
            for n, grp in enumerate(rd):
                g[2 * n + 1] = (["s_waitcnt lgkmcnt(6)"] if n % 4 == 3 else []) + grp
            pre = ["s_waitcnt lgkmcnt(0)"] if last else [f"s_waitcnt vmcnt({vw}) lgkmcnt(0)", "s_barrier"]
        kstep(isV, 1, g, pre)

    for isV in (0, 1):
        if isV: k.label("L_k1_vpath")
        k.hot = True
        k.e("s_mov_b32 s58, 3")
        L = k.newlabel("loop")
        k.label(L)
        stage(isV, 0, True, False, PF != '0', PF != '0')
        stage(isV, 1, True, False, PF != '0', PF != '0')
        k.e("s_sub_u32 s58, s58, 1")
        k.e("s_cmp_lg_u32 s58, 0")
        k.e(f"s_cbranch_scc1 {L}")
        k.nstamp = 9
        k.stamp(ST)
        stage(isV, 0, False, False, False, PF != '0')
        stage(isV, 1, False, True, False, False)
        k.e("s_waitcnt vmcnt(0)")
        k.hot = False
        k.stamp(ST)
        k.e("v_lshlrev_b32 v1, 4, v0")
        k.e("s_lshl_b32 s3, s34, 1")
        k.e("s_and_b32 s36, s32, 1")
        k.e("s_add_u32 s3, s3, s36")
        k.e("s_lshl_b32 s3, s3, 20")
        k.e("s_lshl_b32 s36, s33, 17")
        k.e("s_add_u32 s3, s3, s36")
        k.e("s_lshr_b32 s36, s32, 1")
        k.e("s_lshl_b32 s36, s36, 16")
        k.e("s_add_u32 s3, s3, s36")
        frags = []
        if not isV:
            for it in range(8):
                for s_ in range(4):
                    frags.append(((it, 2*s_), (it, 2*s_+1), (it >> 2) * 32768 + ((it & 3) * 4 + s_) * 1024))
        else:
            for tl in range(2):
                for jd in range(8):
                    for kq in range(2):
                        kk = 2 * tl + kq
                        frags.append(((2*kk, jd), (2*kk+1, jd), tl * 32768 + 16384 + (jd * 2 + kq) * 1024))
        curbase = None
        for n, (b0, b1, off) in enumerate(frags):
            t = 2 + 4 * (n % 4)
            for h, b in enumerate((b0, b1)):
                p, r = accreg(*b)
                if p == 'a':
                    for e_ in range(4): k.e(f"v_accvgpr_read_b32 v{20+e_}, a{r+e_}")
                    r = 20
                k.e(f"v_cvt_pk_bf16_f32 v{t+2*h}, v{r}, v{r+1}")
                k.e(f"v_cvt_pk_bf16_f32 v{t+2*h+1}, v{r+2}, v{r+3}")
            if off // 4096 != curbase:
                curbase = off // 4096
                k.e(f"s_add_u32 s36, s3, {curbase*4096}")
            k.e(f"buffer_store_dwordx4 {V(t,4)}, v1, s[24:27], s36 offen offset:{off % 4096}{opt.get('kv_st','')}")
        k.stamp(ST)
        if ST: k.e("s_waitcnt vmcnt(0)")
        k.stamp(ST)
        k.stamp_dump(ST, 46, 0, 32)
        k.e("s_endpgm")
    k.label("L_k1_end")
    k.e("s_endpgm")
    return k.wrap(256, 176), f"; @launch kernel=kv_kernel grid=(256,1,1) block=(256,1,1) lds={K1_LDS}"
```

```python
from fw import *
from layout import *

K2_LDS = 131072 + 8192
QSCALE = 0x3e0293ee

def wave_max_u32(k, v, sdst, st):
    for m in ["quad_perm:[1,0,3,2]", "quad_perm:[2,3,0,1]", "row_half_mirror", "row_mirror"]:
        k.e(f"v_max_u32_dpp {v}, {v}, {v} {m} row_mask:0xf bank_mask:0xf")
    for q in range(4):
        k.e(f"v_readlane_b32 s{st+q}, {v}, {16*q}")
    k.e(f"s_max_u32 s{st}, s{st}, s{st+1}")
    k.e(f"s_max_u32 s{st+2}, s{st+2}, s{st+3}")
    k.e(f"s_max_u32 s{sdst}, s{st}, s{st+2}")

def gen_k2(opt):
    k = Asm("attn_kernel")
    ST = 'stamp' in opt
    VX, VY, VDMA, VRA, VRB, ORR, T0 = 2, 3, 4, 5, 6, 7, 1
    ET = 8
    ONES, NINF = 16, 20
    NEGM, LS, PB, SB = 32, 48, 64, 128
    P = lambda par, qb, ks: PB + 32 * par + (qb * 2 + ks) * 4
    Sr = lambda par, qb, kb: SB + 64 * par + (qb * 4 + kb) * 4
    O = lambda qb, db: (qb * 8 + db) * 4
    Q = lambda qb, s: 128 + (qb * 4 + s) * 4
    FR = lambda grp, j: 192 + 16 * grp + 4 * j

    k.e("s_cmp_ge_u32 s2, 256")
    k.e("s_cbranch_scc1 L_k2_end")
    k.stamp(ST)
    k.e("s_load_dwordx2 s[4:5], s[0:1], 16")
    k.e("s_load_dwordx2 s[6:7], s[0:1], 104")
    k.e("s_load_dwordx4 s[40:43], s[0:1], 64")
    k.e("v_lshrrev_b32 v1, 6, v0")
    k.e("v_and_b32 v0, 63, v0")
    k.e("v_readfirstlane_b32 s32, v1")
    k.e("s_and_b32 s33, s2, 7")
    k.e("s_lshl_b32 s33, s33, 2")
    k.e("s_bfe_u32 s3, s2, 0x20003")
    k.e("s_add_u32 s33, s33, s3")
    k.e("s_lshr_b32 s34, s2, 5")
    k.e("s_lshl_b32 s35, s34, 1")
    k.e("s_sub_u32 s36, 32, s35")
    k.e("s_add_u32 s35, s35, 2")
    k.e("s_lshl_b32 s44, s32, 12")
    for j in range(4): k.e(f"s_mov_b32 s{48+j}, {j*31744}")
    k.e("s_mov_b32 s52, 32768")
    WV, XV, TA = 8, 10, 16
    k.e("v_lshrrev_b32 v24, 4, v0")
    k.e("v_and_b32 v25, 15, v0")
    k.e("s_lshl_b32 s3, s32, 4")
    k.e("v_add_u32 v26, s3, v24")
    k.e("v_lshlrev_b32 v26, 13, v26")
    k.e("v_lshlrev_b32 v27, 1, v24")
    k.e("v_xor_b32 v27, v27, v25")
    k.e(f"v_lshl_add_u32 v{WV}, v27, 4, v26")
    k.e("v_xor_b32 v27, 8, v27")
    k.e(f"v_lshl_add_u32 v{WV+1}, v27, 4, v26")
    k.e(f"v_lshlrev_b32 v{VX}, 4, v0")
    k.e(f"v_add_u32 v{VY}, 65536, v{VX}")
    k.e(f"v_add_u32 v{VDMA}, s44, v{VX}")
    k.e("s_sub_u32 s3, 15, s34")
    k.e("s_lshl_b32 s45, s3, 2")
    k.e("s_add_u32 s45, s45, s32")
    k.e("s_lshl_b32 s46, s34, 2")
    k.e("s_add_u32 s46, s46, s32")
    k.e("s_lshl_b32 s3, s45, 16")
    k.e(f"v_add_u32 v{XV}, s3, v{VX}")
    k.e("s_lshl_b32 s3, s46, 16")
    k.e(f"v_add_u32 v{XV+1}, s3, v{VX}")
    k.e("v_lshlrev_b32 v26, 2, v24")
    k.e("v_sub_u32 v26, v25, v26")
    k.e("s_lshl_b32 s3, s45, 5")
    k.e(f"v_add_u32 v{VRA}, s3, v26")
    k.e("s_lshl_b32 s3, s46, 5")
    k.e(f"v_add_u32 v{VRB}, s3, v26")
    k.e("v_lshrrev_b32 v26, 2, v25")
    k.e("v_lshl_add_u32 v27, v24, 3, v26")
    k.e("v_lshlrev_b32 v27, 8, v27")
    k.e("v_and_b32 v28, 3, v0")
    k.e("v_lshl_add_u32 v27, v28, 3, v27")
    k.e("v_and_b32 v28, 1, v24")
    k.e("v_lshl_add_u32 v26, v28, 2, v26")
    for db in range(8):
        k.e(f"v_xor_b32 v28, {db}, v26")
        k.e(f"v_lshl_add_u32 v{TA+db}, v28, 5, v27")
    k.e("s_waitcnt lgkmcnt(0)")
    k.e("s_lshl_b32 s3, s33, 8")
    k.srd(8, 4, 0, "s3")
    k.e("s_sub_u32 s10, 8388608, s3")
    k.srd(16, 6, 8 << 20)
    k.e("s_lshl_b32 s3, s33, 20")
    k.e(f"s_add_u32 s3, s3, {WS_KV}")
    k.srd(12, 6, 0, "s3")
    k.e("s_lshl_b32 s14, s36, 15")
    k.srd(20, 6, 16 << 20, WS_CTX)
    k.srd(24, 40, 7340032)
    k.srd(28, 42, 7340032)

    QA = lambda db, qb: 128 + (db * 4 + qb) * 4
    XR = lambda kk, qb: ((kk % 8) * 4 + qb) * 4
    WF = lambda kk, db: 192 + (kk & 1) * 32 + db * 4
    wq_ld, xn_ld, kv_ld = opt.get('wq_ld', ''), opt.get('xn_ld', ''), opt.get('kv_ld', '')
    def chunk_ops(c):
        ops = [('s', f"s_add_u32 m0, s44, {(c % 8) * 16384}")]
        if c < 16:
            for j in range(4):
                ops.append(('g', f"buffer_load_dwordx4 v{WV + (j >> 1)}, s[8:11], s{48+j} offen offset:{j*1024}{wq_ld} lds"))
            ops.append(('v', f"v_add_u32 v{WV}, {64*8192}, v{WV}"))
            ops.append(('v', f"v_add_u32 v{WV+1}, {64*8192}, v{WV+1}"))
        else:
            ops.append(('s', f"s_mov_b32 s47, {(c - 16) * 16384}"))
            for j in range(4):
                ops.append(('g', f"buffer_load_dwordx4 v{VDMA}, s[12:15], s47 offen offset:{j*1024}{kv_ld} lds"))
        return ops
    def xn_ops(kk):
        ops = []
        for qb in range(4):
            so = "s52" if qb & 1 else "0"
            ops.append(('g', f"buffer_load_dwordx4 {A(XR(kk,qb),4)}, v{XV + (qb >> 1)}, s[16:19], {so} offen offset:{(kk % 4)*1024}{xn_ld}"))
        if kk % 4 == 3:
            ops.append(('v', f"v_add_u32 v{XV}, 4096, v{XV}"))
            ops.append(('v', f"v_add_u32 v{XV+1}, 4096, v{XV+1}"))
        return ops
    def wreads(kk):
        st, ks = kk // 2, kk & 1
        return [[f"ds_read_b64_tr_b16 {A(WF(kk,db)+2*rd,2)}, v{TA+db} offset:{(st % 4)*16384 + ks*8192 + rd*1024}" for rd in range(2)] for db in range(8)]

    for c in range(7):
        for t, s in chunk_ops(c): k.e(s, tag=f'c{c}')
        if c < 4:
            for kk in (2 * c, 2 * c + 1):
                if kk < 7:
                    for t, s in xn_ops(kk): k.e(s, tag=f'x{kk}')
    k.stamp(ST)
    for r in range(128, 256): k.e(f"v_mov_b32 v{r}, 0")

    if 'noffn' not in opt:
        k.e("s_waitcnt vmcnt(36)")
        KY = 32
        k.e(f"s_mov_b32 s3, {WS_KEYS}")
        k.e(f"s_mov_b32 s47, {WS_KEYS + 4096}")
        for i in range(8):
            k.e(f"buffer_load_dwordx4 {V(KY+4*i,4)}, v{VX}, s[16:19], s{3 if i < 4 else 47} offen offset:{(i % 4)*1024}", tag='keys')
        k.e("s_mul_i32 s53, s2, 2341")
        k.e("s_lshr_b32 s53, s53, 16")
        k.e("s_mul_i32 s3, s53, 28")
        k.e("s_sub_u32 s54, s2, s3")
        k.e("s_lshl_b32 s55, s53, 2")
        k.e("s_add_u32 s55, s55, s32")
        k.e(f"s_mul_i32 s3, s55, {32*7168}")
        k.e("s_lshl_b32 s47, s54, 8")
        k.e("s_add_u32 s3, s3, s47")
        k.e(f"v_mul_u32_u24 v26, {8*7168}, v24")
        k.e("v_lshl_add_u32 v26, v25, 4, v26")
        GW = 64
        for jj in range(8):
            for m in range(2):
                k.e(f"buffer_load_dwordx4 {V(GW + (jj*2+m)*4, 4)}, v26, {S(24+4*m,4)}, s3 offen{opt.get('ffn_ld','')}", tag='gw')
            if jj < 7: k.e("s_add_u32 s3, s3, 7168")
        k.wait_vm('keys')
        k.e(f"v_max_u32 v28, v{KY}, v{KY+1}")
        k.e(f"v_min_u32 v29, v{KY}, v{KY+1}")
        for i in range(2, 32):
            k.e(f"v_med3_u32 v29, v28, v29, v{KY+i}")
            k.e(f"v_max_u32 v28, v28, v{KY+i}")
        k.e("v_mov_b32 v30, v28")
        wave_max_u32(k, "v30", 56, 58)
        k.e("v_cmp_eq_u32 vcc, s56, v28")
        k.e("v_cndmask_b32 v30, v28, v29, vcc")
        wave_max_u32(k, "v30", 57, 58)
        for t in range(2):
            k.e(f"s_and_b32 s3, s{56+t}, 0xffff")
            k.e(f"s_sub_u32 s{58+t}, 0xffff, s3")
            k.e(f"s_lshr_b32 s3, s{58+t}, 4")
            k.e("s_lshl_b32 s3, s3, 15")
            k.e(f"s_and_b32 s47, s{58+t}, 15")
            k.e("s_lshl_b32 s47, s47, 4")
            k.e("s_add_u32 s3, s3, s47")
            k.e("s_lshl_b32 s47, s55, 10")
            k.e("s_add_u32 s3, s3, s47")
            k.e("v_lshlrev_b32 v27, 8, v24")
            k.e(f"buffer_load_dwordx4 {V(24+4+4*t if False else 12 if t == 0 else 28, 4)}, v27, s[16:19], s3 offen", tag='xs')
        k.e("s_or_b32 s3, s2, s32")
        k.e("s_cmp_lg_u32 s3, 0")
        k.e("s_cbranch_scc1 L_k2_nosel")
        for t in range(2):
            k.e(f"v_mov_b32 v{32+t}, s{58+t}")
            k.e(f"v_mov_b32 v36, s{56+t}")
            k.e("v_not_b32 v37, v36")
            k.e("v_ashrrev_i32 v37, 31, v37")
            k.e("v_or_b32 v37, 0x80000000, v37")
            k.e("v_xor_b32 v36, v36, v37")
            k.e("v_and_b32 v36, 0xffff0000, v36")
            k.e("v_mul_f32 v36, 0xbfb8aa3b, v36")
            k.e("v_exp_f32 v36, v36")
            k.e("v_add_f32 v36, 1.0, v36")
            k.e("v_rcp_f32 v36, v36")
            k.e("v_cvt_pk_bf16_f32 v36, v36, v36")
            k.e(f"v_and_b32 v{34+t}, 0xffff0000, v36")
        k.e("v_mov_b32 v36, 0")
        k.e(f"s_mov_b32 s3, {WS_SEL}")
        k.e("s_mov_b64 exec, 1")
        k.e("buffer_store_dwordx4 v[32:35], v36, s[16:19], s3 offen", tag='w0')
        k.e("s_mov_b64 exec, -1")
        k.label("L_k2_nosel")
        k.e("s_waitcnt vmcnt(0)")
        k.e("s_cmp_ge_u32 s2, 224")
        k.e("s_cbranch_scc1 L_k2_noffn")
        FA = 32
        XS = (12, 28)
        for jj in range(8):
            for t in range(2):
                src = XS[t] + jj // 2
                if jj & 1: k.e(f"v_and_b32 v{1 if t == 0 else 7}, 0xffff0000, v{src}")
                else: k.e(f"v_lshlrev_b32 v{1 if t == 0 else 7}, 16, v{src}")
            for m in range(2):
                for d in range(4):
                    w = GW + (jj * 2 + m) * 4 + d
                    k.e(f"v_lshlrev_b32 v26, 16, v{w}")
                    k.e(f"v_and_b32 v27, 0xffff0000, v{w}")
                    for t in range(2):
                        a = FA + (m * 2 + t) * 8 + 2 * d
                        xs = 1 if t == 0 else 7
                        if jj == 0:
                            k.e(f"v_mul_f32 v{a}, v26, v{xs}"); k.e(f"v_mul_f32 v{a+1}, v27, v{xs}")
                        else:
                            k.e(f"v_fmac_f32 v{a}, v26, v{xs}"); k.e(f"v_fmac_f32 v{a+1}, v27, v{xs}")
        for j in range(16):
            k.e(f"v_permlane32_swap_b32 v{FA+j}, v{FA+16+j}")
        for j in range(16):
            k.e(f"v_add_f32 v{FA+j}, v{FA+j}, v{FA+16+j}")
        for j in range(8):
            k.e(f"v_permlane16_swap_b32 v{FA+j}, v{FA+8+j}")
        for j in range(8):
            k.e(f"v_add_f32 v{FA+j}, v{FA+j}, v{FA+8+j}")
        k.e("s_lshl_b32 s3, s32, 11")
        k.e("s_add_u32 s3, s3, 131072")
        k.e(f"v_add_u32 v26, s3, v{VX}")
        k.e(f"ds_write_b128 v26, {V(FA,4)}")
        k.e(f"ds_write_b128 v26, {V(FA+4,4)} offset:1024")
        k.e("s_waitcnt lgkmcnt(0)")
        k.e("s_barrier")
        k.e("s_cmp_ge_u32 s32, 2")
        k.e("s_cbranch_scc1 L_k2_noffn")
        k.e("s_lshl_b32 s3, s32, 10")
        k.e("s_add_u32 s3, s3, 131072")
        k.e(f"v_add_u32 v26, s3, v{VX}")
        for w in range(4):
            k.e(f"ds_read_b128 {V(FA+4*w,4)}, v26 offset:{w*2048}")
        k.e("v_mul_u32_u24 v27, 14336, v24")
        k.e("v_lshl_add_u32 v27, v25, 5, v27")
        k.e(f"s_mul_i32 s3, s53, {4*14336}")
        k.e("s_lshl_b32 s47, s54, 9")
        k.e("s_add_u32 s3, s3, s47")
        k.e("s_lshl_b32 s47, s32, 4")
        k.e("s_add_u32 s3, s3, s47")
        k.e(f"s_add_u32 s3, s3, {WS_HP}")
        k.e("s_waitcnt lgkmcnt(0)")
        for j in range(4):
            k.e(f"v_add_f32 v{FA+j}, v{FA+j}, v{FA+4+j}")
            k.e(f"v_add_f32 v{FA+8+j}, v{FA+8+j}, v{FA+12+j}")
            k.e(f"v_add_f32 v{FA+j}, v{FA+j}, v{FA+8+j}")
        k.e(f"buffer_store_dwordx4 {V(FA,4)}, v27, s[16:19], s3 offen", tag='w0')
        k.label("L_k2_noffn")
        k.vq = []
    k.stamp(ST)

    k.wait_vm('c0')
    k.e("s_barrier")
    for n, grp in enumerate(wreads(0)):
        for s in grp: k.e(s)
        if n == 5: k.e("s_waitcnt lgkmcnt(4)")
    k.hot = True
    for kk in range(32):
        st, ks = kk // 2, kk & 1
        nx = k.vm_n(f'x{kk}')
        if ks == 1 and st < 15:
            nc = k.vm_n(f'c{st+1}')
            if nc is not None: nx = nc if nx is None else min(nx, nc)
        k.e("s_waitcnt " + (f"vmcnt({nx}) " if nx is not None else "") + "lgkmcnt(0)")
        if ks == 1 and st < 15: k.e("s_barrier")
        g = {}
        if kk + 1 < 32:
            toggle = ks == 1 and st % 4 == 3
            base = 0
            if toggle:
                for db in range(8): g.setdefault(db // 2, []).append(f"v_xor_b32 v{TA+db}, 65536, v{TA+db}")
                base = 4
            for n, grp in enumerate(wreads(kk + 1)):
                g[base + 1 + 3 * n] = (["s_waitcnt lgkmcnt(6)"] if n == 5 else []) + grp
        vm = []
        co = chunk_ops(st + 7)
        gl = [x for x in co if x[0] == 'g']
        if ks == 0: vm += [x for x in co if x[0] == 's'] + gl[:2]
        else: vm += gl[2:] + [x for x in co if x[0] == 'v']
        tags = [f'c{st+7}'] * len(vm)
        if kk + 7 < 32:
            xo = xn_ops(kk + 7); vm += xo; tags += [f'x{kk+7}'] * len(xo)
        free = [x for x in range(32) if x not in g]
        base = 4 if (ks == 1 and st % 4 == 3) else 0
        pos = base + 2
        gt = {}
        for (t, s), tg in zip(vm, tags):
            if t == 's': g.setdefault(0, []).append(s)
            elif t == 'g':
                while pos in g: pos += 1
                g[pos] = [s]; gt[pos] = tg; last = pos; pos += 4
            else:
                q = last + 1
                while q in g and (len(g[q]) >= 2 or g[q][0].startswith(('buffer', 'ds_', 's_'))): q += 1
                g.setdefault(q, []).append(s)
        n = 0
        for db in range(8):
            for qb in range(4):
                k.e(mfma(V(QA(db, qb), 4), A(WF(kk, db), 4), A(XR(kk, qb), 4), V(QA(db, qb), 4)))
                for s in g.get(n, []): k.e(s, tag=gt.get(n))
                n += 1
    k.hot = False
    k.stamp(ST)
    k.e(f"s_mov_b32 s3, {QSCALE}")
    for qb in range(4):
        for s_ in range(4):
            for h in range(2):
                r = QA(2 * s_ + h, qb)
                for e_ in range(4): k.e(f"v_mul_f32 v{r+e_}, s3, v{r+e_}")
                k.e(f"v_cvt_pk_bf16_f32 v{r}, v{r}, v{r+1}")
                k.e(f"v_cvt_pk_bf16_f32 v{r+1}, v{r+2}, v{r+3}")
                k.e(f"v_accvgpr_write_b32 a{Q(qb,s_)+2*h}, v{r}")
                k.e(f"v_accvgpr_write_b32 a{Q(qb,s_)+2*h+1}, v{r+1}")
    for r in range(128): k.e(f"v_accvgpr_write_b32 a{r}, 0")
    for r in range(16): k.e(f"v_mov_b32 v{LS+r}, 0")
    for r in range(4): k.e(f"v_mov_b32 v{ONES+r}, 0x3f803f80")
    k.e(f"v_mov_b32 v{NINF}, 0xff800000")

    def kread(reg, off, kb):
        return [f"ds_read_b128 {A(FR(kb,s_),4)}, v{reg} offset:{off + (kb*4+s_)*1024}" for s_ in range(4)]
    def vread(reg, off, vg):
        return [f"ds_read_b128 {A(FR(vg,j),4)}, v{reg} offset:{off + (vg*4+j)*1024}" for j in range(4)]
    def qk_mfmas(par, nq, zero=False):
        out = []
        for kb in range(4):
            grp = []
            for qb in range(nq):
                d = V(Sr(par, qb, kb), 4)
                for s_ in range(4):
                    c = d if s_ else ("0" if zero else V(NEGM + 4 * qb, 4))
                    grp.append(mfma(d, A(FR(kb, s_), 4), A(Q(qb, s_), 4), c))
            out.append(grp)
        return out
    def pv_mfmas(par, nq):
        out = []
        for vg in range(4):
            grp = []
            for dd in range(2):
                for qb in range(nq):
                    for ks in range(2):
                        o = A(O(qb, 2 * vg + dd), 4)
                        grp.append(mfma(o, A(FR(vg, 2 * dd + ks), 4), V(P(par, qb, ks), 4), o))
            if vg < nq:
                for ks in range(2):
                    l = V(LS + 4 * vg, 4)
                    grp.append(mfma(l, V(ONES, 4), V(P(par, vg, ks), 4), l))
            out.append(grp)
        return out
    def sm_pairs(par, nq, ks):
        out = []
        for kq in range(2):
            for qb in range(nq):
                s0 = Sr(par, qb, 2 * ks + kq)
                for h in range(2):
                    out.append((s0 + 2 * h, s0 + 2 * h + 1, P(par, qb, ks) + 2 * kq + h))
        return out
    class SM:
        def __init__(self, pairs, first, check):
            self.pairs = pairs; self.ne = 0; self.nc = 0; self.no = 0; self.first = first
            self.tail = [f"v_and_b32 v{T0}, 0x40004000, v{ORR}", f"v_cmp_ne_u32 vcc, 0, v{T0}"] if check else []
            self.e_done = 0; self.extra = []
        def tick(self): self.e_done = self.ne
        def exp_ready(self): return self.ne < 2 * len(self.pairs) and self.ne // 2 - self.nc < 4
        def exp(self):
            j, h = self.ne // 2, self.ne & 1; self.ne += 1
            return f"v_exp_f32 v{ET + 2*(j % 4) + h}, v{self.pairs[j][h]}"
        def plain_avail(self):
            n = min(self.e_done // 2, len(self.pairs)) - self.nc
            n += self.nc // 2 - self.no
            if self.no == len(self.pairs) // 2: n += len(self.tail)
            return n + len(self.extra)
        def plain(self):
            if self.nc < min(self.e_done // 2, len(self.pairs)):
                j = self.nc; self.nc += 1
                return f"v_cvt_pk_bf16_f32 v{self.pairs[j][2]}, v{ET + 2*(j % 4)}, v{ET + 2*(j % 4) + 1}"
            if self.no < self.nc // 2:
                j = self.no; self.no += 1
                a, b = self.pairs[2 * j][2], self.pairs[2 * j + 1][2]
                if self.first and j == 0: return f"v_or_b32 v{ORR}, v{a}, v{b}"
                return f"v_or3_b32 v{ORR}, v{ORR}, v{a}, v{b}"
            if self.no == len(self.pairs) // 2 and self.tail: return self.tail.pop(0)
            if self.extra: return self.extra.pop(0)
            return None
        def left_exp(self): return 2 * len(self.pairs) - self.ne
        def left_plain(self): return len(self.pairs) - self.nc + len(self.pairs) // 2 - self.no + len(self.tail) + len(self.extra)
        def done(self): return self.left_exp() == 0 and self.left_plain() == 0
        def drain(self):
            while not self.done():
                self.tick()
                if self.exp_ready():
                    k.e(self.exp())
                    if self.exp_ready(): k.e(self.exp())
                    x = self.plain()
                    if x: k.e(x)
                else:
                    k.e(self.plain())
    def phase(groups, gtags, reads, rtags, sm, vm, nexttag):
        total = sum(len(g) for g in groups)
        vmpos = {}
        if vm:
            step = max(2, (total - 2) // len(vm))
            for j, x in enumerate(vm): vmpos[1 + j * step] = x
        n = 0
        k.wait_ds(gtags[0])
        for gi, grp in enumerate(groups):
            rq = list(reads[gi])
            for mi, m in enumerate(grp):
                k.e(m)
                sm.tick()
                scal = []
                if n + 1 in vmpos: scal += vmpos[n + 1][0]
                lastm = mi == len(grp) - 1
                if n in vmpos:
                    for s in scal: k.e(s)
                    k.e(vmpos[n][1], tag='kv')
                    slots = 0
                else:
                    for s in scal: k.e(s)
                    if lastm:
                        nt = gtags[gi + 1] if gi + 1 < len(groups) else nexttag
                        if nt: k.wait_ds(nt)
                    slots = 2
                    gaps_left = len([x for x in range(n, n + len(grp) - mi) if x not in vmpos])
                    want_d = len(rq) > 0 and (sm.plain_avail() > 0 or not sm.exp_ready() or len(rq) >= gaps_left - 1)
                    if want_d:
                        k.e(rq.pop(0), tag=rtags[gi]); slots -= 1
                        if rq and (sm.plain_avail() == 0 or len(rq) >= gaps_left):
                            k.e(rq.pop(0), tag=rtags[gi]); slots -= 1
                    if slots == 2 and sm.exp_ready() and not (sm.plain_avail() >= 3 and not rq):
                        k.e(sm.exp()); slots = 0
                    while slots > 0:
                        x = sm.plain()
                        if not x: break
                        k.e(x); slots -= 1
                if lastm:
                    for s in rq: k.e(s, tag=rtags[gi])
                    nt = gtags[gi + 1] if gi + 1 < len(groups) else nexttag
                    if nt: k.wait_ds(nt)
                n += 1
        sm.drain()

    ool = []
    def mask_block(par, q0, vr):
        k.e("s_nop 7")
        k.e("s_add_u32 s3, s37, 1")
        k.e("s_lshl_b32 s3, s3, 6")
        k.e(f"v_subrev_u32 v{T0}, s3, v{vr}")
        for c in range(-1, 4):
            for r in range(4): k.e(f"v_cmp_gt_i32 s[{56+2*r}:{57+2*r}], {16*c + r}, v{T0}")
            for qq in range(2):
                kb = c + qq
                if 0 <= kb < 4:
                    for r in range(4):
                        x = Sr(par, q0 + qq, kb) + r
                        k.e(f"v_cndmask_b32 v{x}, v{x}, v{NINF}, s[{56+2*r}:{57+2*r}]")
        k.e("s_nop 1")
    def rowmax(par, qb, d):
        s0 = Sr(par, qb, 0)
        k.e(f"v_max3_f32 v{d}, v{s0}, v{s0+1}, v{s0+2}")
        for r in range(3, 15, 2): k.e(f"v_max3_f32 v{d}, v{d}, v{s0+r}, v{s0+r+1}")
        k.e(f"v_max_f32 v{d}, v{d}, v{s0+15}")
        k.e(f"v_mov_b32 v{T0}, v{d}")
        k.e(f"v_permlane16_swap_b32 v{T0}, v{d}")
        k.e(f"v_max_f32 v{d}, v{d}, v{T0}")
        k.e(f"v_mov_b32 v{T0}, v{d}")
        k.e(f"v_permlane32_swap_b32 v{T0}, v{d}")
        k.e(f"v_max_f32 v{d}, v{d}, v{T0}")
        k.e(f"v_add_f32 v{d}, 0x40e00000, v{d}")
    def fallback(par, nq, nqn):
        k.e("s_nop 7")
        for qb in range(nq):
            rowmax(par, qb, 21)
            k.e("v_max_f32 v21, 0, v21")
            for r in range(16): k.e(f"v_sub_f32 v{Sr(par,qb,0)+r}, v{Sr(par,qb,0)+r}, v21")
            if qb < nqn:
                for r in range(16): k.e(f"v_sub_f32 v{Sr(par^1,qb,0)+r}, v{Sr(par^1,qb,0)+r}, v21")
            for r in range(4): k.e(f"v_sub_f32 v{NEGM+4*qb+r}, v{NEGM+4*qb+r}, v21")
            k.e("v_exp_f32 v22, -v21")
            for r in range(4): k.e(f"v_mul_f32 v{LS+4*qb+r}, v{LS+4*qb+r}, v22")
            for r0 in range(0, 32, 8):
                for r in range(8): k.e(f"v_accvgpr_read_b32 v{ET+r}, a{O(qb,0)+r0+r}")
                for r in range(8): k.e(f"v_mul_f32 v{ET+r}, v{ET+r}, v22")
                for r in range(8): k.e(f"v_accvgpr_write_b32 a{O(qb,0)+r0+r}, v{ET+r}")
        for ks in range(2):
            for (s0, s1, pd) in sm_pairs(par, nq, ks):
                k.e(f"v_exp_f32 v{ET}, v{s0}")
                k.e(f"v_exp_f32 v{ET+1}, v{s1}")
                k.e(f"v_cvt_pk_bf16_f32 v{pd}, v{ET}, v{ET+1}")
        k.e("s_nop 1")
    def dma_iter(par):
        mk, mv = ((f"s_add_u32 m0, s53, 32768", f"s_add_u32 m0, s54, 49152") if par == 0 else
                  (f"s_mov_b32 m0, s54", f"s_add_u32 m0, s53, 16384"))
        vm = []
        for j in range(4):
            vm.append(([mv] if j == 0 else [], f"buffer_load_dwordx4 v{VDMA}, s[12:15], s39 offen offset:{j*1024}{kv_ld} lds"))
        for j in range(4):
            pre = [mk] if j == 0 else (["s_add_u32 s39, s39, 32768"] if j == 1 else [])
            vm.append((pre, f"buffer_load_dwordx4 v{VDMA}, s[12:15], s38 offen offset:{j*1024}{kv_ld} lds"))
        return vm
    def iteration(par, nq, nqn, maskq0, name):
        kreg, koff = (VX, 32768) if par == 0 else (VY, 0)
        vreg, voff = (VX, 16384) if par == 0 else (VX, 49152)
        nreg, noff = (VY, 0) if par == 0 else (VY, 32768)
        k.hot = True
        sm = SM(sm_pairs(par, nq, 1), False, True)
        if nqn:
            k.dq = ['k0'] * 4 + ['k1'] * 4
            phase(qk_mfmas(par ^ 1, nqn), ['k0', 'k1', 'k2', 'k3'],
                  [kread(kreg, koff, 2), kread(kreg, koff, 3), vread(vreg, voff, 0), vread(vreg, voff, 1)],
                  ['k2', 'k3', 'v0', 'v1'], sm, [], None)
        else:
            k.dq = ['k0'] * 4 + ['k1'] * 4
            k.e("s_waitcnt lgkmcnt(0)")
            for s in vread(vreg, voff, 0): k.e(s, tag='v0')
            for s in vread(vreg, voff, 1): k.e(s, tag='v1')
            k.hot = False
            sm.drain()
            k.hot = True
        fb, fr = f"L_k2_fb_{name}", f"L_k2_fbr_{name}"
        k.e(f"s_cbranch_vccnz {fb}")
        k.label(fr)
        ool.append((fb, lambda: fallback(par, nq, nqn), fr))
        if nqn:
            mb, mr = f"L_k2_mk_{name}", f"L_k2_mkr_{name}"
            k.e(f"s_cmp_ge_u32 s37, s{60 if maskq0 == 0 else 61}") if False else k.e(f"s_cmp_ge_u32 s37, s{45 if maskq0 == 0 else 46}")
            k.e(f"s_cbranch_scc1 {mb}")
            k.label(mr)
            ool.append((mb, lambda: mask_block(par ^ 1, maskq0, VRA if maskq0 == 0 else VRB), mr))
            k.e("s_waitcnt vmcnt(12)")
            k.e("s_barrier")
        sm = SM(sm_pairs(par ^ 1, nqn, 0), True, False)
        phase(pv_mfmas(par, nq), ['v0', 'v1', 'v2', 'v3'],
              [vread(vreg, voff, 2), vread(vreg, voff, 3)] + ([kread(nreg, noff, 0), kread(nreg, noff, 1)] if nqn else [[], []]),
              ['v2', 'v3', 'k0', 'k1'], sm, dma_iter(par) if nqn else [], None)
        if nqn:
            k.e("s_add_u32 s38, s38, 32768")
            k.e("s_add_u32 s37, s37, 1")
            if par == 1:
                k.e(f"v_swap_b32 v{VX}, v{VY}")
                k.e("s_xor_b32 s53, s53, 65536")
                k.e("s_xor_b32 s54, s54, 65536")
        k.hot = False
    def epilogue(q0, srow):
        k.e(f"s_lshl_b32 s3, s{srow}, 20")
        k.e("s_lshl_b32 s47, s33, 15")
        k.e("s_add_u32 s3, s3, s47")
        k.e("s_lshl_b32 s47, s32, 11")
        k.e("s_add_u32 s3, s3, s47")
        k.e("v_lshlrev_b32 v23, 4, v0")
        for qq in range(2):
            k.e(f"v_rcp_f32 v{21+qq}, v{LS+4*(q0+qq)}")
        for s_ in range(4):
            for qq in range(2):
                o = O(q0 + qq, 2 * s_)
                d = 24 + 4 * qq
                for r in range(8): k.e(f"v_accvgpr_read_b32 v{ET+r}, a{o+r}")
                for r in range(8): k.e(f"v_mul_f32 v{ET+r}, v{ET+r}, v{21+qq}")
                for r in range(4): k.e(f"v_cvt_pk_bf16_f32 v{d+r}, v{ET+2*r}, v{ET+2*r+1}")
                k.e(f"buffer_store_dwordx4 {V(d,4)}, v23, s[20:23], s3 offen offset:{qq*1024}{opt.get('ctx_st','')}")
            if s_ < 3: k.e("s_add_u32 s3, s3, 8192")

    k.e("s_sub_u32 s55, 15, s34")
    k.e("s_sub_u32 s45, s36, 3")
    k.e("s_sub_u32 s46, s35, 3")
    k.e("s_max_i32 s46, s46, 0")
    k.e("s_mov_b32 s53, s44")
    k.e("s_add_u32 s54, s44, 65536")
    k.wait_vm('c18')
    k.e("s_barrier")
    k.stamp(ST)
    for kb in range(2):
        for s in kread(VX, 0, kb): k.e(s, tag=f'k{kb}')
    sm = SM([], False, False)
    phase(qk_mfmas(0, 4, zero=True), ['k0', 'k1', 'k2', 'k3'],
          [kread(VX, 0, 2), kread(VX, 0, 3), kread(VX, 32768, 0), kread(VX, 32768, 1)], ['k2', 'k3', 'n0', 'n1'], sm, [], None)
    k.e("s_barrier")
    k.e("s_mov_b32 m0, s53")
    k.e(f"s_mov_b32 s38, {4*32768}")
    for j in range(4):
        k.e(f"buffer_load_dwordx4 v{VDMA}, s[12:15], s38 offen offset:{j*1024}{kv_ld} lds")
    k.e(f"s_mov_b32 s38, {5*32768}")
    k.e(f"s_mov_b32 s39, {3*32768 + 16384}")
    k.e("s_mov_b32 s37, -1")
    k.e("s_cmp_lg_u32 s34, 0")
    k.e("s_cbranch_scc1 L_k2_nomask0")
    mask_block(0, 2, VRB)
    k.label("L_k2_nomask0")
    k.e("s_mov_b32 s37, 0")
    k.e("s_nop 7")
    for qb in range(4):
        rowmax(0, qb, 21)
        for r in range(16): k.e(f"v_sub_f32 v{Sr(0,qb,0)+r}, v{Sr(0,qb,0)+r}, v21")
        for r in range(4): k.e(f"v_sub_f32 v{NEGM+4*qb+r}, 0, v21")
    SM(sm_pairs(0, 4, 0), True, False).drain()
    k.stamp(ST)

    k.e("s_sub_u32 s35, s35, 1")
    k.e("s_sub_u32 s36, s36, 1")
    k.label("L_k2_wloop")
    iteration(0, 4, 4, 2, "we")
    k.e("s_cmp_eq_u32 s37, s35")
    k.e("s_cbranch_scc1 L_k2_trans")
    iteration(1, 4, 4, 2, "wo")
    k.e("s_branch L_k2_wloop")
    k.label("L_k2_trans")
    iteration(1, 4, 2, 0, "tr")
    k.stamp(ST)
    k.e("s_nop 7")
    epilogue(2, 34)
    k.stamp(ST)
    k.label("L_k2_nloop")
    iteration(0, 2, 2, 0, "ne")
    k.e("s_cmp_eq_u32 s37, s36")
    k.e("s_cbranch_scc1 L_k2_fin")
    iteration(1, 2, 2, 0, "no")
    k.e("s_branch L_k2_nloop")
    k.label("L_k2_fin")
    iteration(1, 2, 0, 0, "fi")
    k.stamp(ST)
    k.e("s_nop 7")
    epilogue(0, 55)
    k.stamp(ST)
    k.stamp_dump(ST, 6, 1, 32)
    k.label("L_k2_end")
    k.e("s_endpgm")
    for lab, fn, ret in ool:
        k.label(lab)
        k.win = []
        fn()
        k.e(f"s_branch {ret}")
    return k.wrap(256, 256), f"; @launch kernel=attn_kernel grid=(256,1,1) block=(256,1,1) lds={K2_LDS}"
```

```python
from fw import *
from layout import *

K3_LDS = 131072 + 4096

def rbf2(k, a, b, t):
    k.e(f"v_cvt_pk_bf16_f32 v{t}, v{a}, v{b}")
    k.e(f"v_lshlrev_b32 v{a}, 16, v{t}")
    k.e(f"v_and_b32 v{b}, 0xffff0000, v{t}")

def silu_n(k, regs, tmps):
    for r, t in zip(regs, tmps): k.e(f"v_mul_f32 v{t}, 0xbfb8aa3b, v{r}")
    for r, t in zip(regs, tmps): k.e(f"v_exp_f32 v{t}, v{t}")
    for r, t in zip(regs, tmps): k.e(f"v_add_f32 v{t}, 1.0, v{t}")
    for r, t in zip(regs, tmps): k.e(f"v_rcp_f32 v{t}, v{t}")
    for r, t in zip(regs, tmps): k.e(f"v_mul_f32 v{r}, v{r}, v{t}")

def gen_k3(opt):
    k = Asm("oproj_kernel")
    ST = 'stamp' in opt
    VC, VW, TA, VO, VROW = 2, 4, 5, 9, 10
    XP, STT, GT = 16, 32, 40
    ACC = lambda rb, cb: 128 + (rb * 4 + cb) * 4
    CF = lambda n, rb: (n % 4) * 32 + rb * 4
    WF = lambda n, cb: 128 + (n & 1) * 16 + cb * 4
    k.e("s_cmp_ge_u32 s2, 256")
    k.e("s_cbranch_scc1 L_k3_end")
    k.stamp(ST)
    k.e("s_load_dwordx2 s[4:5], s[0:1], 40")
    k.e("s_load_dwordx2 s[40:41], s[0:1], 0")
    k.e("s_load_dwordx4 s[44:47], s[0:1], 80")
    k.e("s_load_dwordx4 s[56:59], s[0:1], 96")
    k.e("v_lshrrev_b32 v1, 6, v0")
    k.e(f"v_lshrrev_b32 v{VROW}, 3, v0")
    k.e("v_and_b32 v0, 63, v0")
    k.e("v_readfirstlane_b32 s32, v1")
    k.e("s_bfe_u32 s33, s2, 0x20001")
    k.e("s_lshl_b32 s33, s33, 2")
    k.e("s_bfe_u32 s3, s2, 0x20003")
    k.e("s_add_u32 s33, s33, s3")
    k.e("s_and_b32 s34, s2, 1")
    k.e("s_lshl_b32 s34, s34, 3")
    k.e("s_lshr_b32 s3, s2, 5")
    k.e("s_add_u32 s34, s34, s3")
    for j in range(4): k.e(f"s_mov_b32 s{48+j}, {j*15360}")
    k.e("s_lshl_b32 s35, s32, 15")
    k.e(f"v_lshlrev_b32 v{VC}, 4, v0")
    k.e(f"v_add_u32 v{VC+1}, 4096, v{VC}")
    k.e("v_lshrrev_b32 v12, 4, v0")
    k.e("v_and_b32 v13, 7, v0")
    k.e("v_lshrrev_b32 v14, 3, v0")
    k.e("v_lshlrev_b32 v1, 1, v12")
    k.e("v_xor_b32 v1, v1, v13")
    k.e("v_lshlrev_b32 v1, 4, v1")
    k.e(f"v_lshl_add_u32 v{VW}, v14, 11, v1")
    k.e("v_lshrrev_b32 v1, 2, v0")
    k.e("v_bfe_u32 v11, v0, 3, 2")
    k.e("v_lshlrev_b32 v1, 7, v1")
    k.e("v_and_b32 v15, 3, v0")
    k.e("v_lshl_add_u32 v1, v15, 3, v1")
    k.e("v_add_u32 v1, s35, v1")
    for cb in range(4):
        k.e(f"v_xor_b32 v15, {cb}, v11")
        k.e(f"v_lshl_add_u32 v{TA+cb}, v15, 5, v1")
    k.e(f"v_lshlrev_b32 v{VO}, 11, v{VROW}")
    k.e(f"v_lshl_add_u32 v{VO}, v13, 4, v{VO}")
    k.e("s_waitcnt lgkmcnt(0)")
    k.e(f"s_add_u32 s60, s58, {WS_SEL}")
    k.e("s_addc_u32 s61, s59, 0")
    k.e("s_load_dwordx4 s[52:55], s[60:61], 0")
    k.srd(16, 58, 8 << 20)
    k.srd(24, 44, 7340032)
    k.e("s_lshl_b32 s36, s33, 18")
    k.e("s_lshl_b32 s3, s34, 7")
    k.e("s_add_u32 s36, s36, s3")
    k.srd(20, 40, 4194304)
    k.srd(28, 46, 4194304)
    HPR, WD = 72, 104 - 4
    k.e("s_lshr_b32 s37, s2, 4")
    k.e("s_lshl_b32 s3, s37, 2")
    k.e("s_add_u32 s3, s3, s32")
    k.e("s_mul_i32 s38, s3, 56")
    k.e("s_lshl_b32 s3, s38, 2")
    k.e(f"s_add_u32 s3, s3, {WS_HP}")
    k.e("v_mul_u32_u24 v1, 14336, v12")
    k.e("v_and_b32 v15, 15, v0")
    k.e("v_lshl_add_u32 v1, v15, 4, v1")
    for j in range(8):
        k.e(f"buffer_load_dwordx4 {V(128+4*j,4)}, v1, s[16:19], s3 offen", tag='hp')
        if j < 7: k.e(f"s_add_u32 s3, s3, {4*14336}")
    k.e("s_lshl_b32 s3, s38, 11")
    k.e("s_and_b32 s39, s2, 15")
    k.e("s_lshl_b32 s62, s39, 7")
    k.e("s_add_u32 s3, s3, s62")
    k.e(f"v_mul_u32_u24 v1, {7*2048}, v14")
    k.e("v_lshl_add_u32 v1, v13, 4, v1")
    for j in range(7):
        k.e(f"buffer_load_dwordx4 {V(160+4*j,4)}, v1, s[24:27], s3 offen offset:{(j&1)*2048}{opt.get('wd_ld','')}", tag='wd')
        if j & 1: k.e("s_add_u32 s3, s3, 4096")
    k.e("s_mov_b32 s3, s36")
    for p in range(4):
        k.e(f"buffer_load_dwordx4 {V(XP+4*p,4)}, v{VO}, s[20:23], s3 offen", tag='x')
        if p < 3: k.e("s_add_u32 s3, s3, 65536")
    k.e("s_lshl_b32 s3, s33, 10")
    k.e(f"s_add_u32 s3, s3, {WS_STATS}")
    k.e(f"v_lshlrev_b32 v1, 3, v{VROW}")
    for p in range(4):
        k.e(f"buffer_load_dwordx2 {V(STT+2*p,2)}, v1, s[16:19], s3 offen offset:{p*256}", tag='x')
    k.e("s_lshl_b32 s3, s33, 20")
    k.e("s_lshl_b32 s62, s32, 18")
    k.e("s_add_u32 s3, s3, s62")
    k.e(f"s_add_u32 s3, s3, {WS_CTX}")
    k.srd(8, 58, 262144, "s3")
    k.e("s_lshl_b32 s62, s34, 7")
    k.e("s_lshl_b32 s3, s32, 21")
    k.e("s_add_u32 s3, s3, s62")
    k.srd(12, 4, 0, "s3")
    k.e("s_sub_u32 s14, 2097152, s62")
    k.e("s_mov_b32 s63, 0")
    wo_ld, ctx_ld = opt.get('wo_ld', ''), opt.get('ctx_ld', '')
    def w_ops(n):
        return ([('s', f"s_add_u32 m0, s35, {(n % 4)*4096}")] +
                [('g', f"buffer_load_dwordx4 v{VW}, s[12:15], s{48+j} offen offset:{j*1024}{wo_ld} lds") for j in range(4)] +
                [('v', f"v_add_u32 v{VW}, 65536, v{VW}")])
    def c_ops(n):
        return ([('g', f"buffer_load_dwordx4 {A(CF(n,rb),4)}, v{VC + (rb >> 2)}, s[8:11], s63 offen offset:{(rb & 3)*1024}{ctx_ld}") for rb in range(8)] +
                [('s', "s_add_u32 s63, s63, 8192")])
    def wreads(n):
        return [[f"ds_read_b64_tr_b16 {A(WF(n,cb)+2*rd,2)}, v{TA+cb} offset:{(n % 4)*4096 + rd*2048}" for rd in range(2)] for cb in range(4)]
    for t, s in w_ops(0): k.e(s, tag='w0')
    for n in range(3):
        for t, s in w_ops(n + 1) + c_ops(n): k.e(s, tag=f'm{n}')
    k.stamp(ST)
    k.wait_vm('hp')
    for j in range(1, 8):
        for r in range(4): k.e(f"v_add_f32 v{128+r}, v{128+r}, v{128+4*j+r}")
    rbf2(k, 128, 129, 1); rbf2(k, 130, 131, 1)
    for r in range(4): k.e(f"v_mov_b32 v{132+r}, v{128+r}")
    for r in range(4): k.e(f"v_permlane32_swap_b32 v{132+r}, v{128+r}")
    silu_n(k, [132, 133, 134, 135], [136, 137, 138, 139])
    rbf2(k, 132, 133, 1); rbf2(k, 134, 135, 1)
    for r in range(4): k.e(f"v_mul_f32 v{128+r}, v{128+r}, v{132+r}")
    rbf2(k, 128, 129, 1); rbf2(k, 130, 131, 1)
    k.e("s_lshl_b32 s3, s32, 9")
    k.e("s_add_u32 s3, s3, 131072")
    k.e("v_and_b32 v1, 31, v0")
    k.e("v_lshl_add_u32 v1, v1, 4, s3")
    k.e("ds_write_b128 v1, v[128:131]")
    k.e("v_mul_u32_u24 v1, 28, v14")
    k.e("v_add_u32 v1, s3, v1")
    k.e("s_waitcnt lgkmcnt(0)")
    for t in range(2):
        for j in range(7): k.e(f"ds_read_b32 v{132+7*t+j}, v1 offset:{t*256+4*j}")
    k.wait_vm('wd')
    k.e("s_waitcnt lgkmcnt(0)")
    YA = 192
    for j in range(7):
        for d in range(4):
            w = 160 + 4 * j + d
            k.e(f"v_lshlrev_b32 v146, 16, v{w}")
            k.e(f"v_and_b32 v147, 0xffff0000, v{w}")
            for t in range(2):
                a = YA + 8 * t + 2 * d
                op = "v_mul_f32" if j == 0 else "v_fmac_f32"
                k.e(f"{op} v{a}, v146, v{132+7*t+j}"); k.e(f"{op} v{a+1}, v147, v{132+7*t+j}")
    for j in range(8): k.e(f"v_permlane32_swap_b32 v{YA+j}, v{YA+8+j}")
    for j in range(8): k.e(f"v_add_f32 v{YA+j}, v{YA+j}, v{YA+8+j}")
    for j in range(4): k.e(f"v_permlane16_swap_b32 v{YA+j}, v{YA+4+j}")
    for j in range(4): k.e(f"v_add_f32 v{YA+j}, v{YA+j}, v{YA+4+j}")
    for j in range(4): k.e(f"v_add_f32_dpp v{YA+j}, v{YA+j}, v{YA+j} row_ror:8 row_mask:0xf bank_mask:0xf")
    k.e("v_lshrrev_b32 v1, 5, v0")
    k.e("v_lshlrev_b32 v1, 8, v1")
    k.e("v_lshl_add_u32 v1, v13, 5, v1")
    k.e("v_and_b32 v15, 1, v12")
    k.e("v_lshl_add_u32 v1, v15, 4, v1")
    k.e("v_add_u32 v1, s3, v1")
    k.e(f"ds_write_b128 v1, {V(YA,4)} offset:2048")
    k.e("s_waitcnt lgkmcnt(0)")
    k.e("s_barrier")
    k.e("s_cmp_lg_u32 s32, 0")
    k.e("s_cbranch_scc1 L_k3_nopub")
    k.e("v_lshlrev_b32 v1, 3, v0")
    k.e("v_add_u32 v15, 133120, v1")
    for w in range(4): k.e(f"ds_read_b64 {V(YA+2*w,2)}, v15 offset:{w*512}")
    k.e("s_lshl_b32 s3, s39, 4")
    k.e("s_add_u32 s3, s3, s37")
    k.e("s_lshl_b32 s3, s3, 9")
    k.e(f"s_add_u32 s3, s3, {WS_YP}")
    k.e("s_waitcnt lgkmcnt(0)")
    for r in range(2):
        k.e(f"v_add_f32 v{YA+r}, v{YA+r}, v{YA+2+r}")
        k.e(f"v_add_f32 v{YA+4+r}, v{YA+4+r}, v{YA+6+r}")
        k.e(f"v_add_f32 v{YA+r}, v{YA+r}, v{YA+4+r}")
    k.e(f"buffer_store_dwordx2 {V(YA,2)}, v1, s[16:19], s3 offen sc1", tag='pub')
    k.label("L_k3_nopub")
    k.vq = [t for t in k.vq if t != 'pub']
    k.stamp(ST)
    def gates(p, ysrc=None):
        g0 = GT + 8 * p
        for d in range(4):
            k.e(f"v_lshlrev_b32 v{g0+2*d}, 16, v{XP+4*p+d}")
            k.e(f"v_and_b32 v{g0+2*d+1}, 0xffff0000, v{XP+4*p+d}")
        for e_ in range(8): k.e(f"v_sub_f32 v{g0+e_}, v{g0+e_}, v{STT+2*p}")
        for d in range(4): rbf2(k, g0 + 2*d, g0 + 2*d + 1, 72 + d)
        for e_ in range(8): k.e(f"v_mul_f32 v{g0+e_}, v{g0+e_}, v{STT+2*p+1}")
        for d in range(4): rbf2(k, g0 + 2*d, g0 + 2*d + 1, 72 + d)
        if ysrc is not None:
            for e_ in range(8): k.e(f"v_add_f32 v{g0+e_}, v{g0+e_}, v{ysrc+e_}")
            for d in range(4): rbf2(k, g0 + 2*d, g0 + 2*d + 1, 72 + d)
        silu_n(k, [g0 + e_ for e_ in range(8)], [72 + e_ for e_ in range(8)])
        for d in range(4): rbf2(k, g0 + 2*d, g0 + 2*d + 1, 72 + d)
    k.wait_vm('x')
    for p in range(4): gates(p)
    for r in range(128, 256): k.e(f"v_mov_b32 v{r}, 0")
    k.srd(40, 56, 256)
    k.e("s_cmp_lg_u32 s32, 0")
    k.e("s_cbranch_scc1 L_k3_noflag")
    k.e("s_waitcnt vmcnt(0)")
    k.e("v_mov_b32 v1, 1")
    k.e("v_mov_b32 v15, 0")
    k.e("s_lshl_b32 s3, s39, 2")
    k.e("s_mov_b64 exec, 1")
    k.e("buffer_atomic_add v1, v15, s[40:43], s3 offen sc1")
    k.e("s_mov_b64 exec, -1")
    k.label("L_k3_noflag")
    k.stamp(ST)
    k.e("s_waitcnt vmcnt(36)")
    for grp in wreads(0):
        for s in grp: k.e(s)
    k.e("s_mov_b32 s62, 8")
    k.hot = True
    k.label("L_k3_loop")
    for n in range(4):
        k.e("s_waitcnt vmcnt(24) lgkmcnt(0)")
        g = {}
        for j, grp in enumerate(wreads(n + 1)): g[2 + 5 * j] = list(grp)
        pos = 1
        slots = [x for x in range(1, 32) if x not in g]
        vpos = [1, 3, 6, 8, 11, 13, 16, 18, 21, 23, 26, 28]
        vi = 0
        for t, s in w_ops(n + 4) + c_ops(n + 3):
            if t == 'g': g[vpos[vi]] = [s]; vi += 1
            elif vi == 0: g.setdefault(0, []).append(s)
            else: g.setdefault(vpos[vi - 1] + 1, []).append(s)
        if n == 3:
            g.setdefault(30, []).append("s_sub_u32 s62, s62, 1")
            g.setdefault(31, []).append("s_cmp_lg_u32 s62, 0")
        m = 0
        for rb in range(8):
            for cb in range(4):
                k.e(mfma(V(ACC(rb, cb), 4), A(WF(n, cb), 4), A(CF(n, rb), 4), V(ACC(rb, cb), 4)))
                for s in g.get(m, []): k.e(s)
                m += 1
    k.e("s_cbranch_scc1 L_k3_loop")
    k.hot = False
    k.stamp(ST)
    k.e("s_waitcnt vmcnt(0) lgkmcnt(0)")
    k.e("v_and_b32 v1, 15, v0")
    k.e("v_lshlrev_b32 v11, 8, v1")
    k.e("v_add_u32 v11, s35, v11")
    k.e("v_xor_b32 v1, v1, v12")
    for cb in range(4):
        k.e(f"v_xor_b32 v15, {4*cb}, v1")
        k.e(f"v_lshl_add_u32 v{TA+cb}, v15, 4, v11")
    for rb in range(8):
        for cb in range(4):
            k.e(f"ds_write_b128 v{TA+cb}, {V(ACC(rb,cb),4)} offset:{rb*4096}")
        if rb & 1: k.e("s_waitcnt lgkmcnt(4)")
    k.e("s_lshr_b32 s3, s52, 7")
    k.e("s_lshr_b32 s62, s53, 7")
    k.e("s_cmp_eq_u32 s3, s33")
    k.e("s_cbranch_scc1 L_k3_sel")
    k.e("s_cmp_eq_u32 s62, s33")
    k.e("s_cbranch_scc1 L_k3_sel")
    k.label("L_k3_selr")
    k.e(f"v_and_b32 v1, 15, v{VROW}")
    k.e("v_lshlrev_b32 v15, 1, v13")
    k.e("v_xor_b32 v1, v1, v15")
    k.e(f"v_lshlrev_b32 v11, 8, v{VROW}")
    k.e("v_lshl_add_u32 v2, v1, 4, v11")
    k.e("v_xor_b32 v3, 16, v2")
    k.e("v_add_u32 v4, 65536, v2")
    k.e("v_add_u32 v5, 65536, v3")
    k.e("s_waitcnt lgkmcnt(0)")
    k.e("s_barrier")
    def rd(p):
        b = 128 + 32 * p
        for w in range(4):
            for h in range(2):
                k.e(f"ds_read_b128 {V(b + 8*w + 4*h, 4)}, v{2 + h + 2*(w >> 1)} offset:{(w & 1)*32768 + p*8192}", tag=f'r{p}')
    rd(0)
    for p in range(4):
        b = 128 + 32 * p
        k.wait_ds(f'r{p}')
        if p < 3: rd(p + 1)
        for e_ in range(8):
            k.e(f"v_add_f32 v{b+e_}, v{b+e_}, v{b+8+e_}")
            k.e(f"v_add_f32 v{b+16+e_}, v{b+16+e_}, v{b+24+e_}")
        for e_ in range(8): k.e(f"v_add_f32 v{b+e_}, v{b+e_}, v{b+16+e_}")
        for d in range(4): rbf2(k, b + 2*d, b + 2*d + 1, b + 8 + d)
        for e_ in range(8): k.e(f"v_mul_f32 v{b+e_}, v{b+e_}, v{GT+8*p+e_}")
        for d in range(4): rbf2(k, b + 2*d, b + 2*d + 1, b + 8 + d)
        for d in range(4):
            k.e(f"v_lshlrev_b32 v{b+16+2*d}, 16, v{XP+4*p+d}")
            k.e(f"v_and_b32 v{b+17+2*d}, 0xffff0000, v{XP+4*p+d}")
        for e_ in range(8): k.e(f"v_add_f32 v{b+e_}, v{b+e_}, v{b+16+e_}")
        for d in range(4): k.e(f"v_cvt_pk_bf16_f32 v{b+8+d}, v{b+2*d}, v{b+2*d+1}")
        k.e(f"buffer_store_dwordx4 {V(b+8,4)}, v{VO}, s[28:31], s36 offen{opt.get('out_st','')}")
        if p < 3: k.e("s_add_u32 s36, s36, 65536")
    k.stamp(ST)
    k.stamp_dump(ST, 58, 2, 32)
    k.label("L_k3_end")
    k.e("s_endpgm")
    k.label("L_k3_sel")
    k.win = []
    k.e("s_lshl_b32 s3, s34, 2")
    k.e("v_mov_b32 v15, 0")
    k.e("s_mov_b32 s62, 0x400000")
    k.label("L_k3_poll")
    k.e("buffer_load_dword v1, v15, s[40:43], s3 offen sc1")
    k.e("s_waitcnt vmcnt(0)")
    k.e("v_readfirstlane_b32 s63, v1")
    k.e("s_sub_u32 s62, s62, 1")
    k.e("s_cmp_eq_u32 s62, 0")
    k.e("s_cbranch_scc1 L_k3_polled")
    k.e("s_cmp_lt_u32 s63, 16")
    k.e("s_cbranch_scc1 L_k3_poll")
    k.label("L_k3_polled")
    k.e("s_lshl_b32 s3, s34, 13")
    k.e(f"s_add_u32 s3, s3, {WS_YP}")
    k.e("v_lshlrev_b32 v1, 10, v14")
    k.e("v_lshl_add_u32 v1, v13, 5, v1")
    YB = 80
    for q in range(2):
        for t in range(2):
            for h in range(2):
                k.e(f"buffer_load_dwordx4 {V(YB + 16*q + 8*t + 4*h, 4)}, v1, s[16:19], s3 offen offset:{q*512 + t*256 + h*16} sc1")
    k.e("s_waitcnt vmcnt(0)")
    for j in range(16): k.e(f"v_add_f32 v{YB+j}, v{YB+j}, v{YB+16+j}")
    for j in range(16): k.e(f"v_add_f32_dpp v{YB+j}, v{YB+j}, v{YB+j} row_ror:8 row_mask:0xf bank_mask:0xf")
    for sw in ("v_permlane16_swap_b32", "v_permlane32_swap_b32"):
        for j in range(16): k.e(f"v_mov_b32 v{YB+16+j}, v{YB+j}")
        for j in range(16): k.e(f"{sw} v{YB+16+j}, v{YB+j}")
        for j in range(16): k.e(f"v_add_f32 v{YB+j}, v{YB+j}, v{YB+16+j}")
    for d in range(8): rbf2(k, YB + 2*d, YB + 2*d + 1, 1)
    for t in range(2):
        for e_ in range(8): k.e(f"v_mul_f32 v{YB+8*t+e_}, s{54+t}, v{YB+8*t+e_}")
    for d in range(8): rbf2(k, YB + 2*d, YB + 2*d + 1, 1)
    k.e("s_lshl_b32 s3, s33, 7")
    k.e("s_sub_u32 s52, s52, s3")
    k.e("s_sub_u32 s53, s53, s3")
    for p in range(4):
        k.e(f"v_add_u32 v1, {32*p}, v{VROW}")
        k.e("v_cmp_eq_u32 vcc, s52, v1")
        k.e("v_cmp_eq_u32 s[62:63], s53, v1")
        for e_ in range(8):
            k.e(f"v_cndmask_b32 v{YB+16+e_}, 0, v{YB+e_}, vcc")
            k.e(f"v_cndmask_b32 v{YB+16+e_}, v{YB+16+e_}, v{YB+8+e_}, s[62:63]")
        gates(p, YB + 16)
    k.e("s_branch L_k3_selr")
    return k.wrap(256, 160), f"; @launch kernel=oproj_kernel grid=(256,1,1) block=(256,1,1) lds={K3_LDS}"
```

```python
import re
def compress(text):
    used = {}
    def mac(name, args, body):
        used[name] = f".macro {name} {','.join(args)}\n{body}\n.endm"
        return name
    q = lambda p, a, n: f"{p}[\\{a}:\\{a}+{n-1}]"
    out = []
    for line in text.split('\n'):
        s = line.strip()
        m = re.match(r'v_mfma_f32_16x16x32_bf16 ([va])\[(\d+):\d+\], ([va])\[(\d+):\d+\], ([va])\[(\d+):\d+\], (?:([va])\[(\d+):\d+\]|0)$', s)
        if m:
            d, dn, a, an, b, bn, c, cn = m.groups()
            base = f"v_mfma_f32_16x16x32_bf16 {q(d,'d',4)}, {q(a,'x',4)}, {q(b,'y',4)}, "
            if c is None:
                n = mac(f"Z{d}{a}{b}", "dxy", base + "0"); out.append(f"{n} {dn},{an},{bn}")
            elif cn == dn:
                n = mac(f"M{d}{a}{b}", "dxy", base + q(d, 'd', 4)); out.append(f"{n} {dn},{an},{bn}")
            else:
                n = mac(f"C{d}{a}{b}", "dxyc", base + q(c, 'c', 4)); out.append(f"{n} {dn},{an},{bn},{cn}")
            continue
        m = re.match(r'ds_read_b128 ([va])\[(\d+):\d+\], v(\d+) offset:(\d+)$', s)
        if m:
            n = mac(f"R{m.group(1)}", "dxo", f"ds_read_b128 {q(m.group(1),'d',4)}, v\\x offset:\\o")
            out.append(f"{n} {m.group(2)},{m.group(3)},{m.group(4)}"); continue
        m = re.match(r'ds_read_b64_tr_b16 a\[(\d+):\d+\], v(\d+) offset:(\d+)$', s)
        if m:
            n = mac("Ta", "dxo", f"ds_read_b64_tr_b16 {q('a','d',2)}, v\\x offset:\\o")
            out.append(f"{n} {m.group(1)},{m.group(2)},{m.group(3)}"); continue
        m = re.match(r'(v_cvt_pk_bf16_f32|v_mul_f32|v_sub_f32|v_add_f32|v_fmac_f32) v(\d+), v(\d+), v(\d+)$', s)
        if m:
            nm = {'v_cvt_pk_bf16_f32': 'Vc', 'v_mul_f32': 'Vm', 'v_sub_f32': 'Vs', 'v_add_f32': 'Va', 'v_fmac_f32': 'Vf'}[m.group(1)]
            n = mac(nm, "dxy", f"{m.group(1)} v\\d, v\\x, v\\y")
            out.append(f"{n} {m.group(2)},{m.group(3)},{m.group(4)}"); continue
        m = re.match(r'v_accvgpr_read_b32 v(\d+), a(\d+)$', s)
        if m:
            n = mac("Ar", "dx", "v_accvgpr_read_b32 v\\d, a\\x"); out.append(f"{n} {m.group(1)},{m.group(2)}"); continue
        m = re.match(r'v_accvgpr_write_b32 a(\d+), v(\d+)$', s)
        if m:
            n = mac("Aw", "dx", "v_accvgpr_write_b32 a\\d, v\\x"); out.append(f"{n} {m.group(1)},{m.group(2)}"); continue
        m = re.match(r'v_exp_f32 v(\d+), v(\d+)$', s)
        if m:
            n = mac("Ve", "dx", "v_exp_f32 v\\d, v\\x"); out.append(f"{n} {m.group(1)},{m.group(2)}"); continue
        m = re.match(r'v_exp_f32_e64 v(\d+), v(\d+)$', s)
        if m:
            n = mac("VE", "dx", "v_exp_f32_e64 v\\d, v\\x"); out.append(f"{n} {m.group(1)},{m.group(2)}"); continue
        out.append(s if not s.startswith('.amdhsa_') or s.startswith('.amdhsa_kernel') else line)
    res = []
    for l in out:
        res.append(l)
        if l.startswith('.amdgcn_target'):
            res += list(used.values())
    return '\n'.join(res)
```

```python
from check import parse, need

def R(p, a, n=1):
    return f"{p}[{a}:{a+n-1}]" if n > 1 else f"{p}{a}"
def V(a, n=1): return R('v', a, n)
def A(a, n=1): return R('a', a, n)
def S(a, n=1): return R('s', a, n)

class Asm:
    def __init__(self, name):
        self.name = name
        self.lines = []
        self.win = []
        self.nl = 0
        self.hot = False
        self.hot_nops = 0
        self.vq = []
        self.dq = []
    def raw(self, s): self.lines.append(s)
    def c(self, s): self.lines.append("  ; " + s)
    def e(self, s, tag=None):
        i = parse(s, 0)
        if i.cls == 'ds' and len(self.dq) >= 15: self.e('s_waitcnt lgkmcnt(9)')
        pad = 0
        for p, d in self.win:
            n = need(p, i)
            if n - d > pad: pad = n - d
        if pad:
            if self.hot:
                self.hot_nops += 1
                print(f"[{self.name}] hot nop({pad}) before: {s}")
            self._adv(parse(f"s_nop {pad-1}", 0), f"s_nop {pad-1}")
        self._adv(i, s)
        if i.cls == 'vmem': self.vq.append(tag)
        elif i.cls == 'ds': self.dq.append(tag)
        elif i.cls == 'wait':
            if i.vm is not None and len(self.vq) > i.vm: self.vq = self.vq[len(self.vq) - i.vm:] if i.vm else []
            if i.lgkm is not None and len(self.dq) > i.lgkm: self.dq = self.dq[len(self.dq) - i.lgkm:] if i.lgkm else []
    def _adv(self, i, s):
        self.lines.append("  " + s)
        self.win = [(p, d + i.states) for p, d in self.win if d + i.states < 13]
        if i.cls in ('mfma', 'valu', 'trans', 'salu') or (i.cls == 'vmem' and i.wide):
            self.win.append((i, 0))
    def vm_n(self, tag):
        idx = [n for n, t in enumerate(self.vq) if t == tag]
        return None if not idx else len(self.vq) - 1 - idx[-1]
    def ds_n(self, tag):
        idx = [n for n, t in enumerate(self.dq) if t == tag]
        return None if not idx else len(self.dq) - 1 - idx[-1]
    def wait_vm(self, tag):
        n = self.vm_n(tag)
        if n is not None: self.e(f"s_waitcnt vmcnt({min(n, 63)})")
    def wait_ds(self, tag):
        n = self.ds_n(tag)
        if n is not None: self.e(f"s_waitcnt lgkmcnt({min(n, 15)})")
    def label(self, l):
        self.lines.append(l + ":")
    def newlabel(self, base):
        self.nl += 1
        return f"L_{getattr(self, 'short', self.name)}_{base}{self.nl}"
    def srd(self, d, base, nbytes, add=None):
        if add is not None and add != 0:
            self.e(f"s_add_u32 s{d}, s{base}, {add}")
            self.e(f"s_addc_u32 s{d+1}, s{base+1}, 0")
            self.e(f"s_and_b32 s{d+1}, s{d+1}, 0xffff")
        else:
            self.e(f"s_mov_b32 s{d}, s{base}")
            self.e(f"s_and_b32 s{d+1}, s{base+1}, 0xffff")
        self.e(f"s_mov_b32 s{d+2}, {nbytes}")
        self.e(f"s_mov_b32 s{d+3}, 0x20000")
    def stamp(self, on):
        if not on: return
        n = getattr(self, 'nstamp', 0); self.nstamp = n + 1
        assert n < 10
        self.e("s_memtime s[96:97]")
        self.e("s_memrealtime s[98:99]")
        self.e("s_waitcnt lgkmcnt(0)")
        self.e(f"s_mov_b32 s{72+2*n}, s96")
        self.e(f"s_mov_b32 s{73+2*n}, s98")
    def stamp_dump(self, on, wsptr, kidx, wave_sgpr, n=None):
        if not on: return
        n = n or self.nstamp
        L = self.newlabel("nodump")
        self.e(f"s_cmp_lg_u32 s{wave_sgpr}, 0")
        self.e(f"s_cbranch_scc1 {L}")
        self.srd(96, wsptr, 65536, (64 << 20) + kidx * 65536)
        self.e("s_lshl_b32 s3, s2, 7")
        self.e("v_mov_b32 v0, s3")
        self.e("s_mov_b64 exec, 1")
        for j in range(n):
            self.e(f"v_mov_b32 v2, s{72+2*j}")
            self.e(f"v_mov_b32 v3, s{73+2*j}")
            self.e(f"buffer_store_dwordx2 v[2:3], v0, s[96:99], 0 offen offset:{8*j}")
        self.label(L)
    def wrap(self, arch_vgprs, agprs, sgprs=102):
        acc = (arch_vgprs + 3) // 4 * 4
        nfv = acc + agprs if agprs else arch_vgprs
        n = self.name
        code = [f".globl {n}", ".p2align 8", f".type {n},@function", f"{n}:"] + self.lines
        kd = [".p2align 6", f".amdhsa_kernel {n}", f"  .amdhsa_next_free_vgpr {nfv}", f"  .amdhsa_next_free_sgpr {sgprs}",
              f"  .amdhsa_accum_offset {acc}", "  .amdhsa_group_segment_fixed_size 0", "  .amdhsa_kernarg_size 112",
              "  .amdhsa_user_sgpr_count 2", "  .amdhsa_user_sgpr_kernarg_segment_ptr 1",
              "  .amdhsa_system_sgpr_workgroup_id_x 1", ".end_amdhsa_kernel"]
        return "\n".join(code), "\n".join(kd)

def mfma(d, a, b, c):
    return f"v_mfma_f32_16x16x32_bf16 {d}, {a}, {b}, {c}"

def build(parts, launches):
    out = ["; generated by gen/gen2.py"] + launches
    out += ['.amdgcn_target "amdgcn-amd-amdhsa--gfx950"', ".text"]
    out += [p[0] for p in parts]
    out.append('.section .rodata,"a"')
    out += [p[1] for p in parts]
    return "\n".join(out) + "\n"


class Rec:
    def __init__(self): self.items = []
    def e(self, s, tag=None): self.items.append(('i', s, tag))
    def blk(self, lst): self.items.append(('b', lst, None))
    def wait_vm(self, tag): self.items.append(('wv', tag, None))
    def wait_ds(self, tag): self.items.append(('wd', tag, None))
    def check_clear(self, tag): self.items.append(('cc', tag, None))
    def at(self, n): self.items.append(('at', n, None))
    def cost(self, it):
        if it[0] != 'i': return 0
        c = parse(it[1], 0).cls
        return {'trans': 2, 'valu': 1, 'ds': 1, 'vmem': 2}.get(c, 0)
    def fill(self, k, step, slots=2):
        nscal = 0; usedv = False
        while self.items:
            it = self.items[0]
            if it[0] == 'at':
                if step < it[1]: return
                self.items.pop(0); continue
            if it[0] == 'mark': self.items.pop(0); return
            if it[0] == 'cc':
                assert k.vm_n(it[1]) is None, it[1]
                self.items.pop(0); continue
            if it[0] == 'wv': self.items.pop(0); k.wait_vm(it[1]); continue
            if it[0] == 'wd': self.items.pop(0); k.wait_ds(it[1]); continue
            if it[0] == 'b':
                if usedv: return
                self.items.pop(0)
                for x in it[1]:
                    if isinstance(x, tuple): k.e(x[0], tag=x[1])
                    elif x.endswith(':'): k.label(x[:-1])
                    else: k.e(x)
                return
            c = self.cost(it)
            cls = parse(it[1], 0).cls
            if c == 0:
                if usedv or nscal >= 3: return
                nscal += 1
                if nscal > 1: slots -= 1
            else:
                if c > slots: return
                if cls == 'vmem' and (usedv or nscal): return
                if cls == 'ds' and usedv == 'v': return
                slots -= c
                usedv = 'v' if cls in ('valu', 'trans') else (usedv or 'd')
            self.items.pop(0)
            k.e(it[1], tag=it[2])
            if slots <= 0: return
    def drain(self, k):
        while self.items: self.fill(k, 1 << 30, 2)


_cp = [0]
def code_prefetch(start, end, wave_sgpr, sp, va, vd):
    _cp[0] += 1
    L = f"L_cpf{_cp[0]}"
    return [f"s_getpc_b64 s[{sp}:{sp+1}]", f"{L}:",
            f"s_add_u32 s{sp}, s{sp}, ({start}-{L})&0xffffffff",
            f"s_addc_u32 s{sp+1}, s{sp+1}, (({start}-{L})>>32)&0xffffffff",
            f"s_lshr_b32 s{sp+2}, s2, 3", f"s_lshl_b32 s{sp+2}, s{sp+2}, 2", f"s_add_u32 s{sp+2}, s{sp+2}, s{wave_sgpr}",
            f"s_lshl_b32 s{sp+2}, s{sp+2}, 10",
            f"v_and_b32 v{va+2}, 7, v0", f"v_lshlrev_b32 v{va+2}, 7, v{va+2}", f"v_add_u32 v{va+2}, s{sp+2}, v{va+2}",
            f"v_min_u32 v{va+2}, {end}-{start}-4, v{va+2}",
            f"v_mov_b32 v{va+1}, s{sp+1}",
            f"v_add_co_u32 v{va}, vcc, s{sp}, v{va+2}",
            f"v_addc_co_u32 v{va+1}, vcc, 0, v{va+1}, vcc",
            f"global_load_dword v{vd}, v[{va}:{va+1}], off"]
```

```python
from fw import *
from layout import *

K12_LDS = 163840
QSCALE = 0x3e0293ee
BIG = 0x7ff00000

def gen_k12(opt):
    k = Asm("front_kernel")
    ST = opt.get('stamp') == '1'
    S1 = opt.get('stamp') == 'p1'
    S2 = opt.get('stamp') == 'p2'
    w_ld, a_ld, x_ld = opt.get('w_ld', ' nt'), opt.get('a_ld', ''), opt.get('x_ld', ' nt')
    wq_ld, kv_ld, ffn_ld = opt.get('wq_ld', ''), opt.get('kv_ld', ' sc1'), opt.get('ffn_ld', ' nt')
    MAP = int(opt.get('map', 4))
    VOA, VOW, AD, PFO = 2, 6, 10, 47
    FA = lambda ks, i: 64 * ks + 4 * i
    FW = lambda ks, j: 64 * ks + 32 + 4 * j
    def frag_of(isV, it, jd):
        return ((it >> 2) * 16 + jd * 2 + ((it >> 1) & 1), it & 1) if isV else (it * 4 + (jd >> 1), jd & 1)
    SRC = lambda n: ('v', 48 + 8 * n) if n < 26 else ('a', 128 + 8 * (n - 26))
    def acc(isV, it, jd):
        n, h = frag_of(isV, it, jd)
        p, r = SRC(n)
        return R(p, r + 4 * h, 4)
    PK = lambda n: 24 + 4 * (n if n < 26 else n - 26)
    VX, VY, VDMA, VRA, VRB, ORR, T0 = 2, 3, 4, 5, 6, 7, 1
    WV, XV, TA = 8, 10, 16
    ET = 8
    ONES, NINF = 16, 20
    NEGM, LS, PB, SB = 32, 48, 64, 128
    P = lambda par, qb, ks: PB + 32 * par + (qb * 2 + ks) * 4
    Sr = lambda par, qb, kb: SB + 64 * par + (qb * 4 + kb) * 4
    O = lambda qb, db: (qb * 8 + db) * 4
    Q = lambda qb, s: 128 + (qb * 4 + s) * 4
    FR = lambda grp, j: 192 + 16 * grp + 4 * j
    QA = lambda db, qb: 128 + (db * 4 + qb) * 4
    XR = lambda kk, qb: ((kk % 8) * 4 + qb) * 4
    WF = lambda kk, db: 192 + (kk & 1) * 32 + db * 4

    k.e("s_cmp_ge_u32 s2, 256")
    k.e("s_cbranch_scc1 L_k2_end")
    k.stamp(ST)
    k.e("s_load_dwordx4 s[4:7], s[0:1], 0")
    k.e("s_load_dwordx2 s[44:45], s[0:1], 56")
    k.e("s_load_dwordx4 s[40:43], s[0:1], 24")
    k.e("s_load_dwordx4 s[64:67], s[0:1], 96")
    k.e("v_lshrrev_b32 v1, 6, v0")
    k.e("v_and_b32 v0, 63, v0")
    k.e("v_readfirstlane_b32 s32, v1")
    k.e("v_lshrrev_b32 v33, 5, v0")
    k.e("v_and_b32 v31, 31, v0")
    k.e("v_lshlrev_b32 v36, 4, v31")
    k.e("v_lshl_add_u32 v35, v33, 11, v36")
    k.e("s_lshl_b32 s36, s2, 14")
    k.e("s_lshl_b32 s37, s32, 12")
    k.e("s_add_u32 s36, s36, s37")
    k.e("s_lshr_b32 s3, s2, 3")
    k.e("s_and_b32 s33, s3, 7")
    k.e("s_lshr_b32 s3, s3, 3")
    k.e("s_lshr_b32 s35, s3, 1")
    k.e("s_and_b32 s3, s3, 1")
    k.e("s_and_b32 s34, s2, 7")
    k.e("s_lshl_b32 s34, s34, 1")
    k.e("s_add_u32 s34, s34, s3")
    for j in range(4):
        k.e(f"s_mov_b32 s{48+j}, {j*7168}")
        k.e(f"s_mov_b32 s{52+j}, {j*15360}")
    k.e("s_lshl_b32 s56, s32, 13")
    k.e("s_add_u32 s57, s56, 32768")
    k.e("s_lshl_b32 s3, s32, 4")
    k.e("v_add_u32 v30, s3, v33")
    k.e("v_lshlrev_b32 v30, 13, v30")
    k.e("v_lshlrev_b32 v34, 1, v33")
    k.e("v_xor_b32 v31, v31, v34")
    for hi in range(2):
        for par in range(2):
            k.e(f"v_xor_b32 v34, {(2*par + 4*hi) << 1}, v31")
            k.e(f"v_lshl_add_u32 v{VOW + par + 2*hi}, v34, 4, v30")
            if hi: k.e(f"v_add_u32 v{VOW + par + 2*hi}, {8*8192}, v{VOW + par + 2*hi}")
    k.e("v_lshrrev_b32 v30, 3, v0")
    k.e("s_lshl_b32 s3, s32, 6")
    k.e("v_add_u32 v30, s3, v30")
    k.e("v_lshlrev_b32 v30, 10, v30")
    k.e("v_and_b32 v31, 7, v0")
    k.e("v_lshrrev_b32 v32, 4, v0")
    k.e("v_xor_b32 v31, v31, v32")
    k.e(f"v_lshl_add_u32 v{VOA}, v31, 4, v30")
    k.e("v_xor_b32 v31, 4, v31")
    k.e(f"v_lshl_add_u32 v{VOA+1}, v31, 4, v30")
    k.e(f"v_add_u32 v{VOA+2}, 32768, v{VOA}")
    k.e(f"v_add_u32 v{VOA+3}, 32768, v{VOA+1}")
    k.e("s_waitcnt lgkmcnt(0)")
    k.srd(16, 4, 4194304)
    XP, WR, XF = 48, 64, 80
    for i in range(4):
        k.e(f"buffer_load_dwordx4 {V(XP+4*i,4)}, v35, s[16:19], s36 offen offset:{i*512}{x_ld}", tag='x')
    def emit(lst, o=None):
        for x in lst:
            if x.endswith(':'): k.label(x[:-1])
            else: k.e(x, tag='cpf')
    CPF = opt.get('cpf', '12')
    if '1' in CPF: emit(code_prefetch("front_kernel", "L_k2_end", 32, 68, 120, 124))
    k.e("s_cmp_eq_u32 s35, 0")
    k.e("s_cselect_b32 s40, s40, s42")
    k.e("s_cselect_b32 s41, s41, s43")
    k.e("s_lshl_b32 s3, s34, 9")
    k.srd(12, 40, 0, "s3")
    k.e("s_sub_u32 s14, 4194304, s3")
    k.e("s_lshl_b32 s3, s33, 18")
    k.srd(8, 6, 262144, "s3")
    def dma_ops(buf):
        ops = []
        for (base, vo, so, srd, fl) in ((57, VOW, 52, 12, w_ld), (56, VOA, 48, 8, a_ld)):
            for hi in range(2):
                ops.append(('s', f"s_add_u32 m0, s{base}, {buf*65536 + hi*4096}"))
                for lo in range(4):
                    ops.append(('g', f"buffer_load_dwordx4 v{vo + (lo&1) + 2*hi}, {S(srd,4)}, s{so+lo} offen offset:{lo*1024}{fl} lds"))
        return ops
    def adv_ops():
        return [f"v_add_u32 v{VOW+j}, {64*8192}, v{VOW+j}" for j in range(4)] + [f"v_add_u32 v{VOA+j}, 128, v{VOA+j}" for j in range(4)]
    st0 = dma_ops(0)
    for t, s in st0[:10]: k.e(s, tag='st0')
    k.srd(28, 44, 2048)
    k.srd(20, 66, 8 << 20)
    k.srd(24, 66, 32 * KV_HEAD, WS_KV)
    k.e("v_and_b32 v30, 15, v0")
    k.e("s_lshr_b32 s3, s32, 1")
    k.e("s_lshl_b32 s3, s3, 14")
    k.e("v_lshlrev_b32 v31, 7, v30")
    k.e("v_add_u32 v31, s3, v31")
    k.e("v_lshrrev_b32 v34, 1, v30")
    k.e("v_xor_b32 v34, v34, v32")
    k.e(f"v_lshl_add_u32 v{AD}, v34, 4, v31")
    k.e("v_xor_b32 v34, 4, v34")
    k.e(f"v_lshl_add_u32 v{AD+1}, v34, 4, v31")
    k.e("v_lshrrev_b32 v30, 2, v30")
    k.e("v_lshl_add_u32 v31, v32, 3, v30")
    k.e("v_lshlrev_b32 v31, 9, v31")
    k.e("v_and_b32 v34, 3, v0")
    k.e("v_lshl_add_u32 v31, v34, 3, v31")
    k.e("s_and_b32 s3, s32, 1")
    k.e("s_lshl_b32 s3, s3, 8")
    k.e("s_add_u32 s3, s3, 32768")
    k.e("v_add_u32 v31, s3, v31")
    k.e("v_and_b32 v34, 1, v32")
    k.e("v_lshl_add_u32 v30, v34, 2, v30")
    for jj in range(8):
        k.e(f"v_xor_b32 v34, {jj}, v30")
        k.e(f"v_lshl_add_u32 v{AD+2+jj}, v34, 5, v31")
    for j in range(10):
        k.e(f"v_add_u32 v{AD+10+j}, 65536, v{AD+j}")
    k.e("s_cmp_lt_u32 s32, 2")
    for j in range(3): k.e(f"s_cselect_b32 s{60+j}, s{8+j}, s{12+j}")
    k.e("s_mov_b32 s63, 0x20000")
    k.e(f"s_mov_b32 s59, {64*8192}")
    k.e("s_cselect_b32 s59, 128, s59")
    k.e("s_lshr_b32 s3, s2, 6")
    k.e("s_lshl_b32 s3, s3, 1")
    k.e("s_add_u32 s3, s3, s32")
    k.e("s_lshl_b32 s3, s3, 15")
    k.e("s_add_u32 s3, s3, 256")
    k.e("v_lshlrev_b32 v37, 10, v0")
    k.e("v_add_u32 v37, s3, v37")
    k.e("v_lshrrev_b32 v38, 2, v0")
    k.e("v_lshlrev_b32 v38, 13, v38")
    k.e("v_and_b32 v39, 3, v0")
    k.e("v_lshl_add_u32 v38, v39, 7, v38")
    k.e("s_lshl_b32 s39, s33, 1")
    k.e("s_add_u32 s39, s39, s32")
    k.e("s_lshl_b32 s39, s39, 15")
    k.e(f"s_add_u32 s39, s39, {120*8192}")
    k.e("v_add_u32 v38, s39, v38")
    k.e("s_cmp_lt_u32 s32, 2")
    k.e("s_cselect_b64 vcc, -1, 0")
    k.e("s_cselect_b32 s3, 32, 16")
    k.e(f"v_cndmask_b32 v{PFO}, v38, v37, vcc")
    k.e("v_cmp_gt_u32 vcc, s3, v0")
    k.e(f"v_mov_b32 v37, {BIG}")
    k.e(f"v_cndmask_b32 v{PFO}, v37, v{PFO}, vcc")
    def pf_ops():
        return [f"buffer_load_dword v1, v{PFO}, s[60:63], 0 offen{opt.get('pf_ld', '')}", f"v_add_u32 v{PFO}, s59, v{PFO}"]
    for t, s in st0[10:]: k.e(s, tag='st0')
    for i in range(4):
        k.e(f"buffer_load_dwordx4 {V(WR+4*i,4)}, v36, s[28:31], 0 offen offset:{i*512}", tag='wr')
    for s in adv_ops(): k.e(s)
    k.stamp(ST)

    st1 = dma_ops(1)
    def sum32(v, t):
        for m in ["quad_perm:[1,0,3,2]", "quad_perm:[2,3,0,1]", "row_half_mirror", "row_mirror"]:
            k.e(f"v_add_f32_dpp v{v}, v{v}, v{v} {m} row_mask:0xf bank_mask:0xf")
        k.e(f"v_mov_b32 v{t}, v{v}")
        k.e(f"v_permlane16_swap_b32 v{t}, v{v}")
        k.e(f"v_add_f32 v{v}, v{v}, v{t}")
    k.wait_vm('x')
    for i in range(16):
        k.e(f"v_lshlrev_b32 v{XF+2*i}, 16, v{XP+i}")
        k.e(f"v_and_b32 v{XF+2*i+1}, 0xffff0000, v{XP+i}")
    k.e(f"v_pk_add_f32 v[40:41], {V(XF,2)}, {V(XF+2,2)}")
    k.e(f"v_pk_add_f32 v[42:43], {V(XF+4,2)}, {V(XF+6,2)}")
    for i in range(4, 16):
        d = 40 + 2 * (i & 1)
        k.e(f"v_pk_add_f32 {V(d,2)}, {V(d,2)}, {V(XF+2*i,2)}")
    k.e("v_pk_add_f32 v[40:41], v[40:41], v[42:43]")
    k.e("v_add_f32 v38, v40, v41")
    sum32(38, 37)
    for t, s in st1[:10]: k.e(s, tag='st1')
    k.e("v_mul_f32 v38, 0xba800000, v38")
    k.e("v_mov_b32 v39, v38")
    T = 112
    for i in range(16):
        k.e(f"v_pk_add_f32 {V(T+2*(i&3),2)}, {V(XF+2*i,2)}, v[38:39]")
        d = 40 + 2 * (i & 1)
        if i < 2: k.e(f"v_pk_mul_f32 {V(d,2)}, {V(T+2*(i&3),2)}, {V(T+2*(i&3),2)}")
        else: k.e(f"v_pk_fma_f32 {V(d,2)}, {V(T+2*(i&3),2)}, {V(T+2*(i&3),2)}, {V(d,2)}")
    k.e("v_pk_add_f32 v[40:41], v[40:41], v[42:43]")
    k.e("v_add_f32 v40, v40, v41")
    sum32(40, 37)
    for t, s in st1[10:]: k.e(s, tag='st1')
    k.e("v_mul_f32 v40, 0x3a800000, v40")
    k.e("v_cvt_pk_bf16_f32 v44, v38, v40")
    k.e("v_lshlrev_b32 v38, 16, v44")
    k.e("v_and_b32 v40, 0xffff0000, v44")
    k.e("v_add_f32 v40, 0x3727c5ac, v40")
    k.e("v_cvt_pk_bf16_f32 v44, v40, v40")
    k.e("v_lshlrev_b32 v40, 16, v44")
    k.e("v_sqrt_f32 v40, v40")
    k.e("v_mov_b32 v39, v38")
    k.e("v_cvt_pk_bf16_f32 v44, v40, v40")
    k.e("v_lshlrev_b32 v44, 16, v44")
    k.e("v_rcp_f32 v40, v44")
    for i in range(16):
        k.e(f"v_pk_add_f32 {V(XF+2*i,2)}, {V(XF+2*i,2)}, v[38:39]")
    k.e("v_fma_f32 v45, -v44, v40, 1.0")
    k.e("v_fma_f32 v40, v45, v40, v40")
    k.e("v_mov_b32 v41, v40")
    for i in range(16):
        k.e(f"v_cvt_pk_bf16_f32 v{XP+i}, v{XF+2*i}, v{XF+2*i+1}")
    for i in range(16):
        k.e(f"v_lshlrev_b32 v{XF+2*i}, 16, v{XP+i}")
        k.e(f"v_and_b32 v{XF+2*i+1}, 0xffff0000, v{XP+i}")
    for i in range(16):
        k.e(f"v_pk_mul_f32 {V(XF+2*i,2)}, {V(XF+2*i,2)}, v[40:41]")
    for i in range(16):
        k.e(f"v_cvt_pk_bf16_f32 v{XP+i}, v{XF+2*i}, v{XF+2*i+1}")
    k.e("s_mul_i32 s3, s32, 4128")
    k.e("s_add_u32 s3, s3, 131072")
    k.e("v_mul_u32_u24 v42, 2064, v33")
    k.e("v_add3_u32 v42, v42, v36, s3")
    for i in range(4):
        k.e(f"ds_write_b128 v42, {V(XP+4*i,4)} offset:{i*512}")
    for s in adv_ops(): k.e(s)
    for _ in range(2):
        for s in pf_ops(): k.e(s, tag='pf')
    k.wait_vm('wr')
    for i in range(16):
        k.e(f"v_lshlrev_b32 v{XF+2*i}, 16, v{XP+i}")
        k.e(f"v_and_b32 v{XF+2*i+1}, 0xffff0000, v{XP+i}")
        k.e(f"v_lshlrev_b32 v{T+2*(i&3)}, 16, v{WR+i}")
        k.e(f"v_and_b32 v{T+2*(i&3)+1}, 0xffff0000, v{WR+i}")
        d = 42 + 2 * (i & 1)
        if i < 2: k.e(f"v_pk_mul_f32 {V(d,2)}, {V(XF+2*i,2)}, {V(T+2*(i&3),2)}")
        else: k.e(f"v_pk_fma_f32 {V(d,2)}, {V(XF+2*i,2)}, {V(T+2*(i&3),2)}, {V(d,2)}")
    k.e("v_pk_add_f32 v[42:43], v[42:43], v[44:45]")
    k.e("v_add_f32 v45, v42, v43")
    sum32(45, 37)
    k.e("v_cvt_pk_bf16_f32 v45, v45, v45")
    k.e("v_ashrrev_i32 v46, 31, v45")
    k.e("v_or_b32 v46, 0x80000000, v46")
    k.e("v_xor_b32 v45, v45, v46")
    k.e("v_and_b32 v45, 0xffff0000, v45")
    k.e("s_lshr_b32 s3, s36, 11")
    k.e("v_add_u32 v46, s3, v33")
    k.e("v_sub_u32 v44, 0xffff, v46")
    k.e("v_or_b32 v45, v45, v44")
    k.e("v_lshlrev_b32 v44, 2, v46")
    k.e("v_lshlrev_b32 v46, 3, v46")
    k.e("v_xor_b32 v38, 0x80000000, v38")
    k.e("v_mov_b32 v39, v40")
    k.e(f"s_mov_b32 s3, {WS_KEYS}")
    k.e(f"s_mov_b32 s39, {WS_STATS}")
    k.e("s_mov_b32 exec_lo, 1")
    k.e("s_mov_b32 exec_hi, 1")
    k.e("buffer_store_dword v45, v44, s[20:23], s3 offen sc1", tag='ln')
    k.e("buffer_store_dwordx2 v[38:39], v46, s[20:23], s39 offen", tag='ln')
    k.e("s_mov_b64 exec, -1")
    k.e("s_load_dwordx2 s[4:5], s[0:1], 16")
    k.e("s_load_dwordx4 s[40:43], s[0:1], 64")
    k.srd(28, 64, 256)
    k.stamp(ST)

    def reads(ks, buf):
        a = AD + 10 * buf
        ra = [f"ds_read_b128 {A(FA(ks,i),4)}, v{a+ks} offset:{i*2048}" for i in range(8)]
        rw = [[f"ds_read_b64_tr_b16 {A(FW(ks,j)+2*rd,2)}, v{a+2+j} offset:{ks*16384+rd*2048}" for rd in range(2)] for j in range(8)]
        out = []
        for j in range(8):
            out.append(rw[j]); out.append([ra[j]])
        return out
    k.wait_vm('st0')
    k.e("s_waitcnt lgkmcnt(0)")
    k.e("s_barrier")
    k.stamp(ST)
    n = 0
    for grp in reads(0, 0):
        for s in grp:
            k.e(s); n += 1
            if n == 12: k.e("s_waitcnt lgkmcnt(2)")
    k.e("s_cmp_lg_u32 s35, 0")
    k.e("s_cbranch_scc1 L_k1_vpath")

    def chunk_ops(c):
        kind, j = c
        slot = {'w': j % 4, 'f': 4 + j, 'kv': j % 8}[kind]
        ops = [('s', f"s_add_u32 m0, s44, {slot * 16384}")]
        if kind == 'w':
            for q in range(4):
                ops.append(('g', f"buffer_load_dwordx4 v{WV + (q >> 1)}, s[8:11], s{48+q} offen offset:{q*1024}{wq_ld} lds"))
            ops.append(('v', f"v_add_u32 v{WV}, {64*8192}, v{WV}"))
            ops.append(('v', f"v_add_u32 v{WV+1}, {64*8192}, v{WV+1}"))
        elif kind == 'f':
            for q in range(4):
                ops.append(('g', f"buffer_load_dwordx4 v{12 + (q >> 1) + 2 * (j & 1)}, {S(60 + 8 * (j >> 1), 4)}, s{52+q} offen offset:{q*1024}{ffn_ld} lds"))
        else:
            ops.append(('s', f"s_mov_b32 s7, {j * KV_CH}"))
            for q in range(4):
                ops.append(('g', f"buffer_load_dwordx4 v{VDMA}, s[12:15], s7 offen offset:{q*1024}{kv_ld} lds"))
        return ops
    def xn_ops(kk):
        ops = []
        for qb in range(4):
            so = "s58" if qb & 1 else "0"
            ops.append(('g', f"buffer_load_dwordx4 {A(XR(kk,qb),4)}, v{XV + (qb >> 1)}, s[20:23], {so} offen offset:{(kk % 4)*1024}{opt.get('xn_ld', ' sc1')}"))
        if kk % 4 == 3:
            ops.append(('v', f"v_add_u32 v{XV}, 4096, v{XV}"))
            ops.append(('v', f"v_add_u32 v{XV+1}, 4096, v{XV+1}"))
        return ops
    def wreads(kk):
        st, ks = kk // 2, kk & 1
        return [[f"ds_read_b64_tr_b16 {A(WF(kk,db)+2*rd,2)}, v{TA+db} offset:{(st % 4)*16384 + ks*8192 + rd*1024}" for rd in range(2)] for db in range(8)]
    ool = []
    def spin(lab, ret, off, target, vd, vz, sv, sc):
        def fn():
            k.e(f"s_mov_b32 s{sc}, 0x400000")
            k.label(lab + "_l")
            k.e(f"s_sleep {opt.get('slp', 8)}")
            k.e(f"buffer_load_dword v{vd}, v{vz}, s[28:31], {off} offen sc1")
            k.e("s_waitcnt vmcnt(0)")
            k.e(f"v_readfirstlane_b32 s{sv}, v{vd}")
            k.e(f"s_sub_u32 s{sc}, s{sc}, 1")
            k.e(f"s_cmp_eq_u32 s{sc}, 0")
            k.e(f"s_cbranch_scc1 {ret}")
            k.e(f"s_cmp_lt_u32 s{sv}, {target}")
            k.e(f"s_cbranch_scc1 {lab}_l")
        ool.append((lab, fn, ret))
    def srd_rec(b, d, base, nbytes, add=None):
        if add is None:
            b.e(f"s_mov_b32 s{d}, s{base}"); b.e(f"s_and_b32 s{d+1}, s{base+1}, 0xffff")
        else:
            b.blk([f"s_add_u32 s{d}, s{base}, {add}", f"s_addc_u32 s{d+1}, s{base+1}, 0", f"s_and_b32 s{d+1}, s{d+1}, 0xffff"])
        b.e(f"s_mov_b32 s{d+2}, {nbytes}"); b.e(f"s_mov_b32 s{d+3}, 0x20000")

    def phase1_stream(isV):
        b = Rec()
        tg = 'v' if isV else 'k'
        b.e("v_and_b32 v46, 7, v0")
        b.e("v_lshrrev_b32 v1, 3, v0") if False else None
        b.e("v_mul_u32_u24 v30, 2064, v46")
        b.e("v_lshrrev_b32 v31, 3, v0")
        b.e("s_lshl_b32 s3, s32, 9")
        b.e("s_add_u32 s3, s3, 131072")
        b.e("v_lshl_add_u32 v30, v31, 4, v30")
        b.e("v_add_u32 v30, s3, v30")
        b.e("v_lshlrev_b32 v31, 8, v31")
        b.e("v_lshl_add_u32 v46, v46, 4, v31")
        for i in (1, 2, 3, 0):
            b.e(f"ds_read_b128 {V(30+4*i,4)}, v30 offset:{i*128}", tag='xs')
        b.e("s_lshr_b32 s3, s2, 1")
        b.e(f"s_mul_i32 s3, s3, {XN_RB}")
        b.e("s_add_u32 s3, s3, s56")
        b.e("s_and_b32 s39, s2, 1")
        b.e("s_lshl_b32 s39, s39, 7")
        b.e("s_add_u32 s3, s3, s39")
        b.e("s_add_u32 s39, s3, 4096")
        b.at(2)
        for i in range(4):
            b.e(f"buffer_store_dwordx4 {V(30+4*i,4)}, v46, s[20:23], s{3 if i < 2 else 39} offen offset:{(i&1)*2048} sc1", tag='ln')
        b.e("s_lshl_b32 s3, s34, 1")
        b.e("s_and_b32 s36, s32, 1")
        b.e("s_add_u32 s3, s3, s36")
        b.e(f"s_mul_i32 s3, s3, {KV_HEAD}")
        b.e(f"s_mul_i32 s36, s33, {4*KV_TILE}")
        b.e("s_add_u32 s3, s3, s36")
        b.e("s_lshr_b32 s36, s32, 1")
        b.e(f"s_mul_i32 s36, s36, {2*KV_TILE}")
        b.e("s_add_u32 s3, s3, s36")
        b.e(f"s_add_u32 s38, s3, {KV_CH if isV else 0}")
        b.e("s_lshl_b32 s39, s34, 7")
        b.e("s_lshl_b32 s36, s33, 2")
        b.e("s_add_u32 s39, s39, s36")
        b.e(f"s_add_u32 s39, s39, {WS_FLG + (32 if isV else 0)}")
        b.e("v_mov_b32 v30, 1")
        b.e("v_mov_b32 v31, 0")
        b.blk(["s_cmp_eq_u32 s32, 0", f"s_cselect_b32 s39, s39, {BIG}"])
        b.blk(["s_mov_b64 exec, 1", ("buffer_store_dword v31, v31, s[20:23], s39 offen sc1", 'ln'), "s_mov_b64 exec, -1"])
        if MAP == 4:
            b.e("s_and_b32 s33, s2, 7")
            b.e("s_lshl_b32 s33, s33, 2")
            b.e("s_bfe_u32 s3, s2, 0x20003")
            b.e("s_add_u32 s33, s33, s3")
            b.e("s_lshr_b32 s34, s2, 5")
        else:
            b.e("s_and_b32 s33, s2, 6")
            b.e("s_lshl_b32 s33, s33, 2")
            b.e("s_bfe_u32 s3, s2, 0x30003")
            b.e("s_add_u32 s33, s33, s3")
            b.e("s_lshr_b32 s34, s2, 6")
            b.e("s_lshl_b32 s34, s34, 1")
            b.e("s_and_b32 s3, s2, 1")
            b.e("s_add_u32 s34, s34, s3")
        b.e("s_lshl_b32 s35, s34, 1")
        b.e("s_sub_u32 s36, 32, s35")
        b.e("s_add_u32 s35, s35, 2")
        b.e("s_lshl_b32 s44, s32, 12")
        b.e(f"s_mov_b32 s58, {XN_RB}")
        b.e("s_sub_u32 s3, 15, s34")
        b.e("s_lshl_b32 s45, s3, 2")
        b.e("s_add_u32 s45, s45, s32")
        b.e("s_lshl_b32 s46, s34, 2")
        b.e("s_add_u32 s46, s46, s32")
        srd_rec(b, 16, 66, 16 << 20, WS_CTX)
        srd_rec(b, 68, 42, 7340032)
        b.blk(["s_cmp_eq_u32 s32, 0", f"s_cselect_b32 s37, 0, {BIG}"])
        b.at(6)
        b.check_clear('ln')
        b.blk(["s_mov_b64 exec, 1", "buffer_atomic_add v30, v31, s[28:31], s37 offen sc1", "s_mov_b64 exec, -1"])
        if 'touch' in opt:
            b.e("s_lshr_b32 s3, s2, 1")
            b.e(f"s_mul_i32 s3, s3, {XN_RB}")
            b.e("s_add_u32 s3, s3, s56")
            b.e("s_and_b32 s47, s2, 1")
            b.e("s_lshl_b32 s47, s47, 7")
            b.e("s_add_u32 s3, s3, s47")
            b.e("v_and_b32 v32, 31, v0")
            b.e("v_lshlrev_b32 v32, 8, v32")
            b.e("buffer_load_dword v40, v32, s[20:23], s3 offen")
        b.at(8)
        b.e("s_lshl_b32 s3, s33, 8")
        srd_rec(b, 60, 4, 0, "s3")
        b.e("s_sub_u32 s62, 8388608, s3")
        b.e("v_lshrrev_b32 v32, 1, v0")
        b.e("v_and_b32 v33, 1, v0")
        b.e("v_lshlrev_b32 v32, 13, v32")
        b.e("v_lshl_add_u32 v32, v33, 7, v32")
        if MAP == 4:
            b.e("s_lshl_b32 s3, s32, 3")
            b.e("s_add_u32 s3, s3, s34")
            b.e("s_lshl_b32 s3, s3, 18")
            b.e(f"s_mov_b32 s59, {1 << 23}")
        else:
            b.e("s_lshl_b32 s3, s32, 2")
            b.e("s_lshr_b32 s47, s34, 1")
            b.e("s_add_u32 s3, s3, s47")
            b.e("s_lshl_b32 s3, s3, 18")
            b.e(f"s_mov_b32 s59, {1 << 22}")
        b.e(f"v_add_u32 v{PFO}, s3, v32")
        b.e("v_lshrrev_b32 v32, 4, v0")
        b.e("v_and_b32 v33, 15, v0")
        b.e("s_lshl_b32 s3, s32, 4")
        b.e("v_add_u32 v34, s3, v32")
        b.e("v_lshlrev_b32 v36, 1, v32")
        b.e("v_xor_b32 v36, v36, v33")
        b.e("v_xor_b32 v37, 8, v36")
        if '2' in CPF:
            b.at(10)
            cp = code_prefetch("L_phase2", "L_k2_end", 32, 6, 40, 44)
            cp = [x.replace("s8", "s3") for x in cp]
            b.blk(cp[:4])
            for x in cp[4:-3]: b.e(x)
            b.blk(cp[-3:-1])
            b.e(cp[-1])
        b.at(12)
        b.e("buffer_load_dword v30, v31, s[28:31], s37 offen sc1", tag='poll')
        for j in range(3): b.e(f"s_mov_b32 s{8+j}, s{60+j}")
        for j in range(4): b.e(f"s_mov_b32 s{48+j}, {j*31744}")
        b.e("v_lshlrev_b32 v35, 13, v34")
        b.e(f"v_lshl_add_u32 v{WV}, v36, 4, v35")
        b.e(f"v_lshl_add_u32 v{WV+1}, v37, 4, v35")
        b.e(f"v_lshlrev_b32 v{VX}, 4, v0")
        b.e(f"v_add_u32 v{VY}, 65536, v{VX}")
        b.e(f"v_add_u32 v{VDMA}, s44, v{VX}")
        b.e("v_mov_b32 v7, 0")
        b.e("v_lshlrev_b32 v35, 2, v32")
        b.e("v_sub_u32 v35, v33, v35")
        b.e("s_lshl_b32 s3, s45, 5")
        b.e(f"v_add_u32 v{VRA}, s3, v35")
        b.e("s_lshl_b32 s3, s46, 5")
        b.e(f"v_add_u32 v{VRB}, s3, v35")
        b.e(f"s_mul_i32 s3, s33, {KV_HEAD}")
        b.e(f"s_add_u32 s3, s3, {WS_KV}")
        srd_rec(b, 12, 66, 0, "s3")
        b.e(f"s_mul_i32 s14, s36, {KV_TILE}")
        b.at(13)
        b.e(f"s_mul_i32 s3, s45, {2*XN_RB}")
        b.e(f"v_add_u32 v{XV}, s3, v{VX}")
        b.e(f"s_mul_i32 s3, s46, {2*XN_RB}")
        b.e(f"v_add_u32 v{XV+1}, s3, v{VX}")
        if 'dbg_noxn' in opt:
            b.e(f"v_mov_b32 v{XV}, {BIG}"); b.e(f"v_mov_b32 v{XV+1}, {BIG}")
        if 'dbg_now' in opt: b.e("s_mov_b32 s10, 0")
        if 'dbg_nost' in opt: b.e("s_mov_b32 s26, 0")
        spin(f"L_spinA{tg}", f"L_spinAr{tg}", 0, 256, 30, 31, 3, 47)
        return b
    def ta_setup(b):
        b.e("v_lshrrev_b32 v42, 2, v33")
        b.e("v_lshl_add_u32 v43, v32, 3, v42")
        b.e("v_lshlrev_b32 v43, 8, v43")
        b.e("v_and_b32 v44, 3, v0")
        b.e("v_lshl_add_u32 v43, v44, 3, v43")
        b.e("v_and_b32 v44, 1, v32")
        b.e("v_lshl_add_u32 v42, v44, 2, v42")
        for db in range(8):
            b.e(f"v_xor_b32 v44, {db}, v42")
            b.e(f"v_lshl_add_u32 v{TA+db}, v44, 5, v43")

    def kstep(isV, st, ks, gaps, gtags, pre, b):
        for s in pre:
            if s.endswith(':'): k.label(s[:-1])
            else: k.e(s)
        order = [(it, jd) for it in range(8) for jd in range(8)]
        if st == 7 and ks == 1: order.sort(key=lambda x: frag_of(isV, *x))
        for n, (it, jd) in enumerate(order):
            fa, fw_ = A(FA(ks, it), 4), A(FW(ks, jd), 4)
            d = acc(isV, it, jd)
            c = "0" if (st == 0 and ks == 0) else d
            k.e(mfma(d, fa, fw_, c) if isV else mfma(d, fw_, fa, c))
            if n in gaps:
                for s in gaps[n]: k.e(s, tag=gtags.get(n))
            else:
                b.fill(k, 2 * st + ks + n / 64.0)
    def place_vm(g, gt, ops, start, step):
        gi = start; lead = []
        for t, s, tg in ops:
            if t == 's':
                if gi == 0: lead.append(s)
                else: g.setdefault(gi - 1, []).insert(0, s)
            elif t == 'g':
                assert gi not in g and gi < 64, gi
                g[gi] = [s]; gt[gi] = tg; gi += step
            else:
                q = gi - step + 1
                while q in g and (len(g[q]) >= 2 or g[q][-1].startswith(('buffer', 'ds_read_b64'))) or (q - start) % step == 0: q += 1
                g.setdefault(min(q, 63), []).append(s)
        return lead
    vq0, dq0 = list(k.vq), list(k.dq)
    for isV in (0, 1):
        if isV:
            k.label("L_k1_vpath"); k.win = []; k.vq = list(vq0); k.dq = list(dq0)
        b = phase1_stream(isV)
        if S1: k.nstamp = 0
        for st in range(8):
            p = st & 1
            k.stamp(S1)
            g = {}
            for n, grp in enumerate(reads(1, p)):
                g[2 * n + 1] = (["s_waitcnt lgkmcnt(6)"] if n % 4 == 3 else []) + grp
            kstep(isV, st, 0, g, {}, ["s_waitcnt lgkmcnt(0)"], b)
            g = {}; gt = {}
            if st < 7:
                for n, grp in enumerate(reads(0, p ^ 1)):
                    g[2 * n + 1] = (["s_waitcnt lgkmcnt(6)"] if n % 4 == 2 else []) + grp
            if st < 6:
                ops = []
                d = dma_ops(p); adv = adv_ops()
                ops = [(t, s, f'st{st+2}') for t, s in d[:10]] + [('v', s, None) for s in adv[:4]] + \
                      [(t, s, f'st{st+2}') for t, s in d[10:]] + [('v', s, None) for s in adv[4:]]
                lead = place_vm(g, gt, ops, 0, 4)
                if st < 5 or MAP != 4:
                    g[62] = [pf_ops()[0]] + g.get(62, []); gt[62] = 'pf'
                    g.setdefault(63, []).append(pf_ops()[1])
                need = f'st{st+1}'
            elif st == 6:
                ops = []
                for c in range(4): ops += [(t, s, f'w{c}') for t, s in chunk_ops(('w', c))]
                lead = place_vm(g, gt, ops, 0, 4)
                need = 'st7'
            else:
                assert not b.items, len(b.items)
                ta_setup(b)
                b.items.append(('at', 15.3, None))
                for grp in wreads(0):
                    for s in grp: b.e(s)
                b.e("s_waitcnt lgkmcnt(8)")
                cv = Rec()
                for n in range(26):
                    cv.at(15 + (2 * n + 5) / 64.0)
                    r = SRC(n)[1]
                    for q in range(4): cv.e(f"v_cvt_pk_bf16_f32 v{PK(n)+q}, v{r+2*q}, v{r+2*q+1}")
                b.items += cv.items
                ops = []
                for kk in range(4): ops += [(t, s, f'x{kk}') for t, s in xn_ops(kk)]
                lead = place_vm(g, gt, ops, 0, 4)
                tg = 'v' if isV else 'k'
                lead += ["v_readfirstlane_b32 s3, v30", "s_nop 0", "s_or_b32 s3, s3, s37", "s_cmp_lt_u32 s3, 256", f"s_cbranch_scc1 L_spinA{tg}", f"L_spinAr{tg}:"]
                need = 'w0'
            k.e(f"s_waitcnt vmcnt({k.vm_n(need)}) lgkmcnt(0)" if k.vm_n(need) is not None else "s_waitcnt lgkmcnt(0)")
            kstep(isV, st, 1, g, gt, lead + ["s_barrier"], b)
        print(f"phase1 isV={isV}: items left {len(b.items)}")
        k.stamp(S1)
        b.drain(k)
        k.stamp(S1)
        if not isV:
            k.e("s_branch L_phase2")
            vqK = list(k.vq)
    assert vqK == k.vq
    k.label("L_phase2")
    k.win = []
    k.e("s_nop 7")
    k.stamp(ST)

    b = Rec()
    KY = 56
    SPK = float(opt.get('spk', 2))
    def kvstore(n):
        b.at(n / SPK)
        off = (n >> 4) * KV_TILE + (n & 15) * 1024
        if n % 4 == 0: b.e(f"s_add_u32 s37, s38, {off}")
        b.e(f"buffer_store_dwordx4 {V(PK(n),4)}, v{VX}, s[24:27], s37 offen offset:{(n % 4)*1024}{opt.get('kv_st', ' sc1')}", tag='kvst')
    for n in range(26):
        kvstore(n)
        if 8 <= n < 14:
            m = n + 18
            for q in range(8): b.e(f"v_accvgpr_read_b32 v{48+q}, a{SRC(m)[1]+q}")
            for q in range(4): b.e(f"v_cvt_pk_bf16_f32 v{PK(m)+q}, v{48+2*q}, v{49+2*q}")
    for n in range(26, 32): kvstore(n)
    b.e("v_mov_b32 v12, 1")
    b.e("v_and_b32 v1, 15, v0")
    b.e("v_lshlrev_b32 v1, 2, v1")
    b.e("s_lshr_b32 s6, s33, 1")
    b.e("s_lshl_b32 s6, s6, 7")
    b.e(f"s_add_u32 s6, s6, {WS_FLG}")
    b.blk(["s_cmp_eq_u32 s32, 0", f"s_cselect_b32 s6, s6, {BIG}"])
    SIG = int(opt.get('sig', 21))
    POL = float(opt.get('pol', 28))
    b.at(SIG)
    b.blk(["s_mov_b64 exec, 1", "buffer_store_dword v12, v7, s[20:23], s39 offen sc1", "s_mov_b64 exec, -1"])
    b.at(POL)
    b.e("buffer_load_dword v12, v1, s[20:23], s6 offen sc1", tag='poll')
    b.at(31)
    for j in range(7):
        for t, s in chunk_ops(('kv', j)): b.e(s, tag=f'c{16+j}')
    def spinB():
        k.e("s_mov_b32 s59, 0x400000")
        k.label("L_spinB_l")
        k.e(f"s_sleep {opt.get('slp', 4)}")
        k.e("buffer_load_dword v12, v1, s[20:23], s6 offen sc1")
        k.e("s_sub_u32 s59, s59, 1")
        k.e("s_cmp_eq_u32 s59, 0")
        k.e("s_cbranch_scc1 L_spinBx")
        k.e("s_waitcnt vmcnt(0)")
        k.e("v_cmp_ne_u32 vcc, 1, v12")
        k.e("s_cbranch_vccnz L_spinB_l")
        k.label("L_spinBx")
        k.e("s_waitcnt vmcnt(0)")
    ool.append(("L_spinB", spinB, "L_spinBr"))

    b1 = b
    b = Rec()
    srd_rec(b, 60, 40, 7340032)
    b.at(17 / SPK)
    b.e(f"s_mov_b32 s3, {WS_KEYS}")
    b.e(f"s_mov_b32 s47, {WS_KEYS + 4096}")
    for i in range(8):
        b.e(f"buffer_load_dwordx4 {V(KY+4*i,4)}, v{VX}, s[20:23], s{3 if i < 4 else 47} offen offset:{(i % 4)*1024} sc1", tag='keys')
    b.at(17 / SPK + 8)
    b.wait_vm('keys')
    b.e(f"v_max_u32 v14, v{KY}, v{KY+1}")
    b.e(f"v_min_u32 v15, v{KY}, v{KY+1}")
    for i in range(2, 32):
        b.e(f"v_med3_u32 v15, v14, v15, v{KY+i}"); b.e(f"v_max_u32 v14, v14, v{KY+i}")
    def wmax(v, sdst):
        for m in ["quad_perm:[1,0,3,2]", "quad_perm:[2,3,0,1]", "row_half_mirror", "row_mirror"]:
            b.blk([f"v_max_u32_dpp {v}, {v}, {v} {m} row_mask:0xf bank_mask:0xf"])
        b.blk([f"v_readlane_b32 s3, {v}, 0", f"v_readlane_b32 s47, {v}, 16"])
        b.blk([f"v_readlane_b32 s4, {v}, 32", f"v_readlane_b32 s5, {v}, 48"])
        b.blk(["s_max_u32 s3, s3, s47", "s_max_u32 s4, s4, s5", f"s_max_u32 s{sdst}, s3, s4"])
    b.e("v_mov_b32 v13, v14")
    wmax("v13", 40)
    b.blk(["v_cmp_eq_u32 vcc, s40, v14"])
    b.blk(["v_cndmask_b32 v13, v14, v15, vcc"])
    wmax("v13", 41)
    for t in range(2):
        b.e(f"s_and_b32 s3, s{40+t}, 0xffff")
        b.e(f"s_sub_u32 s{42+t}, 0xffff, s3")
    for t in range(2):
        b.e(f"v_mov_b32 v{56+t}, s{42+t}")
        b.e(f"v_mov_b32 v60, s{40+t}")
        b.e("v_not_b32 v61, v60")
        b.e("v_ashrrev_i32 v61, 31, v61")
        b.e("v_or_b32 v61, 0x80000000, v61")
        b.e("v_xor_b32 v60, v60, v61")
        b.e("v_and_b32 v60, 0xffff0000, v60")
        b.e("v_mul_f32 v60, 0xbfb8aa3b, v60")
        b.e("v_exp_f32 v60, v60")
        b.e("v_add_f32 v60, 1.0, v60")
        b.e("v_rcp_f32 v60, v60")
        b.e("v_cvt_pk_bf16_f32 v60, v60, v60")
        b.e(f"v_and_b32 v{58+t}, 0xffff0000, v60")
    b.e(f"s_mov_b32 s47, {WS_SEL}")
    b.blk(["s_or_b32 s3, s2, s32", "s_cmp_eq_u32 s3, 0", f"s_cselect_b32 s3, s47, {BIG}"])
    b.blk(["s_mov_b64 exec, 1", "buffer_store_dwordx4 v[56:59], v7, s[20:23], s3 offen", "s_mov_b64 exec, -1"])
    for r in range(16): b.e(f"v_mov_b32 v{LS+r}, 0")
    b2 = b
    xsched = {0: [4, 5], 1: [6, 7], 2: [8, 9]}
    for kk in range(3, 25): xsched[kk] = [kk + 7]
    for kk in range(32):
        st, ks = kk // 2, kk & 1
        k.stamp(S2 and kk in (0, 2, 4, 8, 12, 16, 20, 22, 26, 29, 30))
        need = [f'x{kk}']
        if ks == 1 and st < 15: need.append(f'w{st+1}')
        if kk == SIG:
            assert not any(it[2] == 'kvst' for it in b1.items), "stores not all issued before SIG"
            need.append('kvst')
        if kk == 31: need.append('poll')
        w = [x for x in (k.vm_n(t) for t in need) if x is not None]
        k.e("s_waitcnt " + (f"vmcnt({min(w)}) " if w else "") + "lgkmcnt(0)")
        if kk == 31:
            assert not b2.items
            k.e("s_cmp_lg_u32 s32, 0")
            k.e("s_cbranch_scc1 L_spinBr")
            k.e("v_cmp_ne_u32 vcc, 1, v12")
            k.e("s_cbranch_vccnz L_spinB")
            k.label("L_spinBr")
        if ks == 1: k.e("s_barrier")
        g = {}; gt = {}
        if kk + 1 < 32:
            for n, grp in enumerate(wreads(kk + 1)):
                g[1 + 3 * n] = (["s_waitcnt lgkmcnt(6)"] if n == 5 else []) + grp
        vm = []
        if ks == 1 and st + 4 < 16: vm += [(t, s, f'w{st+4}') for t, s in chunk_ops(('w', st + 4))]
        for x in xsched.get(kk, []): vm += [(t, s, f'x{x}') for t, s in xn_ops(x)]
        ng = sum(1 for x in vm if x[0] == 'g')
        free = [x for x in range(2, 32) if x not in g]
        pick = [free[(j * len(free)) // ng] for j in range(ng)] if ng else []
        j = 0
        for t, s, tg in vm:
            if t == 'g': g[pick[j]] = [s]; gt[pick[j]] = tg; j += 1
            elif t == 's':
                q = pick[j] - 1
                if q in gt: g[q].append(s)
                else: g.setdefault(q, []).insert(0, s)
            else: g[pick[j - 1]].append(s)
        n = 0
        for db in range(8):
            for qb in range(4):
                k.e(mfma(V(QA(db, qb), 4), A(WF(kk, db), 4), A(XR(kk, qb), 4), V(QA(db, qb), 4) if kk else "0"))
                if n in g:
                    for s in g[n]: k.e(s, tag=gt.get(n))
                else:
                    nl = len(k.lines)
                    b1.fill(k, kk + n / 32.0)
                    if len(k.lines) == nl: b2.fill(k, kk + n / 32.0)
                n += 1
    print("phase2 items left", len(b1.items), len(b2.items))
    b2.drain(k)
    EARLYQ = 'lateq' not in opt
    if not EARLYQ: b1.drain(k)
    k.stamp(ST or S2)
    k.e(f"s_mov_b32 s4, {QSCALE}")
    k.e("s_mov_b32 s5, s4")
    for qb in range(4):
        for s_ in range(4):
            for h in range(2):
                r = QA(2 * s_ + h, qb)
                k.e(f"v_pk_mul_f32 {V(r,2)}, {V(r,2)}, s[4:5]")
                k.e(f"v_pk_mul_f32 {V(r+2,2)}, {V(r+2,2)}, s[4:5]")
                k.e(f"v_cvt_pk_bf16_f32 v{r}, v{r}, v{r+1}")
                k.e(f"v_cvt_pk_bf16_f32 v{r+1}, v{r+2}, v{r+3}")
                k.e(f"v_accvgpr_write_b32 a{Q(qb,s_)+2*h}, v{r}")
                k.e(f"v_accvgpr_write_b32 a{Q(qb,s_)+2*h+1}, v{r+1}")
        if qb == int(opt.get('drainq', 0)): b1.drain(k)
    for r in range(4): k.e(f"v_mov_b32 v{ONES+r}, 0x3f803f80")
    k.e(f"v_mov_b32 v{NINF}, 0xff800000")
    for j in range(3): k.e(f"s_mov_b32 s{24+j}, s{60+j}")
    k.e("s_lshl_b32 s3, s34, 5")
    k.e("s_add_u32 s3, s3, s33")
    k.e("s_mul_i32 s6, s3, 2341")
    k.e("s_lshr_b32 s6, s6, 16")
    k.e("s_mul_i32 s47, s6, 28")
    k.e("s_sub_u32 s4, s3, s47")
    k.e(f"s_mul_i32 s5, s6, {128*7168}")
    k.e("s_lshl_b32 s47, s4, 8")
    k.e("s_add_u32 s5, s5, s47")
    def ffn_dma(srd):
        k.e("v_lshrrev_b32 v24, 4, v0")
        k.e("v_and_b32 v25, 15, v0")
        k.e("s_lshl_b32 s3, s32, 4")
        k.e("v_add_u32 v26, s3, v24")
        k.e("v_mul_u32_u24 v26, 7168, v26")
        k.e("v_lshlrev_b32 v24, 1, v24")
        k.e("v_xor_b32 v24, v24, v25")
        k.e("v_xor_b32 v25, 8, v24")
        k.e("v_lshl_add_u32 v24, v24, 4, v26")
        k.e("v_lshl_add_u32 v25, v25, 4, v26")
        for h in range(2):
            k.e(f"s_add_u32 m0, s44, {131072 + h*16384}")
            for q in range(4):
                k.e(f"s_add_u32 s3, s5, {h*64*7168 + q*27648}")
                k.e(f"buffer_load_dwordx4 v{24 + (q >> 1)}, {S(srd,4)}, s3 offen offset:{q*1024}{ffn_ld} lds")
    XS = 160
    def ffn_reads():
        k.e("v_lshrrev_b32 v24, 4, v0")
        k.e("v_bfe_u32 v25, v0, 2, 2")
        k.e("v_lshl_add_u32 v26, v24, 3, v25")
        k.e("v_lshlrev_b32 v26, 8, v26")
        k.e("v_and_b32 v27, 3, v0")
        k.e("v_lshl_add_u32 v26, v27, 3, v26")
        k.e("v_and_b32 v27, 1, v24")
        k.e("v_lshl_add_u32 v25, v27, 2, v25")
        k.e("s_lshl_b32 s3, s32, 1")
        k.e("v_xor_b32 v25, s3, v25")
        k.e("v_lshl_add_u32 v26, v25, 5, v26")
        k.e("v_add_u32 v26, 131072, v26")
        k.e("v_xor_b32 v27, 32, v26")
        k.e("s_waitcnt vmcnt(8) lgkmcnt(0)")
        k.e("s_barrier")
        for q in range(4):
            for j in range(2):
                for rd in range(2):
                    k.e(f"ds_read_b64_tr_b16 {V(160 + 8*q + 4*j + 2*rd, 2)}, v{26+j} offset:{q*8192 + rd*1024}")
    def ffn_mma(m):
        k.e("v_and_b32 v25, 15, v0")
        k.e("v_mul_u32_u24 v28, 14336, v25")
        k.e("v_lshl_add_u32 v28, v24, 4, v28")
        k.e(f"v_mov_b32 v29, {BIG}")
        k.e("v_cmp_gt_u32 vcc, 2, v25")
        k.e(f"s_mul_i32 s3, s6, {4*14336}")
        k.e("s_lshl_b32 s47, s4, 9")
        k.e("s_add_u32 s3, s3, s47")
        k.e("v_cndmask_b32 v28, v29, v28, vcc")
        k.e("s_lshl_b32 s47, s32, 7")
        k.e("s_add_u32 s3, s3, s47")
        k.e(f"s_add_u32 s7, s3, {WS_HP + m*2*14336}")
        k.e("s_waitcnt lgkmcnt(0)")
        for q in range(4):
            for j in range(2):
                d = V(224 + 4 * j, 4)
                k.e(mfma(d, V(160 + 8*q + 4*j, 4), A(XS + 4*q, 4), d if q else "0"))
    def ffn_store():
        for j in range(2):
            k.e(f"buffer_store_dwordx4 {V(224 + 4*j, 4)}, v28, s[20:23], s7 offen offset:{j*64}")

    def kread(reg, off, kb):
        return [f"ds_read_b128 {A(FR(kb,s_),4)}, v{reg} offset:{off + (kb*4+s_)*1024}" for s_ in range(4)]
    def vread(reg, off, vg):
        return [f"ds_read_b128 {A(FR(vg,j),4)}, v{reg} offset:{off + (vg*4+j)*1024}" for j in range(4)]
    def qk_mfmas(par, nq, zero=False):
        out = []
        for kb in range(4):
            grp = []
            for qb in range(nq):
                d = V(Sr(par, qb, kb), 4)
                for s_ in range(4):
                    c = d if s_ else ("0" if zero else V(NEGM + 4 * qb, 4))
                    grp.append(mfma(d, A(FR(kb, s_), 4), A(Q(qb, s_), 4), c))
            out.append(grp)
        return out
    def pv_mfmas(par, nq):
        out = []
        for vg in range(4):
            grp = []
            for dd in range(2):
                for qb in range(nq):
                    for ks in range(2):
                        o = A(O(qb, 2 * vg + dd), 4)
                        grp.append(mfma(o, A(FR(vg, 2 * dd + ks), 4), V(P(par, qb, ks), 4), o))
            if vg < nq:
                for ks in range(2):
                    l = V(LS + 4 * vg, 4)
                    grp.append(mfma(l, V(ONES, 4), V(P(par, vg, ks), 4), l))
            out.append(grp)
        return out
    def sm_pairs(par, nq, ks):
        out = []
        for kq in range(2):
            for qb in range(nq):
                s0 = Sr(par, qb, 2 * ks + kq)
                for h in range(2):
                    out.append((s0 + 2 * h, s0 + 2 * h + 1, P(par, qb, ks) + 2 * kq + h))
        return out
    class SM:
        def __init__(self, pairs, first, check):
            self.pairs = pairs; self.ne = 0; self.nc = 0; self.no = 0; self.first = first
            self.tail = [f"v_and_b32 v{T0}, 0x40004000, v{ORR}", f"v_cmp_ne_u32 vcc, 0, v{T0}"] if check else []
            self.e_done = 0; self.extra = []
        def tick(self): self.e_done = self.ne
        def exp_ready(self): return self.ne < 2 * len(self.pairs) and self.ne // 2 - self.nc < 4
        def exp(self):
            j, h = self.ne // 2, self.ne & 1; self.ne += 1
            return f"v_exp_f32 v{ET + 2*(j % 4) + h}, v{self.pairs[j][h]}"
        def plain_avail(self):
            n = min(self.e_done // 2, len(self.pairs)) - self.nc
            n += self.nc // 2 - self.no
            if self.no == len(self.pairs) // 2: n += len(self.tail)
            return n + len(self.extra)
        def plain(self):
            if self.nc < min(self.e_done // 2, len(self.pairs)):
                j = self.nc; self.nc += 1
                return f"v_cvt_pk_bf16_f32 v{self.pairs[j][2]}, v{ET + 2*(j % 4)}, v{ET + 2*(j % 4) + 1}"
            if self.no < self.nc // 2:
                j = self.no; self.no += 1
                a, b = self.pairs[2 * j][2], self.pairs[2 * j + 1][2]
                if self.first and j == 0: return f"v_or_b32 v{ORR}, v{a}, v{b}"
                return f"v_or3_b32 v{ORR}, v{ORR}, v{a}, v{b}"
            if self.no == len(self.pairs) // 2 and self.tail: return self.tail.pop(0)
            if self.extra: return self.extra.pop(0)
            return None
        def left_exp(self): return 2 * len(self.pairs) - self.ne
        def left_plain(self): return len(self.pairs) - self.nc + len(self.pairs) // 2 - self.no + len(self.tail) + len(self.extra)
        def done(self): return self.left_exp() == 0 and self.left_plain() == 0
        def drain(self):
            while not self.done():
                self.tick()
                if self.exp_ready():
                    k.e(self.exp())
                    if self.exp_ready(): k.e(self.exp())
                    x = self.plain()
                    if x: k.e(x)
                else:
                    k.e(self.plain())
    def phase(groups, gtags, reads, rtags, sm, vm, nexttag):
        total = sum(len(g) for g in groups)
        vmpos = {}
        if vm:
            step = max(2, (total - 2) // len(vm))
            for j, x in enumerate(vm): vmpos[1 + j * step] = x
        n = 0
        k.wait_ds(gtags[0])
        for gi, grp in enumerate(groups):
            rq = list(reads[gi])
            for mi, m in enumerate(grp):
                k.e(m)
                sm.tick()
                scal = []
                if n + 1 in vmpos: scal += vmpos[n + 1][0]
                lastm = mi == len(grp) - 1
                if n in vmpos:
                    for s in scal: k.e(s)
                    k.e(vmpos[n][1], tag='kv')
                    slots = 0
                else:
                    for s in scal: k.e(s)
                    if lastm:
                        nt = gtags[gi + 1] if gi + 1 < len(groups) else nexttag
                        if nt: k.wait_ds(nt)
                    slots = 2
                    gaps_left = len([x for x in range(n, n + len(grp) - mi) if x not in vmpos])
                    want_d = len(rq) > 0 and (sm.plain_avail() > 0 or not sm.exp_ready() or len(rq) >= gaps_left - 1)
                    if want_d:
                        k.e(rq.pop(0), tag=rtags[gi]); slots -= 1
                        if rq and (sm.plain_avail() == 0 or len(rq) >= gaps_left):
                            k.e(rq.pop(0), tag=rtags[gi]); slots -= 1
                    if slots == 2 and sm.exp_ready() and not (sm.plain_avail() >= 3 and not rq):
                        k.e(sm.exp()); slots = 0
                    while slots > 0:
                        x = sm.plain()
                        if not x: break
                        k.e(x); slots -= 1
                if lastm:
                    for s in rq: k.e(s, tag=rtags[gi])
                    nt = gtags[gi + 1] if gi + 1 < len(groups) else nexttag
                    if nt: k.wait_ds(nt)
                n += 1
        sm.drain()

    def mask_block(par, q0, vr):
        k.e("s_nop 7")
        k.e("s_add_u32 s3, s37, 1")
        k.e("s_lshl_b32 s3, s3, 6")
        k.e(f"v_subrev_u32 v{T0}, s3, v{vr}")
        for c in range(-1, 4):
            for r in range(4): k.e(f"v_cmp_gt_i32 s[{56+2*r}:{57+2*r}], {16*c + r}, v{T0}")
            for qq in range(2):
                kb = c + qq
                if 0 <= kb < 4:
                    for r in range(4):
                        x = Sr(par, q0 + qq, kb) + r
                        k.e(f"v_cndmask_b32 v{x}, v{x}, v{NINF}, s[{56+2*r}:{57+2*r}]")
        k.e("s_nop 1")
    def rowmax(par, qb, d):
        s0 = Sr(par, qb, 0)
        k.e(f"v_max3_f32 v{d}, v{s0}, v{s0+1}, v{s0+2}")
        for r in range(3, 15, 2): k.e(f"v_max3_f32 v{d}, v{d}, v{s0+r}, v{s0+r+1}")
        k.e(f"v_max_f32 v{d}, v{d}, v{s0+15}")
        k.e(f"v_mov_b32 v{T0}, v{d}")
        k.e(f"v_permlane16_swap_b32 v{T0}, v{d}")
        k.e(f"v_max_f32 v{d}, v{d}, v{T0}")
        k.e(f"v_mov_b32 v{T0}, v{d}")
        k.e(f"v_permlane32_swap_b32 v{T0}, v{d}")
        k.e(f"v_max_f32 v{d}, v{d}, v{T0}")
        k.e(f"v_add_f32 v{d}, 0x40e00000, v{d}")
    def fallback(par, nq, nqn):
        k.e("s_nop 7")
        for qb in range(nq):
            rowmax(par, qb, 21)
            k.e("v_max_f32 v21, 0, v21")
            for r in range(16): k.e(f"v_sub_f32 v{Sr(par,qb,0)+r}, v{Sr(par,qb,0)+r}, v21")
            if qb < nqn:
                for r in range(16): k.e(f"v_sub_f32 v{Sr(par^1,qb,0)+r}, v{Sr(par^1,qb,0)+r}, v21")
            for r in range(4): k.e(f"v_sub_f32 v{NEGM+4*qb+r}, v{NEGM+4*qb+r}, v21")
            k.e("v_exp_f32 v22, -v21")
            for r in range(4): k.e(f"v_mul_f32 v{LS+4*qb+r}, v{LS+4*qb+r}, v22")
            for r0 in range(0, 32, 8):
                for r in range(8): k.e(f"v_accvgpr_read_b32 v{ET+r}, a{O(qb,0)+r0+r}")
                for r in range(8): k.e(f"v_mul_f32 v{ET+r}, v{ET+r}, v22")
                for r in range(8): k.e(f"v_accvgpr_write_b32 a{O(qb,0)+r0+r}, v{ET+r}")
        for ks in range(2):
            for (s0, s1, pd) in sm_pairs(par, nq, ks):
                k.e(f"v_exp_f32 v{ET}, v{s0}")
                k.e(f"v_exp_f32 v{ET+1}, v{s1}")
                k.e(f"v_cvt_pk_bf16_f32 v{pd}, v{ET}, v{ET+1}")
        k.e("s_nop 1")
    def dma_iter(par):
        mk, mv = ((f"s_add_u32 m0, s53, 32768", f"s_add_u32 m0, s54, 49152") if par == 0 else
                  (f"s_mov_b32 m0, s54", f"s_add_u32 m0, s53, 16384"))
        vm = []
        for j in range(4):
            vm.append(([mv] if j == 0 else [], f"buffer_load_dwordx4 v{VDMA}, s[12:15], s39 offen offset:{j*1024}{kv_ld} lds"))
        for j in range(4):
            pre = [mk] if j == 0 else ([f"s_add_u32 s39, s39, {KV_TILE}"] if j == 1 else [])
            vm.append((pre, f"buffer_load_dwordx4 v{VDMA}, s[12:15], s38 offen offset:{j*1024}{kv_ld} lds"))
        return vm
    def iteration(par, nq, nqn, maskq0, name):
        kreg, koff = (VX, 32768) if par == 0 else (VY, 0)
        vreg, voff = (VX, 16384) if par == 0 else (VX, 49152)
        nreg, noff = (VY, 0) if par == 0 else (VY, 32768)
        k.hot = True
        sm = SM(sm_pairs(par, nq, 1), False, True)
        if nqn:
            k.dq = ['k0'] * 4 + ['k1'] * 4
            phase(qk_mfmas(par ^ 1, nqn), ['k0', 'k1', 'k2', 'k3'],
                  [kread(kreg, koff, 2), kread(kreg, koff, 3), vread(vreg, voff, 0), vread(vreg, voff, 1)],
                  ['k2', 'k3', 'v0', 'v1'], sm, [], None)
        else:
            k.dq = ['k0'] * 4 + ['k1'] * 4
            k.e("s_waitcnt lgkmcnt(0)")
            for s in vread(vreg, voff, 0): k.e(s, tag='v0')
            for s in vread(vreg, voff, 1): k.e(s, tag='v1')
            k.hot = False
            sm.drain()
            k.hot = True
        fb, fr = f"L_k2_fb_{name}", f"L_k2_fbr_{name}"
        k.e(f"s_cbranch_vccnz {fb}")
        k.label(fr)
        ool.append((fb, lambda: fallback(par, nq, nqn), fr))
        if nqn:
            mb, mr = f"L_k2_mk_{name}", f"L_k2_mkr_{name}"
            k.e(f"s_cmp_ge_u32 s37, s{60 if maskq0 == 0 else 61}") if False else k.e(f"s_cmp_ge_u32 s37, s{45 if maskq0 == 0 else 46}")
            k.e(f"s_cbranch_scc1 {mb}")
            k.label(mr)
            ool.append((mb, lambda: mask_block(par ^ 1, maskq0, VRA if maskq0 == 0 else VRB), mr))
            k.e("s_waitcnt vmcnt(12)")
            k.e("s_barrier")
        sm = SM(sm_pairs(par ^ 1, nqn, 0), True, False)
        phase(pv_mfmas(par, nq), ['v0', 'v1', 'v2', 'v3'],
              [vread(vreg, voff, 2), vread(vreg, voff, 3)] + ([kread(nreg, noff, 0), kread(nreg, noff, 1)] if nqn else [[], []]),
              ['v2', 'v3', 'k0', 'k1'], sm, dma_iter(par) if nqn else [], None)
        if nqn:
            k.e(f"s_add_u32 s38, s38, {KV_TILE}")
            k.e("s_add_u32 s37, s37, 1")
            if par == 1:
                k.e(f"v_swap_b32 v{VX}, v{VY}")
                k.e("s_xor_b32 s53, s53, 65536")
                k.e("s_xor_b32 s54, s54, 65536")
        k.hot = False
    def epilogue(q0, srow):
        k.e(f"s_lshl_b32 s3, s{srow}, 20")
        k.e("s_lshl_b32 s47, s33, 15")
        k.e("s_add_u32 s3, s3, s47")
        k.e("s_lshl_b32 s47, s32, 11")
        k.e("s_add_u32 s3, s3, s47")
        k.e("v_lshlrev_b32 v23, 4, v0")
        for qq in range(2):
            k.e(f"v_rcp_f32 v{21+qq}, v{LS+4*(q0+qq)}")
        for s_ in range(4):
            for qq in range(2):
                o = O(q0 + qq, 2 * s_)
                d = 24 + 4 * qq
                for r in range(8): k.e(f"v_accvgpr_read_b32 v{ET+r}, a{o+r}")
                for r in range(8): k.e(f"v_mul_f32 v{ET+r}, v{ET+r}, v{21+qq}")
                for r in range(4): k.e(f"v_cvt_pk_bf16_f32 v{d+r}, v{ET+2*r}, v{ET+2*r+1}")
                k.e(f"buffer_store_dwordx4 {V(d,4)}, v23, s[16:19], s3 offen offset:{qq*1024}{opt.get('ctx_st','')}")
            if s_ < 3: k.e("s_add_u32 s3, s3, 8192")

    k.e("s_sub_u32 s55, 15, s34")
    k.e("s_sub_u32 s45, s36, 3")
    k.e("s_sub_u32 s46, s35, 3")
    k.e("s_max_i32 s46, s46, 0")
    k.e("s_mov_b32 s53, s44")
    k.e("s_add_u32 s54, s44, 65536")
    k.wait_vm('c18')
    k.e("s_barrier")
    k.stamp(ST)
    for kb in range(2):
        for s in kread(VX, 0, kb): k.e(s, tag=f'k{kb}')
    sm = SM([], False, False)
    sm.extra = [f"v_accvgpr_write_b32 a{r}, 0" for r in range(128)]
    phase(qk_mfmas(0, 4, zero=True), ['k0', 'k1', 'k2', 'k3'],
          [kread(VX, 0, 2), kread(VX, 0, 3), kread(VX, 32768, 0), kread(VX, 32768, 1)], ['k2', 'k3', 'n0', 'n1'], sm, [], None)
    k.e("s_barrier")
    k.e("s_mov_b32 m0, s53")
    k.e(f"s_mov_b32 s38, {4*KV_TILE}")
    for j in range(4):
        k.e(f"buffer_load_dwordx4 v{VDMA}, s[12:15], s38 offen offset:{j*1024}{kv_ld} lds")
    ffn_dma(24)
    k.e("v_lshrrev_b32 v24, 1, v0")
    k.e("v_mul_u32_u24 v24, 7168, v24")
    k.e("v_and_b32 v25, 1, v0")
    k.e("v_lshl_add_u32 v24, v25, 7, v24")
    k.e(f"s_mul_i32 s3, s32, {32*7168}")
    k.e("s_add_u32 s3, s3, s5")
    k.e(f"buffer_load_dword v31, v24, s[68:71], s3 offen{ffn_ld}")
    k.e(f"s_mov_b32 s38, {5*KV_TILE}")
    k.e(f"s_mov_b32 s39, {3*KV_TILE + KV_CH}")
    k.e("s_mov_b32 s37, -1")
    k.e("s_cmp_lg_u32 s34, 0")
    k.e("s_cbranch_scc1 L_k2_nomask0")
    mask_block(0, 2, VRB)
    k.label("L_k2_nomask0")
    k.e("s_mov_b32 s37, 0")
    k.e("s_nop 7")
    for qb in range(4):
        rowmax(0, qb, 21)
        for r in range(16): k.e(f"v_sub_f32 v{Sr(0,qb,0)+r}, v{Sr(0,qb,0)+r}, v21")
        for r in range(4): k.e(f"v_sub_f32 v{NEGM+4*qb+r}, 0, v21")
    SM(sm_pairs(0, 4, 0), True, False).drain()
    k.stamp(ST)

    k.e("s_sub_u32 s35, s35, 1")
    k.e("s_sub_u32 s36, s36, 1")
    k.label("L_k2_wloop")
    iteration(0, 4, 4, 2, "we")
    k.e("s_cmp_eq_u32 s37, s35")
    k.e("s_cbranch_scc1 L_k2_trans")
    iteration(1, 4, 4, 2, "wo")
    k.e("s_branch L_k2_wloop")
    k.label("L_k2_trans")
    iteration(1, 4, 2, 0, "tr")
    k.stamp(ST)
    for t in range(2):
        k.e(f"s_lshr_b32 s3, s{42+t}, 4")
        k.e(f"s_mul_i32 s3, s3, {XN_RB}")
        k.e(f"s_and_b32 s47, s{42+t}, 15")
        k.e("s_lshl_b32 s47, s47, 4")
        k.e("s_add_u32 s3, s3, s47")
        k.e(f"v_mov_b32 v{24+t}, s3")
    k.e("v_and_b32 v26, 15, v0")
    k.e("v_cmp_eq_u32 vcc, 1, v26")
    k.e("v_lshrrev_b32 v26, 4, v0")
    k.e("s_lshl_b32 s3, s6, 12")
    k.e("v_cndmask_b32 v24, v24, v25, vcc")
    k.e("v_lshl_add_u32 v24, v26, 8, v24")
    for q in range(4):
        k.e(f"buffer_load_dwordx4 {A(XS+4*q,4)}, v24, s[20:23], s3 offen offset:{q*1024} sc1")
    k.e("s_waitcnt vmcnt(20)")
    epilogue(2, 34)
    k.e("s_cmp_eq_u32 s34, 7")
    k.e("s_cbranch_scc1 L_noffn0")
    ffn_reads()
    ffn_mma(0)
    k.e("s_barrier")
    ffn_dma(68)
    ffn_store()
    k.label("L_noffn0")
    k.stamp(ST)
    k.label("L_k2_nloop")
    iteration(0, 2, 2, 0, "ne")
    k.e("s_cmp_eq_u32 s37, s36")
    k.e("s_cbranch_scc1 L_k2_fin")
    iteration(1, 2, 2, 0, "no")
    k.e("s_branch L_k2_nloop")
    k.label("L_k2_fin")
    iteration(1, 2, 0, 0, "fi")
    k.stamp(ST)
    k.e("s_nop 7")
    epilogue(0, 55)
    k.e("s_cmp_eq_u32 s34, 7")
    k.e("s_cbranch_scc1 L_noffn1")
    ffn_reads()
    ffn_mma(1)
    ffn_store()
    k.label("L_noffn1")
    k.stamp(ST)
    k.stamp_dump('stamp' in opt, 66, 0, 32)
    k.label("L_k2_end")
    k.e("s_endpgm")
    for lab, fn, ret in ool:
        k.label(lab)
        k.win = []
        fn()
        k.e(f"s_branch {ret}")
    return k.wrap(256, 256), f"; @launch kernel=front_kernel grid=(256,1,1) block=(256,1,1) lds={K12_LDS}"
```

```python
from fw import *
from layout import *

K3_LDS = 131072 + 4096

def rbf2(k, a, b, t):
    k.e(f"v_cvt_pk_bf16_f32 v{t}, v{a}, v{b}")
    k.e(f"v_lshlrev_b32 v{a}, 16, v{t}")
    k.e(f"v_and_b32 v{b}, 0xffff0000, v{t}")

def silu_n(k, regs, tmps):
    for r, t in zip(regs, tmps): k.e(f"v_mul_f32 v{t}, 0xbfb8aa3b, v{r}")
    for r, t in zip(regs, tmps): k.e(f"v_exp_f32 v{t}, v{t}")
    for r, t in zip(regs, tmps): k.e(f"v_add_f32 v{t}, 1.0, v{t}")
    for r, t in zip(regs, tmps): k.e(f"v_rcp_f32 v{t}, v{t}")
    for r, t in zip(regs, tmps): k.e(f"v_mul_f32 v{r}, v{r}, v{t}")

def gen_k3(opt):
    k = Asm("oproj_kernel")
    ST = 'stamp' in opt
    VC, VW, TA, VO, VROW = 2, 4, 5, 9, 10
    XP, STT, GT = 16, 32, 40
    ACC = lambda rb, cb: 128 + (rb * 4 + cb) * 4
    CF = lambda n, rb: (n % 4) * 32 + rb * 4
    WF = lambda n, cb: 128 + (n & 1) * 16 + cb * 4
    k.e("s_cmp_ge_u32 s2, 256")
    k.e("s_cbranch_scc1 L_k3_end")
    k.stamp(ST)
    k.e("s_load_dwordx2 s[4:5], s[0:1], 40")
    k.e("s_load_dwordx2 s[40:41], s[0:1], 0")
    k.e("s_load_dwordx4 s[44:47], s[0:1], 80")
    k.e("s_load_dwordx4 s[56:59], s[0:1], 96")
    k.e("v_lshrrev_b32 v1, 6, v0")
    k.e(f"v_lshrrev_b32 v{VROW}, 3, v0")
    k.e("v_and_b32 v0, 63, v0")
    k.e("v_readfirstlane_b32 s32, v1")
    k.e("s_bfe_u32 s33, s2, 0x20001")
    k.e("s_lshl_b32 s33, s33, 2")
    k.e("s_bfe_u32 s3, s2, 0x20003")
    k.e("s_add_u32 s33, s33, s3")
    k.e("s_and_b32 s34, s2, 1")
    k.e("s_lshl_b32 s34, s34, 3")
    k.e("s_lshr_b32 s3, s2, 5")
    k.e("s_add_u32 s34, s34, s3")
    for j in range(4): k.e(f"s_mov_b32 s{48+j}, {j*15360}")
    k.e("s_lshl_b32 s35, s32, 15")
    k.e(f"v_lshlrev_b32 v{VC}, 4, v0")
    k.e(f"v_add_u32 v{VC+1}, 4096, v{VC}")
    k.e("v_lshrrev_b32 v12, 4, v0")
    k.e("v_and_b32 v13, 7, v0")
    k.e("v_lshrrev_b32 v14, 3, v0")
    k.e("v_lshlrev_b32 v1, 1, v12")
    k.e("v_xor_b32 v1, v1, v13")
    k.e("v_lshlrev_b32 v1, 4, v1")
    k.e(f"v_lshl_add_u32 v{VW}, v14, 11, v1")
    k.e("v_lshrrev_b32 v1, 2, v0")
    k.e("v_bfe_u32 v11, v0, 3, 2")
    k.e("v_lshlrev_b32 v1, 7, v1")
    k.e("v_and_b32 v15, 3, v0")
    k.e("v_lshl_add_u32 v1, v15, 3, v1")
    k.e("v_add_u32 v1, s35, v1")
    for cb in range(4):
        k.e(f"v_xor_b32 v15, {cb}, v11")
        k.e(f"v_lshl_add_u32 v{TA+cb}, v15, 5, v1")
    k.e(f"v_lshlrev_b32 v{VO}, 11, v{VROW}")
    k.e(f"v_lshl_add_u32 v{VO}, v13, 4, v{VO}")
    PFC, PFW = 120, 121
    G = int(opt.get('k3_g', 4))
    k.e("s_lshr_b32 s3, s2, 5")
    k.e(f"s_mul_i32 s3, s3, {G*1024}")
    k.e(f"v_lshlrev_b32 v{PFC}, 7, v0")
    k.e(f"v_add_u32 v{PFC}, s3, v{PFC}")
    k.e("s_bfe_u32 s3, s2, 0x20003")
    k.e(f"s_mul_i32 s3, s3, {G*8*2048}")
    k.e(f"v_lshlrev_b32 v{PFW}, 11, v0")
    k.e(f"v_add_u32 v{PFW}, s3, v{PFW}")
    if G < 8:
        k.e(f"v_cmp_gt_u32 vcc, {G*8}, v0")
        k.e("v_mov_b32 v1, 0x7ff00000")
        k.e(f"v_cndmask_b32 v{PFC}, v1, v{PFC}, vcc")
        k.e(f"v_cndmask_b32 v{PFW}, v1, v{PFW}, vcc")
    k.e("s_waitcnt lgkmcnt(0)")
    k.e("s_lshl_b32 s3, s33, 20")
    k.e("s_lshl_b32 s62, s32, 18")
    k.e("s_add_u32 s3, s3, s62")
    k.e(f"s_add_u32 s3, s3, {WS_CTX}")
    k.srd(8, 58, 262144, "s3")
    k.e("s_lshl_b32 s62, s34, 7")
    k.e("s_lshl_b32 s3, s32, 21")
    k.e("s_add_u32 s3, s3, s62")
    k.srd(12, 4, 0, "s3")
    k.e("s_sub_u32 s14, 2097152, s62")
    wo_ld, ctx_ld = opt.get('wo_ld', ''), opt.get('ctx_ld', '')
    def pf_ops():
        return [('g', f"buffer_load_dword v122, v{PFW}, s[12:15], 0 offen{opt.get('wopf_ld', '')}"),
                ('g', f"buffer_load_dword v122, v{PFC}, s[8:11], 0 offen"),
                ('v', f"v_add_u32 v{PFW}, {G*65536}, v{PFW}"), ('v', f"v_add_u32 v{PFC}, {G*8192}, v{PFC}")]
    ROT = int(opt.get('k3_rot', 8))
    k.e("s_bfe_u32 s3, s2, 0x20003")
    k.e(f"s_mul_i32 s3, s3, {max(ROT // 4, 1)}")
    k.e("s_lshr_b32 s62, s2, 5")
    k.e(f"s_mul_i32 s62, s62, {max(ROT // 8, 1)}")
    k.e("s_add_u32 s5, s3, s62")
    k.e(f"v_mov_b32 v123, v{VW}")
    def kpos(n, dst, sh):
        return [('s', f"s_add_u32 s{dst}, s5, {n}"), ('s', f"s_and_b32 s{dst}, s{dst}, {ROT-1}"),
                ('s', f"s_or_b32 s{dst}, s{dst}, {n & ~(ROT-1)}"), ('s', f"s_lshl_b32 s{dst}, s{dst}, {sh}")]
    for t, s_ in kpos(0, 4, 16) + kpos(0, 63, 13): k.e(s_)
    k.e(f"v_add_u32 v{VW}, s4, v123")
    def w_ops(n):
        if n >= 32: return []
        return ([('s', f"s_add_u32 m0, s35, {(n % 4)*4096}")] +
                [('g', f"buffer_load_dwordx4 v{VW}, s[12:15], s{48+j} offen offset:{j*1024}{wo_ld} lds") for j in range(4)] +
                kpos(n + 1, 4, 16) + [('v', f"v_add_u32 v{VW}, s4, v123")])
    def c_ops(n):
        if n >= 32: return []
        return ([('g', f"buffer_load_dwordx4 {A(CF(n,rb),4)}, v{VC + (rb >> 2)}, s[8:11], s63 offen offset:{(rb & 3)*1024}{ctx_ld}") for rb in range(8)] +
                kpos(n + 1, 63, 13))
    def wreads(n):
        return [[f"ds_read_b64_tr_b16 {A(WF(n,cb)+2*rd,2)}, v{TA+cb} offset:{(n % 4)*4096 + rd*2048}" for rd in range(2)] for cb in range(4)]
    PF0 = int(opt.get('k3_pf0', 0))
    PFL = int(opt.get('k3_pfl', 0))
    npf = 0
    for _ in range(PF0):
        for t, s in pf_ops(): k.e(s, tag='pf')
        npf += 1
    for t, s in w_ops(0): k.e(s, tag='w0')
    for n in range(3):
        for t, s in w_ops(n + 1): k.e(s, tag=f'w{n+1}')
        for t, s in c_ops(n): k.e(s, tag=f'c{n}')
    for _ in range(PFL):
        for t, s in pf_ops(): k.e(s, tag='pf')
        npf += 1
    k.stamp(ST)

    b = Rec()
    def srd_rec(d, base, nbytes):
        b.e(f"s_mov_b32 s{d}, s{base}"); b.e(f"s_and_b32 s{d+1}, s{base+1}, 0xffff")
        b.e(f"s_mov_b32 s{d+2}, {nbytes}"); b.e(f"s_mov_b32 s{d+3}, 0x20000")
    k.e(f"s_add_u32 s60, s58, {WS_SEL}")
    k.e("s_addc_u32 s61, s59, 0")
    k.e("s_load_dwordx4 s[52:55], s[60:61], 0")
    k.srd(16, 58, 8 << 20)
    k.srd(24, 44, 7340032)
    k.e("s_lshl_b32 s36, s33, 18")
    k.e("s_lshl_b32 s3, s34, 7")
    k.e("s_add_u32 s36, s36, s3")
    k.srd(20, 40, 4194304)
    k.srd(28, 46, 4194304)
    k.srd(40, 56, 256)
    k.e("s_lshr_b32 s37, s2, 4")
    k.e("s_lshl_b32 s3, s37, 2")
    k.e("s_add_u32 s3, s3, s32")
    k.e("s_mul_i32 s38, s3, 56")
    k.e("s_and_b32 s39, s2, 15")
    HP, HV, WD, YA = 40, 52, 72, 104
    b.e("s_lshl_b32 s3, s38, 2")
    b.e(f"s_add_u32 s3, s3, {WS_HP}")
    b.e("v_mul_u32_u24 v1, 14336, v12")
    b.e("v_and_b32 v15, 15, v0")
    b.e("v_lshl_add_u32 v1, v15, 4, v1")
    for j in range(8):
        b.e(f"buffer_load_dwordx4 {V(HP+4*j,4)}, v1, s[16:19], s3 offen", tag='hp')
        if j < 7: b.e(f"s_add_u32 s3, s3, {4*14336}")
    b.e("s_lshl_b32 s3, s38, 11")
    b.e("s_lshl_b32 s62, s39, 7")
    b.e("s_add_u32 s3, s3, s62")
    b.e(f"v_mul_u32_u24 v1, {7*2048}, v14")
    b.e("v_lshl_add_u32 v1, v13, 4, v1")
    for j in range(7):
        b.e(f"buffer_load_dwordx4 {V(WD+4*j,4)}, v1, s[24:27], s3 offen offset:{(j&1)*2048}{opt.get('wd_ld','')}", tag='wd')
        if j & 1: b.e("s_add_u32 s3, s3, 4096")
    b.at(3)
    b.e("s_mov_b32 s3, s36")
    for p in range(4):
        b.e(f"buffer_load_dwordx4 {V(XP+4*p,4)}, v{VO}, s[20:23], s3 offen{opt.get('x3_ld','')}", tag='x')
        if p < 3: b.e("s_add_u32 s3, s3, 65536")
    b.e("s_lshl_b32 s3, s33, 10")
    b.e(f"s_add_u32 s3, s3, {WS_STATS}")
    b.e(f"v_lshlrev_b32 v1, 3, v{VROW}")
    for p in range(4):
        b.e(f"buffer_load_dwordx2 {V(STT+2*p,2)}, v1, s[16:19], s3 offen offset:{p*256}", tag='x')
    b.at(4)
    b.wait_vm('hp')
    for j in range(1, 8):
        for r in range(4): b.e(f"v_add_f32 v{HP+r}, v{HP+r}, v{HP+4*j+r}")
    rbf2(b, HP, HP+1, 1); rbf2(b, HP+2, HP+3, 15)
    for r in range(4): b.e(f"v_mov_b32 v{HP+4+r}, v{HP+r}")
    for r in range(4): b.e(f"v_permlane32_swap_b32 v{HP+4+r}, v{HP+r}")
    silu_n(b, [HP+4+r for r in range(4)], [HP+8+r for r in range(4)])
    rbf2(b, HP+4, HP+5, 1); rbf2(b, HP+6, HP+7, 15)
    for r in range(4): b.e(f"v_mul_f32 v{HP+r}, v{HP+r}, v{HP+4+r}")
    rbf2(b, HP, HP+1, 1); rbf2(b, HP+2, HP+3, 15)
    b.e("s_lshl_b32 s3, s32, 9")
    b.e("s_add_u32 s3, s3, 131072")
    b.e("v_and_b32 v1, 31, v0")
    b.e("v_lshl_add_u32 v1, v1, 4, s3")
    b.e("v_mul_u32_u24 v15, 28, v14")
    b.e("v_add_u32 v15, s3, v15")
    b.e(f"ds_write_b128 v1, {V(HP,4)}")
    for t in range(2):
        for j in range(7):
            b.e(f"ds_read_b32 v{HV+7*t+j}, v15 offset:{t*256+4*j}", tag='hv')
            if j == 5: b.e("s_waitcnt lgkmcnt(4)")
    b.e("v_lshrrev_b32 v1, 5, v0")
    b.e("v_lshlrev_b32 v1, 8, v1")
    b.e("v_lshl_add_u32 v1, v13, 5, v1")
    b.e("v_and_b32 v15, 1, v12")
    b.e("v_lshl_add_u32 v1, v15, 4, v1")
    b.e("v_add_u32 v1, s3, v1")
    b.wait_vm('wd')
    b.wait_ds('hv')
    for j in range(7):
        for d in range(4):
            w = WD + 4 * j + d
            b.e(f"v_lshlrev_b32 v100, 16, v{w}")
            b.e(f"v_and_b32 v101, 0xffff0000, v{w}")
            for t in range(2):
                a = YA + 8 * t + 2 * d
                op = "v_mul_f32" if j == 0 else "v_fmac_f32"
                b.e(f"{op} v{a}, v100, v{HV+7*t+j}"); b.e(f"{op} v{a+1}, v101, v{HV+7*t+j}")
    for j in range(8): b.e(f"v_permlane32_swap_b32 v{YA+j}, v{YA+8+j}")
    for j in range(8): b.e(f"v_add_f32 v{YA+j}, v{YA+j}, v{YA+8+j}")
    for j in range(4): b.e(f"v_permlane16_swap_b32 v{YA+j}, v{YA+4+j}")
    for j in range(4): b.e(f"v_add_f32 v{YA+j}, v{YA+j}, v{YA+4+j}")
    for j in range(4): b.e(f"v_add_f32_dpp v{YA+j}, v{YA+j}, v{YA+j} row_ror:8 row_mask:0xf bank_mask:0xf")
    b.e(f"ds_write_b128 v1, {V(YA,4)} offset:2048", tag='yw')
    b.e("v_lshlrev_b32 v1, 3, v0")
    b.e("v_add_u32 v15, 133120, v1")
    b.e("s_lshl_b32 s3, s39, 4")
    b.e("s_add_u32 s3, s3, s37")
    b.e("s_lshl_b32 s3, s3, 9")
    b.e(f"s_add_u32 s3, s3, {WS_YP}")
    b.blk(["s_cmp_eq_u32 s32, 0", "s_cselect_b32 s3, s3, 0x7ff00000", "s_lshl_b32 s38, s39, 4", "s_cmp_eq_u32 s32, 0",
           "s_cselect_b32 s38, s38, 0x7ff00000"])
    b.wait_ds('yw')
    b.e("s_barrier")
    for w in range(4): b.e(f"ds_read_b64 {V(YA+2*w,2)}, v15 offset:{w*512}", tag='yr')
    def gates(o, p, ysrc=None):
        g0 = GT + 8 * p
        for d in range(4):
            o.e(f"v_lshlrev_b32 v{g0+2*d}, 16, v{XP+4*p+d}")
            o.e(f"v_and_b32 v{g0+2*d+1}, 0xffff0000, v{XP+4*p+d}")
        for e_ in range(8): o.e(f"v_sub_f32 v{g0+e_}, v{g0+e_}, v{STT+2*p}")
        for d in range(4): rbf2(o, g0 + 2*d, g0 + 2*d + 1, 72 + d)
        for e_ in range(8): o.e(f"v_mul_f32 v{g0+e_}, v{g0+e_}, v{STT+2*p+1}")
        for d in range(4): rbf2(o, g0 + 2*d, g0 + 2*d + 1, 72 + d)
        if ysrc is not None:
            for e_ in range(8): o.e(f"v_add_f32 v{g0+e_}, v{g0+e_}, v{ysrc+e_}")
            for d in range(4): rbf2(o, g0 + 2*d, g0 + 2*d + 1, 72 + d)
        silu_n(o, [g0 + e_ for e_ in range(8)], [72 + e_ for e_ in range(8)])
        for d in range(4): rbf2(o, g0 + 2*d, g0 + 2*d + 1, 72 + d)
    b.e("v_mov_b32 v102, 1")
    b.e("v_mov_b32 v103, 0")
    b.wait_ds('yr')
    for r in range(2):
        b.e(f"v_add_f32 v{YA+r}, v{YA+r}, v{YA+2+r}")
        b.e(f"v_add_f32 v{YA+4+r}, v{YA+4+r}, v{YA+6+r}")
    for r in range(2): b.e(f"v_add_f32 v{YA+r}, v{YA+r}, v{YA+4+r}")
    b.e(f"buffer_store_dwordx2 {V(YA,2)}, v1, s[16:19], s3 offen sc1", tag='pub')
    b.wait_vm('x')
    gates(b, 0)
    gates(b, 1)
    b.wait_vm('pub')
    b.blk(["s_mov_b64 exec, 1", "buffer_atomic_add v102, v103, s[40:43], s38 offen sc1", "s_mov_b64 exec, -1"])
    gates(b, 2)
    gates(b, 3)
    YB = 80
    b.blk(["s_lshr_b32 s3, s52, 7", "s_lshr_b32 s62, s53, 7", "s_cmp_eq_u32 s3, s33", "s_cselect_b32 s44, 1, 0",
           "s_cmp_eq_u32 s62, s33", "s_cselect_b32 s44, 1, s44", "s_lshl_b32 s45, s34, 4"])
    b.e("v_lshlrev_b32 v15, 10, v14")
    b.e("v_lshl_add_u32 v15, v13, 5, v15")
    PS = int(opt.get('k3_poll', 21))
    b.at(PS)
    b.e("buffer_load_dword v102, v103, s[40:43], s45 offen sc1", tag='poll')
    b.at(PS + 3)
    b.wait_vm('poll')
    def yloads(o, so):
        for q in range(2):
            for t in range(2):
                for h in range(2):
                    o.e(f"buffer_load_dwordx4 {V(YB + 16*q + 8*t + 4*h, 4)}, v15, s[16:19], s{so} offen offset:{q*512 + t*256 + h*16} sc1", tag='yl')
    b.blk(["v_readfirstlane_b32 s46, v102", "s_lshl_b32 s47, s34, 13", f"s_add_u32 s47, s47, {WS_YP}", "s_cmp_ge_u32 s46, 16",
           "s_cselect_b32 s46, s44, 0", "s_cmp_lg_u32 s46, 0", "s_cselect_b32 s3, s47, 0x7ff00000"])
    yloads(b, 3)
    b.at(PS + 7)
    b.wait_vm('yl')
    b.blk(["s_cmp_lg_u32 s46, 0", "s_cbranch_scc1 L_k3_selA", "L_k3_selAr:"])

    k.wait_vm('w0')
    for grp in wreads(0):
        for s in grp: k.e(s)
    LA = int(opt.get('k3_la', 2))
    BS = int(opt.get('k3_bs', 3))
    for n in range(32):
        w = [x for x in (k.vm_n(f'c{n}'), k.vm_n(f'w{n+1}')) if x is not None]
        k.e("s_waitcnt " + (f"vmcnt({min(w)}) " if w else "") + "lgkmcnt(0)")
        g = {}; gt = {}
        if n < 31:
            for j, grp in enumerate(wreads(n + 1)): g[2 + 5 * j] = list(grp)
        vpos = [1, 3, 6, 8, 11, 13, 16, 18, 21, 23, 26, 28, 30, 31]
        vi = 0
        ops = [(t, s, f'w{n+4}') for t, s in w_ops(n + 4)] + [(t, s, f'c{n+3}') for t, s in c_ops(n + 3)]
        post = []
        if PF0 + PFL > 0 and n % G == 0 and npf * G < 32 and npf <= n // G + LA:
            pf = pf_ops(); npf += 1
            ops += [(t, s, 'pf') for t, s in pf if t == 'g']; post = [s for t, s in pf if t == 'v']
        for t, s, tg in ops:
            if t == 'g': g[vpos[vi]] = [s]; gt[vpos[vi]] = tg; vi += 1
            elif vi == 0: g.setdefault(0, []).append(s)
            else: g.setdefault(vpos[vi - 1] + 1, []).append(s)
        m = 0
        for rb in range(8):
            for cb in range(4):
                k.e(mfma(V(ACC(rb, cb), 4), A(WF(n, cb), 4), A(CF(n, rb), 4), V(ACC(rb, cb), 4) if n else "0"))
                if m in g:
                    for s in g[m]: k.e(s, tag=gt.get(m))
                else:
                    b.fill(k, n, BS)
                m += 1
        for s in post: k.e(s)
    print("k3 background items left after loop:", len(b.items))
    b.drain(k)
    k.stamp(ST)
    k.e("s_waitcnt vmcnt(0) lgkmcnt(0)")
    k.e("v_and_b32 v1, 15, v0")
    k.e("v_lshlrev_b32 v11, 8, v1")
    k.e("v_add_u32 v11, s35, v11")
    k.e("v_xor_b32 v1, v1, v12")
    for cb in range(4):
        k.e(f"v_xor_b32 v15, {4*cb}, v1")
        k.e(f"v_lshl_add_u32 v{TA+cb}, v15, 4, v11")
    for rb in range(8):
        for cb in range(4):
            k.e(f"ds_write_b128 v{TA+cb}, {V(ACC(rb,cb),4)} offset:{rb*4096}")
        if rb & 1: k.e("s_waitcnt lgkmcnt(4)")
    k.e("s_cmp_lg_u32 s44, s46")
    k.e("s_cbranch_scc1 L_k3_sel")
    k.label("L_k3_selr")
    k.e(f"v_and_b32 v1, 15, v{VROW}")
    k.e("v_lshlrev_b32 v15, 1, v13")
    k.e("v_xor_b32 v1, v1, v15")
    k.e(f"v_lshlrev_b32 v11, 8, v{VROW}")
    k.e("v_lshl_add_u32 v2, v1, 4, v11")
    k.e("v_xor_b32 v3, 16, v2")
    k.e("v_add_u32 v4, 65536, v2")
    k.e("v_add_u32 v5, 65536, v3")
    k.e("s_waitcnt lgkmcnt(0)")
    k.e("s_barrier")
    def rd(p):
        b = 128 + 32 * p
        for w in range(4):
            for h in range(2):
                k.e(f"ds_read_b128 {V(b + 8*w + 4*h, 4)}, v{2 + h + 2*(w >> 1)} offset:{(w & 1)*32768 + p*8192}", tag=f'r{p}')
    rd(0)
    for p in range(4):
        b = 128 + 32 * p
        k.wait_ds(f'r{p}')
        if p < 3: rd(p + 1)
        for e_ in range(8):
            k.e(f"v_add_f32 v{b+e_}, v{b+e_}, v{b+8+e_}")
            k.e(f"v_add_f32 v{b+16+e_}, v{b+16+e_}, v{b+24+e_}")
        for e_ in range(8): k.e(f"v_add_f32 v{b+e_}, v{b+e_}, v{b+16+e_}")
        for d in range(4): rbf2(k, b + 2*d, b + 2*d + 1, b + 8 + d)
        for e_ in range(8): k.e(f"v_mul_f32 v{b+e_}, v{b+e_}, v{GT+8*p+e_}")
        for d in range(4): rbf2(k, b + 2*d, b + 2*d + 1, b + 8 + d)
        for d in range(4):
            k.e(f"v_lshlrev_b32 v{b+16+2*d}, 16, v{XP+4*p+d}")
            k.e(f"v_and_b32 v{b+17+2*d}, 0xffff0000, v{XP+4*p+d}")
        for e_ in range(8): k.e(f"v_add_f32 v{b+e_}, v{b+e_}, v{b+16+e_}")
        for d in range(4): k.e(f"v_cvt_pk_bf16_f32 v{b+8+d}, v{b+2*d}, v{b+2*d+1}")
        k.e(f"buffer_store_dwordx4 {V(b+8,4)}, v{VO}, s[28:31], s36 offen{opt.get('out_st','')}")
        if p < 3: k.e("s_add_u32 s36, s36, 65536")
    k.stamp(ST)
    k.stamp_dump(ST, 58, 1, 32)
    k.label("L_k3_end")
    k.e("s_endpgm")
    def selblock():
        for j in range(16): k.e(f"v_add_f32 v{YB+j}, v{YB+j}, v{YB+16+j}")
        for j in range(16): k.e(f"v_add_f32_dpp v{YB+j}, v{YB+j}, v{YB+j} row_ror:8 row_mask:0xf bank_mask:0xf")
        for sw in ("v_permlane16_swap_b32", "v_permlane32_swap_b32"):
            for j in range(16): k.e(f"v_mov_b32 v{YB+16+j}, v{YB+j}")
            for j in range(16): k.e(f"{sw} v{YB+16+j}, v{YB+j}")
            for j in range(16): k.e(f"v_add_f32 v{YB+j}, v{YB+j}, v{YB+16+j}")
        for d in range(8): rbf2(k, YB + 2*d, YB + 2*d + 1, 1)
        for t in range(2):
            for e_ in range(8): k.e(f"v_mul_f32 v{YB+8*t+e_}, s{54+t}, v{YB+8*t+e_}")
        for d in range(8): rbf2(k, YB + 2*d, YB + 2*d + 1, 1)
        k.e("s_lshl_b32 s3, s33, 7")
        k.e("s_sub_u32 s52, s52, s3")
        k.e("s_sub_u32 s53, s53, s3")
        for p in range(4):
            L = k.newlabel("selskip")
            k.e(f"v_add_u32 v1, {32*p}, v{VROW}")
            k.e("v_cmp_eq_u32 vcc, s52, v1")
            k.e("v_cmp_eq_u32 s[60:61], s53, v1")
            k.e("s_nop 3")
            k.e("s_or_b64 s[56:57], vcc, s[60:61]")
            k.e(f"s_cbranch_scc0 {L}")
            for e_ in range(8):
                k.e(f"v_cndmask_b32 v{YB+16+e_}, 0, v{YB+e_}, vcc")
                k.e(f"v_cndmask_b32 v{YB+16+e_}, v{YB+16+e_}, v{YB+8+e_}, s[60:61]")
            gates(k, p, YB + 16)
            k.label(L)
    k.label("L_k3_selA")
    k.win = []
    selblock()
    k.e("s_branch L_k3_selAr")
    k.label("L_k3_sel")
    k.win = []
    k.e("v_mov_b32 v103, 0")
    k.e("s_mov_b32 s62, 0x400000")
    k.label("L_k3_poll")
    k.e("buffer_load_dword v102, v103, s[40:43], s45 offen sc1")
    k.e("s_waitcnt vmcnt(0)")
    k.e("v_readfirstlane_b32 s63, v102")
    k.e("s_sub_u32 s62, s62, 1")
    k.e("s_cmp_eq_u32 s62, 0")
    k.e("s_cbranch_scc1 L_k3_polled")
    k.e("s_cmp_lt_u32 s63, 16")
    k.e("s_cbranch_scc1 L_k3_poll")
    k.label("L_k3_polled")
    k.e("v_lshlrev_b32 v15, 10, v14")
    k.e("v_lshl_add_u32 v15, v13, 5, v15")
    yloads(k, 47)
    k.e("s_waitcnt vmcnt(0)")
    selblock()
    k.e("s_branch L_k3_selr")
    return k.wrap(256, 160), f"; @launch kernel=oproj_kernel grid=(256,1,1) block=(256,1,1) lds={K3_LDS}"
```

```python
XN_RB    = 33792
KV_CH    = 17408
KV_TILE  = 2 * KV_CH
KV_HEAD  = 64 * KV_CH + 2048
WS_XN    = 0
WS_KEYS  = 5 << 20
WS_STATS = (5 << 20) + 16384
WS_SEL   = (5 << 20) + 49152
WS_FLG   = (5 << 20) + 53248
WS_CFL   = (5 << 20) + 57344
WS_YP    = (5 << 20) + 65536
WS_HP    = 6 << 20
WS_KV    = 8 << 20
WS_CTX   = 44 << 20
```

```python
from fw import *
from layout import *

K12_LDS = 148480
QSCALE = 0x3e0293ee
BIG = 0x7ff00000

def gen_k12(opt):
    k = Asm("front_kernel")
    ST = opt.get('stamp') == '1'
    S1 = opt.get('stamp') == 'p1'
    S2 = opt.get('stamp') == 'p2'
    w_ld, a_ld, x_ld = opt.get('w_ld', ' nt'), opt.get('a_ld', ''), opt.get('x_ld', ' nt')
    wq_ld, kv_ld, ffn_ld = opt.get('wq_ld', ''), opt.get('kv_ld', ' sc1'), opt.get('ffn_ld', '')
    MAP = int(opt.get('map', 4))
    VOA, VOW, AD, PFO = 2, 6, 10, 47
    FA = lambda ks, i: 64 * ks + 4 * i
    FW = lambda ks, j: 64 * ks + 32 + 4 * j
    def frag_of(isV, it, jd):
        return ((it >> 2) * 16 + jd * 2 + ((it >> 1) & 1), it & 1) if isV else (it * 4 + (jd >> 1), jd & 1)
    SRC = lambda n: ('v', 48 + 8 * n) if n < 26 else ('a', 128 + 8 * (n - 26))
    def acc(isV, it, jd):
        n, h = frag_of(isV, it, jd)
        p, r = SRC(n)
        return R(p, r + 4 * h, 4)
    PK = lambda n: 24 + 4 * (n if n < 26 else n - 26)
    VX, VY, VDMA, VRA, VRB, ORR, T0 = 2, 3, 4, 5, 6, 7, 1
    WV, XV, TA = 8, 10, 16
    ET = 8
    ONES, NINF = 16, 20
    NEGM, LS, PB, SB = 32, 48, 64, 128
    P = lambda par, qb, ks: PB + 32 * par + (qb * 2 + ks) * 4
    Sr = lambda par, qb, kb: SB + 64 * par + (qb * 4 + kb) * 4
    O = lambda qb, db: (qb * 8 + db) * 4
    Q = lambda qb, s: 128 + (qb * 4 + s) * 4
    FR = lambda grp, j: 192 + 16 * grp + 4 * j
    QA = lambda db, qb: 128 + (db * 4 + qb) * 4
    XR = lambda kk, qb: ((kk % 8) * 4 + qb) * 4
    WF = lambda kk, db: 192 + (kk & 1) * 32 + db * 4

    k.e("s_cmp_ge_u32 s2, 256")
    k.e("s_cbranch_scc1 L_k2_end")
    k.stamp(ST)
    k.e("s_load_dwordx4 s[4:7], s[0:1], 0")
    k.e("s_load_dwordx2 s[44:45], s[0:1], 56")
    k.e("s_load_dwordx4 s[40:43], s[0:1], 24")
    k.e("s_load_dwordx4 s[64:67], s[0:1], 96")
    k.e("v_lshrrev_b32 v1, 6, v0")
    k.e("v_and_b32 v0, 63, v0")
    k.e("v_readfirstlane_b32 s32, v1")
    k.e("v_lshrrev_b32 v33, 5, v0")
    k.e("v_and_b32 v31, 31, v0")
    k.e("v_lshlrev_b32 v36, 4, v31")
    k.e("v_lshl_add_u32 v35, v33, 11, v36")
    k.e("s_lshl_b32 s36, s2, 14")
    k.e("s_lshl_b32 s37, s32, 12")
    k.e("s_add_u32 s36, s36, s37")
    k.e("s_lshr_b32 s3, s2, 3")
    k.e("s_and_b32 s33, s3, 7")
    k.e("s_lshr_b32 s3, s3, 3")
    k.e("s_lshr_b32 s35, s3, 1")
    k.e("s_and_b32 s3, s3, 1")
    k.e("s_and_b32 s34, s2, 7")
    k.e("s_lshl_b32 s34, s34, 1")
    k.e("s_add_u32 s34, s34, s3")
    for j in range(4):
        k.e(f"s_mov_b32 s{48+j}, {j*7168}")
        k.e(f"s_mov_b32 s{52+j}, {j*15360}")
    k.e("s_lshl_b32 s56, s32, 13")
    k.e("s_add_u32 s57, s56, 32768")
    k.e("s_lshl_b32 s3, s32, 4")
    k.e("v_add_u32 v30, s3, v33")
    k.e("v_lshlrev_b32 v30, 13, v30")
    k.e("v_lshlrev_b32 v34, 1, v33")
    k.e("v_xor_b32 v31, v31, v34")
    for hi in range(2):
        for par in range(2):
            k.e(f"v_xor_b32 v34, {(2*par + 4*hi) << 1}, v31")
            k.e(f"v_lshl_add_u32 v{VOW + par + 2*hi}, v34, 4, v30")
            if hi: k.e(f"v_add_u32 v{VOW + par + 2*hi}, {8*8192}, v{VOW + par + 2*hi}")
    k.e("v_lshrrev_b32 v30, 3, v0")
    k.e("s_lshl_b32 s3, s32, 6")
    k.e("v_add_u32 v30, s3, v30")
    k.e("v_lshlrev_b32 v30, 10, v30")
    k.e("v_and_b32 v31, 7, v0")
    k.e("v_lshrrev_b32 v32, 4, v0")
    k.e("v_xor_b32 v31, v31, v32")
    k.e(f"v_lshl_add_u32 v{VOA}, v31, 4, v30")
    k.e("v_xor_b32 v31, 4, v31")
    k.e(f"v_lshl_add_u32 v{VOA+1}, v31, 4, v30")
    k.e(f"v_add_u32 v{VOA+2}, 32768, v{VOA}")
    k.e(f"v_add_u32 v{VOA+3}, 32768, v{VOA+1}")
    k.e("s_waitcnt lgkmcnt(0)")
    k.srd(16, 4, 4194304)
    XP, WR, XF = 48, 64, 80
    for i in range(4):
        k.e(f"buffer_load_dwordx4 {V(XP+4*i,4)}, v35, s[16:19], s36 offen offset:{i*512}{x_ld}", tag='x')
    def emit(lst, o=None):
        for x in lst:
            if x.endswith(':'): k.label(x[:-1])
            else: k.e(x, tag='cpf')
    CPF = opt.get('cpf', '1234')
    if '1' in CPF: emit(code_prefetch("front_kernel", "L_k2_end", 32, 68, 120, 124))
    k.e("s_cmp_eq_u32 s35, 0")
    k.e("s_cselect_b32 s40, s40, s42")
    k.e("s_cselect_b32 s41, s41, s43")
    k.e("s_lshl_b32 s3, s34, 9")
    k.srd(12, 40, 0, "s3")
    k.e("s_sub_u32 s14, 4194304, s3")
    k.e("s_lshl_b32 s3, s33, 18")
    k.srd(8, 6, 262144, "s3")
    def dma_ops(buf):
        ops = []
        for (base, vo, so, srd, fl) in ((57, VOW, 52, 12, w_ld), (56, VOA, 48, 8, a_ld)):
            for hi in range(2):
                ops.append(('s', f"s_add_u32 m0, s{base}, {buf*65536 + hi*4096}"))
                for lo in range(4):
                    ops.append(('g', f"buffer_load_dwordx4 v{vo + (lo&1) + 2*hi}, {S(srd,4)}, s{so+lo} offen offset:{lo*1024}{fl} lds"))
        return ops
    def adv_ops():
        return [f"v_add_u32 v{VOW+j}, {64*8192}, v{VOW+j}" for j in range(4)] + [f"v_add_u32 v{VOA+j}, 128, v{VOA+j}" for j in range(4)]
    st0 = dma_ops(0)
    for t, s in st0[:10]: k.e(s, tag='st0')
    k.srd(28, 44, 2048)
    k.srd(20, 66, 8 << 20)
    k.srd(24, 66, 32 * KV_HEAD, WS_KV)
    k.e("v_and_b32 v30, 15, v0")
    k.e("s_lshr_b32 s3, s32, 1")
    k.e("s_lshl_b32 s3, s3, 14")
    k.e("v_lshlrev_b32 v31, 7, v30")
    k.e("v_add_u32 v31, s3, v31")
    k.e("v_lshrrev_b32 v34, 1, v30")
    k.e("v_xor_b32 v34, v34, v32")
    k.e(f"v_lshl_add_u32 v{AD}, v34, 4, v31")
    k.e("v_xor_b32 v34, 4, v34")
    k.e(f"v_lshl_add_u32 v{AD+1}, v34, 4, v31")
    k.e("v_lshrrev_b32 v30, 2, v30")
    k.e("v_lshl_add_u32 v31, v32, 3, v30")
    k.e("v_lshlrev_b32 v31, 9, v31")
    k.e("v_and_b32 v34, 3, v0")
    k.e("v_lshl_add_u32 v31, v34, 3, v31")
    k.e("s_and_b32 s3, s32, 1")
    k.e("s_lshl_b32 s3, s3, 8")
    k.e("s_add_u32 s3, s3, 32768")
    k.e("v_add_u32 v31, s3, v31")
    k.e("v_and_b32 v34, 1, v32")
    k.e("v_lshl_add_u32 v30, v34, 2, v30")
    for jj in range(8):
        k.e(f"v_xor_b32 v34, {jj}, v30")
        k.e(f"v_lshl_add_u32 v{AD+2+jj}, v34, 5, v31")
    for j in range(10):
        k.e(f"v_add_u32 v{AD+10+j}, 65536, v{AD+j}")
    k.e("s_cmp_lt_u32 s32, 2")
    for j in range(3): k.e(f"s_cselect_b32 s{60+j}, s{8+j}, s{12+j}")
    k.e("s_mov_b32 s63, 0x20000")
    k.e(f"s_mov_b32 s59, {64*8192}")
    k.e("s_cselect_b32 s59, 128, s59")
    k.e("s_lshr_b32 s3, s2, 6")
    k.e("s_lshl_b32 s3, s3, 1")
    k.e("s_add_u32 s3, s3, s32")
    k.e("s_lshl_b32 s3, s3, 15")
    k.e("s_add_u32 s3, s3, 256")
    k.e("v_lshlrev_b32 v37, 10, v0")
    k.e("v_add_u32 v37, s3, v37")
    k.e("v_lshrrev_b32 v38, 2, v0")
    k.e("v_lshlrev_b32 v38, 13, v38")
    k.e("v_and_b32 v39, 3, v0")
    k.e("v_lshl_add_u32 v38, v39, 7, v38")
    k.e("s_lshl_b32 s39, s33, 1")
    k.e("s_add_u32 s39, s39, s32")
    k.e("s_lshl_b32 s39, s39, 15")
    k.e(f"s_add_u32 s39, s39, {120*8192}")
    k.e("v_add_u32 v38, s39, v38")
    k.e("s_cmp_lt_u32 s32, 2")
    k.e("s_cselect_b64 vcc, -1, 0")
    k.e("s_cselect_b32 s3, 32, 16")
    k.e(f"v_cndmask_b32 v{PFO}, v38, v37, vcc")
    k.e("v_cmp_gt_u32 vcc, s3, v0")
    k.e(f"v_mov_b32 v37, {BIG}")
    k.e(f"v_cndmask_b32 v{PFO}, v37, v{PFO}, vcc")
    def pf_ops():
        return [f"buffer_load_dword v1, v{PFO}, s[60:63], 0 offen{opt.get('pf_ld', '')}", f"v_add_u32 v{PFO}, s59, v{PFO}"]
    for t, s in st0[10:]: k.e(s, tag='st0')
    for i in range(4):
        k.e(f"buffer_load_dwordx4 {V(WR+4*i,4)}, v36, s[28:31], 0 offen offset:{i*512}", tag='wr')
    for s in adv_ops(): k.e(s)

    st1 = dma_ops(1)
    def sum32(v, t):
        for m in ["quad_perm:[1,0,3,2]", "quad_perm:[2,3,0,1]", "row_half_mirror", "row_mirror"]:
            k.e(f"v_add_f32_dpp v{v}, v{v}, v{v} {m} row_mask:0xf bank_mask:0xf")
        k.e(f"v_mov_b32 v{t}, v{v}")
        k.e(f"v_permlane16_swap_b32 v{t}, v{v}")
        k.e(f"v_add_f32 v{v}, v{v}, v{t}")
    k.wait_vm('x')
    for i in range(16):
        k.e(f"v_lshlrev_b32 v{XF+2*i}, 16, v{XP+i}")
        k.e(f"v_and_b32 v{XF+2*i+1}, 0xffff0000, v{XP+i}")
    k.e(f"v_pk_add_f32 v[40:41], {V(XF,2)}, {V(XF+2,2)}")
    k.e(f"v_pk_add_f32 v[42:43], {V(XF+4,2)}, {V(XF+6,2)}")
    for i in range(4, 16):
        d = 40 + 2 * (i & 1)
        k.e(f"v_pk_add_f32 {V(d,2)}, {V(d,2)}, {V(XF+2*i,2)}")
    k.e("v_pk_add_f32 v[40:41], v[40:41], v[42:43]")
    k.e("v_add_f32 v38, v40, v41")
    sum32(38, 37)
    for t, s in st1[:10]: k.e(s, tag='st1')
    k.e("v_mul_f32 v38, 0xba800000, v38")
    k.e("v_mov_b32 v39, v38")
    T = 112
    for i in range(16):
        k.e(f"v_pk_add_f32 {V(T+2*(i&3),2)}, {V(XF+2*i,2)}, v[38:39]")
        d = 40 + 2 * (i & 1)
        if i < 2: k.e(f"v_pk_mul_f32 {V(d,2)}, {V(T+2*(i&3),2)}, {V(T+2*(i&3),2)}")
        else: k.e(f"v_pk_fma_f32 {V(d,2)}, {V(T+2*(i&3),2)}, {V(T+2*(i&3),2)}, {V(d,2)}")
    k.e("v_pk_add_f32 v[40:41], v[40:41], v[42:43]")
    k.e("v_add_f32 v40, v40, v41")
    sum32(40, 37)
    for t, s in st1[10:]: k.e(s, tag='st1')
    k.e("v_mul_f32 v40, 0x3a800000, v40")
    k.e("v_cvt_pk_bf16_f32 v44, v38, v40")
    k.e("v_lshlrev_b32 v38, 16, v44")
    k.e("v_and_b32 v40, 0xffff0000, v44")
    k.e("v_add_f32 v40, 0x3727c5ac, v40")
    k.e("v_cvt_pk_bf16_f32 v44, v40, v40")
    k.e("v_lshlrev_b32 v40, 16, v44")
    k.e("v_sqrt_f32 v40, v40")
    k.e("v_mov_b32 v39, v38")
    k.e("v_cvt_pk_bf16_f32 v44, v40, v40")
    k.e("v_lshlrev_b32 v44, 16, v44")
    k.e("v_rcp_f32 v40, v44")
    for i in range(16):
        k.e(f"v_pk_add_f32 {V(XF+2*i,2)}, {V(XF+2*i,2)}, v[38:39]")
    k.e("v_fma_f32 v45, -v44, v40, 1.0")
    k.e("v_fma_f32 v40, v45, v40, v40")
    k.e("v_mov_b32 v41, v40")
    for i in range(16):
        k.e(f"v_cvt_pk_bf16_f32 v{XP+i}, v{XF+2*i}, v{XF+2*i+1}")
    for i in range(16):
        k.e(f"v_lshlrev_b32 v{XF+2*i}, 16, v{XP+i}")
        k.e(f"v_and_b32 v{XF+2*i+1}, 0xffff0000, v{XP+i}")
    for i in range(16):
        k.e(f"v_pk_mul_f32 {V(XF+2*i,2)}, {V(XF+2*i,2)}, v[40:41]")
    for i in range(16):
        k.e(f"v_cvt_pk_bf16_f32 v{XP+i}, v{XF+2*i}, v{XF+2*i+1}")
    k.e("s_mul_i32 s3, s32, 4128")
    k.e("s_add_u32 s3, s3, 131072")
    k.e("v_mul_u32_u24 v42, 2064, v33")
    k.e("v_add3_u32 v42, v42, v36, s3")
    for i in range(4):
        k.e(f"ds_write_b128 v42, {V(XP+4*i,4)} offset:{i*512}")
    for s in adv_ops(): k.e(s)
    for _ in range(2):
        for s in pf_ops(): k.e(s, tag='pf')
    k.wait_vm('wr')
    for i in range(16):
        k.e(f"v_lshlrev_b32 v{XF+2*i}, 16, v{XP+i}")
        k.e(f"v_and_b32 v{XF+2*i+1}, 0xffff0000, v{XP+i}")
        k.e(f"v_lshlrev_b32 v{T+2*(i&3)}, 16, v{WR+i}")
        k.e(f"v_and_b32 v{T+2*(i&3)+1}, 0xffff0000, v{WR+i}")
        d = 42 + 2 * (i & 1)
        if i < 2: k.e(f"v_pk_mul_f32 {V(d,2)}, {V(XF+2*i,2)}, {V(T+2*(i&3),2)}")
        else: k.e(f"v_pk_fma_f32 {V(d,2)}, {V(XF+2*i,2)}, {V(T+2*(i&3),2)}, {V(d,2)}")
    k.e("v_pk_add_f32 v[42:43], v[42:43], v[44:45]")
    k.e("v_add_f32 v45, v42, v43")
    sum32(45, 37)
    k.e("v_cvt_pk_bf16_f32 v45, v45, v45")
    k.e("v_ashrrev_i32 v46, 31, v45")
    k.e("v_or_b32 v46, 0x80000000, v46")
    k.e("v_xor_b32 v45, v45, v46")
    k.e("v_and_b32 v45, 0xffff0000, v45")
    k.e("s_lshr_b32 s3, s36, 11")
    k.e("v_add_u32 v46, s3, v33")
    k.e("v_sub_u32 v44, 0xffff, v46")
    k.e("v_or_b32 v45, v45, v44")
    k.e("v_lshlrev_b32 v44, 2, v46")
    k.e("v_lshlrev_b32 v46, 3, v46")
    k.e("v_xor_b32 v38, 0x80000000, v38")
    k.e("v_mov_b32 v39, v40")
    k.e(f"s_mov_b32 s3, {WS_KEYS}")
    k.e(f"s_mov_b32 s39, {WS_STATS}")
    k.e("s_mov_b32 exec_lo, 1")
    k.e("s_mov_b32 exec_hi, 1")
    k.e("buffer_store_dword v45, v44, s[20:23], s3 offen sc1", tag='ln')
    k.e("buffer_store_dwordx2 v[38:39], v46, s[20:23], s39 offen", tag='ln')
    k.e("s_mov_b64 exec, -1")
    k.e("s_load_dwordx2 s[4:5], s[0:1], 16")
    k.e("s_load_dwordx4 s[40:43], s[0:1], 64")
    k.e("s_load_dwordx2 s[92:93], s[0:1], 40")
    k.e("s_load_dwordx2 s[94:95], s[0:1], 80")
    k.e("s_load_dwordx2 s[100:101], s[0:1], 0")
    k.srd(28, 64, 256)

    def reads(ks, buf):
        a = AD + 10 * buf
        ra = [f"ds_read_b128 {A(FA(ks,i),4)}, v{a+ks} offset:{i*2048}" for i in range(8)]
        rw = [[f"ds_read_b64_tr_b16 {A(FW(ks,j)+2*rd,2)}, v{a+2+j} offset:{ks*16384+rd*2048}" for rd in range(2)] for j in range(8)]
        out = []
        for j in range(8):
            out.append(rw[j]); out.append([ra[j]])
        return out
    k.wait_vm('st0')
    k.e("s_waitcnt lgkmcnt(0)")
    k.e("s_barrier")
    k.stamp(ST)
    n = 0
    for grp in reads(0, 0):
        for s in grp:
            k.e(s); n += 1
            if n == 12: k.e("s_waitcnt lgkmcnt(2)")
    k.e("s_cmp_lg_u32 s35, 0")
    k.e("s_cbranch_scc1 L_k1_vpath")

    def chunk_ops(c):
        kind, j = c
        slot = {'w': j % 4, 'f': 4 + j, 'kv': j % 8}[kind]
        ops = [('s', f"s_add_u32 m0, s44, {slot * 16384}")]
        if kind == 'w':
            for q in range(4):
                ops.append(('g', f"buffer_load_dwordx4 v{WV + (q >> 1)}, s[8:11], s{48+q} offen offset:{q*1024}{wq_ld} lds"))
            ops.append(('v', f"v_add_u32 v{WV}, {64*8192}, v{WV}"))
            ops.append(('v', f"v_add_u32 v{WV+1}, {64*8192}, v{WV+1}"))
        elif kind == 'f':
            for q in range(4):
                ops.append(('g', f"buffer_load_dwordx4 v{12 + (q >> 1) + 2 * (j & 1)}, {S(60 + 8 * (j >> 1), 4)}, s{52+q} offen offset:{q*1024}{ffn_ld} lds"))
        else:
            ops.append(('s', f"s_mov_b32 s7, {j * KV_CH}"))
            for q in range(4):
                ops.append(('g', f"buffer_load_dwordx4 v{VDMA}, s[12:15], s7 offen offset:{q*1024}{kv_ld} lds"))
        return ops
    def xn_ops(kk):
        ops = []
        for qb in range(4):
            so = "s58" if qb & 1 else "0"
            ops.append(('g', f"buffer_load_dwordx4 {A(XR(kk,qb),4)}, v{XV + (qb >> 1)}, s[20:23], {so} offen offset:{(kk % 4)*1024}{opt.get('xn_ld', ' sc1')}"))
        if kk % 4 == 3:
            ops.append(('v', f"v_add_u32 v{XV}, 4096, v{XV}"))
            ops.append(('v', f"v_add_u32 v{XV+1}, 4096, v{XV+1}"))
        return ops
    def wreads(kk):
        st, ks = kk // 2, kk & 1
        return [[f"ds_read_b64_tr_b16 {A(WF(kk,db)+2*rd,2)}, v{TA+db} offset:{(st % 4)*16384 + ks*8192 + rd*1024}" for rd in range(2)] for db in range(8)]
    ool = []
    def spin(lab, ret, off, target, vd, vz, sv, sc):
        def fn():
            k.e(f"s_mov_b32 s{sc}, 0x400000")
            k.label(lab + "_l")
            k.e(f"s_sleep {opt.get('slp', 8)}")
            k.e(f"buffer_load_dword v{vd}, v{vz}, s[28:31], {off} offen sc1")
            k.e("s_waitcnt vmcnt(0)")
            k.e(f"v_readfirstlane_b32 s{sv}, v{vd}")
            k.e(f"s_sub_u32 s{sc}, s{sc}, 1")
            k.e(f"s_cmp_eq_u32 s{sc}, 0")
            k.e(f"s_cbranch_scc1 {ret}")
            k.e(f"s_cmp_lt_u32 s{sv}, {target}")
            k.e(f"s_cbranch_scc1 {lab}_l")
        ool.append((lab, fn, ret))
    def srd_rec(b, d, base, nbytes, add=None):
        if add is None:
            b.e(f"s_mov_b32 s{d}, s{base}"); b.e(f"s_and_b32 s{d+1}, s{base+1}, 0xffff")
        else:
            b.blk([f"s_add_u32 s{d}, s{base}, {add}", f"s_addc_u32 s{d+1}, s{base+1}, 0", f"s_and_b32 s{d+1}, s{d+1}, 0xffff"])
        b.e(f"s_mov_b32 s{d+2}, {nbytes}"); b.e(f"s_mov_b32 s{d+3}, 0x20000")

    def phase1_stream(isV):
        b = Rec()
        tg = 'v' if isV else 'k'
        b.e("v_and_b32 v46, 7, v0")
        b.e("v_lshrrev_b32 v1, 3, v0") if False else None
        b.e("v_mul_u32_u24 v30, 2064, v46")
        b.e("v_lshrrev_b32 v31, 3, v0")
        b.e("s_lshl_b32 s3, s32, 9")
        b.e("s_add_u32 s3, s3, 131072")
        b.e("v_lshl_add_u32 v30, v31, 4, v30")
        b.e("v_add_u32 v30, s3, v30")
        b.e("v_lshlrev_b32 v31, 8, v31")
        b.e("v_lshl_add_u32 v46, v46, 4, v31")
        for i in (1, 2, 3, 0):
            b.e(f"ds_read_b128 {V(30+4*i,4)}, v30 offset:{i*128}", tag='xs')
        b.e("s_lshr_b32 s3, s2, 1")
        b.e(f"s_mul_i32 s3, s3, {XN_RB}")
        b.e("s_add_u32 s3, s3, s56")
        b.e("s_and_b32 s39, s2, 1")
        b.e("s_lshl_b32 s39, s39, 7")
        b.e("s_add_u32 s3, s3, s39")
        b.e("s_add_u32 s39, s3, 4096")
        b.at(2)
        for i in range(4):
            b.e(f"buffer_store_dwordx4 {V(30+4*i,4)}, v46, s[20:23], s{3 if i < 2 else 39} offen offset:{(i&1)*2048} sc1", tag='ln')
        b.e("s_lshl_b32 s3, s34, 1")
        b.e("s_and_b32 s36, s32, 1")
        b.e("s_add_u32 s3, s3, s36")
        b.e(f"s_mul_i32 s3, s3, {KV_HEAD}")
        b.e(f"s_mul_i32 s36, s33, {4*KV_TILE}")
        b.e("s_add_u32 s3, s3, s36")
        b.e("s_lshr_b32 s36, s32, 1")
        b.e(f"s_mul_i32 s36, s36, {2*KV_TILE}")
        b.e("s_add_u32 s3, s3, s36")
        b.e(f"s_add_u32 s38, s3, {KV_CH if isV else 0}")
        b.e("s_lshl_b32 s39, s34, 7")
        b.e("s_lshl_b32 s36, s33, 2")
        b.e("s_add_u32 s39, s39, s36")
        b.e(f"s_add_u32 s39, s39, {WS_FLG + (32 if isV else 0)}")
        b.e("v_mov_b32 v30, 1")
        b.e("v_mov_b32 v31, 0")
        b.blk(["s_cmp_eq_u32 s32, 0", f"s_cselect_b32 s39, s39, {BIG}"])
        b.blk(["s_mov_b64 exec, 1", ("buffer_store_dword v31, v31, s[20:23], s39 offen sc1", 'ln'), "s_mov_b64 exec, -1"])
        if MAP == 4:
            b.e("s_and_b32 s33, s2, 7")
            b.e("s_lshl_b32 s33, s33, 2")
            b.e("s_bfe_u32 s3, s2, 0x20003")
            b.e("s_add_u32 s33, s33, s3")
            b.e("s_lshr_b32 s34, s2, 5")
        else:
            b.e("s_and_b32 s33, s2, 6")
            b.e("s_lshl_b32 s33, s33, 2")
            b.e("s_bfe_u32 s3, s2, 0x30003")
            b.e("s_add_u32 s33, s33, s3")
            b.e("s_lshr_b32 s34, s2, 6")
            b.e("s_lshl_b32 s34, s34, 1")
            b.e("s_and_b32 s3, s2, 1")
            b.e("s_add_u32 s34, s34, s3")
        b.e("s_lshl_b32 s35, s34, 1")
        b.e("s_sub_u32 s36, 32, s35")
        b.e("s_add_u32 s35, s35, 2")
        b.e("s_lshl_b32 s44, s32, 12")
        b.e(f"s_mov_b32 s58, {XN_RB}")
        b.e("s_sub_u32 s3, 15, s34")
        b.e("s_lshl_b32 s45, s3, 2")
        b.e("s_add_u32 s45, s45, s32")
        b.e("s_lshl_b32 s46, s34, 2")
        b.e("s_add_u32 s46, s46, s32")
        srd_rec(b, 16, 66, 16 << 20, WS_CTX)
        srd_rec(b, 68, 42, 7340032)
        b.blk(["s_cmp_eq_u32 s32, 0", f"s_cselect_b32 s37, 0, {BIG}"])
        b.at(6)
        b.check_clear('ln')
        b.blk(["s_mov_b64 exec, 1", "buffer_atomic_add v30, v31, s[28:31], s37 offen sc1", "s_mov_b64 exec, -1"])
        if 'touch' in opt:
            b.e("s_lshr_b32 s3, s2, 1")
            b.e(f"s_mul_i32 s3, s3, {XN_RB}")
            b.e("s_add_u32 s3, s3, s56")
            b.e("s_and_b32 s47, s2, 1")
            b.e("s_lshl_b32 s47, s47, 7")
            b.e("s_add_u32 s3, s3, s47")
            b.e("v_and_b32 v32, 31, v0")
            b.e("v_lshlrev_b32 v32, 8, v32")
            b.e("buffer_load_dword v40, v32, s[20:23], s3 offen")
        b.at(8)
        b.e("s_lshl_b32 s3, s33, 8")
        srd_rec(b, 60, 4, 0, "s3")
        b.e("s_sub_u32 s62, 8388608, s3")
        b.e("v_lshrrev_b32 v32, 1, v0")
        b.e("v_and_b32 v33, 1, v0")
        b.e("v_lshlrev_b32 v32, 13, v32")
        b.e("v_lshl_add_u32 v32, v33, 7, v32")
        if MAP == 4:
            b.e("s_lshl_b32 s3, s32, 3")
            b.e("s_add_u32 s3, s3, s34")
            b.e("s_lshl_b32 s3, s3, 18")
            b.e(f"s_mov_b32 s59, {1 << 23}")
        else:
            b.e("s_lshl_b32 s3, s32, 2")
            b.e("s_lshr_b32 s47, s34, 1")
            b.e("s_add_u32 s3, s3, s47")
            b.e("s_lshl_b32 s3, s3, 18")
            b.e(f"s_mov_b32 s59, {1 << 22}")
        b.e(f"v_add_u32 v{PFO}, s3, v32")
        b.e("v_lshrrev_b32 v32, 4, v0")
        b.e("v_and_b32 v33, 15, v0")
        b.e("s_lshl_b32 s3, s32, 4")
        b.e("v_add_u32 v34, s3, v32")
        b.e("v_lshlrev_b32 v36, 1, v32")
        b.e("v_xor_b32 v36, v36, v33")
        b.e("v_xor_b32 v37, 8, v36")
        if '2' in CPF:
            b.at(10)
            cp = code_prefetch("L_phase2", "L_k2_end", 32, 6, 40, 44)
            cp = [x.replace("s8", "s3") for x in cp]
            b.blk(cp[:4])
            for x in cp[4:-3]: b.e(x)
            b.blk(cp[-3:-1])
            b.e(cp[-1])
        b.at(12)
        b.e("buffer_load_dword v30, v31, s[28:31], s37 offen sc1", tag='poll')
        for j in range(3): b.e(f"s_mov_b32 s{8+j}, s{60+j}")
        for j in range(4): b.e(f"s_mov_b32 s{48+j}, {j*31744}")
        b.e("v_lshlrev_b32 v35, 13, v34")
        b.e(f"v_lshl_add_u32 v{WV}, v36, 4, v35")
        b.e(f"v_lshl_add_u32 v{WV+1}, v37, 4, v35")
        b.e(f"v_lshlrev_b32 v{VX}, 4, v0")
        b.e(f"v_add_u32 v{VY}, 65536, v{VX}")
        b.e(f"v_add_u32 v{VDMA}, s44, v{VX}")
        b.e("v_mov_b32 v7, 0")
        b.e("v_lshlrev_b32 v35, 2, v32")
        b.e("v_sub_u32 v35, v33, v35")
        b.e("s_lshl_b32 s3, s45, 5")
        b.e(f"v_add_u32 v{VRA}, s3, v35")
        b.e("s_lshl_b32 s3, s46, 5")
        b.e(f"v_add_u32 v{VRB}, s3, v35")
        b.e(f"s_mul_i32 s3, s33, {KV_HEAD}")
        b.e(f"s_add_u32 s3, s3, {WS_KV}")
        srd_rec(b, 12, 66, 0, "s3")
        b.e(f"s_mul_i32 s14, s36, {KV_TILE}")
        b.at(13)
        b.e(f"s_mul_i32 s3, s45, {2*XN_RB}")
        b.e(f"v_add_u32 v{XV}, s3, v{VX}")
        b.e(f"s_mul_i32 s3, s46, {2*XN_RB}")
        b.e(f"v_add_u32 v{XV+1}, s3, v{VX}")
        if 'dbg_noxn' in opt:
            b.e(f"v_mov_b32 v{XV}, {BIG}"); b.e(f"v_mov_b32 v{XV+1}, {BIG}")
        if 'dbg_nowq' in opt: b.e("s_mov_b32 s10, 0")
        if 'dbg_nost' in opt: b.e("s_mov_b32 s26, 0")
        spin(f"L_spinA{tg}", f"L_spinAr{tg}", 0, 256, 30, 31, 3, 47)
        return b
    def ta_setup(b):
        b.e("v_lshrrev_b32 v42, 2, v33")
        b.e("v_lshl_add_u32 v43, v32, 3, v42")
        b.e("v_lshlrev_b32 v43, 8, v43")
        b.e("v_and_b32 v44, 3, v0")
        b.e("v_lshl_add_u32 v43, v44, 3, v43")
        b.e("v_and_b32 v44, 1, v32")
        b.e("v_lshl_add_u32 v42, v44, 2, v42")
        for db in range(8):
            b.e(f"v_xor_b32 v44, {db}, v42")
            b.e(f"v_lshl_add_u32 v{TA+db}, v44, 5, v43")

    def kstep(isV, st, ks, gaps, gtags, pre, b):
        for s in pre:
            if s.endswith(':'): k.label(s[:-1])
            else: k.e(s)
        order = [(it, jd) for it in range(8) for jd in range(8)]
        if st == 7 and ks == 1: order.sort(key=lambda x: frag_of(isV, *x))
        for n, (it, jd) in enumerate(order):
            fa, fw_ = A(FA(ks, it), 4), A(FW(ks, jd), 4)
            d = acc(isV, it, jd)
            c = "0" if (st == 0 and ks == 0) else d
            k.e(mfma(d, fa, fw_, c) if isV else mfma(d, fw_, fa, c))
            if n in gaps:
                for s in gaps[n]: k.e(s, tag=gtags.get(n))
            else:
                b.fill(k, 2 * st + ks + n / 64.0)
    def place_vm(g, gt, ops, start, step):
        gi = start; lead = []
        for t, s, tg in ops:
            if t == 's':
                if gi == 0: lead.append(s)
                else: g.setdefault(gi - 1, []).insert(0, s)
            elif t == 'g':
                assert gi not in g and gi < 64, gi
                g[gi] = [s]; gt[gi] = tg; gi += step
            else:
                q = gi - step + 1
                while q in g and (len(g[q]) >= 2 or g[q][-1].startswith(('buffer', 'ds_read_b64'))) or (q - start) % step == 0: q += 1
                g.setdefault(min(q, 63), []).append(s)
        return lead
    vq0, dq0 = list(k.vq), list(k.dq)
    for isV in (0, 1):
        if isV:
            k.label("L_k1_vpath"); k.win = []; k.vq = list(vq0); k.dq = list(dq0)
        b = phase1_stream(isV)
        if S1: k.nstamp = 0
        for st in range(8):
            p = st & 1
            k.stamp(S1)
            g = {}
            for n, grp in enumerate(reads(1, p)):
                g[2 * n + 1] = (["s_waitcnt lgkmcnt(6)"] if n % 4 == 3 else []) + grp
            kstep(isV, st, 0, g, {}, ["s_waitcnt lgkmcnt(0)"], b)
            g = {}; gt = {}
            if st < 7:
                for n, grp in enumerate(reads(0, p ^ 1)):
                    g[2 * n + 1] = (["s_waitcnt lgkmcnt(6)"] if n % 4 == 2 else []) + grp
            if st < 6:
                ops = []
                d = dma_ops(p); adv = adv_ops()
                ops = [(t, s, f'st{st+2}') for t, s in d[:10]] + [('v', s, None) for s in adv[:4]] + \
                      [(t, s, f'st{st+2}') for t, s in d[10:]] + [('v', s, None) for s in adv[4:]]
                lead = place_vm(g, gt, ops, 0, 4)
                if st < 5 or MAP != 4:
                    g[62] = [pf_ops()[0]] + g.get(62, []); gt[62] = 'pf'
                    g.setdefault(63, []).append(pf_ops()[1])
                need = f'st{st+1}'
            elif st == 6:
                ops = []
                for c in range(4): ops += [(t, s, f'w{c}') for t, s in chunk_ops(('w', c))]
                lead = place_vm(g, gt, ops, 0, 4)
                need = 'st7'
            else:
                assert not b.items, len(b.items)
                ta_setup(b)
                b.items.append(('at', 15.3, None))
                for grp in wreads(0):
                    for s in grp: b.e(s)
                b.e("s_waitcnt lgkmcnt(8)")
                cv = Rec()
                for n in range(26):
                    cv.at(15 + (2 * n + 5) / 64.0)
                    r = SRC(n)[1]
                    for q in range(4): cv.e(f"v_cvt_pk_bf16_f32 v{PK(n)+q}, v{r+2*q}, v{r+2*q+1}")
                b.items += cv.items
                ops = []
                for kk in range(4): ops += [(t, s, f'x{kk}') for t, s in xn_ops(kk)]
                lead = place_vm(g, gt, ops, 0, 4)
                tg = 'v' if isV else 'k'
                lead += ["v_readfirstlane_b32 s3, v30", "s_nop 0", "s_or_b32 s3, s3, s37", "s_cmp_lt_u32 s3, 256", f"s_cbranch_scc1 L_spinA{tg}", f"L_spinAr{tg}:"]
                need = 'w0'
            k.e(f"s_waitcnt vmcnt({k.vm_n(need)}) lgkmcnt(0)" if k.vm_n(need) is not None else "s_waitcnt lgkmcnt(0)")
            kstep(isV, st, 1, g, gt, lead + ["s_barrier"], b)
        print(f"phase1 isV={isV}: items left {len(b.items)}")
        k.stamp(S1)
        b.drain(k)
        k.stamp(S1)
        if not isV:
            k.e("s_branch L_phase2")
            vqK = list(k.vq)
    assert vqK == k.vq
    k.label("L_phase2")
    k.win = []
    k.e("s_nop 7")
    k.stamp(ST)

    b = Rec()
    KY = 56
    SPK = float(opt.get('spk', 2))
    def kvstore(n):
        b.at(n / SPK)
        off = (n >> 4) * KV_TILE + (n & 15) * 1024
        if n % 4 == 0: b.e(f"s_add_u32 s37, s38, {off}")
        b.e(f"buffer_store_dwordx4 {V(PK(n),4)}, v{VX}, s[24:27], s37 offen offset:{(n % 4)*1024}{opt.get('kv_st', ' sc1')}", tag='kvst')
    for n in range(26):
        kvstore(n)
        if 8 <= n < 14:
            m = n + 18
            for q in range(8): b.e(f"v_accvgpr_read_b32 v{48+q}, a{SRC(m)[1]+q}")
            for q in range(4): b.e(f"v_cvt_pk_bf16_f32 v{PK(m)+q}, v{48+2*q}, v{49+2*q}")
    for n in range(26, 32): kvstore(n)
    b.e("v_mov_b32 v12, 1")
    b.e("v_and_b32 v1, 15, v0")
    b.e("v_lshlrev_b32 v1, 2, v1")
    b.e("s_lshr_b32 s6, s33, 1")
    b.e("s_lshl_b32 s6, s6, 7")
    b.e(f"s_add_u32 s6, s6, {WS_FLG}")
    b.blk(["s_cmp_eq_u32 s32, 0", f"s_cselect_b32 s6, s6, {BIG}"])
    SIG = int(opt.get('sig', 21))
    POL = float(opt.get('pol', 28))
    b.at(SIG)
    b.blk(["s_mov_b64 exec, 1", "buffer_store_dword v12, v7, s[20:23], s39 offen sc1", "s_mov_b64 exec, -1"])
    b.at(POL)
    b.e("buffer_load_dword v12, v1, s[20:23], s6 offen sc1", tag='poll')
    b.at(31)
    for j in range(7):
        for t, s in chunk_ops(('kv', j)): b.e(s, tag=f'c{16+j}')
    def spinB():
        k.e("s_mov_b32 s59, 0x400000")
        k.label("L_spinB_l")
        k.e(f"s_sleep {opt.get('slp', 4)}")
        k.e("buffer_load_dword v12, v1, s[20:23], s6 offen sc1")
        k.e("s_sub_u32 s59, s59, 1")
        k.e("s_cmp_eq_u32 s59, 0")
        k.e("s_cbranch_scc1 L_spinBx")
        k.e("s_waitcnt vmcnt(0)")
        k.e("v_cmp_ne_u32 vcc, 1, v12")
        k.e("s_cbranch_vccnz L_spinB_l")
        k.label("L_spinBx")
        k.e("s_waitcnt vmcnt(0)")
    ool.append(("L_spinB", spinB, "L_spinBr"))

    b1 = b
    b = Rec()
    srd_rec(b, 60, 40, 7340032)
    b.at(17 / SPK)
    b.e(f"s_mov_b32 s3, {WS_KEYS}")
    b.e(f"s_mov_b32 s47, {WS_KEYS + 4096}")
    for i in range(8):
        b.e(f"buffer_load_dwordx4 {V(KY+4*i,4)}, v{VX}, s[20:23], s{3 if i < 4 else 47} offen offset:{(i % 4)*1024} sc1", tag='keys')
    b.at(17 / SPK + 8)
    b.wait_vm('keys')
    b.e(f"v_max_u32 v14, v{KY}, v{KY+1}")
    b.e(f"v_min_u32 v15, v{KY}, v{KY+1}")
    for i in range(2, 32):
        b.e(f"v_med3_u32 v15, v14, v15, v{KY+i}"); b.e(f"v_max_u32 v14, v14, v{KY+i}")
    def wmax(v, sdst):
        for m in ["quad_perm:[1,0,3,2]", "quad_perm:[2,3,0,1]", "row_half_mirror", "row_mirror"]:
            b.blk([f"v_max_u32_dpp {v}, {v}, {v} {m} row_mask:0xf bank_mask:0xf"])
        b.blk([f"v_readlane_b32 s3, {v}, 0", f"v_readlane_b32 s47, {v}, 16"])
        b.blk([f"v_readlane_b32 s4, {v}, 32", f"v_readlane_b32 s5, {v}, 48"])
        b.blk(["s_max_u32 s3, s3, s47", "s_max_u32 s4, s4, s5", f"s_max_u32 s{sdst}, s3, s4"])
    b.e("v_mov_b32 v13, v14")
    wmax("v13", 40)
    b.blk(["v_cmp_eq_u32 vcc, s40, v14"])
    b.blk(["v_cndmask_b32 v13, v14, v15, vcc"])
    wmax("v13", 41)
    for t in range(2):
        b.e(f"s_and_b32 s3, s{40+t}, 0xffff")
        b.e(f"s_sub_u32 s{42+t}, 0xffff, s3")
    for t in range(2):
        b.e(f"v_mov_b32 v{56+t}, s{42+t}")
        b.e(f"v_mov_b32 v60, s{40+t}")
        b.e("v_not_b32 v61, v60")
        b.e("v_ashrrev_i32 v61, 31, v61")
        b.e("v_or_b32 v61, 0x80000000, v61")
        b.e("v_xor_b32 v60, v60, v61")
        b.e("v_and_b32 v60, 0xffff0000, v60")
        b.e("v_mul_f32 v60, 0xbfb8aa3b, v60")
        b.e("v_exp_f32 v60, v60")
        b.e("v_add_f32 v60, 1.0, v60")
        b.e("v_rcp_f32 v60, v60")
        b.e("v_cvt_pk_bf16_f32 v60, v60, v60")
        b.e(f"v_and_b32 v{58+t}, 0xffff0000, v60")
    b.e(f"s_mov_b32 s47, {WS_SEL}")
    b.blk(["s_or_b32 s3, s2, s32", "s_cmp_eq_u32 s3, 0", f"s_cselect_b32 s3, s47, {BIG}"])
    b.blk(["s_mov_b64 exec, 1", "buffer_store_dwordx4 v[56:59], v7, s[20:23], s3 offen", "s_mov_b64 exec, -1"])
    for r in range(16): b.e(f"v_mov_b32 v{LS+r}, 0")
    WARM = opt.get('warm', '1') == '1'
    if WARM:
        b.e("s_mul_i32 s3, s34, s34")
        b.e("s_lshl_b32 s47, s33, 6")
        b.e("s_add_u32 s3, s3, s47")
        b.e("s_lshl_b32 s3, s3, 2")
        b.e("s_add_u32 s3, s3, s32")
        b.e("s_lshl_b32 s3, s3, 7")
        b.e("s_sub_u32 s3, s3, 512")
        b.e("v_min_u32 v13, 32, v0")
        b.e("v_mov_b32 v28, s92"); b.e("v_mov_b32 v29, s93")
        b.e("v_mov_b32 v30, v13")
        for first, lo, hi in ((8, 94, 95), (15, 100, 101), (19, 60, 61), (26, 68, 69)):
            b.e(f"v_mov_b32 v14, s{lo}"); b.e(f"v_mov_b32 v15, s{hi}")
            b.blk([f"v_cmp_le_u32 vcc, {first}, v13", f"v_subrev_u32 v31, {first}, v13"])
            b.blk(["v_cndmask_b32 v28, v28, v14, vcc", "v_cndmask_b32 v29, v29, v15, vcc"])
            b.blk(["v_cndmask_b32 v30, v30, v31, vcc"])
        b.e("v_lshlrev_b32 v30, 20, v30")
        b.e("v_add_u32 v30, s3, v30")
        b.e("v_ashrrev_i32 v31, 31, v30")
        b.e("v_lshl_add_u64 v[28:29], v[30:31], 0, v[28:29]")
        b.e("s_mov_b32 s40, 512"); b.e("s_mov_b32 s41, 0")
    b2 = b
    xsched = {0: [4, 5], 1: [6, 7], 2: [8, 9]}
    for kk in range(3, 25): xsched[kk] = [kk + 7]
    for kk in range(32):
        st, ks = kk // 2, kk & 1
        k.stamp(S2 and kk in (0, 4, 8, 12, 16, 20, 24, 28, 31))
        need = [f'x{kk}']
        if ks == 1 and st < 15: need.append(f'w{st+1}')
        if kk == SIG:
            assert not any(it[2] == 'kvst' for it in b1.items), "stores not all issued before SIG"
            need.append('kvst')
        if kk == 31: need.append('poll')
        w = [x for x in (k.vm_n(t) for t in need) if x is not None]
        k.e("s_waitcnt " + (f"vmcnt({min(w)}) " if w else "") + "lgkmcnt(0)")
        if kk == 31:
            assert not b2.items
            k.e("s_cmp_lg_u32 s32, 0")
            k.e("s_cbranch_scc1 L_spinBr")
            k.e("v_cmp_ne_u32 vcc, 1, v12")
            k.e("s_cbranch_vccnz L_spinB")
            k.label("L_spinBr")
        if ks == 1: k.e("s_barrier")
        g = {}; gt = {}
        if kk + 1 < 32:
            for n, grp in enumerate(wreads(kk + 1)):
                g[1 + 3 * n] = (["s_waitcnt lgkmcnt(6)"] if n == 5 else []) + grp
        vm = []
        if ks == 1 and st + 4 < 16: vm += [(t, s, f'w{st+4}') for t, s in chunk_ops(('w', st + 4))]
        for x in xsched.get(kk, []): vm += [(t, s, f'x{x}') for t, s in xn_ops(x)]
        ng = sum(1 for x in vm if x[0] == 'g')
        free = [x for x in range(2, 32) if x not in g]
        pick = [free[(j * len(free)) // ng] for j in range(ng)] if ng else []
        j = 0
        for t, s, tg in vm:
            if t == 'g': g[pick[j]] = [s]; gt[pick[j]] = tg; j += 1
            elif t == 's':
                q = pick[j] - 1
                if q in gt: g[q].append(s)
                else: g.setdefault(q, []).insert(0, s)
            else: g[pick[j - 1]].append(s)
        n = 0
        for db in range(8):
            for qb in range(4):
                k.e(mfma(V(QA(db, qb), 4), A(WF(kk, db), 4), A(XR(kk, qb), 4), V(QA(db, qb), 4) if kk else "0"))
                if n in g:
                    for s in g[n]: k.e(s, tag=gt.get(n))
                else:
                    nl = len(k.lines)
                    b1.fill(k, kk + n / 32.0)
                    if len(k.lines) == nl: b2.fill(k, kk + n / 32.0)
                n += 1
    print("phase2 items left", len(b1.items), len(b2.items))
    b2.drain(k)
    EARLYQ = 'lateq' not in opt
    if not EARLYQ: b1.drain(k)
    k.stamp(ST or S2)
    k.e(f"s_mov_b32 s4, {QSCALE}")
    k.e("s_mov_b32 s5, s4")
    for qb in range(4):
        for s_ in range(4):
            for h in range(2):
                r = QA(2 * s_ + h, qb)
                k.e(f"v_pk_mul_f32 {V(r,2)}, {V(r,2)}, s[4:5]")
                k.e(f"v_pk_mul_f32 {V(r+2,2)}, {V(r+2,2)}, s[4:5]")
                k.e(f"v_cvt_pk_bf16_f32 v{r}, v{r}, v{r+1}")
                k.e(f"v_cvt_pk_bf16_f32 v{r+1}, v{r+2}, v{r+3}")
                k.e(f"v_accvgpr_write_b32 a{Q(qb,s_)+2*h}, v{r}")
                k.e(f"v_accvgpr_write_b32 a{Q(qb,s_)+2*h+1}, v{r+1}")
        if qb == int(opt.get('drainq', 0)): b1.drain(k)
    for r in range(4): k.e(f"v_mov_b32 v{ONES+r}, 0x3f803f80")
    k.e(f"v_mov_b32 v{NINF}, 0xff800000")
    for j in range(3): k.e(f"s_mov_b32 s{24+j}, s{60+j}")
    k.e("s_lshl_b32 s3, s34, 5")
    k.e("s_add_u32 s3, s3, s33")
    k.e("s_mul_i32 s6, s3, 2341")
    k.e("s_lshr_b32 s6, s6, 16")
    k.e("s_mul_i32 s47, s6, 28")
    k.e("s_sub_u32 s4, s3, s47")
    k.e(f"s_mul_i32 s5, s6, {128*7168}")
    k.e("s_lshl_b32 s47, s4, 8")
    k.e("s_add_u32 s5, s5, s47")
    XS = 160
    def ffn_issue():
        for t in range(2):
            k.e(f"s_lshr_b32 s3, s{42+t}, 4")
            k.e(f"s_mul_i32 s3, s3, {XN_RB}")
            k.e(f"s_and_b32 s47, s{42+t}, 15")
            k.e("s_lshl_b32 s47, s47, 4")
            k.e("s_add_u32 s3, s3, s47")
            k.e(f"v_mov_b32 v{28+t}, s3")
        k.e("v_lshrrev_b32 v24, 4, v0")
        k.e("v_and_b32 v25, 15, v0")
        k.e("v_cmp_eq_u32 vcc, 1, v25")
        k.e("s_lshl_b32 s3, s32, 4")
        k.e("v_add_u32 v26, s3, v24")
        k.e("v_cndmask_b32 v28, v28, v29, vcc")
        k.e("v_lshl_add_u32 v28, v24, 8, v28")
        k.e("v_mul_u32_u24 v26, 7168, v26")
        k.e("v_lshlrev_b32 v24, 1, v24")
        k.e("v_xor_b32 v24, v24, v25")
        k.e("v_xor_b32 v25, 8, v24")
        k.e("v_lshl_add_u32 v24, v24, 4, v26")
        k.e("v_lshl_add_u32 v25, v25, 4, v26")
        k.e("s_lshl_b32 s3, s6, 12")
        for q in range(4):
            k.e(f"buffer_load_dwordx4 {A(XS+4*q,4)}, v28, s[20:23], s3 offen offset:{q*1024} sc1")
        ops = []
        for m, srd in enumerate((24, 68)):
            for h in range(2):
                for q in range(4):
                    pre = [f"s_add_u32 m0, s54, {m*32768 + h*16384}"] if q == 0 else []
                    ops.append((pre + [f"s_add_u32 s3, s5, {h*64*7168 + q*27648}"],
                                f"buffer_load_dwordx4 v{24 + (q >> 1)}, {S(srd,4)}, s3 offen offset:{q*1024}{ffn_ld} lds"))
        return ops
    def ffn_finish():
        k.e("v_lshrrev_b32 v24, 4, v0")
        k.e("v_bfe_u32 v25, v0, 2, 2")
        k.e("v_lshl_add_u32 v26, v24, 3, v25")
        k.e("v_lshlrev_b32 v26, 8, v26")
        k.e("v_and_b32 v27, 3, v0")
        k.e("v_lshl_add_u32 v26, v27, 3, v26")
        k.e("v_and_b32 v27, 1, v24")
        k.e("v_lshl_add_u32 v25, v27, 2, v25")
        k.e("s_lshl_b32 s3, s32, 1")
        k.e("v_xor_b32 v25, s3, v25")
        k.e("v_lshl_add_u32 v26, v25, 5, v26")
        k.e("s_sub_u32 s3, s54, s44")
        k.e("v_add_u32 v26, s3, v26")
        k.e("v_xor_b32 v27, 32, v26")
        k.e("s_waitcnt vmcnt(8) lgkmcnt(0)")
        k.e("s_barrier")
        for m in range(2):
            for q in range(4):
                for j in range(2):
                    for rd in range(2):
                        k.e(f"ds_read_b64_tr_b16 {V(128 + 32*m + 8*q + 4*j + 2*rd, 2)}, v{26+j} offset:{m*32768 + q*8192 + rd*1024}", tag=f'f{m}')
        k.e("v_and_b32 v25, 15, v0")
        k.e("v_mul_u32_u24 v28, 14336, v25")
        k.e("v_lshl_add_u32 v28, v24, 4, v28")
        k.e(f"v_mov_b32 v29, {BIG}")
        k.e("v_cmp_gt_u32 vcc, 2, v25")
        k.e(f"s_mul_i32 s3, s6, {4*14336}")
        k.e("s_lshl_b32 s47, s4, 9")
        k.e("s_add_u32 s3, s3, s47")
        k.e("v_cndmask_b32 v28, v29, v28, vcc")
        k.e("s_lshl_b32 s47, s32, 7")
        k.e("s_add_u32 s3, s3, s47")
        k.e(f"s_add_u32 s3, s3, {WS_HP}")
        k.e(f"s_add_u32 s7, s3, {2*14336}")
        for m in range(2):
            k.wait_ds(f'f{m}')
            for q in range(4):
                for j in range(2):
                    d = V(224 + 8 * m + 4 * j, 4)
                    k.e(mfma(d, V(128 + 32*m + 8*q + 4*j, 4), A(XS + 4*q, 4), d if q else "0"))
        for m in range(2):
            for j in range(2):
                k.e(f"buffer_store_dwordx4 {V(224 + 8*m + 4*j, 4)}, v28, s[20:23], s{7 if m else 3} offen offset:{j*64} sc1")

    def kread(reg, off, kb):
        return [f"ds_read_b128 {A(FR(kb,s_),4)}, v{reg} offset:{off + (kb*4+s_)*1024}" for s_ in range(4)]
    def vread(reg, off, vg):
        return [f"ds_read_b128 {A(FR(vg,j),4)}, v{reg} offset:{off + (vg*4+j)*1024}" for j in range(4)]
    def qk_mfmas(par, nq, zero=False):
        out = []
        for kb in range(4):
            grp = []
            for qb in range(nq):
                d = V(Sr(par, qb, kb), 4)
                for s_ in range(4):
                    c = d if s_ else ("0" if zero else V(NEGM + 4 * qb, 4))
                    grp.append(mfma(d, A(FR(kb, s_), 4), A(Q(qb, s_), 4), c))
            out.append(grp)
        return out
    def pv_mfmas(par, nq):
        out = []
        for vg in range(4):
            grp = []
            for dd in range(2):
                for qb in range(nq):
                    for ks in range(2):
                        o = A(O(qb, 2 * vg + dd), 4)
                        grp.append(mfma(o, A(FR(vg, 2 * dd + ks), 4), V(P(par, qb, ks), 4), o))
            if vg < nq:
                for ks in range(2):
                    l = V(LS + 4 * vg, 4)
                    grp.append(mfma(l, V(ONES, 4), V(P(par, vg, ks), 4), l))
            out.append(grp)
        return out
    def sm_pairs(par, nq, ks):
        out = []
        for kq in range(2):
            for qb in range(nq):
                s0 = Sr(par, qb, 2 * ks + kq)
                for h in range(2):
                    out.append((s0 + 2 * h, s0 + 2 * h + 1, P(par, qb, ks) + 2 * kq + h))
        return out
    class SM:
        def __init__(self, pairs, first, check):
            self.pairs = pairs; self.ne = 0; self.nc = 0; self.no = 0; self.first = first
            self.tail = [f"v_and_b32 v{T0}, 0x40004000, v{ORR}", f"v_cmp_ne_u32 vcc, 0, v{T0}"] if check else []
            self.e_done = 0; self.extra = []
        def tick(self): self.e_done = self.ne
        def exp_ready(self): return self.ne < 2 * len(self.pairs) and self.ne // 2 - self.nc < 4
        def exp(self):
            j, h = self.ne // 2, self.ne & 1; self.ne += 1
            return f"v_exp_f32 v{ET + 2*(j % 4) + h}, v{self.pairs[j][h]}"
        def plain_avail(self):
            n = min(self.e_done // 2, len(self.pairs)) - self.nc
            n += self.nc // 2 - self.no
            if self.no == len(self.pairs) // 2: n += len(self.tail)
            return n + len(self.extra)
        def plain(self):
            if self.nc < min(self.e_done // 2, len(self.pairs)):
                j = self.nc; self.nc += 1
                return f"v_cvt_pk_bf16_f32 v{self.pairs[j][2]}, v{ET + 2*(j % 4)}, v{ET + 2*(j % 4) + 1}"
            if self.no < self.nc // 2:
                j = self.no; self.no += 1
                a, b = self.pairs[2 * j][2], self.pairs[2 * j + 1][2]
                if self.first and j == 0: return f"v_or_b32 v{ORR}, v{a}, v{b}"
                return f"v_or3_b32 v{ORR}, v{ORR}, v{a}, v{b}"
            if self.no == len(self.pairs) // 2 and self.tail: return self.tail.pop(0)
            if self.extra: return self.extra.pop(0)
            return None
        def left_exp(self): return 2 * len(self.pairs) - self.ne
        def left_plain(self): return len(self.pairs) - self.nc + len(self.pairs) // 2 - self.no + len(self.tail) + len(self.extra)
        def done(self): return self.left_exp() == 0 and self.left_plain() == 0
        def drain(self):
            while not self.done():
                self.tick()
                if self.exp_ready():
                    k.e(self.exp())
                    if self.exp_ready(): k.e(self.exp())
                    x = self.plain()
                    if x: k.e(x)
                else:
                    k.e(self.plain())
    def phase(groups, gtags, reads, rtags, sm, vm, nexttag):
        total = sum(len(g) for g in groups)
        vmpos = {}
        if vm:
            step = max(2, (total - 2) // len(vm))
            for j, x in enumerate(vm): vmpos[1 + j * step] = x
        n = 0
        k.wait_ds(gtags[0])
        for gi, grp in enumerate(groups):
            rq = list(reads[gi])
            for mi, m in enumerate(grp):
                k.e(m)
                sm.tick()
                scal = []
                if n + 1 in vmpos: scal += vmpos[n + 1][0]
                lastm = mi == len(grp) - 1
                if n in vmpos:
                    for s in scal: k.e(s)
                    k.e(vmpos[n][1], tag='kv')
                    slots = 0
                else:
                    for s in scal: k.e(s)
                    if lastm:
                        nt = gtags[gi + 1] if gi + 1 < len(groups) else nexttag
                        if nt: k.wait_ds(nt)
                    slots = 2
                    gaps_left = len([x for x in range(n, n + len(grp) - mi) if x not in vmpos])
                    want_d = len(rq) > 0 and (sm.plain_avail() > 0 or not sm.exp_ready() or len(rq) >= gaps_left - 1)
                    if want_d:
                        k.e(rq.pop(0), tag=rtags[gi]); slots -= 1
                        if rq and (sm.plain_avail() == 0 or len(rq) >= gaps_left):
                            k.e(rq.pop(0), tag=rtags[gi]); slots -= 1
                    if slots == 2 and sm.exp_ready() and not (sm.plain_avail() >= 3 and not rq):
                        k.e(sm.exp()); slots = 0
                    while slots > 0:
                        x = sm.plain()
                        if not x: break
                        k.e(x); slots -= 1
                if lastm:
                    for s in rq: k.e(s, tag=rtags[gi])
                    nt = gtags[gi + 1] if gi + 1 < len(groups) else nexttag
                    if nt: k.wait_ds(nt)
                n += 1
        sm.drain()

    def mask_block(par, q0, vr):
        k.e("s_nop 7")
        k.e("s_add_u32 s3, s37, 1")
        k.e("s_lshl_b32 s3, s3, 6")
        k.e(f"v_subrev_u32 v{T0}, s3, v{vr}")
        for c in range(-1, 4):
            for r in range(4): k.e(f"v_cmp_gt_i32 s[{56+2*r}:{57+2*r}], {16*c + r}, v{T0}")
            for qq in range(2):
                kb = c + qq
                if 0 <= kb < 4:
                    for r in range(4):
                        x = Sr(par, q0 + qq, kb) + r
                        k.e(f"v_cndmask_b32 v{x}, v{x}, v{NINF}, s[{56+2*r}:{57+2*r}]")
        k.e("s_nop 1")
    def rowmax(par, qb, d):
        s0 = Sr(par, qb, 0)
        k.e(f"v_max3_f32 v{d}, v{s0}, v{s0+1}, v{s0+2}")
        for r in range(3, 15, 2): k.e(f"v_max3_f32 v{d}, v{d}, v{s0+r}, v{s0+r+1}")
        k.e(f"v_max_f32 v{d}, v{d}, v{s0+15}")
        k.e(f"v_mov_b32 v{T0}, v{d}")
        k.e(f"v_permlane16_swap_b32 v{T0}, v{d}")
        k.e(f"v_max_f32 v{d}, v{d}, v{T0}")
        k.e(f"v_mov_b32 v{T0}, v{d}")
        k.e(f"v_permlane32_swap_b32 v{T0}, v{d}")
        k.e(f"v_max_f32 v{d}, v{d}, v{T0}")
        k.e(f"v_add_f32 v{d}, {opt.get('moff', '0x41f80000')}, v{d}")
    def fallback(par, nq, nqn):
        k.e("s_nop 7")
        for qb in range(nq):
            rowmax(par, qb, 21)
            k.e("v_max_f32 v21, 0, v21")
            for r in range(16): k.e(f"v_sub_f32 v{Sr(par,qb,0)+r}, v{Sr(par,qb,0)+r}, v21")
            if qb < nqn:
                for r in range(16): k.e(f"v_sub_f32 v{Sr(par^1,qb,0)+r}, v{Sr(par^1,qb,0)+r}, v21")
            for r in range(4): k.e(f"v_sub_f32 v{NEGM+4*qb+r}, v{NEGM+4*qb+r}, v21")
            k.e("v_exp_f32 v22, -v21")
            for r in range(4): k.e(f"v_mul_f32 v{LS+4*qb+r}, v{LS+4*qb+r}, v22")
            for r0 in range(0, 32, 8):
                for r in range(8): k.e(f"v_accvgpr_read_b32 v{ET+r}, a{O(qb,0)+r0+r}")
                for r in range(8): k.e(f"v_mul_f32 v{ET+r}, v{ET+r}, v22")
                for r in range(8): k.e(f"v_accvgpr_write_b32 a{O(qb,0)+r0+r}, v{ET+r}")
        for ks in range(2):
            for (s0, s1, pd) in sm_pairs(par, nq, ks):
                k.e(f"v_exp_f32 v{ET}, v{s0}")
                k.e(f"v_exp_f32 v{ET+1}, v{s1}")
                k.e(f"v_cvt_pk_bf16_f32 v{pd}, v{ET}, v{ET+1}")
        k.e("s_nop 1")
    SPLIT = {4: (32, 16, 8), 2: (17, 8, 4), 0: (0, 0, 0)}
    def tile_sm(par, nq, start, check):
        sm = SM(sm_pairs(par, nq, 0) + sm_pairs(par, nq, 1), True, check)
        sm.ne, sm.nc, sm.no = start; sm.e_done = sm.ne
        return sm
    def pack(ngaps, vmg, dsl, sm, limit, last_sm, pre):
        plan = {}
        dsl = list(dsl)
        def exp_ok(): return sm.exp_ready() and (limit is None or sm.ne < limit[0])
        def plain_n():
            n = min(sm.e_done // 2, len(sm.pairs), limit[1] if limit else 1 << 30) - sm.nc
            n += min(sm.nc // 2, limit[2] if limit else 1 << 30) - sm.no
            if limit is None and sm.no == len(sm.pairs) // 2: n += len(sm.tail)
            return n + len(sm.extra)
        def take_plain():
            if limit is not None:
                c_ok = sm.nc < min(sm.e_done // 2, limit[1]); o_ok = sm.no < min(sm.nc // 2, limit[2])
                if not c_ok and not o_ok: return sm.extra.pop(0) if sm.extra else None
                if not c_ok:
                    keep = sm.e_done; sm.e_done = 2 * sm.nc; x = sm.plain(); sm.e_done = keep; return x
            return sm.plain()
        for g in range(-1 if pre else 0, ngaps):
            if g in vmg: sm.tick(); continue
            sm.tick()
            ops = []
            smok = g <= last_sm
            av = [d for d in dsl if d[2] <= g]
            free_to = lambda dl: len([x for x in range(g, dl + 1) if x not in vmg])
            urgent = any(sum(1 for d in dsl if d[3] <= e[3]) >= 2 * free_to(e[3]) - 1 for e in av)
            pn = plain_n() if smok else 0
            if smok and exp_ok() and not urgent and not (av and pn) and not (pn >= 3):
                ops.append((sm.exp(), None))
            else:
                slots = 2
                if av and g >= 0:
                    d = av.pop(0); dsl.remove(d); ops.append((d[0], d[1])); slots -= 1
                    if av and (pn == 0 or sum(1 for x in dsl if x[3] <= av[0][3]) >= 2 * free_to(av[0][3]) - 1):
                        d = av.pop(0); dsl.remove(d); ops.append((d[0], d[1])); slots -= 1
                while slots and smok:
                    x = take_plain()
                    if not x: break
                    ops.append((x, None)); slots -= 1
                if not ops and smok and exp_ok(): ops.append((sm.exp(), None))
            plan[g] = ops
            if g == last_sm:
                while (limit is None and not sm.done()) or (limit is not None and ((sm.ne, sm.nc, sm.no) != limit or sm.extra)):
                    sm.tick()
                    x = sm.exp() if exp_ok() else take_plain()
                    plan[g].append((x, None)); k.overflow += 1
        assert not dsl, dsl
        return plan
    k.overflow = 0
    SLK = int(opt.get('slk', -1))
    def emit_phase(mf, plan, vmg, scal):
        for s_, tg in plan.get(-1, []): k.e(s_, tag=tg)
        for g, m in enumerate(mf):
            k.e(m)
            for x in scal.get(g, []):
                if isinstance(x, tuple): k.wait_ds(x[1])
                elif x.endswith(':'): k.label(x[:-1])
                else: k.e(x)
            if g in vmg: k.e(vmg[g], tag='kv')
            else:
                for s_, tg in plan.get(g, []): k.e(s_, tag=tg)
    def starts(groups):
        out = [0]
        for g in groups: out.append(out[-1] + len(g))
        return out
    def iteration(par, nq, nqn, maskq0, name, tail):
        kreg, koff = (VX, 32768) if par == 0 else (VY, 0)
        vreg, voff = (VX, 16384) if par == 0 else (VX, 49152)
        nreg, noff = (VY, 0) if par == 0 else (VY, 32768)
        k.hot = True
        ov0 = k.overflow
        k.dq = ['k1'] * 4
        fb, fr = f"L_k2_fb_{name}", f"L_k2_fbr_{name}"
        ool.append((fb, lambda: fallback(par, nq, nqn), fr))
        sm = tile_sm(par, nq, SPLIT[nq], True)
        if par == 0:
            k.e(f"v_xor_b32 v{VX}, 65536, v{VX}")
            k.e(f"v_xor_b32 v{VY}, 65536, v{VY}")
        if nqn:
            if nqn == 4 and WARM: sm.extra = ["v_lshl_add_u64 v[28:29], s[40:41], 0, v[28:29]"]
            grp = qk_mfmas(par ^ 1, nqn); st_ = starts(grp); n1 = st_[-1]
            slack = SLK if nqn == 2 else 6
            dsl = [(x, 'k2', 0, st_[1] + slack) for x in kread(kreg, koff, 2)] + [(x, 'k3', 0, st_[2] + slack) for x in kread(kreg, koff, 3)] + \
                  [(x, 'v0', st_[1], st_[3] + slack) for x in vread(vreg, voff, 0)] + [(x, 'v1', st_[2], n1 - 1) for x in vread(vreg, voff, 1)]
            scal = {st_[1] - 1: [('w', 'k1')], st_[2] - 1: [('w', 'k2')], st_[3] - 1: [('w', 'k3')],
                    n1 - 5: [f"s_cmp_ge_u32 s37, s{45 if maskq0 == 0 else 46}"], n1 - 4: ["s_waitcnt vmcnt(12)"], n1 - 3: ["s_barrier"],
                    n1 - 2: [('w', 'v0')], n1 - 1: [f"s_cbranch_vccnz {fb}", fr + ":"]}
            if nq == 2:
                scal[n1 - 7] = ["s_cmp_lt_u32 s37, s52"]
                scal[n1 - 6] = [f"s_cbranch_scc1 L_nw_{name}", "s_waitcnt vmcnt(12)", f"L_nw_{name}:"]
                del scal[n1 - 4]
            vmg = {}
            step = (n1 - 8) / 4
            for j in range(4):
                q = int(1 + j * step)
                while q in scal or (j == 0 and q - 1 in scal): q += 1
                vmg[q] = f"buffer_load_dwordx4 v{VDMA}, s[12:15], s38 offen offset:{j*1024}{kv_ld} lds"
                if j == 0: scal[q - 1] = ["s_mov_b32 m0, s53" if par == 0 else "s_add_u32 m0, s53, 32768"]
            plan = pack(n1, vmg, dsl, sm, None, n1 - 2, par == 1)
            emit_phase(sum(grp, []), plan, vmg, scal)
        else:
            k.e("s_waitcnt lgkmcnt(0)")
            for s in vread(vreg, voff, 0): k.e(s, tag='v0')
            for s in vread(vreg, voff, 1): k.e(s, tag='v1')
            k.hot = False
            for pre, ld in ffn_issue():
                for x in pre: k.e(x)
                k.e(ld)
                for _ in range(2):
                    sm.tick()
                    if sm.exp_ready(): k.e(sm.exp())
                    elif not sm.done(): k.e(sm.plain())
            sm.drain()
            k.wait_ds('v0')
            k.hot = True
            k.e(f"s_cbranch_vccnz {fb}")
            k.label(fr)
        grp = pv_mfmas(par, nq); st_ = starts(grp); n2 = st_[-1]
        slack = SLK if nq == 2 else 6
        dsl = [(x, 'v2', 0, st_[1] + slack) for x in vread(vreg, voff, 2)] + [(x, 'v3', 0, st_[2] + slack) for x in vread(vreg, voff, 3)]
        scal = {st_[1] - 1: [('w', 'v1')], st_[2] - 1: [('w', 'v2')], st_[3] - 1: [('w', 'v3')]}
        vmg = {}
        if nqn:
            dsl += [(x, 'k0', st_[1], st_[3] + slack - 1) for x in kread(nreg, noff, 0)] + [(x, 'k1', st_[2], n2 - 2) for x in kread(nreg, noff, 1)]
            mb, mr = f"L_k2_mk_{name}", f"L_k2_mkr_{name}"
            ool.append((mb, lambda: mask_block(par ^ 1, maskq0, VRA if maskq0 == 0 else VRB), mr))
            scal[0] = [f"s_cbranch_scc1 {mb}", mr + ":"]
            scal[n2 - 2] = [('w', 'k0')]
            if len(tail) == 2: scal[n2 - 3] = [tail[0]]
            if tail: scal[n2 - 1] = [tail[-1]]
            mv = "s_add_u32 m0, s54, 49152" if par == 0 else "s_add_u32 m0, s53, 16384"
            vm = [f"buffer_load_dwordx4 v{VDMA}, s[12:15], s39 offen offset:{j*1024}{kv_ld} lds" for j in range(4)]
            if nqn == 4 and WARM: vm.append("global_load_dword v30, v[28:29], off")
            step = (n2 - 4) / len(vm)
            pos = []
            for j in range(len(vm)):
                q = int(2 + j * step)
                while q in scal or q in vmg or (j == 0 and q - 1 in scal): q += 1
                vmg[q] = vm[j]; pos.append(q)
                if j == 0: scal[q - 1] = [mv]
            def put(x, lo):
                q = lo
                while q in scal or q in vmg: q += 1
                assert q < n2 - 3, (x, q)
                scal[q] = [x]
            put("s_add_u32 s37, s37, 1", 1)
            put(f"s_add_u32 s38, s38, {KV_TILE}", 1)
            if par == 1:
                put("s_xor_b32 s53, s53, 65536", pos[0]); put("s_xor_b32 s54, s54, 65536", pos[0])
            put(f"s_add_u32 s39, s39, {KV_TILE}", pos[3] + 1)
        sm = tile_sm(par ^ 1, nqn, (0, 0, 0), False)
        plan = pack(n2 - 1 if tail else n2, vmg, dsl, sm, SPLIT[nqn], n2 - 2 if tail else n2 - 1, False)
        emit_phase(sum(grp, []), plan, vmg, scal)
        print(f"iteration {name}: overflow ops {k.overflow - ov0}")
        k.hot = False
    def epilogue(q0, srow):
        k.e(f"s_lshl_b32 s3, s{srow}, 20")
        k.e("s_lshl_b32 s47, s33, 15")
        k.e("s_add_u32 s3, s3, s47")
        k.e("s_lshl_b32 s47, s32, 11")
        k.e("s_add_u32 s3, s3, s47")
        k.e("v_lshlrev_b32 v23, 4, v0")
        for qq in range(2):
            k.e(f"v_rcp_f32 v{21+qq}, v{LS+4*(q0+qq)}")
        for s_ in range(4):
            for qq in range(2):
                o = O(q0 + qq, 2 * s_)
                d = 24 + 4 * qq
                for r in range(8): k.e(f"v_accvgpr_read_b32 v{240+r}, a{o+r}")
                for r in range(8): k.e(f"v_mul_f32 v{240+r}, v{240+r}, v{21+qq}")
                for r in range(4): k.e(f"v_cvt_pk_bf16_f32 v{d+r}, v{240+2*r}, v{240+2*r+1}")
                k.e(f"buffer_store_dwordx4 {V(d,4)}, v23, s[16:19], s3 offen offset:{qq*1024}{opt.get('ctx_st',' sc1')}")
            if s_ < 3: k.e("s_add_u32 s3, s3, 8192")

    k.e("s_sub_u32 s55, 15, s34")
    k.e("s_sub_u32 s45, s36, 3")
    k.e("s_sub_u32 s46, s35, 3")
    k.e("s_max_i32 s46, s46, 0")
    k.e("s_mov_b32 s53, s44")
    k.e("s_add_u32 s54, s44, 65536")
    k.wait_vm('c18')
    k.e("s_barrier")
    k.stamp(ST)
    for kb in range(2):
        for s in kread(VX, 0, kb): k.e(s, tag=f'k{kb}')
    sm = SM([], False, False)
    sm.extra = [f"v_accvgpr_write_b32 a{r}, 0" for r in range(128)]
    phase(qk_mfmas(0, 4, zero=True), ['k0', 'k1', 'k2', 'k3'],
          [kread(VX, 0, 2), kread(VX, 0, 3), kread(VX, 32768, 0), kread(VX, 32768, 1)], ['k2', 'k3', 'n0', 'n1'], sm, [], None)
    k.e("s_barrier")
    k.e(f"s_mov_b32 s38, {4*KV_TILE}")
    k.e(f"s_mov_b32 s39, {3*KV_TILE + KV_CH}")
    k.e("s_mov_b32 s37, -1")
    k.e("s_cmp_lg_u32 s34, 0")
    k.e("s_cbranch_scc1 L_k2_nomask0")
    mask_block(0, 2, VRB)
    k.label("L_k2_nomask0")
    k.e("s_mov_b32 s37, 0")
    k.e("s_nop 7")
    for qb in range(4):
        rowmax(0, qb, 21)
        for r in range(16): k.e(f"v_sub_f32 v{Sr(0,qb,0)+r}, v{Sr(0,qb,0)+r}, v21")
        for r in range(4): k.e(f"v_sub_f32 v{NEGM+4*qb+r}, 0, v21")
    SM(sm_pairs(0, 4, 0), True, False).drain()
    k.stamp(ST)

    k.e(f"v_swap_b32 v{VX}, v{VY}")
    k.e("s_waitcnt lgkmcnt(4)")
    k.e("s_sub_u32 s35, s35, 1")
    k.e("s_sub_u32 s36, s36, 1")
    k.label("L_k2_wloop")
    iteration(0, 4, 4, 2, "we", ["s_cmp_eq_u32 s37, s35", "s_cbranch_scc1 L_k2_trans"])
    iteration(1, 4, 4, 2, "wo", ["s_branch L_k2_wloop"])
    k.label("L_k2_trans")
    iteration(1, 4, 2, 0, "tr", [])
    k.stamp(ST)
    k.e("s_waitcnt vmcnt(8)")
    epilogue(2, 34)
    k.e("s_add_u32 s52, s37, 2")
    k.e("s_waitcnt vmcnt(8)")
    k.stamp(ST)
    k.label("L_k2_nloop")
    nl0 = len(k.lines)
    iteration(0, 2, 2, 0, "ne", ["s_cmp_eq_u32 s37, s36", "s_cbranch_scc1 L_k2_fin"])
    iteration(1, 2, 2, 0, "no", ["s_branch L_k2_nloop"])
    if 'dbg_drop' in opt:
        drop = tuple(opt['dbg_drop'].split(','))
        k.lines[nl0:] = [x for x in k.lines[nl0:] if not x.strip().startswith(drop) and 'vccnz' not in x]
    k.label("L_k2_fin")
    if '4' in CPF: emit(code_prefetch("oproj_kernel", "L_k3_end", 32, 56, 160, 164))
    iteration(1, 2, 0, 0, "fi", [])
    k.stamp(ST)
    k.e("s_nop 7")
    epilogue(0, 55)
    k.e("s_cmp_eq_u32 s34, 7")
    k.e("s_cbranch_scc1 L_noffn1")
    ffn_finish()
    k.label("L_noffn1")
    k.stamp(ST)
    k.stamp_dump('stamp' in opt, 66, 0, 32)
    k.label("L_k2_end")
    k.e("s_endpgm")
    for lab, fn, ret in ool:
        k.label(lab)
        k.win = []
        fn()
        k.e(f"s_branch {ret}")
    return k.wrap(256, 256), f"; @launch kernel=front_kernel grid=(256,1,1) block=(256,1,1) lds={K12_LDS}"
```

```python
from fw import *
from layout import *

K3_LDS = 131072 + 4096

def rbf2(k, a, b, t):
    k.e(f"v_cvt_pk_bf16_f32 v{t}, v{a}, v{b}")
    k.e(f"v_lshlrev_b32 v{a}, 16, v{t}")
    k.e(f"v_and_b32 v{b}, 0xffff0000, v{t}")

def silu_n(k, regs, tmps):
    for r, t in zip(regs, tmps): k.e(f"v_mul_f32 v{t}, 0xbfb8aa3b, v{r}")
    for r, t in zip(regs, tmps): k.e(f"v_exp_f32 v{t}, v{t}")
    for r, t in zip(regs, tmps): k.e(f"v_add_f32 v{t}, 1.0, v{t}")
    for r, t in zip(regs, tmps): k.e(f"v_rcp_f32 v{t}, v{t}")
    for r, t in zip(regs, tmps): k.e(f"v_mul_f32 v{r}, v{r}, v{t}")

def gen_k3(opt):
    k = Asm("oproj_kernel")
    ST = 'stamp' in opt
    VC, VW, TA, VO, VROW = 2, 4, 5, 9, 10
    XP, STT, GT = 16, 32, 40
    ACC = lambda rb, cb: 128 + (rb * 4 + cb) * 4
    CF = lambda n, rb: (n % 4) * 32 + rb * 4
    WF = lambda n, cb: 128 + (n & 1) * 16 + cb * 4
    k.e("s_cmp_ge_u32 s2, 256")
    k.e("s_cbranch_scc1 L_k3_end")
    k.stamp(ST)
    k.e("s_load_dwordx2 s[4:5], s[0:1], 40")
    k.e("s_load_dwordx2 s[40:41], s[0:1], 0")
    k.e("s_load_dwordx4 s[44:47], s[0:1], 80")
    k.e("s_load_dwordx4 s[56:59], s[0:1], 96")
    k.e("v_lshrrev_b32 v1, 6, v0")
    k.e(f"v_lshrrev_b32 v{VROW}, 3, v0")
    k.e("v_and_b32 v0, 63, v0")
    k.e("v_readfirstlane_b32 s32, v1")
    k.e("s_bfe_u32 s33, s2, 0x20001")
    k.e("s_lshl_b32 s33, s33, 2")
    k.e("s_bfe_u32 s3, s2, 0x20003")
    k.e("s_add_u32 s33, s33, s3")
    k.e("s_and_b32 s34, s2, 1")
    k.e("s_lshl_b32 s34, s34, 3")
    k.e("s_lshr_b32 s3, s2, 5")
    k.e("s_add_u32 s34, s34, s3")
    for j in range(4): k.e(f"s_mov_b32 s{48+j}, {j*15360}")
    k.e("s_lshl_b32 s35, s32, 15")
    k.e(f"v_lshlrev_b32 v{VC}, 4, v0")
    k.e(f"v_add_u32 v{VC+1}, 4096, v{VC}")
    k.e("v_lshrrev_b32 v12, 4, v0")
    k.e("v_and_b32 v13, 7, v0")
    k.e("v_lshrrev_b32 v14, 3, v0")
    k.e("v_lshlrev_b32 v1, 1, v12")
    k.e("v_xor_b32 v1, v1, v13")
    k.e("v_lshlrev_b32 v1, 4, v1")
    k.e(f"v_lshl_add_u32 v{VW}, v14, 11, v1")
    k.e("v_lshrrev_b32 v1, 2, v0")
    k.e("v_bfe_u32 v11, v0, 3, 2")
    k.e("v_lshlrev_b32 v1, 7, v1")
    k.e("v_and_b32 v15, 3, v0")
    k.e("v_lshl_add_u32 v1, v15, 3, v1")
    k.e("v_add_u32 v1, s35, v1")
    for cb in range(4):
        k.e(f"v_xor_b32 v15, {cb}, v11")
        k.e(f"v_lshl_add_u32 v{TA+cb}, v15, 5, v1")
    k.e(f"v_lshlrev_b32 v{VO}, 11, v{VROW}")
    k.e(f"v_lshl_add_u32 v{VO}, v13, 4, v{VO}")
    if '3' in opt.get('cpf', '1234'):
        for x in code_prefetch("oproj_kernel", "L_k3_end", 32, 64, 124, 127):
            if x.endswith(':'): k.label(x[:-1])
            else: k.e(x, tag='cpf')
    PFC, PFW = 120, 121
    G = int(opt.get('k3_g', 4))
    k.e("s_lshr_b32 s3, s2, 5")
    k.e(f"s_mul_i32 s3, s3, {G*1024}")
    k.e(f"v_lshlrev_b32 v{PFC}, 7, v0")
    k.e(f"v_add_u32 v{PFC}, s3, v{PFC}")
    k.e("s_bfe_u32 s3, s2, 0x20003")
    k.e(f"s_mul_i32 s3, s3, {G*8*2048}")
    k.e(f"v_lshlrev_b32 v{PFW}, 11, v0")
    k.e(f"v_add_u32 v{PFW}, s3, v{PFW}")
    if G < 8:
        k.e(f"v_cmp_gt_u32 vcc, {G*8}, v0")
        k.e("v_mov_b32 v1, 0x7ff00000")
        k.e(f"v_cndmask_b32 v{PFC}, v1, v{PFC}, vcc")
        k.e(f"v_cndmask_b32 v{PFW}, v1, v{PFW}, vcc")
    k.e("s_waitcnt lgkmcnt(0)")
    k.e("s_lshl_b32 s3, s33, 20")
    k.e("s_lshl_b32 s62, s32, 18")
    k.e("s_add_u32 s3, s3, s62")
    k.e(f"s_add_u32 s3, s3, {WS_CTX}")
    k.srd(8, 58, 262144, "s3")
    k.e("s_lshl_b32 s62, s34, 7")
    k.e("s_lshl_b32 s3, s32, 21")
    k.e("s_add_u32 s3, s3, s62")
    k.srd(12, 4, 0, "s3")
    k.e("s_sub_u32 s14, 2097152, s62")
    if 'dbg_now' in opt: k.e("s_mov_b32 s14, 0")
    if 'dbg_noc' in opt: k.e("s_mov_b32 s10, 0")
    wo_ld, ctx_ld = opt.get('wo_ld', ''), opt.get('ctx_ld', '')
    def pf_ops():
        return [('g', f"buffer_load_dword v122, v{PFW}, s[12:15], 0 offen{opt.get('wopf_ld', '')}"),
                ('g', f"buffer_load_dword v122, v{PFC}, s[8:11], 0 offen"),
                ('v', f"v_add_u32 v{PFW}, {G*65536}, v{PFW}"), ('v', f"v_add_u32 v{PFC}, {G*8192}, v{PFC}")]
    ROT = int(opt.get('k3_rot', 4))
    k.e("s_bfe_u32 s3, s2, 0x20003")
    k.e(f"s_mul_i32 s3, s3, {max(ROT // 4, 1)}")
    k.e("s_lshr_b32 s62, s2, 5")
    k.e(f"s_mul_i32 s62, s62, {max(ROT // 8, 1)}")
    k.e("s_add_u32 s5, s3, s62")
    k.e(f"v_mov_b32 v123, v{VW}")
    STG = int(opt.get('k3_stg', 0))
    k.e(f"s_mul_i32 s6, s32, {STG}")
    k.e("s_sub_u32 s6, 32, s6")
    def kpos(n, dst, sh):
        if 'dbg_hit' in opt: n &= 3
        if STG:
            return [('s', f"s_add_u32 s7, s6, {n}"), ('s', f"s_add_u32 s{dst}, s7, s5"), ('s', f"s_and_b32 s7, s7, {31 & ~(ROT-1)}"),
                    ('s', f"s_and_b32 s{dst}, s{dst}, {ROT-1}"), ('s', f"s_or_b32 s{dst}, s{dst}, s7"), ('s', f"s_lshl_b32 s{dst}, s{dst}, {sh}")]
        return [('s', f"s_add_u32 s{dst}, s5, {n}"), ('s', f"s_and_b32 s{dst}, s{dst}, {ROT-1}"),
                ('s', f"s_or_b32 s{dst}, s{dst}, {n & ~(ROT-1)}"), ('s', f"s_lshl_b32 s{dst}, s{dst}, {sh}")]
    for t, s_ in kpos(0, 4, 16) + kpos(0, 63, 13): k.e(s_)
    k.e(f"v_add_u32 v{VW}, s4, v123")
    def w_ops(n):
        if n >= 32: return []
        return ([('s', f"s_add_u32 m0, s35, {(n % 4)*4096}")] +
                [('g', f"buffer_load_dwordx4 v{VW}, s[12:15], s{48+j} offen offset:{j*1024}{wo_ld} lds") for j in range(4)] +
                kpos(n + 1, 4, 16) + [('v', f"v_add_u32 v{VW}, s4, v123")])
    def c_ops(n):
        if n >= 32: return []
        return ([('g', f"buffer_load_dwordx4 {A(CF(n,rb),4)}, v{VC + (rb >> 2)}, s[8:11], s63 offen offset:{(rb & 3)*1024}{ctx_ld}") for rb in range(8)] +
                kpos(n + 1, 63, 13))
    def wreads(n):
        return [[f"ds_read_b64_tr_b16 {A(WF(n,cb)+2*rd,2)}, v{TA+cb} offset:{(n % 4)*4096 + rd*2048}" for rd in range(2)] for cb in range(4)]
    PF0 = int(opt.get('k3_pf0', 0))
    PFL = int(opt.get('k3_pfl', 0))
    npf = 0
    for _ in range(PF0):
        for t, s in pf_ops(): k.e(s, tag='pf')
        npf += 1
    for t, s in w_ops(0): k.e(s, tag='w0')
    for n in range(3):
        for t, s in w_ops(n + 1): k.e(s, tag=f'w{n+1}')
        for t, s in c_ops(n): k.e(s, tag=f'c{n}')
    for _ in range(PFL):
        for t, s in pf_ops(): k.e(s, tag='pf')
        npf += 1
    k.stamp(ST)

    b = Rec()
    def srd_rec(d, base, nbytes):
        b.e(f"s_mov_b32 s{d}, s{base}"); b.e(f"s_and_b32 s{d+1}, s{base+1}, 0xffff")
        b.e(f"s_mov_b32 s{d+2}, {nbytes}"); b.e(f"s_mov_b32 s{d+3}, 0x20000")
    k.e(f"s_add_u32 s60, s58, {WS_SEL}")
    k.e("s_addc_u32 s61, s59, 0")
    k.e("s_load_dwordx4 s[52:55], s[60:61], 0")
    k.srd(16, 58, 8 << 20)
    k.srd(24, 44, 7340032)
    k.e("s_lshl_b32 s36, s33, 18")
    k.e("s_lshl_b32 s3, s34, 7")
    k.e("s_add_u32 s36, s36, s3")
    k.srd(20, 40, 4194304)
    k.srd(28, 46, 4194304)
    k.srd(40, 56, 256)
    k.e("s_lshr_b32 s37, s2, 4")
    k.e("s_lshl_b32 s3, s37, 2")
    k.e("s_add_u32 s3, s3, s32")
    k.e("s_mul_i32 s38, s3, 56")
    k.e("s_and_b32 s39, s2, 15")
    HP, HV, WD, YA = 40, 52, 72, 104
    b.e("s_lshl_b32 s3, s38, 2")
    b.e(f"s_add_u32 s3, s3, {WS_HP}")
    b.e("v_mul_u32_u24 v1, 14336, v12")
    b.e("v_and_b32 v15, 15, v0")
    b.e("v_lshl_add_u32 v1, v15, 4, v1")
    for j in range(8):
        b.e(f"buffer_load_dwordx4 {V(HP+4*j,4)}, v1, s[16:19], s3 offen", tag='hp')
        if j < 7: b.e(f"s_add_u32 s3, s3, {4*14336}")
    b.e("s_lshl_b32 s3, s38, 11")
    b.e("s_lshl_b32 s62, s39, 7")
    b.e("s_add_u32 s3, s3, s62")
    b.e(f"v_mul_u32_u24 v1, {7*2048}, v14")
    b.e("v_lshl_add_u32 v1, v13, 4, v1")
    for j in range(7):
        b.e(f"buffer_load_dwordx4 {V(WD+4*j,4)}, v1, s[24:27], s3 offen offset:{(j&1)*2048}{opt.get('wd_ld','')}", tag='wd')
        if j & 1: b.e("s_add_u32 s3, s3, 4096")
    b.at(3)
    b.e("s_mov_b32 s3, s36")
    for p in range(4):
        b.e(f"buffer_load_dwordx4 {V(XP+4*p,4)}, v{VO}, s[20:23], s3 offen{opt.get('x3_ld','')}", tag='x')
        if p < 3: b.e("s_add_u32 s3, s3, 65536")
    b.e("s_lshl_b32 s3, s33, 10")
    b.e(f"s_add_u32 s3, s3, {WS_STATS}")
    b.e(f"v_lshlrev_b32 v1, 3, v{VROW}")
    for p in range(4):
        b.e(f"buffer_load_dwordx2 {V(STT+2*p,2)}, v1, s[16:19], s3 offen offset:{p*256}", tag='x')
    b.at(4)
    b.wait_vm('hp')
    for j in range(1, 8):
        for r in range(4): b.e(f"v_add_f32 v{HP+r}, v{HP+r}, v{HP+4*j+r}")
    rbf2(b, HP, HP+1, 1); rbf2(b, HP+2, HP+3, 15)
    for r in range(4): b.e(f"v_mov_b32 v{HP+4+r}, v{HP+r}")
    for r in range(4): b.e(f"v_permlane32_swap_b32 v{HP+4+r}, v{HP+r}")
    silu_n(b, [HP+4+r for r in range(4)], [HP+8+r for r in range(4)])
    rbf2(b, HP+4, HP+5, 1); rbf2(b, HP+6, HP+7, 15)
    for r in range(4): b.e(f"v_mul_f32 v{HP+r}, v{HP+r}, v{HP+4+r}")
    rbf2(b, HP, HP+1, 1); rbf2(b, HP+2, HP+3, 15)
    b.e("s_lshl_b32 s3, s32, 9")
    b.e("s_add_u32 s3, s3, 131072")
    b.e("v_and_b32 v1, 31, v0")
    b.e("v_lshl_add_u32 v1, v1, 4, s3")
    b.e("v_mul_u32_u24 v15, 28, v14")
    b.e("v_add_u32 v15, s3, v15")
    b.e(f"ds_write_b128 v1, {V(HP,4)}")
    for t in range(2):
        for j in range(7):
            b.e(f"ds_read_b32 v{HV+7*t+j}, v15 offset:{t*256+4*j}", tag='hv')
            if j == 5: b.e("s_waitcnt lgkmcnt(4)")
    b.e("v_lshrrev_b32 v1, 5, v0")
    b.e("v_lshlrev_b32 v1, 8, v1")
    b.e("v_lshl_add_u32 v1, v13, 5, v1")
    b.e("v_and_b32 v15, 1, v12")
    b.e("v_lshl_add_u32 v1, v15, 4, v1")
    b.e("v_add_u32 v1, s3, v1")
    b.wait_vm('wd')
    b.wait_ds('hv')
    for j in range(7):
        for d in range(4):
            w = WD + 4 * j + d
            b.e(f"v_lshlrev_b32 v100, 16, v{w}")
            b.e(f"v_and_b32 v101, 0xffff0000, v{w}")
            for t in range(2):
                a = YA + 8 * t + 2 * d
                op = "v_mul_f32" if j == 0 else "v_fmac_f32"
                b.e(f"{op} v{a}, v100, v{HV+7*t+j}"); b.e(f"{op} v{a+1}, v101, v{HV+7*t+j}")
    for j in range(8): b.e(f"v_permlane32_swap_b32 v{YA+j}, v{YA+8+j}")
    for j in range(8): b.e(f"v_add_f32 v{YA+j}, v{YA+j}, v{YA+8+j}")
    for j in range(4): b.e(f"v_permlane16_swap_b32 v{YA+j}, v{YA+4+j}")
    for j in range(4): b.e(f"v_add_f32 v{YA+j}, v{YA+j}, v{YA+4+j}")
    for j in range(4): b.e(f"v_add_f32_dpp v{YA+j}, v{YA+j}, v{YA+j} row_ror:8 row_mask:0xf bank_mask:0xf")
    b.e(f"ds_write_b128 v1, {V(YA,4)} offset:2048", tag='yw')
    b.e("v_lshlrev_b32 v1, 3, v0")
    b.e("v_add_u32 v15, 133120, v1")
    b.e("s_lshl_b32 s3, s39, 4")
    b.e("s_add_u32 s3, s3, s37")
    b.e("s_lshl_b32 s3, s3, 9")
    b.e(f"s_add_u32 s3, s3, {WS_YP}")
    b.blk(["s_cmp_eq_u32 s32, 0", "s_cselect_b32 s3, s3, 0x7ff00000", "s_lshl_b32 s38, s39, 4", "s_cmp_eq_u32 s32, 0",
           "s_cselect_b32 s38, s38, 0x7ff00000"])
    b.wait_ds('yw')
    b.e("s_barrier")
    for w in range(4): b.e(f"ds_read_b64 {V(YA+2*w,2)}, v15 offset:{w*512}", tag='yr')
    def gates(o, p, ysrc=None):
        g0 = GT + 8 * p
        for d in range(4):
            o.e(f"v_lshlrev_b32 v{g0+2*d}, 16, v{XP+4*p+d}")
            o.e(f"v_and_b32 v{g0+2*d+1}, 0xffff0000, v{XP+4*p+d}")
        for e_ in range(8): o.e(f"v_sub_f32 v{g0+e_}, v{g0+e_}, v{STT+2*p}")
        for d in range(4): rbf2(o, g0 + 2*d, g0 + 2*d + 1, 72 + d)
        for e_ in range(8): o.e(f"v_mul_f32 v{g0+e_}, v{g0+e_}, v{STT+2*p+1}")
        for d in range(4): rbf2(o, g0 + 2*d, g0 + 2*d + 1, 72 + d)
        if ysrc is not None:
            for e_ in range(8): o.e(f"v_add_f32 v{g0+e_}, v{g0+e_}, v{ysrc+e_}")
            for d in range(4): rbf2(o, g0 + 2*d, g0 + 2*d + 1, 72 + d)
        silu_n(o, [g0 + e_ for e_ in range(8)], [72 + e_ for e_ in range(8)])
        for d in range(4): rbf2(o, g0 + 2*d, g0 + 2*d + 1, 72 + d)
    b.e("v_mov_b32 v102, 1")
    b.e("v_mov_b32 v103, 0")
    b.wait_ds('yr')
    for r in range(2):
        b.e(f"v_add_f32 v{YA+r}, v{YA+r}, v{YA+2+r}")
        b.e(f"v_add_f32 v{YA+4+r}, v{YA+4+r}, v{YA+6+r}")
    for r in range(2): b.e(f"v_add_f32 v{YA+r}, v{YA+r}, v{YA+4+r}")
    b.e(f"buffer_store_dwordx2 {V(YA,2)}, v1, s[16:19], s3 offen sc1", tag='pub')
    b.wait_vm('x')
    gates(b, 0)
    gates(b, 1)
    b.wait_vm('pub')
    b.blk(["s_mov_b64 exec, 1", "buffer_atomic_add v102, v103, s[40:43], s38 offen sc1", "s_mov_b64 exec, -1"])
    gates(b, 2)
    gates(b, 3)
    YB = 80
    b.blk(["s_lshr_b32 s3, s52, 7", "s_lshr_b32 s62, s53, 7", "s_cmp_eq_u32 s3, s33", "s_cselect_b32 s44, 1, 0",
           "s_cmp_eq_u32 s62, s33", "s_cselect_b32 s44, 1, s44", "s_lshl_b32 s45, s34, 4"])
    b.e("v_lshlrev_b32 v15, 10, v14")
    b.e("v_lshl_add_u32 v15, v13, 5, v15")
    PS = int(opt.get('k3_poll', 21))
    b.at(PS)
    b.e("buffer_load_dword v102, v103, s[40:43], s45 offen sc1", tag='poll')
    b.at(PS + 3)
    b.wait_vm('poll')
    def yloads(o, so):
        for q in range(2):
            for t in range(2):
                for h in range(2):
                    o.e(f"buffer_load_dwordx4 {V(YB + 16*q + 8*t + 4*h, 4)}, v15, s[16:19], s{so} offen offset:{q*512 + t*256 + h*16} sc1", tag='yl')
    b.blk(["v_readfirstlane_b32 s46, v102", "s_lshl_b32 s47, s34, 13", f"s_add_u32 s47, s47, {WS_YP}", "s_cmp_ge_u32 s46, 16",
           "s_cselect_b32 s46, s44, 0", "s_cmp_lg_u32 s46, 0", "s_cselect_b32 s3, s47, 0x7ff00000"])
    yloads(b, 3)
    b.at(PS + 7)
    b.wait_vm('yl')
    b.blk(["s_cmp_lg_u32 s46, 0", "s_cbranch_scc1 L_k3_selA", "L_k3_selAr:"])

    k.wait_vm('w0')
    for grp in wreads(0):
        for s in grp: k.e(s)
    LA = int(opt.get('k3_la', 2))
    BS = int(opt.get('k3_bs', 3))
    for n in range(32):
        w = [x for x in (k.vm_n(f'c{n}'), k.vm_n(f'w{n+1}')) if x is not None]
        k.e("s_waitcnt " + (f"vmcnt({min(w)}) " if w else "") + "lgkmcnt(0)")
        g = {}; gt = {}
        if n < 31:
            for j, grp in enumerate(wreads(n + 1)): g[2 + 5 * j] = list(grp)
        vpos = [1, 3, 6, 8, 11, 13, 16, 18, 21, 23, 26, 28, 30, 31]
        vi = 0
        ops = [(t, s, f'w{n+4}') for t, s in w_ops(n + 4)] + [(t, s, f'c{n+3}') for t, s in c_ops(n + 3)]
        post = []
        if PF0 + PFL > 0 and n % G == 0 and npf * G < 32 and npf <= n // G + LA:
            pf = pf_ops(); npf += 1
            ops += [(t, s, 'pf') for t, s in pf if t == 'g']; post = [s for t, s in pf if t == 'v']
        for t, s, tg in ops:
            if t == 'g': g[vpos[vi]] = [s]; gt[vpos[vi]] = tg; vi += 1
            elif vi == 0: g.setdefault(0, []).append(s)
            else: g.setdefault(vpos[vi - 1] + 1, []).append(s)
        m = 0
        for rb in range(8):
            for cb in range(4):
                k.e(mfma(V(ACC(rb, cb), 4), A(WF(n, cb), 4), A(CF(n, rb), 4), V(ACC(rb, cb), 4) if n else "0"))
                if m in g:
                    for s in g[m]: k.e(s, tag=gt.get(m))
                elif 'dbg_nobg' not in opt:
                    b.fill(k, n, BS)
                m += 1
        for s in post: k.e(s)
    print("k3 background items left after loop:", len(b.items))
    k.stamp(ST)
    b.drain(k)
    k.e("s_waitcnt vmcnt(0) lgkmcnt(0)")
    k.e("v_and_b32 v1, 15, v0")
    k.e("v_lshlrev_b32 v11, 8, v1")
    k.e("v_add_u32 v11, s35, v11")
    k.e("v_xor_b32 v1, v1, v12")
    for cb in range(4):
        k.e(f"v_xor_b32 v15, {4*cb}, v1")
        k.e(f"v_lshl_add_u32 v{TA+cb}, v15, 4, v11")
    for rb in range(8):
        for cb in range(4):
            k.e(f"ds_write_b128 v{TA+cb}, {V(ACC(rb,cb),4)} offset:{rb*4096}")
        if rb & 1: k.e("s_waitcnt lgkmcnt(4)")
    k.e("s_cmp_lg_u32 s44, s46")
    k.e("s_cbranch_scc1 L_k3_sel")
    k.label("L_k3_selr")
    k.e(f"v_and_b32 v1, 15, v{VROW}")
    k.e("v_lshlrev_b32 v15, 1, v13")
    k.e("v_xor_b32 v1, v1, v15")
    k.e(f"v_lshlrev_b32 v11, 8, v{VROW}")
    k.e("v_lshl_add_u32 v2, v1, 4, v11")
    k.e("v_xor_b32 v3, 16, v2")
    k.e("v_add_u32 v4, 65536, v2")
    k.e("v_add_u32 v5, 65536, v3")
    k.e("s_waitcnt lgkmcnt(0)")
    k.e("s_barrier")
    def rd(p):
        b = 128 + 32 * p
        for w in range(4):
            for h in range(2):
                k.e(f"ds_read_b128 {V(b + 8*w + 4*h, 4)}, v{2 + h + 2*(w >> 1)} offset:{(w & 1)*32768 + p*8192}", tag=f'r{p}')
    rd(0)
    for p in range(4):
        b = 128 + 32 * p
        k.wait_ds(f'r{p}')
        if p < 3: rd(p + 1)
        for e_ in range(8):
            k.e(f"v_add_f32 v{b+e_}, v{b+e_}, v{b+8+e_}")
            k.e(f"v_add_f32 v{b+16+e_}, v{b+16+e_}, v{b+24+e_}")
        for e_ in range(8): k.e(f"v_add_f32 v{b+e_}, v{b+e_}, v{b+16+e_}")
        for d in range(4): rbf2(k, b + 2*d, b + 2*d + 1, b + 8 + d)
        for e_ in range(8): k.e(f"v_mul_f32 v{b+e_}, v{b+e_}, v{GT+8*p+e_}")
        for d in range(4): rbf2(k, b + 2*d, b + 2*d + 1, b + 8 + d)
        for d in range(4):
            k.e(f"v_lshlrev_b32 v{b+16+2*d}, 16, v{XP+4*p+d}")
            k.e(f"v_and_b32 v{b+17+2*d}, 0xffff0000, v{XP+4*p+d}")
        for e_ in range(8): k.e(f"v_add_f32 v{b+e_}, v{b+e_}, v{b+16+e_}")
        for d in range(4): k.e(f"v_cvt_pk_bf16_f32 v{b+8+d}, v{b+2*d}, v{b+2*d+1}")
        k.e(f"buffer_store_dwordx4 {V(b+8,4)}, v{VO}, s[28:31], s36 offen{opt.get('out_st','')}")
        if p < 3: k.e("s_add_u32 s36, s36, 65536")
    k.stamp(ST)
    k.stamp_dump(ST, 58, 1, 32)
    k.label("L_k3_end")
    k.e("s_endpgm")
    def selblock():
        for j in range(16): k.e(f"v_add_f32 v{YB+j}, v{YB+j}, v{YB+16+j}")
        for j in range(16): k.e(f"v_add_f32_dpp v{YB+j}, v{YB+j}, v{YB+j} row_ror:8 row_mask:0xf bank_mask:0xf")
        for sw in ("v_permlane16_swap_b32", "v_permlane32_swap_b32"):
            for j in range(16): k.e(f"v_mov_b32 v{YB+16+j}, v{YB+j}")
            for j in range(16): k.e(f"{sw} v{YB+16+j}, v{YB+j}")
            for j in range(16): k.e(f"v_add_f32 v{YB+j}, v{YB+j}, v{YB+16+j}")
        for d in range(8): rbf2(k, YB + 2*d, YB + 2*d + 1, 1)
        for t in range(2):
            for e_ in range(8): k.e(f"v_mul_f32 v{YB+8*t+e_}, s{54+t}, v{YB+8*t+e_}")
        for d in range(8): rbf2(k, YB + 2*d, YB + 2*d + 1, 1)
        k.e("s_lshl_b32 s3, s33, 7")
        k.e("s_sub_u32 s52, s52, s3")
        k.e("s_sub_u32 s53, s53, s3")
        for p in range(4):
            L = k.newlabel("selskip")
            k.e(f"v_add_u32 v1, {32*p}, v{VROW}")
            k.e("v_cmp_eq_u32 vcc, s52, v1")
            k.e("v_cmp_eq_u32 s[60:61], s53, v1")
            k.e("s_nop 3")
            k.e("s_or_b64 s[56:57], vcc, s[60:61]")
            k.e(f"s_cbranch_scc0 {L}")
            for e_ in range(8):
                k.e(f"v_cndmask_b32 v{YB+16+e_}, 0, v{YB+e_}, vcc")
                k.e(f"v_cndmask_b32 v{YB+16+e_}, v{YB+16+e_}, v{YB+8+e_}, s[60:61]")
            gates(k, p, YB + 16)
            k.label(L)
    k.label("L_k3_selA")
    k.win = []
    selblock()
    k.e("s_branch L_k3_selAr")
    k.label("L_k3_sel")
    k.win = []
    k.e("v_mov_b32 v103, 0")
    k.e("s_mov_b32 s62, 0x400000")
    k.label("L_k3_poll")
    k.e("buffer_load_dword v102, v103, s[40:43], s45 offen sc1")
    k.e("s_waitcnt vmcnt(0)")
    k.e("v_readfirstlane_b32 s63, v102")
    k.e("s_sub_u32 s62, s62, 1")
    k.e("s_cmp_eq_u32 s62, 0")
    k.e("s_cbranch_scc1 L_k3_polled")
    k.e("s_cmp_lt_u32 s63, 16")
    k.e("s_cbranch_scc1 L_k3_poll")
    k.label("L_k3_polled")
    k.e("v_lshlrev_b32 v15, 10, v14")
    k.e("v_lshl_add_u32 v15, v13, 5, v15")
    yloads(k, 47)
    k.e("s_waitcnt vmcnt(0)")
    selblock()
    k.e("s_branch L_k3_selr")
    return k.wrap(256, 160), f"; @launch kernel=oproj_kernel grid=(256,1,1) block=(256,1,1) lds={K3_LDS}"
```

```python
from fw import *
from layout import *

K3_LDS = 131072 + 4096

def rbf2(k, a, b, t):
    k.e(f"v_cvt_pk_bf16_f32 v{t}, v{a}, v{b}")
    k.e(f"v_lshlrev_b32 v{a}, 16, v{t}")
    k.e(f"v_and_b32 v{b}, 0xffff0000, v{t}")

def silu_n(k, regs, tmps):
    for r, t in zip(regs, tmps): k.e(f"v_mul_f32 v{t}, 0xbfb8aa3b, v{r}")
    for r, t in zip(regs, tmps): k.e(f"v_exp_f32 v{t}, v{t}")
    for r, t in zip(regs, tmps): k.e(f"v_add_f32 v{t}, 1.0, v{t}")
    for r, t in zip(regs, tmps): k.e(f"v_rcp_f32 v{t}, v{t}")
    for r, t in zip(regs, tmps): k.e(f"v_mul_f32 v{r}, v{r}, v{t}")

def gen_k3(opt):
    k = Asm("oproj_kernel")
    ST = 'stamp' in opt
    VC, VW, TA, VO, VROW = 2, 4, 5, 9, 10
    XP, STT, GT = 16, 32, 40
    ACC = lambda rb, cb: 128 + (rb * 4 + cb) * 4
    CF = lambda n, rb: (n % 4) * 32 + rb * 4
    WF = lambda n, cb: 128 + (n & 1) * 16 + cb * 4
    k.e("s_cmp_ge_u32 s2, 256")
    k.e("s_cbranch_scc1 L_k3_end")
    k.stamp(ST)
    k.e("s_load_dwordx2 s[4:5], s[0:1], 40")
    k.e("s_load_dwordx2 s[40:41], s[0:1], 0")
    k.e("s_load_dwordx4 s[44:47], s[0:1], 80")
    k.e("s_load_dwordx4 s[56:59], s[0:1], 96")
    k.e("v_lshrrev_b32 v1, 6, v0")
    k.e(f"v_lshrrev_b32 v{VROW}, 3, v0")
    k.e("v_and_b32 v0, 63, v0")
    k.e("v_readfirstlane_b32 s32, v1")
    k.e("s_bfe_u32 s33, s2, 0x20001")
    k.e("s_lshl_b32 s33, s33, 2")
    k.e("s_bfe_u32 s3, s2, 0x20003")
    k.e("s_add_u32 s33, s33, s3")
    k.e("s_and_b32 s34, s2, 1")
    k.e("s_lshl_b32 s34, s34, 3")
    k.e("s_lshr_b32 s3, s2, 5")
    k.e("s_add_u32 s34, s34, s3")
    for j in range(4): k.e(f"s_mov_b32 s{48+j}, {j*15360}")
    k.e("s_lshl_b32 s35, s32, 15")
    k.e(f"v_lshlrev_b32 v{VC}, 4, v0")
    k.e(f"v_add_u32 v{VC+1}, 4096, v{VC}")
    k.e("v_lshrrev_b32 v12, 4, v0")
    k.e("v_and_b32 v13, 7, v0")
    k.e("v_lshrrev_b32 v14, 3, v0")
    k.e("v_lshlrev_b32 v1, 1, v12")
    k.e("v_xor_b32 v1, v1, v13")
    k.e("v_lshlrev_b32 v1, 4, v1")
    k.e(f"v_lshl_add_u32 v{VW}, v14, 11, v1")
    k.e("v_lshrrev_b32 v1, 2, v0")
    k.e("v_bfe_u32 v11, v0, 3, 2")
    k.e("v_lshlrev_b32 v1, 7, v1")
    k.e("v_and_b32 v15, 3, v0")
    k.e("v_lshl_add_u32 v1, v15, 3, v1")
    k.e("v_add_u32 v1, s35, v1")
    for cb in range(4):
        k.e(f"v_xor_b32 v15, {cb}, v11")
        k.e(f"v_lshl_add_u32 v{TA+cb}, v15, 5, v1")
    k.e(f"v_lshlrev_b32 v{VO}, 11, v{VROW}")
    k.e(f"v_lshl_add_u32 v{VO}, v13, 4, v{VO}")
    if '3' in opt.get('cpf', '1234'):
        for x in code_prefetch("oproj_kernel", "L_k3_end", 32, 64, 124, 127):
            if x.endswith(':'): k.label(x[:-1])
            else: k.e(x, tag='cpf')
    PFC, PFW = 120, 121
    G = int(opt.get('k3_g', 4))
    k.e("s_lshr_b32 s3, s2, 5")
    k.e(f"s_mul_i32 s3, s3, {G*1024}")
    k.e(f"v_lshlrev_b32 v{PFC}, 7, v0")
    k.e(f"v_add_u32 v{PFC}, s3, v{PFC}")
    k.e("s_bfe_u32 s3, s2, 0x20003")
    k.e(f"s_mul_i32 s3, s3, {G*8*2048}")
    k.e(f"v_lshlrev_b32 v{PFW}, 11, v0")
    k.e(f"v_add_u32 v{PFW}, s3, v{PFW}")
    if G < 8:
        k.e(f"v_cmp_gt_u32 vcc, {G*8}, v0")
        k.e("v_mov_b32 v1, 0x7ff00000")
        k.e(f"v_cndmask_b32 v{PFC}, v1, v{PFC}, vcc")
        k.e(f"v_cndmask_b32 v{PFW}, v1, v{PFW}, vcc")
    k.e("s_waitcnt lgkmcnt(0)")
    k.e("s_lshl_b32 s3, s33, 20")
    k.e("s_lshl_b32 s62, s32, 18")
    k.e("s_add_u32 s3, s3, s62")
    k.e(f"s_add_u32 s3, s3, {WS_CTX}")
    k.srd(8, 58, 262144, "s3")
    k.e("s_lshl_b32 s62, s34, 7")
    k.e("s_lshl_b32 s3, s32, 21")
    k.e("s_add_u32 s3, s3, s62")
    k.srd(12, 4, 0, "s3")
    k.e("s_sub_u32 s14, 2097152, s62")
    if 'dbg_now' in opt: k.e("s_mov_b32 s14, 0")
    if 'dbg_noc' in opt: k.e("s_mov_b32 s10, 0")
    wo_ld, ctx_ld = opt.get('wo_ld', ''), opt.get('ctx_ld', '')
    def pf_ops():
        return [('g', f"buffer_load_dword v122, v{PFW}, s[12:15], 0 offen{opt.get('wopf_ld', '')}"),
                ('g', f"buffer_load_dword v122, v{PFC}, s[8:11], 0 offen"),
                ('v', f"v_add_u32 v{PFW}, {G*65536}, v{PFW}"), ('v', f"v_add_u32 v{PFC}, {G*8192}, v{PFC}")]
    ROT = int(opt.get('k3_rot', 4))
    k.e("s_bfe_u32 s3, s2, 0x20003")
    k.e(f"s_mul_i32 s3, s3, {max(ROT // 4, 1)}")
    k.e("s_lshr_b32 s62, s2, 5")
    k.e(f"s_mul_i32 s62, s62, {max(ROT // 8, 1)}")
    k.e("s_add_u32 s5, s3, s62")
    k.e(f"v_mov_b32 v123, v{VW}")
    STG = int(opt.get('k3_stg', 0))
    k.e(f"s_mul_i32 s6, s32, {STG}")
    k.e("s_sub_u32 s6, 32, s6")
    def kpos(n, dst, sh):
        if 'dbg_hit' in opt: n &= 3
        if STG:
            return [('s', f"s_add_u32 s7, s6, {n}"), ('s', f"s_add_u32 s{dst}, s7, s5"), ('s', f"s_and_b32 s7, s7, {31 & ~(ROT-1)}"),
                    ('s', f"s_and_b32 s{dst}, s{dst}, {ROT-1}"), ('s', f"s_or_b32 s{dst}, s{dst}, s7"), ('s', f"s_lshl_b32 s{dst}, s{dst}, {sh}")]
        return [('s', f"s_add_u32 s{dst}, s5, {n}"), ('s', f"s_and_b32 s{dst}, s{dst}, {ROT-1}"),
                ('s', f"s_or_b32 s{dst}, s{dst}, {n & ~(ROT-1)}"), ('s', f"s_lshl_b32 s{dst}, s{dst}, {sh}")]
    for t, s_ in kpos(0, 4, 16) + kpos(0, 63, 13): k.e(s_)
    k.e(f"v_add_u32 v{VW}, s4, v123")
    def w_ops(n):
        if n >= 32: return []
        return ([('s', f"s_add_u32 m0, s35, {(n % 4)*4096}")] +
                [('g', f"buffer_load_dwordx4 v{VW}, s[12:15], s{48+j} offen offset:{j*1024}{wo_ld} lds") for j in range(4)] +
                kpos(n + 1, 4, 16) + [('v', f"v_add_u32 v{VW}, s4, v123")])
    def c_ops(n):
        if n >= 32: return []
        return ([('g', f"buffer_load_dwordx4 {A(CF(n,rb),4)}, v{VC + (rb >> 2)}, s[8:11], s63 offen offset:{(rb & 3)*1024}{ctx_ld}") for rb in range(8)] +
                kpos(n + 1, 63, 13))
    def wreads(n):
        return [[f"ds_read_b64_tr_b16 {A(WF(n,cb)+2*rd,2)}, v{TA+cb} offset:{(n % 4)*4096 + rd*2048}" for rd in range(2)] for cb in range(4)]
    PF0 = int(opt.get('k3_pf0', 0))
    PFL = int(opt.get('k3_pfl', 0))
    npf = 0
    for _ in range(PF0):
        for t, s in pf_ops(): k.e(s, tag='pf')
        npf += 1
    for t, s in w_ops(0): k.e(s, tag='w0')
    for n in range(3):
        for t, s in w_ops(n + 1): k.e(s, tag=f'w{n+1}')
        for t, s in c_ops(n): k.e(s, tag=f'c{n}')
    for _ in range(PFL):
        for t, s in pf_ops(): k.e(s, tag='pf')
        npf += 1
    k.stamp(ST)

    b = Rec()
    def srd_rec(d, base, nbytes):
        b.e(f"s_mov_b32 s{d}, s{base}"); b.e(f"s_and_b32 s{d+1}, s{base+1}, 0xffff")
        b.e(f"s_mov_b32 s{d+2}, {nbytes}"); b.e(f"s_mov_b32 s{d+3}, 0x20000")
    k.e(f"s_add_u32 s60, s58, {WS_SEL}")
    k.e("s_addc_u32 s61, s59, 0")
    k.e("s_load_dwordx4 s[52:55], s[60:61], 0")
    k.srd(16, 58, 8 << 20)
    k.srd(24, 44, 7340032)
    k.e("s_lshl_b32 s36, s33, 18")
    k.e("s_lshl_b32 s3, s34, 7")
    k.e("s_add_u32 s36, s36, s3")
    k.srd(20, 40, 4194304)
    k.srd(28, 46, 4194304)
    k.srd(40, 56, 256)
    k.e("s_lshr_b32 s37, s2, 4")
    k.e("s_lshl_b32 s3, s37, 2")
    k.e("s_add_u32 s3, s3, s32")
    k.e("s_mul_i32 s38, s3, 56")
    k.e("s_and_b32 s39, s2, 15")
    HP, HV, WD, YA = 40, 52, 72, 104
    b.e("s_lshl_b32 s3, s38, 2")
    b.e(f"s_add_u32 s3, s3, {WS_HP}")
    b.e("v_mul_u32_u24 v1, 14336, v12")
    b.e("v_and_b32 v15, 15, v0")
    b.e("v_lshl_add_u32 v1, v15, 4, v1")
    for j in range(8):
        b.e(f"buffer_load_dwordx4 {V(HP+4*j,4)}, v1, s[16:19], s3 offen", tag='hp')
        if j < 7: b.e(f"s_add_u32 s3, s3, {4*14336}")
    b.e("s_lshl_b32 s3, s38, 11")
    b.e("s_lshl_b32 s62, s39, 7")
    b.e("s_add_u32 s3, s3, s62")
    b.e(f"v_mul_u32_u24 v1, {7*2048}, v14")
    b.e("v_lshl_add_u32 v1, v13, 4, v1")
    for j in range(7):
        b.e(f"buffer_load_dwordx4 {V(WD+4*j,4)}, v1, s[24:27], s3 offen offset:{(j&1)*2048}{opt.get('wd_ld','')}", tag='wd')
        if j & 1: b.e("s_add_u32 s3, s3, 4096")
    b.at(3)
    b.e("s_mov_b32 s3, s36")
    for p in range(4):
        b.e(f"buffer_load_dwordx4 {V(XP+4*p,4)}, v{VO}, s[20:23], s3 offen{opt.get('x3_ld','')}", tag='x')
        if p < 3: b.e("s_add_u32 s3, s3, 65536")
    b.e("s_lshl_b32 s3, s33, 10")
    b.e(f"s_add_u32 s3, s3, {WS_STATS}")
    b.e(f"v_lshlrev_b32 v1, 3, v{VROW}")
    for p in range(4):
        b.e(f"buffer_load_dwordx2 {V(STT+2*p,2)}, v1, s[16:19], s3 offen offset:{p*256}", tag='x')
    b.at(4)
    b.wait_vm('hp')
    for j in range(1, 8):
        for r in range(4): b.e(f"v_add_f32 v{HP+r}, v{HP+r}, v{HP+4*j+r}")
    rbf2(b, HP, HP+1, 1); rbf2(b, HP+2, HP+3, 15)
    for r in range(4): b.e(f"v_mov_b32 v{HP+4+r}, v{HP+r}")
    for r in range(4): b.e(f"v_permlane32_swap_b32 v{HP+4+r}, v{HP+r}")
    silu_n(b, [HP+4+r for r in range(4)], [HP+8+r for r in range(4)])
    rbf2(b, HP+4, HP+5, 1); rbf2(b, HP+6, HP+7, 15)
    for r in range(4): b.e(f"v_mul_f32 v{HP+r}, v{HP+r}, v{HP+4+r}")
    rbf2(b, HP, HP+1, 1); rbf2(b, HP+2, HP+3, 15)
    b.e("s_lshl_b32 s3, s32, 9")
    b.e("s_add_u32 s3, s3, 131072")
    b.e("v_and_b32 v1, 31, v0")
    b.e("v_lshl_add_u32 v1, v1, 4, s3")
    b.e("v_mul_u32_u24 v15, 28, v14")
    b.e("v_add_u32 v15, s3, v15")
    b.e(f"ds_write_b128 v1, {V(HP,4)}")
    for t in range(2):
        for j in range(7):
            b.e(f"ds_read_b32 v{HV+7*t+j}, v15 offset:{t*256+4*j}", tag='hv')
            if j == 5: b.e("s_waitcnt lgkmcnt(4)")
    b.e("v_lshrrev_b32 v1, 5, v0")
    b.e("v_lshlrev_b32 v1, 8, v1")
    b.e("v_lshl_add_u32 v1, v13, 5, v1")
    b.e("v_and_b32 v15, 1, v12")
    b.e("v_lshl_add_u32 v1, v15, 4, v1")
    b.e("v_add_u32 v1, s3, v1")
    b.wait_vm('wd')
    b.wait_ds('hv')
    for j in range(7):
        for d in range(4):
            w = WD + 4 * j + d
            b.e(f"v_lshlrev_b32 v100, 16, v{w}")
            b.e(f"v_and_b32 v101, 0xffff0000, v{w}")
            for t in range(2):
                a = YA + 8 * t + 2 * d
                op = "v_mul_f32" if j == 0 else "v_fmac_f32"
                b.e(f"{op} v{a}, v100, v{HV+7*t+j}"); b.e(f"{op} v{a+1}, v101, v{HV+7*t+j}")
    for j in range(8): b.e(f"v_permlane32_swap_b32 v{YA+j}, v{YA+8+j}")
    for j in range(8): b.e(f"v_add_f32 v{YA+j}, v{YA+j}, v{YA+8+j}")
    for j in range(4): b.e(f"v_permlane16_swap_b32 v{YA+j}, v{YA+4+j}")
    for j in range(4): b.e(f"v_add_f32 v{YA+j}, v{YA+j}, v{YA+4+j}")
    for j in range(4): b.e(f"v_add_f32_dpp v{YA+j}, v{YA+j}, v{YA+j} row_ror:8 row_mask:0xf bank_mask:0xf")
    b.e(f"ds_write_b128 v1, {V(YA,4)} offset:2048", tag='yw')
    b.e("v_lshlrev_b32 v1, 3, v0")
    b.e("v_add_u32 v15, 133120, v1")
    b.e("s_lshl_b32 s3, s39, 4")
    b.e("s_add_u32 s3, s3, s37")
    b.e("s_lshl_b32 s3, s3, 9")
    b.e(f"s_add_u32 s3, s3, {WS_YP}")
    b.blk(["s_cmp_eq_u32 s32, 0", "s_cselect_b32 s3, s3, 0x7ff00000", "s_lshl_b32 s38, s39, 4", "s_cmp_eq_u32 s32, 0",
           "s_cselect_b32 s38, s38, 0x7ff00000"])
    b.wait_ds('yw')
    b.e("s_barrier")
    for w in range(4): b.e(f"ds_read_b64 {V(YA+2*w,2)}, v15 offset:{w*512}", tag='yr')
    def gates(o, p, ysrc=None):
        g0 = GT + 8 * p
        for d in range(4):
            o.e(f"v_lshlrev_b32 v{g0+2*d}, 16, v{XP+4*p+d}")
            o.e(f"v_and_b32 v{g0+2*d+1}, 0xffff0000, v{XP+4*p+d}")
        for e_ in range(8): o.e(f"v_sub_f32 v{g0+e_}, v{g0+e_}, v{STT+2*p}")
        for d in range(4): rbf2(o, g0 + 2*d, g0 + 2*d + 1, 72 + d)
        for e_ in range(8): o.e(f"v_mul_f32 v{g0+e_}, v{g0+e_}, v{STT+2*p+1}")
        for d in range(4): rbf2(o, g0 + 2*d, g0 + 2*d + 1, 72 + d)
        if ysrc is not None:
            for e_ in range(8): o.e(f"v_add_f32 v{g0+e_}, v{g0+e_}, v{ysrc+e_}")
            for d in range(4): rbf2(o, g0 + 2*d, g0 + 2*d + 1, 72 + d)
        silu_n(o, [g0 + e_ for e_ in range(8)], [72 + e_ for e_ in range(8)])
        for d in range(4): rbf2(o, g0 + 2*d, g0 + 2*d + 1, 72 + d)
    b.e("v_mov_b32 v102, 1")
    b.e("v_mov_b32 v103, 0")
    b.wait_ds('yr')
    for r in range(2):
        b.e(f"v_add_f32 v{YA+r}, v{YA+r}, v{YA+2+r}")
        b.e(f"v_add_f32 v{YA+4+r}, v{YA+4+r}, v{YA+6+r}")
    for r in range(2): b.e(f"v_add_f32 v{YA+r}, v{YA+r}, v{YA+4+r}")
    b.e(f"buffer_store_dwordx2 {V(YA,2)}, v1, s[16:19], s3 offen sc1", tag='pub')
    b.wait_vm('x')
    gates(b, 0)
    gates(b, 1)
    b.wait_vm('pub')
    b.blk(["s_mov_b64 exec, 1", "buffer_atomic_add v102, v103, s[40:43], s38 offen sc1", "s_mov_b64 exec, -1"])
    gates(b, 2)
    gates(b, 3)
    YB = 80
    b.blk(["s_lshr_b32 s3, s52, 7", "s_lshr_b32 s62, s53, 7", "s_cmp_eq_u32 s3, s33", "s_cselect_b32 s44, 1, 0",
           "s_cmp_eq_u32 s62, s33", "s_cselect_b32 s44, 1, s44", "s_lshl_b32 s45, s34, 4"])
    b.e("v_lshlrev_b32 v15, 10, v14")
    b.e("v_lshl_add_u32 v15, v13, 5, v15")
    PS = int(opt.get('k3_poll', 21))
    b.at(PS)
    b.e("buffer_load_dword v102, v103, s[40:43], s45 offen sc1", tag='poll')
    b.at(PS + 3)
    b.wait_vm('poll')
    def yloads(o, so):
        for q in range(2):
            for t in range(2):
                for h in range(2):
                    o.e(f"buffer_load_dwordx4 {V(YB + 16*q + 8*t + 4*h, 4)}, v15, s[16:19], s{so} offen offset:{q*512 + t*256 + h*16} sc1", tag='yl')
    b.blk(["v_readfirstlane_b32 s46, v102", "s_lshl_b32 s47, s34, 13", f"s_add_u32 s47, s47, {WS_YP}", "s_cmp_ge_u32 s46, 16",
           "s_cselect_b32 s46, s44, 0", "s_cmp_lg_u32 s46, 0", "s_cselect_b32 s3, s47, 0x7ff00000"])
    yloads(b, 3)
    b.at(PS + 7)
    b.wait_vm('yl')
    b.blk(["s_cmp_lg_u32 s46, 0", "s_cbranch_scc1 L_k3_selA", "L_k3_selAr:"])

    k.wait_vm('w0')
    for grp in wreads(0):
        for s in grp: k.e(s)
    LA = int(opt.get('k3_la', 2))
    BS = int(opt.get('k3_bs', 3))
    for n in range(32):
        w = [x for x in (k.vm_n(f'c{n}'), k.vm_n(f'w{n+1}')) if x is not None]
        k.e("s_waitcnt " + (f"vmcnt({min(w)}) " if w else "") + "lgkmcnt(0)")
        g = {}; gt = {}
        if n < 31:
            for j, grp in enumerate(wreads(n + 1)): g[2 + 5 * j] = list(grp)
        vpos = [1, 3, 6, 8, 11, 13, 16, 18, 21, 23, 26, 28, 30, 31]
        vi = 0
        ops = [(t, s, f'w{n+4}') for t, s in w_ops(n + 4)] + [(t, s, f'c{n+3}') for t, s in c_ops(n + 3)]
        post = []
        if PF0 + PFL > 0 and n % G == 0 and npf * G < 32 and npf <= n // G + LA:
            pf = pf_ops(); npf += 1
            ops += [(t, s, 'pf') for t, s in pf if t == 'g']; post = [s for t, s in pf if t == 'v']
        for t, s, tg in ops:
            if t == 'g': g[vpos[vi]] = [s]; gt[vpos[vi]] = tg; vi += 1
            elif vi == 0: g.setdefault(0, []).append(s)
            else: g.setdefault(vpos[vi - 1] + 1, []).append(s)
        m = 0
        for rb in range(8):
            for cb in range(4):
                k.e(mfma(V(ACC(rb, cb), 4), A(WF(n, cb), 4), A(CF(n, rb), 4), V(ACC(rb, cb), 4) if n else "0"))
                if m in g:
                    for s in g[m]: k.e(s, tag=gt.get(m))
                elif 'dbg_nobg' not in opt:
                    b.fill(k, n, BS)
                m += 1
        for s in post: k.e(s)
    print("k3 background items left after loop:", len(b.items))
    k.stamp(ST)
    b.drain(k)
    k.e("s_waitcnt vmcnt(0) lgkmcnt(0)")
    k.e("v_and_b32 v1, 15, v0")
    k.e("v_lshlrev_b32 v11, 8, v1")
    k.e("v_add_u32 v11, s35, v11")
    k.e("v_xor_b32 v1, v1, v12")
    for cb in range(4):
        k.e(f"v_xor_b32 v15, {4*cb}, v1")
        k.e(f"v_lshl_add_u32 v{TA+cb}, v15, 4, v11")
    for rb in range(8):
        for cb in range(4):
            k.e(f"ds_write_b128 v{TA+cb}, {V(ACC(rb,cb),4)} offset:{rb*4096}")
        if rb & 1: k.e("s_waitcnt lgkmcnt(4)")
    k.e("s_cmp_lg_u32 s44, s46")
    k.e("s_cbranch_scc1 L_k3_sel")
    k.label("L_k3_selr")
    k.e(f"v_and_b32 v1, 15, v{VROW}")
    k.e("v_lshlrev_b32 v15, 1, v13")
    k.e("v_xor_b32 v1, v1, v15")
    k.e(f"v_lshlrev_b32 v11, 8, v{VROW}")
    k.e("v_lshl_add_u32 v2, v1, 4, v11")
    k.e("v_xor_b32 v3, 16, v2")
    k.e("v_add_u32 v4, 65536, v2")
    k.e("v_add_u32 v5, 65536, v3")
    k.e("s_waitcnt lgkmcnt(0)")
    k.e("s_barrier")
    def rd(p):
        b = 128 + 32 * p
        for w in range(4):
            for h in range(2):
                k.e(f"ds_read_b128 {V(b + 8*w + 4*h, 4)}, v{2 + h + 2*(w >> 1)} offset:{(w & 1)*32768 + p*8192}", tag=f'r{p}')
    rd(0)
    for p in range(4):
        b = 128 + 32 * p
        k.wait_ds(f'r{p}')
        if p < 3: rd(p + 1)
        for e_ in range(8):
            k.e(f"v_add_f32 v{b+e_}, v{b+e_}, v{b+8+e_}")
            k.e(f"v_add_f32 v{b+16+e_}, v{b+16+e_}, v{b+24+e_}")
        for e_ in range(8): k.e(f"v_add_f32 v{b+e_}, v{b+e_}, v{b+16+e_}")
        for d in range(4): rbf2(k, b + 2*d, b + 2*d + 1, b + 8 + d)
        for e_ in range(8): k.e(f"v_mul_f32 v{b+e_}, v{b+e_}, v{GT+8*p+e_}")
        for d in range(4): rbf2(k, b + 2*d, b + 2*d + 1, b + 8 + d)
        for d in range(4):
            k.e(f"v_lshlrev_b32 v{b+16+2*d}, 16, v{XP+4*p+d}")
            k.e(f"v_and_b32 v{b+17+2*d}, 0xffff0000, v{XP+4*p+d}")
        for e_ in range(8): k.e(f"v_add_f32 v{b+e_}, v{b+e_}, v{b+16+e_}")
        for d in range(4): k.e(f"v_cvt_pk_bf16_f32 v{b+8+d}, v{b+2*d}, v{b+2*d+1}")
        k.e(f"buffer_store_dwordx4 {V(b+8,4)}, v{VO}, s[28:31], s36 offen{opt.get('out_st','')}")
        if p < 3: k.e("s_add_u32 s36, s36, 65536")
    k.stamp(ST)
    k.stamp_dump(ST, 58, 1, 32)
    if 'dbgout' in opt:
        wg = int(opt['dbgout'])
        k.e("s_lshl_b32 s3, s32, 8")
        k.e("s_or_b32 s3, s3, s2")
        k.e(f"s_cmp_lg_u32 s3, {wg}")
        k.e("s_cbranch_scc1 L_k3_end")
        k.e(f"s_add_u32 s60, s58, {(64 << 20) + wg * 128}")
        k.e("s_addc_u32 s61, s59, 0")
        k.e("s_load_dwordx16 s[4:19], s[60:61], 0")
        k.e("s_load_dwordx4 s[20:23], s[60:61], 64")
        k.e("s_waitcnt lgkmcnt(0)")
        k.e("s_mov_b64 exec, 1")
        k.e("v_mov_b32 v2, 0")
        src = [7 + 2 * j for j in range(9)] + [73, 77, 79]
        for w, r in zip([1, 2, 3, 5, 6, 7, 9, 10, 11, 13, 14, 15], src):
            k.e(f"s_sub_u32 s3, s{r}, s5")
            k.e("v_mov_b32 v3, s3")
            k.e(f"buffer_store_dword v3, v2, s[40:43], 0 offen offset:{4*w}")
    k.label("L_k3_end")
    k.e("s_endpgm")
    def selblock():
        for j in range(16): k.e(f"v_add_f32 v{YB+j}, v{YB+j}, v{YB+16+j}")
        for j in range(16): k.e(f"v_add_f32_dpp v{YB+j}, v{YB+j}, v{YB+j} row_ror:8 row_mask:0xf bank_mask:0xf")
        for sw in ("v_permlane16_swap_b32", "v_permlane32_swap_b32"):
            for j in range(16): k.e(f"v_mov_b32 v{YB+16+j}, v{YB+j}")
            for j in range(16): k.e(f"{sw} v{YB+16+j}, v{YB+j}")
            for j in range(16): k.e(f"v_add_f32 v{YB+j}, v{YB+j}, v{YB+16+j}")
        for d in range(8): rbf2(k, YB + 2*d, YB + 2*d + 1, 1)
        for t in range(2):
            for e_ in range(8): k.e(f"v_mul_f32 v{YB+8*t+e_}, s{54+t}, v{YB+8*t+e_}")
        for d in range(8): rbf2(k, YB + 2*d, YB + 2*d + 1, 1)
        k.e("s_lshl_b32 s3, s33, 7")
        k.e("s_sub_u32 s52, s52, s3")
        k.e("s_sub_u32 s53, s53, s3")
        for p in range(4):
            L = k.newlabel("selskip")
            k.e(f"v_add_u32 v1, {32*p}, v{VROW}")
            k.e("v_cmp_eq_u32 vcc, s52, v1")
            k.e("v_cmp_eq_u32 s[60:61], s53, v1")
            k.e("s_nop 3")
            k.e("s_or_b64 s[56:57], vcc, s[60:61]")
            k.e(f"s_cbranch_scc0 {L}")
            for e_ in range(8):
                k.e(f"v_cndmask_b32 v{YB+16+e_}, 0, v{YB+e_}, vcc")
                k.e(f"v_cndmask_b32 v{YB+16+e_}, v{YB+16+e_}, v{YB+8+e_}, s[60:61]")
            gates(k, p, YB + 16)
            k.label(L)
    k.label("L_k3_selA")
    k.win = []
    selblock()
    k.e("s_branch L_k3_selAr")
    k.label("L_k3_sel")
    k.win = []
    k.e("v_mov_b32 v103, 0")
    k.e("s_mov_b32 s62, 0x400000")
    k.label("L_k3_poll")
    k.e("buffer_load_dword v102, v103, s[40:43], s45 offen sc1")
    k.e("s_waitcnt vmcnt(0)")
    k.e("v_readfirstlane_b32 s63, v102")
    k.e("s_sub_u32 s62, s62, 1")
    k.e("s_cmp_eq_u32 s62, 0")
    k.e("s_cbranch_scc1 L_k3_polled")
    k.e("s_cmp_lt_u32 s63, 16")
    k.e("s_cbranch_scc1 L_k3_poll")
    k.label("L_k3_polled")
    k.e("v_lshlrev_b32 v15, 10, v14")
    k.e("v_lshl_add_u32 v15, v13, 5, v15")
    yloads(k, 47)
    k.e("s_waitcnt vmcnt(0)")
    selblock()
    k.e("s_branch L_k3_selr")
    return k.wrap(256, 160), f"; @launch kernel=oproj_kernel grid=(256,1,1) block=(256,1,1) lds={K3_LDS}"
```

```python
from fw import *
from layout import *
from p4 import p4_ptr_loads, p4_setup, phase4
KNAME = 'recurrent_scan__compressed_kv_cla__moe_arch_mod__prompt_kernel'

K12_LDS = 148480
QSCALE = 0x3e0293ee
BIG = 0x7ff00000

def gen_k12(opt):
    k = Asm(KNAME)
    k.short = "f"
    ST = opt.get('stamp') == '1'
    S1 = opt.get('stamp') == 'p1'
    S2 = opt.get('stamp') == 'p2'
    w_ld, a_ld, x_ld = opt.get('w_ld', ' nt'), opt.get('a_ld', ''), opt.get('x_ld', ' nt')
    wq_ld, kv_ld, ffn_ld = opt.get('wq_ld', ''), opt.get('kv_ld', ' sc1'), opt.get('ffn_ld', '')
    MAP = int(opt.get('map', 4))
    VOA, VOW, AD, PFO = 2, 6, 10, 47
    FA = lambda ks, i: 64 * ks + 4 * i
    FW = lambda ks, j: 64 * ks + 32 + 4 * j
    def frag_of(isV, it, jd):
        return ((it >> 2) * 16 + jd * 2 + ((it >> 1) & 1), it & 1) if isV else (it * 4 + (jd >> 1), jd & 1)
    SRC = lambda n: ('v', 48 + 8 * n) if n < 26 else ('a', 128 + 8 * (n - 26))
    def acc(isV, it, jd):
        n, h = frag_of(isV, it, jd)
        p, r = SRC(n)
        return R(p, r + 4 * h, 4)
    PK = lambda n: 24 + 4 * (n if n < 26 else n - 26)
    VX, VY, VDMA, VRA, VRB, ORR, T0 = 2, 3, 4, 5, 6, 7, 1
    WV, XV, TA = 8, 10, 16
    ET = 8
    ONES, NINF = 16, 20
    NEGM, LS, PB, SB = 32, 48, 64, 128
    P = lambda par, qb, ks: PB + 32 * par + (qb * 2 + ks) * 4
    Sr = lambda par, qb, kb: SB + 64 * par + (qb * 4 + kb) * 4
    O = lambda qb, db: (qb * 8 + db) * 4
    Q = lambda qb, s: 128 + (qb * 4 + s) * 4
    FR = lambda grp, j: 192 + 16 * grp + 4 * j
    QA = lambda db, qb: 128 + (qb * 8 + db) * 4
    XR = lambda kk, qb: ((kk % 8) * 4 + qb) * 4
    WF = lambda kk, db: 192 + (kk & 1) * 32 + db * 4

    k.e("s_cmp_ge_u32 s2, 256")
    k.e("s_cbranch_scc1 L_k2_end")
    k.stamp(ST)
    k.e("s_load_dwordx4 s[4:7], s[0:1], 0")
    k.e("s_load_dwordx2 s[44:45], s[0:1], 56")
    k.e("s_load_dwordx4 s[40:43], s[0:1], 24")
    k.e("s_load_dwordx4 s[64:67], s[0:1], 96")
    k.e("v_lshrrev_b32 v1, 6, v0")
    k.e("v_and_b32 v0, 63, v0")
    k.e("v_readfirstlane_b32 s32, v1")
    k.e("v_lshrrev_b32 v33, 5, v0")
    k.e("v_and_b32 v31, 31, v0")
    k.e("v_lshlrev_b32 v36, 4, v31")
    k.e("v_lshl_add_u32 v35, v33, 11, v36")
    k.e("s_lshl_b32 s36, s2, 14")
    k.e("s_lshl_b32 s37, s32, 12")
    k.e("s_add_u32 s36, s36, s37")
    k.e("s_lshr_b32 s3, s2, 3")
    k.e("s_and_b32 s33, s3, 7")
    k.e("s_lshr_b32 s3, s3, 3")
    k.e("s_lshr_b32 s35, s3, 1")
    k.e("s_and_b32 s3, s3, 1")
    k.e("s_and_b32 s34, s2, 7")
    k.e("s_lshl_b32 s34, s34, 1")
    k.e("s_add_u32 s34, s34, s3")
    for j in range(4):
        k.e(f"s_mov_b32 s{48+j}, {j*7168}")
        k.e(f"s_mov_b32 s{52+j}, {j*15360}")
    k.e("s_lshl_b32 s56, s32, 13")
    k.e("s_add_u32 s57, s56, 32768")
    k.e("s_lshl_b32 s3, s32, 4")
    k.e("v_add_u32 v30, s3, v33")
    k.e("v_lshlrev_b32 v30, 13, v30")
    k.e("v_lshlrev_b32 v34, 1, v33")
    k.e("v_xor_b32 v31, v31, v34")
    for hi in range(2):
        for par in range(2):
            k.e(f"v_xor_b32 v34, {(2*par + 4*hi) << 1}, v31")
            k.e(f"v_lshl_add_u32 v{VOW + par + 2*hi}, v34, 4, v30")
            if hi: k.e(f"v_add_u32 v{VOW + par + 2*hi}, {8*8192}, v{VOW + par + 2*hi}")
    k.e("v_lshrrev_b32 v30, 3, v0")
    k.e("s_lshl_b32 s3, s32, 6")
    k.e("v_add_u32 v30, s3, v30")
    k.e("v_lshlrev_b32 v30, 10, v30")
    k.e("v_and_b32 v31, 7, v0")
    k.e("v_lshrrev_b32 v32, 4, v0")
    k.e("v_xor_b32 v31, v31, v32")
    k.e(f"v_lshl_add_u32 v{VOA}, v31, 4, v30")
    k.e("v_xor_b32 v31, 4, v31")
    k.e(f"v_lshl_add_u32 v{VOA+1}, v31, 4, v30")
    k.e(f"v_add_u32 v{VOA+2}, 32768, v{VOA}")
    k.e(f"v_add_u32 v{VOA+3}, 32768, v{VOA+1}")
    k.e("s_waitcnt lgkmcnt(0)")
    k.srd(16, 4, 4194304)
    XP, WR, XF = 48, 64, 80
    for i in range(4):
        k.e(f"buffer_load_dwordx4 {V(XP+4*i,4)}, v35, s[16:19], s36 offen offset:{i*512}{x_ld}", tag='x')
    def emit(lst, o=None):
        for x in lst:
            if x.endswith(':'): k.label(x[:-1])
            else: k.e(x, tag='cpf')
    CPF = opt.get('cpf', '1234')
    if '1' in CPF: emit(code_prefetch(KNAME, "L_k2_fin", 32, 68, 120, 124))
    MW = opt.get('mw', '')
    if 'c' in MW:
        k.srd(68, 6, 2097152)
        k.e("v_and_b32 v120, 15, v0")
        k.e("v_lshlrev_b32 v120, 7, v120")
        k.e("s_lshr_b32 s3, s36, 1")
        k.e("buffer_load_dword v125, v120, s[68:71], s3 offen", tag='cpf')
    k.e("s_cmp_eq_u32 s35, 0")
    k.e("s_cselect_b32 s40, s40, s42")
    k.e("s_cselect_b32 s41, s41, s43")
    k.e("s_lshl_b32 s3, s34, 9")
    k.srd(12, 40, 0, "s3")
    k.e("s_sub_u32 s14, 4194304, s3")
    k.e("s_lshl_b32 s3, s33, 18")
    k.srd(8, 6, 262144, "s3")
    def dma_ops(buf):
        ops = []
        for (base, vo, so, srd, fl) in ((57, VOW, 52, 12, w_ld), (56, VOA, 48, 8, a_ld)):
            for hi in range(2):
                ops.append(('s', f"s_add_u32 m0, s{base}, {buf*65536 + hi*4096}"))
                for lo in range(4):
                    ops.append(('g', f"buffer_load_dwordx4 v{vo + (lo&1) + 2*hi}, {S(srd,4)}, s{so+lo} offen offset:{lo*1024}{fl} lds"))
        return ops
    def adv_ops():
        return [f"v_add_u32 v{VOW+j}, {64*8192}, v{VOW+j}" for j in range(4)] + [f"v_add_u32 v{VOA+j}, 128, v{VOA+j}" for j in range(4)]
    st0 = dma_ops(0)
    for t, s in st0[:10]: k.e(s, tag='st0')
    if 'w' in MW:
        k.srd(68, 40, 4194304)
        k.e("v_lshlrev_b32 v120, 7, v0")
        k.e("s_and_b32 s3, s2, 127")
        k.e("s_lshl_b32 s3, s3, 2")
        k.e("s_add_u32 s3, s3, s32")
        k.e("s_lshl_b32 s3, s3, 13")
        k.e("buffer_load_dword v126, v120, s[68:71], s3 offen", tag='cpf')
    k.srd(28, 44, 2048)
    k.srd(20, 66, 8 << 20)
    k.srd(24, 66, 32 * KV_HEAD, WS_KV)
    k.e("v_and_b32 v30, 15, v0")
    k.e("s_lshr_b32 s3, s32, 1")
    k.e("s_lshl_b32 s3, s3, 14")
    k.e("v_lshlrev_b32 v31, 7, v30")
    k.e("v_add_u32 v31, s3, v31")
    k.e("v_lshrrev_b32 v34, 1, v30")
    k.e("v_xor_b32 v34, v34, v32")
    k.e(f"v_lshl_add_u32 v{AD}, v34, 4, v31")
    k.e("v_xor_b32 v34, 4, v34")
    k.e(f"v_lshl_add_u32 v{AD+1}, v34, 4, v31")
    k.e("v_lshrrev_b32 v30, 2, v30")
    k.e("v_lshl_add_u32 v31, v32, 3, v30")
    k.e("v_lshlrev_b32 v31, 9, v31")
    k.e("v_and_b32 v34, 3, v0")
    k.e("v_lshl_add_u32 v31, v34, 3, v31")
    k.e("s_and_b32 s3, s32, 1")
    k.e("s_lshl_b32 s3, s3, 8")
    k.e("s_add_u32 s3, s3, 32768")
    k.e("v_add_u32 v31, s3, v31")
    k.e("v_and_b32 v34, 1, v32")
    k.e("v_lshl_add_u32 v30, v34, 2, v30")
    for jj in range(8):
        k.e(f"v_xor_b32 v34, {jj}, v30")
        k.e(f"v_lshl_add_u32 v{AD+2+jj}, v34, 5, v31")
    for j in range(10):
        k.e(f"v_add_u32 v{AD+10+j}, 65536, v{AD+j}")
    k.e("s_cmp_lt_u32 s32, 2")
    for j in range(3): k.e(f"s_cselect_b32 s{60+j}, s{8+j}, s{12+j}")
    k.e("s_mov_b32 s63, 0x20000")
    k.e(f"s_mov_b32 s59, {64*8192}")
    k.e("s_cselect_b32 s59, 128, s59")
    k.e("s_lshr_b32 s3, s2, 6")
    k.e("s_lshl_b32 s3, s3, 1")
    k.e("s_add_u32 s3, s3, s32")
    k.e("s_lshl_b32 s3, s3, 15")
    k.e("s_add_u32 s3, s3, 256")
    k.e("v_lshlrev_b32 v37, 10, v0")
    k.e("v_add_u32 v37, s3, v37")
    k.e("v_lshrrev_b32 v38, 2, v0")
    k.e("v_lshlrev_b32 v38, 13, v38")
    k.e("v_and_b32 v39, 3, v0")
    k.e("v_lshl_add_u32 v38, v39, 7, v38")
    k.e("s_lshl_b32 s39, s33, 1")
    k.e("s_add_u32 s39, s39, s32")
    k.e("s_lshl_b32 s39, s39, 15")
    k.e(f"s_add_u32 s39, s39, {120*8192}")
    k.e("v_add_u32 v38, s39, v38")
    k.e("s_cmp_lt_u32 s32, 2")
    k.e("s_cselect_b64 vcc, -1, 0")
    k.e("s_cselect_b32 s3, 32, 16")
    k.e(f"v_cndmask_b32 v{PFO}, v38, v37, vcc")
    k.e("v_cmp_gt_u32 vcc, s3, v0")
    k.e(f"v_mov_b32 v37, {BIG}")
    k.e(f"v_cndmask_b32 v{PFO}, v37, v{PFO}, vcc")
    def pf_ops():
        return [f"buffer_load_dword v1, v{PFO}, s[60:63], 0 offen{opt.get('pf_ld', '')}", f"v_add_u32 v{PFO}, s59, v{PFO}"]
    for t, s in st0[10:]: k.e(s, tag='st0')
    for i in range(4):
        k.e(f"buffer_load_dwordx4 {V(WR+4*i,4)}, v36, s[28:31], 0 offen offset:{i*512}", tag='wr')
    for s in adv_ops(): k.e(s)

    PFE = int(opt.get('pfe', 2))
    PFN = int(opt.get('pfn', 4))
    if PFE == 0:
        for _ in range(PFN):
            for s in pf_ops(): k.e(s, tag='pf')
    st1 = dma_ops(1)
    def sum32(v, t):
        for m in ["quad_perm:[1,0,3,2]", "quad_perm:[2,3,0,1]", "row_half_mirror", "row_mirror"]:
            k.e(f"v_add_f32_dpp v{v}, v{v}, v{v} {m} row_mask:0xf bank_mask:0xf")
        k.e(f"v_mov_b32 v{t}, v{v}")
        k.e(f"v_permlane16_swap_b32 v{t}, v{v}")
        k.e(f"v_add_f32 v{v}, v{v}, v{t}")
    k.wait_vm('x')
    for i in range(16):
        k.e(f"v_lshlrev_b32 v{XF+2*i}, 16, v{XP+i}")
        k.e(f"v_and_b32 v{XF+2*i+1}, 0xffff0000, v{XP+i}")
    k.e(f"v_pk_add_f32 v[40:41], {V(XF,2)}, {V(XF+2,2)}")
    k.e(f"v_pk_add_f32 v[42:43], {V(XF+4,2)}, {V(XF+6,2)}")
    for i in range(4, 16):
        d = 40 + 2 * (i & 1)
        k.e(f"v_pk_add_f32 {V(d,2)}, {V(d,2)}, {V(XF+2*i,2)}")
    k.e("v_pk_add_f32 v[40:41], v[40:41], v[42:43]")
    k.e("v_add_f32 v38, v40, v41")
    sum32(38, 37)
    for t, s in st1[:10]: k.e(s, tag='st1')
    if PFE == 1:
        for _ in range(PFN // 2):
            for s in pf_ops(): k.e(s, tag='pf')
    k.e("v_mul_f32 v38, 0xba800000, v38")
    k.e("v_mov_b32 v39, v38")
    T = 112
    for i in range(16):
        k.e(f"v_pk_add_f32 {V(T+2*(i&3),2)}, {V(XF+2*i,2)}, v[38:39]")
        d = 40 + 2 * (i & 1)
        if i < 2: k.e(f"v_pk_mul_f32 {V(d,2)}, {V(T+2*(i&3),2)}, {V(T+2*(i&3),2)}")
        else: k.e(f"v_pk_fma_f32 {V(d,2)}, {V(T+2*(i&3),2)}, {V(T+2*(i&3),2)}, {V(d,2)}")
    k.e("v_pk_add_f32 v[40:41], v[40:41], v[42:43]")
    k.e("v_add_f32 v40, v40, v41")
    sum32(40, 37)
    for t, s in st1[10:]: k.e(s, tag='st1')
    if PFE == 1:
        for _ in range(PFN // 2):
            for s in pf_ops(): k.e(s, tag='pf')
    k.e("v_mul_f32 v40, 0x3a800000, v40")
    k.e("v_cvt_pk_bf16_f32 v44, v38, v40")
    k.e("v_lshlrev_b32 v38, 16, v44")
    k.e("v_and_b32 v40, 0xffff0000, v44")
    k.e("v_add_f32 v40, 0x3727c5ac, v40")
    k.e("v_cvt_pk_bf16_f32 v44, v40, v40")
    k.e("v_lshlrev_b32 v40, 16, v44")
    k.e("v_sqrt_f32 v40, v40")
    k.e("v_mov_b32 v39, v38")
    k.e("v_cvt_pk_bf16_f32 v44, v40, v40")
    k.e("v_lshlrev_b32 v44, 16, v44")
    k.e("v_rcp_f32 v40, v44")
    for i in range(16):
        k.e(f"v_pk_add_f32 {V(XF+2*i,2)}, {V(XF+2*i,2)}, v[38:39]")
    k.e("v_fma_f32 v45, -v44, v40, 1.0")
    k.e("v_fma_f32 v40, v45, v40, v40")
    k.e("v_mov_b32 v41, v40")
    for i in range(16):
        k.e(f"v_cvt_pk_bf16_f32 v{XP+i}, v{XF+2*i}, v{XF+2*i+1}")
    for i in range(16):
        k.e(f"v_lshlrev_b32 v{XF+2*i}, 16, v{XP+i}")
        k.e(f"v_and_b32 v{XF+2*i+1}, 0xffff0000, v{XP+i}")
    for i in range(16):
        k.e(f"v_pk_mul_f32 {V(XF+2*i,2)}, {V(XF+2*i,2)}, v[40:41]")
    for i in range(16):
        k.e(f"v_cvt_pk_bf16_f32 v{XP+i}, v{XF+2*i}, v{XF+2*i+1}")
    k.e("s_mul_i32 s3, s32, 4128")
    k.e("s_add_u32 s3, s3, 131072")
    k.e("v_mul_u32_u24 v42, 2064, v33")
    k.e("v_add3_u32 v42, v42, v36, s3")
    for i in range(4):
        k.e(f"ds_write_b128 v42, {V(XP+4*i,4)} offset:{i*512}")
    for s in adv_ops(): k.e(s)
    if PFE == 2:
        for _ in range(PFN):
            for s in pf_ops(): k.e(s, tag='pf')
    k.wait_vm('wr')
    for i in range(16):
        k.e(f"v_lshlrev_b32 v{XF+2*i}, 16, v{XP+i}")
        k.e(f"v_and_b32 v{XF+2*i+1}, 0xffff0000, v{XP+i}")
        k.e(f"v_lshlrev_b32 v{T+2*(i&3)}, 16, v{WR+i}")
        k.e(f"v_and_b32 v{T+2*(i&3)+1}, 0xffff0000, v{WR+i}")
        d = 42 + 2 * (i & 1)
        if i < 2: k.e(f"v_pk_mul_f32 {V(d,2)}, {V(XF+2*i,2)}, {V(T+2*(i&3),2)}")
        else: k.e(f"v_pk_fma_f32 {V(d,2)}, {V(XF+2*i,2)}, {V(T+2*(i&3),2)}, {V(d,2)}")
    k.e("v_pk_add_f32 v[42:43], v[42:43], v[44:45]")
    k.e("v_add_f32 v45, v42, v43")
    sum32(45, 37)
    k.e("v_cvt_pk_bf16_f32 v45, v45, v45")
    k.e("v_ashrrev_i32 v46, 31, v45")
    k.e("v_or_b32 v46, 0x80000000, v46")
    k.e("v_xor_b32 v45, v45, v46")
    k.e("v_and_b32 v45, 0xffff0000, v45")
    k.e("s_lshr_b32 s3, s36, 11")
    k.e("v_add_u32 v46, s3, v33")
    k.e("v_sub_u32 v44, 0xffff, v46")
    k.e("v_or_b32 v45, v45, v44")
    k.e("v_lshlrev_b32 v44, 2, v46")
    k.e("v_lshlrev_b32 v46, 3, v46")
    k.e("v_xor_b32 v38, 0x80000000, v38")
    k.e("v_mov_b32 v39, v40")
    k.e(f"s_mov_b32 s3, {WS_KEYS}")
    k.e(f"s_mov_b32 s39, {WS_STATS}")
    k.e("s_mov_b32 exec_lo, 1")
    k.e("s_mov_b32 exec_hi, 1")
    k.e("buffer_store_dword v45, v44, s[20:23], s3 offen sc1", tag='ln')
    k.e("buffer_store_dwordx2 v[38:39], v46, s[20:23], s39 offen sc1", tag='ln')
    k.e("s_mov_b64 exec, -1")
    k.e("s_load_dwordx2 s[4:5], s[0:1], 16")
    k.e("s_load_dwordx4 s[40:43], s[0:1], 64")
    k.e("s_load_dwordx2 s[92:93], s[0:1], 40")
    k.e("s_load_dwordx2 s[94:95], s[0:1], 80")
    k.e("s_load_dwordx2 s[100:101], s[0:1], 0")
    k.srd(28, 64, 256)

    def reads(ks, buf):
        a = AD + 10 * buf
        ra = [f"ds_read_b128 {A(FA(ks,i),4)}, v{a+ks} offset:{i*2048}" for i in range(8)]
        rw = [[f"ds_read_b64_tr_b16 {A(FW(ks,j)+2*rd,2)}, v{a+2+j} offset:{ks*16384+rd*2048}" for rd in range(2)] for j in range(8)]
        out = []
        for j in range(8):
            out.append(rw[j]); out.append([ra[j]])
        return out
    k.wait_vm('st0')
    k.e("s_waitcnt lgkmcnt(0)")
    k.e("s_barrier")
    k.stamp(ST)
    n = 0
    for grp in reads(0, 0):
        for s in grp:
            k.e(s); n += 1
            if n == 12: k.e("s_waitcnt lgkmcnt(2)")
    k.e("s_cmp_lg_u32 s35, 0")
    k.e("s_cbranch_scc1 L_k1_vpath")

    def chunk_ops(c):
        kind, j = c
        slot = {'w': j % 4, 'kv': (j + 4) % 8}[kind]
        ops = [('s', f"s_add_u32 m0, s44, {slot * 16384}")]
        if kind == 'w':
            for q in range(4):
                ops.append(('g', f"buffer_load_dwordx4 v{WV + (q >> 1)}, s[8:11], s{48+q} offen offset:{q*1024}{wq_ld} lds"))
            ops.append(('v', f"v_add_u32 v{WV}, {64*8192}, v{WV}"))
            ops.append(('v', f"v_add_u32 v{WV+1}, {64*8192}, v{WV+1}"))
        elif kind == 'f':
            for q in range(4):
                ops.append(('g', f"buffer_load_dwordx4 v{12 + (q >> 1) + 2 * (j & 1)}, {S(60 + 8 * (j >> 1), 4)}, s{52+q} offen offset:{q*1024}{ffn_ld} lds"))
        else:
            ops.append(('s', f"s_mov_b32 s7, {j * KV_CH}"))
            for q in range(4):
                ops.append(('g', f"buffer_load_dwordx4 v{VDMA}, s[12:15], s7 offen offset:{q*1024}{kv_ld} lds"))
        return ops
    def xn_ops(kk):
        ops = []
        for qb in range(4):
            so = "s58" if qb & 1 else "0"
            ops.append(('g', f"buffer_load_dwordx4 {A(XR(kk,qb),4)}, v{XV + (qb >> 1)}, s[20:23], {so} offen offset:{(kk % 4)*1024}{opt.get('xn_ld', ' sc1')}"))
        if kk % 4 == 3:
            ops.append(('v', f"v_add_u32 v{XV}, 4096, v{XV}"))
            ops.append(('v', f"v_add_u32 v{XV+1}, 4096, v{XV+1}"))
        return ops
    def wreads(kk):
        st, ks = kk // 2, kk & 1
        return [[f"ds_read_b64_tr_b16 {A(WF(kk,db)+2*rd,2)}, v{TA+db} offset:{(st % 4)*16384 + ks*8192 + rd*1024}" for rd in range(2)] for db in range(8)]
    ool = []
    def spin(lab, ret, off, target, vd, vz, sv, sc):
        def fn():
            k.e(f"s_mov_b32 s{sc}, 0x400000")
            k.label(lab + "_l")
            k.e(f"s_sleep {opt.get('slp', 8)}")
            k.e(f"buffer_load_dword v{vd}, v{vz}, s[28:31], {off} offen sc1")
            k.e("s_waitcnt vmcnt(0)")
            k.e(f"v_readfirstlane_b32 s{sv}, v{vd}")
            k.e(f"s_sub_u32 s{sc}, s{sc}, 1")
            k.e(f"s_cmp_eq_u32 s{sc}, 0")
            k.e(f"s_cbranch_scc1 {ret}")
            k.e(f"s_cmp_lt_u32 s{sv}, {target}")
            k.e(f"s_cbranch_scc1 {lab}_l")
        ool.append((lab, fn, ret))
    def srd_rec(b, d, base, nbytes, add=None):
        if add is None:
            b.e(f"s_mov_b32 s{d}, s{base}"); b.e(f"s_and_b32 s{d+1}, s{base+1}, 0xffff")
        else:
            b.blk([f"s_add_u32 s{d}, s{base}, {add}", f"s_addc_u32 s{d+1}, s{base+1}, 0", f"s_and_b32 s{d+1}, s{d+1}, 0xffff"])
        b.e(f"s_mov_b32 s{d+2}, {nbytes}"); b.e(f"s_mov_b32 s{d+3}, 0x20000")

    def phase1_stream(isV):
        b = Rec()
        tg = 'v' if isV else 'k'
        b.e("v_and_b32 v46, 7, v0")
        b.e("v_lshrrev_b32 v1, 3, v0") if False else None
        b.e("v_mul_u32_u24 v30, 2064, v46")
        b.e("v_lshrrev_b32 v31, 3, v0")
        b.e("s_lshl_b32 s3, s32, 9")
        b.e("s_add_u32 s3, s3, 131072")
        b.e("v_lshl_add_u32 v30, v31, 4, v30")
        b.e("v_add_u32 v30, s3, v30")
        b.e("v_lshlrev_b32 v31, 8, v31")
        b.e("v_lshl_add_u32 v46, v46, 4, v31")
        for i in (1, 2, 3, 0):
            b.e(f"ds_read_b128 {V(30+4*i,4)}, v30 offset:{i*128}", tag='xs')
        b.e("s_lshr_b32 s3, s2, 1")
        b.e(f"s_mul_i32 s3, s3, {XN_RB}")
        b.e("s_add_u32 s3, s3, s56")
        b.e("s_and_b32 s39, s2, 1")
        b.e("s_lshl_b32 s39, s39, 7")
        b.e("s_add_u32 s3, s3, s39")
        b.e("s_add_u32 s39, s3, 4096")
        b.at(2)
        for i in range(4):
            b.e(f"buffer_store_dwordx4 {V(30+4*i,4)}, v46, s[20:23], s{3 if i < 2 else 39} offen offset:{(i&1)*2048} sc1", tag='ln')
        b.e("s_lshl_b32 s3, s34, 1")
        b.e("s_and_b32 s36, s32, 1")
        b.e("s_add_u32 s3, s3, s36")
        b.e(f"s_mul_i32 s3, s3, {KV_HEAD}")
        b.e(f"s_mul_i32 s36, s33, {4*KV_TILE}")
        b.e("s_add_u32 s3, s3, s36")
        b.e("s_lshr_b32 s36, s32, 1")
        b.e(f"s_mul_i32 s36, s36, {2*KV_TILE}")
        b.e("s_add_u32 s3, s3, s36")
        b.e(f"s_add_u32 s38, s3, {KV_CH if isV else 0}")
        b.e("s_lshl_b32 s39, s34, 7")
        b.e("s_lshl_b32 s36, s33, 2")
        b.e("s_add_u32 s39, s39, s36")
        b.e(f"s_add_u32 s39, s39, {WS_FLG + (32 if isV else 0)}")
        b.e("v_mov_b32 v30, 1")
        b.e("v_mov_b32 v31, 0")
        b.blk(["s_cmp_eq_u32 s32, 0", f"s_cselect_b32 s39, s39, {BIG}"])
        b.blk(["s_mov_b64 exec, 1", ("buffer_store_dword v31, v31, s[20:23], s39 offen sc1", 'ln'), "s_mov_b64 exec, -1"])
        if MAP == 4:
            b.e("s_and_b32 s33, s2, 7")
            b.e("s_lshl_b32 s33, s33, 2")
            b.e("s_bfe_u32 s3, s2, 0x20003")
            b.e("s_add_u32 s33, s33, s3")
            b.e("s_lshr_b32 s34, s2, 5")
        else:
            b.e("s_and_b32 s33, s2, 6")
            b.e("s_lshl_b32 s33, s33, 2")
            b.e("s_bfe_u32 s3, s2, 0x30003")
            b.e("s_add_u32 s33, s33, s3")
            b.e("s_lshr_b32 s34, s2, 6")
            b.e("s_lshl_b32 s34, s34, 1")
            b.e("s_and_b32 s3, s2, 1")
            b.e("s_add_u32 s34, s34, s3")
        b.e("s_lshl_b32 s64, s34, 7")
        b.e("s_lshl_b32 s3, s33, 2")
        b.e("s_add_u32 s64, s64, s3")
        b.e(f"s_add_u32 s64, s64, {WS_CFL}")
        b.e("s_lshl_b32 s65, s34, 8")
        b.e("s_sub_u32 s65, 1920, s65")
        b.e("v_mul_u32_u24 v32, s65, v0")
        b.blk(["s_cmp_eq_u32 s32, 0", f"s_cselect_b32 s64, s64, {BIG}"])
        b.blk(["s_mov_b64 exec, 3", ("buffer_store_dword v31, v32, s[20:23], s64 offen sc1", 'ln'), "s_mov_b64 exec, -1"])
        b.e("s_lshl_b32 s35, s34, 1")
        b.e("s_sub_u32 s36, 32, s35")
        b.e("s_add_u32 s35, s35, 2")
        b.e("s_lshl_b32 s44, s32, 12")
        b.e(f"s_mov_b32 s58, {XN_RB}")
        b.e("s_sub_u32 s3, 15, s34")
        b.e("s_lshl_b32 s45, s3, 2")
        b.e("s_add_u32 s45, s45, s32")
        b.e("s_lshl_b32 s46, s34, 2")
        b.e("s_add_u32 s46, s46, s32")
        srd_rec(b, 68, 42, 7340032)
        b.blk(["s_cmp_eq_u32 s32, 0", f"s_cselect_b32 s37, 0, {BIG}"])
        b.e("s_lshl_b32 s3, s33, 8")
        srd_rec(b, 16, 4, 0, "s3")
        b.e("s_sub_u32 s18, 8388608, s3")
        WQN = int(opt.get('wqn', 1))
        ln_ = 64 // WQN
        b.e(f"v_and_b32 v33, {ln_ - 1}, v0")
        b.e("v_lshrrev_b32 v32, 1, v33")
        b.e("v_and_b32 v33, 1, v0")
        b.e("v_lshlrev_b32 v32, 13, v32")
        b.e("v_lshl_add_u32 v45, v33, 7, v32")
        b.e("s_lshl_b32 s3, s32, 3")
        b.e("s_add_u32 s3, s3, s34")
        b.e(f"s_mul_i32 s47, s3, {ln_ // 2 * 8192}")
        WQ0 = int(opt.get('wq0', 10))
        sig = False
        for j in range(WQN):
            step = WQ0 + j * float(opt.get('wqs', 2))
            if step >= 6 and not sig:
                sig = True
                b.at(6)
                b.check_clear('ln')
                b.blk(["s_mov_b64 exec, 1", "buffer_atomic_add v30, v31, s[28:31], s37 offen sc1", "s_mov_b64 exec, -1"])
            b.at(step)
            b.e(f"buffer_load_dword v44, v45, s[16:19], s47 offen{opt.get('wqpf_ld', '')}", tag='pf')
            b.e(f"s_add_u32 s47, s47, {1024 // WQN * 8192}")
        b.e("v_lshrrev_b32 v32, 4, v0")
        b.e("v_and_b32 v33, 15, v0")
        b.e("s_lshl_b32 s3, s32, 4")
        b.e("v_add_u32 v34, s3, v32")
        b.e("v_lshlrev_b32 v36, 1, v32")
        b.e("v_xor_b32 v36, v36, v33")
        b.e("v_xor_b32 v37, 8, v36")
        if '2' in CPF:
            b.at(10)
            cp = code_prefetch("L_phase2", "L_k2_fin", 32, 6, 40, 43)
            cp = [x.replace("s8", "s3") for x in cp]
            b.blk(cp[:4])
            for x in cp[4:-3]: b.e(x)
            b.blk(cp[-3:-1])
            b.e(cp[-1])
        b.at(12)
        b.e("buffer_load_dword v30, v31, s[28:31], s37 offen sc1", tag='poll')
        for j in range(3): b.e(f"s_mov_b32 s{8+j}, s{16+j}")
        srd_rec(b, 16, 66, 16 << 20, WS_CTX)
        for j in range(4): b.e(f"s_mov_b32 s{48+j}, {j*31744}")
        b.e("v_lshlrev_b32 v35, 13, v34")
        b.e(f"v_lshl_add_u32 v{WV}, v36, 4, v35")
        b.e(f"v_lshl_add_u32 v{WV+1}, v37, 4, v35")
        b.e(f"v_lshlrev_b32 v{VX}, 4, v0")
        b.e(f"v_add_u32 v{VY}, 65536, v{VX}")
        b.e(f"v_add_u32 v{VDMA}, s44, v{VX}")
        b.e("v_mov_b32 v7, 0")
        b.e("v_lshlrev_b32 v35, 2, v32")
        b.e("v_sub_u32 v35, v33, v35")
        b.e("s_lshl_b32 s3, s45, 5")
        b.e(f"v_add_u32 v{VRA}, s3, v35")
        b.e("s_lshl_b32 s3, s46, 5")
        b.e(f"v_add_u32 v{VRB}, s3, v35")
        b.e(f"s_mul_i32 s3, s33, {KV_HEAD}")
        b.e(f"s_add_u32 s3, s3, {WS_KV}")
        srd_rec(b, 12, 66, 0, "s3")
        b.e(f"s_mul_i32 s14, s36, {KV_TILE}")
        b.at(13)
        b.e(f"s_mul_i32 s3, s45, {2*XN_RB}")
        b.e(f"v_add_u32 v{XV}, s3, v{VX}")
        b.e(f"s_mul_i32 s3, s46, {2*XN_RB}")
        b.e(f"v_add_u32 v{XV+1}, s3, v{VX}")
        if 'dbg_noxn' in opt:
            b.e(f"v_mov_b32 v{XV}, {BIG}"); b.e(f"v_mov_b32 v{XV+1}, {BIG}")
        if 'dbg_nowq' in opt: b.e("s_mov_b32 s10, 0")
        if 'dbg_nost' in opt: b.e("s_mov_b32 s26, 0")
        spin(f"L_spinA{tg}", f"L_spinAr{tg}", 0, 256, 30, 31, 3, 47)
        return b
    def ta_setup(b):
        b.e("v_lshrrev_b32 v42, 2, v33")
        b.e("v_lshl_add_u32 v43, v32, 3, v42")
        b.e("v_lshlrev_b32 v43, 8, v43")
        b.e("v_and_b32 v44, 3, v0")
        b.e("v_lshl_add_u32 v43, v44, 3, v43")
        b.e("v_and_b32 v44, 1, v32")
        b.e("v_lshl_add_u32 v42, v44, 2, v42")
        for db in range(8):
            b.e(f"v_xor_b32 v44, {db}, v42")
            b.e(f"v_lshl_add_u32 v{TA+db}, v44, 5, v43")

    def kstep(isV, st, ks, gaps, gtags, pre, b):
        for s in pre:
            if s.endswith(':'): k.label(s[:-1])
            else: k.e(s)
        order = [(it, jd) for it in range(8) for jd in range(8)]
        if st == 7 and ks == 1: order.sort(key=lambda x: frag_of(isV, *x))
        for n, (it, jd) in enumerate(order):
            fa, fw_ = A(FA(ks, it), 4), A(FW(ks, jd), 4)
            d = acc(isV, it, jd)
            c = "0" if (st == 0 and ks == 0) else d
            k.e(mfma(d, fa, fw_, c) if isV else mfma(d, fw_, fa, c))
            if n in gaps:
                for s in gaps[n]: k.e(s, tag=gtags.get(n))
            else:
                b.fill(k, 2 * st + ks + n / 64.0)
    def place_vm(g, gt, ops, start, step):
        gi = start; lead = []
        for t, s, tg in ops:
            if t == 's':
                if gi == 0: lead.append(s)
                else: g.setdefault(gi - 1, []).insert(0, s)
            elif t == 'g':
                assert gi not in g and gi < 64, gi
                g[gi] = [s]; gt[gi] = tg; gi += step
            else:
                q = gi - step + 1
                while q in g and (len(g[q]) >= 2 or g[q][-1].startswith(('buffer', 'ds_read_b64'))) or (q - start) % step == 0: q += 1
                g.setdefault(min(q, 63), []).append(s)
        return lead
    vq0, dq0 = list(k.vq), list(k.dq)
    for isV in (0, 1):
        if isV:
            k.label("L_k1_vpath"); k.win = []; k.vq = list(vq0); k.dq = list(dq0)
        b = phase1_stream(isV)
        if S1: k.nstamp = 0
        for st in range(8):
            p = st & 1
            k.stamp(S1)
            g = {}
            for n, grp in enumerate(reads(1, p)):
                g[2 * n + 1] = (["s_waitcnt lgkmcnt(6)"] if n % 4 == 3 else []) + grp
            kstep(isV, st, 0, g, {}, ["s_waitcnt lgkmcnt(0)"], b)
            g = {}; gt = {}
            if st < 7:
                for n, grp in enumerate(reads(0, p ^ 1)):
                    g[2 * n + 1] = (["s_waitcnt lgkmcnt(6)"] if n % 4 == 2 else []) + grp
            if st < 6:
                ops = []
                d = dma_ops(p); adv = adv_ops()
                ops = [(t, s, f'st{st+2}') for t, s in d[:10]] + [('v', s, None) for s in adv[:4]] + \
                      [(t, s, f'st{st+2}') for t, s in d[10:]] + [('v', s, None) for s in adv[4:]]
                lead = place_vm(g, gt, ops, 0, 4)
                if st < 6 - PFN:
                    g[62] = [pf_ops()[0]] + g.get(62, []); gt[62] = 'pf'
                    g.setdefault(63, []).append(pf_ops()[1])
                need = f'st{st+1}'
            elif st == 6:
                ops = []
                for c in range(4): ops += [(t, s, f'w{c}') for t, s in chunk_ops(('w', c))]
                lead = place_vm(g, gt, ops, 0, 4)
                need = 'st7'
            else:
                assert not b.items, len(b.items)
                ta_setup(b)
                b.items.append(('at', 15.3, None))
                for grp in wreads(0):
                    for s in grp: b.e(s)
                b.e("s_waitcnt lgkmcnt(8)")
                cv = Rec()
                for n in range(26):
                    cv.at(15 + (2 * n + 5) / 64.0)
                    r = SRC(n)[1]
                    for q in range(4): cv.e(f"v_cvt_pk_bf16_f32 v{PK(n)+q}, v{r+2*q}, v{r+2*q+1}")
                b.items += cv.items
                ops = []
                for kk in range(4): ops += [(t, s, f'x{kk}') for t, s in xn_ops(kk)]
                lead = place_vm(g, gt, ops, 0, 4)
                tg = 'v' if isV else 'k'
                lead += ["v_readfirstlane_b32 s3, v30", "s_nop 0", "s_or_b32 s3, s3, s37", "s_cmp_lt_u32 s3, 256", f"s_cbranch_scc1 L_spinA{tg}", f"L_spinAr{tg}:"]
                need = 'w0'
            k.e(f"s_waitcnt vmcnt({k.vm_n(need)}) lgkmcnt(0)" if k.vm_n(need) is not None else "s_waitcnt lgkmcnt(0)")
            kstep(isV, st, 1, g, gt, lead + ["s_barrier"], b)
        print(f"phase1 isV={isV}: items left {len(b.items)}")
        k.stamp(S1)
        b.drain(k)
        k.stamp(S1)
        if not isV:
            k.e("s_branch L_phase2")
            vqK = list(k.vq)
    assert vqK == k.vq
    k.label("L_phase2")
    k.win = []
    k.e("s_nop 7")
    k.stamp(ST)

    b = Rec()
    KY = 56
    SPK = float(opt.get('spk', 2))
    def kvstore(n):
        b.at(n / SPK)
        off = (n >> 4) * KV_TILE + (n & 15) * 1024
        if n % 4 == 0: b.e(f"s_add_u32 s37, s38, {off}")
        b.e(f"buffer_store_dwordx4 {V(PK(n),4)}, v{VX}, s[24:27], s37 offen offset:{(n % 4)*1024}{opt.get('kv_st', ' sc1')}", tag='kvst')
    for n in range(26):
        kvstore(n)
        if 8 <= n < 14:
            m = n + 18
            for q in range(8): b.e(f"v_accvgpr_read_b32 v{48+q}, a{SRC(m)[1]+q}")
            for q in range(4): b.e(f"v_cvt_pk_bf16_f32 v{PK(m)+q}, v{48+2*q}, v{49+2*q}")
    for n in range(26, 32): kvstore(n)
    b.e("v_mov_b32 v12, 1")
    b.e("v_and_b32 v1, 15, v0")
    b.e("v_lshlrev_b32 v1, 2, v1")
    b.e("s_lshr_b32 s6, s33, 1")
    b.e("s_lshl_b32 s6, s6, 7")
    b.e(f"s_add_u32 s6, s6, {WS_FLG}")
    b.blk(["s_cmp_eq_u32 s32, 0", f"s_cselect_b32 s6, s6, {BIG}"])
    SIG = int(opt.get('sig', 21))
    POL = float(opt.get('pol', 26.5))
    b.at(SIG)
    b.blk(["s_mov_b64 exec, 1", "buffer_store_dword v12, v7, s[20:23], s39 offen sc1", "s_mov_b64 exec, -1"])
    b.at(POL)
    b.e("buffer_load_dword v12, v1, s[20:23], s6 offen sc1", tag='poll')
    CK = int(opt.get('ck', 29))
    n_ = 0
    for j in (0, 2, 1, 3, 4, 5, 6):
        for t, s in chunk_ops(('kv', j)):
            if t == 'g':
                b.at(max(CK + n_ * float(opt.get('kvp', 0.09)), {4: 25, 5: 27, 6: 29}.get(j, 0))); n_ += 1
            b.e(s, tag=f'c{16+j}')
    def spinB():
        k.e("s_mov_b32 s59, 0x400000")
        k.label("L_spinB_l")
        k.e(f"s_sleep {opt.get('slp', 4)}")
        k.e("buffer_load_dword v12, v1, s[20:23], s6 offen sc1")
        k.e("s_sub_u32 s59, s59, 1")
        k.e("s_cmp_eq_u32 s59, 0")
        k.e("s_cbranch_scc1 L_spinBx")
        k.e("s_waitcnt vmcnt(0)")
        k.e("v_cmp_ne_u32 vcc, 1, v12")
        k.e("s_cbranch_vccnz L_spinB_l")
        k.label("L_spinBx")
        k.e("s_waitcnt vmcnt(0)")
    ool.append(("L_spinB", spinB, "L_spinBr"))

    b1 = b
    b = Rec()
    srd_rec(b, 60, 40, 7340032)
    b.at(17 / SPK)
    b.e(f"s_mov_b32 s3, {WS_KEYS}")
    b.e(f"s_mov_b32 s47, {WS_KEYS + 4096}")
    for i in range(8):
        b.e(f"buffer_load_dwordx4 {V(KY+4*i,4)}, v{VX}, s[20:23], s{3 if i < 4 else 47} offen offset:{(i % 4)*1024} sc1", tag='keys')
    b.at(17 / SPK + 8)
    b.wait_vm('keys')
    b.e(f"v_max_u32 v14, v{KY}, v{KY+1}")
    b.e(f"v_min_u32 v15, v{KY}, v{KY+1}")
    for i in range(2, 32):
        b.e(f"v_med3_u32 v15, v14, v15, v{KY+i}"); b.e(f"v_max_u32 v14, v14, v{KY+i}")
    def wmax(v, sdst):
        for m in ["quad_perm:[1,0,3,2]", "quad_perm:[2,3,0,1]", "row_half_mirror", "row_mirror"]:
            b.blk([f"v_max_u32_dpp {v}, {v}, {v} {m} row_mask:0xf bank_mask:0xf"])
        b.blk([f"v_readlane_b32 s3, {v}, 0", f"v_readlane_b32 s47, {v}, 16"])
        b.blk([f"v_readlane_b32 s4, {v}, 32", f"v_readlane_b32 s5, {v}, 48"])
        b.blk(["s_max_u32 s3, s3, s47", "s_max_u32 s4, s4, s5", f"s_max_u32 s{sdst}, s3, s4"])
    b.e("v_mov_b32 v13, v14")
    wmax("v13", 40)
    b.blk(["v_cmp_eq_u32 vcc, s40, v14"])
    b.blk(["v_cndmask_b32 v13, v14, v15, vcc"])
    wmax("v13", 41)
    for t in range(2):
        b.e(f"s_and_b32 s3, s{40+t}, 0xffff")
        b.e(f"s_sub_u32 s{42+t}, 0xffff, s3")
    for t in range(2):
        b.e(f"v_mov_b32 v60, s{40+t}")
        b.e("v_not_b32 v61, v60")
        b.e("v_ashrrev_i32 v61, 31, v61")
        b.e("v_or_b32 v61, 0x80000000, v61")
        b.e("v_xor_b32 v60, v60, v61")
        b.e("v_and_b32 v60, 0xffff0000, v60")
        b.e("v_mul_f32 v60, 0xbfb8aa3b, v60")
        b.e("v_exp_f32 v60, v60")
        b.e("v_add_f32 v60, 1.0, v60")
        b.e("v_rcp_f32 v60, v60")
        b.e("v_cvt_pk_bf16_f32 v60, v60, v60")
        b.e(f"v_and_b32 v{64+t}, 0xffff0000, v60")
    for r in range(16): b.e(f"v_mov_b32 v{LS+r}, 0")
    WARM = opt.get('warm', '1') == '1'
    if WARM:
        b.e("s_mul_i32 s3, s34, s34")
        b.e("s_lshl_b32 s47, s33, 6")
        b.e("s_add_u32 s3, s3, s47")
        b.e("s_lshl_b32 s3, s3, 2")
        b.e("s_add_u32 s3, s3, s32")
        b.e("s_lshl_b32 s3, s3, 7")
        b.e("s_sub_u32 s3, s3, 512")
        b.e("v_min_u32 v13, 32, v0")
        b.e("v_mov_b32 v28, s92"); b.e("v_mov_b32 v29, s93")
        b.e("v_mov_b32 v30, v13")
        for first, lo, hi in ((8, 94, 95), (15, 100, 101), (19, 60, 61), (26, 68, 69)):
            b.e(f"v_mov_b32 v14, s{lo}"); b.e(f"v_mov_b32 v15, s{hi}")
            b.blk([f"v_cmp_le_u32 vcc, {first}, v13", f"v_subrev_u32 v31, {first}, v13"])
            b.blk(["v_cndmask_b32 v28, v28, v14, vcc", "v_cndmask_b32 v29, v29, v15, vcc"])
            b.blk(["v_cndmask_b32 v30, v30, v31, vcc"])
        b.e("v_lshlrev_b32 v30, 20, v30")
        b.e("v_add_u32 v30, s3, v30")
        b.e("v_ashrrev_i32 v31, 31, v30")
        b.e("v_lshl_add_u64 v[28:29], v[30:31], 0, v[28:29]")
        b.e("s_mov_b32 s40, 512"); b.e("s_mov_b32 s41, 0")
    b.e("v_readfirstlane_b32 s100, v64")
    b.e("v_readfirstlane_b32 s101, v65")
    b.at(SIG)
    for j in range(3): b.e(f"s_mov_b32 s{24+j}, s{60+j}")
    b.e("s_add_u32 s3, s34, 7")
    b.e("s_and_b32 s3, s3, 7")
    b.e("s_lshl_b32 s3, s3, 5")
    b.e("s_add_u32 s3, s3, s33")
    b.e("s_mul_i32 s92, s3, 2341")
    b.e("s_lshr_b32 s92, s92, 16")
    b.e("s_mul_i32 s47, s92, 28")
    b.e("s_sub_u32 s4, s3, s47")
    b.e(f"s_mul_i32 s5, s92, {128*7168}")
    b.e("s_lshl_b32 s47, s4, 8")
    b.e("s_add_u32 s5, s5, s47")
    b.e(f"s_mov_b32 s94, {QSCALE}")
    b.e(f"s_mov_b32 s95, {QSCALE}")
    b.e("s_sub_u32 s55, 15, s34")
    b.e("s_sub_u32 s45, s36, 3")
    b.e("s_sub_u32 s46, s35, 3")
    b.e("s_max_i32 s46, s46, 0")
    b.e("s_add_u32 s53, s44, 65536")
    b.e("s_mov_b32 s54, s44")
    b.e("s_sub_u32 s35, s35, 1")
    b.e("s_sub_u32 s36, s36, 1")
    b2 = b
    PKM = opt.get('pkm', '0') == '1'
    def conv_items(qb):
        r_ = Rec()
        for s_ in range(4):
            r = QA(2 * s_, qb)
            if PKM:
                for e_ in range(0, 8, 2): r_.e(f"v_pk_mul_f32 {V(r+e_,2)}, {V(r+e_,2)}, s[94:95]")
            else:
                for e_ in range(8): r_.e(f"v_mul_f32 v{r+e_}, s94, v{r+e_}")
            for e_ in range(4): r_.e(f"v_cvt_pk_bf16_f32 v{r+e_}, v{r+2*e_}, v{r+2*e_+1}")
            for e_ in range(4): r_.e(f"v_accvgpr_write_b32 a{Q(qb,s_)+e_}, v{r+e_}")
        r_.items.append(('mark', f'conv{qb}', None))
        return r_.items
    xsched = {0: [4, 5], 1: [6, 7], 2: [8, 9]}
    for kk in range(3, 25): xsched[kk] = [kk + 7]
    for kk in range(32):
        st, ks = kk // 2, kk & 1
        k.stamp(S2 and kk in (0, 4, 8, 12, 16, 20, 24, 28, 31))
        need = [f'x{kk}']
        if ks == 1 and st < 15: need.append(f'w{st+1}')
        if kk == SIG:
            assert not any(it[2] == 'kvst' for it in b1.items), "stores not all issued before SIG"
            need.append('kvst')
        if kk == CK: need.append('poll')
        if kk == 31: need.append('c16')
        w = [x for x in (k.vm_n(t) for t in need) if x is not None]
        k.e("s_waitcnt " + (f"vmcnt({min(w)}) " if w else "") + "lgkmcnt(0)")
        if kk == CK:
            assert not any('vcc' in str(it[1]) for it in b2.items)
            k.e("s_cmp_lg_u32 s32, 0")
            k.e("s_cbranch_scc1 L_spinBr")
            k.e("v_cmp_ne_u32 vcc, 1, v12")
            k.e("s_cbranch_vccnz L_spinB")
            k.label("L_spinBr")
        if ks == 1: k.e("s_barrier")
        g = {}; gt = {}
        if kk + 1 < 32:
            for n, grp in enumerate(wreads(kk + 1)):
                g[1 + 3 * n] = (["s_waitcnt lgkmcnt(6)"] if n == 5 else []) + grp
        vm = []
        if ks == 1 and st + 4 < 16: vm += [(t, s, f'w{st+4}') for t, s in chunk_ops(('w', st + 4))]
        for x in xsched.get(kk, []): vm += [(t, s, f'x{x}') for t, s in xn_ops(x)]
        ng = sum(1 for x in vm if x[0] == 'g')
        free = [x for x in range(2, 32) if x not in g]
        pick = [free[(j * len(free)) // ng] for j in range(ng)] if ng else []
        j = 0
        for t, s, tg in vm:
            if t == 'g': g[pick[j]] = [s]; gt[pick[j]] = tg; j += 1
            elif t == 's':
                q = pick[j] - 1
                if q in gt: g[q].append(s)
                else: g.setdefault(q, []).insert(0, s)
            else: g[pick[j - 1]].append(s)
        order = [(db, qb) for db in range(8) for qb in range(4)]
        if kk == 31:
            order = [(db, qb) for qb in range(4) for db in range(8)]
            assert not b2.items, len(b2.items)
            for kb in range(2):
                for s_ in range(4): b2.e(f"ds_read_b128 {A(FR(kb,s_),4)}, v{VY} offset:{(kb*4+s_)*1024}", tag=f'k{kb}')
            b2.at(31 + 12 / 32.0)
            b2.items += conv_items(0) + conv_items(1)
        elif kk > 24:
            for r in range(16): b2.e(f"v_accvgpr_write_b32 a{XR(kk-1,0)+r}, 0")
        for n, (db, qb) in enumerate(order):
            k.e(mfma(V(QA(db, qb), 4), A(WF(kk, db), 4), A(XR(kk, qb), 4), V(QA(db, qb), 4) if kk else "0"))
            if n in g:
                for s in g[n]: k.e(s, tag=gt.get(n))
            else:
                nl = len(k.lines)
                b1.fill(k, kk + n / 32.0)
                if len(k.lines) == nl: b2.fill(k, kk + n / 32.0)
    print("phase2 items left", len(b1.items), len(b2.items))
    b1.drain(k)
    k.stamp(ST or S2)
    XS = 160
    def ffn_issue():
        for t in range(2):
            k.e(f"s_lshr_b32 s3, s{42+t}, 4")
            k.e(f"s_mul_i32 s3, s3, {XN_RB}")
            k.e(f"s_and_b32 s47, s{42+t}, 15")
            k.e("s_lshl_b32 s47, s47, 4")
            k.e("s_add_u32 s3, s3, s47")
            k.e(f"v_mov_b32 v{28+t}, s3")
        k.e("v_lshrrev_b32 v24, 4, v0")
        k.e("v_and_b32 v25, 15, v0")
        k.e("v_cmp_eq_u32 vcc, 1, v25")
        k.e("s_lshl_b32 s3, s32, 4")
        k.e("v_add_u32 v26, s3, v24")
        k.e("v_cndmask_b32 v28, v28, v29, vcc")
        k.e("v_lshl_add_u32 v28, v24, 8, v28")
        k.e("v_mul_u32_u24 v26, 7168, v26")
        k.e("v_lshlrev_b32 v24, 1, v24")
        k.e("v_xor_b32 v24, v24, v25")
        k.e("v_xor_b32 v25, 8, v24")
        k.e("v_lshl_add_u32 v24, v24, 4, v26")
        k.e("v_lshl_add_u32 v25, v25, 4, v26")
        k.e("s_lshl_b32 s3, s92, 12")
        for q in range(4):
            k.e(f"buffer_load_dwordx4 {A(XS+4*q,4)}, v28, s[20:23], s3 offen offset:{q*1024} sc1")
        ops = []
        for m, srd in enumerate((24, 68)):
            for h in range(2):
                for q in range(4):
                    pre = [f"s_add_u32 m0, s54, {m*32768 + h*16384}"] if q == 0 else []
                    ops.append((pre + [f"s_add_u32 s3, s5, {h*64*7168 + q*27648}"],
                                f"buffer_load_dwordx4 v{24 + (q >> 1)}, {S(srd,4)}, s3 offen offset:{q*1024}{ffn_ld} lds"))
        return ops
    def ffn_finish():
        k.e("v_lshrrev_b32 v24, 4, v0")
        k.e("v_bfe_u32 v25, v0, 2, 2")
        k.e("v_lshl_add_u32 v26, v24, 3, v25")
        k.e("v_lshlrev_b32 v26, 8, v26")
        k.e("v_and_b32 v27, 3, v0")
        k.e("v_lshl_add_u32 v26, v27, 3, v26")
        k.e("v_and_b32 v27, 1, v24")
        k.e("v_lshl_add_u32 v25, v27, 2, v25")
        k.e("s_lshl_b32 s3, s32, 1")
        k.e("v_xor_b32 v25, s3, v25")
        k.e("v_lshl_add_u32 v26, v25, 5, v26")
        k.e("s_sub_u32 s3, s54, s44")
        k.e("v_add_u32 v26, s3, v26")
        k.e("v_xor_b32 v27, 32, v26")
        k.e("s_waitcnt vmcnt(8) lgkmcnt(0)")
        k.e("s_barrier")
        for m in range(2):
            for q in range(4):
                for j in range(2):
                    for rd in range(2):
                        k.e(f"ds_read_b64_tr_b16 {V(128 + 32*m + 8*q + 4*j + 2*rd, 2)}, v{26+j} offset:{m*32768 + q*8192 + rd*1024}", tag=f'f{m}')
        k.e("v_and_b32 v25, 15, v0")
        k.e("v_mul_u32_u24 v28, 14336, v25")
        k.e("v_lshl_add_u32 v28, v24, 4, v28")
        k.e(f"v_mov_b32 v29, {BIG}")
        k.e("v_cmp_gt_u32 vcc, 2, v25")
        k.e(f"s_mul_i32 s3, s92, {4*14336}")
        k.e("s_lshl_b32 s47, s4, 9")
        k.e("s_add_u32 s3, s3, s47")
        k.e("v_cndmask_b32 v28, v29, v28, vcc")
        k.e("s_lshl_b32 s47, s32, 7")
        k.e("s_add_u32 s3, s3, s47")
        k.e(f"s_add_u32 s3, s3, {WS_HP}")
        for m in range(2):
            k.wait_ds(f'f{m}')
            for q in range(4):
                for j in range(2):
                    d = V(224 + 8 * m + 4 * j, 4)
                    k.e(mfma(d, V(128 + 32*m + 8*q + 4*j, 4), A(XS + 4*q, 4), d if q else "0"))
    def ffn_store():
        k.e("s_cmp_lg_u32 s34, 0")
        k.e(f"s_cselect_b32 s3, s3, {1 << 23}")
        k.e(f"s_add_u32 s7, s3, {2*14336}")
        for m in range(2):
            for j in range(2):
                k.e(f"buffer_store_dwordx4 {V(224 + 8*m + 4*j, 4)}, v28, s[20:23], s{7 if m else 3} offen offset:{j*64} sc1", tag='hps')

    def kread(reg, off, kb):
        return [f"ds_read_b128 {A(FR(kb,s_),4)}, v{reg} offset:{off + (kb*4+s_)*1024}" for s_ in range(4)]
    def vread(reg, off, vg):
        return [f"ds_read_b128 {A(FR(vg,j),4)}, v{reg} offset:{off + (vg*4+j)*1024}" for j in range(4)]
    def qk_mfmas(par, nq, zero=False):
        out = []
        for kb in range(4):
            grp = []
            for qb in range(nq):
                d = V(Sr(par, qb, kb), 4)
                for s_ in range(4):
                    c = d if s_ else ("0" if zero else V(NEGM + 4 * qb, 4))
                    grp.append(mfma(d, A(FR(kb, s_), 4), A(Q(qb, s_), 4), c))
            out.append(grp)
        return out
    def pv_mfmas(par, nq):
        out = []
        for vg in range(4):
            grp = []
            for dd in range(2):
                for qb in range(nq):
                    for ks in range(2):
                        o = A(O(qb, 2 * vg + dd), 4)
                        grp.append(mfma(o, A(FR(vg, 2 * dd + ks), 4), V(P(par, qb, ks), 4), o))
            if vg < nq:
                for ks in range(2):
                    l = V(LS + 4 * vg, 4)
                    grp.append(mfma(l, V(ONES, 4), V(P(par, vg, ks), 4), l))
            out.append(grp)
        return out
    def sm_pairs(par, nq, ks):
        out = []
        for kq in range(2):
            for qb in range(nq):
                s0 = Sr(par, qb, 2 * ks + kq)
                for h in range(2):
                    out.append((s0 + 2 * h, s0 + 2 * h + 1, P(par, qb, ks) + 2 * kq + h))
        return out
    class SM:
        def __init__(self, pairs, first, check):
            self.pairs = pairs; self.ne = 0; self.nc = 0; self.no = 0; self.first = first
            self.tail = [f"v_and_b32 v{T0}, 0x40004000, v{ORR}", f"v_cmp_ne_u32 vcc, 0, v{T0}"] if check else []
            self.e_done = 0; self.extra = []
        def tick(self): self.e_done = self.ne
        def exp_ready(self): return self.ne < 2 * len(self.pairs) and self.ne // 2 - self.nc < 4
        def exp(self):
            j, h = self.ne // 2, self.ne & 1; self.ne += 1
            return f"v_exp_f32 v{ET + 2*(j % 4) + h}, v{self.pairs[j][h]}"
        def plain_avail(self):
            n = min(self.e_done // 2, len(self.pairs)) - self.nc
            n += self.nc // 2 - self.no
            if self.no == len(self.pairs) // 2: n += len(self.tail)
            return n + len(self.extra)
        def plain(self):
            if self.nc < min(self.e_done // 2, len(self.pairs)):
                j = self.nc; self.nc += 1
                return f"v_cvt_pk_bf16_f32 v{self.pairs[j][2]}, v{ET + 2*(j % 4)}, v{ET + 2*(j % 4) + 1}"
            if self.no < self.nc // 2:
                j = self.no; self.no += 1
                a, b = self.pairs[2 * j][2], self.pairs[2 * j + 1][2]
                if self.first and j == 0: return f"v_or_b32 v{ORR}, v{a}, v{b}"
                return f"v_or3_b32 v{ORR}, v{ORR}, v{a}, v{b}"
            if self.no == len(self.pairs) // 2 and self.tail: return self.tail.pop(0)
            if self.extra: return self.extra.pop(0)
            return None
        def left_exp(self): return 2 * len(self.pairs) - self.ne
        def left_plain(self): return len(self.pairs) - self.nc + len(self.pairs) // 2 - self.no + len(self.tail) + len(self.extra)
        def done(self): return self.left_exp() == 0 and self.left_plain() == 0
        def drain(self):
            while not self.done():
                self.tick()
                if self.exp_ready():
                    k.e(self.exp())
                    if self.exp_ready(): k.e(self.exp())
                    x = self.plain()
                    if x: k.e(x)
                else:
                    k.e(self.plain())
    def phase(groups, gtags, reads, rtags, sm, vm, nexttag):
        total = sum(len(g) for g in groups)
        vmpos = {}
        if vm:
            step = max(2, (total - 2) // len(vm))
            for j, x in enumerate(vm): vmpos[1 + j * step] = x
        n = 0
        k.wait_ds(gtags[0])
        for gi, grp in enumerate(groups):
            rq = list(reads[gi])
            for mi, m in enumerate(grp):
                k.e(m)
                sm.tick()
                scal = []
                if n + 1 in vmpos: scal += vmpos[n + 1][0]
                lastm = mi == len(grp) - 1
                if n in vmpos:
                    for s in scal: k.e(s)
                    k.e(vmpos[n][1], tag='kv')
                    slots = 0
                else:
                    for s in scal: k.e(s)
                    if lastm:
                        nt = gtags[gi + 1] if gi + 1 < len(groups) else nexttag
                        if nt: k.wait_ds(nt)
                    slots = 2
                    gaps_left = len([x for x in range(n, n + len(grp) - mi) if x not in vmpos])
                    want_d = len(rq) > 0 and (sm.plain_avail() > 0 or not sm.exp_ready() or len(rq) >= gaps_left - 1)
                    if want_d:
                        k.e(rq.pop(0), tag=rtags[gi]); slots -= 1
                        if rq and (sm.plain_avail() == 0 or len(rq) >= gaps_left):
                            k.e(rq.pop(0), tag=rtags[gi]); slots -= 1
                    if slots == 2 and sm.exp_ready() and not (sm.plain_avail() >= 3 and not rq):
                        k.e(sm.exp()); slots = 0
                    while slots > 0:
                        x = sm.plain()
                        if not x: break
                        k.e(x); slots -= 1
                if lastm:
                    for s in rq: k.e(s, tag=rtags[gi])
                    nt = gtags[gi + 1] if gi + 1 < len(groups) else nexttag
                    if nt: k.wait_ds(nt)
                n += 1
        sm.drain()

    def mask_block(par, q0, vr):
        k.e("s_nop 7")
        k.e("s_add_u32 s3, s37, 1")
        k.e("s_lshl_b32 s3, s3, 6")
        k.e(f"v_subrev_u32 v{T0}, s3, v{vr}")
        for c in range(-1, 4):
            for r in range(4): k.e(f"v_cmp_gt_i32 s[{56+2*r}:{57+2*r}], {16*c + r}, v{T0}")
            for qq in range(2):
                kb = c + qq
                if 0 <= kb < 4:
                    for r in range(4):
                        x = Sr(par, q0 + qq, kb) + r
                        k.e(f"v_cndmask_b32 v{x}, v{x}, v{NINF}, s[{56+2*r}:{57+2*r}]")
        k.e("s_nop 1")
    def rowmax(par, qb, d, o=k):
        s0 = Sr(par, qb, 0)
        o.e(f"v_max3_f32 v{d}, v{s0}, v{s0+1}, v{s0+2}")
        for r in range(3, 15, 2): o.e(f"v_max3_f32 v{d}, v{d}, v{s0+r}, v{s0+r+1}")
        o.e(f"v_max_f32 v{d}, v{d}, v{s0+15}")
        o.e(f"v_mov_b32 v{T0}, v{d}")
        o.e(f"v_permlane16_swap_b32 v{T0}, v{d}")
        o.e(f"v_max_f32 v{d}, v{d}, v{T0}")
        o.e(f"v_mov_b32 v{T0}, v{d}")
        o.e(f"v_permlane32_swap_b32 v{T0}, v{d}")
        o.e(f"v_max_f32 v{d}, v{d}, v{T0}")
        o.e(f"v_add_f32 v{d}, {opt.get('moff', '0x41f80000')}, v{d}")
    def fallback(par, nq, nqn):
        k.e("s_nop 7")
        for qb in range(nq):
            rowmax(par, qb, 21)
            k.e("v_max_f32 v21, 0, v21")
            for r in range(16): k.e(f"v_sub_f32 v{Sr(par,qb,0)+r}, v{Sr(par,qb,0)+r}, v21")
            if qb < nqn:
                for r in range(16): k.e(f"v_sub_f32 v{Sr(par^1,qb,0)+r}, v{Sr(par^1,qb,0)+r}, v21")
            for r in range(4): k.e(f"v_sub_f32 v{NEGM+4*qb+r}, v{NEGM+4*qb+r}, v21")
            k.e("v_exp_f32 v22, -v21")
            for r in range(4): k.e(f"v_mul_f32 v{LS+4*qb+r}, v{LS+4*qb+r}, v22")
            for r0 in range(0, 32, 8):
                for r in range(8): k.e(f"v_accvgpr_read_b32 v{ET+r}, a{O(qb,0)+r0+r}")
                for r in range(8): k.e(f"v_mul_f32 v{ET+r}, v{ET+r}, v22")
                for r in range(8): k.e(f"v_accvgpr_write_b32 a{O(qb,0)+r0+r}, v{ET+r}")
        for ks in range(2):
            for (s0, s1, pd) in sm_pairs(par, nq, ks):
                k.e(f"v_exp_f32 v{ET}, v{s0}")
                k.e(f"v_exp_f32 v{ET+1}, v{s1}")
                k.e(f"v_cvt_pk_bf16_f32 v{pd}, v{ET}, v{ET+1}")
        k.e("s_nop 1")
    SPLIT = {4: (32, 16, 8), 2: (17, 8, 4), 0: (0, 0, 0)}
    def tile_sm(par, nq, start, check):
        sm = SM(sm_pairs(par, nq, 0) + sm_pairs(par, nq, 1), True, check)
        sm.ne, sm.nc, sm.no = start; sm.e_done = sm.ne
        return sm
    def pack(ngaps, vmg, dsl, sm, limit, last_sm, pre):
        plan = {}
        dsl = list(dsl)
        def exp_ok(): return sm.exp_ready() and (limit is None or sm.ne < limit[0])
        def plain_n():
            n = min(sm.e_done // 2, len(sm.pairs), limit[1] if limit else 1 << 30) - sm.nc
            n += min(sm.nc // 2, limit[2] if limit else 1 << 30) - sm.no
            if limit is None and sm.no == len(sm.pairs) // 2: n += len(sm.tail)
            return n + len(sm.extra)
        def take_plain():
            if limit is not None:
                c_ok = sm.nc < min(sm.e_done // 2, limit[1]); o_ok = sm.no < min(sm.nc // 2, limit[2])
                if not c_ok and not o_ok: return sm.extra.pop(0) if sm.extra else None
                if not c_ok:
                    keep = sm.e_done; sm.e_done = 2 * sm.nc; x = sm.plain(); sm.e_done = keep; return x
            return sm.plain()
        for g in range(-1 if pre else 0, ngaps):
            if g in vmg: sm.tick(); continue
            sm.tick()
            ops = []
            smok = g <= last_sm
            av = [d for d in dsl if d[2] <= g]
            free_to = lambda dl: len([x for x in range(g, dl + 1) if x not in vmg])
            urgent = any(sum(1 for d in dsl if d[3] <= e[3]) >= 2 * free_to(e[3]) - 1 for e in av)
            pn = plain_n() if smok else 0
            if smok and exp_ok() and not urgent and not (av and pn) and not (pn >= 3):
                ops.append((sm.exp(), None))
            else:
                slots = 2
                if av and g >= 0:
                    d = av.pop(0); dsl.remove(d); ops.append((d[0], d[1])); slots -= 1
                    if av and (pn == 0 or sum(1 for x in dsl if x[3] <= av[0][3]) >= 2 * free_to(av[0][3]) - 1):
                        d = av.pop(0); dsl.remove(d); ops.append((d[0], d[1])); slots -= 1
                while slots and smok:
                    x = take_plain()
                    if not x: break
                    ops.append((x, None)); slots -= 1
                if not ops and smok and exp_ok(): ops.append((sm.exp(), None))
            plan[g] = ops
            if g == last_sm:
                while (limit is None and not sm.done()) or (limit is not None and ((sm.ne, sm.nc, sm.no) != limit or sm.extra)):
                    sm.tick()
                    x = sm.exp() if exp_ok() else take_plain()
                    plan[g].append((x, None)); k.overflow += 1
        assert not dsl, dsl
        return plan
    k.overflow = 0
    SLK = int(opt.get('slk', -1))
    def emit_phase(mf, plan, vmg, scal, bg=None):
        for s_, tg in plan.get(-1, []): k.e(s_, tag=tg)
        for g, m in enumerate(mf):
            k.e(m)
            for x in scal.get(g, []):
                if isinstance(x, tuple): k.wait_ds(x[1])
                elif x.endswith(':'): k.label(x[:-1])
                else: k.e(x)
            if g in vmg: k.e(vmg[g], tag='kv')
            else:
                for s_, tg in plan.get(g, []): k.e(s_, tag=tg)
                if bg and not plan.get(g) and g not in scal: bg.fill(k, 99, 3)
        if bg: bg.drain(k)
    def starts(groups):
        out = [0]
        for g in groups: out.append(out[-1] + len(g))
        return out
    def iteration(par, nq, nqn, maskq0, name, tail):
        kreg, koff = (VX, 32768) if par == 0 else (VY, 0)
        vreg, voff = (VX, 16384) if par == 0 else (VX, 49152)
        nreg, noff = (VY, 0) if par == 0 else (VY, 32768)
        k.hot = True
        ov0 = k.overflow
        k.dq = ['k1'] * 4
        fb, fr = f"L_k2_fb_{name}", f"L_k2_fbr_{name}"
        ool.append((fb, lambda: fallback(par, nq, nqn), fr))
        sm = tile_sm(par, nq, SPLIT[nq], True)
        if par == 0:
            k.e(f"v_xor_b32 v{VX}, 65536, v{VX}")
            k.e(f"v_xor_b32 v{VY}, 65536, v{VY}")
        if nqn:
            if nqn == 4 and WARM: sm.extra = ["v_lshl_add_u64 v[28:29], s[40:41], 0, v[28:29]"]
            grp = qk_mfmas(par ^ 1, nqn); st_ = starts(grp); n1 = st_[-1]
            slack = SLK if nqn == 2 else 6
            dsl = [(x, 'k2', 0, st_[1] + slack) for x in kread(kreg, koff, 2)] + [(x, 'k3', 0, st_[2] + slack) for x in kread(kreg, koff, 3)] + \
                  [(x, 'v0', st_[1], st_[3] + slack) for x in vread(vreg, voff, 0)] + [(x, 'v1', st_[2], n1 - 1) for x in vread(vreg, voff, 1)]
            scal = {st_[1] - 1: [('w', 'k1')], st_[2] - 1: [('w', 'k2')], st_[3] - 1: [('w', 'k3')],
                    n1 - 5: [f"s_cmp_ge_u32 s37, s{45 if maskq0 == 0 else 46}"], n1 - 4: ["s_waitcnt vmcnt(12)"], n1 - 3: ["s_barrier"],
                    n1 - 2: [('w', 'v0')], n1 - 1: [f"s_cbranch_vccnz {fb}", fr + ":"]}
            if nq == 2:
                scal[n1 - 7] = ["s_cmp_lt_u32 s37, s52"]
                scal[n1 - 6] = [f"s_cbranch_scc1 L_nw_{name}", "s_waitcnt vmcnt(12)", f"L_nw_{name}:"]
                del scal[n1 - 4]
            vmg = {}
            step = (n1 - 8) / 4
            for j in range(4):
                q = int(1 + j * step)
                while q in scal or (j == 0 and q - 1 in scal): q += 1
                vmg[q] = f"buffer_load_dwordx4 v{VDMA}, s[12:15], s38 offen offset:{j*1024}{kv_ld} lds"
                if j == 0: scal[q - 1] = ["s_mov_b32 m0, s53" if par == 0 else "s_add_u32 m0, s53, 32768"]
            plan = pack(n1, vmg, dsl, sm, None, n1 - 2, par == 1)
            emit_phase(sum(grp, []), plan, vmg, scal)
        else:
            for s in p4_ptr_loads(): k.e(s)
            k.e("s_waitcnt lgkmcnt(0)")
            for s in vread(vreg, voff, 0): k.e(s, tag='v0')
            for s in vread(vreg, voff, 1): k.e(s, tag='v1')
            k.hot = False
            for pre, ld in ffn_issue():
                for x in pre: k.e(x)
                k.e(ld)
                for _ in range(2):
                    sm.tick()
                    if sm.exp_ready(): k.e(sm.exp())
                    elif not sm.done(): k.e(sm.plain())
            sm.drain()
            k.wait_ds('v0')
            k.hot = True
            k.e(f"s_cbranch_vccnz {fb}")
            k.label(fr)
        grp = pv_mfmas(par, nq); st_ = starts(grp); n2 = st_[-1]
        slack = SLK if nq == 2 else 6
        dsl = [(x, 'v2', 0, st_[1] + slack) for x in vread(vreg, voff, 2)] + [(x, 'v3', 0, st_[2] + slack) for x in vread(vreg, voff, 3)]
        scal = {st_[1] - 1: [('w', 'v1')], st_[2] - 1: [('w', 'v2')], st_[3] - 1: [('w', 'v3')]}
        vmg = {}
        if nqn:
            dsl += [(x, 'k0', st_[1], st_[3] + slack - 1) for x in kread(nreg, noff, 0)] + [(x, 'k1', st_[2], n2 - 2) for x in kread(nreg, noff, 1)]
            mb, mr = f"L_k2_mk_{name}", f"L_k2_mkr_{name}"
            ool.append((mb, lambda: mask_block(par ^ 1, maskq0, VRA if maskq0 == 0 else VRB), mr))
            scal[0] = [f"s_cbranch_scc1 {mb}", mr + ":"]
            scal[n2 - 2] = [('w', 'k0')]
            if len(tail) == 2: scal[n2 - 3] = [tail[0]]
            if tail: scal[n2 - 1] = [tail[-1]]
            mv = "s_add_u32 m0, s54, 49152" if par == 0 else "s_add_u32 m0, s53, 16384"
            vm = [f"buffer_load_dwordx4 v{VDMA}, s[12:15], s39 offen offset:{j*1024}{kv_ld} lds" for j in range(4)]
            if nqn == 4 and WARM: vm.append("global_load_dword v30, v[28:29], off")
            step = (n2 - 4) / len(vm)
            pos = []
            for j in range(len(vm)):
                q = int(2 + j * step)
                while q in scal or q in vmg or (j == 0 and q - 1 in scal): q += 1
                vmg[q] = vm[j]; pos.append(q)
                if j == 0: scal[q - 1] = [mv]
            def put(x, lo):
                q = lo
                while q in scal or q in vmg: q += 1
                assert q < n2 - 3, (x, q)
                scal[q] = [x]
            if name == "ne":
                q = 3
                while any(x in scal or x in vmg for x in (q, q + 1)): q += 1
                scal[q] = ["s_cmp_eq_u32 s37, s52"]; scal[q + 1] = ["s_cbranch_scc1 L_pubB", "L_pubBr:"]
                def pubB():
                    k.e("v_mov_b32 v24, 1"); k.e("v_mov_b32 v25, 0")
                    k.e("s_mov_b64 exec, 1")
                    k.e("buffer_store_dword v24, v25, s[20:23], s64 offen sc1")
                    k.e("s_mov_b64 exec, -1")
                ool.append(("L_pubB", pubB, "L_pubBr"))
                put("s_add_u32 s37, s37, 1", q + 2)
            else:
                put("s_add_u32 s37, s37, 1", 1)
            put(f"s_add_u32 s38, s38, {KV_TILE}", 1)
            if par == 1:
                put("s_xor_b32 s53, s53, 65536", pos[0]); put("s_xor_b32 s54, s54, 65536", pos[0])
            put(f"s_add_u32 s39, s39, {KV_TILE}", pos[3] + 1)
        sm = tile_sm(par ^ 1, nqn, (0, 0, 0), False)
        plan = pack(n2 - 1 if tail else n2, vmg, dsl, sm, SPLIT[nqn], n2 - 2 if tail else n2 - 1, False)
        if not nqn: k.hot = False
        emit_phase(sum(grp, []), plan, vmg, scal, None if nqn else p4_setup(opt))
        print(f"iteration {name}: overflow ops {k.overflow - ov0}")
        k.hot = False
    def epilogue(q0, srow):
        k.e(f"s_lshl_b32 s3, s{srow}, 20")
        k.e("s_lshl_b32 s47, s33, 15")
        k.e("s_add_u32 s3, s3, s47")
        k.e("s_lshl_b32 s47, s32, 11")
        k.e("s_add_u32 s3, s3, s47")
        k.e("v_lshlrev_b32 v23, 4, v0")
        for qq in range(2):
            k.e(f"v_rcp_f32 v{21+qq}, v{LS+4*(q0+qq)}")
        for s_ in range(4):
            for qq in range(2):
                o = O(q0 + qq, 2 * s_)
                d = 24 + 4 * qq
                for r in range(8): k.e(f"v_accvgpr_read_b32 v{240+r}, a{o+r}")
                for r in range(8): k.e(f"v_mul_f32 v{240+r}, v{240+r}, v{21+qq}")
                for r in range(4): k.e(f"v_cvt_pk_bf16_f32 v{d+r}, v{240+2*r}, v{240+2*r+1}")
                k.e(f"buffer_store_dwordx4 {V(d,4)}, v23, s[16:19], s3 offen offset:{qq*1024}{opt.get('ctx_st',' sc1')}")
            if s_ < 3: k.e("s_add_u32 s3, s3, 8192")

    for kb in range(2, 4):
        for s in kread(VY, 0, kb): k.e(s, tag=f'k{kb}')
    def first_max(o, qb):
        rowmax(0, qb, 22, o)
        if PKM:
            o.e("v_sub_f32 v22, 0, v22"); o.e("v_mov_b32 v23, v22")
            for r in range(0, 16, 2): o.e(f"v_pk_add_f32 {V(Sr(0,qb,0)+r,2)}, {V(Sr(0,qb,0)+r,2)}, v[22:23]")
            for r in range(4): o.e(f"v_mov_b32 v{NEGM+4*qb+r}, v22")
        else:
            for r in range(16): o.e(f"v_sub_f32 v{Sr(0,qb,0)+r}, v{Sr(0,qb,0)+r}, v22")
            for r in range(4): o.e(f"v_sub_f32 v{NEGM+4*qb+r}, 0, v22")
    c = b2
    c.items += conv_items(2) + conv_items(3)
    for r in list(range(XR(30, 0), XR(30, 0) + 16)) + list(range(XR(31, 0), XR(31, 0) + 16)): c.e(f"v_accvgpr_write_b32 a{r}, 0")
    for r in range(4): c.e(f"v_mov_b32 v{ONES+r}, 0x3f803f80")
    c.e(f"v_mov_b32 v{NINF}, 0xff800000")
    first_max(c, 0); first_max(c, 1)
    for qb in range(4):
        while any(it[0] == 'mark' and it[1] == f'conv{qb}' for it in c.items): c.fill(k, 99, 2)
        for kb in range(4):
            k.wait_ds(f'k{kb}')
            if qb == 3 and kb == 2:
                k.e(f"s_waitcnt vmcnt({min(k.vm_n('c18'), k.vm_n('c17'))})")
                k.e("s_barrier")
            for s_ in range(4):
                d = V(Sr(0, qb, kb), 4)
                k.e(mfma(d, A(FR(kb, s_), 4), A(Q(qb, s_), 4), d if s_ else "0"))
                if qb == 3 and kb >= 2: k.e(kread(VY, 32768, kb - 2)[s_], tag=f'n{kb-2}')
                c.fill(k, 99, int(opt.get('pslots', 4)))
    c.drain(k)
    k.e(f"s_mov_b32 s38, {4*KV_TILE}")
    k.e(f"s_mov_b32 s39, {3*KV_TILE + KV_CH}")
    k.e("s_mov_b32 s37, -1")
    k.e("s_cmp_lg_u32 s34, 0")
    k.e("s_cbranch_scc1 L_k2_nomask0")
    mask_block(0, 2, VRB)
    k.label("L_k2_nomask0")
    k.e("s_mov_b32 s37, 0")
    first_max(k, 2); first_max(k, 3)
    SM(sm_pairs(0, 4, 0), True, False).drain()
    k.e("s_waitcnt lgkmcnt(4)")
    k.stamp(ST)

    k.label("L_k2_wloop")
    iteration(0, 4, 4, 2, "we", ["s_cmp_eq_u32 s37, s35", "s_cbranch_scc1 L_k2_trans"])
    iteration(1, 4, 4, 2, "wo", ["s_branch L_k2_wloop"])
    k.label("L_k2_trans")
    iteration(1, 4, 2, 0, "tr", [])
    if '4' in CPF: emit(code_prefetch("L_k2_fin", "L_k2_end", 32, 56, 160, 164))
    k.e("s_waitcnt vmcnt(9)")
    epilogue(2, 34)
    k.e("s_add_u32 s52, s37, 2")
    k.e("s_waitcnt vmcnt(8)")
    k.label("L_k2_nloop")
    nl0 = len(k.lines)
    iteration(0, 2, 2, 0, "ne", ["s_cmp_eq_u32 s37, s36", "s_cbranch_scc1 L_k2_fin"])
    iteration(1, 2, 2, 0, "no", ["s_branch L_k2_nloop"])
    if 'dbg_drop' in opt:
        drop = tuple(opt['dbg_drop'].split(','))
        k.lines[nl0:] = [x for x in k.lines[nl0:] if not x.strip().startswith(drop) and 'vccnz' not in x]
    k.label("L_k2_fin")
    iteration(1, 2, 0, 0, "fi", [])
    k.stamp(ST)
    k.e("s_nop 7")
    epilogue(0, 55)
    ffn_finish()
    k.e("v_mov_b32 v24, 1")
    k.e("v_mul_u32_u24 v25, s65, v0")
    k.e("s_waitcnt vmcnt(0)")
    k.e("s_barrier")
    k.e("s_mov_b64 exec, 3")
    k.e("buffer_store_dword v24, v25, s[20:23], s64 offen sc1")
    k.e("s_mov_b64 exec, -1")
    ffn_store()
    k.stamp(ST)
    phase4(k, opt, ool, ST)
    k.stamp_dump('stamp' in opt, 66, 0, 32)
    if 'hold' in opt:
        k.e("s_or_b32 s3, s2, s32")
        k.e("s_cmp_lg_u32 s3, 0")
        k.e("s_cbranch_scc1 L_k2_end")
        k.label("L_hold")
        k.e("s_memrealtime s[4:5]")
        k.e("s_waitcnt lgkmcnt(0)")
        k.e(f"s_sub_u32 s3, s4, s{73 + 2 * int(opt.get('holdk', 0))}")
        k.e(f"s_cmp_lt_u32 s3, {int(opt['hold']) * 100}")
        k.e("s_cbranch_scc1 L_hold")
    k.label("L_k2_end")
    k.e("s_endpgm")
    for lab, fn, ret in ool:
        k.label(lab)
        k.win = []; k.dq = []
        fn()
        k.e(f"s_branch {ret}")
    return k.wrap(256, 256), f"; @launch {'kernel=' + KNAME + ' ' if 'aslist' in opt else ''}grid=(256,1,1) block=(256,1,1) lds={K12_LDS}"
```

```python
from fw import *
from layout import *
BIG = 0x7ff00000
HPCNT = 128
YCNT = 4

def rbf2(k, a, b, t):
    k.e(f"v_cvt_pk_bf16_f32 v{t}, v{a}, v{b}")
    k.e(f"v_lshlrev_b32 v{a}, 16, v{t}")
    k.e(f"v_and_b32 v{b}, 0xffff0000, v{t}")

def silu_n(k, regs, tmps):
    for r, t in zip(regs, tmps): k.e(f"v_mul_f32 v{t}, 0xbfb8aa3b, v{r}")
    for r, t in zip(regs, tmps): k.e(f"v_exp_f32 v{t}, v{t}")
    for r, t in zip(regs, tmps): k.e(f"v_add_f32 v{t}, 1.0, v{t}")
    for r, t in zip(regs, tmps): k.e(f"v_rcp_f32 v{t}, v{t}")
    for r, t in zip(regs, tmps): k.e(f"v_mul_f32 v{r}, v{r}, v{t}")

VC, VW, TA, VO, VROW, G, L7, L3, T1, T2, VZ, VF = 112, 114, 115, 119, 120, 121, 122, 123, 124, 125, 126, 127
GTMP, XP, STT, GT, YB = 2, 18, 34, 42, 80

def srd_rec(b, d, base, nbytes, add=None):
    if add is None:
        b.e(f"s_mov_b32 s{d}, s{base}"); b.e(f"s_and_b32 s{d+1}, s{base+1}, 0xffff")
    else:
        b.blk([f"s_add_u32 s{d}, s{base}, {add}", f"s_addc_u32 s{d+1}, s{base+1}, 0", f"s_and_b32 s{d+1}, s{d+1}, 0xffff"])
    b.e(f"s_mov_b32 s{d+2}, {nbytes}"); b.e(f"s_mov_b32 s{d+3}, 0x20000")

def p4_ptr_loads():
    return ["s_load_dwordx2 s[94:95], s[0:1], 40", "s_load_dwordx2 s[40:41], s[0:1], 0", "s_load_dwordx4 s[8:11], s[0:1], 80"]

def p4_setup(opt):
    b = Rec()
    srd_rec(b, 60, 8, 7340032)
    srd_rec(b, 68, 10, 4194304)
    srd_rec(b, 56, 40, 4194304)
    b.e("s_bfe_u32 s6, s2, 0x20001")
    b.e("s_lshr_b32 s7, s34, 1")
    b.e("s_lshl_b32 s45, s7, 2")
    b.e("s_add_u32 s46, s45, s6")
    b.e("s_sub_u32 s46, 15, s46")
    b.e("s_sub_u32 s45, 12, s45")
    b.e("s_add_u32 s45, s45, s6")
    b.blk(["s_cmp_lt_u32 s7, 2", "s_cselect_b32 s45, s46, s45"])
    b.e("s_and_b32 s46, s2, 1")
    b.e("s_lshl_b32 s46, s46, 3")
    b.e("s_bfe_u32 s6, s2, 0x30003")
    b.e("s_add_u32 s46, s46, s6")
    for j in range(4): b.e(f"s_mov_b32 s{48+j}, {j*15360}")
    b.e("s_lshl_b32 s35, s32, 15")
    b.e("s_lshl_b32 s6, s45, 20")
    b.e("s_lshl_b32 s7, s32, 18")
    b.e("s_add_u32 s6, s6, s7")
    b.e(f"s_add_u32 s6, s6, {WS_CTX}")
    srd_rec(b, 8, 66, 262144, "s6")
    b.e("s_lshl_b32 s7, s46, 7")
    b.e("s_lshl_b32 s6, s32, 21")
    b.e("s_add_u32 s6, s6, s7")
    srd_rec(b, 12, 94, 0, "s6")
    b.e("s_sub_u32 s14, 2097152, s7")
    b.e("s_lshl_b32 s36, s45, 18")
    b.e("s_add_u32 s36, s36, s7")
    b.e("s_mov_b32 s52, 0")
    b.e("s_lshl_b32 s38, s45, 7")
    b.e("s_lshl_b32 s6, s32, 5")
    b.e("s_add_u32 s38, s38, s6")
    b.e(f"s_add_u32 s38, s38, {WS_CFL}")
    b.e(f"v_lshlrev_b32 v{VC}, 4, v0")
    b.e(f"v_add_u32 v{VC+1}, 4096, v{VC}")
    b.e(f"v_lshrrev_b32 v{G}, 4, v0")
    b.e(f"v_and_b32 v{L7}, 7, v0")
    b.e(f"v_lshrrev_b32 v{L3}, 3, v0")
    b.e(f"v_lshlrev_b32 v{T1}, 1, v{G}")
    b.e(f"v_xor_b32 v{T1}, v{T1}, v{L7}")
    b.e(f"v_lshlrev_b32 v{T1}, 4, v{T1}")
    b.e(f"v_lshl_add_u32 v{VW}, v{L3}, 11, v{T1}")
    b.e(f"v_lshrrev_b32 v{T1}, 2, v0")
    b.e(f"v_bfe_u32 v{VZ}, v0, 3, 2")
    b.e(f"v_lshlrev_b32 v{T1}, 7, v{T1}")
    b.e(f"v_and_b32 v{T2}, 3, v0")
    b.e(f"v_lshl_add_u32 v{T1}, v{T2}, 3, v{T1}")
    b.e(f"v_add_u32 v{T1}, s35, v{T1}")
    for cb in range(4):
        b.e(f"v_xor_b32 v{T2}, {cb}, v{VZ}")
        b.e(f"v_lshl_add_u32 v{TA+cb}, v{T2}, 5, v{T1}")
    b.e("s_lshl_b32 s6, s32, 3")
    b.e(f"v_add_u32 v{VROW}, s6, v{L3}")
    b.e(f"v_lshlrev_b32 v{VO}, 11, v{VROW}")
    b.e(f"v_lshl_add_u32 v{VO}, v{L7}, 4, v{VO}")
    b.e(f"v_mov_b32 v{VZ}, 0")
    b.e(f"v_lshlrev_b32 v{VF}, 2, v{L7}")
    return b

def phase4(k, opt, ool, ST):
    ACC = lambda rb, cb: 128 + (rb * 4 + cb) * 4
    CF = lambda n, rb: (n % 4) * 32 + rb * 4
    WF = lambda n, cb: 128 + (n & 1) * 16 + cb * 4
    wo_ld = opt.get('wo_ld', '')
    def w_ops(n):
        if n >= 32: return []
        return ([('s', f"s_add_u32 m0, s35, {(n % 4)*4096}")] +
                [('g', f"buffer_load_dwordx4 v{VW}, s[12:15], s{48+j} offen offset:{j*1024}{wo_ld} lds") for j in range(4)] +
                [('v', f"v_add_u32 v{VW}, 65536, v{VW}")])
    def c_ops(n):
        if n >= 32: return []
        return ([('g', f"buffer_load_dwordx4 {A(CF(n,rb),4)}, v{VC + (rb >> 2)}, s[8:11], s52 offen offset:{(rb & 3)*1024}{opt.get('ctx_ld', ' sc1')}") for rb in range(8)] +
                [('s', "s_add_u32 s52, s52, 8192")])
    def wreads(n):
        return [[f"ds_read_b64_tr_b16 {A(WF(n,cb)+2*rd,2)}, v{TA+cb} offset:{(n % 4)*4096 + rd*2048}" for rd in range(2)] for cb in range(4)]
    def gates(o, p, ysrc=None):
        g0 = GT + 8 * p
        for d in range(4):
            o.e(f"v_lshlrev_b32 v{g0+2*d}, 16, v{XP+4*p+d}")
            o.e(f"v_and_b32 v{g0+2*d+1}, 0xffff0000, v{XP+4*p+d}")
        for e_ in range(8): o.e(f"v_sub_f32 v{g0+e_}, v{g0+e_}, v{STT+2*p}")
        for d in range(4): rbf2(o, g0 + 2*d, g0 + 2*d + 1, GTMP + d)
        for e_ in range(8): o.e(f"v_mul_f32 v{g0+e_}, v{g0+e_}, v{STT+2*p+1}")
        for d in range(4): rbf2(o, g0 + 2*d, g0 + 2*d + 1, GTMP + d)
        if ysrc is not None:
            for e_ in range(8): o.e(f"v_add_f32 v{g0+e_}, v{g0+e_}, v{ysrc+e_}")
            for d in range(4): rbf2(o, g0 + 2*d, g0 + 2*d + 1, GTMP + d)
        silu_n(o, [g0 + e_ for e_ in range(8)], [GTMP + e_ for e_ in range(8)])
        for d in range(4): rbf2(o, g0 + 2*d, g0 + 2*d + 1, GTMP + d)

    k.e(f"buffer_load_dword v{T1}, v{VF}, s[20:23], s38 offen sc1", tag='cp')
    for n in range(4):
        for t, s in w_ops(n): k.e(s, tag=f'w{n}')
    k.wait_vm('cp')
    k.e(f"v_cmp_ne_u32 vcc, 1, v{T1}")
    k.e("s_cbranch_vccnz L_spinC")
    k.label("L_spinCr")
    def spinC():
        k.e("s_mov_b32 s47, 0x400000")
        k.label("L_spinC_l")
        k.e(f"s_sleep {opt.get('slpc', 4)}")
        k.e(f"buffer_load_dword v{T1}, v{VF}, s[20:23], s38 offen sc1")
        k.e("s_sub_u32 s47, s47, 1")
        k.e("s_cmp_eq_u32 s47, 0")
        k.e("s_cbranch_scc1 L_spinCx")
        k.e("s_waitcnt vmcnt(0)")
        k.e(f"v_cmp_ne_u32 vcc, 1, v{T1}")
        k.e("s_cbranch_vccnz L_spinC_l")
        k.label("L_spinCx")
        k.e("s_waitcnt vmcnt(0)")
    ool.append(("L_spinC", spinC, "L_spinCr"))
    k.stamp(ST)
    for n in range(3):
        for t, s in c_ops(n): k.e(s, tag=f'c{n}')

    b = Rec()
    b.e(f"v_mov_b32 v{T2}, 1")
    b.blk(["s_cmp_eq_u32 s32, 0", f"s_cselect_b32 s6, {HPCNT}, s64", "s_cmp_lg_u32 s34, 0", f"s_cselect_b32 s6, s6, {BIG}"])
    b.check_clear('hps')
    b.e("s_barrier")
    b.blk(["s_mov_b64 exec, 1", f"buffer_atomic_add v{T2}, v{VZ}, s[28:31], s6 offen sc1", "s_mov_b64 exec, -1"])
    b.at(1)
    b.e("s_mov_b32 s3, s36")
    for p in range(4):
        b.e(f"buffer_load_dwordx4 {V(XP+4*p,4)}, v{VO}, s[56:59], s3 offen", tag='x')
        if p < 3: b.e("s_add_u32 s3, s3, 65536")
    b.e("s_lshl_b32 s3, s45, 10")
    b.e(f"s_add_u32 s3, s3, {WS_STATS}")
    b.e(f"v_lshlrev_b32 v{T1}, 3, v{VROW}")
    for p in range(4):
        b.e(f"buffer_load_dwordx2 {V(STT+2*p,2)}, v{T1}, s[20:23], s3 offen offset:{p*256} sc1", tag='x')
    F2 = float(opt.get('f2', 7))
    b.blk(["s_lshr_b32 s3, s42, 7", "s_lshr_b32 s47, s43, 7", "s_cmp_eq_u32 s3, s45", "s_cselect_b32 s53, 1, 0",
           "s_cmp_eq_u32 s47, s45", "s_cselect_b32 s53, 1, s53", "s_mov_b32 s40, 0"])
    b.e("s_lshl_b32 s41, s46, 2")
    b.e(f"s_add_u32 s41, s41, {YCNT}")
    b.e("s_lshl_b32 s44, s46, 12")
    b.e(f"s_add_u32 s44, s44, {WS_YP}")
    b0 = Rec()
    for st_, dt in (("A", 0.4), ("B", 3.4), ("C", 6.4), ("E", 9.6)):
        b0.at(F2 + dt)
        b0.blk(["s_cmp_ge_u32 s2, 144", f"s_cbranch_scc1 L_f2{st_}", f"L_f2{st_}r:"])
    b.at(4.1)
    b.wait_vm('x')
    for p in range(4): gates(b, p)
    PS = float(opt.get('k3_poll', 24))
    b.at(PS)
    b.blk(["s_cmp_lg_u32 s53, 0", "s_cbranch_scc1 L_yA", "L_yAr:"])
    b.at(PS + 3.2)
    b.blk(["s_cmp_lg_u32 s53, 0", "s_cbranch_scc1 L_yB", "L_yBr:"])
    b.at(PS + 6.4)
    b.blk(["s_cmp_lg_u32 s40, 0", "s_cbranch_scc1 L_yC", "L_yCr:"])

    k.wait_vm('w0')
    for grp in wreads(0):
        for s in grp: k.e(s)
    BS = int(opt.get('k3_bs', 2))
    for n in range(32):
        w = [x for x in (k.vm_n(f'c{n}'), k.vm_n(f'w{n+1}')) if x is not None]
        k.e("s_waitcnt " + (f"vmcnt({min(w)}) " if w else "") + "lgkmcnt(0)")
        g = {}; gt = {}
        if n < 31:
            for j, grp in enumerate(wreads(n + 1)): g[2 + 5 * j] = list(grp)
        vpos = [1, 3, 6, 8, 11, 13, 16, 18, 21, 23, 26, 28]
        vi = 0
        for t, s, tg in [(t, s, f'w{n+4}') for t, s in w_ops(n + 4)] + [(t, s, f'c{n+3}') for t, s in c_ops(n + 3)]:
            if t == 'g': g[vpos[vi]] = [s]; gt[vpos[vi]] = tg; vi += 1
            elif vi == 0: g.setdefault(0, []).append(s)
            else: g.setdefault(vpos[vi - 1] + 1, []).append(s)
        m = 0
        for rb in range(8):
            for cb in range(4):
                k.e(mfma(V(ACC(rb, cb), 4), A(WF(n, cb), 4), A(CF(n, rb), 4), V(ACC(rb, cb), 4) if n else "0"))
                if m in g:
                    for s in g[m]: k.e(s, tag=gt.get(m))
                else:
                    nl = len(k.lines)
                    b0.fill(k, n + m / 32.0, BS)
                    if len(k.lines) == nl: b.fill(k, n + m / 32.0, BS)
                m += 1
    print("phase4 items left", len(b.items))
    b.drain(k)
    k.stamp(ST)
    k.e(f"v_and_b32 v{T1}, 15, v0")
    k.e(f"v_lshlrev_b32 v10, 8, v{T1}")
    k.e("v_add_u32 v10, s35, v10")
    k.e(f"v_xor_b32 v{T1}, v{T1}, v{G}")
    for cb in range(4):
        k.e(f"v_xor_b32 v{T2}, {4*cb}, v{T1}")
        k.e(f"v_lshl_add_u32 v{TA+cb}, v{T2}, 4, v10")
    for rb in range(8):
        for cb in range(4):
            k.e(f"ds_write_b128 v{TA+cb}, {V(ACC(rb,cb),4)} offset:{rb*4096}")
    k.e("s_cmp_lg_u32 s53, s40")
    k.e("s_cbranch_scc1 L_ysl")
    k.label("L_yslr")
    k.e(f"v_and_b32 v{T1}, 15, v{VROW}")
    k.e(f"v_lshlrev_b32 v{T2}, 1, v{L7}")
    k.e(f"v_xor_b32 v{T1}, v{T1}, v{T2}")
    k.e(f"v_lshlrev_b32 v10, 8, v{VROW}")
    k.e(f"v_lshl_add_u32 v12, v{T1}, 4, v10")
    k.e("v_xor_b32 v13, 16, v12")
    k.e("v_add_u32 v14, 65536, v12")
    k.e("v_add_u32 v15, 65536, v13")
    XU = 80
    for p in range(4):
        for d in range(4):
            k.e(f"v_lshlrev_b32 v{XU+8*p+2*d}, 16, v{XP+4*p+d}")
            k.e(f"v_and_b32 v{XU+8*p+2*d+1}, 0xffff0000, v{XP+4*p+d}")
    k.e("s_waitcnt lgkmcnt(0)")
    k.e("s_barrier")
    def rd(p):
        b_ = 128 + 32 * p
        for w in range(4):
            for h in range(2):
                k.e(f"ds_read_b128 {V(b_ + 8*w + 4*h, 4)}, v{12 + h + 2*(w >> 1)} offset:{(w & 1)*32768 + p*8192}", tag=f'r{p}')
    rd(0)
    for p in range(4):
        b_ = 128 + 32 * p
        k.wait_ds(f'r{p}')
        if p < 3: rd(p + 1)
        for e_ in range(0, 8, 2):
            k.e(f"v_pk_add_f32 {V(b_+e_,2)}, {V(b_+e_,2)}, {V(b_+8+e_,2)}")
            k.e(f"v_pk_add_f32 {V(b_+16+e_,2)}, {V(b_+16+e_,2)}, {V(b_+24+e_,2)}")
        for e_ in range(0, 8, 2): k.e(f"v_pk_add_f32 {V(b_+e_,2)}, {V(b_+e_,2)}, {V(b_+16+e_,2)}")
        for d in range(4): rbf2(k, b_ + 2*d, b_ + 2*d + 1, b_ + 8 + d)
        for e_ in range(0, 8, 2): k.e(f"v_pk_mul_f32 {V(b_+e_,2)}, {V(b_+e_,2)}, {V(GT+8*p+e_,2)}")
        for d in range(4): rbf2(k, b_ + 2*d, b_ + 2*d + 1, b_ + 8 + d)
        for e_ in range(0, 8, 2): k.e(f"v_pk_add_f32 {V(b_+e_,2)}, {V(b_+e_,2)}, {V(XU+8*p+e_,2)}")
        for d in range(4): k.e(f"v_cvt_pk_bf16_f32 v{b_+8+d}, v{b_+2*d}, v{b_+2*d+1}")
        k.e(f"buffer_store_dwordx4 {V(b_+8,4)}, v{VO}, s[68:71], s36 offen{opt.get('out_st', ' sc1')}")
        if p < 3: k.e("s_add_u32 s36, s36, 65536")
    k.stamp(ST)

    def poll_loop(lab, off, target):
        k.e("s_mov_b32 s47, 0x400000")
        k.label(lab)
        k.e(f"buffer_load_dword v{T1}, v{VZ}, s[28:31], {off} offen sc1")
        k.e("s_waitcnt vmcnt(0)")
        k.e(f"v_readfirstlane_b32 s3, v{T1}")
        k.e("s_sub_u32 s47, s47, 1")
        k.e("s_cmp_eq_u32 s47, 0")
        k.e(f"s_cbranch_scc1 {lab}x")
        k.e(f"s_cmp_ge_u32 s3, {target}")
        k.e(f"s_cbranch_scc1 {lab}x")
        k.e("s_sleep 8")
        k.e(f"s_branch {lab}")
        k.label(lab + "x")
    H0 = 74
    def f2A():
        k.e("s_and_b32 s39, s2, 15")
        k.e("s_lshr_b32 s37, s2, 4")
        k.e("s_sub_u32 s37, s37, 9")
        k.e("s_lshl_b32 s4, s37, 2")
        k.e("s_add_u32 s4, s4, s32")
        k.e("s_lshl_b32 s3, s4, 18")
        k.e("s_lshl_b32 s7, s39, 7")
        k.e("s_add_u32 s3, s3, s7")
        k.e(f"v_and_b32 v{T1}, 0xffff, v{VW}")
        k.e(f"v_add_u32 v{T1}, s3, v{T1}")
        k.e("s_cmp_eq_u32 s32, 0")
        k.e(f"s_cselect_b32 s5, {HPCNT}, s64")
        k.e(f"buffer_load_dword v{T2}, v{VZ}, s[28:31], s5 offen sc1")
        for q in range(4):
            k.e(f"s_add_u32 m0, s35, {16384 + q*4096}")
            for j in range(4):
                k.e(f"buffer_load_dwordx4 v{T1}, s[60:63], s{48+j} offen offset:{j*1024} lds")
            if q < 3: k.e(f"v_add_u32 v{T1}, 65536, v{T1}")
    def f2B():
        k.e("s_waitcnt vmcnt(24)")
        k.e(f"v_readfirstlane_b32 s3, v{T2}")
        k.e("s_cmp_lg_u32 s32, 0")
        k.e("s_cbranch_scc1 L_f2lx")
        k.e("s_cmp_ge_u32 s3, 224")
        k.e("s_cbranch_scc1 L_f2lx")
        poll_loop("L_f2l", "s5", 224)
        k.e("s_barrier")
        k.e("s_lshl_b32 s3, s4, 9")
        k.e(f"s_add_u32 s3, s3, {WS_HP}")
        k.e(f"v_mul_u32_u24 v{T1}, 14336, v{G}")
        k.e(f"v_and_b32 v{T2}, 15, v0")
        k.e(f"v_lshl_add_u32 v{T1}, v{T2}, 4, v{T1}")
        for j in range(8):
            for h in range(2):
                k.e(f"buffer_load_dwordx4 {A(160 + 8*j + 4*h, 4)}, v{T1}, s[20:23], s3 offen offset:{h*256} sc1")
            if j < 7: k.e(f"s_add_u32 s3, s3, {4*14336}")
    def f2C():
        k.e("s_waitcnt vmcnt(24) lgkmcnt(0)")
        for j in range(8):
            t = H0 if j == 0 else 82 + 8 * (j & 1)
            for r in range(8): k.e(f"v_accvgpr_read_b32 v{t+r}, a{160+8*j+r}")
            if j:
                for r in range(0, 8, 2): k.e(f"v_pk_add_f32 {V(H0+r,2)}, {V(H0+r,2)}, {V(t+r,2)}")
            if j & 1:
                q = j >> 1
                for cb in range(4):
                    for rd in range(2):
                        k.e(f"ds_read_b64_tr_b16 {A(160 + 16*q + 4*cb + 2*rd, 2)}, v{TA+cb} offset:{16384 + q*4096 + rd*2048}")
        for r in range(0, 8, 2): rbf2(k, H0 + r, H0 + r + 1, T2)
        for r in range(8): k.e(f"v_mov_b32 v{82+r}, v{H0+r}")
        for r in range(8): k.e(f"v_permlane32_swap_b32 v{82+r}, v{H0+r}")
        silu_n(k, [82 + r for r in range(8)], [90 + r for r in range(8)])
        for r in range(0, 8, 2): rbf2(k, 82 + r, 83 + r, T2)
        for r in range(8): k.e(f"v_mul_f32 v{H0+r}, v{H0+r}, v{82+r}")
        for r in range(4): k.e(f"v_cvt_pk_bf16_f32 v{90+r}, v{H0+2*r}, v{H0+2*r+1}")
        k.e("s_lshl_b32 s7, s32, 9")
        k.e("s_add_u32 s7, s7, 131072")
        k.e(f"v_and_b32 v{T1}, 1, v{G}")
        k.e(f"v_lshlrev_b32 v{T1}, 8, v{T1}")
        k.e(f"v_and_b32 v{T2}, 15, v0")
        k.e(f"v_lshl_add_u32 v{T1}, v{T2}, 3, v{T1}")
        k.e(f"v_add_u32 v{T1}, s7, v{T1}")
        k.e(f"ds_write_b64 v{T1}, v[90:91]")
        k.e(f"ds_write_b64 v{T1}, v[92:93] offset:128")
        k.e(f"v_and_b32 v{T1}, 1, v0")
        k.e(f"v_lshlrev_b32 v{T1}, 8, v{T1}")
        k.e(f"v_lshl_add_u32 v94, v{G}, 3, v{T1}")
        k.e("v_add_u32 v94, s7, v94")
        for q in range(4):
            for rd in range(2):
                k.e(f"ds_read_b64 {V(H0 + 4*q + 2*rd, 2)}, v94 offset:{q*64 + rd*32}")
        k.e(f"v_lshl_add_u32 v{T1}, v{G}, 4, v{T1}")
        k.e(f"v_add_u32 v{T1}, s7, v{T1}")
        k.e("s_waitcnt lgkmcnt(0)")
        for q in range(4):
            for cb in range(4):
                d = V(96 + 4 * cb, 4)
                k.e(mfma(d, A(160 + 16*q + 4*cb, 4), V(H0 + 4*q, 4), d if q else "0"))
        for cb in range(4):
            k.e(f"ds_write_b128 v{T1}, {V(96+4*cb,4)} offset:{2048 + cb*64}")
        k.e("s_waitcnt lgkmcnt(0)")
        k.e("s_barrier")
        k.e("s_cmp_lg_u32 s32, 0")
        k.e("s_cbranch_scc1 L_f2Cr")
        k.e(f"v_lshlrev_b32 v{T1}, 3, v0")
        k.e(f"v_add_u32 v{T2}, {131072 + 2048}, v{T1}")
        for w in range(4): k.e(f"ds_read_b64 {V(74+2*w,2)}, v{T2} offset:{w*512}")
        k.e("s_lshl_b32 s3, s39, 3")
        k.e("s_add_u32 s3, s3, s37")
        k.e("s_lshl_b32 s3, s3, 9")
        k.e(f"s_add_u32 s3, s3, {WS_YP}")
        k.e("s_waitcnt lgkmcnt(0)")
        k.e("v_pk_add_f32 v[74:75], v[74:75], v[76:77]")
        k.e("v_pk_add_f32 v[78:79], v[78:79], v[80:81]")
        k.e("v_pk_add_f32 v[74:75], v[74:75], v[78:79]")
        k.e(f"buffer_store_dwordx2 v[74:75], v{T1}, s[20:23], s3 offen sc1")
    def f2E():
        k.e("s_cmp_lg_u32 s32, 0")
        k.e("s_cbranch_scc1 L_f2Er")
        k.e(f"v_mov_b32 v{T2}, 1")
        k.e("s_lshl_b32 s3, s39, 2")
        k.e(f"s_add_u32 s3, s3, {YCNT}")
        k.e("s_waitcnt vmcnt(24)")
        k.e("s_mov_b64 exec, 1")
        k.e(f"buffer_atomic_add v{T2}, v{VZ}, s[28:31], s3 offen sc1")
        k.e("s_mov_b64 exec, -1")
    for nm, fn in (("A", f2A), ("B", f2B), ("C", f2C), ("E", f2E)): ool.append((f"L_f2{nm}", fn, f"L_f2{nm}r"))
    def yloads():
        k.e(f"v_lshlrev_b32 v{T2}, 9, v{L3}")
        k.e(f"v_lshl_add_u32 v{T2}, v{L7}, 5, v{T2}")
        k.e(f"v_mov_b32 v{T1}, {BIG}")
        k.e(f"v_cmp_gt_u32 vcc, 7, v{L3}")
        k.e(f"v_cndmask_b32 v{T2}, v{T1}, v{T2}, vcc")
        for t in range(2):
            for h in range(2):
                k.e(f"buffer_load_dwordx4 {V(YB + 8*t + 4*h, 4)}, v{T2}, s[20:23], s44 offen offset:{t*256 + h*16} sc1")
    def selblock():
        for j in range(16): k.e(f"v_add_f32_dpp v{YB+j}, v{YB+j}, v{YB+j} row_ror:8 row_mask:0xf bank_mask:0xf")
        for sw in ("v_permlane16_swap_b32", "v_permlane32_swap_b32"):
            for j in range(16): k.e(f"v_mov_b32 v{YB+16+j}, v{YB+j}")
            for j in range(16): k.e(f"{sw} v{YB+16+j}, v{YB+j}")
            for j in range(16): k.e(f"v_add_f32 v{YB+j}, v{YB+j}, v{YB+16+j}")
        for d in range(8): rbf2(k, YB + 2*d, YB + 2*d + 1, T1)
        for t in range(2):
            for e_ in range(8): k.e(f"v_mul_f32 v{YB+8*t+e_}, s{100+t}, v{YB+8*t+e_}")
        for d in range(8): rbf2(k, YB + 2*d, YB + 2*d + 1, T1)
        k.e("s_lshl_b32 s3, s45, 7")
        k.e("s_sub_u32 s42, s42, s3")
        k.e("s_sub_u32 s43, s43, s3")
        for p in range(4):
            L = k.newlabel("selskip")
            k.e(f"v_add_u32 v{T1}, {32*p}, v{VROW}")
            k.e(f"v_cmp_eq_u32 vcc, s42, v{T1}")
            k.e(f"v_cmp_eq_u32 s[6:7], s43, v{T1}")
            k.e("s_nop 3")
            k.e("s_or_b64 s[4:5], vcc, s[6:7]")
            k.e(f"s_cbranch_scc0 {L}")
            for e_ in range(8):
                k.e(f"v_cndmask_b32 v{YB+16+e_}, 0, v{YB+e_}, vcc")
                k.e(f"v_cndmask_b32 v{YB+16+e_}, v{YB+16+e_}, v{YB+8+e_}, s[6:7]")
            gates(k, p, YB + 16)
            k.label(L)
    def yA(): k.e(f"buffer_load_dword v{T1}, v{VZ}, s[28:31], s41 offen sc1")
    def yB():
        k.e("s_waitcnt vmcnt(24)")
        k.e(f"v_readfirstlane_b32 s3, v{T1}")
        k.e("s_nop 0")
        k.e("s_cmp_lt_u32 s3, 7")
        k.e("s_cbranch_scc1 L_yBr")
        k.e("s_mov_b32 s40, 1")
        yloads()
    def yC():
        k.e("s_waitcnt vmcnt(8)")
        selblock()
    def ysl():
        poll_loop("L_ysll", "s41", 7)
        yloads()
        k.e("s_waitcnt vmcnt(0)")
        selblock()
    ool.append(("L_yA", yA, "L_yAr")); ool.append(("L_yB", yB, "L_yBr")); ool.append(("L_yC", yC, "L_yCr")); ool.append(("L_ysl", ysl, "L_yslr"))
```

```python
from fw import *
from layout import *
from p4 import p4_ptr_loads, p4_setup, phase4
KNAME = 'recurrent_scan__compressed_kv_cla__moe_arch_mod__prompt_kernel'

K12_LDS = 148480
QSCALE = 0x3e0293ee
BIG = 0x7ff00000

def gen_k12(opt):
    k = Asm(KNAME)
    k.short = "f"
    ST = opt.get('stamp') == '1'
    S1 = opt.get('stamp') == 'p1'
    S2 = opt.get('stamp') == 'p2'
    w_ld, a_ld, x_ld = opt.get('w_ld', ' nt'), opt.get('a_ld', ''), opt.get('x_ld', ' nt')
    wq_ld, kv_ld, ffn_ld = opt.get('wq_ld', ''), opt.get('kv_ld', ' sc1'), opt.get('ffn_ld', '')
    MAP = int(opt.get('map', 4))
    VOA, VOW, AD, PFO = 2, 6, 10, 47
    FA = lambda ks, i: 64 * ks + 4 * i
    FW = lambda ks, j: 64 * ks + 32 + 4 * j
    def frag_of(isV, it, jd):
        return ((it >> 2) * 16 + jd * 2 + ((it >> 1) & 1), it & 1) if isV else (it * 4 + (jd >> 1), jd & 1)
    SRC = lambda n: ('v', 48 + 8 * n) if n < 26 else ('a', 128 + 8 * (n - 26))
    def acc(isV, it, jd):
        n, h = frag_of(isV, it, jd)
        p, r = SRC(n)
        return R(p, r + 4 * h, 4)
    PK = lambda n: 24 + 4 * (n if n < 26 else n - 26)
    VX, VY, VDMA, VRA, VRB, ORR, T0 = 2, 3, 4, 5, 6, 7, 1
    WV, XV, TA = 8, 10, 16
    ET = 8
    ONES, NINF = 16, 20
    NEGM, LS, PB, SB = 32, 48, 64, 128
    P = lambda par, qb, ks: PB + 32 * par + (qb * 2 + ks) * 4
    Sr = lambda par, qb, kb: SB + 64 * par + (qb * 4 + kb) * 4
    O = lambda qb, db: (qb * 8 + db) * 4
    Q = lambda qb, s: 128 + (qb * 4 + s) * 4
    FR = lambda grp, j: 192 + 16 * grp + 4 * j
    QA = lambda db, qb: 128 + (qb * 8 + db) * 4
    XR = lambda kk, qb: ((kk % 8) * 4 + qb) * 4
    WF = lambda kk, db: 192 + (kk & 1) * 32 + db * 4

    k.e("s_cmp_ge_u32 s2, 256")
    k.e("s_cbranch_scc1 L_k2_end")
    k.stamp(ST)
    k.e("s_load_dwordx4 s[4:7], s[0:1], 0")
    k.e("s_load_dwordx2 s[44:45], s[0:1], 56")
    k.e("s_load_dwordx4 s[40:43], s[0:1], 24")
    k.e("s_load_dwordx4 s[64:67], s[0:1], 96")
    k.e("v_lshrrev_b32 v1, 6, v0")
    k.e("v_and_b32 v0, 63, v0")
    k.e("v_readfirstlane_b32 s32, v1")
    k.e("v_lshrrev_b32 v33, 5, v0")
    k.e("v_and_b32 v31, 31, v0")
    k.e("v_lshlrev_b32 v36, 4, v31")
    k.e("v_lshl_add_u32 v35, v33, 11, v36")
    k.e("s_lshl_b32 s36, s2, 14")
    k.e("s_lshl_b32 s37, s32, 12")
    k.e("s_add_u32 s36, s36, s37")
    k.e("s_lshr_b32 s3, s2, 3")
    k.e("s_and_b32 s33, s3, 7")
    k.e("s_lshr_b32 s3, s3, 3")
    k.e("s_lshr_b32 s35, s3, 1")
    k.e("s_and_b32 s3, s3, 1")
    k.e("s_and_b32 s34, s2, 7")
    k.e("s_lshl_b32 s34, s34, 1")
    k.e("s_add_u32 s34, s34, s3")
    for j in range(4):
        k.e(f"s_mov_b32 s{48+j}, {j*7168}")
        k.e(f"s_mov_b32 s{52+j}, {j*15360}")
    k.e("s_lshl_b32 s56, s32, 13")
    k.e("s_add_u32 s57, s56, 32768")
    k.e("s_lshl_b32 s3, s32, 4")
    k.e("v_add_u32 v30, s3, v33")
    k.e("v_lshlrev_b32 v30, 13, v30")
    k.e("v_lshlrev_b32 v34, 1, v33")
    k.e("v_xor_b32 v31, v31, v34")
    for hi in range(2):
        for par in range(2):
            k.e(f"v_xor_b32 v34, {(2*par + 4*hi) << 1}, v31")
            k.e(f"v_lshl_add_u32 v{VOW + par + 2*hi}, v34, 4, v30")
            if hi: k.e(f"v_add_u32 v{VOW + par + 2*hi}, {8*8192}, v{VOW + par + 2*hi}")
    k.e("v_lshrrev_b32 v30, 3, v0")
    k.e("s_lshl_b32 s3, s32, 6")
    k.e("v_add_u32 v30, s3, v30")
    k.e("v_lshlrev_b32 v30, 10, v30")
    k.e("v_and_b32 v31, 7, v0")
    k.e("v_lshrrev_b32 v32, 4, v0")
    k.e("v_xor_b32 v31, v31, v32")
    k.e(f"v_lshl_add_u32 v{VOA}, v31, 4, v30")
    k.e("v_xor_b32 v31, 4, v31")
    k.e(f"v_lshl_add_u32 v{VOA+1}, v31, 4, v30")
    k.e(f"v_add_u32 v{VOA+2}, 32768, v{VOA}")
    k.e(f"v_add_u32 v{VOA+3}, 32768, v{VOA+1}")
    KX = int(opt.get('kx', 7))
    k.e(f"s_and_b32 s58, s2, {KX}")
    k.e("s_lshl_b32 s3, s58, 19")
    for q in range(4): k.e(f"v_xor_b32 v{VOW+q}, s3, v{VOW+q}")
    k.e("s_lshl_b32 s3, s58, 7")
    for q in range(4): k.e(f"v_xor_b32 v{VOA+q}, s3, v{VOA+q}")
    k.e("s_waitcnt lgkmcnt(0)")
    k.srd(16, 4, 4194304)
    XP, WR, XF = 48, 64, 80
    for i in range(4):
        k.e(f"buffer_load_dwordx4 {V(XP+4*i,4)}, v35, s[16:19], s36 offen offset:{i*512}{x_ld}", tag='x')
    def emit(lst, o=None):
        for x in lst:
            if x.endswith(':'): k.label(x[:-1])
            else: k.e(x, tag='cpf')
    CPF = opt.get('cpf', '1234')
    if '1' in CPF: emit(code_prefetch(KNAME, "L_k2_fin", 32, 68, 120, 124))
    MW = opt.get('mw', '')
    if 'c' in MW:
        k.srd(68, 6, 2097152)
        k.e("v_and_b32 v120, 15, v0")
        k.e("v_lshlrev_b32 v120, 7, v120")
        k.e("s_lshr_b32 s3, s36, 1")
        k.e("buffer_load_dword v125, v120, s[68:71], s3 offen", tag='cpf')
    k.e("s_cmp_eq_u32 s35, 0")
    k.e("s_cselect_b32 s40, s40, s42")
    k.e("s_cselect_b32 s41, s41, s43")
    k.e("s_lshl_b32 s3, s34, 9")
    k.srd(12, 40, 0, "s3")
    k.e("s_sub_u32 s14, 4194304, s3")
    k.e("s_lshl_b32 s3, s33, 18")
    k.srd(8, 6, 262144, "s3")
    def dma_ops(buf):
        ops = []
        for (base, vo, so, srd, fl) in ((57, VOW, 52, 12, w_ld), (56, VOA, 48, 8, a_ld)):
            for hi in range(2):
                ops.append(('s', f"s_add_u32 m0, s{base}, {buf*65536 + hi*4096}"))
                for lo in range(4):
                    ops.append(('g', f"buffer_load_dwordx4 v{vo + (lo&1) + 2*hi}, {S(srd,4)}, s{so+lo} offen offset:{lo*1024}{fl} lds"))
        return ops
    def adv_ops(j):
        x = j ^ (j + 1)
        return [f"v_xor_b32 v{VOW+q}, {x << 19}, v{VOW+q}" for q in range(4)] + [f"v_xor_b32 v{VOA+q}, {x << 7}, v{VOA+q}" for q in range(4)]
    st0 = dma_ops(0)
    for t, s in st0[:10]: k.e(s, tag='st0')
    if 'w' in MW:
        k.srd(68, 40, 4194304)
        k.e("v_lshlrev_b32 v120, 7, v0")
        k.e("s_and_b32 s3, s2, 127")
        k.e("s_lshl_b32 s3, s3, 2")
        k.e("s_add_u32 s3, s3, s32")
        k.e("s_lshl_b32 s3, s3, 13")
        k.e("buffer_load_dword v126, v120, s[68:71], s3 offen", tag='cpf')
    k.srd(28, 44, 2048)
    k.srd(20, 66, 8 << 20)
    k.srd(24, 66, 32 * KV_HEAD, WS_KV)
    k.e("v_and_b32 v30, 15, v0")
    k.e("s_lshr_b32 s3, s32, 1")
    k.e("s_lshl_b32 s3, s3, 14")
    k.e("v_lshlrev_b32 v31, 7, v30")
    k.e("v_add_u32 v31, s3, v31")
    k.e("v_lshrrev_b32 v34, 1, v30")
    k.e("v_xor_b32 v34, v34, v32")
    k.e(f"v_lshl_add_u32 v{AD}, v34, 4, v31")
    k.e("v_xor_b32 v34, 4, v34")
    k.e(f"v_lshl_add_u32 v{AD+1}, v34, 4, v31")
    k.e("v_lshrrev_b32 v30, 2, v30")
    k.e("v_lshl_add_u32 v31, v32, 3, v30")
    k.e("v_lshlrev_b32 v31, 9, v31")
    k.e("v_and_b32 v34, 3, v0")
    k.e("v_lshl_add_u32 v31, v34, 3, v31")
    k.e("s_and_b32 s3, s32, 1")
    k.e("s_lshl_b32 s3, s3, 8")
    k.e("s_add_u32 s3, s3, 32768")
    k.e("v_add_u32 v31, s3, v31")
    k.e("v_and_b32 v34, 1, v32")
    k.e("v_lshl_add_u32 v30, v34, 2, v30")
    for jj in range(8):
        k.e(f"v_xor_b32 v34, {jj}, v30")
        k.e(f"v_lshl_add_u32 v{AD+2+jj}, v34, 5, v31")
    for j in range(10):
        k.e(f"v_add_u32 v{AD+10+j}, 65536, v{AD+j}")
    k.e("s_cmp_lt_u32 s32, 2")
    for j in range(3): k.e(f"s_cselect_b32 s{60+j}, s{8+j}, s{12+j}")
    k.e("s_mov_b32 s63, 0x20000")
    k.e(f"s_mov_b32 s59, {64*8192}")
    k.e("s_cselect_b32 s59, 128, s59")
    k.e("s_lshr_b32 s3, s2, 6")
    k.e("s_lshl_b32 s3, s3, 1")
    k.e("s_add_u32 s3, s3, s32")
    k.e("s_lshl_b32 s3, s3, 15")
    k.e("s_add_u32 s3, s3, 256")
    k.e("v_lshlrev_b32 v37, 10, v0")
    k.e("v_add_u32 v37, s3, v37")
    k.e("v_lshrrev_b32 v38, 2, v0")
    k.e("v_lshlrev_b32 v38, 13, v38")
    k.e("v_and_b32 v39, 3, v0")
    k.e("v_lshl_add_u32 v38, v39, 7, v38")
    k.e("s_lshl_b32 s39, s33, 1")
    k.e("s_add_u32 s39, s39, s32")
    k.e("s_lshl_b32 s39, s39, 15")
    k.e(f"s_add_u32 s39, s39, {120*8192}")
    k.e("v_add_u32 v38, s39, v38")
    k.e("s_cmp_lt_u32 s32, 2")
    k.e("s_cselect_b64 vcc, -1, 0")
    k.e("s_cselect_b32 s3, 32, 16")
    k.e(f"v_cndmask_b32 v{PFO}, v38, v37, vcc")
    k.e("v_cmp_gt_u32 vcc, s3, v0")
    k.e(f"v_mov_b32 v37, {BIG}")
    k.e(f"v_cndmask_b32 v{PFO}, v37, v{PFO}, vcc")
    k.e("s_mul_i32 s3, s58, s59")
    k.e(f"v_xor_b32 v{PFO}, s3, v{PFO}")
    pfc = [2]
    def pf_ops():
        j = pfc[0]; pfc[0] += 1
        return [f"buffer_load_dword v1, v{PFO}, s[60:63], 0 offen{opt.get('pf_ld', '')}",
                f"s_mul_i32 vcc_lo, s59, {(j ^ (j + 1)) & 7}", f"v_xor_b32 v{PFO}, vcc_lo, v{PFO}"]
    for t, s in st0[10:]: k.e(s, tag='st0')
    for i in range(4):
        k.e(f"buffer_load_dwordx4 {V(WR+4*i,4)}, v36, s[28:31], 0 offen offset:{i*512}", tag='wr')
    for s in adv_ops(0): k.e(s)

    PFE = int(opt.get('pfe', 2))
    PFN = int(opt.get('pfn', 3))
    if PFE == 0:
        for _ in range(PFN):
            for s in pf_ops(): k.e(s, tag='pf')
    st1 = dma_ops(1)
    def sum32(v, t):
        for m in ["quad_perm:[1,0,3,2]", "quad_perm:[2,3,0,1]", "row_half_mirror", "row_mirror"]:
            k.e(f"v_add_f32_dpp v{v}, v{v}, v{v} {m} row_mask:0xf bank_mask:0xf")
        k.e(f"v_mov_b32 v{t}, v{v}")
        k.e(f"v_permlane16_swap_b32 v{t}, v{v}")
        k.e(f"v_add_f32 v{v}, v{v}, v{t}")
    k.wait_vm('x')
    for i in range(16):
        k.e(f"v_lshlrev_b32 v{XF+2*i}, 16, v{XP+i}")
        k.e(f"v_and_b32 v{XF+2*i+1}, 0xffff0000, v{XP+i}")
    k.e(f"v_pk_add_f32 v[40:41], {V(XF,2)}, {V(XF+2,2)}")
    k.e(f"v_pk_add_f32 v[42:43], {V(XF+4,2)}, {V(XF+6,2)}")
    for i in range(4, 16):
        d = 40 + 2 * (i & 1)
        k.e(f"v_pk_add_f32 {V(d,2)}, {V(d,2)}, {V(XF+2*i,2)}")
    k.e("v_pk_add_f32 v[40:41], v[40:41], v[42:43]")
    k.e("v_add_f32 v38, v40, v41")
    sum32(38, 37)
    for t, s in st1[:10]: k.e(s, tag='st1')
    if PFE == 1:
        for _ in range(PFN // 2):
            for s in pf_ops(): k.e(s, tag='pf')
    k.e("v_mul_f32 v38, 0xba800000, v38")
    k.e("v_mov_b32 v39, v38")
    T = 112
    for i in range(16):
        k.e(f"v_pk_add_f32 {V(T+2*(i&3),2)}, {V(XF+2*i,2)}, v[38:39]")
        d = 40 + 2 * (i & 1)
        if i < 2: k.e(f"v_pk_mul_f32 {V(d,2)}, {V(T+2*(i&3),2)}, {V(T+2*(i&3),2)}")
        else: k.e(f"v_pk_fma_f32 {V(d,2)}, {V(T+2*(i&3),2)}, {V(T+2*(i&3),2)}, {V(d,2)}")
    k.e("v_pk_add_f32 v[40:41], v[40:41], v[42:43]")
    k.e("v_add_f32 v40, v40, v41")
    sum32(40, 37)
    for t, s in st1[10:]: k.e(s, tag='st1')
    if PFE == 1:
        for _ in range(PFN // 2):
            for s in pf_ops(): k.e(s, tag='pf')
    k.e("v_mul_f32 v40, 0x3a800000, v40")
    k.e("v_cvt_pk_bf16_f32 v44, v38, v40")
    k.e("v_lshlrev_b32 v38, 16, v44")
    k.e("v_and_b32 v40, 0xffff0000, v44")
    k.e("v_add_f32 v40, 0x3727c5ac, v40")
    k.e("v_cvt_pk_bf16_f32 v44, v40, v40")
    k.e("v_lshlrev_b32 v40, 16, v44")
    k.e("v_sqrt_f32 v40, v40")
    k.e("v_mov_b32 v39, v38")
    k.e("v_cvt_pk_bf16_f32 v44, v40, v40")
    k.e("v_lshlrev_b32 v44, 16, v44")
    k.e("v_rcp_f32 v40, v44")
    for i in range(16):
        k.e(f"v_pk_add_f32 {V(XF+2*i,2)}, {V(XF+2*i,2)}, v[38:39]")
    k.e("v_fma_f32 v45, -v44, v40, 1.0")
    k.e("v_fma_f32 v40, v45, v40, v40")
    k.e("v_mov_b32 v41, v40")
    for i in range(16):
        k.e(f"v_cvt_pk_bf16_f32 v{XP+i}, v{XF+2*i}, v{XF+2*i+1}")
    for i in range(16):
        k.e(f"v_lshlrev_b32 v{XF+2*i}, 16, v{XP+i}")
        k.e(f"v_and_b32 v{XF+2*i+1}, 0xffff0000, v{XP+i}")
    for i in range(16):
        k.e(f"v_pk_mul_f32 {V(XF+2*i,2)}, {V(XF+2*i,2)}, v[40:41]")
    for i in range(16):
        k.e(f"v_cvt_pk_bf16_f32 v{XP+i}, v{XF+2*i}, v{XF+2*i+1}")
    k.e("s_mul_i32 s3, s32, 4128")
    k.e("s_add_u32 s3, s3, 131072")
    k.e("v_mul_u32_u24 v42, 2064, v33")
    k.e("v_add3_u32 v42, v42, v36, s3")
    for i in range(4):
        k.e(f"ds_write_b128 v42, {V(XP+4*i,4)} offset:{i*512}")
    for s in adv_ops(1): k.e(s)
    if PFE == 2:
        for _ in range(PFN):
            for s in pf_ops(): k.e(s, tag='pf')
    k.wait_vm('wr')
    for i in range(16):
        k.e(f"v_lshlrev_b32 v{XF+2*i}, 16, v{XP+i}")
        k.e(f"v_and_b32 v{XF+2*i+1}, 0xffff0000, v{XP+i}")
        k.e(f"v_lshlrev_b32 v{T+2*(i&3)}, 16, v{WR+i}")
        k.e(f"v_and_b32 v{T+2*(i&3)+1}, 0xffff0000, v{WR+i}")
        d = 42 + 2 * (i & 1)
        if i < 2: k.e(f"v_pk_mul_f32 {V(d,2)}, {V(XF+2*i,2)}, {V(T+2*(i&3),2)}")
        else: k.e(f"v_pk_fma_f32 {V(d,2)}, {V(XF+2*i,2)}, {V(T+2*(i&3),2)}, {V(d,2)}")
    k.e("v_pk_add_f32 v[42:43], v[42:43], v[44:45]")
    k.e("v_add_f32 v45, v42, v43")
    sum32(45, 37)
    k.e("v_cvt_pk_bf16_f32 v45, v45, v45")
    k.e("v_ashrrev_i32 v46, 31, v45")
    k.e("v_or_b32 v46, 0x80000000, v46")
    k.e("v_xor_b32 v45, v45, v46")
    k.e("v_and_b32 v45, 0xffff0000, v45")
    k.e("s_lshr_b32 s3, s36, 11")
    k.e("v_add_u32 v46, s3, v33")
    k.e("v_sub_u32 v44, 0xffff, v46")
    k.e("v_or_b32 v45, v45, v44")
    k.e("v_lshlrev_b32 v44, 2, v46")
    k.e("v_lshlrev_b32 v46, 3, v46")
    k.e("v_xor_b32 v38, 0x80000000, v38")
    k.e("v_mov_b32 v39, v40")
    k.e(f"s_mov_b32 s3, {WS_KEYS}")
    k.e(f"s_mov_b32 s39, {WS_STATS}")
    k.e("s_mov_b32 exec_lo, 1")
    k.e("s_mov_b32 exec_hi, 1")
    k.e("buffer_store_dword v45, v44, s[20:23], s3 offen sc1", tag='ln')
    k.e("buffer_store_dwordx2 v[38:39], v46, s[20:23], s39 offen sc1", tag='ln')
    k.e("s_mov_b64 exec, -1")
    k.e("s_load_dwordx2 s[4:5], s[0:1], 16")
    k.e("s_load_dwordx4 s[40:43], s[0:1], 64")
    k.e("s_load_dwordx2 s[92:93], s[0:1], 40")
    k.e("s_load_dwordx2 s[94:95], s[0:1], 80")
    k.e("s_load_dwordx2 s[100:101], s[0:1], 0")
    k.srd(28, 64, 256)

    def reads(ks, buf):
        a = AD + 10 * buf
        ra = [f"ds_read_b128 {A(FA(ks,i),4)}, v{a+ks} offset:{i*2048}" for i in range(8)]
        rw = [[f"ds_read_b64_tr_b16 {A(FW(ks,j)+2*rd,2)}, v{a+2+j} offset:{ks*16384+rd*2048}" for rd in range(2)] for j in range(8)]
        out = []
        for j in range(8):
            out.append(rw[j]); out.append([ra[j]])
        return out
    k.wait_vm('st0')
    k.e("s_waitcnt lgkmcnt(0)")
    k.e("s_barrier")
    k.stamp(ST)
    n = 0
    for grp in reads(0, 0):
        for s in grp:
            k.e(s); n += 1
            if n == 12: k.e("s_waitcnt lgkmcnt(2)")
    k.e("s_cmp_lg_u32 s35, 0")
    k.e("s_cbranch_scc1 L_k1_vpath")

    def chunk_ops(c):
        kind, j = c
        slot = {'w': j % 4, 'kv': (j + 4) % 8}[kind]
        ops = [('s', f"s_add_u32 m0, s44, {slot * 16384}")]
        if kind == 'w':
            for q in range(4):
                ops.append(('g', f"buffer_load_dwordx4 v{WV + (q >> 1)}, s[8:11], s{48+q} offen offset:{q*1024}{wq_ld} lds"))
            ops.append(('v', f"v_add_u32 v{WV}, {64*8192}, v{WV}"))
            ops.append(('v', f"v_add_u32 v{WV+1}, {64*8192}, v{WV+1}"))
        elif kind == 'f':
            for q in range(4):
                ops.append(('g', f"buffer_load_dwordx4 v{12 + (q >> 1) + 2 * (j & 1)}, {S(60 + 8 * (j >> 1), 4)}, s{52+q} offen offset:{q*1024}{ffn_ld} lds"))
        else:
            ops.append(('s', f"s_mov_b32 s7, {j * KV_CH}"))
            for q in range(4):
                ops.append(('g', f"buffer_load_dwordx4 v{VDMA}, s[12:15], s7 offen offset:{q*1024}{kv_ld} lds"))
        return ops
    def xn_ops(kk):
        ops = []
        for qb in range(4):
            so = "s58" if qb & 1 else "0"
            ops.append(('g', f"buffer_load_dwordx4 {A(XR(kk,qb),4)}, v{XV + (qb >> 1)}, s[20:23], {so} offen offset:{(kk % 4)*1024}{opt.get('xn_ld', ' sc1')}"))
        if kk % 4 == 3:
            ops.append(('v', f"v_add_u32 v{XV}, 4096, v{XV}"))
            ops.append(('v', f"v_add_u32 v{XV+1}, 4096, v{XV+1}"))
        return ops
    def wreads(kk):
        st, ks = kk // 2, kk & 1
        return [[f"ds_read_b64_tr_b16 {A(WF(kk,db)+2*rd,2)}, v{TA+db} offset:{(st % 4)*16384 + ks*8192 + rd*1024}" for rd in range(2)] for db in range(8)]
    ool = []
    def spin(lab, ret, off, target, vd, vz, sv, sc):
        def fn():
            k.e(f"s_mov_b32 s{sc}, 0x400000")
            k.label(lab + "_l")
            k.e(f"s_sleep {opt.get('slp', 8)}")
            k.e(f"buffer_load_dword v{vd}, v{vz}, s[28:31], {off} offen sc1")
            k.e("s_waitcnt vmcnt(0)")
            k.e(f"v_readfirstlane_b32 s{sv}, v{vd}")
            k.e(f"s_sub_u32 s{sc}, s{sc}, 1")
            k.e(f"s_cmp_eq_u32 s{sc}, 0")
            k.e(f"s_cbranch_scc1 {ret}")
            k.e(f"s_cmp_lt_u32 s{sv}, {target}")
            k.e(f"s_cbranch_scc1 {lab}_l")
        ool.append((lab, fn, ret))
    def srd_rec(b, d, base, nbytes, add=None):
        if add is None:
            b.e(f"s_mov_b32 s{d}, s{base}"); b.e(f"s_and_b32 s{d+1}, s{base+1}, 0xffff")
        else:
            b.blk([f"s_add_u32 s{d}, s{base}, {add}", f"s_addc_u32 s{d+1}, s{base+1}, 0", f"s_and_b32 s{d+1}, s{d+1}, 0xffff"])
        b.e(f"s_mov_b32 s{d+2}, {nbytes}"); b.e(f"s_mov_b32 s{d+3}, 0x20000")

    def phase1_stream(isV):
        b = Rec()
        tg = 'v' if isV else 'k'
        b.e("v_and_b32 v46, 7, v0")
        b.e("v_lshrrev_b32 v1, 3, v0") if False else None
        b.e("v_mul_u32_u24 v30, 2064, v46")
        b.e("v_lshrrev_b32 v31, 3, v0")
        b.e("s_lshl_b32 s3, s32, 9")
        b.e("s_add_u32 s3, s3, 131072")
        b.e("v_lshl_add_u32 v30, v31, 4, v30")
        b.e("v_add_u32 v30, s3, v30")
        b.e("v_lshlrev_b32 v31, 8, v31")
        b.e("v_lshl_add_u32 v46, v46, 4, v31")
        for i in (1, 2, 3, 0):
            b.e(f"ds_read_b128 {V(30+4*i,4)}, v30 offset:{i*128}", tag='xs')
        b.e("s_lshr_b32 s3, s2, 1")
        b.e(f"s_mul_i32 s3, s3, {XN_RB}")
        b.e("s_add_u32 s3, s3, s56")
        b.e("s_and_b32 s39, s2, 1")
        b.e("s_lshl_b32 s39, s39, 7")
        b.e("s_add_u32 s3, s3, s39")
        b.e("s_add_u32 s39, s3, 4096")
        b.at(2)
        for i in range(4):
            b.e(f"buffer_store_dwordx4 {V(30+4*i,4)}, v46, s[20:23], s{3 if i < 2 else 39} offen offset:{(i&1)*2048} sc1", tag='ln')
        b.e("s_lshl_b32 s3, s34, 1")
        b.e("s_and_b32 s36, s32, 1")
        b.e("s_add_u32 s3, s3, s36")
        b.e(f"s_mul_i32 s3, s3, {KV_HEAD}")
        b.e(f"s_mul_i32 s36, s33, {4*KV_TILE}")
        b.e("s_add_u32 s3, s3, s36")
        b.e("s_lshr_b32 s36, s32, 1")
        b.e(f"s_mul_i32 s36, s36, {2*KV_TILE}")
        b.e("s_add_u32 s3, s3, s36")
        b.e(f"s_add_u32 s38, s3, {KV_CH if isV else 0}")
        b.e("s_lshl_b32 s39, s34, 7")
        b.e("s_lshl_b32 s36, s33, 2")
        b.e("s_add_u32 s39, s39, s36")
        b.e(f"s_add_u32 s39, s39, {WS_FLG + (32 if isV else 0)}")
        b.e("v_mov_b32 v30, 1")
        b.e("v_mov_b32 v31, 0")
        b.blk(["s_cmp_eq_u32 s32, 0", f"s_cselect_b32 s39, s39, {BIG}"])
        b.blk(["s_mov_b64 exec, 1", ("buffer_store_dword v31, v31, s[20:23], s39 offen sc1", 'ln'), "s_mov_b64 exec, -1"])
        if MAP == 4:
            b.e("s_and_b32 s33, s2, 7")
            b.e("s_lshl_b32 s33, s33, 2")
            b.e("s_bfe_u32 s3, s2, 0x20003")
            b.e("s_add_u32 s33, s33, s3")
            b.e("s_lshr_b32 s34, s2, 5")
        else:
            b.e("s_and_b32 s33, s2, 6")
            b.e("s_lshl_b32 s33, s33, 2")
            b.e("s_bfe_u32 s3, s2, 0x30003")
            b.e("s_add_u32 s33, s33, s3")
            b.e("s_lshr_b32 s34, s2, 6")
            b.e("s_lshl_b32 s34, s34, 1")
            b.e("s_and_b32 s3, s2, 1")
            b.e("s_add_u32 s34, s34, s3")
        b.e("s_lshl_b32 s64, s34, 7")
        b.e("s_lshl_b32 s3, s33, 2")
        b.e("s_add_u32 s64, s64, s3")
        b.e(f"s_add_u32 s64, s64, {WS_CFL}")
        b.e("s_lshl_b32 s65, s34, 8")
        b.e("s_sub_u32 s65, 1920, s65")
        b.e("v_mul_u32_u24 v32, s65, v0")
        b.blk(["s_cmp_eq_u32 s32, 0", f"s_cselect_b32 s64, s64, {BIG}"])
        b.blk(["s_mov_b64 exec, 3", ("buffer_store_dword v31, v32, s[20:23], s64 offen sc1", 'ln'), "s_mov_b64 exec, -1"])
        b.e("s_lshl_b32 s35, s34, 1")
        b.e("s_sub_u32 s36, 32, s35")
        b.e("s_add_u32 s35, s35, 2")
        b.e("s_lshl_b32 s44, s32, 12")
        b.e(f"s_mov_b32 s58, {XN_RB}")
        b.e("s_sub_u32 s3, 15, s34")
        b.e("s_lshl_b32 s45, s3, 2")
        b.e("s_add_u32 s45, s45, s32")
        b.e("s_lshl_b32 s46, s34, 2")
        b.e("s_add_u32 s46, s46, s32")
        srd_rec(b, 68, 42, 7340032)
        b.blk(["s_cmp_eq_u32 s32, 0", f"s_cselect_b32 s37, 0, {BIG}"])
        b.e("s_lshl_b32 s3, s33, 8")
        srd_rec(b, 16, 4, 0, "s3")
        b.e("s_sub_u32 s18, 8388608, s3")
        WQN = int(opt.get('wqn', 1))
        ln_ = 64 // WQN
        b.e(f"v_and_b32 v33, {ln_ - 1}, v0")
        b.e("v_lshrrev_b32 v32, 1, v33")
        b.e("v_and_b32 v33, 1, v0")
        b.e("v_lshlrev_b32 v32, 13, v32")
        b.e("v_lshl_add_u32 v45, v33, 7, v32")
        b.e("s_lshl_b32 s3, s32, 3")
        b.e("s_add_u32 s3, s3, s34")
        b.e(f"s_mul_i32 s47, s3, {ln_ // 2 * 8192}")
        WQ0 = int(opt.get('wq0', 10))
        sig = False
        for j in range(WQN):
            step = WQ0 + j * float(opt.get('wqs', 2))
            if step >= 6 and not sig:
                sig = True
                b.at(6)
                b.check_clear('ln')
                b.blk(["s_mov_b64 exec, 1", "buffer_atomic_add v30, v31, s[28:31], s37 offen sc1", "s_mov_b64 exec, -1"])
            b.at(step)
            b.e(f"buffer_load_dword v44, v45, s[16:19], s47 offen{opt.get('wqpf_ld', '')}", tag='pf')
            b.e(f"s_add_u32 s47, s47, {1024 // WQN * 8192}")
        b.e("v_lshrrev_b32 v32, 4, v0")
        b.e("v_and_b32 v33, 15, v0")
        b.e("s_lshl_b32 s3, s32, 4")
        b.e("v_add_u32 v34, s3, v32")
        b.e("v_lshlrev_b32 v36, 1, v32")
        b.e("v_xor_b32 v36, v36, v33")
        b.e("v_xor_b32 v37, 8, v36")
        if '2' in CPF:
            b.at(10)
            cp = code_prefetch("L_phase2", "L_k2_fin", 32, 6, 40, 43)
            cp = [x.replace("s8", "s3") for x in cp]
            b.blk(cp[:4])
            for x in cp[4:-3]: b.e(x)
            b.blk(cp[-3:-1])
            b.e(cp[-1])
        b.at(12)
        b.e("buffer_load_dword v30, v31, s[28:31], s37 offen sc1", tag='poll')
        for j in range(3): b.e(f"s_mov_b32 s{8+j}, s{16+j}")
        srd_rec(b, 16, 66, 16 << 20, WS_CTX)
        for j in range(4): b.e(f"s_mov_b32 s{48+j}, {j*31744}")
        b.e("v_lshlrev_b32 v35, 13, v34")
        b.e(f"v_lshl_add_u32 v{WV}, v36, 4, v35")
        b.e(f"v_lshl_add_u32 v{WV+1}, v37, 4, v35")
        b.e(f"v_lshlrev_b32 v{VX}, 4, v0")
        b.e(f"v_add_u32 v{VY}, 65536, v{VX}")
        b.e(f"v_add_u32 v{VDMA}, s44, v{VX}")
        b.e("v_mov_b32 v7, 0")
        b.e("v_lshlrev_b32 v35, 2, v32")
        b.e("v_sub_u32 v35, v33, v35")
        b.e("s_lshl_b32 s3, s45, 5")
        b.e(f"v_add_u32 v{VRA}, s3, v35")
        b.e("s_lshl_b32 s3, s46, 5")
        b.e(f"v_add_u32 v{VRB}, s3, v35")
        b.e(f"s_mul_i32 s3, s33, {KV_HEAD}")
        b.e(f"s_add_u32 s3, s3, {WS_KV}")
        srd_rec(b, 12, 66, 0, "s3")
        b.e(f"s_mul_i32 s14, s36, {KV_TILE}")
        b.at(13)
        b.e(f"s_mul_i32 s3, s45, {2*XN_RB}")
        b.e(f"v_add_u32 v{XV}, s3, v{VX}")
        b.e(f"s_mul_i32 s3, s46, {2*XN_RB}")
        b.e(f"v_add_u32 v{XV+1}, s3, v{VX}")
        if 'dbg_noxn' in opt:
            b.e(f"v_mov_b32 v{XV}, {BIG}"); b.e(f"v_mov_b32 v{XV+1}, {BIG}")
        if 'dbg_nowq' in opt: b.e("s_mov_b32 s10, 0")
        if 'dbg_nost' in opt: b.e("s_mov_b32 s26, 0")
        spin(f"L_spinA{tg}", f"L_spinAr{tg}", 0, 256, 30, 31, 3, 47)
        return b
    def ta_setup(b):
        b.e("v_lshrrev_b32 v42, 2, v33")
        b.e("v_lshl_add_u32 v43, v32, 3, v42")
        b.e("v_lshlrev_b32 v43, 8, v43")
        b.e("v_and_b32 v44, 3, v0")
        b.e("v_lshl_add_u32 v43, v44, 3, v43")
        b.e("v_and_b32 v44, 1, v32")
        b.e("v_lshl_add_u32 v42, v44, 2, v42")
        for db in range(8):
            b.e(f"v_xor_b32 v44, {db}, v42")
            b.e(f"v_lshl_add_u32 v{TA+db}, v44, 5, v43")

    def kstep(isV, st, ks, gaps, gtags, pre, b):
        for s in pre:
            if s.endswith(':'): k.label(s[:-1])
            else: k.e(s)
        order = [(it, jd) for it in range(8) for jd in range(8)]
        if st == 7 and ks == 1: order.sort(key=lambda x: frag_of(isV, *x))
        for n, (it, jd) in enumerate(order):
            fa, fw_ = A(FA(ks, it), 4), A(FW(ks, jd), 4)
            d = acc(isV, it, jd)
            c = "0" if (st == 0 and ks == 0) else d
            k.e(mfma(d, fa, fw_, c) if isV else mfma(d, fw_, fa, c))
            if n in gaps:
                for s in gaps[n]: k.e(s, tag=gtags.get(n))
            else:
                b.fill(k, 2 * st + ks + n / 64.0)
    def place_vm(g, gt, ops, start, step):
        gi = start; lead = []
        for t, s, tg in ops:
            if t == 's':
                if gi == 0: lead.append(s)
                else: g.setdefault(gi - 1, []).insert(0, s)
            elif t == 'g':
                assert gi not in g and gi < 64, gi
                g[gi] = [s]; gt[gi] = tg; gi += step
            else:
                q = gi - step + 1
                while q in g and (len(g[q]) >= 2 or g[q][-1].startswith(('buffer', 'ds_read_b64'))) or (q - start) % step == 0: q += 1
                g.setdefault(min(q, 63), []).append(s)
        return lead
    vq0, dq0 = list(k.vq), list(k.dq)
    for isV in (0, 1):
        if isV:
            k.label("L_k1_vpath"); k.win = []; k.vq = list(vq0); k.dq = list(dq0)
        b = phase1_stream(isV)
        if S1: k.nstamp = 0
        for st in range(8):
            p = st & 1
            k.stamp(S1)
            g = {}
            for n, grp in enumerate(reads(1, p)):
                g[2 * n + 1] = (["s_waitcnt lgkmcnt(6)"] if n % 4 == 3 else []) + grp
            kstep(isV, st, 0, g, {}, ["s_waitcnt lgkmcnt(0)"], b)
            g = {}; gt = {}
            if st < 7:
                for n, grp in enumerate(reads(0, p ^ 1)):
                    g[2 * n + 1] = (["s_waitcnt lgkmcnt(6)"] if n % 4 == 2 else []) + grp
            if st < 6:
                ops = []
                d = dma_ops(p); adv = adv_ops(st + 2) if st < 5 else []
                ops = [(t, s, f'st{st+2}') for t, s in d[:10]] + [('v', s, None) for s in adv[:4]] + \
                      [(t, s, f'st{st+2}') for t, s in d[10:]] + [('v', s, None) for s in adv[4:]]
                lead = place_vm(g, gt, ops, 0, 4)
                if st < 6 - PFN:
                    pfc[0] = 2 + PFN + st
                    po = pf_ops()
                    g[62] = [po[0]] + g.get(62, []); gt[62] = 'pf'
                    g[63] = [po[1]] + g.get(63, []) + [po[2]]
                need = f'st{st+1}'
            elif st == 6:
                ops = []
                for c in range(4): ops += [(t, s, f'w{c}') for t, s in chunk_ops(('w', c))]
                lead = place_vm(g, gt, ops, 0, 4)
                need = 'st7'
            else:
                assert not b.items, len(b.items)
                ta_setup(b)
                b.items.append(('at', 15.3, None))
                for grp in wreads(0):
                    for s in grp: b.e(s)
                b.e("s_waitcnt lgkmcnt(8)")
                cv = Rec()
                for n in range(26):
                    cv.at(15 + (2 * n + 5) / 64.0)
                    r = SRC(n)[1]
                    for q in range(4): cv.e(f"v_cvt_pk_bf16_f32 v{PK(n)+q}, v{r+2*q}, v{r+2*q+1}")
                b.items += cv.items
                ops = []
                for kk in range(4): ops += [(t, s, f'x{kk}') for t, s in xn_ops(kk)]
                lead = place_vm(g, gt, ops, 0, 4)
                tg = 'v' if isV else 'k'
                lead += ["v_readfirstlane_b32 s3, v30", "s_nop 0", "s_or_b32 s3, s3, s37", "s_cmp_lt_u32 s3, 256", f"s_cbranch_scc1 L_spinA{tg}", f"L_spinAr{tg}:"]
                need = 'w0'
            k.e(f"s_waitcnt vmcnt({k.vm_n(need)}) lgkmcnt(0)" if k.vm_n(need) is not None else "s_waitcnt lgkmcnt(0)")
            kstep(isV, st, 1, g, gt, lead + ["s_barrier"], b)
        print(f"phase1 isV={isV}: items left {len(b.items)}")
        k.stamp(S1)
        b.drain(k)
        k.stamp(S1)
        if not isV:
            k.e("s_branch L_phase2")
            vqK = list(k.vq)
    assert vqK == k.vq
    k.label("L_phase2")
    k.win = []
    k.e("s_nop 7")
    k.stamp(ST)

    b = Rec()
    KY = 56
    SPK = float(opt.get('spk', 2))
    def kvstore(n):
        b.at(n / SPK)
        off = (n >> 4) * KV_TILE + (n & 15) * 1024
        if n % 4 == 0: b.e(f"s_add_u32 s37, s38, {off}")
        b.e(f"buffer_store_dwordx4 {V(PK(n),4)}, v{VX}, s[24:27], s37 offen offset:{(n % 4)*1024}{opt.get('kv_st', ' sc1')}", tag='kvst')
    for n in range(26):
        kvstore(n)
        if 8 <= n < 14:
            m = n + 18
            for q in range(8): b.e(f"v_accvgpr_read_b32 v{48+q}, a{SRC(m)[1]+q}")
            for q in range(4): b.e(f"v_cvt_pk_bf16_f32 v{PK(m)+q}, v{48+2*q}, v{49+2*q}")
    for n in range(26, 32): kvstore(n)
    b.e("v_mov_b32 v12, 1")
    b.e("v_and_b32 v1, 15, v0")
    b.e("v_lshlrev_b32 v1, 2, v1")
    b.e("s_lshr_b32 s6, s33, 1")
    b.e("s_lshl_b32 s6, s6, 7")
    b.e(f"s_add_u32 s6, s6, {WS_FLG}")
    b.blk(["s_cmp_eq_u32 s32, 0", f"s_cselect_b32 s6, s6, {BIG}"])
    SIG = int(opt.get('sig', 21))
    POL = float(opt.get('pol', 26.5))
    b.at(SIG)
    b.blk(["s_mov_b64 exec, 1", "buffer_store_dword v12, v7, s[20:23], s39 offen sc1", "s_mov_b64 exec, -1"])
    b.at(POL)
    b.e("buffer_load_dword v12, v1, s[20:23], s6 offen sc1", tag='poll')
    CK = int(opt.get('ck', 29))
    n_ = 0
    for j in (0, 2, 1, 3, 4, 5, 6):
        for t, s in chunk_ops(('kv', j)):
            if t == 'g':
                b.at(max(CK + n_ * float(opt.get('kvp', 0.09)), {4: 25, 5: 27, 6: 29}.get(j, 0))); n_ += 1
            b.e(s, tag=f'c{16+j}')
    def spinB():
        k.e("s_mov_b32 s59, 0x400000")
        k.label("L_spinB_l")
        k.e(f"s_sleep {opt.get('slp', 4)}")
        k.e("buffer_load_dword v12, v1, s[20:23], s6 offen sc1")
        k.e("s_sub_u32 s59, s59, 1")
        k.e("s_cmp_eq_u32 s59, 0")
        k.e("s_cbranch_scc1 L_spinBx")
        k.e("s_waitcnt vmcnt(0)")
        k.e("v_cmp_ne_u32 vcc, 1, v12")
        k.e("s_cbranch_vccnz L_spinB_l")
        k.label("L_spinBx")
        k.e("s_waitcnt vmcnt(0)")
    ool.append(("L_spinB", spinB, "L_spinBr"))

    b1 = b
    b = Rec()
    srd_rec(b, 60, 40, 7340032)
    b.at(17 / SPK)
    b.e(f"s_mov_b32 s3, {WS_KEYS}")
    b.e(f"s_mov_b32 s47, {WS_KEYS + 4096}")
    for i in range(8):
        b.e(f"buffer_load_dwordx4 {V(KY+4*i,4)}, v{VX}, s[20:23], s{3 if i < 4 else 47} offen offset:{(i % 4)*1024} sc1", tag='keys')
    b.at(17 / SPK + 8)
    b.wait_vm('keys')
    b.e(f"v_max_u32 v14, v{KY}, v{KY+1}")
    b.e(f"v_min_u32 v15, v{KY}, v{KY+1}")
    for i in range(2, 32):
        b.e(f"v_med3_u32 v15, v14, v15, v{KY+i}"); b.e(f"v_max_u32 v14, v14, v{KY+i}")
    def wmax(v, sdst):
        for m in ["quad_perm:[1,0,3,2]", "quad_perm:[2,3,0,1]", "row_half_mirror", "row_mirror"]:
            b.blk([f"v_max_u32_dpp {v}, {v}, {v} {m} row_mask:0xf bank_mask:0xf"])
        b.blk([f"v_readlane_b32 s3, {v}, 0", f"v_readlane_b32 s47, {v}, 16"])
        b.blk([f"v_readlane_b32 s4, {v}, 32", f"v_readlane_b32 s5, {v}, 48"])
        b.blk(["s_max_u32 s3, s3, s47", "s_max_u32 s4, s4, s5", f"s_max_u32 s{sdst}, s3, s4"])
    b.e("v_mov_b32 v13, v14")
    wmax("v13", 40)
    b.blk(["v_cmp_eq_u32 vcc, s40, v14"])
    b.blk(["v_cndmask_b32 v13, v14, v15, vcc"])
    wmax("v13", 41)
    for t in range(2):
        b.e(f"s_and_b32 s3, s{40+t}, 0xffff")
        b.e(f"s_sub_u32 s{42+t}, 0xffff, s3")
    for t in range(2):
        b.e(f"v_mov_b32 v60, s{40+t}")
        b.e("v_not_b32 v61, v60")
        b.e("v_ashrrev_i32 v61, 31, v61")
        b.e("v_or_b32 v61, 0x80000000, v61")
        b.e("v_xor_b32 v60, v60, v61")
        b.e("v_and_b32 v60, 0xffff0000, v60")
        b.e("v_mul_f32 v60, 0xbfb8aa3b, v60")
        b.e("v_exp_f32 v60, v60")
        b.e("v_add_f32 v60, 1.0, v60")
        b.e("v_rcp_f32 v60, v60")
        b.e("v_cvt_pk_bf16_f32 v60, v60, v60")
        b.e(f"v_and_b32 v{64+t}, 0xffff0000, v60")
    for r in range(16): b.e(f"v_mov_b32 v{LS+r}, 0")
    WARM = opt.get('warm', '1') == '1'
    if WARM:
        b.e("s_mul_i32 s3, s34, s34")
        b.e("s_lshl_b32 s47, s33, 6")
        b.e("s_add_u32 s3, s3, s47")
        b.e("s_lshl_b32 s3, s3, 2")
        b.e("s_add_u32 s3, s3, s32")
        b.e("s_lshl_b32 s3, s3, 7")
        b.e("s_sub_u32 s3, s3, 512")
        b.e("v_min_u32 v13, 32, v0")
        b.e("v_mov_b32 v28, s92"); b.e("v_mov_b32 v29, s93")
        b.e("v_mov_b32 v30, v13")
        for first, lo, hi in ((8, 94, 95), (15, 100, 101), (19, 60, 61), (26, 68, 69)):
            b.e(f"v_mov_b32 v14, s{lo}"); b.e(f"v_mov_b32 v15, s{hi}")
            b.blk([f"v_cmp_le_u32 vcc, {first}, v13", f"v_subrev_u32 v31, {first}, v13"])
            b.blk(["v_cndmask_b32 v28, v28, v14, vcc", "v_cndmask_b32 v29, v29, v15, vcc"])
            b.blk(["v_cndmask_b32 v30, v30, v31, vcc"])
        b.e("v_lshlrev_b32 v30, 20, v30")
        b.e("v_add_u32 v30, s3, v30")
        b.e("v_ashrrev_i32 v31, 31, v30")
        b.e("v_lshl_add_u64 v[28:29], v[30:31], 0, v[28:29]")
        b.e("s_mov_b32 s40, 512"); b.e("s_mov_b32 s41, 0")
    b.e("v_readfirstlane_b32 s100, v64")
    b.e("v_readfirstlane_b32 s101, v65")
    b.at(SIG)
    for j in range(3): b.e(f"s_mov_b32 s{24+j}, s{60+j}")
    b.e("s_add_u32 s3, s34, 7")
    b.e("s_and_b32 s3, s3, 7")
    b.e("s_lshl_b32 s3, s3, 5")
    b.e("s_add_u32 s3, s3, s33")
    b.e("s_mul_i32 s92, s3, 2341")
    b.e("s_lshr_b32 s92, s92, 16")
    b.e("s_mul_i32 s47, s92, 28")
    b.e("s_sub_u32 s4, s3, s47")
    b.e(f"s_mul_i32 s5, s92, {128*7168}")
    b.e("s_lshl_b32 s47, s4, 8")
    b.e("s_add_u32 s5, s5, s47")
    b.e(f"s_mov_b32 s94, {QSCALE}")
    b.e(f"s_mov_b32 s95, {QSCALE}")
    b.e("s_sub_u32 s55, 15, s34")
    b.e("s_sub_u32 s45, s36, 3")
    b.e("s_sub_u32 s46, s35, 3")
    b.e("s_max_i32 s46, s46, 0")
    b.e("s_add_u32 s53, s44, 65536")
    b.e("s_mov_b32 s54, s44")
    b.e("s_sub_u32 s35, s35, 1")
    b.e("s_sub_u32 s36, s36, 1")
    b2 = b
    PKM = opt.get('pkm', '0') == '1'
    def conv_items(qb):
        r_ = Rec()
        for s_ in range(4):
            r = QA(2 * s_, qb)
            if PKM:
                for e_ in range(0, 8, 2): r_.e(f"v_pk_mul_f32 {V(r+e_,2)}, {V(r+e_,2)}, s[94:95]")
            else:
                for e_ in range(8): r_.e(f"v_mul_f32 v{r+e_}, s94, v{r+e_}")
            for e_ in range(4): r_.e(f"v_cvt_pk_bf16_f32 v{r+e_}, v{r+2*e_}, v{r+2*e_+1}")
            for e_ in range(4): r_.e(f"v_accvgpr_write_b32 a{Q(qb,s_)+e_}, v{r+e_}")
        r_.items.append(('mark', f'conv{qb}', None))
        return r_.items
    xsched = {0: [4, 5], 1: [6, 7], 2: [8, 9]}
    for kk in range(3, 25): xsched[kk] = [kk + 7]
    for kk in range(32):
        st, ks = kk // 2, kk & 1
        k.stamp(S2 and kk in (0, 4, 8, 12, 16, 20, 24, 28, 31))
        need = [f'x{kk}']
        if ks == 1 and st < 15: need.append(f'w{st+1}')
        if kk == SIG:
            assert not any(it[2] == 'kvst' for it in b1.items), "stores not all issued before SIG"
            need.append('kvst')
        if kk == CK: need.append('poll')
        if kk == 31: need.append('c16')
        w = [x for x in (k.vm_n(t) for t in need) if x is not None]
        k.e("s_waitcnt " + (f"vmcnt({min(w)}) " if w else "") + "lgkmcnt(0)")
        if kk == CK:
            assert not any('vcc' in str(it[1]) for it in b2.items)
            k.e("s_cmp_lg_u32 s32, 0")
            k.e("s_cbranch_scc1 L_spinBr")
            k.e("v_cmp_ne_u32 vcc, 1, v12")
            k.e("s_cbranch_vccnz L_spinB")
            k.label("L_spinBr")
        if ks == 1: k.e("s_barrier")
        g = {}; gt = {}
        if kk + 1 < 32:
            for n, grp in enumerate(wreads(kk + 1)):
                g[1 + 3 * n] = (["s_waitcnt lgkmcnt(6)"] if n == 5 else []) + grp
        vm = []
        if ks == 1 and st + 4 < 16: vm += [(t, s, f'w{st+4}') for t, s in chunk_ops(('w', st + 4))]
        for x in xsched.get(kk, []): vm += [(t, s, f'x{x}') for t, s in xn_ops(x)]
        ng = sum(1 for x in vm if x[0] == 'g')
        free = [x for x in range(2, 32) if x not in g]
        pick = [free[(j * len(free)) // ng] for j in range(ng)] if ng else []
        j = 0
        for t, s, tg in vm:
            if t == 'g': g[pick[j]] = [s]; gt[pick[j]] = tg; j += 1
            elif t == 's':
                q = pick[j] - 1
                if q in gt: g[q].append(s)
                else: g.setdefault(q, []).insert(0, s)
            else: g[pick[j - 1]].append(s)
        order = [(db, qb) for db in range(8) for qb in range(4)]
        if kk == 31:
            order = [(db, qb) for qb in range(4) for db in range(8)]
            assert not b2.items, len(b2.items)
            for kb in range(2):
                for s_ in range(4): b2.e(f"ds_read_b128 {A(FR(kb,s_),4)}, v{VY} offset:{(kb*4+s_)*1024}", tag=f'k{kb}')
            b2.at(31 + 12 / 32.0)
            b2.items += conv_items(0) + conv_items(1)
        elif kk > 24:
            for r in range(16): b2.e(f"v_accvgpr_write_b32 a{XR(kk-1,0)+r}, 0")
        for n, (db, qb) in enumerate(order):
            k.e(mfma(V(QA(db, qb), 4), A(WF(kk, db), 4), A(XR(kk, qb), 4), V(QA(db, qb), 4) if kk else "0"))
            if n in g:
                for s in g[n]: k.e(s, tag=gt.get(n))
            else:
                nl = len(k.lines)
                b1.fill(k, kk + n / 32.0)
                if len(k.lines) == nl: b2.fill(k, kk + n / 32.0)
    print("phase2 items left", len(b1.items), len(b2.items))
    b1.drain(k)
    k.stamp(ST or S2)
    XS = 160
    def ffn_issue():
        for t in range(2):
            k.e(f"s_lshr_b32 s3, s{42+t}, 4")
            k.e(f"s_mul_i32 s3, s3, {XN_RB}")
            k.e(f"s_and_b32 s47, s{42+t}, 15")
            k.e("s_lshl_b32 s47, s47, 4")
            k.e("s_add_u32 s3, s3, s47")
            k.e(f"v_mov_b32 v{28+t}, s3")
        k.e("v_lshrrev_b32 v24, 4, v0")
        k.e("v_and_b32 v25, 15, v0")
        k.e("v_cmp_eq_u32 vcc, 1, v25")
        k.e("s_lshl_b32 s3, s32, 4")
        k.e("v_add_u32 v26, s3, v24")
        k.e("v_cndmask_b32 v28, v28, v29, vcc")
        k.e("v_lshl_add_u32 v28, v24, 8, v28")
        k.e("v_mul_u32_u24 v26, 7168, v26")
        k.e("v_lshlrev_b32 v24, 1, v24")
        k.e("v_xor_b32 v24, v24, v25")
        k.e("v_xor_b32 v25, 8, v24")
        k.e("v_lshl_add_u32 v24, v24, 4, v26")
        k.e("v_lshl_add_u32 v25, v25, 4, v26")
        k.e("s_lshl_b32 s3, s92, 12")
        for q in range(4):
            k.e(f"buffer_load_dwordx4 {A(XS+4*q,4)}, v28, s[20:23], s3 offen offset:{q*1024} sc1")
        ops = []
        for m, srd in enumerate((24, 68)):
            for h in range(2):
                for q in range(4):
                    pre = [f"s_add_u32 m0, s54, {m*32768 + h*16384}"] if q == 0 else []
                    ops.append((pre + [f"s_add_u32 s3, s5, {h*64*7168 + q*27648}"],
                                f"buffer_load_dwordx4 v{24 + (q >> 1)}, {S(srd,4)}, s3 offen offset:{q*1024}{ffn_ld} lds"))
        return ops
    def ffn_finish():
        k.e("v_lshrrev_b32 v24, 4, v0")
        k.e("v_bfe_u32 v25, v0, 2, 2")
        k.e("v_lshl_add_u32 v26, v24, 3, v25")
        k.e("v_lshlrev_b32 v26, 8, v26")
        k.e("v_and_b32 v27, 3, v0")
        k.e("v_lshl_add_u32 v26, v27, 3, v26")
        k.e("v_and_b32 v27, 1, v24")
        k.e("v_lshl_add_u32 v25, v27, 2, v25")
        k.e("s_lshl_b32 s3, s32, 1")
        k.e("v_xor_b32 v25, s3, v25")
        k.e("v_lshl_add_u32 v26, v25, 5, v26")
        k.e("s_sub_u32 s3, s54, s44")
        k.e("v_add_u32 v26, s3, v26")
        k.e("v_xor_b32 v27, 32, v26")
        k.e("s_waitcnt vmcnt(8) lgkmcnt(0)")
        k.e("s_barrier")
        for m in range(2):
            for q in range(4):
                for j in range(2):
                    for rd in range(2):
                        k.e(f"ds_read_b64_tr_b16 {V(128 + 32*m + 8*q + 4*j + 2*rd, 2)}, v{26+j} offset:{m*32768 + q*8192 + rd*1024}", tag=f'f{m}')
        k.e("v_and_b32 v25, 15, v0")
        k.e("v_mul_u32_u24 v28, 14336, v25")
        k.e("v_lshl_add_u32 v28, v24, 4, v28")
        k.e(f"v_mov_b32 v29, {BIG}")
        k.e("v_cmp_gt_u32 vcc, 2, v25")
        k.e(f"s_mul_i32 s3, s92, {4*14336}")
        k.e("s_lshl_b32 s47, s4, 9")
        k.e("s_add_u32 s3, s3, s47")
        k.e("v_cndmask_b32 v28, v29, v28, vcc")
        k.e("s_lshl_b32 s47, s32, 7")
        k.e("s_add_u32 s3, s3, s47")
        k.e(f"s_add_u32 s3, s3, {WS_HP}")
        for m in range(2):
            k.wait_ds(f'f{m}')
            for q in range(4):
                for j in range(2):
                    d = V(224 + 8 * m + 4 * j, 4)
                    k.e(mfma(d, V(128 + 32*m + 8*q + 4*j, 4), A(XS + 4*q, 4), d if q else "0"))
    def ffn_store():
        k.e("s_cmp_lg_u32 s34, 0")
        k.e(f"s_cselect_b32 s3, s3, {1 << 23}")
        k.e(f"s_add_u32 s7, s3, {2*14336}")
        for m in range(2):
            for j in range(2):
                k.e(f"buffer_store_dwordx4 {V(224 + 8*m + 4*j, 4)}, v28, s[20:23], s{7 if m else 3} offen offset:{j*64} sc1", tag='hps')

    def kread(reg, off, kb):
        return [f"ds_read_b128 {A(FR(kb,s_),4)}, v{reg} offset:{off + (kb*4+s_)*1024}" for s_ in range(4)]
    def vread(reg, off, vg):
        return [f"ds_read_b128 {A(FR(vg,j),4)}, v{reg} offset:{off + (vg*4+j)*1024}" for j in range(4)]
    def qk_mfmas(par, nq, zero=False):
        out = []
        for kb in range(4):
            grp = []
            for qb in range(nq):
                d = V(Sr(par, qb, kb), 4)
                for s_ in range(4):
                    c = d if s_ else ("0" if zero else V(NEGM + 4 * qb, 4))
                    grp.append(mfma(d, A(FR(kb, s_), 4), A(Q(qb, s_), 4), c))
            out.append(grp)
        return out
    def pv_mfmas(par, nq):
        out = []
        for vg in range(4):
            grp = []
            for dd in range(2):
                for qb in range(nq):
                    for ks in range(2):
                        o = A(O(qb, 2 * vg + dd), 4)
                        grp.append(mfma(o, A(FR(vg, 2 * dd + ks), 4), V(P(par, qb, ks), 4), o))
            if vg < nq:
                for ks in range(2):
                    l = V(LS + 4 * vg, 4)
                    grp.append(mfma(l, V(ONES, 4), V(P(par, vg, ks), 4), l))
            out.append(grp)
        return out
    def sm_pairs(par, nq, ks):
        out = []
        for kq in range(2):
            for qb in range(nq):
                s0 = Sr(par, qb, 2 * ks + kq)
                for h in range(2):
                    out.append((s0 + 2 * h, s0 + 2 * h + 1, P(par, qb, ks) + 2 * kq + h))
        return out
    class SM:
        def __init__(self, pairs, first, check):
            self.pairs = pairs; self.ne = 0; self.nc = 0; self.no = 0; self.first = first
            self.tail = [f"v_and_b32 v{T0}, 0x40004000, v{ORR}", f"v_cmp_ne_u32 vcc, 0, v{T0}"] if check else []
            self.e_done = 0; self.extra = []
        def tick(self): self.e_done = self.ne
        def exp_ready(self): return self.ne < 2 * len(self.pairs) and self.ne // 2 - self.nc < 4
        def exp(self):
            j, h = self.ne // 2, self.ne & 1; self.ne += 1
            return f"v_exp_f32 v{ET + 2*(j % 4) + h}, v{self.pairs[j][h]}"
        def plain_avail(self):
            n = min(self.e_done // 2, len(self.pairs)) - self.nc
            n += self.nc // 2 - self.no
            if self.no == len(self.pairs) // 2: n += len(self.tail)
            return n + len(self.extra)
        def plain(self):
            if self.nc < min(self.e_done // 2, len(self.pairs)):
                j = self.nc; self.nc += 1
                return f"v_cvt_pk_bf16_f32 v{self.pairs[j][2]}, v{ET + 2*(j % 4)}, v{ET + 2*(j % 4) + 1}"
            if self.no < self.nc // 2:
                j = self.no; self.no += 1
                a, b = self.pairs[2 * j][2], self.pairs[2 * j + 1][2]
                if self.first and j == 0: return f"v_or_b32 v{ORR}, v{a}, v{b}"
                return f"v_or3_b32 v{ORR}, v{ORR}, v{a}, v{b}"
            if self.no == len(self.pairs) // 2 and self.tail: return self.tail.pop(0)
            if self.extra: return self.extra.pop(0)
            return None
        def left_exp(self): return 2 * len(self.pairs) - self.ne
        def left_plain(self): return len(self.pairs) - self.nc + len(self.pairs) // 2 - self.no + len(self.tail) + len(self.extra)
        def done(self): return self.left_exp() == 0 and self.left_plain() == 0
        def drain(self):
            while not self.done():
                self.tick()
                if self.exp_ready():
                    k.e(self.exp())
                    if self.exp_ready(): k.e(self.exp())
                    x = self.plain()
                    if x: k.e(x)
                else:
                    k.e(self.plain())
    def phase(groups, gtags, reads, rtags, sm, vm, nexttag):
        total = sum(len(g) for g in groups)
        vmpos = {}
        if vm:
            step = max(2, (total - 2) // len(vm))
            for j, x in enumerate(vm): vmpos[1 + j * step] = x
        n = 0
        k.wait_ds(gtags[0])
        for gi, grp in enumerate(groups):
            rq = list(reads[gi])
            for mi, m in enumerate(grp):
                k.e(m)
                sm.tick()
                scal = []
                if n + 1 in vmpos: scal += vmpos[n + 1][0]
                lastm = mi == len(grp) - 1
                if n in vmpos:
                    for s in scal: k.e(s)
                    k.e(vmpos[n][1], tag='kv')
                    slots = 0
                else:
                    for s in scal: k.e(s)
                    if lastm:
                        nt = gtags[gi + 1] if gi + 1 < len(groups) else nexttag
                        if nt: k.wait_ds(nt)
                    slots = 2
                    gaps_left = len([x for x in range(n, n + len(grp) - mi) if x not in vmpos])
                    want_d = len(rq) > 0 and (sm.plain_avail() > 0 or not sm.exp_ready() or len(rq) >= gaps_left - 1)
                    if want_d:
                        k.e(rq.pop(0), tag=rtags[gi]); slots -= 1
                        if rq and (sm.plain_avail() == 0 or len(rq) >= gaps_left):
                            k.e(rq.pop(0), tag=rtags[gi]); slots -= 1
                    if slots == 2 and sm.exp_ready() and not (sm.plain_avail() >= 3 and not rq):
                        k.e(sm.exp()); slots = 0
                    while slots > 0:
                        x = sm.plain()
                        if not x: break
                        k.e(x); slots -= 1
                if lastm:
                    for s in rq: k.e(s, tag=rtags[gi])
                    nt = gtags[gi + 1] if gi + 1 < len(groups) else nexttag
                    if nt: k.wait_ds(nt)
                n += 1
        sm.drain()

    def mask_block(par, q0, vr):
        k.e("s_nop 7")
        k.e("s_add_u32 s3, s37, 1")
        k.e("s_lshl_b32 s3, s3, 6")
        k.e(f"v_subrev_u32 v{T0}, s3, v{vr}")
        for c in range(-1, 4):
            for r in range(4): k.e(f"v_cmp_gt_i32 s[{56+2*r}:{57+2*r}], {16*c + r}, v{T0}")
            for qq in range(2):
                kb = c + qq
                if 0 <= kb < 4:
                    for r in range(4):
                        x = Sr(par, q0 + qq, kb) + r
                        k.e(f"v_cndmask_b32 v{x}, v{x}, v{NINF}, s[{56+2*r}:{57+2*r}]")
        k.e("s_nop 1")
    def rowmax(par, qb, d, o=k):
        s0 = Sr(par, qb, 0)
        o.e(f"v_max3_f32 v{d}, v{s0}, v{s0+1}, v{s0+2}")
        for r in range(3, 15, 2): o.e(f"v_max3_f32 v{d}, v{d}, v{s0+r}, v{s0+r+1}")
        o.e(f"v_max_f32 v{d}, v{d}, v{s0+15}")
        o.e(f"v_mov_b32 v{T0}, v{d}")
        o.e(f"v_permlane16_swap_b32 v{T0}, v{d}")
        o.e(f"v_max_f32 v{d}, v{d}, v{T0}")
        o.e(f"v_mov_b32 v{T0}, v{d}")
        o.e(f"v_permlane32_swap_b32 v{T0}, v{d}")
        o.e(f"v_max_f32 v{d}, v{d}, v{T0}")
        o.e(f"v_add_f32 v{d}, {opt.get('moff', '0x41f80000')}, v{d}")
    def fallback(par, nq, nqn):
        k.e("s_nop 7")
        for qb in range(nq):
            rowmax(par, qb, 21)
            k.e("v_max_f32 v21, 0, v21")
            for r in range(16): k.e(f"v_sub_f32 v{Sr(par,qb,0)+r}, v{Sr(par,qb,0)+r}, v21")
            if qb < nqn:
                for r in range(16): k.e(f"v_sub_f32 v{Sr(par^1,qb,0)+r}, v{Sr(par^1,qb,0)+r}, v21")
            for r in range(4): k.e(f"v_sub_f32 v{NEGM+4*qb+r}, v{NEGM+4*qb+r}, v21")
            k.e("v_exp_f32 v22, -v21")
            for r in range(4): k.e(f"v_mul_f32 v{LS+4*qb+r}, v{LS+4*qb+r}, v22")
            for r0 in range(0, 32, 8):
                for r in range(8): k.e(f"v_accvgpr_read_b32 v{ET+r}, a{O(qb,0)+r0+r}")
                for r in range(8): k.e(f"v_mul_f32 v{ET+r}, v{ET+r}, v22")
                for r in range(8): k.e(f"v_accvgpr_write_b32 a{O(qb,0)+r0+r}, v{ET+r}")
        for ks in range(2):
            for (s0, s1, pd) in sm_pairs(par, nq, ks):
                k.e(f"v_exp_f32 v{ET}, v{s0}")
                k.e(f"v_exp_f32 v{ET+1}, v{s1}")
                k.e(f"v_cvt_pk_bf16_f32 v{pd}, v{ET}, v{ET+1}")
        k.e("s_nop 1")
    SPLIT = {4: (32, 16, 8), 2: (17, 8, 4), 0: (0, 0, 0)}
    def tile_sm(par, nq, start, check):
        sm = SM(sm_pairs(par, nq, 0) + sm_pairs(par, nq, 1), True, check)
        sm.ne, sm.nc, sm.no = start; sm.e_done = sm.ne
        return sm
    def pack(ngaps, vmg, dsl, sm, limit, last_sm, pre):
        plan = {}
        dsl = list(dsl)
        def exp_ok(): return sm.exp_ready() and (limit is None or sm.ne < limit[0])
        def plain_n():
            n = min(sm.e_done // 2, len(sm.pairs), limit[1] if limit else 1 << 30) - sm.nc
            n += min(sm.nc // 2, limit[2] if limit else 1 << 30) - sm.no
            if limit is None and sm.no == len(sm.pairs) // 2: n += len(sm.tail)
            return n + len(sm.extra)
        def take_plain():
            if limit is not None:
                c_ok = sm.nc < min(sm.e_done // 2, limit[1]); o_ok = sm.no < min(sm.nc // 2, limit[2])
                if not c_ok and not o_ok: return sm.extra.pop(0) if sm.extra else None
                if not c_ok:
                    keep = sm.e_done; sm.e_done = 2 * sm.nc; x = sm.plain(); sm.e_done = keep; return x
            return sm.plain()
        for g in range(-1 if pre else 0, ngaps):
            if g in vmg: sm.tick(); continue
            sm.tick()
            ops = []
            smok = g <= last_sm
            av = [d for d in dsl if d[2] <= g]
            free_to = lambda dl: len([x for x in range(g, dl + 1) if x not in vmg])
            urgent = any(sum(1 for d in dsl if d[3] <= e[3]) >= 2 * free_to(e[3]) - 1 for e in av)
            pn = plain_n() if smok else 0
            if smok and exp_ok() and not urgent and not (av and pn) and not (pn >= 3):
                ops.append((sm.exp(), None))
            else:
                slots = 2
                if av and g >= 0:
                    d = av.pop(0); dsl.remove(d); ops.append((d[0], d[1])); slots -= 1
                    if av and (pn == 0 or sum(1 for x in dsl if x[3] <= av[0][3]) >= 2 * free_to(av[0][3]) - 1):
                        d = av.pop(0); dsl.remove(d); ops.append((d[0], d[1])); slots -= 1
                while slots and smok:
                    x = take_plain()
                    if not x: break
                    ops.append((x, None)); slots -= 1
                if not ops and smok and exp_ok(): ops.append((sm.exp(), None))
            plan[g] = ops
            if g == last_sm:
                while (limit is None and not sm.done()) or (limit is not None and ((sm.ne, sm.nc, sm.no) != limit or sm.extra)):
                    sm.tick()
                    x = sm.exp() if exp_ok() else take_plain()
                    plan[g].append((x, None)); k.overflow += 1
        assert not dsl, dsl
        return plan
    k.overflow = 0
    SLK = int(opt.get('slk', -1))
    def emit_phase(mf, plan, vmg, scal, bg=None):
        for s_, tg in plan.get(-1, []): k.e(s_, tag=tg)
        for g, m in enumerate(mf):
            k.e(m)
            for x in scal.get(g, []):
                if isinstance(x, tuple): k.wait_ds(x[1])
                elif x.endswith(':'): k.label(x[:-1])
                else: k.e(x)
            if g in vmg: k.e(vmg[g], tag='kv')
            else:
                for s_, tg in plan.get(g, []): k.e(s_, tag=tg)
                if bg and not plan.get(g) and g not in scal: bg.fill(k, 99, 3)
        if bg: bg.drain(k)
    def starts(groups):
        out = [0]
        for g in groups: out.append(out[-1] + len(g))
        return out
    def iteration(par, nq, nqn, maskq0, name, tail):
        kreg, koff = (VX, 32768) if par == 0 else (VY, 0)
        vreg, voff = (VX, 16384) if par == 0 else (VX, 49152)
        nreg, noff = (VY, 0) if par == 0 else (VY, 32768)
        k.hot = True
        ov0 = k.overflow
        k.dq = ['k1'] * 4
        fb, fr = f"L_k2_fb_{name}", f"L_k2_fbr_{name}"
        ool.append((fb, lambda: fallback(par, nq, nqn), fr))
        sm = tile_sm(par, nq, SPLIT[nq], True)
        if par == 0:
            k.e(f"v_xor_b32 v{VX}, 65536, v{VX}")
            k.e(f"v_xor_b32 v{VY}, 65536, v{VY}")
        if nqn:
            if nqn == 4 and WARM: sm.extra = ["v_lshl_add_u64 v[28:29], s[40:41], 0, v[28:29]"]
            grp = qk_mfmas(par ^ 1, nqn); st_ = starts(grp); n1 = st_[-1]
            slack = SLK if nqn == 2 else 6
            dsl = [(x, 'k2', 0, st_[1] + slack) for x in kread(kreg, koff, 2)] + [(x, 'k3', 0, st_[2] + slack) for x in kread(kreg, koff, 3)] + \
                  [(x, 'v0', st_[1], st_[3] + slack) for x in vread(vreg, voff, 0)] + [(x, 'v1', st_[2], n1 - 1) for x in vread(vreg, voff, 1)]
            scal = {st_[1] - 1: [('w', 'k1')], st_[2] - 1: [('w', 'k2')], st_[3] - 1: [('w', 'k3')],
                    n1 - 5: [f"s_cmp_ge_u32 s37, s{45 if maskq0 == 0 else 46}"], n1 - 4: ["s_waitcnt vmcnt(12)"], n1 - 3: ["s_barrier"],
                    n1 - 2: [('w', 'v0')], n1 - 1: [f"s_cbranch_vccnz {fb}", fr + ":"]}
            if nq == 2:
                scal[n1 - 7] = ["s_cmp_lt_u32 s37, s52"]
                scal[n1 - 6] = [f"s_cbranch_scc1 L_nw_{name}", "s_waitcnt vmcnt(12)", f"L_nw_{name}:"]
                del scal[n1 - 4]
            vmg = {}
            step = (n1 - 8) / 4
            for j in range(4):
                q = int(1 + j * step)
                while q in scal or (j == 0 and q - 1 in scal): q += 1
                vmg[q] = f"buffer_load_dwordx4 v{VDMA}, s[12:15], s38 offen offset:{j*1024}{kv_ld} lds"
                if j == 0: scal[q - 1] = ["s_mov_b32 m0, s53" if par == 0 else "s_add_u32 m0, s53, 32768"]
            plan = pack(n1, vmg, dsl, sm, None, n1 - 2, par == 1)
            emit_phase(sum(grp, []), plan, vmg, scal)
        else:
            for s in p4_ptr_loads(): k.e(s)
            k.e("s_waitcnt lgkmcnt(0)")
            for s in vread(vreg, voff, 0): k.e(s, tag='v0')
            for s in vread(vreg, voff, 1): k.e(s, tag='v1')
            k.hot = False
            for pre, ld in ffn_issue():
                for x in pre: k.e(x)
                k.e(ld)
                for _ in range(2):
                    sm.tick()
                    if sm.exp_ready(): k.e(sm.exp())
                    elif not sm.done(): k.e(sm.plain())
            sm.drain()
            k.wait_ds('v0')
            k.hot = True
            k.e(f"s_cbranch_vccnz {fb}")
            k.label(fr)
        grp = pv_mfmas(par, nq); st_ = starts(grp); n2 = st_[-1]
        slack = SLK if nq == 2 else 6
        dsl = [(x, 'v2', 0, st_[1] + slack) for x in vread(vreg, voff, 2)] + [(x, 'v3', 0, st_[2] + slack) for x in vread(vreg, voff, 3)]
        scal = {st_[1] - 1: [('w', 'v1')], st_[2] - 1: [('w', 'v2')], st_[3] - 1: [('w', 'v3')]}
        vmg = {}
        if nqn:
            dsl += [(x, 'k0', st_[1], st_[3] + slack - 1) for x in kread(nreg, noff, 0)] + [(x, 'k1', st_[2], n2 - 2) for x in kread(nreg, noff, 1)]
            mb, mr = f"L_k2_mk_{name}", f"L_k2_mkr_{name}"
            ool.append((mb, lambda: mask_block(par ^ 1, maskq0, VRA if maskq0 == 0 else VRB), mr))
            scal[0] = [f"s_cbranch_scc1 {mb}", mr + ":"]
            scal[n2 - 2] = [('w', 'k0')]
            if len(tail) == 2: scal[n2 - 3] = [tail[0]]
            if tail: scal[n2 - 1] = [tail[-1]]
            mv = "s_add_u32 m0, s54, 49152" if par == 0 else "s_add_u32 m0, s53, 16384"
            vm = [f"buffer_load_dwordx4 v{VDMA}, s[12:15], s39 offen offset:{j*1024}{kv_ld} lds" for j in range(4)]
            if nqn == 4 and WARM: vm.append("global_load_dword v30, v[28:29], off")
            step = (n2 - 4) / len(vm)
            pos = []
            for j in range(len(vm)):
                q = int(2 + j * step)
                while q in scal or q in vmg or (j == 0 and q - 1 in scal): q += 1
                vmg[q] = vm[j]; pos.append(q)
                if j == 0: scal[q - 1] = [mv]
            def put(x, lo):
                q = lo
                while q in scal or q in vmg: q += 1
                assert q < n2 - 3, (x, q)
                scal[q] = [x]
            if name == "ne":
                q = 3
                while any(x in scal or x in vmg for x in (q, q + 1)): q += 1
                scal[q] = ["s_cmp_eq_u32 s37, s52"]; scal[q + 1] = ["s_cbranch_scc1 L_pubB", "L_pubBr:"]
                def pubB():
                    k.e("v_mov_b32 v24, 1"); k.e("v_mov_b32 v25, 0")
                    k.e("s_mov_b64 exec, 1")
                    k.e("buffer_store_dword v24, v25, s[20:23], s64 offen sc1")
                    k.e("s_mov_b64 exec, -1")
                ool.append(("L_pubB", pubB, "L_pubBr"))
                put("s_add_u32 s37, s37, 1", q + 2)
            else:
                put("s_add_u32 s37, s37, 1", 1)
            put(f"s_add_u32 s38, s38, {KV_TILE}", 1)
            if par == 1:
                put("s_xor_b32 s53, s53, 65536", pos[0]); put("s_xor_b32 s54, s54, 65536", pos[0])
            put(f"s_add_u32 s39, s39, {KV_TILE}", pos[3] + 1)
        sm = tile_sm(par ^ 1, nqn, (0, 0, 0), False)
        plan = pack(n2 - 1 if tail else n2, vmg, dsl, sm, SPLIT[nqn], n2 - 2 if tail else n2 - 1, False)
        if not nqn: k.hot = False
        emit_phase(sum(grp, []), plan, vmg, scal, None if nqn else p4_setup(opt))
        print(f"iteration {name}: overflow ops {k.overflow - ov0}")
        k.hot = False
    def epilogue(q0, srow):
        k.e(f"s_lshl_b32 s3, s{srow}, 20")
        k.e("s_lshl_b32 s47, s33, 15")
        k.e("s_add_u32 s3, s3, s47")
        k.e("s_lshl_b32 s47, s32, 11")
        k.e("s_add_u32 s3, s3, s47")
        k.e("v_lshlrev_b32 v23, 4, v0")
        for qq in range(2):
            k.e(f"v_rcp_f32 v{21+qq}, v{LS+4*(q0+qq)}")
        for s_ in range(4):
            for qq in range(2):
                o = O(q0 + qq, 2 * s_)
                d = 24 + 4 * qq
                for r in range(8): k.e(f"v_accvgpr_read_b32 v{240+r}, a{o+r}")
                for r in range(8): k.e(f"v_mul_f32 v{240+r}, v{240+r}, v{21+qq}")
                for r in range(4): k.e(f"v_cvt_pk_bf16_f32 v{d+r}, v{240+2*r}, v{240+2*r+1}")
                k.e(f"buffer_store_dwordx4 {V(d,4)}, v23, s[16:19], s3 offen offset:{qq*1024}{opt.get('ctx_st',' sc1')}")
            if s_ < 3: k.e("s_add_u32 s3, s3, 8192")

    for kb in range(2, 4):
        for s in kread(VY, 0, kb): k.e(s, tag=f'k{kb}')
    def first_max(o, qb):
        rowmax(0, qb, 22, o)
        if PKM:
            o.e("v_sub_f32 v22, 0, v22"); o.e("v_mov_b32 v23, v22")
            for r in range(0, 16, 2): o.e(f"v_pk_add_f32 {V(Sr(0,qb,0)+r,2)}, {V(Sr(0,qb,0)+r,2)}, v[22:23]")
            for r in range(4): o.e(f"v_mov_b32 v{NEGM+4*qb+r}, v22")
        else:
            for r in range(16): o.e(f"v_sub_f32 v{Sr(0,qb,0)+r}, v{Sr(0,qb,0)+r}, v22")
            for r in range(4): o.e(f"v_sub_f32 v{NEGM+4*qb+r}, 0, v22")
    c = b2
    c.items += conv_items(2) + conv_items(3)
    for r in list(range(XR(30, 0), XR(30, 0) + 16)) + list(range(XR(31, 0), XR(31, 0) + 16)): c.e(f"v_accvgpr_write_b32 a{r}, 0")
    for r in range(4): c.e(f"v_mov_b32 v{ONES+r}, 0x3f803f80")
    c.e(f"v_mov_b32 v{NINF}, 0xff800000")
    first_max(c, 0); first_max(c, 1)
    for qb in range(4):
        while any(it[0] == 'mark' and it[1] == f'conv{qb}' for it in c.items): c.fill(k, 99, 2)
        for kb in range(4):
            k.wait_ds(f'k{kb}')
            if qb == 3 and kb == 2:
                k.e(f"s_waitcnt vmcnt({min(k.vm_n('c18'), k.vm_n('c17'))})")
                k.e("s_barrier")
            for s_ in range(4):
                d = V(Sr(0, qb, kb), 4)
                k.e(mfma(d, A(FR(kb, s_), 4), A(Q(qb, s_), 4), d if s_ else "0"))
                if qb == 3 and kb >= 2: k.e(kread(VY, 32768, kb - 2)[s_], tag=f'n{kb-2}')
                c.fill(k, 99, int(opt.get('pslots', 4)))
    c.drain(k)
    k.e(f"s_mov_b32 s38, {4*KV_TILE}")
    k.e(f"s_mov_b32 s39, {3*KV_TILE + KV_CH}")
    k.e("s_mov_b32 s37, -1")
    k.e("s_cmp_lg_u32 s34, 0")
    k.e("s_cbranch_scc1 L_k2_nomask0")
    mask_block(0, 2, VRB)
    k.label("L_k2_nomask0")
    k.e("s_mov_b32 s37, 0")
    first_max(k, 2); first_max(k, 3)
    SM(sm_pairs(0, 4, 0), True, False).drain()
    k.e("s_waitcnt lgkmcnt(4)")
    k.stamp(ST)

    k.label("L_k2_wloop")
    iteration(0, 4, 4, 2, "we", ["s_cmp_eq_u32 s37, s35", "s_cbranch_scc1 L_k2_trans"])
    iteration(1, 4, 4, 2, "wo", ["s_branch L_k2_wloop"])
    k.label("L_k2_trans")
    iteration(1, 4, 2, 0, "tr", [])
    if '4' in CPF: emit(code_prefetch("L_k2_fin", "L_k2_end", 32, 56, 160, 164))
    k.e("s_waitcnt vmcnt(9)")
    epilogue(2, 34)
    k.e("s_add_u32 s52, s37, 2")
    k.e("s_waitcnt vmcnt(8)")
    k.label("L_k2_nloop")
    nl0 = len(k.lines)
    iteration(0, 2, 2, 0, "ne", ["s_cmp_eq_u32 s37, s36", "s_cbranch_scc1 L_k2_fin"])
    iteration(1, 2, 2, 0, "no", ["s_branch L_k2_nloop"])
    if 'dbg_drop' in opt:
        drop = tuple(opt['dbg_drop'].split(','))
        k.lines[nl0:] = [x for x in k.lines[nl0:] if not x.strip().startswith(drop) and 'vccnz' not in x]
    k.label("L_k2_fin")
    iteration(1, 2, 0, 0, "fi", [])
    k.stamp(ST)
    k.e("s_nop 7")
    epilogue(0, 55)
    ffn_finish()
    k.e("v_mov_b32 v24, 1")
    k.e("v_mul_u32_u24 v25, s65, v0")
    k.e("s_waitcnt vmcnt(0)")
    k.e("s_barrier")
    k.e("s_mov_b64 exec, 3")
    k.e("buffer_store_dword v24, v25, s[20:23], s64 offen sc1")
    k.e("s_mov_b64 exec, -1")
    ffn_store()
    k.stamp(ST)
    phase4(k, opt, ool, ST)
    k.stamp_dump('stamp' in opt, 66, 0, 32)
    if 'hold' in opt:
        k.e("s_or_b32 s3, s2, s32")
        k.e("s_cmp_lg_u32 s3, 0")
        k.e("s_cbranch_scc1 L_k2_end")
        k.label("L_hold")
        k.e("s_memrealtime s[4:5]")
        k.e("s_waitcnt lgkmcnt(0)")
        k.e(f"s_sub_u32 s3, s4, s{73 + 2 * int(opt.get('holdk', 0))}")
        k.e(f"s_cmp_lt_u32 s3, {int(opt['hold']) * 100}")
        k.e("s_cbranch_scc1 L_hold")
    k.label("L_k2_end")
    k.e("s_endpgm")
    for lab, fn, ret in ool:
        k.label(lab)
        k.win = []; k.dq = []
        fn()
        k.e(f"s_branch {ret}")
    return k.wrap(256, 256), f"; @launch {'kernel=' + KNAME + ' ' if 'aslist' in opt else ''}grid=(256,1,1) block=(256,1,1) lds={K12_LDS}"
```

```python
from fw import *
from layout import *
from p4 import p4_ptr_loads, p4_setup, phase4
KNAME = 'recurrent_scan__compressed_kv_cla__moe_arch_mod__prompt_kernel'

K12_LDS = 148480
QSCALE = 0x3e0293ee
BIG = 0x7ff00000

def gen_k12(opt):
    k = Asm(KNAME)
    k.short = "f"
    ST = opt.get('stamp') == '1'
    S1 = opt.get('stamp') == 'p1'
    S2 = opt.get('stamp') == 'p2'
    w_ld, a_ld, x_ld = opt.get('w_ld', ' nt'), opt.get('a_ld', ''), opt.get('x_ld', ' nt')
    wq_ld, kv_ld, ffn_ld = opt.get('wq_ld', ''), opt.get('kv_ld', ' sc1'), opt.get('ffn_ld', '')
    MAP = int(opt.get('map', 4))
    VOA, VOW, AD, PFO = 2, 6, 10, 47
    FA = lambda ks, i: 64 * ks + 4 * i
    FW = lambda ks, j: 64 * ks + 32 + 4 * j
    def frag_of(isV, it, jd):
        return ((it >> 2) * 16 + jd * 2 + ((it >> 1) & 1), it & 1) if isV else (it * 4 + (jd >> 1), jd & 1)
    SRC = lambda n: ('v', 48 + 8 * n) if n < 26 else ('a', 128 + 8 * (n - 26))
    def acc(isV, it, jd):
        n, h = frag_of(isV, it, jd)
        p, r = SRC(n)
        return R(p, r + 4 * h, 4)
    PK = lambda n: 24 + 4 * (n if n < 26 else n - 26)
    VX, VY, VDMA, VRA, VRB, ORR, T0 = 2, 3, 4, 5, 6, 7, 1
    WV, XV, TA = 8, 10, 16
    ET = 8
    ONES, NINF = 16, 20
    NEGM, LS, PB, SB = 32, 48, 64, 128
    P = lambda par, qb, ks: PB + 32 * par + (qb * 2 + ks) * 4
    Sr = lambda par, qb, kb: SB + 64 * par + (qb * 4 + kb) * 4
    O = lambda qb, db: (qb * 8 + db) * 4
    Q = lambda qb, s: 128 + (qb * 4 + s) * 4
    FR = lambda grp, j: 192 + 16 * grp + 4 * j
    QA = lambda db, qb: 128 + (qb * 8 + db) * 4
    XR = lambda kk, qb: ((kk % 8) * 4 + qb) * 4
    WF = lambda kk, db: 192 + (kk & 1) * 32 + db * 4

    k.e("s_cmp_ge_u32 s2, 256")
    k.e("s_cbranch_scc1 L_k2_end")
    k.stamp(ST)
    k.e("s_load_dwordx4 s[4:7], s[0:1], 0")
    k.e("s_load_dwordx2 s[44:45], s[0:1], 56")
    k.e("s_load_dwordx4 s[40:43], s[0:1], 24")
    k.e("s_load_dwordx4 s[64:67], s[0:1], 96")
    k.e("v_lshrrev_b32 v1, 6, v0")
    k.e("v_and_b32 v0, 63, v0")
    k.e("v_readfirstlane_b32 s32, v1")
    k.e("v_lshrrev_b32 v33, 5, v0")
    k.e("v_and_b32 v31, 31, v0")
    k.e("v_lshlrev_b32 v36, 4, v31")
    k.e("v_lshl_add_u32 v35, v33, 11, v36")
    k.e("s_lshl_b32 s36, s2, 14")
    k.e("s_lshl_b32 s37, s32, 12")
    k.e("s_add_u32 s36, s36, s37")
    k.e("s_lshr_b32 s3, s2, 3")
    k.e("s_and_b32 s33, s3, 7")
    k.e("s_lshr_b32 s3, s3, 3")
    k.e("s_lshr_b32 s35, s3, 1")
    k.e("s_and_b32 s3, s3, 1")
    k.e("s_and_b32 s34, s2, 7")
    k.e("s_lshl_b32 s34, s34, 1")
    k.e("s_add_u32 s34, s34, s3")
    for j in range(4):
        k.e(f"s_mov_b32 s{48+j}, {j*7168}")
        k.e(f"s_mov_b32 s{52+j}, {j*15360}")
    k.e("s_lshl_b32 s56, s32, 13")
    k.e("s_add_u32 s57, s56, 32768")
    k.e("s_lshl_b32 s3, s32, 4")
    k.e("v_add_u32 v30, s3, v33")
    k.e("v_lshlrev_b32 v30, 13, v30")
    k.e("v_lshlrev_b32 v34, 1, v33")
    k.e("v_xor_b32 v31, v31, v34")
    for hi in range(2):
        for par in range(2):
            k.e(f"v_xor_b32 v34, {(2*par + 4*hi) << 1}, v31")
            k.e(f"v_lshl_add_u32 v{VOW + par + 2*hi}, v34, 4, v30")
            if hi: k.e(f"v_add_u32 v{VOW + par + 2*hi}, {8*8192}, v{VOW + par + 2*hi}")
    k.e("v_lshrrev_b32 v30, 3, v0")
    k.e("s_lshl_b32 s3, s32, 6")
    k.e("v_add_u32 v30, s3, v30")
    k.e("v_lshlrev_b32 v30, 10, v30")
    k.e("v_and_b32 v31, 7, v0")
    k.e("v_lshrrev_b32 v32, 4, v0")
    k.e("v_xor_b32 v31, v31, v32")
    k.e(f"v_lshl_add_u32 v{VOA}, v31, 4, v30")
    k.e("v_xor_b32 v31, 4, v31")
    k.e(f"v_lshl_add_u32 v{VOA+1}, v31, 4, v30")
    k.e(f"v_add_u32 v{VOA+2}, 32768, v{VOA}")
    k.e(f"v_add_u32 v{VOA+3}, 32768, v{VOA+1}")
    KX = int(opt.get('kx', 7))
    k.e(f"s_and_b32 s58, s2, {KX}")
    k.e("s_lshl_b32 s3, s58, 19")
    for q in range(4): k.e(f"v_xor_b32 v{VOW+q}, s3, v{VOW+q}")
    k.e("s_lshl_b32 s3, s58, 7")
    for q in range(4): k.e(f"v_xor_b32 v{VOA+q}, s3, v{VOA+q}")
    k.e("s_waitcnt lgkmcnt(0)")
    k.srd(16, 4, 4194304)
    XP, WR, XF = 48, 64, 80
    for i in range(4):
        k.e(f"buffer_load_dwordx4 {V(XP+4*i,4)}, v35, s[16:19], s36 offen offset:{i*512}{x_ld}", tag='x')
    def emit(lst, o=None):
        for x in lst:
            if x.endswith(':'): k.label(x[:-1])
            else: k.e(x, tag='cpf')
    CPF = opt.get('cpf', '1234')
    if '1' in CPF: emit(code_prefetch(KNAME, "L_k2_fin", 32, 68, 120, 124))
    MW = opt.get('mw', '')
    if 'c' in MW:
        k.srd(68, 6, 2097152)
        k.e("v_and_b32 v120, 15, v0")
        k.e("v_lshlrev_b32 v120, 7, v120")
        k.e("s_lshr_b32 s3, s36, 1")
        k.e("buffer_load_dword v125, v120, s[68:71], s3 offen", tag='cpf')
    k.e("s_cmp_eq_u32 s35, 0")
    k.e("s_cselect_b32 s40, s40, s42")
    k.e("s_cselect_b32 s41, s41, s43")
    k.e("s_lshl_b32 s3, s34, 9")
    k.srd(12, 40, 0, "s3")
    k.e("s_sub_u32 s14, 4194304, s3")
    k.e("s_lshl_b32 s3, s33, 18")
    k.srd(8, 6, 262144, "s3")
    def dma_ops(buf):
        ops = []
        for (base, vo, so, srd, fl) in ((57, VOW, 52, 12, w_ld), (56, VOA, 48, 8, a_ld)):
            for hi in range(2):
                ops.append(('s', f"s_add_u32 m0, s{base}, {buf*65536 + hi*4096}"))
                for lo in range(4):
                    ops.append(('g', f"buffer_load_dwordx4 v{vo + (lo&1) + 2*hi}, {S(srd,4)}, s{so+lo} offen offset:{lo*1024}{fl} lds"))
        return ops
    def adv_ops(j):
        x = j ^ (j + 1)
        return [f"v_xor_b32 v{VOW+q}, {x << 19}, v{VOW+q}" for q in range(4)] + [f"v_xor_b32 v{VOA+q}, {x << 7}, v{VOA+q}" for q in range(4)]
    st0 = dma_ops(0)
    for t, s in st0[:10]: k.e(s, tag='st0')
    if 'w' in MW:
        k.srd(68, 40, 4194304)
        k.e("v_lshlrev_b32 v120, 7, v0")
        k.e("s_and_b32 s3, s2, 127")
        k.e("s_lshl_b32 s3, s3, 2")
        k.e("s_add_u32 s3, s3, s32")
        k.e("s_lshl_b32 s3, s3, 13")
        k.e("buffer_load_dword v126, v120, s[68:71], s3 offen", tag='cpf')
    k.srd(28, 44, 2048)
    k.srd(20, 66, 8 << 20)
    k.srd(24, 66, 32 * KV_HEAD, WS_KV)
    k.e("v_and_b32 v30, 15, v0")
    k.e("s_lshr_b32 s3, s32, 1")
    k.e("s_lshl_b32 s3, s3, 14")
    k.e("v_lshlrev_b32 v31, 7, v30")
    k.e("v_add_u32 v31, s3, v31")
    k.e("v_lshrrev_b32 v34, 1, v30")
    k.e("v_xor_b32 v34, v34, v32")
    k.e(f"v_lshl_add_u32 v{AD}, v34, 4, v31")
    k.e("v_xor_b32 v34, 4, v34")
    k.e(f"v_lshl_add_u32 v{AD+1}, v34, 4, v31")
    k.e("v_lshrrev_b32 v30, 2, v30")
    k.e("v_lshl_add_u32 v31, v32, 3, v30")
    k.e("v_lshlrev_b32 v31, 9, v31")
    k.e("v_and_b32 v34, 3, v0")
    k.e("v_lshl_add_u32 v31, v34, 3, v31")
    k.e("s_and_b32 s3, s32, 1")
    k.e("s_lshl_b32 s3, s3, 8")
    k.e("s_add_u32 s3, s3, 32768")
    k.e("v_add_u32 v31, s3, v31")
    k.e("v_and_b32 v34, 1, v32")
    k.e("v_lshl_add_u32 v30, v34, 2, v30")
    for jj in range(8):
        k.e(f"v_xor_b32 v34, {jj}, v30")
        k.e(f"v_lshl_add_u32 v{AD+2+jj}, v34, 5, v31")
    for j in range(10):
        k.e(f"v_add_u32 v{AD+10+j}, 65536, v{AD+j}")
    k.e("s_cmp_lt_u32 s32, 2")
    for j in range(3): k.e(f"s_cselect_b32 s{60+j}, s{8+j}, s{12+j}")
    k.e("s_mov_b32 s63, 0x20000")
    k.e(f"s_mov_b32 s59, {64*8192}")
    k.e("s_cselect_b32 s59, 128, s59")
    k.e("s_lshr_b32 s3, s2, 6")
    k.e("s_lshl_b32 s3, s3, 1")
    k.e("s_add_u32 s3, s3, s32")
    k.e("s_lshl_b32 s3, s3, 15")
    k.e("s_add_u32 s3, s3, 256")
    k.e("v_lshlrev_b32 v37, 10, v0")
    k.e("v_add_u32 v37, s3, v37")
    k.e("v_lshrrev_b32 v38, 2, v0")
    k.e("v_lshlrev_b32 v38, 13, v38")
    k.e("v_and_b32 v39, 3, v0")
    k.e("v_lshl_add_u32 v38, v39, 7, v38")
    k.e("s_lshl_b32 s39, s33, 1")
    k.e("s_add_u32 s39, s39, s32")
    k.e("s_lshl_b32 s39, s39, 15")
    k.e(f"s_add_u32 s39, s39, {120*8192}")
    k.e("v_add_u32 v38, s39, v38")
    k.e("s_cmp_lt_u32 s32, 2")
    k.e("s_cselect_b64 vcc, -1, 0")
    k.e("s_cselect_b32 s3, 32, 16")
    k.e(f"v_cndmask_b32 v{PFO}, v38, v37, vcc")
    k.e("v_cmp_gt_u32 vcc, s3, v0")
    k.e(f"v_mov_b32 v37, {BIG}")
    k.e(f"v_cndmask_b32 v{PFO}, v37, v{PFO}, vcc")
    k.e("s_mul_i32 s3, s58, s59")
    k.e(f"v_xor_b32 v{PFO}, s3, v{PFO}")
    pfc = [2]
    def pf_ops():
        j = pfc[0]; pfc[0] += 1
        return [f"buffer_load_dword v1, v{PFO}, s[60:63], 0 offen{opt.get('pf_ld', '')}",
                f"s_mul_i32 vcc_lo, s59, {(j ^ (j + 1)) & 7}", f"v_xor_b32 v{PFO}, vcc_lo, v{PFO}"]
    for t, s in st0[10:]: k.e(s, tag='st0')
    for i in range(4):
        k.e(f"buffer_load_dwordx4 {V(WR+4*i,4)}, v36, s[28:31], 0 offen offset:{i*512}", tag='wr')
    for s in adv_ops(0): k.e(s)

    PFE = int(opt.get('pfe', 2))
    PFN = int(opt.get('pfn', 3))
    if PFE == 0:
        for _ in range(PFN):
            for s in pf_ops(): k.e(s, tag='pf')
    st1 = dma_ops(1)
    def sum32(v, t):
        for m in ["quad_perm:[1,0,3,2]", "quad_perm:[2,3,0,1]", "row_half_mirror", "row_mirror"]:
            k.e(f"v_add_f32_dpp v{v}, v{v}, v{v} {m} row_mask:0xf bank_mask:0xf")
        k.e(f"v_mov_b32 v{t}, v{v}")
        k.e(f"v_permlane16_swap_b32 v{t}, v{v}")
        k.e(f"v_add_f32 v{v}, v{v}, v{t}")
    k.wait_vm('x')
    for i in range(16):
        k.e(f"v_lshlrev_b32 v{XF+2*i}, 16, v{XP+i}")
        k.e(f"v_and_b32 v{XF+2*i+1}, 0xffff0000, v{XP+i}")
    k.e(f"v_pk_add_f32 v[40:41], {V(XF,2)}, {V(XF+2,2)}")
    k.e(f"v_pk_add_f32 v[42:43], {V(XF+4,2)}, {V(XF+6,2)}")
    for i in range(4, 16):
        d = 40 + 2 * (i & 1)
        k.e(f"v_pk_add_f32 {V(d,2)}, {V(d,2)}, {V(XF+2*i,2)}")
    k.e("v_pk_add_f32 v[40:41], v[40:41], v[42:43]")
    k.e("v_add_f32 v38, v40, v41")
    sum32(38, 37)
    for t, s in st1[:10]: k.e(s, tag='st1')
    if PFE == 1:
        for _ in range(PFN // 2):
            for s in pf_ops(): k.e(s, tag='pf')
    k.e("v_mul_f32 v38, 0xba800000, v38")
    k.e("v_mov_b32 v39, v38")
    T = 112
    for i in range(16):
        k.e(f"v_pk_add_f32 {V(T+2*(i&3),2)}, {V(XF+2*i,2)}, v[38:39]")
        d = 40 + 2 * (i & 1)
        if i < 2: k.e(f"v_pk_mul_f32 {V(d,2)}, {V(T+2*(i&3),2)}, {V(T+2*(i&3),2)}")
        else: k.e(f"v_pk_fma_f32 {V(d,2)}, {V(T+2*(i&3),2)}, {V(T+2*(i&3),2)}, {V(d,2)}")
    k.e("v_pk_add_f32 v[40:41], v[40:41], v[42:43]")
    k.e("v_add_f32 v40, v40, v41")
    sum32(40, 37)
    for t, s in st1[10:]: k.e(s, tag='st1')
    if PFE == 1:
        for _ in range(PFN // 2):
            for s in pf_ops(): k.e(s, tag='pf')
    k.e("v_mul_f32 v40, 0x3a800000, v40")
    k.e("v_cvt_pk_bf16_f32 v44, v38, v40")
    k.e("v_lshlrev_b32 v38, 16, v44")
    k.e("v_and_b32 v40, 0xffff0000, v44")
    k.e("v_add_f32 v40, 0x3727c5ac, v40")
    k.e("v_cvt_pk_bf16_f32 v44, v40, v40")
    k.e("v_lshlrev_b32 v40, 16, v44")
    k.e("v_sqrt_f32 v40, v40")
    k.e("v_mov_b32 v39, v38")
    k.e("v_cvt_pk_bf16_f32 v44, v40, v40")
    k.e("v_lshlrev_b32 v44, 16, v44")
    k.e("v_rcp_f32 v40, v44")
    for i in range(16):
        k.e(f"v_pk_add_f32 {V(XF+2*i,2)}, {V(XF+2*i,2)}, v[38:39]")
    k.e("v_fma_f32 v45, -v44, v40, 1.0")
    k.e("v_fma_f32 v40, v45, v40, v40")
    k.e("v_mov_b32 v41, v40")
    for i in range(16):
        k.e(f"v_cvt_pk_bf16_f32 v{XP+i}, v{XF+2*i}, v{XF+2*i+1}")
    for i in range(16):
        k.e(f"v_lshlrev_b32 v{XF+2*i}, 16, v{XP+i}")
        k.e(f"v_and_b32 v{XF+2*i+1}, 0xffff0000, v{XP+i}")
    for i in range(16):
        k.e(f"v_pk_mul_f32 {V(XF+2*i,2)}, {V(XF+2*i,2)}, v[40:41]")
    for i in range(16):
        k.e(f"v_cvt_pk_bf16_f32 v{XP+i}, v{XF+2*i}, v{XF+2*i+1}")
    k.e("s_mul_i32 s3, s32, 4128")
    k.e("s_add_u32 s3, s3, 131072")
    k.e("v_mul_u32_u24 v42, 2064, v33")
    k.e("v_add3_u32 v42, v42, v36, s3")
    for i in range(4):
        k.e(f"ds_write_b128 v42, {V(XP+4*i,4)} offset:{i*512}")
    for s in adv_ops(1): k.e(s)
    if PFE == 2:
        for _ in range(PFN):
            for s in pf_ops(): k.e(s, tag='pf')
    k.wait_vm('wr')
    for i in range(16):
        k.e(f"v_lshlrev_b32 v{XF+2*i}, 16, v{XP+i}")
        k.e(f"v_and_b32 v{XF+2*i+1}, 0xffff0000, v{XP+i}")
        k.e(f"v_lshlrev_b32 v{T+2*(i&3)}, 16, v{WR+i}")
        k.e(f"v_and_b32 v{T+2*(i&3)+1}, 0xffff0000, v{WR+i}")
        d = 42 + 2 * (i & 1)
        if i < 2: k.e(f"v_pk_mul_f32 {V(d,2)}, {V(XF+2*i,2)}, {V(T+2*(i&3),2)}")
        else: k.e(f"v_pk_fma_f32 {V(d,2)}, {V(XF+2*i,2)}, {V(T+2*(i&3),2)}, {V(d,2)}")
    k.e("v_pk_add_f32 v[42:43], v[42:43], v[44:45]")
    k.e("v_add_f32 v45, v42, v43")
    sum32(45, 37)
    k.e("v_cvt_pk_bf16_f32 v45, v45, v45")
    k.e("v_ashrrev_i32 v46, 31, v45")
    k.e("v_or_b32 v46, 0x80000000, v46")
    k.e("v_xor_b32 v45, v45, v46")
    k.e("v_and_b32 v45, 0xffff0000, v45")
    k.e("s_lshr_b32 s3, s36, 11")
    k.e("v_add_u32 v46, s3, v33")
    k.e("v_sub_u32 v44, 0xffff, v46")
    k.e("v_or_b32 v45, v45, v44")
    k.e("v_lshlrev_b32 v44, 2, v46")
    k.e("v_lshlrev_b32 v46, 3, v46")
    k.e("v_xor_b32 v38, 0x80000000, v38")
    k.e("v_mov_b32 v39, v40")
    k.e(f"s_mov_b32 s3, {WS_KEYS}")
    k.e(f"s_mov_b32 s39, {WS_STATS}")
    k.e("s_mov_b32 exec_lo, 1")
    k.e("s_mov_b32 exec_hi, 1")
    k.e("buffer_store_dword v45, v44, s[20:23], s3 offen sc1", tag='ln')
    k.e("buffer_store_dwordx2 v[38:39], v46, s[20:23], s39 offen sc1", tag='ln')
    k.e("s_mov_b64 exec, -1")
    k.e("s_load_dwordx2 s[4:5], s[0:1], 16")
    k.e("s_load_dwordx4 s[40:43], s[0:1], 64")
    k.e("s_load_dwordx2 s[92:93], s[0:1], 40")
    k.e("s_load_dwordx2 s[94:95], s[0:1], 80")
    k.e("s_load_dwordx2 s[100:101], s[0:1], 0")
    k.srd(28, 64, 256)

    def reads(ks, buf):
        a = AD + 10 * buf
        ra = [f"ds_read_b128 {A(FA(ks,i),4)}, v{a+ks} offset:{i*2048}" for i in range(8)]
        rw = [[f"ds_read_b64_tr_b16 {A(FW(ks,j)+2*rd,2)}, v{a+2+j} offset:{ks*16384+rd*2048}" for rd in range(2)] for j in range(8)]
        out = []
        for j in range(8):
            out.append(rw[j]); out.append([ra[j]])
        return out
    k.wait_vm('st0')
    k.e("s_waitcnt lgkmcnt(0)")
    k.e("s_barrier")
    k.stamp(ST)
    n = 0
    for grp in reads(0, 0):
        for s in grp:
            k.e(s); n += 1
            if n == 12: k.e("s_waitcnt lgkmcnt(2)")
    k.e("s_cmp_lg_u32 s35, 0")
    k.e("s_cbranch_scc1 L_k1_vpath")

    def chunk_ops(c):
        kind, j = c
        slot = {'w': j % 4, 'kv': (j + 4) % 8}[kind]
        ops = [('s', f"s_add_u32 m0, s44, {slot * 16384}")]
        if kind == 'w':
            for q in range(4):
                ops.append(('g', f"buffer_load_dwordx4 v{WV + (q >> 1)}, s[8:11], s{48+q} offen offset:{q*1024}{wq_ld} lds"))
            ops.append(('v', f"v_add_u32 v{WV}, {64*8192}, v{WV}"))
            ops.append(('v', f"v_add_u32 v{WV+1}, {64*8192}, v{WV+1}"))
        elif kind == 'f':
            for q in range(4):
                ops.append(('g', f"buffer_load_dwordx4 v{12 + (q >> 1) + 2 * (j & 1)}, {S(60 + 8 * (j >> 1), 4)}, s{52+q} offen offset:{q*1024}{ffn_ld} lds"))
        else:
            ops.append(('s', f"s_mov_b32 s7, {j * KV_CH}"))
            for q in range(4):
                ops.append(('g', f"buffer_load_dwordx4 v{VDMA}, s[12:15], s7 offen offset:{q*1024}{kv_ld} lds"))
        return ops
    def xn_ops(kk):
        ops = []
        for qb in range(4):
            so = "s58" if qb & 1 else "0"
            ops.append(('g', f"buffer_load_dwordx4 {A(XR(kk,qb),4)}, v{XV + (qb >> 1)}, s[20:23], {so} offen offset:{(kk % 4)*1024}{opt.get('xn_ld', ' sc1')}"))
        if kk % 4 == 3:
            ops.append(('v', f"v_add_u32 v{XV}, 4096, v{XV}"))
            ops.append(('v', f"v_add_u32 v{XV+1}, 4096, v{XV+1}"))
        return ops
    def wreads(kk):
        st, ks = kk // 2, kk & 1
        return [[f"ds_read_b64_tr_b16 {A(WF(kk,db)+2*rd,2)}, v{TA+db} offset:{(st % 4)*16384 + ks*8192 + rd*1024}" for rd in range(2)] for db in range(8)]
    ool = []
    def spin(lab, ret, off, target, vd, vz, sv, sc):
        def fn():
            k.e(f"s_mov_b32 s{sc}, 0x400000")
            k.label(lab + "_l")
            k.e(f"s_sleep {opt.get('slp', 8)}")
            k.e(f"buffer_load_dword v{vd}, v{vz}, s[28:31], {off} offen sc1")
            k.e("s_waitcnt vmcnt(0)")
            k.e(f"v_readfirstlane_b32 s{sv}, v{vd}")
            k.e(f"s_sub_u32 s{sc}, s{sc}, 1")
            k.e(f"s_cmp_eq_u32 s{sc}, 0")
            k.e(f"s_cbranch_scc1 {ret}")
            k.e(f"s_cmp_lt_u32 s{sv}, {target}")
            k.e(f"s_cbranch_scc1 {lab}_l")
        ool.append((lab, fn, ret))
    def srd_rec(b, d, base, nbytes, add=None):
        if add is None:
            b.e(f"s_mov_b32 s{d}, s{base}"); b.e(f"s_and_b32 s{d+1}, s{base+1}, 0xffff")
        else:
            b.blk([f"s_add_u32 s{d}, s{base}, {add}", f"s_addc_u32 s{d+1}, s{base+1}, 0", f"s_and_b32 s{d+1}, s{d+1}, 0xffff"])
        b.e(f"s_mov_b32 s{d+2}, {nbytes}"); b.e(f"s_mov_b32 s{d+3}, 0x20000")

    def phase1_stream(isV):
        b = Rec()
        tg = 'v' if isV else 'k'
        b.e("v_and_b32 v46, 7, v0")
        b.e("v_lshrrev_b32 v1, 3, v0") if False else None
        b.e("v_mul_u32_u24 v30, 2064, v46")
        b.e("v_lshrrev_b32 v31, 3, v0")
        b.e("s_lshl_b32 s3, s32, 9")
        b.e("s_add_u32 s3, s3, 131072")
        b.e("v_lshl_add_u32 v30, v31, 4, v30")
        b.e("v_add_u32 v30, s3, v30")
        b.e("v_lshlrev_b32 v31, 8, v31")
        b.e("v_lshl_add_u32 v46, v46, 4, v31")
        for i in (1, 2, 3, 0):
            b.e(f"ds_read_b128 {V(30+4*i,4)}, v30 offset:{i*128}", tag='xs')
        b.e("s_lshr_b32 s3, s2, 1")
        b.e(f"s_mul_i32 s3, s3, {XN_RB}")
        b.e("s_add_u32 s3, s3, s56")
        b.e("s_and_b32 s39, s2, 1")
        b.e("s_lshl_b32 s39, s39, 7")
        b.e("s_add_u32 s3, s3, s39")
        b.e("s_add_u32 s39, s3, 4096")
        b.at(2)
        for i in range(4):
            b.e(f"buffer_store_dwordx4 {V(30+4*i,4)}, v46, s[20:23], s{3 if i < 2 else 39} offen offset:{(i&1)*2048} sc1", tag='ln')
        b.e("s_lshl_b32 s3, s34, 1")
        b.e("s_and_b32 s36, s32, 1")
        b.e("s_add_u32 s3, s3, s36")
        b.e(f"s_mul_i32 s3, s3, {KV_HEAD}")
        b.e(f"s_mul_i32 s36, s33, {4*KV_TILE}")
        b.e("s_add_u32 s3, s3, s36")
        b.e("s_lshr_b32 s36, s32, 1")
        b.e(f"s_mul_i32 s36, s36, {2*KV_TILE}")
        b.e("s_add_u32 s3, s3, s36")
        b.e(f"s_add_u32 s38, s3, {KV_CH if isV else 0}")
        b.e("s_lshl_b32 s39, s34, 7")
        b.e("s_lshl_b32 s36, s33, 2")
        b.e("s_add_u32 s39, s39, s36")
        b.e(f"s_add_u32 s39, s39, {WS_FLG + (32 if isV else 0)}")
        b.e("v_mov_b32 v30, 1")
        b.e("v_mov_b32 v31, 0")
        b.blk(["s_cmp_eq_u32 s32, 0", f"s_cselect_b32 s39, s39, {BIG}"])
        b.blk(["s_mov_b64 exec, 1", ("buffer_store_dword v31, v31, s[20:23], s39 offen sc1", 'ln'), "s_mov_b64 exec, -1"])
        if MAP == 4:
            b.e("s_and_b32 s33, s2, 7")
            b.e("s_lshl_b32 s33, s33, 2")
            b.e("s_bfe_u32 s3, s2, 0x20003")
            b.e("s_add_u32 s33, s33, s3")
            b.e("s_lshr_b32 s34, s2, 5")
        else:
            b.e("s_and_b32 s33, s2, 6")
            b.e("s_lshl_b32 s33, s33, 2")
            b.e("s_bfe_u32 s3, s2, 0x30003")
            b.e("s_add_u32 s33, s33, s3")
            b.e("s_lshr_b32 s34, s2, 6")
            b.e("s_lshl_b32 s34, s34, 1")
            b.e("s_and_b32 s3, s2, 1")
            b.e("s_add_u32 s34, s34, s3")
        b.e("s_lshl_b32 s64, s34, 7")
        b.e("s_lshl_b32 s3, s33, 2")
        b.e("s_add_u32 s64, s64, s3")
        b.e(f"s_add_u32 s64, s64, {WS_CFL}")
        b.e("s_lshl_b32 s65, s34, 8")
        b.e("s_sub_u32 s65, 1920, s65")
        b.e("v_mul_u32_u24 v32, s65, v0")
        b.blk(["s_cmp_eq_u32 s32, 0", f"s_cselect_b32 s64, s64, {BIG}"])
        b.blk(["s_mov_b64 exec, 3", ("buffer_store_dword v31, v32, s[20:23], s64 offen sc1", 'ln'), "s_mov_b64 exec, -1"])
        b.e("s_lshl_b32 s35, s34, 1")
        b.e("s_sub_u32 s36, 32, s35")
        b.e("s_add_u32 s35, s35, 2")
        b.e("s_lshl_b32 s44, s32, 12")
        b.e(f"s_mov_b32 s58, {XN_RB}")
        b.e("s_sub_u32 s3, 15, s34")
        b.e("s_lshl_b32 s45, s3, 2")
        b.e("s_add_u32 s45, s45, s32")
        b.e("s_lshl_b32 s46, s34, 2")
        b.e("s_add_u32 s46, s46, s32")
        srd_rec(b, 68, 42, 7340032)
        b.blk(["s_cmp_eq_u32 s32, 0", f"s_cselect_b32 s37, 0, {BIG}"])
        b.e("s_lshl_b32 s3, s33, 8")
        srd_rec(b, 16, 4, 0, "s3")
        b.e("s_sub_u32 s18, 8388608, s3")
        WQN = int(opt.get('wqn', 1))
        ln_ = 64 // WQN
        b.e(f"v_and_b32 v33, {ln_ - 1}, v0")
        b.e("v_lshrrev_b32 v32, 1, v33")
        b.e("v_and_b32 v33, 1, v0")
        b.e("v_lshlrev_b32 v32, 13, v32")
        b.e("v_lshl_add_u32 v45, v33, 7, v32")
        b.e("s_lshl_b32 s3, s32, 3")
        b.e("s_add_u32 s3, s3, s34")
        b.e(f"s_mul_i32 s47, s3, {ln_ // 2 * 8192}")
        WQ0 = int(opt.get('wq0', 10))
        sig = False
        for j in range(WQN):
            step = WQ0 + j * float(opt.get('wqs', 2))
            if step >= 6 and not sig:
                sig = True
                b.at(6)
                b.check_clear('ln')
                b.blk(["s_mov_b64 exec, 1", "buffer_atomic_add v30, v31, s[28:31], s37 offen sc1", "s_mov_b64 exec, -1"])
            b.at(step)
            b.e(f"buffer_load_dword v44, v45, s[16:19], s47 offen{opt.get('wqpf_ld', '')}", tag='pf')
            b.e(f"s_add_u32 s47, s47, {1024 // WQN * 8192}")
        b.e("v_lshrrev_b32 v32, 4, v0")
        b.e("v_and_b32 v33, 15, v0")
        b.e("s_lshl_b32 s3, s32, 4")
        b.e("v_add_u32 v34, s3, v32")
        b.e("v_lshlrev_b32 v36, 1, v32")
        b.e("v_xor_b32 v36, v36, v33")
        b.e("v_xor_b32 v37, 8, v36")
        if '2' in CPF:
            b.at(10)
            cp = code_prefetch("L_phase2", "L_k2_fin", 32, 6, 40, 43)
            cp = [x.replace("s8", "s3") for x in cp]
            b.blk(cp[:4])
            for x in cp[4:-3]: b.e(x)
            b.blk(cp[-3:-1])
            b.e(cp[-1])
        b.at(12)
        b.e("buffer_load_dword v30, v31, s[28:31], s37 offen sc1", tag='poll')
        for j in range(3): b.e(f"s_mov_b32 s{8+j}, s{16+j}")
        srd_rec(b, 16, 66, 16 << 20, WS_CTX)
        for j in range(4): b.e(f"s_mov_b32 s{48+j}, {j*31744}")
        b.e("v_lshlrev_b32 v35, 13, v34")
        b.e(f"v_lshl_add_u32 v{WV}, v36, 4, v35")
        b.e(f"v_lshl_add_u32 v{WV+1}, v37, 4, v35")
        b.e(f"v_lshlrev_b32 v{VX}, 4, v0")
        b.e(f"v_add_u32 v{VY}, 65536, v{VX}")
        b.e(f"v_add_u32 v{VDMA}, s44, v{VX}")
        b.e("v_mov_b32 v7, 0")
        b.e("v_lshlrev_b32 v35, 2, v32")
        b.e("v_sub_u32 v35, v33, v35")
        b.e("s_lshl_b32 s3, s45, 5")
        b.e(f"v_add_u32 v{VRA}, s3, v35")
        b.e("s_lshl_b32 s3, s46, 5")
        b.e(f"v_add_u32 v{VRB}, s3, v35")
        b.e(f"s_mul_i32 s3, s33, {KV_HEAD}")
        b.e(f"s_add_u32 s3, s3, {WS_KV}")
        srd_rec(b, 12, 66, 0, "s3")
        b.e(f"s_mul_i32 s14, s36, {KV_TILE}")
        b.at(13)
        b.e(f"s_mul_i32 s3, s45, {2*XN_RB}")
        b.e(f"v_add_u32 v{XV}, s3, v{VX}")
        b.e(f"s_mul_i32 s3, s46, {2*XN_RB}")
        b.e(f"v_add_u32 v{XV+1}, s3, v{VX}")
        if 'dbg_noxn' in opt:
            b.e(f"v_mov_b32 v{XV}, {BIG}"); b.e(f"v_mov_b32 v{XV+1}, {BIG}")
        if 'dbg_nowq' in opt: b.e("s_mov_b32 s10, 0")
        if 'dbg_nost' in opt: b.e("s_mov_b32 s26, 0")
        spin(f"L_spinA{tg}", f"L_spinAr{tg}", 0, 256, 30, 31, 3, 47)
        return b
    def ta_setup(b):
        b.e("v_lshrrev_b32 v42, 2, v33")
        b.e("v_lshl_add_u32 v43, v32, 3, v42")
        b.e("v_lshlrev_b32 v43, 8, v43")
        b.e("v_and_b32 v44, 3, v0")
        b.e("v_lshl_add_u32 v43, v44, 3, v43")
        b.e("v_and_b32 v44, 1, v32")
        b.e("v_lshl_add_u32 v42, v44, 2, v42")
        for db in range(8):
            b.e(f"v_xor_b32 v44, {db}, v42")
            b.e(f"v_lshl_add_u32 v{TA+db}, v44, 5, v43")

    def kstep(isV, st, ks, gaps, gtags, pre, b):
        for s in pre:
            if s.endswith(':'): k.label(s[:-1])
            else: k.e(s)
        order = [(it, jd) for it in range(8) for jd in range(8)]
        if st == 7 and ks == 1: order.sort(key=lambda x: frag_of(isV, *x))
        for n, (it, jd) in enumerate(order):
            fa, fw_ = A(FA(ks, it), 4), A(FW(ks, jd), 4)
            d = acc(isV, it, jd)
            c = "0" if (st == 0 and ks == 0) else d
            k.e(mfma(d, fa, fw_, c) if isV else mfma(d, fw_, fa, c))
            if n in gaps:
                for s in gaps[n]: k.e(s, tag=gtags.get(n))
            else:
                b.fill(k, 2 * st + ks + n / 64.0)
    def place_vm(g, gt, ops, start, step):
        gi = start; lead = []
        for t, s, tg in ops:
            if t == 's':
                if gi == 0: lead.append(s)
                else: g.setdefault(gi - 1, []).insert(0, s)
            elif t == 'g':
                assert gi not in g and gi < 64, gi
                g[gi] = [s]; gt[gi] = tg; gi += step
            else:
                q = gi - step + 1
                while q in g and (len(g[q]) >= 2 or g[q][-1].startswith(('buffer', 'ds_read_b64'))) or (q - start) % step == 0: q += 1
                g.setdefault(min(q, 63), []).append(s)
        return lead
    vq0, dq0 = list(k.vq), list(k.dq)
    for isV in (0, 1):
        if isV:
            k.label("L_k1_vpath"); k.win = []; k.vq = list(vq0); k.dq = list(dq0)
        b = phase1_stream(isV)
        if S1: k.nstamp = 0
        for st in range(8):
            p = st & 1
            k.stamp(S1)
            g = {}
            for n, grp in enumerate(reads(1, p)):
                g[2 * n + 1] = (["s_waitcnt lgkmcnt(6)"] if n % 4 == 3 else []) + grp
            kstep(isV, st, 0, g, {}, ["s_waitcnt lgkmcnt(0)"], b)
            g = {}; gt = {}
            if st < 7:
                for n, grp in enumerate(reads(0, p ^ 1)):
                    g[2 * n + 1] = (["s_waitcnt lgkmcnt(6)"] if n % 4 == 2 else []) + grp
            if st < 6:
                ops = []
                d = dma_ops(p); adv = adv_ops(st + 2) if st < 5 else []
                ops = [(t, s, f'st{st+2}') for t, s in d[:10]] + [('v', s, None) for s in adv[:4]] + \
                      [(t, s, f'st{st+2}') for t, s in d[10:]] + [('v', s, None) for s in adv[4:]]
                lead = place_vm(g, gt, ops, 0, 4)
                if st < 6 - PFN:
                    pfc[0] = 2 + PFN + st
                    po = pf_ops()
                    g[62] = [po[0]] + g.get(62, []); gt[62] = 'pf'
                    g[63] = [po[1]] + g.get(63, []) + [po[2]]
                need = f'st{st+1}'
            elif st == 6:
                ops = []
                for c in range(4): ops += [(t, s, f'w{c}') for t, s in chunk_ops(('w', c))]
                lead = place_vm(g, gt, ops, 0, 4)
                need = 'st7'
            else:
                assert not b.items, len(b.items)
                ta_setup(b)
                b.items.append(('at', 15.3, None))
                for grp in wreads(0):
                    for s in grp: b.e(s)
                b.e("s_waitcnt lgkmcnt(8)")
                cv = Rec()
                for n in range(26):
                    cv.at(15 + (2 * n + 5) / 64.0)
                    r = SRC(n)[1]
                    for q in range(4): cv.e(f"v_cvt_pk_bf16_f32 v{PK(n)+q}, v{r+2*q}, v{r+2*q+1}")
                b.items += cv.items
                ops = []
                for kk in range(4): ops += [(t, s, f'x{kk}') for t, s in xn_ops(kk)]
                lead = place_vm(g, gt, ops, 0, 4)
                tg = 'v' if isV else 'k'
                lead += ["v_readfirstlane_b32 s3, v30", "s_nop 0", "s_or_b32 s3, s3, s37", "s_cmp_lt_u32 s3, 256", f"s_cbranch_scc1 L_spinA{tg}", f"L_spinAr{tg}:"]
                need = 'w0'
            k.e(f"s_waitcnt vmcnt({k.vm_n(need)}) lgkmcnt(0)" if k.vm_n(need) is not None else "s_waitcnt lgkmcnt(0)")
            kstep(isV, st, 1, g, gt, lead + ["s_barrier"], b)
        print(f"phase1 isV={isV}: items left {len(b.items)}")
        k.stamp(S1)
        b.drain(k)
        k.stamp(S1)
        if not isV:
            k.e("s_branch L_phase2")
            vqK = list(k.vq)
    assert vqK == k.vq
    k.label("L_phase2")
    k.win = []
    k.e("s_nop 7")
    k.stamp(ST)

    b = Rec()
    KY = 56
    SPK = float(opt.get('spk', 2))
    def kvstore(n):
        b.at(n / SPK)
        off = (n >> 4) * KV_TILE + (n & 15) * 1024
        if n % 4 == 0: b.e(f"s_add_u32 s37, s38, {off}")
        b.e(f"buffer_store_dwordx4 {V(PK(n),4)}, v{VX}, s[24:27], s37 offen offset:{(n % 4)*1024}{opt.get('kv_st', ' sc1')}", tag='kvst')
    for n in range(26):
        kvstore(n)
        if 8 <= n < 14:
            m = n + 18
            for q in range(8): b.e(f"v_accvgpr_read_b32 v{48+q}, a{SRC(m)[1]+q}")
            for q in range(4): b.e(f"v_cvt_pk_bf16_f32 v{PK(m)+q}, v{48+2*q}, v{49+2*q}")
    for n in range(26, 32): kvstore(n)
    b.e("v_mov_b32 v12, 1")
    b.e("v_and_b32 v1, 15, v0")
    b.e("v_lshlrev_b32 v1, 2, v1")
    b.e("s_lshr_b32 s6, s33, 1")
    b.e("s_lshl_b32 s6, s6, 7")
    b.e(f"s_add_u32 s6, s6, {WS_FLG}")
    b.blk(["s_cmp_eq_u32 s32, 0", f"s_cselect_b32 s6, s6, {BIG}"])
    SIG = int(opt.get('sig', 21))
    POL = float(opt.get('pol', 26.5))
    b.at(SIG)
    b.blk(["s_mov_b64 exec, 1", "buffer_store_dword v12, v7, s[20:23], s39 offen sc1", "s_mov_b64 exec, -1"])
    b.at(POL)
    b.e("buffer_load_dword v12, v1, s[20:23], s6 offen sc1", tag='poll')
    CK = int(opt.get('ck', 29))
    n_ = 0
    for j in (0, 2, 1, 3, 4, 5, 6):
        for t, s in chunk_ops(('kv', j)):
            if t == 'g':
                b.at(max(CK + n_ * float(opt.get('kvp', 0.09)), {4: 25, 5: 27, 6: 29}.get(j, 0))); n_ += 1
            b.e(s, tag=f'c{16+j}')
    def spinB():
        k.e("s_mov_b32 s59, 0x400000")
        k.label("L_spinB_l")
        k.e(f"s_sleep {opt.get('slp', 4)}")
        k.e("buffer_load_dword v12, v1, s[20:23], s6 offen sc1")
        k.e("s_sub_u32 s59, s59, 1")
        k.e("s_cmp_eq_u32 s59, 0")
        k.e("s_cbranch_scc1 L_spinBx")
        k.e("s_waitcnt vmcnt(0)")
        k.e("v_cmp_ne_u32 vcc, 1, v12")
        k.e("s_cbranch_vccnz L_spinB_l")
        k.label("L_spinBx")
        k.e("s_waitcnt vmcnt(0)")
    ool.append(("L_spinB", spinB, "L_spinBr"))

    b1 = b
    b = Rec()
    srd_rec(b, 60, 40, 7340032)
    b.at(17 / SPK)
    b.e(f"s_mov_b32 s3, {WS_KEYS}")
    b.e(f"s_mov_b32 s47, {WS_KEYS + 4096}")
    for i in range(8):
        b.e(f"buffer_load_dwordx4 {V(KY+4*i,4)}, v{VX}, s[20:23], s{3 if i < 4 else 47} offen offset:{(i % 4)*1024} sc1", tag='keys')
    b.at(17 / SPK + 8)
    b.wait_vm('keys')
    b.e(f"v_max_u32 v14, v{KY}, v{KY+1}")
    b.e(f"v_min_u32 v15, v{KY}, v{KY+1}")
    for i in range(2, 32):
        b.e(f"v_med3_u32 v15, v14, v15, v{KY+i}"); b.e(f"v_max_u32 v14, v14, v{KY+i}")
    def wmax(v, sdst):
        for m in ["quad_perm:[1,0,3,2]", "quad_perm:[2,3,0,1]", "row_half_mirror", "row_mirror"]:
            b.blk([f"v_max_u32_dpp {v}, {v}, {v} {m} row_mask:0xf bank_mask:0xf"])
        b.blk([f"v_readlane_b32 s3, {v}, 0", f"v_readlane_b32 s47, {v}, 16"])
        b.blk([f"v_readlane_b32 s4, {v}, 32", f"v_readlane_b32 s5, {v}, 48"])
        b.blk(["s_max_u32 s3, s3, s47", "s_max_u32 s4, s4, s5", f"s_max_u32 s{sdst}, s3, s4"])
    b.e("v_mov_b32 v13, v14")
    wmax("v13", 40)
    b.blk(["v_cmp_eq_u32 vcc, s40, v14"])
    b.blk(["v_cndmask_b32 v13, v14, v15, vcc"])
    wmax("v13", 41)
    for t in range(2):
        b.e(f"s_and_b32 s3, s{40+t}, 0xffff")
        b.e(f"s_sub_u32 s{42+t}, 0xffff, s3")
    for t in range(2):
        b.e(f"v_mov_b32 v60, s{40+t}")
        b.e("v_not_b32 v61, v60")
        b.e("v_ashrrev_i32 v61, 31, v61")
        b.e("v_or_b32 v61, 0x80000000, v61")
        b.e("v_xor_b32 v60, v60, v61")
        b.e("v_and_b32 v60, 0xffff0000, v60")
        b.e("v_mul_f32 v60, 0xbfb8aa3b, v60")
        b.e("v_exp_f32 v60, v60")
        b.e("v_add_f32 v60, 1.0, v60")
        b.e("v_rcp_f32 v60, v60")
        b.e("v_cvt_pk_bf16_f32 v60, v60, v60")
        b.e(f"v_and_b32 v{64+t}, 0xffff0000, v60")
    for r in range(16): b.e(f"v_mov_b32 v{LS+r}, 0")
    WARM = opt.get('warm', '1') == '1'
    if WARM:
        b.e("s_mul_i32 s3, s34, s34")
        b.e("s_lshl_b32 s47, s33, 6")
        b.e("s_add_u32 s3, s3, s47")
        b.e("s_lshl_b32 s3, s3, 2")
        b.e("s_add_u32 s3, s3, s32")
        b.e("s_lshl_b32 s3, s3, 7")
        b.e("s_sub_u32 s3, s3, 512")
        b.e(f"v_min_u32 v13, {int(opt.get('wlanes', 33)) - 1}, v0")
        b.e("v_mov_b32 v28, s92"); b.e("v_mov_b32 v29, s93")
        b.e("v_mov_b32 v30, v13")
        for first, lo, hi in ((8, 94, 95), (15, 100, 101), (19, 60, 61), (26, 68, 69)):
            b.e(f"v_mov_b32 v14, s{lo}"); b.e(f"v_mov_b32 v15, s{hi}")
            b.blk([f"v_cmp_le_u32 vcc, {first}, v13", f"v_subrev_u32 v31, {first}, v13"])
            b.blk(["v_cndmask_b32 v28, v28, v14, vcc", "v_cndmask_b32 v29, v29, v15, vcc"])
            b.blk(["v_cndmask_b32 v30, v30, v31, vcc"])
        b.e("v_lshlrev_b32 v30, 20, v30")
        b.e("v_add_u32 v30, s3, v30")
        b.e("v_ashrrev_i32 v31, 31, v30")
        b.e("v_lshl_add_u64 v[28:29], v[30:31], 0, v[28:29]")
        b.e("s_mov_b32 s40, 512"); b.e("s_mov_b32 s41, 0")
    b.e("v_readfirstlane_b32 s100, v64")
    b.e("v_readfirstlane_b32 s101, v65")
    b.at(SIG)
    for j in range(3): b.e(f"s_mov_b32 s{24+j}, s{60+j}")
    b.e("s_add_u32 s3, s34, 7")
    b.e("s_and_b32 s3, s3, 7")
    b.e("s_lshl_b32 s3, s3, 5")
    b.e("s_add_u32 s3, s3, s33")
    b.e("s_mul_i32 s92, s3, 2341")
    b.e("s_lshr_b32 s92, s92, 16")
    b.e("s_mul_i32 s47, s92, 28")
    b.e("s_sub_u32 s4, s3, s47")
    b.e(f"s_mul_i32 s5, s92, {128*7168}")
    b.e("s_lshl_b32 s47, s4, 8")
    b.e("s_add_u32 s5, s5, s47")
    b.e(f"s_mov_b32 s94, {QSCALE}")
    b.e(f"s_mov_b32 s95, {QSCALE}")
    b.e("s_sub_u32 s55, 15, s34")
    b.e("s_sub_u32 s45, s36, 3")
    b.e("s_sub_u32 s46, s35, 3")
    b.e("s_max_i32 s46, s46, 0")
    b.e("s_add_u32 s53, s44, 65536")
    b.e("s_mov_b32 s54, s44")
    b.e("s_sub_u32 s35, s35, 1")
    b.e("s_sub_u32 s36, s36, 1")
    b2 = b
    PKM = opt.get('pkm', '0') == '1'
    def conv_items(qb):
        r_ = Rec()
        for s_ in range(4):
            r = QA(2 * s_, qb)
            if PKM:
                for e_ in range(0, 8, 2): r_.e(f"v_pk_mul_f32 {V(r+e_,2)}, {V(r+e_,2)}, s[94:95]")
            else:
                for e_ in range(8): r_.e(f"v_mul_f32 v{r+e_}, s94, v{r+e_}")
            for e_ in range(4): r_.e(f"v_cvt_pk_bf16_f32 v{r+e_}, v{r+2*e_}, v{r+2*e_+1}")
            for e_ in range(4): r_.e(f"v_accvgpr_write_b32 a{Q(qb,s_)+e_}, v{r+e_}")
        r_.items.append(('mark', f'conv{qb}', None))
        return r_.items
    xsched = {0: [4, 5], 1: [6, 7], 2: [8, 9]}
    for kk in range(3, 25): xsched[kk] = [kk + 7]
    for kk in range(32):
        st, ks = kk // 2, kk & 1
        k.stamp(S2 and kk in (0, 4, 8, 12, 16, 20, 24, 28, 31))
        need = [f'x{kk}']
        if ks == 1 and st < 15: need.append(f'w{st+1}')
        if kk == SIG:
            assert not any(it[2] == 'kvst' for it in b1.items), "stores not all issued before SIG"
            need.append('kvst')
        if kk == CK: need.append('poll')
        if kk == 31: need.append('c16')
        w = [x for x in (k.vm_n(t) for t in need) if x is not None]
        k.e("s_waitcnt " + (f"vmcnt({min(w)}) " if w else "") + "lgkmcnt(0)")
        if kk == CK:
            assert not any('vcc' in str(it[1]) for it in b2.items)
            k.e("s_cmp_lg_u32 s32, 0")
            k.e("s_cbranch_scc1 L_spinBr")
            k.e("v_cmp_ne_u32 vcc, 1, v12")
            k.e("s_cbranch_vccnz L_spinB")
            k.label("L_spinBr")
        if ks == 1: k.e("s_barrier")
        g = {}; gt = {}
        if kk + 1 < 32:
            for n, grp in enumerate(wreads(kk + 1)):
                g[1 + 3 * n] = (["s_waitcnt lgkmcnt(6)"] if n == 5 else []) + grp
        vm = []
        if ks == 1 and st + 4 < 16: vm += [(t, s, f'w{st+4}') for t, s in chunk_ops(('w', st + 4))]
        for x in xsched.get(kk, []): vm += [(t, s, f'x{x}') for t, s in xn_ops(x)]
        ng = sum(1 for x in vm if x[0] == 'g')
        free = [x for x in range(2, 32) if x not in g]
        pick = [free[(j * len(free)) // ng] for j in range(ng)] if ng else []
        j = 0
        for t, s, tg in vm:
            if t == 'g': g[pick[j]] = [s]; gt[pick[j]] = tg; j += 1
            elif t == 's':
                q = pick[j] - 1
                if q in gt: g[q].append(s)
                else: g.setdefault(q, []).insert(0, s)
            else: g[pick[j - 1]].append(s)
        order = [(db, qb) for db in range(8) for qb in range(4)]
        if kk == 31:
            order = [(db, qb) for qb in range(4) for db in range(8)]
            assert not b2.items, len(b2.items)
            for kb in range(2):
                for s_ in range(4): b2.e(f"ds_read_b128 {A(FR(kb,s_),4)}, v{VY} offset:{(kb*4+s_)*1024}", tag=f'k{kb}')
            b2.at(31 + 12 / 32.0)
            b2.items += conv_items(0) + conv_items(1)
        elif kk > 24:
            for r in range(16): b2.e(f"v_accvgpr_write_b32 a{XR(kk-1,0)+r}, 0")
        for n, (db, qb) in enumerate(order):
            k.e(mfma(V(QA(db, qb), 4), A(WF(kk, db), 4), A(XR(kk, qb), 4), V(QA(db, qb), 4) if kk else "0"))
            if n in g:
                for s in g[n]: k.e(s, tag=gt.get(n))
            else:
                nl = len(k.lines)
                b1.fill(k, kk + n / 32.0)
                if len(k.lines) == nl: b2.fill(k, kk + n / 32.0)
    print("phase2 items left", len(b1.items), len(b2.items))
    b1.drain(k)
    k.stamp(ST or S2)
    XS = 160
    def ffn_issue():
        for t in range(2):
            k.e(f"s_lshr_b32 s3, s{42+t}, 4")
            k.e(f"s_mul_i32 s3, s3, {XN_RB}")
            k.e(f"s_and_b32 s47, s{42+t}, 15")
            k.e("s_lshl_b32 s47, s47, 4")
            k.e("s_add_u32 s3, s3, s47")
            k.e(f"v_mov_b32 v{28+t}, s3")
        k.e("v_lshrrev_b32 v24, 4, v0")
        k.e("v_and_b32 v25, 15, v0")
        k.e("v_cmp_eq_u32 vcc, 1, v25")
        k.e("s_lshl_b32 s3, s32, 4")
        k.e("v_add_u32 v26, s3, v24")
        k.e("v_cndmask_b32 v28, v28, v29, vcc")
        k.e("v_lshl_add_u32 v28, v24, 8, v28")
        k.e("v_mul_u32_u24 v26, 7168, v26")
        k.e("v_lshlrev_b32 v24, 1, v24")
        k.e("v_xor_b32 v24, v24, v25")
        k.e("v_xor_b32 v25, 8, v24")
        k.e("v_lshl_add_u32 v24, v24, 4, v26")
        k.e("v_lshl_add_u32 v25, v25, 4, v26")
        k.e("s_lshl_b32 s3, s92, 12")
        for q in range(4):
            k.e(f"buffer_load_dwordx4 {A(XS+4*q,4)}, v28, s[20:23], s3 offen offset:{q*1024} sc1")
        ops = []
        for m, srd in enumerate((24, 68)):
            for h in range(2):
                for q in range(4):
                    pre = [f"s_add_u32 m0, s54, {m*32768 + h*16384}"] if q == 0 else []
                    ops.append((pre + [f"s_add_u32 s3, s5, {h*64*7168 + q*27648}"],
                                f"buffer_load_dwordx4 v{24 + (q >> 1)}, {S(srd,4)}, s3 offen offset:{q*1024}{ffn_ld} lds"))
        return ops
    def ffn_finish():
        k.e("v_lshrrev_b32 v24, 4, v0")
        k.e("v_bfe_u32 v25, v0, 2, 2")
        k.e("v_lshl_add_u32 v26, v24, 3, v25")
        k.e("v_lshlrev_b32 v26, 8, v26")
        k.e("v_and_b32 v27, 3, v0")
        k.e("v_lshl_add_u32 v26, v27, 3, v26")
        k.e("v_and_b32 v27, 1, v24")
        k.e("v_lshl_add_u32 v25, v27, 2, v25")
        k.e("s_lshl_b32 s3, s32, 1")
        k.e("v_xor_b32 v25, s3, v25")
        k.e("v_lshl_add_u32 v26, v25, 5, v26")
        k.e("s_sub_u32 s3, s54, s44")
        k.e("v_add_u32 v26, s3, v26")
        k.e("v_xor_b32 v27, 32, v26")
        k.e("s_waitcnt vmcnt(8) lgkmcnt(0)")
        k.e("s_barrier")
        for m in range(2):
            for q in range(4):
                for j in range(2):
                    for rd in range(2):
                        k.e(f"ds_read_b64_tr_b16 {V(128 + 32*m + 8*q + 4*j + 2*rd, 2)}, v{26+j} offset:{m*32768 + q*8192 + rd*1024}", tag=f'f{m}')
        k.e("v_and_b32 v25, 15, v0")
        k.e("v_mul_u32_u24 v28, 14336, v25")
        k.e("v_lshl_add_u32 v28, v24, 4, v28")
        k.e(f"v_mov_b32 v29, {BIG}")
        k.e("v_cmp_gt_u32 vcc, 2, v25")
        k.e(f"s_mul_i32 s3, s92, {4*14336}")
        k.e("s_lshl_b32 s47, s4, 9")
        k.e("s_add_u32 s3, s3, s47")
        k.e("v_cndmask_b32 v28, v29, v28, vcc")
        k.e("s_lshl_b32 s47, s32, 7")
        k.e("s_add_u32 s3, s3, s47")
        k.e(f"s_add_u32 s3, s3, {WS_HP}")
        for m in range(2):
            k.wait_ds(f'f{m}')
            for q in range(4):
                for j in range(2):
                    d = V(224 + 8 * m + 4 * j, 4)
                    k.e(mfma(d, V(128 + 32*m + 8*q + 4*j, 4), A(XS + 4*q, 4), d if q else "0"))
    def ffn_store():
        k.e("s_cmp_lg_u32 s34, 0")
        k.e(f"s_cselect_b32 s3, s3, {1 << 23}")
        k.e(f"s_add_u32 s7, s3, {2*14336}")
        for m in range(2):
            for j in range(2):
                k.e(f"buffer_store_dwordx4 {V(224 + 8*m + 4*j, 4)}, v28, s[20:23], s{7 if m else 3} offen offset:{j*64} sc1", tag='hps')

    def kread(reg, off, kb):
        return [f"ds_read_b128 {A(FR(kb,s_),4)}, v{reg} offset:{off + (kb*4+s_)*1024}" for s_ in range(4)]
    def vread(reg, off, vg):
        return [f"ds_read_b128 {A(FR(vg,j),4)}, v{reg} offset:{off + (vg*4+j)*1024}" for j in range(4)]
    def qk_mfmas(par, nq, zero=False):
        out = []
        for kb in range(4):
            grp = []
            for qb in range(nq):
                d = V(Sr(par, qb, kb), 4)
                for s_ in range(4):
                    c = d if s_ else ("0" if zero else V(NEGM + 4 * qb, 4))
                    grp.append(mfma(d, A(FR(kb, s_), 4), A(Q(qb, s_), 4), c))
            out.append(grp)
        return out
    def pv_mfmas(par, nq):
        out = []
        for vg in range(4):
            grp = []
            for dd in range(2):
                for qb in range(nq):
                    for ks in range(2):
                        o = A(O(qb, 2 * vg + dd), 4)
                        grp.append(mfma(o, A(FR(vg, 2 * dd + ks), 4), V(P(par, qb, ks), 4), o))
            if vg < nq:
                for ks in range(2):
                    l = V(LS + 4 * vg, 4)
                    grp.append(mfma(l, V(ONES, 4), V(P(par, vg, ks), 4), l))
            out.append(grp)
        return out
    def sm_pairs(par, nq, ks):
        out = []
        for kq in range(2):
            for qb in range(nq):
                s0 = Sr(par, qb, 2 * ks + kq)
                for h in range(2):
                    out.append((s0 + 2 * h, s0 + 2 * h + 1, P(par, qb, ks) + 2 * kq + h))
        return out
    class SM:
        def __init__(self, pairs, first, check):
            self.pairs = pairs; self.ne = 0; self.nc = 0; self.no = 0; self.first = first
            self.tail = [f"v_and_b32 v{T0}, 0x40004000, v{ORR}", f"v_cmp_ne_u32 vcc, 0, v{T0}"] if check else []
            self.e_done = 0; self.extra = []
        def tick(self): self.e_done = self.ne
        def exp_ready(self): return self.ne < 2 * len(self.pairs) and self.ne // 2 - self.nc < 4
        def exp(self):
            j, h = self.ne // 2, self.ne & 1; self.ne += 1
            return f"v_exp_f32 v{ET + 2*(j % 4) + h}, v{self.pairs[j][h]}"
        def plain_avail(self):
            n = min(self.e_done // 2, len(self.pairs)) - self.nc
            n += self.nc // 2 - self.no
            if self.no == len(self.pairs) // 2: n += len(self.tail)
            return n + len(self.extra)
        def plain(self):
            if self.nc < min(self.e_done // 2, len(self.pairs)):
                j = self.nc; self.nc += 1
                return f"v_cvt_pk_bf16_f32 v{self.pairs[j][2]}, v{ET + 2*(j % 4)}, v{ET + 2*(j % 4) + 1}"
            if self.no < self.nc // 2:
                j = self.no; self.no += 1
                a, b = self.pairs[2 * j][2], self.pairs[2 * j + 1][2]
                if self.first and j == 0: return f"v_or_b32 v{ORR}, v{a}, v{b}"
                return f"v_or3_b32 v{ORR}, v{ORR}, v{a}, v{b}"
            if self.no == len(self.pairs) // 2 and self.tail: return self.tail.pop(0)
            if self.extra: return self.extra.pop(0)
            return None
        def left_exp(self): return 2 * len(self.pairs) - self.ne
        def left_plain(self): return len(self.pairs) - self.nc + len(self.pairs) // 2 - self.no + len(self.tail) + len(self.extra)
        def done(self): return self.left_exp() == 0 and self.left_plain() == 0
        def drain(self):
            while not self.done():
                self.tick()
                if self.exp_ready():
                    k.e(self.exp())
                    if self.exp_ready(): k.e(self.exp())
                    x = self.plain()
                    if x: k.e(x)
                else:
                    k.e(self.plain())
    def phase(groups, gtags, reads, rtags, sm, vm, nexttag):
        total = sum(len(g) for g in groups)
        vmpos = {}
        if vm:
            step = max(2, (total - 2) // len(vm))
            for j, x in enumerate(vm): vmpos[1 + j * step] = x
        n = 0
        k.wait_ds(gtags[0])
        for gi, grp in enumerate(groups):
            rq = list(reads[gi])
            for mi, m in enumerate(grp):
                k.e(m)
                sm.tick()
                scal = []
                if n + 1 in vmpos: scal += vmpos[n + 1][0]
                lastm = mi == len(grp) - 1
                if n in vmpos:
                    for s in scal: k.e(s)
                    k.e(vmpos[n][1], tag='kv')
                    slots = 0
                else:
                    for s in scal: k.e(s)
                    if lastm:
                        nt = gtags[gi + 1] if gi + 1 < len(groups) else nexttag
                        if nt: k.wait_ds(nt)
                    slots = 2
                    gaps_left = len([x for x in range(n, n + len(grp) - mi) if x not in vmpos])
                    want_d = len(rq) > 0 and (sm.plain_avail() > 0 or not sm.exp_ready() or len(rq) >= gaps_left - 1)
                    if want_d:
                        k.e(rq.pop(0), tag=rtags[gi]); slots -= 1
                        if rq and (sm.plain_avail() == 0 or len(rq) >= gaps_left):
                            k.e(rq.pop(0), tag=rtags[gi]); slots -= 1
                    if slots == 2 and sm.exp_ready() and not (sm.plain_avail() >= 3 and not rq):
                        k.e(sm.exp()); slots = 0
                    while slots > 0:
                        x = sm.plain()
                        if not x: break
                        k.e(x); slots -= 1
                if lastm:
                    for s in rq: k.e(s, tag=rtags[gi])
                    nt = gtags[gi + 1] if gi + 1 < len(groups) else nexttag
                    if nt: k.wait_ds(nt)
                n += 1
        sm.drain()

    def mask_block(par, q0, vr):
        k.e("s_nop 7")
        k.e("s_add_u32 s3, s37, 1")
        k.e("s_lshl_b32 s3, s3, 6")
        k.e(f"v_subrev_u32 v{T0}, s3, v{vr}")
        for c in range(-1, 4):
            for r in range(4): k.e(f"v_cmp_gt_i32 s[{56+2*r}:{57+2*r}], {16*c + r}, v{T0}")
            for qq in range(2):
                kb = c + qq
                if 0 <= kb < 4:
                    for r in range(4):
                        x = Sr(par, q0 + qq, kb) + r
                        k.e(f"v_cndmask_b32 v{x}, v{x}, v{NINF}, s[{56+2*r}:{57+2*r}]")
        k.e("s_nop 1")
    def rowmax(par, qb, d, o=k):
        s0 = Sr(par, qb, 0)
        o.e(f"v_max3_f32 v{d}, v{s0}, v{s0+1}, v{s0+2}")
        for r in range(3, 15, 2): o.e(f"v_max3_f32 v{d}, v{d}, v{s0+r}, v{s0+r+1}")
        o.e(f"v_max_f32 v{d}, v{d}, v{s0+15}")
        o.e(f"v_mov_b32 v{T0}, v{d}")
        o.e(f"v_permlane16_swap_b32 v{T0}, v{d}")
        o.e(f"v_max_f32 v{d}, v{d}, v{T0}")
        o.e(f"v_mov_b32 v{T0}, v{d}")
        o.e(f"v_permlane32_swap_b32 v{T0}, v{d}")
        o.e(f"v_max_f32 v{d}, v{d}, v{T0}")
        o.e(f"v_add_f32 v{d}, {opt.get('moff', '0x41f80000')}, v{d}")
    def fallback(par, nq, nqn):
        k.e("s_nop 7")
        for qb in range(nq):
            rowmax(par, qb, 21)
            k.e("v_max_f32 v21, 0, v21")
            for r in range(16): k.e(f"v_sub_f32 v{Sr(par,qb,0)+r}, v{Sr(par,qb,0)+r}, v21")
            if qb < nqn:
                for r in range(16): k.e(f"v_sub_f32 v{Sr(par^1,qb,0)+r}, v{Sr(par^1,qb,0)+r}, v21")
            for r in range(4): k.e(f"v_sub_f32 v{NEGM+4*qb+r}, v{NEGM+4*qb+r}, v21")
            k.e("v_exp_f32 v22, -v21")
            for r in range(4): k.e(f"v_mul_f32 v{LS+4*qb+r}, v{LS+4*qb+r}, v22")
            for r0 in range(0, 32, 8):
                for r in range(8): k.e(f"v_accvgpr_read_b32 v{ET+r}, a{O(qb,0)+r0+r}")
                for r in range(8): k.e(f"v_mul_f32 v{ET+r}, v{ET+r}, v22")
                for r in range(8): k.e(f"v_accvgpr_write_b32 a{O(qb,0)+r0+r}, v{ET+r}")
        for ks in range(2):
            for (s0, s1, pd) in sm_pairs(par, nq, ks):
                k.e(f"v_exp_f32 v{ET}, v{s0}")
                k.e(f"v_exp_f32 v{ET+1}, v{s1}")
                k.e(f"v_cvt_pk_bf16_f32 v{pd}, v{ET}, v{ET+1}")
        k.e("s_nop 1")
    SPLIT = {4: (32, 16, 8), 2: (17, 8, 4), 0: (0, 0, 0)}
    def tile_sm(par, nq, start, check):
        sm = SM(sm_pairs(par, nq, 0) + sm_pairs(par, nq, 1), True, check)
        sm.ne, sm.nc, sm.no = start; sm.e_done = sm.ne
        return sm
    def pack(ngaps, vmg, dsl, sm, limit, last_sm, pre):
        plan = {}
        dsl = list(dsl)
        def exp_ok(): return sm.exp_ready() and (limit is None or sm.ne < limit[0])
        def plain_n():
            n = min(sm.e_done // 2, len(sm.pairs), limit[1] if limit else 1 << 30) - sm.nc
            n += min(sm.nc // 2, limit[2] if limit else 1 << 30) - sm.no
            if limit is None and sm.no == len(sm.pairs) // 2: n += len(sm.tail)
            return n + len(sm.extra)
        def take_plain():
            if limit is not None:
                c_ok = sm.nc < min(sm.e_done // 2, limit[1]); o_ok = sm.no < min(sm.nc // 2, limit[2])
                if not c_ok and not o_ok: return sm.extra.pop(0) if sm.extra else None
                if not c_ok:
                    keep = sm.e_done; sm.e_done = 2 * sm.nc; x = sm.plain(); sm.e_done = keep; return x
            return sm.plain()
        for g in range(-1 if pre else 0, ngaps):
            if g in vmg: sm.tick(); continue
            sm.tick()
            ops = []
            smok = g <= last_sm
            av = [d for d in dsl if d[2] <= g]
            free_to = lambda dl: len([x for x in range(g, dl + 1) if x not in vmg])
            urgent = any(sum(1 for d in dsl if d[3] <= e[3]) >= 2 * free_to(e[3]) - 1 for e in av)
            pn = plain_n() if smok else 0
            if smok and exp_ok() and not urgent and not (av and pn) and not (pn >= 3):
                ops.append((sm.exp(), None))
            else:
                slots = 2
                if av and g >= 0:
                    d = av.pop(0); dsl.remove(d); ops.append((d[0], d[1])); slots -= 1
                    if av and (pn == 0 or sum(1 for x in dsl if x[3] <= av[0][3]) >= 2 * free_to(av[0][3]) - 1):
                        d = av.pop(0); dsl.remove(d); ops.append((d[0], d[1])); slots -= 1
                while slots and smok:
                    x = take_plain()
                    if not x: break
                    ops.append((x, None)); slots -= 1
                if not ops and smok and exp_ok(): ops.append((sm.exp(), None))
            plan[g] = ops
            if g == last_sm:
                while (limit is None and not sm.done()) or (limit is not None and ((sm.ne, sm.nc, sm.no) != limit or sm.extra)):
                    sm.tick()
                    x = sm.exp() if exp_ok() else take_plain()
                    plan[g].append((x, None)); k.overflow += 1
        assert not dsl, dsl
        return plan
    k.overflow = 0
    SLK = int(opt.get('slk', -1))
    def emit_phase(mf, plan, vmg, scal, bg=None):
        for s_, tg in plan.get(-1, []): k.e(s_, tag=tg)
        for g, m in enumerate(mf):
            k.e(m)
            for x in scal.get(g, []):
                if isinstance(x, tuple): k.wait_ds(x[1])
                elif x.endswith(':'): k.label(x[:-1])
                else: k.e(x)
            if g in vmg: k.e(vmg[g], tag='kv')
            else:
                for s_, tg in plan.get(g, []): k.e(s_, tag=tg)
                if bg and not plan.get(g) and g not in scal: bg.fill(k, 99, 3)
        if bg: bg.drain(k)
    def starts(groups):
        out = [0]
        for g in groups: out.append(out[-1] + len(g))
        return out
    def iteration(par, nq, nqn, maskq0, name, tail):
        kreg, koff = (VX, 32768) if par == 0 else (VY, 0)
        vreg, voff = (VX, 16384) if par == 0 else (VX, 49152)
        nreg, noff = (VY, 0) if par == 0 else (VY, 32768)
        k.hot = True
        ov0 = k.overflow
        k.dq = ['k1'] * 4
        fb, fr = f"L_k2_fb_{name}", f"L_k2_fbr_{name}"
        ool.append((fb, lambda: fallback(par, nq, nqn), fr))
        sm = tile_sm(par, nq, SPLIT[nq], True)
        if par == 0:
            k.e(f"v_xor_b32 v{VX}, 65536, v{VX}")
            k.e(f"v_xor_b32 v{VY}, 65536, v{VY}")
        if nqn:
            if nqn == 4 and WARM: sm.extra = ["v_lshl_add_u64 v[28:29], s[40:41], 0, v[28:29]"]
            grp = qk_mfmas(par ^ 1, nqn); st_ = starts(grp); n1 = st_[-1]
            slack = SLK if nqn == 2 else 6
            dsl = [(x, 'k2', 0, st_[1] + slack) for x in kread(kreg, koff, 2)] + [(x, 'k3', 0, st_[2] + slack) for x in kread(kreg, koff, 3)] + \
                  [(x, 'v0', st_[1], st_[3] + slack) for x in vread(vreg, voff, 0)] + [(x, 'v1', st_[2], n1 - 1) for x in vread(vreg, voff, 1)]
            scal = {st_[1] - 1: [('w', 'k1')], st_[2] - 1: [('w', 'k2')], st_[3] - 1: [('w', 'k3')],
                    n1 - 5: [f"s_cmp_ge_u32 s37, s{45 if maskq0 == 0 else 46}"], n1 - 4: ["s_waitcnt vmcnt(12)"], n1 - 3: ["s_barrier"],
                    n1 - 2: [('w', 'v0')], n1 - 1: [f"s_cbranch_vccnz {fb}", fr + ":"]}
            if nq == 2:
                scal[n1 - 7] = ["s_cmp_lt_u32 s37, s52"]
                scal[n1 - 6] = [f"s_cbranch_scc1 L_nw_{name}", "s_waitcnt vmcnt(12)", f"L_nw_{name}:"]
                del scal[n1 - 4]
            vmg = {}
            step = (n1 - 8) / 4
            for j in range(4):
                q = int(1 + j * step)
                while q in scal or (j == 0 and q - 1 in scal): q += 1
                vmg[q] = f"buffer_load_dwordx4 v{VDMA}, s[12:15], s38 offen offset:{j*1024}{kv_ld} lds"
                if j == 0: scal[q - 1] = ["s_mov_b32 m0, s53" if par == 0 else "s_add_u32 m0, s53, 32768"]
            plan = pack(n1, vmg, dsl, sm, None, n1 - 2, par == 1)
            emit_phase(sum(grp, []), plan, vmg, scal)
        else:
            for s in p4_ptr_loads(): k.e(s)
            k.e("s_waitcnt lgkmcnt(0)")
            for s in vread(vreg, voff, 0): k.e(s, tag='v0')
            for s in vread(vreg, voff, 1): k.e(s, tag='v1')
            k.hot = False
            for pre, ld in ffn_issue():
                for x in pre: k.e(x)
                k.e(ld)
                for _ in range(2):
                    sm.tick()
                    if sm.exp_ready(): k.e(sm.exp())
                    elif not sm.done(): k.e(sm.plain())
            sm.drain()
            k.wait_ds('v0')
            k.hot = True
            k.e(f"s_cbranch_vccnz {fb}")
            k.label(fr)
        grp = pv_mfmas(par, nq); st_ = starts(grp); n2 = st_[-1]
        slack = SLK if nq == 2 else 6
        dsl = [(x, 'v2', 0, st_[1] + slack) for x in vread(vreg, voff, 2)] + [(x, 'v3', 0, st_[2] + slack) for x in vread(vreg, voff, 3)]
        scal = {st_[1] - 1: [('w', 'v1')], st_[2] - 1: [('w', 'v2')], st_[3] - 1: [('w', 'v3')]}
        vmg = {}
        if nqn:
            dsl += [(x, 'k0', st_[1], st_[3] + slack - 1) for x in kread(nreg, noff, 0)] + [(x, 'k1', st_[2], n2 - 2) for x in kread(nreg, noff, 1)]
            mb, mr = f"L_k2_mk_{name}", f"L_k2_mkr_{name}"
            ool.append((mb, lambda: mask_block(par ^ 1, maskq0, VRA if maskq0 == 0 else VRB), mr))
            scal[0] = [f"s_cbranch_scc1 {mb}", mr + ":"]
            scal[n2 - 2] = [('w', 'k0')]
            if len(tail) == 2: scal[n2 - 3] = [tail[0]]
            if tail: scal[n2 - 1] = [tail[-1]]
            mv = "s_add_u32 m0, s54, 49152" if par == 0 else "s_add_u32 m0, s53, 16384"
            vm = [f"buffer_load_dwordx4 v{VDMA}, s[12:15], s39 offen offset:{j*1024}{kv_ld} lds" for j in range(4)]
            if nqn == 4 and WARM: vm.append("global_load_dword v30, v[28:29], off")
            step = (n2 - 4) / len(vm)
            pos = []
            for j in range(len(vm)):
                q = int(2 + j * step)
                while q in scal or q in vmg or (j == 0 and q - 1 in scal): q += 1
                vmg[q] = vm[j]; pos.append(q)
                if j == 0: scal[q - 1] = [mv]
            def put(x, lo):
                q = lo
                while q in scal or q in vmg: q += 1
                assert q < n2 - 3, (x, q)
                scal[q] = [x]
            if name == "ne":
                q = 3
                while any(x in scal or x in vmg for x in (q, q + 1)): q += 1
                scal[q] = ["s_cmp_eq_u32 s37, s52"]; scal[q + 1] = ["s_cbranch_scc1 L_pubB", "L_pubBr:"]
                def pubB():
                    k.e("v_mov_b32 v24, 1"); k.e("v_mov_b32 v25, 0")
                    k.e("s_mov_b64 exec, 1")
                    k.e("buffer_store_dword v24, v25, s[20:23], s64 offen sc1")
                    k.e("s_mov_b64 exec, -1")
                ool.append(("L_pubB", pubB, "L_pubBr"))
                put("s_add_u32 s37, s37, 1", q + 2)
            else:
                put("s_add_u32 s37, s37, 1", 1)
            put(f"s_add_u32 s38, s38, {KV_TILE}", 1)
            if par == 1:
                put("s_xor_b32 s53, s53, 65536", pos[0]); put("s_xor_b32 s54, s54, 65536", pos[0])
            put(f"s_add_u32 s39, s39, {KV_TILE}", pos[3] + 1)
        sm = tile_sm(par ^ 1, nqn, (0, 0, 0), False)
        plan = pack(n2 - 1 if tail else n2, vmg, dsl, sm, SPLIT[nqn], n2 - 2 if tail else n2 - 1, False)
        if not nqn: k.hot = False
        emit_phase(sum(grp, []), plan, vmg, scal, None if nqn else p4_setup(opt))
        print(f"iteration {name}: overflow ops {k.overflow - ov0}")
        k.hot = False
    def epilogue(q0, srow):
        k.e(f"s_lshl_b32 s3, s{srow}, 20")
        k.e("s_lshl_b32 s47, s33, 15")
        k.e("s_add_u32 s3, s3, s47")
        k.e("s_lshl_b32 s47, s32, 11")
        k.e("s_add_u32 s3, s3, s47")
        k.e("v_lshlrev_b32 v23, 4, v0")
        for qq in range(2):
            k.e(f"v_rcp_f32 v{21+qq}, v{LS+4*(q0+qq)}")
        for s_ in range(4):
            for qq in range(2):
                o = O(q0 + qq, 2 * s_)
                d = 24 + 4 * qq
                for r in range(8): k.e(f"v_accvgpr_read_b32 v{240+r}, a{o+r}")
                for r in range(8): k.e(f"v_mul_f32 v{240+r}, v{240+r}, v{21+qq}")
                for r in range(4): k.e(f"v_cvt_pk_bf16_f32 v{d+r}, v{240+2*r}, v{240+2*r+1}")
                k.e(f"buffer_store_dwordx4 {V(d,4)}, v23, s[16:19], s3 offen offset:{qq*1024}{opt.get('ctx_st',' sc1')}")
            if s_ < 3: k.e("s_add_u32 s3, s3, 8192")

    for kb in range(2, 4):
        for s in kread(VY, 0, kb): k.e(s, tag=f'k{kb}')
    def first_max(o, qb):
        rowmax(0, qb, 22, o)
        if PKM:
            o.e("v_sub_f32 v22, 0, v22"); o.e("v_mov_b32 v23, v22")
            for r in range(0, 16, 2): o.e(f"v_pk_add_f32 {V(Sr(0,qb,0)+r,2)}, {V(Sr(0,qb,0)+r,2)}, v[22:23]")
            for r in range(4): o.e(f"v_mov_b32 v{NEGM+4*qb+r}, v22")
        else:
            for r in range(16): o.e(f"v_sub_f32 v{Sr(0,qb,0)+r}, v{Sr(0,qb,0)+r}, v22")
            for r in range(4): o.e(f"v_sub_f32 v{NEGM+4*qb+r}, 0, v22")
    c = b2
    c.items += conv_items(2) + conv_items(3)
    for r in list(range(XR(30, 0), XR(30, 0) + 16)) + list(range(XR(31, 0), XR(31, 0) + 16)): c.e(f"v_accvgpr_write_b32 a{r}, 0")
    for r in range(4): c.e(f"v_mov_b32 v{ONES+r}, 0x3f803f80")
    c.e(f"v_mov_b32 v{NINF}, 0xff800000")
    first_max(c, 0); first_max(c, 1)
    for qb in range(4):
        while any(it[0] == 'mark' and it[1] == f'conv{qb}' for it in c.items): c.fill(k, 99, 2)
        for kb in range(4):
            k.wait_ds(f'k{kb}')
            if qb == 3 and kb == 2:
                k.e(f"s_waitcnt vmcnt({min(k.vm_n('c18'), k.vm_n('c17'))})")
                k.e("s_barrier")
            for s_ in range(4):
                d = V(Sr(0, qb, kb), 4)
                k.e(mfma(d, A(FR(kb, s_), 4), A(Q(qb, s_), 4), d if s_ else "0"))
                if qb == 3 and kb >= 2: k.e(kread(VY, 32768, kb - 2)[s_], tag=f'n{kb-2}')
                c.fill(k, 99, int(opt.get('pslots', 4)))
    c.drain(k)
    k.e(f"s_mov_b32 s38, {4*KV_TILE}")
    k.e(f"s_mov_b32 s39, {3*KV_TILE + KV_CH}")
    k.e("s_mov_b32 s37, -1")
    k.e("s_cmp_lg_u32 s34, 0")
    k.e("s_cbranch_scc1 L_k2_nomask0")
    mask_block(0, 2, VRB)
    k.label("L_k2_nomask0")
    k.e("s_mov_b32 s37, 0")
    first_max(k, 2); first_max(k, 3)
    SM(sm_pairs(0, 4, 0), True, False).drain()
    k.e("s_waitcnt lgkmcnt(4)")
    k.stamp(ST)

    k.label("L_k2_wloop")
    iteration(0, 4, 4, 2, "we", ["s_cmp_eq_u32 s37, s35", "s_cbranch_scc1 L_k2_trans"])
    iteration(1, 4, 4, 2, "wo", ["s_branch L_k2_wloop"])
    k.label("L_k2_trans")
    iteration(1, 4, 2, 0, "tr", [])
    if '4' in CPF: emit(code_prefetch("L_k2_fin", "L_k2_end", 32, 56, 160, 164))
    k.e("s_waitcnt vmcnt(9)")
    epilogue(2, 34)
    k.e("s_add_u32 s52, s37, 2")
    k.e("s_waitcnt vmcnt(8)")
    k.label("L_k2_nloop")
    nl0 = len(k.lines)
    iteration(0, 2, 2, 0, "ne", ["s_cmp_eq_u32 s37, s36", "s_cbranch_scc1 L_k2_fin"])
    iteration(1, 2, 2, 0, "no", ["s_branch L_k2_nloop"])
    if 'dbg_drop' in opt:
        drop = tuple(opt['dbg_drop'].split(','))
        k.lines[nl0:] = [x for x in k.lines[nl0:] if not x.strip().startswith(drop) and 'vccnz' not in x]
    k.label("L_k2_fin")
    iteration(1, 2, 0, 0, "fi", [])
    k.stamp(ST)
    k.e("s_nop 7")
    epilogue(0, 55)
    ffn_finish()
    k.e("v_mov_b32 v24, 1")
    k.e("v_mul_u32_u24 v25, s65, v0")
    k.e("s_waitcnt vmcnt(0)")
    k.e("s_barrier")
    k.e("s_mov_b64 exec, 3")
    k.e("buffer_store_dword v24, v25, s[20:23], s64 offen sc1")
    k.e("s_mov_b64 exec, -1")
    ffn_store()
    k.stamp(ST)
    phase4(k, opt, ool, ST)
    k.stamp_dump('stamp' in opt, 66, 0, 32)
    if 'hold' in opt:
        k.e("s_lshl_b32 s3, s32, 8")
        k.e("s_or_b32 s3, s2, s3")
        k.e(f"s_cmp_lg_u32 s3, {opt.get('holdwg', 0)}")
        if opt.get('holdwg') != '999': k.e("s_cbranch_scc1 L_k2_end")
        k.label("L_hold")
        k.e("s_memrealtime s[4:5]")
        k.e("s_waitcnt lgkmcnt(0)")
        k.e(f"s_sub_u32 s3, s4, s{73 + 2 * int(opt.get('holdk', 0))}")
        k.e(f"s_cmp_lt_u32 s3, {int(opt['hold']) * 100}")
        k.e("s_cbranch_scc1 L_hold")
    k.label("L_k2_end")
    k.e("s_endpgm")
    for lab, fn, ret in ool:
        k.label(lab)
        k.win = []; k.dq = []
        fn()
        k.e(f"s_branch {ret}")
    return k.wrap(256, 256), f"; @launch {'kernel=' + KNAME + ' ' if 'aslist' in opt else ''}grid=(256,1,1) block=(256,1,1) lds={K12_LDS}"
```

```python
from check import parse, need

def R(p, a, n=1):
    return f"{p}[{a}:{a+n-1}]" if n > 1 else f"{p}{a}"
def V(a, n=1): return R('v', a, n)
def A(a, n=1): return R('a', a, n)
def S(a, n=1): return R('s', a, n)

class Asm:
    def __init__(self, name):
        self.name = name
        self.lines = []
        self.win = []
        self.nl = 0
        self.hot = False
        self.hot_nops = 0
        self.vq = []
        self.dq = []
    def raw(self, s): self.lines.append(s)
    def c(self, s): self.lines.append("  ; " + s)
    def e(self, s, tag=None):
        i = parse(s, 0)
        if i.cls == 'ds' and len(self.dq) >= 15: self.e('s_waitcnt lgkmcnt(9)')
        pad = 0
        for p, d in self.win:
            n = need(p, i)
            if n - d > pad: pad = n - d
        if pad:
            if self.hot:
                self.hot_nops += 1
                print(f"[{self.name}] hot nop({pad}) before: {s}")
            self._adv(parse(f"s_nop {pad-1}", 0), f"s_nop {pad-1}")
        self._adv(i, s)
        if i.cls == 'vmem': self.vq.append(tag)
        elif i.cls == 'ds': self.dq.append(tag)
        elif i.cls == 'wait':
            if i.vm is not None and len(self.vq) > i.vm: self.vq = self.vq[len(self.vq) - i.vm:] if i.vm else []
            if i.lgkm is not None and len(self.dq) > i.lgkm: self.dq = self.dq[len(self.dq) - i.lgkm:] if i.lgkm else []
    def _adv(self, i, s):
        self.lines.append("  " + s)
        self.win = [(p, d + i.states) for p, d in self.win if d + i.states < 13]
        if i.cls in ('mfma', 'valu', 'trans', 'salu') or (i.cls == 'vmem' and i.wide):
            self.win.append((i, 0))
    def vm_n(self, tag):
        idx = [n for n, t in enumerate(self.vq) if t == tag]
        return None if not idx else len(self.vq) - 1 - idx[-1]
    def ds_n(self, tag):
        idx = [n for n, t in enumerate(self.dq) if t == tag]
        return None if not idx else len(self.dq) - 1 - idx[-1]
    def wait_vm(self, tag):
        n = self.vm_n(tag)
        if n is not None: self.e(f"s_waitcnt vmcnt({min(n, 63)})")
    def wait_ds(self, tag):
        n = self.ds_n(tag)
        if n is not None: self.e(f"s_waitcnt lgkmcnt({min(n, 15)})")
    def label(self, l):
        self.lines.append(l + ":")
    def newlabel(self, base):
        self.nl += 1
        return f"L_{getattr(self, 'short', self.name)}_{base}{self.nl}"
    def srd(self, d, base, nbytes, add=None):
        if add is not None and add != 0:
            self.e(f"s_add_u32 s{d}, s{base}, {add}")
            self.e(f"s_addc_u32 s{d+1}, s{base+1}, 0")
            self.e(f"s_and_b32 s{d+1}, s{d+1}, 0xffff")
        else:
            self.e(f"s_mov_b32 s{d}, s{base}")
            self.e(f"s_and_b32 s{d+1}, s{base+1}, 0xffff")
        self.e(f"s_mov_b32 s{d+2}, {nbytes}")
        self.e(f"s_mov_b32 s{d+3}, 0x20000")
    def stamp(self, on):
        if not on: return
        n = getattr(self, 'nstamp', 0); self.nstamp = n + 1
        assert n < 10
        self.e("s_memtime s[96:97]")
        self.e("s_memrealtime s[98:99]")
        self.e("s_waitcnt lgkmcnt(0)")
        self.e(f"s_mov_b32 s{72+2*n}, s96")
        self.e(f"s_mov_b32 s{73+2*n}, s98")
    def stamp_dump(self, on, wsptr, kidx, wave_sgpr, n=None):
        if not on: return
        n = n or self.nstamp
        L = self.newlabel("nodump")
        self.e(f"s_cmp_lg_u32 s{wave_sgpr}, 0")
        self.e(f"s_cbranch_scc1 {L}")
        self.srd(96, wsptr, 65536, (64 << 20) + kidx * 65536)
        self.e("s_lshl_b32 s3, s2, 7")
        self.e("v_mov_b32 v0, s3")
        self.e("s_mov_b64 exec, 1")
        for j in range(n):
            self.e(f"v_mov_b32 v2, s{72+2*j}")
            self.e(f"v_mov_b32 v3, s{73+2*j}")
            self.e(f"buffer_store_dwordx2 v[2:3], v0, s[96:99], 0 offen offset:{8*j}")
        self.label(L)
    def wrap(self, arch_vgprs, agprs, sgprs=102):
        acc = (arch_vgprs + 3) // 4 * 4
        nfv = acc + agprs if agprs else arch_vgprs
        n = self.name
        code = [f".globl {n}", ".p2align 8", f".type {n},@function", f"{n}:"] + self.lines
        kd = [".p2align 6", f".amdhsa_kernel {n}", f"  .amdhsa_next_free_vgpr {nfv}", f"  .amdhsa_next_free_sgpr {sgprs}",
              f"  .amdhsa_accum_offset {acc}", "  .amdhsa_group_segment_fixed_size 0", "  .amdhsa_kernarg_size 112",
              "  .amdhsa_user_sgpr_count 2", "  .amdhsa_user_sgpr_kernarg_segment_ptr 1",
              "  .amdhsa_system_sgpr_workgroup_id_x 1", ".end_amdhsa_kernel"]
        return "\n".join(code), "\n".join(kd)

def mfma(d, a, b, c):
    return f"v_mfma_f32_16x16x32_bf16 {d}, {a}, {b}, {c}"

def build(parts, launches):
    out = ["; generated by gen/gen2.py"] + launches
    out += ['.amdgcn_target "amdgcn-amd-amdhsa--gfx950"', ".text"]
    out += [p[0] for p in parts]
    out.append('.section .rodata,"a"')
    out += [p[1] for p in parts]
    return "\n".join(out) + "\n"


class Rec:
    def __init__(self): self.items = []
    def e(self, s, tag=None): self.items.append(('i', s, tag))
    def blk(self, lst): self.items.append(('b', lst, None))
    def wait_vm(self, tag): self.items.append(('wv', tag, None))
    def wait_ds(self, tag): self.items.append(('wd', tag, None))
    def check_clear(self, tag): self.items.append(('cc', tag, None))
    def at(self, n): self.items.append(('at', n, None))
    def cost(self, it):
        if it[0] != 'i': return 0
        c = parse(it[1], 0).cls
        return {'trans': 2, 'valu': 1, 'ds': 1, 'vmem': 2}.get(c, 0)
    def fill(self, k, step, slots=2):
        nscal = 0; usedv = False
        while self.items:
            it = self.items[0]
            if it[0] == 'at':
                if step < it[1]: return
                self.items.pop(0); continue
            if it[0] == 'mark': self.items.pop(0); return
            if it[0] == 'cc':
                assert k.vm_n(it[1]) is None, it[1]
                self.items.pop(0); continue
            if it[0] == 'wv': self.items.pop(0); k.wait_vm(it[1]); continue
            if it[0] == 'wd': self.items.pop(0); k.wait_ds(it[1]); continue
            if it[0] == 'b':
                if usedv: return
                self.items.pop(0)
                for x in it[1]:
                    if isinstance(x, tuple): k.e(x[0], tag=x[1])
                    elif x.endswith(':'): k.label(x[:-1])
                    else: k.e(x)
                return
            c = self.cost(it)
            cls = parse(it[1], 0).cls
            if c == 0:
                if usedv or nscal >= 3: return
                nscal += 1
                if nscal > 1: slots -= 1
            else:
                if c > slots: return
                if cls == 'vmem' and (usedv or nscal): return
                if cls == 'ds' and usedv == 'v': return
                slots -= c
                usedv = 'v' if cls in ('valu', 'trans') else (usedv or 'd')
            self.items.pop(0)
            k.e(it[1], tag=it[2])
            if slots <= 0: return
    def drain(self, k):
        while self.items: self.fill(k, 1 << 30, 2)


_cp = [0]
def code_prefetch(start, end, wave_sgpr, sp, va, vd, whole=False):
    _cp[0] += 1
    L = f"L_cpf{_cp[0]}"
    if whole:
        return [f"s_getpc_b64 s[{sp}:{sp+1}]", f"{L}:",
                f"s_add_u32 s{sp}, s{sp}, ({start}-{L})&0xffffffff",
                f"s_addc_u32 s{sp+1}, s{sp+1}, (({start}-{L})>>32)&0xffffffff",
                f"s_lshl_b32 s{sp+2}, s{wave_sgpr}, 13",
                f"v_lshlrev_b32 v{va+2}, 7, v0", f"v_add_u32 v{va+2}, s{sp+2}, v{va+2}",
                f"v_min_u32 v{va+2}, {end}-{start}-4, v{va+2}",
                f"v_mov_b32 v{va+1}, s{sp+1}",
                f"v_add_co_u32 v{va}, vcc, s{sp}, v{va+2}",
                f"v_addc_co_u32 v{va+1}, vcc, 0, v{va+1}, vcc",
                f"global_load_dword v{vd}, v[{va}:{va+1}], off"]
    return [f"s_getpc_b64 s[{sp}:{sp+1}]", f"{L}:",
            f"s_add_u32 s{sp}, s{sp}, ({start}-{L})&0xffffffff",
            f"s_addc_u32 s{sp+1}, s{sp+1}, (({start}-{L})>>32)&0xffffffff",
            f"s_lshr_b32 s{sp+2}, s2, 3", f"s_lshl_b32 s{sp+2}, s{sp+2}, 2", f"s_add_u32 s{sp+2}, s{sp+2}, s{wave_sgpr}",
            f"s_lshl_b32 s{sp+2}, s{sp+2}, 10",
            f"v_and_b32 v{va+2}, 7, v0", f"v_lshlrev_b32 v{va+2}, 7, v{va+2}", f"v_add_u32 v{va+2}, s{sp+2}, v{va+2}",
            f"v_min_u32 v{va+2}, {end}-{start}-4, v{va+2}",
            f"v_mov_b32 v{va+1}, s{sp+1}",
            f"v_add_co_u32 v{va}, vcc, s{sp}, v{va+2}",
            f"v_addc_co_u32 v{va+1}, vcc, 0, v{va+1}, vcc",
            f"global_load_dword v{vd}, v[{va}:{va+1}], off"]
```

```python
from fw import *
from layout import *
from p4 import p4_ptr_loads, p4_setup, phase4
KNAME = 'recurrent_scan__compressed_kv_cla__moe_arch_mod__prompt_kernel'

K12_LDS = 148480
QSCALE = 0x3e0293ee
BIG = 0x7ff00000

def gen_k12(opt):
    k = Asm(KNAME)
    k.short = "f"
    ST = opt.get('stamp') == '1'
    S1 = opt.get('stamp') == 'p1'
    S2 = opt.get('stamp') == 'p2'
    SA = opt.get('stamp') == 'a'
    w_ld, a_ld, x_ld = opt.get('w_ld', ' nt'), opt.get('a_ld', ''), opt.get('x_ld', ' nt')
    wq_ld, kv_ld, ffn_ld = opt.get('wq_ld', ''), opt.get('kv_ld', ' sc1'), opt.get('ffn_ld', '')
    MAP = int(opt.get('map', 4))
    WOT = opt.get('wot', '0') == '1'
    VOA, VOW, AD, PFO = 2, 6, 10, 47
    FA = lambda ks, i: 64 * ks + 4 * i
    FW = lambda ks, j: 64 * ks + 32 + 4 * j
    def frag_of(isV, it, jd):
        return ((it >> 2) * 16 + jd * 2 + ((it >> 1) & 1), it & 1) if isV else (it * 4 + (jd >> 1), jd & 1)
    SRC = lambda n: ('v', 48 + 8 * n) if n < 26 else ('a', 128 + 8 * (n - 26))
    def acc(isV, it, jd):
        n, h = frag_of(isV, it, jd)
        p, r = SRC(n)
        return R(p, r + 4 * h, 4)
    PK = lambda n: 24 + 4 * (n if n < 26 else n - 26)
    VX, VY, VDMA, VRA, VRB, ORR, T0 = 2, 3, 4, 5, 6, 7, 1
    WV, XV, TA = 8, 10, 16
    ET = 8
    ONES, NINF = 16, 20
    NEGM, LS, PB, SB = 32, 48, 64, 128
    P = lambda par, qb, ks: PB + 32 * par + (qb * 2 + ks) * 4
    Sr = lambda par, qb, kb: SB + 64 * par + (qb * 4 + kb) * 4
    O = lambda qb, db: (qb * 8 + db) * 4
    Q = lambda qb, s: 128 + (qb * 4 + s) * 4
    FR = lambda grp, j: 192 + 16 * grp + 4 * j
    QA = lambda db, qb: 128 + (qb * 8 + db) * 4
    XR = lambda kk, qb: ((kk % 8) * 4 + qb) * 4
    WF = lambda kk, db: 192 + (kk & 1) * 32 + db * 4

    k.e("s_cmp_ge_u32 s2, 256")
    k.e("s_cbranch_scc1 L_k2_end")
    k.stamp(ST)
    k.e("s_load_dwordx4 s[4:7], s[0:1], 0")
    k.e("s_load_dwordx2 s[44:45], s[0:1], 56")
    k.e("s_load_dwordx4 s[40:43], s[0:1], 24")
    k.e("s_load_dwordx4 s[64:67], s[0:1], 96")
    k.e("v_lshrrev_b32 v1, 6, v0")
    k.e("v_and_b32 v0, 63, v0")
    k.e("v_readfirstlane_b32 s32, v1")
    k.e("v_lshrrev_b32 v33, 5, v0")
    k.e("v_and_b32 v31, 31, v0")
    k.e("v_lshlrev_b32 v36, 4, v31")
    k.e("v_lshl_add_u32 v35, v33, 11, v36")
    k.e("s_lshl_b32 s36, s2, 14")
    k.e("s_lshl_b32 s37, s32, 12")
    k.e("s_add_u32 s36, s36, s37")
    k.e("s_lshr_b32 s3, s2, 3")
    k.e("s_and_b32 s33, s3, 7")
    k.e("s_lshr_b32 s3, s3, 3")
    k.e("s_lshr_b32 s35, s3, 1")
    k.e("s_and_b32 s3, s3, 1")
    k.e("s_and_b32 s34, s2, 7")
    k.e("s_lshl_b32 s34, s34, 1")
    k.e("s_add_u32 s34, s34, s3")
    for j in range(4):
        k.e(f"s_mov_b32 s{48+j}, {j*7168}")
        k.e(f"s_mov_b32 s{52+j}, {j*15360}")
    k.e("s_lshl_b32 s56, s32, 13")
    k.e("s_add_u32 s57, s56, 32768")
    k.e("s_lshl_b32 s3, s32, 4")
    k.e("v_add_u32 v30, s3, v33")
    k.e("v_lshlrev_b32 v30, 13, v30")
    k.e("v_lshlrev_b32 v34, 1, v33")
    k.e("v_xor_b32 v31, v31, v34")
    for hi in range(2):
        for par in range(2):
            k.e(f"v_xor_b32 v34, {(2*par + 4*hi) << 1}, v31")
            k.e(f"v_lshl_add_u32 v{VOW + par + 2*hi}, v34, 4, v30")
            if hi: k.e(f"v_add_u32 v{VOW + par + 2*hi}, {8*8192}, v{VOW + par + 2*hi}")
    k.e("v_lshrrev_b32 v30, 3, v0")
    k.e("s_lshl_b32 s3, s32, 6")
    k.e("v_add_u32 v30, s3, v30")
    k.e("v_lshlrev_b32 v30, 10, v30")
    k.e("v_and_b32 v31, 7, v0")
    k.e("v_lshrrev_b32 v32, 4, v0")
    k.e("v_xor_b32 v31, v31, v32")
    k.e(f"v_lshl_add_u32 v{VOA}, v31, 4, v30")
    k.e("v_xor_b32 v31, 4, v31")
    k.e(f"v_lshl_add_u32 v{VOA+1}, v31, 4, v30")
    k.e(f"v_add_u32 v{VOA+2}, 32768, v{VOA}")
    k.e(f"v_add_u32 v{VOA+3}, 32768, v{VOA+1}")
    KX = int(opt.get('kx', 7))
    k.e(f"s_and_b32 s58, s2, {KX}")
    k.e("s_lshl_b32 s3, s58, 19")
    for q in range(4): k.e(f"v_xor_b32 v{VOW+q}, s3, v{VOW+q}")
    k.e("s_lshl_b32 s3, s58, 7")
    for q in range(4): k.e(f"v_xor_b32 v{VOA+q}, s3, v{VOA+q}")
    k.e("s_waitcnt lgkmcnt(0)")
    k.srd(16, 4, 4194304)
    XP, WR, XF = 48, 64, 80
    for i in range(4):
        k.e(f"buffer_load_dwordx4 {V(XP+4*i,4)}, v35, s[16:19], s36 offen offset:{i*512}{x_ld}", tag='x')
    def emit(lst, o=None):
        for x in lst:
            if x.endswith(':'): k.label(x[:-1])
            else: k.e(x, tag='cpf')
    CPF = opt.get('cpf', '12345')
    if '1' in CPF: emit(code_prefetch(KNAME, "L_k2_fin", 32, 68, 120, 124))
    MW = opt.get('mw', '')
    if 'c' in MW:
        k.srd(68, 6, 2097152)
        k.e("v_and_b32 v120, 15, v0")
        k.e("v_lshlrev_b32 v120, 7, v120")
        k.e("s_lshr_b32 s3, s36, 1")
        k.e("buffer_load_dword v125, v120, s[68:71], s3 offen", tag='cpf')
    k.e("s_cmp_eq_u32 s35, 0")
    k.e("s_cselect_b32 s40, s40, s42")
    k.e("s_cselect_b32 s41, s41, s43")
    k.e("s_lshl_b32 s3, s34, 9")
    k.srd(12, 40, 0, "s3")
    k.e("s_sub_u32 s14, 4194304, s3")
    k.e("s_lshl_b32 s3, s33, 18")
    k.srd(8, 6, 262144, "s3")
    def dma_ops(buf):
        ops = []
        for (base, vo, so, srd, fl) in ((57, VOW, 52, 12, w_ld), (56, VOA, 48, 8, a_ld)):
            for hi in range(2):
                ops.append(('s', f"s_add_u32 m0, s{base}, {buf*65536 + hi*4096}"))
                for lo in range(4):
                    ops.append(('g', f"buffer_load_dwordx4 v{vo + (lo&1) + 2*hi}, {S(srd,4)}, s{so+lo} offen offset:{lo*1024}{fl} lds"))
        return ops
    def adv_ops(j):
        x = j ^ (j + 1)
        return [f"v_xor_b32 v{VOW+q}, {x << 19}, v{VOW+q}" for q in range(4)] + [f"v_xor_b32 v{VOA+q}, {x << 7}, v{VOA+q}" for q in range(4)]
    st0 = dma_ops(0)
    for t, s in st0[:10]: k.e(s, tag='st0')
    if 'w' in MW:
        k.srd(68, 40, 4194304)
        k.e("v_lshlrev_b32 v120, 7, v0")
        k.e("s_and_b32 s3, s2, 127")
        k.e("s_lshl_b32 s3, s3, 2")
        k.e("s_add_u32 s3, s3, s32")
        k.e("s_lshl_b32 s3, s3, 13")
        k.e("buffer_load_dword v126, v120, s[68:71], s3 offen", tag='cpf')
    k.srd(28, 44, 2048)
    k.srd(20, 66, 8 << 20)
    k.srd(24, 66, 32 * KV_HEAD, WS_KV)
    k.e("v_and_b32 v30, 15, v0")
    k.e("s_lshr_b32 s3, s32, 1")
    k.e("s_lshl_b32 s3, s3, 14")
    k.e("v_lshlrev_b32 v31, 7, v30")
    k.e("v_add_u32 v31, s3, v31")
    k.e("v_lshrrev_b32 v34, 1, v30")
    k.e("v_xor_b32 v34, v34, v32")
    k.e(f"v_lshl_add_u32 v{AD}, v34, 4, v31")
    k.e("v_xor_b32 v34, 4, v34")
    k.e(f"v_lshl_add_u32 v{AD+1}, v34, 4, v31")
    k.e("v_lshrrev_b32 v30, 2, v30")
    k.e("v_lshl_add_u32 v31, v32, 3, v30")
    k.e("v_lshlrev_b32 v31, 9, v31")
    k.e("v_and_b32 v34, 3, v0")
    k.e("v_lshl_add_u32 v31, v34, 3, v31")
    k.e("s_and_b32 s3, s32, 1")
    k.e("s_lshl_b32 s3, s3, 8")
    k.e("s_add_u32 s3, s3, 32768")
    k.e("v_add_u32 v31, s3, v31")
    k.e("v_and_b32 v34, 1, v32")
    k.e("v_lshl_add_u32 v30, v34, 2, v30")
    for jj in range(8):
        k.e(f"v_xor_b32 v34, {jj}, v30")
        k.e(f"v_lshl_add_u32 v{AD+2+jj}, v34, 5, v31")
    for j in range(10):
        k.e(f"v_add_u32 v{AD+10+j}, 65536, v{AD+j}")
    k.e("s_cmp_lt_u32 s32, 2")
    for j in range(3): k.e(f"s_cselect_b32 s{60+j}, s{8+j}, s{12+j}")
    k.e("s_mov_b32 s63, 0x20000")
    k.e(f"s_mov_b32 s59, {64*8192}")
    k.e("s_cselect_b32 s59, 128, s59")
    k.e("s_lshr_b32 s3, s2, 6")
    k.e("s_lshl_b32 s3, s3, 1")
    k.e("s_add_u32 s3, s3, s32")
    k.e("s_lshl_b32 s3, s3, 15")
    k.e("s_add_u32 s3, s3, 256")
    k.e("v_lshlrev_b32 v37, 10, v0")
    k.e("v_add_u32 v37, s3, v37")
    k.e("v_lshrrev_b32 v38, 2, v0")
    k.e("v_lshlrev_b32 v38, 13, v38")
    k.e("v_and_b32 v39, 3, v0")
    k.e("v_lshl_add_u32 v38, v39, 7, v38")
    k.e("s_lshl_b32 s39, s33, 1")
    k.e("s_add_u32 s39, s39, s32")
    k.e("s_lshl_b32 s39, s39, 15")
    k.e(f"s_add_u32 s39, s39, {120*8192}")
    k.e("v_add_u32 v38, s39, v38")
    k.e("s_cmp_lt_u32 s32, 2")
    k.e("s_cselect_b64 vcc, -1, 0")
    k.e("s_cselect_b32 s3, 32, 16")
    k.e(f"v_cndmask_b32 v{PFO}, v38, v37, vcc")
    k.e("v_cmp_gt_u32 vcc, s3, v0")
    k.e(f"v_mov_b32 v37, {BIG}")
    k.e(f"v_cndmask_b32 v{PFO}, v37, v{PFO}, vcc")
    k.e("s_mul_i32 s3, s58, s59")
    k.e(f"v_xor_b32 v{PFO}, s3, v{PFO}")
    pfc = [2]
    def pf_ops():
        j = pfc[0]; pfc[0] += 1
        return [f"buffer_load_dword v1, v{PFO}, s[60:63], 0 offen{opt.get('pf_ld', '')}",
                f"s_mul_i32 vcc_lo, s59, {(j ^ (j + 1)) & 7}", f"v_xor_b32 v{PFO}, vcc_lo, v{PFO}"]
    for t, s in st0[10:]: k.e(s, tag='st0')
    for i in range(4):
        k.e(f"buffer_load_dwordx4 {V(WR+4*i,4)}, v36, s[28:31], 0 offen offset:{i*512}", tag='wr')
    for s in adv_ops(0): k.e(s)

    PFE = int(opt.get('pfe', 2))
    PFN = int(opt.get('pfn', 3))
    if PFE == 0:
        for _ in range(PFN):
            for s in pf_ops(): k.e(s, tag='pf')
    st1 = dma_ops(1)
    def sum32(v, t):
        for m in ["quad_perm:[1,0,3,2]", "quad_perm:[2,3,0,1]", "row_half_mirror", "row_mirror"]:
            k.e(f"v_add_f32_dpp v{v}, v{v}, v{v} {m} row_mask:0xf bank_mask:0xf")
        k.e(f"v_mov_b32 v{t}, v{v}")
        k.e(f"v_permlane16_swap_b32 v{t}, v{v}")
        k.e(f"v_add_f32 v{v}, v{v}, v{t}")
    k.wait_vm('x')
    for i in range(16):
        k.e(f"v_lshlrev_b32 v{XF+2*i}, 16, v{XP+i}")
        k.e(f"v_and_b32 v{XF+2*i+1}, 0xffff0000, v{XP+i}")
    k.e(f"v_pk_add_f32 v[40:41], {V(XF,2)}, {V(XF+2,2)}")
    k.e(f"v_pk_add_f32 v[42:43], {V(XF+4,2)}, {V(XF+6,2)}")
    for i in range(4, 16):
        d = 40 + 2 * (i & 1)
        k.e(f"v_pk_add_f32 {V(d,2)}, {V(d,2)}, {V(XF+2*i,2)}")
    k.e("v_pk_add_f32 v[40:41], v[40:41], v[42:43]")
    k.e("v_add_f32 v38, v40, v41")
    sum32(38, 37)
    for t, s in st1[:10]: k.e(s, tag='st1')
    if PFE == 1:
        for _ in range(PFN // 2):
            for s in pf_ops(): k.e(s, tag='pf')
    k.e("v_mul_f32 v38, 0xba800000, v38")
    k.e("v_mov_b32 v39, v38")
    T = 112
    for i in range(16):
        k.e(f"v_pk_add_f32 {V(T+2*(i&3),2)}, {V(XF+2*i,2)}, v[38:39]")
        d = 40 + 2 * (i & 1)
        if i < 2: k.e(f"v_pk_mul_f32 {V(d,2)}, {V(T+2*(i&3),2)}, {V(T+2*(i&3),2)}")
        else: k.e(f"v_pk_fma_f32 {V(d,2)}, {V(T+2*(i&3),2)}, {V(T+2*(i&3),2)}, {V(d,2)}")
    k.e("v_pk_add_f32 v[40:41], v[40:41], v[42:43]")
    k.e("v_add_f32 v40, v40, v41")
    sum32(40, 37)
    for t, s in st1[10:]: k.e(s, tag='st1')
    if PFE == 1:
        for _ in range(PFN // 2):
            for s in pf_ops(): k.e(s, tag='pf')
    k.e("v_mul_f32 v40, 0x3a800000, v40")
    k.e("v_cvt_pk_bf16_f32 v44, v38, v40")
    k.e("v_lshlrev_b32 v38, 16, v44")
    k.e("v_and_b32 v40, 0xffff0000, v44")
    k.e("v_add_f32 v40, 0x3727c5ac, v40")
    k.e("v_cvt_pk_bf16_f32 v44, v40, v40")
    k.e("v_lshlrev_b32 v40, 16, v44")
    k.e("v_sqrt_f32 v40, v40")
    k.e("v_mov_b32 v39, v38")
    k.e("v_cvt_pk_bf16_f32 v44, v40, v40")
    k.e("v_lshlrev_b32 v44, 16, v44")
    k.e("v_rcp_f32 v40, v44")
    for i in range(16):
        k.e(f"v_pk_add_f32 {V(XF+2*i,2)}, {V(XF+2*i,2)}, v[38:39]")
    k.e("v_fma_f32 v45, -v44, v40, 1.0")
    k.e("v_fma_f32 v40, v45, v40, v40")
    k.e("v_mov_b32 v41, v40")
    for i in range(16):
        k.e(f"v_cvt_pk_bf16_f32 v{XP+i}, v{XF+2*i}, v{XF+2*i+1}")
    for i in range(16):
        k.e(f"v_lshlrev_b32 v{XF+2*i}, 16, v{XP+i}")
        k.e(f"v_and_b32 v{XF+2*i+1}, 0xffff0000, v{XP+i}")
    for i in range(16):
        k.e(f"v_pk_mul_f32 {V(XF+2*i,2)}, {V(XF+2*i,2)}, v[40:41]")
    for i in range(16):
        k.e(f"v_cvt_pk_bf16_f32 v{XP+i}, v{XF+2*i}, v{XF+2*i+1}")
    k.e("s_mul_i32 s3, s32, 4128")
    k.e("s_add_u32 s3, s3, 131072")
    k.e("v_mul_u32_u24 v42, 2064, v33")
    k.e("v_add3_u32 v42, v42, v36, s3")
    for i in range(4):
        k.e(f"ds_write_b128 v42, {V(XP+4*i,4)} offset:{i*512}")
    for s in adv_ops(1): k.e(s)
    if PFE == 2:
        for _ in range(PFN):
            for s in pf_ops(): k.e(s, tag='pf')
    k.wait_vm('wr')
    for i in range(16):
        k.e(f"v_lshlrev_b32 v{XF+2*i}, 16, v{XP+i}")
        k.e(f"v_and_b32 v{XF+2*i+1}, 0xffff0000, v{XP+i}")
        k.e(f"v_lshlrev_b32 v{T+2*(i&3)}, 16, v{WR+i}")
        k.e(f"v_and_b32 v{T+2*(i&3)+1}, 0xffff0000, v{WR+i}")
        d = 42 + 2 * (i & 1)
        if i < 2: k.e(f"v_pk_mul_f32 {V(d,2)}, {V(XF+2*i,2)}, {V(T+2*(i&3),2)}")
        else: k.e(f"v_pk_fma_f32 {V(d,2)}, {V(XF+2*i,2)}, {V(T+2*(i&3),2)}, {V(d,2)}")
    k.e("v_pk_add_f32 v[42:43], v[42:43], v[44:45]")
    k.e("v_add_f32 v45, v42, v43")
    sum32(45, 37)
    k.e("v_cvt_pk_bf16_f32 v45, v45, v45")
    k.e("v_ashrrev_i32 v46, 31, v45")
    k.e("v_or_b32 v46, 0x80000000, v46")
    k.e("v_xor_b32 v45, v45, v46")
    k.e("v_and_b32 v45, 0xffff0000, v45")
    k.e("s_lshr_b32 s3, s36, 11")
    k.e("v_add_u32 v46, s3, v33")
    k.e("v_sub_u32 v44, 0xffff, v46")
    k.e("v_or_b32 v45, v45, v44")
    k.e("v_lshlrev_b32 v44, 2, v46")
    k.e("v_lshlrev_b32 v46, 3, v46")
    k.e("v_xor_b32 v38, 0x80000000, v38")
    k.e("v_mov_b32 v39, v40")
    k.e(f"s_mov_b32 s3, {WS_KEYS}")
    k.e(f"s_mov_b32 s39, {WS_STATS}")
    k.e("s_mov_b32 exec_lo, 1")
    k.e("s_mov_b32 exec_hi, 1")
    k.e("buffer_store_dword v45, v44, s[20:23], s3 offen sc1", tag='ln')
    k.e("buffer_store_dwordx2 v[38:39], v46, s[20:23], s39 offen sc1", tag='ln')
    k.e("s_mov_b64 exec, -1")
    k.e("s_load_dwordx2 s[4:5], s[0:1], 16")
    k.e("s_load_dwordx4 s[40:43], s[0:1], 64")
    k.e("s_load_dwordx2 s[92:93], s[0:1], 40")
    k.e("s_load_dwordx2 s[94:95], s[0:1], 80")
    k.e("s_load_dwordx2 s[100:101], s[0:1], 0")
    k.srd(28, 64, 256)

    def reads(ks, buf):
        a = AD + 10 * buf
        ra = [f"ds_read_b128 {A(FA(ks,i),4)}, v{a+ks} offset:{i*2048}" for i in range(8)]
        rw = [[f"ds_read_b64_tr_b16 {A(FW(ks,j)+2*rd,2)}, v{a+2+j} offset:{ks*16384+rd*2048}" for rd in range(2)] for j in range(8)]
        out = []
        for j in range(8):
            out.append(rw[j]); out.append([ra[j]])
        return out
    k.wait_vm('st0')
    k.e("s_waitcnt lgkmcnt(0)")
    k.e("s_barrier")
    k.stamp(ST)
    n = 0
    for grp in reads(0, 0):
        for s in grp:
            k.e(s); n += 1
            if n == 12: k.e("s_waitcnt lgkmcnt(2)")
    k.e("s_cmp_lg_u32 s35, 0")
    k.e("s_cbranch_scc1 L_k1_vpath")

    def chunk_ops(c):
        kind, j = c
        slot = {'w': j % 4, 'kv': (j + 4) % 8}[kind]
        ops = [('s', f"s_add_u32 m0, s44, {slot * 16384}")]
        if kind == 'w':
            for q in range(4):
                ops.append(('g', f"buffer_load_dwordx4 v{WV + (q >> 1)}, s[8:11], s{48+q} offen offset:{q*1024}{wq_ld} lds"))
            ops.append(('v', f"v_add_u32 v{WV}, {64*8192}, v{WV}"))
            ops.append(('v', f"v_add_u32 v{WV+1}, {64*8192}, v{WV+1}"))
        elif kind == 'f':
            for q in range(4):
                ops.append(('g', f"buffer_load_dwordx4 v{12 + (q >> 1) + 2 * (j & 1)}, {S(60 + 8 * (j >> 1), 4)}, s{52+q} offen offset:{q*1024}{ffn_ld} lds"))
        else:
            ops.append(('s', f"s_mov_b32 s7, {j * KV_CH}"))
            for q in range(4):
                ops.append(('g', f"buffer_load_dwordx4 v{VDMA}, s[12:15], s7 offen offset:{q*1024}{kv_ld} lds"))
        return ops
    def xn_ops(kk):
        ops = []
        for qb in range(4):
            so = "s58" if qb & 1 else "0"
            ops.append(('g', f"buffer_load_dwordx4 {A(XR(kk,qb),4)}, v{XV + (qb >> 1)}, s[20:23], {so} offen offset:{(kk % 4)*1024}{opt.get('xn_ld', ' sc1')}"))
        if kk % 4 == 3:
            ops.append(('v', f"v_add_u32 v{XV}, 4096, v{XV}"))
            ops.append(('v', f"v_add_u32 v{XV+1}, 4096, v{XV+1}"))
        return ops
    def wreads(kk):
        st, ks = kk // 2, kk & 1
        return [[f"ds_read_b64_tr_b16 {A(WF(kk,db)+2*rd,2)}, v{TA+db} offset:{(st % 4)*16384 + ks*8192 + rd*1024}" for rd in range(2)] for db in range(8)]
    ool = []
    def spin(lab, ret, off, target, vd, vz, sv, sc):
        def fn():
            k.e(f"s_mov_b32 s{sc}, 0x400000")
            k.label(lab + "_l")
            k.e(f"s_sleep {opt.get('slp', 8)}")
            k.e(f"buffer_load_dword v{vd}, v{vz}, s[28:31], {off} offen sc1")
            k.e("s_waitcnt vmcnt(0)")
            k.e(f"v_readfirstlane_b32 s{sv}, v{vd}")
            k.e(f"s_sub_u32 s{sc}, s{sc}, 1")
            k.e(f"s_cmp_eq_u32 s{sc}, 0")
            k.e(f"s_cbranch_scc1 {ret}")
            k.e(f"s_cmp_lt_u32 s{sv}, {target}")
            k.e(f"s_cbranch_scc1 {lab}_l")
        ool.append((lab, fn, ret))
    def srd_rec(b, d, base, nbytes, add=None):
        if add is None:
            b.e(f"s_mov_b32 s{d}, s{base}"); b.e(f"s_and_b32 s{d+1}, s{base+1}, 0xffff")
        else:
            b.blk([f"s_add_u32 s{d}, s{base}, {add}", f"s_addc_u32 s{d+1}, s{base+1}, 0", f"s_and_b32 s{d+1}, s{d+1}, 0xffff"])
        b.e(f"s_mov_b32 s{d+2}, {nbytes}"); b.e(f"s_mov_b32 s{d+3}, 0x20000")

    def phase1_stream(isV):
        b = Rec()
        tg = 'v' if isV else 'k'
        b.e("v_and_b32 v46, 7, v0")
        b.e("v_lshrrev_b32 v1, 3, v0") if False else None
        b.e("v_mul_u32_u24 v30, 2064, v46")
        b.e("v_lshrrev_b32 v31, 3, v0")
        b.e("s_lshl_b32 s3, s32, 9")
        b.e("s_add_u32 s3, s3, 131072")
        b.e("v_lshl_add_u32 v30, v31, 4, v30")
        b.e("v_add_u32 v30, s3, v30")
        b.e("v_lshlrev_b32 v31, 8, v31")
        b.e("v_lshl_add_u32 v46, v46, 4, v31")
        for i in (1, 2, 3, 0):
            b.e(f"ds_read_b128 {V(30+4*i,4)}, v30 offset:{i*128}", tag='xs')
        b.e("s_lshr_b32 s3, s2, 1")
        b.e(f"s_mul_i32 s3, s3, {XN_RB}")
        b.e("s_add_u32 s3, s3, s56")
        b.e("s_and_b32 s39, s2, 1")
        b.e("s_lshl_b32 s39, s39, 7")
        b.e("s_add_u32 s3, s3, s39")
        b.e("s_add_u32 s39, s3, 4096")
        b.at(2)
        for i in range(4):
            b.e(f"buffer_store_dwordx4 {V(30+4*i,4)}, v46, s[20:23], s{3 if i < 2 else 39} offen offset:{(i&1)*2048} sc1", tag='ln')
        b.e("s_lshl_b32 s3, s34, 1")
        b.e("s_and_b32 s36, s32, 1")
        b.e("s_add_u32 s3, s3, s36")
        b.e(f"s_mul_i32 s3, s3, {KV_HEAD}")
        b.e(f"s_mul_i32 s36, s33, {4*KV_TILE}")
        b.e("s_add_u32 s3, s3, s36")
        b.e("s_lshr_b32 s36, s32, 1")
        b.e(f"s_mul_i32 s36, s36, {2*KV_TILE}")
        b.e("s_add_u32 s3, s3, s36")
        b.e(f"s_add_u32 s38, s3, {KV_CH if isV else 0}")
        b.e("s_lshl_b32 s39, s34, 7")
        b.e("s_lshl_b32 s36, s33, 2")
        b.e("s_add_u32 s39, s39, s36")
        b.e(f"s_add_u32 s39, s39, {WS_FLG + (32 if isV else 0)}")
        b.e("v_mov_b32 v30, 1")
        b.e("v_mov_b32 v31, 0")
        b.blk(["s_cmp_eq_u32 s32, 0", f"s_cselect_b32 s39, s39, {BIG}"])
        b.blk(["s_mov_b64 exec, 1", ("buffer_store_dword v31, v31, s[20:23], s39 offen sc1", 'ln'), "s_mov_b64 exec, -1"])
        if MAP == 4:
            b.e("s_and_b32 s33, s2, 7")
            b.e("s_lshl_b32 s33, s33, 2")
            b.e("s_bfe_u32 s3, s2, 0x20003")
            b.e("s_add_u32 s33, s33, s3")
            b.e("s_lshr_b32 s34, s2, 5")
        else:
            b.e("s_and_b32 s33, s2, 6")
            b.e("s_lshl_b32 s33, s33, 2")
            b.e("s_bfe_u32 s3, s2, 0x30003")
            b.e("s_add_u32 s33, s33, s3")
            b.e("s_lshr_b32 s34, s2, 6")
            b.e("s_lshl_b32 s34, s34, 1")
            b.e("s_and_b32 s3, s2, 1")
            b.e("s_add_u32 s34, s34, s3")
        b.e("s_lshl_b32 s64, s34, 7")
        b.e("s_lshl_b32 s3, s33, 2")
        b.e("s_add_u32 s64, s64, s3")
        b.e(f"s_add_u32 s64, s64, {WS_CFL}")
        b.e("s_lshl_b32 s65, s34, 8")
        b.e("s_sub_u32 s65, 1920, s65")
        b.e("v_mul_u32_u24 v32, s65, v0")
        b.blk(["s_cmp_eq_u32 s32, 0", f"s_cselect_b32 s64, s64, {BIG}"])
        b.blk(["s_mov_b64 exec, 3", ("buffer_store_dword v31, v32, s[20:23], s64 offen sc1", 'ln'), "s_mov_b64 exec, -1"])
        b.e("s_lshl_b32 s3, s2, 2")
        b.e(f"s_add_u32 s3, s3, {WS_HFL}")
        b.e("v_lshlrev_b32 v32, 10, v0")
        b.blk(["s_cmp_eq_u32 s32, 0", f"s_cselect_b32 s3, s3, {BIG}"])
        b.blk(["s_mov_b64 exec, 31", ("buffer_store_dword v31, v32, s[20:23], s3 offen sc1", 'ln'), "s_mov_b64 exec, -1"])
        b.e("s_lshl_b32 s35, s34, 1")
        b.e("s_sub_u32 s36, 32, s35")
        b.e("s_add_u32 s35, s35, 2")
        b.e("s_lshl_b32 s44, s32, 12")
        b.e(f"s_mov_b32 s58, {XN_RB}")
        b.e("s_sub_u32 s3, 15, s34")
        b.e("s_lshl_b32 s45, s3, 2")
        b.e("s_add_u32 s45, s45, s32")
        b.e("s_lshl_b32 s46, s34, 2")
        b.e("s_add_u32 s46, s46, s32")
        srd_rec(b, 68, 42, 7340032)
        b.blk(["s_cmp_eq_u32 s32, 0", f"s_cselect_b32 s37, 0, {BIG}"])
        b.e("s_lshl_b32 s3, s33, 8")
        srd_rec(b, 16, 4, 0, "s3")
        b.e("s_sub_u32 s18, 8388608, s3")
        WQN = int(opt.get('wqn', 4))
        ln_ = 64 // WQN
        b.e(f"v_and_b32 v33, {ln_ - 1}, v0")
        b.e("v_lshrrev_b32 v32, 1, v33")
        b.e("v_and_b32 v33, 1, v0")
        b.e("v_lshlrev_b32 v32, 13, v32")
        b.e("v_lshl_add_u32 v45, v33, 7, v32")
        b.e("s_lshl_b32 s3, s32, 3")
        b.e("s_add_u32 s3, s3, s34")
        b.e(f"s_mul_i32 s47, s3, {ln_ // 2 * 8192}")
        WQ0 = int(opt.get('wq0', 6))
        ev = []
        for j in range(WQN): ev.append((WQ0 + j * float(opt.get('wqs', 2)), 'pf', j))
        NS = int(opt.get('cas', 4))
        for j in range(NS): ev.append((5.2 + j * float(opt.get('cad', 1.2)), 'ca', j))
        b.e(f"s_bfe_u32 s6, s2, {(NS.bit_length() - 1) << 16 | 3}")
        b.e("s_lshl_b32 s3, s32, 8")
        b.e("s_or_b32 s6, s6, s3")
        WOP = WOT
        if WOP:
            b.e("v_bfe_u32 v39, v0, 3, 1")
            b.e("v_and_b32 v33, 7, v0")
            b.e("v_lshlrev_b32 v39, 11, v39")
            b.e("v_lshl_add_u32 v39, v33, 7, v39")
            b.e("s_lshr_b32 s3, s2, 1")
            b.e("s_lshl_b32 s3, s3, 16")
            b.e("v_add_u32 v39, s3, v39")
            b.e("s_and_b32 s3, s2, 1")
            b.e("s_lshl_b32 s3, s3, 10")
            b.e("v_add_u32 v39, s3, v39")
            b.e("s_lshl_b32 s3, s32, 14")
            b.e("v_add_u32 v39, s3, v39")
            ev.append((5.99, 'srd', 0))
            for j in range(4): ev.append((float(opt.get('wop0', 6)) + j * 2 + 0.01, 'wo', j))
        late = []
        for step, kind, j in sorted(ev):
            o = b
            if step >= 12:
                o = Rec(); late.append(o)
            o.at(step)
            if kind == 'ca':
                o.check_clear('ln')
                o.blk([f"s_cmp_eq_u32 s6, {j}", f"s_cselect_b32 s3, 0, {BIG}"])
                o.blk(["s_mov_b64 exec, 1", "buffer_atomic_add v30, v31, s[28:31], s3 offen sc1", "s_mov_b64 exec, -1"])
            elif kind == 'srd':
                srd_rec(o, 60, 92, 8388608)
            elif kind == 'wo':
                o.e("buffer_load_dword v44, v39, s[60:63], 0 offen", tag='pf')
                o.e("v_add_u32 v39, 4096, v39")
            else:
                o.e(f"buffer_load_dword v44, v45, s[{16 if step < 12 else 8}:{19 if step < 12 else 11}], s47 offen{opt.get('wqpf_ld', '')}", tag='pf')
                o.e(f"s_add_u32 s47, s47, {1024 // WQN * 8192}")
        b.e("v_lshrrev_b32 v32, 4, v0")
        b.e("v_and_b32 v33, 15, v0")
        b.e("s_lshl_b32 s3, s32, 4")
        b.e("v_add_u32 v34, s3, v32")
        b.e("v_lshlrev_b32 v36, 1, v32")
        b.e("v_xor_b32 v36, v36, v33")
        b.e("v_xor_b32 v37, 8, v36")
        if '2' in CPF:
            b.at(10.1)
            cp = code_prefetch("L_phase2", "L_k2_fin", 32, 6, 40, 38)
            cp = [x.replace("s8", "s3") for x in cp]
            b.blk(cp[:4])
            for x in cp[4:-3]: b.e(x)
            b.blk(cp[-3:-1])
            b.e(cp[-1])
        b.at(12)
        b.e("buffer_load_dword v30, v31, s[28:31], s37 offen sc1", tag='poll')
        for j in range(3): b.e(f"s_mov_b32 s{8+j}, s{16+j}")
        srd_rec(b, 16, 66, 16 << 20, WS_CTX)
        for j in range(4): b.e(f"s_mov_b32 s{48+j}, {j*31744}")
        b.e("v_lshlrev_b32 v35, 13, v34")
        b.e(f"v_lshl_add_u32 v{WV}, v36, 4, v35")
        b.e(f"v_lshl_add_u32 v{WV+1}, v37, 4, v35")
        b.e(f"v_lshlrev_b32 v{VX}, 4, v0")
        b.e(f"v_add_u32 v{VY}, 65536, v{VX}")
        b.e(f"v_add_u32 v{VDMA}, s44, v{VX}")
        b.e("v_mov_b32 v7, 0")
        b.e("v_lshlrev_b32 v35, 2, v32")
        b.e("v_sub_u32 v35, v33, v35")
        b.e("s_lshl_b32 s3, s45, 5")
        b.e(f"v_add_u32 v{VRA}, s3, v35")
        b.e("s_lshl_b32 s3, s46, 5")
        b.e(f"v_add_u32 v{VRB}, s3, v35")
        b.e(f"s_mul_i32 s3, s33, {KV_HEAD}")
        b.e(f"s_add_u32 s3, s3, {WS_KV}")
        srd_rec(b, 12, 66, 0, "s3")
        b.e(f"s_mul_i32 s14, s36, {KV_TILE}")
        for o in late: b.items += o.items
        b.at(13)
        b.e(f"s_mul_i32 s3, s45, {2*XN_RB}")
        b.e(f"v_add_u32 v{XV}, s3, v{VX}")
        b.e(f"s_mul_i32 s3, s46, {2*XN_RB}")
        b.e(f"v_add_u32 v{XV+1}, s3, v{VX}")
        if 'dbg_noxn' in opt:
            b.e(f"v_mov_b32 v{XV}, {BIG}"); b.e(f"v_mov_b32 v{XV+1}, {BIG}")
        if 'dbg_nowq' in opt: b.e("s_mov_b32 s10, 0")
        if 'dbg_nost' in opt: b.e("s_mov_b32 s26, 0")
        spin(f"L_spinA{tg}", f"L_spinAr{tg}", 0, 256, 30, 31, 3, 47)
        return b
    def ta_setup(b):
        b.e("v_lshrrev_b32 v42, 2, v33")
        b.e("v_lshl_add_u32 v43, v32, 3, v42")
        b.e("v_lshlrev_b32 v43, 8, v43")
        b.e("v_and_b32 v44, 3, v0")
        b.e("v_lshl_add_u32 v43, v44, 3, v43")
        b.e("v_and_b32 v44, 1, v32")
        b.e("v_lshl_add_u32 v42, v44, 2, v42")
        for db in range(8):
            b.e(f"v_xor_b32 v44, {db}, v42")
            b.e(f"v_lshl_add_u32 v{TA+db}, v44, 5, v43")

    def kstep(isV, st, ks, gaps, gtags, pre, b):
        for s in pre:
            if s.endswith(':'): k.label(s[:-1])
            else: k.e(s)
        order = [(it, jd) for it in range(8) for jd in range(8)]
        if st == 7 and ks == 1: order.sort(key=lambda x: frag_of(isV, *x))
        for n, (it, jd) in enumerate(order):
            fa, fw_ = A(FA(ks, it), 4), A(FW(ks, jd), 4)
            d = acc(isV, it, jd)
            c = "0" if (st == 0 and ks == 0) else d
            k.e(mfma(d, fa, fw_, c) if isV else mfma(d, fw_, fa, c))
            if n in gaps:
                for s in gaps[n]: k.e(s, tag=gtags.get(n))
            else:
                b.fill(k, 2 * st + ks + n / 64.0)
    def place_vm(g, gt, ops, start, step):
        gi = start; lead = []
        for t, s, tg in ops:
            if t == 's':
                if gi == 0: lead.append(s)
                else: g.setdefault(gi - 1, []).insert(0, s)
            elif t == 'g':
                assert gi not in g and gi < 64, gi
                g[gi] = [s]; gt[gi] = tg; gi += step
            else:
                q = gi - step + 1
                while q in g and (len(g[q]) >= 2 or g[q][-1].startswith(('buffer', 'ds_read_b64'))) or (q - start) % step == 0: q += 1
                g.setdefault(min(q, 63), []).append(s)
        return lead
    vq0, dq0 = list(k.vq), list(k.dq)
    for isV in (0, 1):
        if isV:
            k.label("L_k1_vpath"); k.win = []; k.vq = list(vq0); k.dq = list(dq0)
        b = phase1_stream(isV)
        if S1: k.nstamp = 0
        for st in range(8):
            p = st & 1
            k.stamp(S1)
            g = {}
            for n, grp in enumerate(reads(1, p)):
                g[2 * n + 1] = (["s_waitcnt lgkmcnt(6)"] if n % 4 == 3 else []) + grp
            kstep(isV, st, 0, g, {}, ["s_waitcnt lgkmcnt(0)"], b)
            g = {}; gt = {}
            if st < 7:
                for n, grp in enumerate(reads(0, p ^ 1)):
                    g[2 * n + 1] = (["s_waitcnt lgkmcnt(6)"] if n % 4 == 2 else []) + grp
            if st < 6:
                ops = []
                d = dma_ops(p); adv = adv_ops(st + 2) if st < 5 else []
                ops = [(t, s, f'st{st+2}') for t, s in d[:10]] + [('v', s, None) for s in adv[:4]] + \
                      [(t, s, f'st{st+2}') for t, s in d[10:]] + [('v', s, None) for s in adv[4:]]
                lead = place_vm(g, gt, ops, 0, 4)
                if st < 6 - PFN:
                    pfc[0] = 2 + PFN + st
                    po = pf_ops()
                    g[62] = [po[0]] + g.get(62, []); gt[62] = 'pf'
                    g[63] = [po[1]] + g.get(63, []) + [po[2]]
                need = f'st{st+1}'
            elif st == 6:
                ops = []
                for c in range(4): ops += [(t, s, f'w{c}') for t, s in chunk_ops(('w', c))]
                lead = place_vm(g, gt, ops, 0, 4)
                need = 'st7'
            else:
                assert not b.items, len(b.items)
                ta_setup(b)
                b.items.append(('at', 15.3, None))
                for grp in wreads(0):
                    for s in grp: b.e(s)
                b.e("s_waitcnt lgkmcnt(8)")
                cv = Rec()
                for n in range(26):
                    cv.at(15 + (2 * n + 5) / 64.0)
                    r = SRC(n)[1]
                    for q in range(4): cv.e(f"v_cvt_pk_bf16_f32 v{PK(n)+q}, v{r+2*q}, v{r+2*q+1}")
                b.items += cv.items
                ops = []
                for kk in range(4): ops += [(t, s, f'x{kk}') for t, s in xn_ops(kk)]
                lead = place_vm(g, gt, ops, 0, 4)
                tg = 'v' if isV else 'k'
                lead += ["v_readfirstlane_b32 s3, v30", "s_nop 0", "s_or_b32 s3, s3, s37", "s_cmp_lt_u32 s3, 0" if 'dbg_noca' in opt else "s_cmp_lt_u32 s3, 256", f"s_cbranch_scc1 L_spinA{tg}", f"L_spinAr{tg}:"]
                need = 'w0'
            k.e(f"s_waitcnt vmcnt({k.vm_n(need)}) lgkmcnt(0)" if k.vm_n(need) is not None else "s_waitcnt lgkmcnt(0)")
            kstep(isV, st, 1, g, gt, lead + ["s_barrier"], b)
        print(f"phase1 isV={isV}: items left {len(b.items)}")
        k.stamp(S1)
        b.drain(k)
        k.stamp(S1)
        if not isV:
            k.e("s_branch L_phase2")
            vqK = list(k.vq)
    assert vqK == k.vq
    k.label("L_phase2")
    k.win = []
    k.e("s_nop 7")
    k.stamp(ST)

    b = Rec()
    KY = 56
    SPK = float(opt.get('spk', 2))
    def kvstore(n):
        b.at(n / SPK)
        off = (n >> 4) * KV_TILE + (n & 15) * 1024
        if n % 4 == 0: b.e(f"s_add_u32 s37, s38, {off}")
        b.e(f"buffer_store_dwordx4 {V(PK(n),4)}, v{VX}, s[24:27], s37 offen offset:{(n % 4)*1024}{opt.get('kv_st', ' sc1')}", tag='kvst')
    for n in range(26):
        kvstore(n)
        if 8 <= n < 14:
            m = n + 18
            for q in range(8): b.e(f"v_accvgpr_read_b32 v{48+q}, a{SRC(m)[1]+q}")
            for q in range(4): b.e(f"v_cvt_pk_bf16_f32 v{PK(m)+q}, v{48+2*q}, v{49+2*q}")
    for n in range(26, 32): kvstore(n)
    b.e("v_mov_b32 v12, 1")
    b.e("v_and_b32 v1, 15, v0")
    b.e("v_lshlrev_b32 v1, 2, v1")
    b.e("s_lshr_b32 s6, s33, 1")
    b.e("s_lshl_b32 s6, s6, 7")
    b.e(f"s_add_u32 s6, s6, {WS_FLG}")
    b.blk(["s_cmp_eq_u32 s32, 0", f"s_cselect_b32 s6, s6, {BIG}"])
    SIG = int(opt.get('sig', 21))
    POL = float(opt.get('pol', 26.5))
    b.at(SIG)
    b.blk(["s_mov_b64 exec, 1", "buffer_store_dword v12, v7, s[20:23], s39 offen sc1", "s_mov_b64 exec, -1"])
    b.at(POL)
    b.e("buffer_load_dword v12, v1, s[20:23], s6 offen sc1", tag='poll')
    CK = int(opt.get('ck', 29))
    n_ = 0
    for j in (0, 2, 1, 3, 4, 5, 6):
        for t, s in chunk_ops(('kv', j)):
            if t == 'g':
                b.at(max(CK + n_ * float(opt.get('kvp', 0.09)), {4: 25, 5: 27, 6: 29}.get(j, 0))); n_ += 1
            b.e(s, tag=f'c{16+j}')
    def spinB():
        k.e("s_mov_b32 s59, 0x400000")
        k.label("L_spinB_l")
        k.e(f"s_sleep {opt.get('slp', 4)}")
        k.e("buffer_load_dword v12, v1, s[20:23], s6 offen sc1")
        k.e("s_sub_u32 s59, s59, 1")
        k.e("s_cmp_eq_u32 s59, 0")
        k.e("s_cbranch_scc1 L_spinBx")
        k.e("s_waitcnt vmcnt(0)")
        k.e("v_cmp_ne_u32 vcc, 1, v12")
        k.e("s_cbranch_vccnz L_spinB_l")
        k.label("L_spinBx")
        k.e("s_waitcnt vmcnt(0)")
    ool.append(("L_spinB", spinB, "L_spinBr"))

    b1 = b
    b = Rec()
    srd_rec(b, 60, 40, 7340032)
    b.at(17 / SPK)
    b.e(f"s_mov_b32 s3, {WS_KEYS}")
    b.e(f"s_mov_b32 s47, {WS_KEYS + 4096}")
    for i in range(8):
        b.e(f"buffer_load_dwordx4 {V(KY+4*i,4)}, v{VX}, s[20:23], s{3 if i < 4 else 47} offen offset:{(i % 4)*1024} sc1", tag='keys')
    b.at(17 / SPK + 8)
    b.wait_vm('keys')
    b.e(f"v_max_u32 v14, v{KY}, v{KY+1}")
    b.e(f"v_min_u32 v15, v{KY}, v{KY+1}")
    for i in range(2, 32):
        b.e(f"v_med3_u32 v15, v14, v15, v{KY+i}"); b.e(f"v_max_u32 v14, v14, v{KY+i}")
    def wmax(v, sdst):
        for m in ["quad_perm:[1,0,3,2]", "quad_perm:[2,3,0,1]", "row_half_mirror", "row_mirror"]:
            b.blk([f"v_max_u32_dpp {v}, {v}, {v} {m} row_mask:0xf bank_mask:0xf"])
        b.blk([f"v_readlane_b32 s3, {v}, 0", f"v_readlane_b32 s47, {v}, 16"])
        b.blk([f"v_readlane_b32 s4, {v}, 32", f"v_readlane_b32 s5, {v}, 48"])
        b.blk(["s_max_u32 s3, s3, s47", "s_max_u32 s4, s4, s5", f"s_max_u32 s{sdst}, s3, s4"])
    b.e("v_mov_b32 v13, v14")
    wmax("v13", 40)
    b.blk(["v_cmp_eq_u32 vcc, s40, v14"])
    b.blk(["v_cndmask_b32 v13, v14, v15, vcc"])
    wmax("v13", 41)
    for t in range(2):
        b.e(f"s_and_b32 s3, s{40+t}, 0xffff")
        b.e(f"s_sub_u32 s{42+t}, 0xffff, s3")
    for t in range(2):
        b.e(f"v_mov_b32 v60, s{40+t}")
        b.e("v_not_b32 v61, v60")
        b.e("v_ashrrev_i32 v61, 31, v61")
        b.e("v_or_b32 v61, 0x80000000, v61")
        b.e("v_xor_b32 v60, v60, v61")
        b.e("v_and_b32 v60, 0xffff0000, v60")
        b.e("v_mul_f32 v60, 0xbfb8aa3b, v60")
        b.e("v_exp_f32 v60, v60")
        b.e("v_add_f32 v60, 1.0, v60")
        b.e("v_rcp_f32 v60, v60")
        b.e("v_cvt_pk_bf16_f32 v60, v60, v60")
        b.e(f"v_and_b32 v{64+t}, 0xffff0000, v60")
    for r in range(16): b.e(f"v_mov_b32 v{LS+r}, 0")
    WARM = opt.get('warm', '1') == '1'
    if WARM:
        b.e("s_mul_i32 s3, s34, s34")
        b.e("s_lshl_b32 s47, s33, 6")
        b.e("s_add_u32 s3, s3, s47")
        b.e("s_lshl_b32 s3, s3, 2")
        b.e("s_add_u32 s3, s3, s32")
        b.e("s_lshl_b32 s3, s3, 7")
        b.e("s_sub_u32 s3, s3, 512")
        b.e(f"v_min_u32 v13, {int(opt.get('wlanes', 25 if WOT else 33)) - 1}, v0")
        b.e("v_mov_b32 v28, s94"); b.e("v_mov_b32 v29, s95")
        b.e("v_mov_b32 v30, v13")
        for first, lo, hi in ((7, 100, 101), (11, 60, 61), (18, 68, 69), (25, 92, 93)):
            b.e(f"v_mov_b32 v14, s{lo}"); b.e(f"v_mov_b32 v15, s{hi}")
            b.blk([f"v_cmp_le_u32 vcc, {first}, v13", f"v_subrev_u32 v31, {first}, v13"])
            b.blk(["v_cndmask_b32 v28, v28, v14, vcc", "v_cndmask_b32 v29, v29, v15, vcc"])
            b.blk(["v_cndmask_b32 v30, v30, v31, vcc"])
        b.e("v_lshlrev_b32 v30, 20, v30")
        b.e("v_add_u32 v30, s3, v30")
        b.e("v_ashrrev_i32 v31, 31, v30")
        b.e("v_lshl_add_u64 v[28:29], v[30:31], 0, v[28:29]")
        b.e("s_mov_b32 s40, 512"); b.e("s_mov_b32 s41, 0")
    b.e("v_readfirstlane_b32 s100, v64")
    b.e("v_readfirstlane_b32 s101, v65")
    b.at(SIG)
    for j in range(3): b.e(f"s_mov_b32 s{24+j}, s{60+j}")
    b.e("s_add_u32 s3, s34, 7")
    b.e("s_and_b32 s3, s3, 7")
    b.e("s_lshl_b32 s3, s3, 5")
    b.e("s_add_u32 s3, s3, s33")
    b.e("s_mul_i32 s92, s3, 2341")
    b.e("s_lshr_b32 s92, s92, 16")
    b.e("s_mul_i32 s47, s92, 28")
    b.e("s_sub_u32 s4, s3, s47")
    b.e(f"s_mul_i32 s5, s92, {128*7168}")
    b.e("s_lshl_b32 s47, s4, 8")
    b.e("s_add_u32 s5, s5, s47")
    b.e(f"s_mov_b32 s94, {QSCALE}")
    b.e(f"s_mov_b32 s95, {QSCALE}")
    b.e("s_sub_u32 s55, 15, s34")
    b.e("s_sub_u32 s45, s36, 3")
    b.e("s_sub_u32 s46, s35, 3")
    b.e("s_max_i32 s46, s46, 0")
    b.e("s_mov_b32 s54, s44")
    b.e("s_sub_u32 s35, s35, 1")
    b.e("s_sub_u32 s36, s36, 1")
    b2 = b
    b3 = Rec()
    WT0 = float(opt.get('wt0', 18))
    WTB = int(opt.get('wtb', 23))
    WTG = int(opt.get('wtg', 8))
    b3.e("s_lshr_b32 s52, s2, 1")
    b3.e("s_lshl_b32 s52, s52, 16")
    b3.e("s_and_b32 s53, s2, 1")
    b3.e("s_lshl_b32 s53, s53, 10")
    b3.e("s_add_u32 s52, s52, s53")
    b3.e("s_lshl_b32 s53, s32, 14")
    b3.e("s_add_u32 s52, s52, s53")
    srd_rec(b3, 28, 92, 8388608)
    for j in range(8):
        b3.at(WT0 + 2 * (j // WTG))
        b3.blk([f"s_add_u32 m0, s56, {65536 + j * 1024}", f"v_xor_b32 v88, {j * 32}, v{VX}",
                (f"buffer_load_dwordx4 v88, s[28:31], s52 offen{opt.get('wo_ld', '')} lds", 'wo'), "s_add_u32 s52, s52, 2048"])
    b3.e("v_lshrrev_b32 v89, 2, v0")
    b3.e("v_lshlrev_b32 v89, 10, v89")
    b3.e("s_lshl_b32 s53, s32, 8")
    b3.e("s_add_u32 s53, s53, 65536")
    b3.e("v_add_u32 v89, s53, v89")
    b3.e("v_mov_b32 v90, 0xff")
    srd_rec(b3, 28, 66, 16 * WO_NT, WS_WOT)
    b3.e("s_and_b32 s52, s2, 1")
    b3.e("s_lshl_b32 s52, s52, 2")
    b3.e("s_add_u32 s52, s52, s32")
    b3.e(f"s_mul_i32 s52, s52, {2 * WO_NT}")
    b3.e("s_lshr_b32 s53, s2, 1")
    b3.e("s_lshl_b32 s53, s53, 12")
    b3.e("s_add_u32 s52, s52, s53")
    b3.at(WTB)
    for q in range(8):
        b3.e(f"v_and_or_b32 v{92 + (q & 1)}, v{TA+q}, v90, v89")
        for rd in range(2):
            b3.e(f"ds_read_b64_tr_b16 {V(96 + 4*q + 2*rd, 2)}, v{92 + (q & 1)} offset:{rd*16384}", tag='wt')
    for q in range(8):
        b3.at(WTB + 1.2 + 0.5 * q)
        b3.wait_ds('wt')
        b3.e(f"buffer_store_dwordx4 {V(96 + 4*q, 4)}, v{VX}, s[28:31], s52 offen offset:{(q & 3)*1024} sc1", tag='wts')
        if q == 3: b3.e(f"s_add_u32 s52, s52, {WO_NT}")
    b3.e("s_and_b32 s52, s2, 1")
    b3.e("s_lshl_b32 s52, s52, 9")
    b3.e("s_lshr_b32 s93, s2, 1")
    b3.e("s_lshl_b32 s93, s93, 2")
    b3.e("s_add_u32 s52, s52, s93")
    b3.e(f"s_add_u32 s52, s52, {WS_WFL}")
    b3.blk(["s_cmp_eq_u32 s32, 0", f"s_cselect_b32 s52, s52, {BIG}"])
    b3.e("v_mov_b32 v24, 1")
    b3.e("v_mov_b32 v25, 0")
    if not WOT: b3.items = []
    PKM = opt.get('pkm', '0') == '1'
    def conv_items(qb):
        r_ = Rec()
        for s_ in range(4):
            r = QA(2 * s_, qb)
            if PKM:
                for e_ in range(0, 8, 2): r_.e(f"v_pk_mul_f32 {V(r+e_,2)}, {V(r+e_,2)}, s[94:95]")
            else:
                for e_ in range(8): r_.e(f"v_mul_f32 v{r+e_}, s94, v{r+e_}")
            for e_ in range(4): r_.e(f"v_cvt_pk_bf16_f32 v{r+e_}, v{r+2*e_}, v{r+2*e_+1}")
            for e_ in range(4): r_.e(f"v_accvgpr_write_b32 a{Q(qb,s_)+e_}, v{r+e_}")
        r_.items.append(('mark', f'conv{qb}', None))
        return r_.items
    p2_start = len(k.lines)
    xsched = {0: [4, 5], 1: [6, 7], 2: [8, 9]}
    for kk in range(3, 25): xsched[kk] = [kk + 7]
    for kk in range(32):
        st, ks = kk // 2, kk & 1
        k.stamp(S2 and kk in (0, 4, 8, 12, 16, 20, 24, 28, 31))
        need = [f'x{kk}']
        if ks == 1 and st < 15: need.append(f'w{st+1}')
        if kk == SIG:
            assert not any(it[2] == 'kvst' for it in b1.items), "stores not all issued before SIG"
            need.append('kvst')
        if kk == WTB:
            assert not any(it[0] == 'b' and any(isinstance(x, tuple) for x in it[1]) for it in b3.items)
            need.append('wo')
        if kk == CK:
            assert not b3.items
            need.append('poll')
        if kk == 31: need.append('c16')
        w = [x for x in (k.vm_n(t) for t in need) if x is not None]
        k.e("s_waitcnt " + (f"vmcnt({min(w)}) " if w else "") + "lgkmcnt(0)")
        if kk == CK:
            assert not any('vcc' in str(it[1]) for it in b2.items)
            k.e("s_cmp_lg_u32 s32, 0")
            k.e("s_cbranch_scc1 L_spinBr")
            k.e("v_cmp_ne_u32 vcc, 1, v12")
            k.e("s_cbranch_vccnz L_spinB")
            k.label("L_spinBr")
        if ks == 1: k.e("s_barrier")
        g = {}; gt = {}
        if kk + 1 < 32:
            for n, grp in enumerate(wreads(kk + 1)):
                g[1 + 3 * n] = (["s_waitcnt lgkmcnt(6)"] if n == 5 else []) + grp
        vm = []
        if ks == 1 and st + 4 < 16: vm += [(t, s, f'w{st+4}') for t, s in chunk_ops(('w', st + 4))]
        for x in xsched.get(kk, []): vm += [(t, s, f'x{x}') for t, s in xn_ops(x)]
        ng = sum(1 for x in vm if x[0] == 'g')
        free = [x for x in range(2, 32) if x not in g]
        pick = [free[(j * len(free)) // ng] for j in range(ng)] if ng else []
        j = 0
        for t, s, tg in vm:
            if t == 'g': g[pick[j]] = [s]; gt[pick[j]] = tg; j += 1
            elif t == 's':
                q = pick[j] - 1
                if q in gt: g[q].append(s)
                else: g.setdefault(q, []).insert(0, s)
            else: g[pick[j - 1]].append(s)
        order = [(db, qb) for db in range(8) for qb in range(4)]
        if kk == 31:
            order = [(db, qb) for qb in range(4) for db in range(8)]
            assert not b2.items, len(b2.items)
            for kb in range(2):
                for s_ in range(4): b2.e(f"ds_read_b128 {A(FR(kb,s_),4)}, v{VY} offset:{(kb*4+s_)*1024}", tag=f'k{kb}')
            b2.at(31 + 12 / 32.0)
            b2.items += conv_items(0) + conv_items(1)
        elif kk > 24:
            for r in range(16): b2.e(f"v_accvgpr_write_b32 a{XR(kk-1,0)+r}, 0")
        for n, (db, qb) in enumerate(order):
            k.e(mfma(V(QA(db, qb), 4), A(WF(kk, db), 4), A(XR(kk, qb), 4), V(QA(db, qb), 4) if kk else "0"))
            if n in g:
                for s in g[n]: k.e(s, tag=gt.get(n))
            else:
                nl = len(k.lines)
                b1.fill(k, kk + n / 32.0)
                if len(k.lines) == nl: b3.fill(k, kk + n / 32.0)
                if len(k.lines) == nl: b2.fill(k, kk + n / 32.0)
    print("phase2 items left", len(b1.items), len(b2.items))
    b1.drain(k)
    grp_ = None
    for ln in k.lines[p2_start:] + ["s_mov_b32 m0, 0"]:
        if ' m0,' in ln:
            assert grp_ is None or (len(set(grp_)) == 1 and len(grp_) == (1 if grp_[0] == 's[28:31]' else 4)), grp_
            grp_ = []
        elif ln.endswith(' lds'): grp_.append(ln.split(', ')[1])
    k.stamp(ST or S2)
    XS = 160
    def ffn_issue():
        for t in range(2):
            k.e(f"s_lshr_b32 s3, s{42+t}, 4")
            k.e(f"s_mul_i32 s3, s3, {XN_RB}")
            k.e(f"s_and_b32 s47, s{42+t}, 15")
            k.e("s_lshl_b32 s47, s47, 4")
            k.e("s_add_u32 s3, s3, s47")
            k.e(f"v_mov_b32 v{28+t}, s3")
        k.e("v_lshrrev_b32 v24, 4, v0")
        k.e("v_and_b32 v25, 15, v0")
        k.e("v_cmp_eq_u32 vcc, 1, v25")
        k.e("s_lshl_b32 s3, s32, 4")
        k.e("v_add_u32 v26, s3, v24")
        k.e("v_cndmask_b32 v28, v28, v29, vcc")
        k.e("v_lshl_add_u32 v28, v24, 8, v28")
        k.e("v_mul_u32_u24 v26, 7168, v26")
        k.e("v_lshlrev_b32 v24, 1, v24")
        k.e("v_xor_b32 v24, v24, v25")
        k.e("v_xor_b32 v25, 8, v24")
        k.e("v_lshl_add_u32 v24, v24, 4, v26")
        k.e("v_lshl_add_u32 v25, v25, 4, v26")
        k.e("s_lshl_b32 s3, s92, 12")
        for q in range(4):
            k.e(f"buffer_load_dwordx4 {A(XS+4*q,4)}, v28, s[20:23], s3 offen offset:{q*1024} sc1")
        ops = []
        for m, srd in enumerate((24, 68)):
            for h in range(2):
                for q in range(4):
                    pre = [f"s_add_u32 m0, s54, {m*32768 + h*16384}"] if q == 0 else []
                    ops.append((pre + [f"s_add_u32 s3, s5, {h*64*7168 + q*27648}"],
                                f"buffer_load_dwordx4 v{24 + (q >> 1)}, {S(srd,4)}, s3 offen offset:{q*1024}{ffn_ld} lds"))
        return ops
    def ffn_finish():
        k.e("v_lshrrev_b32 v24, 4, v0")
        k.e("v_bfe_u32 v25, v0, 2, 2")
        k.e("v_lshl_add_u32 v26, v24, 3, v25")
        k.e("v_lshlrev_b32 v26, 8, v26")
        k.e("v_and_b32 v27, 3, v0")
        k.e("v_lshl_add_u32 v26, v27, 3, v26")
        k.e("v_and_b32 v27, 1, v24")
        k.e("v_lshl_add_u32 v25, v27, 2, v25")
        k.e("s_lshl_b32 s3, s32, 1")
        k.e("v_xor_b32 v25, s3, v25")
        k.e("v_lshl_add_u32 v26, v25, 5, v26")
        k.e("s_sub_u32 s3, s54, s44")
        k.e("v_add_u32 v26, s3, v26")
        k.e("v_xor_b32 v27, 32, v26")
        k.e("s_waitcnt vmcnt(8) lgkmcnt(0)")
        k.e("s_barrier")
        for m in range(2):
            for q in range(4):
                for j in range(2):
                    for rd in range(2):
                        k.e(f"ds_read_b64_tr_b16 {V(128 + 32*m + 8*q + 4*j + 2*rd, 2)}, v{26+j} offset:{m*32768 + q*8192 + rd*1024}", tag=f'f{m}')
        k.e("v_and_b32 v25, 15, v0")
        k.e("v_mul_u32_u24 v28, 14336, v25")
        k.e("v_lshl_add_u32 v28, v24, 4, v28")
        k.e(f"v_mov_b32 v29, {BIG}")
        k.e("v_cmp_gt_u32 vcc, 2, v25")
        k.e(f"s_mul_i32 s3, s92, {4*14336}")
        k.e("s_lshl_b32 s47, s4, 9")
        k.e("s_add_u32 s3, s3, s47")
        k.e("v_cndmask_b32 v28, v29, v28, vcc")
        k.e("s_lshl_b32 s47, s32, 7")
        k.e("s_add_u32 s3, s3, s47")
        k.e(f"s_add_u32 s3, s3, {WS_HP}")
        for m in range(2):
            k.wait_ds(f'f{m}')
            for q in range(4):
                for j in range(2):
                    d = V(224 + 8 * m + 4 * j, 4)
                    k.e(mfma(d, V(128 + 32*m + 8*q + 4*j, 4), A(XS + 4*q, 4), d if q else "0"))
    def ffn_store():
        k.e("s_cmp_lg_u32 s34, 0")
        k.e(f"s_cselect_b32 s3, s3, {1 << 23}")
        k.e(f"s_add_u32 s7, s3, {2*14336}")
        for m in range(2):
            for j in range(2):
                k.e(f"buffer_store_dwordx4 {V(224 + 8*m + 4*j, 4)}, v28, s[20:23], s{7 if m else 3} offen offset:{j*64} sc1", tag='hps')

    def kread(reg, off, kb):
        return [f"ds_read_b128 {A(FR(kb,s_),4)}, v{reg} offset:{off + (kb*4+s_)*1024}" for s_ in range(4)]
    def vread(reg, off, vg):
        return [f"ds_read_b128 {A(FR(vg,j),4)}, v{reg} offset:{off + (vg*4+j)*1024}" for j in range(4)]
    def qk_mfmas(par, nq, zero=False):
        out = []
        for kb in range(4):
            grp = []
            for qb in range(nq):
                d = V(Sr(par, qb, kb), 4)
                for s_ in range(4):
                    c = d if s_ else ("0" if zero else V(NEGM + 4 * qb, 4))
                    grp.append(mfma(d, A(FR(kb, s_), 4), A(Q(qb, s_), 4), c))
            out.append(grp)
        return out
    def pv_mfmas(par, nq):
        out = []
        for vg in range(4):
            grp = []
            for dd in range(2):
                for qb in range(nq):
                    for ks in range(2):
                        o = A(O(qb, 2 * vg + dd), 4)
                        grp.append(mfma(o, A(FR(vg, 2 * dd + ks), 4), V(P(par, qb, ks), 4), o))
            if vg < nq:
                for ks in range(2):
                    l = V(LS + 4 * vg, 4)
                    grp.append(mfma(l, V(ONES, 4), V(P(par, vg, ks), 4), l))
            out.append(grp)
        return out
    def sm_pairs(par, nq, ks):
        out = []
        for kq in range(2):
            for qb in range(nq):
                s0 = Sr(par, qb, 2 * ks + kq)
                for h in range(2):
                    out.append((s0 + 2 * h, s0 + 2 * h + 1, P(par, qb, ks) + 2 * kq + h))
        return out
    class SM:
        def __init__(self, pairs, first, check):
            self.pairs = pairs; self.ne = 0; self.nc = 0; self.no = 0; self.first = first
            self.tail = [f"v_and_b32 v{T0}, 0x40004000, v{ORR}", f"v_cmp_ne_u32 vcc, 0, v{T0}"] if check else []
            self.e_done = 0; self.extra = []
        def tick(self): self.e_done = self.ne
        def exp_ready(self): return self.ne < 2 * len(self.pairs) and self.ne // 2 - self.nc < 4
        def exp(self):
            j, h = self.ne // 2, self.ne & 1; self.ne += 1
            return f"v_exp_f32 v{ET + 2*(j % 4) + h}, v{self.pairs[j][h]}"
        def plain_avail(self):
            n = min(self.e_done // 2, len(self.pairs)) - self.nc
            n += self.nc // 2 - self.no
            if self.no == len(self.pairs) // 2: n += len(self.tail)
            return n + len(self.extra)
        def plain(self):
            if self.nc < min(self.e_done // 2, len(self.pairs)):
                j = self.nc; self.nc += 1
                return f"v_cvt_pk_bf16_f32 v{self.pairs[j][2]}, v{ET + 2*(j % 4)}, v{ET + 2*(j % 4) + 1}"
            if self.no < self.nc // 2:
                j = self.no; self.no += 1
                a, b = self.pairs[2 * j][2], self.pairs[2 * j + 1][2]
                if self.first and j == 0: return f"v_or_b32 v{ORR}, v{a}, v{b}"
                return f"v_or3_b32 v{ORR}, v{ORR}, v{a}, v{b}"
            if self.no == len(self.pairs) // 2 and self.tail: return self.tail.pop(0)
            if self.extra: return self.extra.pop(0)
            return None
        def left_exp(self): return 2 * len(self.pairs) - self.ne
        def left_plain(self): return len(self.pairs) - self.nc + len(self.pairs) // 2 - self.no + len(self.tail) + len(self.extra)
        def done(self): return self.left_exp() == 0 and self.left_plain() == 0
        def drain(self):
            while not self.done():
                self.tick()
                if self.exp_ready():
                    k.e(self.exp())
                    if self.exp_ready(): k.e(self.exp())
                    x = self.plain()
                    if x: k.e(x)
                else:
                    k.e(self.plain())
    def phase(groups, gtags, reads, rtags, sm, vm, nexttag):
        total = sum(len(g) for g in groups)
        vmpos = {}
        if vm:
            step = max(2, (total - 2) // len(vm))
            for j, x in enumerate(vm): vmpos[1 + j * step] = x
        n = 0
        k.wait_ds(gtags[0])
        for gi, grp in enumerate(groups):
            rq = list(reads[gi])
            for mi, m in enumerate(grp):
                k.e(m)
                sm.tick()
                scal = []
                if n + 1 in vmpos: scal += vmpos[n + 1][0]
                lastm = mi == len(grp) - 1
                if n in vmpos:
                    for s in scal: k.e(s)
                    k.e(vmpos[n][1], tag='kv')
                    slots = 0
                else:
                    for s in scal: k.e(s)
                    if lastm:
                        nt = gtags[gi + 1] if gi + 1 < len(groups) else nexttag
                        if nt: k.wait_ds(nt)
                    slots = 2
                    gaps_left = len([x for x in range(n, n + len(grp) - mi) if x not in vmpos])
                    want_d = len(rq) > 0 and (sm.plain_avail() > 0 or not sm.exp_ready() or len(rq) >= gaps_left - 1)
                    if want_d:
                        k.e(rq.pop(0), tag=rtags[gi]); slots -= 1
                        if rq and (sm.plain_avail() == 0 or len(rq) >= gaps_left):
                            k.e(rq.pop(0), tag=rtags[gi]); slots -= 1
                    if slots == 2 and sm.exp_ready() and not (sm.plain_avail() >= 3 and not rq):
                        k.e(sm.exp()); slots = 0
                    while slots > 0:
                        x = sm.plain()
                        if not x: break
                        k.e(x); slots -= 1
                if lastm:
                    for s in rq: k.e(s, tag=rtags[gi])
                    nt = gtags[gi + 1] if gi + 1 < len(groups) else nexttag
                    if nt: k.wait_ds(nt)
                n += 1
        sm.drain()

    def mask_block(par, q0, vr):
        k.e("s_nop 7")
        k.e("s_add_u32 s3, s37, 1")
        k.e("s_lshl_b32 s3, s3, 6")
        k.e(f"v_subrev_u32 v{T0}, s3, v{vr}")
        for c in range(-1, 4):
            for r in range(4): k.e(f"v_cmp_gt_i32 s[{56+2*r}:{57+2*r}], {16*c + r}, v{T0}")
            for qq in range(2):
                kb = c + qq
                if 0 <= kb < 4:
                    for r in range(4):
                        x = Sr(par, q0 + qq, kb) + r
                        k.e(f"v_cndmask_b32 v{x}, v{x}, v{NINF}, s[{56+2*r}:{57+2*r}]")
        k.e("s_nop 1")
    def rowmax(par, qb, d, o=k):
        s0 = Sr(par, qb, 0)
        o.e(f"v_max3_f32 v{d}, v{s0}, v{s0+1}, v{s0+2}")
        for r in range(3, 15, 2): o.e(f"v_max3_f32 v{d}, v{d}, v{s0+r}, v{s0+r+1}")
        o.e(f"v_max_f32 v{d}, v{d}, v{s0+15}")
        o.e(f"v_mov_b32 v{T0}, v{d}")
        o.e(f"v_permlane16_swap_b32 v{T0}, v{d}")
        o.e(f"v_max_f32 v{d}, v{d}, v{T0}")
        o.e(f"v_mov_b32 v{T0}, v{d}")
        o.e(f"v_permlane32_swap_b32 v{T0}, v{d}")
        o.e(f"v_max_f32 v{d}, v{d}, v{T0}")
        o.e(f"v_add_f32 v{d}, {opt.get('moff', '0x41f80000')}, v{d}")
    def fallback(par, nq, nqn):
        k.e("s_nop 7")
        for qb in range(nq):
            rowmax(par, qb, 21)
            k.e("v_max_f32 v21, 0, v21")
            for r in range(16): k.e(f"v_sub_f32 v{Sr(par,qb,0)+r}, v{Sr(par,qb,0)+r}, v21")
            if qb < nqn:
                for r in range(16): k.e(f"v_sub_f32 v{Sr(par^1,qb,0)+r}, v{Sr(par^1,qb,0)+r}, v21")
            for r in range(4): k.e(f"v_sub_f32 v{NEGM+4*qb+r}, v{NEGM+4*qb+r}, v21")
            k.e("v_exp_f32 v22, -v21")
            for r in range(4): k.e(f"v_mul_f32 v{LS+4*qb+r}, v{LS+4*qb+r}, v22")
            for r0 in range(0, 32, 8):
                for r in range(8): k.e(f"v_accvgpr_read_b32 v{ET+r}, a{O(qb,0)+r0+r}")
                for r in range(8): k.e(f"v_mul_f32 v{ET+r}, v{ET+r}, v22")
                for r in range(8): k.e(f"v_accvgpr_write_b32 a{O(qb,0)+r0+r}, v{ET+r}")
        for ks in range(2):
            for (s0, s1, pd) in sm_pairs(par, nq, ks):
                k.e(f"v_exp_f32 v{ET}, v{s0}")
                k.e(f"v_exp_f32 v{ET+1}, v{s1}")
                k.e(f"v_cvt_pk_bf16_f32 v{pd}, v{ET}, v{ET+1}")
        k.e("s_nop 1")
    SPLIT = {4: (32, 16, 8), 2: (17, 8, 4), 0: (0, 0, 0)}
    def tile_sm(par, nq, start, check):
        sm = SM(sm_pairs(par, nq, 0) + sm_pairs(par, nq, 1), True, check)
        sm.ne, sm.nc, sm.no = start; sm.e_done = sm.ne
        return sm
    def pack(ngaps, vmg, dsl, sm, limit, last_sm, pre):
        plan = {}
        dsl = list(dsl)
        def exp_ok(): return sm.exp_ready() and (limit is None or sm.ne < limit[0])
        def plain_n():
            n = min(sm.e_done // 2, len(sm.pairs), limit[1] if limit else 1 << 30) - sm.nc
            n += min(sm.nc // 2, limit[2] if limit else 1 << 30) - sm.no
            if limit is None and sm.no == len(sm.pairs) // 2: n += len(sm.tail)
            return n + len(sm.extra)
        def take_plain():
            if limit is not None:
                c_ok = sm.nc < min(sm.e_done // 2, limit[1]); o_ok = sm.no < min(sm.nc // 2, limit[2])
                if not c_ok and not o_ok: return sm.extra.pop(0) if sm.extra else None
                if not c_ok:
                    keep = sm.e_done; sm.e_done = 2 * sm.nc; x = sm.plain(); sm.e_done = keep; return x
            return sm.plain()
        for g in range(-1 if pre else 0, ngaps):
            if g in vmg: sm.tick(); continue
            sm.tick()
            ops = []
            smok = g <= last_sm
            av = [d for d in dsl if d[2] <= g]
            free_to = lambda dl: len([x for x in range(g, dl + 1) if x not in vmg])
            urgent = any(sum(1 for d in dsl if d[3] <= e[3]) >= 2 * free_to(e[3]) - 1 for e in av)
            pn = plain_n() if smok else 0
            if smok and exp_ok() and not urgent and not (av and pn) and not (pn >= 3):
                ops.append((sm.exp(), None))
            else:
                slots = 2
                if av and g >= 0:
                    d = av.pop(0); dsl.remove(d); ops.append((d[0], d[1])); slots -= 1
                    if av and (pn == 0 or sum(1 for x in dsl if x[3] <= av[0][3]) >= 2 * free_to(av[0][3]) - 1):
                        d = av.pop(0); dsl.remove(d); ops.append((d[0], d[1])); slots -= 1
                while slots and smok:
                    x = take_plain()
                    if not x: break
                    ops.append((x, None)); slots -= 1
                if not ops and smok and exp_ok(): ops.append((sm.exp(), None))
            plan[g] = ops
            if g == last_sm:
                while (limit is None and not sm.done()) or (limit is not None and ((sm.ne, sm.nc, sm.no) != limit or sm.extra)):
                    sm.tick()
                    x = sm.exp() if exp_ok() else take_plain()
                    plan[g].append((x, None)); k.overflow += 1
        assert not dsl, dsl
        return plan
    k.overflow = 0
    SLK = int(opt.get('slk', -1))
    def emit_phase(mf, plan, vmg, scal, bg=None):
        for s_, tg in plan.get(-1, []): k.e(s_, tag=tg)
        for g, m in enumerate(mf):
            k.e(m)
            for x in scal.get(g, []):
                if isinstance(x, tuple): k.wait_ds(x[1])
                elif x.endswith(':'): k.label(x[:-1])
                else: k.e(x)
            if g in vmg: k.e(vmg[g], tag='kv')
            else:
                for s_, tg in plan.get(g, []): k.e(s_, tag=tg)
                if bg and not plan.get(g) and g not in scal: bg.fill(k, 99, 3)
        if bg: bg.drain(k)
    def starts(groups):
        out = [0]
        for g in groups: out.append(out[-1] + len(g))
        return out
    def iteration(par, nq, nqn, maskq0, name, tail):
        kreg, koff = (VX, 32768) if par == 0 else (VY, 0)
        vreg, voff = (VX, 16384) if par == 0 else (VX, 49152)
        nreg, noff = (VY, 0) if par == 0 else (VY, 32768)
        k.hot = True
        ov0 = k.overflow
        k.dq = ['k1'] * 4
        fb, fr = f"L_k2_fb_{name}", f"L_k2_fbr_{name}"
        ool.append((fb, lambda: fallback(par, nq, nqn), fr))
        sm = tile_sm(par, nq, SPLIT[nq], True)
        if par == 0:
            k.e(f"v_xor_b32 v{VX}, 65536, v{VX}")
            k.e(f"v_xor_b32 v{VY}, 65536, v{VY}")
        if nqn:
            if nqn == 4 and WARM: sm.extra = ["v_lshl_add_u64 v[28:29], s[40:41], 0, v[28:29]"]
            grp = qk_mfmas(par ^ 1, nqn); st_ = starts(grp); n1 = st_[-1]
            slack = SLK if nqn == 2 else 6
            dsl = [(x, 'k2', 0, st_[1] + slack) for x in kread(kreg, koff, 2)] + [(x, 'k3', 0, st_[2] + slack) for x in kread(kreg, koff, 3)] + \
                  [(x, 'v0', st_[1], st_[3] + slack) for x in vread(vreg, voff, 0)] + [(x, 'v1', st_[2], n1 - 1) for x in vread(vreg, voff, 1)]
            scal = {st_[1] - 1: [('w', 'k1')], st_[2] - 1: [('w', 'k2')], st_[3] - 1: [('w', 'k3')],
                    n1 - 5: [f"s_cmp_ge_u32 s37, s{45 if maskq0 == 0 else 46}"], n1 - 4: ["s_waitcnt vmcnt(12)"], n1 - 3: ["s_barrier"],
                    n1 - 2: [('w', 'v0')], n1 - 1: [f"s_cbranch_vccnz {fb}", fr + ":"]}
            if nq == 2:
                scal[n1 - 7] = ["s_cmp_lt_u32 s37, s52"]
                scal[n1 - 6] = [f"s_cbranch_scc1 L_nw_{name}", "s_waitcnt vmcnt(12)", f"L_nw_{name}:"]
                del scal[n1 - 4]
            vmg = {}
            step = (n1 - 8) / 4
            for j in range(4):
                q = int(1 + j * step)
                while q in scal or (j == 0 and q - 1 in scal): q += 1
                vmg[q] = f"buffer_load_dwordx4 v{VDMA}, s[12:15], s38 offen offset:{j*1024}{kv_ld} lds"
                if j == 0: scal[q - 1] = ["s_mov_b32 m0, s53" if par == 0 else "s_add_u32 m0, s53, 32768"]
            plan = pack(n1, vmg, dsl, sm, None, n1 - 2, par == 1)
            emit_phase(sum(grp, []), plan, vmg, scal)
        else:
            for s in p4_ptr_loads(): k.e(s)
            k.e("s_waitcnt lgkmcnt(0)")
            for s in vread(vreg, voff, 0): k.e(s, tag='v0')
            for s in vread(vreg, voff, 1): k.e(s, tag='v1')
            k.hot = False
            for pre, ld in ffn_issue():
                for x in pre: k.e(x)
                k.e(ld)
                for _ in range(2):
                    sm.tick()
                    if sm.exp_ready(): k.e(sm.exp())
                    elif not sm.done(): k.e(sm.plain())
            sm.drain()
            k.wait_ds('v0')
            k.hot = True
            k.e(f"s_cbranch_vccnz {fb}")
            k.label(fr)
        grp = pv_mfmas(par, nq); st_ = starts(grp); n2 = st_[-1]
        slack = SLK if nq == 2 else 6
        dsl = [(x, 'v2', 0, st_[1] + slack) for x in vread(vreg, voff, 2)] + [(x, 'v3', 0, st_[2] + slack) for x in vread(vreg, voff, 3)]
        scal = {st_[1] - 1: [('w', 'v1')], st_[2] - 1: [('w', 'v2')], st_[3] - 1: [('w', 'v3')]}
        vmg = {}
        if nqn:
            dsl += [(x, 'k0', st_[1], st_[3] + slack - 1) for x in kread(nreg, noff, 0)] + [(x, 'k1', st_[2], n2 - 2) for x in kread(nreg, noff, 1)]
            mb, mr = f"L_k2_mk_{name}", f"L_k2_mkr_{name}"
            ool.append((mb, lambda: mask_block(par ^ 1, maskq0, VRA if maskq0 == 0 else VRB), mr))
            scal[0] = [f"s_cbranch_scc1 {mb}", mr + ":"]
            scal[n2 - 2] = [('w', 'k0')]
            if len(tail) == 2: scal[n2 - 3] = [tail[0]]
            if tail: scal[n2 - 1] = [tail[-1]]
            mv = "s_add_u32 m0, s54, 49152" if par == 0 else "s_add_u32 m0, s53, 16384"
            vm = [f"buffer_load_dwordx4 v{VDMA}, s[12:15], s39 offen offset:{j*1024}{kv_ld} lds" for j in range(4)]
            if nqn == 4 and WARM: vm.append("global_load_dword v30, v[28:29], off")
            step = (n2 - 4) / len(vm)
            pos = []
            for j in range(len(vm)):
                q = int(2 + j * step)
                while q in scal or q in vmg or (j == 0 and q - 1 in scal): q += 1
                vmg[q] = vm[j]; pos.append(q)
                if j == 0: scal[q - 1] = [mv]
            def put(x, lo):
                q = lo
                while q in scal or q in vmg: q += 1
                assert q < n2 - 3, (x, q)
                scal[q] = [x]
            if name == "ne":
                q = 3
                while any(x in scal or x in vmg for x in (q, q + 1)): q += 1
                scal[q] = ["s_cmp_eq_u32 s37, s52"]; scal[q + 1] = ["s_cbranch_scc1 L_pubB", "L_pubBr:"]
                def pubB():
                    k.e("v_mov_b32 v24, 1"); k.e("v_mov_b32 v25, 0")
                    k.e("s_mov_b64 exec, 1")
                    k.e("buffer_store_dword v24, v25, s[20:23], s64 offen sc1")
                    k.e("s_mov_b64 exec, -1")
                ool.append(("L_pubB", pubB, "L_pubBr"))
                put("s_add_u32 s37, s37, 1", q + 2)
            else:
                put("s_add_u32 s37, s37, 1", 1)
            put(f"s_add_u32 s38, s38, {KV_TILE}", 1)
            if par == 1:
                put("s_xor_b32 s53, s53, 65536", pos[0]); put("s_xor_b32 s54, s54, 65536", pos[0])
            put(f"s_add_u32 s39, s39, {KV_TILE}", pos[3] + 1)
        sm = tile_sm(par ^ 1, nqn, (0, 0, 0), False)
        plan = pack(n2 - 1 if tail else n2, vmg, dsl, sm, SPLIT[nqn], n2 - 2 if tail else n2 - 1, False)
        if not nqn: k.hot = False
        emit_phase(sum(grp, []), plan, vmg, scal, None if nqn else p4_setup(opt))
        print(f"iteration {name}: overflow ops {k.overflow - ov0}")
        k.hot = False
    def epilogue(q0, srow):
        k.e(f"s_lshl_b32 s3, s{srow}, 20")
        k.e("s_lshl_b32 s47, s33, 15")
        k.e("s_add_u32 s3, s3, s47")
        k.e("s_lshl_b32 s47, s32, 11")
        k.e("s_add_u32 s3, s3, s47")
        k.e("v_lshlrev_b32 v23, 4, v0")
        for qq in range(2):
            k.e(f"v_rcp_f32 v{21+qq}, v{LS+4*(q0+qq)}")
        for s_ in range(4):
            for qq in range(2):
                o = O(q0 + qq, 2 * s_)
                d = 24 + 4 * qq
                for r in range(8): k.e(f"v_accvgpr_read_b32 v{240+r}, a{o+r}")
                for r in range(8): k.e(f"v_mul_f32 v{240+r}, v{240+r}, v{21+qq}")
                for r in range(4): k.e(f"v_cvt_pk_bf16_f32 v{d+r}, v{240+2*r}, v{240+2*r+1}")
                k.e(f"buffer_store_dwordx4 {V(d,4)}, v23, s[16:19], s3 offen offset:{qq*1024}{opt.get('ctx_st',' sc1')}")
            if s_ < 3: k.e("s_add_u32 s3, s3, 8192")

    for kb in range(2, 4):
        for s in kread(VY, 0, kb): k.e(s, tag=f'k{kb}')
    def first_max(o, qb):
        rowmax(0, qb, 22, o)
        if PKM:
            o.e("v_sub_f32 v22, 0, v22"); o.e("v_mov_b32 v23, v22")
            for r in range(0, 16, 2): o.e(f"v_pk_add_f32 {V(Sr(0,qb,0)+r,2)}, {V(Sr(0,qb,0)+r,2)}, v[22:23]")
            for r in range(4): o.e(f"v_mov_b32 v{NEGM+4*qb+r}, v22")
        else:
            for r in range(16): o.e(f"v_sub_f32 v{Sr(0,qb,0)+r}, v{Sr(0,qb,0)+r}, v22")
            for r in range(4): o.e(f"v_sub_f32 v{NEGM+4*qb+r}, 0, v22")
    c = b2
    c.items += conv_items(2) + conv_items(3)
    for r in list(range(XR(30, 0), XR(30, 0) + 16)) + list(range(XR(31, 0), XR(31, 0) + 16)): c.e(f"v_accvgpr_write_b32 a{r}, 0")
    for r in range(4): c.e(f"v_mov_b32 v{ONES+r}, 0x3f803f80")
    c.e(f"v_mov_b32 v{NINF}, 0xff800000")
    first_max(c, 0); first_max(c, 1)
    for qb in range(4):
        while any(it[0] == 'mark' and it[1] == f'conv{qb}' for it in c.items): c.fill(k, 99, 2)
        for kb in range(4):
            k.wait_ds(f'k{kb}')
            if qb == 3 and kb == 2:
                k.e(f"s_waitcnt vmcnt({min(k.vm_n('c18'), k.vm_n('c17'))})")
                assert k.vm_n('wts') is None
                k.e("s_barrier")
                if WOT:
                    k.e("s_mov_b64 exec, 1")
                    k.e("buffer_store_dword v24, v25, s[20:23], s52 offen sc1")
                    k.e("s_mov_b64 exec, -1")
                k.e("s_add_u32 s53, s44, 65536")
            for s_ in range(4):
                d = V(Sr(0, qb, kb), 4)
                k.e(mfma(d, A(FR(kb, s_), 4), A(Q(qb, s_), 4), d if s_ else "0"))
                if qb == 3 and kb >= 2: k.e(kread(VY, 32768, kb - 2)[s_], tag=f'n{kb-2}')
                c.fill(k, 99, int(opt.get('pslots', 4)))
    c.drain(k)
    k.e(f"s_mov_b32 s38, {4*KV_TILE}")
    k.e(f"s_mov_b32 s39, {3*KV_TILE + KV_CH}")
    k.e("s_mov_b32 s37, -1")
    k.e("s_cmp_lg_u32 s34, 0")
    k.e("s_cbranch_scc1 L_k2_nomask0")
    mask_block(0, 2, VRB)
    k.label("L_k2_nomask0")
    k.e("s_mov_b32 s37, 0")
    first_max(k, 2); first_max(k, 3)
    SM(sm_pairs(0, 4, 0), True, False).drain()
    k.e("s_waitcnt lgkmcnt(4)")
    k.stamp(ST or SA)

    k.label("L_k2_wloop")
    iteration(0, 4, 4, 2, "we", ["s_cmp_eq_u32 s37, s35", "s_cbranch_scc1 L_k2_trans"])
    iteration(1, 4, 4, 2, "wo", ["s_branch L_k2_wloop"])
    k.label("L_k2_trans")
    iteration(1, 4, 2, 0, "tr", [])
    k.stamp(SA)
    if '4' in CPF: emit(code_prefetch("L_k2_fin", "L_p4_end", 32, 56, 160, 164))
    k.e("s_waitcnt vmcnt(9)")
    epilogue(2, 34)
    k.e("s_add_u32 s52, s37, 2")
    k.e("s_waitcnt vmcnt(8)")
    k.stamp(SA)
    k.label("L_k2_nloop")
    nl0 = len(k.lines)
    iteration(0, 2, 2, 0, "ne", ["s_cmp_eq_u32 s37, s36", "s_cbranch_scc1 L_k2_fin"])
    iteration(1, 2, 2, 0, "no", ["s_branch L_k2_nloop"])
    if 'dbg_drop' in opt:
        drop = tuple(opt['dbg_drop'].split(','))
        k.lines[nl0:] = [x for x in k.lines[nl0:] if not x.strip().startswith(drop) and 'vccnz' not in x]
    k.label("L_k2_fin")
    k.stamp(SA)
    if '5' in CPF: emit(code_prefetch("L_k2_fin", "L_p4_end", 32, 56, 160, 164, whole=True))
    iteration(1, 2, 0, 0, "fi", [])
    k.stamp(ST or SA)
    k.e("s_nop 7")
    epilogue(0, 55)
    k.stamp(SA)
    ffn_finish()
    k.stamp(SA)
    k.e("v_mov_b32 v24, 1")
    k.e("v_mul_u32_u24 v25, s65, v0")
    k.e("s_waitcnt vmcnt(0)")
    k.e("s_barrier")
    k.e("s_mov_b64 exec, 3")
    k.e("buffer_store_dword v24, v25, s[20:23], s64 offen sc1")
    k.e("s_mov_b64 exec, -1")
    ffn_store()
    k.stamp(ST or SA)
    phase4(k, opt, ool, ST, SA)
    k.stamp_dump('stamp' in opt, 66, 0, 32)
    if 'hold' in opt:
        k.e("s_lshl_b32 s3, s32, 8")
        k.e("s_or_b32 s3, s2, s3")
        k.e(f"s_cmp_lg_u32 s3, {opt.get('holdwg', 0)}")
        if opt.get('holdwg') != '999': k.e("s_cbranch_scc1 L_k2_end")
        k.label("L_hold")
        k.e("s_memrealtime s[4:5]")
        k.e("s_waitcnt lgkmcnt(0)")
        k.e(f"s_sub_u32 s3, s4, s{73 + 2 * int(opt.get('holdk', 0))}")
        k.e(f"s_cmp_lt_u32 s3, {int(opt['hold']) * 100}")
        k.e("s_cbranch_scc1 L_hold")
    k.label("L_k2_end")
    k.e("s_endpgm")
    hotool = [x for x in ool if x[0].startswith(("L_f2", "L_c3", "L_spinC", "L_yA", "L_yB", "L_yC"))]
    for lab, fn, ret in hotool + [("L_p4_end", None, None)] + [x for x in ool if x not in hotool]:
        k.label(lab)
        if fn is None: continue
        k.win = []; k.dq = []
        fn()
        k.e(f"s_branch {ret}")
    return k.wrap(256, 256), f"; @launch {'kernel=' + KNAME + ' ' if 'aslist' in opt else ''}grid=(256,1,1) block=(256,1,1) lds={K12_LDS}"
```

```python
XN_RB    = 33792
KV_CH    = 17408
KV_TILE  = 2 * KV_CH
KV_HEAD  = 64 * KV_CH + 2048
WS_XN    = 0
WS_KEYS  = 5 << 20
WS_STATS = (5 << 20) + 16384
WS_SEL   = (5 << 20) + 49152
WS_FLG   = (5 << 20) + 53248
WS_CFL   = (5 << 20) + 57344
WS_HFL   = (5 << 20) + 59392
WS_YFL   = (5 << 20) + 61440
WS_WFL   = (5 << 20) + 63488
WS_YP    = (5 << 20) + 65536
WS_HP    = 6 << 20
WS_KV    = 8 << 20
WS_CTX   = 44 << 20
WO_NT    = 128 * 4096 + 1024
WS_WOT   = 72 << 20
```

```python
from fw import *
from layout import *
BIG = 0x7ff00000

def rbf2(k, a, b, t):
    k.e(f"v_cvt_pk_bf16_f32 v{t}, v{a}, v{b}")
    k.e(f"v_lshlrev_b32 v{a}, 16, v{t}")
    k.e(f"v_and_b32 v{b}, 0xffff0000, v{t}")

def silu_n(k, regs, tmps):
    for r, t in zip(regs, tmps): k.e(f"v_mul_f32 v{t}, 0xbfb8aa3b, v{r}")
    for r, t in zip(regs, tmps): k.e(f"v_exp_f32 v{t}, v{t}")
    for r, t in zip(regs, tmps): k.e(f"v_add_f32 v{t}, 1.0, v{t}")
    for r, t in zip(regs, tmps): k.e(f"v_rcp_f32 v{t}, v{t}")
    for r, t in zip(regs, tmps): k.e(f"v_mul_f32 v{r}, v{r}, v{t}")

VC, VW, TA, VO, VROW, G, L7, L3, T1, T2, VZ, VF = 112, 114, 115, 119, 120, 121, 122, 123, 124, 125, 126, 127
GTMP, XP, STT, GT, YB = 2, 18, 34, 42, 80

def srd_rec(b, d, base, nbytes, add=None):
    if add is None:
        b.e(f"s_mov_b32 s{d}, s{base}"); b.e(f"s_and_b32 s{d+1}, s{base+1}, 0xffff")
    else:
        b.blk([f"s_add_u32 s{d}, s{base}, {add}", f"s_addc_u32 s{d+1}, s{base+1}, 0", f"s_and_b32 s{d+1}, s{d+1}, 0xffff"])
    b.e(f"s_mov_b32 s{d+2}, {nbytes}"); b.e(f"s_mov_b32 s{d+3}, 0x20000")

def p4_ptr_loads():
    return ["s_load_dwordx2 s[94:95], s[0:1], 40", "s_load_dwordx2 s[40:41], s[0:1], 0", "s_load_dwordx4 s[8:11], s[0:1], 80"]

def p4_setup(opt):
    b = Rec()
    srd_rec(b, 60, 8, 7340032)
    srd_rec(b, 68, 10, 4194304)
    srd_rec(b, 56, 40, 4194304)
    b.e("s_bfe_u32 s6, s2, 0x20001")
    b.e("s_lshr_b32 s7, s34, 1")
    b.e("s_lshl_b32 s45, s7, 2")
    b.e("s_add_u32 s46, s45, s6")
    b.e("s_sub_u32 s46, 15, s46")
    b.e("s_sub_u32 s45, 12, s45")
    b.e("s_add_u32 s45, s45, s6")
    b.blk(["s_cmp_lt_u32 s7, 2", "s_cselect_b32 s45, s46, s45"])
    b.e("s_and_b32 s46, s2, 1")
    b.e("s_lshl_b32 s46, s46, 3")
    b.e("s_bfe_u32 s6, s2, 0x30003")
    b.e("s_add_u32 s46, s46, s6")
    for j in range(4): b.e(f"s_mov_b32 s{48+j}, {j*15360}")
    b.e("s_lshl_b32 s35, s32, 15")
    b.e("s_lshl_b32 s6, s45, 20")
    b.e("s_lshl_b32 s7, s32, 18")
    b.e("s_add_u32 s6, s6, s7")
    b.e(f"s_add_u32 s6, s6, {WS_CTX}")
    srd_rec(b, 8, 66, 262144, "s6")
    b.e("s_lshl_b32 s7, s46, 7")
    WOT = opt.get('wot', '0') == '1'
    if WOT:
        b.e(f"s_mul_i32 s6, s46, {WO_NT}")
        b.e("s_lshl_b32 s36, s32, 17")
        b.e("s_add_u32 s6, s6, s36")
        b.e(f"s_add_u32 s6, s6, {WS_WOT}")
        srd_rec(b, 12, 66, 131072, "s6")
        b.e("s_mov_b32 s94, 0")
    else:
        b.e("s_lshl_b32 s6, s32, 21")
        b.e("s_add_u32 s6, s6, s7")
        srd_rec(b, 12, 94, 0, "s6")
        b.e("s_sub_u32 s14, 2097152, s7")
        srd_rec(b, 28, 94, 8388608)
    b.e("s_lshl_b32 s36, s45, 18")
    b.e("s_add_u32 s36, s36, s7")
    b.e("s_mov_b32 s52, 0")
    b.e("s_lshl_b32 s38, s45, 7")
    b.e("s_lshl_b32 s6, s32, 5")
    b.e("s_add_u32 s38, s38, s6")
    b.e(f"s_add_u32 s38, s38, {WS_CFL}")
    b.e(f"v_lshlrev_b32 v{VC}, 4, v0")
    b.e(f"v_add_u32 v{VC+1}, 4096, v{VC}")
    b.e(f"v_lshrrev_b32 v{G}, 4, v0")
    b.e(f"v_and_b32 v{L7}, 7, v0")
    b.e(f"v_lshrrev_b32 v{L3}, 3, v0")
    b.e(f"v_lshlrev_b32 v{T1}, 1, v{G}")
    b.e(f"v_xor_b32 v{T1}, v{T1}, v{L7}")
    b.e(f"v_lshlrev_b32 v{T1}, 4, v{T1}")
    b.e(f"v_lshl_add_u32 v{VW}, v{L3}, 11, v{T1}")
    b.e(f"v_lshrrev_b32 v{T1}, 2, v0")
    b.e(f"v_bfe_u32 v{VZ}, v0, 3, 2")
    b.e(f"v_lshlrev_b32 v{T1}, 7, v{T1}")
    b.e(f"v_and_b32 v{T2}, 3, v0")
    b.e(f"v_lshl_add_u32 v{T1}, v{T2}, 3, v{T1}")
    b.e(f"v_add_u32 v{T1}, s35, v{T1}")
    for cb in range(4):
        b.e(f"v_xor_b32 v{T2}, {cb}, v{VZ}")
        b.e(f"v_lshl_add_u32 v{TA+cb}, v{T2}, 5, v{T1}")
    b.e("s_lshl_b32 s6, s32, 3")
    b.e(f"v_add_u32 v{VROW}, s6, v{L3}")
    b.e(f"v_lshlrev_b32 v{VO}, 11, v{VROW}")
    b.e(f"v_lshl_add_u32 v{VO}, v{L7}, 4, v{VO}")
    b.e(f"v_mov_b32 v{VZ}, 0")
    b.e(f"v_lshlrev_b32 v{VF}, 2, v{L7}")
    if not WOT: return b
    b.e("s_and_b32 s95, s2, 1")
    b.e("s_lshl_b32 s95, s95, 2")
    b.e("s_add_u32 s95, s95, s32")
    b.e("s_lshl_b32 s95, s95, 7")
    b.e(f"s_add_u32 s95, s95, {WS_WFL}")
    b.e(f"v_and_b32 v{T2}, 31, v0")
    b.e(f"v_lshlrev_b32 v{T2}, 2, v{T2}")
    b.e(f"buffer_load_dword v{T1}, v{T2}, s[20:23], s95 offen sc1")
    return b

def phase4(k, opt, ool, ST, SA):
    ACC = lambda rb, cb: 128 + (rb * 4 + cb) * 4
    CF = lambda n, rb: (n % 4) * 32 + rb * 4
    WOT = opt.get('wot', '0') == '1'
    WD_ = 3 if WOT else 4
    WF = lambda n, cb: 128 + (n % 4) * 16 + cb * 4
    def w_ops(n):
        if n >= 32: return []
        if not WOT:
            return ([('s', f"s_add_u32 m0, s35, {(n % 4)*4096}")] +
                    [('g', f"buffer_load_dwordx4 v{VW}, s[12:15], s{48+j} offen offset:{j*1024} lds") for j in range(4)] +
                    [('v', f"v_add_u32 v{VW}, 65536, v{VW}")])
        return ([('g', f"buffer_load_dwordx4 {A(WF(n,cb),4)}, v{VC}, s[12:15], s94 offen offset:{cb*1024} sc1") for cb in range(4)] +
                [('s', "s_add_u32 s94, s94, 4096")])
    def c_ops(n):
        if n >= 32: return []
        return ([('g', f"buffer_load_dwordx4 {A(CF(n,rb),4)}, v{VC + (rb >> 2)}, s[8:11], s52 offen offset:{(rb & 3)*1024}{opt.get('ctx_ld', ' sc1')}") for rb in range(8)] +
                [('s', "s_add_u32 s52, s52, 8192")])
    def wreads(n):
        return [[f"ds_read_b64_tr_b16 {A(WF(n,cb)+2*rd,2)}, v{TA+cb} offset:{(n % 4)*4096 + rd*2048}" for rd in range(2)] for cb in range(4)]
    def col3(part, nparts):
        rows = 64 // nparts
        k.e("s_bfe_u32 s3, s2, 0x40003")
        k.e(f"s_mul_i32 s3, s3, {rows * 2048}")
        k.e("s_lshl_b32 s7, s32, 21")
        k.e("s_add_u32 s3, s3, s7")
        k.e("s_and_b32 s7, s2, 1")
        k.e("s_lshl_b32 s7, s7, 10")
        k.e("s_add_u32 s3, s3, s7")
        k.e(f"s_add_u32 s3, s3, {384 + part * (1024 // nparts) * 2048}")
        k.e(f"v_and_b32 v11, {rows - 1}, v0")
        k.e("v_lshlrev_b32 v11, 11, v11")
        k.e("buffer_load_dword v17, v11, s[28:31], s3 offen")
    def gates(o, p, ysrc=None):
        g0 = GT + 8 * p
        for d in range(4):
            o.e(f"v_lshlrev_b32 v{g0+2*d}, 16, v{XP+4*p+d}")
            o.e(f"v_and_b32 v{g0+2*d+1}, 0xffff0000, v{XP+4*p+d}")
        for e_ in range(8): o.e(f"v_sub_f32 v{g0+e_}, v{g0+e_}, v{STT+2*p}")
        for d in range(4): rbf2(o, g0 + 2*d, g0 + 2*d + 1, GTMP + d)
        for e_ in range(8): o.e(f"v_mul_f32 v{g0+e_}, v{g0+e_}, v{STT+2*p+1}")
        for d in range(4): rbf2(o, g0 + 2*d, g0 + 2*d + 1, GTMP + d)
        if ysrc is not None:
            for e_ in range(8): o.e(f"v_add_f32 v{g0+e_}, v{g0+e_}, v{ysrc+e_}")
            for d in range(4): rbf2(o, g0 + 2*d, g0 + 2*d + 1, GTMP + d)
        silu_n(o, [g0 + e_ for e_ in range(8)], [GTMP + e_ for e_ in range(8)])
        for d in range(4): rbf2(o, g0 + 2*d, g0 + 2*d + 1, GTMP + d)

    C3 = int(opt.get('c3', 2))
    if WOT:
        k.e(f"v_cmp_ne_u32 vcc, 1, v{T1}")
        k.e("s_cbranch_vccnz L_spinW")
        k.label("L_spinWr")
        ool.append(("L_spinW", lambda: poll_loop("L_spinWl", "s95", T2, T1), "L_spinWr"))
    elif C3:
        k.e("s_cmp_lt_u32 s2, 128")
        k.e("s_cbranch_scc1 L_noc3")
        col3(0, C3)
        k.vq.pop()
        k.label("L_noc3")
    k.e(f"buffer_load_dword v{T1}, v{VF}, s[20:23], s38 offen sc1", tag='cp')
    for n in range(WD_):
        for t, s in w_ops(n): k.e(s, tag=f'w{n}')
    k.e("s_and_b32 s39, s2, 15")
    k.e("s_lshr_b32 s37, s2, 4")
    k.e("s_sub_u32 s37, s37, 2")
    k.e("s_lshl_b32 s54, s37, 2")
    k.e("s_add_u32 s54, s54, s32")
    k.e("s_lshl_b32 s3, s54, 17")
    k.e("s_lshl_b32 s7, s39, 7")
    k.e("s_add_u32 s3, s3, s7")
    k.e("s_cmp_ge_u32 s2, 32")
    k.e(f"s_cselect_b32 s3, s3, {BIG}")
    k.e(f"v_and_b32 v{T2}, 0xffff, v{VW}")
    k.e(f"v_add_u32 v{T2}, s3, v{T2}")
    for q in range(2):
        k.e(f"s_add_u32 m0, s35, {16384 + q*4096}")
        for j in range(4):
            k.e(f"buffer_load_dwordx4 v{T2}, s[60:63], s{48+j} offen offset:{j*1024} lds")
        if q == 0: k.e(f"v_add_u32 v{T2}, 65536, v{T2}")
    k.wait_vm('cp')
    k.e(f"v_cmp_ne_u32 vcc, 1, v{T1}")
    k.e("s_cbranch_vccnz L_spinC")
    k.label("L_spinCr")
    def spinC():
        k.e("s_mov_b32 s47, 0x400000")
        k.label("L_spinC_l")
        k.e(f"s_sleep {opt.get('slpc', 4)}")
        k.e(f"buffer_load_dword v{T1}, v{VF}, s[20:23], s38 offen sc1")
        k.e("s_sub_u32 s47, s47, 1")
        k.e("s_cmp_eq_u32 s47, 0")
        k.e("s_cbranch_scc1 L_spinCx")
        k.e("s_waitcnt vmcnt(0)")
        k.e(f"v_cmp_ne_u32 vcc, 1, v{T1}")
        k.e("s_cbranch_vccnz L_spinC_l")
        k.label("L_spinCx")
        k.e("s_waitcnt vmcnt(0)")
    ool.append(("L_spinC", spinC, "L_spinCr"))
    k.stamp(ST or SA)
    for n in range(3):
        for t, s in c_ops(n): k.e(s, tag=f'c{n}')

    b = Rec()
    b.e(f"v_mov_b32 v{T2}, 1")
    b.e("s_lshl_b32 s6, s4, 3")
    b.e("s_add_u32 s6, s6, s92")
    b.e("s_lshl_b32 s6, s6, 2")
    b.e(f"s_add_u32 s6, s6, {WS_HFL}")
    b.blk(["s_cmp_eq_u32 s32, 0", "s_cselect_b32 s6, s6, s64", "s_cmp_lg_u32 s34, 0", f"s_cselect_b32 s6, s6, {BIG}"])
    b.check_clear('hps')
    b.e("s_barrier")
    b.blk(["s_mov_b64 exec, 1", f"buffer_store_dword v{T2}, v{VZ}, s[20:23], s6 offen sc1", "s_mov_b64 exec, -1"])
    b.at(1)
    b.e("s_mov_b32 s3, s36")
    for p in range(4):
        b.e(f"buffer_load_dwordx4 {V(XP+4*p,4)}, v{VO}, s[56:59], s3 offen", tag='x')
        if p < 3: b.e("s_add_u32 s3, s3, 65536")
    b.e("s_lshl_b32 s3, s45, 10")
    b.e(f"s_add_u32 s3, s3, {WS_STATS}")
    b.e(f"v_lshlrev_b32 v{T1}, 3, v{VROW}")
    for p in range(4):
        b.e(f"buffer_load_dwordx2 {V(STT+2*p,2)}, v{T1}, s[20:23], s3 offen offset:{p*256} sc1", tag='x')
    F2 = float(opt.get('f2', 3))
    b.e("s_lshl_b32 s40, s45, 7")
    b.e("s_lshl_b32 s3, s32, 3")
    b.e("s_or_b32 s40, s40, s3")
    b.blk(["s_and_b32 s3, s42, 0x798", "s_and_b32 s47, s43, 0x798", "s_cmp_eq_u32 s3, s40", "s_cselect_b32 s53, 1, 0",
           "s_cmp_eq_u32 s47, s40", "s_cselect_b32 s53, 1, s53", "s_mov_b32 s40, 0"])
    b.e("s_lshl_b32 s41, s46, 7")
    b.e(f"s_add_u32 s41, s41, {WS_YFL}")
    b.e("s_lshl_b32 s44, s46, 13")
    b.e(f"s_add_u32 s44, s44, {WS_YP}")
    b0 = Rec()
    for st_, dt in (("A", 0.4), ("B", 3.4), ("C", 6.4), ("E", 9.6)):
        b0.at(F2 + dt)
        b0.blk(["s_cmp_ge_u32 s2, 32", f"s_cbranch_scc1 L_f2{st_}", f"L_f2{st_}r:"])
    if not WOT:
        for q in range(1, C3):
            it = Rec(); it.at(q * 32 / C3 - float(opt.get('c3a', 6)))
            it.blk(["s_cmp_ge_u32 s2, 128", f"s_cbranch_scc1 L_c3{q}", f"L_c3{q}r:"])
            ool.append((f"L_c3{q}", lambda q=q: col3(q, C3), f"L_c3{q}r"))
            b0.items += it.items
        prs = sorted([(b0.items[i][1], b0.items[i], b0.items[i + 1]) for i in range(0, len(b0.items), 2)], key=lambda x: x[0])
        b0.items = [x for pr in prs for x in pr[1:]]
    b.at(4.1)
    b.wait_vm('x')
    for p in range(4): gates(b, p)
    PS = float(opt.get('k3_poll', 22))
    b.at(PS)
    b.blk(["s_cmp_lg_u32 s53, 0", "s_cbranch_scc1 L_yA", "L_yAr:"])
    b.at(PS + 3.2)
    b.blk(["s_cmp_lg_u32 s53, 0", "s_cbranch_scc1 L_yB", "L_yBr:"])
    b.at(PS + 6.4)
    b.blk(["s_cmp_lg_u32 s40, 0", "s_cbranch_scc1 L_yC", "L_yCr:"])

    if not WOT:
        k.wait_vm('w0')
        for grp in wreads(0):
            for s in grp: k.e(s)
    BS = int(opt.get('k3_bs', 2))
    for n in range(32):
        g = {}; gt = {}
        if WOT: k.wait_vm(f'c{n}')
        else:
            w = [x for x in (k.vm_n(f'c{n}'), k.vm_n(f'w{n+1}')) if x is not None]
            k.e("s_waitcnt " + (f"vmcnt({min(w)}) " if w else "") + "lgkmcnt(0)")
            if n < 31:
                for j, grp in enumerate(wreads(n + 1)): g[2 + 5 * j] = list(grp)
        vpos = [1, 3, 6, 8, 11, 13, 16, 18, 21, 23, 26, 28]
        vi = 0
        for t, s, tg in [(t, s, f'w{n+WD_}') for t, s in w_ops(n + WD_)] + [(t, s, f'c{n+3}') for t, s in c_ops(n + 3)]:
            if t == 'g': g[vpos[vi]] = [s]; gt[vpos[vi]] = tg; vi += 1
            elif vi == 0: g.setdefault(0, []).append(s)
            else: g.setdefault(vpos[vi - 1] + 1, []).append(s)
        m = 0
        for rb in range(8):
            for cb in range(4):
                k.e(mfma(V(ACC(rb, cb), 4), A(WF(n, cb), 4), A(CF(n, rb), 4), V(ACC(rb, cb), 4) if n else "0"))
                if m in g:
                    for s in g[m]: k.e(s, tag=gt.get(m))
                else:
                    nl = len(k.lines)
                    b0.fill(k, n + m / 32.0, BS)
                    if len(k.lines) == nl: b.fill(k, n + m / 32.0, BS)
                m += 1
    print("phase4 items left", len(b.items))
    b.drain(k)
    k.stamp(ST)
    k.e(f"v_and_b32 v{T1}, 15, v0")
    k.e(f"v_lshlrev_b32 v10, 8, v{T1}")
    k.e("v_add_u32 v10, s35, v10")
    k.e(f"v_xor_b32 v{T1}, v{T1}, v{G}")
    for cb in range(4):
        k.e(f"v_xor_b32 v{T2}, {4*cb}, v{T1}")
        k.e(f"v_lshl_add_u32 v{TA+cb}, v{T2}, 4, v10")
    for rb in range(8):
        for cb in range(4):
            k.e(f"ds_write_b128 v{TA+cb}, {V(ACC(rb,cb),4)} offset:{rb*4096}")
    k.e("s_cmp_lg_u32 s53, s40")
    k.e("s_cbranch_scc1 L_ysl")
    k.label("L_yslr")
    k.e(f"v_and_b32 v{T1}, 15, v{VROW}")
    k.e(f"v_lshlrev_b32 v{T2}, 1, v{L7}")
    k.e(f"v_xor_b32 v{T1}, v{T1}, v{T2}")
    k.e(f"v_lshlrev_b32 v10, 8, v{VROW}")
    k.e(f"v_lshl_add_u32 v12, v{T1}, 4, v10")
    k.e("v_xor_b32 v13, 16, v12")
    k.e("v_add_u32 v14, 65536, v12")
    k.e("v_add_u32 v15, 65536, v13")
    XU = 80
    for p in range(4):
        for d in range(4):
            k.e(f"v_lshlrev_b32 v{XU+8*p+2*d}, 16, v{XP+4*p+d}")
            k.e(f"v_and_b32 v{XU+8*p+2*d+1}, 0xffff0000, v{XP+4*p+d}")
    k.e("s_waitcnt lgkmcnt(0)")
    k.e("s_barrier")
    def rd(p):
        b_ = 128 + 32 * p
        for w in range(4):
            for h in range(2):
                k.e(f"ds_read_b128 {V(b_ + 8*w + 4*h, 4)}, v{12 + h + 2*(w >> 1)} offset:{(w & 1)*32768 + p*8192}", tag=f'r{p}')
    rd(0)
    for p in range(4):
        b_ = 128 + 32 * p
        k.wait_ds(f'r{p}')
        if p < 3: rd(p + 1)
        for e_ in range(0, 8, 2):
            k.e(f"v_pk_add_f32 {V(b_+e_,2)}, {V(b_+e_,2)}, {V(b_+8+e_,2)}")
            k.e(f"v_pk_add_f32 {V(b_+16+e_,2)}, {V(b_+16+e_,2)}, {V(b_+24+e_,2)}")
        for e_ in range(0, 8, 2): k.e(f"v_pk_add_f32 {V(b_+e_,2)}, {V(b_+e_,2)}, {V(b_+16+e_,2)}")
        for d in range(4): rbf2(k, b_ + 2*d, b_ + 2*d + 1, b_ + 8 + d)
        for e_ in range(0, 8, 2): k.e(f"v_pk_mul_f32 {V(b_+e_,2)}, {V(b_+e_,2)}, {V(GT+8*p+e_,2)}")
        for d in range(4): rbf2(k, b_ + 2*d, b_ + 2*d + 1, b_ + 8 + d)
        for e_ in range(0, 8, 2): k.e(f"v_pk_add_f32 {V(b_+e_,2)}, {V(b_+e_,2)}, {V(XU+8*p+e_,2)}")
        for d in range(4): k.e(f"v_cvt_pk_bf16_f32 v{b_+8+d}, v{b_+2*d}, v{b_+2*d+1}")
        k.e(f"buffer_store_dwordx4 {V(b_+8,4)}, v{VO}, s[68:71], s36 offen{opt.get('out_st', ' sc1')}")
        if p < 3: k.e("s_add_u32 s36, s36, 65536")
    k.stamp(ST or SA)

    def poll_loop(lab, off, vo, vd):
        k.e("s_mov_b32 s47, 0x400000")
        k.label(lab)
        k.e(f"buffer_load_dword v{vd}, v{vo}, s[20:23], {off} offen sc1")
        k.e("s_sub_u32 s47, s47, 1")
        k.e("s_waitcnt vmcnt(0)")
        k.e("s_cmp_eq_u32 s47, 0")
        k.e(f"s_cbranch_scc1 {lab}x")
        k.e(f"v_cmp_ne_u32 vcc, 1, v{vd}")
        k.e(f"s_cbranch_vccz {lab}x")
        k.e("s_sleep 8")
        k.e(f"s_branch {lab}")
        k.label(lab + "x")
    H0 = 74
    def f2A():
        k.e("s_lshr_b32 s5, s54, 1")
        k.e("s_lshl_b32 s5, s5, 5")
        k.e(f"s_add_u32 s5, s5, {WS_HFL}")
        k.e(f"buffer_load_dword v{T2}, v{VF}, s[20:23], s5 offen sc1")
    def f2B():
        k.e("s_waitcnt vmcnt(24)")
        k.e(f"v_cmp_ne_u32 vcc, 1, v{T2}")
        k.e("s_cbranch_vccz L_f2lx")
        poll_loop("L_f2l", "s5", VF, T2)
        k.e("s_lshl_b32 s3, s54, 8")
        k.e(f"s_add_u32 s3, s3, {WS_HP}")
        k.e(f"v_mul_u32_u24 v{T1}, 14336, v{G}")
        k.e(f"v_and_b32 v{T2}, 15, v0")
        k.e(f"v_lshl_add_u32 v{T1}, v{T2}, 4, v{T1}")
        for j in range(8):
            k.e(f"buffer_load_dwordx4 {V(H0 + 4*j, 4)}, v{T1}, s[20:23], s3 offen sc1")
            if j < 7: k.e(f"s_add_u32 s3, s3, {4*14336}")
    def f2C():
        k.e("s_waitcnt vmcnt(24) lgkmcnt(0)")
        for q in range(2):
            for cb in range(4):
                for rd in range(2):
                    k.e(f"ds_read_b64_tr_b16 {A(192 + 16*q + 4*cb + 2*rd, 2)}, v{TA+cb} offset:{16384 + q*4096 + rd*2048}")
            for j in range(4 * q, 4 * q + 4):
                if j:
                    for r in range(0, 4, 2): k.e(f"v_pk_add_f32 {V(H0+r,2)}, {V(H0+r,2)}, {V(H0+4*j+r,2)}")
        for r in range(0, 4, 2): rbf2(k, H0 + r, H0 + r + 1, T2)
        for r in range(4): k.e(f"v_mov_b32 v{82+r}, v{H0+r}")
        for r in range(4): k.e(f"v_permlane32_swap_b32 v{82+r}, v{H0+r}")
        silu_n(k, [82 + r for r in range(4)], [90 + r for r in range(4)])
        for r in range(0, 4, 2): rbf2(k, 82 + r, 83 + r, T2)
        for r in range(4): k.e(f"v_mul_f32 v{H0+r}, v{H0+r}, v{82+r}")
        for r in range(2): k.e(f"v_cvt_pk_bf16_f32 v{90+r}, v{H0+2*r}, v{H0+2*r+1}")
        k.e("s_lshl_b32 s7, s32, 9")
        k.e("s_add_u32 s7, s7, 131072")
        k.e(f"v_and_b32 v{T1}, 1, v{G}")
        k.e(f"v_lshlrev_b32 v{T1}, 8, v{T1}")
        k.e(f"v_and_b32 v{T2}, 15, v0")
        k.e(f"v_lshl_add_u32 v{T1}, v{T2}, 3, v{T1}")
        k.e(f"v_add_u32 v{T1}, s7, v{T1}")
        k.e(f"ds_write_b64 v{T1}, v[90:91]")
        k.e(f"v_and_b32 v{T1}, 1, v0")
        k.e(f"v_lshlrev_b32 v{T1}, 8, v{T1}")
        k.e(f"v_lshl_add_u32 v94, v{G}, 3, v{T1}")
        k.e("v_add_u32 v94, s7, v94")
        for q in range(2):
            for rd in range(2):
                k.e(f"ds_read_b64 {V(H0 + 4*q + 2*rd, 2)}, v94 offset:{q*64 + rd*32}")
        k.e(f"v_lshl_add_u32 v{T1}, v{G}, 4, v{T1}")
        k.e(f"v_add_u32 v{T1}, s7, v{T1}")
        k.e("s_waitcnt lgkmcnt(0)")
        for q in range(2):
            for cb in range(4):
                d = V(96 + 4 * cb, 4)
                k.e(mfma(d, A(192 + 16*q + 4*cb, 4), V(H0 + 4*q, 4), d if q else "0"))
        for cb in range(4):
            k.e(f"ds_write_b128 v{T1}, {V(96+4*cb,4)} offset:{2048 + cb*64}")
        k.e("s_waitcnt lgkmcnt(0)")
        k.e("s_barrier")
        k.e("s_cmp_lg_u32 s32, 0")
        k.e("s_cbranch_scc1 L_f2Cr")
        k.e(f"v_lshlrev_b32 v{T1}, 3, v0")
        k.e(f"v_add_u32 v{T2}, {131072 + 2048}, v{T1}")
        for w in range(4): k.e(f"ds_read_b64 {V(74+2*w,2)}, v{T2} offset:{w*512}")
        k.e("s_lshl_b32 s3, s39, 4")
        k.e("s_add_u32 s3, s3, s37")
        k.e("s_lshl_b32 s3, s3, 9")
        k.e(f"s_add_u32 s3, s3, {WS_YP}")
        k.e("s_waitcnt lgkmcnt(0)")
        k.e("v_pk_add_f32 v[74:75], v[74:75], v[76:77]")
        k.e("v_pk_add_f32 v[78:79], v[78:79], v[80:81]")
        k.e("v_pk_add_f32 v[74:75], v[74:75], v[78:79]")
        k.e(f"buffer_store_dwordx2 v[74:75], v{T1}, s[20:23], s3 offen sc1")
    def f2E():
        k.e("s_cmp_lg_u32 s32, 0")
        k.e("s_cbranch_scc1 L_f2Er")
        k.e(f"v_mov_b32 v{T2}, 1")
        k.e("s_lshl_b32 s3, s39, 5")
        k.e("s_add_u32 s3, s3, s37")
        k.e("s_lshl_b32 s3, s3, 2")
        k.e(f"s_add_u32 s3, s3, {WS_YFL}")
        k.e("s_waitcnt vmcnt(24)")
        k.e("s_mov_b64 exec, 1")
        k.e(f"buffer_store_dword v{T2}, v{VZ}, s[20:23], s3 offen sc1")
        k.e("s_mov_b64 exec, -1")
    for nm, fn in (("A", f2A), ("B", f2B), ("C", f2C), ("E", f2E)): ool.append((f"L_f2{nm}", fn, f"L_f2{nm}r"))
    def yloads():
        k.e(f"v_lshlrev_b32 v{T2}, 10, v{L3}")
        k.e(f"v_lshl_add_u32 v{T2}, v{L7}, 5, v{T2}")
        k.e(f"v_mov_b32 v{T1}, {BIG}")
        k.e(f"v_cmp_gt_u32 vcc, 7, v{L3}")
        k.e(f"v_cndmask_b32 v{T2}, v{T1}, v{T2}, vcc")
        for q in range(2):
            for t in range(2):
                for h in range(2):
                    k.e(f"buffer_load_dwordx4 {V(YB + 16*q + 8*t + 4*h, 4)}, v{T2}, s[20:23], s44 offen offset:{q*512 + t*256 + h*16} sc1")
    def selblock():
        for j in range(0, 16, 2): k.e(f"v_pk_add_f32 {V(YB+j,2)}, {V(YB+j,2)}, {V(YB+16+j,2)}")
        for j in range(16): k.e(f"v_add_f32_dpp v{YB+j}, v{YB+j}, v{YB+j} row_ror:8 row_mask:0xf bank_mask:0xf")
        for sw in ("v_permlane16_swap_b32", "v_permlane32_swap_b32"):
            for j in range(16): k.e(f"v_mov_b32 v{YB+16+j}, v{YB+j}")
            for j in range(16): k.e(f"{sw} v{YB+16+j}, v{YB+j}")
            for j in range(16): k.e(f"v_add_f32 v{YB+j}, v{YB+j}, v{YB+16+j}")
        for d in range(8): rbf2(k, YB + 2*d, YB + 2*d + 1, T1)
        for t in range(2):
            for e_ in range(8): k.e(f"v_mul_f32 v{YB+8*t+e_}, s{100+t}, v{YB+8*t+e_}")
        for d in range(8): rbf2(k, YB + 2*d, YB + 2*d + 1, T1)
        k.e("s_lshl_b32 s3, s45, 7")
        k.e("s_sub_u32 s42, s42, s3")
        k.e("s_sub_u32 s43, s43, s3")
        for p in range(4):
            L = k.newlabel("selskip")
            k.e(f"v_add_u32 v{T1}, {32*p}, v{VROW}")
            k.e(f"v_cmp_eq_u32 vcc, s42, v{T1}")
            k.e(f"v_cmp_eq_u32 s[6:7], s43, v{T1}")
            k.e("s_nop 3")
            k.e("s_or_b64 s[4:5], vcc, s[6:7]")
            k.e(f"s_cbranch_scc0 {L}")
            for e_ in range(8):
                k.e(f"v_cndmask_b32 v{YB+16+e_}, 0, v{YB+e_}, vcc")
                k.e(f"v_cndmask_b32 v{YB+16+e_}, v{YB+16+e_}, v{YB+8+e_}, s[6:7]")
            gates(k, p, YB + 16)
            k.label(L)
    def yA():
        k.e(f"v_min_u32 v{VF}, 13, v0")
        k.e(f"v_lshlrev_b32 v{VF}, 2, v{VF}")
        k.e(f"buffer_load_dword v{T1}, v{VF}, s[20:23], s41 offen sc1")
    def yB():
        k.e("s_waitcnt vmcnt(24)")
        k.e(f"v_cmp_ne_u32 vcc, 1, v{T1}")
        k.e("s_cbranch_vccnz L_yBr")
        k.e("s_mov_b32 s40, 1")
        yloads()
    def yC():
        k.e("s_waitcnt vmcnt(8)")
        selblock()
    def ysl():
        poll_loop("L_ysll", "s41", VF, T1)
        yloads()
        k.e("s_waitcnt vmcnt(0)")
        selblock()
    ool.append(("L_yA", yA, "L_yAr")); ool.append(("L_yB", yB, "L_yBr")); ool.append(("L_yC", yC, "L_yCr")); ool.append(("L_ysl", ysl, "L_yslr"))
```

```python
from fw import *
from layout import *
from p4 import p4_ptr_loads, p4_setup, phase4
KNAME = 'recurrent_scan__compressed_kv_cla__moe_arch_mod__prompt_kernel'

K12_LDS = 148480
QSCALE = 0x3e0293ee
BIG = 0x7ff00000

def gen_k12(opt):
    k = Asm(KNAME)
    k.short = "f"
    ST = opt.get('stamp') == '1'
    S1 = opt.get('stamp') == 'p1'
    S2 = opt.get('stamp') == 'p2'
    SA = opt.get('stamp') == 'a'
    w_ld, a_ld, x_ld = opt.get('w_ld', ' nt'), opt.get('a_ld', ''), opt.get('x_ld', ' nt')
    wq_ld, kv_ld, ffn_ld = opt.get('wq_ld', ''), opt.get('kv_ld', ' sc1'), opt.get('ffn_ld', '')
    MAP = int(opt.get('map', 4))
    WOT = opt.get('wot', '0') == '1'
    VOA, VOW, AD, PFO = 2, 6, 10, 47
    FA = lambda ks, i: 64 * ks + 4 * i
    FW = lambda ks, j: 64 * ks + 32 + 4 * j
    def frag_of(isV, it, jd):
        return ((it >> 2) * 16 + jd * 2 + ((it >> 1) & 1), it & 1) if isV else (it * 4 + (jd >> 1), jd & 1)
    SRC = lambda n: ('v', 48 + 8 * n) if n < 26 else ('a', 128 + 8 * (n - 26))
    def acc(isV, it, jd):
        n, h = frag_of(isV, it, jd)
        p, r = SRC(n)
        return R(p, r + 4 * h, 4)
    PK = lambda n: 24 + 4 * (n if n < 26 else n - 26)
    VX, VY, VDMA, VRA, VRB, ORR, T0 = 2, 3, 4, 5, 6, 7, 1
    WV, XV, TA = 8, 10, 16
    ET = 8
    ONES, NINF = 16, 20
    NEGM, LS, PB, SB = 32, 48, 64, 128
    P = lambda par, qb, ks: PB + 32 * par + (qb * 2 + ks) * 4
    Sr = lambda par, qb, kb: SB + 64 * par + (qb * 4 + kb) * 4
    O = lambda qb, db: (qb * 8 + db) * 4
    Q = lambda qb, s: 128 + (qb * 4 + s) * 4
    FR = lambda grp, j: 192 + 16 * grp + 4 * j
    QA = lambda db, qb: 128 + (qb * 8 + db) * 4
    XR = lambda kk, qb: ((kk % 8) * 4 + qb) * 4
    WF = lambda kk, db: 192 + (kk & 1) * 32 + db * 4

    k.e("s_cmp_ge_u32 s2, 256")
    k.e("s_cbranch_scc1 L_k2_end")
    k.stamp(ST)
    k.e("s_load_dwordx4 s[4:7], s[0:1], 0")
    k.e("s_load_dwordx2 s[44:45], s[0:1], 56")
    k.e("s_load_dwordx4 s[40:43], s[0:1], 24")
    k.e("s_load_dwordx4 s[64:67], s[0:1], 96")
    k.e("v_lshrrev_b32 v1, 6, v0")
    k.e("v_and_b32 v0, 63, v0")
    k.e("v_readfirstlane_b32 s32, v1")
    k.e("v_lshrrev_b32 v33, 5, v0")
    k.e("v_and_b32 v31, 31, v0")
    k.e("v_lshlrev_b32 v36, 4, v31")
    k.e("v_lshl_add_u32 v35, v33, 11, v36")
    k.e("s_lshl_b32 s36, s2, 14")
    k.e("s_lshl_b32 s37, s32, 12")
    k.e("s_add_u32 s36, s36, s37")
    k.e("s_lshr_b32 s3, s2, 3")
    k.e("s_and_b32 s33, s3, 7")
    k.e("s_lshr_b32 s3, s3, 3")
    k.e("s_lshr_b32 s35, s3, 1")
    k.e("s_and_b32 s3, s3, 1")
    k.e("s_and_b32 s34, s2, 7")
    k.e("s_lshl_b32 s34, s34, 1")
    k.e("s_add_u32 s34, s34, s3")
    for j in range(4):
        k.e(f"s_mov_b32 s{48+j}, {j*7168}")
        k.e(f"s_mov_b32 s{52+j}, {j*15360}")
    k.e("s_lshl_b32 s56, s32, 13")
    k.e("s_add_u32 s57, s56, 32768")
    k.e("s_lshl_b32 s3, s32, 4")
    k.e("v_add_u32 v30, s3, v33")
    k.e("v_lshlrev_b32 v30, 13, v30")
    k.e("v_lshlrev_b32 v34, 1, v33")
    k.e("v_xor_b32 v31, v31, v34")
    for hi in range(2):
        for par in range(2):
            k.e(f"v_xor_b32 v34, {(2*par + 4*hi) << 1}, v31")
            k.e(f"v_lshl_add_u32 v{VOW + par + 2*hi}, v34, 4, v30")
            if hi: k.e(f"v_add_u32 v{VOW + par + 2*hi}, {8*8192}, v{VOW + par + 2*hi}")
    k.e("v_lshrrev_b32 v30, 3, v0")
    k.e("s_lshl_b32 s3, s32, 6")
    k.e("v_add_u32 v30, s3, v30")
    k.e("v_lshlrev_b32 v30, 10, v30")
    k.e("v_and_b32 v31, 7, v0")
    k.e("v_lshrrev_b32 v32, 4, v0")
    k.e("v_xor_b32 v31, v31, v32")
    k.e(f"v_lshl_add_u32 v{VOA}, v31, 4, v30")
    k.e("v_xor_b32 v31, 4, v31")
    k.e(f"v_lshl_add_u32 v{VOA+1}, v31, 4, v30")
    k.e(f"v_add_u32 v{VOA+2}, 32768, v{VOA}")
    k.e(f"v_add_u32 v{VOA+3}, 32768, v{VOA+1}")
    KX = int(opt.get('kx', 7))
    k.e(f"s_and_b32 s58, s2, {KX}")
    k.e("s_lshl_b32 s3, s58, 19")
    for q in range(4): k.e(f"v_xor_b32 v{VOW+q}, s3, v{VOW+q}")
    k.e("s_lshl_b32 s3, s58, 7")
    for q in range(4): k.e(f"v_xor_b32 v{VOA+q}, s3, v{VOA+q}")
    k.e("s_waitcnt lgkmcnt(0)")
    k.srd(16, 4, 4194304)
    XP, WR, XF = 48, 64, 80
    for i in range(4):
        k.e(f"buffer_load_dwordx4 {V(XP+4*i,4)}, v35, s[16:19], s36 offen offset:{i*512}{x_ld}", tag='x')
    def emit(lst, o=None):
        for x in lst:
            if x.endswith(':'): k.label(x[:-1])
            else: k.e(x, tag='cpf')
    CPF = opt.get('cpf', '12345')
    if '1' in CPF: emit(code_prefetch(KNAME, "L_k2_fin", 32, 68, 120, 124))
    MW = opt.get('mw', '')
    if 'c' in MW:
        k.srd(68, 6, 2097152)
        k.e("v_and_b32 v120, 15, v0")
        k.e("v_lshlrev_b32 v120, 7, v120")
        k.e("s_lshr_b32 s3, s36, 1")
        k.e("buffer_load_dword v125, v120, s[68:71], s3 offen", tag='cpf')
    k.e("s_cmp_eq_u32 s35, 0")
    k.e("s_cselect_b32 s40, s40, s42")
    k.e("s_cselect_b32 s41, s41, s43")
    k.e("s_lshl_b32 s3, s34, 9")
    k.srd(12, 40, 0, "s3")
    k.e("s_sub_u32 s14, 4194304, s3")
    k.e("s_lshl_b32 s3, s33, 18")
    k.srd(8, 6, 262144, "s3")
    def dma_ops(buf):
        ops = []
        for (base, vo, so, srd, fl) in ((57, VOW, 52, 12, w_ld), (56, VOA, 48, 8, a_ld)):
            for hi in range(2):
                ops.append(('s', f"s_add_u32 m0, s{base}, {buf*65536 + hi*4096}"))
                for lo in range(4):
                    ops.append(('g', f"buffer_load_dwordx4 v{vo + (lo&1) + 2*hi}, {S(srd,4)}, s{so+lo} offen offset:{lo*1024}{fl} lds"))
        return ops
    def adv_ops(j):
        x = j ^ (j + 1)
        return [f"v_xor_b32 v{VOW+q}, {x << 19}, v{VOW+q}" for q in range(4)] + [f"v_xor_b32 v{VOA+q}, {x << 7}, v{VOA+q}" for q in range(4)]
    st0 = dma_ops(0)
    for t, s in st0[:10]: k.e(s, tag='st0')
    if 'w' in MW:
        k.srd(68, 40, 4194304)
        k.e("v_lshlrev_b32 v120, 7, v0")
        k.e("s_and_b32 s3, s2, 127")
        k.e("s_lshl_b32 s3, s3, 2")
        k.e("s_add_u32 s3, s3, s32")
        k.e("s_lshl_b32 s3, s3, 13")
        k.e("buffer_load_dword v126, v120, s[68:71], s3 offen", tag='cpf')
    k.srd(28, 44, 2048)
    k.srd(20, 66, 8 << 20)
    k.srd(24, 66, 32 * KV_HEAD, WS_KV)
    k.e("v_and_b32 v30, 15, v0")
    k.e("s_lshr_b32 s3, s32, 1")
    k.e("s_lshl_b32 s3, s3, 14")
    k.e("v_lshlrev_b32 v31, 7, v30")
    k.e("v_add_u32 v31, s3, v31")
    k.e("v_lshrrev_b32 v34, 1, v30")
    k.e("v_xor_b32 v34, v34, v32")
    k.e(f"v_lshl_add_u32 v{AD}, v34, 4, v31")
    k.e("v_xor_b32 v34, 4, v34")
    k.e(f"v_lshl_add_u32 v{AD+1}, v34, 4, v31")
    k.e("v_lshrrev_b32 v30, 2, v30")
    k.e("v_lshl_add_u32 v31, v32, 3, v30")
    k.e("v_lshlrev_b32 v31, 9, v31")
    k.e("v_and_b32 v34, 3, v0")
    k.e("v_lshl_add_u32 v31, v34, 3, v31")
    k.e("s_and_b32 s3, s32, 1")
    k.e("s_lshl_b32 s3, s3, 8")
    k.e("s_add_u32 s3, s3, 32768")
    k.e("v_add_u32 v31, s3, v31")
    k.e("v_and_b32 v34, 1, v32")
    k.e("v_lshl_add_u32 v30, v34, 2, v30")
    for jj in range(8):
        k.e(f"v_xor_b32 v34, {jj}, v30")
        k.e(f"v_lshl_add_u32 v{AD+2+jj}, v34, 5, v31")
    for j in range(10):
        k.e(f"v_add_u32 v{AD+10+j}, 65536, v{AD+j}")
    k.e("s_cmp_lt_u32 s32, 2")
    for j in range(3): k.e(f"s_cselect_b32 s{60+j}, s{8+j}, s{12+j}")
    k.e("s_mov_b32 s63, 0x20000")
    k.e(f"s_mov_b32 s59, {64*8192}")
    k.e("s_cselect_b32 s59, 128, s59")
    k.e("s_lshr_b32 s3, s2, 6")
    k.e("s_lshl_b32 s3, s3, 1")
    k.e("s_add_u32 s3, s3, s32")
    k.e("s_lshl_b32 s3, s3, 15")
    k.e("s_add_u32 s3, s3, 256")
    k.e("v_lshlrev_b32 v37, 10, v0")
    k.e("v_add_u32 v37, s3, v37")
    k.e("v_lshrrev_b32 v38, 2, v0")
    k.e("v_lshlrev_b32 v38, 13, v38")
    k.e("v_and_b32 v39, 3, v0")
    k.e("v_lshl_add_u32 v38, v39, 7, v38")
    k.e("s_lshl_b32 s39, s33, 1")
    k.e("s_add_u32 s39, s39, s32")
    k.e("s_lshl_b32 s39, s39, 15")
    k.e(f"s_add_u32 s39, s39, {120*8192}")
    k.e("v_add_u32 v38, s39, v38")
    k.e("s_cmp_lt_u32 s32, 2")
    k.e("s_cselect_b64 vcc, -1, 0")
    k.e("s_cselect_b32 s3, 32, 16")
    k.e(f"v_cndmask_b32 v{PFO}, v38, v37, vcc")
    k.e("v_cmp_gt_u32 vcc, s3, v0")
    k.e(f"v_mov_b32 v37, {BIG}")
    k.e(f"v_cndmask_b32 v{PFO}, v37, v{PFO}, vcc")
    k.e("s_mul_i32 s3, s58, s59")
    k.e(f"v_xor_b32 v{PFO}, s3, v{PFO}")
    pfc = [2]
    def pf_ops():
        j = pfc[0]; pfc[0] += 1
        return [f"buffer_load_dword v1, v{PFO}, s[60:63], 0 offen{opt.get('pf_ld', '')}",
                f"s_mul_i32 vcc_lo, s59, {(j ^ (j + 1)) & 7}", f"v_xor_b32 v{PFO}, vcc_lo, v{PFO}"]
    for t, s in st0[10:]: k.e(s, tag='st0')
    for i in range(4):
        k.e(f"buffer_load_dwordx4 {V(WR+4*i,4)}, v36, s[28:31], 0 offen offset:{i*512}", tag='wr')
    for s in adv_ops(0): k.e(s)

    PFE = int(opt.get('pfe', 2))
    PFN = int(opt.get('pfn', 3))
    if PFE == 0:
        for _ in range(PFN):
            for s in pf_ops(): k.e(s, tag='pf')
    st1 = dma_ops(1)
    def sum32(v, t):
        for m in ["quad_perm:[1,0,3,2]", "quad_perm:[2,3,0,1]", "row_half_mirror", "row_mirror"]:
            k.e(f"v_add_f32_dpp v{v}, v{v}, v{v} {m} row_mask:0xf bank_mask:0xf")
        k.e(f"v_mov_b32 v{t}, v{v}")
        k.e(f"v_permlane16_swap_b32 v{t}, v{v}")
        k.e(f"v_add_f32 v{v}, v{v}, v{t}")
    k.wait_vm('x')
    for i in range(16):
        k.e(f"v_lshlrev_b32 v{XF+2*i}, 16, v{XP+i}")
        k.e(f"v_and_b32 v{XF+2*i+1}, 0xffff0000, v{XP+i}")
    k.e(f"v_pk_add_f32 v[40:41], {V(XF,2)}, {V(XF+2,2)}")
    k.e(f"v_pk_add_f32 v[42:43], {V(XF+4,2)}, {V(XF+6,2)}")
    for i in range(4, 16):
        d = 40 + 2 * (i & 1)
        k.e(f"v_pk_add_f32 {V(d,2)}, {V(d,2)}, {V(XF+2*i,2)}")
    k.e("v_pk_add_f32 v[40:41], v[40:41], v[42:43]")
    k.e("v_add_f32 v38, v40, v41")
    sum32(38, 37)
    for t, s in st1[:10]: k.e(s, tag='st1')
    if PFE == 1:
        for _ in range(PFN // 2):
            for s in pf_ops(): k.e(s, tag='pf')
    k.e("v_mul_f32 v38, 0xba800000, v38")
    k.e("v_mov_b32 v39, v38")
    T = 112
    for i in range(16):
        k.e(f"v_pk_add_f32 {V(T+2*(i&3),2)}, {V(XF+2*i,2)}, v[38:39]")
        d = 40 + 2 * (i & 1)
        if i < 2: k.e(f"v_pk_mul_f32 {V(d,2)}, {V(T+2*(i&3),2)}, {V(T+2*(i&3),2)}")
        else: k.e(f"v_pk_fma_f32 {V(d,2)}, {V(T+2*(i&3),2)}, {V(T+2*(i&3),2)}, {V(d,2)}")
    k.e("v_pk_add_f32 v[40:41], v[40:41], v[42:43]")
    k.e("v_add_f32 v40, v40, v41")
    sum32(40, 37)
    for t, s in st1[10:]: k.e(s, tag='st1')
    if PFE == 1:
        for _ in range(PFN // 2):
            for s in pf_ops(): k.e(s, tag='pf')
    k.e("v_mul_f32 v40, 0x3a800000, v40")
    k.e("v_cvt_pk_bf16_f32 v44, v38, v40")
    k.e("v_lshlrev_b32 v38, 16, v44")
    k.e("v_and_b32 v40, 0xffff0000, v44")
    k.e("v_add_f32 v40, 0x3727c5ac, v40")
    k.e("v_cvt_pk_bf16_f32 v44, v40, v40")
    k.e("v_lshlrev_b32 v40, 16, v44")
    k.e("v_sqrt_f32 v40, v40")
    k.e("v_mov_b32 v39, v38")
    k.e("v_cvt_pk_bf16_f32 v44, v40, v40")
    k.e("v_lshlrev_b32 v44, 16, v44")
    k.e("v_rcp_f32 v40, v44")
    for i in range(16):
        k.e(f"v_pk_add_f32 {V(XF+2*i,2)}, {V(XF+2*i,2)}, v[38:39]")
    k.e("v_fma_f32 v45, -v44, v40, 1.0")
    k.e("v_fma_f32 v40, v45, v40, v40")
    k.e("v_mov_b32 v41, v40")
    for i in range(16):
        k.e(f"v_cvt_pk_bf16_f32 v{XP+i}, v{XF+2*i}, v{XF+2*i+1}")
    for i in range(16):
        k.e(f"v_lshlrev_b32 v{XF+2*i}, 16, v{XP+i}")
        k.e(f"v_and_b32 v{XF+2*i+1}, 0xffff0000, v{XP+i}")
    for i in range(16):
        k.e(f"v_pk_mul_f32 {V(XF+2*i,2)}, {V(XF+2*i,2)}, v[40:41]")
    for i in range(16):
        k.e(f"v_cvt_pk_bf16_f32 v{XP+i}, v{XF+2*i}, v{XF+2*i+1}")
    k.e("s_mul_i32 s3, s32, 4128")
    k.e("s_add_u32 s3, s3, 131072")
    k.e("v_mul_u32_u24 v42, 2064, v33")
    k.e("v_add3_u32 v42, v42, v36, s3")
    for i in range(4):
        k.e(f"ds_write_b128 v42, {V(XP+4*i,4)} offset:{i*512}")
    for s in adv_ops(1): k.e(s)
    if PFE == 2:
        for _ in range(PFN):
            for s in pf_ops(): k.e(s, tag='pf')
    k.wait_vm('wr')
    for i in range(16):
        k.e(f"v_lshlrev_b32 v{XF+2*i}, 16, v{XP+i}")
        k.e(f"v_and_b32 v{XF+2*i+1}, 0xffff0000, v{XP+i}")
        k.e(f"v_lshlrev_b32 v{T+2*(i&3)}, 16, v{WR+i}")
        k.e(f"v_and_b32 v{T+2*(i&3)+1}, 0xffff0000, v{WR+i}")
        d = 42 + 2 * (i & 1)
        if i < 2: k.e(f"v_pk_mul_f32 {V(d,2)}, {V(XF+2*i,2)}, {V(T+2*(i&3),2)}")
        else: k.e(f"v_pk_fma_f32 {V(d,2)}, {V(XF+2*i,2)}, {V(T+2*(i&3),2)}, {V(d,2)}")
    k.e("v_pk_add_f32 v[42:43], v[42:43], v[44:45]")
    k.e("v_add_f32 v45, v42, v43")
    sum32(45, 37)
    k.e("v_cvt_pk_bf16_f32 v45, v45, v45")
    k.e("v_ashrrev_i32 v46, 31, v45")
    k.e("v_or_b32 v46, 0x80000000, v46")
    k.e("v_xor_b32 v45, v45, v46")
    k.e("v_and_b32 v45, 0xffff0000, v45")
    k.e("s_lshr_b32 s3, s36, 11")
    k.e("v_add_u32 v46, s3, v33")
    k.e("v_sub_u32 v44, 0xffff, v46")
    k.e("v_or_b32 v45, v45, v44")
    k.e("v_lshlrev_b32 v44, 2, v46")
    k.e("v_lshlrev_b32 v46, 3, v46")
    k.e("v_xor_b32 v38, 0x80000000, v38")
    k.e("v_mov_b32 v39, v40")
    k.e(f"s_mov_b32 s3, {WS_KEYS}")
    k.e(f"s_mov_b32 s39, {WS_STATS}")
    k.e("s_mov_b32 exec_lo, 1")
    k.e("s_mov_b32 exec_hi, 1")
    k.e("buffer_store_dword v45, v44, s[20:23], s3 offen sc1", tag='ln')
    k.e("buffer_store_dwordx2 v[38:39], v46, s[20:23], s39 offen sc1", tag='ln')
    k.e("s_mov_b64 exec, -1")
    k.e("s_load_dwordx2 s[4:5], s[0:1], 16")
    k.e("s_load_dwordx4 s[40:43], s[0:1], 64")
    k.e("s_load_dwordx2 s[92:93], s[0:1], 40")
    k.e("s_load_dwordx2 s[94:95], s[0:1], 80")
    k.e("s_load_dwordx2 s[100:101], s[0:1], 0")
    k.srd(28, 64, 256)

    def reads(ks, buf):
        a = AD + 10 * buf
        ra = [f"ds_read_b128 {A(FA(ks,i),4)}, v{a+ks} offset:{i*2048}" for i in range(8)]
        rw = [[f"ds_read_b64_tr_b16 {A(FW(ks,j)+2*rd,2)}, v{a+2+j} offset:{ks*16384+rd*2048}" for rd in range(2)] for j in range(8)]
        out = []
        for j in range(8):
            out.append(rw[j]); out.append([ra[j]])
        return out
    k.wait_vm('st0')
    k.e("s_waitcnt lgkmcnt(0)")
    k.e("s_barrier")
    k.stamp(ST)
    n = 0
    for grp in reads(0, 0):
        for s in grp:
            k.e(s); n += 1
            if n == 12: k.e("s_waitcnt lgkmcnt(2)")
    k.e("s_cmp_lg_u32 s35, 0")
    k.e("s_cbranch_scc1 L_k1_vpath")

    def chunk_ops(c):
        kind, j = c
        slot = {'w': j % 4, 'kv': (j + 4) % 8}[kind]
        ops = [('s', f"s_add_u32 m0, s44, {slot * 16384}")]
        if kind == 'w':
            for q in range(4):
                ops.append(('g', f"buffer_load_dwordx4 v{WV + (q >> 1)}, s[8:11], s{48+q} offen offset:{q*1024}{wq_ld} lds"))
            ops.append(('v', f"v_add_u32 v{WV}, {64*8192}, v{WV}"))
            ops.append(('v', f"v_add_u32 v{WV+1}, {64*8192}, v{WV+1}"))
        elif kind == 'f':
            for q in range(4):
                ops.append(('g', f"buffer_load_dwordx4 v{12 + (q >> 1) + 2 * (j & 1)}, {S(60 + 8 * (j >> 1), 4)}, s{52+q} offen offset:{q*1024}{ffn_ld} lds"))
        else:
            ops.append(('s', f"s_mov_b32 s7, {j * KV_CH}"))
            for q in range(4):
                ops.append(('g', f"buffer_load_dwordx4 v{VDMA}, s[12:15], s7 offen offset:{q*1024}{kv_ld} lds"))
        return ops
    def xn_ops(kk):
        ops = []
        for qb in range(4):
            so = "0" if qb & 1 else "s58"
            ops.append(('g', f"buffer_load_dwordx4 {A(XR(kk,qb),4)}, v{XV + (qb >> 1)}, s[20:23], {so} offen offset:{(kk % 4)*1024}{opt.get('xn_ld', ' sc1')}"))
        if kk % 4 == 3:
            ops.append(('v', f"v_add_u32 v{XV}, 4096, v{XV}"))
            ops.append(('v', f"v_add_u32 v{XV+1}, 4096, v{XV+1}"))
        return ops
    def wreads(kk):
        st, ks = kk // 2, kk & 1
        return [[f"ds_read_b64_tr_b16 {A(WF(kk,db)+2*rd,2)}, v{TA+db} offset:{(st % 4)*16384 + ks*8192 + rd*1024}" for rd in range(2)] for db in range(8)]
    ool = []
    def spin(lab, ret, off, target, vd, vz, sv, sc):
        def fn():
            k.e(f"s_mov_b32 s{sc}, 0x400000")
            k.label(lab + "_l")
            k.e(f"s_sleep {opt.get('slp', 8)}")
            k.e(f"buffer_load_dword v{vd}, v{vz}, s[28:31], {off} offen sc1")
            k.e("s_waitcnt vmcnt(0)")
            k.e(f"v_readfirstlane_b32 s{sv}, v{vd}")
            k.e(f"s_sub_u32 s{sc}, s{sc}, 1")
            k.e(f"s_cmp_eq_u32 s{sc}, 0")
            k.e(f"s_cbranch_scc1 {ret}")
            k.e(f"s_cmp_lt_u32 s{sv}, {target}")
            k.e(f"s_cbranch_scc1 {lab}_l")
        ool.append((lab, fn, ret))
    def srd_rec(b, d, base, nbytes, add=None):
        if add is None:
            b.e(f"s_mov_b32 s{d}, s{base}"); b.e(f"s_and_b32 s{d+1}, s{base+1}, 0xffff")
        else:
            b.blk([f"s_add_u32 s{d}, s{base}, {add}", f"s_addc_u32 s{d+1}, s{base+1}, 0", f"s_and_b32 s{d+1}, s{d+1}, 0xffff"])
        b.e(f"s_mov_b32 s{d+2}, {nbytes}"); b.e(f"s_mov_b32 s{d+3}, 0x20000")

    def phase1_stream(isV):
        b = Rec()
        tg = 'v' if isV else 'k'
        b.e("v_and_b32 v46, 7, v0")
        b.e("v_lshrrev_b32 v1, 3, v0") if False else None
        b.e("v_mul_u32_u24 v30, 2064, v46")
        b.e("v_lshrrev_b32 v31, 3, v0")
        b.e("s_lshl_b32 s3, s32, 9")
        b.e("s_add_u32 s3, s3, 131072")
        b.e("v_lshl_add_u32 v30, v31, 4, v30")
        b.e("v_add_u32 v30, s3, v30")
        b.e("v_lshlrev_b32 v31, 8, v31")
        b.e("v_lshl_add_u32 v46, v46, 4, v31")
        for i in (1, 2, 3, 0):
            b.e(f"ds_read_b128 {V(30+4*i,4)}, v30 offset:{i*128}", tag='xs')
        b.e("s_lshr_b32 s3, s2, 1")
        b.e(f"s_mul_i32 s3, s3, {XN_RB}")
        b.e("s_add_u32 s3, s3, s56")
        b.e("s_and_b32 s39, s2, 1")
        b.e("s_lshl_b32 s39, s39, 7")
        b.e("s_add_u32 s3, s3, s39")
        b.e("s_add_u32 s39, s3, 4096")
        b.at(2)
        for i in range(4):
            b.e(f"buffer_store_dwordx4 {V(30+4*i,4)}, v46, s[20:23], s{3 if i < 2 else 39} offen offset:{(i&1)*2048} sc1", tag='ln')
        b.e("s_lshl_b32 s3, s34, 1")
        b.e("s_and_b32 s36, s32, 1")
        b.e("s_add_u32 s3, s3, s36")
        b.e(f"s_mul_i32 s3, s3, {KV_HEAD}")
        b.e(f"s_mul_i32 s36, s33, {4*KV_TILE}")
        b.e("s_add_u32 s3, s3, s36")
        b.e("s_lshr_b32 s36, s32, 1")
        b.e(f"s_mul_i32 s36, s36, {2*KV_TILE}")
        b.e("s_add_u32 s3, s3, s36")
        b.e(f"s_add_u32 s38, s3, {KV_CH if isV else 0}")
        b.e("s_lshl_b32 s39, s34, 7")
        b.e("s_lshl_b32 s36, s33, 2")
        b.e("s_add_u32 s39, s39, s36")
        b.e(f"s_add_u32 s39, s39, {WS_FLG + (32 if isV else 0)}")
        b.e("v_mov_b32 v30, 1")
        b.e("v_mov_b32 v31, 0")
        b.blk(["s_cmp_eq_u32 s32, 0", f"s_cselect_b32 s39, s39, {BIG}"])
        b.blk(["s_mov_b64 exec, 1", ("buffer_store_dword v31, v31, s[20:23], s39 offen sc1", 'ln'), "s_mov_b64 exec, -1"])
        if MAP == 4:
            b.e("s_and_b32 s33, s2, 7")
            b.e("s_lshl_b32 s33, s33, 2")
            b.e("s_bfe_u32 s3, s2, 0x20003")
            b.e("s_add_u32 s33, s33, s3")
            b.e("s_lshr_b32 s34, s2, 5")
        else:
            b.e("s_and_b32 s33, s2, 6")
            b.e("s_lshl_b32 s33, s33, 2")
            b.e("s_bfe_u32 s3, s2, 0x30003")
            b.e("s_add_u32 s33, s33, s3")
            b.e("s_lshr_b32 s34, s2, 6")
            b.e("s_lshl_b32 s34, s34, 1")
            b.e("s_and_b32 s3, s2, 1")
            b.e("s_add_u32 s34, s34, s3")
        b.e("s_lshl_b32 s64, s34, 7")
        b.e("s_lshl_b32 s3, s33, 2")
        b.e("s_add_u32 s64, s64, s3")
        b.e(f"s_add_u32 s64, s64, {WS_CFL}")
        b.e("s_lshl_b32 s65, s34, 8")
        b.e("s_sub_u32 s65, 1920, s65")
        b.e("v_mul_u32_u24 v32, s65, v0")
        b.blk(["s_cmp_eq_u32 s32, 0", f"s_cselect_b32 s64, s64, {BIG}"])
        b.blk(["s_mov_b64 exec, 3", ("buffer_store_dword v31, v32, s[20:23], s64 offen sc1", 'ln'), "s_mov_b64 exec, -1"])
        b.e("s_lshl_b32 s3, s2, 2")
        b.e(f"s_add_u32 s3, s3, {WS_HFL}")
        b.e("v_lshlrev_b32 v32, 10, v0")
        b.blk(["s_cmp_eq_u32 s32, 0", f"s_cselect_b32 s3, s3, {BIG}"])
        b.blk(["s_mov_b64 exec, 31", ("buffer_store_dword v31, v32, s[20:23], s3 offen sc1", 'ln'), "s_mov_b64 exec, -1"])
        b.e("s_lshl_b32 s35, s34, 1")
        b.e("s_sub_u32 s36, 32, s35")
        b.e("s_add_u32 s35, s35, 2")
        b.e("s_lshl_b32 s44, s32, 12")
        b.e("s_lshl_b32 s58, s32, 1")
        b.e("s_sub_u32 s58, 7, s58")
        b.e(f"s_mul_i32 s58, s58, {XN_RB}")
        b.e("s_sub_u32 s3, 15, s34")
        b.e("s_lshl_b32 s45, s3, 3")
        b.e("s_add_u32 s45, s45, s32")
        b.e("s_lshl_b32 s46, s34, 3")
        b.e("s_add_u32 s46, s46, s32")
        srd_rec(b, 68, 42, 7340032)
        b.blk(["s_cmp_eq_u32 s32, 0", f"s_cselect_b32 s37, 0, {BIG}"])
        b.e("s_lshl_b32 s3, s33, 8")
        srd_rec(b, 16, 4, 0, "s3")
        b.e("s_sub_u32 s18, 8388608, s3")
        WQN = int(opt.get('wqn', 4))
        ln_ = 64 // WQN
        b.e(f"v_and_b32 v33, {ln_ - 1}, v0")
        b.e("v_lshrrev_b32 v32, 1, v33")
        b.e("v_and_b32 v33, 1, v0")
        b.e("v_lshlrev_b32 v32, 13, v32")
        b.e("v_lshl_add_u32 v45, v33, 7, v32")
        b.e("s_lshl_b32 s3, s32, 3")
        b.e("s_add_u32 s3, s3, s34")
        b.e(f"s_mul_i32 s47, s3, {ln_ // 2 * 8192}")
        WQ0 = int(opt.get('wq0', 6))
        ev = []
        for j in range(WQN): ev.append((WQ0 + j * float(opt.get('wqs', 2)), 'pf', j))
        NS = int(opt.get('cas', 4))
        for j in range(NS): ev.append((5.2 + j * float(opt.get('cad', 1.2)), 'ca', j))
        b.e(f"s_bfe_u32 s6, s2, {(NS.bit_length() - 1) << 16 | 3}")
        b.e("s_lshl_b32 s3, s32, 8")
        b.e("s_or_b32 s6, s6, s3")
        WOP = WOT
        if WOP:
            b.e("v_bfe_u32 v39, v0, 3, 1")
            b.e("v_and_b32 v33, 7, v0")
            b.e("v_lshlrev_b32 v39, 11, v39")
            b.e("v_lshl_add_u32 v39, v33, 7, v39")
            b.e("s_lshr_b32 s3, s2, 1")
            b.e("s_lshl_b32 s3, s3, 16")
            b.e("v_add_u32 v39, s3, v39")
            b.e("s_and_b32 s3, s2, 1")
            b.e("s_lshl_b32 s3, s3, 10")
            b.e("v_add_u32 v39, s3, v39")
            b.e("s_lshl_b32 s3, s32, 14")
            b.e("v_add_u32 v39, s3, v39")
            ev.append((5.99, 'srd', 0))
            for j in range(4): ev.append((float(opt.get('wop0', 6)) + j * 2 + 0.01, 'wo', j))
        late = []
        for step, kind, j in sorted(ev):
            o = b
            if step >= 12:
                o = Rec(); late.append(o)
            o.at(step)
            if kind == 'ca':
                o.check_clear('ln')
                o.blk([f"s_cmp_eq_u32 s6, {j}", f"s_cselect_b32 s3, 0, {BIG}"])
                o.blk(["s_mov_b64 exec, 1", "buffer_atomic_add v30, v31, s[28:31], s3 offen sc1", "s_mov_b64 exec, -1"])
            elif kind == 'srd':
                srd_rec(o, 60, 92, 8388608)
            elif kind == 'wo':
                o.e("buffer_load_dword v44, v39, s[60:63], 0 offen", tag='pf')
                o.e("v_add_u32 v39, 4096, v39")
            else:
                o.e(f"buffer_load_dword v44, v45, s[{16 if step < 12 else 8}:{19 if step < 12 else 11}], s47 offen{opt.get('wqpf_ld', '')}", tag='pf')
                o.e(f"s_add_u32 s47, s47, {1024 // WQN * 8192}")
        b.e("v_lshrrev_b32 v32, 4, v0")
        b.e("v_and_b32 v33, 15, v0")
        b.e("s_lshl_b32 s3, s32, 4")
        b.e("v_add_u32 v34, s3, v32")
        b.e("v_lshlrev_b32 v36, 1, v32")
        b.e("v_xor_b32 v36, v36, v33")
        b.e("v_xor_b32 v37, 8, v36")
        if '2' in CPF:
            b.at(10.1)
            cp = code_prefetch("L_phase2", "L_k2_fin", 32, 6, 40, 38)
            cp = [x.replace("s8", "s3") for x in cp]
            b.blk(cp[:4])
            for x in cp[4:-3]: b.e(x)
            b.blk(cp[-3:-1])
            b.e(cp[-1])
        b.at(12)
        b.e("buffer_load_dword v30, v31, s[28:31], s37 offen sc1", tag='poll')
        for j in range(3): b.e(f"s_mov_b32 s{8+j}, s{16+j}")
        srd_rec(b, 16, 66, 16 << 20, WS_CTX)
        for j in range(4): b.e(f"s_mov_b32 s{48+j}, {j*31744}")
        b.e("v_lshlrev_b32 v35, 13, v34")
        b.e(f"v_lshl_add_u32 v{WV}, v36, 4, v35")
        b.e(f"v_lshl_add_u32 v{WV+1}, v37, 4, v35")
        b.e(f"v_lshlrev_b32 v{VX}, 4, v0")
        b.e(f"v_add_u32 v{VY}, 65536, v{VX}")
        b.e(f"v_add_u32 v{VDMA}, s44, v{VX}")
        b.e("v_mov_b32 v7, 0")
        b.e("v_lshlrev_b32 v35, 2, v32")
        b.e("v_sub_u32 v35, v33, v35")
        b.e("s_lshl_b32 s3, s32, 4")
        b.e(f"v_add_u32 v{VRA}, s3, v35")
        b.e("s_sub_u32 s3, 48, s3")
        b.e(f"v_add_u32 v{VRB}, s3, v35")
        b.e(f"s_mul_i32 s3, s33, {KV_HEAD}")
        b.e(f"s_add_u32 s3, s3, {WS_KV}")
        srd_rec(b, 12, 66, 0, "s3")
        b.e(f"s_mul_i32 s14, s36, {KV_TILE}")
        for o in late: b.items += o.items
        b.at(13)
        b.e(f"s_mul_i32 s3, s45, {XN_RB}")
        b.e(f"v_add_u32 v{XV}, s3, v{VX}")
        b.e(f"s_mul_i32 s3, s46, {XN_RB}")
        b.e(f"v_add_u32 v{XV+1}, s3, v{VX}")
        if 'dbg_noxn' in opt:
            b.e(f"v_mov_b32 v{XV}, {BIG}"); b.e(f"v_mov_b32 v{XV+1}, {BIG}")
        if 'dbg_nowq' in opt: b.e("s_mov_b32 s10, 0")
        if 'dbg_nost' in opt: b.e("s_mov_b32 s26, 0")
        spin(f"L_spinA{tg}", f"L_spinAr{tg}", 0, 256, 30, 31, 3, 47)
        return b
    def ta_setup(b):
        b.e("v_lshrrev_b32 v42, 2, v33")
        b.e("v_lshl_add_u32 v43, v32, 3, v42")
        b.e("v_lshlrev_b32 v43, 8, v43")
        b.e("v_and_b32 v44, 3, v0")
        b.e("v_lshl_add_u32 v43, v44, 3, v43")
        b.e("v_and_b32 v44, 1, v32")
        b.e("v_lshl_add_u32 v42, v44, 2, v42")
        for db in range(8):
            b.e(f"v_xor_b32 v44, {db}, v42")
            b.e(f"v_lshl_add_u32 v{TA+db}, v44, 5, v43")

    def kstep(isV, st, ks, gaps, gtags, pre, b):
        for s in pre:
            if s.endswith(':'): k.label(s[:-1])
            else: k.e(s)
        order = [(it, jd) for it in range(8) for jd in range(8)]
        if st == 7 and ks == 1: order.sort(key=lambda x: frag_of(isV, *x))
        for n, (it, jd) in enumerate(order):
            fa, fw_ = A(FA(ks, it), 4), A(FW(ks, jd), 4)
            d = acc(isV, it, jd)
            c = "0" if (st == 0 and ks == 0) else d
            k.e(mfma(d, fa, fw_, c) if isV else mfma(d, fw_, fa, c))
            if n in gaps:
                for s in gaps[n]: k.e(s, tag=gtags.get(n))
            else:
                b.fill(k, 2 * st + ks + n / 64.0)
    def place_vm(g, gt, ops, start, step):
        gi = start; lead = []
        for t, s, tg in ops:
            if t == 's':
                if gi == 0: lead.append(s)
                else: g.setdefault(gi - 1, []).insert(0, s)
            elif t == 'g':
                assert gi not in g and gi < 64, gi
                g[gi] = [s]; gt[gi] = tg; gi += step
            else:
                q = gi - step + 1
                while q in g and (len(g[q]) >= 2 or g[q][-1].startswith(('buffer', 'ds_read_b64'))) or (q - start) % step == 0: q += 1
                g.setdefault(min(q, 63), []).append(s)
        return lead
    vq0, dq0 = list(k.vq), list(k.dq)
    for isV in (0, 1):
        if isV:
            k.label("L_k1_vpath"); k.win = []; k.vq = list(vq0); k.dq = list(dq0)
        b = phase1_stream(isV)
        if S1: k.nstamp = 0
        for st in range(8):
            p = st & 1
            k.stamp(S1)
            g = {}
            for n, grp in enumerate(reads(1, p)):
                g[2 * n + 1] = (["s_waitcnt lgkmcnt(6)"] if n % 4 == 3 else []) + grp
            kstep(isV, st, 0, g, {}, ["s_waitcnt lgkmcnt(0)"], b)
            g = {}; gt = {}
            if st < 7:
                for n, grp in enumerate(reads(0, p ^ 1)):
                    g[2 * n + 1] = (["s_waitcnt lgkmcnt(6)"] if n % 4 == 2 else []) + grp
            if st < 6:
                ops = []
                d = dma_ops(p); adv = adv_ops(st + 2) if st < 5 else []
                ops = [(t, s, f'st{st+2}') for t, s in d[:10]] + [('v', s, None) for s in adv[:4]] + \
                      [(t, s, f'st{st+2}') for t, s in d[10:]] + [('v', s, None) for s in adv[4:]]
                lead = place_vm(g, gt, ops, 0, 4)
                if st < 6 - PFN:
                    pfc[0] = 2 + PFN + st
                    po = pf_ops()
                    g[62] = [po[0]] + g.get(62, []); gt[62] = 'pf'
                    g[63] = [po[1]] + g.get(63, []) + [po[2]]
                need = f'st{st+1}'
            elif st == 6:
                ops = []
                for c in range(4): ops += [(t, s, f'w{c}') for t, s in chunk_ops(('w', c))]
                lead = place_vm(g, gt, ops, 0, 4)
                need = 'st7'
            else:
                assert not b.items, len(b.items)
                ta_setup(b)
                b.items.append(('at', 15.3, None))
                for grp in wreads(0):
                    for s in grp: b.e(s)
                b.e("s_waitcnt lgkmcnt(8)")
                cv = Rec()
                for n in range(26):
                    cv.at(15 + (2 * n + 5) / 64.0)
                    r = SRC(n)[1]
                    for q in range(4): cv.e(f"v_cvt_pk_bf16_f32 v{PK(n)+q}, v{r+2*q}, v{r+2*q+1}")
                b.items += cv.items
                ops = []
                for kk in range(4): ops += [(t, s, f'x{kk}') for t, s in xn_ops(kk)]
                lead = place_vm(g, gt, ops, 0, 4)
                tg = 'v' if isV else 'k'
                lead += ["v_readfirstlane_b32 s3, v30", "s_nop 0", "s_or_b32 s3, s3, s37", "s_cmp_lt_u32 s3, 0" if 'dbg_noca' in opt else "s_cmp_lt_u32 s3, 256", f"s_cbranch_scc1 L_spinA{tg}", f"L_spinAr{tg}:"]
                need = 'w0'
            k.e(f"s_waitcnt vmcnt({k.vm_n(need)}) lgkmcnt(0)" if k.vm_n(need) is not None else "s_waitcnt lgkmcnt(0)")
            kstep(isV, st, 1, g, gt, lead + ["s_barrier"], b)
        print(f"phase1 isV={isV}: items left {len(b.items)}")
        k.stamp(S1)
        b.drain(k)
        k.stamp(S1)
        if not isV:
            k.e("s_branch L_phase2")
            vqK = list(k.vq)
    assert vqK == k.vq
    k.label("L_phase2")
    k.win = []
    k.e("s_nop 7")
    k.stamp(ST)

    b = Rec()
    KY = 56
    SPK = float(opt.get('spk', 2))
    def kvstore(n):
        b.at(n / SPK)
        off = (n >> 4) * KV_TILE + (n & 15) * 1024
        if n % 4 == 0: b.e(f"s_add_u32 s37, s38, {off}")
        b.e(f"buffer_store_dwordx4 {V(PK(n),4)}, v{VX}, s[24:27], s37 offen offset:{(n % 4)*1024}{opt.get('kv_st', ' sc1')}", tag='kvst')
    for n in range(26):
        kvstore(n)
        if 8 <= n < 14:
            m = n + 18
            for q in range(8): b.e(f"v_accvgpr_read_b32 v{48+q}, a{SRC(m)[1]+q}")
            for q in range(4): b.e(f"v_cvt_pk_bf16_f32 v{PK(m)+q}, v{48+2*q}, v{49+2*q}")
    for n in range(26, 32): kvstore(n)
    b.e("v_mov_b32 v12, 1")
    b.e("v_and_b32 v1, 15, v0")
    b.e("v_lshlrev_b32 v1, 2, v1")
    b.e("s_lshr_b32 s6, s33, 1")
    b.e("s_lshl_b32 s6, s6, 7")
    b.e(f"s_add_u32 s6, s6, {WS_FLG}")
    b.blk(["s_cmp_eq_u32 s32, 0", f"s_cselect_b32 s6, s6, {BIG}"])
    SIG = int(opt.get('sig', 21))
    POL = float(opt.get('pol', 26.5))
    b.at(SIG)
    b.blk(["s_mov_b64 exec, 1", "buffer_store_dword v12, v7, s[20:23], s39 offen sc1", "s_mov_b64 exec, -1"])
    b.at(POL)
    b.e("buffer_load_dword v12, v1, s[20:23], s6 offen sc1", tag='poll')
    CK = int(opt.get('ck', 29))
    n_ = 0
    for j in (0, 2, 1, 3, 4, 5, 6):
        for t, s in chunk_ops(('kv', j)):
            if t == 'g':
                b.at(max(CK + n_ * float(opt.get('kvp', 0.09)), {4: 25, 5: 27, 6: 29}.get(j, 0))); n_ += 1
            b.e(s, tag=f'c{16+j}')
    def spinB():
        k.e("s_mov_b32 s59, 0x400000")
        k.label("L_spinB_l")
        k.e(f"s_sleep {opt.get('slp', 4)}")
        k.e("buffer_load_dword v12, v1, s[20:23], s6 offen sc1")
        k.e("s_sub_u32 s59, s59, 1")
        k.e("s_cmp_eq_u32 s59, 0")
        k.e("s_cbranch_scc1 L_spinBx")
        k.e("s_waitcnt vmcnt(0)")
        k.e("v_cmp_ne_u32 vcc, 1, v12")
        k.e("s_cbranch_vccnz L_spinB_l")
        k.label("L_spinBx")
        k.e("s_waitcnt vmcnt(0)")
    ool.append(("L_spinB", spinB, "L_spinBr"))

    b1 = b
    b = Rec()
    srd_rec(b, 60, 40, 7340032)
    b.at(17 / SPK)
    b.e(f"s_mov_b32 s3, {WS_KEYS}")
    b.e(f"s_mov_b32 s47, {WS_KEYS + 4096}")
    for i in range(8):
        b.e(f"buffer_load_dwordx4 {V(KY+4*i,4)}, v{VX}, s[20:23], s{3 if i < 4 else 47} offen offset:{(i % 4)*1024} sc1", tag='keys')
    b.at(17 / SPK + 8)
    b.wait_vm('keys')
    b.e(f"v_max_u32 v14, v{KY}, v{KY+1}")
    b.e(f"v_min_u32 v15, v{KY}, v{KY+1}")
    for i in range(2, 32):
        b.e(f"v_med3_u32 v15, v14, v15, v{KY+i}"); b.e(f"v_max_u32 v14, v14, v{KY+i}")
    def wmax(v, sdst):
        for m in ["quad_perm:[1,0,3,2]", "quad_perm:[2,3,0,1]", "row_half_mirror", "row_mirror"]:
            b.blk([f"v_max_u32_dpp {v}, {v}, {v} {m} row_mask:0xf bank_mask:0xf"])
        b.blk([f"v_readlane_b32 s3, {v}, 0", f"v_readlane_b32 s47, {v}, 16"])
        b.blk([f"v_readlane_b32 s4, {v}, 32", f"v_readlane_b32 s5, {v}, 48"])
        b.blk(["s_max_u32 s3, s3, s47", "s_max_u32 s4, s4, s5", f"s_max_u32 s{sdst}, s3, s4"])
    b.e("v_mov_b32 v13, v14")
    wmax("v13", 40)
    b.blk(["v_cmp_eq_u32 vcc, s40, v14"])
    b.blk(["v_cndmask_b32 v13, v14, v15, vcc"])
    wmax("v13", 41)
    for t in range(2):
        b.e(f"s_and_b32 s3, s{40+t}, 0xffff")
        b.e(f"s_sub_u32 s{42+t}, 0xffff, s3")
    for t in range(2):
        b.e(f"v_mov_b32 v60, s{40+t}")
        b.e("v_not_b32 v61, v60")
        b.e("v_ashrrev_i32 v61, 31, v61")
        b.e("v_or_b32 v61, 0x80000000, v61")
        b.e("v_xor_b32 v60, v60, v61")
        b.e("v_and_b32 v60, 0xffff0000, v60")
        b.e("v_mul_f32 v60, 0xbfb8aa3b, v60")
        b.e("v_exp_f32 v60, v60")
        b.e("v_add_f32 v60, 1.0, v60")
        b.e("v_rcp_f32 v60, v60")
        b.e("v_cvt_pk_bf16_f32 v60, v60, v60")
        b.e(f"v_and_b32 v{64+t}, 0xffff0000, v60")
    for r in range(16): b.e(f"v_mov_b32 v{LS+r}, 0")
    WARM = opt.get('warm', '1') == '1'
    if WARM:
        b.e("s_mul_i32 s3, s34, s34")
        b.e("s_lshl_b32 s47, s33, 6")
        b.e("s_add_u32 s3, s3, s47")
        b.e("s_lshl_b32 s3, s3, 2")
        b.e("s_add_u32 s3, s3, s32")
        b.e("s_lshl_b32 s3, s3, 7")
        b.e("s_sub_u32 s3, s3, 512")
        b.e(f"v_min_u32 v13, {int(opt.get('wlanes', 25 if WOT else 33)) - 1}, v0")
        b.e("v_mov_b32 v28, s94"); b.e("v_mov_b32 v29, s95")
        b.e("v_mov_b32 v30, v13")
        for first, lo, hi in ((7, 100, 101), (11, 60, 61), (18, 68, 69), (25, 92, 93)):
            b.e(f"v_mov_b32 v14, s{lo}"); b.e(f"v_mov_b32 v15, s{hi}")
            b.blk([f"v_cmp_le_u32 vcc, {first}, v13", f"v_subrev_u32 v31, {first}, v13"])
            b.blk(["v_cndmask_b32 v28, v28, v14, vcc", "v_cndmask_b32 v29, v29, v15, vcc"])
            b.blk(["v_cndmask_b32 v30, v30, v31, vcc"])
        b.e("v_lshlrev_b32 v30, 20, v30")
        b.e("v_add_u32 v30, s3, v30")
        b.e("v_ashrrev_i32 v31, 31, v30")
        b.e("v_lshl_add_u64 v[28:29], v[30:31], 0, v[28:29]")
        b.e("s_mov_b32 s40, 512"); b.e("s_mov_b32 s41, 0")
    b.e("v_readfirstlane_b32 s100, v64")
    b.e("v_readfirstlane_b32 s101, v65")
    b.at(SIG)
    for j in range(3): b.e(f"s_mov_b32 s{24+j}, s{60+j}")
    b.e("s_add_u32 s3, s34, 7")
    b.e("s_and_b32 s3, s3, 7")
    b.e("s_lshl_b32 s3, s3, 5")
    b.e("s_add_u32 s3, s3, s33")
    b.e("s_mul_i32 s92, s3, 2341")
    b.e("s_lshr_b32 s92, s92, 16")
    b.e("s_mul_i32 s47, s92, 28")
    b.e("s_sub_u32 s4, s3, s47")
    b.e(f"s_mul_i32 s5, s92, {128*7168}")
    b.e("s_lshl_b32 s47, s4, 8")
    b.e("s_add_u32 s5, s5, s47")
    b.e(f"s_mov_b32 s94, {QSCALE}")
    b.e(f"s_mov_b32 s95, {QSCALE}")
    b.e("s_sub_u32 s55, 15, s34")
    b.e("s_sub_u32 s45, s36, 3")
    b.e("s_sub_u32 s46, s35, 3")
    b.e("s_mov_b32 s54, s44")
    b.e("s_sub_u32 s35, s35, 2")
    b.e("s_sub_u32 s36, s36, 2")
    b2 = b
    b3 = Rec()
    WT0 = float(opt.get('wt0', 18))
    WTB = int(opt.get('wtb', 23))
    WTG = int(opt.get('wtg', 8))
    b3.e("s_lshr_b32 s52, s2, 1")
    b3.e("s_lshl_b32 s52, s52, 16")
    b3.e("s_and_b32 s53, s2, 1")
    b3.e("s_lshl_b32 s53, s53, 10")
    b3.e("s_add_u32 s52, s52, s53")
    b3.e("s_lshl_b32 s53, s32, 14")
    b3.e("s_add_u32 s52, s52, s53")
    srd_rec(b3, 28, 92, 8388608)
    for j in range(8):
        b3.at(WT0 + 2 * (j // WTG))
        b3.blk([f"s_add_u32 m0, s56, {65536 + j * 1024}", f"v_xor_b32 v88, {j * 32}, v{VX}",
                (f"buffer_load_dwordx4 v88, s[28:31], s52 offen{opt.get('wo_ld', '')} lds", 'wo'), "s_add_u32 s52, s52, 2048"])
    b3.e("v_lshrrev_b32 v89, 2, v0")
    b3.e("v_lshlrev_b32 v89, 10, v89")
    b3.e("s_lshl_b32 s53, s32, 8")
    b3.e("s_add_u32 s53, s53, 65536")
    b3.e("v_add_u32 v89, s53, v89")
    b3.e("v_mov_b32 v90, 0xff")
    srd_rec(b3, 28, 66, 16 * WO_NT, WS_WOT)
    b3.e("s_and_b32 s52, s2, 1")
    b3.e("s_lshl_b32 s52, s52, 2")
    b3.e("s_add_u32 s52, s52, s32")
    b3.e(f"s_mul_i32 s52, s52, {2 * WO_NT}")
    b3.e("s_lshr_b32 s53, s2, 1")
    b3.e("s_lshl_b32 s53, s53, 12")
    b3.e("s_add_u32 s52, s52, s53")
    b3.at(WTB)
    for q in range(8):
        b3.e(f"v_and_or_b32 v{92 + (q & 1)}, v{TA+q}, v90, v89")
        for rd in range(2):
            b3.e(f"ds_read_b64_tr_b16 {V(96 + 4*q + 2*rd, 2)}, v{92 + (q & 1)} offset:{rd*16384}", tag='wt')
    for q in range(8):
        b3.at(WTB + 1.2 + 0.5 * q)
        b3.wait_ds('wt')
        b3.e(f"buffer_store_dwordx4 {V(96 + 4*q, 4)}, v{VX}, s[28:31], s52 offen offset:{(q & 3)*1024} sc1", tag='wts')
        if q == 3: b3.e(f"s_add_u32 s52, s52, {WO_NT}")
    b3.e("s_and_b32 s52, s2, 1")
    b3.e("s_lshl_b32 s52, s52, 9")
    b3.e("s_lshr_b32 s93, s2, 1")
    b3.e("s_lshl_b32 s93, s93, 2")
    b3.e("s_add_u32 s52, s52, s93")
    b3.e(f"s_add_u32 s52, s52, {WS_WFL}")
    b3.blk(["s_cmp_eq_u32 s32, 0", f"s_cselect_b32 s52, s52, {BIG}"])
    b3.e("v_mov_b32 v24, 1")
    b3.e("v_mov_b32 v25, 0")
    if not WOT: b3.items = []
    PKM = opt.get('pkm', '0') == '1'
    def conv_items(qb):
        r_ = Rec()
        for s_ in range(4):
            r = QA(2 * s_, qb)
            if PKM:
                for e_ in range(0, 8, 2): r_.e(f"v_pk_mul_f32 {V(r+e_,2)}, {V(r+e_,2)}, s[94:95]")
            else:
                for e_ in range(8): r_.e(f"v_mul_f32 v{r+e_}, s94, v{r+e_}")
            for e_ in range(4): r_.e(f"v_cvt_pk_bf16_f32 v{r+e_}, v{r+2*e_}, v{r+2*e_+1}")
            for e_ in range(4): r_.e(f"v_accvgpr_write_b32 a{Q(qb,s_)+e_}, v{r+e_}")
        r_.items.append(('mark', f'conv{qb}', None))
        return r_.items
    p2_start = len(k.lines)
    xsched = {0: [4, 5], 1: [6, 7], 2: [8, 9]}
    for kk in range(3, 25): xsched[kk] = [kk + 7]
    for kk in range(32):
        st, ks = kk // 2, kk & 1
        k.stamp(S2 and kk in (0, 4, 8, 12, 16, 20, 24, 28, 31))
        need = [f'x{kk}']
        if ks == 1 and st < 15: need.append(f'w{st+1}')
        if kk == SIG:
            assert not any(it[2] == 'kvst' for it in b1.items), "stores not all issued before SIG"
            need.append('kvst')
        if kk == WTB:
            assert not any(it[0] == 'b' and any(isinstance(x, tuple) for x in it[1]) for it in b3.items)
            need.append('wo')
        if kk == CK:
            assert not b3.items
            need.append('poll')
        if kk == 31: need.append('c16')
        w = [x for x in (k.vm_n(t) for t in need) if x is not None]
        k.e("s_waitcnt " + (f"vmcnt({min(w)}) " if w else "") + "lgkmcnt(0)")
        if kk == CK:
            assert not any('vcc' in str(it[1]) for it in b2.items)
            k.e("s_cmp_lg_u32 s32, 0")
            k.e("s_cbranch_scc1 L_spinBr")
            k.e("v_cmp_ne_u32 vcc, 1, v12")
            k.e("s_cbranch_vccnz L_spinB")
            k.label("L_spinBr")
        if ks == 1: k.e("s_barrier")
        g = {}; gt = {}
        if kk + 1 < 32:
            for n, grp in enumerate(wreads(kk + 1)):
                g[1 + 3 * n] = (["s_waitcnt lgkmcnt(6)"] if n == 5 else []) + grp
        vm = []
        if ks == 1 and st + 4 < 16: vm += [(t, s, f'w{st+4}') for t, s in chunk_ops(('w', st + 4))]
        for x in xsched.get(kk, []): vm += [(t, s, f'x{x}') for t, s in xn_ops(x)]
        ng = sum(1 for x in vm if x[0] == 'g')
        free = [x for x in range(2, 32) if x not in g]
        pick = [free[(j * len(free)) // ng] for j in range(ng)] if ng else []
        j = 0
        for t, s, tg in vm:
            if t == 'g': g[pick[j]] = [s]; gt[pick[j]] = tg; j += 1
            elif t == 's':
                q = pick[j] - 1
                if q in gt: g[q].append(s)
                else: g.setdefault(q, []).insert(0, s)
            else: g[pick[j - 1]].append(s)
        order = [(db, qb) for db in range(8) for qb in range(4)]
        if kk == 31:
            order = [(db, qb) for qb in range(4) for db in range(8)]
            assert not b2.items, len(b2.items)
            for kb in range(2):
                for s_ in range(4): b2.e(f"ds_read_b128 {A(FR(kb,s_),4)}, v{VY} offset:{(kb*4+s_)*1024}", tag=f'k{kb}')
            b2.at(31 + 12 / 32.0)
            b2.items += conv_items(0) + conv_items(1)
        elif kk > 24:
            for r in range(16): b2.e(f"v_accvgpr_write_b32 a{XR(kk-1,0)+r}, 0")
        for n, (db, qb) in enumerate(order):
            k.e(mfma(V(QA(db, qb), 4), A(WF(kk, db), 4), A(XR(kk, qb), 4), V(QA(db, qb), 4) if kk else "0"))
            if n in g:
                for s in g[n]: k.e(s, tag=gt.get(n))
            else:
                nl = len(k.lines)
                b1.fill(k, kk + n / 32.0)
                if len(k.lines) == nl: b3.fill(k, kk + n / 32.0)
                if len(k.lines) == nl: b2.fill(k, kk + n / 32.0)
    print("phase2 items left", len(b1.items), len(b2.items))
    b1.drain(k)
    grp_ = None
    for ln in k.lines[p2_start:] + ["s_mov_b32 m0, 0"]:
        if ' m0,' in ln:
            assert grp_ is None or (len(set(grp_)) == 1 and len(grp_) == (1 if grp_[0] == 's[28:31]' else 4)), grp_
            grp_ = []
        elif ln.endswith(' lds'): grp_.append(ln.split(', ')[1])
    k.stamp(ST or S2)
    XS = 160
    def ffn_issue():
        for t in range(2):
            k.e(f"s_lshr_b32 s3, s{42+t}, 4")
            k.e(f"s_mul_i32 s3, s3, {XN_RB}")
            k.e(f"s_and_b32 s47, s{42+t}, 15")
            k.e("s_lshl_b32 s47, s47, 4")
            k.e("s_add_u32 s3, s3, s47")
            k.e(f"v_mov_b32 v{28+t}, s3")
        k.e("v_lshrrev_b32 v24, 4, v0")
        k.e("v_and_b32 v25, 15, v0")
        k.e("v_cmp_eq_u32 vcc, 1, v25")
        k.e("s_lshl_b32 s3, s32, 4")
        k.e("v_add_u32 v26, s3, v24")
        k.e("v_cndmask_b32 v28, v28, v29, vcc")
        k.e("v_lshl_add_u32 v28, v24, 8, v28")
        k.e("v_mul_u32_u24 v26, 7168, v26")
        k.e("v_lshlrev_b32 v24, 1, v24")
        k.e("v_xor_b32 v24, v24, v25")
        k.e("v_xor_b32 v25, 8, v24")
        k.e("v_lshl_add_u32 v24, v24, 4, v26")
        k.e("v_lshl_add_u32 v25, v25, 4, v26")
        k.e("s_lshl_b32 s3, s92, 12")
        for q in range(4):
            k.e(f"buffer_load_dwordx4 {A(XS+4*q,4)}, v28, s[20:23], s3 offen offset:{q*1024} sc1")
        ops = []
        for m, srd in enumerate((24, 68)):
            for h in range(2):
                for q in range(4):
                    pre = [f"s_add_u32 m0, s54, {m*32768 + h*16384}"] if q == 0 else []
                    ops.append((pre + [f"s_add_u32 s3, s5, {h*64*7168 + q*27648}"],
                                f"buffer_load_dwordx4 v{24 + (q >> 1)}, {S(srd,4)}, s3 offen offset:{q*1024}{ffn_ld} lds"))
        return ops
    def ffn_finish():
        k.e("v_lshrrev_b32 v24, 4, v0")
        k.e("v_bfe_u32 v25, v0, 2, 2")
        k.e("v_lshl_add_u32 v26, v24, 3, v25")
        k.e("v_lshlrev_b32 v26, 8, v26")
        k.e("v_and_b32 v27, 3, v0")
        k.e("v_lshl_add_u32 v26, v27, 3, v26")
        k.e("v_and_b32 v27, 1, v24")
        k.e("v_lshl_add_u32 v25, v27, 2, v25")
        k.e("s_lshl_b32 s3, s32, 1")
        k.e("v_xor_b32 v25, s3, v25")
        k.e("v_lshl_add_u32 v26, v25, 5, v26")
        k.e("s_sub_u32 s3, s54, s44")
        k.e("v_add_u32 v26, s3, v26")
        k.e("v_xor_b32 v27, 32, v26")
        k.e("s_waitcnt vmcnt(8) lgkmcnt(0)")
        k.e("s_barrier")
        for m in range(2):
            for q in range(4):
                for j in range(2):
                    for rd in range(2):
                        k.e(f"ds_read_b64_tr_b16 {V(128 + 32*m + 8*q + 4*j + 2*rd, 2)}, v{26+j} offset:{m*32768 + q*8192 + rd*1024}", tag=f'f{m}')
        k.e("v_and_b32 v25, 15, v0")
        k.e("v_mul_u32_u24 v28, 14336, v25")
        k.e("v_lshl_add_u32 v28, v24, 4, v28")
        k.e(f"v_mov_b32 v29, {BIG}")
        k.e("v_cmp_gt_u32 vcc, 2, v25")
        k.e(f"s_mul_i32 s3, s92, {4*14336}")
        k.e("s_lshl_b32 s47, s4, 9")
        k.e("s_add_u32 s3, s3, s47")
        k.e("v_cndmask_b32 v28, v29, v28, vcc")
        k.e("s_lshl_b32 s47, s32, 7")
        k.e("s_add_u32 s3, s3, s47")
        k.e(f"s_add_u32 s3, s3, {WS_HP}")
        for m in range(2):
            k.wait_ds(f'f{m}')
            for q in range(4):
                for j in range(2):
                    d = V(224 + 8 * m + 4 * j, 4)
                    k.e(mfma(d, V(128 + 32*m + 8*q + 4*j, 4), A(XS + 4*q, 4), d if q else "0"))
    def ffn_store():
        k.e("s_cmp_lg_u32 s34, 0")
        k.e(f"s_cselect_b32 s3, s3, {1 << 23}")
        k.e(f"s_add_u32 s7, s3, {2*14336}")
        for m in range(2):
            for j in range(2):
                k.e(f"buffer_store_dwordx4 {V(224 + 8*m + 4*j, 4)}, v28, s[20:23], s{7 if m else 3} offen offset:{j*64} sc1", tag='hps')

    def kread(reg, off, kb):
        return [f"ds_read_b128 {A(FR(kb,s_),4)}, v{reg} offset:{off + (kb*4+s_)*1024}" for s_ in range(4)]
    def vread(reg, off, vg):
        return [f"ds_read_b128 {A(FR(vg,j),4)}, v{reg} offset:{off + (vg*4+j)*1024}" for j in range(4)]
    def qk_mfmas(par, nq, zero=False):
        out = []
        for kb in range(4):
            grp = []
            for qb in range(nq):
                d = V(Sr(par, qb, kb), 4)
                for s_ in range(4):
                    c = d if s_ else ("0" if zero else V(NEGM + 4 * qb, 4))
                    grp.append(mfma(d, A(FR(kb, s_), 4), A(Q(qb, s_), 4), c))
            out.append(grp)
        return out
    def pv_mfmas(par, nq):
        out = []
        for vg in range(4):
            grp = []
            for dd in range(2):
                for qb in range(nq):
                    for ks in range(2):
                        o = A(O(qb, 2 * vg + dd), 4)
                        grp.append(mfma(o, A(FR(vg, 2 * dd + ks), 4), V(P(par, qb, ks), 4), o))
            if vg < nq:
                for ks in range(2):
                    l = V(LS + 4 * vg, 4)
                    grp.append(mfma(l, V(ONES, 4), V(P(par, vg, ks), 4), l))
            out.append(grp)
        return out
    def sm_pairs(par, nq, ks):
        out = []
        for kq in range(2):
            for qb in range(nq):
                s0 = Sr(par, qb, 2 * ks + kq)
                for h in range(2):
                    out.append((s0 + 2 * h, s0 + 2 * h + 1, P(par, qb, ks) + 2 * kq + h))
        return out
    class SM:
        def __init__(self, pairs, first, check):
            self.pairs = pairs; self.ne = 0; self.nc = 0; self.no = 0; self.first = first
            self.tail = [f"v_and_b32 v{T0}, 0x40004000, v{ORR}", f"v_cmp_ne_u32 vcc, 0, v{T0}"] if check else []
            self.e_done = 0; self.extra = []
        def tick(self): self.e_done = self.ne
        def exp_ready(self): return self.ne < 2 * len(self.pairs) and self.ne // 2 - self.nc < 4
        def exp(self):
            j, h = self.ne // 2, self.ne & 1; self.ne += 1
            return f"v_exp_f32 v{ET + 2*(j % 4) + h}, v{self.pairs[j][h]}"
        def plain_avail(self):
            n = min(self.e_done // 2, len(self.pairs)) - self.nc
            n += self.nc // 2 - self.no
            if self.no == len(self.pairs) // 2: n += len(self.tail)
            return n + len(self.extra)
        def plain(self):
            if self.nc < min(self.e_done // 2, len(self.pairs)):
                j = self.nc; self.nc += 1
                return f"v_cvt_pk_bf16_f32 v{self.pairs[j][2]}, v{ET + 2*(j % 4)}, v{ET + 2*(j % 4) + 1}"
            if self.no < self.nc // 2:
                j = self.no; self.no += 1
                a, b = self.pairs[2 * j][2], self.pairs[2 * j + 1][2]
                if self.first and j == 0: return f"v_or_b32 v{ORR}, v{a}, v{b}"
                return f"v_or3_b32 v{ORR}, v{ORR}, v{a}, v{b}"
            if self.no == len(self.pairs) // 2 and self.tail: return self.tail.pop(0)
            if self.extra: return self.extra.pop(0)
            return None
        def left_exp(self): return 2 * len(self.pairs) - self.ne
        def left_plain(self): return len(self.pairs) - self.nc + len(self.pairs) // 2 - self.no + len(self.tail) + len(self.extra)
        def done(self): return self.left_exp() == 0 and self.left_plain() == 0
        def drain(self):
            while not self.done():
                self.tick()
                if self.exp_ready():
                    k.e(self.exp())
                    if self.exp_ready(): k.e(self.exp())
                    x = self.plain()
                    if x: k.e(x)
                else:
                    k.e(self.plain())
    def phase(groups, gtags, reads, rtags, sm, vm, nexttag):
        total = sum(len(g) for g in groups)
        vmpos = {}
        if vm:
            step = max(2, (total - 2) // len(vm))
            for j, x in enumerate(vm): vmpos[1 + j * step] = x
        n = 0
        k.wait_ds(gtags[0])
        for gi, grp in enumerate(groups):
            rq = list(reads[gi])
            for mi, m in enumerate(grp):
                k.e(m)
                sm.tick()
                scal = []
                if n + 1 in vmpos: scal += vmpos[n + 1][0]
                lastm = mi == len(grp) - 1
                if n in vmpos:
                    for s in scal: k.e(s)
                    k.e(vmpos[n][1], tag='kv')
                    slots = 0
                else:
                    for s in scal: k.e(s)
                    if lastm:
                        nt = gtags[gi + 1] if gi + 1 < len(groups) else nexttag
                        if nt: k.wait_ds(nt)
                    slots = 2
                    gaps_left = len([x for x in range(n, n + len(grp) - mi) if x not in vmpos])
                    want_d = len(rq) > 0 and (sm.plain_avail() > 0 or not sm.exp_ready() or len(rq) >= gaps_left - 1)
                    if want_d:
                        k.e(rq.pop(0), tag=rtags[gi]); slots -= 1
                        if rq and (sm.plain_avail() == 0 or len(rq) >= gaps_left):
                            k.e(rq.pop(0), tag=rtags[gi]); slots -= 1
                    if slots == 2 and sm.exp_ready() and not (sm.plain_avail() >= 3 and not rq):
                        k.e(sm.exp()); slots = 0
                    while slots > 0:
                        x = sm.plain()
                        if not x: break
                        k.e(x); slots -= 1
                if lastm:
                    for s in rq: k.e(s, tag=rtags[gi])
                    nt = gtags[gi + 1] if gi + 1 < len(groups) else nexttag
                    if nt: k.wait_ds(nt)
                n += 1
        sm.drain()

    def mask_block(par, qb):
        vr = VRA if qb & 1 else VRB
        for kb in range(4):
            for r in range(4): k.e(f"v_cmp_gt_i32 s[{56+2*r}:{57+2*r}], {16*kb + r}, v{vr}")
            if kb == 0: k.e("s_nop 3")
            for r in range(4):
                x = Sr(par, qb, kb) + r
                k.e(f"v_cndmask_b32 v{x}, v{x}, v{NINF}, s[{56+2*r}:{57+2*r}]")
    def rowmax(par, qb, d, o=k):
        s0 = Sr(par, qb, 0)
        o.e(f"v_max3_f32 v{d}, v{s0}, v{s0+1}, v{s0+2}")
        for r in range(3, 15, 2): o.e(f"v_max3_f32 v{d}, v{d}, v{s0+r}, v{s0+r+1}")
        o.e(f"v_max_f32 v{d}, v{d}, v{s0+15}")
        o.e(f"v_mov_b32 v{T0}, v{d}")
        o.e(f"v_permlane16_swap_b32 v{T0}, v{d}")
        o.e(f"v_max_f32 v{d}, v{d}, v{T0}")
        o.e(f"v_mov_b32 v{T0}, v{d}")
        o.e(f"v_permlane32_swap_b32 v{T0}, v{d}")
        o.e(f"v_max_f32 v{d}, v{d}, v{T0}")
        o.e(f"v_add_f32 v{d}, {opt.get('moff', '0x41f80000')}, v{d}")
    def fallback(par, nq, nqn):
        k.e("s_nop 7")
        for qb in range(nq):
            rowmax(par, qb, 21)
            k.e("v_max_f32 v21, 0, v21")
            for r in range(16): k.e(f"v_sub_f32 v{Sr(par,qb,0)+r}, v{Sr(par,qb,0)+r}, v21")
            if qb < nqn:
                for r in range(16): k.e(f"v_sub_f32 v{Sr(par^1,qb,0)+r}, v{Sr(par^1,qb,0)+r}, v21")
            for r in range(4): k.e(f"v_sub_f32 v{NEGM+4*qb+r}, v{NEGM+4*qb+r}, v21")
            k.e("v_exp_f32 v22, -v21")
            for r in range(4): k.e(f"v_mul_f32 v{LS+4*qb+r}, v{LS+4*qb+r}, v22")
            for r0 in range(0, 32, 8):
                for r in range(8): k.e(f"v_accvgpr_read_b32 v{ET+r}, a{O(qb,0)+r0+r}")
                for r in range(8): k.e(f"v_mul_f32 v{ET+r}, v{ET+r}, v22")
                for r in range(8): k.e(f"v_accvgpr_write_b32 a{O(qb,0)+r0+r}, v{ET+r}")
        for ks in range(2):
            for (s0, s1, pd) in sm_pairs(par, nq, ks):
                k.e(f"v_exp_f32 v{ET}, v{s0}")
                k.e(f"v_exp_f32 v{ET+1}, v{s1}")
                k.e(f"v_cvt_pk_bf16_f32 v{pd}, v{ET}, v{ET+1}")
        k.e("s_nop 1")
    SPLIT = {4: (32, 16, 8), 3: (36, 18, 9), 2: (17, 8, 4), 1: (16, 8, 4), 0: (0, 0, 0)}
    def tile_sm(par, nq, start, check):
        sm = SM(sm_pairs(par, nq, 0) + sm_pairs(par, nq, 1), True, check)
        sm.ne, sm.nc, sm.no = start; sm.e_done = sm.ne
        return sm
    def pack(ngaps, vmg, dsl, sm, limit, last_sm, pre):
        plan = {}
        dsl = list(dsl)
        def exp_ok(): return sm.exp_ready() and (limit is None or sm.ne < limit[0])
        def plain_n():
            n = min(sm.e_done // 2, len(sm.pairs), limit[1] if limit else 1 << 30) - sm.nc
            n += min(sm.nc // 2, limit[2] if limit else 1 << 30) - sm.no
            if limit is None and sm.no == len(sm.pairs) // 2: n += len(sm.tail)
            return n + len(sm.extra)
        def take_plain():
            if limit is not None:
                c_ok = sm.nc < min(sm.e_done // 2, limit[1]); o_ok = sm.no < min(sm.nc // 2, limit[2])
                if not c_ok and not o_ok: return sm.extra.pop(0) if sm.extra else None
                if not c_ok:
                    keep = sm.e_done; sm.e_done = 2 * sm.nc; x = sm.plain(); sm.e_done = keep; return x
            return sm.plain()
        for g in range(-1 if pre else 0, ngaps):
            if g in vmg: sm.tick(); continue
            sm.tick()
            ops = []
            smok = g <= last_sm
            av = [d for d in dsl if d[2] <= g]
            free_to = lambda dl: len([x for x in range(g, dl + 1) if x not in vmg])
            urgent = any(sum(1 for d in dsl if d[3] <= e[3]) >= 2 * free_to(e[3]) - 1 for e in av)
            pn = plain_n() if smok else 0
            if smok and exp_ok() and not urgent and not (av and pn) and not (pn >= 3):
                ops.append((sm.exp(), None))
            else:
                slots = 2
                if av and g >= 0:
                    d = av.pop(0); dsl.remove(d); ops.append((d[0], d[1])); slots -= 1
                    if av and (pn == 0 or sum(1 for x in dsl if x[3] <= av[0][3]) >= 2 * free_to(av[0][3]) - 1):
                        d = av.pop(0); dsl.remove(d); ops.append((d[0], d[1])); slots -= 1
                while slots and smok:
                    x = take_plain()
                    if not x: break
                    ops.append((x, None)); slots -= 1
                if not ops and smok and exp_ok(): ops.append((sm.exp(), None))
            plan[g] = ops
            if g == last_sm:
                while (limit is None and not sm.done()) or (limit is not None and ((sm.ne, sm.nc, sm.no) != limit or sm.extra)):
                    sm.tick()
                    x = sm.exp() if exp_ok() else take_plain()
                    plan[g].append((x, None)); k.overflow += 1
        assert not dsl, dsl
        return plan
    k.overflow = 0
    SLK = int(opt.get('slk', -1))
    def emit_phase(mf, plan, vmg, scal, bg=None):
        for s_, tg in plan.get(-1, []): k.e(s_, tag=tg)
        for g, m in enumerate(mf):
            k.e(m)
            for x in scal.get(g, []):
                if isinstance(x, tuple): k.wait_ds(x[1])
                elif x.endswith(':'): k.label(x[:-1])
                else: k.e(x)
            if g in vmg: k.e(vmg[g], tag='kv')
            else:
                for s_, tg in plan.get(g, []): k.e(s_, tag=tg)
                if bg and not plan.get(g) and g not in scal: bg.fill(k, 99, 3)
        if bg: bg.drain(k)
    def starts(groups):
        out = [0]
        for g in groups: out.append(out[-1] + len(g))
        return out
    def iteration(par, nq, nqn, mask, name, tail):
        kreg, koff = (VX, 32768) if par == 0 else (VY, 0)
        vreg, voff = (VX, 16384) if par == 0 else (VX, 49152)
        nreg, noff = (VY, 0) if par == 0 else (VY, 32768)
        last = nqn == 1
        k.hot = nqn >= 2
        ov0 = k.overflow
        fb, fr = f"L_k2_fb_{name}", f"L_k2_fbr_{name}"
        ool.append((fb, lambda: fallback(par, nq, nqn), fr))
        sm = tile_sm(par, nq, SPLIT[nq], True)
        if par == 0:
            k.e(f"v_xor_b32 v{VX}, 65536, v{VX}")
            k.e(f"v_xor_b32 v{VY}, 65536, v{VY}")
        if nqn:
            k.dq = ['k1'] * 4
            if nq == 4 and WARM: sm.extra = ["v_lshl_add_u64 v[28:29], s[40:41], 0, v[28:29]"]
            grp = qk_mfmas(par ^ 1, nqn); st_ = starts(grp); n1 = st_[-1]
            slack = SLK if nqn <= 2 else 4
            dsl = [(x, 'k2', 0, st_[1] + slack) for x in kread(kreg, koff, 2)] + [(x, 'k3', 0, st_[2] + slack) for x in kread(kreg, koff, 3)] + \
                  [(x, 'v0', st_[1], st_[3] + slack) for x in vread(vreg, voff, 0)] + [(x, 'v1', st_[2], n1 - 1) for x in vread(vreg, voff, 1)]
            scal = {}
            add = lambda g, xs: scal.setdefault(g, []).extend(xs)
            add(st_[1] - 1, [('w', 'k1')]); add(st_[2] - 1, [('w', 'k2')]); add(st_[3] - 1, [('w', 'k3')])
            vmw = "s_waitcnt vmcnt(8)" if last else "s_waitcnt vmcnt(12)"
            if nq == 2:
                add(n1 - 7, ["s_cmp_lt_u32 s37, s52"])
                add(n1 - 6, [f"s_cbranch_scc1 L_nw_{name}", vmw, f"L_nw_{name}:"])
            else:
                add(n1 - 5, [vmw])
            if mask and mask[1]: add(n1 - 4, [f"s_cmp_eq_u32 s37, s{mask[1]}"])
            add(n1 - 3, ["s_barrier"]); add(n1 - 2, [('w', 'v0')]); add(n1 - 1, [f"s_cbranch_vccnz {fb}", fr + ":"])
            vmg = {}
            if not last:
                step = (n1 - 8) / 4
                for j in range(4):
                    q = int(1 + j * step)
                    while q in scal or (j == 0 and q - 1 in scal): q += 1
                    vmg[q] = f"buffer_load_dwordx4 v{VDMA}, s[12:15], s38 offen offset:{j*1024}{kv_ld} lds"
                    if j == 0: scal[q - 1] = ["s_mov_b32 m0, s53" if par == 0 else "s_add_u32 m0, s53, 32768"]
            plan = pack(n1, vmg, dsl, sm, None, n1 - 2, par == 1)
            emit_phase(sum(grp, []), plan, vmg, scal)
        else:
            k.dq = ['v1'] * 4
            sm.drain()
            k.e(f"s_cbranch_vccnz {fb}")
            k.label(fr)
        grp = pv_mfmas(par, nq); st_ = starts(grp); n2 = st_[-1]
        slack = SLK if nq <= 2 else 4
        dsl = [(x, 'v2', 0, st_[1] + slack) for x in vread(vreg, voff, 2)] + [(x, 'v3', 0, st_[2] + slack) for x in vread(vreg, voff, 3)]
        scal = {st_[1] - 1: [('w', 'v1')], st_[2] - 1: [('w', 'v2')], st_[3] - 1: [('w', 'v3')]}
        vmg = {}
        if nqn:
            nx = [vread(VX, 49152, 0), vread(VX, 49152, 1)] if last else [kread(nreg, noff, 0), kread(nreg, noff, 1)]
            dsl += [(x, 'k0', st_[1], st_[3] + slack - 1) for x in nx[0]] + [(x, 'k1', st_[2], n2 - 2) for x in nx[1]]
            if mask:
                mb, mr = f"L_k2_mk_{name}", f"L_k2_mkr_{name}"
                ool.append((mb, lambda: mask_block(par ^ 1, mask[0]), mr))
                scal[0] = [f"s_cbranch_scc1 {mb}" if mask[1] else f"s_branch {mb}", mr + ":"]
            scal[n2 - 2] = [('w', 'k0')]
            if tail: scal[n2 - 3] = [tail[0]]; scal[n2 - 1] = [tail[1]]
            def put(x, lo):
                q = lo
                while q in scal or q in vmg: q += 1
                assert q < n2 - 3, (x, q)
                scal[q] = [x]
            if last:
                ops = ffn_issue()
                for j, (pre, ld) in enumerate(ops):
                    q = 2 + 2 * j
                    vmg[q] = ld
                    scal.setdefault(q - 1, []).extend(pre)
                    if q in scal: scal[q - 1].extend(scal.pop(q))
            else:
                mv = "s_add_u32 m0, s54, 49152" if par == 0 else "s_add_u32 m0, s53, 16384"
                vm = [f"buffer_load_dwordx4 v{VDMA}, s[12:15], s39 offen offset:{j*1024}{kv_ld} lds" for j in range(4)]
                if nq == 4 and WARM: vm.append("global_load_dword v30, v[28:29], off")
                step = (n2 - 4) / len(vm)
                pos = []
                for j in range(len(vm)):
                    q = int(2 + j * step)
                    while q in scal or q in vmg or (j == 0 and q - 1 in scal): q += 1
                    vmg[q] = vm[j]; pos.append(q)
                    if j == 0: scal[q - 1] = [mv]
                if name == "ne":
                    q = 3
                    while any(x in scal or x in vmg for x in (q, q + 1)): q += 1
                    scal[q] = ["s_cmp_eq_u32 s37, s52"]; scal[q + 1] = ["s_cbranch_scc1 L_pubB", "L_pubBr:"]
                    def pubB():
                        k.e("v_mov_b32 v24, 1"); k.e("v_mov_b32 v25, 0")
                        k.e("s_mov_b64 exec, 1")
                        k.e("buffer_store_dword v24, v25, s[20:23], s64 offen sc1")
                        k.e("s_mov_b64 exec, -1")
                    ool.append(("L_pubB", pubB, "L_pubBr"))
                    put("s_add_u32 s37, s37, 1", q + 2)
                else:
                    put("s_add_u32 s37, s37, 1", 1)
                put(f"s_add_u32 s38, s38, {KV_TILE}", 1)
                if par == 1:
                    put("s_xor_b32 s53, s53, 65536", pos[0]); put("s_xor_b32 s54, s54, 65536", pos[0])
                put(f"s_add_u32 s39, s39, {KV_TILE}", pos[3] + 1)
        sm = tile_sm(par ^ 1, nqn, (0, 0, 0), False)
        lastg = n2 - 2 if nqn else n2 - 1
        while lastg in vmg: lastg -= 1
        plan = pack(n2 - 1 if nqn else n2, vmg, dsl, sm, SPLIT[nqn], lastg, False)
        emit_phase(sum(grp, []), plan, vmg, scal, None if nqn else p4_setup(opt))
        print(f"iteration {name}: overflow ops {k.overflow - ov0}")
        k.hot = False
    def epilogue(q0, srow):
        k.e(f"s_lshl_b32 s3, s{srow}, 20")
        k.e("s_lshl_b32 s47, s33, 15")
        k.e("s_add_u32 s3, s3, s47")
        k.e("s_lshl_b32 s47, s32, 10")
        k.e("v_lshlrev_b32 v248, 4, v0")
        k.e("v_add_u32 v249, s47, v248")
        k.e("s_sub_u32 s47, 7168, s47")
        k.e("v_add_u32 v248, s47, v248")
        for qq in range(2):
            k.e(f"v_rcp_f32 v{250+2*qq}, v{LS+4*(q0+qq)}")
        for qq in range(2):
            k.e(f"v_mov_b32 v{251+2*qq}, v{250+2*qq}")
        for s_ in range(4):
            for qq in (1, 0):
                o = O(q0 + qq, 2 * s_)
                d = 24 + 4 * qq
                for r in range(8): k.e(f"v_accvgpr_read_b32 v{240+r}, a{o+r}")
                for r in range(0, 8, 2): k.e(f"v_pk_mul_f32 {V(240+r,2)}, {V(240+r,2)}, {V(250+2*qq,2)}")
                for r in range(4): k.e(f"v_cvt_pk_bf16_f32 v{d+r}, v{240+2*r}, v{240+2*r+1}")
                k.e(f"buffer_store_dwordx4 {V(d,4)}, v{248+qq}, s[16:19], s3 offen{opt.get('ctx_st',' sc1')}")
            if s_ < 3: k.e("s_add_u32 s3, s3, 8192")

    for kb in range(2, 4):
        for s in kread(VY, 0, kb): k.e(s, tag=f'k{kb}')
    def first_max(o, qb):
        rowmax(0, qb, 22, o)
        if PKM:
            o.e("v_sub_f32 v22, 0, v22"); o.e("v_mov_b32 v23, v22")
            for r in range(0, 16, 2): o.e(f"v_pk_add_f32 {V(Sr(0,qb,0)+r,2)}, {V(Sr(0,qb,0)+r,2)}, v[22:23]")
            for r in range(4): o.e(f"v_mov_b32 v{NEGM+4*qb+r}, v22")
        else:
            for r in range(16): o.e(f"v_sub_f32 v{Sr(0,qb,0)+r}, v{Sr(0,qb,0)+r}, v22")
            for r in range(4): o.e(f"v_sub_f32 v{NEGM+4*qb+r}, 0, v22")
    c = b2
    c.items += conv_items(2) + conv_items(3)
    for r in list(range(XR(30, 0), XR(30, 0) + 16)) + list(range(XR(31, 0), XR(31, 0) + 16)): c.e(f"v_accvgpr_write_b32 a{r}, 0")
    for r in range(4): c.e(f"v_mov_b32 v{ONES+r}, 0x3f803f80")
    c.e(f"v_mov_b32 v{NINF}, 0xff800000")
    first_max(c, 0); first_max(c, 1)
    for qb in range(4):
        while any(it[0] == 'mark' and it[1] == f'conv{qb}' for it in c.items): c.fill(k, 99, 2)
        for kb in range(4):
            k.wait_ds(f'k{kb}')
            if qb == 3 and kb == 2:
                k.e(f"s_waitcnt vmcnt({min(k.vm_n('c18'), k.vm_n('c17'))})")
                assert k.vm_n('wts') is None
                k.e("s_barrier")
                if WOT:
                    k.e("s_mov_b64 exec, 1")
                    k.e("buffer_store_dword v24, v25, s[20:23], s52 offen sc1")
                    k.e("s_mov_b64 exec, -1")
                k.e("s_add_u32 s53, s44, 65536")
            for s_ in range(4):
                d = V(Sr(0, qb, kb), 4)
                k.e(mfma(d, A(FR(kb, s_), 4), A(Q(qb, s_), 4), d if s_ else "0"))
                if qb == 3 and kb >= 2: k.e(kread(VY, 32768, kb - 2)[s_], tag=f'n{kb-2}')
                c.fill(k, 99, int(opt.get('pslots', 4)))
    c.drain(k)
    k.e(f"s_mov_b32 s38, {4*KV_TILE}")
    k.e(f"s_mov_b32 s39, {3*KV_TILE + KV_CH}")
    k.e("s_cmp_lg_u32 s34, 0")
    k.e("s_cbranch_scc1 L_k2_nomask0")
    mask_block(0, 3)
    k.label("L_k2_nomask0")
    k.e("s_mov_b32 s37, 0")
    first_max(k, 2); first_max(k, 3)
    SM(sm_pairs(0, 4, 0), True, False).drain()
    k.e("s_waitcnt lgkmcnt(4)")
    k.stamp(ST or SA)

    k.e("s_cmp_eq_u32 s34, 0")
    k.e("s_cbranch_scc1 L_k2_wlast")
    k.label("L_k2_wloop")
    iteration(0, 4, 4, None, "we", [])
    iteration(1, 4, 4, (3, 46), "wo", ["s_cmp_lg_u32 s37, s35", "s_cbranch_scc1 L_k2_wloop"])
    k.label("L_k2_wlast")
    iteration(0, 4, 3, (2, None), "wl", [])
    iteration(1, 3, 2, (1, 45), "tr", [])
    k.stamp(SA)
    if '4' in CPF: emit(code_prefetch("L_k2_fin", "L_p4_end", 32, 56, 160, 164))
    k.e("s_waitcnt vmcnt(9)")
    epilogue(2, 34)
    k.e("s_add_u32 s52, s37, 2")
    for s in p4_ptr_loads(): k.e(s)
    k.e("s_waitcnt vmcnt(8) lgkmcnt(0)")
    k.stamp(SA)
    k.e("s_cmp_eq_u32 s34, 7")
    k.e("s_cbranch_scc1 L_k2_fin")
    k.label("L_k2_nloop")
    iteration(0, 2, 2, None, "ne", [])
    iteration(1, 2, 2, (1, 45), "no", ["s_cmp_lg_u32 s37, s36", "s_cbranch_scc1 L_k2_nloop"])
    k.label("L_k2_fin")
    k.stamp(SA)
    iteration(0, 2, 1, (0, None), "nl", [])
    iteration(1, 1, 0, None, "fi", [])
    k.stamp(ST or SA)
    k.e("s_nop 7")
    epilogue(0, 55)
    k.stamp(SA)
    ffn_finish()
    k.stamp(SA)
    k.e("v_mov_b32 v24, 1")
    k.e("v_mul_u32_u24 v25, s65, v0")
    k.e("s_waitcnt vmcnt(0)")
    k.e("s_barrier")
    k.e("s_mov_b64 exec, 3")
    k.e("buffer_store_dword v24, v25, s[20:23], s64 offen sc1")
    k.e("s_mov_b64 exec, -1")
    ffn_store()
    k.stamp(ST or SA)
    phase4(k, opt, ool, ST, SA)
    k.stamp_dump('stamp' in opt, 66, 0, 32)
    if 'hold' in opt:
        k.e("s_lshl_b32 s3, s32, 8")
        k.e("s_or_b32 s3, s2, s3")
        k.e(f"s_cmp_lg_u32 s3, {opt.get('holdwg', 0)}")
        if opt.get('holdwg') != '999': k.e("s_cbranch_scc1 L_k2_end")
        k.label("L_hold")
        k.e("s_memrealtime s[4:5]")
        k.e("s_waitcnt lgkmcnt(0)")
        k.e(f"s_sub_u32 s3, s4, s{73 + 2 * int(opt.get('holdk', 0))}")
        k.e(f"s_cmp_lt_u32 s3, {int(opt['hold']) * 100}")
        k.e("s_cbranch_scc1 L_hold")
    k.label("L_k2_end")
    k.e("s_endpgm")
    hotool = [x for x in ool if x[0].startswith(("L_f2", "L_c3", "L_spinC", "L_yA", "L_yB", "L_yC"))]
    for lab, fn, ret in hotool + [("L_p4_end", None, None)] + [x for x in ool if x not in hotool]:
        k.label(lab)
        if fn is None: continue
        k.win = []; k.dq = []
        fn()
        k.e(f"s_branch {ret}")
    return k.wrap(256, 256), f"; @launch {'kernel=' + KNAME + ' ' if 'aslist' in opt else ''}grid=(256,1,1) block=(256,1,1) lds={K12_LDS}"
```

```python
from fw import *
from layout import *
BIG = 0x7ff00000

def rbf2(k, a, b, t):
    k.e(f"v_cvt_pk_bf16_f32 v{t}, v{a}, v{b}")
    k.e(f"v_lshlrev_b32 v{a}, 16, v{t}")
    k.e(f"v_and_b32 v{b}, 0xffff0000, v{t}")

def silu_n(k, regs, tmps):
    for r, t in zip(regs, tmps): k.e(f"v_mul_f32 v{t}, 0xbfb8aa3b, v{r}")
    for r, t in zip(regs, tmps): k.e(f"v_exp_f32 v{t}, v{t}")
    for r, t in zip(regs, tmps): k.e(f"v_add_f32 v{t}, 1.0, v{t}")
    for r, t in zip(regs, tmps): k.e(f"v_rcp_f32 v{t}, v{t}")
    for r, t in zip(regs, tmps): k.e(f"v_mul_f32 v{r}, v{r}, v{t}")

VC, VW, TA, VO, VROW, G, L7, L3, T1, T2, VZ, VF = 112, 114, 115, 119, 120, 121, 122, 123, 124, 125, 126, 127
GTMP, XP, STT, GT, YB = 2, 18, 34, 42, 80

def srd_rec(b, d, base, nbytes, add=None):
    if add is None:
        b.e(f"s_mov_b32 s{d}, s{base}"); b.e(f"s_and_b32 s{d+1}, s{base+1}, 0xffff")
    else:
        b.blk([f"s_add_u32 s{d}, s{base}, {add}", f"s_addc_u32 s{d+1}, s{base+1}, 0", f"s_and_b32 s{d+1}, s{d+1}, 0xffff"])
    b.e(f"s_mov_b32 s{d+2}, {nbytes}"); b.e(f"s_mov_b32 s{d+3}, 0x20000")

def p4_ptr_loads():
    return ["s_load_dwordx2 s[94:95], s[0:1], 40", "s_load_dwordx2 s[40:41], s[0:1], 0", "s_load_dwordx4 s[8:11], s[0:1], 80"]

def p4_setup(opt):
    b = Rec()
    srd_rec(b, 60, 8, 7340032)
    srd_rec(b, 68, 10, 4194304)
    srd_rec(b, 56, 40, 4194304)
    b.e("s_bfe_u32 s6, s2, 0x20001")
    b.e("s_lshr_b32 s7, s34, 1")
    b.e("s_lshl_b32 s45, s7, 2")
    b.e("s_add_u32 s46, s45, s6")
    b.e("s_sub_u32 s46, 15, s46")
    b.e("s_sub_u32 s45, 12, s45")
    b.e("s_add_u32 s45, s45, s6")
    b.blk(["s_cmp_lt_u32 s7, 2", "s_cselect_b32 s45, s46, s45"])
    b.e("s_and_b32 s46, s2, 1")
    b.e("s_lshl_b32 s46, s46, 3")
    b.e("s_bfe_u32 s6, s2, 0x30003")
    b.e("s_add_u32 s46, s46, s6")
    for j in range(4): b.e(f"s_mov_b32 s{48+j}, {j*15360}")
    b.e("s_lshl_b32 s35, s32, 15")
    b.e("s_lshl_b32 s6, s45, 20")
    b.e("s_lshl_b32 s7, s32, 18")
    b.e("s_add_u32 s6, s6, s7")
    b.e(f"s_add_u32 s6, s6, {WS_CTX}")
    srd_rec(b, 8, 66, 262144, "s6")
    b.e("s_lshl_b32 s7, s46, 7")
    WOT = opt.get('wot', '0') == '1'
    if WOT:
        b.e(f"s_mul_i32 s6, s46, {WO_NT}")
        b.e("s_lshl_b32 s36, s32, 17")
        b.e("s_add_u32 s6, s6, s36")
        b.e(f"s_add_u32 s6, s6, {WS_WOT}")
        srd_rec(b, 12, 66, 131072, "s6")
        b.e("s_mov_b32 s94, 0")
    else:
        b.e("s_lshl_b32 s6, s32, 21")
        b.e("s_add_u32 s6, s6, s7")
        srd_rec(b, 12, 94, 0, "s6")
        b.e("s_sub_u32 s14, 2097152, s7")
        srd_rec(b, 28, 94, 8388608)
    b.e("s_lshl_b32 s36, s45, 18")
    b.e("s_add_u32 s36, s36, s7")
    b.e("s_mov_b32 s52, 0")
    b.e("s_lshl_b32 s38, s45, 7")
    b.e("s_lshl_b32 s6, s32, 5")
    b.e("s_add_u32 s38, s38, s6")
    b.e(f"s_add_u32 s38, s38, {WS_CFL}")
    b.e(f"v_lshlrev_b32 v{VC}, 4, v0")
    b.e(f"v_add_u32 v{VC+1}, 4096, v{VC}")
    b.e(f"v_lshrrev_b32 v{G}, 4, v0")
    b.e(f"v_and_b32 v{L7}, 7, v0")
    b.e(f"v_lshrrev_b32 v{L3}, 3, v0")
    b.e(f"v_lshlrev_b32 v{T1}, 1, v{G}")
    b.e(f"v_xor_b32 v{T1}, v{T1}, v{L7}")
    b.e(f"v_lshlrev_b32 v{T1}, 4, v{T1}")
    b.e(f"v_lshl_add_u32 v{VW}, v{L3}, 11, v{T1}")
    b.e(f"v_lshrrev_b32 v{T1}, 2, v0")
    b.e(f"v_bfe_u32 v{VZ}, v0, 3, 2")
    b.e(f"v_lshlrev_b32 v{T1}, 7, v{T1}")
    b.e(f"v_and_b32 v{T2}, 3, v0")
    b.e(f"v_lshl_add_u32 v{T1}, v{T2}, 3, v{T1}")
    b.e(f"v_add_u32 v{T1}, s35, v{T1}")
    for cb in range(4):
        b.e(f"v_xor_b32 v{T2}, {cb}, v{VZ}")
        b.e(f"v_lshl_add_u32 v{TA+cb}, v{T2}, 5, v{T1}")
    b.e("s_lshl_b32 s6, s32, 3")
    b.e(f"v_add_u32 v{VROW}, s6, v{L3}")
    b.e(f"v_lshlrev_b32 v{VO}, 11, v{VROW}")
    b.e(f"v_lshl_add_u32 v{VO}, v{L7}, 4, v{VO}")
    b.e(f"v_mov_b32 v{VZ}, 0")
    b.e(f"v_lshlrev_b32 v{VF}, 2, v{L7}")
    if not WOT: return b
    b.e("s_and_b32 s95, s2, 1")
    b.e("s_lshl_b32 s95, s95, 2")
    b.e("s_add_u32 s95, s95, s32")
    b.e("s_lshl_b32 s95, s95, 7")
    b.e(f"s_add_u32 s95, s95, {WS_WFL}")
    b.e(f"v_and_b32 v{T2}, 31, v0")
    b.e(f"v_lshlrev_b32 v{T2}, 2, v{T2}")
    b.e(f"buffer_load_dword v{T1}, v{T2}, s[20:23], s95 offen sc1")
    return b

def phase4(k, opt, ool, ST, SA):
    ACC = lambda rb, cb: 128 + (rb * 4 + cb) * 4
    CF = lambda n, rb: (n % 4) * 32 + rb * 4
    WOT = opt.get('wot', '0') == '1'
    WD_ = 3 if WOT else 4
    WF = lambda n, cb: 128 + (n % 4) * 16 + cb * 4
    def w_ops(n):
        if n >= 32: return []
        if not WOT:
            return ([('s', f"s_add_u32 m0, s35, {(n % 4)*4096}")] +
                    [('g', f"buffer_load_dwordx4 v{VW}, s[12:15], s{48+j} offen offset:{j*1024} lds") for j in range(4)] +
                    [('v', f"v_add_u32 v{VW}, 65536, v{VW}")])
        return ([('g', f"buffer_load_dwordx4 {A(WF(n,cb),4)}, v{VC}, s[12:15], s94 offen offset:{cb*1024} sc1") for cb in range(4)] +
                [('s', "s_add_u32 s94, s94, 4096")])
    def c_ops(n):
        if n >= 32: return []
        return ([('g', f"buffer_load_dwordx4 {A(CF(n,rb),4)}, v{VC + (rb >> 2)}, s[8:11], s52 offen offset:{(rb & 3)*1024}{opt.get('ctx_ld', ' sc1')}") for rb in range(8)] +
                [('s', "s_add_u32 s52, s52, 8192")])
    def wreads(n):
        return [[f"ds_read_b64_tr_b16 {A(WF(n,cb)+2*rd,2)}, v{TA+cb} offset:{(n % 4)*4096 + rd*2048}" for rd in range(2)] for cb in range(4)]
    def col3(part, nparts):
        rows = 64 // nparts
        k.e("s_bfe_u32 s3, s2, 0x40003")
        k.e(f"s_mul_i32 s3, s3, {rows * 2048}")
        k.e("s_lshl_b32 s7, s32, 21")
        k.e("s_add_u32 s3, s3, s7")
        k.e("s_and_b32 s7, s2, 1")
        k.e("s_lshl_b32 s7, s7, 10")
        k.e("s_add_u32 s3, s3, s7")
        k.e(f"s_add_u32 s3, s3, {384 + part * (1024 // nparts) * 2048}")
        k.e(f"v_and_b32 v11, {rows - 1}, v0")
        k.e("v_lshlrev_b32 v11, 11, v11")
        k.e("buffer_load_dword v17, v11, s[28:31], s3 offen")
    def gates(o, p, ysrc=None):
        g0 = GT + 8 * p
        for d in range(4):
            o.e(f"v_lshlrev_b32 v{g0+2*d}, 16, v{XP+4*p+d}")
            o.e(f"v_and_b32 v{g0+2*d+1}, 0xffff0000, v{XP+4*p+d}")
        for e_ in range(8): o.e(f"v_sub_f32 v{g0+e_}, v{g0+e_}, v{STT+2*p}")
        for d in range(4): rbf2(o, g0 + 2*d, g0 + 2*d + 1, GTMP + d)
        for e_ in range(8): o.e(f"v_mul_f32 v{g0+e_}, v{g0+e_}, v{STT+2*p+1}")
        for d in range(4): rbf2(o, g0 + 2*d, g0 + 2*d + 1, GTMP + d)
        if ysrc is not None:
            for e_ in range(8): o.e(f"v_add_f32 v{g0+e_}, v{g0+e_}, v{ysrc+e_}")
            for d in range(4): rbf2(o, g0 + 2*d, g0 + 2*d + 1, GTMP + d)
        silu_n(o, [g0 + e_ for e_ in range(8)], [GTMP + e_ for e_ in range(8)])
        for d in range(4): rbf2(o, g0 + 2*d, g0 + 2*d + 1, GTMP + d)

    C3 = int(opt.get('c3', 2))
    if WOT:
        k.e(f"v_cmp_ne_u32 vcc, 1, v{T1}")
        k.e("s_cbranch_vccnz L_spinW")
        k.label("L_spinWr")
        ool.append(("L_spinW", lambda: poll_loop("L_spinWl", "s95", T2, T1), "L_spinWr"))
    k.e(f"buffer_load_dword v{T1}, v{VF}, s[20:23], s38 offen sc1", tag='cp')
    for n in range(WD_):
        for t, s in w_ops(n): k.e(s, tag=f'w{n}')
    k.e("s_and_b32 s39, s2, 15")
    k.e("s_lshr_b32 s37, s2, 4")
    k.e("s_sub_u32 s37, s37, 2")
    k.e("s_lshl_b32 s54, s37, 2")
    k.e("s_add_u32 s54, s54, s32")
    k.e("s_lshl_b32 s3, s54, 17")
    k.e("s_lshl_b32 s7, s39, 7")
    k.e("s_add_u32 s3, s3, s7")
    k.e("s_cmp_ge_u32 s2, 32")
    k.e(f"s_cselect_b32 s3, s3, {BIG}")
    k.e(f"v_and_b32 v{T2}, 0xffff, v{VW}")
    k.e(f"v_add_u32 v{T2}, s3, v{T2}")
    def wd_dma():
        n0 = len(k.vq)
        for q in range(2):
            k.e(f"s_add_u32 m0, s35, {16384 + q*4096}")
            for j in range(4):
                k.e(f"buffer_load_dwordx4 v{T2}, s[60:63], s{48+j} offen offset:{j*1024} lds")
            if q == 0: k.e(f"v_add_u32 v{T2}, 65536, v{T2}")
        del k.vq[n0:]
    k.e("s_mov_b32 s40, 0")
    k.wait_vm('cp')
    k.e(f"v_cmp_ne_u32 vcc, 1, v{T1}")
    k.e("s_cbranch_vccnz L_spinC")
    k.label("L_spinCr")
    def spinC():
        wd_dma()
        k.e("s_mov_b32 s40, 1")
        k.e("s_mov_b32 s47, 0x400000")
        k.label("L_spinC_l")
        k.e(f"s_sleep {opt.get('slpc', 4)}")
        k.e(f"buffer_load_dword v{T1}, v{VF}, s[20:23], s38 offen sc1")
        k.e("s_sub_u32 s47, s47, 1")
        k.e("s_cmp_eq_u32 s47, 0")
        k.e("s_cbranch_scc1 L_spinCx")
        k.e("s_waitcnt vmcnt(0)")
        k.e(f"v_cmp_ne_u32 vcc, 1, v{T1}")
        k.e("s_cbranch_vccnz L_spinC_l")
        k.label("L_spinCx")
        k.e("s_waitcnt vmcnt(0)")
    ool.append(("L_spinC", spinC, "L_spinCr"))
    k.stamp(ST or SA)
    for n in range(3):
        for t, s in c_ops(n): k.e(s, tag=f'c{n}')
    k.e("s_cmp_lg_u32 s40, 0")
    k.e("s_cbranch_scc1 L_nowd")
    wd_dma()
    k.label("L_nowd")
    if C3 and not WOT:
        k.e("s_cmp_lt_u32 s2, 128")
        k.e("s_cbranch_scc1 L_noc3")
        col3(0, C3)
        k.vq.pop()
        k.label("L_noc3")

    b = Rec()
    b.e(f"v_mov_b32 v{T2}, 1")
    b.e("s_lshl_b32 s6, s4, 3")
    b.e("s_add_u32 s6, s6, s92")
    b.e("s_lshl_b32 s6, s6, 2")
    b.e(f"s_add_u32 s6, s6, {WS_HFL}")
    b.blk(["s_cmp_eq_u32 s32, 0", "s_cselect_b32 s6, s6, s64", "s_cmp_lg_u32 s34, 0", f"s_cselect_b32 s6, s6, {BIG}"])
    b.check_clear('hps')
    b.e("s_barrier")
    b.blk(["s_mov_b64 exec, 1", f"buffer_store_dword v{T2}, v{VZ}, s[20:23], s6 offen sc1", "s_mov_b64 exec, -1"])
    b.at(1)
    b.e("s_mov_b32 s3, s36")
    for p in range(4):
        b.e(f"buffer_load_dwordx4 {V(XP+4*p,4)}, v{VO}, s[56:59], s3 offen", tag='x')
        if p < 3: b.e("s_add_u32 s3, s3, 65536")
    b.e("s_lshl_b32 s3, s45, 10")
    b.e(f"s_add_u32 s3, s3, {WS_STATS}")
    b.e(f"v_lshlrev_b32 v{T1}, 3, v{VROW}")
    for p in range(4):
        b.e(f"buffer_load_dwordx2 {V(STT+2*p,2)}, v{T1}, s[20:23], s3 offen offset:{p*256} sc1", tag='x')
    F2 = float(opt.get('f2', 3))
    b.e("s_lshl_b32 s40, s45, 7")
    b.e("s_lshl_b32 s3, s32, 3")
    b.e("s_or_b32 s40, s40, s3")
    b.blk(["s_and_b32 s3, s42, 0x798", "s_and_b32 s47, s43, 0x798", "s_cmp_eq_u32 s3, s40", "s_cselect_b32 s53, 1, 0",
           "s_cmp_eq_u32 s47, s40", "s_cselect_b32 s53, 1, s53", "s_mov_b32 s40, 0"])
    b.e("s_lshl_b32 s41, s46, 7")
    b.e(f"s_add_u32 s41, s41, {WS_YFL}")
    b.e("s_lshl_b32 s44, s46, 13")
    b.e(f"s_add_u32 s44, s44, {WS_YP}")
    b0 = Rec()
    for st_, dt in (("A", 0.4), ("B", 3.4), ("C", 6.4), ("E", 9.6)):
        b0.at(F2 + dt)
        b0.blk(["s_cmp_ge_u32 s2, 32", f"s_cbranch_scc1 L_f2{st_}", f"L_f2{st_}r:"])
    if not WOT:
        for q in range(1, C3):
            it = Rec(); it.at(q * 32 / C3 - float(opt.get('c3a', 6)))
            it.blk(["s_cmp_ge_u32 s2, 128", f"s_cbranch_scc1 L_c3{q}", f"L_c3{q}r:"])
            ool.append((f"L_c3{q}", lambda q=q: col3(q, C3), f"L_c3{q}r"))
            b0.items += it.items
        prs = sorted([(b0.items[i][1], b0.items[i], b0.items[i + 1]) for i in range(0, len(b0.items), 2)], key=lambda x: x[0])
        b0.items = [x for pr in prs for x in pr[1:]]
    b.at(4.1)
    b.wait_vm('x')
    for p in range(4): gates(b, p)
    PS = float(opt.get('k3_poll', 22))
    b.at(PS)
    b.blk(["s_cmp_lg_u32 s53, 0", "s_cbranch_scc1 L_yA", "L_yAr:"])
    b.at(PS + 3.2)
    b.blk(["s_cmp_lg_u32 s53, 0", "s_cbranch_scc1 L_yB", "L_yBr:"])
    b.at(PS + 6.4)
    b.blk(["s_cmp_lg_u32 s40, 0", "s_cbranch_scc1 L_yC", "L_yCr:"])

    if not WOT:
        k.wait_vm('w0')
        for grp in wreads(0):
            for s in grp: k.e(s)
    BS = int(opt.get('k3_bs', 2))
    for n in range(32):
        g = {}; gt = {}
        if WOT: k.wait_vm(f'c{n}')
        else:
            w = [x for x in (k.vm_n(f'c{n}'), k.vm_n(f'w{n+1}')) if x is not None]
            k.e("s_waitcnt " + (f"vmcnt({min(w)}) " if w else "") + "lgkmcnt(0)")
            if n < 31:
                for j, grp in enumerate(wreads(n + 1)): g[2 + 5 * j] = list(grp)
        vpos = [1, 3, 6, 8, 11, 13, 16, 18, 21, 23, 26, 28]
        vi = 0
        for t, s, tg in [(t, s, f'w{n+WD_}') for t, s in w_ops(n + WD_)] + [(t, s, f'c{n+3}') for t, s in c_ops(n + 3)]:
            if t == 'g': g[vpos[vi]] = [s]; gt[vpos[vi]] = tg; vi += 1
            elif vi == 0: g.setdefault(0, []).append(s)
            else: g.setdefault(vpos[vi - 1] + 1, []).append(s)
        m = 0
        for rb in range(8):
            for cb in range(4):
                k.e(mfma(V(ACC(rb, cb), 4), A(WF(n, cb), 4), A(CF(n, rb), 4), V(ACC(rb, cb), 4) if n else "0"))
                if m in g:
                    for s in g[m]: k.e(s, tag=gt.get(m))
                else:
                    nl = k.ni
                    b0.fill(k, n + m / 32.0, BS)
                    if k.ni == nl: b.fill(k, n + m / 32.0, BS)
                m += 1
    print("phase4 items left", len(b.items))
    b.drain(k)
    k.stamp(ST)
    k.e(f"v_and_b32 v{T1}, 15, v0")
    k.e(f"v_lshlrev_b32 v10, 8, v{T1}")
    k.e("v_add_u32 v10, s35, v10")
    k.e(f"v_xor_b32 v{T1}, v{T1}, v{G}")
    for cb in range(4):
        k.e(f"v_xor_b32 v{T2}, {4*cb}, v{T1}")
        k.e(f"v_lshl_add_u32 v{TA+cb}, v{T2}, 4, v10")
    for rb in range(8):
        for cb in range(4):
            k.e(f"ds_write_b128 v{TA+cb}, {V(ACC(rb,cb),4)} offset:{rb*4096}")
    k.e("s_cmp_lg_u32 s53, s40")
    k.e("s_cbranch_scc1 L_ysl")
    k.label("L_yslr")
    k.e(f"v_and_b32 v{T1}, 15, v{VROW}")
    k.e(f"v_lshlrev_b32 v{T2}, 1, v{L7}")
    k.e(f"v_xor_b32 v{T1}, v{T1}, v{T2}")
    k.e(f"v_lshlrev_b32 v10, 8, v{VROW}")
    k.e(f"v_lshl_add_u32 v12, v{T1}, 4, v10")
    k.e("v_xor_b32 v13, 16, v12")
    k.e("v_add_u32 v14, 65536, v12")
    k.e("v_add_u32 v15, 65536, v13")
    XU = 80
    for p in range(4):
        for d in range(4):
            k.e(f"v_lshlrev_b32 v{XU+8*p+2*d}, 16, v{XP+4*p+d}")
            k.e(f"v_and_b32 v{XU+8*p+2*d+1}, 0xffff0000, v{XP+4*p+d}")
    k.e("s_waitcnt lgkmcnt(0)")
    k.e("s_barrier")
    def rd(p):
        b_ = 128 + 32 * p
        for w in range(4):
            for h in range(2):
                k.e(f"ds_read_b128 {V(b_ + 8*w + 4*h, 4)}, v{12 + h + 2*(w >> 1)} offset:{(w & 1)*32768 + p*8192}", tag=f'r{p}')
    rd(0)
    for p in range(4):
        b_ = 128 + 32 * p
        k.wait_ds(f'r{p}')
        if p < 3: rd(p + 1)
        for e_ in range(0, 8, 2):
            k.e(f"v_pk_add_f32 {V(b_+e_,2)}, {V(b_+e_,2)}, {V(b_+8+e_,2)}")
            k.e(f"v_pk_add_f32 {V(b_+16+e_,2)}, {V(b_+16+e_,2)}, {V(b_+24+e_,2)}")
        for e_ in range(0, 8, 2): k.e(f"v_pk_add_f32 {V(b_+e_,2)}, {V(b_+e_,2)}, {V(b_+16+e_,2)}")
        for d in range(4): rbf2(k, b_ + 2*d, b_ + 2*d + 1, b_ + 8 + d)
        for e_ in range(0, 8, 2): k.e(f"v_pk_mul_f32 {V(b_+e_,2)}, {V(b_+e_,2)}, {V(GT+8*p+e_,2)}")
        for d in range(4): rbf2(k, b_ + 2*d, b_ + 2*d + 1, b_ + 8 + d)
        for e_ in range(0, 8, 2): k.e(f"v_pk_add_f32 {V(b_+e_,2)}, {V(b_+e_,2)}, {V(XU+8*p+e_,2)}")
        for d in range(4): k.e(f"v_cvt_pk_bf16_f32 v{b_+8+d}, v{b_+2*d}, v{b_+2*d+1}")
        k.e(f"buffer_store_dwordx4 {V(b_+8,4)}, v{VO}, s[68:71], s36 offen{opt.get('out_st', ' sc1')}")
        if p < 3: k.e("s_add_u32 s36, s36, 65536")
    k.stamp(ST or SA)

    def poll_loop(lab, off, vo, vd):
        k.e("s_mov_b32 s47, 0x400000")
        k.label(lab)
        k.e(f"buffer_load_dword v{vd}, v{vo}, s[20:23], {off} offen sc1")
        k.e("s_sub_u32 s47, s47, 1")
        k.e("s_waitcnt vmcnt(0)")
        k.e("s_cmp_eq_u32 s47, 0")
        k.e(f"s_cbranch_scc1 {lab}x")
        k.e(f"v_cmp_ne_u32 vcc, 1, v{vd}")
        k.e(f"s_cbranch_vccz {lab}x")
        k.e("s_sleep 8")
        k.e(f"s_branch {lab}")
        k.label(lab + "x")
    H0 = 74
    def f2A():
        k.e("s_lshr_b32 s5, s54, 1")
        k.e("s_lshl_b32 s5, s5, 5")
        k.e(f"s_add_u32 s5, s5, {WS_HFL}")
        k.e(f"buffer_load_dword v{T2}, v{VF}, s[20:23], s5 offen sc1")
    def f2B():
        k.e("s_waitcnt vmcnt(24)")
        k.e(f"v_cmp_ne_u32 vcc, 1, v{T2}")
        k.e("s_cbranch_vccz L_f2lx")
        poll_loop("L_f2l", "s5", VF, T2)
        k.e("s_lshl_b32 s3, s54, 8")
        k.e(f"s_add_u32 s3, s3, {WS_HP}")
        k.e(f"v_mul_u32_u24 v{T1}, 14336, v{G}")
        k.e(f"v_and_b32 v{T2}, 15, v0")
        k.e(f"v_lshl_add_u32 v{T1}, v{T2}, 4, v{T1}")
        for j in range(8):
            k.e(f"buffer_load_dwordx4 {V(H0 + 4*j, 4)}, v{T1}, s[20:23], s3 offen sc1")
            if j < 7: k.e(f"s_add_u32 s3, s3, {4*14336}")
    def f2C():
        k.e("s_waitcnt vmcnt(24) lgkmcnt(0)")
        for q in range(2):
            for cb in range(4):
                for rd in range(2):
                    k.e(f"ds_read_b64_tr_b16 {A(192 + 16*q + 4*cb + 2*rd, 2)}, v{TA+cb} offset:{16384 + q*4096 + rd*2048}")
            for j in range(4 * q, 4 * q + 4):
                if j:
                    for r in range(0, 4, 2): k.e(f"v_pk_add_f32 {V(H0+r,2)}, {V(H0+r,2)}, {V(H0+4*j+r,2)}")
        for r in range(0, 4, 2): rbf2(k, H0 + r, H0 + r + 1, T2)
        for r in range(4): k.e(f"v_mov_b32 v{82+r}, v{H0+r}")
        for r in range(4): k.e(f"v_permlane32_swap_b32 v{82+r}, v{H0+r}")
        silu_n(k, [82 + r for r in range(4)], [90 + r for r in range(4)])
        for r in range(0, 4, 2): rbf2(k, 82 + r, 83 + r, T2)
        for r in range(4): k.e(f"v_mul_f32 v{H0+r}, v{H0+r}, v{82+r}")
        for r in range(2): k.e(f"v_cvt_pk_bf16_f32 v{90+r}, v{H0+2*r}, v{H0+2*r+1}")
        k.e("s_lshl_b32 s7, s32, 9")
        k.e("s_add_u32 s7, s7, 131072")
        k.e(f"v_and_b32 v{T1}, 1, v{G}")
        k.e(f"v_lshlrev_b32 v{T1}, 8, v{T1}")
        k.e(f"v_and_b32 v{T2}, 15, v0")
        k.e(f"v_lshl_add_u32 v{T1}, v{T2}, 3, v{T1}")
        k.e(f"v_add_u32 v{T1}, s7, v{T1}")
        k.e(f"ds_write_b64 v{T1}, v[90:91]")
        k.e(f"v_and_b32 v{T1}, 1, v0")
        k.e(f"v_lshlrev_b32 v{T1}, 8, v{T1}")
        k.e(f"v_lshl_add_u32 v94, v{G}, 3, v{T1}")
        k.e("v_add_u32 v94, s7, v94")
        for q in range(2):
            for rd in range(2):
                k.e(f"ds_read_b64 {V(H0 + 4*q + 2*rd, 2)}, v94 offset:{q*64 + rd*32}")
        k.e(f"v_lshl_add_u32 v{T1}, v{G}, 4, v{T1}")
        k.e(f"v_add_u32 v{T1}, s7, v{T1}")
        k.e("s_waitcnt lgkmcnt(0)")
        for q in range(2):
            for cb in range(4):
                d = V(96 + 4 * cb, 4)
                k.e(mfma(d, A(192 + 16*q + 4*cb, 4), V(H0 + 4*q, 4), d if q else "0"))
        for cb in range(4):
            k.e(f"ds_write_b128 v{T1}, {V(96+4*cb,4)} offset:{2048 + cb*64}")
        k.e("s_waitcnt lgkmcnt(0)")
        k.e("s_barrier")
        k.e("s_cmp_lg_u32 s32, 0")
        k.e("s_cbranch_scc1 L_f2Cr")
        k.e(f"v_lshlrev_b32 v{T1}, 3, v0")
        k.e(f"v_add_u32 v{T2}, {131072 + 2048}, v{T1}")
        for w in range(4): k.e(f"ds_read_b64 {V(74+2*w,2)}, v{T2} offset:{w*512}")
        k.e("s_lshl_b32 s3, s39, 4")
        k.e("s_add_u32 s3, s3, s37")
        k.e("s_lshl_b32 s3, s3, 9")
        k.e(f"s_add_u32 s3, s3, {WS_YP}")
        k.e("s_waitcnt lgkmcnt(0)")
        k.e("v_pk_add_f32 v[74:75], v[74:75], v[76:77]")
        k.e("v_pk_add_f32 v[78:79], v[78:79], v[80:81]")
        k.e("v_pk_add_f32 v[74:75], v[74:75], v[78:79]")
        k.e(f"buffer_store_dwordx2 v[74:75], v{T1}, s[20:23], s3 offen sc1")
    def f2E():
        k.e("s_cmp_lg_u32 s32, 0")
        k.e("s_cbranch_scc1 L_f2Er")
        k.e(f"v_mov_b32 v{T2}, 1")
        k.e("s_lshl_b32 s3, s39, 5")
        k.e("s_add_u32 s3, s3, s37")
        k.e("s_lshl_b32 s3, s3, 2")
        k.e(f"s_add_u32 s3, s3, {WS_YFL}")
        k.e("s_waitcnt vmcnt(24)")
        k.e("s_mov_b64 exec, 1")
        k.e(f"buffer_store_dword v{T2}, v{VZ}, s[20:23], s3 offen sc1")
        k.e("s_mov_b64 exec, -1")
    for nm, fn in (("A", f2A), ("B", f2B), ("C", f2C), ("E", f2E)): ool.append((f"L_f2{nm}", fn, f"L_f2{nm}r"))
    def yloads():
        k.e(f"v_lshlrev_b32 v{T2}, 10, v{L3}")
        k.e(f"v_lshl_add_u32 v{T2}, v{L7}, 5, v{T2}")
        k.e(f"v_mov_b32 v{T1}, {BIG}")
        k.e(f"v_cmp_gt_u32 vcc, 7, v{L3}")
        k.e(f"v_cndmask_b32 v{T2}, v{T1}, v{T2}, vcc")
        for q in range(2):
            for t in range(2):
                for h in range(2):
                    k.e(f"buffer_load_dwordx4 {V(YB + 16*q + 8*t + 4*h, 4)}, v{T2}, s[20:23], s44 offen offset:{q*512 + t*256 + h*16} sc1")
    def selblock():
        for j in range(0, 16, 2): k.e(f"v_pk_add_f32 {V(YB+j,2)}, {V(YB+j,2)}, {V(YB+16+j,2)}")
        for j in range(16): k.e(f"v_add_f32_dpp v{YB+j}, v{YB+j}, v{YB+j} row_ror:8 row_mask:0xf bank_mask:0xf")
        for sw in ("v_permlane16_swap_b32", "v_permlane32_swap_b32"):
            for j in range(16): k.e(f"v_mov_b32 v{YB+16+j}, v{YB+j}")
            for j in range(16): k.e(f"{sw} v{YB+16+j}, v{YB+j}")
            for j in range(16): k.e(f"v_add_f32 v{YB+j}, v{YB+j}, v{YB+16+j}")
        for d in range(8): rbf2(k, YB + 2*d, YB + 2*d + 1, T1)
        for t in range(2):
            for e_ in range(8): k.e(f"v_mul_f32 v{YB+8*t+e_}, s{100+t}, v{YB+8*t+e_}")
        for d in range(8): rbf2(k, YB + 2*d, YB + 2*d + 1, T1)
        k.e("s_lshl_b32 s3, s45, 7")
        k.e("s_sub_u32 s42, s42, s3")
        k.e("s_sub_u32 s43, s43, s3")
        for p in range(4):
            L = k.newlabel("selskip")
            k.e(f"v_add_u32 v{T1}, {32*p}, v{VROW}")
            k.e(f"v_cmp_eq_u32 vcc, s42, v{T1}")
            k.e(f"v_cmp_eq_u32 s[6:7], s43, v{T1}")
            k.e("s_nop 3")
            k.e("s_or_b64 s[4:5], vcc, s[6:7]")
            k.e(f"s_cbranch_scc0 {L}")
            for e_ in range(8):
                k.e(f"v_cndmask_b32 v{YB+16+e_}, 0, v{YB+e_}, vcc")
                k.e(f"v_cndmask_b32 v{YB+16+e_}, v{YB+16+e_}, v{YB+8+e_}, s[6:7]")
            gates(k, p, YB + 16)
            k.label(L)
    def yA():
        k.e(f"v_min_u32 v{VF}, 13, v0")
        k.e(f"v_lshlrev_b32 v{VF}, 2, v{VF}")
        k.e(f"buffer_load_dword v{T1}, v{VF}, s[20:23], s41 offen sc1")
    def yB():
        k.e("s_waitcnt vmcnt(24)")
        k.e(f"v_cmp_ne_u32 vcc, 1, v{T1}")
        k.e("s_cbranch_vccnz L_yBr")
        k.e("s_mov_b32 s40, 1")
        yloads()
    def yC():
        k.e("s_waitcnt vmcnt(8)")
        selblock()
    def ysl():
        poll_loop("L_ysll", "s41", VF, T1)
        yloads()
        k.e("s_waitcnt vmcnt(0)")
        selblock()
    ool.append(("L_yA", yA, "L_yAr")); ool.append(("L_yB", yB, "L_yBr")); ool.append(("L_yC", yC, "L_yCr")); ool.append(("L_ysl", ysl, "L_yslr"))
```

```python
import re, sys

TRANS = ('v_exp_f32', 'v_log_f32', 'v_rcp_f32', 'v_rsq_f32', 'v_sqrt_f32', 'v_sin_f32', 'v_cos_f32')
RX = re.compile(r'^(v|a|s)(\d+)$|^(v|a|s)\[(\d+):(\d+)\]$')

def regs_of(tok):
    t = tok.strip()
    t = t.lstrip('-')
    if t.startswith('abs(') and t.endswith(')'): t = t[4:-1]
    if t.startswith('|') and t.endswith('|'): t = t[1:-1]
    if t in ('vcc', 'exec'): return [t]
    if t in ('vcc_lo', 'vcc_hi'): return ['vcc']
    if t in ('exec_lo', 'exec_hi'): return ['exec']
    if t == 'm0': return ['m0']
    m = RX.match(t)
    if not m: return []
    if m.group(1): return [m.group(1) + m.group(2)]
    return [m.group(3) + str(i) for i in range(int(m.group(4)), int(m.group(5)) + 1)]

class I:
    __slots__ = ('text', 'mn', 'cls', 'defs', 'uses', 'srcA', 'srcB', 'srcC', 'passes', 'states', 'target', 'cond',
                 'dpp', 'lds', 'wide', 'data', 'vm', 'lgkm', 'ln', 'lanesel', 'ldst')

def parse(text, ln):
    i = I(); i.text = text; i.ln = ln
    parts = text.split(None, 1)
    mn = parts[0]; rest = parts[1] if len(parts) > 1 else ''
    mn = re.sub(r'_(e32|e64|dpp|sdwa)$', '', mn)
    i.mn = mn
    rest0 = re.sub(r'\s(op_sel|op_sel_hi|neg_lo|neg_hi):\[[^\]]*\]', '', rest)
    ops = [o.strip() for o in rest0.split(',')] if rest0 else []
    mods = ''
    if ops:
        lp = ops[-1].split(None, 1)
        ops[-1] = lp[0]; mods = lp[1] if len(lp) > 1 else ''
    R = [regs_of(o) for o in ops]
    flat = lambda L: [r for x in L for r in x]
    i.defs = []; i.uses = []; i.srcA = i.srcB = i.srcC = (); i.passes = 0; i.states = 1; i.target = None; i.cond = False
    i.dpp = 'quad_perm' in mods or 'row_' in mods or 'wave_' in mods
    i.lds = False; i.wide = False; i.data = (); i.vm = None; i.lgkm = None; i.lanesel = (); i.ldst = ()
    if mn.startswith('v_mfma'):
        i.cls = 'mfma'; i.defs = R[0]; i.srcA, i.srcB, i.srcC = R[1], R[2], R[3]; i.uses = flat(R[1:])
        i.passes = 8 if '32x32' in mn else 4
    elif mn.startswith('v_'):
        i.cls = 'trans' if mn in TRANS else 'valu'
        if mn == 'v_nop': pass
        elif (mn.startswith('v_permlane') and 'swap' in mn) or mn == 'v_swap_b32':
            i.defs = flat(R); i.uses = flat(R)
        else:
            i.defs = R[0]; i.uses = flat(R[1:])
            if mn.startswith(('v_fmac', 'v_mac', 'v_dot2c', 'v_pk_fmac')) or i.dpp or mn == 'v_writelane_b32': i.uses = i.uses + R[0]
            if mn.startswith('v_cndmask') and len(ops) == 3: i.uses = i.uses + ['vcc']
            if mn in ('v_add_co_u32', 'v_sub_co_u32', 'v_addc_co_u32', 'v_subb_co_u32', 'v_mad_u64_u32'):
                i.defs = R[0] + R[1]; i.uses = flat(R[2:])
            if mn in ('v_readlane_b32', 'v_writelane_b32'): i.lanesel = R[2]
            if mn.startswith('v_cmpx'): i.defs = i.defs + ['exec']
    elif mn.startswith('ds_'):
        i.cls = 'ds'
        if mn.startswith('ds_read') or mn.startswith(('ds_bpermute', 'ds_permute', 'ds_swizzle')) or '_rtn' in mn:
            i.ldst = R[0]; i.uses = flat(R[1:])
        else:
            i.uses = flat(R)
    elif mn.startswith(('buffer_', 'global_')):
        i.cls = 'vmem'
        ml = mods.split()
        if mn.startswith(('buffer_wbl2', 'buffer_inv')): pass
        elif 'load' in mn:
            if 'lds' in ml or '_lds_' in mn:
                i.lds = True; i.uses = flat(R) + ['m0']
            else:
                i.ldst = R[0]; i.uses = flat(R[1:])
        elif 'atomic' in mn:
            i.uses = flat(R)
            if 'sc0' in ml: i.ldst = R[0]
        else:
            i.uses = flat(R)
            if mn.endswith(('x3', 'x4')):
                i.wide = True; i.data = R[0] if mn.startswith('buffer') else R[1]
    elif mn == 's_waitcnt':
        i.cls = 'wait'
        m = re.search(r'vmcnt\((\d+)\)', rest); i.vm = int(m.group(1)) if m else None
        m = re.search(r'lgkmcnt\((\d+)\)', rest); i.lgkm = int(m.group(1)) if m else None
    elif mn == 's_nop':
        i.cls = 'nop'; i.states = int(rest, 0) + 1
    elif mn in ('s_barrier', 's_setprio', 's_sleep'):
        i.cls = 'misc'
    elif mn == 's_endpgm':
        i.cls = 'end'
    elif mn == 's_branch' or mn.startswith('s_cbranch'):
        i.cls = 'branch'; i.target = rest.strip(); i.cond = mn != 's_branch'
        if 'vcc' in mn: i.uses = ['vcc']
    elif mn.startswith(('s_load', 's_buffer_load', 's_memtime', 's_memrealtime', 's_atomic')):
        i.cls = 'smem'; i.ldst = R[0]; i.uses = flat(R[1:])
    elif mn.startswith('s_'):
        i.cls = 'salu'
        if mn.startswith(('s_cmp', 's_bitcmp')): i.uses = flat(R)
        else:
            i.defs = R[0]; i.uses = flat(R[1:])
            if 'saveexec' in mn: i.defs = i.defs + ['exec']; i.uses = i.uses + ['exec']
            if mn in ('s_addk_i32', 's_mulk_i32'): i.uses = i.uses + R[0]
    else:
        raise ValueError('unknown instruction: ' + text)
    return i

def need(p, c):
    n = 0
    pv = p.cls in ('valu', 'trans'); cv = c.cls in ('valu', 'trans')
    pd = set(p.defs)
    if pv:
        vg = {r for r in pd if r[0] in 'va' and r != 'vcc'}
        sg = pd - vg
        if c.cls == 'mfma' and vg & set(c.uses): n = max(n, 2)
        if c.cls == 'mfma' and 'exec' in pd: n = max(n, 4)
        if p.cls == 'trans' and c.cls == 'valu' and vg & set(c.uses): n = max(n, 1)
        if cv and c.dpp and vg & set(c.uses): n = max(n, 2)
        if cv and c.mn.startswith('v_permlane') and vg & set(c.uses): n = max(n, 2)
        if cv and c.mn in ('v_readlane_b32', 'v_readfirstlane_b32') and vg & set(c.uses): n = max(n, 1)
        if sg:
            if cv and sg & set(c.uses): n = max(n, 2)
            if cv and sg & set(c.lanesel): n = max(n, 4)
            if c.cls == 'vmem' and sg & set(c.uses): n = max(n, 5)
    if p.cls == 'salu' and 'm0' in pd and c.cls == 'vmem' and c.lds: n = max(n, 1)
    if p.cls == 'vmem' and p.wide and set(p.data) & (set(c.defs) | set(c.ldst)):
        n = max(n, 2 if cv else 1)
    if p.cls == 'mfma':
        big = {4: 8, 8: 12}[p.passes]
        if c.cls == 'mfma':
            if pd & (set(c.srcA) | set(c.srcB)): n = max(n, big)
            if pd & set(c.srcC) and not (list(c.srcC) == list(p.defs) and c.passes == p.passes): n = max(n, big - 2)
            if pd & set(c.defs) and not (pd & set(c.srcC)): n = max(n, big)
        elif cv:
            if pd & (set(c.uses) | set(c.defs)): n = max(n, big)
            if set(p.srcC) & set(c.defs): n = max(n, {4: 3, 8: 7}[p.passes])
        elif c.cls in ('vmem', 'ds'):
            if pd & (set(c.uses) | set(c.ldst)): n = max(n, big)
    return n

def check_kernel(name, lines, maxstates=400000):
    ins = []; labels = {}
    for ln, t in lines:
        m = re.search(r';@([dub]):(\S+)', t)
        t = t.split(';')[0].strip()
        if m and m.group(1) == 'u':
            i = parse('s_setprio 0', ln); i.text = 'use ' + m.group(2); i.uses = ['@' + m.group(2)]; i.states = 0
            ins.append(i); continue
        if m and m.group(1) == 'b':
            i = parse('s_setprio 0', ln); i.text = 'budget'; i.states = 0; i.passes = -int(m.group(2))
            ins.append(i); continue
        if not t or t.startswith('.'): continue
        if t.endswith(':'): labels[t[:-1]] = len(ins); continue
        ins.append(parse(t, ln))
        if m: ins[-1].ldst = list(ins[-1].ldst) + ['@' + m.group(2)]
    errs = {}
    def err(c, msg):
        errs.setdefault((c.ln, msg.split(' [')[0]), f'{name}: line {c.ln}: {c.text}  <-- {msg}')
    seen = set()
    work = [(0, (), (), (), (), 0)]
    nst = 0
    while work:
        pc, win, vmq, dsq, sm, bud = work.pop()
        while True:
            if pc >= len(ins): err(ins[-1], 'runs off the end'); break
            c = ins[pc]
            if pc in LBL(labels) or c.cls == 'branch':
                key = (pc, win, vmq, dsq, sm, bud)
                if key in seen: break
                seen.add(key); nst += 1
                if nst > maxstates: print(name, 'state limit hit'); return list(errs.values())
            for idx, d in win:
                n = need(ins[idx], c)
                if d < n: err(c, f'hazard needs {n} has {d} after line {ins[idx].ln} [{ins[idx].text}]')
            touched = set(c.uses) | set(c.defs)
            for q, nm in ((vmq, 'vm'), (dsq, 'ds')):
                for e in q:
                    if e and touched & e: err(c, f'touches pending {nm} load dest [{sorted(touched & e)[:4]}]')
                    if e and set(c.ldst) & e and not ((nm == 'vm' and c.cls == 'vmem') or (nm == 'ds' and c.cls == 'ds')):
                        err(c, f'load WAW with pending {nm} load')
            for e in sm:
                if (touched | set(c.ldst)) & e: err(c, 'touches pending smem dest')
            if c.cls == 'wait':
                if c.vm is not None and len(vmq) > c.vm: vmq = vmq[len(vmq) - c.vm:] if c.vm else ()
                if c.lgkm is not None:
                    if c.lgkm == 0: dsq = (); sm = ()
                    elif not sm and len(dsq) > c.lgkm: dsq = dsq[len(dsq) - c.lgkm:]
            elif c.cls == 'vmem':
                vmq = vmq + (frozenset(c.ldst),)
                if len(vmq) > 63: err(c, 'more than 63 vmem ops possibly outstanding'); vmq = vmq[-63:]
            elif c.cls == 'ds':
                dsq = dsq + (frozenset(c.ldst),)
                if len(dsq) > 15: err(c, 'more than 15 lds ops possibly outstanding'); dsq = dsq[-15:]
            elif c.cls == 'smem':
                sm = sm + (frozenset(c.ldst),)
            while vmq and not vmq[0] and not STRICT_COUNT: vmq = vmq[1:]
            while dsq and not dsq[0] and not STRICT_COUNT: dsq = dsq[1:]
            win = tuple((idx, d + c.states) for idx, d in win if d + c.states < 13)
            if c.cls in ('mfma', 'valu', 'trans', 'salu') or (c.cls == 'vmem' and c.wide):
                win = win + ((pc, 0),)
            if c.passes < 0: bud = -c.passes
            if c.cls == 'end': break
            if c.cls == 'branch':
                tgt = labels[c.target]
                if c.target.startswith('L_nw_'):
                    if bud: bud -= 1; pc = tgt
                    else: pc += 1
                    continue
                if c.cond: work.append((pc + 1, win, vmq, dsq, sm, bud))
                pc = tgt
            else:
                pc += 1
    return list(errs.values())

STRICT_COUNT = False
_lc = {}
def LBL(labels):
    k = id(labels)
    if k not in _lc: _lc[k] = set(labels.values())
    return _lc[k]

def check_text(text):
    kernels = []; cur = None
    for ln, t in enumerate(text.split('\n'), 1):
        s = t.strip()
        if s.startswith('.section'): break
        if re.match(r'^\w+_kernel:$', s):
            cur = (s[:-1], []); kernels.append(cur); continue
        if cur: cur[1].append((ln, t))
    allerr = []
    for name, lines in kernels:
        allerr += check_kernel(name, lines)
    return allerr

if __name__ == '__main__':
    e = check_text(open(sys.argv[1]).read())
    for x in e[:60]: print(x)
    print(len(e), 'issues')
```

```python
from check import parse, need

def R(p, a, n=1):
    return f"{p}[{a}:{a+n-1}]" if n > 1 else f"{p}{a}"
def V(a, n=1): return R('v', a, n)
def A(a, n=1): return R('a', a, n)
def S(a, n=1): return R('s', a, n)

class Asm:
    def __init__(self, name):
        self.name = name
        self.lines = []
        self.win = []
        self.nl = 0
        self.ni = 0
        self.hot = False
        self.hot_nops = 0
        self.vq = []
        self.dq = []
    def raw(self, s): self.lines.append(s)
    def c(self, s): self.lines.append("  ; " + s)
    def e(self, s, tag=None):
        i = parse(s, 0)
        if i.cls == 'ds' and len(self.dq) >= 15: self.e('s_waitcnt lgkmcnt(9)')
        pad = 0
        for p, d in self.win:
            n = need(p, i)
            if n - d > pad: pad = n - d
        if pad:
            if self.hot:
                self.hot_nops += 1
                print(f"[{self.name}] hot nop({pad}) before: {s}")
            self._adv(parse(f"s_nop {pad-1}", 0), f"s_nop {pad-1}")
        self._adv(i, s)
        if i.cls == 'vmem' and tag and tag != '!': self.lines[-1] += f" ;@d:{tag.lstrip('!')}"
        if i.cls == 'vmem':
            if not (tag and tag.startswith('!')): self.vq.append(tag)
        elif i.cls == 'ds': self.dq.append(tag)
        elif i.cls == 'wait':
            if i.vm is not None and len(self.vq) > i.vm: self.vq = self.vq[len(self.vq) - i.vm:] if i.vm else []
            if i.lgkm is not None and len(self.dq) > i.lgkm: self.dq = self.dq[len(self.dq) - i.lgkm:] if i.lgkm else []
    def _adv(self, i, s):
        self.lines.append("  " + s)
        self.ni += 1
        self.win = [(p, d + i.states) for p, d in self.win if d + i.states < 13]
        if i.cls in ('mfma', 'valu', 'trans', 'salu') or (i.cls == 'vmem' and i.wide):
            self.win.append((i, 0))
    def vm_n(self, tag):
        idx = [n for n, t in enumerate(self.vq) if t == tag]
        return None if not idx else len(self.vq) - 1 - idx[-1]
    def ds_n(self, tag):
        idx = [n for n, t in enumerate(self.dq) if t == tag]
        return None if not idx else len(self.dq) - 1 - idx[-1]
    def wait_vm(self, tag):
        n = self.vm_n(tag)
        if n is not None: self.e(f"s_waitcnt vmcnt({min(n, 63)})")
        self.use(tag)
    def use(self, tag):
        self.lines.append(f';@u:{tag}')
    def wait_ds(self, tag):
        n = self.ds_n(tag)
        if n is not None: self.e(f"s_waitcnt lgkmcnt({min(n, 15)})")
    def label(self, l):
        self.lines.append(l + ":")
    def newlabel(self, base):
        self.nl += 1
        return f"L_{getattr(self, 'short', self.name)}_{base}{self.nl}"
    def srd(self, d, base, nbytes, add=None):
        if add is not None and add != 0:
            self.e(f"s_add_u32 s{d}, s{base}, {add}")
            self.e(f"s_addc_u32 s{d+1}, s{base+1}, 0")
            self.e(f"s_and_b32 s{d+1}, s{d+1}, 0xffff")
        else:
            self.e(f"s_mov_b32 s{d}, s{base}")
            self.e(f"s_and_b32 s{d+1}, s{base+1}, 0xffff")
        self.e(f"s_mov_b32 s{d+2}, {nbytes}")
        self.e(f"s_mov_b32 s{d+3}, 0x20000")
    def stamp(self, on):
        if not on: return
        n = getattr(self, 'nstamp', 0); self.nstamp = n + 1
        assert n < 10
        self.e("s_memtime s[96:97]")
        self.e("s_memrealtime s[98:99]")
        self.e("s_waitcnt lgkmcnt(0)")
        self.e(f"s_mov_b32 s{72+2*n}, s96")
        self.e(f"s_mov_b32 s{73+2*n}, s98")
    def stamp_dump(self, on, wsptr, kidx, wave_sgpr, n=None):
        if not on: return
        n = n or self.nstamp
        L = self.newlabel("nodump")
        self.e(f"s_cmp_lg_u32 s{wave_sgpr}, 0")
        self.e(f"s_cbranch_scc1 {L}")
        self.srd(96, wsptr, 65536, (64 << 20) + kidx * 65536)
        self.e("s_lshl_b32 s3, s2, 7")
        self.e("v_mov_b32 v0, s3")
        self.e("s_mov_b64 exec, 1")
        for j in range(n):
            self.e(f"v_mov_b32 v2, s{72+2*j}")
            self.e(f"v_mov_b32 v3, s{73+2*j}")
            self.e(f"buffer_store_dwordx2 v[2:3], v0, s[96:99], 0 offen offset:{8*j}")
        self.label(L)
    def wrap(self, arch_vgprs, agprs, sgprs=102):
        acc = (arch_vgprs + 3) // 4 * 4
        nfv = acc + agprs if agprs else arch_vgprs
        n = self.name
        code = [f".globl {n}", ".p2align 8", f".type {n},@function", f"{n}:"] + self.lines
        kd = [".p2align 6", f".amdhsa_kernel {n}", f"  .amdhsa_next_free_vgpr {nfv}", f"  .amdhsa_next_free_sgpr {sgprs}",
              f"  .amdhsa_accum_offset {acc}", "  .amdhsa_group_segment_fixed_size 0", "  .amdhsa_kernarg_size 112",
              "  .amdhsa_user_sgpr_count 2", "  .amdhsa_user_sgpr_kernarg_segment_ptr 1",
              "  .amdhsa_system_sgpr_workgroup_id_x 1", ".end_amdhsa_kernel"]
        return "\n".join(code), "\n".join(kd)

def mfma(d, a, b, c):
    return f"v_mfma_f32_16x16x32_bf16 {d}, {a}, {b}, {c}"

def build(parts, launches):
    out = ["; generated by gen/gen2.py"] + launches
    out += ['.amdgcn_target "amdgcn-amd-amdhsa--gfx950"', ".text"]
    out += [p[0] for p in parts]
    out.append('.section .rodata,"a"')
    out += [p[1] for p in parts]
    return "\n".join(out) + "\n"


class Rec:
    def __init__(self): self.items = []
    def e(self, s, tag=None): self.items.append(('i', s, tag))
    def blk(self, lst): self.items.append(('b', lst, None))
    def wait_vm(self, tag): self.items.append(('wv', tag, None))
    def wait_ds(self, tag): self.items.append(('wd', tag, None))
    def check_clear(self, tag): self.items.append(('cc', tag, None))
    def at(self, n): self.items.append(('at', n, None))
    def cost(self, it):
        if it[0] != 'i': return 0
        c = parse(it[1], 0).cls
        return {'trans': 2, 'valu': 1, 'ds': 1, 'vmem': 2}.get(c, 0)
    def fill(self, k, step, slots=2):
        nscal = 0; usedv = False
        while self.items:
            it = self.items[0]
            if it[0] == 'at':
                if step < it[1]: return
                self.items.pop(0); continue
            if it[0] == 'mark': self.items.pop(0); return
            if it[0] == 'log': print(it[1], 'at step', step); self.items.pop(0); continue
            if it[0] == 'cc':
                assert k.vm_n(it[1]) is None, it[1]
                k.use(it[1])
                self.items.pop(0); continue
            if it[0] == 'wv': self.items.pop(0); k.wait_vm(it[1]); continue
            if it[0] == 'wd': self.items.pop(0); k.wait_ds(it[1]); continue
            if it[0] == 'b':
                if usedv: return
                self.items.pop(0)
                for x in it[1]:
                    if isinstance(x, tuple): k.e(x[0], tag=x[1])
                    elif x.endswith(':'): k.label(x[:-1])
                    else: k.e(x)
                return
            c = self.cost(it)
            cls = parse(it[1], 0).cls
            if c == 0:
                if usedv or nscal >= 3: return
                nscal += 1
                if nscal > 1: slots -= 1
            else:
                if c > slots: return
                if cls == 'vmem' and (usedv or nscal): return
                if cls == 'ds' and usedv == 'v': return
                slots -= c
                usedv = 'v' if cls in ('valu', 'trans') else (usedv or 'd')
            self.items.pop(0)
            k.e(it[1], tag=it[2])
            if slots <= 0: return
    def drain(self, k):
        while self.items: self.fill(k, 1 << 30, 2)


_cp = [0]
def code_prefetch(start, end, wave_sgpr, sp, va, vd, whole=False):
    _cp[0] += 1
    L = f"L_cpf{_cp[0]}"
    if whole:
        return [f"s_getpc_b64 s[{sp}:{sp+1}]", f"{L}:",
                f"s_add_u32 s{sp}, s{sp}, ({start}-{L})&0xffffffff",
                f"s_addc_u32 s{sp+1}, s{sp+1}, (({start}-{L})>>32)&0xffffffff",
                f"s_lshl_b32 s{sp+2}, s{wave_sgpr}, 13",
                f"v_lshlrev_b32 v{va+2}, 7, v0", f"v_add_u32 v{va+2}, s{sp+2}, v{va+2}",
                f"v_min_u32 v{va+2}, {end}-{start}-4, v{va+2}",
                f"v_mov_b32 v{va+1}, s{sp+1}",
                f"v_add_co_u32 v{va}, vcc, s{sp}, v{va+2}",
                f"v_addc_co_u32 v{va+1}, vcc, 0, v{va+1}, vcc",
                f"global_load_dword v{vd}, v[{va}:{va+1}], off"]
    return [f"s_getpc_b64 s[{sp}:{sp+1}]", f"{L}:",
            f"s_add_u32 s{sp}, s{sp}, ({start}-{L})&0xffffffff",
            f"s_addc_u32 s{sp+1}, s{sp+1}, (({start}-{L})>>32)&0xffffffff",
            f"s_lshr_b32 s{sp+2}, s2, 3", f"s_lshl_b32 s{sp+2}, s{sp+2}, 2", f"s_add_u32 s{sp+2}, s{sp+2}, s{wave_sgpr}",
            f"s_lshl_b32 s{sp+2}, s{sp+2}, 10",
            f"v_and_b32 v{va+2}, 7, v0", f"v_lshlrev_b32 v{va+2}, 7, v{va+2}", f"v_add_u32 v{va+2}, s{sp+2}, v{va+2}",
            f"v_min_u32 v{va+2}, {end}-{start}-4, v{va+2}",
            f"v_mov_b32 v{va+1}, s{sp+1}",
            f"v_add_co_u32 v{va}, vcc, s{sp}, v{va+2}",
            f"v_addc_co_u32 v{va+1}, vcc, 0, v{va+1}, vcc",
            f"global_load_dword v{vd}, v[{va}:{va+1}], off"]
```

```python
from fw import *
from layout import *
import p4, p4b, p4c
KNAME = 'recurrent_scan__compressed_kv_cla__moe_arch_mod__prompt_kernel'

K12_LDS = 163840
QSCALE = 0x3e0293ee
BIG = 0x7ff00000

def gen_k12(opt):
    k = Asm(KNAME)
    k.short = "f"
    P4 = {'0': p4, '1': p4b, '2': p4c}[opt.get('s2', '2')]
    p4_ptr_loads, p4_setup, phase4 = P4.p4_ptr_loads, P4.p4_setup, P4.phase4
    ST = opt.get('stamp') == '1'
    S1 = opt.get('stamp') == 'p1'
    S2 = opt.get('stamp') == 'p2'
    SA = opt.get('stamp') == 'a'
    S0 = opt.get('stamp') == 'p0'
    w_ld, a_ld, x_ld = opt.get('w_ld', ' nt'), opt.get('a_ld', ''), opt.get('x_ld', ' nt')
    wq_ld, kv_ld, ffn_ld = opt.get('wq_ld', ''), opt.get('kv_ld', ' sc1'), opt.get('ffn_ld', '')
    MAP = int(opt.get('map', 4))
    WOT = opt.get('wot', '0') == '1'
    VOA, VOW, AD, PFO = 2, 6, 10, 47
    FA = lambda ks, i: 64 * ks + 4 * i
    FW = lambda ks, j: 64 * ks + 32 + 4 * j
    def frag_of(isV, it, jd):
        return ((it >> 2) * 16 + jd * 2 + ((it >> 1) & 1), it & 1) if isV else (it * 4 + (jd >> 1), jd & 1)
    SRC = lambda n: ('v', 48 + 8 * n) if n < 26 else ('a', 128 + 8 * (n - 26))
    def acc(isV, it, jd):
        n, h = frag_of(isV, it, jd)
        p, r = SRC(n)
        return R(p, r + 4 * h, 4)
    PK = lambda n: 24 + 4 * (n if n < 26 else n - 26)
    VX, VY, VDMA, VRA, VRB, ORR, T0 = 2, 3, 4, 5, 6, 7, 1
    WV, XV, TA = 8, 10, 16
    ET = 8
    ONES, NINF = 16, 20
    NEGM, LS, PB, SB = 32, 48, 64, 128
    P = lambda par, qb, ks: PB + 32 * par + (qb * 2 + ks) * 4
    Sr = lambda par, qb, kb: SB + 64 * par + (qb * 4 + kb) * 4
    O = lambda qb, db: (qb * 8 + db) * 4
    Q = lambda qb, s: 128 + (qb * 4 + s) * 4
    FR = lambda grp, j: 192 + 16 * grp + 4 * j
    QA = lambda db, qb: 128 + (qb * 8 + db) * 4
    XR = lambda kk, qb: ((kk % 8) * 4 + qb) * 4
    WF = lambda kk, db: 192 + (kk & 1) * 32 + db * 4

    k.e("s_cmp_ge_u32 s2, 256")
    k.e("s_cbranch_scc1 L_k2_end")
    k.stamp(ST or S0)
    k.e("s_load_dwordx4 s[4:7], s[0:1], 0")
    k.e("s_load_dwordx2 s[44:45], s[0:1], 56")
    k.e("s_load_dwordx4 s[40:43], s[0:1], 24")
    k.e("s_load_dwordx4 s[64:67], s[0:1], 96")
    k.e("v_lshrrev_b32 v1, 6, v0")
    k.e("v_and_b32 v0, 63, v0")
    k.e("v_readfirstlane_b32 s32, v1")
    def emit(lst, o=None):
        for x in lst:
            if x.endswith(':'): k.label(x[:-1])
            else: k.e(x, tag='cpf')
    CPF = opt.get('cpf', '12346')
    if '1' in CPF: emit(code_prefetch(KNAME, "L_k2_fin", 32, 68, 120, 124))
    k.e("v_lshrrev_b32 v33, 5, v0")
    k.e("v_and_b32 v31, 31, v0")
    k.e("v_lshlrev_b32 v36, 4, v31")
    k.e("v_lshl_add_u32 v35, v33, 11, v36")
    k.e("s_lshl_b32 s36, s2, 14")
    k.e("s_lshl_b32 s37, s32, 12")
    k.e("s_add_u32 s36, s36, s37")
    k.e("s_mov_b32 s18, 4194304")
    k.e("s_mov_b32 s19, 0x20000")
    k.e("s_bfe_u32 s33, s2, 0x30003")
    k.e("s_lshr_b32 s35, s2, 7")
    k.e("s_bfe_u32 s3, s2, 0x10006")
    k.e("s_and_b32 s34, s2, 7")
    k.e("s_lshl_b32 s34, s34, 1")
    k.e("s_add_u32 s34, s34, s3")
    k.e("s_waitcnt lgkmcnt(0)")
    k.stamp(S0)
    k.e("s_mov_b32 s16, s4")
    k.e("s_and_b32 s17, s5, 0xffff")
    XP, WR, XF = 48, 64, 80
    for i in range(4):
        k.e(f"buffer_load_dwordx4 {V(XP+4*i,4)}, v35, s[16:19], s36 offen offset:{i*512}{x_ld}", tag='x')
    k.e("s_cmp_eq_u32 s35, 0")
    k.e("s_cselect_b32 s40, s40, s42")
    k.e("s_cselect_b32 s41, s41, s43")
    k.e("s_lshl_b32 s3, s34, 9")
    k.srd(12, 40, 0, "s3")
    k.e("s_sub_u32 s14, 4194304, s3")
    k.e("s_lshl_b32 s3, s33, 18")
    k.srd(8, 6, 262144, "s3")
    KX = int(opt.get('kx', 7))
    k.e(f"s_and_b32 s58, s2, {KX}")
    def dma_ops(buf):
        ops = []
        for (base, vo, so, srd, fl) in ((57, VOW, 52, 12, w_ld), (56, VOA, 48, 8, a_ld)):
            for hi in range(2):
                ops.append(('s', f"s_add_u32 m0, s{base}, {buf*65536 + hi*4096}"))
                for lo in range(4):
                    ops.append(('g', f"buffer_load_dwordx4 v{vo + (lo&1) + 2*hi}, {S(srd,4)}, s{so+lo} offen offset:{lo*1024}{fl} lds"))
        return ops
    def adv_ops(j):
        x = j ^ (j + 1)
        return [f"v_xor_b32 v{VOW+q}, {x << 19}, v{VOW+q}" for q in range(4)] + [f"v_xor_b32 v{VOA+q}, {x << 7}, v{VOA+q}" for q in range(4)]
    PF0 = int(opt.get('pf0', 1))
    pfc = [PF0]
    def pf_ops():
        j = pfc[0]; pfc[0] += 1
        return [f"buffer_load_dword v1, v{PFO}, s[60:63], 0 offen{opt.get('pf_ld', '')}",
                f"s_mul_i32 vcc_lo, s59, {(j ^ (j + 1)) & 7}", f"v_xor_b32 v{PFO}, vcc_lo, v{PFO}"]
    def setup_P():
        k.e("s_cmp_lt_u32 s32, 2")
        for j in range(3): k.e(f"s_cselect_b32 s{60+j}, s{8+j}, s{12+j}")
        k.e("s_mov_b32 s63, 0x20000")
        k.e(f"s_mov_b32 s59, {64*8192}")
        k.e("s_cselect_b32 s59, 128, s59")
        k.e("s_cselect_b64 vcc, -1, 0")
        k.e("s_cselect_b32 s38, 32, 16")
        k.e("s_lshr_b32 s3, s2, 6")
        k.e("s_cmp_lt_u32 s32, 2")
        k.e("s_cselect_b32 s3, s3, s33")
        k.e("s_lshl_b32 s3, s3, 1")
        k.e("s_and_b32 s39, s32, 1")
        k.e("s_add_u32 s3, s3, s39")
        k.e("s_lshl_b32 s3, s3, 15")
        k.e(f"s_xor_b32 s39, s58, {PF0}")
        k.e("s_mul_i32 s39, s39, s59")
        k.e("s_add_u32 s3, s3, s39")
        k.e("v_lshlrev_b32 v37, 10, v0")
        k.e("v_lshrrev_b32 v38, 2, v0")
        k.e("v_lshlrev_b32 v38, 13, v38")
        k.e("v_and_b32 v39, 3, v0")
        k.e("v_lshl_add_u32 v38, v39, 7, v38")
        k.e(f"v_cndmask_b32 v{PFO}, v38, v37, vcc")
        k.e(f"v_add_u32 v{PFO}, s3, v{PFO}")
        k.e("v_cmp_gt_u32 vcc, s38, v0")
        k.e(f"v_mov_b32 v37, {BIG}")
        k.e(f"v_cndmask_b32 v{PFO}, v37, v{PFO}, vcc")
    def setup_W():
        for j in range(4): k.e(f"s_mov_b32 s{52+j}, {j*15360}")
        k.e("s_lshl_b32 s56, s32, 13")
        k.e("s_add_u32 s57, s56, 32768")
        k.e("s_lshl_b32 s3, s58, 2")
        k.e("s_add_u32 s3, s3, s32")
        k.e("s_lshl_b32 s3, s3, 4")
        k.e("v_add_u32 v30, s3, v33")
        k.e("v_lshlrev_b32 v30, 13, v30")
        k.e("v_lshlrev_b32 v34, 5, v33")
        k.e("v_xor_b32 v34, v34, v36")
        k.e(f"v_add_u32 v{VOW}, v34, v30")
        k.e(f"v_xor_b32 v{VOW+1}, 64, v{VOW}")
        k.e(f"v_xor_b32 v{VOW+2}, {8*8192 + 128}, v{VOW}")
        k.e(f"v_xor_b32 v{VOW+3}, {8*8192 + 192}, v{VOW}")
    def setup_A():
        for j in range(4): k.e(f"s_mov_b32 s{48+j}, {j*7168}")
        k.e("v_lshrrev_b32 v30, 3, v0")
        k.e("v_lshlrev_b32 v30, 10, v30")
        k.e("s_lshl_b32 s3, s32, 16")
        k.e("s_lshl_b32 s39, s58, 7")
        k.e("s_add_u32 s3, s3, s39")
        k.e("v_and_b32 v31, 7, v0")
        k.e("v_lshrrev_b32 v32, 4, v0")
        k.e("v_xor_b32 v31, v31, v32")
        k.e("v_lshl_add_u32 v30, v31, 4, v30")
        k.e(f"v_add_u32 v{VOA}, s3, v30")
        k.e(f"v_xor_b32 v{VOA+1}, 64, v{VOA}")
        k.e(f"v_xor_b32 v{VOA+2}, 32768, v{VOA}")
        k.e(f"v_xor_b32 v{VOA+3}, {32768 + 64}, v{VOA}")
    def setup_D():
        k.srd(20, 66, 8 << 20)
        k.srd(24, 66, 32 * KV_HEAD, WS_KV)
        k.e("v_lshrrev_b32 v32, 4, v0")
        k.e("v_and_b32 v30, 15, v0")
        k.e("s_lshr_b32 s3, s32, 1")
        k.e("s_lshl_b32 s3, s3, 14")
        k.e("v_lshlrev_b32 v31, 7, v30")
        k.e("v_add_u32 v31, s3, v31")
        k.e("v_lshrrev_b32 v34, 1, v30")
        k.e("v_xor_b32 v34, v34, v32")
        k.e(f"v_lshl_add_u32 v{AD}, v34, 4, v31")
        k.e(f"v_xor_b32 v{AD+1}, 64, v{AD}")
        k.e("v_lshrrev_b32 v30, 2, v30")
        k.e("v_lshl_add_u32 v31, v32, 3, v30")
        k.e("v_lshlrev_b32 v31, 9, v31")
        k.e("v_and_b32 v34, 3, v0")
        k.e("v_lshl_add_u32 v31, v34, 3, v31")
        k.e("s_and_b32 s3, s32, 1")
        k.e("s_lshl_b32 s3, s3, 8")
        k.e("s_add_u32 s3, s3, 32768")
        k.e("v_add_u32 v31, s3, v31")
        k.e("v_and_b32 v34, 1, v32")
        k.e("v_lshl_add_u32 v30, v34, 2, v30")
        k.e(f"v_lshl_add_u32 v{AD+2}, v30, 5, v31")
        for jj in range(1, 8): k.e(f"v_xor_b32 v{AD+2+jj}, {jj*32}, v{AD+2}")
        for j in range(10): k.e(f"v_add_u32 v{AD+10+j}, 65536, v{AD+j}")
    def act(seq):
        for x in seq.split(','):
            if not x: continue
            if x in 'PWAD': {'P': setup_P, 'W': setup_W, 'A': setup_A, 'D': setup_D}[x]()
            elif x == 'p':
                for s in pf_ops(): k.e(s, tag='pf')
            elif x == 'r':
                k.srd(28, 44, 2048)
                for i in range(4):
                    k.e(f"buffer_load_dwordx4 {V(WR+4*i,4)}, v36, s[28:31], 0 offen offset:{i*512}", tag='wr')
            else:
                st = int(x[1]); h = 0 if x[0] == 'w' else 1
                for t, s in dma_ops(st)[10*h:10*h+10]: k.e(s, tag=f'st{st}')
                for s in adv_ops(st)[4*h:4*h+4]: k.e(s)
    PRO = opt.get('pro', 'W,w0,A,P,D,r/a0,p/p//').split('/')
    act(PRO[0])
    k.stamp(S0)
    def sum32(v, t):
        for m in ["quad_perm:[1,0,3,2]", "quad_perm:[2,3,0,1]", "row_half_mirror", "row_mirror"]:
            k.e(f"v_add_f32_dpp v{v}, v{v}, v{v} {m} row_mask:0xf bank_mask:0xf")
        k.e(f"v_mov_b32 v{t}, v{v}")
        k.e(f"v_permlane16_swap_b32 v{t}, v{v}")
        k.e(f"v_add_f32 v{v}, v{v}, v{t}")
    k.wait_vm('x')
    k.stamp(S0)
    for i in range(16):
        k.e(f"v_lshlrev_b32 v{XF+2*i}, 16, v{XP+i}")
        k.e(f"v_and_b32 v{XF+2*i+1}, 0xffff0000, v{XP+i}")
    k.e(f"v_pk_add_f32 v[40:41], {V(XF,2)}, {V(XF+2,2)}")
    k.e(f"v_pk_add_f32 v[42:43], {V(XF+4,2)}, {V(XF+6,2)}")
    for i in range(4, 16):
        d = 40 + 2 * (i & 1)
        k.e(f"v_pk_add_f32 {V(d,2)}, {V(d,2)}, {V(XF+2*i,2)}")
    k.e("v_pk_add_f32 v[40:41], v[40:41], v[42:43]")
    k.e("v_add_f32 v38, v40, v41")
    sum32(38, 37)
    k.stamp(S0)
    act(PRO[1])
    k.e("v_mul_f32 v38, 0xba800000, v38")
    k.e("v_mov_b32 v39, v38")
    T = 112
    for i in range(16):
        k.e(f"v_pk_add_f32 {V(T+2*(i&3),2)}, {V(XF+2*i,2)}, v[38:39]")
        d = 40 + 2 * (i & 1)
        if i < 2: k.e(f"v_pk_mul_f32 {V(d,2)}, {V(T+2*(i&3),2)}, {V(T+2*(i&3),2)}")
        else: k.e(f"v_pk_fma_f32 {V(d,2)}, {V(T+2*(i&3),2)}, {V(T+2*(i&3),2)}, {V(d,2)}")
    k.e("v_pk_add_f32 v[40:41], v[40:41], v[42:43]")
    k.e("v_add_f32 v40, v40, v41")
    sum32(40, 37)
    act(PRO[2])
    k.stamp(S0)
    k.e("v_mul_f32 v40, 0x3a800000, v40")
    k.e("v_cvt_pk_bf16_f32 v44, v38, v40")
    k.e("v_lshlrev_b32 v38, 16, v44")
    k.e("v_and_b32 v40, 0xffff0000, v44")
    k.e("v_add_f32 v40, 0x3727c5ac, v40")
    k.e("v_cvt_pk_bf16_f32 v44, v40, v40")
    k.e("v_lshlrev_b32 v40, 16, v44")
    k.e("v_sqrt_f32 v40, v40")
    k.e("v_mov_b32 v39, v38")
    k.e("v_cvt_pk_bf16_f32 v44, v40, v40")
    k.e("v_lshlrev_b32 v44, 16, v44")
    k.e("v_rcp_f32 v40, v44")
    for i in range(16):
        k.e(f"v_pk_add_f32 {V(XF+2*i,2)}, {V(XF+2*i,2)}, v[38:39]")
    k.e("v_fma_f32 v45, -v44, v40, 1.0")
    k.e("v_fma_f32 v40, v45, v40, v40")
    k.e("v_mov_b32 v41, v40")
    for i in range(16):
        k.e(f"v_cvt_pk_bf16_f32 v{XP+i}, v{XF+2*i}, v{XF+2*i+1}")
    for i in range(16):
        k.e(f"v_lshlrev_b32 v{XF+2*i}, 16, v{XP+i}")
        k.e(f"v_and_b32 v{XF+2*i+1}, 0xffff0000, v{XP+i}")
    for i in range(16):
        k.e(f"v_pk_mul_f32 {V(XF+2*i,2)}, {V(XF+2*i,2)}, v[40:41]")
    for i in range(16):
        k.e(f"v_cvt_pk_bf16_f32 v{XP+i}, v{XF+2*i}, v{XF+2*i+1}")
    k.e("s_mul_i32 s3, s32, 4128")
    k.e("s_add_u32 s3, s3, 131072")
    k.e("v_mul_u32_u24 v42, 2064, v33")
    k.e("v_add3_u32 v42, v42, v36, s3")
    for i in range(4):
        k.e(f"ds_write_b128 v42, {V(XP+4*i,4)} offset:{i*512}")
    act(PRO[3])
    k.stamp(S0)
    k.wait_vm('wr')
    k.stamp(S0)
    for i in range(16):
        k.e(f"v_lshlrev_b32 v{XF+2*i}, 16, v{XP+i}")
        k.e(f"v_and_b32 v{XF+2*i+1}, 0xffff0000, v{XP+i}")
        k.e(f"v_lshlrev_b32 v{T+2*(i&3)}, 16, v{WR+i}")
        k.e(f"v_and_b32 v{T+2*(i&3)+1}, 0xffff0000, v{WR+i}")
        d = 42 + 2 * (i & 1)
        if i < 2: k.e(f"v_pk_mul_f32 {V(d,2)}, {V(XF+2*i,2)}, {V(T+2*(i&3),2)}")
        else: k.e(f"v_pk_fma_f32 {V(d,2)}, {V(XF+2*i,2)}, {V(T+2*(i&3),2)}, {V(d,2)}")
    k.e("v_pk_add_f32 v[42:43], v[42:43], v[44:45]")
    k.e("v_add_f32 v45, v42, v43")
    sum32(45, 37)
    k.e("v_cvt_pk_bf16_f32 v45, v45, v45")
    k.e("v_ashrrev_i32 v46, 31, v45")
    k.e("v_or_b32 v46, 0x80000000, v46")
    k.e("v_xor_b32 v45, v45, v46")
    k.e("v_and_b32 v45, 0xffff0000, v45")
    k.e("s_lshr_b32 s3, s36, 11")
    k.e("v_add_u32 v46, s3, v33")
    k.e("v_sub_u32 v44, 0xffff, v46")
    k.e("v_or_b32 v45, v45, v44")
    k.e("v_lshlrev_b32 v44, 2, v46")
    k.e("v_lshlrev_b32 v46, 3, v46")
    k.e("v_xor_b32 v38, 0x80000000, v38")
    k.e("v_mov_b32 v39, v40")
    k.e(f"s_mov_b32 s3, {WS_KEYS}")
    k.e(f"s_mov_b32 s39, {WS_STATS}")
    k.e("s_mov_b32 exec_lo, 1")
    k.e("s_mov_b32 exec_hi, 1")
    k.e("buffer_store_dword v45, v44, s[20:23], s3 offen sc1", tag='ln')
    k.e("buffer_store_dwordx2 v[38:39], v46, s[20:23], s39 offen sc1", tag='ln')
    k.e("s_mov_b64 exec, -1")
    k.e("s_load_dwordx2 s[4:5], s[0:1], 16")
    k.e("s_load_dwordx4 s[40:43], s[0:1], 64")
    k.e("s_load_dwordx2 s[92:93], s[0:1], 40")
    k.e("s_load_dwordx2 s[94:95], s[0:1], 80")
    k.e("s_load_dwordx2 s[100:101], s[0:1], 0")
    act(PRO[4])
    PFN = pfc[0] - 2
    k.srd(28, 64, 256)

    def reads(ks, buf):
        a = AD + 10 * buf
        ra = [f"ds_read_b128 {A(FA(ks,i),4)}, v{a+ks} offset:{i*2048}" for i in range(8)]
        rw = [[f"ds_read_b64_tr_b16 {A(FW(ks,j)+2*rd,2)}, v{a+2+j} offset:{ks*16384+rd*2048}" for rd in range(2)] for j in range(8)]
        out = []
        for j in range(8):
            out.append(rw[j]); out.append([ra[j]])
        return out
    k.stamp(S0)
    k.wait_vm('st0')
    k.e("s_waitcnt lgkmcnt(0)")
    k.e("s_barrier")
    k.stamp(ST or S0)
    n = 0
    for grp in reads(0, 0):
        for s in grp:
            k.e(s); n += 1
            if n == 12: k.e("s_waitcnt lgkmcnt(2)")
    k.e("s_cmp_lg_u32 s35, 0")
    k.e("s_cbranch_scc1 L_k1_vpath")

    def chunk_ops(c):
        kind, j = c
        slot = {'w': j % 4, 'kv': (j + 4) % 8}[kind]
        ops = [('s', f"s_add_u32 m0, s44, {slot * 16384}")]
        if kind == 'w':
            for q in range(4):
                ops.append(('g', f"buffer_load_dwordx4 v{WV + (q >> 1)}, s[8:11], s{48+q} offen offset:{q*1024}{wq_ld} lds"))
            ops.append(('v', f"v_add_u32 v{WV}, {64*8192}, v{WV}"))
            ops.append(('v', f"v_add_u32 v{WV+1}, {64*8192}, v{WV+1}"))
        elif kind == 'f':
            for q in range(4):
                ops.append(('g', f"buffer_load_dwordx4 v{12 + (q >> 1) + 2 * (j & 1)}, {S(60 + 8 * (j >> 1), 4)}, s{52+q} offen offset:{q*1024}{ffn_ld} lds"))
        else:
            ops.append(('s', f"s_mov_b32 s7, {j * KV_CH}"))
            for q in range(4):
                ops.append(('g', f"buffer_load_dwordx4 v{VDMA}, s[12:15], s7 offen offset:{q*1024}{kv_ld} lds"))
        return ops
    def xn_ops(kk):
        ops = []
        for qb in range(4):
            so = "0" if qb & 1 else "s58"
            ops.append(('g', f"buffer_load_dwordx4 {A(XR(kk,qb),4)}, v{XV + (qb >> 1)}, s[20:23], {so} offen offset:{(kk % 4)*1024}{opt.get('xn_ld', ' sc1')}"))
        if kk % 4 == 3:
            ops.append(('v', f"v_add_u32 v{XV}, 4096, v{XV}"))
            ops.append(('v', f"v_add_u32 v{XV+1}, 4096, v{XV+1}"))
        return ops
    def wreads(kk):
        st, ks = kk // 2, kk & 1
        return [[f"ds_read_b64_tr_b16 {A(WF(kk,db)+2*rd,2)}, v{TA+db} offset:{(st % 4)*16384 + ks*8192 + rd*1024}" for rd in range(2)] for db in range(8)]
    ool = []
    def spin(lab, ret, off, target, vd, vz, sv, sc):
        def fn():
            k.e(f"s_mov_b32 s{sc}, 0x400000")
            k.label(lab + "_l")
            k.e(f"s_sleep {opt.get('slp', 8)}")
            k.e(f"buffer_load_dword v{vd}, v{vz}, s[28:31], {off} offen sc1")
            k.e("s_waitcnt vmcnt(0)")
            k.e(f"v_readfirstlane_b32 s{sv}, v{vd}")
            k.e(f"s_sub_u32 s{sc}, s{sc}, 1")
            k.e(f"s_cmp_eq_u32 s{sc}, 0")
            k.e(f"s_cbranch_scc1 {ret}")
            k.e(f"s_cmp_lt_u32 s{sv}, {target}")
            k.e(f"s_cbranch_scc1 {lab}_l")
        ool.append((lab, fn, ret))
    def srd_rec(b, d, base, nbytes, add=None):
        if add is None:
            b.e(f"s_mov_b32 s{d}, s{base}"); b.e(f"s_and_b32 s{d+1}, s{base+1}, 0xffff")
        else:
            b.blk([f"s_add_u32 s{d}, s{base}, {add}", f"s_addc_u32 s{d+1}, s{base+1}, 0", f"s_and_b32 s{d+1}, s{d+1}, 0xffff"])
        b.e(f"s_mov_b32 s{d+2}, {nbytes}"); b.e(f"s_mov_b32 s{d+3}, 0x20000")

    def phase1_stream(isV):
        b = Rec()
        tg = 'v' if isV else 'k'
        b.e("v_and_b32 v46, 7, v0")
        b.e("v_lshrrev_b32 v1, 3, v0") if False else None
        b.e("v_mul_u32_u24 v30, 2064, v46")
        b.e("v_lshrrev_b32 v31, 3, v0")
        b.e("s_lshl_b32 s3, s32, 9")
        b.e("s_add_u32 s3, s3, 131072")
        b.e("v_lshl_add_u32 v30, v31, 4, v30")
        b.e("v_add_u32 v30, s3, v30")
        b.e("v_lshlrev_b32 v31, 8, v31")
        b.e("v_lshl_add_u32 v46, v46, 4, v31")
        for i in (1, 2, 3, 0):
            b.e(f"ds_read_b128 {V(30+4*i,4)}, v30 offset:{i*128}", tag='xs')
        b.e("s_lshr_b32 s3, s2, 1")
        b.e(f"s_mul_i32 s3, s3, {XN_RB}")
        b.e("s_add_u32 s3, s3, s56")
        b.e("s_and_b32 s39, s2, 1")
        b.e("s_lshl_b32 s39, s39, 7")
        b.e("s_add_u32 s3, s3, s39")
        b.e("s_add_u32 s39, s3, 4096")
        b.at(2)
        for i in range(4):
            b.e(f"buffer_store_dwordx4 {V(30+4*i,4)}, v46, s[20:23], s{3 if i < 2 else 39} offen offset:{(i&1)*2048} sc1", tag='ln')
        b.e("s_lshl_b32 s3, s34, 1")
        b.e("s_and_b32 s36, s32, 1")
        b.e("s_add_u32 s3, s3, s36")
        b.e(f"s_mul_i32 s3, s3, {KV_HEAD}")
        b.e(f"s_mul_i32 s36, s33, {4*KV_TILE}")
        b.e("s_add_u32 s3, s3, s36")
        b.e("s_lshr_b32 s36, s32, 1")
        b.e(f"s_mul_i32 s36, s36, {2*KV_TILE}")
        b.e("s_add_u32 s3, s3, s36")
        b.e(f"s_add_u32 s38, s3, {KV_CH if isV else 0}")
        b.e("s_lshl_b32 s39, s34, 7")
        b.e("s_lshl_b32 s36, s33, 2")
        b.e("s_add_u32 s39, s39, s36")
        b.e(f"s_add_u32 s39, s39, {WS_FLG + (32 if isV else 0)}")
        b.e("v_mov_b32 v30, 1")
        b.e("v_mov_b32 v31, 0")
        b.blk(["s_cmp_eq_u32 s32, 0", f"s_cselect_b32 s39, s39, {BIG}"])
        b.blk(["s_mov_b64 exec, 1", ("buffer_store_dword v31, v31, s[20:23], s39 offen sc1", 'ln'), "s_mov_b64 exec, -1"])
        if MAP == 4:
            b.e("s_and_b32 s33, s2, 7")
            b.e("s_lshl_b32 s33, s33, 2")
            b.e("s_bfe_u32 s3, s2, 0x20003")
            b.e("s_add_u32 s33, s33, s3")
            b.e("s_lshr_b32 s34, s2, 5")
        else:
            b.e("s_and_b32 s33, s2, 6")
            b.e("s_lshl_b32 s33, s33, 2")
            b.e("s_bfe_u32 s3, s2, 0x30003")
            b.e("s_add_u32 s33, s33, s3")
            b.e("s_lshr_b32 s34, s2, 6")
            b.e("s_lshl_b32 s34, s34, 1")
            b.e("s_and_b32 s3, s2, 1")
            b.e("s_add_u32 s34, s34, s3")
        b.e("s_lshl_b32 s64, s34, 7")
        b.e("s_lshl_b32 s3, s33, 2")
        b.e("s_add_u32 s64, s64, s3")
        b.e(f"s_add_u32 s64, s64, {WS_CFL}")
        b.e("s_lshl_b32 s65, s34, 8")
        b.e("s_sub_u32 s65, 1920, s65")
        b.e("v_mul_u32_u24 v32, s65, v0")
        b.blk(["s_cmp_eq_u32 s32, 0", f"s_cselect_b32 s64, s64, {BIG}"])
        b.blk(["s_mov_b64 exec, 3", ("buffer_store_dword v31, v32, s[20:23], s64 offen sc1", 'ln'), "s_mov_b64 exec, -1"])
        b.e("s_lshl_b32 s3, s2, 2")
        b.e(f"s_add_u32 s3, s3, {WS_HFL}")
        b.e("v_lshlrev_b32 v32, 10, v0")
        b.blk(["s_cmp_eq_u32 s32, 0", f"s_cselect_b32 s3, s3, {BIG}"])
        b.blk(["s_mov_b64 exec, 0x1ff", ("buffer_store_dword v31, v32, s[20:23], s3 offen sc1", 'ln'), "s_mov_b64 exec, -1"])
        b.e("s_lshl_b32 s35, s34, 1")
        b.e("s_sub_u32 s36, 32, s35")
        b.e("s_add_u32 s35, s35, 2")
        b.e("s_lshl_b32 s44, s32, 12")
        b.e("s_lshl_b32 s58, s32, 1")
        b.e("s_sub_u32 s58, 7, s58")
        b.e(f"s_mul_i32 s58, s58, {XN_RB}")
        b.e("s_sub_u32 s3, 15, s34")
        b.e("s_lshl_b32 s45, s3, 3")
        b.e("s_add_u32 s45, s45, s32")
        b.e("s_lshl_b32 s46, s34, 3")
        b.e("s_add_u32 s46, s46, s32")
        srd_rec(b, 68, 42, 7340032)
        b.blk(["s_cmp_eq_u32 s32, 0", f"s_cselect_b32 s37, 0, {BIG}"])
        b.e("s_lshl_b32 s3, s33, 8")
        srd_rec(b, 16, 4, 0, "s3")
        b.e("s_sub_u32 s18, 8388608, s3")
        WQN = int(opt.get('wqn', 4))
        ln_ = 64 // WQN
        b.e(f"v_and_b32 v33, {ln_ - 1}, v0")
        b.e("v_lshrrev_b32 v32, 1, v33")
        b.e("v_and_b32 v33, 1, v0")
        b.e("v_lshlrev_b32 v32, 13, v32")
        b.e("v_lshl_add_u32 v45, v33, 7, v32")
        b.e("s_lshl_b32 s3, s32, 3")
        b.e("s_add_u32 s3, s3, s34")
        b.e(f"s_mul_i32 s47, s3, {ln_ // 2 * 8192}")
        WQ0 = int(opt.get('wq0', 6))
        ev = []
        for j in range(WQN): ev.append((WQ0 + j * float(opt.get('wqs', 2)), 'pf', j))
        NS = int(opt.get('cas', 4))
        for j in range(NS): ev.append((5.2 + j * float(opt.get('cad', 1.2)), 'ca', j))
        b.e(f"s_bfe_u32 s6, s2, {(NS.bit_length() - 1) << 16 | 3}")
        b.e("s_lshl_b32 s3, s32, 8")
        b.e("s_or_b32 s6, s6, s3")
        WOP = WOT
        if WOP:
            b.e("v_bfe_u32 v39, v0, 3, 1")
            b.e("v_and_b32 v33, 7, v0")
            b.e("v_lshlrev_b32 v39, 11, v39")
            b.e("v_lshl_add_u32 v39, v33, 7, v39")
            b.e("s_lshr_b32 s3, s2, 1")
            b.e("s_lshl_b32 s3, s3, 16")
            b.e("v_add_u32 v39, s3, v39")
            b.e("s_and_b32 s3, s2, 1")
            b.e("s_lshl_b32 s3, s3, 10")
            b.e("v_add_u32 v39, s3, v39")
            b.e("s_lshl_b32 s3, s32, 14")
            b.e("v_add_u32 v39, s3, v39")
            ev.append((5.99, 'srd', 0))
            for j in range(4): ev.append((float(opt.get('wop0', 6)) + j * 2 + 0.01, 'wo', j))
        late = []
        for step, kind, j in sorted(ev):
            o = b
            if step >= 12:
                o = Rec(); late.append(o)
            o.at(step)
            if kind == 'ca':
                o.check_clear('ln')
                o.blk([f"s_cmp_eq_u32 s6, {j}", f"s_cselect_b32 s3, 0, {BIG}"])
                o.blk(["s_mov_b64 exec, 1", "buffer_atomic_add v30, v31, s[28:31], s3 offen sc1", "s_mov_b64 exec, -1"])
            elif kind == 'srd':
                srd_rec(o, 60, 92, 8388608)
            elif kind == 'wo':
                o.e("buffer_load_dword v44, v39, s[60:63], 0 offen", tag='pf')
                o.e("v_add_u32 v39, 4096, v39")
            else:
                o.e(f"buffer_load_dword v44, v45, s[{16 if step < 12 else 8}:{19 if step < 12 else 11}], s47 offen{opt.get('wqpf_ld', '')}", tag='pf')
                o.e(f"s_add_u32 s47, s47, {1024 // WQN * 8192}")
        b.e("v_lshrrev_b32 v32, 4, v0")
        b.e("v_and_b32 v33, 15, v0")
        b.e("s_lshl_b32 s3, s32, 4")
        b.e("v_add_u32 v34, s3, v32")
        b.e("v_lshlrev_b32 v36, 1, v32")
        b.e("v_xor_b32 v36, v36, v33")
        b.e("v_xor_b32 v37, 8, v36")
        if '2' in CPF:
            b.at(10.1)
            cp = code_prefetch("L_phase2", "L_k2_fin", 32, 6, 40, 38)
            cp = [x.replace("s8", "s3") for x in cp]
            b.blk(cp[:4])
            for x in cp[4:-3]: b.e(x)
            b.blk(cp[-3:-1])
            b.e(cp[-1])
        b.at(12)
        b.e("buffer_load_dword v30, v31, s[28:31], s37 offen sc1", tag='poll')
        for j in range(3): b.e(f"s_mov_b32 s{8+j}, s{16+j}")
        srd_rec(b, 16, 66, 16 << 20, WS_CTX)
        for j in range(4): b.e(f"s_mov_b32 s{48+j}, {j*31744}")
        b.e("v_lshlrev_b32 v35, 13, v34")
        b.e(f"v_lshl_add_u32 v{WV}, v36, 4, v35")
        b.e(f"v_lshl_add_u32 v{WV+1}, v37, 4, v35")
        b.e(f"v_lshlrev_b32 v{VX}, 4, v0")
        b.e(f"v_add_u32 v{VY}, 65536, v{VX}")
        b.e(f"v_add_u32 v{VDMA}, s44, v{VX}")
        b.e("v_mov_b32 v7, 0")
        b.e("v_lshlrev_b32 v35, 2, v32")
        b.e("v_sub_u32 v35, v33, v35")
        b.e("s_lshl_b32 s3, s32, 4")
        b.e(f"v_add_u32 v{VRA}, s3, v35")
        b.e("s_sub_u32 s3, 48, s3")
        b.e(f"v_add_u32 v{VRB}, s3, v35")
        b.e(f"s_mul_i32 s3, s33, {KV_HEAD}")
        b.e(f"s_add_u32 s3, s3, {WS_KV}")
        srd_rec(b, 12, 66, 0, "s3")
        b.e(f"s_mul_i32 s14, s36, {KV_TILE}")
        for o in late: b.items += o.items
        b.at(13)
        b.e(f"s_mul_i32 s3, s45, {XN_RB}")
        b.e(f"v_add_u32 v{XV}, s3, v{VX}")
        b.e(f"s_mul_i32 s3, s46, {XN_RB}")
        b.e(f"v_add_u32 v{XV+1}, s3, v{VX}")
        if '6' in CPF:
            b.e("v_mov_b32 v14, v40"); b.e("v_mov_b32 v15, v41")
        if 'dbg_noxn' in opt:
            b.e(f"v_mov_b32 v{XV}, {BIG}"); b.e(f"v_mov_b32 v{XV+1}, {BIG}")
        if 'dbg_nowq' in opt: b.e("s_mov_b32 s10, 0")
        if 'dbg_nost' in opt: b.e("s_mov_b32 s26, 0")
        spin(f"L_spinA{tg}", f"L_spinAr{tg}", 0, 256, 30, 31, 3, 47)
        return b
    def ta_setup(b):
        b.e("v_lshrrev_b32 v42, 2, v33")
        b.e("v_lshl_add_u32 v43, v32, 3, v42")
        b.e("v_lshlrev_b32 v43, 8, v43")
        b.e("v_and_b32 v44, 3, v0")
        b.e("v_lshl_add_u32 v43, v44, 3, v43")
        b.e("v_and_b32 v44, 1, v32")
        b.e("v_lshl_add_u32 v42, v44, 2, v42")
        for db in range(8):
            b.e(f"v_xor_b32 v44, {db}, v42")
            b.e(f"v_lshl_add_u32 v{TA+db}, v44, 5, v43")

    def kstep(isV, st, ks, gaps, gtags, pre, b):
        for s in pre:
            if s.endswith(':'): k.label(s[:-1])
            else: k.e(s)
        order = [(it, jd) for it in range(8) for jd in range(8)]
        if st == 7 and ks == 1: order.sort(key=lambda x: frag_of(isV, *x))
        for n, (it, jd) in enumerate(order):
            fa, fw_ = A(FA(ks, it), 4), A(FW(ks, jd), 4)
            d = acc(isV, it, jd)
            c = "0" if (st == 0 and ks == 0) else d
            k.e(mfma(d, fa, fw_, c) if isV else mfma(d, fw_, fa, c))
            if n in gaps:
                for s in gaps[n]: k.e(s, tag=gtags.get(n))
            else:
                b.fill(k, 2 * st + ks + n / 64.0)
    def place_vm(g, gt, ops, start, step):
        gi = start; lead = []
        for t, s, tg in ops:
            if t == 's':
                if gi == 0: lead.append(s)
                else: g.setdefault(gi - 1, []).insert(0, s)
            elif t == 'g':
                assert gi not in g and gi < 64, gi
                g[gi] = [s]; gt[gi] = tg; gi += step
            else:
                q = gi - step + 1
                while q in g and (len(g[q]) >= 2 or g[q][-1].startswith(('buffer', 'ds_read_b64'))) or (q - start) % step == 0: q += 1
                g.setdefault(min(q, 63), []).append(s)
        return lead
    vq0, dq0 = list(k.vq), list(k.dq)
    for isV in (0, 1):
        if isV:
            k.label("L_k1_vpath"); k.win = []; k.vq = list(vq0); k.dq = list(dq0)
        b = phase1_stream(isV)
        if S1: k.nstamp = 0
        for st in range(8):
            p = st & 1
            k.stamp(S1)
            g = {}
            for n, grp in enumerate(reads(1, p)):
                g[2 * n + 1] = (["s_waitcnt lgkmcnt(6)"] if n % 4 == 3 else []) + grp
            gt = {}; lead = []
            if st == 0:
                ops = []
                for h, nm in enumerate(('w1', 'a1')):
                    if nm not in '/'.join(PRO):
                        ops += [(t, s, 'st1') for t, s in dma_ops(1)[10*h:10*h+10]] + [('v', s, None) for s in adv_ops(1)[4*h:4*h+4]]
                lead = place_vm(g, gt, ops, 0, int(opt.get('st1s', 2)))
                pfc[0] = 2 + PFN
                for q in range(int(opt.get('pfk', 2))):
                    po = pf_ops()
                    g[40 + 4 * q] = [po[0]]; gt[40 + 4 * q] = 'pf'; g[41 + 4 * q] = po[1:] + g.get(41 + 4 * q, [])
            kstep(isV, st, 0, g, gt, ["s_waitcnt lgkmcnt(0)"] + lead, b)
            g = {}; gt = {}
            if st < 7:
                for n, grp in enumerate(reads(0, p ^ 1)):
                    g[2 * n + 1] = (["s_waitcnt lgkmcnt(6)"] if n % 4 == 2 else []) + grp
            if st < 6:
                ops = []
                d = dma_ops(p); adv = adv_ops(st + 2) if st < 5 else []
                ops = [(t, s, f'st{st+2}') for t, s in d[:10]] + [('v', s, None) for s in adv[:4]] + \
                      [(t, s, f'st{st+2}') for t, s in d[10:]] + [('v', s, None) for s in adv[4:]]
                lead = place_vm(g, gt, ops, 0, 4)
                if pfc[0] < 8:
                    po = pf_ops()
                    g[62] = [po[0]] + g.get(62, []); gt[62] = 'pf'
                    g[63] = [po[1]] + g.get(63, []) + [po[2]]
                need = f'st{st+1}'
            elif st == 6:
                ops = []
                for c in range(4): ops += [(t, s, f'w{c}') for t, s in chunk_ops(('w', c))]
                lead = place_vm(g, gt, ops, 0, 4)
                need = 'st7'
            else:
                assert not b.items, len(b.items)
                ta_setup(b)
                b.items.append(('at', 15.3, None))
                for grp in wreads(0):
                    for s in grp: b.e(s)
                b.e("s_waitcnt lgkmcnt(8)")
                cv = Rec()
                for n in range(26):
                    cv.at(15 + (2 * n + 5) / 64.0)
                    r = SRC(n)[1]
                    for q in range(4): cv.e(f"v_cvt_pk_bf16_f32 v{PK(n)+q}, v{r+2*q}, v{r+2*q+1}")
                b.items += cv.items
                ops = []
                for kk in range(4): ops += [(t, s, f'x{kk}') for t, s in xn_ops(kk)]
                lead = place_vm(g, gt, ops, 0, 4)
                tg = 'v' if isV else 'k'
                lead += ["v_readfirstlane_b32 s3, v30", "s_nop 0", "s_or_b32 s3, s3, s37", "s_cmp_lt_u32 s3, 0" if 'dbg_noca' in opt else "s_cmp_lt_u32 s3, 256", f"s_cbranch_scc1 L_spinA{tg}", f"L_spinAr{tg}:"]
                need = 'w0'
            k.e(f"s_waitcnt vmcnt({k.vm_n(need)}) lgkmcnt(0)" if k.vm_n(need) is not None else "s_waitcnt lgkmcnt(0)")
            k.use(need)
            kstep(isV, st, 1, g, gt, lead + ["s_barrier"], b)
        print(f"phase1 isV={isV}: items left {len(b.items)}")
        k.stamp(S1)
        b.drain(k)
        k.stamp(S1)
        if not isV:
            k.e("s_branch L_phase2")
            vqK = list(k.vq)
    assert vqK == k.vq
    k.label("L_phase2")
    k.win = []
    k.e("s_nop 7")
    k.stamp(ST)

    b = Rec()
    KY = 56
    SPK = float(opt.get('spk', 2))
    def kvstore(n):
        b.at(n / SPK)
        off = (n >> 4) * KV_TILE + (n & 15) * 1024
        if n % 4 == 0: b.e(f"s_add_u32 s37, s38, {off}")
        b.e(f"buffer_store_dwordx4 {V(PK(n),4)}, v{VX}, s[24:27], s37 offen offset:{(n % 4)*1024}{opt.get('kv_st', ' sc1')}", tag='kvst')
    for n in range(26):
        kvstore(n)
        if 8 <= n < 14:
            m = n + 18
            for q in range(8): b.e(f"v_accvgpr_read_b32 v{48+q}, a{SRC(m)[1]+q}")
            for q in range(4): b.e(f"v_cvt_pk_bf16_f32 v{PK(m)+q}, v{48+2*q}, v{49+2*q}")
    for n in range(26, 32): kvstore(n)
    b.e("v_mov_b32 v12, 1")
    b.e("v_and_b32 v1, 15, v0")
    b.e("v_lshlrev_b32 v1, 2, v1")
    b.e("s_lshr_b32 s6, s33, 1")
    b.e("s_lshl_b32 s6, s6, 7")
    b.e(f"s_add_u32 s6, s6, {WS_FLG}")
    b.blk(["s_cmp_eq_u32 s32, 0", f"s_cselect_b32 s6, s6, {BIG}"])
    SIG = int(opt.get('sig', 21))
    POL = float(opt.get('pol', 26.5))
    b.at(SIG)
    b.blk(["s_mov_b64 exec, 1", "buffer_store_dword v12, v7, s[20:23], s39 offen sc1", "s_mov_b64 exec, -1"])
    b.at(POL)
    b.e("buffer_load_dword v12, v1, s[20:23], s6 offen sc1", tag='poll')
    CK = int(opt.get('ck', 29))
    n_ = 0
    for j in (0, 2, 1, 3, 4, 5, 6):
        for t, s in chunk_ops(('kv', j)):
            if t == 'g':
                b.at(max(CK + n_ * float(opt.get('kvp', 0.09)), {4: 25, 5: 27, 6: 29}.get(j, 0))); n_ += 1
            b.e(s, tag=f'c{16+j}')
    def spinB():
        k.e("s_mov_b32 s59, 0x400000")
        k.label("L_spinB_l")
        k.e(f"s_sleep {opt.get('slp', 4)}")
        k.e("buffer_load_dword v12, v1, s[20:23], s6 offen sc1")
        k.e("s_sub_u32 s59, s59, 1")
        k.e("s_cmp_eq_u32 s59, 0")
        k.e("s_cbranch_scc1 L_spinBx")
        k.e("s_waitcnt vmcnt(0)")
        k.e("v_cmp_ne_u32 vcc, 1, v12")
        k.e("s_cbranch_vccnz L_spinB_l")
        k.label("L_spinBx")
        k.e("s_waitcnt vmcnt(0)")
    ool.append(("L_spinB", spinB, "L_spinBr"))

    b1 = b
    b = Rec()
    srd_rec(b, 60, 40, 7340032)
    RT = [float(x) for x in opt.get('rt', '0,5').split(',')] if '6' in CPF else []
    for x in RT:
        b.at(x)
        b.e("global_load_dword v13, v[14:15], off", tag='keys')
    b.at(17 / SPK)
    b.e(f"s_mov_b32 s3, {WS_KEYS}")
    b.e(f"s_mov_b32 s47, {WS_KEYS + 4096}")
    for i in range(8):
        b.e(f"buffer_load_dwordx4 {V(KY+4*i,4)}, v{VX}, s[20:23], s{3 if i < 4 else 47} offen offset:{(i % 4)*1024} sc1", tag='keys')
    b.at(17 / SPK + 8)
    b.wait_vm('keys')
    b.e(f"v_max_u32 v14, v{KY}, v{KY+1}")
    b.e(f"v_min_u32 v15, v{KY}, v{KY+1}")
    for i in range(2, 32):
        b.e(f"v_med3_u32 v15, v14, v15, v{KY+i}"); b.e(f"v_max_u32 v14, v14, v{KY+i}")
    def wmax(v, sdst):
        for m in ["quad_perm:[1,0,3,2]", "quad_perm:[2,3,0,1]", "row_half_mirror", "row_mirror"]:
            b.blk([f"v_max_u32_dpp {v}, {v}, {v} {m} row_mask:0xf bank_mask:0xf"])
        b.blk([f"v_readlane_b32 s3, {v}, 0", f"v_readlane_b32 s47, {v}, 16"])
        b.blk([f"v_readlane_b32 s4, {v}, 32", f"v_readlane_b32 s5, {v}, 48"])
        b.blk(["s_max_u32 s3, s3, s47", "s_max_u32 s4, s4, s5", f"s_max_u32 s{sdst}, s3, s4"])
    b.e("v_mov_b32 v13, v14")
    wmax("v13", 40)
    b.blk(["v_cmp_eq_u32 vcc, s40, v14"])
    b.blk(["v_cndmask_b32 v13, v14, v15, vcc"])
    wmax("v13", 41)
    for t in range(2):
        b.e(f"s_and_b32 s3, s{40+t}, 0xffff")
        b.e(f"s_sub_u32 s{42+t}, 0xffff, s3")
    for t in range(2):
        b.e(f"v_mov_b32 v60, s{40+t}")
        b.e("v_not_b32 v61, v60")
        b.e("v_ashrrev_i32 v61, 31, v61")
        b.e("v_or_b32 v61, 0x80000000, v61")
        b.e("v_xor_b32 v60, v60, v61")
        b.e("v_and_b32 v60, 0xffff0000, v60")
        b.e("v_mul_f32 v60, 0xbfb8aa3b, v60")
        b.e("v_exp_f32 v60, v60")
        b.e("v_add_f32 v60, 1.0, v60")
        b.e("v_rcp_f32 v60, v60")
        b.e("v_cvt_pk_bf16_f32 v60, v60, v60")
        b.e(f"v_and_b32 v{64+t}, 0xffff0000, v60")
    for r in range(16): b.e(f"v_mov_b32 v{LS+r}, 0")
    WARM = opt.get('warm', '1') == '1'
    if WARM:
        b.e("s_mul_i32 s3, s34, s34")
        b.e("s_lshl_b32 s47, s33, 6")
        b.e("s_add_u32 s3, s3, s47")
        b.e("s_lshl_b32 s3, s3, 2")
        b.e("s_add_u32 s3, s3, s32")
        b.e("s_lshl_b32 s3, s3, 7")
        b.e("s_sub_u32 s3, s3, 512")
        b.e(f"v_min_u32 v13, {int(opt.get('wlanes', 25 if WOT else 33)) - 1}, v0")
        b.e("v_mov_b32 v28, s94"); b.e("v_mov_b32 v29, s95")
        b.e("v_mov_b32 v30, v13")
        for first, lo, hi in ((7, 100, 101), (11, 60, 61), (18, 68, 69), (25, 92, 93)):
            b.e(f"v_mov_b32 v14, s{lo}"); b.e(f"v_mov_b32 v15, s{hi}")
            b.blk([f"v_cmp_le_u32 vcc, {first}, v13", f"v_subrev_u32 v31, {first}, v13"])
            b.blk(["v_cndmask_b32 v28, v28, v14, vcc", "v_cndmask_b32 v29, v29, v15, vcc"])
            b.blk(["v_cndmask_b32 v30, v30, v31, vcc"])
        b.e("v_lshlrev_b32 v30, 20, v30")
        b.e("v_add_u32 v30, s3, v30")
        b.e("v_ashrrev_i32 v31, 31, v30")
        b.e("v_lshl_add_u64 v[28:29], v[30:31], 0, v[28:29]")
        b.e("s_mov_b32 s40, 512"); b.e("s_mov_b32 s41, 0")
    b.e("v_readfirstlane_b32 s100, v64")
    b.e("v_readfirstlane_b32 s101, v65")
    b.at(SIG)
    for j in range(3): b.e(f"s_mov_b32 s{24+j}, s{60+j}")
    b.e("s_add_u32 s3, s34, 7")
    b.e("s_and_b32 s3, s3, 7")
    b.e("s_lshl_b32 s3, s3, 5")
    b.e("s_add_u32 s3, s3, s33")
    b.e("s_mul_i32 s92, s3, 2341")
    b.e("s_lshr_b32 s92, s92, 16")
    b.e("s_mul_i32 s47, s92, 28")
    b.e("s_sub_u32 s4, s3, s47")
    b.e(f"s_mul_i32 s5, s92, {128*7168}")
    b.e("s_lshl_b32 s47, s4, 8")
    b.e("s_add_u32 s5, s5, s47")
    b.e(f"s_mov_b32 s94, {QSCALE}")
    b.e(f"s_mov_b32 s95, {QSCALE}")
    b.e("s_sub_u32 s55, 15, s34")
    b.e("s_sub_u32 s45, s36, 3")
    b.e("s_sub_u32 s46, s35, 3")
    b.e("s_mov_b32 s54, s44")
    b.e("s_sub_u32 s35, s35, 2")
    b.e("s_sub_u32 s36, s36, 2")
    b2 = b
    b3 = Rec()
    WT0 = float(opt.get('wt0', 18))
    WTB = int(opt.get('wtb', 23))
    WTG = int(opt.get('wtg', 8))
    b3.e("s_lshr_b32 s52, s2, 1")
    b3.e("s_lshl_b32 s52, s52, 16")
    b3.e("s_and_b32 s53, s2, 1")
    b3.e("s_lshl_b32 s53, s53, 10")
    b3.e("s_add_u32 s52, s52, s53")
    b3.e("s_lshl_b32 s53, s32, 14")
    b3.e("s_add_u32 s52, s52, s53")
    srd_rec(b3, 28, 92, 8388608)
    for j in range(8):
        b3.at(WT0 + 2 * (j // WTG))
        b3.blk([f"s_add_u32 m0, s56, {65536 + j * 1024}", f"v_xor_b32 v88, {j * 32}, v{VX}",
                (f"buffer_load_dwordx4 v88, s[28:31], s52 offen{opt.get('wo_ld', '')} lds", 'wo'), "s_add_u32 s52, s52, 2048"])
    b3.e("v_lshrrev_b32 v89, 2, v0")
    b3.e("v_lshlrev_b32 v89, 10, v89")
    b3.e("s_lshl_b32 s53, s32, 8")
    b3.e("s_add_u32 s53, s53, 65536")
    b3.e("v_add_u32 v89, s53, v89")
    b3.e("v_mov_b32 v90, 0xff")
    srd_rec(b3, 28, 66, 16 * WO_NT, WS_WOT)
    b3.e("s_and_b32 s52, s2, 1")
    b3.e("s_lshl_b32 s52, s52, 2")
    b3.e("s_add_u32 s52, s52, s32")
    b3.e(f"s_mul_i32 s52, s52, {2 * WO_NT}")
    b3.e("s_lshr_b32 s53, s2, 1")
    b3.e("s_lshl_b32 s53, s53, 12")
    b3.e("s_add_u32 s52, s52, s53")
    b3.at(WTB)
    for q in range(8):
        b3.e(f"v_and_or_b32 v{92 + (q & 1)}, v{TA+q}, v90, v89")
        for rd in range(2):
            b3.e(f"ds_read_b64_tr_b16 {V(96 + 4*q + 2*rd, 2)}, v{92 + (q & 1)} offset:{rd*16384}", tag='wt')
    for q in range(8):
        b3.at(WTB + 1.2 + 0.5 * q)
        b3.wait_ds('wt')
        b3.e(f"buffer_store_dwordx4 {V(96 + 4*q, 4)}, v{VX}, s[28:31], s52 offen offset:{(q & 3)*1024} sc1", tag='wts')
        if q == 3: b3.e(f"s_add_u32 s52, s52, {WO_NT}")
    b3.e("s_and_b32 s52, s2, 1")
    b3.e("s_lshl_b32 s52, s52, 9")
    b3.e("s_lshr_b32 s93, s2, 1")
    b3.e("s_lshl_b32 s93, s93, 2")
    b3.e("s_add_u32 s52, s52, s93")
    b3.e(f"s_add_u32 s52, s52, {WS_WFL}")
    b3.blk(["s_cmp_eq_u32 s32, 0", f"s_cselect_b32 s52, s52, {BIG}"])
    b3.e("v_mov_b32 v24, 1")
    b3.e("v_mov_b32 v25, 0")
    if not WOT: b3.items = []
    PKM = opt.get('pkm', '0') == '1'
    def conv_items(qb):
        r_ = Rec()
        for s_ in range(4):
            r = QA(2 * s_, qb)
            if PKM:
                for e_ in range(0, 8, 2): r_.e(f"v_pk_mul_f32 {V(r+e_,2)}, {V(r+e_,2)}, s[94:95]")
            else:
                for e_ in range(8): r_.e(f"v_mul_f32 v{r+e_}, s94, v{r+e_}")
            for e_ in range(4): r_.e(f"v_cvt_pk_bf16_f32 v{r+e_}, v{r+2*e_}, v{r+2*e_+1}")
            for e_ in range(4): r_.e(f"v_accvgpr_write_b32 a{Q(qb,s_)+e_}, v{r+e_}")
        r_.items.append(('mark', f'conv{qb}', None))
        return r_.items
    p2_start = len(k.lines)
    XLA = int(opt.get('xla', 7))
    xsched = {}; nx_ = 4
    for kk in range(32):
        xsched[kk] = []
        while nx_ < 32 and nx_ <= kk + XLA and len(xsched[kk]) < 2:
            xsched[kk].append(nx_); nx_ += 1
    for kk in range(32):
        st, ks = kk // 2, kk & 1
        k.stamp(S2 and kk in (0, 4, 8, 12, 16, 20, 24, 28, 31))
        need = [f'x{kk}']
        if ks == 1 and st < 15: need.append(f'w{st+1}')
        if kk == SIG:
            assert not any(it[2] == 'kvst' for it in b1.items), "stores not all issued before SIG"
            need.append('kvst')
        if kk == WTB:
            assert not any(it[0] == 'b' and any(isinstance(x, tuple) for x in it[1]) for it in b3.items)
            need.append('wo')
        if kk == CK:
            assert not b3.items
            need.append('poll')
        if kk == 31: need.append('c16')
        w = [x for x in (k.vm_n(t) for t in need) if x is not None]
        k.e("s_waitcnt " + (f"vmcnt({min(w)}) " if w else "") + "lgkmcnt(0)")
        for t in need: k.use(t)
        if kk == CK:
            assert not any('vcc' in str(it[1]) for it in b2.items)
            k.e("s_cmp_lg_u32 s32, 0")
            k.e("s_cbranch_scc1 L_spinBr")
            k.e("v_cmp_ne_u32 vcc, 1, v12")
            k.e("s_cbranch_vccnz L_spinB")
            k.label("L_spinBr")
        if ks == 1: k.e("s_barrier")
        g = {}; gt = {}
        if kk + 1 < 32:
            for n, grp in enumerate(wreads(kk + 1)):
                g[1 + 3 * n] = (["s_waitcnt lgkmcnt(6)"] if n == 5 else []) + grp
        vm = []
        if ks == 1 and st + 4 < 16: vm += [(t, s, f'w{st+4}') for t, s in chunk_ops(('w', st + 4))]
        for x in xsched.get(kk, []): vm += [(t, s, f'x{x}') for t, s in xn_ops(x)]
        ng = sum(1 for x in vm if x[0] == 'g')
        free = [x for x in range(2, 32) if x not in g]
        pick = [free[(j * len(free)) // ng] for j in range(ng)] if ng else []
        j = 0
        for t, s, tg in vm:
            if t == 'g': g[pick[j]] = [s]; gt[pick[j]] = tg; j += 1
            elif t == 's':
                q = pick[j] - 1
                if q in gt: g[q].append(s)
                else: g.setdefault(q, []).insert(0, s)
            else: g[pick[j - 1]].append(s)
        order = [(db, qb) for db in range(8) for qb in range(4)]
        if kk == 31:
            order = [(db, qb) for qb in range(4) for db in range(8)]
            assert not b2.items, len(b2.items)
            for kb in range(2):
                for s_ in range(4): b2.e(f"ds_read_b128 {A(FR(kb,s_),4)}, v{VY} offset:{(kb*4+s_)*1024}", tag=f'k{kb}')
            b2.at(31 + 12 / 32.0)
            b2.items += conv_items(0) + conv_items(1)
        elif kk > 24:
            for r in range(16): b2.e(f"v_accvgpr_write_b32 a{XR(kk-1,0)+r}, 0")
        for n, (db, qb) in enumerate(order):
            k.e(mfma(V(QA(db, qb), 4), A(WF(kk, db), 4), A(XR(kk, qb), 4), V(QA(db, qb), 4) if kk else "0"))
            if n in g:
                for s in g[n]: k.e(s, tag=gt.get(n))
            else:
                nl = k.ni
                b1.fill(k, kk + n / 32.0)
                if k.ni == nl: b3.fill(k, kk + n / 32.0)
                if k.ni == nl: b2.fill(k, kk + n / 32.0)
    print("phase2 items left", len(b1.items), len(b2.items))
    b1.drain(k)
    grp_ = None
    for ln in k.lines[p2_start:] + ["s_mov_b32 m0, 0"]:
        if ' m0,' in ln:
            assert grp_ is None or (len(set(grp_)) == 1 and len(grp_) == (1 if grp_[0] == 's[28:31]' else 4)), grp_
            grp_ = []
        elif ' lds' in ln: grp_.append(ln.split(', ')[1])
    k.stamp(ST or S2)
    XS = 160
    def ffn_issue():
        for t in range(2):
            k.e(f"s_lshr_b32 s3, s{42+t}, 4")
            k.e(f"s_mul_i32 s3, s3, {XN_RB}")
            k.e(f"s_and_b32 s47, s{42+t}, 15")
            k.e("s_lshl_b32 s47, s47, 4")
            k.e("s_add_u32 s3, s3, s47")
            k.e(f"v_mov_b32 v{28+t}, s3")
        k.e("v_lshrrev_b32 v24, 4, v0")
        k.e("v_and_b32 v25, 15, v0")
        k.e("v_cmp_eq_u32 vcc, 1, v25")
        k.e("s_lshl_b32 s3, s32, 4")
        k.e("v_add_u32 v26, s3, v24")
        k.e("v_cndmask_b32 v28, v28, v29, vcc")
        k.e("v_lshl_add_u32 v28, v24, 8, v28")
        k.e("v_mul_u32_u24 v26, 7168, v26")
        k.e("v_lshlrev_b32 v24, 1, v24")
        k.e("v_xor_b32 v24, v24, v25")
        k.e("v_xor_b32 v25, 8, v24")
        k.e("v_lshl_add_u32 v24, v24, 4, v26")
        k.e("v_lshl_add_u32 v25, v25, 4, v26")
        k.e("s_lshl_b32 s3, s92, 12")
        for q in range(4):
            k.e(f"buffer_load_dwordx4 {A(XS+4*q,4)}, v28, s[20:23], s3 offen offset:{q*1024} sc1")
        ops = []
        for m, srd in enumerate((24, 68)):
            for h in range(2):
                for q in range(4):
                    pre = [f"s_add_u32 m0, s54, {m*32768 + h*16384}"] if q == 0 else []
                    ops.append((pre + [f"s_add_u32 s3, s5, {h*64*7168 + q*27648}"],
                                f"buffer_load_dwordx4 v{24 + (q >> 1)}, {S(srd,4)}, s3 offen offset:{q*1024}{ffn_ld} lds"))
        return ops
    def ffn_finish():
        k.e("v_lshrrev_b32 v24, 4, v0")
        k.e("v_bfe_u32 v25, v0, 2, 2")
        k.e("v_lshl_add_u32 v26, v24, 3, v25")
        k.e("v_lshlrev_b32 v26, 8, v26")
        k.e("v_and_b32 v27, 3, v0")
        k.e("v_lshl_add_u32 v26, v27, 3, v26")
        k.e("v_and_b32 v27, 1, v24")
        k.e("v_lshl_add_u32 v25, v27, 2, v25")
        k.e("s_lshl_b32 s3, s32, 1")
        k.e("v_xor_b32 v25, s3, v25")
        k.e("v_lshl_add_u32 v26, v25, 5, v26")
        k.e("s_sub_u32 s3, s54, s44")
        k.e("v_add_u32 v26, s3, v26")
        k.e("v_xor_b32 v27, 32, v26")
        k.e("s_waitcnt vmcnt(8) lgkmcnt(0)")
        k.use('ffn')
        k.e("s_barrier")
        for m in range(2):
            for q in range(4):
                for j in range(2):
                    for rd in range(2):
                        k.e(f"ds_read_b64_tr_b16 {V(128 + 32*m + 8*q + 4*j + 2*rd, 2)}, v{26+j} offset:{m*32768 + q*8192 + rd*1024}", tag=f'f{m}')
        k.e("v_and_b32 v25, 15, v0")
        k.e("v_mul_u32_u24 v28, 14336, v25")
        k.e("v_lshl_add_u32 v28, v24, 4, v28")
        k.e(f"v_mov_b32 v29, {BIG}")
        k.e("v_cmp_gt_u32 vcc, 2, v25")
        k.e(f"s_mul_i32 s3, s92, {4*14336}")
        k.e("s_lshl_b32 s47, s4, 9")
        k.e("s_add_u32 s3, s3, s47")
        k.e("v_cndmask_b32 v28, v29, v28, vcc")
        k.e("s_lshl_b32 s47, s32, 7")
        k.e("s_add_u32 s3, s3, s47")
        k.e(f"s_add_u32 s3, s3, {WS_HP}")
        for m in range(2):
            k.wait_ds(f'f{m}')
            for q in range(4):
                for j in range(2):
                    d = V(224 + 8 * m + 4 * j, 4)
                    k.e(mfma(d, V(128 + 32*m + 8*q + 4*j, 4), A(XS + 4*q, 4), d if q else "0"))
    def ffn_store():
        k.e("s_cmp_lg_u32 s34, 0")
        k.e(f"s_cselect_b32 s3, s3, {1 << 23}")
        k.e(f"s_add_u32 s7, s3, {2*14336}")
        for m in range(2):
            for j in range(2):
                k.e(f"buffer_store_dwordx4 {V(224 + 8*m + 4*j, 4)}, v28, s[20:23], s{7 if m else 3} offen offset:{j*64} sc1", tag='hps')

    def kread(reg, off, kb):
        return [f"ds_read_b128 {A(FR(kb,s_),4)}, v{reg} offset:{off + (kb*4+s_)*1024}" for s_ in range(4)]
    def vread(reg, off, vg):
        return [f"ds_read_b128 {A(FR(vg,j),4)}, v{reg} offset:{off + (vg*4+j)*1024}" for j in range(4)]
    def qk_mfmas(par, nq, zero=False):
        out = []
        for kb in range(4):
            grp = []
            for qb in range(nq):
                d = V(Sr(par, qb, kb), 4)
                for s_ in range(4):
                    c = d if s_ else ("0" if zero else V(NEGM + 4 * qb, 4))
                    grp.append(mfma(d, A(FR(kb, s_), 4), A(Q(qb, s_), 4), c))
            out.append(grp)
        return out
    def pv_mfmas(par, nq):
        out = []
        for vg in range(4):
            grp = []
            for dd in range(2):
                for qb in range(nq):
                    for ks in range(2):
                        o = A(O(qb, 2 * vg + dd), 4)
                        grp.append(mfma(o, A(FR(vg, 2 * dd + ks), 4), V(P(par, qb, ks), 4), o))
            if vg < nq:
                for ks in range(2):
                    l = V(LS + 4 * vg, 4)
                    grp.append(mfma(l, V(ONES, 4), V(P(par, vg, ks), 4), l))
            out.append(grp)
        return out
    def sm_pairs(par, nq, ks):
        out = []
        for kq in range(2):
            for qb in range(nq):
                s0 = Sr(par, qb, 2 * ks + kq)
                for h in range(2):
                    out.append((s0 + 2 * h, s0 + 2 * h + 1, P(par, qb, ks) + 2 * kq + h))
        return out
    class SM:
        def __init__(self, pairs, first, check):
            self.pairs = pairs; self.ne = 0; self.nc = 0; self.no = 0; self.first = first
            self.tail = [f"v_and_b32 v{T0}, 0x40004000, v{ORR}", f"v_cmp_ne_u32 vcc, 0, v{T0}"] if check else []
            self.e_done = 0; self.extra = []
        def tick(self): self.e_done = self.ne
        def exp_ready(self): return self.ne < 2 * len(self.pairs) and self.ne // 2 - self.nc < 4
        def exp(self):
            j, h = self.ne // 2, self.ne & 1; self.ne += 1
            return f"v_exp_f32 v{ET + 2*(j % 4) + h}, v{self.pairs[j][h]}"
        def plain_avail(self):
            n = min(self.e_done // 2, len(self.pairs)) - self.nc
            n += self.nc // 2 - self.no
            if self.no == len(self.pairs) // 2: n += len(self.tail)
            return n + len(self.extra)
        def plain(self):
            if self.nc < min(self.e_done // 2, len(self.pairs)):
                j = self.nc; self.nc += 1
                return f"v_cvt_pk_bf16_f32 v{self.pairs[j][2]}, v{ET + 2*(j % 4)}, v{ET + 2*(j % 4) + 1}"
            if self.no < self.nc // 2:
                j = self.no; self.no += 1
                a, b = self.pairs[2 * j][2], self.pairs[2 * j + 1][2]
                if self.first and j == 0: return f"v_or_b32 v{ORR}, v{a}, v{b}"
                return f"v_or3_b32 v{ORR}, v{ORR}, v{a}, v{b}"
            if self.no == len(self.pairs) // 2 and self.tail: return self.tail.pop(0)
            if self.extra: return self.extra.pop(0)
            return None
        def left_exp(self): return 2 * len(self.pairs) - self.ne
        def left_plain(self): return len(self.pairs) - self.nc + len(self.pairs) // 2 - self.no + len(self.tail) + len(self.extra)
        def done(self): return self.left_exp() == 0 and self.left_plain() == 0
        def drain(self):
            while not self.done():
                self.tick()
                if self.exp_ready():
                    k.e(self.exp())
                    if self.exp_ready(): k.e(self.exp())
                    x = self.plain()
                    if x: k.e(x)
                else:
                    k.e(self.plain())
    def phase(groups, gtags, reads, rtags, sm, vm, nexttag):
        total = sum(len(g) for g in groups)
        vmpos = {}
        if vm:
            step = max(2, (total - 2) // len(vm))
            for j, x in enumerate(vm): vmpos[1 + j * step] = x
        n = 0
        k.wait_ds(gtags[0])
        for gi, grp in enumerate(groups):
            rq = list(reads[gi])
            for mi, m in enumerate(grp):
                k.e(m)
                sm.tick()
                scal = []
                if n + 1 in vmpos: scal += vmpos[n + 1][0]
                lastm = mi == len(grp) - 1
                if n in vmpos:
                    for s in scal: k.e(s)
                    k.e(vmpos[n][1], tag='kv')
                    slots = 0
                else:
                    for s in scal: k.e(s)
                    if lastm:
                        nt = gtags[gi + 1] if gi + 1 < len(groups) else nexttag
                        if nt: k.wait_ds(nt)
                    slots = 2
                    gaps_left = len([x for x in range(n, n + len(grp) - mi) if x not in vmpos])
                    want_d = len(rq) > 0 and (sm.plain_avail() > 0 or not sm.exp_ready() or len(rq) >= gaps_left - 1)
                    if want_d:
                        k.e(rq.pop(0), tag=rtags[gi]); slots -= 1
                        if rq and (sm.plain_avail() == 0 or len(rq) >= gaps_left):
                            k.e(rq.pop(0), tag=rtags[gi]); slots -= 1
                    if slots == 2 and sm.exp_ready() and not (sm.plain_avail() >= 3 and not rq):
                        k.e(sm.exp()); slots = 0
                    while slots > 0:
                        x = sm.plain()
                        if not x: break
                        k.e(x); slots -= 1
                if lastm:
                    for s in rq: k.e(s, tag=rtags[gi])
                    nt = gtags[gi + 1] if gi + 1 < len(groups) else nexttag
                    if nt: k.wait_ds(nt)
                n += 1
        sm.drain()

    def mask_block(par, qb):
        vr = VRA if qb & 1 else VRB
        for kb in range(4):
            for r in range(4): k.e(f"v_cmp_gt_i32 s[{56+2*r}:{57+2*r}], {16*kb + r}, v{vr}")
            if kb == 0: k.e("s_nop 3")
            for r in range(4):
                x = Sr(par, qb, kb) + r
                k.e(f"v_cndmask_b32 v{x}, v{x}, v{NINF}, s[{56+2*r}:{57+2*r}]")
    def rowmax(par, qb, d, o=k):
        s0 = Sr(par, qb, 0)
        o.e(f"v_max3_f32 v{d}, v{s0}, v{s0+1}, v{s0+2}")
        for r in range(3, 15, 2): o.e(f"v_max3_f32 v{d}, v{d}, v{s0+r}, v{s0+r+1}")
        o.e(f"v_max_f32 v{d}, v{d}, v{s0+15}")
        o.e(f"v_mov_b32 v{T0}, v{d}")
        o.e(f"v_permlane16_swap_b32 v{T0}, v{d}")
        o.e(f"v_max_f32 v{d}, v{d}, v{T0}")
        o.e(f"v_mov_b32 v{T0}, v{d}")
        o.e(f"v_permlane32_swap_b32 v{T0}, v{d}")
        o.e(f"v_max_f32 v{d}, v{d}, v{T0}")
        o.e(f"v_add_f32 v{d}, {opt.get('moff', '0x41f80000')}, v{d}")
    def fallback(par, nq, nqn):
        k.e("s_nop 7")
        for qb in range(nq):
            rowmax(par, qb, 21)
            k.e("v_max_f32 v21, 0, v21")
            for r in range(16): k.e(f"v_sub_f32 v{Sr(par,qb,0)+r}, v{Sr(par,qb,0)+r}, v21")
            if qb < nqn:
                for r in range(16): k.e(f"v_sub_f32 v{Sr(par^1,qb,0)+r}, v{Sr(par^1,qb,0)+r}, v21")
            for r in range(4): k.e(f"v_sub_f32 v{NEGM+4*qb+r}, v{NEGM+4*qb+r}, v21")
            k.e("v_exp_f32 v22, -v21")
            for r in range(4): k.e(f"v_mul_f32 v{LS+4*qb+r}, v{LS+4*qb+r}, v22")
            for r0 in range(0, 32, 8):
                for r in range(8): k.e(f"v_accvgpr_read_b32 v{ET+r}, a{O(qb,0)+r0+r}")
                for r in range(8): k.e(f"v_mul_f32 v{ET+r}, v{ET+r}, v22")
                for r in range(8): k.e(f"v_accvgpr_write_b32 a{O(qb,0)+r0+r}, v{ET+r}")
        for ks in range(2):
            for (s0, s1, pd) in sm_pairs(par, nq, ks):
                k.e(f"v_exp_f32 v{ET}, v{s0}")
                k.e(f"v_exp_f32 v{ET+1}, v{s1}")
                k.e(f"v_cvt_pk_bf16_f32 v{pd}, v{ET}, v{ET+1}")
        k.e("s_nop 1")
    SPLIT = {4: (32, 16, 8), 3: (36, 18, 9), 2: (17, 8, 4), 1: (16, 8, 4), 0: (0, 0, 0)}
    def tile_sm(par, nq, start, check):
        sm = SM(sm_pairs(par, nq, 0) + sm_pairs(par, nq, 1), True, check)
        sm.ne, sm.nc, sm.no = start; sm.e_done = sm.ne
        return sm
    def pack(ngaps, vmg, dsl, sm, limit, last_sm, pre):
        plan = {}
        dsl = list(dsl)
        def exp_ok(): return sm.exp_ready() and (limit is None or sm.ne < limit[0])
        def plain_n():
            n = min(sm.e_done // 2, len(sm.pairs), limit[1] if limit else 1 << 30) - sm.nc
            n += min(sm.nc // 2, limit[2] if limit else 1 << 30) - sm.no
            if limit is None and sm.no == len(sm.pairs) // 2: n += len(sm.tail)
            return n + len(sm.extra)
        def take_plain():
            if limit is not None:
                c_ok = sm.nc < min(sm.e_done // 2, limit[1]); o_ok = sm.no < min(sm.nc // 2, limit[2])
                if not c_ok and not o_ok: return sm.extra.pop(0) if sm.extra else None
                if not c_ok:
                    keep = sm.e_done; sm.e_done = 2 * sm.nc; x = sm.plain(); sm.e_done = keep; return x
            return sm.plain()
        for g in range(-1 if pre else 0, ngaps):
            if g in vmg: sm.tick(); continue
            sm.tick()
            ops = []
            smok = g <= last_sm
            av = [d for d in dsl if d[2] <= g]
            free_to = lambda dl: len([x for x in range(g, dl + 1) if x not in vmg])
            urgent = any(sum(1 for d in dsl if d[3] <= e[3]) >= 2 * free_to(e[3]) - 1 for e in av)
            pn = plain_n() if smok else 0
            if smok and exp_ok() and not urgent and not (av and pn) and not (pn >= 3):
                ops.append((sm.exp(), None))
            else:
                slots = 2
                if av and g >= 0:
                    d = av.pop(0); dsl.remove(d); ops.append((d[0], d[1])); slots -= 1
                    if av and (pn == 0 or sum(1 for x in dsl if x[3] <= av[0][3]) >= 2 * free_to(av[0][3]) - 1):
                        d = av.pop(0); dsl.remove(d); ops.append((d[0], d[1])); slots -= 1
                while slots and smok:
                    x = take_plain()
                    if not x: break
                    ops.append((x, None)); slots -= 1
                if not ops and smok and exp_ok(): ops.append((sm.exp(), None))
            plan[g] = ops
            if g == last_sm:
                while (limit is None and not sm.done()) or (limit is not None and ((sm.ne, sm.nc, sm.no) != limit or sm.extra)):
                    sm.tick()
                    x = sm.exp() if exp_ok() else take_plain()
                    plan[g].append((x, None)); k.overflow += 1
        assert not dsl, dsl
        return plan
    k.overflow = 0
    SLK = int(opt.get('slk', -1))
    def emit_phase(mf, plan, vmg, scal, bg=None, vtag=None):
        for s_, tg in plan.get(-1, []): k.e(s_, tag=tg)
        for g, m in enumerate(mf):
            k.e(m)
            for x in scal.get(g, []):
                if isinstance(x, tuple) and x[0] == 'u': k.use(x[1])
                elif isinstance(x, tuple): k.wait_ds(x[1])
                elif x.endswith(':'): k.label(x[:-1])
                else: k.e(x)
            if g in vmg: k.e(vmg[g], tag=(vtag if ('s39' in vmg[g] or ' s3 ' in vmg[g]) else None))
            else:
                for s_, tg in plan.get(g, []): k.e(s_, tag=tg)
                if bg and not plan.get(g) and g not in scal: bg.fill(k, 99, 3)
        if bg: bg.drain(k)
    def starts(groups):
        out = [0]
        for g in groups: out.append(out[-1] + len(g))
        return out
    def iteration(par, nq, nqn, mask, name, tail):
        kreg, koff = (VX, 32768) if par == 0 else (VY, 0)
        vreg, voff = (VX, 16384) if par == 0 else (VX, 49152)
        nreg, noff = (VY, 0) if par == 0 else (VY, 32768)
        last = nqn == 1
        k.hot = nqn >= 2
        ov0 = k.overflow
        fb, fr = f"L_k2_fb_{name}", f"L_k2_fbr_{name}"
        ool.append((fb, lambda: fallback(par, nq, nqn), fr))
        sm = tile_sm(par, nq, SPLIT[nq], True)
        if par == 0:
            k.e(f"v_xor_b32 v{VX}, 65536, v{VX}")
            k.e(f"v_xor_b32 v{VY}, 65536, v{VY}")
        if nqn:
            k.dq = ['k1'] * 4
            if nq == 4 and WARM: sm.extra = ["v_lshl_add_u64 v[28:29], s[40:41], 0, v[28:29]"]
            grp = qk_mfmas(par ^ 1, nqn); st_ = starts(grp); n1 = st_[-1]
            slack = SLK if nqn <= 2 else 4
            dsl = [(x, 'k2', 0, st_[1] + slack) for x in kread(kreg, koff, 2)] + [(x, 'k3', 0, st_[2] + slack) for x in kread(kreg, koff, 3)] + \
                  [(x, 'v0', st_[1], st_[3] + slack) for x in vread(vreg, voff, 0)] + [(x, 'v1', st_[2], n1 - 1) for x in vread(vreg, voff, 1)]
            scal = {}
            add = lambda g, xs: scal.setdefault(g, []).extend(xs)
            add(st_[1] - 1, [('w', 'k1')]); add(st_[2] - 1, [('w', 'k2')]); add(st_[3] - 1, [('w', 'k3')])
            vmw = "s_waitcnt vmcnt(8)" if last else "s_waitcnt vmcnt(12)"
            if nq == 2:
                add(n1 - 7, ["s_cmp_lt_u32 s37, s52"])
                add(n1 - 6, [f"s_cbranch_scc1 L_nw_{name}", vmw, f"L_nw_{name}:"])
            else:
                add(n1 - 5, [vmw])
            if mask and mask[1]: add(n1 - 4, [f"s_cmp_eq_u32 s37, s{mask[1]}"])
            add(n1 - 3, ([] if 'nochk' in opt else [('u', f'V{par}'), ('u', 'c19' if par == 0 else 'c21'), ('u', 'c20' if par == 0 else 'c22')]) + ["s_barrier"]); add(n1 - 2, [('w', 'v0')]); add(n1 - 1, [f"s_cbranch_vccnz {fb}", fr + ":"])
            vmg = {}
            if not last:
                step = (n1 - 8) / 4
                for j in range(4):
                    q = int(1 + j * step)
                    while q in scal or (j == 0 and q - 1 in scal): q += 1
                    vmg[q] = f"buffer_load_dwordx4 v{VDMA}, s[12:15], s38 offen offset:{j*1024}{kv_ld} lds"
                    if j == 0: scal[q - 1] = ["s_mov_b32 m0, s53" if par == 0 else "s_add_u32 m0, s53, 32768"]
            plan = pack(n1, vmg, dsl, sm, None, n1 - 2, par == 1)
            emit_phase(sum(grp, []), plan, vmg, scal)
        else:
            k.dq = ['v1'] * 4
            sm.drain()
            k.e(f"s_cbranch_vccnz {fb}")
            k.label(fr)
        grp = pv_mfmas(par, nq); st_ = starts(grp); n2 = st_[-1]
        slack = SLK if nq <= 2 else 4
        dsl = [(x, 'v2', 0, st_[1] + slack) for x in vread(vreg, voff, 2)] + [(x, 'v3', 0, st_[2] + slack) for x in vread(vreg, voff, 3)]
        scal = {st_[1] - 1: [('w', 'v1')], st_[2] - 1: [('w', 'v2')], st_[3] - 1: [('w', 'v3')]}
        vmg = {}
        if nqn:
            nx = [vread(VX, 49152, 0), vread(VX, 49152, 1)] if last else [kread(nreg, noff, 0), kread(nreg, noff, 1)]
            dsl += [(x, 'k0', st_[1], st_[3] + slack - 1) for x in nx[0]] + [(x, 'k1', st_[2], n2 - 2) for x in nx[1]]
            if mask:
                mb, mr = f"L_k2_mk_{name}", f"L_k2_mkr_{name}"
                ool.append((mb, lambda: mask_block(par ^ 1, mask[0]), mr))
                scal[0] = [f"s_cbranch_scc1 {mb}" if mask[1] else f"s_branch {mb}", mr + ":"]
            scal[n2 - 2] = [('w', 'k0')]
            if tail: scal[n2 - 3] = [tail[0]]; scal[n2 - 1] = [tail[1]]
            def put(x, lo):
                q = lo
                while q in scal or q in vmg: q += 1
                assert q < n2 - 3, (x, q)
                scal[q] = [x]
            if last:
                ops = ffn_issue()
                for j, (pre, ld) in enumerate(ops):
                    q = 2 + 2 * j
                    vmg[q] = ld
                    scal.setdefault(q - 1, []).extend(pre)
                    if q in scal: scal[q - 1].extend(scal.pop(q))
            else:
                mv = "s_add_u32 m0, s54, 49152" if par == 0 else "s_add_u32 m0, s53, 16384"
                vm = [f"buffer_load_dwordx4 v{VDMA}, s[12:15], s39 offen offset:{j*1024}{kv_ld} lds" for j in range(4)]
                if nq == 4 and WARM: vm.append("global_load_dword v30, v[28:29], off")
                step = (n2 - 4) / len(vm)
                pos = []
                for j in range(len(vm)):
                    q = int(2 + j * step)
                    while q in scal or q in vmg or (j == 0 and q - 1 in scal): q += 1
                    vmg[q] = vm[j]; pos.append(q)
                    if j == 0: scal[q - 1] = [mv]
                if name == "ne":
                    q = 3
                    while any(x in scal or x in vmg for x in (q, q + 1)): q += 1
                    scal[q] = ["s_cmp_eq_u32 s37, s52"]; scal[q + 1] = ["s_cbranch_scc1 L_pubB", "L_pubBr:"]
                    def pubB():
                        k.e("v_mov_b32 v24, 1"); k.e("v_mov_b32 v25, 0")
                        k.e("s_mov_b64 exec, 1")
                        k.e("buffer_store_dword v24, v25, s[20:23], s64 offen sc1")
                        k.e("s_mov_b64 exec, -1")
                    ool.append(("L_pubB", pubB, "L_pubBr"))
                    put("s_add_u32 s37, s37, 1", q + 2)
                else:
                    put("s_add_u32 s37, s37, 1", 1)
                put(f"s_add_u32 s38, s38, {KV_TILE}", 1)
                if par == 1:
                    put("s_xor_b32 s53, s53, 65536", pos[0]); put("s_xor_b32 s54, s54, 65536", pos[0])
                put(f"s_add_u32 s39, s39, {KV_TILE}", pos[3] + 1)
        sm = tile_sm(par ^ 1, nqn, (0, 0, 0), False)
        lastg = n2 - 2 if nqn else n2 - 1
        while lastg in vmg: lastg -= 1
        plan = pack(n2 - 1 if nqn else n2, vmg, dsl, sm, SPLIT[nqn], lastg, False)
        emit_phase(sum(grp, []), plan, vmg, scal, None if nqn else p4_setup(opt), 'ffn' if last else f'V{par}')
        print(f"iteration {name}: overflow ops {k.overflow - ov0}")
        k.hot = False
    def epilogue(q0, srow):
        k.e(f"s_lshl_b32 s3, s{srow}, 20")
        k.e("s_lshl_b32 s47, s33, 15")
        k.e("s_add_u32 s3, s3, s47")
        k.e("s_lshl_b32 s47, s32, 10")
        k.e("v_lshlrev_b32 v248, 4, v0")
        k.e("v_add_u32 v249, s47, v248")
        k.e("s_sub_u32 s47, 7168, s47")
        k.e("v_add_u32 v248, s47, v248")
        for qq in range(2):
            k.e(f"v_rcp_f32 v{250+2*qq}, v{LS+4*(q0+qq)}")
        for qq in range(2):
            k.e(f"v_mov_b32 v{251+2*qq}, v{250+2*qq}")
        for s_ in range(4):
            for qq in (1, 0):
                o = O(q0 + qq, 2 * s_)
                d = 24 + 4 * qq
                for r in range(8): k.e(f"v_accvgpr_read_b32 v{240+r}, a{o+r}")
                for r in range(0, 8, 2): k.e(f"v_pk_mul_f32 {V(240+r,2)}, {V(240+r,2)}, {V(250+2*qq,2)}")
                for r in range(4): k.e(f"v_cvt_pk_bf16_f32 v{d+r}, v{240+2*r}, v{240+2*r+1}")
                k.e(f"buffer_store_dwordx4 {V(d,4)}, v{248+qq}, s[16:19], s3 offen{opt.get('ctx_st',' sc1')}")
            if s_ < 3: k.e("s_add_u32 s3, s3, 8192")

    for kb in range(2, 4):
        for s in kread(VY, 0, kb): k.e(s, tag=f'k{kb}')
    def first_max(o, qb):
        rowmax(0, qb, 22, o)
        if PKM:
            o.e("v_sub_f32 v22, 0, v22"); o.e("v_mov_b32 v23, v22")
            for r in range(0, 16, 2): o.e(f"v_pk_add_f32 {V(Sr(0,qb,0)+r,2)}, {V(Sr(0,qb,0)+r,2)}, v[22:23]")
            for r in range(4): o.e(f"v_mov_b32 v{NEGM+4*qb+r}, v22")
        else:
            for r in range(16): o.e(f"v_sub_f32 v{Sr(0,qb,0)+r}, v{Sr(0,qb,0)+r}, v22")
            for r in range(4): o.e(f"v_sub_f32 v{NEGM+4*qb+r}, 0, v22")
    c = b2
    c.items += conv_items(2) + conv_items(3)
    for r in list(range(XR(30, 0), XR(30, 0) + 16)) + list(range(XR(31, 0), XR(31, 0) + 16)): c.e(f"v_accvgpr_write_b32 a{r}, 0")
    for r in range(4): c.e(f"v_mov_b32 v{ONES+r}, 0x3f803f80")
    c.e(f"v_mov_b32 v{NINF}, 0xff800000")
    first_max(c, 0); first_max(c, 1)
    for qb in range(4):
        while any(it[0] == 'mark' and it[1] == f'conv{qb}' for it in c.items): c.fill(k, 99, 2)
        for kb in range(4):
            k.wait_ds(f'k{kb}')
            if qb == 3 and kb == 2:
                k.e(f"s_waitcnt vmcnt({min(k.vm_n('c18'), k.vm_n('c17'))})")
                assert k.vm_n('wts') is None
                k.use('c17'); k.use('c18')
                k.e("s_barrier")
                if WOT:
                    k.e("s_mov_b64 exec, 1")
                    k.e("buffer_store_dword v24, v25, s[20:23], s52 offen sc1")
                    k.e("s_mov_b64 exec, -1")
                k.e("s_add_u32 s53, s44, 65536")
            for s_ in range(4):
                d = V(Sr(0, qb, kb), 4)
                k.e(mfma(d, A(FR(kb, s_), 4), A(Q(qb, s_), 4), d if s_ else "0"))
                if qb == 3 and kb >= 2: k.e(kread(VY, 32768, kb - 2)[s_], tag=f'n{kb-2}')
                c.fill(k, 99, int(opt.get('pslots', 4)))
    c.drain(k)
    k.e(f"s_mov_b32 s38, {4*KV_TILE}")
    k.e(f"s_mov_b32 s39, {3*KV_TILE + KV_CH}")
    k.e("s_cmp_lg_u32 s34, 0")
    k.e("s_cbranch_scc1 L_k2_nomask0")
    mask_block(0, 3)
    k.label("L_k2_nomask0")
    k.e("s_mov_b32 s37, 0")
    first_max(k, 2); first_max(k, 3)
    SM(sm_pairs(0, 4, 0), True, False).drain()
    k.e("s_waitcnt lgkmcnt(4)")
    k.stamp(ST or SA)

    k.e("s_cmp_eq_u32 s34, 0")
    k.e("s_cbranch_scc1 L_k2_wlast")
    k.label("L_k2_wloop")
    iteration(0, 4, 4, None, "we", [])
    iteration(1, 4, 4, (3, 46), "wo", ["s_cmp_lg_u32 s37, s35", "s_cbranch_scc1 L_k2_wloop"])
    k.label("L_k2_wlast")
    iteration(0, 4, 3, (2, None), "wl", [])
    iteration(1, 3, 2, (1, 45), "tr", [])
    k.stamp(SA)
    if '4' in CPF: emit(code_prefetch("L_k2_fin", "L_p4_end", 32, 56, 160, 164))
    k.e("s_waitcnt vmcnt(9)")
    epilogue(2, 34)
    k.e("s_add_u32 s52, s37, 2")
    k.raw(";@b:2")
    for s in p4_ptr_loads(): k.e(s)
    k.e("s_waitcnt vmcnt(8) lgkmcnt(0)")
    k.stamp(SA)
    k.e("s_cmp_eq_u32 s34, 7")
    k.e("s_cbranch_scc1 L_k2_fin")
    k.label("L_k2_nloop")
    iteration(0, 2, 2, None, "ne", [])
    iteration(1, 2, 2, (1, 45), "no", ["s_cmp_lg_u32 s37, s36", "s_cbranch_scc1 L_k2_nloop"])
    k.label("L_k2_fin")
    k.stamp(SA)
    iteration(0, 2, 1, (0, None), "nl", [])
    iteration(1, 1, 0, None, "fi", [])
    k.stamp(ST or SA)
    k.e("s_nop 7")
    epilogue(0, 55)
    k.stamp(SA)
    ffn_finish()
    k.stamp(SA)
    k.e("v_mov_b32 v24, 1")
    k.e("v_mul_u32_u24 v25, s65, v0")
    k.e("s_waitcnt vmcnt(0)")
    k.e("s_barrier")
    k.e("s_mov_b64 exec, 3")
    k.e("buffer_store_dword v24, v25, s[20:23], s64 offen sc1")
    k.e("s_mov_b64 exec, -1")
    ffn_store()
    k.stamp(ST or SA)
    phase4(k, opt, ool, ST, SA)
    k.stamp_dump('stamp' in opt, 66, 0, 32)
    if 'hold' in opt:
        k.e("s_lshl_b32 s3, s32, 8")
        k.e("s_or_b32 s3, s2, s3")
        k.e(f"s_cmp_lg_u32 s3, {opt.get('holdwg', 0)}")
        if opt.get('holdwg') != '999': k.e("s_cbranch_scc1 L_k2_end")
        k.label("L_hold")
        k.e("s_memrealtime s[4:5]")
        k.e("s_waitcnt lgkmcnt(0)")
        k.e(f"s_sub_u32 s3, s4, s{73 + 2 * int(opt.get('holdk', 0))}")
        k.e(f"s_cmp_lt_u32 s3, {int(opt['hold']) * 100}")
        k.e("s_cbranch_scc1 L_hold")
    k.label("L_k2_end")
    k.e("s_endpgm")
    hotool = [x for x in ool if x[0].startswith(("L_f2", "L_c3", "L_spinC", "L_yA", "L_yB", "L_yC"))]
    for lab, fn, ret in hotool + [("L_p4_end", None, None)] + [x for x in ool if x not in hotool]:
        k.label(lab)
        if fn is None: continue
        k.win = []; k.dq = []
        fn()
        k.e(f"s_branch {ret}")
    return k.wrap(256, 256), f"; @launch {'kernel=' + KNAME + ' ' if 'aslist' in opt else ''}grid=(256,1,1) block=(256,1,1) lds={K12_LDS}"
```

```python
XN_RB    = 33792
KV_CH    = 17408
KV_TILE  = 2 * KV_CH
KV_HEAD  = 64 * KV_CH + 2048
WS_XN    = 0
WS_KEYS  = 5 << 20
WS_STATS = (5 << 20) + 16384
WS_SEL   = (5 << 20) + 49152
WS_FLG   = (5 << 20) + 53248
WS_CFL   = (5 << 20) + 57344
WS_HFL   = (5 << 20) + 204800
WS_YFL   = WS_HFL + 2048
WS_WFL   = WS_HFL + 4096
WS_XFL   = WS_HFL + 5120
WS_YP    = (5 << 20) + 65536
WS_HP    = 6 << 20
WS_KV    = 8 << 20
WS_CTX   = 44 << 20
WO_NT    = 128 * 4096 + 1024
WS_WOT   = 72 << 20
WS_XCH   = 84 << 20
```

```python
from fw import *
from layout import *
BIG = 0x7ff00000

def rbf2(k, a, b, t):
    k.e(f"v_cvt_pk_bf16_f32 v{t}, v{a}, v{b}")
    k.e(f"v_lshlrev_b32 v{a}, 16, v{t}")
    k.e(f"v_and_b32 v{b}, 0xffff0000, v{t}")

def silu_n(k, regs, tmps):
    for r, t in zip(regs, tmps): k.e(f"v_mul_f32 v{t}, 0xbfb8aa3b, v{r}")
    for r, t in zip(regs, tmps): k.e(f"v_exp_f32 v{t}, v{t}")
    for r, t in zip(regs, tmps): k.e(f"v_add_f32 v{t}, 1.0, v{t}")
    for r, t in zip(regs, tmps): k.e(f"v_rcp_f32 v{t}, v{t}")
    for r, t in zip(regs, tmps): k.e(f"v_mul_f32 v{r}, v{r}, v{t}")

VC, VW, TA, VO, VROW, G, L7, L3, T1, T2, VZ, VF = 112, 114, 115, 119, 120, 121, 122, 123, 124, 125, 126, 127
GTMP, XP, STT, GT, YB = 2, 18, 34, 42, 80

def srd_rec(b, d, base, nbytes, add=None):
    if add is None:
        b.e(f"s_mov_b32 s{d}, s{base}"); b.e(f"s_and_b32 s{d+1}, s{base+1}, 0xffff")
    else:
        b.blk([f"s_add_u32 s{d}, s{base}, {add}", f"s_addc_u32 s{d+1}, s{base+1}, 0", f"s_and_b32 s{d+1}, s{d+1}, 0xffff"])
    b.e(f"s_mov_b32 s{d+2}, {nbytes}"); b.e(f"s_mov_b32 s{d+3}, 0x20000")

def p4_ptr_loads():
    return ["s_load_dwordx2 s[94:95], s[0:1], 40", "s_load_dwordx2 s[40:41], s[0:1], 0", "s_load_dwordx4 s[8:11], s[0:1], 80"]

def p4_setup(opt):
    b = Rec()
    srd_rec(b, 60, 8, 7340032)
    srd_rec(b, 68, 10, 4194304)
    srd_rec(b, 56, 40, 4194304)
    b.e("s_bfe_u32 s6, s2, 0x20001")
    b.e("s_lshr_b32 s7, s34, 1")
    b.e("s_lshl_b32 s45, s7, 2")
    b.e("s_add_u32 s46, s45, s6")
    b.e("s_sub_u32 s46, 15, s46")
    b.e("s_sub_u32 s45, 12, s45")
    b.e("s_add_u32 s45, s45, s6")
    b.blk(["s_cmp_lt_u32 s7, 2", "s_cselect_b32 s45, s46, s45"])
    b.e("s_and_b32 s46, s2, 1")
    b.e("s_lshl_b32 s46, s46, 3")
    b.e("s_bfe_u32 s6, s2, 0x30003")
    b.e("s_add_u32 s46, s46, s6")
    for j in range(4): b.e(f"s_mov_b32 s{48+j}, {j*15360}")
    b.e("s_lshl_b32 s35, s32, 15")
    b.e("s_and_b32 s52, s46, 1")
    b.e("s_lshl_b32 s52, s52, 2")
    b.e("s_add_u32 s52, s52, s32")
    b.e("s_lshl_b32 s6, s45, 20")
    b.e("s_lshl_b32 s7, s52, 17")
    b.e("s_add_u32 s6, s6, s7")
    b.e(f"s_add_u32 s6, s6, {WS_CTX}")
    srd_rec(b, 8, 66, 131072, "s6")
    b.e("s_lshr_b32 s7, s46, 1")
    b.e("s_lshl_b32 s7, s7, 8")
    b.e("s_lshl_b32 s6, s52, 20")
    b.e("s_add_u32 s6, s6, s7")
    srd_rec(b, 12, 94, 0, "s6")
    b.e("s_sub_u32 s14, 1048576, s7")
    srd_rec(b, 28, 94, 8388608)
    b.e("s_lshl_b32 s7, s46, 7")
    b.e("s_lshl_b32 s36, s45, 18")
    b.e("s_add_u32 s36, s36, s7")
    b.e("s_and_b32 s94, s7, 128")
    b.e("s_lshl_b32 s38, s45, 7")
    b.e("s_lshl_b32 s6, s52, 4")
    b.e("s_add_u32 s38, s38, s6")
    b.e(f"s_add_u32 s38, s38, {WS_CFL}")
    b.e("s_mov_b32 s52, 0")
    b.e(f"v_lshlrev_b32 v{VC}, 4, v0")
    b.e(f"v_add_u32 v{VC+1}, 4096, v{VC}")
    b.e(f"v_lshrrev_b32 v{G}, 4, v0")
    b.e(f"v_and_b32 v{L7}, 7, v0")
    b.e(f"v_lshrrev_b32 v{L3}, 3, v0")
    b.e(f"v_lshlrev_b32 v{T1}, 1, v{G}")
    b.e(f"v_xor_b32 v{T1}, v{T1}, v{L7}")
    b.e(f"v_lshlrev_b32 v{T1}, 4, v{T1}")
    b.e(f"v_lshl_add_u32 v{VW}, v{L3}, 11, v{T1}")
    b.e(f"v_add_u32 v{VW}, s94, v{VW}")
    b.e(f"v_lshrrev_b32 v{T1}, 2, v0")
    b.e(f"v_bfe_u32 v{VZ}, v0, 3, 2")
    b.e(f"v_lshlrev_b32 v{T1}, 7, v{T1}")
    b.e(f"v_and_b32 v{T2}, 3, v0")
    b.e(f"v_lshl_add_u32 v{T1}, v{T2}, 3, v{T1}")
    b.e(f"v_add_u32 v{T1}, s35, v{T1}")
    for cb in range(4):
        b.e(f"v_xor_b32 v{T2}, {cb}, v{VZ}")
        b.e(f"v_lshl_add_u32 v{TA+cb}, v{T2}, 5, v{T1}")
    b.e("s_lshl_b32 s6, s32, 3")
    b.e(f"v_add_u32 v{VROW}, s6, v{L3}")
    b.e(f"v_lshlrev_b32 v{VO}, 11, v{VROW}")
    b.e(f"v_lshl_add_u32 v{VO}, v{L7}, 4, v{VO}")
    b.e(f"v_mov_b32 v{VZ}, 0")
    b.e(f"v_lshlrev_b32 v{VF}, 2, v{L7}")
    return b

def phase4(k, opt, ool, ST, SA):
    ACC = lambda rb, cb: (cb * 8 + rb) * 4
    CF = lambda n, rb: 128 + (n % 3) * 32 + rb * 4
    WF = lambda cb: 224 + cb * 4
    VW2 = 10
    NK = 16
    def w_ops(n):
        if n >= NK: return []
        ops = []
        for h in range(2):
            ops.append(('s', f"s_add_u32 m0, s35, {(n % 3)*8192 + h*4096}"))
            ops += [('g', f"buffer_load_dwordx4 v{VW2 if h else VW}, s[12:15], s{48+j} offen offset:{j*1024} lds") for j in range(4)]
            ops.append(('v', f"v_add_u32 v{VW2 if h else VW}, 65536, v{VW2 if h else VW}"))
        return ops
    def c_ops(n):
        if n >= NK: return []
        return ([('g', f"buffer_load_dwordx4 {V(CF(n,rb),4)}, v{VC + (rb >> 2)}, s[8:11], s52 offen offset:{(rb & 3)*1024} sc1") for rb in range(8)] +
                [('s', "s_add_u32 s52, s52, 8192")])
    def wread(n, cb, slot):
        return [f"ds_read_b64_tr_b16 {V(WF(slot)+2*rd,2)}, v{TA+(cb&3)} offset:{(n % 3)*8192 + (cb>>2)*4096 + rd*2048}" for rd in range(2)]
    def col3(part, nparts):
        rows = 32 // nparts
        k.e("s_bfe_u32 s3, s2, 0x40003")
        k.e(f"s_mul_i32 s3, s3, {rows * 2048}")
        k.e("s_lshl_b32 s7, s32, 21")
        k.e("s_add_u32 s3, s3, s7")
        k.e("s_and_b32 s7, s2, 1")
        k.e("s_lshl_b32 s7, s7, 10")
        k.e("s_add_u32 s3, s3, s7")
        k.e(f"s_add_u32 s3, s3, {384 + part * (512 // nparts) * 2048}")
        k.e(f"v_and_b32 v1, {rows - 1}, v0")
        k.e("v_lshlrev_b32 v1, 11, v1")
        k.e("v_lshrrev_b32 v11, 5, v0")
        k.e("v_lshl_add_u32 v1, v11, 20, v1")
        k.e("buffer_load_dword v11, v1, s[28:31], s3 offen")
    def gates(o, p, ysrc=None):
        g0 = GT + 8 * p
        for d in range(4):
            o.e(f"v_lshlrev_b32 v{g0+2*d}, 16, v{XP+4*p+d}")
            o.e(f"v_and_b32 v{g0+2*d+1}, 0xffff0000, v{XP+4*p+d}")
        for e_ in range(8): o.e(f"v_sub_f32 v{g0+e_}, v{g0+e_}, v{STT+2*p}")
        for d in range(4): rbf2(o, g0 + 2*d, g0 + 2*d + 1, GTMP + d)
        for e_ in range(8): o.e(f"v_mul_f32 v{g0+e_}, v{g0+e_}, v{STT+2*p+1}")
        for d in range(4): rbf2(o, g0 + 2*d, g0 + 2*d + 1, GTMP + d)
        if ysrc is not None:
            for e_ in range(8): o.e(f"v_add_f32 v{g0+e_}, v{g0+e_}, v{ysrc+e_}")
            for d in range(4): rbf2(o, g0 + 2*d, g0 + 2*d + 1, GTMP + d)
        silu_n(o, [g0 + e_ for e_ in range(8)], [GTMP + e_ for e_ in range(8)])
        for d in range(4): rbf2(o, g0 + 2*d, g0 + 2*d + 1, GTMP + d)

    C3 = int(opt.get('c3', 2))
    k.e(f"v_and_b32 v12, 12, v{VF}")
    k.e(f"v_xor_b32 v{VW2}, 128, v{VW}")
    k.e(f"buffer_load_dword v{T1}, v12, s[20:23], s38 offen sc1", tag='cp')
    for n in range(2):
        for t, s in w_ops(n): k.e(s, tag=f'w{n}')
    k.e("s_and_b32 s39, s2, 15")
    k.e("s_lshr_b32 s37, s2, 4")
    k.e("s_sub_u32 s37, s37, 2")
    k.e("s_lshl_b32 s54, s37, 2")
    k.e("s_add_u32 s54, s54, s32")
    k.e("s_lshl_b32 s3, s54, 17")
    k.e("s_lshl_b32 s7, s39, 7")
    k.e("s_add_u32 s3, s3, s7")
    k.e("s_cmp_ge_u32 s2, 32")
    k.e(f"s_cselect_b32 s3, s3, {BIG}")
    k.e(f"v_and_b32 v{T2}, 0xff7f, v{VW}")
    k.e(f"v_add_u32 v{T2}, s3, v{T2}")
    def wd_dma():
        n0 = len(k.vq)
        for q in range(2):
            k.e(f"s_add_u32 m0, s35, {24576 + q*4096}")
            for j in range(4):
                k.e(f"buffer_load_dwordx4 v{T2}, s[60:63], s{48+j} offen offset:{j*1024} lds")
            if q == 0: k.e(f"v_add_u32 v{T2}, 65536, v{T2}")
        del k.vq[n0:]
    k.e("s_mov_b32 s40, 0")
    k.wait_vm('cp')
    k.e(f"v_cmp_ne_u32 vcc, 1, v{T1}")
    k.e("s_cbranch_vccnz L_spinC")
    k.label("L_spinCr")
    def spinC():
        wd_dma()
        k.e("s_mov_b32 s40, 1")
        k.e("s_mov_b32 s47, 0x400000")
        k.label("L_spinC_l")
        k.e(f"s_sleep {opt.get('slpc', 4)}")
        k.e(f"buffer_load_dword v{T1}, v12, s[20:23], s38 offen sc1")
        k.e("s_sub_u32 s47, s47, 1")
        k.e("s_cmp_eq_u32 s47, 0")
        k.e("s_cbranch_scc1 L_spinCx")
        k.e("s_waitcnt vmcnt(0)")
        k.e(f"v_cmp_ne_u32 vcc, 1, v{T1}")
        k.e("s_cbranch_vccnz L_spinC_l")
        k.label("L_spinCx")
        k.e("s_waitcnt vmcnt(0)")
    ool.append(("L_spinC", spinC, "L_spinCr"))
    k.stamp(ST or SA)
    for n in range(2):
        for t, s in c_ops(n): k.e(s, tag=f'c{n}')
    for t, s in w_ops(2): k.e(s, tag='w2')
    k.e("s_cmp_lg_u32 s40, 0")
    k.e("s_cbranch_scc1 L_nowd")
    wd_dma()
    k.label("L_nowd")
    if C3:
        k.e("s_cmp_lt_u32 s2, 128")
        k.e("s_cbranch_scc1 L_noc3")
        col3(0, C3)
        k.vq.pop()
        k.label("L_noc3")

    b = Rec()
    b.e(f"v_mov_b32 v{T2}, 1")
    b.e("s_lshl_b32 s6, s4, 3")
    b.e("s_add_u32 s6, s6, s92")
    b.e("s_lshl_b32 s6, s6, 2")
    b.e(f"s_add_u32 s6, s6, {WS_HFL}")
    b.blk(["s_cmp_eq_u32 s32, 0", "s_cselect_b32 s6, s6, s64", "s_cmp_lg_u32 s34, 0", f"s_cselect_b32 s6, s6, {BIG}"])
    b.check_clear('hps')
    b.e("s_barrier")
    b.blk(["s_mov_b64 exec, 1", f"buffer_store_dword v{T2}, v{VZ}, s[20:23], s6 offen sc1", "s_mov_b64 exec, -1"])
    b.at(0.5)
    b.e("s_mov_b32 s3, s36")
    for p in range(4):
        b.e(f"buffer_load_dwordx4 {V(XP+4*p,4)}, v{VO}, s[56:59], s3 offen", tag='x')
        if p < 3: b.e("s_add_u32 s3, s3, 65536")
    b.e("s_lshl_b32 s3, s45, 10")
    b.e(f"s_add_u32 s3, s3, {WS_STATS}")
    b.e(f"v_lshlrev_b32 v{T1}, 3, v{VROW}")
    for p in range(4):
        b.e(f"buffer_load_dwordx2 {V(STT+2*p,2)}, v{T1}, s[20:23], s3 offen offset:{p*256} sc1", tag='x')
    F2 = float(opt.get('f2', 1.5))
    b.e("s_lshl_b32 s40, s45, 7")
    b.e("s_lshl_b32 s3, s32, 3")
    b.e("s_or_b32 s40, s40, s3")
    b.blk(["s_and_b32 s3, s42, 0x798", "s_and_b32 s47, s43, 0x798", "s_cmp_eq_u32 s3, s40", "s_cselect_b32 s53, 1, 0",
           "s_cmp_eq_u32 s47, s40", "s_cselect_b32 s53, 1, s53", "s_mov_b32 s40, 0"])
    b.e("s_lshl_b32 s41, s46, 7")
    b.e(f"s_add_u32 s41, s41, {WS_YFL}")
    b.e("s_lshl_b32 s44, s46, 13")
    b.e(f"s_add_u32 s44, s44, {WS_YP}")
    b0 = Rec()
    for st_, dt in (("A", 0), ("B", 1.7), ("C", 3.4), ("E", 5.1)):
        b0.at(F2 + dt)
        b0.blk(["s_cmp_ge_u32 s2, 32", f"s_cbranch_scc1 L_f2{st_}", f"L_f2{st_}r:"])
    if True:
        for q in range(1, C3):
            it = Rec(); it.at(q * NK / C3 - float(opt.get('c3a', 3.6)))
            it.blk(["s_cmp_ge_u32 s2, 128", f"s_cbranch_scc1 L_c3{q}", f"L_c3{q}r:"])
            ool.append((f"L_c3{q}", lambda q=q: col3(q, C3), f"L_c3{q}r"))
            b0.items += it.items
        prs = sorted([(b0.items[i][1], b0.items[i], b0.items[i + 1]) for i in range(0, len(b0.items), 2)], key=lambda x: x[0])
        b0.items = [x for pr in prs for x in pr[1:]]
    b.at(2.6)
    b.wait_vm('x')
    for p in range(4): gates(b, p)
    PS = float(opt.get('k3_poll', 10))
    b.at(PS)
    b.blk(["s_cmp_lg_u32 s53, 0", "s_cbranch_scc1 L_yA", "L_yAr:"])
    b.at(PS + 1.7)
    b.blk(["s_cmp_lg_u32 s53, 0", "s_cbranch_scc1 L_yB", "L_yBr:"])
    b.at(PS + 3.4)
    b.blk(["s_cmp_lg_u32 s40, 0", "s_cbranch_scc1 L_yC", "L_yCr:"])

    RA = 74
    b.at(NK - 2.3)
    b.e(f"v_and_b32 v{T1}, 15, v0")
    b.e(f"v_lshlrev_b32 v78, 8, v{T1}")
    b.e("v_add_u32 v78, s35, v78")
    b.e(f"v_xor_b32 v{T1}, v{T1}, v{G}")
    b.e(f"v_lshl_add_u32 v{RA}, v{T1}, 4, v78")
    for cb in range(1, 4): b.e(f"v_xor_b32 v{RA+cb}, {64*cb}, v{RA}")
    def lds_ops(c0):
        return [f"ds_write_b128 v{RA+cb}, {A(ACC(rb,c0+cb),4)} offset:{rb*4096}" for cb in range(4) for rb in range(8)]
    blocks = [(n, cb) for n in range(NK - 2) for cb in range(8)]
    blocks += [(n, cb) for c0 in (4, 0) for n in (NK - 2, NK - 1) for cb in range(c0, c0 + 4)]
    k.wait_vm('w0')
    for i in range(4):
        for s in wread(*blocks[i], i): k.e(s, tag=f'f{i}')
    BS = int(opt.get('k3_bs', 2))
    early = lds_ops(4)
    for n in range(NK):
        g = {}; gt = {}; scal = {}
        for j in range(8):
            i = 8 * n + j + 4
            if i < len(blocks):
                q = 8 * j + 2 if n < NK - 1 else j
                g[q] = wread(*blocks[i], i % 8); gt[q] = f'f{i}'
        vi = 0
        for t, s in c_ops(n + 2):
            if t == 'g': g[4 * vi + 1] = [s]; gt[4 * vi + 1] = f'c{n+2}'; vi += 1
            else: scal[4 * vi - 2] = [s]
        vi = 0
        for t, s in w_ops(n + 3):
            q = 37 + 3 * vi + (vi // 4)
            if t == 'g':
                while q in g: q += 1
                g[q] = [s]; gt[q] = f'w{n+3}'; vi += 1; lastq = q
            elif t == 's':
                while q in g: q += 1
                scal.setdefault(q - 1, []).append(s)
            else: g.setdefault(lastq + 1, []).append(s)
        if n == NK - 1:
            assert not b.items and not b0.items, (len(b.items), len(b0.items))
            for q in range(10, 64, int(opt.get('ews', 2))): g[q] = [early.pop(0)]
        for j in range(8):
            i = 8 * n + j
            bn, cb = blocks[i]
            if j == 0: k.wait_ds(f'f{i}')
            k.wait_vm(f'c{bn}')
            for rb in range(8):
                m = 8 * j + rb
                k.e(mfma(A(ACC(rb, cb), 4), V(WF(i % 8), 4), V(CF(bn, rb), 4), A(ACC(rb, cb), 4) if bn else "0"))
                if rb == 7 and j < 7: k.wait_ds(f'f{i+1}')
                if rb == 0 and i + 4 < len(blocks): k.wait_vm(f'w{blocks[i+4][0]}')
                if m == 35: k.wait_ds(f'f{8*n+7}')
                if m == 9 and n == NK - 1: k.e("s_waitcnt lgkmcnt(0)")
                for s in scal.get(m, []): k.e(s)
                if m in g:
                    for s in g[m]: k.e(s, tag=gt.get(m))
                elif m not in scal:
                    nl = k.ni
                    b0.fill(k, n + m / 64.0, BS)
                    if k.ni == nl: b.fill(k, n + m / 64.0, BS)
    SX = opt.get('stamp') == 't'
    k.stamp(ST or SX)
    for s in early: k.e(s)
    k.e(f"v_and_b32 v{T1}, 15, v{VROW}")
    k.e(f"v_lshlrev_b32 v{T2}, 1, v{L7}")
    k.e(f"v_xor_b32 v{T1}, v{T1}, v{T2}")
    k.e(f"v_lshlrev_b32 v10, 8, v{VROW}")
    k.e(f"v_lshl_add_u32 v12, v{T1}, 4, v10")
    k.e("v_xor_b32 v13, 16, v12")
    k.e("v_add_u32 v14, 65536, v12")
    k.e("v_add_u32 v15, 65536, v13")
    k.srd(8, 66, 8 << 20, WS_XCH)
    k.e("s_lshl_b32 s54, s2, 2")
    k.e("s_add_u32 s54, s54, s32")
    k.e("s_lshl_b32 s52, s54, 13")
    k.e(f"s_xor_b32 s37, s52, {8 * 4 << 13}")
    k.e("s_lshl_b32 s54, s54, 2")
    k.e(f"s_xor_b32 s39, s54, {8 * 16}")
    k.e(f"s_add_u32 s54, s54, {WS_XFL}")
    k.e(f"s_add_u32 s39, s39, {WS_XFL}")
    def rd(p):
        b_ = 128 + 32 * p
        for w in range(4):
            for h in range(2):
                k.e(f"ds_read_b128 {V(b_ + 8*w + 4*h, 4)}, v{12 + h + 2*(w >> 1)} offset:{(w & 1)*32768 + p*8192}", tag=f'r{p}')
    def reduce4(after):
        rd(0)
        for p in range(4):
            b_ = 128 + 32 * p
            k.wait_ds(f'r{p}')
            if p < 3: rd(p + 1)
            for e_ in range(0, 8, 2):
                k.e(f"v_pk_add_f32 {V(b_+e_,2)}, {V(b_+e_,2)}, {V(b_+8+e_,2)}")
                k.e(f"v_pk_add_f32 {V(b_+16+e_,2)}, {V(b_+16+e_,2)}, {V(b_+24+e_,2)}")
            for e_ in range(0, 8, 2): k.e(f"v_pk_add_f32 {V(b_+e_,2)}, {V(b_+e_,2)}, {V(b_+16+e_,2)}")
            after(p, b_)
    k.e("s_waitcnt lgkmcnt(0)")
    k.stamp(SX)
    k.e("s_barrier")
    k.stamp(SX)
    def send(p, b_):
        if p == 3: k.e("s_barrier")
        for h in range(2):
            k.e(f"buffer_store_dwordx4 {V(b_+4*h,4)}, v{VC + (p >> 1)}, s[8:11], s37 offen offset:{((p & 1)*2 + h)*1024}{opt.get('xch_st', ' sc1')}")
    reduce4(send)
    k.stamp(SX)
    own = lds_ops(0)
    XF_, XPL = int(opt.get('xf', 10)), int(opt.get('xpl', 24))
    k.e(f"v_mov_b32 v{T2}, 1")
    for i, s in enumerate(own):
        k.e(s)
        if i == XF_:
            k.e("s_waitcnt vmcnt(0)")
            k.e("s_mov_b64 exec, 1")
            k.e(f"buffer_store_dword v{T2}, v{VZ}, s[20:23], s39 offen{opt.get('xch_st', ' sc1')}")
            k.e("s_mov_b64 exec, -1")
        if i == XPL: k.e(f"buffer_load_dword v79, v{VZ}, s[20:23], s54 offen sc1")
    k.stamp(SX)
    k.e("s_cmp_lg_u32 s53, s40")
    k.e("s_cbranch_scc1 L_ysl")
    k.label("L_yslr")
    k.e("s_waitcnt lgkmcnt(0)")
    k.e("s_barrier")
    k.stamp(SX)
    XI = 80
    def fetch():
        for p in range(4):
            for h in range(2):
                k.e(f"buffer_load_dwordx4 {V(XI+8*p+4*h,4)}, v{VC + (p >> 1)}, s[8:11], s52 offen offset:{((p & 1)*2 + h)*1024} sc1", tag=f'x{p}')
    def mid(p, b_):
        if p == int(opt.get('xpp', 0)):
            k.e("s_waitcnt vmcnt(0)")
            k.e("v_cmp_ne_u32 vcc, 1, v79")
            k.e("s_cbranch_vccnz L_spinX")
            k.label("L_spinXr")
            fetch()
        for d in range(4):
            k.e(f"v_lshlrev_b32 v{b_+8+2*d}, 16, v{XP+4*p+d}")
            k.e(f"v_and_b32 v{b_+9+2*d}, 0xffff0000, v{XP+4*p+d}")
    ool.append(("L_spinX", lambda: poll_loop("L_spinXl", "s54", VZ, 79, 1), "L_spinXr"))
    reduce4(mid)
    k.stamp(SX)
    for p in range(4):
        b_ = 128 + 32 * p
        k.wait_vm(f'x{p}')
        k.stamp(SX and p == 0)
        for e_ in range(0, 8, 2): k.e(f"v_pk_add_f32 {V(b_+e_,2)}, {V(b_+e_,2)}, {V(XI+8*p+e_,2)}")
        for d in range(4): rbf2(k, b_ + 2*d, b_ + 2*d + 1, b_ + 16 + d)
        for e_ in range(0, 8, 2): k.e(f"v_pk_mul_f32 {V(b_+e_,2)}, {V(b_+e_,2)}, {V(GT+8*p+e_,2)}")
        for d in range(4): rbf2(k, b_ + 2*d, b_ + 2*d + 1, b_ + 16 + d)
        for e_ in range(0, 8, 2): k.e(f"v_pk_add_f32 {V(b_+e_,2)}, {V(b_+e_,2)}, {V(b_+8+e_,2)}")
        for d in range(4): k.e(f"v_cvt_pk_bf16_f32 v{b_+16+d}, v{b_+2*d}, v{b_+2*d+1}")
        k.e(f"buffer_store_dwordx4 {V(b_+16,4)}, v{VO}, s[68:71], s36 offen{opt.get('out_st', ' sc1')}")
        if p < 3: k.e("s_add_u32 s36, s36, 65536")
    k.stamp(ST or SA or SX)

    def poll_loop(lab, off, vo, vd, slp=8):
        k.e("s_mov_b32 s47, 0x400000")
        k.label(lab)
        k.e(f"buffer_load_dword v{vd}, v{vo}, s[20:23], {off} offen sc1")
        k.e("s_sub_u32 s47, s47, 1")
        k.e("s_waitcnt vmcnt(0)")
        k.e("s_cmp_eq_u32 s47, 0")
        k.e(f"s_cbranch_scc1 {lab}x")
        k.e(f"v_cmp_ne_u32 vcc, 1, v{vd}")
        k.e(f"s_cbranch_vccz {lab}x")
        k.e(f"s_sleep {slp}")
        k.e(f"s_branch {lab}")
        k.label(lab + "x")
    H0 = 74
    def f2A():
        k.e("s_lshr_b32 s5, s54, 1")
        k.e("s_lshl_b32 s5, s5, 5")
        k.e(f"s_add_u32 s5, s5, {WS_HFL}")
        k.e(f"buffer_load_dword v{T2}, v{VF}, s[20:23], s5 offen sc1")
    def f2B():
        k.e("s_waitcnt vmcnt(24)")
        k.e(f"v_cmp_ne_u32 vcc, 1, v{T2}")
        k.e("s_cbranch_vccz L_f2lx")
        poll_loop("L_f2l", "s5", VF, T2)
        k.e("s_lshl_b32 s3, s54, 8")
        k.e(f"s_add_u32 s3, s3, {WS_HP}")
        k.e(f"v_mul_u32_u24 v{T1}, 14336, v{G}")
        k.e(f"v_and_b32 v{T2}, 15, v0")
        k.e(f"v_lshl_add_u32 v{T1}, v{T2}, 4, v{T1}")
        for j in range(8):
            k.e(f"buffer_load_dwordx4 {V(H0 + 4*j, 4)}, v{T1}, s[20:23], s3 offen sc1")
            if j < 7: k.e(f"s_add_u32 s3, s3, {4*14336}")
    def f2C():
        k.e("s_waitcnt vmcnt(24) lgkmcnt(0)")
        for j in range(1, 8):
            for r in range(0, 4, 2): k.e(f"v_pk_add_f32 {V(H0+r,2)}, {V(H0+r,2)}, {V(H0+4*j+r,2)}")
        for r in range(0, 4, 2): rbf2(k, H0 + r, H0 + r + 1, T2)
        for r in range(4): k.e(f"v_mov_b32 v{82+r}, v{H0+r}")
        for r in range(4): k.e(f"v_permlane32_swap_b32 v{82+r}, v{H0+r}")
        silu_n(k, [82 + r for r in range(4)], [90 + r for r in range(4)])
        for r in range(0, 4, 2): rbf2(k, 82 + r, 83 + r, T2)
        for r in range(4): k.e(f"v_mul_f32 v{H0+r}, v{H0+r}, v{82+r}")
        for r in range(2): k.e(f"v_cvt_pk_bf16_f32 v{90+r}, v{H0+2*r}, v{H0+2*r+1}")
        k.e("s_lshl_b32 s7, s32, 9")
        k.e("s_add_u32 s7, s7, 131072")
        k.e(f"v_and_b32 v{T1}, 1, v{G}")
        k.e(f"v_lshlrev_b32 v{T1}, 8, v{T1}")
        k.e(f"v_and_b32 v{T2}, 15, v0")
        k.e(f"v_lshl_add_u32 v{T1}, v{T2}, 3, v{T1}")
        k.e(f"v_add_u32 v{T1}, s7, v{T1}")
        k.e(f"ds_write_b64 v{T1}, v[90:91]")
        k.e(f"v_and_b32 v{T1}, 1, v0")
        k.e(f"v_lshlrev_b32 v{T1}, 8, v{T1}")
        k.e(f"v_lshl_add_u32 v94, v{G}, 3, v{T1}")
        k.e("v_add_u32 v94, s7, v94")
        for q in range(2):
            for rd in range(2):
                k.e(f"ds_read_b64 {V(H0 + 4*q + 2*rd, 2)}, v94 offset:{q*64 + rd*32}")
        k.e(f"v_lshl_add_u32 v{T1}, v{G}, 4, v{T1}")
        k.e(f"v_add_u32 v{T1}, s7, v{T1}")
        FB = (82, 86, 90, 12)
        k.e("s_waitcnt lgkmcnt(0)")
        for q in range(2):
            for cb in range(4):
                for rd in range(2):
                    k.e(f"ds_read_b64_tr_b16 {V(FB[cb] + 2*rd, 2)}, v{TA+cb} offset:{24576 + q*4096 + rd*2048}")
            k.e("s_waitcnt lgkmcnt(0)")
            for cb in range(4):
                d = V(96 + 4 * cb, 4)
                k.e(mfma(d, V(FB[cb], 4), V(H0 + 4*q, 4), d if q else "0"))
        for cb in range(4):
            k.e(f"ds_write_b128 v{T1}, {V(96+4*cb,4)} offset:{2048 + cb*64}")
        k.e("s_waitcnt lgkmcnt(0)")
        k.e("s_barrier")
        k.e("s_cmp_lg_u32 s32, 0")
        k.e("s_cbranch_scc1 L_f2Cr")
        k.e(f"v_lshlrev_b32 v{T1}, 3, v0")
        k.e(f"v_add_u32 v{T2}, {131072 + 2048}, v{T1}")
        for w in range(4): k.e(f"ds_read_b64 {V(74+2*w,2)}, v{T2} offset:{w*512}")
        k.e("s_lshl_b32 s3, s39, 4")
        k.e("s_add_u32 s3, s3, s37")
        k.e("s_lshl_b32 s3, s3, 9")
        k.e(f"s_add_u32 s3, s3, {WS_YP}")
        k.e("s_waitcnt lgkmcnt(0)")
        k.e("v_pk_add_f32 v[74:75], v[74:75], v[76:77]")
        k.e("v_pk_add_f32 v[78:79], v[78:79], v[80:81]")
        k.e("v_pk_add_f32 v[74:75], v[74:75], v[78:79]")
        k.e(f"buffer_store_dwordx2 v[74:75], v{T1}, s[20:23], s3 offen sc1")
    def f2E():
        k.e("s_cmp_lg_u32 s32, 0")
        k.e("s_cbranch_scc1 L_f2Er")
        k.e(f"v_mov_b32 v{T2}, 1")
        k.e("s_lshl_b32 s3, s39, 5")
        k.e("s_add_u32 s3, s3, s37")
        k.e("s_lshl_b32 s3, s3, 2")
        k.e(f"s_add_u32 s3, s3, {WS_YFL}")
        k.e("s_waitcnt vmcnt(24)")
        k.e("s_mov_b64 exec, 1")
        k.e(f"buffer_store_dword v{T2}, v{VZ}, s[20:23], s3 offen sc1")
        k.e("s_mov_b64 exec, -1")
    for nm, fn in (("A", f2A), ("B", f2B), ("C", f2C), ("E", f2E)): ool.append((f"L_f2{nm}", fn, f"L_f2{nm}r"))
    def yloads():
        k.e(f"v_lshlrev_b32 v{T2}, 10, v{L3}")
        k.e(f"v_lshl_add_u32 v{T2}, v{L7}, 5, v{T2}")
        k.e(f"v_mov_b32 v{T1}, {BIG}")
        k.e(f"v_cmp_gt_u32 vcc, 7, v{L3}")
        k.e(f"v_cndmask_b32 v{T2}, v{T1}, v{T2}, vcc")
        for q in range(2):
            for t in range(2):
                for h in range(2):
                    k.e(f"buffer_load_dwordx4 {V(YB + 16*q + 8*t + 4*h, 4)}, v{T2}, s[20:23], s44 offen offset:{q*512 + t*256 + h*16} sc1")
    def selblock():
        for j in range(0, 16, 2): k.e(f"v_pk_add_f32 {V(YB+j,2)}, {V(YB+j,2)}, {V(YB+16+j,2)}")
        for j in range(16): k.e(f"v_add_f32_dpp v{YB+j}, v{YB+j}, v{YB+j} row_ror:8 row_mask:0xf bank_mask:0xf")
        for sw in ("v_permlane16_swap_b32", "v_permlane32_swap_b32"):
            for j in range(16): k.e(f"v_mov_b32 v{YB+16+j}, v{YB+j}")
            for j in range(16): k.e(f"{sw} v{YB+16+j}, v{YB+j}")
            for j in range(16): k.e(f"v_add_f32 v{YB+j}, v{YB+j}, v{YB+16+j}")
        for d in range(8): rbf2(k, YB + 2*d, YB + 2*d + 1, T1)
        for t in range(2):
            for e_ in range(8): k.e(f"v_mul_f32 v{YB+8*t+e_}, s{100+t}, v{YB+8*t+e_}")
        for d in range(8): rbf2(k, YB + 2*d, YB + 2*d + 1, T1)
        k.e("s_lshl_b32 s3, s45, 7")
        k.e("s_sub_u32 s42, s42, s3")
        k.e("s_sub_u32 s43, s43, s3")
        for p in range(4):
            L = k.newlabel("selskip")
            k.e(f"v_add_u32 v{T1}, {32*p}, v{VROW}")
            k.e(f"v_cmp_eq_u32 vcc, s42, v{T1}")
            k.e(f"v_cmp_eq_u32 s[6:7], s43, v{T1}")
            k.e("s_nop 3")
            k.e("s_or_b64 s[4:5], vcc, s[6:7]")
            k.e(f"s_cbranch_scc0 {L}")
            for e_ in range(8):
                k.e(f"v_cndmask_b32 v{YB+16+e_}, 0, v{YB+e_}, vcc")
                k.e(f"v_cndmask_b32 v{YB+16+e_}, v{YB+16+e_}, v{YB+8+e_}, s[6:7]")
            gates(k, p, YB + 16)
            k.label(L)
    def yA():
        k.e(f"v_min_u32 v{VF}, 13, v0")
        k.e(f"v_lshlrev_b32 v{VF}, 2, v{VF}")
        k.e(f"buffer_load_dword v{T1}, v{VF}, s[20:23], s41 offen sc1")
    def yB():
        k.e("s_waitcnt vmcnt(24)")
        k.e(f"v_cmp_ne_u32 vcc, 1, v{T1}")
        k.e("s_cbranch_vccnz L_yBr")
        k.e("s_mov_b32 s40, 1")
        yloads()
    def yC():
        k.e("s_waitcnt vmcnt(8)")
        selblock()
    def ysl():
        poll_loop("L_ysll", "s41", VF, T1)
        yloads()
        k.e("s_waitcnt vmcnt(0)")
        selblock()
    ool.append(("L_yA", yA, "L_yAr")); ool.append(("L_yB", yB, "L_yBr")); ool.append(("L_yC", yC, "L_yCr")); ool.append(("L_ysl", ysl, "L_yslr"))
```

```python
from fw import *
from layout import *
from p4 import rbf2, silu_n, srd_rec, p4_ptr_loads
BIG = 0x7ff00000
VC, VWB, VW, TA, VO, VROW, G, L7, L3, T1, T2, VZ, VF = 112, 113, 114, 115, 119, 120, 121, 122, 123, 124, 125, 126, 127
GTMP, XP, STT, GT, YB = 2, 18, 34, 42, 80
SPARE = 131072

def p4_setup(opt):
    b = Rec()
    srd_rec(b, 60, 8, 7340032)
    srd_rec(b, 68, 10, 4194304)
    srd_rec(b, 56, 40, 4194304)
    b.e("s_bfe_u32 s6, s2, 0x20001")
    b.e("s_lshr_b32 s7, s34, 1")
    b.e("s_lshl_b32 s45, s7, 2")
    b.e("s_add_u32 s46, s45, s6")
    b.e("s_sub_u32 s46, 15, s46")
    b.e("s_sub_u32 s45, 12, s45")
    b.e("s_add_u32 s45, s45, s6")
    b.blk(["s_cmp_lt_u32 s7, 2", "s_cselect_b32 s45, s46, s45"])
    b.e("s_and_b32 s46, s2, 1")
    b.e("s_lshl_b32 s46, s46, 3")
    b.e("s_bfe_u32 s6, s2, 0x30003")
    b.e("s_add_u32 s46, s46, s6")
    for j in range(4): b.e(f"s_mov_b32 s{48+j}, {j*15360}")
    b.e("s_lshl_b32 s35, s32, 13")
    b.e(f"s_add_u32 s35, s35, {SPARE}")
    b.e("s_and_b32 s52, s46, 1")
    b.e("s_lshl_b32 s6, s45, 20")
    b.e("s_lshl_b32 s7, s52, 19")
    b.e("s_add_u32 s6, s6, s7")
    b.e(f"s_add_u32 s6, s6, {WS_CTX}")
    srd_rec(b, 8, 66, 524288, "s6")
    b.e("s_lshr_b32 s7, s46, 1")
    b.e("s_lshl_b32 s7, s7, 8")
    b.e("s_lshl_b32 s6, s52, 22")
    b.e("s_add_u32 s6, s6, s7")
    srd_rec(b, 12, 94, 0, "s6")
    b.e("s_sub_u32 s14, 4194304, s7")
    srd_rec(b, 28, 94, 8388608)
    b.e("s_lshl_b32 s7, s46, 7")
    b.e("s_lshl_b32 s36, s45, 18")
    b.e("s_add_u32 s36, s36, s7")
    b.e("s_and_b32 s94, s7, 128")
    b.e("s_lshl_b32 s38, s45, 7")
    b.e("s_lshl_b32 s6, s52, 6")
    b.e("s_add_u32 s38, s38, s6")
    b.e(f"s_add_u32 s38, s38, {WS_CFL}")
    b.e("s_lshl_b32 s52, s32, 11")
    b.e(f"v_lshlrev_b32 v{VC}, 4, v0")
    b.e(f"v_lshrrev_b32 v{G}, 4, v0")
    b.e(f"v_and_b32 v{L7}, 7, v0")
    b.e(f"v_lshrrev_b32 v{L3}, 3, v0")
    b.e(f"v_lshlrev_b32 v{T1}, 1, v{G}")
    b.e(f"v_xor_b32 v{T1}, v{T1}, v{L7}")
    b.e(f"v_lshlrev_b32 v{T1}, 4, v{T1}")
    b.e(f"v_lshl_add_u32 v{VWB}, v{L3}, 11, v{T1}")
    b.e("s_lshr_b32 s6, s32, 1")
    b.e("s_lshl_b32 s6, s6, 16")
    b.e("s_and_b32 s7, s32, 1")
    b.e("s_lshl_b32 s7, s7, 7")
    b.e("s_xor_b32 s7, s7, s94")
    b.e("s_xor_b32 s7, s7, 128")
    b.e("s_add_u32 s6, s6, s7")
    b.e(f"v_add_u32 v{VW}, s6, v{VWB}")
    b.e(f"v_lshrrev_b32 v{T1}, 2, v0")
    b.e(f"v_bfe_u32 v{VZ}, v0, 3, 2")
    b.e(f"v_lshlrev_b32 v{T1}, 7, v{T1}")
    b.e(f"v_and_b32 v{T2}, 3, v0")
    b.e(f"v_lshl_add_u32 v{T1}, v{T2}, 3, v{T1}")
    b.e(f"v_lshl_add_u32 v{TA}, v{VZ}, 5, v{T1}")
    for cb in range(1, 4): b.e(f"v_xor_b32 v{TA+cb}, {cb*32}, v{TA}")
    b.e("s_lshl_b32 s6, s32, 5")
    b.e(f"v_add_u32 v{VROW}, s6, v{L3}")
    b.e(f"v_lshlrev_b32 v{VO}, 11, v{VROW}")
    b.e(f"v_lshl_add_u32 v{VO}, v{L7}, 4, v{VO}")
    b.e(f"v_mov_b32 v{VZ}, 0")
    b.e(f"v_lshlrev_b32 v{VF}, 2, v{L7}")
    return b

def phase4(k, opt, ool, ST, SA):
    N1 = int(opt.get('n1', 32))
    N2 = 64 - N1
    assert N1 % 2 == 0 and N2 % 4 == 0 and N2 <= 32
    units = [(n, s_) for n in range(N1) for s_ in (1, 0)] + [(n, 1) for n in range(N1, 64)] + [(n, 0) for n in range(N1, 64)]
    NS = 32
    SP = N1 // 2 + N2 // 4
    ACC = lambda side, rb, cb: 128 + ((side * 2 + rb) * 4 + cb) * 4
    WF = lambda u, cb: 192 + (u & 3) * 16 + cb * 4
    XI = 160
    FL = int(opt.get('fl', 2))
    CF = lambda n, rb: (n % 32) * 8 + rb * 4
    TB = 12
    WDI = int(opt.get('wdi', 5))
    CDI = int(opt.get('cdi', 5))
    def w_ops(st):
        if st >= NS: return []
        ops = [('s', f"s_add_u32 m0, s44, {(st % 8)*16384}")]
        ops += [('g', f"buffer_load_dwordx4 v{VW}, s[12:15], s{48+j} offen offset:{j*1024} lds") for j in range(4)]
        if st + 1 == N1 // 2: ops.append(('v', f"v_add_u32 v{VW}, s95, v{VWB}"))
        elif st + 1 == SP: ops += [('s2', "s_xor_b32 s95, s95, 128"), ('v', f"v_add_u32 v{VW}, s95, v{VWB}")]
        else: ops.append(('v', f"v_add_u32 v{VW}, {(2 if st < N1 // 2 else 4) * 65536}, v{VW}"))
        return ops
    def c_ops(n):
        return [('g', f"buffer_load_dwordx4 {A(CF(n,rb),4)}, v{VC}, s[8:11], s52 offen offset:{rb*1024} sc1") for rb in range(2)] + \
               [('s2', "s_add_u32 s52, s52, 8192")]
    def ksteps_of(st):
        return sorted({units[4 * st + j][0] for j in range(4)}) if st < SP else []
    def wread(u):
        st = u // 4
        base = TA if (st % 8) < 4 else TB
        return [[f"ds_read_b64_tr_b16 {V(WF(u,cb)+2*rd,2)}, v{base+cb} offset:{(st % 4)*16384 + (u % 4)*4096 + rd*2048}" for rd in range(2)] for cb in range(4)]
    def col3(part):
        k.e("s_bfe_u32 s3, s2, 0x40003")
        k.e("s_lshl_b32 s3, s3, 2")
        k.e("s_add_u32 s3, s3, s32")
        k.e("s_lshl_b32 s3, s3, 15")
        k.e("s_and_b32 s7, s2, 1")
        k.e("s_lshl_b32 s7, s7, 10")
        k.e("s_add_u32 s3, s3, s7")
        k.e(f"s_add_u32 s3, s3, {384 + part * 1024 * 2048}")
        k.e("v_and_b32 v1, 15, v0")
        k.e("v_lshlrev_b32 v1, 11, v1")
        k.e("v_lshrrev_b32 v11, 5, v0")
        k.e("v_lshl_add_u32 v1, v11, 22, v1")
        k.e("buffer_load_dword v11, v1, s[28:31], s3 offen")
    def gates(o, p, ysrc=None):
        g0 = GT + 8 * p
        if o is not k and opt.get('gpk', '0') == '0': return gates_plain(o, p)
        pr = lambda r: V(r, 2)
        st_ = V(STT + 2 * p, 2)
        for d in range(4):
            o.e(f"v_lshlrev_b32 v{g0+2*d}, 16, v{XP+4*p+d}")
            o.e(f"v_and_b32 v{g0+2*d+1}, 0xffff0000, v{XP+4*p+d}")
        for d in range(4): o.e(f"v_pk_add_f32 {pr(g0+2*d)}, {pr(g0+2*d)}, {st_} op_sel_hi:[1,0] neg_lo:[0,1] neg_hi:[0,1]")
        for d in range(4): rbf2(o, g0 + 2*d, g0 + 2*d + 1, GTMP + d)
        for d in range(4): o.e(f"v_pk_mul_f32 {pr(g0+2*d)}, {pr(g0+2*d)}, {st_} op_sel:[0,1] op_sel_hi:[1,1]")
        for d in range(4): rbf2(o, g0 + 2*d, g0 + 2*d + 1, GTMP + d)
        if ysrc is not None:
            for d in range(4): o.e(f"v_pk_add_f32 {pr(g0+2*d)}, {pr(g0+2*d)}, {pr(ysrc+2*d)}")
            for d in range(4): rbf2(o, g0 + 2*d, g0 + 2*d + 1, GTMP + d)
        for e_ in range(8): o.e(f"v_mul_f32 v{GTMP+e_}, 0xbfb8aa3b, v{g0+e_}")
        for e_ in range(8): o.e(f"v_exp_f32 v{GTMP+e_}, v{GTMP+e_}")
        for e_ in range(8): o.e(f"v_add_f32 v{GTMP+e_}, 1.0, v{GTMP+e_}")
        for e_ in range(8): o.e(f"v_rcp_f32 v{GTMP+e_}, v{GTMP+e_}")
        for d in range(4): o.e(f"v_pk_mul_f32 {pr(g0+2*d)}, {pr(g0+2*d)}, {pr(GTMP+2*d)}")
        for d in range(4): rbf2(o, g0 + 2*d, g0 + 2*d + 1, GTMP + d)
    def gates_plain(o, p):
        g0 = GT + 8 * p
        for d in range(4):
            o.e(f"v_lshlrev_b32 v{g0+2*d}, 16, v{XP+4*p+d}")
            o.e(f"v_and_b32 v{g0+2*d+1}, 0xffff0000, v{XP+4*p+d}")
        for e_ in range(8): o.e(f"v_sub_f32 v{g0+e_}, v{g0+e_}, v{STT+2*p}")
        for d in range(4): rbf2(o, g0 + 2*d, g0 + 2*d + 1, GTMP + d)
        for e_ in range(8): o.e(f"v_mul_f32 v{g0+e_}, v{g0+e_}, v{STT+2*p+1}")
        for d in range(4): rbf2(o, g0 + 2*d, g0 + 2*d + 1, GTMP + d)
        silu_n(o, [g0 + e_ for e_ in range(8)], [GTMP + e_ for e_ in range(8)])
        for d in range(4): rbf2(o, g0 + 2*d, g0 + 2*d + 1, GTMP + d)
    def poll_loop(lab, off, vo, vd, slp=8):
        k.e("s_mov_b32 s47, 0x400000")
        k.label(lab)
        k.e(f"buffer_load_dword v{vd}, v{vo}, s[20:23], {off} offen sc1")
        k.e("s_sub_u32 s47, s47, 1")
        k.e("s_waitcnt vmcnt(0)")
        k.e("s_cmp_eq_u32 s47, 0")
        k.e(f"s_cbranch_scc1 {lab}x")
        k.e(f"v_cmp_ne_u32 vcc, 1, v{vd}")
        k.e(f"s_cbranch_vccz {lab}x")
        k.e(f"s_sleep {slp}")
        k.e(f"s_branch {lab}")
        k.label(lab + "x")

    C3 = int(opt.get('c3', 2))
    k.e("s_mov_b32 s3, s36")
    for p in range(4):
        k.e(f"buffer_load_dwordx4 {V(XP+4*p,4)}, v{VO}, s[56:59], s3 offen", tag='x')
        if p < 3: k.e("s_add_u32 s3, s3, 16384")
    k.e("s_lshl_b32 s3, s45, 10")
    k.e(f"s_add_u32 s3, s3, {WS_STATS}")
    k.e(f"v_lshlrev_b32 v{T1}, 3, v{VROW}")
    for p in range(4):
        k.e(f"buffer_load_dwordx2 {V(STT+2*p,2)}, v{T1}, s[20:23], s3 offen offset:{p*64} sc1", tag='x')
    k.e("v_and_b32 v10, 15, v0")
    k.e("v_lshlrev_b32 v10, 2, v10")
    k.e(f"s_add_u32 s95, s32, {N1}")
    k.e("s_lshl_b32 s95, s95, 16")
    k.e("s_add_u32 s95, s95, s94")
    k.e("s_xor_b32 s95, s95, 128")
    WE = int(opt.get('we', 2))
    for st in range(WE):
        for t, s in w_ops(st): k.e(s, tag=f'w{st}')
    k.e(f"buffer_load_dword v{T1}, v10, s[20:23], s38 offen sc1", tag='cp')
    for cb in range(4): k.e(f"v_add_u32 v{TB+cb}, 65536, v{TA+cb}")
    k.e("s_and_b32 s39, s2, 15")
    k.e("s_lshr_b32 s37, s2, 4")
    k.e("s_sub_u32 s37, s37, 2")
    k.e("s_lshl_b32 s54, s37, 2")
    k.e("s_add_u32 s54, s54, s32")
    k.e("s_lshl_b32 s3, s54, 17")
    k.e("s_lshl_b32 s7, s39, 7")
    k.e("s_add_u32 s3, s3, s7")
    k.e("s_cmp_ge_u32 s2, 32")
    k.e(f"s_cselect_b32 s3, s3, {BIG}")
    k.e(f"v_add_u32 v{T2}, s3, v{VWB}")
    def wd_dma():
        n0 = len(k.vq)
        for q in range(2):
            k.e(f"s_add_u32 m0, s35, {q*4096}")
            for j in range(4):
                k.e(f"buffer_load_dwordx4 v{T2}, s[60:63], s{48+j} offen offset:{j*1024} lds", tag='wd')
            if q == 0: k.e(f"v_add_u32 v{T2}, 65536, v{T2}")
        del k.vq[n0:]
    k.e("s_mov_b32 s40, 0")
    k.wait_vm('x')
    GE = int(opt.get('ge', 1)); GM = int(opt.get('gm', 1))
    for p in range(GE): gates(k, p)
    k.wait_vm('cp')
    k.e(f"v_cmp_ne_u32 vcc, 1, v{T1}")
    k.e("s_cbranch_vccnz L_spinC")
    k.label("L_spinCr")
    def spinC():
        wd_dma()
        k.e("s_mov_b32 s40, 1")
        poll_loop("L_spinC_l", "s38", 10, T1, opt.get('slpc', 4))
    ool.append(("L_spinC", spinC, "L_spinCr"))
    SO = opt.get('stamp') == 'o'
    k.stamp(ST or SA or SO)
    for st in range(max(CDI, WDI)):
        if st < CDI:
            for n in ksteps_of(st):
                for t, s in c_ops(n): k.e(s, tag=f'c{n}')
        if WE <= st < WDI:
            for t, s in w_ops(st): k.e(s, tag=f'w{st}')
        if st == 1:
            for p in range(GE, GE + GM): gates(k, p)
    k.e("s_cmp_lg_u32 s40, 0")
    k.e("s_cbranch_scc1 L_nowd")
    wd_dma()
    k.label("L_nowd")
    if C3:
        k.e("s_cmp_lt_u32 s2, 128")
        k.e("s_cbranch_scc1 L_noc3")
        col3(0)
        k.vq.pop()
        k.label("L_noc3")

    b = Rec()
    b.e(f"v_mov_b32 v{T2}, 1")
    b.e("s_lshl_b32 s6, s4, 3")
    b.e("s_add_u32 s6, s6, s92")
    b.e("s_lshl_b32 s6, s6, 2")
    b.e(f"s_add_u32 s6, s6, {WS_HFL}")
    b.blk(["s_cmp_eq_u32 s32, 0", "s_cselect_b32 s6, s6, s64", "s_cmp_lg_u32 s34, 0", f"s_cselect_b32 s6, s6, {BIG}"])
    b.blk(["s_mov_b64 exec, 1", f"buffer_store_dword v{T2}, v{VZ}, s[20:23], s6 offen sc1", "s_mov_b64 exec, -1"])
    b.e("s_lshl_b32 s40, s45, 2")
    b.e("s_add_u32 s40, s40, s32")
    b.blk(["s_lshr_b32 s3, s42, 5", "s_lshr_b32 s47, s43, 5", "s_cmp_eq_u32 s3, s40", "s_cselect_b32 s53, 1, 0",
           "s_cmp_eq_u32 s47, s40", "s_cselect_b32 s53, 1, s53", "s_mov_b32 s40, 0"])
    b.e("s_lshl_b32 s41, s46, 7")
    b.e(f"s_add_u32 s41, s41, {WS_YFL}")
    b.e("s_lshl_b32 s55, s46, 13")
    b.e(f"s_add_u32 s55, s55, {WS_YP}")
    srd_rec(b, 16, 66, 8 << 20, WS_XCH)
    b.e("s_lshl_b32 s24, s2, 2")
    b.e("s_add_u32 s24, s24, s32")
    b.e("s_lshl_b32 s25, s24, 13")
    b.e(f"s_xor_b32 s26, s25, {32 << 13}")
    b.e("s_lshl_b32 s24, s24, 2")
    b.e("s_xor_b32 s27, s24, 128")
    b.e(f"s_add_u32 s24, s24, {WS_XFL}")
    b.e(f"s_add_u32 s27, s27, {WS_XFL}")
    F2 = float(opt.get('f2', 4)); FD = float(opt.get('f2d', 3.2))
    b0 = Rec()
    ev = [(F2 + j * FD, "s_cmp_ge_u32 s2, 32", f"L_f2{x}") for j, x in enumerate("ABCE")]
    if C3: ev.append((float(opt.get('c3t', 9.5)), "s_cmp_ge_u32 s2, 128", "L_c31")); ool.append(("L_c31", lambda: col3(1), "L_c31r"))
    for t_, c_, l_ in sorted(ev):
        b0.at(t_); b0.blk([c_, f"s_cbranch_scc1 {l_}", l_ + "r:"])
    for p in range(GE + GM, 4): gates(b, p)
    b.items.append(('log', 'gates done', None))
    PS = float(opt.get('k3_poll', 19))
    b.at(PS)
    b.blk(["s_cmp_lg_u32 s53, 0", "s_cbranch_scc1 L_yA", "L_yAr:"])
    b.at(PS + 2.5)
    b.blk(["s_cmp_lg_u32 s53, 0", "s_cbranch_scc1 L_yB", "L_yBr:"])
    b.at(PS + 4.5)
    b.blk(["s_cmp_lg_u32 s40, 0", "s_cbranch_scc1 L_yC", "L_yCr:"])
    b0.at(SP + 0.15)
    b0.e(f"v_add_u32 v10, 4096, v{VC}")
    for j in range(8):
        b0.e(f"buffer_store_dwordx4 {V(ACC(1, 0, 0) + 4*j, 4)}, v{VC if j < 4 else 10}, s[16:19], s26 offen offset:{(j & 3)*1024} sc1", tag='xs')
    b0.e("v_mov_b32 v16, 1")
    b0.at(SP + float(opt.get('xf', 3.2)))
    b0.wait_vm('xs')
    b0.blk(["s_mov_b64 exec, 1", f"buffer_store_dword v16, v{VZ}, s[20:23], s27 offen sc1", "s_mov_b64 exec, -1"])
    b0.at(SP + float(opt.get('xpl', 4.6)))
    b0.e(f"buffer_load_dword v17, v{VZ}, s[20:23], s24 offen sc1", tag='xp')
    b0.at(SP + float(opt.get('xck', 5.8)))
    b0.wait_vm('xp')
    b0.blk(["v_cmp_ne_u32 vcc, 1, v17", "s_mov_b32 s33, 0", "s_cbranch_vccnz L_xno"] +
           [(f"buffer_load_dwordx4 {V(XI + 4*j, 4)}, v{VC if j < 4 else 10}, s[16:19], s25 offen offset:{(j & 3)*1024} sc1", '!') for j in range(8)] +
           ["s_mov_b32 s33, 1", "L_xno:"])

    k.wait_vm('w0')
    k.use('hps')
    k.e("s_barrier")
    for u in range(FL):
        for grp in wread(u):
            for s in grp: k.e(s, tag=f'f{u}')
    BS = int(opt.get('k3_bs', 5))
    cq = [n for st in range(CDI, SP) for n in ksteps_of(st)]
    for st in range(NS):
        k.stamp(SO and st % 4 == 0)
        vm = [(t, s, f'w{st+WDI}') for t, s in w_ops(st + WDI)]
        for n in ksteps_of(st + CDI): vm += [(t, s, f'c{n}') for t, s in c_ops(n)]
        g = {}; gt = {}; scal = {}
        for j in range(4):
            u = 4 * st + j + FL
            if u < 4 * NS:
                for q, grp in enumerate(wread(u)):
                    x = 8 * j + (q + (q > 1) if FL == 1 else 2 * q)
                    g[x] = grp; gt[x] = f'f{u}'
        free = [x for x in range(32) if x not in g]
        ng = sum(1 for x in vm if x[0] == 'g')
        pick = [free[(2 * j + 1) * len(free) // (2 * ng)] for j in range(ng)] if ng else []
        j = 0
        for t, s, tg in vm:
            if t == 'g': g[pick[j]] = [s]; gt[pick[j]] = tg; j += 1
            elif t == 's': scal.setdefault(0, []).append(s)
            else: g[pick[j - 1]].append(s)
        for j in range(4):
            u = 4 * st + j
            n, side = units[u]
            k.wait_vm(f'c{n}')
            if u == 0: k.wait_ds('f0')
            first = n == 0
            for cb in range(4):
                for rb in range(2):
                    m = 8 * j + 2 * cb + rb
                    d = V(ACC(side, rb, cb), 4)
                    k.e(mfma(d, V(WF(u, cb), 4), A(CF(n, rb), 4), "0" if first else d))
                    mb = 31 - 8 * FL
                    if m == mb - 3 and st + 1 < NS: k.wait_vm(f'w{st+1}')
                    if m == mb - 1 and st + 1 < NS: k.e("s_barrier")
                    if m % 8 == (7 if FL == 1 else 4): k.wait_ds(f'f{u+1}')
                    for s in scal.get(m, []): k.e(s)
                    if m in g:
                        for s in g[m]: k.e(s, tag=gt.get(m))
                        if st < SP and g[m][0].startswith('ds_') and b.items and b.items[0][0] == 'i' and b.cost(b.items[0]) == 1 \
                                and b.items[0][1].startswith('v_'):
                            b.fill(k, st + m / 32.0, int(opt.get('k3_ds', 1)))
                    else:
                        nl = k.ni
                        b0.fill(k, st + m / 32.0, 2)
                        if k.ni == nl: b.fill(k, st + m / 32.0, BS)
    print("phase4 items left", len(b.items), len(b0.items))
    b0.drain(k); b.drain(k)
    k.stamp(ST or SO)
    k.e(f"v_and_b32 v{T1}, 15, v0")
    k.e(f"v_lshlrev_b32 v74, 8, v{T1}")
    k.e("v_add_u32 v74, s35, v74")
    k.e(f"v_xor_b32 v{T1}, v{T1}, v{G}")
    k.e(f"v_lshl_add_u32 v74, v{T1}, 4, v74")
    for cb in range(1, 4): k.e(f"v_xor_b32 v{74+cb}, {64*cb}, v74")
    k.e(f"v_lshlrev_b32 v{T2}, 1, v{L7}")
    k.e(f"v_xor_b32 v{T1}, v{L3}, v{T2}")
    k.e(f"v_lshlrev_b32 v12, 8, v{L3}")
    k.e("v_add_u32 v12, s35, v12")
    k.e(f"v_lshl_add_u32 v12, v{T1}, 4, v12")
    k.e("v_xor_b32 v13, 16, v12")
    k.e("v_xor_b32 v14, 128, v12")
    k.e("v_xor_b32 v15, 144, v12")
    k.e("s_cmp_lg_u32 s53, s40")
    k.e("s_cbranch_scc1 L_ysl")
    k.label("L_yslr")
    k.e("s_cmp_eq_u32 s33, 0")
    k.e("s_cbranch_scc1 L_spinX")
    k.label("L_spinXr")
    def spinX():
        poll_loop("L_spinXl", "s24", VZ, 17, 1)
        for j in range(8):
            k.e(f"buffer_load_dwordx4 {V(XI + 4*j, 4)}, v{VC if j < 4 else 10}, s[16:19], s25 offen offset:{(j & 3)*1024} sc1")
    ool.append(("L_spinX", spinX, "L_spinXr"))
    XU = 80
    for p in range(4):
        for d in range(4):
            k.e(f"v_lshlrev_b32 v{XU+8*p+2*d}, 16, v{XP+4*p+d}")
            k.e(f"v_and_b32 v{XU+8*p+2*d+1}, 0xffff0000, v{XP+4*p+d}")
    k.e("s_waitcnt vmcnt(0)")
    for j in range(8):
        a = ACC(0, 0, 0) + 4 * j
        for e_ in (0, 2): k.e(f"v_pk_add_f32 {V(a+e_,2)}, {V(a+e_,2)}, {V(XI+4*j+e_,2)}")
        k.e(f"ds_write_b128 v{74 + (j & 3)}, {V(a,4)} offset:{(j >> 2)*4096}")
    for p in range(4):
        for h in range(2):
            k.e(f"ds_read_b128 {V(192 + 8*p + 4*h, 4)}, v{12 + h + 2*(p & 1)} offset:{p*2048}", tag=f'r{p}')
    for p in range(4):
        b_ = 192 + 8 * p; t_ = 224 + 4 * p
        k.wait_ds(f'r{p}')
        for d in range(4): rbf2(k, b_ + 2*d, b_ + 2*d + 1, t_ + d)
        for e_ in range(0, 8, 2): k.e(f"v_pk_mul_f32 {V(b_+e_,2)}, {V(b_+e_,2)}, {V(GT+8*p+e_,2)}")
        for d in range(4): rbf2(k, b_ + 2*d, b_ + 2*d + 1, t_ + d)
        for e_ in range(0, 8, 2): k.e(f"v_pk_add_f32 {V(b_+e_,2)}, {V(b_+e_,2)}, {V(XU+8*p+e_,2)}")
        for d in range(4): k.e(f"v_cvt_pk_bf16_f32 v{t_+d}, v{b_+2*d}, v{b_+2*d+1}")
        k.e(f"buffer_store_dwordx4 {V(t_,4)}, v{VO}, s[68:71], s36 offen{opt.get('out_st', ' sc1')}")
        if p < 3: k.e("s_add_u32 s36, s36, 16384")
    k.stamp(ST or SA)

    H0 = 74
    WN = int(opt.get('f2w', 20))
    def f2A():
        k.e("s_lshr_b32 s5, s54, 1")
        k.e("s_lshl_b32 s5, s5, 5")
        k.e(f"s_add_u32 s5, s5, {WS_HFL}")
        k.e(f"buffer_load_dword v{T2}, v{VF}, s[20:23], s5 offen sc1")
    def f2B():
        k.e(f"s_waitcnt vmcnt({WN})")
        k.e(f"v_cmp_ne_u32 vcc, 1, v{T2}")
        k.e("s_cbranch_vccz L_f2lx")
        poll_loop("L_f2l", "s5", VF, T2)
        k.e("s_lshl_b32 s3, s54, 8")
        k.e(f"s_add_u32 s3, s3, {WS_HP}")
        k.e(f"v_mul_u32_u24 v{T1}, 14336, v{G}")
        k.e(f"v_and_b32 v{T2}, 15, v0")
        k.e(f"v_lshl_add_u32 v{T1}, v{T2}, 4, v{T1}")
        for j in range(8):
            k.e(f"buffer_load_dwordx4 {V(H0 + 4*j, 4)}, v{T1}, s[20:23], s3 offen sc1")
            if j < 7: k.e(f"s_add_u32 s3, s3, {4*14336}")
    def f2C():
        for cb in range(4): k.e(f"v_add_u32 v{106+cb}, s35, v{TA+cb}")
        k.e(f"s_waitcnt vmcnt({WN}) lgkmcnt(0)")
        k.use('wd')
        for j in range(1, 8):
            for r in range(0, 4, 2): k.e(f"v_pk_add_f32 {V(H0+r,2)}, {V(H0+r,2)}, {V(H0+4*j+r,2)}")
        for r in range(0, 4, 2): rbf2(k, H0 + r, H0 + r + 1, T2)
        for r in range(4): k.e(f"v_mov_b32 v{82+r}, v{H0+r}")
        for r in range(4): k.e(f"v_permlane32_swap_b32 v{82+r}, v{H0+r}")
        silu_n(k, [82 + r for r in range(4)], [90 + r for r in range(4)])
        for r in range(0, 4, 2): rbf2(k, 82 + r, 83 + r, T2)
        for r in range(4): k.e(f"v_mul_f32 v{H0+r}, v{H0+r}, v{82+r}")
        for r in range(2): k.e(f"v_cvt_pk_bf16_f32 v{90+r}, v{H0+2*r}, v{H0+2*r+1}")
        k.e(f"v_and_b32 v{T1}, 1, v{G}")
        k.e(f"v_lshlrev_b32 v{T1}, 8, v{T1}")
        k.e(f"v_and_b32 v{T2}, 15, v0")
        k.e(f"v_lshl_add_u32 v{T1}, v{T2}, 3, v{T1}")
        k.e(f"v_add_u32 v{T1}, s35, v{T1}")
        for cb in range(4):
            for rd in range(2):
                k.e(f"ds_read_b64_tr_b16 {V(74 + 4*cb + 2*rd, 2)}, v{106+cb} offset:{rd*2048}")
        k.e(f"ds_write_b64 v{T1}, v[90:91]")
        k.e(f"v_and_b32 v{T1}, 1, v0")
        k.e(f"v_lshlrev_b32 v{T1}, 8, v{T1}")
        k.e(f"v_lshl_add_u32 v{T2}, v{G}, 3, v{T1}")
        k.e(f"v_add_u32 v{T2}, s35, v{T2}")
        for q in range(2):
            for rd in range(2):
                k.e(f"ds_read_b64 {V(90 + 4*q + 2*rd, 2)}, v{T2} offset:{q*64 + rd*32}")
        k.e(f"v_lshl_add_u32 v{T1}, v{G}, 4, v{T1}")
        k.e(f"v_add_u32 v{T1}, s35, v{T1}")
        k.e("s_waitcnt lgkmcnt(0)")
        for half in range(2):
            for c2 in range(2):
                cb = 2 * half + c2
                k.e(mfma(V(98 + 4 * c2, 4), V(74 + 4 * cb, 4), V(90, 4), "0"))
                for rd in range(2):
                    k.e(f"ds_read_b64_tr_b16 {V(74 + 4*cb + 2*rd, 2)}, v{106+cb} offset:{4096 + rd*2048}")
            k.e("s_waitcnt lgkmcnt(0)")
            for c2 in range(2):
                k.e(mfma(V(98 + 4 * c2, 4), V(74 + 4 * (2 * half + c2), 4), V(94, 4), V(98 + 4 * c2, 4)))
            for c2 in range(2):
                k.e(f"ds_write_b128 v{T1}, {V(98 + 4*c2, 4)} offset:{2048 + (2*half + c2)*64}")
            if half == 0: k.e("s_waitcnt lgkmcnt(0)")
        k.e("s_waitcnt lgkmcnt(0)")
        k.e("s_barrier")
        k.e("s_cmp_lg_u32 s32, 0")
        k.e("s_cbranch_scc1 L_f2Cr")
        k.e(f"v_lshlrev_b32 v{T1}, 3, v0")
        k.e(f"v_add_u32 v{T2}, {SPARE + 2048}, v{T1}")
        for w in range(4): k.e(f"ds_read_b64 {V(74+2*w,2)}, v{T2} offset:{w*8192}")
        k.e("s_lshl_b32 s3, s39, 4")
        k.e("s_add_u32 s3, s3, s37")
        k.e("s_lshl_b32 s3, s3, 9")
        k.e(f"s_add_u32 s3, s3, {WS_YP}")
        k.e("s_waitcnt lgkmcnt(0)")
        k.e("v_pk_add_f32 v[74:75], v[74:75], v[76:77]")
        k.e("v_pk_add_f32 v[78:79], v[78:79], v[80:81]")
        k.e("v_pk_add_f32 v[74:75], v[74:75], v[78:79]")
        k.e(f"buffer_store_dwordx2 v[74:75], v{T1}, s[20:23], s3 offen sc1", tag='yp')
    def f2E():
        k.e("s_cmp_lg_u32 s32, 0")
        k.e("s_cbranch_scc1 L_f2Er")
        k.e(f"v_mov_b32 v{T2}, 1")
        k.e("s_lshl_b32 s3, s39, 5")
        k.e("s_add_u32 s3, s3, s37")
        k.e("s_lshl_b32 s3, s3, 2")
        k.e(f"s_add_u32 s3, s3, {WS_YFL}")
        k.e(f"s_waitcnt vmcnt({WN})")
        k.use('yp')
        k.e("s_mov_b64 exec, 1")
        k.e(f"buffer_store_dword v{T2}, v{VZ}, s[20:23], s3 offen sc1")
        k.e("s_mov_b64 exec, -1")
    for nm, fn in (("A", f2A), ("B", f2B), ("C", f2C), ("E", f2E)): ool.append((f"L_f2{nm}", fn, f"L_f2{nm}r"))
    def yloads():
        k.e(f"v_lshlrev_b32 v{T2}, 10, v{L3}")
        k.e(f"v_lshl_add_u32 v{T2}, v{L7}, 5, v{T2}")
        k.e(f"v_mov_b32 v{T1}, {BIG}")
        k.e(f"v_cmp_gt_u32 vcc, 7, v{L3}")
        k.e(f"v_cndmask_b32 v{T2}, v{T1}, v{T2}, vcc")
        for q in range(2):
            for t in range(2):
                for h in range(2):
                    k.e(f"buffer_load_dwordx4 {V(YB + 16*q + 8*t + 4*h, 4)}, v{T2}, s[20:23], s55 offen offset:{q*512 + t*256 + h*16} sc1")
    def selblock():
        for j in range(0, 16, 2): k.e(f"v_pk_add_f32 {V(YB+j,2)}, {V(YB+j,2)}, {V(YB+16+j,2)}")
        for j in range(16): k.e(f"v_add_f32_dpp v{YB+j}, v{YB+j}, v{YB+j} row_ror:8 row_mask:0xf bank_mask:0xf")
        for sw in ("v_permlane16_swap_b32", "v_permlane32_swap_b32"):
            for j in range(16): k.e(f"v_mov_b32 v{YB+16+j}, v{YB+j}")
            for j in range(16): k.e(f"{sw} v{YB+16+j}, v{YB+j}")
            for j in range(0, 16, 2): k.e(f"v_pk_add_f32 {V(YB+j,2)}, {V(YB+j,2)}, {V(YB+16+j,2)}")
        for d in range(8): rbf2(k, YB + 2*d, YB + 2*d + 1, T1)
        for t in range(2):
            for e_ in range(8): k.e(f"v_mul_f32 v{YB+8*t+e_}, s{100+t}, v{YB+8*t+e_}")
        for d in range(8): rbf2(k, YB + 2*d, YB + 2*d + 1, T1)
        k.e("s_lshl_b32 s3, s45, 7")
        k.e("s_sub_u32 s42, s42, s3")
        k.e("s_sub_u32 s43, s43, s3")
        for p in range(4):
            L = k.newlabel("selskip")
            k.e(f"v_add_u32 v{T1}, {8*p}, v{VROW}")
            k.e(f"v_cmp_eq_u32 vcc, s42, v{T1}")
            k.e(f"v_cmp_eq_u32 s[6:7], s43, v{T1}")
            k.e("s_nop 3")
            k.e("s_or_b64 s[4:5], vcc, s[6:7]")
            k.e(f"s_cbranch_scc0 {L}")
            for e_ in range(8):
                k.e(f"v_cndmask_b32 v{YB+16+e_}, 0, v{YB+e_}, vcc")
                k.e(f"v_cndmask_b32 v{YB+16+e_}, v{YB+16+e_}, v{YB+8+e_}, s[6:7]")
            gates(k, p, YB + 16)
            k.label(L)
    def yA():
        k.e(f"v_min_u32 v{VF}, 13, v0")
        k.e(f"v_lshlrev_b32 v{VF}, 2, v{VF}")
        k.e(f"buffer_load_dword v79, v{VF}, s[20:23], s41 offen sc1")
    def yB():
        k.e("s_waitcnt vmcnt(6)")
        k.e("v_cmp_ne_u32 vcc, 1, v79")
        k.e("s_cbranch_vccnz L_yBr")
        k.e("s_mov_b32 s40, 1")
        yloads()
    def yC():
        k.e("s_waitcnt vmcnt(4)")
        selblock()
    def ysl():
        poll_loop("L_ysll", "s41", VF, T1)
        yloads()
        k.e("s_waitcnt vmcnt(0)")
        selblock()
    ool.append(("L_yA", yA, "L_yAr")); ool.append(("L_yB", yB, "L_yBr")); ool.append(("L_yC", yC, "L_yCr")); ool.append(("L_ysl", ysl, "L_yslr"))
```

```python
from fw import *
from layout import *
import p4, p4b, p4c
KNAME = 'recurrent_scan__compressed_kv_cla__moe_arch_mod__prompt_kernel'

K12_LDS = 163840
QSCALE = 0x3e0293ee
BIG = 0x7ff00000

def gen_k12(opt):
    k = Asm(KNAME)
    k.short = "f"
    P4 = {'0': p4, '1': p4b, '2': p4c}[opt.get('s2', '2')]
    p4_ptr_loads, p4_setup, phase4 = P4.p4_ptr_loads, P4.p4_setup, P4.phase4
    ST = opt.get('stamp') == '1'
    S1 = opt.get('stamp') == 'p1'
    S2 = opt.get('stamp') == 'p2'
    SA = opt.get('stamp') == 'a'
    S0 = opt.get('stamp') == 'p0'
    w_ld, a_ld, x_ld = opt.get('w_ld', ' nt'), opt.get('a_ld', ''), opt.get('x_ld', ' nt')
    wq_ld, kv_ld, ffn_ld = opt.get('wq_ld', ''), opt.get('kv_ld', ' sc1'), opt.get('ffn_ld', '')
    MAP = int(opt.get('map', 4))
    WOT = opt.get('wot', '0') == '1'
    VOA, VOW, AD, PFO = 2, 6, 10, 47
    FA = lambda ks, i: 64 * ks + 4 * i
    FW = lambda ks, j: 64 * ks + 32 + 4 * j
    def frag_of(isV, it, jd):
        return ((it >> 2) * 16 + jd * 2 + ((it >> 1) & 1), it & 1) if isV else (it * 4 + (jd >> 1), jd & 1)
    SRC = lambda n: ('v', 48 + 8 * n) if n < 26 else ('a', 128 + 8 * (n - 26))
    def acc(isV, it, jd):
        n, h = frag_of(isV, it, jd)
        p, r = SRC(n)
        return R(p, r + 4 * h, 4)
    PK = lambda n: 24 + 4 * (n if n < 26 else n - 26)
    VX, VY, VDMA, VRA, VRB, ORR, T0 = 2, 3, 4, 5, 6, 7, 1
    WV, XV, TA = 8, 10, 16
    ET = 8
    ONES, NINF = 16, 20
    NEGM, LS, PB, SB = 32, 48, 64, 128
    P = lambda par, qb, ks: PB + 32 * par + (qb * 2 + ks) * 4
    Sr = lambda par, qb, kb: SB + 64 * par + (qb * 4 + kb) * 4
    O = lambda qb, db: (qb * 8 + db) * 4
    Q = lambda qb, s: 128 + (qb * 4 + s) * 4
    FR = lambda grp, j: 192 + 16 * grp + 4 * j
    QA = lambda db, qb: 128 + (qb * 8 + db) * 4
    XR = lambda kk, qb: ((kk % 8) * 4 + qb) * 4
    WF = lambda kk, db: 192 + (kk & 1) * 32 + db * 4

    k.e("s_cmp_ge_u32 s2, 256")
    k.e("s_cbranch_scc1 L_k2_end")
    k.stamp(ST or S0)
    k.e("s_load_dwordx4 s[4:7], s[0:1], 0")
    k.e("s_load_dwordx2 s[44:45], s[0:1], 56")
    k.e("s_load_dwordx4 s[40:43], s[0:1], 24")
    k.e("s_load_dwordx4 s[64:67], s[0:1], 96")
    k.e("v_lshrrev_b32 v1, 6, v0")
    k.e("v_and_b32 v0, 63, v0")
    k.e("v_readfirstlane_b32 s32, v1")
    def emit(lst, o=None):
        for x in lst:
            if x.endswith(':'): k.label(x[:-1])
            else: k.e(x, tag='cpf')
    CPF = opt.get('cpf', '12346')
    if '1' in CPF: emit(code_prefetch(KNAME, "L_k2_fin", 32, 68, 120, 124))
    k.e("v_lshrrev_b32 v33, 5, v0")
    k.e("v_and_b32 v31, 31, v0")
    k.e("v_lshlrev_b32 v36, 4, v31")
    k.e("v_lshl_add_u32 v35, v33, 11, v36")
    k.e("s_lshl_b32 s36, s2, 14")
    k.e("s_lshl_b32 s37, s32, 12")
    k.e("s_add_u32 s36, s36, s37")
    k.e("s_mov_b32 s18, 4194304")
    k.e("s_mov_b32 s19, 0x20000")
    k.e("s_bfe_u32 s33, s2, 0x30003")
    k.e("s_lshr_b32 s35, s2, 7")
    k.e("s_bfe_u32 s3, s2, 0x10006")
    k.e("s_and_b32 s34, s2, 7")
    k.e("s_lshl_b32 s34, s34, 1")
    k.e("s_add_u32 s34, s34, s3")
    k.e("s_waitcnt lgkmcnt(0)")
    k.stamp(S0)
    k.e("s_mov_b32 s16, s4")
    k.e("s_and_b32 s17, s5, 0xffff")
    XP, WR, XF = 48, 64, 80
    for i in range(4):
        k.e(f"buffer_load_dwordx4 {V(XP+4*i,4)}, v35, s[16:19], s36 offen offset:{i*512}{x_ld}", tag='x')
    k.e("s_cmp_eq_u32 s35, 0")
    k.e("s_cselect_b32 s40, s40, s42")
    k.e("s_cselect_b32 s41, s41, s43")
    k.e("s_lshl_b32 s3, s34, 9")
    k.srd(12, 40, 0, "s3")
    k.e("s_sub_u32 s14, 4194304, s3")
    k.e("s_lshl_b32 s3, s33, 18")
    k.srd(8, 6, 262144, "s3")
    KX = int(opt.get('kx', 7))
    k.e(f"s_and_b32 s58, s2, {KX}")
    def dma_ops(buf):
        ops = []
        for (base, vo, so, srd, fl) in ((57, VOW, 52, 12, w_ld), (56, VOA, 48, 8, a_ld)):
            for hi in range(2):
                ops.append(('s', f"s_add_u32 m0, s{base}, {buf*65536 + hi*4096}"))
                for lo in range(4):
                    ops.append(('g', f"buffer_load_dwordx4 v{vo + (lo&1) + 2*hi}, {S(srd,4)}, s{so+lo} offen offset:{lo*1024}{fl} lds"))
        return ops
    def adv_ops(j):
        x = j ^ (j + 1)
        return [f"v_xor_b32 v{VOW+q}, {x << 19}, v{VOW+q}" for q in range(4)] + [f"v_xor_b32 v{VOA+q}, {x << 7}, v{VOA+q}" for q in range(4)]
    PF0 = int(opt.get('pf0', 1))
    pfc = [PF0]
    def pf_ops():
        j = pfc[0]; pfc[0] += 1
        return [f"buffer_load_dword v1, v{PFO}, s[60:63], 0 offen{opt.get('pf_ld', '')}",
                f"s_mul_i32 vcc_lo, s59, {(j ^ (j + 1)) & 7}", f"v_xor_b32 v{PFO}, vcc_lo, v{PFO}"]
    def setup_P():
        k.e("s_cmp_lt_u32 s32, 2")
        for j in range(3): k.e(f"s_cselect_b32 s{60+j}, s{8+j}, s{12+j}")
        k.e("s_mov_b32 s63, 0x20000")
        k.e(f"s_mov_b32 s59, {64*8192}")
        k.e("s_cselect_b32 s59, 128, s59")
        k.e("s_cselect_b64 vcc, -1, 0")
        k.e("s_cselect_b32 s38, 32, 16")
        k.e("s_lshr_b32 s3, s2, 6")
        k.e("s_cmp_lt_u32 s32, 2")
        k.e("s_cselect_b32 s3, s3, s33")
        k.e("s_lshl_b32 s3, s3, 1")
        k.e("s_and_b32 s39, s32, 1")
        k.e("s_add_u32 s3, s3, s39")
        k.e("s_lshl_b32 s3, s3, 15")
        k.e(f"s_xor_b32 s39, s58, {PF0}")
        k.e("s_mul_i32 s39, s39, s59")
        k.e("s_add_u32 s3, s3, s39")
        k.e("v_lshlrev_b32 v37, 10, v0")
        k.e("v_lshrrev_b32 v38, 2, v0")
        k.e("v_lshlrev_b32 v38, 13, v38")
        k.e("v_and_b32 v39, 3, v0")
        k.e("v_lshl_add_u32 v38, v39, 7, v38")
        k.e(f"v_cndmask_b32 v{PFO}, v38, v37, vcc")
        k.e(f"v_add_u32 v{PFO}, s3, v{PFO}")
        k.e("v_cmp_gt_u32 vcc, s38, v0")
        k.e(f"v_mov_b32 v37, {BIG}")
        k.e(f"v_cndmask_b32 v{PFO}, v37, v{PFO}, vcc")
    def setup_W():
        for j in range(4): k.e(f"s_mov_b32 s{52+j}, {j*15360}")
        k.e("s_lshl_b32 s56, s32, 13")
        k.e("s_add_u32 s57, s56, 32768")
        k.e("s_lshl_b32 s3, s58, 2")
        k.e("s_add_u32 s3, s3, s32")
        k.e("s_lshl_b32 s3, s3, 4")
        k.e("v_add_u32 v30, s3, v33")
        k.e("v_lshlrev_b32 v30, 13, v30")
        k.e("v_lshlrev_b32 v34, 5, v33")
        k.e("v_xor_b32 v34, v34, v36")
        k.e(f"v_add_u32 v{VOW}, v34, v30")
        k.e(f"v_xor_b32 v{VOW+1}, 64, v{VOW}")
        k.e(f"v_xor_b32 v{VOW+2}, {8*8192 + 128}, v{VOW}")
        k.e(f"v_xor_b32 v{VOW+3}, {8*8192 + 192}, v{VOW}")
    def setup_A():
        for j in range(4): k.e(f"s_mov_b32 s{48+j}, {j*7168}")
        k.e("v_lshrrev_b32 v30, 3, v0")
        k.e("v_lshlrev_b32 v30, 10, v30")
        k.e("s_lshl_b32 s3, s32, 16")
        k.e("s_lshl_b32 s39, s58, 7")
        k.e("s_add_u32 s3, s3, s39")
        k.e("v_and_b32 v31, 7, v0")
        k.e("v_lshrrev_b32 v32, 4, v0")
        k.e("v_xor_b32 v31, v31, v32")
        k.e("v_lshl_add_u32 v30, v31, 4, v30")
        k.e(f"v_add_u32 v{VOA}, s3, v30")
        k.e(f"v_xor_b32 v{VOA+1}, 64, v{VOA}")
        k.e(f"v_xor_b32 v{VOA+2}, 32768, v{VOA}")
        k.e(f"v_xor_b32 v{VOA+3}, {32768 + 64}, v{VOA}")
    def setup_D():
        k.srd(20, 66, 8 << 20)
        k.srd(24, 66, 32 * KV_HEAD, WS_KV)
        k.e("v_lshrrev_b32 v32, 4, v0")
        k.e("v_and_b32 v30, 15, v0")
        k.e("s_lshr_b32 s3, s32, 1")
        k.e("s_lshl_b32 s3, s3, 14")
        k.e("v_lshlrev_b32 v31, 7, v30")
        k.e("v_add_u32 v31, s3, v31")
        k.e("v_lshrrev_b32 v34, 1, v30")
        k.e("v_xor_b32 v34, v34, v32")
        k.e(f"v_lshl_add_u32 v{AD}, v34, 4, v31")
        k.e(f"v_xor_b32 v{AD+1}, 64, v{AD}")
        k.e("v_lshrrev_b32 v30, 2, v30")
        k.e("v_lshl_add_u32 v31, v32, 3, v30")
        k.e("v_lshlrev_b32 v31, 9, v31")
        k.e("v_and_b32 v34, 3, v0")
        k.e("v_lshl_add_u32 v31, v34, 3, v31")
        k.e("s_and_b32 s3, s32, 1")
        k.e("s_lshl_b32 s3, s3, 8")
        k.e("s_add_u32 s3, s3, 32768")
        k.e("v_add_u32 v31, s3, v31")
        k.e("v_and_b32 v34, 1, v32")
        k.e("v_lshl_add_u32 v30, v34, 2, v30")
        k.e(f"v_lshl_add_u32 v{AD+2}, v30, 5, v31")
        for jj in range(1, 8): k.e(f"v_xor_b32 v{AD+2+jj}, {jj*32}, v{AD+2}")
        for j in range(10): k.e(f"v_add_u32 v{AD+10+j}, 65536, v{AD+j}")
    def act(seq):
        for x in seq.split(','):
            if not x: continue
            if x in 'PWAD': {'P': setup_P, 'W': setup_W, 'A': setup_A, 'D': setup_D}[x]()
            elif x == 'p':
                for s in pf_ops(): k.e(s, tag='pf')
            elif x == 'r':
                k.srd(28, 44, 2048)
                for i in range(4):
                    k.e(f"buffer_load_dwordx4 {V(WR+4*i,4)}, v36, s[28:31], 0 offen offset:{i*512}", tag='wr')
            else:
                st = int(x[1]); h = 0 if x[0] == 'w' else 1
                for t, s in dma_ops(st)[10*h:10*h+10]: k.e(s, tag=f'st{st}')
                for s in adv_ops(st)[4*h:4*h+4]: k.e(s)
    PRO = opt.get('pro', 'W,w0,A,P,D,r/a0,p/p//').split('/')
    act(PRO[0])
    k.stamp(S0)
    def sum32(v, t):
        for m in ["quad_perm:[1,0,3,2]", "quad_perm:[2,3,0,1]", "row_half_mirror", "row_mirror"]:
            k.e(f"v_add_f32_dpp v{v}, v{v}, v{v} {m} row_mask:0xf bank_mask:0xf")
        k.e(f"v_mov_b32 v{t}, v{v}")
        k.e(f"v_permlane16_swap_b32 v{t}, v{v}")
        k.e(f"v_add_f32 v{v}, v{v}, v{t}")
    k.wait_vm('x')
    k.stamp(S0)
    for i in range(16):
        k.e(f"v_lshlrev_b32 v{XF+2*i}, 16, v{XP+i}")
        k.e(f"v_and_b32 v{XF+2*i+1}, 0xffff0000, v{XP+i}")
    k.e(f"v_pk_add_f32 v[40:41], {V(XF,2)}, {V(XF+2,2)}")
    k.e(f"v_pk_add_f32 v[42:43], {V(XF+4,2)}, {V(XF+6,2)}")
    for i in range(4, 16):
        d = 40 + 2 * (i & 1)
        k.e(f"v_pk_add_f32 {V(d,2)}, {V(d,2)}, {V(XF+2*i,2)}")
    k.e("v_pk_add_f32 v[40:41], v[40:41], v[42:43]")
    k.e("v_add_f32 v38, v40, v41")
    sum32(38, 37)
    k.stamp(S0)
    act(PRO[1])
    k.e("v_mul_f32 v38, 0xba800000, v38")
    k.e("v_mov_b32 v39, v38")
    T = 112
    for i in range(16):
        k.e(f"v_pk_add_f32 {V(T+2*(i&3),2)}, {V(XF+2*i,2)}, v[38:39]")
        d = 40 + 2 * (i & 1)
        if i < 2: k.e(f"v_pk_mul_f32 {V(d,2)}, {V(T+2*(i&3),2)}, {V(T+2*(i&3),2)}")
        else: k.e(f"v_pk_fma_f32 {V(d,2)}, {V(T+2*(i&3),2)}, {V(T+2*(i&3),2)}, {V(d,2)}")
    k.e("v_pk_add_f32 v[40:41], v[40:41], v[42:43]")
    k.e("v_add_f32 v40, v40, v41")
    sum32(40, 37)
    act(PRO[2])
    k.stamp(S0)
    k.e("v_mul_f32 v40, 0x3a800000, v40")
    k.e("v_cvt_pk_bf16_f32 v44, v38, v40")
    k.e("v_lshlrev_b32 v38, 16, v44")
    k.e("v_and_b32 v40, 0xffff0000, v44")
    k.e("v_add_f32 v40, 0x3727c5ac, v40")
    k.e("v_cvt_pk_bf16_f32 v44, v40, v40")
    k.e("v_lshlrev_b32 v40, 16, v44")
    k.e("v_sqrt_f32 v40, v40")
    k.e("v_mov_b32 v39, v38")
    k.e("v_cvt_pk_bf16_f32 v44, v40, v40")
    k.e("v_lshlrev_b32 v44, 16, v44")
    k.e("v_rcp_f32 v40, v44")
    for i in range(16):
        k.e(f"v_pk_add_f32 {V(XF+2*i,2)}, {V(XF+2*i,2)}, v[38:39]")
    k.e("v_fma_f32 v45, -v44, v40, 1.0")
    k.e("v_fma_f32 v40, v45, v40, v40")
    k.e("v_mov_b32 v41, v40")
    for i in range(16):
        k.e(f"v_cvt_pk_bf16_f32 v{XP+i}, v{XF+2*i}, v{XF+2*i+1}")
    for i in range(16):
        k.e(f"v_lshlrev_b32 v{XF+2*i}, 16, v{XP+i}")
        k.e(f"v_and_b32 v{XF+2*i+1}, 0xffff0000, v{XP+i}")
    for i in range(16):
        k.e(f"v_pk_mul_f32 {V(XF+2*i,2)}, {V(XF+2*i,2)}, v[40:41]")
    for i in range(16):
        k.e(f"v_cvt_pk_bf16_f32 v{XP+i}, v{XF+2*i}, v{XF+2*i+1}")
    k.e("s_mul_i32 s3, s32, 4128")
    k.e("s_add_u32 s3, s3, 131072")
    k.e("v_mul_u32_u24 v42, 2064, v33")
    k.e("v_add3_u32 v42, v42, v36, s3")
    for i in range(4):
        k.e(f"ds_write_b128 v42, {V(XP+4*i,4)} offset:{i*512}")
    act(PRO[3])
    k.stamp(S0)
    k.wait_vm('wr')
    k.stamp(S0)
    for i in range(16):
        k.e(f"v_lshlrev_b32 v{XF+2*i}, 16, v{XP+i}")
        k.e(f"v_and_b32 v{XF+2*i+1}, 0xffff0000, v{XP+i}")
        k.e(f"v_lshlrev_b32 v{T+2*(i&3)}, 16, v{WR+i}")
        k.e(f"v_and_b32 v{T+2*(i&3)+1}, 0xffff0000, v{WR+i}")
        d = 42 + 2 * (i & 1)
        if i < 2: k.e(f"v_pk_mul_f32 {V(d,2)}, {V(XF+2*i,2)}, {V(T+2*(i&3),2)}")
        else: k.e(f"v_pk_fma_f32 {V(d,2)}, {V(XF+2*i,2)}, {V(T+2*(i&3),2)}, {V(d,2)}")
    k.e("v_pk_add_f32 v[42:43], v[42:43], v[44:45]")
    k.e("v_add_f32 v45, v42, v43")
    sum32(45, 37)
    k.e("v_cvt_pk_bf16_f32 v45, v45, v45")
    k.e("v_ashrrev_i32 v46, 31, v45")
    k.e("v_or_b32 v46, 0x80000000, v46")
    k.e("v_xor_b32 v45, v45, v46")
    k.e("v_and_b32 v45, 0xffff0000, v45")
    k.e("s_lshr_b32 s3, s36, 11")
    k.e("v_add_u32 v46, s3, v33")
    k.e("v_sub_u32 v44, 0xffff, v46")
    k.e("v_or_b32 v45, v45, v44")
    k.e("v_lshlrev_b32 v44, 2, v46")
    k.e("v_lshlrev_b32 v46, 3, v46")
    k.e("v_xor_b32 v38, 0x80000000, v38")
    k.e("v_mov_b32 v39, v40")
    k.e(f"s_mov_b32 s3, {WS_KEYS}")
    k.e(f"s_mov_b32 s39, {WS_STATS}")
    k.e("s_mov_b32 exec_lo, 1")
    k.e("s_mov_b32 exec_hi, 1")
    k.e("buffer_store_dword v45, v44, s[20:23], s3 offen sc1", tag='ln')
    k.e("buffer_store_dwordx2 v[38:39], v46, s[20:23], s39 offen sc1", tag='ln')
    k.e("s_mov_b64 exec, -1")
    k.e("s_load_dwordx2 s[4:5], s[0:1], 16")
    k.e("s_load_dwordx4 s[40:43], s[0:1], 64")
    k.e("s_load_dwordx2 s[92:93], s[0:1], 40")
    k.e("s_load_dwordx2 s[94:95], s[0:1], 80")
    k.e("s_load_dwordx2 s[100:101], s[0:1], 0")
    act(PRO[4])
    PFN = pfc[0] - 2
    k.srd(28, 64, 256)

    def reads(ks, buf):
        a = AD + 10 * buf
        ra = [f"ds_read_b128 {A(FA(ks,i),4)}, v{a+ks} offset:{i*2048}" for i in range(8)]
        rw = [[f"ds_read_b64_tr_b16 {A(FW(ks,j)+2*rd,2)}, v{a+2+j} offset:{ks*16384+rd*2048}" for rd in range(2)] for j in range(8)]
        out = []
        for j in range(8):
            out.append(rw[j]); out.append([ra[j]])
        return out
    k.stamp(S0)
    k.wait_vm('st0')
    k.e("s_waitcnt lgkmcnt(0)")
    k.e("s_barrier")
    k.stamp(ST or S0)
    n = 0
    for grp in reads(0, 0):
        for s in grp:
            k.e(s); n += 1
            if n == 12: k.e("s_waitcnt lgkmcnt(2)")
    k.e("s_cmp_lg_u32 s35, 0")
    k.e("s_cbranch_scc1 L_k1_vpath")

    def chunk_ops(c):
        kind, j = c
        slot = {'w': j % 4, 'kv': (j + 4) % 8}[kind]
        ops = [('s', f"s_add_u32 m0, s44, {slot * 16384}")]
        if kind == 'w':
            for q in range(4):
                ops.append(('g', f"buffer_load_dwordx4 v{WV + (q >> 1)}, s[8:11], s{48+q} offen offset:{q*1024}{wq_ld} lds"))
            ops.append(('v', f"v_add_u32 v{WV}, {64*8192}, v{WV}"))
            ops.append(('v', f"v_add_u32 v{WV+1}, {64*8192}, v{WV+1}"))
        elif kind == 'f':
            for q in range(4):
                ops.append(('g', f"buffer_load_dwordx4 v{12 + (q >> 1) + 2 * (j & 1)}, {S(60 + 8 * (j >> 1), 4)}, s{52+q} offen offset:{q*1024}{ffn_ld} lds"))
        else:
            ops.append(('s', f"s_mov_b32 s7, {j * KV_CH}"))
            for q in range(4):
                ops.append(('g', f"buffer_load_dwordx4 v{VDMA}, s[12:15], s7 offen offset:{q*1024}{kv_ld} lds"))
        return ops
    def xn_ops(kk):
        ops = []
        for qb in range(4):
            so = "0" if qb & 1 else "s58"
            ops.append(('g', f"buffer_load_dwordx4 {A(XR(kk,qb),4)}, v{XV + (qb >> 1)}, s[20:23], {so} offen offset:{(kk % 4)*1024}{opt.get('xn_ld', ' sc1')}"))
        if kk % 4 == 3:
            ops.append(('v', f"v_add_u32 v{XV}, 4096, v{XV}"))
            ops.append(('v', f"v_add_u32 v{XV+1}, 4096, v{XV+1}"))
        return ops
    def wreads(kk):
        st, ks = kk // 2, kk & 1
        return [[f"ds_read_b64_tr_b16 {A(WF(kk,db)+2*rd,2)}, v{TA+db} offset:{(st % 4)*16384 + ks*8192 + rd*1024}" for rd in range(2)] for db in range(8)]
    ool = []
    def spin(lab, ret, off, target, vd, vz, sv, sc):
        def fn():
            k.e(f"s_mov_b32 s{sc}, 0x400000")
            k.label(lab + "_l")
            k.e(f"s_sleep {opt.get('slp', 8)}")
            k.e(f"buffer_load_dword v{vd}, v{vz}, s[28:31], {off} offen sc1")
            k.e("s_waitcnt vmcnt(0)")
            k.e(f"v_readfirstlane_b32 s{sv}, v{vd}")
            k.e(f"s_sub_u32 s{sc}, s{sc}, 1")
            k.e(f"s_cmp_eq_u32 s{sc}, 0")
            k.e(f"s_cbranch_scc1 {ret}")
            k.e(f"s_cmp_lt_u32 s{sv}, {target}")
            k.e(f"s_cbranch_scc1 {lab}_l")
        ool.append((lab, fn, ret))
    def srd_rec(b, d, base, nbytes, add=None):
        if add is None:
            b.e(f"s_mov_b32 s{d}, s{base}"); b.e(f"s_and_b32 s{d+1}, s{base+1}, 0xffff")
        else:
            b.blk([f"s_add_u32 s{d}, s{base}, {add}", f"s_addc_u32 s{d+1}, s{base+1}, 0", f"s_and_b32 s{d+1}, s{d+1}, 0xffff"])
        b.e(f"s_mov_b32 s{d+2}, {nbytes}"); b.e(f"s_mov_b32 s{d+3}, 0x20000")

    def phase1_stream(isV):
        b = Rec()
        tg = 'v' if isV else 'k'
        b.e("v_and_b32 v46, 7, v0")
        b.e("v_lshrrev_b32 v1, 3, v0") if False else None
        b.e("v_mul_u32_u24 v30, 2064, v46")
        b.e("v_lshrrev_b32 v31, 3, v0")
        b.e("s_lshl_b32 s3, s32, 9")
        b.e("s_add_u32 s3, s3, 131072")
        b.e("v_lshl_add_u32 v30, v31, 4, v30")
        b.e("v_add_u32 v30, s3, v30")
        b.e("v_lshlrev_b32 v31, 8, v31")
        b.e("v_lshl_add_u32 v46, v46, 4, v31")
        for i in (1, 2, 3, 0):
            b.e(f"ds_read_b128 {V(30+4*i,4)}, v30 offset:{i*128}", tag='xs')
        b.e("s_lshr_b32 s3, s2, 1")
        b.e(f"s_mul_i32 s3, s3, {XN_RB}")
        b.e("s_add_u32 s3, s3, s56")
        b.e("s_and_b32 s39, s2, 1")
        b.e("s_lshl_b32 s39, s39, 7")
        b.e("s_add_u32 s3, s3, s39")
        b.e("s_add_u32 s39, s3, 4096")
        b.at(2)
        for i in range(4):
            b.e(f"buffer_store_dwordx4 {V(30+4*i,4)}, v46, s[20:23], s{3 if i < 2 else 39} offen offset:{(i&1)*2048} sc1", tag='ln')
        b.e("s_lshl_b32 s3, s34, 1")
        b.e("s_and_b32 s36, s32, 1")
        b.e("s_add_u32 s3, s3, s36")
        b.e(f"s_mul_i32 s3, s3, {KV_HEAD}")
        b.e(f"s_mul_i32 s36, s33, {4*KV_TILE}")
        b.e("s_add_u32 s3, s3, s36")
        b.e("s_lshr_b32 s36, s32, 1")
        b.e(f"s_mul_i32 s36, s36, {2*KV_TILE}")
        b.e("s_add_u32 s3, s3, s36")
        b.e(f"s_add_u32 s38, s3, {KV_CH if isV else 0}")
        b.e("s_lshl_b32 s39, s34, 7")
        b.e("s_lshl_b32 s36, s33, 2")
        b.e("s_add_u32 s39, s39, s36")
        b.e(f"s_add_u32 s39, s39, {WS_FLG + (32 if isV else 0)}")
        b.e("v_mov_b32 v30, 1")
        b.e("v_mov_b32 v31, 0")
        b.blk(["s_cmp_eq_u32 s32, 0", f"s_cselect_b32 s39, s39, {BIG}"])
        b.blk(["s_mov_b64 exec, 1", ("buffer_store_dword v31, v31, s[20:23], s39 offen sc1", 'ln'), "s_mov_b64 exec, -1"])
        if MAP == 4:
            b.e("s_and_b32 s33, s2, 7")
            b.e("s_lshl_b32 s33, s33, 2")
            b.e("s_bfe_u32 s3, s2, 0x20003")
            b.e("s_add_u32 s33, s33, s3")
            b.e("s_lshr_b32 s34, s2, 5")
        else:
            b.e("s_and_b32 s33, s2, 6")
            b.e("s_lshl_b32 s33, s33, 2")
            b.e("s_bfe_u32 s3, s2, 0x30003")
            b.e("s_add_u32 s33, s33, s3")
            b.e("s_lshr_b32 s34, s2, 6")
            b.e("s_lshl_b32 s34, s34, 1")
            b.e("s_and_b32 s3, s2, 1")
            b.e("s_add_u32 s34, s34, s3")
        b.e("s_lshl_b32 s64, s34, 7")
        b.e("s_lshl_b32 s3, s33, 2")
        b.e("s_add_u32 s64, s64, s3")
        b.e(f"s_add_u32 s64, s64, {WS_CFL}")
        b.e("s_lshl_b32 s65, s34, 8")
        b.e("s_sub_u32 s65, 1920, s65")
        b.e("v_mul_u32_u24 v32, s65, v0")
        b.blk(["s_cmp_eq_u32 s32, 0", f"s_cselect_b32 s64, s64, {BIG}"])
        b.blk(["s_mov_b64 exec, 3", ("buffer_store_dword v31, v32, s[20:23], s64 offen sc1", 'ln'), "s_mov_b64 exec, -1"])
        b.e("s_lshl_b32 s3, s2, 2")
        b.e(f"s_add_u32 s3, s3, {WS_HFL}")
        b.e("v_lshlrev_b32 v32, 10, v0")
        b.blk(["s_cmp_eq_u32 s32, 0", f"s_cselect_b32 s3, s3, {BIG}"])
        b.blk(["s_mov_b64 exec, 0x1ff", ("buffer_store_dword v31, v32, s[20:23], s3 offen sc1", 'ln'), "s_mov_b64 exec, -1"])
        b.e("s_lshl_b32 s35, s34, 1")
        b.e("s_sub_u32 s36, 32, s35")
        b.e("s_add_u32 s35, s35, 2")
        b.e("s_lshl_b32 s44, s32, 12")
        b.e("s_lshl_b32 s58, s32, 1")
        b.e("s_sub_u32 s58, 7, s58")
        b.e(f"s_mul_i32 s58, s58, {XN_RB}")
        b.e("s_sub_u32 s3, 15, s34")
        b.e("s_lshl_b32 s45, s3, 3")
        b.e("s_add_u32 s45, s45, s32")
        b.e("s_lshl_b32 s46, s34, 3")
        b.e("s_add_u32 s46, s46, s32")
        srd_rec(b, 68, 42, 7340032)
        b.blk(["s_cmp_eq_u32 s32, 0", f"s_cselect_b32 s37, 0, {BIG}"])
        b.e("s_lshl_b32 s3, s33, 8")
        srd_rec(b, 16, 4, 0, "s3")
        b.e("s_sub_u32 s18, 8388608, s3")
        WQN = int(opt.get('wqn', 4))
        ln_ = 64 // WQN
        b.e(f"v_and_b32 v33, {ln_ - 1}, v0")
        b.e("v_lshrrev_b32 v32, 1, v33")
        b.e("v_and_b32 v33, 1, v0")
        b.e("v_lshlrev_b32 v32, 13, v32")
        b.e("v_lshl_add_u32 v45, v33, 7, v32")
        b.e("s_lshl_b32 s3, s32, 3")
        b.e("s_add_u32 s3, s3, s34")
        b.e(f"s_mul_i32 s47, s3, {ln_ // 2 * 8192}")
        WQ0 = int(opt.get('wq0', 6))
        ev = []
        for j in range(WQN): ev.append((WQ0 + j * float(opt.get('wqs', 2)), 'pf', j))
        NS = int(opt.get('cas', 4))
        for j in range(NS): ev.append((5.2 + j * float(opt.get('cad', 1.2)), 'ca', j))
        b.e(f"s_bfe_u32 s6, s2, {(NS.bit_length() - 1) << 16 | 3}")
        b.e("s_lshl_b32 s3, s32, 8")
        b.e("s_or_b32 s6, s6, s3")
        WOP = WOT
        if WOP:
            b.e("v_bfe_u32 v39, v0, 3, 1")
            b.e("v_and_b32 v33, 7, v0")
            b.e("v_lshlrev_b32 v39, 11, v39")
            b.e("v_lshl_add_u32 v39, v33, 7, v39")
            b.e("s_lshr_b32 s3, s2, 1")
            b.e("s_lshl_b32 s3, s3, 16")
            b.e("v_add_u32 v39, s3, v39")
            b.e("s_and_b32 s3, s2, 1")
            b.e("s_lshl_b32 s3, s3, 10")
            b.e("v_add_u32 v39, s3, v39")
            b.e("s_lshl_b32 s3, s32, 14")
            b.e("v_add_u32 v39, s3, v39")
            ev.append((5.99, 'srd', 0))
            for j in range(4): ev.append((float(opt.get('wop0', 6)) + j * 2 + 0.01, 'wo', j))
        late = []
        for step, kind, j in sorted(ev):
            o = b
            if step >= 12:
                o = Rec(); late.append(o)
            o.at(step)
            if kind == 'ca':
                o.check_clear('ln')
                o.blk([f"s_cmp_eq_u32 s6, {j}", f"s_cselect_b32 s3, 0, {BIG}"])
                o.blk(["s_mov_b64 exec, 1", "buffer_atomic_add v30, v31, s[28:31], s3 offen sc1", "s_mov_b64 exec, -1"])
            elif kind == 'srd':
                srd_rec(o, 60, 92, 8388608)
            elif kind == 'wo':
                o.e("buffer_load_dword v44, v39, s[60:63], 0 offen", tag='pf')
                o.e("v_add_u32 v39, 4096, v39")
            else:
                o.e(f"buffer_load_dword v44, v45, s[{16 if step < 12 else 8}:{19 if step < 12 else 11}], s47 offen{opt.get('wqpf_ld', '')}", tag='pf')
                o.e(f"s_add_u32 s47, s47, {1024 // WQN * 8192}")
        b.e("v_lshrrev_b32 v32, 4, v0")
        b.e("v_and_b32 v33, 15, v0")
        b.e("s_lshl_b32 s3, s32, 4")
        b.e("v_add_u32 v34, s3, v32")
        b.e("v_lshlrev_b32 v36, 1, v32")
        b.e("v_xor_b32 v36, v36, v33")
        b.e("v_xor_b32 v37, 8, v36")
        if '2' in CPF:
            b.at(10.1)
            cp = code_prefetch("L_phase2", "L_k2_fin", 32, 6, 40, 38)
            cp = [x.replace("s8", "s3") for x in cp]
            b.blk(cp[:4])
            for x in cp[4:-3]: b.e(x)
            b.blk(cp[-3:-1])
            b.e(cp[-1])
        b.at(12)
        b.e("buffer_load_dword v30, v31, s[28:31], s37 offen sc1", tag='poll')
        for j in range(3): b.e(f"s_mov_b32 s{8+j}, s{16+j}")
        srd_rec(b, 16, 66, 16 << 20, WS_CTX)
        for j in range(4): b.e(f"s_mov_b32 s{48+j}, {j*31744}")
        b.e("v_lshlrev_b32 v35, 13, v34")
        b.e(f"v_lshl_add_u32 v{WV}, v36, 4, v35")
        b.e(f"v_lshl_add_u32 v{WV+1}, v37, 4, v35")
        b.e(f"v_lshlrev_b32 v{VX}, 4, v0")
        b.e(f"v_add_u32 v{VY}, 65536, v{VX}")
        b.e(f"v_add_u32 v{VDMA}, s44, v{VX}")
        b.e("v_mov_b32 v7, 0")
        b.e("v_lshlrev_b32 v35, 2, v32")
        b.e("v_sub_u32 v35, v33, v35")
        b.e("s_lshl_b32 s3, s32, 4")
        b.e(f"v_add_u32 v{VRA}, s3, v35")
        b.e("s_sub_u32 s3, 48, s3")
        b.e(f"v_add_u32 v{VRB}, s3, v35")
        b.e(f"s_mul_i32 s3, s33, {KV_HEAD}")
        b.e(f"s_add_u32 s3, s3, {WS_KV}")
        srd_rec(b, 12, 66, 0, "s3")
        b.e(f"s_mul_i32 s14, s36, {KV_TILE}")
        for o in late: b.items += o.items
        b.at(13)
        b.e(f"s_mul_i32 s3, s45, {XN_RB}")
        b.e(f"v_add_u32 v{XV}, s3, v{VX}")
        b.e(f"s_mul_i32 s3, s46, {XN_RB}")
        b.e(f"v_add_u32 v{XV+1}, s3, v{VX}")
        if '6' in CPF:
            b.e("v_mov_b32 v14, v40"); b.e("v_mov_b32 v15, v41")
        if 'dbg_noxn' in opt:
            b.e(f"v_mov_b32 v{XV}, {BIG}"); b.e(f"v_mov_b32 v{XV+1}, {BIG}")
        if 'dbg_nowq' in opt: b.e("s_mov_b32 s10, 0")
        if 'dbg_nost' in opt: b.e("s_mov_b32 s26, 0")
        spin(f"L_spinA{tg}", f"L_spinAr{tg}", 0, 256, 30, 31, 3, 47)
        return b
    def ta_setup(b):
        b.e("v_lshrrev_b32 v42, 2, v33")
        b.e("v_lshl_add_u32 v43, v32, 3, v42")
        b.e("v_lshlrev_b32 v43, 8, v43")
        b.e("v_and_b32 v44, 3, v0")
        b.e("v_lshl_add_u32 v43, v44, 3, v43")
        b.e("v_and_b32 v44, 1, v32")
        b.e("v_lshl_add_u32 v42, v44, 2, v42")
        for db in range(8):
            b.e(f"v_xor_b32 v44, {db}, v42")
            b.e(f"v_lshl_add_u32 v{TA+db}, v44, 5, v43")

    def kstep(isV, st, ks, gaps, gtags, pre, b):
        for s in pre:
            if s.endswith(':'): k.label(s[:-1])
            else: k.e(s)
        order = [(it, jd) for it in range(8) for jd in range(8)]
        if st == 7 and ks == 1: order.sort(key=lambda x: frag_of(isV, *x))
        for n, (it, jd) in enumerate(order):
            fa, fw_ = A(FA(ks, it), 4), A(FW(ks, jd), 4)
            d = acc(isV, it, jd)
            c = "0" if (st == 0 and ks == 0) else d
            k.e(mfma(d, fa, fw_, c) if isV else mfma(d, fw_, fa, c))
            if n in gaps:
                for s in gaps[n]: k.e(s, tag=gtags.get(n))
            else:
                b.fill(k, 2 * st + ks + n / 64.0)
    def place_vm(g, gt, ops, start, step):
        gi = start; lead = []
        for t, s, tg in ops:
            if t == 's':
                if gi == 0: lead.append(s)
                else: g.setdefault(gi - 1, []).insert(0, s)
            elif t == 'g':
                assert gi not in g and gi < 64, gi
                g[gi] = [s]; gt[gi] = tg; gi += step
            else:
                q = gi - step + 1
                while q in g and (len(g[q]) >= 2 or g[q][-1].startswith(('buffer', 'ds_read_b64'))) or (q - start) % step == 0: q += 1
                g.setdefault(min(q, 63), []).append(s)
        return lead
    vq0, dq0 = list(k.vq), list(k.dq)
    for isV in (0, 1):
        if isV:
            k.label("L_k1_vpath"); k.win = []; k.vq = list(vq0); k.dq = list(dq0)
        b = phase1_stream(isV)
        if S1: k.nstamp = 0
        for st in range(8):
            p = st & 1
            k.stamp(S1)
            g = {}
            for n, grp in enumerate(reads(1, p)):
                g[2 * n + 1] = (["s_waitcnt lgkmcnt(6)"] if n % 4 == 3 else []) + grp
            gt = {}; lead = []
            if st == 0:
                ops = []
                for h, nm in enumerate(('w1', 'a1')):
                    if nm not in '/'.join(PRO):
                        ops += [(t, s, 'st1') for t, s in dma_ops(1)[10*h:10*h+10]] + [('v', s, None) for s in adv_ops(1)[4*h:4*h+4]]
                lead = place_vm(g, gt, ops, 0, int(opt.get('st1s', 2)))
                pfc[0] = 2 + PFN
                for q in range(int(opt.get('pfk', 2))):
                    po = pf_ops()
                    g[40 + 4 * q] = [po[0]]; gt[40 + 4 * q] = 'pf'; g[41 + 4 * q] = po[1:] + g.get(41 + 4 * q, [])
            kstep(isV, st, 0, g, gt, ["s_waitcnt lgkmcnt(0)"] + lead, b)
            g = {}; gt = {}
            if st < 7:
                for n, grp in enumerate(reads(0, p ^ 1)):
                    g[2 * n + 1] = (["s_waitcnt lgkmcnt(6)"] if n % 4 == 2 else []) + grp
            if st < 6:
                ops = []
                d = dma_ops(p); adv = adv_ops(st + 2) if st < 5 else []
                ops = [(t, s, f'st{st+2}') for t, s in d[:10]] + [('v', s, None) for s in adv[:4]] + \
                      [(t, s, f'st{st+2}') for t, s in d[10:]] + [('v', s, None) for s in adv[4:]]
                lead = place_vm(g, gt, ops, 0, 4)
                if pfc[0] < 8:
                    po = pf_ops()
                    g[62] = [po[0]] + g.get(62, []); gt[62] = 'pf'
                    g[63] = [po[1]] + g.get(63, []) + [po[2]]
                need = f'st{st+1}'
            elif st == 6:
                ops = []
                for c in range(4): ops += [(t, s, f'w{c}') for t, s in chunk_ops(('w', c))]
                lead = place_vm(g, gt, ops, 0, 4)
                need = 'st7'
            else:
                assert not b.items, len(b.items)
                ta_setup(b)
                b.items.append(('at', 15.3, None))
                for grp in wreads(0):
                    for s in grp: b.e(s)
                b.e("s_waitcnt lgkmcnt(8)")
                cv = Rec()
                for n in range(26):
                    cv.at(15 + (2 * n + 5) / 64.0)
                    r = SRC(n)[1]
                    for q in range(4): cv.e(f"v_cvt_pk_bf16_f32 v{PK(n)+q}, v{r+2*q}, v{r+2*q+1}")
                b.items += cv.items
                ops = []
                for kk in range(4): ops += [(t, s, f'x{kk}') for t, s in xn_ops(kk)]
                lead = place_vm(g, gt, ops, 0, 4)
                tg = 'v' if isV else 'k'
                lead += ["v_readfirstlane_b32 s3, v30", "s_nop 0", "s_or_b32 s3, s3, s37", "s_cmp_lt_u32 s3, 0" if 'dbg_noca' in opt else "s_cmp_lt_u32 s3, 256", f"s_cbranch_scc1 L_spinA{tg}", f"L_spinAr{tg}:"]
                need = 'w0'
            k.e(f"s_waitcnt vmcnt({k.vm_n(need)}) lgkmcnt(0)" if k.vm_n(need) is not None else "s_waitcnt lgkmcnt(0)")
            k.use(need)
            kstep(isV, st, 1, g, gt, lead + ["s_barrier"], b)
        print(f"phase1 isV={isV}: items left {len(b.items)}")
        k.stamp(S1)
        b.drain(k)
        k.stamp(S1)
        if not isV:
            k.e("s_branch L_phase2")
            vqK = list(k.vq)
    assert vqK == k.vq
    k.label("L_phase2")
    k.win = []
    k.e("s_nop 7")
    k.stamp(ST)

    b = Rec()
    KY = 56
    SPK = float(opt.get('spk', 2))
    def kvstore(n):
        b.at(n / SPK)
        off = (n >> 4) * KV_TILE + (n & 15) * 1024
        if n % 4 == 0: b.e(f"s_add_u32 s37, s38, {off}")
        b.e(f"buffer_store_dwordx4 {V(PK(n),4)}, v{VX}, s[24:27], s37 offen offset:{(n % 4)*1024}{opt.get('kv_st', ' sc1')}", tag='kvst')
    for n in range(26):
        kvstore(n)
        if 8 <= n < 14:
            m = n + 18
            for q in range(8): b.e(f"v_accvgpr_read_b32 v{48+q}, a{SRC(m)[1]+q}")
            for q in range(4): b.e(f"v_cvt_pk_bf16_f32 v{PK(m)+q}, v{48+2*q}, v{49+2*q}")
    for n in range(26, 32): kvstore(n)
    b.e("v_mov_b32 v12, 1")
    b.e("v_and_b32 v1, 15, v0")
    b.e("v_lshlrev_b32 v1, 2, v1")
    b.e("s_lshr_b32 s6, s33, 1")
    b.e("s_lshl_b32 s6, s6, 7")
    b.e(f"s_add_u32 s6, s6, {WS_FLG}")
    b.blk(["s_cmp_eq_u32 s32, 0", f"s_cselect_b32 s6, s6, {BIG}"])
    SIG = int(opt.get('sig', 21))
    POL = float(opt.get('pol', 26.5))
    b.at(SIG)
    b.blk(["s_mov_b64 exec, 1", "buffer_store_dword v12, v7, s[20:23], s39 offen sc1", "s_mov_b64 exec, -1"])
    b.at(POL)
    b.e("buffer_load_dword v12, v1, s[20:23], s6 offen sc1", tag='poll')
    CK = int(opt.get('ck', 29))
    n_ = 0
    for j in (0, 2, 1, 3, 4, 5, 6):
        for t, s in chunk_ops(('kv', j)):
            if t == 'g':
                b.at(max(CK + n_ * float(opt.get('kvp', 0.09)), {4: 25, 5: 27, 6: 29}.get(j, 0))); n_ += 1
            b.e(s, tag=f'c{16+j}')
    def spinB():
        k.e("s_mov_b32 s59, 0x400000")
        k.label("L_spinB_l")
        k.e(f"s_sleep {opt.get('slp', 4)}")
        k.e("buffer_load_dword v12, v1, s[20:23], s6 offen sc1")
        k.e("s_sub_u32 s59, s59, 1")
        k.e("s_cmp_eq_u32 s59, 0")
        k.e("s_cbranch_scc1 L_spinBx")
        k.e("s_waitcnt vmcnt(0)")
        k.e("v_cmp_ne_u32 vcc, 1, v12")
        k.e("s_cbranch_vccnz L_spinB_l")
        k.label("L_spinBx")
        k.e("s_waitcnt vmcnt(0)")
    ool.append(("L_spinB", spinB, "L_spinBr"))

    b1 = b
    b = Rec()
    srd_rec(b, 60, 40, 7340032)
    RT = [float(x) for x in opt.get('rt', '0,5').split(',')] if '6' in CPF else []
    for x in RT:
        b.at(x)
        b.e("global_load_dword v13, v[14:15], off", tag='keys')
    b.at(17 / SPK)
    b.e(f"s_mov_b32 s3, {WS_KEYS}")
    b.e(f"s_mov_b32 s47, {WS_KEYS + 4096}")
    for i in range(8):
        b.e(f"buffer_load_dwordx4 {V(KY+4*i,4)}, v{VX}, s[20:23], s{3 if i < 4 else 47} offen offset:{(i % 4)*1024} sc1", tag='keys')
    b.at(17 / SPK + 8)
    b.wait_vm('keys')
    b.e(f"v_max_u32 v14, v{KY}, v{KY+1}")
    b.e(f"v_min_u32 v15, v{KY}, v{KY+1}")
    for i in range(2, 32):
        b.e(f"v_med3_u32 v15, v14, v15, v{KY+i}"); b.e(f"v_max_u32 v14, v14, v{KY+i}")
    def wmax(v, sdst):
        for m in ["quad_perm:[1,0,3,2]", "quad_perm:[2,3,0,1]", "row_half_mirror", "row_mirror"]:
            b.blk([f"v_max_u32_dpp {v}, {v}, {v} {m} row_mask:0xf bank_mask:0xf"])
        b.blk([f"v_readlane_b32 s3, {v}, 0", f"v_readlane_b32 s47, {v}, 16"])
        b.blk([f"v_readlane_b32 s4, {v}, 32", f"v_readlane_b32 s5, {v}, 48"])
        b.blk(["s_max_u32 s3, s3, s47", "s_max_u32 s4, s4, s5", f"s_max_u32 s{sdst}, s3, s4"])
    b.e("v_mov_b32 v13, v14")
    wmax("v13", 40)
    b.blk(["v_cmp_eq_u32 vcc, s40, v14"])
    b.blk(["v_cndmask_b32 v13, v14, v15, vcc"])
    wmax("v13", 41)
    for t in range(2):
        b.e(f"s_and_b32 s3, s{40+t}, 0xffff")
        b.e(f"s_sub_u32 s{42+t}, 0xffff, s3")
    for t in range(2):
        b.e(f"v_mov_b32 v60, s{40+t}")
        b.e("v_not_b32 v61, v60")
        b.e("v_ashrrev_i32 v61, 31, v61")
        b.e("v_or_b32 v61, 0x80000000, v61")
        b.e("v_xor_b32 v60, v60, v61")
        b.e("v_and_b32 v60, 0xffff0000, v60")
        b.e("v_mul_f32 v60, 0xbfb8aa3b, v60")
        b.e("v_exp_f32 v60, v60")
        b.e("v_add_f32 v60, 1.0, v60")
        b.e("v_rcp_f32 v60, v60")
        b.e("v_cvt_pk_bf16_f32 v60, v60, v60")
        b.e(f"v_and_b32 v{64+t}, 0xffff0000, v60")
    for r in range(16): b.e(f"v_mov_b32 v{LS+r}, 0")
    WARM = opt.get('warm', '1') == '1'
    if WARM:
        WC = int(opt.get('wc', 4))
        upc = 64 - WC * WC
        seg = upc * 32 * 4 * 128
        bufs = [(94, 7340032), (100, 4194304), (60, 7340032), (68, 7340032)] + ([] if WOT else [(92, 8388608)])
        b.e("s_mul_i32 s3, s34, s34")
        b.e(f"s_mul_i32 s47, s33, {upc}")
        b.e("s_add_u32 s3, s3, s47")
        b.e("s_lshl_b32 s3, s3, 2")
        b.e("s_add_u32 s3, s3, s32")
        b.e("s_lshl_b32 s3, s3, 7")
        b.e(f"s_sub_u32 s3, s3, {512 + WC * WC * 512}")
        b.blk([f"s_cmp_ge_u32 s34, {WC}", "s_cselect_b32 s3, s3, 0", "s_cselect_b32 s40, 512, 0", f"s_cselect_b32 s47, {seg}, 0"])
        first = 0
        for j, (lo, size) in enumerate(bufs):
            b.e(f"v_subrev_u32 v31, {first}, v0")
            b.e("v_mul_lo_u32 v31, v31, s47")
            b.e(f"v_min_u32 v31, {size - seg}, v31")
            if j == 0:
                b.e(f"v_mov_b32 v28, s{lo}"); b.e(f"v_mov_b32 v29, s{lo+1}"); b.e("v_mov_b32 v30, v31")
            else:
                b.e(f"v_mov_b32 v14, s{lo}"); b.e(f"v_mov_b32 v15, s{lo+1}")
                b.blk([f"v_cmp_le_u32 vcc, {first}, v0"])
                b.blk(["v_cndmask_b32 v28, v28, v14, vcc", "v_cndmask_b32 v29, v29, v15, vcc"])
                b.blk(["v_cndmask_b32 v30, v30, v31, vcc"])
            first += -(-size // seg)
        assert first <= 64, first
        b.e("v_add_u32 v30, s3, v30")
        b.e("v_ashrrev_i32 v31, 31, v30")
        b.e("v_lshl_add_u64 v[28:29], v[30:31], 0, v[28:29]")
        b.e("s_mov_b32 s41, 0")
    b.e("v_readfirstlane_b32 s100, v64")
    b.e("v_readfirstlane_b32 s101, v65")
    b.at(SIG)
    for j in range(3): b.e(f"s_mov_b32 s{24+j}, s{60+j}")
    b.e("s_add_u32 s3, s34, 7")
    b.e("s_and_b32 s3, s3, 7")
    b.e("s_lshl_b32 s3, s3, 5")
    b.e("s_add_u32 s3, s3, s33")
    b.e("s_mul_i32 s92, s3, 2341")
    b.e("s_lshr_b32 s92, s92, 16")
    b.e("s_mul_i32 s47, s92, 28")
    b.e("s_sub_u32 s4, s3, s47")
    b.e(f"s_mul_i32 s5, s92, {128*7168}")
    b.e("s_lshl_b32 s47, s4, 8")
    b.e("s_add_u32 s5, s5, s47")
    b.e(f"s_mov_b32 s94, {QSCALE}")
    b.e(f"s_mov_b32 s95, {QSCALE}")
    b.e("s_sub_u32 s55, 15, s34")
    b.e("s_sub_u32 s45, s36, 3")
    b.e("s_sub_u32 s46, s35, 3")
    b.e("s_mov_b32 s54, s44")
    b.e("s_sub_u32 s35, s35, 2")
    b.e("s_sub_u32 s36, s36, 2")
    b2 = b
    b3 = Rec()
    WT0 = float(opt.get('wt0', 18))
    WTB = int(opt.get('wtb', 23))
    WTG = int(opt.get('wtg', 8))
    b3.e("s_lshr_b32 s52, s2, 1")
    b3.e("s_lshl_b32 s52, s52, 16")
    b3.e("s_and_b32 s53, s2, 1")
    b3.e("s_lshl_b32 s53, s53, 10")
    b3.e("s_add_u32 s52, s52, s53")
    b3.e("s_lshl_b32 s53, s32, 14")
    b3.e("s_add_u32 s52, s52, s53")
    srd_rec(b3, 28, 92, 8388608)
    for j in range(8):
        b3.at(WT0 + 2 * (j // WTG))
        b3.blk([f"s_add_u32 m0, s56, {65536 + j * 1024}", f"v_xor_b32 v88, {j * 32}, v{VX}",
                (f"buffer_load_dwordx4 v88, s[28:31], s52 offen{opt.get('wo_ld', '')} lds", 'wo'), "s_add_u32 s52, s52, 2048"])
    b3.e("v_lshrrev_b32 v89, 2, v0")
    b3.e("v_lshlrev_b32 v89, 10, v89")
    b3.e("s_lshl_b32 s53, s32, 8")
    b3.e("s_add_u32 s53, s53, 65536")
    b3.e("v_add_u32 v89, s53, v89")
    b3.e("v_mov_b32 v90, 0xff")
    srd_rec(b3, 28, 66, 16 * WO_NT, WS_WOT)
    b3.e("s_and_b32 s52, s2, 1")
    b3.e("s_lshl_b32 s52, s52, 2")
    b3.e("s_add_u32 s52, s52, s32")
    b3.e(f"s_mul_i32 s52, s52, {2 * WO_NT}")
    b3.e("s_lshr_b32 s53, s2, 1")
    b3.e("s_lshl_b32 s53, s53, 12")
    b3.e("s_add_u32 s52, s52, s53")
    b3.at(WTB)
    for q in range(8):
        b3.e(f"v_and_or_b32 v{92 + (q & 1)}, v{TA+q}, v90, v89")
        for rd in range(2):
            b3.e(f"ds_read_b64_tr_b16 {V(96 + 4*q + 2*rd, 2)}, v{92 + (q & 1)} offset:{rd*16384}", tag='wt')
    for q in range(8):
        b3.at(WTB + 1.2 + 0.5 * q)
        b3.wait_ds('wt')
        b3.e(f"buffer_store_dwordx4 {V(96 + 4*q, 4)}, v{VX}, s[28:31], s52 offen offset:{(q & 3)*1024} sc1", tag='wts')
        if q == 3: b3.e(f"s_add_u32 s52, s52, {WO_NT}")
    b3.e("s_and_b32 s52, s2, 1")
    b3.e("s_lshl_b32 s52, s52, 9")
    b3.e("s_lshr_b32 s93, s2, 1")
    b3.e("s_lshl_b32 s93, s93, 2")
    b3.e("s_add_u32 s52, s52, s93")
    b3.e(f"s_add_u32 s52, s52, {WS_WFL}")
    b3.blk(["s_cmp_eq_u32 s32, 0", f"s_cselect_b32 s52, s52, {BIG}"])
    b3.e("v_mov_b32 v24, 1")
    b3.e("v_mov_b32 v25, 0")
    if not WOT: b3.items = []
    PKM = opt.get('pkm', '0') == '1'
    def conv_items(qb):
        r_ = Rec()
        for s_ in range(4):
            r = QA(2 * s_, qb)
            if PKM:
                for e_ in range(0, 8, 2): r_.e(f"v_pk_mul_f32 {V(r+e_,2)}, {V(r+e_,2)}, s[94:95]")
            else:
                for e_ in range(8): r_.e(f"v_mul_f32 v{r+e_}, s94, v{r+e_}")
            for e_ in range(4): r_.e(f"v_cvt_pk_bf16_f32 v{r+e_}, v{r+2*e_}, v{r+2*e_+1}")
            for e_ in range(4): r_.e(f"v_accvgpr_write_b32 a{Q(qb,s_)+e_}, v{r+e_}")
        r_.items.append(('mark', f'conv{qb}', None))
        return r_.items
    p2_start = len(k.lines)
    XLA = int(opt.get('xla', 5))
    xsched = {}; nx_ = 4
    for kk in range(32):
        xsched[kk] = []
        while nx_ < 32 and nx_ <= kk + XLA and len(xsched[kk]) < 2:
            xsched[kk].append(nx_); nx_ += 1
    for kk in range(32):
        st, ks = kk // 2, kk & 1
        k.stamp(S2 and kk in (0, 4, 8, 12, 16, 20, 24, 28, 31))
        need = [f'x{kk}']
        if ks == 1 and st < 15: need.append(f'w{st+1}')
        if kk == SIG:
            assert not any(it[2] == 'kvst' for it in b1.items), "stores not all issued before SIG"
            need.append('kvst')
        if kk == WTB:
            assert not any(it[0] == 'b' and any(isinstance(x, tuple) for x in it[1]) for it in b3.items)
            need.append('wo')
        if kk == CK:
            assert not b3.items
            need.append('poll')
        if kk == 31: need.append('c16')
        w = [x for x in (k.vm_n(t) for t in need) if x is not None]
        k.e("s_waitcnt " + (f"vmcnt({min(w)}) " if w else "") + "lgkmcnt(0)")
        for t in need: k.use(t)
        if kk == CK:
            assert not any('vcc' in str(it[1]) for it in b2.items)
            k.e("s_cmp_lg_u32 s32, 0")
            k.e("s_cbranch_scc1 L_spinBr")
            k.e("v_cmp_ne_u32 vcc, 1, v12")
            k.e("s_cbranch_vccnz L_spinB")
            k.label("L_spinBr")
        if ks == 1: k.e("s_barrier")
        g = {}; gt = {}
        if kk + 1 < 32:
            for n, grp in enumerate(wreads(kk + 1)):
                g[1 + 3 * n] = (["s_waitcnt lgkmcnt(6)"] if n == 5 else []) + grp
        vm = []
        if ks == 1 and st + 4 < 16: vm += [(t, s, f'w{st+4}') for t, s in chunk_ops(('w', st + 4))]
        for x in xsched.get(kk, []): vm += [(t, s, f'x{x}') for t, s in xn_ops(x)]
        ng = sum(1 for x in vm if x[0] == 'g')
        free = [x for x in range(2, 32) if x not in g]
        pick = [free[(j * len(free)) // ng] for j in range(ng)] if ng else []
        j = 0
        for t, s, tg in vm:
            if t == 'g': g[pick[j]] = [s]; gt[pick[j]] = tg; j += 1
            elif t == 's':
                q = pick[j] - 1
                if q in gt: g[q].append(s)
                else: g.setdefault(q, []).insert(0, s)
            else: g[pick[j - 1]].append(s)
        order = [(db, qb) for db in range(8) for qb in range(4)]
        if kk == 31:
            order = [(db, qb) for qb in range(4) for db in range(8)]
            assert not b2.items, len(b2.items)
            for kb in range(2):
                for s_ in range(4): b2.e(f"ds_read_b128 {A(FR(kb,s_),4)}, v{VY} offset:{(kb*4+s_)*1024}", tag=f'k{kb}')
            b2.at(31 + 12 / 32.0)
            b2.items += conv_items(0) + conv_items(1)
        elif kk > 24:
            for r in range(16): b2.e(f"v_accvgpr_write_b32 a{XR(kk-1,0)+r}, 0")
        for n, (db, qb) in enumerate(order):
            k.e(mfma(V(QA(db, qb), 4), A(WF(kk, db), 4), A(XR(kk, qb), 4), V(QA(db, qb), 4) if kk else "0"))
            if n in g:
                for s in g[n]: k.e(s, tag=gt.get(n))
            else:
                nl = k.ni
                b1.fill(k, kk + n / 32.0)
                if k.ni == nl: b3.fill(k, kk + n / 32.0)
                if k.ni == nl: b2.fill(k, kk + n / 32.0)
    print("phase2 items left", len(b1.items), len(b2.items))
    b1.drain(k)
    grp_ = None
    for ln in k.lines[p2_start:] + ["s_mov_b32 m0, 0"]:
        if ' m0,' in ln:
            assert grp_ is None or (len(set(grp_)) == 1 and len(grp_) == (1 if grp_[0] == 's[28:31]' else 4)), grp_
            grp_ = []
        elif ' lds' in ln: grp_.append(ln.split(', ')[1])
    k.stamp(ST or S2)
    XS = 160
    def ffn_issue():
        for t in range(2):
            k.e(f"s_lshr_b32 s3, s{42+t}, 4")
            k.e(f"s_mul_i32 s3, s3, {XN_RB}")
            k.e(f"s_and_b32 s47, s{42+t}, 15")
            k.e("s_lshl_b32 s47, s47, 4")
            k.e("s_add_u32 s3, s3, s47")
            k.e(f"v_mov_b32 v{28+t}, s3")
        k.e("v_lshrrev_b32 v24, 4, v0")
        k.e("v_and_b32 v25, 15, v0")
        k.e("v_cmp_eq_u32 vcc, 1, v25")
        k.e("s_lshl_b32 s3, s32, 4")
        k.e("v_add_u32 v26, s3, v24")
        k.e("v_cndmask_b32 v28, v28, v29, vcc")
        k.e("v_lshl_add_u32 v28, v24, 8, v28")
        k.e("v_mul_u32_u24 v26, 7168, v26")
        k.e("v_lshlrev_b32 v24, 1, v24")
        k.e("v_xor_b32 v24, v24, v25")
        k.e("v_xor_b32 v25, 8, v24")
        k.e("v_lshl_add_u32 v24, v24, 4, v26")
        k.e("v_lshl_add_u32 v25, v25, 4, v26")
        k.e("s_lshl_b32 s3, s92, 12")
        for q in range(4):
            k.e(f"buffer_load_dwordx4 {A(XS+4*q,4)}, v28, s[20:23], s3 offen offset:{q*1024} sc1")
        ops = []
        for m, srd in enumerate((24, 68)):
            for h in range(2):
                for q in range(4):
                    pre = [f"s_add_u32 m0, s54, {m*32768 + h*16384}"] if q == 0 else []
                    ops.append((pre + [f"s_add_u32 s3, s5, {h*64*7168 + q*27648}"],
                                f"buffer_load_dwordx4 v{24 + (q >> 1)}, {S(srd,4)}, s3 offen offset:{q*1024}{ffn_ld} lds"))
        return ops
    def ffn_finish():
        k.e("v_lshrrev_b32 v24, 4, v0")
        k.e("v_bfe_u32 v25, v0, 2, 2")
        k.e("v_lshl_add_u32 v26, v24, 3, v25")
        k.e("v_lshlrev_b32 v26, 8, v26")
        k.e("v_and_b32 v27, 3, v0")
        k.e("v_lshl_add_u32 v26, v27, 3, v26")
        k.e("v_and_b32 v27, 1, v24")
        k.e("v_lshl_add_u32 v25, v27, 2, v25")
        k.e("s_lshl_b32 s3, s32, 1")
        k.e("v_xor_b32 v25, s3, v25")
        k.e("v_lshl_add_u32 v26, v25, 5, v26")
        k.e("s_sub_u32 s3, s54, s44")
        k.e("v_add_u32 v26, s3, v26")
        k.e("v_xor_b32 v27, 32, v26")
        k.e("s_waitcnt vmcnt(8) lgkmcnt(0)")
        k.use('ffn')
        k.e("s_barrier")
        for m in range(2):
            for q in range(4):
                for j in range(2):
                    for rd in range(2):
                        k.e(f"ds_read_b64_tr_b16 {V(128 + 32*m + 8*q + 4*j + 2*rd, 2)}, v{26+j} offset:{m*32768 + q*8192 + rd*1024}", tag=f'f{m}')
        k.e("v_and_b32 v25, 15, v0")
        k.e("v_mul_u32_u24 v28, 14336, v25")
        k.e("v_lshl_add_u32 v28, v24, 4, v28")
        k.e(f"v_mov_b32 v29, {BIG}")
        k.e("v_cmp_gt_u32 vcc, 2, v25")
        k.e(f"s_mul_i32 s3, s92, {4*14336}")
        k.e("s_lshl_b32 s47, s4, 9")
        k.e("s_add_u32 s3, s3, s47")
        k.e("v_cndmask_b32 v28, v29, v28, vcc")
        k.e("s_lshl_b32 s47, s32, 7")
        k.e("s_add_u32 s3, s3, s47")
        k.e(f"s_add_u32 s3, s3, {WS_HP}")
        for m in range(2):
            k.wait_ds(f'f{m}')
            for q in range(4):
                for j in range(2):
                    d = V(224 + 8 * m + 4 * j, 4)
                    k.e(mfma(d, V(128 + 32*m + 8*q + 4*j, 4), A(XS + 4*q, 4), d if q else "0"))
    def ffn_store():
        k.e("s_cmp_lg_u32 s34, 0")
        k.e(f"s_cselect_b32 s3, s3, {1 << 23}")
        k.e(f"s_add_u32 s7, s3, {2*14336}")
        for m in range(2):
            for j in range(2):
                k.e(f"buffer_store_dwordx4 {V(224 + 8*m + 4*j, 4)}, v28, s[20:23], s{7 if m else 3} offen offset:{j*64} sc1", tag='hps')

    def kread(reg, off, kb):
        return [f"ds_read_b128 {A(FR(kb,s_),4)}, v{reg} offset:{off + (kb*4+s_)*1024}" for s_ in range(4)]
    def vread(reg, off, vg):
        return [f"ds_read_b128 {A(FR(vg,j),4)}, v{reg} offset:{off + (vg*4+j)*1024}" for j in range(4)]
    def qk_mfmas(par, nq, zero=False):
        out = []
        for kb in range(4):
            grp = []
            for qb in range(nq):
                d = V(Sr(par, qb, kb), 4)
                for s_ in range(4):
                    c = d if s_ else ("0" if zero else V(NEGM + 4 * qb, 4))
                    grp.append(mfma(d, A(FR(kb, s_), 4), A(Q(qb, s_), 4), c))
            out.append(grp)
        return out
    def pv_mfmas(par, nq):
        out = []
        for vg in range(4):
            grp = []
            for dd in range(2):
                for qb in range(nq):
                    for ks in range(2):
                        o = A(O(qb, 2 * vg + dd), 4)
                        grp.append(mfma(o, A(FR(vg, 2 * dd + ks), 4), V(P(par, qb, ks), 4), o))
            if vg < nq:
                for ks in range(2):
                    l = V(LS + 4 * vg, 4)
                    grp.append(mfma(l, V(ONES, 4), V(P(par, vg, ks), 4), l))
            out.append(grp)
        return out
    def sm_pairs(par, nq, ks):
        out = []
        for kq in range(2):
            for qb in range(nq):
                s0 = Sr(par, qb, 2 * ks + kq)
                for h in range(2):
                    out.append((s0 + 2 * h, s0 + 2 * h + 1, P(par, qb, ks) + 2 * kq + h))
        return out
    class SM:
        def __init__(self, pairs, first, check):
            self.pairs = pairs; self.ne = 0; self.nc = 0; self.no = 0; self.first = first
            self.tail = [f"v_and_b32 v{T0}, 0x40004000, v{ORR}", f"v_cmp_ne_u32 vcc, 0, v{T0}"] if check else []
            self.e_done = 0; self.extra = []
        def tick(self): self.e_done = self.ne
        def exp_ready(self): return self.ne < 2 * len(self.pairs) and self.ne // 2 - self.nc < 4
        def exp(self):
            j, h = self.ne // 2, self.ne & 1; self.ne += 1
            return f"v_exp_f32 v{ET + 2*(j % 4) + h}, v{self.pairs[j][h]}"
        def plain_avail(self):
            n = min(self.e_done // 2, len(self.pairs)) - self.nc
            n += self.nc // 2 - self.no
            if self.no == len(self.pairs) // 2: n += len(self.tail)
            return n + len(self.extra)
        def plain(self):
            if self.nc < min(self.e_done // 2, len(self.pairs)):
                j = self.nc; self.nc += 1
                return f"v_cvt_pk_bf16_f32 v{self.pairs[j][2]}, v{ET + 2*(j % 4)}, v{ET + 2*(j % 4) + 1}"
            if self.no < self.nc // 2:
                j = self.no; self.no += 1
                a, b = self.pairs[2 * j][2], self.pairs[2 * j + 1][2]
                if self.first and j == 0: return f"v_or_b32 v{ORR}, v{a}, v{b}"
                return f"v_or3_b32 v{ORR}, v{ORR}, v{a}, v{b}"
            if self.no == len(self.pairs) // 2 and self.tail: return self.tail.pop(0)
            if self.extra: return self.extra.pop(0)
            return None
        def left_exp(self): return 2 * len(self.pairs) - self.ne
        def left_plain(self): return len(self.pairs) - self.nc + len(self.pairs) // 2 - self.no + len(self.tail) + len(self.extra)
        def done(self): return self.left_exp() == 0 and self.left_plain() == 0
        def drain(self):
            while not self.done():
                self.tick()
                if self.exp_ready():
                    k.e(self.exp())
                    if self.exp_ready(): k.e(self.exp())
                    x = self.plain()
                    if x: k.e(x)
                else:
                    k.e(self.plain())
    def phase(groups, gtags, reads, rtags, sm, vm, nexttag):
        total = sum(len(g) for g in groups)
        vmpos = {}
        if vm:
            step = max(2, (total - 2) // len(vm))
            for j, x in enumerate(vm): vmpos[1 + j * step] = x
        n = 0
        k.wait_ds(gtags[0])
        for gi, grp in enumerate(groups):
            rq = list(reads[gi])
            for mi, m in enumerate(grp):
                k.e(m)
                sm.tick()
                scal = []
                if n + 1 in vmpos: scal += vmpos[n + 1][0]
                lastm = mi == len(grp) - 1
                if n in vmpos:
                    for s in scal: k.e(s)
                    k.e(vmpos[n][1], tag='kv')
                    slots = 0
                else:
                    for s in scal: k.e(s)
                    if lastm:
                        nt = gtags[gi + 1] if gi + 1 < len(groups) else nexttag
                        if nt: k.wait_ds(nt)
                    slots = 2
                    gaps_left = len([x for x in range(n, n + len(grp) - mi) if x not in vmpos])
                    want_d = len(rq) > 0 and (sm.plain_avail() > 0 or not sm.exp_ready() or len(rq) >= gaps_left - 1)
                    if want_d:
                        k.e(rq.pop(0), tag=rtags[gi]); slots -= 1
                        if rq and (sm.plain_avail() == 0 or len(rq) >= gaps_left):
                            k.e(rq.pop(0), tag=rtags[gi]); slots -= 1
                    if slots == 2 and sm.exp_ready() and not (sm.plain_avail() >= 3 and not rq):
                        k.e(sm.exp()); slots = 0
                    while slots > 0:
                        x = sm.plain()
                        if not x: break
                        k.e(x); slots -= 1
                if lastm:
                    for s in rq: k.e(s, tag=rtags[gi])
                    nt = gtags[gi + 1] if gi + 1 < len(groups) else nexttag
                    if nt: k.wait_ds(nt)
                n += 1
        sm.drain()

    def mask_block(par, qb):
        vr = VRA if qb & 1 else VRB
        for kb in range(4):
            for r in range(4): k.e(f"v_cmp_gt_i32 s[{56+2*r}:{57+2*r}], {16*kb + r}, v{vr}")
            if kb == 0: k.e("s_nop 3")
            for r in range(4):
                x = Sr(par, qb, kb) + r
                k.e(f"v_cndmask_b32 v{x}, v{x}, v{NINF}, s[{56+2*r}:{57+2*r}]")
    def rowmax(par, qb, d, o=k):
        s0 = Sr(par, qb, 0)
        o.e(f"v_max3_f32 v{d}, v{s0}, v{s0+1}, v{s0+2}")
        for r in range(3, 15, 2): o.e(f"v_max3_f32 v{d}, v{d}, v{s0+r}, v{s0+r+1}")
        o.e(f"v_max_f32 v{d}, v{d}, v{s0+15}")
        o.e(f"v_mov_b32 v{T0}, v{d}")
        o.e(f"v_permlane16_swap_b32 v{T0}, v{d}")
        o.e(f"v_max_f32 v{d}, v{d}, v{T0}")
        o.e(f"v_mov_b32 v{T0}, v{d}")
        o.e(f"v_permlane32_swap_b32 v{T0}, v{d}")
        o.e(f"v_max_f32 v{d}, v{d}, v{T0}")
        o.e(f"v_add_f32 v{d}, {opt.get('moff', '0x41f80000')}, v{d}")
    def fallback(par, nq, nqn):
        k.e("s_nop 7")
        for qb in range(nq):
            rowmax(par, qb, 21)
            k.e("v_max_f32 v21, 0, v21")
            for r in range(16): k.e(f"v_sub_f32 v{Sr(par,qb,0)+r}, v{Sr(par,qb,0)+r}, v21")
            if qb < nqn:
                for r in range(16): k.e(f"v_sub_f32 v{Sr(par^1,qb,0)+r}, v{Sr(par^1,qb,0)+r}, v21")
            for r in range(4): k.e(f"v_sub_f32 v{NEGM+4*qb+r}, v{NEGM+4*qb+r}, v21")
            k.e("v_exp_f32 v22, -v21")
            for r in range(4): k.e(f"v_mul_f32 v{LS+4*qb+r}, v{LS+4*qb+r}, v22")
            for r0 in range(0, 32, 8):
                for r in range(8): k.e(f"v_accvgpr_read_b32 v{ET+r}, a{O(qb,0)+r0+r}")
                for r in range(8): k.e(f"v_mul_f32 v{ET+r}, v{ET+r}, v22")
                for r in range(8): k.e(f"v_accvgpr_write_b32 a{O(qb,0)+r0+r}, v{ET+r}")
        for ks in range(2):
            for (s0, s1, pd) in sm_pairs(par, nq, ks):
                k.e(f"v_exp_f32 v{ET}, v{s0}")
                k.e(f"v_exp_f32 v{ET+1}, v{s1}")
                k.e(f"v_cvt_pk_bf16_f32 v{pd}, v{ET}, v{ET+1}")
        k.e("s_nop 1")
    SPLIT = {4: (32, 16, 8), 3: (36, 18, 9), 2: (17, 8, 4), 1: (16, 8, 4), 0: (0, 0, 0)}
    def tile_sm(par, nq, start, check):
        sm = SM(sm_pairs(par, nq, 0) + sm_pairs(par, nq, 1), True, check)
        sm.ne, sm.nc, sm.no = start; sm.e_done = sm.ne
        return sm
    def pack(ngaps, vmg, dsl, sm, limit, last_sm, pre):
        plan = {}
        dsl = list(dsl)
        def exp_ok(): return sm.exp_ready() and (limit is None or sm.ne < limit[0])
        def plain_n():
            n = min(sm.e_done // 2, len(sm.pairs), limit[1] if limit else 1 << 30) - sm.nc
            n += min(sm.nc // 2, limit[2] if limit else 1 << 30) - sm.no
            if limit is None and sm.no == len(sm.pairs) // 2: n += len(sm.tail)
            return n + len(sm.extra)
        def take_plain():
            if limit is not None:
                c_ok = sm.nc < min(sm.e_done // 2, limit[1]); o_ok = sm.no < min(sm.nc // 2, limit[2])
                if not c_ok and not o_ok: return sm.extra.pop(0) if sm.extra else None
                if not c_ok:
                    keep = sm.e_done; sm.e_done = 2 * sm.nc; x = sm.plain(); sm.e_done = keep; return x
            return sm.plain()
        for g in range(-1 if pre else 0, ngaps):
            if g in vmg: sm.tick(); continue
            sm.tick()
            ops = []
            smok = g <= last_sm
            av = [d for d in dsl if d[2] <= g]
            free_to = lambda dl: len([x for x in range(g, dl + 1) if x not in vmg])
            urgent = any(sum(1 for d in dsl if d[3] <= e[3]) >= 2 * free_to(e[3]) - 1 for e in av)
            pn = plain_n() if smok else 0
            if smok and exp_ok() and not urgent and not (av and pn) and not (pn >= 3):
                ops.append((sm.exp(), None))
            else:
                slots = 2
                if av and g >= 0:
                    d = av.pop(0); dsl.remove(d); ops.append((d[0], d[1])); slots -= 1
                    if av and (pn == 0 or sum(1 for x in dsl if x[3] <= av[0][3]) >= 2 * free_to(av[0][3]) - 1):
                        d = av.pop(0); dsl.remove(d); ops.append((d[0], d[1])); slots -= 1
                while slots and smok:
                    x = take_plain()
                    if not x: break
                    ops.append((x, None)); slots -= 1
                if not ops and smok and exp_ok(): ops.append((sm.exp(), None))
            plan[g] = ops
            if g == last_sm:
                while (limit is None and not sm.done()) or (limit is not None and ((sm.ne, sm.nc, sm.no) != limit or sm.extra)):
                    sm.tick()
                    x = sm.exp() if exp_ok() else take_plain()
                    plan[g].append((x, None)); k.overflow += 1
        assert not dsl, dsl
        return plan
    k.overflow = 0
    SLK = int(opt.get('slk', -1))
    def emit_phase(mf, plan, vmg, scal, bg=None, vtag=None):
        for s_, tg in plan.get(-1, []): k.e(s_, tag=tg)
        for g, m in enumerate(mf):
            k.e(m)
            for x in scal.get(g, []):
                if isinstance(x, tuple) and x[0] == 'u': k.use(x[1])
                elif isinstance(x, tuple): k.wait_ds(x[1])
                elif x.endswith(':'): k.label(x[:-1])
                else: k.e(x)
            if g in vmg: k.e(vmg[g], tag=(vtag if ('s39' in vmg[g] or ' s3 ' in vmg[g]) else None))
            else:
                for s_, tg in plan.get(g, []): k.e(s_, tag=tg)
                if bg and not plan.get(g) and g not in scal: bg.fill(k, 99, 3)
        if bg: bg.drain(k)
    def starts(groups):
        out = [0]
        for g in groups: out.append(out[-1] + len(g))
        return out
    def iteration(par, nq, nqn, mask, name, tail):
        kreg, koff = (VX, 32768) if par == 0 else (VY, 0)
        vreg, voff = (VX, 16384) if par == 0 else (VX, 49152)
        nreg, noff = (VY, 0) if par == 0 else (VY, 32768)
        last = nqn == 1
        k.hot = nqn >= 2
        ov0 = k.overflow
        fb, fr = f"L_k2_fb_{name}", f"L_k2_fbr_{name}"
        ool.append((fb, lambda: fallback(par, nq, nqn), fr))
        sm = tile_sm(par, nq, SPLIT[nq], True)
        if par == 0:
            k.e(f"v_xor_b32 v{VX}, 65536, v{VX}")
            k.e(f"v_xor_b32 v{VY}, 65536, v{VY}")
        if nqn:
            k.dq = ['k1'] * 4
            if nq == 4 and WARM: sm.extra = ["v_lshl_add_u64 v[28:29], s[40:41], 0, v[28:29]"]
            grp = qk_mfmas(par ^ 1, nqn); st_ = starts(grp); n1 = st_[-1]
            slack = SLK if nqn <= 2 else 4
            dsl = [(x, 'k2', 0, st_[1] + slack) for x in kread(kreg, koff, 2)] + [(x, 'k3', 0, st_[2] + slack) for x in kread(kreg, koff, 3)] + \
                  [(x, 'v0', st_[1], st_[3] + slack) for x in vread(vreg, voff, 0)] + [(x, 'v1', st_[2], n1 - 1) for x in vread(vreg, voff, 1)]
            scal = {}
            add = lambda g, xs: scal.setdefault(g, []).extend(xs)
            add(st_[1] - 1, [('w', 'k1')]); add(st_[2] - 1, [('w', 'k2')]); add(st_[3] - 1, [('w', 'k3')])
            vmw = "s_waitcnt vmcnt(8)" if last else "s_waitcnt vmcnt(12)"
            if nq == 2:
                add(n1 - 7, ["s_cmp_lt_u32 s37, s52"])
                add(n1 - 6, [f"s_cbranch_scc1 L_nw_{name}", vmw, f"L_nw_{name}:"])
            else:
                add(n1 - 5, [vmw])
            if mask and mask[1]: add(n1 - 4, [f"s_cmp_eq_u32 s37, s{mask[1]}"])
            add(n1 - 3, ([] if 'nochk' in opt else [('u', f'V{par}'), ('u', 'c19' if par == 0 else 'c21'), ('u', 'c20' if par == 0 else 'c22')]) + ["s_barrier"]); add(n1 - 2, [('w', 'v0')]); add(n1 - 1, [f"s_cbranch_vccnz {fb}", fr + ":"])
            vmg = {}
            if not last:
                step = (n1 - 8) / 4
                for j in range(4):
                    q = int(1 + j * step)
                    while q in scal or (j == 0 and q - 1 in scal): q += 1
                    vmg[q] = f"buffer_load_dwordx4 v{VDMA}, s[12:15], s38 offen offset:{j*1024}{kv_ld} lds"
                    if j == 0: scal[q - 1] = ["s_mov_b32 m0, s53" if par == 0 else "s_add_u32 m0, s53, 32768"]
            plan = pack(n1, vmg, dsl, sm, None, n1 - 2, par == 1)
            emit_phase(sum(grp, []), plan, vmg, scal)
        else:
            k.dq = ['v1'] * 4
            sm.drain()
            k.e(f"s_cbranch_vccnz {fb}")
            k.label(fr)
        grp = pv_mfmas(par, nq); st_ = starts(grp); n2 = st_[-1]
        slack = SLK if nq <= 2 else 4
        dsl = [(x, 'v2', 0, st_[1] + slack) for x in vread(vreg, voff, 2)] + [(x, 'v3', 0, st_[2] + slack) for x in vread(vreg, voff, 3)]
        scal = {st_[1] - 1: [('w', 'v1')], st_[2] - 1: [('w', 'v2')], st_[3] - 1: [('w', 'v3')]}
        vmg = {}
        if nqn:
            nx = [vread(VX, 49152, 0), vread(VX, 49152, 1)] if last else [kread(nreg, noff, 0), kread(nreg, noff, 1)]
            dsl += [(x, 'k0', st_[1], st_[3] + slack - 1) for x in nx[0]] + [(x, 'k1', st_[2], n2 - 2) for x in nx[1]]
            if mask:
                mb, mr = f"L_k2_mk_{name}", f"L_k2_mkr_{name}"
                ool.append((mb, lambda: mask_block(par ^ 1, mask[0]), mr))
                scal[0] = [f"s_cbranch_scc1 {mb}" if mask[1] else f"s_branch {mb}", mr + ":"]
            scal[n2 - 2] = [('w', 'k0')]
            if tail: scal[n2 - 3] = [tail[0]]; scal[n2 - 1] = [tail[1]]
            def put(x, lo):
                q = lo
                while q in scal or q in vmg: q += 1
                assert q < n2 - 3, (x, q)
                scal[q] = [x]
            if last:
                ops = ffn_issue()
                for j, (pre, ld) in enumerate(ops):
                    q = 2 + 2 * j
                    vmg[q] = ld
                    scal.setdefault(q - 1, []).extend(pre)
                    if q in scal: scal[q - 1].extend(scal.pop(q))
            else:
                mv = "s_add_u32 m0, s54, 49152" if par == 0 else "s_add_u32 m0, s53, 16384"
                vm = [f"buffer_load_dwordx4 v{VDMA}, s[12:15], s39 offen offset:{j*1024}{kv_ld} lds" for j in range(4)]
                if nq == 4 and WARM: vm.append("global_load_dword v30, v[28:29], off")
                step = (n2 - 4) / len(vm)
                pos = []
                for j in range(len(vm)):
                    q = int(2 + j * step)
                    while q in scal or q in vmg or (j == 0 and q - 1 in scal): q += 1
                    vmg[q] = vm[j]; pos.append(q)
                    if j == 0: scal[q - 1] = [mv]
                if name == "ne":
                    q = 3
                    while any(x in scal or x in vmg for x in (q, q + 1)): q += 1
                    scal[q] = ["s_cmp_eq_u32 s37, s52"]; scal[q + 1] = ["s_cbranch_scc1 L_pubB", "L_pubBr:"]
                    def pubB():
                        k.e("v_mov_b32 v24, 1"); k.e("v_mov_b32 v25, 0")
                        k.e("s_mov_b64 exec, 1")
                        k.e("buffer_store_dword v24, v25, s[20:23], s64 offen sc1")
                        k.e("s_mov_b64 exec, -1")
                    ool.append(("L_pubB", pubB, "L_pubBr"))
                    put("s_add_u32 s37, s37, 1", q + 2)
                else:
                    put("s_add_u32 s37, s37, 1", 1)
                put(f"s_add_u32 s38, s38, {KV_TILE}", 1)
                if par == 1:
                    put("s_xor_b32 s53, s53, 65536", pos[0]); put("s_xor_b32 s54, s54, 65536", pos[0])
                put(f"s_add_u32 s39, s39, {KV_TILE}", pos[3] + 1)
        sm = tile_sm(par ^ 1, nqn, (0, 0, 0), False)
        lastg = n2 - 2 if nqn else n2 - 1
        while lastg in vmg: lastg -= 1
        plan = pack(n2 - 1 if nqn else n2, vmg, dsl, sm, SPLIT[nqn], lastg, False)
        emit_phase(sum(grp, []), plan, vmg, scal, None if nqn else p4_setup(opt), 'ffn' if last else f'V{par}')
        print(f"iteration {name}: overflow ops {k.overflow - ov0}")
        k.hot = False
    def epilogue(q0, srow):
        k.e(f"s_lshl_b32 s3, s{srow}, 20")
        k.e("s_lshl_b32 s47, s33, 15")
        k.e("s_add_u32 s3, s3, s47")
        k.e("s_lshl_b32 s47, s32, 10")
        k.e("v_lshlrev_b32 v248, 4, v0")
        k.e("v_add_u32 v249, s47, v248")
        k.e("s_sub_u32 s47, 7168, s47")
        k.e("v_add_u32 v248, s47, v248")
        for qq in range(2):
            k.e(f"v_rcp_f32 v{250+2*qq}, v{LS+4*(q0+qq)}")
        for qq in range(2):
            k.e(f"v_mov_b32 v{251+2*qq}, v{250+2*qq}")
        for s_ in range(4):
            for qq in (1, 0):
                o = O(q0 + qq, 2 * s_)
                d = 24 + 4 * qq
                for r in range(8): k.e(f"v_accvgpr_read_b32 v{240+r}, a{o+r}")
                for r in range(0, 8, 2): k.e(f"v_pk_mul_f32 {V(240+r,2)}, {V(240+r,2)}, {V(250+2*qq,2)}")
                for r in range(4): k.e(f"v_cvt_pk_bf16_f32 v{d+r}, v{240+2*r}, v{240+2*r+1}")
                k.e(f"buffer_store_dwordx4 {V(d,4)}, v{248+qq}, s[16:19], s3 offen{opt.get('ctx_st',' sc1')}")
            if s_ < 3: k.e("s_add_u32 s3, s3, 8192")

    for kb in range(2, 4):
        for s in kread(VY, 0, kb): k.e(s, tag=f'k{kb}')
    def first_max(o, qb):
        rowmax(0, qb, 22, o)
        if PKM:
            o.e("v_sub_f32 v22, 0, v22"); o.e("v_mov_b32 v23, v22")
            for r in range(0, 16, 2): o.e(f"v_pk_add_f32 {V(Sr(0,qb,0)+r,2)}, {V(Sr(0,qb,0)+r,2)}, v[22:23]")
            for r in range(4): o.e(f"v_mov_b32 v{NEGM+4*qb+r}, v22")
        else:
            for r in range(16): o.e(f"v_sub_f32 v{Sr(0,qb,0)+r}, v{Sr(0,qb,0)+r}, v22")
            for r in range(4): o.e(f"v_sub_f32 v{NEGM+4*qb+r}, 0, v22")
    c = b2
    c.items += conv_items(2) + conv_items(3)
    for r in list(range(XR(30, 0), XR(30, 0) + 16)) + list(range(XR(31, 0), XR(31, 0) + 16)): c.e(f"v_accvgpr_write_b32 a{r}, 0")
    for r in range(4): c.e(f"v_mov_b32 v{ONES+r}, 0x3f803f80")
    c.e(f"v_mov_b32 v{NINF}, 0xff800000")
    first_max(c, 0); first_max(c, 1)
    for qb in range(4):
        while any(it[0] == 'mark' and it[1] == f'conv{qb}' for it in c.items): c.fill(k, 99, 2)
        for kb in range(4):
            k.wait_ds(f'k{kb}')
            if qb == 3 and kb == 2:
                k.e(f"s_waitcnt vmcnt({min(k.vm_n('c18'), k.vm_n('c17'))})")
                assert k.vm_n('wts') is None
                k.use('c17'); k.use('c18')
                k.e("s_barrier")
                if WOT:
                    k.e("s_mov_b64 exec, 1")
                    k.e("buffer_store_dword v24, v25, s[20:23], s52 offen sc1")
                    k.e("s_mov_b64 exec, -1")
                k.e("s_add_u32 s53, s44, 65536")
            for s_ in range(4):
                d = V(Sr(0, qb, kb), 4)
                k.e(mfma(d, A(FR(kb, s_), 4), A(Q(qb, s_), 4), d if s_ else "0"))
                if qb == 3 and kb >= 2: k.e(kread(VY, 32768, kb - 2)[s_], tag=f'n{kb-2}')
                c.fill(k, 99, int(opt.get('pslots', 4)))
    c.drain(k)
    k.e(f"s_mov_b32 s38, {4*KV_TILE}")
    k.e(f"s_mov_b32 s39, {3*KV_TILE + KV_CH}")
    k.e("s_cmp_lg_u32 s34, 0")
    k.e("s_cbranch_scc1 L_k2_nomask0")
    mask_block(0, 3)
    k.label("L_k2_nomask0")
    k.e("s_mov_b32 s37, 0")
    first_max(k, 2); first_max(k, 3)
    SM(sm_pairs(0, 4, 0), True, False).drain()
    k.e("s_waitcnt lgkmcnt(4)")
    k.stamp(ST or SA)

    k.e("s_cmp_eq_u32 s34, 0")
    k.e("s_cbranch_scc1 L_k2_wlast")
    k.label("L_k2_wloop")
    iteration(0, 4, 4, None, "we", [])
    iteration(1, 4, 4, (3, 46), "wo", ["s_cmp_lg_u32 s37, s35", "s_cbranch_scc1 L_k2_wloop"])
    k.label("L_k2_wlast")
    iteration(0, 4, 3, (2, None), "wl", [])
    iteration(1, 3, 2, (1, 45), "tr", [])
    k.stamp(SA)
    if '4' in CPF: emit(code_prefetch("L_k2_fin", "L_p4_end", 32, 56, 160, 164))
    k.e("s_waitcnt vmcnt(9)")
    epilogue(2, 34)
    k.e("s_add_u32 s52, s37, 2")
    k.raw(";@b:2")
    for s in p4_ptr_loads(): k.e(s)
    k.e("s_waitcnt vmcnt(8) lgkmcnt(0)")
    k.stamp(SA)
    k.e("s_cmp_eq_u32 s34, 7")
    k.e("s_cbranch_scc1 L_k2_fin")
    k.label("L_k2_nloop")
    nl0 = len(k.lines)
    iteration(0, 2, 2, None, "ne", [])
    iteration(1, 2, 2, (1, 45), "no", ["s_cmp_lg_u32 s37, s36", "s_cbranch_scc1 L_k2_nloop"])
    if 'dbg_drop' in opt:
        drop = opt['dbg_drop'].split(',')
        k.lines[nl0:] = [x for x in k.lines[nl0:] if not any(d in x and not x.endswith(':') for d in drop)]
    k.label("L_k2_fin")
    k.stamp(SA)
    iteration(0, 2, 1, (0, None), "nl", [])
    iteration(1, 1, 0, None, "fi", [])
    k.stamp(ST or SA)
    k.e("s_nop 7")
    epilogue(0, 55)
    k.stamp(SA)
    ffn_finish()
    k.stamp(SA)
    k.e("v_mov_b32 v24, 1")
    k.e("v_mul_u32_u24 v25, s65, v0")
    k.e("s_waitcnt vmcnt(0)")
    k.e("s_barrier")
    k.e("s_mov_b64 exec, 3")
    k.e("buffer_store_dword v24, v25, s[20:23], s64 offen sc1")
    k.e("s_mov_b64 exec, -1")
    ffn_store()
    k.stamp(ST or SA)
    phase4(k, opt, ool, ST, SA)
    k.stamp_dump('stamp' in opt, 66, 0, 32)
    if 'hold' in opt:
        k.e("s_lshl_b32 s3, s32, 8")
        k.e("s_or_b32 s3, s2, s3")
        k.e(f"s_cmp_lg_u32 s3, {opt.get('holdwg', 0)}")
        if opt.get('holdwg') != '999': k.e("s_cbranch_scc1 L_k2_end")
        k.label("L_hold")
        k.e("s_memrealtime s[4:5]")
        k.e("s_waitcnt lgkmcnt(0)")
        k.e(f"s_sub_u32 s3, s4, s{73 + 2 * int(opt.get('holdk', 0))}")
        k.e(f"s_cmp_lt_u32 s3, {int(opt['hold']) * 100}")
        k.e("s_cbranch_scc1 L_hold")
    k.label("L_k2_end")
    k.e("s_endpgm")
    hotool = [x for x in ool if x[0].startswith(("L_f2", "L_c3", "L_spinC", "L_yA", "L_yB", "L_yC"))]
    for lab, fn, ret in hotool + [("L_p4_end", None, None)] + [x for x in ool if x not in hotool]:
        k.label(lab)
        if fn is None: continue
        k.win = []; k.dq = []
        fn()
        k.e(f"s_branch {ret}")
    return k.wrap(256, 256), f"; @launch {'kernel=' + KNAME + ' ' if 'aslist' in opt else ''}grid=(256,1,1) block=(256,1,1) lds={K12_LDS}"
```

```python
from fw import *
from layout import *
from p4 import rbf2, silu_n, srd_rec, p4_ptr_loads
BIG = 0x7ff00000
VC, VWB, VW, TA, VO, VROW, G, L7, L3, T1, T2, VZ, VF = 112, 113, 114, 115, 119, 120, 121, 122, 123, 124, 125, 126, 127
GTMP, XP, STT, GT, YB = 2, 18, 34, 42, 80
SPARE = 131072

def p4_setup(opt):
    b = Rec()
    srd_rec(b, 60, 8, 7340032)
    srd_rec(b, 68, 10, 4194304)
    srd_rec(b, 56, 40, 4194304)
    b.e("s_bfe_u32 s6, s2, 0x20001")
    b.e("s_lshr_b32 s7, s34, 1")
    b.e("s_lshl_b32 s45, s7, 2")
    b.e("s_add_u32 s46, s45, s6")
    b.e("s_sub_u32 s46, 15, s46")
    b.e("s_sub_u32 s45, 12, s45")
    b.e("s_add_u32 s45, s45, s6")
    b.blk(["s_cmp_lt_u32 s7, 2", "s_cselect_b32 s45, s46, s45"])
    b.e("s_and_b32 s46, s2, 1")
    b.e("s_lshl_b32 s46, s46, 3")
    b.e("s_bfe_u32 s6, s2, 0x30003")
    b.e("s_add_u32 s46, s46, s6")
    for j in range(4): b.e(f"s_mov_b32 s{48+j}, {j*15360}")
    b.e("s_lshl_b32 s35, s32, 13")
    b.e(f"s_add_u32 s35, s35, {SPARE}")
    b.e("s_and_b32 s52, s46, 1")
    b.e("s_lshl_b32 s6, s45, 20")
    b.e("s_lshl_b32 s7, s52, 19")
    b.e("s_add_u32 s6, s6, s7")
    b.e(f"s_add_u32 s6, s6, {WS_CTX}")
    srd_rec(b, 8, 66, 524288, "s6")
    b.e("s_lshr_b32 s7, s46, 1")
    b.e("s_lshl_b32 s7, s7, 8")
    b.e("s_lshl_b32 s6, s52, 22")
    b.e("s_add_u32 s6, s6, s7")
    srd_rec(b, 12, 94, 0, "s6")
    b.e("s_sub_u32 s14, 4194304, s7")
    srd_rec(b, 28, 94, 8388608)
    b.e("s_lshl_b32 s7, s46, 7")
    b.e("s_lshl_b32 s36, s45, 18")
    b.e("s_add_u32 s36, s36, s7")
    b.e("s_and_b32 s94, s7, 128")
    b.e("s_lshl_b32 s38, s45, 7")
    b.e("s_lshl_b32 s6, s52, 6")
    b.e("s_add_u32 s38, s38, s6")
    b.e(f"s_add_u32 s38, s38, {WS_CFL}")
    b.e("s_lshl_b32 s52, s32, 11")
    b.e(f"v_lshlrev_b32 v{VC}, 4, v0")
    b.e(f"v_lshrrev_b32 v{G}, 4, v0")
    b.e(f"v_and_b32 v{L7}, 7, v0")
    b.e(f"v_lshrrev_b32 v{L3}, 3, v0")
    b.e(f"v_lshlrev_b32 v{T1}, 1, v{G}")
    b.e(f"v_xor_b32 v{T1}, v{T1}, v{L7}")
    b.e(f"v_lshlrev_b32 v{T1}, 4, v{T1}")
    b.e(f"v_lshl_add_u32 v{VWB}, v{L3}, 11, v{T1}")
    b.e("s_lshr_b32 s6, s32, 1")
    b.e("s_lshl_b32 s6, s6, 16")
    b.e("s_and_b32 s7, s32, 1")
    b.e("s_lshl_b32 s7, s7, 7")
    b.e("s_xor_b32 s7, s7, s94")
    b.e("s_xor_b32 s7, s7, 128")
    b.e("s_add_u32 s6, s6, s7")
    b.e(f"v_add_u32 v{VW}, s6, v{VWB}")
    b.e(f"v_lshrrev_b32 v{T1}, 2, v0")
    b.e(f"v_bfe_u32 v{VZ}, v0, 3, 2")
    b.e(f"v_lshlrev_b32 v{T1}, 7, v{T1}")
    b.e(f"v_and_b32 v{T2}, 3, v0")
    b.e(f"v_lshl_add_u32 v{T1}, v{T2}, 3, v{T1}")
    b.e(f"v_lshl_add_u32 v{TA}, v{VZ}, 5, v{T1}")
    for cb in range(1, 4): b.e(f"v_xor_b32 v{TA+cb}, {cb*32}, v{TA}")
    b.e("s_lshl_b32 s6, s32, 5")
    b.e(f"v_add_u32 v{VROW}, s6, v{L3}")
    b.e(f"v_lshlrev_b32 v{VO}, 11, v{VROW}")
    b.e(f"v_lshl_add_u32 v{VO}, v{L7}, 4, v{VO}")
    b.e(f"v_mov_b32 v{VZ}, 0")
    b.e(f"v_lshlrev_b32 v{VF}, 2, v{L7}")
    return b

def phase4(k, opt, ool, ST, SA):
    N1 = int(opt.get('n1', 32))
    N2 = 64 - N1
    assert N1 % 2 == 0 and N2 % 4 == 0 and N2 <= 32
    units = [(n, s_) for n in range(N1) for s_ in (1, 0)] + [(n, 1) for n in range(N1, 64)] + [(n, 0) for n in range(N1, 64)]
    NS = 32
    SP = N1 // 2 + N2 // 4
    ACC = lambda side, rb, cb: 128 + ((side * 2 + rb) * 4 + cb) * 4
    WF = lambda u, cb: 192 + (u & 3) * 16 + cb * 4
    XI = 160
    FL = int(opt.get('fl', 2))
    CF = lambda n, rb: (n % 32) * 8 + rb * 4
    TB = 12
    WDI = int(opt.get('wdi', 3))
    CDI = int(opt.get('cdi', 3))
    def w_ops(st):
        if st >= NS: return []
        ops = [('s', f"s_add_u32 m0, s44, {(st % 8)*16384}")]
        ops += [('g', f"buffer_load_dwordx4 v{VW}, s[12:15], s{48+j} offen offset:{j*1024} lds") for j in range(4)]
        if st + 1 == N1 // 2: ops.append(('v', f"v_add_u32 v{VW}, s95, v{VWB}"))
        elif st + 1 == SP: ops += [('s2', "s_xor_b32 s95, s95, 128"), ('v', f"v_add_u32 v{VW}, s95, v{VWB}")]
        else: ops.append(('v', f"v_add_u32 v{VW}, {(2 if st < N1 // 2 else 4) * 65536}, v{VW}"))
        return ops
    def c_ops(n):
        return [('g', f"buffer_load_dwordx4 {A(CF(n,rb),4)}, v{VC}, s[8:11], s52 offen offset:{rb*1024} sc1") for rb in range(2)] + \
               [('s2', "s_add_u32 s52, s52, 8192")]
    def ksteps_of(st):
        return sorted({units[4 * st + j][0] for j in range(4)}) if st < SP else []
    def wread(u):
        st = u // 4
        base = TA if (st % 8) < 4 else TB
        return [[f"ds_read_b64_tr_b16 {V(WF(u,cb)+2*rd,2)}, v{base+cb} offset:{(st % 4)*16384 + (u % 4)*4096 + rd*2048}" for rd in range(2)] for cb in range(4)]
    def col3(part):
        k.e("s_bfe_u32 s3, s2, 0x40003")
        k.e("s_lshl_b32 s3, s3, 2")
        k.e("s_add_u32 s3, s3, s32")
        k.e("s_lshl_b32 s3, s3, 15")
        k.e("s_and_b32 s7, s2, 1")
        k.e("s_lshl_b32 s7, s7, 10")
        k.e("s_add_u32 s3, s3, s7")
        k.e(f"s_add_u32 s3, s3, {384 + part * 1024 * 2048}")
        k.e("v_and_b32 v1, 15, v0")
        k.e("v_lshlrev_b32 v1, 11, v1")
        k.e("v_lshrrev_b32 v11, 5, v0")
        k.e("v_lshl_add_u32 v1, v11, 22, v1")
        k.e("buffer_load_dword v11, v1, s[28:31], s3 offen")
    def gates(o, p, ysrc=None):
        g0 = GT + 8 * p
        if o is not k and opt.get('gpk', '0') == '0': return gates_plain(o, p)
        pr = lambda r: V(r, 2)
        st_ = V(STT + 2 * p, 2)
        for d in range(4):
            o.e(f"v_lshlrev_b32 v{g0+2*d}, 16, v{XP+4*p+d}")
            o.e(f"v_and_b32 v{g0+2*d+1}, 0xffff0000, v{XP+4*p+d}")
        for d in range(4): o.e(f"v_pk_add_f32 {pr(g0+2*d)}, {pr(g0+2*d)}, {st_} op_sel_hi:[1,0] neg_lo:[0,1] neg_hi:[0,1]")
        for d in range(4): rbf2(o, g0 + 2*d, g0 + 2*d + 1, GTMP + d)
        for d in range(4): o.e(f"v_pk_mul_f32 {pr(g0+2*d)}, {pr(g0+2*d)}, {st_} op_sel:[0,1] op_sel_hi:[1,1]")
        for d in range(4): rbf2(o, g0 + 2*d, g0 + 2*d + 1, GTMP + d)
        if ysrc is not None:
            for d in range(4): o.e(f"v_pk_add_f32 {pr(g0+2*d)}, {pr(g0+2*d)}, {pr(ysrc+2*d)}")
            for d in range(4): rbf2(o, g0 + 2*d, g0 + 2*d + 1, GTMP + d)
        for e_ in range(8): o.e(f"v_mul_f32 v{GTMP+e_}, 0xbfb8aa3b, v{g0+e_}")
        for e_ in range(8): o.e(f"v_exp_f32 v{GTMP+e_}, v{GTMP+e_}")
        for e_ in range(8): o.e(f"v_add_f32 v{GTMP+e_}, 1.0, v{GTMP+e_}")
        for e_ in range(8): o.e(f"v_rcp_f32 v{GTMP+e_}, v{GTMP+e_}")
        for d in range(4): o.e(f"v_pk_mul_f32 {pr(g0+2*d)}, {pr(g0+2*d)}, {pr(GTMP+2*d)}")
        for d in range(4): rbf2(o, g0 + 2*d, g0 + 2*d + 1, GTMP + d)
    def gates_plain(o, p):
        g0 = GT + 8 * p
        for d in range(4):
            o.e(f"v_lshlrev_b32 v{g0+2*d}, 16, v{XP+4*p+d}")
            o.e(f"v_and_b32 v{g0+2*d+1}, 0xffff0000, v{XP+4*p+d}")
        for e_ in range(8): o.e(f"v_sub_f32 v{g0+e_}, v{g0+e_}, v{STT+2*p}")
        for d in range(4): rbf2(o, g0 + 2*d, g0 + 2*d + 1, GTMP + d)
        for e_ in range(8): o.e(f"v_mul_f32 v{g0+e_}, v{g0+e_}, v{STT+2*p+1}")
        for d in range(4): rbf2(o, g0 + 2*d, g0 + 2*d + 1, GTMP + d)
        silu_n(o, [g0 + e_ for e_ in range(8)], [GTMP + e_ for e_ in range(8)])
        for d in range(4): rbf2(o, g0 + 2*d, g0 + 2*d + 1, GTMP + d)
    def poll_loop(lab, off, vo, vd, slp=8):
        k.e("s_mov_b32 s47, 0x400000")
        k.label(lab)
        k.e(f"buffer_load_dword v{vd}, v{vo}, s[20:23], {off} offen sc1")
        k.e("s_sub_u32 s47, s47, 1")
        k.e("s_waitcnt vmcnt(0)")
        k.e("s_cmp_eq_u32 s47, 0")
        k.e(f"s_cbranch_scc1 {lab}x")
        k.e(f"v_cmp_ne_u32 vcc, 1, v{vd}")
        k.e(f"s_cbranch_vccz {lab}x")
        k.e(f"s_sleep {slp}")
        k.e(f"s_branch {lab}")
        k.label(lab + "x")

    C3 = int(opt.get('c3', 2))
    k.e("s_mov_b32 s3, s36")
    for p in range(4):
        k.e(f"buffer_load_dwordx4 {V(XP+4*p,4)}, v{VO}, s[56:59], s3 offen", tag='x')
        if p < 3: k.e("s_add_u32 s3, s3, 16384")
    k.e("s_lshl_b32 s3, s45, 10")
    k.e(f"s_add_u32 s3, s3, {WS_STATS}")
    k.e(f"v_lshlrev_b32 v{T1}, 3, v{VROW}")
    for p in range(4):
        k.e(f"buffer_load_dwordx2 {V(STT+2*p,2)}, v{T1}, s[20:23], s3 offen offset:{p*64} sc1", tag='x')
    k.e("v_and_b32 v10, 15, v0")
    k.e("v_lshlrev_b32 v10, 2, v10")
    k.e(f"s_add_u32 s95, s32, {N1}")
    k.e("s_lshl_b32 s95, s95, 16")
    k.e("s_add_u32 s95, s95, s94")
    k.e("s_xor_b32 s95, s95, 128")
    WE = int(opt.get('we', 2))
    for st in range(WE):
        for t, s in w_ops(st): k.e(s, tag=f'w{st}')
    k.e(f"buffer_load_dword v{T1}, v10, s[20:23], s38 offen sc1", tag='cp')
    for cb in range(4): k.e(f"v_add_u32 v{TB+cb}, 65536, v{TA+cb}")
    k.e("s_and_b32 s39, s2, 15")
    k.e("s_lshr_b32 s37, s2, 4")
    k.e("s_sub_u32 s37, s37, 2")
    k.e("s_lshl_b32 s54, s37, 2")
    k.e("s_add_u32 s54, s54, s32")
    k.e("s_lshl_b32 s3, s54, 17")
    k.e("s_lshl_b32 s7, s39, 7")
    k.e("s_add_u32 s3, s3, s7")
    k.e("s_cmp_ge_u32 s2, 32")
    k.e(f"s_cselect_b32 s3, s3, {BIG}")
    k.e(f"v_add_u32 v{T2}, s3, v{VWB}")
    def wd_dma():
        n0 = len(k.vq)
        for q in range(2):
            k.e(f"s_add_u32 m0, s35, {q*4096}")
            for j in range(4):
                k.e(f"buffer_load_dwordx4 v{T2}, s[60:63], s{48+j} offen offset:{j*1024} lds", tag='wd')
            if q == 0: k.e(f"v_add_u32 v{T2}, 65536, v{T2}")
        del k.vq[n0:]
    k.e("s_mov_b32 s40, 0")
    k.wait_vm('x')
    GE = int(opt.get('ge', 1)); GM = int(opt.get('gm', 1))
    for p in range(GE): gates(k, p)
    k.wait_vm('cp')
    k.e(f"v_cmp_ne_u32 vcc, 1, v{T1}")
    k.e("s_cbranch_vccnz L_spinC")
    k.label("L_spinCr")
    def spinC():
        wd_dma()
        k.e("s_mov_b32 s40, 1")
        poll_loop("L_spinC_l", "s38", 10, T1, opt.get('slpc', 4))
    ool.append(("L_spinC", spinC, "L_spinCr"))
    SO = opt.get('stamp') == 'o'
    k.stamp(ST or SA or SO)
    for st in range(max(CDI, WDI)):
        if st < CDI:
            for n in ksteps_of(st):
                for t, s in c_ops(n): k.e(s, tag=f'c{n}')
        if WE <= st < WDI:
            for t, s in w_ops(st): k.e(s, tag=f'w{st}')
        if st == 1:
            for p in range(GE, GE + GM): gates(k, p)
    k.e("s_cmp_lg_u32 s40, 0")
    k.e("s_cbranch_scc1 L_nowd")
    wd_dma()
    k.label("L_nowd")
    if C3:
        k.e("s_cmp_lt_u32 s2, 128")
        k.e("s_cbranch_scc1 L_noc3")
        col3(0)
        k.vq.pop()
        k.label("L_noc3")

    b = Rec()
    b.e(f"v_mov_b32 v{T2}, 1")
    b.e("s_lshl_b32 s6, s4, 3")
    b.e("s_add_u32 s6, s6, s92")
    b.e("s_lshl_b32 s6, s6, 2")
    b.e(f"s_add_u32 s6, s6, {WS_HFL}")
    b.blk(["s_cmp_eq_u32 s32, 0", "s_cselect_b32 s6, s6, s64", "s_cmp_lg_u32 s34, 0", f"s_cselect_b32 s6, s6, {BIG}"])
    b.blk(["s_mov_b64 exec, 1", f"buffer_store_dword v{T2}, v{VZ}, s[20:23], s6 offen sc1", "s_mov_b64 exec, -1"])
    b.e("s_lshl_b32 s40, s45, 2")
    b.e("s_add_u32 s40, s40, s32")
    b.blk(["s_lshr_b32 s3, s42, 5", "s_lshr_b32 s47, s43, 5", "s_cmp_eq_u32 s3, s40", "s_cselect_b32 s53, 1, 0",
           "s_cmp_eq_u32 s47, s40", "s_cselect_b32 s53, 1, s53", "s_mov_b32 s40, 0"])
    b.e("s_lshl_b32 s41, s46, 7")
    b.e(f"s_add_u32 s41, s41, {WS_YFL}")
    b.e("s_lshl_b32 s55, s46, 13")
    b.e(f"s_add_u32 s55, s55, {WS_YP}")
    srd_rec(b, 16, 66, 8 << 20, WS_XCH)
    b.e("s_lshl_b32 s24, s2, 2")
    b.e("s_add_u32 s24, s24, s32")
    b.e("s_lshl_b32 s25, s24, 13")
    b.e(f"s_xor_b32 s26, s25, {32 << 13}")
    b.e("s_lshl_b32 s24, s24, 2")
    b.e("s_xor_b32 s27, s24, 128")
    b.e(f"s_add_u32 s24, s24, {WS_XFL}")
    b.e(f"s_add_u32 s27, s27, {WS_XFL}")
    F2 = float(opt.get('f2', 4)); FD = float(opt.get('f2d', 2.4))
    b0 = Rec()
    ev = [(F2 + j * FD, "s_cmp_ge_u32 s2, 32", f"L_f2{x}") for j, x in enumerate("ABCE")]
    if C3: ev.append((float(opt.get('c3t', 9.5)), "s_cmp_ge_u32 s2, 128", "L_c31")); ool.append(("L_c31", lambda: col3(1), "L_c31r"))
    for t_, c_, l_ in sorted(ev):
        b0.at(t_); b0.blk([c_, f"s_cbranch_scc1 {l_}", l_ + "r:"])
    for p in range(GE + GM, 4): gates(b, p)
    b.items.append(('log', 'gates done', None))
    PS = float(opt.get('k3_poll', 19))
    b.at(PS)
    b.blk(["s_cmp_lg_u32 s53, 0", "s_cbranch_scc1 L_yA", "L_yAr:"])
    b.at(PS + 2.5)
    b.blk(["s_cmp_lg_u32 s53, 0", "s_cbranch_scc1 L_yB", "L_yBr:"])
    b.at(PS + 4.5)
    b.blk(["s_cmp_lg_u32 s40, 0", "s_cbranch_scc1 L_yC", "L_yCr:"])
    b0.at(SP + 0.15)
    b0.e(f"v_add_u32 v10, 4096, v{VC}")
    for j in range(8):
        b0.e(f"buffer_store_dwordx4 {V(ACC(1, 0, 0) + 4*j, 4)}, v{VC if j < 4 else 10}, s[16:19], s26 offen offset:{(j & 3)*1024} sc1", tag='xs')
    b0.e("v_mov_b32 v16, 1")
    b0.at(SP + float(opt.get('xf', 3.2)))
    b0.wait_vm('xs')
    b0.blk(["s_mov_b64 exec, 1", f"buffer_store_dword v16, v{VZ}, s[20:23], s27 offen sc1", "s_mov_b64 exec, -1"])
    b0.at(SP + float(opt.get('xpl', 4.6)))
    b0.e(f"buffer_load_dword v17, v{VZ}, s[20:23], s24 offen sc1", tag='xp')
    b0.at(SP + float(opt.get('xck', 5.8)))
    b0.wait_vm('xp')
    b0.blk(["v_cmp_ne_u32 vcc, 1, v17", "s_mov_b32 s33, 0", "s_cbranch_vccnz L_xno"] +
           [(f"buffer_load_dwordx4 {V(XI + 4*j, 4)}, v{VC if j < 4 else 10}, s[16:19], s25 offen offset:{(j & 3)*1024} sc1", '!') for j in range(8)] +
           ["s_mov_b32 s33, 1", "L_xno:"])

    k.wait_vm('w0')
    k.use('hps')
    k.e("s_barrier")
    for u in range(FL):
        for grp in wread(u):
            for s in grp: k.e(s, tag=f'f{u}')
    BS = int(opt.get('k3_bs', 5))
    cq = [n for st in range(CDI, SP) for n in ksteps_of(st)]
    for st in range(NS):
        k.stamp(SO and st % 4 == 0)
        vm = [(t, s, f'w{st+WDI}') for t, s in w_ops(st + WDI)]
        for n in ksteps_of(st + CDI): vm += [(t, s, f'c{n}') for t, s in c_ops(n)]
        g = {}; gt = {}; scal = {}
        for j in range(4):
            u = 4 * st + j + FL
            if u < 4 * NS:
                for q, grp in enumerate(wread(u)):
                    x = 8 * j + (q + (q > 1) if FL == 1 else 2 * q)
                    g[x] = grp; gt[x] = f'f{u}'
        free = [x for x in range(32) if x not in g]
        ng = sum(1 for x in vm if x[0] == 'g')
        pick = [free[(2 * j + 1) * len(free) // (2 * ng)] for j in range(ng)] if ng else []
        j = 0
        for t, s, tg in vm:
            if t == 'g': g[pick[j]] = [s]; gt[pick[j]] = tg; j += 1
            elif t == 's': scal.setdefault(0, []).append(s)
            else: g[pick[j - 1]].append(s)
        for j in range(4):
            u = 4 * st + j
            n, side = units[u]
            k.wait_vm(f'c{n}')
            if u == 0: k.wait_ds('f0')
            first = n == 0
            for cb in range(4):
                for rb in range(2):
                    m = 8 * j + 2 * cb + rb
                    d = V(ACC(side, rb, cb), 4)
                    k.e(mfma(d, V(WF(u, cb), 4), A(CF(n, rb), 4), "0" if first else d))
                    mb = 31 - 8 * FL
                    if m == mb - 3 and st + 1 < NS: k.wait_vm(f'w{st+1}')
                    if m == mb - 1 and st + 1 < NS: k.e("s_barrier")
                    if m % 8 == (7 if FL == 1 else 4): k.wait_ds(f'f{u+1}')
                    for s in scal.get(m, []): k.e(s)
                    if m in g:
                        for s in g[m]: k.e(s, tag=gt.get(m))
                        if st < SP and g[m][0].startswith('ds_') and b.items and b.items[0][0] == 'i' and b.cost(b.items[0]) == 1 \
                                and b.items[0][1].startswith('v_'):
                            b.fill(k, st + m / 32.0, int(opt.get('k3_ds', 1)))
                    else:
                        nl = k.ni
                        b0.fill(k, st + m / 32.0, 2)
                        if k.ni == nl: b.fill(k, st + m / 32.0, BS)
    print("phase4 items left", len(b.items), len(b0.items))
    b0.drain(k); b.drain(k)
    k.stamp(ST or SO)
    k.e(f"v_and_b32 v{T1}, 15, v0")
    k.e(f"v_lshlrev_b32 v74, 8, v{T1}")
    k.e("v_add_u32 v74, s35, v74")
    k.e(f"v_xor_b32 v{T1}, v{T1}, v{G}")
    k.e(f"v_lshl_add_u32 v74, v{T1}, 4, v74")
    for cb in range(1, 4): k.e(f"v_xor_b32 v{74+cb}, {64*cb}, v74")
    k.e(f"v_lshlrev_b32 v{T2}, 1, v{L7}")
    k.e(f"v_xor_b32 v{T1}, v{L3}, v{T2}")
    k.e(f"v_lshlrev_b32 v12, 8, v{L3}")
    k.e("v_add_u32 v12, s35, v12")
    k.e(f"v_lshl_add_u32 v12, v{T1}, 4, v12")
    k.e("v_xor_b32 v13, 16, v12")
    k.e("v_xor_b32 v14, 128, v12")
    k.e("v_xor_b32 v15, 144, v12")
    k.e("s_cmp_lg_u32 s53, s40")
    k.e("s_cbranch_scc1 L_ysl")
    k.label("L_yslr")
    k.e("s_cmp_eq_u32 s33, 0")
    k.e("s_cbranch_scc1 L_spinX")
    k.label("L_spinXr")
    def spinX():
        poll_loop("L_spinXl", "s24", VZ, 17, 1)
        for j in range(8):
            k.e(f"buffer_load_dwordx4 {V(XI + 4*j, 4)}, v{VC if j < 4 else 10}, s[16:19], s25 offen offset:{(j & 3)*1024} sc1")
    ool.append(("L_spinX", spinX, "L_spinXr"))
    XU = 80
    for p in range(4):
        for d in range(4):
            k.e(f"v_lshlrev_b32 v{XU+8*p+2*d}, 16, v{XP+4*p+d}")
            k.e(f"v_and_b32 v{XU+8*p+2*d+1}, 0xffff0000, v{XP+4*p+d}")
    k.e("s_waitcnt vmcnt(0)")
    for j in range(8):
        a = ACC(0, 0, 0) + 4 * j
        for e_ in (0, 2): k.e(f"v_pk_add_f32 {V(a+e_,2)}, {V(a+e_,2)}, {V(XI+4*j+e_,2)}")
        k.e(f"ds_write_b128 v{74 + (j & 3)}, {V(a,4)} offset:{(j >> 2)*4096}")
    for p in range(4):
        for h in range(2):
            k.e(f"ds_read_b128 {V(192 + 8*p + 4*h, 4)}, v{12 + h + 2*(p & 1)} offset:{p*2048}", tag=f'r{p}')
    for p in range(4):
        b_ = 192 + 8 * p; t_ = 224 + 4 * p
        k.wait_ds(f'r{p}')
        for d in range(4): rbf2(k, b_ + 2*d, b_ + 2*d + 1, t_ + d)
        for e_ in range(0, 8, 2): k.e(f"v_pk_mul_f32 {V(b_+e_,2)}, {V(b_+e_,2)}, {V(GT+8*p+e_,2)}")
        for d in range(4): rbf2(k, b_ + 2*d, b_ + 2*d + 1, t_ + d)
        for e_ in range(0, 8, 2): k.e(f"v_pk_add_f32 {V(b_+e_,2)}, {V(b_+e_,2)}, {V(XU+8*p+e_,2)}")
        for d in range(4): k.e(f"v_cvt_pk_bf16_f32 v{t_+d}, v{b_+2*d}, v{b_+2*d+1}")
        k.e(f"buffer_store_dwordx4 {V(t_,4)}, v{VO}, s[68:71], s36 offen{opt.get('out_st', ' sc1')}")
        if p < 3: k.e("s_add_u32 s36, s36, 16384")
    k.stamp(ST or SA)

    H0 = 74
    WN = int(opt.get('f2w', 16))
    def f2A():
        k.e("s_lshr_b32 s5, s54, 1")
        k.e("s_lshl_b32 s5, s5, 5")
        k.e(f"s_add_u32 s5, s5, {WS_HFL}")
        k.e(f"buffer_load_dword v{T2}, v{VF}, s[20:23], s5 offen sc1")
    def f2B():
        k.e(f"s_waitcnt vmcnt({WN})")
        k.e(f"v_cmp_ne_u32 vcc, 1, v{T2}")
        k.e("s_cbranch_vccz L_f2lx")
        poll_loop("L_f2l", "s5", VF, T2)
        k.e("s_lshl_b32 s3, s54, 8")
        k.e(f"s_add_u32 s3, s3, {WS_HP}")
        k.e(f"v_mul_u32_u24 v{T1}, 14336, v{G}")
        k.e(f"v_and_b32 v{T2}, 15, v0")
        k.e(f"v_lshl_add_u32 v{T1}, v{T2}, 4, v{T1}")
        for j in range(8):
            k.e(f"buffer_load_dwordx4 {V(H0 + 4*j, 4)}, v{T1}, s[20:23], s3 offen sc1")
            if j < 7: k.e(f"s_add_u32 s3, s3, {4*14336}")
    def f2C():
        for cb in range(4): k.e(f"v_add_u32 v{106+cb}, s35, v{TA+cb}")
        k.e(f"s_waitcnt vmcnt({WN}) lgkmcnt(0)")
        k.use('wd')
        for j in range(1, 8):
            for r in range(0, 4, 2): k.e(f"v_pk_add_f32 {V(H0+r,2)}, {V(H0+r,2)}, {V(H0+4*j+r,2)}")
        for r in range(0, 4, 2): rbf2(k, H0 + r, H0 + r + 1, T2)
        for r in range(4): k.e(f"v_mov_b32 v{82+r}, v{H0+r}")
        for r in range(4): k.e(f"v_permlane32_swap_b32 v{82+r}, v{H0+r}")
        silu_n(k, [82 + r for r in range(4)], [90 + r for r in range(4)])
        for r in range(0, 4, 2): rbf2(k, 82 + r, 83 + r, T2)
        for r in range(4): k.e(f"v_mul_f32 v{H0+r}, v{H0+r}, v{82+r}")
        for r in range(2): k.e(f"v_cvt_pk_bf16_f32 v{90+r}, v{H0+2*r}, v{H0+2*r+1}")
        k.e(f"v_and_b32 v{T1}, 1, v{G}")
        k.e(f"v_lshlrev_b32 v{T1}, 8, v{T1}")
        k.e(f"v_and_b32 v{T2}, 15, v0")
        k.e(f"v_lshl_add_u32 v{T1}, v{T2}, 3, v{T1}")
        k.e(f"v_add_u32 v{T1}, s35, v{T1}")
        for cb in range(4):
            for rd in range(2):
                k.e(f"ds_read_b64_tr_b16 {V(74 + 4*cb + 2*rd, 2)}, v{106+cb} offset:{rd*2048}")
        k.e(f"ds_write_b64 v{T1}, v[90:91]")
        k.e(f"v_and_b32 v{T1}, 1, v0")
        k.e(f"v_lshlrev_b32 v{T1}, 8, v{T1}")
        k.e(f"v_lshl_add_u32 v{T2}, v{G}, 3, v{T1}")
        k.e(f"v_add_u32 v{T2}, s35, v{T2}")
        for q in range(2):
            for rd in range(2):
                k.e(f"ds_read_b64 {V(90 + 4*q + 2*rd, 2)}, v{T2} offset:{q*64 + rd*32}")
        k.e(f"v_lshl_add_u32 v{T1}, v{G}, 4, v{T1}")
        k.e(f"v_add_u32 v{T1}, s35, v{T1}")
        k.e("s_waitcnt lgkmcnt(0)")
        for half in range(2):
            for c2 in range(2):
                cb = 2 * half + c2
                k.e(mfma(V(98 + 4 * c2, 4), V(74 + 4 * cb, 4), V(90, 4), "0"))
                for rd in range(2):
                    k.e(f"ds_read_b64_tr_b16 {V(74 + 4*cb + 2*rd, 2)}, v{106+cb} offset:{4096 + rd*2048}")
            k.e("s_waitcnt lgkmcnt(0)")
            for c2 in range(2):
                k.e(mfma(V(98 + 4 * c2, 4), V(74 + 4 * (2 * half + c2), 4), V(94, 4), V(98 + 4 * c2, 4)))
            for c2 in range(2):
                k.e(f"ds_write_b128 v{T1}, {V(98 + 4*c2, 4)} offset:{2048 + (2*half + c2)*64}")
            if half == 0: k.e("s_waitcnt lgkmcnt(0)")
        k.e("s_waitcnt lgkmcnt(0)")
        k.e("s_barrier")
        k.e("s_cmp_lg_u32 s32, 0")
        k.e("s_cbranch_scc1 L_f2Cr")
        k.e(f"v_lshlrev_b32 v{T1}, 3, v0")
        k.e(f"v_add_u32 v{T2}, {SPARE + 2048}, v{T1}")
        for w in range(4): k.e(f"ds_read_b64 {V(74+2*w,2)}, v{T2} offset:{w*8192}")
        k.e("s_lshl_b32 s3, s39, 4")
        k.e("s_add_u32 s3, s3, s37")
        k.e("s_lshl_b32 s3, s3, 9")
        k.e(f"s_add_u32 s3, s3, {WS_YP}")
        k.e("s_waitcnt lgkmcnt(0)")
        k.e("v_pk_add_f32 v[74:75], v[74:75], v[76:77]")
        k.e("v_pk_add_f32 v[78:79], v[78:79], v[80:81]")
        k.e("v_pk_add_f32 v[74:75], v[74:75], v[78:79]")
        k.e(f"buffer_store_dwordx2 v[74:75], v{T1}, s[20:23], s3 offen sc1", tag='yp')
    def f2E():
        k.e("s_cmp_lg_u32 s32, 0")
        k.e("s_cbranch_scc1 L_f2Er")
        k.e(f"v_mov_b32 v{T2}, 1")
        k.e("s_lshl_b32 s3, s39, 5")
        k.e("s_add_u32 s3, s3, s37")
        k.e("s_lshl_b32 s3, s3, 2")
        k.e(f"s_add_u32 s3, s3, {WS_YFL}")
        k.e(f"s_waitcnt vmcnt({WN})")
        k.use('yp')
        k.e("s_mov_b64 exec, 1")
        k.e(f"buffer_store_dword v{T2}, v{VZ}, s[20:23], s3 offen sc1")
        k.e("s_mov_b64 exec, -1")
    for nm, fn in (("A", f2A), ("B", f2B), ("C", f2C), ("E", f2E)): ool.append((f"L_f2{nm}", fn, f"L_f2{nm}r"))
    def yloads():
        k.e(f"v_lshlrev_b32 v{T2}, 10, v{L3}")
        k.e(f"v_lshl_add_u32 v{T2}, v{L7}, 5, v{T2}")
        k.e(f"v_mov_b32 v{T1}, {BIG}")
        k.e(f"v_cmp_gt_u32 vcc, 7, v{L3}")
        k.e(f"v_cndmask_b32 v{T2}, v{T1}, v{T2}, vcc")
        for q in range(2):
            for t in range(2):
                for h in range(2):
                    k.e(f"buffer_load_dwordx4 {V(YB + 16*q + 8*t + 4*h, 4)}, v{T2}, s[20:23], s55 offen offset:{q*512 + t*256 + h*16} sc1")
    def selblock():
        for j in range(0, 16, 2): k.e(f"v_pk_add_f32 {V(YB+j,2)}, {V(YB+j,2)}, {V(YB+16+j,2)}")
        for j in range(16): k.e(f"v_add_f32_dpp v{YB+j}, v{YB+j}, v{YB+j} row_ror:8 row_mask:0xf bank_mask:0xf")
        for sw in ("v_permlane16_swap_b32", "v_permlane32_swap_b32"):
            for j in range(16): k.e(f"v_mov_b32 v{YB+16+j}, v{YB+j}")
            for j in range(16): k.e(f"{sw} v{YB+16+j}, v{YB+j}")
            for j in range(0, 16, 2): k.e(f"v_pk_add_f32 {V(YB+j,2)}, {V(YB+j,2)}, {V(YB+16+j,2)}")
        for d in range(8): rbf2(k, YB + 2*d, YB + 2*d + 1, T1)
        for t in range(2):
            for e_ in range(8): k.e(f"v_mul_f32 v{YB+8*t+e_}, s{100+t}, v{YB+8*t+e_}")
        for d in range(8): rbf2(k, YB + 2*d, YB + 2*d + 1, T1)
        k.e("s_lshl_b32 s3, s45, 7")
        k.e("s_sub_u32 s42, s42, s3")
        k.e("s_sub_u32 s43, s43, s3")
        for p in range(4):
            L = k.newlabel("selskip")
            k.e(f"v_add_u32 v{T1}, {8*p}, v{VROW}")
            k.e(f"v_cmp_eq_u32 vcc, s42, v{T1}")
            k.e(f"v_cmp_eq_u32 s[6:7], s43, v{T1}")
            k.e("s_nop 3")
            k.e("s_or_b64 s[4:5], vcc, s[6:7]")
            k.e(f"s_cbranch_scc0 {L}")
            for e_ in range(8):
                k.e(f"v_cndmask_b32 v{YB+16+e_}, 0, v{YB+e_}, vcc")
                k.e(f"v_cndmask_b32 v{YB+16+e_}, v{YB+16+e_}, v{YB+8+e_}, s[6:7]")
            gates(k, p, YB + 16)
            k.label(L)
    def yA():
        k.e(f"v_min_u32 v{VF}, 13, v0")
        k.e(f"v_lshlrev_b32 v{VF}, 2, v{VF}")
        k.e(f"buffer_load_dword v79, v{VF}, s[20:23], s41 offen sc1")
    def yB():
        k.e("s_waitcnt vmcnt(6)")
        k.e("v_cmp_ne_u32 vcc, 1, v79")
        k.e("s_cbranch_vccnz L_yBr")
        k.e("s_mov_b32 s40, 1")
        yloads()
    def yC():
        k.e("s_waitcnt vmcnt(4)")
        selblock()
    def ysl():
        poll_loop("L_ysll", "s41", VF, T1)
        yloads()
        k.e("s_waitcnt vmcnt(0)")
        selblock()
    ool.append(("L_yA", yA, "L_yAr")); ool.append(("L_yB", yB, "L_yBr")); ool.append(("L_yC", yC, "L_yCr")); ool.append(("L_ysl", ysl, "L_yslr"))
```

```python
from fw import *
from layout import *
import p4, p4b, p4c
KNAME = 'recurrent_scan__compressed_kv_cla__moe_arch_mod__prompt_kernel'

K12_LDS = 163840
QSCALE = 0x3e0293ee
BIG = 0x7ff00000

def gen_k12(opt):
    k = Asm(KNAME)
    k.short = "f"
    P4 = {'0': p4, '1': p4b, '2': p4c}[opt.get('s2', '2')]
    p4_ptr_loads, p4_setup, phase4 = P4.p4_ptr_loads, P4.p4_setup, P4.phase4
    ST = opt.get('stamp') == '1'
    S1 = opt.get('stamp') == 'p1'
    S2 = opt.get('stamp') == 'p2'
    SA = opt.get('stamp') == 'a'
    S0 = opt.get('stamp') == 'p0'
    w_ld, a_ld, x_ld = opt.get('w_ld', ' nt'), opt.get('a_ld', ''), opt.get('x_ld', ' nt')
    wq_ld, kv_ld, ffn_ld = opt.get('wq_ld', ''), opt.get('kv_ld', ' sc1'), opt.get('ffn_ld', '')
    MAP = int(opt.get('map', 4))
    WOT = opt.get('wot', '0') == '1'
    TK = opt.get('tk', '0') == '1'
    VOA, VOW, AD, PFO = 2, 6, 10, 47
    AA = [[10, 11], [12, 13]]
    WA = [list(range(16, 24)), [14, 15] + list(range(24, 30))]
    FA = lambda it, ks: 224 + (it % 4) * 8 + 4 * ks
    FW = lambda buf, jd, ks: 64 * buf + 8 * jd + 4 * ks
    def frag_of(isV, it, jd):
        return ((it >> 1) * 8 + jd, it & 1) if isV else (it * 4 + (jd >> 1), jd & 1)
    SRC = lambda n: ('v', 48 + 8 * n) if n < 26 else ('a', 128 + 8 * (n - 26))
    def acc(isV, it, jd):
        n, h = frag_of(isV, it, jd)
        p, r = SRC(n)
        return R(p, r + 4 * h, 4)
    PK = lambda n: 24 + 4 * (n if n < 26 else n - 26)
    VX, VY, VDMA, VRA, VRB, ORR, T0 = 2, 3, 4, 5, 6, 7, 1
    WV, XV, TA = 8, 10, 16
    ET = 8
    ONES, NINF = 16, 20
    NEGM, LS, PB, SB = 32, 48, 64, 128
    P = lambda par, qb, ks: PB + 32 * par + (qb * 2 + ks) * 4
    Sr = lambda par, qb, kb: SB + 64 * par + (qb * 4 + kb) * 4
    O = lambda qb, db: (qb * 8 + db) * 4
    Q = lambda qb, s: 128 + (qb * 4 + s) * 4
    FR = lambda grp, j: 192 + 16 * grp + 4 * j
    QA = lambda db, qb: 128 + (qb * 8 + db) * 4
    XR = lambda kk, qb: ((kk % 8) * 4 + qb) * 4
    WF = lambda kk, db: 192 + (kk & 1) * 32 + db * 4

    k.e("s_cmp_ge_u32 s2, 256")
    k.e("s_cbranch_scc1 L_k2_end")
    k.stamp(ST or S0)
    k.e("s_load_dwordx4 s[4:7], s[0:1], 0")
    k.e("s_load_dwordx2 s[44:45], s[0:1], 56")
    k.e("s_load_dwordx4 s[40:43], s[0:1], 24")
    k.e("s_load_dwordx4 s[64:67], s[0:1], 96")
    k.e("v_lshrrev_b32 v1, 6, v0")
    k.e("v_and_b32 v0, 63, v0")
    k.e("v_readfirstlane_b32 s32, v1")
    def emit(lst, o=None):
        for x in lst:
            if x.endswith(':'): k.label(x[:-1])
            else: k.e(x, tag='cpf')
    CPF = opt.get('cpf', '12346')
    if '1' in CPF: emit(code_prefetch(KNAME, "L_k2_fin", 32, 68, 120, 124))
    k.e("v_lshrrev_b32 v33, 5, v0")
    k.e("v_and_b32 v31, 31, v0")
    k.e("v_lshlrev_b32 v36, 4, v31")
    k.e("v_lshl_add_u32 v35, v33, 11, v36")
    k.e("s_lshl_b32 s36, s2, 14")
    k.e("s_lshl_b32 s37, s32, 12")
    k.e("s_add_u32 s36, s36, s37")
    k.e("s_mov_b32 s18, 4194304")
    k.e("s_mov_b32 s19, 0x20000")
    k.e("s_bfe_u32 s33, s2, 0x30003")
    k.e("s_lshr_b32 s35, s2, 7")
    k.e("s_bfe_u32 s3, s2, 0x10006")
    k.e("s_and_b32 s34, s2, 7")
    k.e("s_lshl_b32 s34, s34, 1")
    k.e("s_add_u32 s34, s34, s3")
    k.e("s_waitcnt lgkmcnt(0)")
    k.stamp(S0)
    k.e("s_mov_b32 s16, s4")
    k.e("s_and_b32 s17, s5, 0xffff")
    XP, WR, XF = 48, 64, 80
    for i in range(4):
        k.e(f"buffer_load_dwordx4 {V(XP+4*i,4)}, v35, s[16:19], s36 offen offset:{i*512}{x_ld}", tag='x')
    k.e("s_cmp_eq_u32 s35, 0")
    k.e("s_cselect_b32 s40, s40, s42")
    k.e("s_cselect_b32 s41, s41, s43")
    k.e("s_lshl_b32 s3, s34, 9")
    k.srd(12, 40, 0, "s3")
    k.e("s_sub_u32 s14, 4194304, s3")
    k.e("s_lshl_b32 s3, s33, 18")
    k.srd(8, 6, 262144, "s3")
    KX = int(opt.get('kx', 7))
    k.e(f"s_and_b32 s58, s2, {KX}")
    def dma_ops(buf):
        ops = []
        for (base, vo, so, srd, fl) in ((57, VOW, 52, 12, w_ld), (56, VOA, 48, 8, a_ld)):
            for hi in range(2):
                ops.append(('s', f"s_add_u32 m0, s{base}, {buf*65536 + hi*4096}"))
                for lo in range(4):
                    ops.append(('g', f"buffer_load_dwordx4 v{vo + (lo&1) + 2*hi}, {S(srd,4)}, s{so+lo} offen offset:{lo*1024}{fl} lds"))
        return ops
    def adv_ops(j):
        x = j ^ (j + 1)
        return [f"v_xor_b32 v{VOW+q}, {x << 19}, v{VOW+q}" for q in range(4)] + [f"v_xor_b32 v{VOA+q}, {x << 7}, v{VOA+q}" for q in range(4)]
    PF0 = int(opt.get('pf0', 1))
    pfc = [PF0]
    def pf_ops():
        j = pfc[0]; pfc[0] += 1
        return [f"buffer_load_dword v1, v{PFO}, s[60:63], 0 offen{opt.get('pf_ld', '')}",
                f"s_mul_i32 vcc_lo, s59, {(j ^ (j + 1)) & 7}", f"v_xor_b32 v{PFO}, vcc_lo, v{PFO}"]
    def setup_P():
        k.e("s_cmp_lt_u32 s32, 2")
        for j in range(3): k.e(f"s_cselect_b32 s{60+j}, s{8+j}, s{12+j}")
        k.e("s_mov_b32 s63, 0x20000")
        k.e(f"s_mov_b32 s59, {64*8192}")
        k.e("s_cselect_b32 s59, 128, s59")
        k.e("s_cselect_b64 vcc, -1, 0")
        k.e("s_cselect_b32 s38, 32, 16")
        k.e("s_lshr_b32 s3, s2, 6")
        k.e("s_cmp_lt_u32 s32, 2")
        k.e("s_cselect_b32 s3, s3, s33")
        k.e("s_lshl_b32 s3, s3, 1")
        k.e("s_and_b32 s39, s32, 1")
        k.e("s_add_u32 s3, s3, s39")
        k.e("s_lshl_b32 s3, s3, 15")
        k.e(f"s_xor_b32 s39, s58, {PF0}")
        k.e("s_mul_i32 s39, s39, s59")
        k.e("s_add_u32 s3, s3, s39")
        k.e("v_lshlrev_b32 v37, 10, v0")
        k.e("v_lshrrev_b32 v38, 2, v0")
        k.e("v_lshlrev_b32 v38, 13, v38")
        k.e("v_and_b32 v39, 3, v0")
        k.e("v_lshl_add_u32 v38, v39, 7, v38")
        k.e(f"v_cndmask_b32 v{PFO}, v38, v37, vcc")
        k.e(f"v_add_u32 v{PFO}, s3, v{PFO}")
        k.e("v_cmp_gt_u32 vcc, s38, v0")
        k.e(f"v_mov_b32 v37, {BIG}")
        k.e(f"v_cndmask_b32 v{PFO}, v37, v{PFO}, vcc")
    def setup_W():
        for j in range(4): k.e(f"s_mov_b32 s{52+j}, {j*15360}")
        k.e("s_lshl_b32 s57, s32, 13")
        k.e("s_add_u32 s56, s57, 32768")
        k.e("s_lshl_b32 s3, s58, 2")
        k.e("s_add_u32 s3, s3, s32")
        k.e("s_lshl_b32 s3, s3, 4")
        k.e("v_add_u32 v30, s3, v33")
        k.e("v_lshlrev_b32 v30, 13, v30")
        k.e("v_lshlrev_b32 v34, 5, v33")
        k.e("v_xor_b32 v34, v34, v36")
        k.e(f"v_add_u32 v{VOW}, v34, v30")
        k.e(f"v_xor_b32 v{VOW+1}, 64, v{VOW}")
        k.e(f"v_xor_b32 v{VOW+2}, {8*8192 + 128}, v{VOW}")
        k.e(f"v_xor_b32 v{VOW+3}, {8*8192 + 192}, v{VOW}")
    def setup_A():
        for j in range(4): k.e(f"s_mov_b32 s{48+j}, {j*7168}")
        k.e("v_lshrrev_b32 v30, 3, v0")
        k.e("v_lshlrev_b32 v30, 10, v30")
        k.e("s_lshl_b32 s3, s32, 16")
        k.e("s_lshl_b32 s39, s58, 7")
        k.e("s_add_u32 s3, s3, s39")
        k.e("v_and_b32 v31, 7, v0")
        k.e("v_lshrrev_b32 v32, 4, v0")
        k.e("v_xor_b32 v31, v31, v32")
        k.e("v_lshl_add_u32 v30, v31, 4, v30")
        k.e(f"v_add_u32 v{VOA}, s3, v30")
        k.e(f"v_xor_b32 v{VOA+1}, 64, v{VOA}")
        k.e(f"v_xor_b32 v{VOA+2}, 32768, v{VOA}")
        k.e(f"v_xor_b32 v{VOA+3}, {32768 + 64}, v{VOA}")
    def setup_D():
        k.srd(20, 66, 8 << 20)
        k.srd(24, 66, 32 * KV_HEAD, WS_KV)
        k.e("v_lshrrev_b32 v32, 4, v0")
        k.e("v_and_b32 v30, 15, v0")
        k.e("s_lshr_b32 s3, s32, 1")
        k.e("s_lshl_b32 s3, s3, 14")
        k.e("s_add_u32 s3, s3, 32768")
        k.e("v_lshlrev_b32 v31, 7, v30")
        k.e("v_add_u32 v31, s3, v31")
        k.e("v_lshrrev_b32 v34, 1, v30")
        k.e("v_xor_b32 v34, v34, v32")
        k.e(f"v_lshl_add_u32 v{AA[0][0]}, v34, 4, v31")
        k.e(f"v_xor_b32 v{AA[0][1]}, 64, v{AA[0][0]}")
        k.e("v_lshrrev_b32 v30, 2, v30")
        k.e("v_lshl_add_u32 v31, v32, 3, v30")
        k.e("v_lshlrev_b32 v31, 9, v31")
        k.e("v_and_b32 v34, 3, v0")
        k.e("v_lshl_add_u32 v31, v34, 3, v31")
        k.e("s_and_b32 s3, s32, 1")
        k.e("s_lshl_b32 s3, s3, 8")
        k.e("v_add_u32 v31, s3, v31")
        k.e("v_and_b32 v34, 1, v32")
        k.e("v_lshl_add_u32 v30, v34, 2, v30")
        k.e(f"v_lshl_add_u32 v{WA[0][0]}, v30, 5, v31")
        for jj in range(1, 8): k.e(f"v_xor_b32 v{WA[0][jj]}, {jj*32}, v{WA[0][0]}")
        for x0, x1 in zip(AA[0] + WA[0], AA[1] + WA[1]): k.e(f"v_add_u32 v{x1}, 65536, v{x0}")
    def act(seq):
        for x in seq.split(','):
            if not x: continue
            if x in 'PWAD': {'P': setup_P, 'W': setup_W, 'A': setup_A, 'D': setup_D}[x]()
            elif x == 'p':
                for s in pf_ops(): k.e(s, tag='pf')
            elif x == 'r':
                k.srd(28, 44, 2048)
                for i in range(4):
                    k.e(f"buffer_load_dwordx4 {V(WR+4*i,4)}, v36, s[28:31], 0 offen offset:{i*512}", tag='wr')
            else:
                st = int(x[1]); h = 0 if x[0] == 'w' else 1
                for t, s in dma_ops(st)[10*h:10*h+10]: k.e(s, tag=x + 'd')
                for s in adv_ops(st)[4*h:4*h+4]: k.e(s)
    PRO = opt.get('pro', 'W,w0,A,P,D,r/a0,p/p//').split('/')
    act(PRO[0])
    k.stamp(S0)
    def sum32(v, t):
        for m in ["quad_perm:[1,0,3,2]", "quad_perm:[2,3,0,1]", "row_half_mirror", "row_mirror"]:
            k.e(f"v_add_f32_dpp v{v}, v{v}, v{v} {m} row_mask:0xf bank_mask:0xf")
        k.e(f"v_mov_b32 v{t}, v{v}")
        k.e(f"v_permlane16_swap_b32 v{t}, v{v}")
        k.e(f"v_add_f32 v{v}, v{v}, v{t}")
    k.wait_vm('x')
    k.stamp(S0)
    for i in range(16):
        k.e(f"v_lshlrev_b32 v{XF+2*i}, 16, v{XP+i}")
        k.e(f"v_and_b32 v{XF+2*i+1}, 0xffff0000, v{XP+i}")
    k.e(f"v_pk_add_f32 v[40:41], {V(XF,2)}, {V(XF+2,2)}")
    k.e(f"v_pk_add_f32 v[42:43], {V(XF+4,2)}, {V(XF+6,2)}")
    for i in range(4, 16):
        d = 40 + 2 * (i & 1)
        k.e(f"v_pk_add_f32 {V(d,2)}, {V(d,2)}, {V(XF+2*i,2)}")
    k.e("v_pk_add_f32 v[40:41], v[40:41], v[42:43]")
    k.e("v_add_f32 v38, v40, v41")
    sum32(38, 37)
    k.stamp(S0)
    act(PRO[1])
    k.e("v_mul_f32 v38, 0xba800000, v38")
    k.e("v_mov_b32 v39, v38")
    T = 112
    for i in range(16):
        k.e(f"v_pk_add_f32 {V(T+2*(i&3),2)}, {V(XF+2*i,2)}, v[38:39]")
        d = 40 + 2 * (i & 1)
        if i < 2: k.e(f"v_pk_mul_f32 {V(d,2)}, {V(T+2*(i&3),2)}, {V(T+2*(i&3),2)}")
        else: k.e(f"v_pk_fma_f32 {V(d,2)}, {V(T+2*(i&3),2)}, {V(T+2*(i&3),2)}, {V(d,2)}")
    k.e("v_pk_add_f32 v[40:41], v[40:41], v[42:43]")
    k.e("v_add_f32 v40, v40, v41")
    sum32(40, 37)
    act(PRO[2])
    k.stamp(S0)
    k.e("v_mul_f32 v40, 0x3a800000, v40")
    k.e("v_cvt_pk_bf16_f32 v44, v38, v40")
    k.e("v_lshlrev_b32 v38, 16, v44")
    k.e("v_and_b32 v40, 0xffff0000, v44")
    k.e("v_add_f32 v40, 0x3727c5ac, v40")
    k.e("v_cvt_pk_bf16_f32 v44, v40, v40")
    k.e("v_lshlrev_b32 v40, 16, v44")
    k.e("v_sqrt_f32 v40, v40")
    k.e("v_mov_b32 v39, v38")
    k.e("v_cvt_pk_bf16_f32 v44, v40, v40")
    k.e("v_lshlrev_b32 v44, 16, v44")
    k.e("v_rcp_f32 v40, v44")
    for i in range(16):
        k.e(f"v_pk_add_f32 {V(XF+2*i,2)}, {V(XF+2*i,2)}, v[38:39]")
    k.e("v_fma_f32 v45, -v44, v40, 1.0")
    k.e("v_fma_f32 v40, v45, v40, v40")
    k.e("v_mov_b32 v41, v40")
    for i in range(16):
        k.e(f"v_cvt_pk_bf16_f32 v{XP+i}, v{XF+2*i}, v{XF+2*i+1}")
    for i in range(16):
        k.e(f"v_lshlrev_b32 v{XF+2*i}, 16, v{XP+i}")
        k.e(f"v_and_b32 v{XF+2*i+1}, 0xffff0000, v{XP+i}")
    for i in range(16):
        k.e(f"v_pk_mul_f32 {V(XF+2*i,2)}, {V(XF+2*i,2)}, v[40:41]")
    for i in range(16):
        k.e(f"v_cvt_pk_bf16_f32 v{XP+i}, v{XF+2*i}, v{XF+2*i+1}")
    k.e("s_mul_i32 s3, s32, 4128")
    k.e("s_add_u32 s3, s3, 131072")
    k.e("v_mul_u32_u24 v42, 2064, v33")
    k.e("v_add3_u32 v42, v42, v36, s3")
    for i in range(4):
        k.e(f"ds_write_b128 v42, {V(XP+4*i,4)} offset:{i*512}")
    act(PRO[3])
    k.stamp(S0)
    k.wait_vm('wr')
    k.stamp(S0)
    for i in range(16):
        k.e(f"v_lshlrev_b32 v{XF+2*i}, 16, v{XP+i}")
        k.e(f"v_and_b32 v{XF+2*i+1}, 0xffff0000, v{XP+i}")
        k.e(f"v_lshlrev_b32 v{T+2*(i&3)}, 16, v{WR+i}")
        k.e(f"v_and_b32 v{T+2*(i&3)+1}, 0xffff0000, v{WR+i}")
        d = 42 + 2 * (i & 1)
        if i < 2: k.e(f"v_pk_mul_f32 {V(d,2)}, {V(XF+2*i,2)}, {V(T+2*(i&3),2)}")
        else: k.e(f"v_pk_fma_f32 {V(d,2)}, {V(XF+2*i,2)}, {V(T+2*(i&3),2)}, {V(d,2)}")
    k.e("v_pk_add_f32 v[42:43], v[42:43], v[44:45]")
    k.e("v_add_f32 v45, v42, v43")
    sum32(45, 37)
    k.e("v_cvt_pk_bf16_f32 v45, v45, v45")
    k.e("v_ashrrev_i32 v46, 31, v45")
    k.e("v_or_b32 v46, 0x80000000, v46")
    k.e("v_xor_b32 v45, v45, v46")
    k.e("v_and_b32 v45, 0xffff0000, v45")
    k.e("s_lshr_b32 s3, s36, 11")
    k.e("v_add_u32 v46, s3, v33")
    k.e("v_sub_u32 v44, 0xffff, v46")
    k.e("v_or_b32 v45, v45, v44")
    k.e("v_lshlrev_b32 v44, 2, v46")
    k.e("v_lshlrev_b32 v46, 3, v46")
    k.e("v_xor_b32 v38, 0x80000000, v38")
    k.e("v_mov_b32 v39, v40")
    k.e(f"s_mov_b32 s3, {WS_KEYS}")
    k.e(f"s_mov_b32 s39, {WS_STATS}")
    k.e("s_mov_b32 exec_lo, 1")
    k.e("s_mov_b32 exec_hi, 1")
    k.e("buffer_store_dword v45, v44, s[20:23], s3 offen sc1", tag='ln')
    k.e("buffer_store_dwordx2 v[38:39], v46, s[20:23], s39 offen sc1", tag='ln')
    k.e("s_mov_b64 exec, -1")
    k.e("s_load_dwordx2 s[4:5], s[0:1], 16")
    k.e("s_load_dwordx4 s[40:43], s[0:1], 64")
    k.e("s_load_dwordx2 s[92:93], s[0:1], 40")
    k.e("s_load_dwordx2 s[94:95], s[0:1], 80")
    k.e("s_load_dwordx2 s[100:101], s[0:1], 0")
    act(PRO[4])
    PFN = pfc[0] - 2
    k.srd(28, 64, 256)

    def areads(st, pr):
        return [f"ds_read_b128 {A(FA(it,ks),4)}, v{AA[st & 1][ks]} offset:{it*2048}" for it in (2 * pr, 2 * pr + 1) for ks in range(2)]
    def wfreads(st):
        return [[f"ds_read_b64_tr_b16 {A(FW(st & 1,j,ks)+2*rd,2)}, v{WA[st & 1][j]} offset:{ks*16384+rd*2048}" for rd in range(2)]
                for j in range(8) for ks in range(2)]
    k.stamp(S0)
    k.wait_vm('w0d'); k.wait_vm('a0d')
    k.e("s_waitcnt lgkmcnt(0)")
    k.e("s_barrier")
    k.stamp(ST or S0)
    for s in areads(0, 0): k.e(s, tag='A0_0')
    for n, grp in enumerate(wfreads(0)):
        for s in grp: k.e(s, tag=f'W0_{n // 2}')
    k.e("s_cmp_lg_u32 s35, 0")
    k.e("s_cbranch_scc1 L_k1_vpath")

    def chunk_ops(c):
        kind, j = c
        slot = {'w': j % 4, 'kv': (j + 4) % 8}[kind]
        ops = [('s', f"s_add_u32 m0, s44, {slot * 16384}")]
        if kind == 'w':
            for q in range(4):
                ops.append(('g', f"buffer_load_dwordx4 v{WV + (q >> 1)}, s[8:11], s{48+q} offen offset:{q*1024}{wq_ld} lds"))
            ops.append(('v', f"v_add_u32 v{WV}, {64*8192}, v{WV}"))
            ops.append(('v', f"v_add_u32 v{WV+1}, {64*8192}, v{WV+1}"))
        elif kind == 'f':
            for q in range(4):
                ops.append(('g', f"buffer_load_dwordx4 v{12 + (q >> 1) + 2 * (j & 1)}, {S(60 + 8 * (j >> 1), 4)}, s{52+q} offen offset:{q*1024}{ffn_ld} lds"))
        else:
            ops.append(('s', f"s_mov_b32 s7, {j * KV_CH}"))
            for q in range(4):
                ops.append(('g', f"buffer_load_dwordx4 v{VDMA}, s[12:15], s7 offen offset:{q*1024}{kv_ld} lds"))
        return ops
    def xn_ops(kk):
        ops = []
        for qb in range(4):
            so = "0" if qb & 1 else "s58"
            ops.append(('g', f"buffer_load_dwordx4 {A(XR(kk,qb),4)}, v{XV + (qb >> 1)}, s[20:23], {so} offen offset:{(kk % 4)*1024}{opt.get('xn_ld', ' sc1')}"))
        if kk % 4 == 3:
            ops.append(('v', f"v_add_u32 v{XV}, 4096, v{XV}"))
            ops.append(('v', f"v_add_u32 v{XV+1}, 4096, v{XV+1}"))
        return ops
    def wreads(kk):
        st, ks = kk // 2, kk & 1
        return [[f"ds_read_b64_tr_b16 {A(WF(kk,db)+2*rd,2)}, v{TA+db} offset:{(st % 4)*16384 + ks*8192 + rd*1024}" for rd in range(2)] for db in range(8)]
    ool = []
    def spin(lab, ret, off, target, vd, vz, sv, sc):
        def fn():
            k.e(f"s_mov_b32 s{sc}, 0x400000")
            k.label(lab + "_l")
            k.e(f"s_sleep {opt.get('slp', 8)}")
            k.e(f"buffer_load_dword v{vd}, v{vz}, s[28:31], {off} offen sc1")
            k.e("s_waitcnt vmcnt(0)")
            k.e(f"v_readfirstlane_b32 s{sv}, v{vd}")
            k.e(f"s_sub_u32 s{sc}, s{sc}, 1")
            k.e(f"s_cmp_eq_u32 s{sc}, 0")
            k.e(f"s_cbranch_scc1 {ret}")
            k.e(f"s_cmp_lt_u32 s{sv}, {target}")
            k.e(f"s_cbranch_scc1 {lab}_l")
        ool.append((lab, fn, ret))
    def srd_rec(b, d, base, nbytes, add=None):
        if add is None:
            b.e(f"s_mov_b32 s{d}, s{base}"); b.e(f"s_and_b32 s{d+1}, s{base+1}, 0xffff")
        else:
            b.blk([f"s_add_u32 s{d}, s{base}, {add}", f"s_addc_u32 s{d+1}, s{base+1}, 0", f"s_and_b32 s{d+1}, s{d+1}, 0xffff"])
        b.e(f"s_mov_b32 s{d+2}, {nbytes}"); b.e(f"s_mov_b32 s{d+3}, 0x20000")

    def phase1_stream(isV):
        b = Rec()
        tg = 'v' if isV else 'k'
        b.e("v_and_b32 v46, 7, v0")
        b.e("v_lshrrev_b32 v1, 3, v0") if False else None
        b.e("v_mul_u32_u24 v30, 2064, v46")
        b.e("v_lshrrev_b32 v31, 3, v0")
        b.e("s_lshl_b32 s3, s32, 9")
        b.e("s_add_u32 s3, s3, 131072")
        b.e("v_lshl_add_u32 v30, v31, 4, v30")
        b.e("v_add_u32 v30, s3, v30")
        b.e("v_lshlrev_b32 v31, 8, v31")
        b.e("v_lshl_add_u32 v46, v46, 4, v31")
        for i in (1, 2, 3, 0):
            b.e(f"ds_read_b128 {V(30+4*i,4)}, v30 offset:{i*128}", tag='xs')
        b.e("s_lshr_b32 s3, s2, 1")
        b.e(f"s_mul_i32 s3, s3, {XN_RB}")
        b.e("s_add_u32 s3, s3, s57")
        b.e("s_and_b32 s39, s2, 1")
        b.e("s_lshl_b32 s39, s39, 7")
        b.e("s_add_u32 s3, s3, s39")
        b.e("s_add_u32 s39, s3, 4096")
        b.at(2)
        for i in range(4):
            b.e(f"buffer_store_dwordx4 {V(30+4*i,4)}, v46, s[20:23], s{3 if i < 2 else 39} offen offset:{(i&1)*2048} sc1", tag='ln')
        b.e("s_lshl_b32 s3, s34, 1")
        b.e("s_and_b32 s36, s32, 1")
        b.e("s_add_u32 s3, s3, s36")
        b.e(f"s_mul_i32 s3, s3, {KV_HEAD}")
        b.e(f"s_mul_i32 s36, s33, {4*KV_TILE}")
        b.e("s_add_u32 s3, s3, s36")
        b.e("s_lshr_b32 s36, s32, 1")
        b.e(f"s_mul_i32 s36, s36, {2*KV_TILE}")
        b.e("s_add_u32 s3, s3, s36")
        b.e(f"s_add_u32 s38, s3, {KV_CH if isV else 0}")
        b.e("s_lshl_b32 s39, s34, 7")
        b.e("s_lshl_b32 s36, s33, 2")
        b.e("s_add_u32 s39, s39, s36")
        b.e(f"s_add_u32 s39, s39, {WS_FLG + (32 if isV else 0)}")
        b.e("v_mov_b32 v30, 1")
        b.e("v_mov_b32 v31, 0")
        b.blk(["s_cmp_eq_u32 s32, 0", f"s_cselect_b32 s39, s39, {BIG}"])
        b.blk(["s_mov_b64 exec, 1", ("buffer_store_dword v31, v31, s[20:23], s39 offen sc1", 'ln'), "s_mov_b64 exec, -1"])
        if MAP == 4:
            b.e("s_and_b32 s33, s2, 7")
            b.e("s_lshl_b32 s33, s33, 2")
            b.e("s_bfe_u32 s3, s2, 0x20003")
            b.e("s_add_u32 s33, s33, s3")
            b.e("s_lshr_b32 s34, s2, 5")
        else:
            b.e("s_and_b32 s33, s2, 6")
            b.e("s_lshl_b32 s33, s33, 2")
            b.e("s_bfe_u32 s3, s2, 0x30003")
            b.e("s_add_u32 s33, s33, s3")
            b.e("s_lshr_b32 s34, s2, 6")
            b.e("s_lshl_b32 s34, s34, 1")
            b.e("s_and_b32 s3, s2, 1")
            b.e("s_add_u32 s34, s34, s3")
        b.e("s_lshl_b32 s64, s34, 7")
        b.e("s_lshl_b32 s3, s33, 2")
        b.e("s_add_u32 s64, s64, s3")
        b.e(f"s_add_u32 s64, s64, {WS_CFL}")
        b.e("s_lshl_b32 s65, s34, 8")
        b.e("s_sub_u32 s65, 1920, s65")
        b.e("v_mul_u32_u24 v32, s65, v0")
        b.blk(["s_cmp_eq_u32 s32, 0", f"s_cselect_b32 s64, s64, {BIG}"])
        b.blk(["s_mov_b64 exec, 3", ("buffer_store_dword v31, v32, s[20:23], s64 offen sc1", 'ln'), "s_mov_b64 exec, -1"])
        b.e("s_lshl_b32 s3, s2, 2")
        b.e(f"s_add_u32 s3, s3, {WS_HFL}")
        b.e("v_lshlrev_b32 v32, 10, v0")
        b.blk(["s_cmp_eq_u32 s32, 0", f"s_cselect_b32 s3, s3, {BIG}"])
        b.blk(["s_mov_b64 exec, 0x1ff", ("buffer_store_dword v31, v32, s[20:23], s3 offen sc1", 'ln'), "s_mov_b64 exec, -1"])
        b.e("s_lshl_b32 s35, s34, 1")
        b.e("s_sub_u32 s36, 32, s35")
        b.e("s_add_u32 s35, s35, 2")
        b.e("s_lshl_b32 s44, s32, 12")
        b.e("s_lshl_b32 s58, s32, 1")
        b.e("s_sub_u32 s58, 7, s58")
        b.e(f"s_mul_i32 s58, s58, {XN_RB}")
        b.e("s_sub_u32 s3, 15, s34")
        b.e("s_lshl_b32 s45, s3, 3")
        b.e("s_add_u32 s45, s45, s32")
        b.e("s_lshl_b32 s46, s34, 3")
        b.e("s_add_u32 s46, s46, s32")
        srd_rec(b, 68, 42, 7340032)
        b.blk(["s_cmp_eq_u32 s32, 0", f"s_cselect_b32 s37, 0, {BIG}"])
        b.e("s_lshl_b32 s3, s33, 8")
        srd_rec(b, 16, 4, 0, "s3")
        b.e("s_sub_u32 s18, 8388608, s3")
        WQN = int(opt.get('wqn', 4))
        ln_ = 64 // WQN
        b.e(f"v_and_b32 v33, {ln_ - 1}, v0")
        b.e("v_lshrrev_b32 v32, 1, v33")
        b.e("v_and_b32 v33, 1, v0")
        b.e("v_lshlrev_b32 v32, 13, v32")
        b.e("v_lshl_add_u32 v45, v33, 7, v32")
        b.e("s_lshl_b32 s3, s32, 3")
        b.e("s_add_u32 s3, s3, s34")
        b.e(f"s_mul_i32 s47, s3, {ln_ // 2 * 8192}")
        WQ0 = int(opt.get('wq0', 6))
        ev = []
        for j in range(WQN): ev.append((WQ0 + j * float(opt.get('wqs', 2)), 'pf', j))
        NS = int(opt.get('cas', 4))
        for j in range(NS): ev.append((5.2 + j * float(opt.get('cad', 1.2)), 'ca', j))
        b.e(f"s_bfe_u32 s6, s2, {(NS.bit_length() - 1) << 16 | 3}")
        b.e("s_lshl_b32 s3, s32, 8")
        b.e("s_or_b32 s6, s6, s3")
        WOP = WOT
        if WOP:
            b.e("v_bfe_u32 v39, v0, 3, 1")
            b.e("v_and_b32 v33, 7, v0")
            b.e("v_lshlrev_b32 v39, 11, v39")
            b.e("v_lshl_add_u32 v39, v33, 7, v39")
            b.e("s_lshr_b32 s3, s2, 1")
            b.e("s_lshl_b32 s3, s3, 16")
            b.e("v_add_u32 v39, s3, v39")
            b.e("s_and_b32 s3, s2, 1")
            b.e("s_lshl_b32 s3, s3, 10")
            b.e("v_add_u32 v39, s3, v39")
            b.e("s_lshl_b32 s3, s32, 14")
            b.e("v_add_u32 v39, s3, v39")
            ev.append((5.99, 'srd', 0))
            for j in range(4): ev.append((float(opt.get('wop0', 6)) + j * 2 + 0.01, 'wo', j))
        late = []
        for step, kind, j in sorted(ev):
            o = b
            if step >= 12:
                o = Rec(); late.append(o)
            o.at(step)
            if kind == 'ca':
                o.check_clear('ln')
                o.blk([f"s_cmp_eq_u32 s6, {j}", f"s_cselect_b32 s3, 0, {BIG}"])
                o.blk(["s_mov_b64 exec, 1", "buffer_atomic_add v30, v31, s[28:31], s3 offen sc1", "s_mov_b64 exec, -1"])
            elif kind == 'srd':
                srd_rec(o, 60, 92, 8388608)
            elif kind == 'wo':
                o.e("buffer_load_dword v44, v39, s[60:63], 0 offen", tag='pf')
                o.e("v_add_u32 v39, 4096, v39")
            else:
                o.e(f"buffer_load_dword v44, v45, s[{16 if step < 12 else 8}:{19 if step < 12 else 11}], s47 offen{opt.get('wqpf_ld', '')}", tag='pf')
                o.e(f"s_add_u32 s47, s47, {1024 // WQN * 8192}")
        b.e("v_lshrrev_b32 v32, 4, v0")
        b.e("v_and_b32 v33, 15, v0")
        b.e("s_lshl_b32 s3, s32, 4")
        b.e("v_add_u32 v34, s3, v32")
        b.e("v_lshlrev_b32 v36, 1, v32")
        b.e("v_xor_b32 v36, v36, v33")
        b.e("v_xor_b32 v37, 8, v36")
        if '2' in CPF:
            b.at(10.1)
            cp = code_prefetch("L_phase2", "L_k2_fin", 32, 6, 40, 38)
            cp = [x.replace("s8", "s3") for x in cp]
            b.blk(cp[:4])
            for x in cp[4:-3]: b.e(x)
            b.blk(cp[-3:-1])
            b.e(cp[-1])
        b.at(12)
        b.e("buffer_load_dword v1, v31, s[28:31], s37 offen sc1", tag='poll')
        for j in range(3): b.e(f"s_mov_b32 s{8+j}, s{16+j}")
        srd_rec(b, 16, 66, 16 << 20, WS_CTX)
        for j in range(4): b.e(f"s_mov_b32 s{48+j}, {j*31744}")
        b.e("v_lshlrev_b32 v35, 13, v34")
        b.e(f"v_lshl_add_u32 v{WV}, v36, 4, v35")
        b.e(f"v_lshl_add_u32 v{WV+1}, v37, 4, v35")
        b.e(f"v_lshlrev_b32 v{VX}, 4, v0")
        b.e(f"v_add_u32 v{VY}, 65536, v{VX}")
        b.e(f"v_add_u32 v{VDMA}, s44, v{VX}")
        b.e("v_mov_b32 v7, 0")
        b.e("v_lshlrev_b32 v35, 2, v32")
        b.e("v_sub_u32 v35, v33, v35")
        b.e("s_lshl_b32 s3, s32, 4")
        b.e(f"v_add_u32 v{VRA}, s3, v35")
        b.e("s_sub_u32 s3, 48, s3")
        b.e(f"v_add_u32 v{VRB}, s3, v35")
        b.e(f"s_mul_i32 s3, s33, {KV_HEAD}")
        b.e(f"s_add_u32 s3, s3, {WS_KV}")
        srd_rec(b, 12, 66, 0, "s3")
        b.e(f"s_mul_i32 s14, s36, {KV_TILE}")
        for o in late: b.items += o.items
        ta_setup(b)
        b.at(13.4)
        b.e(f"s_mul_i32 s3, s45, {XN_RB}")
        b.e(f"v_add_u32 v{XV}, s3, v{VX}")
        b.e(f"s_mul_i32 s3, s46, {XN_RB}")
        b.e(f"v_add_u32 v{XV+1}, s3, v{VX}")
        if '6' in CPF:
            b.at(14)
            b.e("v_mov_b32 v14, v40"); b.e("v_mov_b32 v15, v41")
        if 'dbg_noxn' in opt:
            b.e(f"v_mov_b32 v{XV}, {BIG}"); b.e(f"v_mov_b32 v{XV+1}, {BIG}")
        if 'dbg_nowq' in opt: b.e("s_mov_b32 s10, 0")
        if 'dbg_nost' in opt: b.e("s_mov_b32 s26, 0")
        spin(f"L_spinA{tg}", f"L_spinAr{tg}", 0, 256, 1, 7, 3, 47)
        return b
    def ta_setup(b):
        b.e("v_lshrrev_b32 v42, 2, v33")
        b.e("v_lshl_add_u32 v43, v32, 3, v42")
        b.e("v_lshlrev_b32 v43, 8, v43")
        b.e("v_and_b32 v46, 3, v0")
        b.e("v_lshl_add_u32 v43, v46, 3, v43")
        b.e("v_and_b32 v46, 1, v32")
        b.e("v_lshl_add_u32 v42, v46, 2, v42")
        b.e(f"v_lshl_add_u32 v{TA}, v42, 5, v43")
        for db in range(1, 8): b.e(f"v_xor_b32 v{TA+db}, {32*db}, v{TA}")

    NS7 = int(opt.get('ns7', 0))
    def kvstore_ops(n):
        off = (n >> 4) * KV_TILE + (n & 15) * 1024
        return ([f"s_add_u32 s59, s38, {off}"] if n % 4 == 0 else []) + \
               [f"buffer_store_dwordx4 {V(PK(n),4)}, v{VX}, s[24:27], s59 offen offset:{(n % 4)*1024}{opt.get('kv_st', ' sc1')}"]
    def place_vm(g, gt, scal, ops, start, step):
        gi = start
        for t, s, tg in ops:
            if t == 's': scal.setdefault(gi - 1, []).append(s)
            elif t == 'g':
                assert gi not in g and gi < 128, gi
                g[gi] = [s]; gt[gi] = tg; gi += step
            else:
                q = gi - step + 1
                while (q in g and (len(g[q]) >= 2 or g[q][-1].startswith(('buffer', 'ds_read_b64')))) or ((q - start) % step == 0 and q < 127): q += 1
                g.setdefault(min(q, 127), []).append(s)
    vq0, dq0 = list(k.vq), list(k.dq)
    for isV in (0, 1):
        if isV:
            k.label("L_k1_vpath"); k.win = []; k.vq = list(vq0); k.dq = list(dq0)
        b = phase1_stream(isV)
        if S1: k.nstamp = 0
        for st in range(8):
            p = st & 1
            k.stamp(S1)
            g = {}; gt = {}; scal = {}
            for pr in range(4):
                s2, p2 = (st, pr + 1) if pr < 3 else (st + 1, 0)
                if s2 < 8:
                    for q, s in enumerate(areads(s2, p2)):
                        x = 32 * pr + 3 + 4 * q
                        g[x] = [s]; gt[x] = f'A{s2}_{p2}'
                    scal.setdefault(32 * pr + 30, []).append(('w', f'A{s2}_{p2}'))
            if st < 7:
                free = [x for x in range(65, 122, 2) if x not in g]
                for n, grp in enumerate(wfreads(st + 1)):
                    x = free[(n * len(free)) // 16]
                    g[x] = grp; gt[x] = f'W{st+1}'
                scal.setdefault(127, []).append(('w', f'W{st+1}'))
                scal.setdefault(61, []).append(('v', f'w{st+1}d')); scal.setdefault(62, []).append("s_barrier")
                scal.setdefault(93, []).append(('v', f'a{st+1}d')); scal.setdefault(94, []).append("s_barrier")
            if st == 0:
                ops = []
                for h, nm in enumerate(('w1', 'a1')):
                    if nm not in '/'.join(PRO):
                        ops += [(t, s, nm + 'd') for t, s in dma_ops(1)[10*h:10*h+10]] + [('v', s, None) for s in adv_ops(1)[4*h:4*h+4]]
                place_vm(g, gt, scal, ops, 2, int(opt.get('st1s', 2)))
                pfc[0] = 2 + PFN
                for q in range(int(opt.get('pfk', 2))):
                    po = pf_ops()
                    assert 44 + 4 * q not in g
                    g[44 + 4 * q] = [po[0]]; gt[44 + 4 * q] = 'pf'; g[45 + 4 * q] = po[1:] + g.get(45 + 4 * q, [])
            if st < 6:
                d = dma_ops(p); adv = adv_ops(st + 2) if st < 5 else []
                ops = [(t, s, f'w{st+2}d') for t, s in d[:10]] + [('v', s, None) for s in adv[:4]] + \
                      [(t, s, f'a{st+2}d') for t, s in d[10:]] + [('v', s, None) for s in adv[4:]]
                place_vm(g, gt, scal, ops, 64, 4)
                if pfc[0] < 8:
                    po = pf_ops()
                    g[126] = [po[0]] + g.get(126, []); gt[126] = 'pf'
                    g[127] = [po[1]] + g.get(127, []) + [po[2]]
            elif st == 6:
                ops = []
                for c in range(4): ops += [(t, s, f'w{c}') for t, s in chunk_ops(('w', c))]
                place_vm(g, gt, scal, ops, 64, 4)
            else:
                XB = int(opt.get('xb', 28))
                tg = 'v' if isV else 'k'
                scal.setdefault(XB - 2, []).append(('v', 'w0'))
                scal.setdefault(XB, []).extend(["v_readfirstlane_b32 s3, v1", "s_nop 0", "s_or_b32 s3, s3, s37", "s_cmp_lt_u32 s3, 256",
                                                f"s_cbranch_scc1 L_spinA{tg}", f"L_spinAr{tg}:", "s_barrier"])
                ops = []
                for kk in range(4): ops += [(t, s, f'x{kk}') for t, s in xn_ops(kk)]
                place_vm(g, gt, scal, ops, XB + 4, int(opt.get('xs7', 6)) & ~1)
                for n, grp in enumerate(wreads(0)):
                    assert 105 + 2 * n not in g
                    g[105 + 2 * n] = grp
                for n in range(26):
                    b.at(14 + (4 * n + 8) / 64.0)
                    r = SRC(n)[1]
                    for q in range(4): b.e(f"v_cvt_pk_bf16_f32 v{PK(n)+q}, v{r+2*q}, v{r+2*q+1}")
                    m_ = (n * NS7) // 26
                    if (n + 1) * NS7 // 26 > m_:
                        for x in kvstore_ops(m_): b.e(x, tag='kvst')
            if isV: order = [(2 * pr + h, jd, ks) for pr in range(4) for jd in range(8) for h in range(2) for ks in range(2)]
            else: order = [(it, jd, ks) for it in range(8) for jd in range(8) for ks in range(2)]
            for n, (it, jd, ks) in enumerate(order):
                if st == 0:
                    k.wait_ds('A0_0'); k.wait_ds(f'W0_{jd}')
                fa, fw_ = A(FA(it, ks), 4), A(FW(p, jd, ks), 4)
                d = acc(isV, it, jd)
                c = "0" if (st == 0 and ks == 0) else d
                k.e(mfma(d, fa, fw_, c) if isV else mfma(d, fw_, fa, c))
                for x in scal.get(n, []):
                    if isinstance(x, tuple): (k.wait_ds if x[0] == 'w' else k.wait_vm)(x[1])
                    elif x.endswith(':'): k.label(x[:-1])
                    else: k.e(x)
                if n in g:
                    for s in g[n]: k.e(s, tag=gt.get(n))
                elif n not in scal:
                    b.fill(k, 2 * st + n / 64.0)
        print(f"phase1 isV={isV}: items left {len(b.items)}")
        k.stamp(S1)
        b.drain(k)
        k.stamp(S1)
        if not isV:
            k.e("s_branch L_phase2")
            vqK = list(k.vq)
    assert vqK == k.vq
    k.label("L_phase2")
    k.win = []
    k.e("s_nop 7")
    k.stamp(ST)

    b = Rec()
    KY = 56
    SPK = float(opt.get('spk', 2))
    def kvstore(n):
        if n < NS7: return
        b.at((n - NS7) / SPK)
        for x in kvstore_ops(n): b.e(x, tag='kvst')
    for n in range(26):
        kvstore(n)
        if 8 <= n < 14:
            m = n + 18
            for q in range(8): b.e(f"v_accvgpr_read_b32 v{48+q}, a{SRC(m)[1]+q}")
            for q in range(4): b.e(f"v_cvt_pk_bf16_f32 v{PK(m)+q}, v{48+2*q}, v{49+2*q}")
    for n in range(26, 32): kvstore(n)
    b.e("v_mov_b32 v12, 1")
    b.e("v_and_b32 v1, 15, v0")
    b.e("v_lshlrev_b32 v1, 2, v1")
    b.e("s_lshr_b32 s6, s33, 1")
    b.e("s_lshl_b32 s6, s6, 7")
    b.e(f"s_add_u32 s6, s6, {WS_FLG}")
    b.blk(["s_cmp_eq_u32 s32, 0", f"s_cselect_b32 s6, s6, {BIG}"])
    SIG = int(opt.get('sig', 21))
    POL = float(opt.get('pol', 26.5))
    b.at(SIG)
    b.blk(["s_mov_b64 exec, 1", "buffer_store_dword v12, v7, s[20:23], s39 offen sc1", "s_mov_b64 exec, -1"])
    b.at(POL)
    b.e("buffer_load_dword v12, v1, s[20:23], s6 offen sc1", tag='poll')
    CK = int(opt.get('ck', 29))
    n_ = 0
    for j in (0, 2, 1, 3, 4, 5, 6):
        for t, s in chunk_ops(('kv', j)):
            if t == 'g':
                b.at(max(CK + n_ * float(opt.get('kvp', 0.09)), {4: 25, 5: 27, 6: 29}.get(j, 0))); n_ += 1
            b.e(s, tag=f'c{16+j}')
    def spinB():
        k.e("s_mov_b32 s59, 0x400000")
        k.label("L_spinB_l")
        k.e(f"s_sleep {opt.get('slp', 4)}")
        k.e("buffer_load_dword v12, v1, s[20:23], s6 offen sc1")
        k.e("s_sub_u32 s59, s59, 1")
        k.e("s_cmp_eq_u32 s59, 0")
        k.e("s_cbranch_scc1 L_spinBx")
        k.e("s_waitcnt vmcnt(0)")
        k.e("v_cmp_ne_u32 vcc, 1, v12")
        k.e("s_cbranch_vccnz L_spinB_l")
        k.label("L_spinBx")
        k.e("s_waitcnt vmcnt(0)")
    ool.append(("L_spinB", spinB, "L_spinBr"))

    b1 = b
    b = Rec()
    srd_rec(b, 60, 40, 7340032)
    RT = [float(x) for x in opt.get('rt', '0,5').split(',')] if '6' in CPF else []
    for x in RT:
        b.at(x)
        b.e("global_load_dword v13, v[14:15], off", tag='keys')
    b.at((17 - NS7) / SPK + 1)
    b.e(f"s_mov_b32 s3, {WS_KEYS}")
    b.e(f"s_mov_b32 s47, {WS_KEYS + 4096}")
    for i in range(8):
        b.e(f"buffer_load_dwordx4 {V(KY+4*i,4)}, v{VX}, s[20:23], s{3 if i < 4 else 47} offen offset:{(i % 4)*1024} sc1", tag='keys')
    b.at((17 - NS7) / SPK + 8)
    b.wait_vm('keys')
    b.e(f"v_max_u32 v14, v{KY}, v{KY+1}")
    b.e(f"v_min_u32 v15, v{KY}, v{KY+1}")
    for i in range(2, 32):
        b.e(f"v_med3_u32 v15, v14, v15, v{KY+i}"); b.e(f"v_max_u32 v14, v14, v{KY+i}")
    def wmax(v, sdst):
        for m in ["quad_perm:[1,0,3,2]", "quad_perm:[2,3,0,1]", "row_half_mirror", "row_mirror"]:
            b.blk([f"v_max_u32_dpp {v}, {v}, {v} {m} row_mask:0xf bank_mask:0xf"])
        b.blk([f"v_readlane_b32 s3, {v}, 0", f"v_readlane_b32 s47, {v}, 16"])
        b.blk([f"v_readlane_b32 s4, {v}, 32", f"v_readlane_b32 s5, {v}, 48"])
        b.blk(["s_max_u32 s3, s3, s47", "s_max_u32 s4, s4, s5", f"s_max_u32 s{sdst}, s3, s4"])
    b.e("v_mov_b32 v13, v14")
    wmax("v13", 40)
    b.blk(["v_cmp_eq_u32 vcc, s40, v14"])
    b.blk(["v_cndmask_b32 v13, v14, v15, vcc"])
    wmax("v13", 41)
    for t in range(2):
        b.e(f"s_and_b32 s3, s{40+t}, 0xffff")
        b.e(f"s_sub_u32 s{42+t}, 0xffff, s3")
    for t in range(2):
        b.e(f"v_mov_b32 v60, s{40+t}")
        b.e("v_not_b32 v61, v60")
        b.e("v_ashrrev_i32 v61, 31, v61")
        b.e("v_or_b32 v61, 0x80000000, v61")
        b.e("v_xor_b32 v60, v60, v61")
        b.e("v_and_b32 v60, 0xffff0000, v60")
        b.e("v_mul_f32 v60, 0xbfb8aa3b, v60")
        b.e("v_exp_f32 v60, v60")
        b.e("v_add_f32 v60, 1.0, v60")
        b.e("v_rcp_f32 v60, v60")
        b.e("v_cvt_pk_bf16_f32 v60, v60, v60")
        b.e(f"v_and_b32 v{64+t}, 0xffff0000, v60")
    for r in range(16): b.e(f"v_mov_b32 v{LS+r}, 0")
    WARM = opt.get('warm', '1') == '1'
    if WARM:
        WC = int(opt.get('wc', 4))
        upc = 64 - WC * WC
        seg = upc * 32 * 4 * 128
        bufs = [(94, 7340032), (100, 4194304), (60, 7340032), (68, 7340032)] + ([] if WOT else [(92, 8388608)])
        b.e("s_mul_i32 s3, s34, s34")
        b.e(f"s_mul_i32 s47, s33, {upc}")
        b.e("s_add_u32 s3, s3, s47")
        b.e("s_lshl_b32 s3, s3, 2")
        b.e("s_add_u32 s3, s3, s32")
        b.e("s_lshl_b32 s3, s3, 7")
        b.e(f"s_sub_u32 s3, s3, {512 + WC * WC * 512}")
        b.blk([f"s_cmp_ge_u32 s34, {WC}", "s_cselect_b32 s3, s3, 0", "s_cselect_b32 s40, 512, 0", f"s_cselect_b32 s47, {seg}, 0"])
        first = 0
        for j, (lo, size) in enumerate(bufs):
            b.e(f"v_subrev_u32 v31, {first}, v0")
            b.e("v_mul_lo_u32 v31, v31, s47")
            b.e(f"v_min_u32 v31, {size - seg}, v31")
            if j == 0:
                b.e(f"v_mov_b32 v28, s{lo}"); b.e(f"v_mov_b32 v29, s{lo+1}"); b.e("v_mov_b32 v30, v31")
            else:
                b.e(f"v_mov_b32 v14, s{lo}"); b.e(f"v_mov_b32 v15, s{lo+1}")
                b.blk([f"v_cmp_le_u32 vcc, {first}, v0"])
                b.blk(["v_cndmask_b32 v28, v28, v14, vcc", "v_cndmask_b32 v29, v29, v15, vcc"])
                b.blk(["v_cndmask_b32 v30, v30, v31, vcc"])
            first += -(-size // seg)
        assert first <= 64, first
        b.e("v_add_u32 v30, s3, v30")
        b.e("v_ashrrev_i32 v31, 31, v30")
        b.e("v_lshl_add_u64 v[28:29], v[30:31], 0, v[28:29]")
        b.e("s_mov_b32 s41, 0")
    b.e("v_readfirstlane_b32 s100, v64")
    b.e("v_readfirstlane_b32 s101, v65")
    b.at(SIG)
    for j in range(3): b.e(f"s_mov_b32 s{24+j}, s{60+j}")
    b.e(f"s_mov_b32 s94, {QSCALE}")
    b.e(f"s_mov_b32 s95, {QSCALE}")
    b.e("s_sub_u32 s55, 15, s34")
    b.e("s_sub_u32 s45, s36, 3")
    b.e("s_sub_u32 s46, s35, 3")
    b.e("s_mov_b32 s54, s44")
    b.e("s_sub_u32 s35, s35, 2")
    b.e("s_sub_u32 s36, s36, 2")
    b2 = b
    b3 = Rec()
    WT0 = float(opt.get('wt0', 18))
    WTB = int(opt.get('wtb', 23))
    WTG = int(opt.get('wtg', 8))
    b3.e("s_lshr_b32 s52, s2, 1")
    b3.e("s_lshl_b32 s52, s52, 16")
    b3.e("s_and_b32 s53, s2, 1")
    b3.e("s_lshl_b32 s53, s53, 10")
    b3.e("s_add_u32 s52, s52, s53")
    b3.e("s_lshl_b32 s53, s32, 14")
    b3.e("s_add_u32 s52, s52, s53")
    srd_rec(b3, 28, 92, 8388608)
    for j in range(8):
        b3.at(WT0 + 2 * (j // WTG))
        b3.blk([f"s_add_u32 m0, s57, {65536 + j * 1024}", f"v_xor_b32 v88, {j * 32}, v{VX}",
                (f"buffer_load_dwordx4 v88, s[28:31], s52 offen{opt.get('wo_ld', '')} lds", 'wo'), "s_add_u32 s52, s52, 2048"])
    b3.e("v_lshrrev_b32 v89, 2, v0")
    b3.e("v_lshlrev_b32 v89, 10, v89")
    b3.e("s_lshl_b32 s53, s32, 8")
    b3.e("s_add_u32 s53, s53, 65536")
    b3.e("v_add_u32 v89, s53, v89")
    b3.e("v_mov_b32 v90, 0xff")
    srd_rec(b3, 28, 66, 16 * WO_NT, WS_WOT)
    b3.e("s_and_b32 s52, s2, 1")
    b3.e("s_lshl_b32 s52, s52, 2")
    b3.e("s_add_u32 s52, s52, s32")
    b3.e(f"s_mul_i32 s52, s52, {2 * WO_NT}")
    b3.e("s_lshr_b32 s53, s2, 1")
    b3.e("s_lshl_b32 s53, s53, 12")
    b3.e("s_add_u32 s52, s52, s53")
    b3.at(WTB)
    for q in range(8):
        b3.e(f"v_and_or_b32 v{92 + (q & 1)}, v{TA+q}, v90, v89")
        for rd in range(2):
            b3.e(f"ds_read_b64_tr_b16 {V(96 + 4*q + 2*rd, 2)}, v{92 + (q & 1)} offset:{rd*16384}", tag='wt')
    for q in range(8):
        b3.at(WTB + 1.2 + 0.5 * q)
        b3.wait_ds('wt')
        b3.e(f"buffer_store_dwordx4 {V(96 + 4*q, 4)}, v{VX}, s[28:31], s52 offen offset:{(q & 3)*1024} sc1", tag='wts')
        if q == 3: b3.e(f"s_add_u32 s52, s52, {WO_NT}")
    b3.e("s_and_b32 s52, s2, 1")
    b3.e("s_lshl_b32 s52, s52, 9")
    b3.e("s_lshr_b32 s93, s2, 1")
    b3.e("s_lshl_b32 s93, s93, 2")
    b3.e("s_add_u32 s52, s52, s93")
    b3.e(f"s_add_u32 s52, s52, {WS_WFL}")
    b3.blk(["s_cmp_eq_u32 s32, 0", f"s_cselect_b32 s52, s52, {BIG}"])
    b3.e("v_mov_b32 v24, 1")
    b3.e("v_mov_b32 v25, 0")
    if not WOT: b3.items = []
    PKM = opt.get('pkm', '0') == '1'
    def conv_items(qb):
        r_ = Rec()
        for s_ in range(4):
            r = QA(2 * s_, qb)
            if PKM:
                for e_ in range(0, 8, 2): r_.e(f"v_pk_mul_f32 {V(r+e_,2)}, {V(r+e_,2)}, s[94:95]")
            else:
                for e_ in range(8): r_.e(f"v_mul_f32 v{r+e_}, s94, v{r+e_}")
            for e_ in range(4): r_.e(f"v_cvt_pk_bf16_f32 v{r+e_}, v{r+2*e_}, v{r+2*e_+1}")
            for e_ in range(4): r_.e(f"v_accvgpr_write_b32 a{Q(qb,s_)+e_}, v{r+e_}")
        r_.items.append(('mark', f'conv{qb}', None))
        return r_.items
    p2_start = len(k.lines)
    XLA = int(opt.get('xla', 5))
    xsched = {}; nx_ = 4
    for kk in range(32):
        xsched[kk] = []
        while nx_ < 32 and nx_ <= kk + XLA and len(xsched[kk]) < 2:
            xsched[kk].append(nx_); nx_ += 1
    for kk in range(32):
        st, ks = kk // 2, kk & 1
        k.stamp(S2 and kk in (0, 4, 8, 12, 16, 20, 24, 28, 31))
        need = [f'x{kk}']
        if ks == 1 and st < 15: need.append(f'w{st+1}')
        if kk == SIG:
            assert not any(it[2] == 'kvst' for it in b1.items), "stores not all issued before SIG"
            need.append('kvst')
        if kk == WTB:
            assert not any(it[0] == 'b' and any(isinstance(x, tuple) for x in it[1]) for it in b3.items)
            need.append('wo')
        if kk == CK:
            assert not b3.items
            need.append('poll')
        if kk == 31: need.append('c16')
        w = [x for x in (k.vm_n(t) for t in need) if x is not None]
        k.e("s_waitcnt " + (f"vmcnt({min(w)}) " if w else "") + "lgkmcnt(0)")
        for t in need: k.use(t)
        if kk == CK:
            assert not any('vcc' in str(it[1]) for it in b2.items)
            k.e("s_cmp_lg_u32 s32, 0")
            k.e("s_cbranch_scc1 L_spinBr")
            k.e("v_cmp_ne_u32 vcc, 1, v12")
            k.e("s_cbranch_vccnz L_spinB")
            k.label("L_spinBr")
        if ks == 1: k.e("s_barrier")
        g = {}; gt = {}
        if kk + 1 < 32:
            for n, grp in enumerate(wreads(kk + 1)):
                g[1 + 3 * n] = (["s_waitcnt lgkmcnt(6)"] if n == 5 else []) + grp
        vm = []
        if ks == 1 and st + 4 < 16: vm += [(t, s, f'w{st+4}') for t, s in chunk_ops(('w', st + 4))]
        for x in xsched.get(kk, []): vm += [(t, s, f'x{x}') for t, s in xn_ops(x)]
        ng = sum(1 for x in vm if x[0] == 'g')
        free = [x for x in range(2, 32) if x not in g]
        pick = [free[(j * len(free)) // ng] for j in range(ng)] if ng else []
        j = 0
        for t, s, tg in vm:
            if t == 'g': g[pick[j]] = [s]; gt[pick[j]] = tg; j += 1
            elif t == 's':
                q = pick[j] - 1
                if q in gt: g[q].append(s)
                else: g.setdefault(q, []).insert(0, s)
            else: g[pick[j - 1]].append(s)
        order = [(db, qb) for db in range(8) for qb in range(4)]
        if kk == 31:
            order = [(db, qb) for qb in range(4) for db in range(8)]
            assert not b2.items, len(b2.items)
            for kb in range(2):
                for s_ in range(4): b2.e(f"ds_read_b128 {A(FR(kb,s_),4)}, v{VY} offset:{(kb*4+s_)*1024}", tag=f'k{kb}')
            b2.at(31 + 12 / 32.0)
            b2.items += conv_items(0) + conv_items(1)
        elif kk > 24:
            for r in range(16): b2.e(f"v_accvgpr_write_b32 a{XR(kk-1,0)+r}, 0")
        for n, (db, qb) in enumerate(order):
            k.e(mfma(V(QA(db, qb), 4), A(WF(kk, db), 4), A(XR(kk, qb), 4), V(QA(db, qb), 4) if kk else "0"))
            if n in g:
                for s in g[n]: k.e(s, tag=gt.get(n))
            else:
                nl = k.ni
                b1.fill(k, kk + n / 32.0)
                if k.ni == nl: b3.fill(k, kk + n / 32.0)
                if k.ni == nl: b2.fill(k, kk + n / 32.0)
    print("phase2 items left", len(b1.items), len(b2.items))
    b1.drain(k)
    grp_ = None
    for ln in k.lines[p2_start:] + ["s_mov_b32 m0, 0"]:
        if ' m0,' in ln:
            assert grp_ is None or (len(set(grp_)) == 1 and len(grp_) == (1 if grp_[0] == 's[28:31]' else 4)), grp_
            grp_ = []
        elif ' lds' in ln: grp_.append(ln.split(', ')[1])
    k.stamp(ST or S2)
    XS = 160
    def ffn_issue():
        for t in range(2):
            k.e(f"s_lshr_b32 s3, s{42+t}, 4")
            k.e(f"s_mul_i32 s3, s3, {XN_RB}")
            k.e(f"s_and_b32 s47, s{42+t}, 15")
            k.e("s_lshl_b32 s47, s47, 4")
            k.e("s_add_u32 s3, s3, s47")
            k.e(f"v_mov_b32 v{28+t}, s3")
        k.e("v_lshrrev_b32 v24, 4, v0")
        k.e("v_and_b32 v25, 15, v0")
        k.e("v_cmp_eq_u32 vcc, 1, v25")
        k.e("s_lshl_b32 s3, s32, 4")
        k.e("v_add_u32 v26, s3, v24")
        k.e("v_cndmask_b32 v28, v28, v29, vcc")
        k.e("v_lshl_add_u32 v28, v24, 8, v28")
        k.e("v_mul_u32_u24 v26, 7168, v26")
        k.e("v_lshlrev_b32 v24, 1, v24")
        k.e("v_xor_b32 v24, v24, v25")
        k.e("v_xor_b32 v25, 8, v24")
        k.e("v_lshl_add_u32 v24, v24, 4, v26")
        k.e("v_lshl_add_u32 v25, v25, 4, v26")
        k.e("s_lshl_b32 s3, s92, 12")
        for q in range(4):
            k.e(f"buffer_load_dwordx4 {A(XS+4*q,4)}, v28, s[20:23], s3 offen offset:{q*1024} sc1")
        ops = []
        for m, srd in enumerate((24, 68)):
            for h in range(2):
                for q in range(4):
                    pre = [f"s_add_u32 m0, s54, {m*32768 + h*16384}"] if q == 0 else []
                    ops.append((pre + [f"s_add_u32 s3, s5, {h*64*7168 + q*27648}"],
                                f"buffer_load_dwordx4 v{24 + (q >> 1)}, {S(srd,4)}, s3 offen offset:{q*1024}{ffn_ld} lds"))
        return ops
    def ffn_finish():
        k.e("v_lshrrev_b32 v24, 4, v0")
        k.e("v_bfe_u32 v25, v0, 2, 2")
        k.e("v_lshl_add_u32 v26, v24, 3, v25")
        k.e("v_lshlrev_b32 v26, 8, v26")
        k.e("v_and_b32 v27, 3, v0")
        k.e("v_lshl_add_u32 v26, v27, 3, v26")
        k.e("v_and_b32 v27, 1, v24")
        k.e("v_lshl_add_u32 v25, v27, 2, v25")
        k.e("s_lshl_b32 s3, s32, 1")
        k.e("v_xor_b32 v25, s3, v25")
        k.e("v_lshl_add_u32 v26, v25, 5, v26")
        k.e("s_sub_u32 s3, s54, s44")
        k.e("v_add_u32 v26, s3, v26")
        k.e("v_xor_b32 v27, 32, v26")
        k.e("s_waitcnt vmcnt(8) lgkmcnt(0)")
        k.use('ffn')
        k.e("s_barrier")
        for m in range(2):
            for q in range(4):
                for j in range(2):
                    for rd in range(2):
                        k.e(f"ds_read_b64_tr_b16 {V(128 + 32*m + 8*q + 4*j + 2*rd, 2)}, v{26+j} offset:{m*32768 + q*8192 + rd*1024}", tag=f'f{m}')
        k.e("v_and_b32 v25, 15, v0")
        k.e("v_mul_u32_u24 v28, 14336, v25")
        k.e("v_lshl_add_u32 v28, v24, 4, v28")
        k.e(f"v_mov_b32 v29, {BIG}")
        k.e("v_cmp_gt_u32 vcc, 2, v25")
        k.e(f"s_mul_i32 s3, s92, {4*14336}")
        k.e("s_lshl_b32 s47, s4, 9")
        k.e("s_add_u32 s3, s3, s47")
        k.e("v_cndmask_b32 v28, v29, v28, vcc")
        k.e("s_lshl_b32 s47, s32, 7")
        k.e("s_add_u32 s3, s3, s47")
        k.e(f"s_add_u32 s3, s3, {WS_HP}")
        for m in range(2):
            k.wait_ds(f'f{m}')
            for q in range(4):
                for j in range(2):
                    d = V(224 + 8 * m + 4 * j, 4)
                    k.e(mfma(d, V(128 + 32*m + 8*q + 4*j, 4), A(XS + 4*q, 4), d if q else "0"))
    def ffn_store():
        k.e("s_cmp_lt_u32 s93, 224")
        k.e(f"s_cselect_b32 s3, s3, {1 << 23}")
        k.e(f"s_add_u32 s7, s3, {2*14336}")
        for m in range(2):
            for j in range(2):
                k.e(f"buffer_store_dwordx4 {V(224 + 8*m + 4*j, 4)}, v28, s[20:23], s{7 if m else 3} offen offset:{j*64} sc1", tag='hps')

    def kread(reg, off, kb):
        return [f"ds_read_b128 {A(FR(kb,s_),4)}, v{reg} offset:{off + (kb*4+s_)*1024}" for s_ in range(4)]
    def vread(reg, off, vg):
        return [f"ds_read_b128 {A(FR(vg,j),4)}, v{reg} offset:{off + ((j & 1)*8 + 2*vg + (j >> 1))*1024}" for j in range(4)]
    def qk_mfmas(par, nq, zero=False):
        out = []
        for kb in range(4):
            grp = []
            for qb in range(nq):
                d = V(Sr(par, qb, kb), 4)
                for s_ in range(4):
                    c = d if s_ else ("0" if zero else V(NEGM + 4 * qb, 4))
                    grp.append(mfma(d, A(FR(kb, s_), 4), A(Q(qb, s_), 4), c))
            out.append(grp)
        return out
    def pv_mfmas(par, nq):
        out = []
        for vg in range(4):
            grp = []
            for dd in range(2):
                for qb in range(nq):
                    for ks in range(2):
                        o = A(O(qb, 2 * vg + dd), 4)
                        grp.append(mfma(o, A(FR(vg, 2 * dd + ks), 4), V(P(par, qb, ks), 4), o))
            if vg < nq:
                for ks in range(2):
                    l = V(LS + 4 * vg, 4)
                    grp.append(mfma(l, V(ONES, 4), V(P(par, vg, ks), 4), l))
            out.append(grp)
        return out
    def sm_pairs(par, nq, ks):
        out = []
        for kq in range(2):
            for qb in range(nq):
                s0 = Sr(par, qb, 2 * ks + kq)
                for h in range(2):
                    out.append((s0 + 2 * h, s0 + 2 * h + 1, P(par, qb, ks) + 2 * kq + h))
        return out
    class SM:
        def __init__(self, pairs, first, check):
            self.pairs = pairs; self.ne = 0; self.nc = 0; self.no = 0; self.first = first
            self.tail = [f"v_and_b32 v{T0}, 0x40004000, v{ORR}", f"v_cmp_ne_u32 vcc, 0, v{T0}"] if check else []
            self.e_done = 0; self.extra = []
        def tick(self): self.e_done = self.ne
        def exp_ready(self): return self.ne < 2 * len(self.pairs) and self.ne // 2 - self.nc < 4
        def exp(self):
            j, h = self.ne // 2, self.ne & 1; self.ne += 1
            return f"v_exp_f32 v{ET + 2*(j % 4) + h}, v{self.pairs[j][h]}"
        def plain_avail(self):
            n = min(self.e_done // 2, len(self.pairs)) - self.nc
            n += self.nc // 2 - self.no
            if self.no == len(self.pairs) // 2: n += len(self.tail)
            return n + len(self.extra)
        def plain(self):
            if self.nc < min(self.e_done // 2, len(self.pairs)):
                j = self.nc; self.nc += 1
                return f"v_cvt_pk_bf16_f32 v{self.pairs[j][2]}, v{ET + 2*(j % 4)}, v{ET + 2*(j % 4) + 1}"
            if self.no < self.nc // 2:
                j = self.no; self.no += 1
                a, b = self.pairs[2 * j][2], self.pairs[2 * j + 1][2]
                if self.first and j == 0: return f"v_or_b32 v{ORR}, v{a}, v{b}"
                return f"v_or3_b32 v{ORR}, v{ORR}, v{a}, v{b}"
            if self.no == len(self.pairs) // 2 and self.tail: return self.tail.pop(0)
            if self.extra: return self.extra.pop(0)
            return None
        def left_exp(self): return 2 * len(self.pairs) - self.ne
        def left_plain(self): return len(self.pairs) - self.nc + len(self.pairs) // 2 - self.no + len(self.tail) + len(self.extra)
        def done(self): return self.left_exp() == 0 and self.left_plain() == 0
        def drain(self):
            while not self.done():
                self.tick()
                if self.exp_ready():
                    k.e(self.exp())
                    if self.exp_ready(): k.e(self.exp())
                    x = self.plain()
                    if x: k.e(x)
                else:
                    k.e(self.plain())
    def phase(groups, gtags, reads, rtags, sm, vm, nexttag):
        total = sum(len(g) for g in groups)
        vmpos = {}
        if vm:
            step = max(2, (total - 2) // len(vm))
            for j, x in enumerate(vm): vmpos[1 + j * step] = x
        n = 0
        k.wait_ds(gtags[0])
        for gi, grp in enumerate(groups):
            rq = list(reads[gi])
            for mi, m in enumerate(grp):
                k.e(m)
                sm.tick()
                scal = []
                if n + 1 in vmpos: scal += vmpos[n + 1][0]
                lastm = mi == len(grp) - 1
                if n in vmpos:
                    for s in scal: k.e(s)
                    k.e(vmpos[n][1], tag='kv')
                    slots = 0
                else:
                    for s in scal: k.e(s)
                    if lastm:
                        nt = gtags[gi + 1] if gi + 1 < len(groups) else nexttag
                        if nt: k.wait_ds(nt)
                    slots = 2
                    gaps_left = len([x for x in range(n, n + len(grp) - mi) if x not in vmpos])
                    want_d = len(rq) > 0 and (sm.plain_avail() > 0 or not sm.exp_ready() or len(rq) >= gaps_left - 1)
                    if want_d:
                        k.e(rq.pop(0), tag=rtags[gi]); slots -= 1
                        if rq and (sm.plain_avail() == 0 or len(rq) >= gaps_left):
                            k.e(rq.pop(0), tag=rtags[gi]); slots -= 1
                    if slots == 2 and sm.exp_ready() and not (sm.plain_avail() >= 3 and not rq):
                        k.e(sm.exp()); slots = 0
                    while slots > 0:
                        x = sm.plain()
                        if not x: break
                        k.e(x); slots -= 1
                if lastm:
                    for s in rq: k.e(s, tag=rtags[gi])
                    nt = gtags[gi + 1] if gi + 1 < len(groups) else nexttag
                    if nt: k.wait_ds(nt)
                n += 1
        sm.drain()

    def mask_block(par, qb):
        vr = VRA if qb & 1 else VRB
        for kb in range(4):
            for r in range(4): k.e(f"v_cmp_gt_i32 s[{56+2*r}:{57+2*r}], {16*kb + r}, v{vr}")
            if kb == 0: k.e("s_nop 3")
            for r in range(4):
                x = Sr(par, qb, kb) + r
                k.e(f"v_cndmask_b32 v{x}, v{x}, v{NINF}, s[{56+2*r}:{57+2*r}]")
    def rowmax(par, qb, d, o=k):
        s0 = Sr(par, qb, 0)
        o.e(f"v_max3_f32 v{d}, v{s0}, v{s0+1}, v{s0+2}")
        for r in range(3, 15, 2): o.e(f"v_max3_f32 v{d}, v{d}, v{s0+r}, v{s0+r+1}")
        o.e(f"v_max_f32 v{d}, v{d}, v{s0+15}")
        o.e(f"v_mov_b32 v{T0}, v{d}")
        o.e(f"v_permlane16_swap_b32 v{T0}, v{d}")
        o.e(f"v_max_f32 v{d}, v{d}, v{T0}")
        o.e(f"v_mov_b32 v{T0}, v{d}")
        o.e(f"v_permlane32_swap_b32 v{T0}, v{d}")
        o.e(f"v_max_f32 v{d}, v{d}, v{T0}")
        o.e(f"v_add_f32 v{d}, {opt.get('moff', '0x41f80000')}, v{d}")
    def fallback(par, nq, nqn):
        k.e("s_nop 7")
        for qb in range(nq):
            rowmax(par, qb, 21)
            k.e("v_max_f32 v21, 0, v21")
            for r in range(16): k.e(f"v_sub_f32 v{Sr(par,qb,0)+r}, v{Sr(par,qb,0)+r}, v21")
            if qb < nqn:
                for r in range(16): k.e(f"v_sub_f32 v{Sr(par^1,qb,0)+r}, v{Sr(par^1,qb,0)+r}, v21")
            for r in range(4): k.e(f"v_sub_f32 v{NEGM+4*qb+r}, v{NEGM+4*qb+r}, v21")
            k.e("v_exp_f32 v22, -v21")
            for r in range(4): k.e(f"v_mul_f32 v{LS+4*qb+r}, v{LS+4*qb+r}, v22")
            for r0 in range(0, 32, 8):
                for r in range(8): k.e(f"v_accvgpr_read_b32 v{ET+r}, a{O(qb,0)+r0+r}")
                for r in range(8): k.e(f"v_mul_f32 v{ET+r}, v{ET+r}, v22")
                for r in range(8): k.e(f"v_accvgpr_write_b32 a{O(qb,0)+r0+r}, v{ET+r}")
        for ks in range(2):
            for (s0, s1, pd) in sm_pairs(par, nq, ks):
                k.e(f"v_exp_f32 v{ET}, v{s0}")
                k.e(f"v_exp_f32 v{ET+1}, v{s1}")
                k.e(f"v_cvt_pk_bf16_f32 v{pd}, v{ET}, v{ET+1}")
        k.e("s_nop 1")
    SPLIT = {4: (32, 16, 8), 3: (36, 18, 9), 2: (17, 8, 4), 1: (16, 8, 4), 0: (0, 0, 0)}
    def tile_sm(par, nq, start, check):
        sm = SM(sm_pairs(par, nq, 0) + sm_pairs(par, nq, 1), True, check)
        sm.ne, sm.nc, sm.no = start; sm.e_done = sm.ne
        return sm
    def pack(ngaps, vmg, dsl, sm, limit, last_sm, pre):
        plan = {}
        dsl = list(dsl)
        def exp_ok(): return sm.exp_ready() and (limit is None or sm.ne < limit[0])
        def plain_n():
            n = min(sm.e_done // 2, len(sm.pairs), limit[1] if limit else 1 << 30) - sm.nc
            n += min(sm.nc // 2, limit[2] if limit else 1 << 30) - sm.no
            if limit is None and sm.no == len(sm.pairs) // 2: n += len(sm.tail)
            return n + len(sm.extra)
        def take_plain():
            if limit is not None:
                c_ok = sm.nc < min(sm.e_done // 2, limit[1]); o_ok = sm.no < min(sm.nc // 2, limit[2])
                if not c_ok and not o_ok: return sm.extra.pop(0) if sm.extra else None
                if not c_ok:
                    keep = sm.e_done; sm.e_done = 2 * sm.nc; x = sm.plain(); sm.e_done = keep; return x
            return sm.plain()
        for g in range(-1 if pre else 0, ngaps):
            if g in vmg: sm.tick(); continue
            sm.tick()
            ops = []
            smok = g <= last_sm
            av = [d for d in dsl if d[2] <= g]
            free_to = lambda dl: len([x for x in range(g, dl + 1) if x not in vmg])
            urgent = any(sum(1 for d in dsl if d[3] <= e[3]) >= 2 * free_to(e[3]) - 1 for e in av)
            pn = plain_n() if smok else 0
            if smok and exp_ok() and not urgent and not (av and pn) and not (pn >= 3):
                ops.append((sm.exp(), None))
            else:
                slots = 2
                if av and g >= 0:
                    d = av.pop(0); dsl.remove(d); ops.append((d[0], d[1])); slots -= 1
                    if av and (pn == 0 or sum(1 for x in dsl if x[3] <= av[0][3]) >= 2 * free_to(av[0][3]) - 1):
                        d = av.pop(0); dsl.remove(d); ops.append((d[0], d[1])); slots -= 1
                while slots and smok:
                    x = take_plain()
                    if not x: break
                    ops.append((x, None)); slots -= 1
                if not ops and smok and exp_ok(): ops.append((sm.exp(), None))
            plan[g] = ops
            if g == last_sm:
                while (limit is None and not sm.done()) or (limit is not None and ((sm.ne, sm.nc, sm.no) != limit or sm.extra)):
                    sm.tick()
                    x = sm.exp() if exp_ok() else take_plain()
                    plan[g].append((x, None)); k.overflow += 1
        assert not dsl, dsl
        return plan
    k.overflow = 0
    SLK = int(opt.get('slk', -1))
    def emit_phase(mf, plan, vmg, scal, bg=None, vtag=None, sbg=None):
        for s_, tg in plan.get(-1, []): k.e(s_, tag=tg)
        for g, m in enumerate(mf):
            k.e(m)
            for x in scal.get(g, []):
                if isinstance(x, tuple) and x[0] == 'u': k.use(x[1])
                elif isinstance(x, tuple) and x[0] == 'call': x[1]()
                elif isinstance(x, tuple): k.wait_ds(x[1])
                elif x.endswith(':'): k.label(x[:-1])
                else: k.e(x)
            if sbg and g > 0 and g not in scal and g not in vmg and sbg.items and sbg.items[0][0] != 'at':
                it = sbg.items.pop(0)
                for x in ([it[1]] if it[0] == 'i' else it[1]): k.e(x)
                if sbg.items[0][0] == 'i' and len(plan.get(g, [])) < 2: k.e(sbg.items.pop(0)[1])
            if g in vmg: k.e(vmg[g], tag=(vtag if ('s39' in vmg[g] or ' s3 ' in vmg[g]) else None))
            else:
                for s_, tg in plan.get(g, []): k.e(s_, tag=tg)
                if bg and not plan.get(g) and g not in scal: bg.fill(k, 99, 3)
    p4s = p4_setup(opt)
    def starts(groups):
        out = [0]
        for g in groups: out.append(out[-1] + len(g))
        return out
    def iteration(par, nq, nqn, mask, name, tail):
        kreg, koff = (VX, 32768) if par == 0 else (VY, 0)
        vreg, voff = (VX, 16384) if par == 0 else (VX, 49152)
        nreg, noff = (VY, 0) if par == 0 else (VY, 32768)
        last = nqn == 1
        k.hot = nqn >= 2
        ov0 = k.overflow
        fb, fr = f"L_k2_fb_{name}", f"L_k2_fbr_{name}"
        ool.append((fb, lambda: fallback(par, nq, nqn), fr))
        sm = tile_sm(par, nq, SPLIT[nq], True)
        if par == 0:
            k.e(f"v_xor_b32 v{VX}, 65536, v{VX}")
            k.e(f"v_xor_b32 v{VY}, 65536, v{VY}")
        if nqn:
            k.dq = ['k1'] * 4
            if nq == 4 and WARM: sm.extra = ["v_lshl_add_u64 v[28:29], s[40:41], 0, v[28:29]"]
            grp = qk_mfmas(par ^ 1, nqn); st_ = starts(grp); n1 = st_[-1]
            slack = SLK if nqn <= 2 else 4
            dsl = [(x, 'k2', 0, st_[1] + slack) for x in kread(kreg, koff, 2)] + [(x, 'k3', 0, st_[2] + slack) for x in kread(kreg, koff, 3)] + \
                  [(x, 'v0', st_[1], st_[3] + slack) for x in vread(vreg, voff, 0)] + [(x, 'v1', st_[2], n1 - 1) for x in vread(vreg, voff, 1)]
            scal = {}
            add = lambda g, xs: scal.setdefault(g, []).extend(xs)
            add(st_[1] - 1, [('w', 'k1')]); add(st_[2] - 1, [('w', 'k2')]); add(st_[3] - 1, [('w', 'k3')])
            vmw = f"s_waitcnt vmcnt({12 + min(int(opt.get('fp1', 4)), 3)})" if last else "s_waitcnt vmcnt(12)"
            if nq == 2:
                add(n1 - 7, ["s_cmp_lt_u32 s37, s52"])
                add(n1 - 6, [f"s_cbranch_scc1 L_nw_{name}", vmw, f"L_nw_{name}:"])
            else:
                add(n1 - 5, [vmw])
            if mask and mask[1]: add(n1 - 4, [f"s_cmp_eq_u32 s37, s{mask[1]}"])
            add(n1 - 3, ([] if 'nochk' in opt else [('u', f'V{par}'), ('u', 'c19' if par == 0 else 'c21'), ('u', 'c20' if par == 0 else 'c22')]) + ["s_barrier"]); add(n1 - 2, [('w', 'v0')]); add(n1 - 1, [f"s_cbranch_vccnz {fb}", fr + ":"])
            vmg = {}
            if last:
                fops = ffn_issue()
                for q in (1, 5, 8, 12)[:int(opt.get('fp1', 4))]:
                    pre, ld = fops.pop(0)
                    vmg[q] = ld; scal.setdefault(q - 1, []).extend(pre)
            else:
                step = (n1 - 8) / 4
                for j in range(4):
                    q = int(1 + j * step)
                    while q in scal or (j == 0 and q - 1 in scal): q += 1
                    vmg[q] = f"buffer_load_dwordx4 v{VDMA}, s[12:15], s38 offen offset:{j*1024}{kv_ld} lds"
                    if j == 0: scal[q - 1] = ["s_mov_b32 m0, s53" if par == 0 else "s_add_u32 m0, s53, 32768"]
            plan = pack(n1, vmg, dsl, sm, None, n1 - 2, par == 1)
            emit_phase(sum(grp, []), plan, vmg, scal, None, 'ffn')
        else:
            k.dq = ['v1'] * 4
            sm.drain()
            k.e(f"s_cbranch_vccnz {fb}")
            k.label(fr)
        grp = pv_mfmas(par, nq); st_ = starts(grp); n2 = st_[-1]
        slack = SLK if nq <= 2 else 4
        dsl = [(x, 'v2', 0, st_[1] + slack) for x in vread(vreg, voff, 2)] + [(x, 'v3', 0, st_[2] + slack) for x in vread(vreg, voff, 3)]
        scal = {st_[1] - 1: [('w', 'v1')], st_[2] - 1: [('w', 'v2')], st_[3] - 1: [('w', 'v3')]}
        vmg = {}
        if nqn:
            nx = [vread(VX, 49152, 0), vread(VX, 49152, 1)] if last else [kread(nreg, noff, 0), kread(nreg, noff, 1)]
            dsl += [(x, 'k0', st_[1], st_[3] + slack - 1) for x in nx[0]] + [(x, 'k1', st_[2], n2 - 2) for x in nx[1]]
            if mask:
                mb, mr = f"L_k2_mk_{name}", f"L_k2_mkr_{name}"
                if mask[1]: scal[0] = [f"s_cbranch_scc1 {mb}", mr + ":"]
                else: scal[0] = [('call', lambda: mask_block(par ^ 1, mask[0]))]
            scal[n2 - 2] = [('w', 'k0')]
            if tail: scal[n2 - 3] = [tail[0]]; scal[n2 - 1] = [tail[1]]
            def put(x, lo):
                q = lo
                while q in scal or q in vmg: q += 1
                assert q < n2 - 3, (x, q)
                scal[q] = [x]
            if last:
                for j, (pre, ld) in enumerate(fops):
                    q = 2 + (j * (n2 - 4)) // len(fops)
                    vmg[q] = ld
                    scal.setdefault(q - 1, []).extend(pre)
                    if q in scal: scal[q - 1].extend(scal.pop(q))
            else:
                mv = "s_add_u32 m0, s54, 49152" if par == 0 else "s_add_u32 m0, s53, 16384"
                vm = [f"buffer_load_dwordx4 v{VDMA}, s[12:15], s39 offen offset:{j*1024}{kv_ld} lds" for j in range(4)]
                if nq == 4 and WARM: vm.append("global_load_dword v30, v[28:29], off")
                step = (n2 - 4) / len(vm)
                pos = []
                for j in range(len(vm)):
                    q = int(2 + j * step)
                    while q in scal or q in vmg or (j == 0 and q - 1 in scal): q += 1
                    vmg[q] = vm[j]; pos.append(q)
                    if j == 0: scal[q - 1] = [mv]
                if name == "ne":
                    q = 3
                    while any(x in scal or x in vmg for x in (q, q + 1)): q += 1
                    scal[q] = ["s_cmp_eq_u32 s37, s52"]; scal[q + 1] = ["s_cbranch_scc1 L_pubB", "L_pubBr:"]
                    put("s_add_u32 s37, s37, 1", q + 2)
                else:
                    put("s_add_u32 s37, s37, 1", 1)
                put(f"s_add_u32 s38, s38, {KV_TILE}", 1)
                if par == 1:
                    put("s_xor_b32 s53, s53, 65536", pos[0]); put("s_xor_b32 s54, s54, 65536", pos[0])
                put(f"s_add_u32 s39, s39, {KV_TILE}", pos[3] + 1)
        sm = tile_sm(par ^ 1, nqn, (0, 0, 0), False)
        lastg = n2 - 2 if nqn else n2 - 1
        while lastg in vmg: lastg -= 1
        plan = pack(n2 - 1 if nqn else n2, vmg, dsl, sm, SPLIT[nqn], lastg, False)
        emit_phase(sum(grp, []), plan, vmg, scal, None if nqn else p4s, 'ffn' if last else f'V{par}', p4s if last else None)
        print(f"iteration {name}: overflow ops {k.overflow - ov0}")
        k.hot = False
    def epilogue(q0, srow):
        k.e(f"s_lshl_b32 s3, s{srow}, 20")
        k.e("s_lshl_b32 s47, s33, 15")
        k.e("s_add_u32 s3, s3, s47")
        k.e("s_lshl_b32 s47, s32, 10")
        k.e("v_lshlrev_b32 v248, 4, v0")
        k.e("v_add_u32 v249, s47, v248")
        k.e("s_sub_u32 s47, 7168, s47")
        k.e("v_add_u32 v248, s47, v248")
        for qq in range(2):
            k.e(f"v_rcp_f32 v{250+2*qq}, v{LS+4*(q0+qq)}")
        for qq in range(2):
            k.e(f"v_mov_b32 v{251+2*qq}, v{250+2*qq}")
        for s_ in range(4):
            for qq in (1, 0):
                o = O(q0 + qq, 2 * s_)
                d = 24 + 4 * qq
                for r in range(8): k.e(f"v_accvgpr_read_b32 v{240+r}, a{o+r}")
                for r in range(0, 8, 2): k.e(f"v_pk_mul_f32 {V(240+r,2)}, {V(240+r,2)}, {V(250+2*qq,2)}")
                for r in range(4): k.e(f"v_cvt_pk_bf16_f32 v{d+r}, v{240+2*r}, v{240+2*r+1}")
                k.e(f"buffer_store_dwordx4 {V(d,4)}, v{248+qq}, s[16:19], s3 offen{opt.get('ctx_st',' sc1')}")
            if s_ < 3: k.e("s_add_u32 s3, s3, 8192")

    for kb in range(2, 4):
        for s in kread(VY, 0, kb): k.e(s, tag=f'k{kb}')
    def first_max(o, qb):
        rowmax(0, qb, 22, o)
        if PKM:
            o.e("v_sub_f32 v22, 0, v22"); o.e("v_mov_b32 v23, v22")
            for r in range(0, 16, 2): o.e(f"v_pk_add_f32 {V(Sr(0,qb,0)+r,2)}, {V(Sr(0,qb,0)+r,2)}, v[22:23]")
            for r in range(4): o.e(f"v_mov_b32 v{NEGM+4*qb+r}, v22")
        else:
            for r in range(16): o.e(f"v_sub_f32 v{Sr(0,qb,0)+r}, v{Sr(0,qb,0)+r}, v22")
            for r in range(4): o.e(f"v_sub_f32 v{NEGM+4*qb+r}, 0, v22")
    c = b2
    c.items += conv_items(2) + conv_items(3)
    for r in list(range(XR(30, 0), XR(30, 0) + 16)) + list(range(XR(31, 0), XR(31, 0) + 16)): c.e(f"v_accvgpr_write_b32 a{r}, 0")
    for r in range(4): c.e(f"v_mov_b32 v{ONES+r}, 0x3f803f80")
    c.e(f"v_mov_b32 v{NINF}, 0xff800000")
    first_max(c, 0); first_max(c, 1)
    for qb in range(4):
        while any(it[0] == 'mark' and it[1] == f'conv{qb}' for it in c.items): c.fill(k, 99, 2)
        for kb in range(4):
            k.wait_ds(f'k{kb}')
            if qb == 3 and kb == 2:
                k.e(f"s_waitcnt vmcnt({min(k.vm_n('c18'), k.vm_n('c17'))})")
                assert k.vm_n('wts') is None
                k.use('c17'); k.use('c18')
                k.e("s_barrier")
                if WOT:
                    k.e("s_mov_b64 exec, 1")
                    k.e("buffer_store_dword v24, v25, s[20:23], s52 offen sc1")
                    k.e("s_mov_b64 exec, -1")
                k.e("s_add_u32 s53, s44, 65536")
                if TK:
                    k.e("v_mov_b32 v27, 1")
                    k.e("v_mov_b32 v26, 0")
                    k.e("s_cmp_eq_u32 s32, 0")
                    k.e("s_cselect_b32 s3, 128, s64")
                    k.e("s_mov_b64 exec, 1")
                    k.e("buffer_atomic_add v27, v26, s[28:31], s3 offen sc0 sc1")
                    k.e("s_mov_b64 exec, -1")
            for s_ in range(4):
                d = V(Sr(0, qb, kb), 4)
                k.e(mfma(d, A(FR(kb, s_), 4), A(Q(qb, s_), 4), d if s_ else "0"))
                if qb == 3 and kb >= 2: k.e(kread(VY, 32768, kb - 2)[s_], tag=f'n{kb-2}')
                c.fill(k, 99, int(opt.get('pslots', 4)))
    c.drain(k)
    k.e(f"s_mov_b32 s38, {4*KV_TILE}")
    k.e(f"s_mov_b32 s39, {3*KV_TILE + KV_CH}")
    k.e("s_cmp_lg_u32 s34, 0")
    k.e("s_cbranch_scc1 L_k2_nomask0")
    mask_block(0, 3)
    k.label("L_k2_nomask0")
    k.e("s_mov_b32 s37, 0")
    first_max(k, 2); first_max(k, 3)
    SM(sm_pairs(0, 4, 0), True, False).drain()
    k.e("s_waitcnt lgkmcnt(4)")
    k.stamp(ST or SA)

    k.e("s_cmp_eq_u32 s34, 0")
    k.e("s_cbranch_scc1 L_k2_wlast")
    k.e("s_branch L_k2_wloop")
    for nm, qb in (("wo", 3), ("tr", 1), ("no", 1)):
        k.label(f"L_k2_mk_{nm}"); k.win = []
        mask_block(0, qb)
        k.e(f"s_branch L_k2_mkr_{nm}")
    k.label("L_pubB"); k.win = []
    k.e("v_mov_b32 v24, 1"); k.e("v_mov_b32 v25, 0")
    k.e("s_mov_b64 exec, 1")
    k.e("buffer_store_dword v24, v25, s[20:23], s64 offen sc1")
    k.e("s_mov_b64 exec, -1")
    k.e("s_branch L_pubBr")
    k.label("L_k2_wloop")
    iteration(0, 4, 4, None, "we", [])
    iteration(1, 4, 4, (3, 46), "wo", ["s_cmp_lg_u32 s37, s35", "s_cbranch_scc1 L_k2_wloop"])
    k.label("L_k2_wlast")
    iteration(0, 4, 3, (2, None), "wl", [])
    iteration(1, 3, 2, (1, 45), "tr", [])
    k.stamp(SA)
    if '4' in CPF: emit(code_prefetch("L_k2_fin", "L_p4_end", 32, 56, 160, 164))
    k.e("s_waitcnt vmcnt(9)")
    if TK:
        k.e("v_mov_b32 v26, 131072")
        k.e("s_cmp_lg_u32 s32, 0")
        k.e("s_cbranch_scc1 L_notk")
        k.e("s_mov_b64 exec, 1")
        k.e("ds_write_b32 v26, v27")
        k.e("s_mov_b64 exec, -1")
        k.e("s_waitcnt lgkmcnt(0)")
        k.label("L_notk")
        k.e("s_barrier")
        k.e("ds_read_b32 v23, v26")
    epilogue(2, 34)
    k.e("s_add_u32 s52, s37, 2")
    k.raw(";@b:2")
    for s in p4_ptr_loads(): k.e(s)
    k.e("s_waitcnt vmcnt(8) lgkmcnt(0)")
    if TK: k.e("v_readfirstlane_b32 s93, v23")
    else:
        k.e("s_add_u32 s93, s2, 224")
        k.e("s_and_b32 s93, s93, 255")
    k.e("s_nop 0")
    k.e("s_mul_i32 s92, s93, 2341")
    k.e("s_lshr_b32 s92, s92, 16")
    k.e("s_mul_i32 s47, s92, 28")
    k.e("s_sub_u32 s4, s93, s47")
    k.e(f"s_mul_i32 s5, s92, {128*7168}")
    k.e("s_lshl_b32 s47, s4, 8")
    k.e("s_add_u32 s5, s5, s47")
    k.stamp(SA)
    k.e("s_cmp_eq_u32 s34, 7")
    k.e("s_cbranch_scc1 L_k2_fin")
    k.label("L_k2_nloop")
    nl0 = len(k.lines)
    iteration(0, 2, 2, None, "ne", [])
    iteration(1, 2, 2, (1, 45), "no", ["s_cmp_lg_u32 s37, s36", "s_cbranch_scc1 L_k2_nloop"])
    if 'dbg_drop' in opt:
        drop = opt['dbg_drop'].split(',')
        k.lines[nl0:] = [x for x in k.lines[nl0:] if not any(d in x and not x.endswith(':') for d in drop)]
    k.label("L_k2_fin")
    k.stamp(SA)
    iteration(0, 2, 1, (0, None), "nl", [])
    iteration(1, 1, 0, None, "fi", [])
    k.stamp(ST or SA)
    k.e("s_nop 7")
    epilogue(0, 55)
    k.stamp(SA)
    k.e("s_cmp_ge_u32 s93, 224")
    k.e("s_cbranch_scc1 L_noffn")
    ffn_finish()
    k.label("L_noffn")
    p4s.drain(k)
    k.stamp(SA)
    k.e("v_mov_b32 v24, 1")
    k.e("v_mul_u32_u24 v25, s65, v0")
    k.e("s_waitcnt vmcnt(0)")
    k.e("s_barrier")
    k.e("s_mov_b64 exec, 3")
    k.e("buffer_store_dword v24, v25, s[20:23], s64 offen sc1")
    k.e("s_mov_b64 exec, -1")
    ffn_store()
    k.stamp(ST or SA)
    phase4(k, opt, ool, ST, SA)
    k.stamp_dump('stamp' in opt, 66, 0, 32)
    if 'hold' in opt:
        k.e("s_lshl_b32 s3, s32, 8")
        k.e("s_or_b32 s3, s2, s3")
        k.e(f"s_cmp_lg_u32 s3, {opt.get('holdwg', 0)}")
        if opt.get('holdwg') != '999': k.e("s_cbranch_scc1 L_k2_end")
        k.label("L_hold")
        k.e("s_memrealtime s[4:5]")
        k.e("s_waitcnt lgkmcnt(0)")
        k.e(f"s_sub_u32 s3, s4, s{73 + 2 * int(opt.get('holdk', 0))}")
        k.e(f"s_cmp_lt_u32 s3, {int(opt['hold']) * 100}")
        k.e("s_cbranch_scc1 L_hold")
    k.label("L_k2_end")
    k.e("s_endpgm")
    hotool = [x for x in ool if x[0].startswith(("L_f2", "L_c3", "L_spinC", "L_yA", "L_yB", "L_yC"))]
    for lab, fn, ret in hotool + [("L_p4_end", None, None)] + [x for x in ool if x not in hotool]:
        k.label(lab)
        if fn is None: continue
        k.win = []; k.dq = []
        fn()
        k.e(f"s_branch {ret}")
    return k.wrap(256, 256), f"; @launch {'kernel=' + KNAME + ' ' if 'aslist' in opt else ''}grid=(256,1,1) block=(256,1,1) lds={K12_LDS}"
```

```python
from fw import *
from layout import *
from p4 import rbf2, silu_n, srd_rec, p4_ptr_loads
BIG = 0x7ff00000
VC, VWB, VW, TA, VO, VROW, G, L7, L3, T1, T2, VZ, VF = 112, 113, 114, 115, 119, 120, 121, 122, 123, 124, 125, 126, 127
GTMP, XP, STT, GT, YB = 2, 18, 34, 42, 80
SPARE = 131072

def p4_setup(opt):
    b = Rec()
    srd_rec(b, 60, 8, 7340032)
    srd_rec(b, 56, 40, 4194304)
    b.e("s_bfe_u32 s6, s2, 0x20001")
    b.e("s_lshr_b32 s7, s34, 1")
    b.e("s_lshl_b32 s45, s7, 2")
    b.e("s_add_u32 s46, s45, s6")
    b.e("s_sub_u32 s46, 15, s46")
    b.e("s_sub_u32 s45, 12, s45")
    b.e("s_add_u32 s45, s45, s6")
    b.blk(["s_cmp_lt_u32 s7, 2", "s_cselect_b32 s45, s46, s45"])
    b.e("s_and_b32 s46, s2, 1")
    b.e("s_bfe_u32 s6, s2, 0x30003")
    if opt.get('xm', '1') == '1': b.e("s_lshl_b32 s6, s6, 1")
    else: b.e("s_lshl_b32 s46, s46, 3")
    b.e("s_add_u32 s46, s46, s6")
    for j in range(4): b.e(f"s_mov_b32 s{48+j}, {j*15360}")
    b.e("s_lshl_b32 s35, s32, 13")
    b.e(f"s_add_u32 s35, s35, {SPARE}")
    b.e("s_and_b32 s52, s46, 1")
    b.e("s_lshl_b32 s37, s45, 20")
    b.e("s_lshl_b32 s7, s52, 19")
    b.e("s_add_u32 s37, s37, s7")
    b.e(f"s_add_u32 s37, s37, {WS_CTX}")
    b.e("s_lshr_b32 s7, s46, 1")
    b.e("s_lshl_b32 s7, s7, 8")
    b.e("s_lshl_b32 s6, s52, 22")
    b.e("s_add_u32 s6, s6, s7")
    srd_rec(b, 12, 94, 0, "s6")
    b.e("s_sub_u32 s14, 4194304, s7")
    srd_rec(b, 28, 94, 8388608)
    b.e("s_lshl_b32 s7, s46, 7")
    b.e("s_lshl_b32 s36, s45, 18")
    b.e("s_add_u32 s36, s36, s7")
    b.e("s_and_b32 s94, s7, 128")
    b.e("s_lshl_b32 s38, s45, 7")
    b.e("s_lshl_b32 s6, s52, 6")
    b.e("s_add_u32 s38, s38, s6")
    b.e(f"s_add_u32 s38, s38, {WS_CFL}")
    b.e("s_lshl_b32 s52, s32, 11")
    b.e("s_and_b32 s6, s32, 1")
    b.e("s_lshl_b32 s6, s6, 16")
    b.e("s_lshr_b32 s7, s32, 1")
    b.e("s_lshl_b32 s7, s7, 7")
    b.e("s_xor_b32 s7, s7, s94")
    b.e("s_xor_b32 s7, s7, 128")
    b.e("s_add_u32 s6, s6, s7")
    b.e("s_lshl_b32 s7, s32, 5")
    b.at(1)
    srd_rec(b, 68, 10, 4194304)
    srd_rec(b, 8, 66, 524288, "s37")
    b.e(f"v_lshlrev_b32 v{VC}, 4, v0")
    b.e(f"v_lshrrev_b32 v{G}, 4, v0")
    b.e(f"v_and_b32 v{L7}, 7, v0")
    b.e(f"v_lshrrev_b32 v{L3}, 3, v0")
    b.e(f"v_lshlrev_b32 v{T1}, 1, v{G}")
    b.e(f"v_xor_b32 v{T1}, v{T1}, v{L7}")
    b.e(f"v_lshlrev_b32 v{T1}, 4, v{T1}")
    b.e(f"v_lshl_add_u32 v{VWB}, v{L3}, 11, v{T1}")
    b.e(f"v_add_u32 v{VW}, s6, v{VWB}")
    b.e(f"v_lshrrev_b32 v{T1}, 2, v0")
    b.e(f"v_bfe_u32 v{VZ}, v0, 3, 2")
    b.e(f"v_lshlrev_b32 v{T1}, 7, v{T1}")
    b.e(f"v_and_b32 v{T2}, 3, v0")
    b.e(f"v_lshl_add_u32 v{T1}, v{T2}, 3, v{T1}")
    b.e(f"v_lshl_add_u32 v{TA}, v{VZ}, 5, v{T1}")
    for cb in range(1, 4): b.e(f"v_xor_b32 v{TA+cb}, {cb*32}, v{TA}")
    b.e(f"v_add_u32 v{VROW}, s7, v{L3}")
    b.e(f"v_lshlrev_b32 v{VO}, 11, v{VROW}")
    b.e(f"v_lshl_add_u32 v{VO}, v{L7}, 4, v{VO}")
    b.e(f"v_mov_b32 v{VZ}, 0")
    b.e(f"v_lshlrev_b32 v{VF}, 2, v{L7}")
    return b

def phase4(k, opt, ool, ST, SA):
    N1 = int(opt.get('n1', 32))
    N2 = 64 - N1
    assert N1 % 2 == 0 and N2 % 4 == 0 and N2 <= 32
    units = [(n + q, s_) for n in range(0, N1, 2) for s_ in (1, 0) for q in range(2)] + [(n, 1) for n in range(N1, 64)] + [(n, 0) for n in range(N1, 64)]
    NS = 32
    XM = opt.get('xm', '1') == '1'
    PX = 4 if XM else 32
    SP = N1 // 2 + N2 // 4
    ACC = lambda side, rb, cb: 128 + ((side * 2 + rb) * 4 + cb) * 4
    WF = lambda u, cb: 192 + (u & 3) * 16 + cb * 4
    XI = 160
    FL = int(opt.get('fl', 2))
    CF = lambda n, rb: (n % 32) * 8 + rb * 4
    TB = 12
    WDI = int(opt.get('wdi', 3))
    CDI = int(opt.get('cdi', 3))
    def w_ops(st):
        if st >= NS: return []
        ops = [('s', f"s_add_u32 m0, s44, {(st % 8)*16384}")]
        ops += [('g', f"buffer_load_dwordx4 v{VW}, s[12:15], s{48+j} offen offset:{j*1024} lds") for j in range(4)]
        if st + 1 == N1 // 2: ops.append(('v', f"v_add_u32 v{VW}, s95, v{VWB}"))
        elif st + 1 == SP: ops += [('s2', "s_xor_b32 s95, s95, 128"), ('v', f"v_add_u32 v{VW}, s95, v{VWB}")]
        else: ops.append(('v', f"v_add_u32 v{VW}, {(2 if st < N1 // 2 else 4) * 65536}, v{VW}"))
        return ops
    def c_ops(n):
        return [('g', f"buffer_load_dwordx4 {A(CF(n,rb),4)}, v{VC}, s[8:11], s52 offen offset:{rb*1024} sc1") for rb in range(2)] + \
               [('s2', "s_add_u32 s52, s52, 8192")]
    def ksteps_of(st):
        return sorted({units[4 * st + j][0] for j in range(4)}) if st < SP else []
    def wread(u):
        st = u // 4
        base = TA if (st % 8) < 4 else TB
        return [[f"ds_read_b64_tr_b16 {V(WF(u,cb)+2*rd,2)}, v{base+cb} offset:{(st % 4)*16384 + (u % 4)*4096 + rd*2048}" for rd in range(2)] for cb in range(4)]
    def col3(part):
        k.e("s_bfe_u32 s3, s2, 0x40003")
        k.e("s_lshl_b32 s3, s3, 2")
        k.e("s_add_u32 s3, s3, s32")
        k.e("s_lshl_b32 s3, s3, 15")
        k.e("s_and_b32 s7, s2, 1")
        k.e(f"s_lshl_b32 s7, s7, {22 if XM else 10}")
        k.e("s_add_u32 s3, s3, s7")
        k.e(f"s_add_u32 s3, s3, {384 + part * 1024 * 2048}")
        k.e("v_and_b32 v1, 15, v0")
        k.e("v_lshlrev_b32 v1, 11, v1")
        k.e("v_lshrrev_b32 v11, 5, v0")
        k.e(f"v_lshl_add_u32 v1, v11, {10 if XM else 22}, v1")
        k.e("buffer_load_dword v11, v1, s[28:31], s3 offen")
    def gates(o, p, ysrc=None):
        g0 = GT + 8 * p
        if o is not k and opt.get('gpk', '0') == '0': return gates_plain(o, p)
        pr = lambda r: V(r, 2)
        st_ = V(STT + 2 * p, 2)
        for d in range(4):
            o.e(f"v_lshlrev_b32 v{g0+2*d}, 16, v{XP+4*p+d}")
            o.e(f"v_and_b32 v{g0+2*d+1}, 0xffff0000, v{XP+4*p+d}")
        for d in range(4): o.e(f"v_pk_add_f32 {pr(g0+2*d)}, {pr(g0+2*d)}, {st_} op_sel_hi:[1,0] neg_lo:[0,1] neg_hi:[0,1]")
        for d in range(4): rbf2(o, g0 + 2*d, g0 + 2*d + 1, GTMP + d)
        for d in range(4): o.e(f"v_pk_mul_f32 {pr(g0+2*d)}, {pr(g0+2*d)}, {st_} op_sel:[0,1] op_sel_hi:[1,1]")
        for d in range(4): rbf2(o, g0 + 2*d, g0 + 2*d + 1, GTMP + d)
        if ysrc is not None:
            for d in range(4): o.e(f"v_pk_add_f32 {pr(g0+2*d)}, {pr(g0+2*d)}, {pr(ysrc+2*d)}")
            for d in range(4): rbf2(o, g0 + 2*d, g0 + 2*d + 1, GTMP + d)
        for e_ in range(8): o.e(f"v_mul_f32 v{GTMP+e_}, 0xbfb8aa3b, v{g0+e_}")
        for e_ in range(8): o.e(f"v_exp_f32 v{GTMP+e_}, v{GTMP+e_}")
        for e_ in range(8): o.e(f"v_add_f32 v{GTMP+e_}, 1.0, v{GTMP+e_}")
        for e_ in range(8): o.e(f"v_rcp_f32 v{GTMP+e_}, v{GTMP+e_}")
        for d in range(4): o.e(f"v_pk_mul_f32 {pr(g0+2*d)}, {pr(g0+2*d)}, {pr(GTMP+2*d)}")
        for d in range(4): rbf2(o, g0 + 2*d, g0 + 2*d + 1, GTMP + d)
    def gates_plain(o, p):
        g0 = GT + 8 * p
        for d in range(4):
            o.e(f"v_lshlrev_b32 v{g0+2*d}, 16, v{XP+4*p+d}")
            o.e(f"v_and_b32 v{g0+2*d+1}, 0xffff0000, v{XP+4*p+d}")
        for e_ in range(8): o.e(f"v_sub_f32 v{g0+e_}, v{g0+e_}, v{STT+2*p}")
        for d in range(4): rbf2(o, g0 + 2*d, g0 + 2*d + 1, GTMP + d)
        for e_ in range(8): o.e(f"v_mul_f32 v{g0+e_}, v{g0+e_}, v{STT+2*p+1}")
        for d in range(4): rbf2(o, g0 + 2*d, g0 + 2*d + 1, GTMP + d)
        silu_n(o, [g0 + e_ for e_ in range(8)], [GTMP + e_ for e_ in range(8)])
        for d in range(4): rbf2(o, g0 + 2*d, g0 + 2*d + 1, GTMP + d)
    def poll_loop(lab, off, vo, vd, slp=8):
        k.e("s_mov_b32 s47, 0x400000")
        k.label(lab)
        k.e(f"buffer_load_dword v{vd}, v{vo}, s[20:23], {off} offen sc1")
        k.e("s_sub_u32 s47, s47, 1")
        k.e("s_waitcnt vmcnt(0)")
        k.e("s_cmp_eq_u32 s47, 0")
        k.e(f"s_cbranch_scc1 {lab}x")
        k.e(f"v_cmp_ne_u32 vcc, 1, v{vd}")
        k.e(f"s_cbranch_vccz {lab}x")
        k.e(f"s_sleep {slp}")
        k.e(f"s_branch {lab}")
        k.label(lab + "x")

    C3 = int(opt.get('c3', 2))
    k.e("s_mov_b32 s3, s36")
    for p in range(4):
        k.e(f"buffer_load_dwordx4 {V(XP+4*p,4)}, v{VO}, s[56:59], s3 offen", tag='x')
        if p < 3: k.e("s_add_u32 s3, s3, 16384")
    k.e("s_lshl_b32 s3, s45, 10")
    k.e(f"s_add_u32 s3, s3, {WS_STATS}")
    k.e(f"v_lshlrev_b32 v{T1}, 3, v{VROW}")
    for p in range(4):
        k.e(f"buffer_load_dwordx2 {V(STT+2*p,2)}, v{T1}, s[20:23], s3 offen offset:{p*64} sc1", tag='x')
    k.e("v_and_b32 v10, 15, v0")
    k.e("v_lshlrev_b32 v10, 2, v10")
    k.e(f"s_add_u32 s95, s32, {N1}")
    k.e("s_lshl_b32 s95, s95, 16")
    k.e("s_add_u32 s95, s95, s94")
    k.e("s_xor_b32 s95, s95, 128")
    WE = int(opt.get('we', 2))
    for st in range(WE):
        for t, s in w_ops(st): k.e(s, tag=f'w{st}')
    k.e(f"buffer_load_dword v{T1}, v10, s[20:23], s38 offen sc1", tag='cp')
    for cb in range(4): k.e(f"v_add_u32 v{TB+cb}, 65536, v{TA+cb}")
    k.e("s_and_b32 s39, s93, 15")
    k.e("s_lshr_b32 s37, s93, 4")
    k.e("s_lshl_b32 s54, s37, 2")
    k.e("s_add_u32 s54, s54, s32")
    k.e("s_lshl_b32 s3, s54, 17")
    k.e("s_lshl_b32 s7, s39, 7")
    k.e("s_add_u32 s3, s3, s7")
    k.e("s_cmp_lt_u32 s93, 224")
    k.e(f"s_cselect_b32 s3, s3, {BIG}")
    k.e(f"v_add_u32 v{T2}, s3, v{VWB}")
    def wd_dma():
        n0 = len(k.vq)
        for q in range(2):
            k.e(f"s_add_u32 m0, s35, {q*4096}")
            for j in range(4):
                k.e(f"buffer_load_dwordx4 v{T2}, s[60:63], s{48+j} offen offset:{j*1024} lds", tag='wd')
            if q == 0: k.e(f"v_add_u32 v{T2}, 65536, v{T2}")
        del k.vq[n0:]
    k.e("s_mov_b32 s40, 0")
    k.wait_vm('x')
    GE = int(opt.get('ge', 1)); GM = int(opt.get('gm', 1))
    for p in range(GE): gates(k, p)
    k.wait_vm('cp')
    k.e(f"v_cmp_ne_u32 vcc, 1, v{T1}")
    k.e("s_cbranch_vccnz L_spinC")
    k.label("L_spinCr")
    def spinC():
        wd_dma()
        k.e("s_mov_b32 s40, 1")
        poll_loop("L_spinC_l", "s38", 10, T1, opt.get('slpc', 4))
    ool.append(("L_spinC", spinC, "L_spinCr"))
    SO = opt.get('stamp') == 'o'
    k.stamp(ST or SA or SO)
    for st in range(max(CDI, WDI)):
        if st < CDI:
            for n in ksteps_of(st):
                for t, s in c_ops(n): k.e(s, tag=f'c{n}')
        if WE <= st < WDI:
            for t, s in w_ops(st): k.e(s, tag=f'w{st}')
        if st == 1:
            for p in range(GE, GE + GM): gates(k, p)
    k.e("s_cmp_lg_u32 s40, 0")
    k.e("s_cbranch_scc1 L_nowd")
    wd_dma()
    k.label("L_nowd")
    if C3:
        k.e("s_cmp_lt_u32 s2, 128")
        k.e("s_cbranch_scc1 L_noc3")
        col3(0)
        k.vq.pop()
        k.label("L_noc3")

    b = Rec()
    b.e(f"v_mov_b32 v{T2}, 1")
    b.e("s_lshl_b32 s6, s4, 3")
    b.e("s_add_u32 s6, s6, s92")
    b.e("s_lshl_b32 s6, s6, 2")
    b.e(f"s_add_u32 s6, s6, {WS_HFL}")
    b.blk(["s_cmp_eq_u32 s32, 0", "s_cselect_b32 s6, s6, s64", "s_cmp_lt_u32 s93, 224", f"s_cselect_b32 s6, s6, {BIG}"])
    b.blk(["s_mov_b64 exec, 1", f"buffer_store_dword v{T2}, v{VZ}, s[20:23], s6 offen sc1", "s_mov_b64 exec, -1"])
    b.e("s_lshl_b32 s40, s45, 2")
    b.e("s_add_u32 s40, s40, s32")
    b.blk(["s_lshr_b32 s3, s42, 5", "s_lshr_b32 s47, s43, 5", "s_cmp_eq_u32 s3, s40", "s_cselect_b32 s53, 1, 0",
           "s_cmp_eq_u32 s47, s40", "s_cselect_b32 s53, 1, s53", "s_mov_b32 s40, 0"])
    b.e("s_lshl_b32 s41, s46, 7")
    b.e(f"s_add_u32 s41, s41, {WS_YFL}")
    b.e("s_lshl_b32 s55, s46, 13")
    b.e(f"s_add_u32 s55, s55, {WS_YP}")
    srd_rec(b, 16, 66, 8 << 20, WS_XCH)
    b.e("s_lshl_b32 s24, s2, 2")
    b.e("s_add_u32 s24, s24, s32")
    b.e("s_lshl_b32 s25, s24, 13")
    b.e(f"s_xor_b32 s26, s25, {PX << 13}")
    b.e("s_lshl_b32 s24, s24, 2")
    b.e(f"s_xor_b32 s27, s24, {PX * 4}")
    b.e(f"s_add_u32 s24, s24, {WS_XFL}")
    b.e(f"s_add_u32 s27, s27, {WS_XFL}")
    F2 = float(opt.get('f2', 4)); FD = float(opt.get('f2d', 2.4))
    b0 = Rec()
    ev = [(F2 + j * FD, "s_cmp_lt_u32 s93, 224", f"L_f2{x}") for j, x in enumerate("ABCE")]
    if C3: ev.append((float(opt.get('c3t', 9.5)), "s_cmp_ge_u32 s2, 128", "L_c31")); ool.append(("L_c31", lambda: col3(1), "L_c31r"))
    for t_, c_, l_ in sorted(ev):
        b0.at(t_); b0.blk([c_, f"s_cbranch_scc1 {l_}", l_ + "r:"])
    for p in range(GE + GM, 4): gates(b, p)
    b.items.append(('log', 'gates done', None))
    PS = float(opt.get('k3_poll', 19))
    b.at(PS)
    b.blk(["s_cmp_lg_u32 s53, 0", "s_cbranch_scc1 L_yA", "L_yAr:"])
    b.at(PS + 2.5)
    b.blk(["s_cmp_lg_u32 s53, 0", "s_cbranch_scc1 L_yB", "L_yBr:"])
    b.at(PS + 4.5)
    b.blk(["s_cmp_lg_u32 s40, 0", "s_cbranch_scc1 L_yC", "L_yCr:"])
    b0.at(SP + 0.15)
    b0.e(f"v_add_u32 v10, 4096, v{VC}")
    for j in range(8):
        b0.e(f"buffer_store_dwordx4 {V(ACC(1, 0, 0) + 4*j, 4)}, v{VC if j < 4 else 10}, s[16:19], s26 offen offset:{(j & 3)*1024} sc1", tag='xs')
    b0.e("v_mov_b32 v16, 1")
    b0.at(SP + float(opt.get('xf', 3.2)))
    b0.wait_vm('xs')
    b0.blk(["s_mov_b64 exec, 1", f"buffer_store_dword v16, v{VZ}, s[20:23], s27 offen sc1", "s_mov_b64 exec, -1"])
    b0.at(SP + float(opt.get('xpl', 4.6)))
    b0.e(f"buffer_load_dword v17, v{VZ}, s[20:23], s24 offen sc1", tag='xp')
    b0.at(SP + float(opt.get('xck', 5.8)))
    b0.wait_vm('xp')
    b0.blk(["v_cmp_ne_u32 vcc, 1, v17", "s_mov_b32 s33, 0", "s_cbranch_vccnz L_xno"] +
           [(f"buffer_load_dwordx4 {V(XI + 4*j, 4)}, v{VC if j < 4 else 10}, s[16:19], s25 offen offset:{(j & 3)*1024} sc1", '!') for j in range(8)] +
           ["s_mov_b32 s33, 1", "L_xno:"])

    k.wait_vm('w0')
    k.use('hps')
    k.e("s_barrier")
    for u in range(FL):
        for q, grp in enumerate(wread(u)):
            for s in grp: k.e(s, tag=f'f{u}_{q}')
    BS = int(opt.get('k3_bs', 5))
    wnext = WDI
    for st in range(NS):
        k.stamp(SO and st % 4 == 0)
        vm = []
        for _ in range(int(opt.get('wq', 3)) if st >= SP - CDI else 1):
            if wnext < NS and wnext <= st + 6:
                vm += [(t, s, f'w{wnext}') for t, s in w_ops(wnext)]; wnext += 1
        for n in ksteps_of(st + CDI): vm += [(t, s, f'c{n}') for t, s in c_ops(n)]
        g = {}; gt = {}; scal = {}
        CH = opt.get('p4ch', '1') == '1'
        for j in range(4):
            u = 4 * st + j + FL
            if u < 4 * NS:
                for q, grp in enumerate(wread(u)):
                    x = 16 * (j >> 1) + 4 * q + 2 * (j & 1) if CH else 8 * j + 2 * q
                    g[x] = grp; gt[x] = f'f{u}_{q}'
        free = [x for x in range(32) if x not in g]
        ng = sum(1 for x in vm if x[0] == 'g')
        pick = [free[(2 * j + 1) * len(free) // (2 * ng)] for j in range(ng)] if ng else []
        j = 0
        for t, s, tg in vm:
            if t == 'g': g[pick[j]] = [s]; gt[pick[j]] = tg; j += 1
            elif t == 's': scal.setdefault(pick[j] - 1, []).append(s)
            else: g[pick[j - 1]].append(s)
        if CH: seq = [(4 * st + 2 * h + q, cb, rb) for h in range(2) for cb in range(4) for rb in range(2) for q in range(2)]
        else: seq = [(4 * st + j, cb, rb) for j in range(4) for cb in range(4) for rb in range(2)]
        for m, (u, cb, rb) in enumerate(seq):
            if True:
                if True:
                    n, side = units[u]
                    if m % 16 == 0: k.wait_vm(f'c{units[u | 1][0]}')
                    k.wait_ds(f'f{u}_{cb}')
                    d = V(ACC(side, rb, cb), 4)
                    k.e(mfma(d, V(WF(u, cb), 4), A(CF(n, rb), 4), "0" if n == 0 else d))
                    if m == 12 and st + 1 < NS: k.wait_vm(f'w{st+1}')
                    if m == 14 and st + 1 < NS: k.e("s_barrier")
                    if m % 4 == 2 and m != 14:
                        nu, ncb, _ = (seq[m + 3] if m + 3 < 32 else (4 * st + 5 if CH else 4 * st + 4, 0 if CH else 1, 0))
                        k.wait_ds(f'f{nu}_{ncb}')
                    if m == 13:
                        nu, ncb, _ = seq[17]; k.wait_ds(f'f{nu}_{ncb}')
                    for s in scal.get(m, []): k.e(s)
                    if m in g:
                        for s in g[m]: k.e(s, tag=gt.get(m))
                        if st < SP and g[m][0].startswith('ds_') and b.items and b.items[0][0] == 'i' and b.cost(b.items[0]) == 1 \
                                and b.items[0][1].startswith('v_'):
                            b.fill(k, st + m / 32.0, int(opt.get('k3_ds', 1)))
                    else:
                        nl = k.ni
                        b0.fill(k, st + m / 32.0, 2)
                        if k.ni == nl: b.fill(k, st + m / 32.0, BS)
    print("phase4 items left", len(b.items), len(b0.items))
    b0.drain(k); b.drain(k)
    k.stamp(ST or SO)
    k.e("s_cmp_lg_u32 s53, s40")
    k.e("s_cbranch_scc1 L_ysl")
    k.label("L_yslr")
    k.e(f"v_and_b32 v{T1}, 15, v0")
    k.e(f"v_lshlrev_b32 v74, 8, v{T1}")
    k.e("v_add_u32 v74, s35, v74")
    k.e(f"v_xor_b32 v{T1}, v{T1}, v{G}")
    k.e(f"v_lshl_add_u32 v74, v{T1}, 4, v74")
    for cb in range(1, 4): k.e(f"v_xor_b32 v{74+cb}, {64*cb}, v74")
    k.e(f"v_lshlrev_b32 v{T2}, 1, v{L7}")
    k.e(f"v_xor_b32 v{T1}, v{L3}, v{T2}")
    k.e(f"v_lshlrev_b32 v12, 8, v{L3}")
    k.e("v_add_u32 v12, s35, v12")
    k.e(f"v_lshl_add_u32 v12, v{T1}, 4, v12")
    k.e("v_xor_b32 v13, 16, v12")
    k.e("v_xor_b32 v14, 128, v12")
    k.e("v_xor_b32 v15, 144, v12")
    k.e("s_cmp_eq_u32 s33, 0")
    k.e("s_cbranch_scc1 L_spinX")
    k.label("L_spinXr")
    def spinX():
        poll_loop("L_spinXl", "s24", VZ, 17, 1)
        for j in range(8):
            k.e(f"buffer_load_dwordx4 {V(XI + 4*j, 4)}, v{VC if j < 4 else 10}, s[16:19], s25 offen offset:{(j & 3)*1024} sc1")
    ool.append(("L_spinX", spinX, "L_spinXr"))
    XU = 80
    for p in range(4):
        for d in range(4):
            k.e(f"v_lshlrev_b32 v{XU+8*p+2*d}, 16, v{XP+4*p+d}")
            k.e(f"v_and_b32 v{XU+8*p+2*d+1}, 0xffff0000, v{XP+4*p+d}")
    k.e("s_waitcnt vmcnt(0)")
    for j in range(8):
        a = ACC(0, 0, 0) + 4 * j
        for e_ in (0, 2): k.e(f"v_pk_add_f32 {V(a+e_,2)}, {V(a+e_,2)}, {V(XI+4*j+e_,2)}")
        k.e(f"ds_write_b128 v{74 + (j & 3)}, {V(a,4)} offset:{(j >> 2)*4096}")
    for p in range(4):
        for h in range(2):
            k.e(f"ds_read_b128 {V(192 + 8*p + 4*h, 4)}, v{12 + h + 2*(p & 1)} offset:{p*2048}", tag=f'r{p}')
    for p in range(4):
        b_ = 192 + 8 * p; t_ = 224 + 4 * p
        k.wait_ds(f'r{p}')
        for d in range(4): rbf2(k, b_ + 2*d, b_ + 2*d + 1, t_ + d)
        for e_ in range(0, 8, 2): k.e(f"v_pk_mul_f32 {V(b_+e_,2)}, {V(b_+e_,2)}, {V(GT+8*p+e_,2)}")
        for d in range(4): rbf2(k, b_ + 2*d, b_ + 2*d + 1, t_ + d)
        for e_ in range(0, 8, 2): k.e(f"v_pk_add_f32 {V(b_+e_,2)}, {V(b_+e_,2)}, {V(XU+8*p+e_,2)}")
        for d in range(4): k.e(f"v_cvt_pk_bf16_f32 v{t_+d}, v{b_+2*d}, v{b_+2*d+1}")
        k.e(f"buffer_store_dwordx4 {V(t_,4)}, v{VO}, s[68:71], s36 offen{opt.get('out_st', ' sc1')}")
        if p < 3: k.e("s_add_u32 s36, s36, 16384")
    k.stamp(ST or SA)

    H0 = 74
    WN = int(opt.get('f2w', 16))
    def f2A():
        k.e("s_lshr_b32 s5, s54, 1")
        k.e("s_lshl_b32 s5, s5, 5")
        k.e(f"s_add_u32 s5, s5, {WS_HFL}")
        k.e(f"buffer_load_dword v{T2}, v{VF}, s[20:23], s5 offen sc1")
    def f2B():
        k.e(f"s_waitcnt vmcnt({WN})")
        k.e(f"v_cmp_ne_u32 vcc, 1, v{T2}")
        k.e("s_cbranch_vccz L_f2lx")
        poll_loop("L_f2l", "s5", VF, T2)
        k.e("s_lshl_b32 s3, s54, 8")
        k.e(f"s_add_u32 s3, s3, {WS_HP}")
        k.e(f"v_mul_u32_u24 v{T1}, 14336, v{G}")
        k.e(f"v_and_b32 v{T2}, 15, v0")
        k.e(f"v_lshl_add_u32 v{T1}, v{T2}, 4, v{T1}")
        for j in range(8):
            k.e(f"buffer_load_dwordx4 {V(H0 + 4*j, 4)}, v{T1}, s[20:23], s3 offen sc1")
            if j < 7: k.e(f"s_add_u32 s3, s3, {4*14336}")
    def f2C():
        for cb in range(4): k.e(f"v_add_u32 v{106+cb}, s35, v{TA+cb}")
        k.e(f"s_waitcnt vmcnt({WN}) lgkmcnt(0)")
        k.use('wd')
        for j in range(1, 8):
            for r in range(0, 4, 2): k.e(f"v_pk_add_f32 {V(H0+r,2)}, {V(H0+r,2)}, {V(H0+4*j+r,2)}")
        for r in range(0, 4, 2): rbf2(k, H0 + r, H0 + r + 1, T2)
        for r in range(4): k.e(f"v_mov_b32 v{82+r}, v{H0+r}")
        for r in range(4): k.e(f"v_permlane32_swap_b32 v{82+r}, v{H0+r}")
        silu_n(k, [82 + r for r in range(4)], [90 + r for r in range(4)])
        for r in range(0, 4, 2): rbf2(k, 82 + r, 83 + r, T2)
        for r in range(4): k.e(f"v_mul_f32 v{H0+r}, v{H0+r}, v{82+r}")
        for r in range(2): k.e(f"v_cvt_pk_bf16_f32 v{90+r}, v{H0+2*r}, v{H0+2*r+1}")
        k.e(f"v_and_b32 v{T1}, 1, v{G}")
        k.e(f"v_lshlrev_b32 v{T1}, 8, v{T1}")
        k.e(f"v_and_b32 v{T2}, 15, v0")
        k.e(f"v_lshl_add_u32 v{T1}, v{T2}, 3, v{T1}")
        k.e(f"v_add_u32 v{T1}, s35, v{T1}")
        for cb in range(4):
            for rd in range(2):
                k.e(f"ds_read_b64_tr_b16 {V(74 + 4*cb + 2*rd, 2)}, v{106+cb} offset:{rd*2048}")
        k.e(f"ds_write_b64 v{T1}, v[90:91]")
        k.e(f"v_and_b32 v{T1}, 1, v0")
        k.e(f"v_lshlrev_b32 v{T1}, 8, v{T1}")
        k.e(f"v_lshl_add_u32 v{T2}, v{G}, 3, v{T1}")
        k.e(f"v_add_u32 v{T2}, s35, v{T2}")
        for q in range(2):
            for rd in range(2):
                k.e(f"ds_read_b64 {V(90 + 4*q + 2*rd, 2)}, v{T2} offset:{q*64 + rd*32}")
        k.e(f"v_lshl_add_u32 v{T1}, v{G}, 4, v{T1}")
        k.e(f"v_add_u32 v{T1}, s35, v{T1}")
        k.e("s_waitcnt lgkmcnt(0)")
        for half in range(2):
            for c2 in range(2):
                cb = 2 * half + c2
                k.e(mfma(V(98 + 4 * c2, 4), V(74 + 4 * cb, 4), V(90, 4), "0"))
                for rd in range(2):
                    k.e(f"ds_read_b64_tr_b16 {V(74 + 4*cb + 2*rd, 2)}, v{106+cb} offset:{4096 + rd*2048}")
            k.e("s_waitcnt lgkmcnt(0)")
            for c2 in range(2):
                k.e(mfma(V(98 + 4 * c2, 4), V(74 + 4 * (2 * half + c2), 4), V(94, 4), V(98 + 4 * c2, 4)))
            for c2 in range(2):
                k.e(f"ds_write_b128 v{T1}, {V(98 + 4*c2, 4)} offset:{2048 + (2*half + c2)*64}")
            if half == 0: k.e("s_waitcnt lgkmcnt(0)")
        k.e("s_waitcnt lgkmcnt(0)")
        k.e("s_barrier")
        k.e("s_cmp_lg_u32 s32, 0")
        k.e("s_cbranch_scc1 L_f2Cr")
        k.e(f"v_lshlrev_b32 v{T1}, 3, v0")
        k.e(f"v_add_u32 v{T2}, {SPARE + 2048}, v{T1}")
        for w in range(4): k.e(f"ds_read_b64 {V(74+2*w,2)}, v{T2} offset:{w*8192}")
        k.e("s_lshl_b32 s3, s39, 4")
        k.e("s_add_u32 s3, s3, s37")
        k.e("s_lshl_b32 s3, s3, 9")
        k.e(f"s_add_u32 s3, s3, {WS_YP}")
        k.e("s_waitcnt lgkmcnt(0)")
        k.e("v_pk_add_f32 v[74:75], v[74:75], v[76:77]")
        k.e("v_pk_add_f32 v[78:79], v[78:79], v[80:81]")
        k.e("v_pk_add_f32 v[74:75], v[74:75], v[78:79]")
        k.e(f"buffer_store_dwordx2 v[74:75], v{T1}, s[20:23], s3 offen sc1", tag='yp')
    def f2E():
        k.e("s_cmp_lg_u32 s32, 0")
        k.e("s_cbranch_scc1 L_f2Er")
        k.e(f"v_mov_b32 v{T2}, 1")
        k.e("s_lshl_b32 s3, s39, 5")
        k.e("s_add_u32 s3, s3, s37")
        k.e("s_lshl_b32 s3, s3, 2")
        k.e(f"s_add_u32 s3, s3, {WS_YFL}")
        k.e(f"s_waitcnt vmcnt({WN})")
        k.use('yp')
        k.e("s_mov_b64 exec, 1")
        k.e(f"buffer_store_dword v{T2}, v{VZ}, s[20:23], s3 offen sc1")
        k.e("s_mov_b64 exec, -1")
    for nm, fn in (("A", f2A), ("B", f2B), ("C", f2C), ("E", f2E)): ool.append((f"L_f2{nm}", fn, f"L_f2{nm}r"))
    YR = lambda t: 76 + 18 * t
    def own_tok(t, skip):
        k.e("s_lshl_b32 s7, s45, 2")
        k.e("s_add_u32 s7, s7, s32")
        k.e(f"s_lshr_b32 s3, s{42+t}, 5")
        k.e("s_cmp_lg_u32 s3, s7")
        k.e(f"s_cbranch_scc1 {skip}")
    def yloads():
        k.e(f"v_lshlrev_b32 v{T1}, 2, v0")
        k.e(f"v_lshlrev_b32 v{T2}, 1, v0")
        for t in range(2):
            L = k.newlabel("yl")
            own_tok(t, L)
            k.e(f"s_add_u32 s3, s55, {t*256}")
            k.e("s_add_u32 s7, s3, 4096")
            for j in range(14):
                k.e(f"buffer_load_dword v{YR(t)+j}, v{T1}, s[20:23], s{3 if j < 8 else 7} offen offset:{(j & 7)*512} sc1")
            k.e(f"s_lshl_b32 s3, s{42+t}, 11")
            k.e("s_lshl_b32 s7, s46, 7")
            k.e("s_add_u32 s3, s3, s7")
            k.e(f"buffer_load_ushort v{YR(t)+14}, v{T2}, s[56:59], s3 offen")
            k.e(f"s_lshl_b32 s3, s{42+t}, 3")
            k.e(f"s_add_u32 s3, s3, {WS_STATS}")
            k.e(f"buffer_load_dwordx2 {V(YR(t)+16,2)}, v{VZ}, s[20:23], s3 offen sc1")
            k.label(L)
    def rb1(r):
        k.e(f"v_cvt_pk_bf16_f32 v{r}, v{r}, v{r}")
        k.e(f"v_lshlrev_b32 v{r}, 16, v{r}")
    def selblock():
        for t in range(2):
            L = k.newlabel("ys")
            y, x = YR(t), YR(t) + 14
            own_tok(t, L)
            for j in range(2, 14, 2): k.e(f"v_pk_add_f32 {V(y,2)}, {V(y,2)}, {V(y+j,2)}")
            k.e(f"v_add_f32 v{y}, v{y}, v{y+1}")
            k.e(f"v_lshlrev_b32 v{x}, 16, v{x}")
            k.e(f"v_sub_f32 v{x}, v{x}, v{x+2}")
            rb1(y); rb1(x)
            k.e(f"v_mul_f32 v{y}, s{100+t}, v{y}")
            k.e(f"v_mul_f32 v{x}, v{x}, v{x+3}")
            rb1(y); rb1(x)
            k.e(f"v_add_f32 v{x}, v{x}, v{y}")
            rb1(x)
            silu_n(k, [x], [y])
            rb1(x)
            k.e(f"v_lshlrev_b32 v{T1}, 2, v0")
            k.e(f"v_add_u32 v{T1}, s35, v{T1}")
            k.e(f"v_lshlrev_b32 v{T2}, 5, v{L7}")
            k.e(f"v_add_u32 v{T2}, s35, v{T2}")
            k.e("s_waitcnt lgkmcnt(0)")
            k.e(f"ds_write_b32 v{T1}, v{x}")
            k.e(f"s_and_b32 s3, s{42+t}, 7")
            k.e("s_lshl_b32 s3, s3, 3")
            k.e("s_lshl_b64 s[4:5], 0xff, s3")
            k.e(f"s_bfe_u32 s3, s{42+t}, 0x20003")
            k.e("s_mov_b64 exec, s[4:5]")
            for p in range(4):
                L2 = k.newlabel("yp")
                k.e(f"s_cmp_lg_u32 s3, {p}")
                k.e(f"s_cbranch_scc1 {L2}")
                k.e(f"ds_read_b64 {V(GT+8*p,2)}, v{T2}")
                k.e(f"ds_read_b64 {V(GT+8*p+2,2)}, v{T2} offset:8")
                k.e(f"ds_read_b64 {V(GT+8*p+4,2)}, v{T2} offset:16")
                k.e(f"ds_read_b64 {V(GT+8*p+6,2)}, v{T2} offset:24")
                k.label(L2)
            k.e("s_mov_b64 exec, -1")
            k.e("s_waitcnt lgkmcnt(0)")
            k.label(L)
    def yA():
        k.e(f"v_min_u32 v{VF}, 13, v0")
        k.e(f"v_lshlrev_b32 v{VF}, 2, v{VF}")
        k.e(f"buffer_load_dword v74, v{VF}, s[20:23], s41 offen sc1")
    def yB():
        k.e("s_waitcnt vmcnt(6)")
        k.e("v_cmp_ne_u32 vcc, 1, v74")
        k.e("s_cbranch_vccnz L_yBr")
        k.e("s_mov_b32 s40, 1")
        yloads()
    def yC():
        k.e("s_waitcnt vmcnt(4)")
        selblock()
    def ysl():
        poll_loop("L_ysll", "s41", VF, T1)
        yloads()
        k.e("s_waitcnt vmcnt(0)")
        selblock()
    ool.append(("L_yA", yA, "L_yAr")); ool.append(("L_yB", yB, "L_yBr")); ool.append(("L_yC", yC, "L_yCr")); ool.append(("L_ysl", ysl, "L_yslr"))
```

```python
from fw import *
from layout import *
import p4, p4b, p4c
KNAME = 'recurrent_scan__compressed_kv_cla__moe_arch_mod__prompt_kernel'

K12_LDS = 163840
QSCALE = 0x3e0293ee
BIG = 0x7ff00000

def gen_k12(opt):
    k = Asm(KNAME)
    k.short = "f"
    P4 = {'0': p4, '1': p4b, '2': p4c}[opt.get('s2', '2')]
    p4_ptr_loads, p4_setup, phase4 = P4.p4_ptr_loads, P4.p4_setup, P4.phase4
    ST = opt.get('stamp') == '1'
    S1 = opt.get('stamp') == 'p1'
    S2 = opt.get('stamp') == 'p2'
    SA = opt.get('stamp') == 'a'
    S0 = opt.get('stamp') == 'p0'
    w_ld, a_ld, x_ld = opt.get('w_ld', ''), opt.get('a_ld', ''), opt.get('x_ld', '')
    wq_ld, kv_ld, ffn_ld = opt.get('wq_ld', ''), opt.get('kv_ld', ' sc1'), opt.get('ffn_ld', '')
    MAP = int(opt.get('map', 4))
    WOT = opt.get('wot', '0') == '1'
    TK = opt.get('tk', '0') == '1'
    VOA, VOW, AD, PFO = 2, 6, 10, 47
    AA = [[10, 11], [12, 13]]
    WA = [list(range(16, 24)), [14, 15] + list(range(24, 30))]
    FA = lambda it, ks: 224 + (it % 4) * 8 + 4 * ks
    FW = lambda buf, jd, ks: 64 * buf + 8 * jd + 4 * ks
    def frag_of(isV, it, jd):
        return ((it >> 1) * 8 + jd, it & 1) if isV else (it * 4 + (jd >> 1), jd & 1)
    SRC = lambda n: ('v', 48 + 8 * n) if n < 26 else ('a', 128 + 8 * (n - 26))
    def acc(isV, it, jd):
        n, h = frag_of(isV, it, jd)
        p, r = SRC(n)
        return R(p, r + 4 * h, 4)
    PK = lambda n: 24 + 4 * (n if n < 26 else n - 26)
    VX, VY, VDMA, VRA, VRB, ORR, T0 = 2, 3, 4, 5, 6, 7, 1
    WV, XV, TA = 8, 10, 16
    ET = 8
    ONES, NINF = 16, 20
    NEGM, LS, PB, SB = 32, 48, 64, 128
    P = lambda par, qb, ks: PB + 32 * par + (qb * 2 + ks) * 4
    Sr = lambda par, qb, kb: SB + 64 * par + (qb * 4 + kb) * 4
    O = lambda qb, db: (qb * 8 + db) * 4
    Q = lambda qb, s: 128 + (qb * 4 + s) * 4
    FR = lambda grp, j: 192 + 16 * grp + 4 * j
    QA = lambda db, qb: 128 + (qb * 8 + db) * 4
    XR = lambda kk, qb: ((kk % 8) * 4 + qb) * 4
    WF = lambda kk, db: 192 + (kk & 1) * 32 + db * 4

    k.e("s_cmp_ge_u32 s2, 256")
    k.e("s_cbranch_scc1 L_k2_end")
    k.stamp(ST or S0)
    k.e("s_load_dwordx4 s[4:7], s[0:1], 0")
    k.e("s_load_dwordx2 s[44:45], s[0:1], 56")
    k.e("s_load_dwordx4 s[40:43], s[0:1], 24")
    k.e("s_load_dwordx4 s[64:67], s[0:1], 96")
    k.e("v_lshrrev_b32 v1, 6, v0")
    k.e("v_and_b32 v0, 63, v0")
    k.e("v_readfirstlane_b32 s32, v1")
    def emit(lst, o=None):
        for x in lst:
            if x.endswith(':'): k.label(x[:-1])
            else: k.e(x, tag='cpf')
    CPF = opt.get('cpf', '12346')
    if '1' in CPF: emit(code_prefetch(KNAME, "L_k2_fin", 32, 68, 120, 124))
    k.e("v_lshrrev_b32 v33, 5, v0")
    k.e("v_and_b32 v31, 31, v0")
    k.e("v_lshlrev_b32 v36, 4, v31")
    k.e("v_lshl_add_u32 v35, v33, 11, v36")
    k.e("s_lshl_b32 s36, s2, 14")
    k.e("s_lshl_b32 s37, s32, 12")
    k.e("s_add_u32 s36, s36, s37")
    k.e("s_mov_b32 s18, 4194304")
    k.e("s_mov_b32 s19, 0x20000")
    k.e("s_bfe_u32 s33, s2, 0x30003")
    k.e("s_lshr_b32 s35, s2, 7")
    k.e("s_bfe_u32 s3, s2, 0x10006")
    k.e("s_and_b32 s34, s2, 7")
    k.e("s_lshl_b32 s34, s34, 1")
    k.e("s_add_u32 s34, s34, s3")
    k.e("s_waitcnt lgkmcnt(0)")
    k.stamp(S0)
    k.e("s_mov_b32 s16, s4")
    k.e("s_and_b32 s17, s5, 0xffff")
    XP, WR, XF = 48, 64, 80
    for i in range(4):
        k.e(f"buffer_load_dwordx4 {V(XP+4*i,4)}, v35, s[16:19], s36 offen offset:{i*512}{x_ld}", tag='x')
    k.e("s_cmp_eq_u32 s35, 0")
    k.e("s_cselect_b32 s40, s40, s42")
    k.e("s_cselect_b32 s41, s41, s43")
    k.e("s_lshl_b32 s3, s34, 9")
    k.srd(12, 40, 0, "s3")
    k.e("s_sub_u32 s14, 4194304, s3")
    k.e("s_lshl_b32 s3, s33, 18")
    k.srd(8, 6, 262144, "s3")
    KX = int(opt.get('kx', 7))
    k.e(f"s_and_b32 s58, s2, {KX}")
    def dma_ops(buf):
        ops = []
        for (base, vo, so, srd, fl) in ((57, VOW, 52, 12, w_ld), (56, VOA, 48, 8, a_ld)):
            for hi in range(2):
                ops.append(('s', f"s_add_u32 m0, s{base}, {buf*65536 + hi*4096}"))
                for lo in range(4):
                    ops.append(('g', f"buffer_load_dwordx4 v{vo + (lo&1) + 2*hi}, {S(srd,4)}, s{so+lo} offen offset:{lo*1024}{fl} lds"))
        return ops
    def adv_ops(j):
        x = j ^ (j + 1)
        return [f"v_xor_b32 v{VOW+q}, {x << 19}, v{VOW+q}" for q in range(4)] + [f"v_xor_b32 v{VOA+q}, {x << 7}, v{VOA+q}" for q in range(4)]
    PF0 = int(opt.get('pf0', 2))
    pfc = [PF0]
    def pf_ops():
        j = pfc[0]; pfc[0] += 1
        return [f"buffer_load_dword v1, v{PFO}, s[60:63], 0 offen{opt.get('pf_ld', '')}",
                f"s_mul_i32 vcc_lo, s59, {(j ^ (j + 1)) & 7}", f"v_xor_b32 v{PFO}, vcc_lo, v{PFO}"]
    def setup_P():
        k.e("s_cmp_lt_u32 s32, 2")
        for j in range(3): k.e(f"s_cselect_b32 s{60+j}, s{8+j}, s{12+j}")
        k.e("s_mov_b32 s63, 0x20000")
        k.e(f"s_mov_b32 s59, {64*8192}")
        k.e("s_cselect_b32 s59, 128, s59")
        k.e("s_cselect_b64 vcc, -1, 0")
        k.e("s_cselect_b32 s38, 32, 16")
        k.e("s_lshr_b32 s3, s2, 6")
        k.e("s_cmp_lt_u32 s32, 2")
        k.e("s_cselect_b32 s3, s3, s33")
        k.e("s_lshl_b32 s3, s3, 1")
        k.e("s_and_b32 s39, s32, 1")
        k.e("s_add_u32 s3, s3, s39")
        k.e("s_lshl_b32 s3, s3, 15")
        k.e(f"s_xor_b32 s39, s58, {PF0}")
        k.e("s_mul_i32 s39, s39, s59")
        k.e("s_add_u32 s3, s3, s39")
        k.e("v_lshlrev_b32 v37, 10, v0")
        k.e("v_lshrrev_b32 v38, 2, v0")
        k.e("v_lshlrev_b32 v38, 13, v38")
        k.e("v_and_b32 v39, 3, v0")
        k.e("v_lshl_add_u32 v38, v39, 7, v38")
        k.e(f"v_cndmask_b32 v{PFO}, v38, v37, vcc")
        k.e(f"v_add_u32 v{PFO}, s3, v{PFO}")
        k.e("v_cmp_gt_u32 vcc, s38, v0")
        k.e(f"v_mov_b32 v37, {BIG}")
        k.e(f"v_cndmask_b32 v{PFO}, v37, v{PFO}, vcc")
    def setup_W():
        for j in range(4): k.e(f"s_mov_b32 s{52+j}, {j*15360}")
        k.e("s_lshl_b32 s57, s32, 13")
        k.e("s_add_u32 s56, s57, 32768")
        k.e("s_lshl_b32 s3, s58, 2")
        k.e("s_add_u32 s3, s3, s32")
        k.e("s_lshl_b32 s3, s3, 4")
        k.e("v_add_u32 v30, s3, v33")
        k.e("v_lshlrev_b32 v30, 13, v30")
        k.e("v_lshlrev_b32 v34, 5, v33")
        k.e("v_xor_b32 v34, v34, v36")
        k.e(f"v_add_u32 v{VOW}, v34, v30")
        k.e(f"v_xor_b32 v{VOW+1}, 64, v{VOW}")
        k.e(f"v_xor_b32 v{VOW+2}, {8*8192 + 128}, v{VOW}")
        k.e(f"v_xor_b32 v{VOW+3}, {8*8192 + 192}, v{VOW}")
    def setup_A():
        for j in range(4): k.e(f"s_mov_b32 s{48+j}, {j*7168}")
        k.e("v_lshrrev_b32 v30, 3, v0")
        k.e("v_lshlrev_b32 v30, 10, v30")
        k.e("s_lshl_b32 s3, s32, 16")
        k.e("s_lshl_b32 s39, s58, 7")
        k.e("s_add_u32 s3, s3, s39")
        k.e("v_and_b32 v31, 7, v0")
        k.e("v_lshrrev_b32 v32, 4, v0")
        k.e("v_xor_b32 v31, v31, v32")
        k.e("v_lshl_add_u32 v30, v31, 4, v30")
        k.e(f"v_add_u32 v{VOA}, s3, v30")
        k.e(f"v_xor_b32 v{VOA+1}, 64, v{VOA}")
        k.e(f"v_xor_b32 v{VOA+2}, 32768, v{VOA}")
        k.e(f"v_xor_b32 v{VOA+3}, {32768 + 64}, v{VOA}")
    def setup_D():
        k.srd(20, 66, 8 << 20)
        k.srd(24, 66, 32 * KV_HEAD, WS_KV)
        k.e("v_lshrrev_b32 v32, 4, v0")
        k.e("v_and_b32 v30, 15, v0")
        k.e("s_lshr_b32 s3, s32, 1")
        k.e("s_lshl_b32 s3, s3, 14")
        k.e("s_add_u32 s3, s3, 32768")
        k.e("v_lshlrev_b32 v31, 7, v30")
        k.e("v_add_u32 v31, s3, v31")
        k.e("v_lshrrev_b32 v34, 1, v30")
        k.e("v_xor_b32 v34, v34, v32")
        k.e(f"v_lshl_add_u32 v{AA[0][0]}, v34, 4, v31")
        k.e(f"v_xor_b32 v{AA[0][1]}, 64, v{AA[0][0]}")
        k.e("v_lshrrev_b32 v30, 2, v30")
        k.e("v_lshl_add_u32 v31, v32, 3, v30")
        k.e("v_lshlrev_b32 v31, 9, v31")
        k.e("v_and_b32 v34, 3, v0")
        k.e("v_lshl_add_u32 v31, v34, 3, v31")
        k.e("s_and_b32 s3, s32, 1")
        k.e("s_lshl_b32 s3, s3, 8")
        k.e("v_add_u32 v31, s3, v31")
        k.e("v_and_b32 v34, 1, v32")
        k.e("v_lshl_add_u32 v30, v34, 2, v30")
        k.e(f"v_lshl_add_u32 v{WA[0][0]}, v30, 5, v31")
        for jj in range(1, 8): k.e(f"v_xor_b32 v{WA[0][jj]}, {jj*32}, v{WA[0][0]}")
        for x0, x1 in zip(AA[0] + WA[0], AA[1] + WA[1]): k.e(f"v_add_u32 v{x1}, 65536, v{x0}")
    def act(seq):
        for x in seq.split(','):
            if not x: continue
            if x in 'PWAD': {'P': setup_P, 'W': setup_W, 'A': setup_A, 'D': setup_D}[x]()
            elif x == 'p':
                for s in pf_ops(): k.e(s, tag='pf')
            elif x == 'r':
                k.srd(28, 44, 2048)
                for i in range(4):
                    k.e(f"buffer_load_dwordx4 {V(WR+4*i,4)}, v36, s[28:31], 0 offen offset:{i*512}", tag='wr')
            else:
                st = int(x[1]); h = 0 if x[0] == 'w' else 1
                for t, s in dma_ops(st)[10*h:10*h+10]: k.e(s, tag=x + 'd')
                for s in adv_ops(st)[4*h:4*h+4]: k.e(s)
    PRO = opt.get('pro', 'W,w0,A,P,D,r/a0///').split('/')
    act(PRO[0])
    k.stamp(S0)
    def sum32(v, t):
        for m in ["quad_perm:[1,0,3,2]", "quad_perm:[2,3,0,1]", "row_half_mirror", "row_mirror"]:
            k.e(f"v_add_f32_dpp v{v}, v{v}, v{v} {m} row_mask:0xf bank_mask:0xf")
        k.e(f"v_mov_b32 v{t}, v{v}")
        k.e(f"v_permlane16_swap_b32 v{t}, v{v}")
        k.e(f"v_add_f32 v{v}, v{v}, v{t}")
    k.wait_vm('x')
    k.stamp(S0)
    for i in range(16):
        k.e(f"v_lshlrev_b32 v{XF+2*i}, 16, v{XP+i}")
        k.e(f"v_and_b32 v{XF+2*i+1}, 0xffff0000, v{XP+i}")
    k.e(f"v_pk_add_f32 v[40:41], {V(XF,2)}, {V(XF+2,2)}")
    k.e(f"v_pk_add_f32 v[42:43], {V(XF+4,2)}, {V(XF+6,2)}")
    for i in range(4, 16):
        d = 40 + 2 * (i & 1)
        k.e(f"v_pk_add_f32 {V(d,2)}, {V(d,2)}, {V(XF+2*i,2)}")
    k.e("v_pk_add_f32 v[40:41], v[40:41], v[42:43]")
    k.e("v_add_f32 v38, v40, v41")
    sum32(38, 37)
    k.stamp(S0)
    act(PRO[1])
    k.e("v_mul_f32 v38, 0xba800000, v38")
    k.e("v_mov_b32 v39, v38")
    T = 112
    for i in range(16):
        k.e(f"v_pk_add_f32 {V(T+2*(i&3),2)}, {V(XF+2*i,2)}, v[38:39]")
        d = 40 + 2 * (i & 1)
        if i < 2: k.e(f"v_pk_mul_f32 {V(d,2)}, {V(T+2*(i&3),2)}, {V(T+2*(i&3),2)}")
        else: k.e(f"v_pk_fma_f32 {V(d,2)}, {V(T+2*(i&3),2)}, {V(T+2*(i&3),2)}, {V(d,2)}")
    k.e("v_pk_add_f32 v[40:41], v[40:41], v[42:43]")
    k.e("v_add_f32 v40, v40, v41")
    sum32(40, 37)
    act(PRO[2])
    k.stamp(S0)
    k.e("v_mul_f32 v40, 0x3a800000, v40")
    k.e("v_cvt_pk_bf16_f32 v44, v38, v40")
    k.e("v_lshlrev_b32 v38, 16, v44")
    k.e("v_and_b32 v40, 0xffff0000, v44")
    k.e("v_add_f32 v40, 0x3727c5ac, v40")
    k.e("v_cvt_pk_bf16_f32 v44, v40, v40")
    k.e("v_lshlrev_b32 v40, 16, v44")
    k.e("v_sqrt_f32 v40, v40")
    k.e("v_mov_b32 v39, v38")
    k.e("v_cvt_pk_bf16_f32 v44, v40, v40")
    k.e("v_lshlrev_b32 v44, 16, v44")
    k.e("v_rcp_f32 v40, v44")
    for i in range(16):
        k.e(f"v_pk_add_f32 {V(XF+2*i,2)}, {V(XF+2*i,2)}, v[38:39]")
    k.e("v_fma_f32 v45, -v44, v40, 1.0")
    k.e("v_fma_f32 v40, v45, v40, v40")
    k.e("v_mov_b32 v41, v40")
    for i in range(16):
        k.e(f"v_cvt_pk_bf16_f32 v{XP+i}, v{XF+2*i}, v{XF+2*i+1}")
    for i in range(16):
        k.e(f"v_lshlrev_b32 v{XF+2*i}, 16, v{XP+i}")
        k.e(f"v_and_b32 v{XF+2*i+1}, 0xffff0000, v{XP+i}")
    for i in range(16):
        k.e(f"v_pk_mul_f32 {V(XF+2*i,2)}, {V(XF+2*i,2)}, v[40:41]")
    for i in range(16):
        k.e(f"v_cvt_pk_bf16_f32 v{XP+i}, v{XF+2*i}, v{XF+2*i+1}")
    k.e("s_mul_i32 s3, s32, 4128")
    k.e("s_add_u32 s3, s3, 131072")
    k.e("v_mul_u32_u24 v42, 2064, v33")
    k.e("v_add3_u32 v42, v42, v36, s3")
    for i in range(4):
        k.e(f"ds_write_b128 v42, {V(XP+4*i,4)} offset:{i*512}")
    act(PRO[3])
    k.stamp(S0)
    k.wait_vm('wr')
    k.stamp(S0)
    for i in range(16):
        k.e(f"v_lshlrev_b32 v{XF+2*i}, 16, v{XP+i}")
        k.e(f"v_and_b32 v{XF+2*i+1}, 0xffff0000, v{XP+i}")
        k.e(f"v_lshlrev_b32 v{T+2*(i&3)}, 16, v{WR+i}")
        k.e(f"v_and_b32 v{T+2*(i&3)+1}, 0xffff0000, v{WR+i}")
        d = 42 + 2 * (i & 1)
        if i < 2: k.e(f"v_pk_mul_f32 {V(d,2)}, {V(XF+2*i,2)}, {V(T+2*(i&3),2)}")
        else: k.e(f"v_pk_fma_f32 {V(d,2)}, {V(XF+2*i,2)}, {V(T+2*(i&3),2)}, {V(d,2)}")
    k.e("v_pk_add_f32 v[42:43], v[42:43], v[44:45]")
    k.e("v_add_f32 v45, v42, v43")
    sum32(45, 37)
    k.e("v_cvt_pk_bf16_f32 v45, v45, v45")
    k.e("v_ashrrev_i32 v46, 31, v45")
    k.e("v_or_b32 v46, 0x80000000, v46")
    k.e("v_xor_b32 v45, v45, v46")
    k.e("v_and_b32 v45, 0xffff0000, v45")
    k.e("s_lshr_b32 s3, s36, 11")
    k.e("v_add_u32 v46, s3, v33")
    k.e("v_sub_u32 v44, 0xffff, v46")
    k.e("v_or_b32 v45, v45, v44")
    k.e("v_lshlrev_b32 v44, 2, v46")
    k.e("v_lshlrev_b32 v46, 3, v46")
    k.e("v_xor_b32 v38, 0x80000000, v38")
    k.e("v_mov_b32 v39, v40")
    k.e(f"s_mov_b32 s3, {WS_KEYS}")
    k.e(f"s_mov_b32 s39, {WS_STATS}")
    k.e("s_mov_b32 exec_lo, 1")
    k.e("s_mov_b32 exec_hi, 1")
    k.e("buffer_store_dword v45, v44, s[20:23], s3 offen sc1", tag='ln')
    k.e("buffer_store_dwordx2 v[38:39], v46, s[20:23], s39 offen sc1", tag='ln')
    k.e("s_mov_b64 exec, -1")
    k.e("s_load_dwordx2 s[4:5], s[0:1], 16")
    k.e("s_load_dwordx4 s[40:43], s[0:1], 64")
    k.e("s_load_dwordx2 s[92:93], s[0:1], 40")
    k.e("s_load_dwordx2 s[94:95], s[0:1], 80")
    k.e("s_load_dwordx2 s[100:101], s[0:1], 0")
    act(PRO[4])
    PFN = pfc[0] - 2
    k.srd(28, 64, 256)

    def areads(st, pr):
        return [f"ds_read_b128 {A(FA(it,ks),4)}, v{AA[st & 1][ks]} offset:{it*2048}" for it in (2 * pr, 2 * pr + 1) for ks in range(2)]
    def wfreads(st):
        return [[f"ds_read_b64_tr_b16 {A(FW(st & 1,j,ks)+2*rd,2)}, v{WA[st & 1][j]} offset:{ks*16384+rd*2048}" for rd in range(2)]
                for j in range(8) for ks in range(2)]
    k.stamp(S0)
    k.wait_vm('w0d'); k.wait_vm('a0d')
    k.e("s_waitcnt lgkmcnt(0)")
    k.e("s_barrier")
    k.stamp(ST or S0)
    for s in areads(0, 0): k.e(s, tag='A0_0')
    for n, grp in enumerate(wfreads(0)):
        for s in grp: k.e(s, tag=f'W0_{n // 2}')
    k.e("s_cmp_lg_u32 s35, 0")
    k.e("s_cbranch_scc1 L_k1_vpath")

    def chunk_ops(c):
        kind, j = c
        slot = {'w': j % 4, 'kv': (j + 4) % 8}[kind]
        ops = [('s', f"s_add_u32 m0, s44, {slot * 16384}")]
        if kind == 'w':
            for q in range(4):
                ops.append(('g', f"buffer_load_dwordx4 v{WV + (q >> 1)}, s[8:11], s{48+q} offen offset:{q*1024}{wq_ld} lds"))
            ops.append(('v', f"v_add_u32 v{WV}, {64*8192}, v{WV}"))
            ops.append(('v', f"v_add_u32 v{WV+1}, {64*8192}, v{WV+1}"))
        elif kind == 'f':
            for q in range(4):
                ops.append(('g', f"buffer_load_dwordx4 v{12 + (q >> 1) + 2 * (j & 1)}, {S(60 + 8 * (j >> 1), 4)}, s{52+q} offen offset:{q*1024}{ffn_ld} lds"))
        else:
            ops.append(('s', f"s_mov_b32 s7, {j * KV_CH}"))
            for q in range(4):
                ops.append(('g', f"buffer_load_dwordx4 v{VDMA}, s[12:15], s7 offen offset:{q*1024}{kv_ld} lds"))
        return ops
    def xn_ops(kk):
        ops = []
        for qb in range(4):
            so = "0" if qb & 1 else "s58"
            ops.append(('g', f"buffer_load_dwordx4 {A(XR(kk,qb),4)}, v{XV + (qb >> 1)}, s[20:23], {so} offen offset:{(kk % 4)*1024}{opt.get('xn_ld', ' sc1')}"))
        if kk % 4 == 3:
            ops.append(('v', f"v_add_u32 v{XV}, 4096, v{XV}"))
            ops.append(('v', f"v_add_u32 v{XV+1}, 4096, v{XV+1}"))
        return ops
    def wreads(kk):
        st, ks = kk // 2, kk & 1
        return [[f"ds_read_b64_tr_b16 {A(WF(kk,db)+2*rd,2)}, v{TA+db} offset:{(st % 4)*16384 + ks*8192 + rd*1024}" for rd in range(2)] for db in range(8)]
    ool = []
    def spin(lab, ret, off, target, vd, vz, sv, sc):
        def fn():
            k.e(f"s_mov_b32 s{sc}, 0x400000")
            k.label(lab + "_l")
            k.e(f"s_sleep {opt.get('slp', 8)}")
            k.e(f"buffer_load_dword v{vd}, v{vz}, s[28:31], {off} offen sc1")
            k.e("s_waitcnt vmcnt(0)")
            k.e(f"v_readfirstlane_b32 s{sv}, v{vd}")
            k.e(f"s_sub_u32 s{sc}, s{sc}, 1")
            k.e(f"s_cmp_eq_u32 s{sc}, 0")
            k.e(f"s_cbranch_scc1 {ret}")
            k.e(f"s_cmp_lt_u32 s{sv}, {target}")
            k.e(f"s_cbranch_scc1 {lab}_l")
        ool.append((lab, fn, ret))
    def srd_rec(b, d, base, nbytes, add=None):
        if add is None:
            b.e(f"s_mov_b32 s{d}, s{base}"); b.e(f"s_and_b32 s{d+1}, s{base+1}, 0xffff")
        else:
            b.blk([f"s_add_u32 s{d}, s{base}, {add}", f"s_addc_u32 s{d+1}, s{base+1}, 0", f"s_and_b32 s{d+1}, s{d+1}, 0xffff"])
        b.e(f"s_mov_b32 s{d+2}, {nbytes}"); b.e(f"s_mov_b32 s{d+3}, 0x20000")

    def phase1_stream(isV):
        b = Rec()
        tg = 'v' if isV else 'k'
        b.e("v_and_b32 v46, 7, v0")
        b.e("v_lshrrev_b32 v1, 3, v0") if False else None
        b.e("v_mul_u32_u24 v30, 2064, v46")
        b.e("v_lshrrev_b32 v31, 3, v0")
        b.e("s_lshl_b32 s3, s32, 9")
        b.e("s_add_u32 s3, s3, 131072")
        b.e("v_lshl_add_u32 v30, v31, 4, v30")
        b.e("v_add_u32 v30, s3, v30")
        b.e("v_lshlrev_b32 v31, 8, v31")
        b.e("v_lshl_add_u32 v46, v46, 4, v31")
        for i in (1, 2, 3, 0):
            b.e(f"ds_read_b128 {V(30+4*i,4)}, v30 offset:{i*128}", tag='xs')
        b.e("s_lshr_b32 s3, s2, 1")
        b.e(f"s_mul_i32 s3, s3, {XN_RB}")
        b.e("s_add_u32 s3, s3, s57")
        b.e("s_and_b32 s39, s2, 1")
        b.e("s_lshl_b32 s39, s39, 7")
        b.e("s_add_u32 s3, s3, s39")
        b.e("s_add_u32 s39, s3, 4096")
        b.at(2)
        for i in range(4):
            b.e(f"buffer_store_dwordx4 {V(30+4*i,4)}, v46, s[20:23], s{3 if i < 2 else 39} offen offset:{(i&1)*2048} sc1", tag='ln')
        b.e("s_lshl_b32 s3, s34, 1")
        b.e("s_and_b32 s36, s32, 1")
        b.e("s_add_u32 s3, s3, s36")
        b.e(f"s_mul_i32 s3, s3, {KV_HEAD}")
        b.e(f"s_mul_i32 s36, s33, {4*KV_TILE}")
        b.e("s_add_u32 s3, s3, s36")
        b.e("s_lshr_b32 s36, s32, 1")
        b.e(f"s_mul_i32 s36, s36, {2*KV_TILE}")
        b.e("s_add_u32 s3, s3, s36")
        b.e(f"s_add_u32 s38, s3, {KV_CH if isV else 0}")
        b.e("s_lshl_b32 s39, s34, 7")
        b.e("s_lshl_b32 s36, s33, 2")
        b.e("s_add_u32 s39, s39, s36")
        b.e(f"s_add_u32 s39, s39, {WS_FLG + (32 if isV else 0)}")
        b.e("v_mov_b32 v30, 1")
        b.e("v_mov_b32 v31, 0")
        b.blk(["s_cmp_eq_u32 s32, 0", f"s_cselect_b32 s39, s39, {BIG}"])
        b.blk(["s_mov_b64 exec, 1", ("buffer_store_dword v31, v31, s[20:23], s39 offen sc1", 'ln'), "s_mov_b64 exec, -1"])
        if MAP == 4:
            b.e("s_and_b32 s33, s2, 7")
            b.e("s_lshl_b32 s33, s33, 2")
            b.e("s_bfe_u32 s3, s2, 0x20003")
            b.e("s_add_u32 s33, s33, s3")
            b.e("s_lshr_b32 s34, s2, 5")
        else:
            b.e("s_and_b32 s33, s2, 6")
            b.e("s_lshl_b32 s33, s33, 2")
            b.e("s_bfe_u32 s3, s2, 0x30003")
            b.e("s_add_u32 s33, s33, s3")
            b.e("s_lshr_b32 s34, s2, 6")
            b.e("s_lshl_b32 s34, s34, 1")
            b.e("s_and_b32 s3, s2, 1")
            b.e("s_add_u32 s34, s34, s3")
        b.e("s_lshl_b32 s64, s34, 7")
        b.e("s_lshl_b32 s3, s33, 2")
        b.e("s_add_u32 s64, s64, s3")
        b.e(f"s_add_u32 s64, s64, {WS_CFL}")
        b.e("s_lshl_b32 s65, s34, 8")
        b.e("s_sub_u32 s65, 1920, s65")
        b.e("v_mul_u32_u24 v32, s65, v0")
        b.blk(["s_cmp_eq_u32 s32, 0", f"s_cselect_b32 s64, s64, {BIG}"])
        b.blk(["s_mov_b64 exec, 3", ("buffer_store_dword v31, v32, s[20:23], s64 offen sc1", 'ln'), "s_mov_b64 exec, -1"])
        b.e("s_lshl_b32 s3, s2, 2")
        b.e(f"s_add_u32 s3, s3, {WS_HFL}")
        b.e("v_lshlrev_b32 v32, 10, v0")
        b.blk(["s_cmp_eq_u32 s32, 0", f"s_cselect_b32 s3, s3, {BIG}"])
        b.blk(["s_mov_b64 exec, 0x1ff", ("buffer_store_dword v31, v32, s[20:23], s3 offen sc1", 'ln'), "s_mov_b64 exec, -1"])
        b.e("s_lshl_b32 s35, s34, 1")
        b.e("s_sub_u32 s36, 32, s35")
        b.e("s_add_u32 s35, s35, 2")
        b.e("s_lshl_b32 s44, s32, 12")
        b.e("s_lshl_b32 s58, s32, 1")
        b.e("s_sub_u32 s58, 7, s58")
        b.e(f"s_mul_i32 s58, s58, {XN_RB}")
        b.e("s_sub_u32 s3, 15, s34")
        b.e("s_lshl_b32 s45, s3, 3")
        b.e("s_add_u32 s45, s45, s32")
        b.e("s_lshl_b32 s46, s34, 3")
        b.e("s_add_u32 s46, s46, s32")
        srd_rec(b, 68, 42, 7340032)
        b.blk(["s_cmp_eq_u32 s32, 0", f"s_cselect_b32 s37, 0, {BIG}"])
        b.e("s_lshl_b32 s3, s33, 8")
        srd_rec(b, 16, 4, 0, "s3")
        b.e("s_sub_u32 s18, 8388608, s3")
        WQN = int(opt.get('wqn', 4))
        ln_ = 64 // WQN
        b.e(f"v_and_b32 v33, {ln_ - 1}, v0")
        b.e("v_lshrrev_b32 v32, 1, v33")
        b.e("v_and_b32 v33, 1, v0")
        b.e("v_lshlrev_b32 v32, 13, v32")
        b.e("v_lshl_add_u32 v45, v33, 7, v32")
        b.e("s_lshl_b32 s3, s32, 3")
        b.e("s_add_u32 s3, s3, s34")
        b.e(f"s_mul_i32 s47, s3, {ln_ // 2 * 8192}")
        WQ0 = int(opt.get('wq0', 6))
        ev = []
        for j in range(WQN): ev.append((WQ0 + j * float(opt.get('wqs', 2)), 'pf', j))
        NS = int(opt.get('cas', 4))
        for j in range(NS): ev.append((5.2 + j * float(opt.get('cad', 1.2)), 'ca', j))
        b.e(f"s_bfe_u32 s6, s2, {(NS.bit_length() - 1) << 16 | 3}")
        b.e("s_lshl_b32 s3, s32, 8")
        b.e("s_or_b32 s6, s6, s3")
        WOP = WOT
        if WOP:
            b.e("v_bfe_u32 v39, v0, 3, 1")
            b.e("v_and_b32 v33, 7, v0")
            b.e("v_lshlrev_b32 v39, 11, v39")
            b.e("v_lshl_add_u32 v39, v33, 7, v39")
            b.e("s_lshr_b32 s3, s2, 1")
            b.e("s_lshl_b32 s3, s3, 16")
            b.e("v_add_u32 v39, s3, v39")
            b.e("s_and_b32 s3, s2, 1")
            b.e("s_lshl_b32 s3, s3, 10")
            b.e("v_add_u32 v39, s3, v39")
            b.e("s_lshl_b32 s3, s32, 14")
            b.e("v_add_u32 v39, s3, v39")
            ev.append((5.99, 'srd', 0))
            for j in range(4): ev.append((float(opt.get('wop0', 6)) + j * 2 + 0.01, 'wo', j))
        late = []
        for step, kind, j in sorted(ev):
            o = b
            if step >= 12:
                o = Rec(); late.append(o)
            o.at(step)
            if kind == 'ca':
                o.check_clear('ln')
                o.blk([f"s_cmp_eq_u32 s6, {j}", f"s_cselect_b32 s3, 0, {BIG}"])
                o.blk(["s_mov_b64 exec, 1", "buffer_atomic_add v30, v31, s[28:31], s3 offen sc1", "s_mov_b64 exec, -1"])
            elif kind == 'srd':
                srd_rec(o, 60, 92, 8388608)
            elif kind == 'wo':
                o.e("buffer_load_dword v44, v39, s[60:63], 0 offen", tag='pf')
                o.e("v_add_u32 v39, 4096, v39")
            else:
                o.e(f"buffer_load_dword v44, v45, s[{16 if step < 12 else 8}:{19 if step < 12 else 11}], s47 offen{opt.get('wqpf_ld', '')}", tag='pf')
                o.e(f"s_add_u32 s47, s47, {1024 // WQN * 8192}")
        b.e("v_lshrrev_b32 v32, 4, v0")
        b.e("v_and_b32 v33, 15, v0")
        b.e("s_lshl_b32 s3, s32, 4")
        b.e("v_add_u32 v34, s3, v32")
        b.e("v_lshlrev_b32 v36, 1, v32")
        b.e("v_xor_b32 v36, v36, v33")
        b.e("v_xor_b32 v37, 8, v36")
        if '2' in CPF:
            b.at(10.1)
            cp = code_prefetch("L_phase2", "L_k2_fin", 32, 6, 40, 38)
            cp = [x.replace("s8", "s3") for x in cp]
            b.blk(cp[:4])
            for x in cp[4:-3]: b.e(x)
            b.blk(cp[-3:-1])
            b.e(cp[-1])
        b.at(12)
        b.e("buffer_load_dword v1, v31, s[28:31], s37 offen sc1", tag='poll')
        for j in range(3): b.e(f"s_mov_b32 s{8+j}, s{16+j}")
        srd_rec(b, 16, 66, 16 << 20, WS_CTX)
        for j in range(4): b.e(f"s_mov_b32 s{48+j}, {j*31744}")
        b.e("v_lshlrev_b32 v35, 13, v34")
        b.e(f"v_lshl_add_u32 v{WV}, v36, 4, v35")
        b.e(f"v_lshl_add_u32 v{WV+1}, v37, 4, v35")
        b.e(f"v_lshlrev_b32 v{VX}, 4, v0")
        b.e(f"v_add_u32 v{VY}, 65536, v{VX}")
        b.e(f"v_add_u32 v{VDMA}, s44, v{VX}")
        b.e("v_mov_b32 v7, 0")
        b.e("v_lshlrev_b32 v35, 2, v32")
        b.e("v_sub_u32 v35, v33, v35")
        b.e("s_lshl_b32 s3, s32, 4")
        b.e(f"v_add_u32 v{VRA}, s3, v35")
        b.e("s_sub_u32 s3, 48, s3")
        b.e(f"v_add_u32 v{VRB}, s3, v35")
        b.e(f"s_mul_i32 s3, s33, {KV_HEAD}")
        b.e(f"s_add_u32 s3, s3, {WS_KV}")
        srd_rec(b, 12, 66, 0, "s3")
        b.e(f"s_mul_i32 s14, s36, {KV_TILE}")
        for o in late: b.items += o.items
        ta_setup(b)
        b.at(13.4)
        b.e(f"s_mul_i32 s3, s45, {XN_RB}")
        b.e(f"v_add_u32 v{XV}, s3, v{VX}")
        b.e(f"s_mul_i32 s3, s46, {XN_RB}")
        b.e(f"v_add_u32 v{XV+1}, s3, v{VX}")
        if '6' in CPF:
            b.at(14)
            b.e("v_mov_b32 v14, v40"); b.e("v_mov_b32 v15, v41")
        if 'dbg_noxn' in opt:
            b.e(f"v_mov_b32 v{XV}, {BIG}"); b.e(f"v_mov_b32 v{XV+1}, {BIG}")
        if 'dbg_nowq' in opt: b.e("s_mov_b32 s10, 0")
        if 'dbg_nost' in opt: b.e("s_mov_b32 s26, 0")
        spin(f"L_spinA{tg}", f"L_spinAr{tg}", 0, 256, 1, 7, 3, 47)
        return b
    def ta_setup(b):
        b.e("v_lshrrev_b32 v42, 2, v33")
        b.e("v_lshl_add_u32 v43, v32, 3, v42")
        b.e("v_lshlrev_b32 v43, 8, v43")
        b.e("v_and_b32 v46, 3, v0")
        b.e("v_lshl_add_u32 v43, v46, 3, v43")
        b.e("v_and_b32 v46, 1, v32")
        b.e("v_lshl_add_u32 v42, v46, 2, v42")
        b.e(f"v_lshl_add_u32 v{TA}, v42, 5, v43")
        for db in range(1, 8): b.e(f"v_xor_b32 v{TA+db}, {32*db}, v{TA}")

    NS7 = int(opt.get('ns7', 0))
    def kvstore_ops(n):
        off = (n >> 4) * KV_TILE + (n & 15) * 1024
        return ([f"s_add_u32 s59, s38, {off}"] if n % 4 == 0 else []) + \
               [f"buffer_store_dwordx4 {V(PK(n),4)}, v{VX}, s[24:27], s59 offen offset:{(n % 4)*1024}{opt.get('kv_st', ' sc1')}"]
    def place_vm(g, gt, scal, ops, start, step):
        gi = start
        for t, s, tg in ops:
            if t == 's': scal.setdefault(gi - 1, []).append(s)
            elif t == 'g':
                assert gi not in g and gi < 128, gi
                g[gi] = [s]; gt[gi] = tg; gi += step
            else:
                q = gi - step + 1
                while (q in g and (len(g[q]) >= 2 or g[q][-1].startswith(('buffer', 'ds_read_b64')))) or ((q - start) % step == 0 and q < 127): q += 1
                g.setdefault(min(q, 127), []).append(s)
    vq0, dq0 = list(k.vq), list(k.dq)
    for isV in (0, 1):
        if isV:
            k.label("L_k1_vpath"); k.win = []; k.vq = list(vq0); k.dq = list(dq0)
        b = phase1_stream(isV)
        if S1: k.nstamp = 0
        for st in range(8):
            p = st & 1
            k.stamp(S1)
            g = {}; gt = {}; scal = {}
            for pr in range(4):
                s2, p2 = (st, pr + 1) if pr < 3 else (st + 1, 0)
                if s2 < 8:
                    for q, s in enumerate(areads(s2, p2)):
                        x = 32 * pr + 3 + 4 * q
                        g[x] = [s]; gt[x] = f'A{s2}_{p2}'
                    scal.setdefault(32 * pr + 30, []).append(('w', f'A{s2}_{p2}'))
            if st < 7:
                free = [x for x in range(65, 122, 2) if x not in g]
                for n, grp in enumerate(wfreads(st + 1)):
                    x = free[(n * len(free)) // 16]
                    g[x] = grp; gt[x] = f'W{st+1}'
                scal.setdefault(127, []).append(('w', f'W{st+1}'))
                scal.setdefault(61, []).append(('v', f'w{st+1}d')); scal.setdefault(62, []).append("s_barrier")
                scal.setdefault(93, []).append(('v', f'a{st+1}d')); scal.setdefault(94, []).append("s_barrier")
            if st == 0:
                ops = []
                for h, nm in enumerate(('w1', 'a1')):
                    if nm not in '/'.join(PRO):
                        ops += [(t, s, nm + 'd') for t, s in dma_ops(1)[10*h:10*h+10]] + [('v', s, None) for s in adv_ops(1)[4*h:4*h+4]]
                place_vm(g, gt, scal, ops, 2, int(opt.get('st1s', 2)))
                pfc[0] = 2 + PFN
                for q in range(int(opt.get('pfk', 1))):
                    po = pf_ops()
                    assert 44 + 4 * q not in g
                    g[44 + 4 * q] = [po[0]]; gt[44 + 4 * q] = 'pf'; g[45 + 4 * q] = po[1:] + g.get(45 + 4 * q, [])
            if st < 6:
                d = dma_ops(p); adv = adv_ops(st + 2) if st < 5 else []
                ops = [(t, s, f'w{st+2}d') for t, s in d[:10]] + [('v', s, None) for s in adv[:4]] + \
                      [(t, s, f'a{st+2}d') for t, s in d[10:]] + [('v', s, None) for s in adv[4:]]
                place_vm(g, gt, scal, ops, 64, 4)
                if pfc[0] < 8:
                    po = pf_ops()
                    g[126] = [po[0]] + g.get(126, []); gt[126] = 'pf'
                    g[127] = [po[1]] + g.get(127, []) + [po[2]]
            elif st == 6:
                ops = []
                for c in range(4): ops += [(t, s, f'w{c}') for t, s in chunk_ops(('w', c))]
                place_vm(g, gt, scal, ops, 64, 4)
            else:
                XB = int(opt.get('xb', 28))
                tg = 'v' if isV else 'k'
                scal.setdefault(XB - 2, []).append(('v', 'w0'))
                scal.setdefault(XB, []).extend(["v_readfirstlane_b32 s3, v1", "s_nop 0", "s_or_b32 s3, s3, s37", "s_cmp_lt_u32 s3, 256",
                                                f"s_cbranch_scc1 L_spinA{tg}", f"L_spinAr{tg}:", "s_barrier"])
                ops = []
                for kk in range(4): ops += [(t, s, f'x{kk}') for t, s in xn_ops(kk)]
                place_vm(g, gt, scal, ops, XB + 4, int(opt.get('xs7', 6)) & ~1)
                for n, grp in enumerate(wreads(0)):
                    assert 105 + 2 * n not in g
                    g[105 + 2 * n] = grp
                for n in range(26):
                    b.at(14 + (4 * n + 8) / 64.0)
                    r = SRC(n)[1]
                    for q in range(4): b.e(f"v_cvt_pk_bf16_f32 v{PK(n)+q}, v{r+2*q}, v{r+2*q+1}")
                    m_ = (n * NS7) // 26
                    if (n + 1) * NS7 // 26 > m_:
                        for x in kvstore_ops(m_): b.e(x, tag='kvst')
            if isV: order = [(2 * pr + h, jd, ks) for pr in range(4) for jd in range(8) for h in range(2) for ks in range(2)]
            else: order = [(it, jd, ks) for it in range(8) for jd in range(8) for ks in range(2)]
            for n, (it, jd, ks) in enumerate(order):
                if st == 0:
                    k.wait_ds('A0_0'); k.wait_ds(f'W0_{jd}')
                fa, fw_ = A(FA(it, ks), 4), A(FW(p, jd, ks), 4)
                d = acc(isV, it, jd)
                c = "0" if (st == 0 and ks == 0) else d
                k.e(mfma(d, fa, fw_, c) if isV else mfma(d, fw_, fa, c))
                for x in scal.get(n, []):
                    if isinstance(x, tuple): (k.wait_ds if x[0] == 'w' else k.wait_vm)(x[1])
                    elif x.endswith(':'): k.label(x[:-1])
                    else: k.e(x)
                if n in g:
                    for s in g[n]: k.e(s, tag=gt.get(n))
                elif n not in scal:
                    b.fill(k, 2 * st + n / 64.0)
        print(f"phase1 isV={isV}: items left {len(b.items)}")
        k.stamp(S1)
        b.drain(k)
        k.stamp(S1)
        if not isV:
            k.e("s_branch L_phase2")
            vqK = list(k.vq)
    assert vqK == k.vq
    k.label("L_phase2")
    k.win = []
    k.e("s_nop 7")
    k.stamp(ST)

    b = Rec()
    KY = 56
    SPK = float(opt.get('spk', 2))
    def kvstore(n):
        if n < NS7: return
        b.at((n - NS7) / SPK)
        for x in kvstore_ops(n): b.e(x, tag='kvst')
    for n in range(26):
        kvstore(n)
        if 8 <= n < 14:
            m = n + 18
            for q in range(8): b.e(f"v_accvgpr_read_b32 v{48+q}, a{SRC(m)[1]+q}")
            for q in range(4): b.e(f"v_cvt_pk_bf16_f32 v{PK(m)+q}, v{48+2*q}, v{49+2*q}")
    for n in range(26, 32): kvstore(n)
    b.e("v_mov_b32 v12, 1")
    b.e("v_and_b32 v1, 15, v0")
    b.e("v_lshlrev_b32 v1, 2, v1")
    b.e("s_lshr_b32 s6, s33, 1")
    b.e("s_lshl_b32 s6, s6, 7")
    b.e(f"s_add_u32 s6, s6, {WS_FLG}")
    b.blk(["s_cmp_eq_u32 s32, 0", f"s_cselect_b32 s6, s6, {BIG}"])
    SIG = int(opt.get('sig', 21))
    POL = float(opt.get('pol', 26.5))
    b.at(SIG)
    b.blk(["s_mov_b64 exec, 1", "buffer_store_dword v12, v7, s[20:23], s39 offen sc1", "s_mov_b64 exec, -1"])
    b.at(POL)
    b.e("buffer_load_dword v12, v1, s[20:23], s6 offen sc1", tag='poll')
    CK = int(opt.get('ck', 29))
    n_ = 0
    for j in (0, 2, 1, 3, 4, 5, 6):
        for t, s in chunk_ops(('kv', j)):
            if t == 'g':
                b.at(max(CK + n_ * float(opt.get('kvp', 0.09)), {4: 25, 5: 27, 6: 29}.get(j, 0))); n_ += 1
            b.e(s, tag=f'c{16+j}')
    def spinB():
        k.e("s_mov_b32 s59, 0x400000")
        k.label("L_spinB_l")
        k.e(f"s_sleep {opt.get('slp', 4)}")
        k.e("buffer_load_dword v12, v1, s[20:23], s6 offen sc1")
        k.e("s_sub_u32 s59, s59, 1")
        k.e("s_cmp_eq_u32 s59, 0")
        k.e("s_cbranch_scc1 L_spinBx")
        k.e("s_waitcnt vmcnt(0)")
        k.e("v_cmp_ne_u32 vcc, 1, v12")
        k.e("s_cbranch_vccnz L_spinB_l")
        k.label("L_spinBx")
        k.e("s_waitcnt vmcnt(0)")
    ool.append(("L_spinB", spinB, "L_spinBr"))

    b1 = b
    b = Rec()
    srd_rec(b, 60, 40, 7340032)
    RT = [float(x) for x in opt.get('rt', '0,5').split(',')] if '6' in CPF else []
    for x in RT:
        b.at(x)
        b.e("global_load_dword v13, v[14:15], off", tag='keys')
    b.at((17 - NS7) / SPK + 1)
    b.e(f"s_mov_b32 s3, {WS_KEYS}")
    b.e(f"s_mov_b32 s47, {WS_KEYS + 4096}")
    for i in range(8):
        b.e(f"buffer_load_dwordx4 {V(KY+4*i,4)}, v{VX}, s[20:23], s{3 if i < 4 else 47} offen offset:{(i % 4)*1024} sc1", tag='keys')
    b.at((17 - NS7) / SPK + 8)
    b.wait_vm('keys')
    b.e(f"v_max_u32 v14, v{KY}, v{KY+1}")
    b.e(f"v_min_u32 v15, v{KY}, v{KY+1}")
    for i in range(2, 32):
        b.e(f"v_med3_u32 v15, v14, v15, v{KY+i}"); b.e(f"v_max_u32 v14, v14, v{KY+i}")
    def wmax(v, sdst):
        for m in ["quad_perm:[1,0,3,2]", "quad_perm:[2,3,0,1]", "row_half_mirror", "row_mirror"]:
            b.blk([f"v_max_u32_dpp {v}, {v}, {v} {m} row_mask:0xf bank_mask:0xf"])
        b.blk([f"v_readlane_b32 s3, {v}, 0", f"v_readlane_b32 s47, {v}, 16"])
        b.blk([f"v_readlane_b32 s4, {v}, 32", f"v_readlane_b32 s5, {v}, 48"])
        b.blk(["s_max_u32 s3, s3, s47", "s_max_u32 s4, s4, s5", f"s_max_u32 s{sdst}, s3, s4"])
    b.e("v_mov_b32 v13, v14")
    wmax("v13", 40)
    b.blk(["v_cmp_eq_u32 vcc, s40, v14"])
    b.blk(["v_cndmask_b32 v13, v14, v15, vcc"])
    wmax("v13", 41)
    for t in range(2):
        b.e(f"s_and_b32 s3, s{40+t}, 0xffff")
        b.e(f"s_sub_u32 s{42+t}, 0xffff, s3")
    for t in range(2):
        b.e(f"v_mov_b32 v60, s{40+t}")
        b.e("v_not_b32 v61, v60")
        b.e("v_ashrrev_i32 v61, 31, v61")
        b.e("v_or_b32 v61, 0x80000000, v61")
        b.e("v_xor_b32 v60, v60, v61")
        b.e("v_and_b32 v60, 0xffff0000, v60")
        b.e("v_mul_f32 v60, 0xbfb8aa3b, v60")
        b.e("v_exp_f32 v60, v60")
        b.e("v_add_f32 v60, 1.0, v60")
        b.e("v_rcp_f32 v60, v60")
        b.e("v_cvt_pk_bf16_f32 v60, v60, v60")
        b.e(f"v_and_b32 v{64+t}, 0xffff0000, v60")
    for r in range(16): b.e(f"v_mov_b32 v{LS+r}, 0")
    WARM = opt.get('warm', '1') == '1'
    if WARM:
        WC = int(opt.get('wc', 4))
        upc = 64 - WC * WC
        seg = upc * 32 * 4 * 128
        bufs = [(94, 7340032), (100, 4194304), (60, 7340032), (68, 7340032)] + ([] if WOT else [(92, 8388608)])
        b.e("s_mul_i32 s3, s34, s34")
        b.e(f"s_mul_i32 s47, s33, {upc}")
        b.e("s_add_u32 s3, s3, s47")
        b.e("s_lshl_b32 s3, s3, 2")
        b.e("s_add_u32 s3, s3, s32")
        b.e("s_lshl_b32 s3, s3, 7")
        b.e(f"s_sub_u32 s3, s3, {512 + WC * WC * 512}")
        b.blk([f"s_cmp_ge_u32 s34, {WC}", "s_cselect_b32 s3, s3, 0", "s_cselect_b32 s40, 512, 0", f"s_cselect_b32 s47, {seg}, 0"])
        first = 0
        for j, (lo, size) in enumerate(bufs):
            b.e(f"v_subrev_u32 v31, {first}, v0")
            b.e("v_mul_lo_u32 v31, v31, s47")
            b.e(f"v_min_u32 v31, {size - seg}, v31")
            if j == 0:
                b.e(f"v_mov_b32 v28, s{lo}"); b.e(f"v_mov_b32 v29, s{lo+1}"); b.e("v_mov_b32 v30, v31")
            else:
                b.e(f"v_mov_b32 v14, s{lo}"); b.e(f"v_mov_b32 v15, s{lo+1}")
                b.blk([f"v_cmp_le_u32 vcc, {first}, v0"])
                b.blk(["v_cndmask_b32 v28, v28, v14, vcc", "v_cndmask_b32 v29, v29, v15, vcc"])
                b.blk(["v_cndmask_b32 v30, v30, v31, vcc"])
            first += -(-size // seg)
        assert first <= 64, first
        b.e("v_add_u32 v30, s3, v30")
        b.e("v_ashrrev_i32 v31, 31, v30")
        b.e("v_lshl_add_u64 v[28:29], v[30:31], 0, v[28:29]")
        b.e("s_mov_b32 s41, 0")
    b.e("v_readfirstlane_b32 s100, v64")
    b.e("v_readfirstlane_b32 s101, v65")
    b.at(SIG)
    for j in range(3): b.e(f"s_mov_b32 s{24+j}, s{60+j}")
    b.e(f"s_mov_b32 s94, {QSCALE}")
    b.e(f"s_mov_b32 s95, {QSCALE}")
    b.e("s_sub_u32 s55, 15, s34")
    b.e("s_sub_u32 s45, s36, 3")
    b.e("s_sub_u32 s46, s35, 3")
    b.e("s_mov_b32 s54, s44")
    b.e("s_sub_u32 s35, s35, 2")
    b.e("s_sub_u32 s36, s36, 2")
    b2 = b
    b3 = Rec()
    WT0 = float(opt.get('wt0', 18))
    WTB = int(opt.get('wtb', 23))
    WTG = int(opt.get('wtg', 8))
    b3.e("s_lshr_b32 s52, s2, 1")
    b3.e("s_lshl_b32 s52, s52, 16")
    b3.e("s_and_b32 s53, s2, 1")
    b3.e("s_lshl_b32 s53, s53, 10")
    b3.e("s_add_u32 s52, s52, s53")
    b3.e("s_lshl_b32 s53, s32, 14")
    b3.e("s_add_u32 s52, s52, s53")
    srd_rec(b3, 28, 92, 8388608)
    for j in range(8):
        b3.at(WT0 + 2 * (j // WTG))
        b3.blk([f"s_add_u32 m0, s57, {65536 + j * 1024}", f"v_xor_b32 v88, {j * 32}, v{VX}",
                (f"buffer_load_dwordx4 v88, s[28:31], s52 offen{opt.get('wo_ld', '')} lds", 'wo'), "s_add_u32 s52, s52, 2048"])
    b3.e("v_lshrrev_b32 v89, 2, v0")
    b3.e("v_lshlrev_b32 v89, 10, v89")
    b3.e("s_lshl_b32 s53, s32, 8")
    b3.e("s_add_u32 s53, s53, 65536")
    b3.e("v_add_u32 v89, s53, v89")
    b3.e("v_mov_b32 v90, 0xff")
    srd_rec(b3, 28, 66, 16 * WO_NT, WS_WOT)
    b3.e("s_and_b32 s52, s2, 1")
    b3.e("s_lshl_b32 s52, s52, 2")
    b3.e("s_add_u32 s52, s52, s32")
    b3.e(f"s_mul_i32 s52, s52, {2 * WO_NT}")
    b3.e("s_lshr_b32 s53, s2, 1")
    b3.e("s_lshl_b32 s53, s53, 12")
    b3.e("s_add_u32 s52, s52, s53")
    b3.at(WTB)
    for q in range(8):
        b3.e(f"v_and_or_b32 v{92 + (q & 1)}, v{TA+q}, v90, v89")
        for rd in range(2):
            b3.e(f"ds_read_b64_tr_b16 {V(96 + 4*q + 2*rd, 2)}, v{92 + (q & 1)} offset:{rd*16384}", tag='wt')
    for q in range(8):
        b3.at(WTB + 1.2 + 0.5 * q)
        b3.wait_ds('wt')
        b3.e(f"buffer_store_dwordx4 {V(96 + 4*q, 4)}, v{VX}, s[28:31], s52 offen offset:{(q & 3)*1024} sc1", tag='wts')
        if q == 3: b3.e(f"s_add_u32 s52, s52, {WO_NT}")
    b3.e("s_and_b32 s52, s2, 1")
    b3.e("s_lshl_b32 s52, s52, 9")
    b3.e("s_lshr_b32 s93, s2, 1")
    b3.e("s_lshl_b32 s93, s93, 2")
    b3.e("s_add_u32 s52, s52, s93")
    b3.e(f"s_add_u32 s52, s52, {WS_WFL}")
    b3.blk(["s_cmp_eq_u32 s32, 0", f"s_cselect_b32 s52, s52, {BIG}"])
    b3.e("v_mov_b32 v24, 1")
    b3.e("v_mov_b32 v25, 0")
    if not WOT: b3.items = []
    PKM = opt.get('pkm', '0') == '1'
    def conv_items(qb):
        r_ = Rec()
        for s_ in range(4):
            r = QA(2 * s_, qb)
            if PKM:
                for e_ in range(0, 8, 2): r_.e(f"v_pk_mul_f32 {V(r+e_,2)}, {V(r+e_,2)}, s[94:95]")
            else:
                for e_ in range(8): r_.e(f"v_mul_f32 v{r+e_}, s94, v{r+e_}")
            for e_ in range(4): r_.e(f"v_cvt_pk_bf16_f32 v{r+e_}, v{r+2*e_}, v{r+2*e_+1}")
            for e_ in range(4): r_.e(f"v_accvgpr_write_b32 a{Q(qb,s_)+e_}, v{r+e_}")
        r_.items.append(('mark', f'conv{qb}', None))
        return r_.items
    p2_start = len(k.lines)
    XLA = int(opt.get('xla', 5))
    xsched = {}; nx_ = 4
    for kk in range(32):
        xsched[kk] = []
        while nx_ < 32 and nx_ <= kk + XLA and len(xsched[kk]) < 2:
            xsched[kk].append(nx_); nx_ += 1
    for kk in range(32):
        st, ks = kk // 2, kk & 1
        k.stamp(S2 and kk in (0, 4, 8, 12, 16, 20, 24, 28, 31))
        need = [f'x{kk}']
        if ks == 1 and st < 15: need.append(f'w{st+1}')
        if kk == SIG:
            assert not any(it[2] == 'kvst' for it in b1.items), "stores not all issued before SIG"
            need.append('kvst')
        if kk == WTB:
            assert not any(it[0] == 'b' and any(isinstance(x, tuple) for x in it[1]) for it in b3.items)
            need.append('wo')
        if kk == CK:
            assert not b3.items
            need.append('poll')
        if kk == 31: need.append('c16')
        w = [x for x in (k.vm_n(t) for t in need) if x is not None]
        k.e("s_waitcnt " + (f"vmcnt({min(w)}) " if w else "") + "lgkmcnt(0)")
        for t in need: k.use(t)
        if kk == CK:
            assert not any('vcc' in str(it[1]) for it in b2.items)
            k.e("s_cmp_lg_u32 s32, 0")
            k.e("s_cbranch_scc1 L_spinBr")
            k.e("v_cmp_ne_u32 vcc, 1, v12")
            k.e("s_cbranch_vccnz L_spinB")
            k.label("L_spinBr")
        if ks == 1: k.e("s_barrier")
        g = {}; gt = {}
        if kk + 1 < 32:
            for n, grp in enumerate(wreads(kk + 1)):
                g[1 + 3 * n] = (["s_waitcnt lgkmcnt(6)"] if n == 5 else []) + grp
        vm = []
        if ks == 1 and st + 4 < 16: vm += [(t, s, f'w{st+4}') for t, s in chunk_ops(('w', st + 4))]
        for x in xsched.get(kk, []): vm += [(t, s, f'x{x}') for t, s in xn_ops(x)]
        ng = sum(1 for x in vm if x[0] == 'g')
        free = [x for x in range(2, 32) if x not in g]
        pick = [free[(j * len(free)) // ng] for j in range(ng)] if ng else []
        j = 0
        for t, s, tg in vm:
            if t == 'g': g[pick[j]] = [s]; gt[pick[j]] = tg; j += 1
            elif t == 's':
                q = pick[j] - 1
                if q in gt: g[q].append(s)
                else: g.setdefault(q, []).insert(0, s)
            else: g[pick[j - 1]].append(s)
        order = [(db, qb) for db in range(8) for qb in range(4)]
        if kk == 31:
            order = [(db, qb) for qb in range(4) for db in range(8)]
            assert not b2.items, len(b2.items)
            for kb in range(2):
                for s_ in range(4): b2.e(f"ds_read_b128 {A(FR(kb,s_),4)}, v{VY} offset:{(kb*4+s_)*1024}", tag=f'k{kb}')
            b2.at(31 + 12 / 32.0)
            b2.items += conv_items(0) + conv_items(1)
        elif kk > 24:
            for r in range(16): b2.e(f"v_accvgpr_write_b32 a{XR(kk-1,0)+r}, 0")
        for n, (db, qb) in enumerate(order):
            k.e(mfma(V(QA(db, qb), 4), A(WF(kk, db), 4), A(XR(kk, qb), 4), V(QA(db, qb), 4) if kk else "0"))
            if n in g:
                for s in g[n]: k.e(s, tag=gt.get(n))
            else:
                nl = k.ni
                b1.fill(k, kk + n / 32.0)
                if k.ni == nl: b3.fill(k, kk + n / 32.0)
                if k.ni == nl: b2.fill(k, kk + n / 32.0)
    print("phase2 items left", len(b1.items), len(b2.items))
    b1.drain(k)
    grp_ = None
    for ln in k.lines[p2_start:] + ["s_mov_b32 m0, 0"]:
        if ' m0,' in ln:
            assert grp_ is None or (len(set(grp_)) == 1 and len(grp_) == (1 if grp_[0] == 's[28:31]' else 4)), grp_
            grp_ = []
        elif ' lds' in ln: grp_.append(ln.split(', ')[1])
    k.stamp(ST or S2)
    XS = 160
    def ffn_issue():
        for t in range(2):
            k.e(f"s_lshr_b32 s3, s{42+t}, 4")
            k.e(f"s_mul_i32 s3, s3, {XN_RB}")
            k.e(f"s_and_b32 s47, s{42+t}, 15")
            k.e("s_lshl_b32 s47, s47, 4")
            k.e("s_add_u32 s3, s3, s47")
            k.e(f"v_mov_b32 v{28+t}, s3")
        k.e("v_lshrrev_b32 v24, 4, v0")
        k.e("v_and_b32 v25, 15, v0")
        k.e("v_cmp_eq_u32 vcc, 1, v25")
        k.e("s_lshl_b32 s3, s32, 4")
        k.e("v_add_u32 v26, s3, v24")
        k.e("v_cndmask_b32 v28, v28, v29, vcc")
        k.e("v_lshl_add_u32 v28, v24, 8, v28")
        k.e("v_mul_u32_u24 v26, 7168, v26")
        k.e("v_lshlrev_b32 v24, 1, v24")
        k.e("v_xor_b32 v24, v24, v25")
        k.e("v_xor_b32 v25, 8, v24")
        k.e("v_lshl_add_u32 v24, v24, 4, v26")
        k.e("v_lshl_add_u32 v25, v25, 4, v26")
        k.e("s_lshl_b32 s3, s92, 12")
        for q in range(4):
            k.e(f"buffer_load_dwordx4 {A(XS+4*q,4)}, v28, s[20:23], s3 offen offset:{q*1024} sc1")
        ops = []
        for m, srd in enumerate((24, 68)):
            for h in range(2):
                for q in range(4):
                    pre = [f"s_add_u32 m0, s54, {m*32768 + h*16384}"] if q == 0 else []
                    ops.append((pre + [f"s_add_u32 s3, s5, {h*64*7168 + q*27648}"],
                                f"buffer_load_dwordx4 v{24 + (q >> 1)}, {S(srd,4)}, s3 offen offset:{q*1024}{ffn_ld} lds"))
        return ops
    def ffn_finish():
        k.e("v_lshrrev_b32 v24, 4, v0")
        k.e("v_bfe_u32 v25, v0, 2, 2")
        k.e("v_lshl_add_u32 v26, v24, 3, v25")
        k.e("v_lshlrev_b32 v26, 8, v26")
        k.e("v_and_b32 v27, 3, v0")
        k.e("v_lshl_add_u32 v26, v27, 3, v26")
        k.e("v_and_b32 v27, 1, v24")
        k.e("v_lshl_add_u32 v25, v27, 2, v25")
        k.e("s_lshl_b32 s3, s32, 1")
        k.e("v_xor_b32 v25, s3, v25")
        k.e("v_lshl_add_u32 v26, v25, 5, v26")
        k.e("s_sub_u32 s3, s54, s44")
        k.e("v_add_u32 v26, s3, v26")
        k.e("v_xor_b32 v27, 32, v26")
        k.e("s_waitcnt vmcnt(8) lgkmcnt(0)")
        k.use('ffn')
        k.e("s_barrier")
        for m in range(2):
            for q in range(4):
                for j in range(2):
                    for rd in range(2):
                        k.e(f"ds_read_b64_tr_b16 {V(128 + 32*m + 8*q + 4*j + 2*rd, 2)}, v{26+j} offset:{m*32768 + q*8192 + rd*1024}", tag=f'f{m}')
        k.e("v_and_b32 v25, 15, v0")
        k.e("v_mul_u32_u24 v28, 14336, v25")
        k.e("v_lshl_add_u32 v28, v24, 4, v28")
        k.e(f"v_mov_b32 v29, {BIG}")
        k.e("v_cmp_gt_u32 vcc, 2, v25")
        k.e(f"s_mul_i32 s3, s92, {4*14336}")
        k.e("s_lshl_b32 s47, s4, 9")
        k.e("s_add_u32 s3, s3, s47")
        k.e("v_cndmask_b32 v28, v29, v28, vcc")
        k.e("s_lshl_b32 s47, s32, 7")
        k.e("s_add_u32 s3, s3, s47")
        k.e(f"s_add_u32 s3, s3, {WS_HP}")
        for m in range(2):
            k.wait_ds(f'f{m}')
            for q in range(4):
                for j in range(2):
                    d = V(224 + 8 * m + 4 * j, 4)
                    k.e(mfma(d, V(128 + 32*m + 8*q + 4*j, 4), A(XS + 4*q, 4), d if q else "0"))
    def ffn_store():
        k.e("s_cmp_lt_u32 s93, 224")
        k.e(f"s_cselect_b32 s3, s3, {1 << 23}")
        k.e(f"s_add_u32 s7, s3, {2*14336}")
        for m in range(2):
            for j in range(2):
                k.e(f"buffer_store_dwordx4 {V(224 + 8*m + 4*j, 4)}, v28, s[20:23], s{7 if m else 3} offen offset:{j*64} sc1", tag='hps')

    def kread(reg, off, kb):
        return [f"ds_read_b128 {A(FR(kb,s_),4)}, v{reg} offset:{off + (kb*4+s_)*1024}" for s_ in range(4)]
    def vread(reg, off, vg):
        return [f"ds_read_b128 {A(FR(vg,j),4)}, v{reg} offset:{off + ((j & 1)*8 + 2*vg + (j >> 1))*1024}" for j in range(4)]
    def qk_mfmas(par, nq, zero=False):
        out = []
        for kb in range(4):
            grp = []
            for qb in range(nq):
                d = V(Sr(par, qb, kb), 4)
                for s_ in range(4):
                    c = d if s_ else ("0" if zero else V(NEGM + 4 * qb, 4))
                    grp.append(mfma(d, A(FR(kb, s_), 4), A(Q(qb, s_), 4), c))
            out.append(grp)
        return out
    def pv_mfmas(par, nq):
        out = []
        for vg in range(4):
            grp = []
            for dd in range(2):
                for qb in range(nq):
                    for ks in range(2):
                        o = A(O(qb, 2 * vg + dd), 4)
                        grp.append(mfma(o, A(FR(vg, 2 * dd + ks), 4), V(P(par, qb, ks), 4), o))
            if vg < nq:
                for ks in range(2):
                    l = V(LS + 4 * vg, 4)
                    grp.append(mfma(l, V(ONES, 4), V(P(par, vg, ks), 4), l))
            out.append(grp)
        return out
    def sm_pairs(par, nq, ks):
        out = []
        for kq in range(2):
            for qb in range(nq):
                s0 = Sr(par, qb, 2 * ks + kq)
                for h in range(2):
                    out.append((s0 + 2 * h, s0 + 2 * h + 1, P(par, qb, ks) + 2 * kq + h))
        return out
    class SM:
        def __init__(self, pairs, first, check):
            self.pairs = pairs; self.ne = 0; self.nc = 0; self.no = 0; self.first = first
            self.tail = [f"v_and_b32 v{T0}, 0x40004000, v{ORR}", f"v_cmp_ne_u32 vcc, 0, v{T0}"] if check else []
            self.e_done = 0; self.extra = []
        def tick(self): self.e_done = self.ne
        def exp_ready(self): return self.ne < 2 * len(self.pairs) and self.ne // 2 - self.nc < 4
        def exp(self):
            j, h = self.ne // 2, self.ne & 1; self.ne += 1
            return f"v_exp_f32 v{ET + 2*(j % 4) + h}, v{self.pairs[j][h]}"
        def plain_avail(self):
            n = min(self.e_done // 2, len(self.pairs)) - self.nc
            n += self.nc // 2 - self.no
            if self.no == len(self.pairs) // 2: n += len(self.tail)
            return n + len(self.extra)
        def plain(self):
            if self.nc < min(self.e_done // 2, len(self.pairs)):
                j = self.nc; self.nc += 1
                return f"v_cvt_pk_bf16_f32 v{self.pairs[j][2]}, v{ET + 2*(j % 4)}, v{ET + 2*(j % 4) + 1}"
            if self.no < self.nc // 2:
                j = self.no; self.no += 1
                a, b = self.pairs[2 * j][2], self.pairs[2 * j + 1][2]
                if self.first and j == 0: return f"v_or_b32 v{ORR}, v{a}, v{b}"
                return f"v_or3_b32 v{ORR}, v{ORR}, v{a}, v{b}"
            if self.no == len(self.pairs) // 2 and self.tail: return self.tail.pop(0)
            if self.extra: return self.extra.pop(0)
            return None
        def left_exp(self): return 2 * len(self.pairs) - self.ne
        def left_plain(self): return len(self.pairs) - self.nc + len(self.pairs) // 2 - self.no + len(self.tail) + len(self.extra)
        def done(self): return self.left_exp() == 0 and self.left_plain() == 0
        def drain(self):
            while not self.done():
                self.tick()
                if self.exp_ready():
                    k.e(self.exp())
                    if self.exp_ready(): k.e(self.exp())
                    x = self.plain()
                    if x: k.e(x)
                else:
                    k.e(self.plain())
    def phase(groups, gtags, reads, rtags, sm, vm, nexttag):
        total = sum(len(g) for g in groups)
        vmpos = {}
        if vm:
            step = max(2, (total - 2) // len(vm))
            for j, x in enumerate(vm): vmpos[1 + j * step] = x
        n = 0
        k.wait_ds(gtags[0])
        for gi, grp in enumerate(groups):
            rq = list(reads[gi])
            for mi, m in enumerate(grp):
                k.e(m)
                sm.tick()
                scal = []
                if n + 1 in vmpos: scal += vmpos[n + 1][0]
                lastm = mi == len(grp) - 1
                if n in vmpos:
                    for s in scal: k.e(s)
                    k.e(vmpos[n][1], tag='kv')
                    slots = 0
                else:
                    for s in scal: k.e(s)
                    if lastm:
                        nt = gtags[gi + 1] if gi + 1 < len(groups) else nexttag
                        if nt: k.wait_ds(nt)
                    slots = 2
                    gaps_left = len([x for x in range(n, n + len(grp) - mi) if x not in vmpos])
                    want_d = len(rq) > 0 and (sm.plain_avail() > 0 or not sm.exp_ready() or len(rq) >= gaps_left - 1)
                    if want_d:
                        k.e(rq.pop(0), tag=rtags[gi]); slots -= 1
                        if rq and (sm.plain_avail() == 0 or len(rq) >= gaps_left):
                            k.e(rq.pop(0), tag=rtags[gi]); slots -= 1
                    if slots == 2 and sm.exp_ready() and not (sm.plain_avail() >= 3 and not rq):
                        k.e(sm.exp()); slots = 0
                    while slots > 0:
                        x = sm.plain()
                        if not x: break
                        k.e(x); slots -= 1
                if lastm:
                    for s in rq: k.e(s, tag=rtags[gi])
                    nt = gtags[gi + 1] if gi + 1 < len(groups) else nexttag
                    if nt: k.wait_ds(nt)
                n += 1
        sm.drain()

    def mask_block(par, qb):
        vr = VRA if qb & 1 else VRB
        for kb in range(4):
            for r in range(4): k.e(f"v_cmp_gt_i32 s[{56+2*r}:{57+2*r}], {16*kb + r}, v{vr}")
            if kb == 0: k.e("s_nop 3")
            for r in range(4):
                x = Sr(par, qb, kb) + r
                k.e(f"v_cndmask_b32 v{x}, v{x}, v{NINF}, s[{56+2*r}:{57+2*r}]")
    def rowmax(par, qb, d, o=k):
        s0 = Sr(par, qb, 0)
        o.e(f"v_max3_f32 v{d}, v{s0}, v{s0+1}, v{s0+2}")
        for r in range(3, 15, 2): o.e(f"v_max3_f32 v{d}, v{d}, v{s0+r}, v{s0+r+1}")
        o.e(f"v_max_f32 v{d}, v{d}, v{s0+15}")
        o.e(f"v_mov_b32 v{T0}, v{d}")
        o.e(f"v_permlane16_swap_b32 v{T0}, v{d}")
        o.e(f"v_max_f32 v{d}, v{d}, v{T0}")
        o.e(f"v_mov_b32 v{T0}, v{d}")
        o.e(f"v_permlane32_swap_b32 v{T0}, v{d}")
        o.e(f"v_max_f32 v{d}, v{d}, v{T0}")
        o.e(f"v_add_f32 v{d}, {opt.get('moff', '0x41f80000')}, v{d}")
    def fallback(par, nq, nqn):
        k.e("s_nop 7")
        for qb in range(nq):
            rowmax(par, qb, 21)
            k.e("v_max_f32 v21, 0, v21")
            for r in range(16): k.e(f"v_sub_f32 v{Sr(par,qb,0)+r}, v{Sr(par,qb,0)+r}, v21")
            if qb < nqn:
                for r in range(16): k.e(f"v_sub_f32 v{Sr(par^1,qb,0)+r}, v{Sr(par^1,qb,0)+r}, v21")
            for r in range(4): k.e(f"v_sub_f32 v{NEGM+4*qb+r}, v{NEGM+4*qb+r}, v21")
            k.e("v_exp_f32 v22, -v21")
            for r in range(4): k.e(f"v_mul_f32 v{LS+4*qb+r}, v{LS+4*qb+r}, v22")
            for r0 in range(0, 32, 8):
                for r in range(8): k.e(f"v_accvgpr_read_b32 v{ET+r}, a{O(qb,0)+r0+r}")
                for r in range(8): k.e(f"v_mul_f32 v{ET+r}, v{ET+r}, v22")
                for r in range(8): k.e(f"v_accvgpr_write_b32 a{O(qb,0)+r0+r}, v{ET+r}")
        for ks in range(2):
            for (s0, s1, pd) in sm_pairs(par, nq, ks):
                k.e(f"v_exp_f32 v{ET}, v{s0}")
                k.e(f"v_exp_f32 v{ET+1}, v{s1}")
                k.e(f"v_cvt_pk_bf16_f32 v{pd}, v{ET}, v{ET+1}")
        k.e("s_nop 1")
    SPLIT = {4: (32, 16, 8), 3: (36, 18, 9), 2: (17, 8, 4), 1: (16, 8, 4), 0: (0, 0, 0)}
    def tile_sm(par, nq, start, check):
        sm = SM(sm_pairs(par, nq, 0) + sm_pairs(par, nq, 1), True, check)
        sm.ne, sm.nc, sm.no = start; sm.e_done = sm.ne
        return sm
    def pack(ngaps, vmg, dsl, sm, limit, last_sm, pre):
        plan = {}
        dsl = list(dsl)
        def exp_ok(): return sm.exp_ready() and (limit is None or sm.ne < limit[0])
        def plain_n():
            n = min(sm.e_done // 2, len(sm.pairs), limit[1] if limit else 1 << 30) - sm.nc
            n += min(sm.nc // 2, limit[2] if limit else 1 << 30) - sm.no
            if limit is None and sm.no == len(sm.pairs) // 2: n += len(sm.tail)
            return n + len(sm.extra)
        def take_plain():
            if limit is not None:
                c_ok = sm.nc < min(sm.e_done // 2, limit[1]); o_ok = sm.no < min(sm.nc // 2, limit[2])
                if not c_ok and not o_ok: return sm.extra.pop(0) if sm.extra else None
                if not c_ok:
                    keep = sm.e_done; sm.e_done = 2 * sm.nc; x = sm.plain(); sm.e_done = keep; return x
            return sm.plain()
        for g in range(-1 if pre else 0, ngaps):
            if g in vmg: sm.tick(); continue
            sm.tick()
            ops = []
            smok = g <= last_sm
            av = [d for d in dsl if d[2] <= g]
            free_to = lambda dl: len([x for x in range(g, dl + 1) if x not in vmg])
            urgent = any(sum(1 for d in dsl if d[3] <= e[3]) >= 2 * free_to(e[3]) - 1 for e in av)
            pn = plain_n() if smok else 0
            if smok and exp_ok() and not urgent and not (av and pn) and not (pn >= 3):
                ops.append((sm.exp(), None))
            else:
                slots = 2
                if av and g >= 0:
                    d = av.pop(0); dsl.remove(d); ops.append((d[0], d[1])); slots -= 1
                    if av and (pn == 0 or sum(1 for x in dsl if x[3] <= av[0][3]) >= 2 * free_to(av[0][3]) - 1):
                        d = av.pop(0); dsl.remove(d); ops.append((d[0], d[1])); slots -= 1
                while slots and smok:
                    x = take_plain()
                    if not x: break
                    ops.append((x, None)); slots -= 1
                if not ops and smok and exp_ok(): ops.append((sm.exp(), None))
            plan[g] = ops
            if g == last_sm:
                while (limit is None and not sm.done()) or (limit is not None and ((sm.ne, sm.nc, sm.no) != limit or sm.extra)):
                    sm.tick()
                    x = sm.exp() if exp_ok() else take_plain()
                    plan[g].append((x, None)); k.overflow += 1
        assert not dsl, dsl
        return plan
    k.overflow = 0
    SLK = int(opt.get('slk', -1))
    def emit_phase(mf, plan, vmg, scal, bg=None, vtag=None, sbg=None):
        for s_, tg in plan.get(-1, []): k.e(s_, tag=tg)
        for g, m in enumerate(mf):
            k.e(m)
            for x in scal.get(g, []):
                if isinstance(x, tuple) and x[0] == 'u': k.use(x[1])
                elif isinstance(x, tuple) and x[0] == 'call': x[1]()
                elif isinstance(x, tuple): k.wait_ds(x[1])
                elif x.endswith(':'): k.label(x[:-1])
                else: k.e(x)
            if sbg and g > 0 and g not in scal and g not in vmg and sbg.items and sbg.items[0][0] != 'at':
                it = sbg.items.pop(0)
                for x in ([it[1]] if it[0] == 'i' else it[1]): k.e(x)
                if sbg.items[0][0] == 'i' and len(plan.get(g, [])) < 2: k.e(sbg.items.pop(0)[1])
            if g in vmg: k.e(vmg[g], tag=(vtag if ('s39' in vmg[g] or ' s3 ' in vmg[g]) else None))
            else:
                for s_, tg in plan.get(g, []): k.e(s_, tag=tg)
                if bg and not plan.get(g) and g not in scal: bg.fill(k, 99, 3)
    p4s = p4_setup(opt)
    def starts(groups):
        out = [0]
        for g in groups: out.append(out[-1] + len(g))
        return out
    def iteration(par, nq, nqn, mask, name, tail):
        kreg, koff = (VX, 32768) if par == 0 else (VY, 0)
        vreg, voff = (VX, 16384) if par == 0 else (VX, 49152)
        nreg, noff = (VY, 0) if par == 0 else (VY, 32768)
        last = nqn == 1
        k.hot = nqn >= 2
        ov0 = k.overflow
        fb, fr = f"L_k2_fb_{name}", f"L_k2_fbr_{name}"
        ool.append((fb, lambda: fallback(par, nq, nqn), fr))
        sm = tile_sm(par, nq, SPLIT[nq], True)
        if par == 0:
            k.e(f"v_xor_b32 v{VX}, 65536, v{VX}")
            k.e(f"v_xor_b32 v{VY}, 65536, v{VY}")
        if nqn:
            k.dq = ['k1'] * 4
            if nq == 4 and WARM: sm.extra = ["v_lshl_add_u64 v[28:29], s[40:41], 0, v[28:29]"]
            grp = qk_mfmas(par ^ 1, nqn); st_ = starts(grp); n1 = st_[-1]
            slack = SLK if nqn <= 2 else 4
            dsl = [(x, 'k2', 0, st_[1] + slack) for x in kread(kreg, koff, 2)] + [(x, 'k3', 0, st_[2] + slack) for x in kread(kreg, koff, 3)] + \
                  [(x, 'v0', st_[1], st_[3] + slack) for x in vread(vreg, voff, 0)] + [(x, 'v1', st_[2], n1 - 1) for x in vread(vreg, voff, 1)]
            scal = {}
            add = lambda g, xs: scal.setdefault(g, []).extend(xs)
            add(st_[1] - 1, [('w', 'k1')]); add(st_[2] - 1, [('w', 'k2')]); add(st_[3] - 1, [('w', 'k3')])
            vmw = f"s_waitcnt vmcnt({12 + min(int(opt.get('fp1', 4)), 3)})" if last else "s_waitcnt vmcnt(12)"
            if nq == 2:
                add(n1 - 7, ["s_cmp_lt_u32 s37, s52"])
                add(n1 - 6, [f"s_cbranch_scc1 L_nw_{name}", vmw, f"L_nw_{name}:"])
            else:
                add(n1 - 5, [vmw])
            if mask and mask[1]: add(n1 - 4, [f"s_cmp_eq_u32 s37, s{mask[1]}"])
            add(n1 - 3, ([] if 'nochk' in opt else [('u', f'V{par}'), ('u', 'c19' if par == 0 else 'c21'), ('u', 'c20' if par == 0 else 'c22')]) + ["s_barrier"]); add(n1 - 2, [('w', 'v0')]); add(n1 - 1, [f"s_cbranch_vccnz {fb}", fr + ":"])
            vmg = {}
            if last:
                fops = ffn_issue()
                for q in (1, 5, 8, 12)[:int(opt.get('fp1', 4))]:
                    pre, ld = fops.pop(0)
                    vmg[q] = ld; scal.setdefault(q - 1, []).extend(pre)
            else:
                step = (n1 - 8) / 4
                for j in range(4):
                    q = int(1 + j * step)
                    while q in scal or (j == 0 and q - 1 in scal): q += 1
                    vmg[q] = f"buffer_load_dwordx4 v{VDMA}, s[12:15], s38 offen offset:{j*1024}{kv_ld} lds"
                    if j == 0: scal[q - 1] = ["s_mov_b32 m0, s53" if par == 0 else "s_add_u32 m0, s53, 32768"]
            plan = pack(n1, vmg, dsl, sm, None, n1 - 2, par == 1)
            emit_phase(sum(grp, []), plan, vmg, scal, None, 'ffn')
        else:
            k.dq = ['v1'] * 4
            sm.drain()
            k.e(f"s_cbranch_vccnz {fb}")
            k.label(fr)
        grp = pv_mfmas(par, nq); st_ = starts(grp); n2 = st_[-1]
        slack = SLK if nq <= 2 else 4
        dsl = [(x, 'v2', 0, st_[1] + slack) for x in vread(vreg, voff, 2)] + [(x, 'v3', 0, st_[2] + slack) for x in vread(vreg, voff, 3)]
        scal = {st_[1] - 1: [('w', 'v1')], st_[2] - 1: [('w', 'v2')], st_[3] - 1: [('w', 'v3')]}
        vmg = {}
        if nqn:
            nx = [vread(VX, 49152, 0), vread(VX, 49152, 1)] if last else [kread(nreg, noff, 0), kread(nreg, noff, 1)]
            dsl += [(x, 'k0', st_[1], st_[3] + slack - 1) for x in nx[0]] + [(x, 'k1', st_[2], n2 - 2) for x in nx[1]]
            if mask:
                mb, mr = f"L_k2_mk_{name}", f"L_k2_mkr_{name}"
                if mask[1]: scal[0] = [f"s_cbranch_scc1 {mb}", mr + ":"]
                else: scal[0] = [('call', lambda: mask_block(par ^ 1, mask[0]))]
            scal[n2 - 2] = [('w', 'k0')]
            if tail: scal[n2 - 3] = [tail[0]]; scal[n2 - 1] = [tail[1]]
            def put(x, lo):
                q = lo
                while q in scal or q in vmg: q += 1
                assert q < n2 - 3, (x, q)
                scal[q] = [x]
            if last:
                for j, (pre, ld) in enumerate(fops):
                    q = 2 + (j * (n2 - 4)) // len(fops)
                    vmg[q] = ld
                    scal.setdefault(q - 1, []).extend(pre)
                    if q in scal: scal[q - 1].extend(scal.pop(q))
            else:
                mv = "s_add_u32 m0, s54, 49152" if par == 0 else "s_add_u32 m0, s53, 16384"
                vm = [f"buffer_load_dwordx4 v{VDMA}, s[12:15], s39 offen offset:{j*1024}{kv_ld} lds" for j in range(4)]
                if nq == 4 and WARM: vm.append("global_load_dword v30, v[28:29], off")
                step = (n2 - 4) / len(vm)
                pos = []
                for j in range(len(vm)):
                    q = int(2 + j * step)
                    while q in scal or q in vmg or (j == 0 and q - 1 in scal): q += 1
                    vmg[q] = vm[j]; pos.append(q)
                    if j == 0: scal[q - 1] = [mv]
                if name == "ne":
                    q = 3
                    while any(x in scal or x in vmg for x in (q, q + 1)): q += 1
                    scal[q] = ["s_cmp_eq_u32 s37, s52"]; scal[q + 1] = ["s_cbranch_scc1 L_pubB", "L_pubBr:"]
                    put("s_add_u32 s37, s37, 1", q + 2)
                else:
                    put("s_add_u32 s37, s37, 1", 1)
                put(f"s_add_u32 s38, s38, {KV_TILE}", 1)
                if par == 1:
                    put("s_xor_b32 s53, s53, 65536", pos[0]); put("s_xor_b32 s54, s54, 65536", pos[0])
                put(f"s_add_u32 s39, s39, {KV_TILE}", pos[3] + 1)
        sm = tile_sm(par ^ 1, nqn, (0, 0, 0), False)
        lastg = n2 - 2 if nqn else n2 - 1
        while lastg in vmg: lastg -= 1
        plan = pack(n2 - 1 if nqn else n2, vmg, dsl, sm, SPLIT[nqn], lastg, False)
        emit_phase(sum(grp, []), plan, vmg, scal, None if nqn else p4s, 'ffn' if last else f'V{par}', p4s if last else None)
        print(f"iteration {name}: overflow ops {k.overflow - ov0}")
        k.hot = False
    def epilogue(q0, srow):
        k.e(f"s_lshl_b32 s3, s{srow}, 20")
        k.e("s_lshl_b32 s47, s33, 15")
        k.e("s_add_u32 s3, s3, s47")
        k.e("s_lshl_b32 s47, s32, 10")
        k.e("v_lshlrev_b32 v248, 4, v0")
        k.e("v_add_u32 v249, s47, v248")
        k.e("s_sub_u32 s47, 7168, s47")
        k.e("v_add_u32 v248, s47, v248")
        for qq in range(2):
            k.e(f"v_rcp_f32 v{250+2*qq}, v{LS+4*(q0+qq)}")
        for qq in range(2):
            k.e(f"v_mov_b32 v{251+2*qq}, v{250+2*qq}")
        for s_ in range(4):
            for qq in (1, 0):
                o = O(q0 + qq, 2 * s_)
                d = 24 + 4 * qq
                for r in range(8): k.e(f"v_accvgpr_read_b32 v{240+r}, a{o+r}")
                for r in range(0, 8, 2): k.e(f"v_pk_mul_f32 {V(240+r,2)}, {V(240+r,2)}, {V(250+2*qq,2)}")
                for r in range(4): k.e(f"v_cvt_pk_bf16_f32 v{d+r}, v{240+2*r}, v{240+2*r+1}")
                k.e(f"buffer_store_dwordx4 {V(d,4)}, v{248+qq}, s[16:19], s3 offen{opt.get('ctx_st',' sc1')}")
            if s_ < 3: k.e("s_add_u32 s3, s3, 8192")

    for kb in range(2, 4):
        for s in kread(VY, 0, kb): k.e(s, tag=f'k{kb}')
    def first_max(o, qb):
        rowmax(0, qb, 22, o)
        if PKM:
            o.e("v_sub_f32 v22, 0, v22"); o.e("v_mov_b32 v23, v22")
            for r in range(0, 16, 2): o.e(f"v_pk_add_f32 {V(Sr(0,qb,0)+r,2)}, {V(Sr(0,qb,0)+r,2)}, v[22:23]")
            for r in range(4): o.e(f"v_mov_b32 v{NEGM+4*qb+r}, v22")
        else:
            for r in range(16): o.e(f"v_sub_f32 v{Sr(0,qb,0)+r}, v{Sr(0,qb,0)+r}, v22")
            for r in range(4): o.e(f"v_sub_f32 v{NEGM+4*qb+r}, 0, v22")
    c = b2
    c.items += conv_items(2) + conv_items(3)
    for r in list(range(XR(30, 0), XR(30, 0) + 16)) + list(range(XR(31, 0), XR(31, 0) + 16)): c.e(f"v_accvgpr_write_b32 a{r}, 0")
    for r in range(4): c.e(f"v_mov_b32 v{ONES+r}, 0x3f803f80")
    c.e(f"v_mov_b32 v{NINF}, 0xff800000")
    first_max(c, 0); first_max(c, 1)
    for qb in range(4):
        while any(it[0] == 'mark' and it[1] == f'conv{qb}' for it in c.items): c.fill(k, 99, 2)
        for kb in range(4):
            k.wait_ds(f'k{kb}')
            if qb == 3 and kb == 2:
                k.e(f"s_waitcnt vmcnt({min(k.vm_n('c18'), k.vm_n('c17'))})")
                assert k.vm_n('wts') is None
                k.use('c17'); k.use('c18')
                k.e("s_barrier")
                if WOT:
                    k.e("s_mov_b64 exec, 1")
                    k.e("buffer_store_dword v24, v25, s[20:23], s52 offen sc1")
                    k.e("s_mov_b64 exec, -1")
                k.e("s_add_u32 s53, s44, 65536")
                if TK:
                    k.e("v_mov_b32 v27, 1")
                    k.e("v_mov_b32 v26, 0")
                    k.e("s_cmp_eq_u32 s32, 0")
                    k.e("s_cselect_b32 s3, 128, s64")
                    k.e("s_mov_b64 exec, 1")
                    k.e("buffer_atomic_add v27, v26, s[28:31], s3 offen sc0 sc1")
                    k.e("s_mov_b64 exec, -1")
            for s_ in range(4):
                d = V(Sr(0, qb, kb), 4)
                k.e(mfma(d, A(FR(kb, s_), 4), A(Q(qb, s_), 4), d if s_ else "0"))
                if qb == 3 and kb >= 2: k.e(kread(VY, 32768, kb - 2)[s_], tag=f'n{kb-2}')
                c.fill(k, 99, int(opt.get('pslots', 4)))
    c.drain(k)
    k.e(f"s_mov_b32 s38, {4*KV_TILE}")
    k.e(f"s_mov_b32 s39, {3*KV_TILE + KV_CH}")
    k.e("s_cmp_lg_u32 s34, 0")
    k.e("s_cbranch_scc1 L_k2_nomask0")
    mask_block(0, 3)
    k.label("L_k2_nomask0")
    k.e("s_mov_b32 s37, 0")
    first_max(k, 2); first_max(k, 3)
    SM(sm_pairs(0, 4, 0), True, False).drain()
    k.e("s_waitcnt lgkmcnt(4)")
    k.stamp(ST or SA)

    k.e("s_cmp_eq_u32 s34, 0")
    k.e("s_cbranch_scc1 L_k2_wlast")
    k.e("s_branch L_k2_wloop")
    for nm, qb in (("wo", 3), ("tr", 1), ("no", 1)):
        k.label(f"L_k2_mk_{nm}"); k.win = []
        mask_block(0, qb)
        k.e(f"s_branch L_k2_mkr_{nm}")
    k.label("L_pubB"); k.win = []
    k.e("v_mov_b32 v24, 1"); k.e("v_mov_b32 v25, 0")
    k.e("s_mov_b64 exec, 1")
    k.e("buffer_store_dword v24, v25, s[20:23], s64 offen sc1")
    k.e("s_mov_b64 exec, -1")
    k.e("s_branch L_pubBr")
    k.label("L_k2_wloop")
    iteration(0, 4, 4, None, "we", [])
    iteration(1, 4, 4, (3, 46), "wo", ["s_cmp_lg_u32 s37, s35", "s_cbranch_scc1 L_k2_wloop"])
    k.label("L_k2_wlast")
    iteration(0, 4, 3, (2, None), "wl", [])
    iteration(1, 3, 2, (1, 45), "tr", [])
    k.stamp(SA)
    if '4' in CPF: emit(code_prefetch("L_k2_fin", "L_p4_end", 32, 56, 160, 164))
    k.e("s_waitcnt vmcnt(9)")
    if TK:
        k.e("v_mov_b32 v26, 131072")
        k.e("s_cmp_lg_u32 s32, 0")
        k.e("s_cbranch_scc1 L_notk")
        k.e("s_mov_b64 exec, 1")
        k.e("ds_write_b32 v26, v27")
        k.e("s_mov_b64 exec, -1")
        k.e("s_waitcnt lgkmcnt(0)")
        k.label("L_notk")
        k.e("s_barrier")
        k.e("ds_read_b32 v23, v26")
    epilogue(2, 34)
    k.e("s_add_u32 s52, s37, 2")
    k.raw(";@b:2")
    for s in p4_ptr_loads(): k.e(s)
    k.e("s_waitcnt vmcnt(8) lgkmcnt(0)")
    if TK: k.e("v_readfirstlane_b32 s93, v23")
    else:
        k.e("s_add_u32 s93, s2, 224")
        k.e("s_and_b32 s93, s93, 255")
    k.e("s_nop 0")
    k.e("s_mul_i32 s92, s93, 2341")
    k.e("s_lshr_b32 s92, s92, 16")
    k.e("s_mul_i32 s47, s92, 28")
    k.e("s_sub_u32 s4, s93, s47")
    k.e(f"s_mul_i32 s5, s92, {128*7168}")
    k.e("s_lshl_b32 s47, s4, 8")
    k.e("s_add_u32 s5, s5, s47")
    k.stamp(SA)
    k.e("s_cmp_eq_u32 s34, 7")
    k.e("s_cbranch_scc1 L_k2_fin")
    k.label("L_k2_nloop")
    nl0 = len(k.lines)
    iteration(0, 2, 2, None, "ne", [])
    iteration(1, 2, 2, (1, 45), "no", ["s_cmp_lg_u32 s37, s36", "s_cbranch_scc1 L_k2_nloop"])
    if 'dbg_drop' in opt:
        drop = opt['dbg_drop'].split(',')
        k.lines[nl0:] = [x for x in k.lines[nl0:] if not any(d in x and not x.endswith(':') for d in drop)]
    k.label("L_k2_fin")
    k.stamp(SA)
    iteration(0, 2, 1, (0, None), "nl", [])
    iteration(1, 1, 0, None, "fi", [])
    k.stamp(ST or SA)
    k.e("s_nop 7")
    epilogue(0, 55)
    k.stamp(SA)
    k.e("s_cmp_ge_u32 s93, 224")
    k.e("s_cbranch_scc1 L_noffn")
    ffn_finish()
    k.label("L_noffn")
    p4s.drain(k)
    k.stamp(SA)
    k.e("v_mov_b32 v24, 1")
    k.e("v_mul_u32_u24 v25, s65, v0")
    k.e("s_waitcnt vmcnt(0)")
    k.e("s_barrier")
    k.e("s_mov_b64 exec, 3")
    k.e("buffer_store_dword v24, v25, s[20:23], s64 offen sc1")
    k.e("s_mov_b64 exec, -1")
    ffn_store()
    k.stamp(ST or SA)
    phase4(k, opt, ool, ST, SA)
    k.stamp_dump('stamp' in opt, 66, 0, 32)
    if 'hold' in opt:
        k.e("s_lshl_b32 s3, s32, 8")
        k.e("s_or_b32 s3, s2, s3")
        k.e(f"s_cmp_lg_u32 s3, {opt.get('holdwg', 0)}")
        if opt.get('holdwg') != '999': k.e("s_cbranch_scc1 L_k2_end")
        k.label("L_hold")
        k.e("s_memrealtime s[4:5]")
        k.e("s_waitcnt lgkmcnt(0)")
        k.e(f"s_sub_u32 s3, s4, s{73 + 2 * int(opt.get('holdk', 0))}")
        k.e(f"s_cmp_lt_u32 s3, {int(opt['hold']) * 100}")
        k.e("s_cbranch_scc1 L_hold")
    k.label("L_k2_end")
    k.e("s_endpgm")
    hotool = [x for x in ool if x[0].startswith(("L_f2", "L_c3", "L_spinC", "L_yA", "L_yB", "L_yC"))]
    for lab, fn, ret in hotool + [("L_p4_end", None, None)] + [x for x in ool if x not in hotool]:
        k.label(lab)
        if fn is None: continue
        k.win = []; k.dq = []
        fn()
        k.e(f"s_branch {ret}")
    return k.wrap(256, 256), f"; @launch {'kernel=' + KNAME + ' ' if 'aslist' in opt else ''}grid=(256,1,1) block=(256,1,1) lds={K12_LDS}"
```

```python
from fw import *
from layout import *
import p4, p4b, p4c
KNAME = 'recurrent_scan__compressed_kv_cla__moe_arch_mod__prompt_kernel'

K12_LDS = 163840
QSCALE = 0x3e0293ee
BIG = 0x7ff00000

def gen_k12(opt):
    k = Asm(KNAME)
    k.short = "f"
    P4 = {'0': p4, '1': p4b, '2': p4c}[opt.get('s2', '2')]
    p4_ptr_loads, p4_setup, phase4 = P4.p4_ptr_loads, P4.p4_setup, P4.phase4
    ST = opt.get('stamp') == '1'
    S1 = opt.get('stamp') == 'p1'
    S2 = opt.get('stamp') == 'p2'
    SA = opt.get('stamp') == 'a'
    S0 = opt.get('stamp') == 'p0'
    w_ld, a_ld, x_ld = opt.get('w_ld', ''), opt.get('a_ld', ''), opt.get('x_ld', '')
    wq_ld, kv_ld, ffn_ld = opt.get('wq_ld', ''), opt.get('kv_ld', ' sc1'), opt.get('ffn_ld', '')
    MAP = int(opt.get('map', 4))
    WOT = opt.get('wot', '0') == '1'
    TK = opt.get('tk', '0') == '1'
    VOA, VOW, AD, PFO = 2, 6, 10, 47
    AA = [[10, 11], [12, 13]]
    WA = [list(range(16, 24)), [14, 15] + list(range(24, 30))]
    FA = lambda it, ks: 224 + (it % 4) * 8 + 4 * ks
    FW = lambda buf, jd, ks: 64 * buf + 8 * jd + 4 * ks
    def frag_of(isV, it, jd):
        return ((it >> 1) * 8 + jd, it & 1) if isV else (it * 4 + (jd >> 1), jd & 1)
    SRC = lambda n: ('v', 48 + 8 * n) if n < 26 else ('a', 128 + 8 * (n - 26))
    def acc(isV, it, jd):
        n, h = frag_of(isV, it, jd)
        p, r = SRC(n)
        return R(p, r + 4 * h, 4)
    PK = lambda n: 24 + 4 * (n if n < 26 else n - 26)
    VX, VY, VDMA, VRA, VRB, ORR, T0 = 2, 3, 4, 5, 6, 7, 1
    WV, XV, TA = 8, 10, 16
    ET = 8
    ONES, NINF = 16, 20
    NEGM, LS, PB, SB = 32, 48, 64, 128
    P = lambda par, qb, ks: PB + 32 * par + (qb * 2 + ks) * 4
    Sr = lambda par, qb, kb: SB + 64 * par + (qb * 4 + kb) * 4
    O = lambda qb, db: (qb * 8 + db) * 4
    Q = lambda qb, s: 128 + (qb * 4 + s) * 4
    FR = lambda grp, j: 192 + 16 * grp + 4 * j
    QA = lambda db, qb: 128 + (qb * 8 + db) * 4
    XR = lambda kk, qb: ((kk % 8) * 4 + qb) * 4
    P2C = opt.get('p2ch', '0') == '1'
    WF = lambda ks, db: 192 + db * 8 + ks * 4 if P2C else 192 + ks * 32 + db * 4

    k.e("s_cmp_ge_u32 s2, 256")
    k.e("s_cbranch_scc1 L_k2_end")
    k.stamp(ST or S0)
    k.e("s_load_dwordx4 s[4:7], s[0:1], 0")
    k.e("s_load_dwordx2 s[44:45], s[0:1], 56")
    k.e("s_load_dwordx4 s[40:43], s[0:1], 24")
    k.e("s_load_dwordx4 s[64:67], s[0:1], 96")
    k.e("v_lshrrev_b32 v1, 6, v0")
    k.e("v_and_b32 v0, 63, v0")
    k.e("v_readfirstlane_b32 s32, v1")
    def emit(lst, o=None):
        for x in lst:
            if x.endswith(':'): k.label(x[:-1])
            else: k.e(x, tag='cpf')
    CPF = opt.get('cpf', '12346')
    if '1' in CPF: emit(code_prefetch(KNAME, "L_k2_fin", 32, 68, 120, 124))
    k.e("v_lshrrev_b32 v33, 5, v0")
    k.e("v_and_b32 v31, 31, v0")
    k.e("v_lshlrev_b32 v36, 4, v31")
    k.e("v_lshl_add_u32 v35, v33, 11, v36")
    k.e("s_lshl_b32 s36, s2, 14")
    k.e("s_lshl_b32 s37, s32, 12")
    k.e("s_add_u32 s36, s36, s37")
    k.e("s_mov_b32 s18, 4194304")
    k.e("s_mov_b32 s19, 0x20000")
    k.e("s_bfe_u32 s33, s2, 0x30003")
    k.e("s_lshr_b32 s35, s2, 7")
    k.e("s_bfe_u32 s3, s2, 0x10006")
    k.e("s_and_b32 s34, s2, 7")
    k.e("s_lshl_b32 s34, s34, 1")
    k.e("s_add_u32 s34, s34, s3")
    k.e("s_waitcnt lgkmcnt(0)")
    k.stamp(S0)
    k.e("s_mov_b32 s16, s4")
    k.e("s_and_b32 s17, s5, 0xffff")
    XP, WR, XF = 48, 64, 80
    for i in range(4):
        k.e(f"buffer_load_dwordx4 {V(XP+4*i,4)}, v35, s[16:19], s36 offen offset:{i*512}{x_ld}", tag='x')
    k.e("s_cmp_eq_u32 s35, 0")
    k.e("s_cselect_b32 s40, s40, s42")
    k.e("s_cselect_b32 s41, s41, s43")
    k.e("s_lshl_b32 s3, s34, 9")
    k.srd(12, 40, 0, "s3")
    k.e("s_sub_u32 s14, 4194304, s3")
    k.e("s_lshl_b32 s3, s33, 18")
    k.srd(8, 6, 262144, "s3")
    KX = int(opt.get('kx', 7))
    k.e(f"s_and_b32 s58, s2, {KX}")
    def dma_ops(buf):
        ops = []
        for (base, vo, so, srd, fl) in ((57, VOW, 52, 12, w_ld), (56, VOA, 48, 8, a_ld)):
            for hi in range(2):
                ops.append(('s', f"s_add_u32 m0, s{base}, {buf*65536 + hi*4096}"))
                for lo in range(4):
                    ops.append(('g', f"buffer_load_dwordx4 v{vo + (lo&1) + 2*hi}, {S(srd,4)}, s{so+lo} offen offset:{lo*1024}{fl} lds"))
        return ops
    def adv_ops(j):
        x = j ^ (j + 1)
        return [f"v_xor_b32 v{VOW+q}, {x << 19}, v{VOW+q}" for q in range(4)] + [f"v_xor_b32 v{VOA+q}, {x << 7}, v{VOA+q}" for q in range(4)]
    PF0 = int(opt.get('pf0', 2))
    pfc = [PF0]
    def pf_ops():
        j = pfc[0]; pfc[0] += 1
        return [f"buffer_load_dword v1, v{PFO}, s[60:63], 0 offen{opt.get('pf_ld', '')}",
                f"s_mul_i32 vcc_lo, s59, {(j ^ (j + 1)) & 7}", f"v_xor_b32 v{PFO}, vcc_lo, v{PFO}"]
    def setup_P():
        k.e("s_cmp_lt_u32 s32, 2")
        for j in range(3): k.e(f"s_cselect_b32 s{60+j}, s{8+j}, s{12+j}")
        k.e("s_mov_b32 s63, 0x20000")
        k.e(f"s_mov_b32 s59, {64*8192}")
        k.e("s_cselect_b32 s59, 128, s59")
        k.e("s_cselect_b64 vcc, -1, 0")
        k.e("s_cselect_b32 s38, 32, 16")
        k.e("s_lshr_b32 s3, s2, 6")
        k.e("s_cmp_lt_u32 s32, 2")
        k.e("s_cselect_b32 s3, s3, s33")
        k.e("s_lshl_b32 s3, s3, 1")
        k.e("s_and_b32 s39, s32, 1")
        k.e("s_add_u32 s3, s3, s39")
        k.e("s_lshl_b32 s3, s3, 15")
        k.e(f"s_xor_b32 s39, s58, {PF0}")
        k.e("s_mul_i32 s39, s39, s59")
        k.e("s_add_u32 s3, s3, s39")
        k.e("v_lshlrev_b32 v37, 10, v0")
        k.e("v_lshrrev_b32 v38, 2, v0")
        k.e("v_lshlrev_b32 v38, 13, v38")
        k.e("v_and_b32 v39, 3, v0")
        k.e("v_lshl_add_u32 v38, v39, 7, v38")
        k.e(f"v_cndmask_b32 v{PFO}, v38, v37, vcc")
        k.e(f"v_add_u32 v{PFO}, s3, v{PFO}")
        k.e("v_cmp_gt_u32 vcc, s38, v0")
        k.e(f"v_mov_b32 v37, {BIG}")
        k.e(f"v_cndmask_b32 v{PFO}, v37, v{PFO}, vcc")
    def setup_W():
        for j in range(4): k.e(f"s_mov_b32 s{52+j}, {j*15360}")
        k.e("s_lshl_b32 s57, s32, 13")
        k.e("s_add_u32 s56, s57, 32768")
        k.e("s_lshl_b32 s3, s58, 2")
        k.e("s_add_u32 s3, s3, s32")
        k.e("s_lshl_b32 s3, s3, 4")
        k.e("v_add_u32 v30, s3, v33")
        k.e("v_lshlrev_b32 v30, 13, v30")
        k.e("v_lshlrev_b32 v34, 5, v33")
        k.e("v_xor_b32 v34, v34, v36")
        k.e(f"v_add_u32 v{VOW}, v34, v30")
        k.e(f"v_xor_b32 v{VOW+1}, 64, v{VOW}")
        k.e(f"v_xor_b32 v{VOW+2}, {8*8192 + 128}, v{VOW}")
        k.e(f"v_xor_b32 v{VOW+3}, {8*8192 + 192}, v{VOW}")
    def setup_A():
        for j in range(4): k.e(f"s_mov_b32 s{48+j}, {j*7168}")
        k.e("v_lshrrev_b32 v30, 3, v0")
        k.e("v_lshlrev_b32 v30, 10, v30")
        k.e("s_lshl_b32 s3, s32, 16")
        k.e("s_lshl_b32 s39, s58, 7")
        k.e("s_add_u32 s3, s3, s39")
        k.e("v_and_b32 v31, 7, v0")
        k.e("v_lshrrev_b32 v32, 4, v0")
        k.e("v_xor_b32 v31, v31, v32")
        k.e("v_lshl_add_u32 v30, v31, 4, v30")
        k.e(f"v_add_u32 v{VOA}, s3, v30")
        k.e(f"v_xor_b32 v{VOA+1}, 64, v{VOA}")
        k.e(f"v_xor_b32 v{VOA+2}, 32768, v{VOA}")
        k.e(f"v_xor_b32 v{VOA+3}, {32768 + 64}, v{VOA}")
    def setup_D():
        k.srd(20, 66, 8 << 20)
        k.srd(24, 66, 32 * KV_HEAD, WS_KV)
        k.e("v_lshrrev_b32 v32, 4, v0")
        k.e("v_and_b32 v30, 15, v0")
        k.e("s_lshr_b32 s3, s32, 1")
        k.e("s_lshl_b32 s3, s3, 14")
        k.e("s_add_u32 s3, s3, 32768")
        k.e("v_lshlrev_b32 v31, 7, v30")
        k.e("v_add_u32 v31, s3, v31")
        k.e("v_lshrrev_b32 v34, 1, v30")
        k.e("v_xor_b32 v34, v34, v32")
        k.e(f"v_lshl_add_u32 v{AA[0][0]}, v34, 4, v31")
        k.e(f"v_xor_b32 v{AA[0][1]}, 64, v{AA[0][0]}")
        k.e("v_lshrrev_b32 v30, 2, v30")
        k.e("v_lshl_add_u32 v31, v32, 3, v30")
        k.e("v_lshlrev_b32 v31, 9, v31")
        k.e("v_and_b32 v34, 3, v0")
        k.e("v_lshl_add_u32 v31, v34, 3, v31")
        k.e("s_and_b32 s3, s32, 1")
        k.e("s_lshl_b32 s3, s3, 8")
        k.e("v_add_u32 v31, s3, v31")
        k.e("v_and_b32 v34, 1, v32")
        k.e("v_lshl_add_u32 v30, v34, 2, v30")
        k.e(f"v_lshl_add_u32 v{WA[0][0]}, v30, 5, v31")
        for jj in range(1, 8): k.e(f"v_xor_b32 v{WA[0][jj]}, {jj*32}, v{WA[0][0]}")
        for x0, x1 in zip(AA[0] + WA[0], AA[1] + WA[1]): k.e(f"v_add_u32 v{x1}, 65536, v{x0}")
    def act(seq):
        for x in seq.split(','):
            if not x: continue
            if x in 'PWAD': {'P': setup_P, 'W': setup_W, 'A': setup_A, 'D': setup_D}[x]()
            elif x == 'p':
                for s in pf_ops(): k.e(s, tag='pf')
            elif x == 'r':
                k.srd(28, 44, 2048)
                for i in range(4):
                    k.e(f"buffer_load_dwordx4 {V(WR+4*i,4)}, v36, s[28:31], 0 offen offset:{i*512}", tag='wr')
            else:
                st = int(x[1]); h = 0 if x[0] == 'w' else 1
                for t, s in dma_ops(st)[10*h:10*h+10]: k.e(s, tag=x + 'd')
                for s in adv_ops(st)[4*h:4*h+4]: k.e(s)
    PRO = opt.get('pro', 'W,w0,A,P,D,r/a0///').split('/')
    act(PRO[0])
    k.stamp(S0)
    def sum32(v, t):
        for m in ["quad_perm:[1,0,3,2]", "quad_perm:[2,3,0,1]", "row_half_mirror", "row_mirror"]:
            k.e(f"v_add_f32_dpp v{v}, v{v}, v{v} {m} row_mask:0xf bank_mask:0xf")
        k.e(f"v_mov_b32 v{t}, v{v}")
        k.e(f"v_permlane16_swap_b32 v{t}, v{v}")
        k.e(f"v_add_f32 v{v}, v{v}, v{t}")
    k.wait_vm('x')
    k.stamp(S0)
    for i in range(16):
        k.e(f"v_lshlrev_b32 v{XF+2*i}, 16, v{XP+i}")
        k.e(f"v_and_b32 v{XF+2*i+1}, 0xffff0000, v{XP+i}")
    k.e(f"v_pk_add_f32 v[40:41], {V(XF,2)}, {V(XF+2,2)}")
    k.e(f"v_pk_add_f32 v[42:43], {V(XF+4,2)}, {V(XF+6,2)}")
    for i in range(4, 16):
        d = 40 + 2 * (i & 1)
        k.e(f"v_pk_add_f32 {V(d,2)}, {V(d,2)}, {V(XF+2*i,2)}")
    k.e("v_pk_add_f32 v[40:41], v[40:41], v[42:43]")
    k.e("v_add_f32 v38, v40, v41")
    sum32(38, 37)
    k.stamp(S0)
    act(PRO[1])
    k.e("v_mul_f32 v38, 0xba800000, v38")
    k.e("v_mov_b32 v39, v38")
    T = 112
    for i in range(16):
        k.e(f"v_pk_add_f32 {V(T+2*(i&3),2)}, {V(XF+2*i,2)}, v[38:39]")
        d = 40 + 2 * (i & 1)
        if i < 2: k.e(f"v_pk_mul_f32 {V(d,2)}, {V(T+2*(i&3),2)}, {V(T+2*(i&3),2)}")
        else: k.e(f"v_pk_fma_f32 {V(d,2)}, {V(T+2*(i&3),2)}, {V(T+2*(i&3),2)}, {V(d,2)}")
    k.e("v_pk_add_f32 v[40:41], v[40:41], v[42:43]")
    k.e("v_add_f32 v40, v40, v41")
    sum32(40, 37)
    act(PRO[2])
    k.stamp(S0)
    k.e("v_mul_f32 v40, 0x3a800000, v40")
    k.e("v_cvt_pk_bf16_f32 v44, v38, v40")
    k.e("v_lshlrev_b32 v38, 16, v44")
    k.e("v_and_b32 v40, 0xffff0000, v44")
    k.e("v_add_f32 v40, 0x3727c5ac, v40")
    k.e("v_cvt_pk_bf16_f32 v44, v40, v40")
    k.e("v_lshlrev_b32 v40, 16, v44")
    k.e("v_sqrt_f32 v40, v40")
    k.e("v_mov_b32 v39, v38")
    k.e("v_cvt_pk_bf16_f32 v44, v40, v40")
    k.e("v_lshlrev_b32 v44, 16, v44")
    k.e("v_rcp_f32 v40, v44")
    for i in range(16):
        k.e(f"v_pk_add_f32 {V(XF+2*i,2)}, {V(XF+2*i,2)}, v[38:39]")
    k.e("v_fma_f32 v45, -v44, v40, 1.0")
    k.e("v_fma_f32 v40, v45, v40, v40")
    k.e("v_mov_b32 v41, v40")
    for i in range(16):
        k.e(f"v_cvt_pk_bf16_f32 v{XP+i}, v{XF+2*i}, v{XF+2*i+1}")
    for i in range(16):
        k.e(f"v_lshlrev_b32 v{XF+2*i}, 16, v{XP+i}")
        k.e(f"v_and_b32 v{XF+2*i+1}, 0xffff0000, v{XP+i}")
    for i in range(16):
        k.e(f"v_pk_mul_f32 {V(XF+2*i,2)}, {V(XF+2*i,2)}, v[40:41]")
    for i in range(16):
        k.e(f"v_cvt_pk_bf16_f32 v{XP+i}, v{XF+2*i}, v{XF+2*i+1}")
    k.e("s_mul_i32 s3, s32, 4128")
    k.e("s_add_u32 s3, s3, 131072")
    k.e("v_mul_u32_u24 v42, 2064, v33")
    k.e("v_add3_u32 v42, v42, v36, s3")
    for i in range(4):
        k.e(f"ds_write_b128 v42, {V(XP+4*i,4)} offset:{i*512}")
    act(PRO[3])
    k.stamp(S0)
    k.wait_vm('wr')
    k.stamp(S0)
    for i in range(16):
        k.e(f"v_lshlrev_b32 v{XF+2*i}, 16, v{XP+i}")
        k.e(f"v_and_b32 v{XF+2*i+1}, 0xffff0000, v{XP+i}")
        k.e(f"v_lshlrev_b32 v{T+2*(i&3)}, 16, v{WR+i}")
        k.e(f"v_and_b32 v{T+2*(i&3)+1}, 0xffff0000, v{WR+i}")
        d = 42 + 2 * (i & 1)
        if i < 2: k.e(f"v_pk_mul_f32 {V(d,2)}, {V(XF+2*i,2)}, {V(T+2*(i&3),2)}")
        else: k.e(f"v_pk_fma_f32 {V(d,2)}, {V(XF+2*i,2)}, {V(T+2*(i&3),2)}, {V(d,2)}")
    k.e("v_pk_add_f32 v[42:43], v[42:43], v[44:45]")
    k.e("v_add_f32 v45, v42, v43")
    sum32(45, 37)
    k.e("v_cvt_pk_bf16_f32 v45, v45, v45")
    k.e("v_ashrrev_i32 v46, 31, v45")
    k.e("v_or_b32 v46, 0x80000000, v46")
    k.e("v_xor_b32 v45, v45, v46")
    k.e("v_and_b32 v45, 0xffff0000, v45")
    k.e("s_lshr_b32 s3, s36, 11")
    k.e("v_add_u32 v46, s3, v33")
    k.e("v_sub_u32 v44, 0xffff, v46")
    k.e("v_or_b32 v45, v45, v44")
    k.e("v_lshlrev_b32 v44, 2, v46")
    k.e("v_lshlrev_b32 v46, 3, v46")
    k.e("v_xor_b32 v38, 0x80000000, v38")
    k.e("v_mov_b32 v39, v40")
    k.e(f"s_mov_b32 s3, {WS_KEYS}")
    k.e(f"s_mov_b32 s39, {WS_STATS}")
    k.e("s_mov_b32 exec_lo, 1")
    k.e("s_mov_b32 exec_hi, 1")
    k.e("buffer_store_dword v45, v44, s[20:23], s3 offen sc1", tag='ln')
    k.e("buffer_store_dwordx2 v[38:39], v46, s[20:23], s39 offen sc1", tag='ln')
    k.e("s_mov_b64 exec, -1")
    k.e("s_load_dwordx2 s[4:5], s[0:1], 16")
    k.e("s_load_dwordx4 s[40:43], s[0:1], 64")
    k.e("s_load_dwordx2 s[92:93], s[0:1], 40")
    k.e("s_load_dwordx2 s[94:95], s[0:1], 80")
    k.e("s_load_dwordx2 s[100:101], s[0:1], 0")
    act(PRO[4])
    PFN = pfc[0] - 2
    k.srd(28, 64, 256)

    def areads(st, pr):
        return [f"ds_read_b128 {A(FA(it,ks),4)}, v{AA[st & 1][ks]} offset:{it*2048}" for it in (2 * pr, 2 * pr + 1) for ks in range(2)]
    def wfreads(st):
        return [[f"ds_read_b64_tr_b16 {A(FW(st & 1,j,ks)+2*rd,2)}, v{WA[st & 1][j]} offset:{ks*16384+rd*2048}" for rd in range(2)]
                for j in range(8) for ks in range(2)]
    k.stamp(S0)
    k.wait_vm('w0d'); k.wait_vm('a0d')
    k.e("s_waitcnt lgkmcnt(0)")
    k.e("s_barrier")
    k.stamp(ST or S0)
    for s in areads(0, 0): k.e(s, tag='A0_0')
    for n, grp in enumerate(wfreads(0)):
        for s in grp: k.e(s, tag=f'W0_{n // 2}')
    k.e("s_cmp_lg_u32 s35, 0")
    k.e("s_cbranch_scc1 L_k1_vpath")

    def chunk_ops(c):
        kind, j = c
        slot = {'w': j % 4, 'kv': (j + 4) % 8}[kind]
        ops = [('s', f"s_add_u32 m0, s44, {slot * 16384}")]
        if kind == 'w':
            for q in range(4):
                ops.append(('g', f"buffer_load_dwordx4 v{WV + (q >> 1)}, s[8:11], s{48+q} offen offset:{q*1024}{wq_ld} lds"))
            ops.append(('v', f"v_add_u32 v{WV}, {64*8192}, v{WV}"))
            ops.append(('v', f"v_add_u32 v{WV+1}, {64*8192}, v{WV+1}"))
        elif kind == 'f':
            for q in range(4):
                ops.append(('g', f"buffer_load_dwordx4 v{12 + (q >> 1) + 2 * (j & 1)}, {S(60 + 8 * (j >> 1), 4)}, s{52+q} offen offset:{q*1024}{ffn_ld} lds"))
        else:
            ops.append(('s', f"s_mov_b32 s7, {j * KV_CH}"))
            for q in range(4):
                ops.append(('g', f"buffer_load_dwordx4 v{VDMA}, s[12:15], s7 offen offset:{q*1024}{kv_ld} lds"))
        return ops
    def xn_ops(kk):
        ops = []
        for qb in range(4):
            so = "0" if qb & 1 else "s58"
            ops.append(('g', f"buffer_load_dwordx4 {A(XR(kk,qb),4)}, v{XV + (qb >> 1)}, s[20:23], {so} offen offset:{(kk % 4)*1024}{opt.get('xn_ld', ' sc1')}"))
        if kk % 4 == 3:
            ops.append(('v', f"v_add_u32 v{XV}, 4096, v{XV}"))
            ops.append(('v', f"v_add_u32 v{XV+1}, 4096, v{XV+1}"))
        return ops
    def wreads(kk):
        st = kk // 2
        return [[f"ds_read_b64_tr_b16 {A(WF(ks,db)+2*rd,2)}, v{TA+db} offset:{(st % 4)*16384 + ks*8192 + rd*1024}" for rd in range(2)]
                for db, ks in ([(d, q) for d in range(4 * (kk & 1), 4 * (kk & 1) + 4) for q in range(2)] if P2C else [(d, kk & 1) for d in range(8)])]
    ool = []
    def spin(lab, ret, off, target, vd, vz, sv, sc):
        def fn():
            k.e(f"s_mov_b32 s{sc}, 0x400000")
            k.label(lab + "_l")
            k.e(f"s_sleep {opt.get('slp', 8)}")
            k.e(f"buffer_load_dword v{vd}, v{vz}, s[28:31], {off} offen sc1")
            k.e("s_waitcnt vmcnt(0)")
            k.e(f"v_readfirstlane_b32 s{sv}, v{vd}")
            k.e(f"s_sub_u32 s{sc}, s{sc}, 1")
            k.e(f"s_cmp_eq_u32 s{sc}, 0")
            k.e(f"s_cbranch_scc1 {ret}")
            k.e(f"s_cmp_lt_u32 s{sv}, {target}")
            k.e(f"s_cbranch_scc1 {lab}_l")
        ool.append((lab, fn, ret))
    def srd_rec(b, d, base, nbytes, add=None):
        if add is None:
            b.e(f"s_mov_b32 s{d}, s{base}"); b.e(f"s_and_b32 s{d+1}, s{base+1}, 0xffff")
        else:
            b.blk([f"s_add_u32 s{d}, s{base}, {add}", f"s_addc_u32 s{d+1}, s{base+1}, 0", f"s_and_b32 s{d+1}, s{d+1}, 0xffff"])
        b.e(f"s_mov_b32 s{d+2}, {nbytes}"); b.e(f"s_mov_b32 s{d+3}, 0x20000")

    def phase1_stream(isV):
        b = Rec()
        tg = 'v' if isV else 'k'
        b.e("v_and_b32 v46, 7, v0")
        b.e("v_lshrrev_b32 v1, 3, v0") if False else None
        b.e("v_mul_u32_u24 v30, 2064, v46")
        b.e("v_lshrrev_b32 v31, 3, v0")
        b.e("s_lshl_b32 s3, s32, 9")
        b.e("s_add_u32 s3, s3, 131072")
        b.e("v_lshl_add_u32 v30, v31, 4, v30")
        b.e("v_add_u32 v30, s3, v30")
        b.e("v_lshlrev_b32 v31, 8, v31")
        b.e("v_lshl_add_u32 v46, v46, 4, v31")
        for i in (1, 2, 3, 0):
            b.e(f"ds_read_b128 {V(30+4*i,4)}, v30 offset:{i*128}", tag='xs')
        b.e("s_lshr_b32 s3, s2, 1")
        b.e(f"s_mul_i32 s3, s3, {XN_RB}")
        b.e("s_add_u32 s3, s3, s57")
        b.e("s_and_b32 s39, s2, 1")
        b.e("s_lshl_b32 s39, s39, 7")
        b.e("s_add_u32 s3, s3, s39")
        b.e("s_add_u32 s39, s3, 4096")
        b.at(2)
        for i in range(4):
            b.e(f"buffer_store_dwordx4 {V(30+4*i,4)}, v46, s[20:23], s{3 if i < 2 else 39} offen offset:{(i&1)*2048} sc1", tag='ln')
        b.e("s_lshl_b32 s3, s34, 1")
        b.e("s_and_b32 s36, s32, 1")
        b.e("s_add_u32 s3, s3, s36")
        b.e(f"s_mul_i32 s3, s3, {KV_HEAD}")
        b.e(f"s_mul_i32 s36, s33, {4*KV_TILE}")
        b.e("s_add_u32 s3, s3, s36")
        b.e("s_lshr_b32 s36, s32, 1")
        b.e(f"s_mul_i32 s36, s36, {2*KV_TILE}")
        b.e("s_add_u32 s3, s3, s36")
        b.e(f"s_add_u32 s38, s3, {KV_CH if isV else 0}")
        b.e("s_lshl_b32 s39, s34, 7")
        b.e("s_lshl_b32 s36, s33, 2")
        b.e("s_add_u32 s39, s39, s36")
        b.e(f"s_add_u32 s39, s39, {WS_FLG + (32 if isV else 0)}")
        b.e("v_mov_b32 v30, 1")
        b.e("v_mov_b32 v31, 0")
        b.blk(["s_cmp_eq_u32 s32, 0", f"s_cselect_b32 s39, s39, {BIG}"])
        b.blk(["s_mov_b64 exec, 1", ("buffer_store_dword v31, v31, s[20:23], s39 offen sc1", 'ln'), "s_mov_b64 exec, -1"])
        if MAP == 4:
            b.e("s_and_b32 s33, s2, 7")
            b.e("s_lshl_b32 s33, s33, 2")
            b.e("s_bfe_u32 s3, s2, 0x20003")
            b.e("s_add_u32 s33, s33, s3")
            b.e("s_lshr_b32 s34, s2, 5")
        else:
            b.e("s_and_b32 s33, s2, 6")
            b.e("s_lshl_b32 s33, s33, 2")
            b.e("s_bfe_u32 s3, s2, 0x30003")
            b.e("s_add_u32 s33, s33, s3")
            b.e("s_lshr_b32 s34, s2, 6")
            b.e("s_lshl_b32 s34, s34, 1")
            b.e("s_and_b32 s3, s2, 1")
            b.e("s_add_u32 s34, s34, s3")
        b.e("s_lshl_b32 s64, s34, 7")
        b.e("s_lshl_b32 s3, s33, 2")
        b.e("s_add_u32 s64, s64, s3")
        b.e(f"s_add_u32 s64, s64, {WS_CFL}")
        b.e("s_lshl_b32 s65, s34, 8")
        b.e("s_sub_u32 s65, 1920, s65")
        b.e("v_mul_u32_u24 v32, s65, v0")
        b.blk(["s_cmp_eq_u32 s32, 0", f"s_cselect_b32 s64, s64, {BIG}"])
        b.blk(["s_mov_b64 exec, 3", ("buffer_store_dword v31, v32, s[20:23], s64 offen sc1", 'ln'), "s_mov_b64 exec, -1"])
        b.e("s_lshl_b32 s3, s2, 2")
        b.e(f"s_add_u32 s3, s3, {WS_HFL}")
        b.e("v_lshlrev_b32 v32, 10, v0")
        b.blk(["s_cmp_eq_u32 s32, 0", f"s_cselect_b32 s3, s3, {BIG}"])
        b.blk(["s_mov_b64 exec, 0x1ff", ("buffer_store_dword v31, v32, s[20:23], s3 offen sc1", 'ln'), "s_mov_b64 exec, -1"])
        b.e("s_lshl_b32 s35, s34, 1")
        b.e("s_sub_u32 s36, 32, s35")
        b.e("s_add_u32 s35, s35, 2")
        b.e("s_lshl_b32 s44, s32, 12")
        b.e("s_lshl_b32 s58, s32, 1")
        b.e("s_sub_u32 s58, 7, s58")
        b.e(f"s_mul_i32 s58, s58, {XN_RB}")
        b.e("s_sub_u32 s3, 15, s34")
        b.e("s_lshl_b32 s45, s3, 3")
        b.e("s_add_u32 s45, s45, s32")
        b.e("s_lshl_b32 s46, s34, 3")
        b.e("s_add_u32 s46, s46, s32")
        srd_rec(b, 68, 42, 7340032)
        b.blk(["s_cmp_eq_u32 s32, 0", f"s_cselect_b32 s37, 0, {BIG}"])
        b.e("s_lshl_b32 s3, s33, 8")
        srd_rec(b, 16, 4, 0, "s3")
        b.e("s_sub_u32 s18, 8388608, s3")
        WQN = int(opt.get('wqn', 4))
        ln_ = (64 if MAP == 4 else 128) // WQN
        b.e(f"v_and_b32 v33, {ln_ - 1}, v0")
        b.e("v_lshrrev_b32 v32, 1, v33")
        b.e("v_and_b32 v33, 1, v0")
        b.e("v_lshlrev_b32 v32, 13, v32")
        b.e("v_lshl_add_u32 v45, v33, 7, v32")
        b.e("s_lshl_b32 s3, s32, 3")
        b.e("s_add_u32 s3, s3, s34")
        if MAP != 4: b.e("s_lshr_b32 s3, s3, 1")
        b.e(f"s_mul_i32 s47, s3, {ln_ // 2 * 8192}")
        WQ0 = int(opt.get('wq0', 6))
        ev = []
        for j in range(WQN): ev.append((WQ0 + j * float(opt.get('wqs', 2)), 'pf', j))
        NS = int(opt.get('cas', 4))
        for j in range(NS): ev.append((5.2 + j * float(opt.get('cad', 1.2)), 'ca', j))
        b.e(f"s_bfe_u32 s6, s2, {(NS.bit_length() - 1) << 16 | 3}")
        b.e("s_lshl_b32 s3, s32, 8")
        b.e("s_or_b32 s6, s6, s3")
        WOP = WOT
        if WOP:
            b.e("v_bfe_u32 v39, v0, 3, 1")
            b.e("v_and_b32 v33, 7, v0")
            b.e("v_lshlrev_b32 v39, 11, v39")
            b.e("v_lshl_add_u32 v39, v33, 7, v39")
            b.e("s_lshr_b32 s3, s2, 1")
            b.e("s_lshl_b32 s3, s3, 16")
            b.e("v_add_u32 v39, s3, v39")
            b.e("s_and_b32 s3, s2, 1")
            b.e("s_lshl_b32 s3, s3, 10")
            b.e("v_add_u32 v39, s3, v39")
            b.e("s_lshl_b32 s3, s32, 14")
            b.e("v_add_u32 v39, s3, v39")
            ev.append((5.99, 'srd', 0))
            for j in range(4): ev.append((float(opt.get('wop0', 6)) + j * 2 + 0.01, 'wo', j))
        late = []
        for step, kind, j in sorted(ev):
            o = b
            if step >= 12:
                o = Rec(); late.append(o)
            o.at(step)
            if kind == 'ca':
                o.check_clear('ln')
                o.blk([f"s_cmp_eq_u32 s6, {j}", f"s_cselect_b32 s3, 0, {BIG}"])
                o.blk(["s_mov_b64 exec, 1", "buffer_atomic_add v30, v31, s[28:31], s3 offen sc1", "s_mov_b64 exec, -1"])
            elif kind == 'srd':
                srd_rec(o, 60, 92, 8388608)
            elif kind == 'wo':
                o.e("buffer_load_dword v44, v39, s[60:63], 0 offen", tag='pf')
                o.e("v_add_u32 v39, 4096, v39")
            else:
                o.e(f"buffer_load_dword v44, v45, s[{16 if step < 12 else 8}:{19 if step < 12 else 11}], s47 offen{opt.get('wqpf_ld', '')}", tag='pf')
                o.e(f"s_add_u32 s47, s47, {1024 // WQN * 8192}")
        b.e("v_lshrrev_b32 v32, 4, v0")
        b.e("v_and_b32 v33, 15, v0")
        b.e("s_lshl_b32 s3, s32, 4")
        b.e("v_add_u32 v34, s3, v32")
        b.e("v_lshlrev_b32 v36, 1, v32")
        b.e("v_xor_b32 v36, v36, v33")
        b.e("v_xor_b32 v37, 8, v36")
        if '2' in CPF:
            b.at(10.1)
            cp = code_prefetch("L_phase2", "L_k2_fin", 32, 6, 40, 38)
            cp = [x.replace("s8", "s3") for x in cp]
            b.blk(cp[:4])
            for x in cp[4:-3]: b.e(x)
            b.blk(cp[-3:-1])
            b.e(cp[-1])
        b.at(12)
        b.e("buffer_load_dword v1, v31, s[28:31], s37 offen sc1", tag='poll')
        for j in range(3): b.e(f"s_mov_b32 s{8+j}, s{16+j}")
        srd_rec(b, 16, 66, 16 << 20, WS_CTX)
        for j in range(4): b.e(f"s_mov_b32 s{48+j}, {j*31744}")
        b.e("v_lshlrev_b32 v35, 13, v34")
        b.e(f"v_lshl_add_u32 v{WV}, v36, 4, v35")
        b.e(f"v_lshl_add_u32 v{WV+1}, v37, 4, v35")
        b.e(f"v_lshlrev_b32 v{VX}, 4, v0")
        b.e(f"v_add_u32 v{VY}, 65536, v{VX}")
        b.e(f"v_add_u32 v{VDMA}, s44, v{VX}")
        b.e("v_mov_b32 v7, 0")
        b.e("v_lshlrev_b32 v35, 2, v32")
        b.e("v_sub_u32 v35, v33, v35")
        b.e("s_lshl_b32 s3, s32, 4")
        b.e(f"v_add_u32 v{VRA}, s3, v35")
        b.e("s_sub_u32 s3, 48, s3")
        b.e(f"v_add_u32 v{VRB}, s3, v35")
        b.e(f"s_mul_i32 s3, s33, {KV_HEAD}")
        b.e(f"s_add_u32 s3, s3, {WS_KV}")
        srd_rec(b, 12, 66, 0, "s3")
        b.e(f"s_mul_i32 s14, s36, {KV_TILE}")
        for o in late: b.items += o.items
        ta_setup(b)
        b.at(13.4)
        b.e(f"s_mul_i32 s3, s45, {XN_RB}")
        b.e(f"v_add_u32 v{XV}, s3, v{VX}")
        b.e(f"s_mul_i32 s3, s46, {XN_RB}")
        b.e(f"v_add_u32 v{XV+1}, s3, v{VX}")
        if '6' in CPF:
            b.at(14)
            b.e("v_mov_b32 v14, v40"); b.e("v_mov_b32 v15, v41")
        if 'dbg_noxn' in opt:
            b.e(f"v_mov_b32 v{XV}, {BIG}"); b.e(f"v_mov_b32 v{XV+1}, {BIG}")
        if 'dbg_nowq' in opt: b.e("s_mov_b32 s10, 0")
        if 'dbg_nost' in opt: b.e("s_mov_b32 s26, 0")
        spin(f"L_spinA{tg}", f"L_spinAr{tg}", 0, 256, 1, 7, 3, 47)
        return b
    def ta_setup(b):
        b.e("v_lshrrev_b32 v42, 2, v33")
        b.e("v_lshl_add_u32 v43, v32, 3, v42")
        b.e("v_lshlrev_b32 v43, 8, v43")
        b.e("v_and_b32 v46, 3, v0")
        b.e("v_lshl_add_u32 v43, v46, 3, v43")
        b.e("v_and_b32 v46, 1, v32")
        b.e("v_lshl_add_u32 v42, v46, 2, v42")
        b.e(f"v_lshl_add_u32 v{TA}, v42, 5, v43")
        for db in range(1, 8): b.e(f"v_xor_b32 v{TA+db}, {32*db}, v{TA}")

    NS7 = int(opt.get('ns7', 0))
    def kvstore_ops(n):
        off = (n >> 4) * KV_TILE + (n & 15) * 1024
        return ([f"s_add_u32 s59, s38, {off}"] if n % 4 == 0 else []) + \
               [f"buffer_store_dwordx4 {V(PK(n),4)}, v{VX}, s[24:27], s59 offen offset:{(n % 4)*1024}{opt.get('kv_st', ' sc1')}"]
    def place_vm(g, gt, scal, ops, start, step):
        gi = start
        for t, s, tg in ops:
            if t == 's': scal.setdefault(gi - 1, []).append(s)
            elif t == 'g':
                assert gi not in g and gi < 128, gi
                g[gi] = [s]; gt[gi] = tg; gi += step
            else:
                q = gi - step + 1
                while (q in g and (len(g[q]) >= 2 or g[q][-1].startswith(('buffer', 'ds_read_b64')))) or ((q - start) % step == 0 and q < 127): q += 1
                g.setdefault(min(q, 127), []).append(s)
    vq0, dq0 = list(k.vq), list(k.dq)
    for isV in (0, 1):
        if isV:
            k.label("L_k1_vpath"); k.win = []; k.vq = list(vq0); k.dq = list(dq0)
        b = phase1_stream(isV)
        if S1: k.nstamp = 0
        for st in range(8):
            p = st & 1
            k.stamp(S1)
            g = {}; gt = {}; scal = {}
            for pr in range(4):
                s2, p2 = (st, pr + 1) if pr < 3 else (st + 1, 0)
                if s2 < 8:
                    for q, s in enumerate(areads(s2, p2)):
                        x = 32 * pr + 3 + 4 * q
                        g[x] = [s]; gt[x] = f'A{s2}_{p2}'
                    scal.setdefault(32 * pr + 30, []).append(('w', f'A{s2}_{p2}'))
            if st < 7:
                free = [x for x in range(65, 122, 2) if x not in g]
                for n, grp in enumerate(wfreads(st + 1)):
                    x = free[(n * len(free)) // 16]
                    g[x] = grp; gt[x] = f'W{st+1}'
                scal.setdefault(127, []).append(('w', f'W{st+1}'))
                scal.setdefault(61, []).append(('v', f'w{st+1}d')); scal.setdefault(62, []).append("s_barrier")
                scal.setdefault(93, []).append(('v', f'a{st+1}d')); scal.setdefault(94, []).append("s_barrier")
            if st == 0:
                ops = []
                for h, nm in enumerate(('w1', 'a1')):
                    if nm not in '/'.join(PRO):
                        ops += [(t, s, nm + 'd') for t, s in dma_ops(1)[10*h:10*h+10]] + [('v', s, None) for s in adv_ops(1)[4*h:4*h+4]]
                place_vm(g, gt, scal, ops, 2, int(opt.get('st1s', 2)))
                pfc[0] = 2 + PFN
                for q in range(int(opt.get('pfk', 1))):
                    po = pf_ops()
                    assert 44 + 4 * q not in g
                    g[44 + 4 * q] = [po[0]]; gt[44 + 4 * q] = 'pf'; g[45 + 4 * q] = po[1:] + g.get(45 + 4 * q, [])
            if st < 6:
                d = dma_ops(p); adv = adv_ops(st + 2) if st < 5 else []
                ops = [(t, s, f'w{st+2}d') for t, s in d[:10]] + [('v', s, None) for s in adv[:4]] + \
                      [(t, s, f'a{st+2}d') for t, s in d[10:]] + [('v', s, None) for s in adv[4:]]
                place_vm(g, gt, scal, ops, 64, 4)
                if pfc[0] < 8:
                    po = pf_ops()
                    g[126] = [po[0]] + g.get(126, []); gt[126] = 'pf'
                    g[127] = [po[1]] + g.get(127, []) + [po[2]]
            elif st == 6:
                ops = []
                for c in range(4): ops += [(t, s, f'w{c}') for t, s in chunk_ops(('w', c))]
                place_vm(g, gt, scal, ops, 64, 4)
            else:
                XB = int(opt.get('xb', 28))
                tg = 'v' if isV else 'k'
                scal.setdefault(XB - 2, []).append(('v', 'w0'))
                scal.setdefault(XB, []).extend(["v_readfirstlane_b32 s3, v1", "s_nop 0", "s_or_b32 s3, s3, s37", "s_cmp_lt_u32 s3, 256",
                                                f"s_cbranch_scc1 L_spinA{tg}", f"L_spinAr{tg}:", "s_barrier"])
                ops = []
                for kk in range(4): ops += [(t, s, f'x{kk}') for t, s in xn_ops(kk)]
                place_vm(g, gt, scal, ops, XB + 4, int(opt.get('xs7', 6)) & ~1)
                for n, grp in enumerate(wreads(0)):
                    assert 105 + 2 * n not in g
                    g[105 + 2 * n] = grp
                for n in range(26):
                    b.at(14 + (4 * n + 8) / 64.0)
                    r = SRC(n)[1]
                    for q in range(4): b.e(f"v_cvt_pk_bf16_f32 v{PK(n)+q}, v{r+2*q}, v{r+2*q+1}")
                    m_ = (n * NS7) // 26
                    if (n + 1) * NS7 // 26 > m_:
                        for x in kvstore_ops(m_): b.e(x, tag='kvst')
            if isV: order = [(2 * pr + h, jd, ks) for pr in range(4) for jd in range(8) for h in range(2) for ks in range(2)]
            else: order = [(it, jd, ks) for it in range(8) for jd in range(8) for ks in range(2)]
            for n, (it, jd, ks) in enumerate(order):
                if st == 0:
                    k.wait_ds('A0_0'); k.wait_ds(f'W0_{jd}')
                fa, fw_ = A(FA(it, ks), 4), A(FW(p, jd, ks), 4)
                d = acc(isV, it, jd)
                c = "0" if (st == 0 and ks == 0) else d
                k.e(mfma(d, fa, fw_, c) if isV else mfma(d, fw_, fa, c))
                for x in scal.get(n, []):
                    if isinstance(x, tuple): (k.wait_ds if x[0] == 'w' else k.wait_vm)(x[1])
                    elif x.endswith(':'): k.label(x[:-1])
                    else: k.e(x)
                if n in g:
                    for s in g[n]: k.e(s, tag=gt.get(n))
                elif n not in scal:
                    b.fill(k, 2 * st + n / 64.0)
        print(f"phase1 isV={isV}: items left {len(b.items)}")
        k.stamp(S1)
        b.drain(k)
        k.stamp(S1)
        if not isV:
            k.e("s_branch L_phase2")
            vqK = list(k.vq)
    assert vqK == k.vq
    k.label("L_phase2")
    k.win = []
    k.e("s_nop 7")
    k.stamp(ST)

    b = Rec()
    KY = 56
    SPK = float(opt.get('spk', 2))
    def kvstore(n):
        if n < NS7: return
        b.at((n - NS7) / SPK)
        for x in kvstore_ops(n): b.e(x, tag='kvst')
    for n in range(26):
        kvstore(n)
        if 8 <= n < 14:
            m = n + 18
            for q in range(8): b.e(f"v_accvgpr_read_b32 v{48+q}, a{SRC(m)[1]+q}")
            for q in range(4): b.e(f"v_cvt_pk_bf16_f32 v{PK(m)+q}, v{48+2*q}, v{49+2*q}")
    for n in range(26, 32): kvstore(n)
    b.e("v_mov_b32 v12, 1")
    b.e("v_and_b32 v1, 15, v0")
    b.e("v_lshlrev_b32 v1, 2, v1")
    b.e("s_lshr_b32 s6, s33, 1")
    b.e("s_lshl_b32 s6, s6, 7")
    b.e(f"s_add_u32 s6, s6, {WS_FLG}")
    b.blk(["s_cmp_eq_u32 s32, 0", f"s_cselect_b32 s6, s6, {BIG}"])
    SIG = int(opt.get('sig', 21))
    POL = float(opt.get('pol', 26.5))
    b.at(SIG)
    b.blk(["s_mov_b64 exec, 1", "buffer_store_dword v12, v7, s[20:23], s39 offen sc1", "s_mov_b64 exec, -1"])
    b.at(POL)
    b.e("buffer_load_dword v12, v1, s[20:23], s6 offen sc1", tag='poll')
    CK = int(opt.get('ck', 29))
    n_ = 0
    for j in (0, 2, 1, 3, 4, 5, 6):
        for t, s in chunk_ops(('kv', j)):
            if t == 'g':
                b.at(max(CK + n_ * float(opt.get('kvp', 0.09)), {4: 25, 5: 27, 6: 29}.get(j, 0))); n_ += 1
            b.e(s, tag=f'c{16+j}')
    def spinB():
        k.e("s_mov_b32 s59, 0x400000")
        k.label("L_spinB_l")
        k.e(f"s_sleep {opt.get('slp', 4)}")
        k.e("buffer_load_dword v12, v1, s[20:23], s6 offen sc1")
        k.e("s_sub_u32 s59, s59, 1")
        k.e("s_cmp_eq_u32 s59, 0")
        k.e("s_cbranch_scc1 L_spinBx")
        k.e("s_waitcnt vmcnt(0)")
        k.e("v_cmp_ne_u32 vcc, 1, v12")
        k.e("s_cbranch_vccnz L_spinB_l")
        k.label("L_spinBx")
        k.e("s_waitcnt vmcnt(0)")
    ool.append(("L_spinB", spinB, "L_spinBr"))

    b1 = b
    b = Rec()
    srd_rec(b, 60, 40, 7340032)
    RT = [float(x) for x in opt.get('rt', '0,5').split(',')] if '6' in CPF else []
    for x in RT:
        b.at(x)
        b.e("global_load_dword v13, v[14:15], off", tag='keys')
    b.at((17 - NS7) / SPK + 1)
    b.e(f"s_mov_b32 s3, {WS_KEYS}")
    b.e(f"s_mov_b32 s47, {WS_KEYS + 4096}")
    for i in range(8):
        b.e(f"buffer_load_dwordx4 {V(KY+4*i,4)}, v{VX}, s[20:23], s{3 if i < 4 else 47} offen offset:{(i % 4)*1024} sc1", tag='keys')
    b.at((17 - NS7) / SPK + 8)
    b.wait_vm('keys')
    b.e(f"v_max_u32 v14, v{KY}, v{KY+1}")
    b.e(f"v_min_u32 v15, v{KY}, v{KY+1}")
    for i in range(2, 32):
        b.e(f"v_med3_u32 v15, v14, v15, v{KY+i}"); b.e(f"v_max_u32 v14, v14, v{KY+i}")
    def wmax(v, sdst):
        for m in ["quad_perm:[1,0,3,2]", "quad_perm:[2,3,0,1]", "row_half_mirror", "row_mirror"]:
            b.blk([f"v_max_u32_dpp {v}, {v}, {v} {m} row_mask:0xf bank_mask:0xf"])
        b.blk([f"v_readlane_b32 s3, {v}, 0", f"v_readlane_b32 s47, {v}, 16"])
        b.blk([f"v_readlane_b32 s4, {v}, 32", f"v_readlane_b32 s5, {v}, 48"])
        b.blk(["s_max_u32 s3, s3, s47", "s_max_u32 s4, s4, s5", f"s_max_u32 s{sdst}, s3, s4"])
    b.e("v_mov_b32 v13, v14")
    wmax("v13", 40)
    b.blk(["v_cmp_eq_u32 vcc, s40, v14"])
    b.blk(["v_cndmask_b32 v13, v14, v15, vcc"])
    wmax("v13", 41)
    for t in range(2):
        b.e(f"s_and_b32 s3, s{40+t}, 0xffff")
        b.e(f"s_sub_u32 s{42+t}, 0xffff, s3")
    for t in range(2):
        b.e(f"v_mov_b32 v60, s{40+t}")
        b.e("v_not_b32 v61, v60")
        b.e("v_ashrrev_i32 v61, 31, v61")
        b.e("v_or_b32 v61, 0x80000000, v61")
        b.e("v_xor_b32 v60, v60, v61")
        b.e("v_and_b32 v60, 0xffff0000, v60")
        b.e("v_mul_f32 v60, 0xbfb8aa3b, v60")
        b.e("v_exp_f32 v60, v60")
        b.e("v_add_f32 v60, 1.0, v60")
        b.e("v_rcp_f32 v60, v60")
        b.e("v_cvt_pk_bf16_f32 v60, v60, v60")
        b.e(f"v_and_b32 v{64+t}, 0xffff0000, v60")
    for r in range(16): b.e(f"v_mov_b32 v{LS+r}, 0")
    WARM = opt.get('warm', '1') == '1'
    if WARM:
        WC = int(opt.get('wc', 4))
        upc = 64 - WC * WC
        seg = upc * 32 * 4 * 128
        bufs = [(94, 7340032)] + ([(100, 4194304)] if x_ld else []) + [(60, 7340032), (68, 7340032)] + ([] if WOT else [(92, 8388608)])
        b.e("s_mul_i32 s3, s34, s34")
        b.e(f"s_mul_i32 s47, s33, {upc}")
        b.e("s_add_u32 s3, s3, s47")
        b.e("s_lshl_b32 s3, s3, 2")
        b.e("s_add_u32 s3, s3, s32")
        b.e("s_lshl_b32 s3, s3, 7")
        b.e(f"s_sub_u32 s3, s3, {512 + WC * WC * 512}")
        b.blk([f"s_cmp_ge_u32 s34, {WC}", "s_cselect_b32 s3, s3, 0", "s_cselect_b32 s40, 512, 0", f"s_cselect_b32 s47, {seg}, 0"])
        first = 0
        for j, (lo, size) in enumerate(bufs):
            b.e(f"v_subrev_u32 v31, {first}, v0")
            b.e("v_mul_lo_u32 v31, v31, s47")
            b.e(f"v_min_u32 v31, {size - seg}, v31")
            if j == 0:
                b.e(f"v_mov_b32 v28, s{lo}"); b.e(f"v_mov_b32 v29, s{lo+1}"); b.e("v_mov_b32 v30, v31")
            else:
                b.e(f"v_mov_b32 v14, s{lo}"); b.e(f"v_mov_b32 v15, s{lo+1}")
                b.blk([f"v_cmp_le_u32 vcc, {first}, v0"])
                b.blk(["v_cndmask_b32 v28, v28, v14, vcc", "v_cndmask_b32 v29, v29, v15, vcc"])
                b.blk(["v_cndmask_b32 v30, v30, v31, vcc"])
            first += -(-size // seg)
        assert first <= 64, first
        b.e("v_add_u32 v30, s3, v30")
        b.e("v_ashrrev_i32 v31, 31, v30")
        b.e("v_lshl_add_u64 v[28:29], v[30:31], 0, v[28:29]")
        b.e("s_mov_b32 s41, 0")
    b.e("v_readfirstlane_b32 s100, v64")
    b.e("v_readfirstlane_b32 s101, v65")
    b.at(SIG)
    for j in range(3): b.e(f"s_mov_b32 s{24+j}, s{60+j}")
    b.e(f"s_mov_b32 s94, {QSCALE}")
    b.e(f"s_mov_b32 s95, {QSCALE}")
    b.e("s_sub_u32 s55, 15, s34")
    b.e("s_sub_u32 s45, s36, 3")
    b.e("s_sub_u32 s46, s35, 3")
    b.e("s_mov_b32 s54, s44")
    b.e("s_sub_u32 s35, s35, 2")
    b.e("s_sub_u32 s36, s36, 2")
    b2 = b
    b3 = Rec()
    WT0 = float(opt.get('wt0', 18))
    WTB = int(opt.get('wtb', 23))
    WTG = int(opt.get('wtg', 8))
    b3.e("s_lshr_b32 s52, s2, 1")
    b3.e("s_lshl_b32 s52, s52, 16")
    b3.e("s_and_b32 s53, s2, 1")
    b3.e("s_lshl_b32 s53, s53, 10")
    b3.e("s_add_u32 s52, s52, s53")
    b3.e("s_lshl_b32 s53, s32, 14")
    b3.e("s_add_u32 s52, s52, s53")
    srd_rec(b3, 28, 92, 8388608)
    for j in range(8):
        b3.at(WT0 + 2 * (j // WTG))
        b3.blk([f"s_add_u32 m0, s57, {65536 + j * 1024}", f"v_xor_b32 v88, {j * 32}, v{VX}",
                (f"buffer_load_dwordx4 v88, s[28:31], s52 offen{opt.get('wo_ld', '')} lds", 'wo'), "s_add_u32 s52, s52, 2048"])
    b3.e("v_lshrrev_b32 v89, 2, v0")
    b3.e("v_lshlrev_b32 v89, 10, v89")
    b3.e("s_lshl_b32 s53, s32, 8")
    b3.e("s_add_u32 s53, s53, 65536")
    b3.e("v_add_u32 v89, s53, v89")
    b3.e("v_mov_b32 v90, 0xff")
    srd_rec(b3, 28, 66, 16 * WO_NT, WS_WOT)
    b3.e("s_and_b32 s52, s2, 1")
    b3.e("s_lshl_b32 s52, s52, 2")
    b3.e("s_add_u32 s52, s52, s32")
    b3.e(f"s_mul_i32 s52, s52, {2 * WO_NT}")
    b3.e("s_lshr_b32 s53, s2, 1")
    b3.e("s_lshl_b32 s53, s53, 12")
    b3.e("s_add_u32 s52, s52, s53")
    b3.at(WTB)
    for q in range(8):
        b3.e(f"v_and_or_b32 v{92 + (q & 1)}, v{TA+q}, v90, v89")
        for rd in range(2):
            b3.e(f"ds_read_b64_tr_b16 {V(96 + 4*q + 2*rd, 2)}, v{92 + (q & 1)} offset:{rd*16384}", tag='wt')
    for q in range(8):
        b3.at(WTB + 1.2 + 0.5 * q)
        b3.wait_ds('wt')
        b3.e(f"buffer_store_dwordx4 {V(96 + 4*q, 4)}, v{VX}, s[28:31], s52 offen offset:{(q & 3)*1024} sc1", tag='wts')
        if q == 3: b3.e(f"s_add_u32 s52, s52, {WO_NT}")
    b3.e("s_and_b32 s52, s2, 1")
    b3.e("s_lshl_b32 s52, s52, 9")
    b3.e("s_lshr_b32 s93, s2, 1")
    b3.e("s_lshl_b32 s93, s93, 2")
    b3.e("s_add_u32 s52, s52, s93")
    b3.e(f"s_add_u32 s52, s52, {WS_WFL}")
    b3.blk(["s_cmp_eq_u32 s32, 0", f"s_cselect_b32 s52, s52, {BIG}"])
    b3.e("v_mov_b32 v24, 1")
    b3.e("v_mov_b32 v25, 0")
    if not WOT: b3.items = []
    PKM = opt.get('pkm', '0') == '1'
    def conv_items(qb):
        r_ = Rec()
        for s_ in range(4):
            r = QA(2 * s_, qb)
            if PKM:
                for e_ in range(0, 8, 2): r_.e(f"v_pk_mul_f32 {V(r+e_,2)}, {V(r+e_,2)}, s[94:95]")
            else:
                for e_ in range(8): r_.e(f"v_mul_f32 v{r+e_}, s94, v{r+e_}")
            for e_ in range(4): r_.e(f"v_cvt_pk_bf16_f32 v{r+e_}, v{r+2*e_}, v{r+2*e_+1}")
            for e_ in range(4): r_.e(f"v_accvgpr_write_b32 a{Q(qb,s_)+e_}, v{r+e_}")
        r_.items.append(('mark', f'conv{qb}', None))
        return r_.items
    p2_start = len(k.lines)
    XLA = int(opt.get('xla', 5))
    xsched = {}; nx_ = 4
    for kk in range(32):
        xsched[kk] = []
        while nx_ < 32 and nx_ <= min(kk + XLA, (kk & ~1) + 7) and len(xsched[kk]) < 2:
            xsched[kk].append(nx_); nx_ += 1
    for kk in range(32):
        st, ks = kk // 2, kk & 1
        k.stamp(S2 and kk in (0, 4, 8, 12, 16, 20, 24, 28, 31))
        need = [f'x{kk | 1}' if P2C else f'x{kk}']
        if ks == 1 and st < 15: need.append(f'w{st+1}')
        if kk == SIG:
            assert not any(it[2] == 'kvst' for it in b1.items), "stores not all issued before SIG"
            need.append('kvst')
        if kk == WTB:
            assert not any(it[0] == 'b' and any(isinstance(x, tuple) for x in it[1]) for it in b3.items)
            need.append('wo')
        if kk == CK:
            assert not b3.items
            need.append('poll')
        if kk == 31: need.append('c16')
        w = [x for x in (k.vm_n(t) for t in need) if x is not None]
        k.e("s_waitcnt " + (f"vmcnt({min(w)}) " if w else "") + "lgkmcnt(0)")
        for t in need: k.use(t)
        if kk == CK:
            assert not any('vcc' in str(it[1]) for it in b2.items)
            k.e("s_cmp_lg_u32 s32, 0")
            k.e("s_cbranch_scc1 L_spinBr")
            k.e("v_cmp_ne_u32 vcc, 1, v12")
            k.e("s_cbranch_vccnz L_spinB")
            k.label("L_spinBr")
        if ks == 1: k.e("s_barrier")
        g = {}; gt = {}
        if kk + 1 < 32:
            for n, grp in enumerate(wreads(kk + 1)):
                g[1 + 3 * n] = (["s_waitcnt lgkmcnt(6)"] if n == 5 else []) + grp
        vm = []
        if ks == 1 and st + 4 < 16: vm += [(t, s, f'w{st+4}') for t, s in chunk_ops(('w', st + 4))]
        for x in xsched.get(kk, []): vm += [(t, s, f'x{x}') for t, s in xn_ops(x)]
        ng = sum(1 for x in vm if x[0] == 'g')
        free = [x for x in range(2, 32) if x not in g]
        pick = [free[(j * len(free)) // ng] for j in range(ng)] if ng else []
        j = 0
        for t, s, tg in vm:
            if t == 'g': g[pick[j]] = [s]; gt[pick[j]] = tg; j += 1
            elif t == 's':
                q = pick[j] - 1
                if q in gt: g[q].append(s)
                else: g.setdefault(q, []).insert(0, s)
            else: g[pick[j - 1]].append(s)
        dbs, qs = (range(4 * ks, 4 * ks + 4), range(2)) if P2C else (range(8), [ks])
        order = [(db, qb, q) for db in dbs for qb in range(4) for q in qs]
        if kk == 31:
            order = [(db, qb, q) for qb in range(4) for db in dbs for q in qs]
            assert all('accvgpr_write' in it[1] for it in b2.items)
            zrest = b2.items; b2.items = []
            for kb in range(2):
                for s_ in range(4): b2.e(f"ds_read_b128 {A(FR(kb,s_),4)}, v{VY} offset:{(kb*4+s_)*1024}", tag=f'k{kb}')
            b2.at(31 + 12 / 32.0)
            b2.items += conv_items(0) + conv_items(1)
        elif kk > (25 if P2C else 24):
            for x in (([kk - 2] if kk < 30 else [28, 29]) if P2C else [kk - 1]):
                for r in range(16): b2.e(f"v_accvgpr_write_b32 a{XR(x,0)+r}, 0")
        for n, (db, qb, q) in enumerate(order):
            k.e(mfma(V(QA(db, qb), 4), A(WF(q, db), 4), A(XR(2 * st + q, qb), 4), V(QA(db, qb), 4) if (st or q) else "0"))
            if n in g:
                for s in g[n]: k.e(s, tag=gt.get(n))
            else:
                nl = k.ni
                b1.fill(k, kk + n / 32.0)
                if k.ni == nl: b3.fill(k, kk + n / 32.0)
                if k.ni == nl: b2.fill(k, kk + n / 32.0)
    print("phase2 items left", len(b1.items), len(b2.items))
    b1.drain(k)
    grp_ = None
    for ln in k.lines[p2_start:] + ["s_mov_b32 m0, 0"]:
        if ' m0,' in ln:
            assert grp_ is None or (len(set(grp_)) == 1 and len(grp_) == (1 if grp_[0] == 's[28:31]' else 4)), grp_
            grp_ = []
        elif ' lds' in ln: grp_.append(ln.split(', ')[1])
    k.stamp(ST or S2)
    XS = 160
    def ffn_issue():
        for t in range(2):
            k.e(f"s_lshr_b32 s3, s{42+t}, 4")
            k.e(f"s_mul_i32 s3, s3, {XN_RB}")
            k.e(f"s_and_b32 s47, s{42+t}, 15")
            k.e("s_lshl_b32 s47, s47, 4")
            k.e("s_add_u32 s3, s3, s47")
            k.e(f"v_mov_b32 v{28+t}, s3")
        k.e("v_lshrrev_b32 v24, 4, v0")
        k.e("v_and_b32 v25, 15, v0")
        k.e("v_cmp_eq_u32 vcc, 1, v25")
        k.e("s_lshl_b32 s3, s32, 4")
        k.e("v_add_u32 v26, s3, v24")
        k.e("v_cndmask_b32 v28, v28, v29, vcc")
        k.e("v_lshl_add_u32 v28, v24, 8, v28")
        k.e("v_mul_u32_u24 v26, 7168, v26")
        k.e("v_lshlrev_b32 v24, 1, v24")
        k.e("v_xor_b32 v24, v24, v25")
        k.e("v_xor_b32 v25, 8, v24")
        k.e("v_lshl_add_u32 v24, v24, 4, v26")
        k.e("v_lshl_add_u32 v25, v25, 4, v26")
        k.e("s_lshl_b32 s3, s92, 12")
        for q in range(4):
            k.e(f"buffer_load_dwordx4 {A(XS+4*q,4)}, v28, s[20:23], s3 offen offset:{q*1024} sc1")
        ops = []
        for m, srd in enumerate((24, 68)):
            for h in range(2):
                for q in range(4):
                    pre = [f"s_add_u32 m0, s54, {m*32768 + h*16384}"] if q == 0 else []
                    ops.append((pre + [f"s_add_u32 s3, s5, {h*64*7168 + q*27648}"],
                                f"buffer_load_dwordx4 v{24 + (q >> 1)}, {S(srd,4)}, s3 offen offset:{q*1024}{ffn_ld} lds"))
        return ops
    def ffn_finish():
        k.e("v_lshrrev_b32 v24, 4, v0")
        k.e("v_bfe_u32 v25, v0, 2, 2")
        k.e("v_lshl_add_u32 v26, v24, 3, v25")
        k.e("v_lshlrev_b32 v26, 8, v26")
        k.e("v_and_b32 v27, 3, v0")
        k.e("v_lshl_add_u32 v26, v27, 3, v26")
        k.e("v_and_b32 v27, 1, v24")
        k.e("v_lshl_add_u32 v25, v27, 2, v25")
        k.e("s_lshl_b32 s3, s32, 1")
        k.e("v_xor_b32 v25, s3, v25")
        k.e("v_lshl_add_u32 v26, v25, 5, v26")
        k.e("s_sub_u32 s3, s54, s44")
        k.e("v_add_u32 v26, s3, v26")
        k.e("v_xor_b32 v27, 32, v26")
        k.e("s_waitcnt vmcnt(8) lgkmcnt(0)")
        k.use('ffn')
        k.e("s_barrier")
        for m in range(2):
            for q in range(4):
                for j in range(2):
                    for rd in range(2):
                        k.e(f"ds_read_b64_tr_b16 {V(128 + 32*m + 8*q + 4*j + 2*rd, 2)}, v{26+j} offset:{m*32768 + q*8192 + rd*1024}", tag=f'f{m}')
        k.e("v_and_b32 v25, 15, v0")
        k.e("v_mul_u32_u24 v28, 14336, v25")
        k.e("v_lshl_add_u32 v28, v24, 4, v28")
        k.e(f"v_mov_b32 v29, {BIG}")
        k.e("v_cmp_gt_u32 vcc, 2, v25")
        k.e(f"s_mul_i32 s3, s92, {4*14336}")
        k.e("s_lshl_b32 s47, s4, 9")
        k.e("s_add_u32 s3, s3, s47")
        k.e("v_cndmask_b32 v28, v29, v28, vcc")
        k.e("s_lshl_b32 s47, s32, 7")
        k.e("s_add_u32 s3, s3, s47")
        k.e(f"s_add_u32 s3, s3, {WS_HP}")
        for m in range(2):
            k.wait_ds(f'f{m}')
            for q in range(4):
                for j in range(2):
                    d = V(224 + 8 * m + 4 * j, 4)
                    k.e(mfma(d, V(128 + 32*m + 8*q + 4*j, 4), A(XS + 4*q, 4), d if q else "0"))
    def ffn_store():
        k.e("s_cmp_lt_u32 s93, 224")
        k.e(f"s_cselect_b32 s3, s3, {1 << 23}")
        k.e(f"s_add_u32 s7, s3, {2*14336}")
        for m in range(2):
            for j in range(2):
                k.e(f"buffer_store_dwordx4 {V(224 + 8*m + 4*j, 4)}, v28, s[20:23], s{7 if m else 3} offen offset:{j*64} sc1", tag='hps')

    def kread(reg, off, kb):
        return [f"ds_read_b128 {A(FR(kb,s_),4)}, v{reg} offset:{off + (kb*4+s_)*1024}" for s_ in range(4)]
    def vread(reg, off, vg):
        return [f"ds_read_b128 {A(FR(vg,j),4)}, v{reg} offset:{off + ((j & 1)*8 + 2*vg + (j >> 1))*1024}" for j in range(4)]
    def qk_mfmas(par, nq, zero=False):
        out = []
        for kb in range(4):
            grp = []
            for qb in range(nq):
                d = V(Sr(par, qb, kb), 4)
                for s_ in range(4):
                    c = d if s_ else ("0" if zero else V(NEGM + 4 * qb, 4))
                    grp.append(mfma(d, A(FR(kb, s_), 4), A(Q(qb, s_), 4), c))
            out.append(grp)
        return out
    def pv_mfmas(par, nq):
        out = []
        for vg in range(4):
            grp = []
            for dd in range(2):
                for qb in range(nq):
                    for ks in range(2):
                        o = A(O(qb, 2 * vg + dd), 4)
                        grp.append(mfma(o, A(FR(vg, 2 * dd + ks), 4), V(P(par, qb, ks), 4), o))
            if vg < nq:
                for ks in range(2):
                    l = V(LS + 4 * vg, 4)
                    grp.append(mfma(l, V(ONES, 4), V(P(par, vg, ks), 4), l))
            out.append(grp)
        return out
    def sm_pairs(par, nq, ks):
        out = []
        for kq in range(2):
            for qb in range(nq):
                s0 = Sr(par, qb, 2 * ks + kq)
                for h in range(2):
                    out.append((s0 + 2 * h, s0 + 2 * h + 1, P(par, qb, ks) + 2 * kq + h))
        return out
    class SM:
        def __init__(self, pairs, first, check):
            self.pairs = pairs; self.ne = 0; self.nc = 0; self.no = 0; self.first = first
            self.tail = [f"v_and_b32 v{T0}, 0x40004000, v{ORR}", f"v_cmp_ne_u32 vcc, 0, v{T0}"] if check else []
            self.e_done = 0; self.extra = []
        def tick(self): self.e_done = self.ne
        def exp_ready(self): return self.ne < 2 * len(self.pairs) and self.ne // 2 - self.nc < 4
        def exp(self):
            j, h = self.ne // 2, self.ne & 1; self.ne += 1
            return f"v_exp_f32 v{ET + 2*(j % 4) + h}, v{self.pairs[j][h]}"
        def plain_avail(self):
            n = min(self.e_done // 2, len(self.pairs)) - self.nc
            n += self.nc // 2 - self.no
            if self.no == len(self.pairs) // 2: n += len(self.tail)
            return n + len(self.extra)
        def plain(self):
            if self.nc < min(self.e_done // 2, len(self.pairs)):
                j = self.nc; self.nc += 1
                return f"v_cvt_pk_bf16_f32 v{self.pairs[j][2]}, v{ET + 2*(j % 4)}, v{ET + 2*(j % 4) + 1}"
            if self.no < self.nc // 2:
                j = self.no; self.no += 1
                a, b = self.pairs[2 * j][2], self.pairs[2 * j + 1][2]
                if self.first and j == 0: return f"v_or_b32 v{ORR}, v{a}, v{b}"
                return f"v_or3_b32 v{ORR}, v{ORR}, v{a}, v{b}"
            if self.no == len(self.pairs) // 2 and self.tail: return self.tail.pop(0)
            if self.extra: return self.extra.pop(0)
            return None
        def left_exp(self): return 2 * len(self.pairs) - self.ne
        def left_plain(self): return len(self.pairs) - self.nc + len(self.pairs) // 2 - self.no + len(self.tail) + len(self.extra)
        def done(self): return self.left_exp() == 0 and self.left_plain() == 0
        def drain(self):
            while not self.done():
                self.tick()
                if self.exp_ready():
                    k.e(self.exp())
                    if self.exp_ready(): k.e(self.exp())
                    x = self.plain()
                    if x: k.e(x)
                else:
                    k.e(self.plain())
    def phase(groups, gtags, reads, rtags, sm, vm, nexttag):
        total = sum(len(g) for g in groups)
        vmpos = {}
        if vm:
            step = max(2, (total - 2) // len(vm))
            for j, x in enumerate(vm): vmpos[1 + j * step] = x
        n = 0
        k.wait_ds(gtags[0])
        for gi, grp in enumerate(groups):
            rq = list(reads[gi])
            for mi, m in enumerate(grp):
                k.e(m)
                sm.tick()
                scal = []
                if n + 1 in vmpos: scal += vmpos[n + 1][0]
                lastm = mi == len(grp) - 1
                if n in vmpos:
                    for s in scal: k.e(s)
                    k.e(vmpos[n][1], tag='kv')
                    slots = 0
                else:
                    for s in scal: k.e(s)
                    if lastm:
                        nt = gtags[gi + 1] if gi + 1 < len(groups) else nexttag
                        if nt: k.wait_ds(nt)
                    slots = 2
                    gaps_left = len([x for x in range(n, n + len(grp) - mi) if x not in vmpos])
                    want_d = len(rq) > 0 and (sm.plain_avail() > 0 or not sm.exp_ready() or len(rq) >= gaps_left - 1)
                    if want_d:
                        k.e(rq.pop(0), tag=rtags[gi]); slots -= 1
                        if rq and (sm.plain_avail() == 0 or len(rq) >= gaps_left):
                            k.e(rq.pop(0), tag=rtags[gi]); slots -= 1
                    if slots == 2 and sm.exp_ready() and not (sm.plain_avail() >= 3 and not rq):
                        k.e(sm.exp()); slots = 0
                    while slots > 0:
                        x = sm.plain()
                        if not x: break
                        k.e(x); slots -= 1
                if lastm:
                    for s in rq: k.e(s, tag=rtags[gi])
                    nt = gtags[gi + 1] if gi + 1 < len(groups) else nexttag
                    if nt: k.wait_ds(nt)
                n += 1
        sm.drain()

    def mask_block(par, qb):
        vr = VRA if qb & 1 else VRB
        for kb in range(4):
            for r in range(4): k.e(f"v_cmp_gt_i32 s[{56+2*r}:{57+2*r}], {16*kb + r}, v{vr}")
            if kb == 0: k.e("s_nop 3")
            for r in range(4):
                x = Sr(par, qb, kb) + r
                k.e(f"v_cndmask_b32 v{x}, v{x}, v{NINF}, s[{56+2*r}:{57+2*r}]")
    def rowmax(par, qb, d, o=k):
        s0 = Sr(par, qb, 0)
        o.e(f"v_max3_f32 v{d}, v{s0}, v{s0+1}, v{s0+2}")
        for r in range(3, 15, 2): o.e(f"v_max3_f32 v{d}, v{d}, v{s0+r}, v{s0+r+1}")
        o.e(f"v_max_f32 v{d}, v{d}, v{s0+15}")
        o.e(f"v_mov_b32 v{T0}, v{d}")
        o.e(f"v_permlane16_swap_b32 v{T0}, v{d}")
        o.e(f"v_max_f32 v{d}, v{d}, v{T0}")
        o.e(f"v_mov_b32 v{T0}, v{d}")
        o.e(f"v_permlane32_swap_b32 v{T0}, v{d}")
        o.e(f"v_max_f32 v{d}, v{d}, v{T0}")
        o.e(f"v_add_f32 v{d}, {opt.get('moff', '0x41f80000')}, v{d}")
    def fallback(par, nq, nqn):
        k.e("s_nop 7")
        for qb in range(nq):
            rowmax(par, qb, 21)
            k.e("v_max_f32 v21, 0, v21")
            for r in range(16): k.e(f"v_sub_f32 v{Sr(par,qb,0)+r}, v{Sr(par,qb,0)+r}, v21")
            if qb < nqn:
                for r in range(16): k.e(f"v_sub_f32 v{Sr(par^1,qb,0)+r}, v{Sr(par^1,qb,0)+r}, v21")
            for r in range(4): k.e(f"v_sub_f32 v{NEGM+4*qb+r}, v{NEGM+4*qb+r}, v21")
            k.e("v_exp_f32 v22, -v21")
            for r in range(4): k.e(f"v_mul_f32 v{LS+4*qb+r}, v{LS+4*qb+r}, v22")
            for r0 in range(0, 32, 8):
                for r in range(8): k.e(f"v_accvgpr_read_b32 v{ET+r}, a{O(qb,0)+r0+r}")
                for r in range(8): k.e(f"v_mul_f32 v{ET+r}, v{ET+r}, v22")
                for r in range(8): k.e(f"v_accvgpr_write_b32 a{O(qb,0)+r0+r}, v{ET+r}")
        for ks in range(2):
            for (s0, s1, pd) in sm_pairs(par, nq, ks):
                k.e(f"v_exp_f32 v{ET}, v{s0}")
                k.e(f"v_exp_f32 v{ET+1}, v{s1}")
                k.e(f"v_cvt_pk_bf16_f32 v{pd}, v{ET}, v{ET+1}")
        k.e("s_nop 1")
    SPLIT = {4: (32, 16, 8), 3: (36, 18, 9), 2: (17, 8, 4), 1: (16, 8, 4), 0: (0, 0, 0)}
    def tile_sm(par, nq, start, check):
        sm = SM(sm_pairs(par, nq, 0) + sm_pairs(par, nq, 1), True, check)
        sm.ne, sm.nc, sm.no = start; sm.e_done = sm.ne
        return sm
    def pack(ngaps, vmg, dsl, sm, limit, last_sm, pre):
        plan = {}
        dsl = list(dsl)
        def exp_ok(): return sm.exp_ready() and (limit is None or sm.ne < limit[0])
        def plain_n():
            n = min(sm.e_done // 2, len(sm.pairs), limit[1] if limit else 1 << 30) - sm.nc
            n += min(sm.nc // 2, limit[2] if limit else 1 << 30) - sm.no
            if limit is None and sm.no == len(sm.pairs) // 2: n += len(sm.tail)
            return n + len(sm.extra)
        def take_plain():
            if limit is not None:
                c_ok = sm.nc < min(sm.e_done // 2, limit[1]); o_ok = sm.no < min(sm.nc // 2, limit[2])
                if not c_ok and not o_ok: return sm.extra.pop(0) if sm.extra else None
                if not c_ok:
                    keep = sm.e_done; sm.e_done = 2 * sm.nc; x = sm.plain(); sm.e_done = keep; return x
            return sm.plain()
        for g in range(-1 if pre else 0, ngaps):
            if g in vmg: sm.tick(); continue
            sm.tick()
            ops = []
            smok = g <= last_sm
            av = [d for d in dsl if d[2] <= g]
            free_to = lambda dl: len([x for x in range(g, dl + 1) if x not in vmg])
            urgent = any(sum(1 for d in dsl if d[3] <= e[3]) >= 2 * free_to(e[3]) - 1 for e in av)
            pn = plain_n() if smok else 0
            if smok and exp_ok() and not urgent and not (av and pn) and not (pn >= 3):
                ops.append((sm.exp(), None))
            else:
                slots = 2
                if av and g >= 0:
                    d = av.pop(0); dsl.remove(d); ops.append((d[0], d[1])); slots -= 1
                    if av and (pn == 0 or sum(1 for x in dsl if x[3] <= av[0][3]) >= 2 * free_to(av[0][3]) - 1):
                        d = av.pop(0); dsl.remove(d); ops.append((d[0], d[1])); slots -= 1
                while slots and smok:
                    x = take_plain()
                    if not x: break
                    ops.append((x, None)); slots -= 1
                if not ops and smok and exp_ok(): ops.append((sm.exp(), None))
            plan[g] = ops
            if g == last_sm:
                while (limit is None and not sm.done()) or (limit is not None and ((sm.ne, sm.nc, sm.no) != limit or sm.extra)):
                    sm.tick()
                    x = sm.exp() if exp_ok() else take_plain()
                    plan[g].append((x, None)); k.overflow += 1
        assert not dsl, dsl
        return plan
    k.overflow = 0
    SLK = int(opt.get('slk', -1))
    def emit_phase(mf, plan, vmg, scal, bg=None, vtag=None, sbg=None):
        for s_, tg in plan.get(-1, []): k.e(s_, tag=tg)
        for g, m in enumerate(mf):
            k.e(m)
            for x in scal.get(g, []):
                if isinstance(x, tuple) and x[0] == 'u': k.use(x[1])
                elif isinstance(x, tuple) and x[0] == 'call': x[1]()
                elif isinstance(x, tuple): k.wait_ds(x[1])
                elif x.endswith(':'): k.label(x[:-1])
                else: k.e(x)
            if sbg and g > 0 and g not in scal and g not in vmg and sbg.items and sbg.items[0][0] != 'at':
                it = sbg.items.pop(0)
                for x in ([it[1]] if it[0] == 'i' else it[1]): k.e(x)
                if sbg.items[0][0] == 'i' and len(plan.get(g, [])) < 2: k.e(sbg.items.pop(0)[1])
            if g in vmg: k.e(vmg[g], tag=(vtag if ('s39' in vmg[g] or ' s3 ' in vmg[g]) else None))
            else:
                for s_, tg in plan.get(g, []): k.e(s_, tag=tg)
                if bg and not plan.get(g) and g not in scal: bg.fill(k, 99, 3)
    p4s = p4_setup(opt)
    def starts(groups):
        out = [0]
        for g in groups: out.append(out[-1] + len(g))
        return out
    def iteration(par, nq, nqn, mask, name, tail):
        kreg, koff = (VX, 32768) if par == 0 else (VY, 0)
        vreg, voff = (VX, 16384) if par == 0 else (VX, 49152)
        nreg, noff = (VY, 0) if par == 0 else (VY, 32768)
        last = nqn == 1
        k.hot = nqn >= 2
        ov0 = k.overflow
        fb, fr = f"L_k2_fb_{name}", f"L_k2_fbr_{name}"
        ool.append((fb, lambda: fallback(par, nq, nqn), fr))
        sm = tile_sm(par, nq, SPLIT[nq], True)
        if par == 0:
            k.e(f"v_xor_b32 v{VX}, 65536, v{VX}")
            k.e(f"v_xor_b32 v{VY}, 65536, v{VY}")
        if nqn:
            k.dq = ['k1'] * 4
            if nq == 4 and WARM: sm.extra = ["v_lshl_add_u64 v[28:29], s[40:41], 0, v[28:29]"]
            grp = qk_mfmas(par ^ 1, nqn); st_ = starts(grp); n1 = st_[-1]
            slack = SLK if nqn <= 2 else 4
            dsl = [(x, 'k2', 0, st_[1] + slack) for x in kread(kreg, koff, 2)] + [(x, 'k3', 0, st_[2] + slack) for x in kread(kreg, koff, 3)] + \
                  [(x, 'v0', st_[1], st_[3] + slack) for x in vread(vreg, voff, 0)] + [(x, 'v1', st_[2], n1 - 1) for x in vread(vreg, voff, 1)]
            scal = {}
            add = lambda g, xs: scal.setdefault(g, []).extend(xs)
            add(st_[1] - 1, [('w', 'k1')]); add(st_[2] - 1, [('w', 'k2')]); add(st_[3] - 1, [('w', 'k3')])
            vmw = f"s_waitcnt vmcnt({12 + min(int(opt.get('fp1', 4)), 3)})" if last else "s_waitcnt vmcnt(12)"
            if nq == 2:
                add(n1 - 7, ["s_cmp_lt_u32 s37, s52"])
                add(n1 - 6, [f"s_cbranch_scc1 L_nw_{name}", vmw, f"L_nw_{name}:"])
            else:
                add(n1 - 5, [vmw])
            if mask and mask[1]: add(n1 - 4, [f"s_cmp_eq_u32 s37, s{mask[1]}"])
            add(n1 - 3, ([] if 'nochk' in opt else [('u', f'V{par}'), ('u', 'c19' if par == 0 else 'c21'), ('u', 'c20' if par == 0 else 'c22')]) + ["s_barrier"]); add(n1 - 2, [('w', 'v0')]); add(n1 - 1, [f"s_cbranch_vccnz {fb}", fr + ":"])
            vmg = {}
            if last:
                fops = ffn_issue()
                for q in (1, 5, 8, 12)[:int(opt.get('fp1', 4))]:
                    pre, ld = fops.pop(0)
                    vmg[q] = ld; scal.setdefault(q - 1, []).extend(pre)
            else:
                step = (n1 - 8) / 4
                for j in range(4):
                    q = int(1 + j * step)
                    while q in scal or (j == 0 and q - 1 in scal): q += 1
                    vmg[q] = f"buffer_load_dwordx4 v{VDMA}, s[12:15], s38 offen offset:{j*1024}{kv_ld} lds"
                    if j == 0: scal[q - 1] = ["s_mov_b32 m0, s53" if par == 0 else "s_add_u32 m0, s53, 32768"]
            plan = pack(n1, vmg, dsl, sm, None, n1 - 2, par == 1)
            emit_phase(sum(grp, []), plan, vmg, scal, None, 'ffn')
        else:
            k.dq = ['v1'] * 4
            sm.drain()
            k.e(f"s_cbranch_vccnz {fb}")
            k.label(fr)
        grp = pv_mfmas(par, nq); st_ = starts(grp); n2 = st_[-1]
        slack = SLK if nq <= 2 else 4
        dsl = [(x, 'v2', 0, st_[1] + slack) for x in vread(vreg, voff, 2)] + [(x, 'v3', 0, st_[2] + slack) for x in vread(vreg, voff, 3)]
        scal = {st_[1] - 1: [('w', 'v1')], st_[2] - 1: [('w', 'v2')], st_[3] - 1: [('w', 'v3')]}
        vmg = {}
        if nqn:
            nx = [vread(VX, 49152, 0), vread(VX, 49152, 1)] if last else [kread(nreg, noff, 0), kread(nreg, noff, 1)]
            dsl += [(x, 'k0', st_[1], st_[3] + slack - 1) for x in nx[0]] + [(x, 'k1', st_[2], n2 - 2) for x in nx[1]]
            if mask:
                mb, mr = f"L_k2_mk_{name}", f"L_k2_mkr_{name}"
                if mask[1]: scal[0] = [f"s_cbranch_scc1 {mb}", mr + ":"]
                else: scal[0] = [('call', lambda: mask_block(par ^ 1, mask[0]))]
            scal[n2 - 2] = [('w', 'k0')]
            if tail: scal[n2 - 3] = [tail[0]]; scal[n2 - 1] = [tail[1]]
            def put(x, lo):
                q = lo
                while q in scal or q in vmg: q += 1
                assert q < n2 - 3, (x, q)
                scal[q] = [x]
            if last:
                for j, (pre, ld) in enumerate(fops):
                    q = 2 + (j * (n2 - 4)) // len(fops)
                    vmg[q] = ld
                    scal.setdefault(q - 1, []).extend(pre)
                    if q in scal: scal[q - 1].extend(scal.pop(q))
            else:
                mv = "s_add_u32 m0, s54, 49152" if par == 0 else "s_add_u32 m0, s53, 16384"
                vm = [f"buffer_load_dwordx4 v{VDMA}, s[12:15], s39 offen offset:{j*1024}{kv_ld} lds" for j in range(4)]
                if nq == 4 and WARM: vm.append("global_load_dword v30, v[28:29], off")
                step = (n2 - 4) / len(vm)
                pos = []
                for j in range(len(vm)):
                    q = int(2 + j * step)
                    while q in scal or q in vmg or (j == 0 and q - 1 in scal): q += 1
                    vmg[q] = vm[j]; pos.append(q)
                    if j == 0: scal[q - 1] = [mv]
                if name == "ne":
                    q = 3
                    while any(x in scal or x in vmg for x in (q, q + 1)): q += 1
                    scal[q] = ["s_cmp_eq_u32 s37, s52"]; scal[q + 1] = ["s_cbranch_scc1 L_pubB", "L_pubBr:"]
                    put("s_add_u32 s37, s37, 1", q + 2)
                else:
                    put("s_add_u32 s37, s37, 1", 1)
                put(f"s_add_u32 s38, s38, {KV_TILE}", 1)
                if par == 1:
                    put("s_xor_b32 s53, s53, 65536", pos[0]); put("s_xor_b32 s54, s54, 65536", pos[0])
                put(f"s_add_u32 s39, s39, {KV_TILE}", pos[3] + 1)
        sm = tile_sm(par ^ 1, nqn, (0, 0, 0), False)
        lastg = n2 - 2 if nqn else n2 - 1
        while lastg in vmg: lastg -= 1
        plan = pack(n2 - 1 if nqn else n2, vmg, dsl, sm, SPLIT[nqn], lastg, False)
        emit_phase(sum(grp, []), plan, vmg, scal, None if nqn else p4s, 'ffn' if last else f'V{par}', p4s if last else None)
        print(f"iteration {name}: overflow ops {k.overflow - ov0}")
        k.hot = False
    def epilogue(q0, srow):
        k.e(f"s_lshl_b32 s3, s{srow}, 20")
        k.e("s_lshl_b32 s47, s33, 15")
        k.e("s_add_u32 s3, s3, s47")
        k.e("s_lshl_b32 s47, s32, 10")
        k.e("v_lshlrev_b32 v248, 4, v0")
        k.e("v_add_u32 v249, s47, v248")
        k.e("s_sub_u32 s47, 7168, s47")
        k.e("v_add_u32 v248, s47, v248")
        for qq in range(2):
            k.e(f"v_rcp_f32 v{250+2*qq}, v{LS+4*(q0+qq)}")
        for qq in range(2):
            k.e(f"v_mov_b32 v{251+2*qq}, v{250+2*qq}")
        for s_ in range(4):
            for qq in (1, 0):
                o = O(q0 + qq, 2 * s_)
                d = 24 + 4 * qq
                for r in range(8): k.e(f"v_accvgpr_read_b32 v{240+r}, a{o+r}")
                for r in range(0, 8, 2): k.e(f"v_pk_mul_f32 {V(240+r,2)}, {V(240+r,2)}, {V(250+2*qq,2)}")
                for r in range(4): k.e(f"v_cvt_pk_bf16_f32 v{d+r}, v{240+2*r}, v{240+2*r+1}")
                k.e(f"buffer_store_dwordx4 {V(d,4)}, v{248+qq}, s[16:19], s3 offen{opt.get('ctx_st',' sc1')}")
            if s_ < 3: k.e("s_add_u32 s3, s3, 8192")

    for kb in range(2, 4):
        for s in kread(VY, 0, kb): k.e(s, tag=f'k{kb}')
    def first_max(o, qb):
        rowmax(0, qb, 22, o)
        if PKM:
            o.e("v_sub_f32 v22, 0, v22"); o.e("v_mov_b32 v23, v22")
            for r in range(0, 16, 2): o.e(f"v_pk_add_f32 {V(Sr(0,qb,0)+r,2)}, {V(Sr(0,qb,0)+r,2)}, v[22:23]")
            for r in range(4): o.e(f"v_mov_b32 v{NEGM+4*qb+r}, v22")
        else:
            for r in range(16): o.e(f"v_sub_f32 v{Sr(0,qb,0)+r}, v{Sr(0,qb,0)+r}, v22")
            for r in range(4): o.e(f"v_sub_f32 v{NEGM+4*qb+r}, 0, v22")
    c = b2
    c.items += conv_items(2) + conv_items(3) + zrest
    for r in list(range(XR(30, 0), XR(30, 0) + 16)) + list(range(XR(31, 0), XR(31, 0) + 16)): c.e(f"v_accvgpr_write_b32 a{r}, 0")
    for r in range(4): c.e(f"v_mov_b32 v{ONES+r}, 0x3f803f80")
    c.e(f"v_mov_b32 v{NINF}, 0xff800000")
    first_max(c, 0); first_max(c, 1)
    for qb in range(4):
        while any(it[0] == 'mark' and it[1] == f'conv{qb}' for it in c.items): c.fill(k, 99, 2)
        for kb in range(4):
            k.wait_ds(f'k{kb}')
            if qb == 3 and kb == 2:
                k.e(f"s_waitcnt vmcnt({min(k.vm_n('c18'), k.vm_n('c17'))})")
                assert k.vm_n('wts') is None
                k.use('c17'); k.use('c18')
                k.e("s_barrier")
                if WOT:
                    k.e("s_mov_b64 exec, 1")
                    k.e("buffer_store_dword v24, v25, s[20:23], s52 offen sc1")
                    k.e("s_mov_b64 exec, -1")
                k.e("s_add_u32 s53, s44, 65536")
                if TK:
                    k.e("v_mov_b32 v27, 1")
                    k.e("v_mov_b32 v26, 0")
                    k.e("s_cmp_eq_u32 s32, 0")
                    k.e("s_cselect_b32 s3, 128, s64")
                    k.e("s_mov_b64 exec, 1")
                    k.e("buffer_atomic_add v27, v26, s[28:31], s3 offen sc0 sc1")
                    k.e("s_mov_b64 exec, -1")
            for s_ in range(4):
                d = V(Sr(0, qb, kb), 4)
                k.e(mfma(d, A(FR(kb, s_), 4), A(Q(qb, s_), 4), d if s_ else "0"))
                if qb == 3 and kb >= 2: k.e(kread(VY, 32768, kb - 2)[s_], tag=f'n{kb-2}')
                c.fill(k, 99, int(opt.get('pslots', 4)))
    c.drain(k)
    k.e(f"s_mov_b32 s38, {4*KV_TILE}")
    k.e(f"s_mov_b32 s39, {3*KV_TILE + KV_CH}")
    k.e("s_cmp_lg_u32 s34, 0")
    k.e("s_cbranch_scc1 L_k2_nomask0")
    mask_block(0, 3)
    k.label("L_k2_nomask0")
    k.e("s_mov_b32 s37, 0")
    first_max(k, 2); first_max(k, 3)
    SM(sm_pairs(0, 4, 0), True, False).drain()
    k.e("s_waitcnt lgkmcnt(4)")
    k.stamp(ST or SA)

    k.e("s_cmp_eq_u32 s34, 0")
    k.e("s_cbranch_scc1 L_k2_wlast")
    k.e("s_branch L_k2_wloop")
    for nm, qb in (("wo", 3), ("tr", 1), ("no", 1)):
        k.label(f"L_k2_mk_{nm}"); k.win = []
        mask_block(0, qb)
        k.e(f"s_branch L_k2_mkr_{nm}")
    k.label("L_pubB"); k.win = []
    k.e("v_mov_b32 v24, 1"); k.e("v_mov_b32 v25, 0")
    k.e("s_mov_b64 exec, 1")
    k.e("buffer_store_dword v24, v25, s[20:23], s64 offen sc1")
    k.e("s_mov_b64 exec, -1")
    k.e("s_branch L_pubBr")
    k.label("L_k2_wloop")
    iteration(0, 4, 4, None, "we", [])
    iteration(1, 4, 4, (3, 46), "wo", ["s_cmp_lg_u32 s37, s35", "s_cbranch_scc1 L_k2_wloop"])
    k.label("L_k2_wlast")
    iteration(0, 4, 3, (2, None), "wl", [])
    iteration(1, 3, 2, (1, 45), "tr", [])
    k.stamp(SA)
    if '4' in CPF: emit(code_prefetch("L_k2_fin", "L_p4_end", 32, 56, 160, 164))
    k.e("s_waitcnt vmcnt(9)")
    if TK:
        k.e("v_mov_b32 v26, 131072")
        k.e("s_cmp_lg_u32 s32, 0")
        k.e("s_cbranch_scc1 L_notk")
        k.e("s_mov_b64 exec, 1")
        k.e("ds_write_b32 v26, v27")
        k.e("s_mov_b64 exec, -1")
        k.e("s_waitcnt lgkmcnt(0)")
        k.label("L_notk")
        k.e("s_barrier")
        k.e("ds_read_b32 v23, v26")
    epilogue(2, 34)
    k.e("s_add_u32 s52, s37, 2")
    k.raw(";@b:2")
    for s in p4_ptr_loads(): k.e(s)
    k.e("s_waitcnt vmcnt(8) lgkmcnt(0)")
    if TK: k.e("v_readfirstlane_b32 s93, v23")
    else:
        k.e("s_add_u32 s93, s2, 224")
        k.e("s_and_b32 s93, s93, 255")
    k.e("s_nop 0")
    k.e("s_mul_i32 s92, s93, 2341")
    k.e("s_lshr_b32 s92, s92, 16")
    k.e("s_mul_i32 s47, s92, 28")
    k.e("s_sub_u32 s4, s93, s47")
    k.e(f"s_mul_i32 s5, s92, {128*7168}")
    k.e("s_lshl_b32 s47, s4, 8")
    k.e("s_add_u32 s5, s5, s47")
    k.stamp(SA)
    k.e("s_cmp_eq_u32 s34, 7")
    k.e("s_cbranch_scc1 L_k2_fin")
    k.label("L_k2_nloop")
    nl0 = len(k.lines)
    iteration(0, 2, 2, None, "ne", [])
    iteration(1, 2, 2, (1, 45), "no", ["s_cmp_lg_u32 s37, s36", "s_cbranch_scc1 L_k2_nloop"])
    if 'dbg_drop' in opt:
        drop = opt['dbg_drop'].split(',')
        k.lines[nl0:] = [x for x in k.lines[nl0:] if not any(d in x and not x.endswith(':') for d in drop)]
    k.label("L_k2_fin")
    k.stamp(SA)
    iteration(0, 2, 1, (0, None), "nl", [])
    iteration(1, 1, 0, None, "fi", [])
    k.stamp(ST or SA)
    k.e("s_nop 7")
    epilogue(0, 55)
    k.stamp(SA)
    k.e("s_cmp_ge_u32 s93, 224")
    k.e("s_cbranch_scc1 L_noffn")
    ffn_finish()
    k.label("L_noffn")
    p4s.drain(k)
    k.stamp(SA)
    k.e("v_mov_b32 v24, 1")
    k.e("v_mul_u32_u24 v25, s65, v0")
    k.e("s_waitcnt vmcnt(0)")
    k.e("s_barrier")
    k.e("s_mov_b64 exec, 3")
    k.e("buffer_store_dword v24, v25, s[20:23], s64 offen sc1")
    k.e("s_mov_b64 exec, -1")
    ffn_store()
    k.stamp(ST or SA)
    phase4(k, opt, ool, ST, SA)
    k.stamp_dump('stamp' in opt, 66, 0, 32)
    if 'hold' in opt:
        k.e("s_lshl_b32 s3, s32, 8")
        k.e("s_or_b32 s3, s2, s3")
        k.e(f"s_cmp_lg_u32 s3, {opt.get('holdwg', 0)}")
        if opt.get('holdwg') != '999': k.e("s_cbranch_scc1 L_k2_end")
        k.label("L_hold")
        k.e("s_memrealtime s[4:5]")
        k.e("s_waitcnt lgkmcnt(0)")
        k.e(f"s_sub_u32 s3, s4, s{73 + 2 * int(opt.get('holdk', 0))}")
        k.e(f"s_cmp_lt_u32 s3, {int(opt['hold']) * 100}")
        k.e("s_cbranch_scc1 L_hold")
    k.label("L_k2_end")
    k.e("s_endpgm")
    hotool = [x for x in ool if x[0].startswith(("L_f2", "L_c3", "L_spinC", "L_yA", "L_yB", "L_yC"))]
    for lab, fn, ret in hotool + [("L_p4_end", None, None)] + [x for x in ool if x not in hotool]:
        k.label(lab)
        if fn is None: continue
        k.win = []; k.dq = []
        fn()
        k.e(f"s_branch {ret}")
    return k.wrap(256, 256), f"; @launch {'kernel=' + KNAME + ' ' if 'aslist' in opt else ''}grid=(256,1,1) block=(256,1,1) lds={K12_LDS}"
```

```python
from fw import *
from layout import *
import p4, p4b, p4c
KNAME = 'recurrent_scan__compressed_kv_cla__moe_arch_mod__prompt_kernel'

K12_LDS = 163840
QSCALE = 0x3e0293ee
BIG = 0x7ff00000

def gen_k12(opt):
    k = Asm(KNAME)
    k.short = "f"
    P4 = {'0': p4, '1': p4b, '2': p4c}[opt.get('s2', '2')]
    p4_ptr_loads, p4_setup, phase4 = P4.p4_ptr_loads, P4.p4_setup, P4.phase4
    ST = opt.get('stamp') == '1'
    S1 = opt.get('stamp') == 'p1'
    S2 = opt.get('stamp') == 'p2'
    SA = opt.get('stamp') == 'a'
    S0 = opt.get('stamp') == 'p0'
    w_ld, a_ld, x_ld = opt.get('w_ld', ''), opt.get('a_ld', ''), opt.get('x_ld', '')
    wq_ld, kv_ld, ffn_ld = opt.get('wq_ld', ''), opt.get('kv_ld', ' sc1'), opt.get('ffn_ld', '')
    MAP = int(opt.get('map', 4))
    WOT = opt.get('wot', '0') == '1'
    TK = opt.get('tk', '0') == '1'
    VOA, VOW, AD, PFO = 2, 6, 10, 47
    AA = [[10, 11], [12, 13]]
    WA = [list(range(16, 24)), [14, 15] + list(range(24, 30))]
    FA = lambda it, ks: 224 + (it % 4) * 8 + 4 * ks
    FW = lambda buf, jd, ks: 64 * buf + 8 * jd + 4 * ks
    def frag_of(isV, it, jd):
        return ((it >> 1) * 8 + jd, it & 1) if isV else (it * 4 + (jd >> 1), jd & 1)
    SRC = lambda n: ('v', 48 + 8 * n) if n < 26 else ('a', 128 + 8 * (n - 26))
    def acc(isV, it, jd):
        n, h = frag_of(isV, it, jd)
        p, r = SRC(n)
        return R(p, r + 4 * h, 4)
    PK = lambda n: 24 + 4 * (n if n < 26 else n - 26)
    VX, VY, VDMA, VRA, VRB, ORR, T0 = 2, 3, 4, 5, 6, 7, 1
    WV, XV, TA = 8, 10, 16
    ET = 8
    ONES, NINF = 16, 20
    NEGM, LS, PB, SB = 32, 48, 64, 128
    P = lambda par, qb, ks: PB + 32 * par + (qb * 2 + ks) * 4
    Sr = lambda par, qb, kb: SB + 64 * par + (qb * 4 + kb) * 4
    O = lambda qb, db: (qb * 8 + db) * 4
    Q = lambda qb, s: 128 + (qb * 4 + s) * 4
    FR = lambda grp, j: 192 + 16 * grp + 4 * j
    QA = lambda db, qb: 128 + (qb * 8 + db) * 4
    XR = lambda kk, qb: ((kk % 8) * 4 + qb) * 4
    P2C = opt.get('p2ch', '0') == '1'
    WF = lambda ks, db: 192 + db * 8 + ks * 4 if P2C else 192 + ks * 32 + db * 4

    k.e("s_cmp_ge_u32 s2, 256")
    k.e("s_cbranch_scc1 L_k2_end")
    k.stamp(ST or S0)
    k.e("s_load_dwordx4 s[4:7], s[0:1], 0")
    k.e("s_load_dwordx2 s[44:45], s[0:1], 56")
    k.e("s_load_dwordx4 s[40:43], s[0:1], 24")
    k.e("s_load_dwordx4 s[64:67], s[0:1], 96")
    k.e("v_lshrrev_b32 v1, 6, v0")
    k.e("v_and_b32 v0, 63, v0")
    k.e("v_readfirstlane_b32 s32, v1")
    def emit(lst, o=None):
        for x in lst:
            if x.endswith(':'): k.label(x[:-1])
            else: k.e(x, tag='cpf')
    CPF = opt.get('cpf', '12346')
    if '1' in CPF: emit(code_prefetch(KNAME, "L_k2_fin", 32, 68, 120, 124))
    k.e("v_lshrrev_b32 v33, 5, v0")
    k.e("v_and_b32 v31, 31, v0")
    k.e("v_lshlrev_b32 v36, 4, v31")
    k.e("v_lshl_add_u32 v35, v33, 11, v36")
    k.e("s_lshl_b32 s36, s2, 14")
    k.e("s_lshl_b32 s37, s32, 12")
    k.e("s_add_u32 s36, s36, s37")
    k.e("s_mov_b32 s18, 4194304")
    k.e("s_mov_b32 s19, 0x20000")
    k.e("s_bfe_u32 s33, s2, 0x30003")
    k.e("s_lshr_b32 s35, s2, 7")
    k.e("s_bfe_u32 s3, s2, 0x10006")
    k.e("s_and_b32 s34, s2, 7")
    k.e("s_lshl_b32 s34, s34, 1")
    k.e("s_add_u32 s34, s34, s3")
    k.e("s_waitcnt lgkmcnt(0)")
    k.stamp(S0)
    k.e("s_mov_b32 s16, s4")
    k.e("s_and_b32 s17, s5, 0xffff")
    XP, WR, XF = 48, 64, 80
    for i in range(4):
        k.e(f"buffer_load_dwordx4 {V(XP+4*i,4)}, v35, s[16:19], s36 offen offset:{i*512}{x_ld}", tag='x')
    k.e("s_cmp_eq_u32 s35, 0")
    k.e("s_cselect_b32 s40, s40, s42")
    k.e("s_cselect_b32 s41, s41, s43")
    k.e("s_lshl_b32 s3, s34, 9")
    k.srd(12, 40, 0, "s3")
    k.e("s_sub_u32 s14, 4194304, s3")
    k.e("s_lshl_b32 s3, s33, 18")
    k.srd(8, 6, 262144, "s3")
    KX = int(opt.get('kx', 7))
    k.e(f"s_and_b32 s58, s2, {KX}")
    def dma_ops(buf):
        ops = []
        for (base, vo, so, srd, fl) in ((57, VOW, 52, 12, w_ld), (56, VOA, 48, 8, a_ld)):
            for hi in range(2):
                ops.append(('s', f"s_add_u32 m0, s{base}, {buf*65536 + hi*4096}"))
                for lo in range(4):
                    ops.append(('g', f"buffer_load_dwordx4 v{vo + (lo&1) + 2*hi}, {S(srd,4)}, s{so+lo} offen offset:{lo*1024}{fl} lds"))
        return ops
    def adv_ops(j):
        x = j ^ (j + 1)
        return [f"v_xor_b32 v{VOW+q}, {x << 19}, v{VOW+q}" for q in range(4)] + [f"v_xor_b32 v{VOA+q}, {x << 7}, v{VOA+q}" for q in range(4)]
    PF0 = int(opt.get('pf0', 2))
    pfc = [PF0]
    def pf_ops():
        j = pfc[0]; pfc[0] += 1
        return [f"buffer_load_dword v1, v{PFO}, s[60:63], 0 offen{opt.get('pf_ld', '')}",
                f"s_mul_i32 vcc_lo, s59, {(j ^ (j + 1)) & 7}", f"v_xor_b32 v{PFO}, vcc_lo, v{PFO}"]
    def setup_P():
        k.e("s_cmp_lt_u32 s32, 2")
        for j in range(3): k.e(f"s_cselect_b32 s{60+j}, s{8+j}, s{12+j}")
        k.e("s_mov_b32 s63, 0x20000")
        k.e(f"s_mov_b32 s59, {64*8192}")
        k.e("s_cselect_b32 s59, 128, s59")
        k.e("s_cselect_b64 vcc, -1, 0")
        k.e("s_cselect_b32 s38, 32, 16")
        k.e("s_lshr_b32 s3, s2, 6")
        k.e("s_cmp_lt_u32 s32, 2")
        k.e("s_cselect_b32 s3, s3, s33")
        k.e("s_lshl_b32 s3, s3, 1")
        k.e("s_and_b32 s39, s32, 1")
        k.e("s_add_u32 s3, s3, s39")
        k.e("s_lshl_b32 s3, s3, 15")
        k.e(f"s_xor_b32 s39, s58, {PF0}")
        k.e("s_mul_i32 s39, s39, s59")
        k.e("s_add_u32 s3, s3, s39")
        k.e("v_lshlrev_b32 v37, 10, v0")
        k.e("v_lshrrev_b32 v38, 2, v0")
        k.e("v_lshlrev_b32 v38, 13, v38")
        k.e("v_and_b32 v39, 3, v0")
        k.e("v_lshl_add_u32 v38, v39, 7, v38")
        k.e(f"v_cndmask_b32 v{PFO}, v38, v37, vcc")
        k.e(f"v_add_u32 v{PFO}, s3, v{PFO}")
        k.e("v_cmp_gt_u32 vcc, s38, v0")
        k.e(f"v_mov_b32 v37, {BIG}")
        k.e(f"v_cndmask_b32 v{PFO}, v37, v{PFO}, vcc")
    def setup_W():
        for j in range(4): k.e(f"s_mov_b32 s{52+j}, {j*15360}")
        k.e("s_lshl_b32 s57, s32, 13")
        k.e("s_add_u32 s56, s57, 32768")
        k.e("s_lshl_b32 s3, s58, 2")
        k.e("s_add_u32 s3, s3, s32")
        k.e("s_lshl_b32 s3, s3, 4")
        k.e("v_add_u32 v30, s3, v33")
        k.e("v_lshlrev_b32 v30, 13, v30")
        k.e("v_lshlrev_b32 v34, 5, v33")
        k.e("v_xor_b32 v34, v34, v36")
        k.e(f"v_add_u32 v{VOW}, v34, v30")
        k.e(f"v_xor_b32 v{VOW+1}, 64, v{VOW}")
        k.e(f"v_xor_b32 v{VOW+2}, {8*8192 + 128}, v{VOW}")
        k.e(f"v_xor_b32 v{VOW+3}, {8*8192 + 192}, v{VOW}")
    def setup_A():
        for j in range(4): k.e(f"s_mov_b32 s{48+j}, {j*7168}")
        k.e("v_lshrrev_b32 v30, 3, v0")
        k.e("v_lshlrev_b32 v30, 10, v30")
        k.e("s_lshl_b32 s3, s32, 16")
        k.e("s_lshl_b32 s39, s58, 7")
        k.e("s_add_u32 s3, s3, s39")
        k.e("v_and_b32 v31, 7, v0")
        k.e("v_lshrrev_b32 v32, 4, v0")
        k.e("v_xor_b32 v31, v31, v32")
        k.e("v_lshl_add_u32 v30, v31, 4, v30")
        k.e(f"v_add_u32 v{VOA}, s3, v30")
        k.e(f"v_xor_b32 v{VOA+1}, 64, v{VOA}")
        k.e(f"v_xor_b32 v{VOA+2}, 32768, v{VOA}")
        k.e(f"v_xor_b32 v{VOA+3}, {32768 + 64}, v{VOA}")
    def setup_D():
        k.srd(20, 66, 8 << 20)
        k.srd(24, 66, 32 * KV_HEAD, WS_KV)
        k.e("v_lshrrev_b32 v32, 4, v0")
        k.e("v_and_b32 v30, 15, v0")
        k.e("s_lshr_b32 s3, s32, 1")
        k.e("s_lshl_b32 s3, s3, 14")
        k.e("s_add_u32 s3, s3, 32768")
        k.e("v_lshlrev_b32 v31, 7, v30")
        k.e("v_add_u32 v31, s3, v31")
        k.e("v_lshrrev_b32 v34, 1, v30")
        k.e("v_xor_b32 v34, v34, v32")
        k.e(f"v_lshl_add_u32 v{AA[0][0]}, v34, 4, v31")
        k.e(f"v_xor_b32 v{AA[0][1]}, 64, v{AA[0][0]}")
        k.e("v_lshrrev_b32 v30, 2, v30")
        k.e("v_lshl_add_u32 v31, v32, 3, v30")
        k.e("v_lshlrev_b32 v31, 9, v31")
        k.e("v_and_b32 v34, 3, v0")
        k.e("v_lshl_add_u32 v31, v34, 3, v31")
        k.e("s_and_b32 s3, s32, 1")
        k.e("s_lshl_b32 s3, s3, 8")
        k.e("v_add_u32 v31, s3, v31")
        k.e("v_and_b32 v34, 1, v32")
        k.e("v_lshl_add_u32 v30, v34, 2, v30")
        k.e(f"v_lshl_add_u32 v{WA[0][0]}, v30, 5, v31")
        for jj in range(1, 8): k.e(f"v_xor_b32 v{WA[0][jj]}, {jj*32}, v{WA[0][0]}")
        for x0, x1 in zip(AA[0] + WA[0], AA[1] + WA[1]): k.e(f"v_add_u32 v{x1}, 65536, v{x0}")
    def act(seq):
        for x in seq.split(','):
            if not x: continue
            if x in 'PWAD': {'P': setup_P, 'W': setup_W, 'A': setup_A, 'D': setup_D}[x]()
            elif x == 'p':
                for s in pf_ops(): k.e(s, tag='pf')
            elif x == 'r':
                k.srd(28, 44, 2048)
                for i in range(4):
                    k.e(f"buffer_load_dwordx4 {V(WR+4*i,4)}, v36, s[28:31], 0 offen offset:{i*512}", tag='wr')
            else:
                st = int(x[1]); h = 0 if x[0] == 'w' else 1
                for t, s in dma_ops(st)[10*h:10*h+10]: k.e(s, tag=x + 'd')
                for s in adv_ops(st)[4*h:4*h+4]: k.e(s)
    PRO = opt.get('pro', 'W,w0,A,P,D,r/a0///').split('/')
    act(PRO[0])
    k.stamp(S0)
    def sum32(v, t):
        for m in ["quad_perm:[1,0,3,2]", "quad_perm:[2,3,0,1]", "row_half_mirror", "row_mirror"]:
            k.e(f"v_add_f32_dpp v{v}, v{v}, v{v} {m} row_mask:0xf bank_mask:0xf")
        k.e(f"v_mov_b32 v{t}, v{v}")
        k.e(f"v_permlane16_swap_b32 v{t}, v{v}")
        k.e(f"v_add_f32 v{v}, v{v}, v{t}")
    k.wait_vm('x')
    k.stamp(S0)
    for i in range(16):
        k.e(f"v_lshlrev_b32 v{XF+2*i}, 16, v{XP+i}")
        k.e(f"v_and_b32 v{XF+2*i+1}, 0xffff0000, v{XP+i}")
    k.e(f"v_pk_add_f32 v[40:41], {V(XF,2)}, {V(XF+2,2)}")
    k.e(f"v_pk_add_f32 v[42:43], {V(XF+4,2)}, {V(XF+6,2)}")
    for i in range(4, 16):
        d = 40 + 2 * (i & 1)
        k.e(f"v_pk_add_f32 {V(d,2)}, {V(d,2)}, {V(XF+2*i,2)}")
    k.e("v_pk_add_f32 v[40:41], v[40:41], v[42:43]")
    k.e("v_add_f32 v38, v40, v41")
    sum32(38, 37)
    k.stamp(S0)
    act(PRO[1])
    k.e("v_mul_f32 v38, 0xba800000, v38")
    k.e("v_mov_b32 v39, v38")
    T = 112
    for i in range(16):
        k.e(f"v_pk_add_f32 {V(T+2*(i&3),2)}, {V(XF+2*i,2)}, v[38:39]")
        d = 40 + 2 * (i & 1)
        if i < 2: k.e(f"v_pk_mul_f32 {V(d,2)}, {V(T+2*(i&3),2)}, {V(T+2*(i&3),2)}")
        else: k.e(f"v_pk_fma_f32 {V(d,2)}, {V(T+2*(i&3),2)}, {V(T+2*(i&3),2)}, {V(d,2)}")
    k.e("v_pk_add_f32 v[40:41], v[40:41], v[42:43]")
    k.e("v_add_f32 v40, v40, v41")
    sum32(40, 37)
    act(PRO[2])
    k.stamp(S0)
    k.e("v_mul_f32 v40, 0x3a800000, v40")
    k.e("v_cvt_pk_bf16_f32 v44, v38, v40")
    k.e("v_lshlrev_b32 v38, 16, v44")
    k.e("v_and_b32 v40, 0xffff0000, v44")
    k.e("v_add_f32 v40, 0x3727c5ac, v40")
    k.e("v_cvt_pk_bf16_f32 v44, v40, v40")
    k.e("v_lshlrev_b32 v40, 16, v44")
    k.e("v_sqrt_f32 v40, v40")
    k.e("v_mov_b32 v39, v38")
    k.e("v_cvt_pk_bf16_f32 v44, v40, v40")
    k.e("v_lshlrev_b32 v44, 16, v44")
    k.e("v_rcp_f32 v40, v44")
    for i in range(16):
        k.e(f"v_pk_add_f32 {V(XF+2*i,2)}, {V(XF+2*i,2)}, v[38:39]")
    k.e("v_fma_f32 v45, -v44, v40, 1.0")
    k.e("v_fma_f32 v40, v45, v40, v40")
    k.e("v_mov_b32 v41, v40")
    for i in range(16):
        k.e(f"v_cvt_pk_bf16_f32 v{XP+i}, v{XF+2*i}, v{XF+2*i+1}")
    for i in range(16):
        k.e(f"v_lshlrev_b32 v{XF+2*i}, 16, v{XP+i}")
        k.e(f"v_and_b32 v{XF+2*i+1}, 0xffff0000, v{XP+i}")
    for i in range(16):
        k.e(f"v_pk_mul_f32 {V(XF+2*i,2)}, {V(XF+2*i,2)}, v[40:41]")
    for i in range(16):
        k.e(f"v_cvt_pk_bf16_f32 v{XP+i}, v{XF+2*i}, v{XF+2*i+1}")
    k.e("s_mul_i32 s3, s32, 4128")
    k.e("s_add_u32 s3, s3, 131072")
    k.e("v_mul_u32_u24 v42, 2064, v33")
    k.e("v_add3_u32 v42, v42, v36, s3")
    for i in range(4):
        k.e(f"ds_write_b128 v42, {V(XP+4*i,4)} offset:{i*512}")
    act(PRO[3])
    k.stamp(S0)
    k.wait_vm('wr')
    k.stamp(S0)
    for i in range(16):
        k.e(f"v_lshlrev_b32 v{XF+2*i}, 16, v{XP+i}")
        k.e(f"v_and_b32 v{XF+2*i+1}, 0xffff0000, v{XP+i}")
        k.e(f"v_lshlrev_b32 v{T+2*(i&3)}, 16, v{WR+i}")
        k.e(f"v_and_b32 v{T+2*(i&3)+1}, 0xffff0000, v{WR+i}")
        d = 42 + 2 * (i & 1)
        if i < 2: k.e(f"v_pk_mul_f32 {V(d,2)}, {V(XF+2*i,2)}, {V(T+2*(i&3),2)}")
        else: k.e(f"v_pk_fma_f32 {V(d,2)}, {V(XF+2*i,2)}, {V(T+2*(i&3),2)}, {V(d,2)}")
    k.e("v_pk_add_f32 v[42:43], v[42:43], v[44:45]")
    k.e("v_add_f32 v45, v42, v43")
    sum32(45, 37)
    k.e("v_cvt_pk_bf16_f32 v45, v45, v45")
    k.e("v_ashrrev_i32 v46, 31, v45")
    k.e("v_or_b32 v46, 0x80000000, v46")
    k.e("v_xor_b32 v45, v45, v46")
    k.e("v_and_b32 v45, 0xffff0000, v45")
    k.e("s_lshr_b32 s3, s36, 11")
    k.e("v_add_u32 v46, s3, v33")
    k.e("v_sub_u32 v44, 0xffff, v46")
    k.e("v_or_b32 v45, v45, v44")
    k.e("v_lshlrev_b32 v44, 2, v46")
    k.e("v_lshlrev_b32 v46, 3, v46")
    k.e("v_xor_b32 v38, 0x80000000, v38")
    k.e("v_mov_b32 v39, v40")
    k.e(f"s_mov_b32 s3, {WS_KEYS}")
    k.e(f"s_mov_b32 s39, {WS_STATS}")
    k.e("s_mov_b32 exec_lo, 1")
    k.e("s_mov_b32 exec_hi, 1")
    k.e("buffer_store_dword v45, v44, s[20:23], s3 offen sc1", tag='ln')
    k.e("buffer_store_dwordx2 v[38:39], v46, s[20:23], s39 offen sc1", tag='ln')
    k.e("s_mov_b64 exec, -1")
    k.e("s_load_dwordx2 s[4:5], s[0:1], 16")
    k.e("s_load_dwordx4 s[40:43], s[0:1], 64")
    k.e("s_load_dwordx2 s[92:93], s[0:1], 40")
    k.e("s_load_dwordx2 s[94:95], s[0:1], 80")
    k.e("s_load_dwordx2 s[100:101], s[0:1], 0")
    act(PRO[4])
    PFN = pfc[0] - 2
    k.srd(28, 64, 256)

    def areads(st, pr):
        return [f"ds_read_b128 {A(FA(it,ks),4)}, v{AA[st & 1][ks]} offset:{it*2048}" for it in (2 * pr, 2 * pr + 1) for ks in range(2)]
    def wfreads(st):
        return [[f"ds_read_b64_tr_b16 {A(FW(st & 1,j,ks)+2*rd,2)}, v{WA[st & 1][j]} offset:{ks*16384+rd*2048}" for rd in range(2)]
                for j in range(8) for ks in range(2)]
    k.stamp(S0)
    k.wait_vm('w0d'); k.wait_vm('a0d')
    k.e("s_waitcnt lgkmcnt(0)")
    k.e("s_barrier")
    k.stamp(ST or S0)
    for s in areads(0, 0): k.e(s, tag='A0_0')
    for n, grp in enumerate(wfreads(0)):
        for s in grp: k.e(s, tag=f'W0_{n // 2}')
    k.e("s_cmp_lg_u32 s35, 0")
    k.e("s_cbranch_scc1 L_k1_vpath")

    def chunk_ops(c):
        kind, j = c
        slot = {'w': j % 4, 'kv': (j + 4) % 8}[kind]
        ops = [('s', f"s_add_u32 m0, s44, {slot * 16384}")]
        if kind == 'w':
            for q in range(4):
                ops.append(('g', f"buffer_load_dwordx4 v{WV + (q >> 1)}, s[8:11], s{48+q} offen offset:{q*1024}{wq_ld} lds"))
            ops.append(('v', f"v_add_u32 v{WV}, {64*8192}, v{WV}"))
            ops.append(('v', f"v_add_u32 v{WV+1}, {64*8192}, v{WV+1}"))
        elif kind == 'f':
            for q in range(4):
                ops.append(('g', f"buffer_load_dwordx4 v{12 + (q >> 1) + 2 * (j & 1)}, {S(60 + 8 * (j >> 1), 4)}, s{52+q} offen offset:{q*1024}{ffn_ld} lds"))
        else:
            ops.append(('s', f"s_mov_b32 s7, {j * KV_CH}"))
            for q in range(4):
                ops.append(('g', f"buffer_load_dwordx4 v{VDMA}, s[12:15], s7 offen offset:{q*1024}{kv_ld} lds"))
        return ops
    def xn_ops(kk):
        ops = []
        for qb in range(4):
            so = "0" if qb & 1 else "s58"
            ops.append(('g', f"buffer_load_dwordx4 {A(XR(kk,qb),4)}, v{XV + (qb >> 1)}, s[20:23], {so} offen offset:{(kk % 4)*1024}{opt.get('xn_ld', ' sc1')}"))
        if kk % 4 == 3:
            ops.append(('v', f"v_add_u32 v{XV}, 4096, v{XV}"))
            ops.append(('v', f"v_add_u32 v{XV+1}, 4096, v{XV+1}"))
        return ops
    def wreads(kk):
        st = kk // 2
        return [[f"ds_read_b64_tr_b16 {A(WF(ks,db)+2*rd,2)}, v{TA+db} offset:{(st % 4)*16384 + ks*8192 + rd*1024}" for rd in range(2)]
                for db, ks in ([(d, q) for d in range(4 * (kk & 1), 4 * (kk & 1) + 4) for q in range(2)] if P2C else [(d, kk & 1) for d in range(8)])]
    ool = []
    def spin(lab, ret, off, target, vd, vz, sv, sc):
        def fn():
            k.e(f"s_mov_b32 s{sc}, 0x400000")
            k.label(lab + "_l")
            k.e(f"s_sleep {opt.get('slp', 8)}")
            k.e(f"buffer_load_dword v{vd}, v{vz}, s[28:31], {off} offen sc1")
            k.e("s_waitcnt vmcnt(0)")
            k.e(f"v_readfirstlane_b32 s{sv}, v{vd}")
            k.e(f"s_sub_u32 s{sc}, s{sc}, 1")
            k.e(f"s_cmp_eq_u32 s{sc}, 0")
            k.e(f"s_cbranch_scc1 {ret}")
            k.e(f"s_cmp_lt_u32 s{sv}, {target}")
            k.e(f"s_cbranch_scc1 {lab}_l")
        ool.append((lab, fn, ret))
    def srd_rec(b, d, base, nbytes, add=None):
        if add is None:
            b.e(f"s_mov_b32 s{d}, s{base}"); b.e(f"s_and_b32 s{d+1}, s{base+1}, 0xffff")
        else:
            b.blk([f"s_add_u32 s{d}, s{base}, {add}", f"s_addc_u32 s{d+1}, s{base+1}, 0", f"s_and_b32 s{d+1}, s{d+1}, 0xffff"])
        b.e(f"s_mov_b32 s{d+2}, {nbytes}"); b.e(f"s_mov_b32 s{d+3}, 0x20000")

    def phase1_stream(isV):
        b = Rec()
        tg = 'v' if isV else 'k'
        b.e("v_and_b32 v46, 7, v0")
        b.e("v_lshrrev_b32 v1, 3, v0") if False else None
        b.e("v_mul_u32_u24 v30, 2064, v46")
        b.e("v_lshrrev_b32 v31, 3, v0")
        b.e("s_lshl_b32 s3, s32, 9")
        b.e("s_add_u32 s3, s3, 131072")
        b.e("v_lshl_add_u32 v30, v31, 4, v30")
        b.e("v_add_u32 v30, s3, v30")
        b.e("v_lshlrev_b32 v31, 8, v31")
        b.e("v_lshl_add_u32 v46, v46, 4, v31")
        for i in (1, 2, 3, 0):
            b.e(f"ds_read_b128 {V(30+4*i,4)}, v30 offset:{i*128}", tag='xs')
        b.e("s_lshr_b32 s3, s2, 1")
        b.e(f"s_mul_i32 s3, s3, {XN_RB}")
        b.e("s_add_u32 s3, s3, s57")
        b.e("s_and_b32 s39, s2, 1")
        b.e("s_lshl_b32 s39, s39, 7")
        b.e("s_add_u32 s3, s3, s39")
        b.e("s_add_u32 s39, s3, 4096")
        b.at(2)
        for i in range(4):
            b.e(f"buffer_store_dwordx4 {V(30+4*i,4)}, v46, s[20:23], s{3 if i < 2 else 39} offen offset:{(i&1)*2048} sc1", tag='ln')
        b.e("s_lshl_b32 s3, s34, 1")
        b.e("s_and_b32 s36, s32, 1")
        b.e("s_add_u32 s3, s3, s36")
        b.e(f"s_mul_i32 s3, s3, {KV_HEAD}")
        b.e(f"s_mul_i32 s36, s33, {4*KV_TILE}")
        b.e("s_add_u32 s3, s3, s36")
        b.e("s_lshr_b32 s36, s32, 1")
        b.e(f"s_mul_i32 s36, s36, {2*KV_TILE}")
        b.e("s_add_u32 s3, s3, s36")
        b.e(f"s_add_u32 s38, s3, {KV_CH if isV else 0}")
        b.e("s_lshl_b32 s39, s34, 7")
        b.e("s_lshl_b32 s36, s33, 2")
        b.e("s_add_u32 s39, s39, s36")
        b.e(f"s_add_u32 s39, s39, {WS_FLG + (32 if isV else 0)}")
        b.e("v_mov_b32 v30, 1")
        b.e("v_mov_b32 v31, 0")
        b.blk(["s_cmp_eq_u32 s32, 0", f"s_cselect_b32 s39, s39, {BIG}"])
        b.blk(["s_mov_b64 exec, 1", ("buffer_store_dword v31, v31, s[20:23], s39 offen sc1", 'ln'), "s_mov_b64 exec, -1"])
        if MAP == 4:
            b.e("s_and_b32 s33, s2, 7")
            b.e("s_lshl_b32 s33, s33, 2")
            b.e("s_bfe_u32 s3, s2, 0x20003")
            b.e("s_add_u32 s33, s33, s3")
            b.e("s_lshr_b32 s34, s2, 5")
        else:
            b.e("s_and_b32 s33, s2, 6")
            b.e("s_lshl_b32 s33, s33, 2")
            b.e("s_bfe_u32 s3, s2, 0x30003")
            b.e("s_add_u32 s33, s33, s3")
            b.e("s_lshr_b32 s34, s2, 6")
            b.e("s_lshl_b32 s34, s34, 1")
            b.e("s_and_b32 s3, s2, 1")
            b.e("s_add_u32 s34, s34, s3")
        b.e("s_lshl_b32 s64, s34, 7")
        b.e("s_lshl_b32 s3, s33, 2")
        b.e("s_add_u32 s64, s64, s3")
        b.e(f"s_add_u32 s64, s64, {WS_CFL}")
        b.e("s_lshl_b32 s65, s34, 8")
        b.e("s_sub_u32 s65, 1920, s65")
        b.e("v_mul_u32_u24 v32, s65, v0")
        b.blk(["s_cmp_eq_u32 s32, 0", f"s_cselect_b32 s64, s64, {BIG}"])
        b.blk(["s_mov_b64 exec, 3", ("buffer_store_dword v31, v32, s[20:23], s64 offen sc1", 'ln'), "s_mov_b64 exec, -1"])
        b.e("s_lshl_b32 s3, s2, 2")
        b.e(f"s_add_u32 s3, s3, {WS_HFL}")
        b.e("v_lshlrev_b32 v32, 10, v0")
        b.blk(["s_cmp_eq_u32 s32, 0", f"s_cselect_b32 s3, s3, {BIG}"])
        b.blk(["s_mov_b64 exec, 0x1ff", ("buffer_store_dword v31, v32, s[20:23], s3 offen sc1", 'ln'), "s_mov_b64 exec, -1"])
        b.e("s_lshl_b32 s35, s34, 1")
        b.e("s_sub_u32 s36, 32, s35")
        b.e("s_add_u32 s35, s35, 2")
        b.e("s_lshl_b32 s44, s32, 12")
        b.e("s_lshl_b32 s58, s32, 1")
        b.e("s_sub_u32 s58, 7, s58")
        b.e(f"s_mul_i32 s58, s58, {XN_RB}")
        b.e("s_sub_u32 s3, 15, s34")
        b.e("s_lshl_b32 s45, s3, 3")
        b.e("s_add_u32 s45, s45, s32")
        b.e("s_lshl_b32 s46, s34, 3")
        b.e("s_add_u32 s46, s46, s32")
        srd_rec(b, 68, 42, 7340032)
        b.blk(["s_cmp_eq_u32 s32, 0", f"s_cselect_b32 s37, 0, {BIG}"])
        b.e("s_lshl_b32 s3, s33, 8")
        srd_rec(b, 16, 4, 0, "s3")
        b.e("s_sub_u32 s18, 8388608, s3")
        WQN = int(opt.get('wqn', 4))
        ln_ = (64 if MAP == 4 else 128) // WQN
        b.e(f"v_and_b32 v33, {ln_ - 1}, v0")
        b.e("v_lshrrev_b32 v32, 1, v33")
        b.e("v_and_b32 v33, 1, v0")
        b.e("v_lshlrev_b32 v32, 13, v32")
        b.e("v_lshl_add_u32 v45, v33, 7, v32")
        b.e("s_lshl_b32 s3, s32, 3")
        b.e("s_add_u32 s3, s3, s34")
        if MAP != 4: b.e("s_lshr_b32 s3, s3, 1")
        b.e(f"s_mul_i32 s47, s3, {ln_ // 2 * 8192}")
        WQ0 = int(opt.get('wq0', 6))
        ev = []
        for j in range(WQN): ev.append((WQ0 + j * float(opt.get('wqs', 2)), 'pf', j))
        NS = int(opt.get('cas', 4))
        for j in range(NS): ev.append((5.2 + j * float(opt.get('cad', 1.2)), 'ca', j))
        b.e(f"s_bfe_u32 s6, s2, {(NS.bit_length() - 1) << 16 | 3}")
        b.e("s_lshl_b32 s3, s32, 8")
        b.e("s_or_b32 s6, s6, s3")
        WOP = WOT
        if WOP:
            b.e("v_bfe_u32 v39, v0, 3, 1")
            b.e("v_and_b32 v33, 7, v0")
            b.e("v_lshlrev_b32 v39, 11, v39")
            b.e("v_lshl_add_u32 v39, v33, 7, v39")
            b.e("s_lshr_b32 s3, s2, 1")
            b.e("s_lshl_b32 s3, s3, 16")
            b.e("v_add_u32 v39, s3, v39")
            b.e("s_and_b32 s3, s2, 1")
            b.e("s_lshl_b32 s3, s3, 10")
            b.e("v_add_u32 v39, s3, v39")
            b.e("s_lshl_b32 s3, s32, 14")
            b.e("v_add_u32 v39, s3, v39")
            ev.append((5.99, 'srd', 0))
            for j in range(4): ev.append((float(opt.get('wop0', 6)) + j * 2 + 0.01, 'wo', j))
        late = []
        for step, kind, j in sorted(ev):
            o = b
            if step >= 12:
                o = Rec(); late.append(o)
            o.at(step)
            if kind == 'ca':
                o.check_clear('ln')
                o.blk([f"s_cmp_eq_u32 s6, {j}", f"s_cselect_b32 s3, 0, {BIG}"])
                o.blk(["s_mov_b64 exec, 1", "buffer_atomic_add v30, v31, s[28:31], s3 offen sc1", "s_mov_b64 exec, -1"])
            elif kind == 'srd':
                srd_rec(o, 60, 92, 8388608)
            elif kind == 'wo':
                o.e("buffer_load_dword v44, v39, s[60:63], 0 offen", tag='pf')
                o.e("v_add_u32 v39, 4096, v39")
            else:
                o.e(f"buffer_load_dword v44, v45, s[{16 if step < 12 else 8}:{19 if step < 12 else 11}], s47 offen{opt.get('wqpf_ld', '')}", tag='pf')
                o.e(f"s_add_u32 s47, s47, {1024 // WQN * 8192}")
        b.e("v_lshrrev_b32 v32, 4, v0")
        b.e("v_and_b32 v33, 15, v0")
        b.e("s_lshl_b32 s3, s32, 4")
        b.e("v_add_u32 v34, s3, v32")
        b.e("v_lshlrev_b32 v36, 1, v32")
        b.e("v_xor_b32 v36, v36, v33")
        b.e("v_xor_b32 v37, 8, v36")
        if '2' in CPF:
            b.at(10.1)
            cp = code_prefetch("L_phase2", "L_k2_fin", 32, 6, 40, 38)
            cp = [x.replace("s8", "s3") for x in cp]
            b.blk(cp[:4])
            for x in cp[4:-3]: b.e(x)
            b.blk(cp[-3:-1])
            b.e(cp[-1])
        b.at(12)
        b.e("buffer_load_dword v1, v31, s[28:31], s37 offen sc1", tag='poll')
        for j in range(3): b.e(f"s_mov_b32 s{8+j}, s{16+j}")
        srd_rec(b, 16, 66, 16 << 20, WS_CTX)
        for j in range(4): b.e(f"s_mov_b32 s{48+j}, {j*31744}")
        b.e("v_lshlrev_b32 v35, 13, v34")
        b.e(f"v_lshl_add_u32 v{WV}, v36, 4, v35")
        b.e(f"v_lshl_add_u32 v{WV+1}, v37, 4, v35")
        b.e(f"v_lshlrev_b32 v{VX}, 4, v0")
        b.e(f"v_add_u32 v{VY}, 65536, v{VX}")
        b.e(f"v_add_u32 v{VDMA}, s44, v{VX}")
        b.e("v_mov_b32 v7, 0")
        b.e("v_lshlrev_b32 v35, 2, v32")
        b.e("v_sub_u32 v35, v33, v35")
        b.e("s_lshl_b32 s3, s32, 4")
        b.e(f"v_add_u32 v{VRA}, s3, v35")
        b.e("s_sub_u32 s3, 48, s3")
        b.e(f"v_add_u32 v{VRB}, s3, v35")
        b.e(f"s_mul_i32 s3, s33, {KV_HEAD}")
        b.e(f"s_add_u32 s3, s3, {WS_KV}")
        srd_rec(b, 12, 66, 0, "s3")
        b.e(f"s_mul_i32 s14, s36, {KV_TILE}")
        for o in late: b.items += o.items
        ta_setup(b)
        b.at(13.4)
        b.e(f"s_mul_i32 s3, s45, {XN_RB}")
        b.e(f"v_add_u32 v{XV}, s3, v{VX}")
        b.e(f"s_mul_i32 s3, s46, {XN_RB}")
        b.e(f"v_add_u32 v{XV+1}, s3, v{VX}")
        if '6' in CPF:
            b.at(14)
            b.e("v_mov_b32 v14, v40"); b.e("v_mov_b32 v15, v41")
        if 'dbg_noxn' in opt:
            b.e(f"v_mov_b32 v{XV}, {BIG}"); b.e(f"v_mov_b32 v{XV+1}, {BIG}")
        if 'dbg_nowq' in opt: b.e("s_mov_b32 s10, 0")
        if 'dbg_nost' in opt: b.e("s_mov_b32 s26, 0")
        spin(f"L_spinA{tg}", f"L_spinAr{tg}", 0, 256, 1, 7, 3, 47)
        return b
    def ta_setup(b):
        b.e("v_lshrrev_b32 v42, 2, v33")
        b.e("v_lshl_add_u32 v43, v32, 3, v42")
        b.e("v_lshlrev_b32 v43, 8, v43")
        b.e("v_and_b32 v46, 3, v0")
        b.e("v_lshl_add_u32 v43, v46, 3, v43")
        b.e("v_and_b32 v46, 1, v32")
        b.e("v_lshl_add_u32 v42, v46, 2, v42")
        b.e(f"v_lshl_add_u32 v{TA}, v42, 5, v43")
        for db in range(1, 8): b.e(f"v_xor_b32 v{TA+db}, {32*db}, v{TA}")

    NS7 = int(opt.get('ns7', 6))
    def kvstore_ops(n):
        off = (n >> 4) * KV_TILE + (n & 15) * 1024
        return ([f"s_add_u32 s59, s38, {off}"] if n % 4 == 0 else []) + \
               [f"buffer_store_dwordx4 {V(PK(n),4)}, v{VX}, s[24:27], s59 offen offset:{(n % 4)*1024}{opt.get('kv_st', ' sc1')}"]
    def place_vm(g, gt, scal, ops, start, step):
        gi = start
        for t, s, tg in ops:
            if t == 's': scal.setdefault(gi - 1, []).append(s)
            elif t == 'g':
                assert gi not in g and gi < 128, gi
                g[gi] = [s]; gt[gi] = tg; gi += step
            else:
                q = gi - step + 1
                while (q in g and (len(g[q]) >= 2 or g[q][-1].startswith(('buffer', 'ds_read_b64')))) or ((q - start) % step == 0 and q < 127): q += 1
                g.setdefault(min(q, 127), []).append(s)
    vq0, dq0 = list(k.vq), list(k.dq)
    for isV in (0, 1):
        if isV:
            k.label("L_k1_vpath"); k.win = []; k.vq = list(vq0); k.dq = list(dq0)
        b = phase1_stream(isV)
        if S1: k.nstamp = 0
        for st in range(8):
            p = st & 1
            k.stamp(S1)
            g = {}; gt = {}; scal = {}
            for pr in range(4):
                s2, p2 = (st, pr + 1) if pr < 3 else (st + 1, 0)
                if s2 < 8:
                    for q, s in enumerate(areads(s2, p2)):
                        x = 32 * pr + 3 + 4 * q
                        g[x] = [s]; gt[x] = f'A{s2}_{p2}'
                    scal.setdefault(32 * pr + 30, []).append(('w', f'A{s2}_{p2}'))
            if st < 7:
                free = [x for x in range(65, 122, 2) if x not in g]
                for n, grp in enumerate(wfreads(st + 1)):
                    x = free[(n * len(free)) // 16]
                    g[x] = grp; gt[x] = f'W{st+1}'
                scal.setdefault(127, []).append(('w', f'W{st+1}'))
                scal.setdefault(61, []).append(('v', f'w{st+1}d')); scal.setdefault(62, []).append("s_barrier")
                scal.setdefault(93, []).append(('v', f'a{st+1}d')); scal.setdefault(94, []).append("s_barrier")
            if st == 0:
                ops = []
                for h, nm in enumerate(('w1', 'a1')):
                    if nm not in '/'.join(PRO):
                        ops += [(t, s, nm + 'd') for t, s in dma_ops(1)[10*h:10*h+10]] + [('v', s, None) for s in adv_ops(1)[4*h:4*h+4]]
                place_vm(g, gt, scal, ops, 2, int(opt.get('st1s', 2)))
                pfc[0] = 2 + PFN
                for q in range(int(opt.get('pfk', 1))):
                    po = pf_ops()
                    assert 44 + 4 * q not in g
                    g[44 + 4 * q] = [po[0]]; gt[44 + 4 * q] = 'pf'; g[45 + 4 * q] = po[1:] + g.get(45 + 4 * q, [])
            if st < 6:
                d = dma_ops(p); adv = adv_ops(st + 2) if st < 5 else []
                ops = [(t, s, f'w{st+2}d') for t, s in d[:10]] + [('v', s, None) for s in adv[:4]] + \
                      [(t, s, f'a{st+2}d') for t, s in d[10:]] + [('v', s, None) for s in adv[4:]]
                place_vm(g, gt, scal, ops, 64, 4)
                if pfc[0] < 8:
                    po = pf_ops()
                    g[126] = [po[0]] + g.get(126, []); gt[126] = 'pf'
                    g[127] = [po[1]] + g.get(127, []) + [po[2]]
            elif st == 6:
                ops = []
                for c in range(4): ops += [(t, s, f'w{c}') for t, s in chunk_ops(('w', c))]
                place_vm(g, gt, scal, ops, 64, 4)
            else:
                XB = int(opt.get('xb', 28))
                tg = 'v' if isV else 'k'
                scal.setdefault(XB - 2, []).append(('v', 'w0'))
                scal.setdefault(XB, []).extend(["v_readfirstlane_b32 s3, v1", "s_nop 0", "s_or_b32 s3, s3, s37", "s_cmp_lt_u32 s3, 256",
                                                f"s_cbranch_scc1 L_spinA{tg}", f"L_spinAr{tg}:", "s_barrier"])
                ops = []
                for kk in range(4): ops += [(t, s, f'x{kk}') for t, s in xn_ops(kk)]
                place_vm(g, gt, scal, ops, XB + 4, int(opt.get('xs7', 6)) & ~1)
                for n, grp in enumerate(wreads(0)):
                    assert 105 + 2 * n not in g
                    g[105 + 2 * n] = grp
                for n in range(26):
                    b.at(14 + (4 * n + 8) / 64.0)
                    r = SRC(n)[1]
                    for q in range(4): b.e(f"v_cvt_pk_bf16_f32 v{PK(n)+q}, v{r+2*q}, v{r+2*q+1}")
                    m_ = (n * NS7) // 26
                    if (n + 1) * NS7 // 26 > m_:
                        for x in kvstore_ops(m_): b.e(x, tag='kvst')
            if isV: order = [(2 * pr + h, jd, ks) for pr in range(4) for jd in range(8) for h in range(2) for ks in range(2)]
            else: order = [(it, jd, ks) for it in range(8) for jd in range(8) for ks in range(2)]
            for n, (it, jd, ks) in enumerate(order):
                if st == 0:
                    k.wait_ds('A0_0'); k.wait_ds(f'W0_{jd}')
                fa, fw_ = A(FA(it, ks), 4), A(FW(p, jd, ks), 4)
                d = acc(isV, it, jd)
                c = "0" if (st == 0 and ks == 0) else d
                k.e(mfma(d, fa, fw_, c) if isV else mfma(d, fw_, fa, c))
                for x in scal.get(n, []):
                    if isinstance(x, tuple): (k.wait_ds if x[0] == 'w' else k.wait_vm)(x[1])
                    elif x.endswith(':'): k.label(x[:-1])
                    else: k.e(x)
                if n in g:
                    for s in g[n]: k.e(s, tag=gt.get(n))
                elif n not in scal:
                    b.fill(k, 2 * st + n / 64.0)
        print(f"phase1 isV={isV}: items left {len(b.items)}")
        k.stamp(S1)
        b.drain(k)
        k.stamp(S1)
        if not isV:
            k.e("s_branch L_phase2")
            vqK = list(k.vq)
    assert vqK == k.vq
    k.label("L_phase2")
    k.win = []
    k.e("s_nop 7")
    k.stamp(ST)

    b = Rec()
    KY = 56
    SPK = float(opt.get('spk', 1.2))
    def kvstore(n):
        if n < NS7: return
        b.at((n - NS7) / SPK)
        for x in kvstore_ops(n): b.e(x, tag='kvst')
    for n in range(26):
        kvstore(n)
        if 8 <= n < 14:
            m = n + 18
            for q in range(8): b.e(f"v_accvgpr_read_b32 v{48+q}, a{SRC(m)[1]+q}")
            for q in range(4): b.e(f"v_cvt_pk_bf16_f32 v{PK(m)+q}, v{48+2*q}, v{49+2*q}")
    for n in range(26, 32): kvstore(n)
    b.e("v_mov_b32 v12, 1")
    b.e("v_and_b32 v1, 15, v0")
    b.e("v_lshlrev_b32 v1, 2, v1")
    b.e("s_lshr_b32 s6, s33, 1")
    b.e("s_lshl_b32 s6, s6, 7")
    b.e(f"s_add_u32 s6, s6, {WS_FLG}")
    b.blk(["s_cmp_eq_u32 s32, 0", f"s_cselect_b32 s6, s6, {BIG}"])
    SIG = int(opt.get('sig', 25))
    POL = float(opt.get('pol', 27.3))
    b.at(SIG)
    b.blk(["s_mov_b64 exec, 1", "buffer_store_dword v12, v7, s[20:23], s39 offen sc1", "s_mov_b64 exec, -1"])
    b.at(POL)
    b.e("buffer_load_dword v12, v1, s[20:23], s6 offen sc1", tag='poll')
    CK = int(opt.get('ck', 29))
    n_ = 0
    for j in (0, 2, 1, 3, 4, 5, 6):
        for t, s in chunk_ops(('kv', j)):
            if t == 'g':
                b.at(max(CK + n_ * float(opt.get('kvp', 0.09)), {4: 25, 5: 27, 6: 29}.get(j, 0))); n_ += 1
            b.e(s, tag=f'c{16+j}')
    def spinB():
        k.e("s_mov_b32 s59, 0x400000")
        k.label("L_spinB_l")
        k.e(f"s_sleep {opt.get('slp', 4)}")
        k.e("buffer_load_dword v12, v1, s[20:23], s6 offen sc1")
        k.e("s_sub_u32 s59, s59, 1")
        k.e("s_cmp_eq_u32 s59, 0")
        k.e("s_cbranch_scc1 L_spinBx")
        k.e("s_waitcnt vmcnt(0)")
        k.e("v_cmp_ne_u32 vcc, 1, v12")
        k.e("s_cbranch_vccnz L_spinB_l")
        k.label("L_spinBx")
        k.e("s_waitcnt vmcnt(0)")
    ool.append(("L_spinB", spinB, "L_spinBr"))

    b1 = b
    b = Rec()
    srd_rec(b, 60, 40, 7340032)
    RT = [float(x) for x in opt.get('rt', '0,5').split(',')] if '6' in CPF else []
    for x in RT:
        b.at(x)
        b.e("global_load_dword v13, v[14:15], off", tag='keys')
    b.at((17 - NS7) / SPK + 1)
    b.e(f"s_mov_b32 s3, {WS_KEYS}")
    b.e(f"s_mov_b32 s47, {WS_KEYS + 4096}")
    for i in range(8):
        b.e(f"buffer_load_dwordx4 {V(KY+4*i,4)}, v{VX}, s[20:23], s{3 if i < 4 else 47} offen offset:{(i % 4)*1024} sc1", tag='keys')
    b.at((17 - NS7) / SPK + 8)
    b.wait_vm('keys')
    b.e(f"v_max_u32 v14, v{KY}, v{KY+1}")
    b.e(f"v_min_u32 v15, v{KY}, v{KY+1}")
    for i in range(2, 32):
        b.e(f"v_med3_u32 v15, v14, v15, v{KY+i}"); b.e(f"v_max_u32 v14, v14, v{KY+i}")
    def wmax(v, sdst):
        for m in ["quad_perm:[1,0,3,2]", "quad_perm:[2,3,0,1]", "row_half_mirror", "row_mirror"]:
            b.blk([f"v_max_u32_dpp {v}, {v}, {v} {m} row_mask:0xf bank_mask:0xf"])
        b.blk([f"v_readlane_b32 s3, {v}, 0", f"v_readlane_b32 s47, {v}, 16"])
        b.blk([f"v_readlane_b32 s4, {v}, 32", f"v_readlane_b32 s5, {v}, 48"])
        b.blk(["s_max_u32 s3, s3, s47", "s_max_u32 s4, s4, s5", f"s_max_u32 s{sdst}, s3, s4"])
    b.e("v_mov_b32 v13, v14")
    wmax("v13", 40)
    b.blk(["v_cmp_eq_u32 vcc, s40, v14"])
    b.blk(["v_cndmask_b32 v13, v14, v15, vcc"])
    wmax("v13", 41)
    for t in range(2):
        b.e(f"s_and_b32 s3, s{40+t}, 0xffff")
        b.e(f"s_sub_u32 s{42+t}, 0xffff, s3")
    for t in range(2):
        b.e(f"v_mov_b32 v60, s{40+t}")
        b.e("v_not_b32 v61, v60")
        b.e("v_ashrrev_i32 v61, 31, v61")
        b.e("v_or_b32 v61, 0x80000000, v61")
        b.e("v_xor_b32 v60, v60, v61")
        b.e("v_and_b32 v60, 0xffff0000, v60")
        b.e("v_mul_f32 v60, 0xbfb8aa3b, v60")
        b.e("v_exp_f32 v60, v60")
        b.e("v_add_f32 v60, 1.0, v60")
        b.e("v_rcp_f32 v60, v60")
        b.e("v_cvt_pk_bf16_f32 v60, v60, v60")
        b.e(f"v_and_b32 v{64+t}, 0xffff0000, v60")
    for r in range(16): b.e(f"v_mov_b32 v{LS+r}, 0")
    WARM = opt.get('warm', '1') == '1'
    if WARM:
        WC = int(opt.get('wc', 4))
        upc = 64 - WC * WC
        seg = upc * 32 * 4 * 128
        bufs = [(94, 7340032)] + ([(100, 4194304)] if x_ld else []) + [(60, 7340032), (68, 7340032)] + ([] if WOT else [(92, 8388608)])
        b.e("s_mul_i32 s3, s34, s34")
        b.e(f"s_mul_i32 s47, s33, {upc}")
        b.e("s_add_u32 s3, s3, s47")
        b.e("s_lshl_b32 s3, s3, 2")
        b.e("s_add_u32 s3, s3, s32")
        b.e("s_lshl_b32 s3, s3, 7")
        b.e(f"s_sub_u32 s3, s3, {512 + WC * WC * 512}")
        b.blk([f"s_cmp_ge_u32 s34, {WC}", "s_cselect_b32 s3, s3, 0", "s_cselect_b32 s40, 512, 0", f"s_cselect_b32 s47, {seg}, 0"])
        first = 0
        for j, (lo, size) in enumerate(bufs):
            b.e(f"v_subrev_u32 v31, {first}, v0")
            b.e("v_mul_lo_u32 v31, v31, s47")
            b.e(f"v_min_u32 v31, {size - seg}, v31")
            if j == 0:
                b.e(f"v_mov_b32 v28, s{lo}"); b.e(f"v_mov_b32 v29, s{lo+1}"); b.e("v_mov_b32 v30, v31")
            else:
                b.e(f"v_mov_b32 v14, s{lo}"); b.e(f"v_mov_b32 v15, s{lo+1}")
                b.blk([f"v_cmp_le_u32 vcc, {first}, v0"])
                b.blk(["v_cndmask_b32 v28, v28, v14, vcc", "v_cndmask_b32 v29, v29, v15, vcc"])
                b.blk(["v_cndmask_b32 v30, v30, v31, vcc"])
            first += -(-size // seg)
        assert first <= 64, first
        b.e("v_add_u32 v30, s3, v30")
        b.e("v_ashrrev_i32 v31, 31, v30")
        b.e("v_lshl_add_u64 v[28:29], v[30:31], 0, v[28:29]")
        b.e("s_mov_b32 s41, 0")
    b.e("v_readfirstlane_b32 s100, v64")
    b.e("v_readfirstlane_b32 s101, v65")
    b.at(SIG)
    for j in range(3): b.e(f"s_mov_b32 s{24+j}, s{60+j}")
    b.e(f"s_mov_b32 s94, {QSCALE}")
    b.e(f"s_mov_b32 s95, {QSCALE}")
    b.e("s_sub_u32 s55, 15, s34")
    b.e("s_sub_u32 s45, s36, 3")
    b.e("s_sub_u32 s46, s35, 3")
    b.e("s_mov_b32 s54, s44")
    b.e("s_sub_u32 s35, s35, 2")
    b.e("s_sub_u32 s36, s36, 2")
    b2 = b
    b3 = Rec()
    WT0 = float(opt.get('wt0', 18))
    WTB = int(opt.get('wtb', 23))
    WTG = int(opt.get('wtg', 8))
    b3.e("s_lshr_b32 s52, s2, 1")
    b3.e("s_lshl_b32 s52, s52, 16")
    b3.e("s_and_b32 s53, s2, 1")
    b3.e("s_lshl_b32 s53, s53, 10")
    b3.e("s_add_u32 s52, s52, s53")
    b3.e("s_lshl_b32 s53, s32, 14")
    b3.e("s_add_u32 s52, s52, s53")
    srd_rec(b3, 28, 92, 8388608)
    for j in range(8):
        b3.at(WT0 + 2 * (j // WTG))
        b3.blk([f"s_add_u32 m0, s57, {65536 + j * 1024}", f"v_xor_b32 v88, {j * 32}, v{VX}",
                (f"buffer_load_dwordx4 v88, s[28:31], s52 offen{opt.get('wo_ld', '')} lds", 'wo'), "s_add_u32 s52, s52, 2048"])
    b3.e("v_lshrrev_b32 v89, 2, v0")
    b3.e("v_lshlrev_b32 v89, 10, v89")
    b3.e("s_lshl_b32 s53, s32, 8")
    b3.e("s_add_u32 s53, s53, 65536")
    b3.e("v_add_u32 v89, s53, v89")
    b3.e("v_mov_b32 v90, 0xff")
    srd_rec(b3, 28, 66, 16 * WO_NT, WS_WOT)
    b3.e("s_and_b32 s52, s2, 1")
    b3.e("s_lshl_b32 s52, s52, 2")
    b3.e("s_add_u32 s52, s52, s32")
    b3.e(f"s_mul_i32 s52, s52, {2 * WO_NT}")
    b3.e("s_lshr_b32 s53, s2, 1")
    b3.e("s_lshl_b32 s53, s53, 12")
    b3.e("s_add_u32 s52, s52, s53")
    b3.at(WTB)
    for q in range(8):
        b3.e(f"v_and_or_b32 v{92 + (q & 1)}, v{TA+q}, v90, v89")
        for rd in range(2):
            b3.e(f"ds_read_b64_tr_b16 {V(96 + 4*q + 2*rd, 2)}, v{92 + (q & 1)} offset:{rd*16384}", tag='wt')
    for q in range(8):
        b3.at(WTB + 1.2 + 0.5 * q)
        b3.wait_ds('wt')
        b3.e(f"buffer_store_dwordx4 {V(96 + 4*q, 4)}, v{VX}, s[28:31], s52 offen offset:{(q & 3)*1024} sc1", tag='wts')
        if q == 3: b3.e(f"s_add_u32 s52, s52, {WO_NT}")
    b3.e("s_and_b32 s52, s2, 1")
    b3.e("s_lshl_b32 s52, s52, 9")
    b3.e("s_lshr_b32 s93, s2, 1")
    b3.e("s_lshl_b32 s93, s93, 2")
    b3.e("s_add_u32 s52, s52, s93")
    b3.e(f"s_add_u32 s52, s52, {WS_WFL}")
    b3.blk(["s_cmp_eq_u32 s32, 0", f"s_cselect_b32 s52, s52, {BIG}"])
    b3.e("v_mov_b32 v24, 1")
    b3.e("v_mov_b32 v25, 0")
    if not WOT: b3.items = []
    PKM = opt.get('pkm', '0') == '1'
    def conv_items(qb):
        r_ = Rec()
        for s_ in range(4):
            r = QA(2 * s_, qb)
            if PKM:
                for e_ in range(0, 8, 2): r_.e(f"v_pk_mul_f32 {V(r+e_,2)}, {V(r+e_,2)}, s[94:95]")
            else:
                for e_ in range(8): r_.e(f"v_mul_f32 v{r+e_}, s94, v{r+e_}")
            for e_ in range(4): r_.e(f"v_cvt_pk_bf16_f32 v{r+e_}, v{r+2*e_}, v{r+2*e_+1}")
            for e_ in range(4): r_.e(f"v_accvgpr_write_b32 a{Q(qb,s_)+e_}, v{r+e_}")
        r_.items.append(('mark', f'conv{qb}', None))
        return r_.items
    p2_start = len(k.lines)
    XLA = int(opt.get('xla', 5))
    xsched = {}; nx_ = 4
    for kk in range(32):
        xsched[kk] = []
        while nx_ < 32 and nx_ <= min(kk + XLA, (kk & ~1) + 7) and len(xsched[kk]) < 2:
            xsched[kk].append(nx_); nx_ += 1
    for kk in range(32):
        st, ks = kk // 2, kk & 1
        k.stamp(S2 and kk in (0, 4, 8, 12, 16, 20, 24, 28, 31))
        need = [f'x{kk | 1}' if P2C else f'x{kk}']
        if ks == 1 and st < 15: need.append(f'w{st+1}')
        if kk == SIG:
            assert not any(it[2] == 'kvst' for it in b1.items), "stores not all issued before SIG"
            need.append('kvst')
        if kk == WTB:
            assert not any(it[0] == 'b' and any(isinstance(x, tuple) for x in it[1]) for it in b3.items)
            need.append('wo')
        if kk == CK:
            assert not b3.items
            need.append('poll')
        if kk == 31: need.append('c16')
        w = [x for x in (k.vm_n(t) for t in need) if x is not None]
        k.e("s_waitcnt " + (f"vmcnt({min(w)}) " if w else "") + "lgkmcnt(0)")
        for t in need: k.use(t)
        if kk == CK:
            assert not any('vcc' in str(it[1]) for it in b2.items)
            k.e("s_cmp_lg_u32 s32, 0")
            k.e("s_cbranch_scc1 L_spinBr")
            k.e("v_cmp_ne_u32 vcc, 1, v12")
            k.e("s_cbranch_vccnz L_spinB")
            k.label("L_spinBr")
        if ks == 1: k.e("s_barrier")
        g = {}; gt = {}
        if kk + 1 < 32:
            for n, grp in enumerate(wreads(kk + 1)):
                g[1 + 3 * n] = (["s_waitcnt lgkmcnt(6)"] if n == 5 else []) + grp
        vm = []
        if ks == 1 and st + 4 < 16: vm += [(t, s, f'w{st+4}') for t, s in chunk_ops(('w', st + 4))]
        for x in xsched.get(kk, []): vm += [(t, s, f'x{x}') for t, s in xn_ops(x)]
        ng = sum(1 for x in vm if x[0] == 'g')
        free = [x for x in range(2, 32) if x not in g]
        pick = [free[(j * len(free)) // ng] for j in range(ng)] if ng else []
        j = 0
        for t, s, tg in vm:
            if t == 'g': g[pick[j]] = [s]; gt[pick[j]] = tg; j += 1
            elif t == 's':
                q = pick[j] - 1
                if q in gt: g[q].append(s)
                else: g.setdefault(q, []).insert(0, s)
            else: g[pick[j - 1]].append(s)
        dbs, qs = (range(4 * ks, 4 * ks + 4), range(2)) if P2C else (range(8), [ks])
        order = [(db, qb, q) for db in dbs for qb in range(4) for q in qs]
        if kk == 31:
            order = [(db, qb, q) for qb in range(4) for db in dbs for q in qs]
            assert all('accvgpr_write' in it[1] for it in b2.items)
            zrest = b2.items; b2.items = []
            for kb in range(2):
                for s_ in range(4): b2.e(f"ds_read_b128 {A(FR(kb,s_),4)}, v{VY} offset:{(kb*4+s_)*1024}", tag=f'k{kb}')
            b2.at(31 + 12 / 32.0)
            b2.items += conv_items(0) + conv_items(1)
        elif kk > (25 if P2C else 24):
            for x in (([kk - 2] if kk < 30 else [28, 29]) if P2C else [kk - 1]):
                for r in range(16): b2.e(f"v_accvgpr_write_b32 a{XR(x,0)+r}, 0")
        for n, (db, qb, q) in enumerate(order):
            k.e(mfma(V(QA(db, qb), 4), A(WF(q, db), 4), A(XR(2 * st + q, qb), 4), V(QA(db, qb), 4) if (st or q) else "0"))
            if n in g:
                for s in g[n]: k.e(s, tag=gt.get(n))
            else:
                nl = k.ni
                b1.fill(k, kk + n / 32.0)
                if k.ni == nl: b3.fill(k, kk + n / 32.0)
                if k.ni == nl: b2.fill(k, kk + n / 32.0)
    print("phase2 items left", len(b1.items), len(b2.items))
    b1.drain(k)
    grp_ = None
    for ln in k.lines[p2_start:] + ["s_mov_b32 m0, 0"]:
        if ' m0,' in ln:
            assert grp_ is None or (len(set(grp_)) == 1 and len(grp_) == (1 if grp_[0] == 's[28:31]' else 4)), grp_
            grp_ = []
        elif ' lds' in ln: grp_.append(ln.split(', ')[1])
    k.stamp(ST or S2)
    XS = 160
    def ffn_issue():
        for t in range(2):
            k.e(f"s_lshr_b32 s3, s{42+t}, 4")
            k.e(f"s_mul_i32 s3, s3, {XN_RB}")
            k.e(f"s_and_b32 s47, s{42+t}, 15")
            k.e("s_lshl_b32 s47, s47, 4")
            k.e("s_add_u32 s3, s3, s47")
            k.e(f"v_mov_b32 v{28+t}, s3")
        k.e("v_lshrrev_b32 v24, 4, v0")
        k.e("v_and_b32 v25, 15, v0")
        k.e("v_cmp_eq_u32 vcc, 1, v25")
        k.e("s_lshl_b32 s3, s32, 4")
        k.e("v_add_u32 v26, s3, v24")
        k.e("v_cndmask_b32 v28, v28, v29, vcc")
        k.e("v_lshl_add_u32 v28, v24, 8, v28")
        k.e("v_mul_u32_u24 v26, 7168, v26")
        k.e("v_lshlrev_b32 v24, 1, v24")
        k.e("v_xor_b32 v24, v24, v25")
        k.e("v_xor_b32 v25, 8, v24")
        k.e("v_lshl_add_u32 v24, v24, 4, v26")
        k.e("v_lshl_add_u32 v25, v25, 4, v26")
        k.e("s_lshl_b32 s3, s92, 12")
        for q in range(4):
            k.e(f"buffer_load_dwordx4 {A(XS+4*q,4)}, v28, s[20:23], s3 offen offset:{q*1024} sc1")
        ops = []
        for m, srd in enumerate((24, 68)):
            for h in range(2):
                for q in range(4):
                    pre = [f"s_add_u32 m0, s54, {m*32768 + h*16384}"] if q == 0 else []
                    ops.append((pre + [f"s_add_u32 s3, s5, {h*64*7168 + q*27648}"],
                                f"buffer_load_dwordx4 v{24 + (q >> 1)}, {S(srd,4)}, s3 offen offset:{q*1024}{ffn_ld} lds"))
        return ops
    def ffn_finish():
        k.e("v_lshrrev_b32 v24, 4, v0")
        k.e("v_bfe_u32 v25, v0, 2, 2")
        k.e("v_lshl_add_u32 v26, v24, 3, v25")
        k.e("v_lshlrev_b32 v26, 8, v26")
        k.e("v_and_b32 v27, 3, v0")
        k.e("v_lshl_add_u32 v26, v27, 3, v26")
        k.e("v_and_b32 v27, 1, v24")
        k.e("v_lshl_add_u32 v25, v27, 2, v25")
        k.e("s_lshl_b32 s3, s32, 1")
        k.e("v_xor_b32 v25, s3, v25")
        k.e("v_lshl_add_u32 v26, v25, 5, v26")
        k.e("s_sub_u32 s3, s54, s44")
        k.e("v_add_u32 v26, s3, v26")
        k.e("v_xor_b32 v27, 32, v26")
        k.e("s_waitcnt vmcnt(8) lgkmcnt(0)")
        k.use('ffn')
        k.e("s_barrier")
        for m in range(2):
            for q in range(4):
                for j in range(2):
                    for rd in range(2):
                        k.e(f"ds_read_b64_tr_b16 {V(128 + 32*m + 8*q + 4*j + 2*rd, 2)}, v{26+j} offset:{m*32768 + q*8192 + rd*1024}", tag=f'f{m}')
        k.e("v_and_b32 v25, 15, v0")
        k.e("v_mul_u32_u24 v28, 14336, v25")
        k.e("v_lshl_add_u32 v28, v24, 4, v28")
        k.e(f"v_mov_b32 v29, {BIG}")
        k.e("v_cmp_gt_u32 vcc, 2, v25")
        k.e(f"s_mul_i32 s3, s92, {4*14336}")
        k.e("s_lshl_b32 s47, s4, 9")
        k.e("s_add_u32 s3, s3, s47")
        k.e("v_cndmask_b32 v28, v29, v28, vcc")
        k.e("s_lshl_b32 s47, s32, 7")
        k.e("s_add_u32 s3, s3, s47")
        k.e(f"s_add_u32 s3, s3, {WS_HP}")
        for m in range(2):
            k.wait_ds(f'f{m}')
            for q in range(4):
                for j in range(2):
                    d = V(224 + 8 * m + 4 * j, 4)
                    k.e(mfma(d, V(128 + 32*m + 8*q + 4*j, 4), A(XS + 4*q, 4), d if q else "0"))
    def ffn_store():
        k.e("s_cmp_lt_u32 s93, 224")
        k.e(f"s_cselect_b32 s3, s3, {1 << 23}")
        k.e(f"s_add_u32 s7, s3, {2*14336}")
        for m in range(2):
            for j in range(2):
                k.e(f"buffer_store_dwordx4 {V(224 + 8*m + 4*j, 4)}, v28, s[20:23], s{7 if m else 3} offen offset:{j*64} sc1", tag='hps')

    def kread(reg, off, kb):
        return [f"ds_read_b128 {A(FR(kb,s_),4)}, v{reg} offset:{off + (kb*4+s_)*1024}" for s_ in range(4)]
    def vread(reg, off, vg):
        return [f"ds_read_b128 {A(FR(vg,j),4)}, v{reg} offset:{off + ((j & 1)*8 + 2*vg + (j >> 1))*1024}" for j in range(4)]
    def qk_mfmas(par, nq, zero=False):
        out = []
        for kb in range(4):
            grp = []
            for qb in range(nq):
                d = V(Sr(par, qb, kb), 4)
                for s_ in range(4):
                    c = d if s_ else ("0" if zero else V(NEGM + 4 * qb, 4))
                    grp.append(mfma(d, A(FR(kb, s_), 4), A(Q(qb, s_), 4), c))
            out.append(grp)
        return out
    def pv_mfmas(par, nq):
        out = []
        for vg in range(4):
            grp = []
            for dd in range(2):
                for qb in range(nq):
                    for ks in range(2):
                        o = A(O(qb, 2 * vg + dd), 4)
                        grp.append(mfma(o, A(FR(vg, 2 * dd + ks), 4), V(P(par, qb, ks), 4), o))
            if vg < nq:
                for ks in range(2):
                    l = V(LS + 4 * vg, 4)
                    grp.append(mfma(l, V(ONES, 4), V(P(par, vg, ks), 4), l))
            out.append(grp)
        return out
    def sm_pairs(par, nq, ks):
        out = []
        for kq in range(2):
            for qb in range(nq):
                s0 = Sr(par, qb, 2 * ks + kq)
                for h in range(2):
                    out.append((s0 + 2 * h, s0 + 2 * h + 1, P(par, qb, ks) + 2 * kq + h))
        return out
    class SM:
        def __init__(self, pairs, first, check):
            self.pairs = pairs; self.ne = 0; self.nc = 0; self.no = 0; self.first = first
            self.tail = [f"v_and_b32 v{T0}, 0x40004000, v{ORR}", f"v_cmp_ne_u32 vcc, 0, v{T0}"] if check else []
            self.e_done = 0; self.extra = []
        def tick(self): self.e_done = self.ne
        def exp_ready(self): return self.ne < 2 * len(self.pairs) and self.ne // 2 - self.nc < 4
        def exp(self):
            j, h = self.ne // 2, self.ne & 1; self.ne += 1
            return f"v_exp_f32 v{ET + 2*(j % 4) + h}, v{self.pairs[j][h]}"
        def plain_avail(self):
            n = min(self.e_done // 2, len(self.pairs)) - self.nc
            n += self.nc // 2 - self.no
            if self.no == len(self.pairs) // 2: n += len(self.tail)
            return n + len(self.extra)
        def plain(self):
            if self.nc < min(self.e_done // 2, len(self.pairs)):
                j = self.nc; self.nc += 1
                return f"v_cvt_pk_bf16_f32 v{self.pairs[j][2]}, v{ET + 2*(j % 4)}, v{ET + 2*(j % 4) + 1}"
            if self.no < self.nc // 2:
                j = self.no; self.no += 1
                a, b = self.pairs[2 * j][2], self.pairs[2 * j + 1][2]
                if self.first and j == 0: return f"v_or_b32 v{ORR}, v{a}, v{b}"
                return f"v_or3_b32 v{ORR}, v{ORR}, v{a}, v{b}"
            if self.no == len(self.pairs) // 2 and self.tail: return self.tail.pop(0)
            if self.extra: return self.extra.pop(0)
            return None
        def left_exp(self): return 2 * len(self.pairs) - self.ne
        def left_plain(self): return len(self.pairs) - self.nc + len(self.pairs) // 2 - self.no + len(self.tail) + len(self.extra)
        def done(self): return self.left_exp() == 0 and self.left_plain() == 0
        def drain(self):
            while not self.done():
                self.tick()
                if self.exp_ready():
                    k.e(self.exp())
                    if self.exp_ready(): k.e(self.exp())
                    x = self.plain()
                    if x: k.e(x)
                else:
                    k.e(self.plain())
    def phase(groups, gtags, reads, rtags, sm, vm, nexttag):
        total = sum(len(g) for g in groups)
        vmpos = {}
        if vm:
            step = max(2, (total - 2) // len(vm))
            for j, x in enumerate(vm): vmpos[1 + j * step] = x
        n = 0
        k.wait_ds(gtags[0])
        for gi, grp in enumerate(groups):
            rq = list(reads[gi])
            for mi, m in enumerate(grp):
                k.e(m)
                sm.tick()
                scal = []
                if n + 1 in vmpos: scal += vmpos[n + 1][0]
                lastm = mi == len(grp) - 1
                if n in vmpos:
                    for s in scal: k.e(s)
                    k.e(vmpos[n][1], tag='kv')
                    slots = 0
                else:
                    for s in scal: k.e(s)
                    if lastm:
                        nt = gtags[gi + 1] if gi + 1 < len(groups) else nexttag
                        if nt: k.wait_ds(nt)
                    slots = 2
                    gaps_left = len([x for x in range(n, n + len(grp) - mi) if x not in vmpos])
                    want_d = len(rq) > 0 and (sm.plain_avail() > 0 or not sm.exp_ready() or len(rq) >= gaps_left - 1)
                    if want_d:
                        k.e(rq.pop(0), tag=rtags[gi]); slots -= 1
                        if rq and (sm.plain_avail() == 0 or len(rq) >= gaps_left):
                            k.e(rq.pop(0), tag=rtags[gi]); slots -= 1
                    if slots == 2 and sm.exp_ready() and not (sm.plain_avail() >= 3 and not rq):
                        k.e(sm.exp()); slots = 0
                    while slots > 0:
                        x = sm.plain()
                        if not x: break
                        k.e(x); slots -= 1
                if lastm:
                    for s in rq: k.e(s, tag=rtags[gi])
                    nt = gtags[gi + 1] if gi + 1 < len(groups) else nexttag
                    if nt: k.wait_ds(nt)
                n += 1
        sm.drain()

    def mask_block(par, qb):
        vr = VRA if qb & 1 else VRB
        for kb in range(4):
            for r in range(4): k.e(f"v_cmp_gt_i32 s[{56+2*r}:{57+2*r}], {16*kb + r}, v{vr}")
            if kb == 0: k.e("s_nop 3")
            for r in range(4):
                x = Sr(par, qb, kb) + r
                k.e(f"v_cndmask_b32 v{x}, v{x}, v{NINF}, s[{56+2*r}:{57+2*r}]")
    def rowmax(par, qb, d, o=k):
        s0 = Sr(par, qb, 0)
        o.e(f"v_max3_f32 v{d}, v{s0}, v{s0+1}, v{s0+2}")
        for r in range(3, 15, 2): o.e(f"v_max3_f32 v{d}, v{d}, v{s0+r}, v{s0+r+1}")
        o.e(f"v_max_f32 v{d}, v{d}, v{s0+15}")
        o.e(f"v_mov_b32 v{T0}, v{d}")
        o.e(f"v_permlane16_swap_b32 v{T0}, v{d}")
        o.e(f"v_max_f32 v{d}, v{d}, v{T0}")
        o.e(f"v_mov_b32 v{T0}, v{d}")
        o.e(f"v_permlane32_swap_b32 v{T0}, v{d}")
        o.e(f"v_max_f32 v{d}, v{d}, v{T0}")
        o.e(f"v_add_f32 v{d}, {opt.get('moff', '0x41f80000')}, v{d}")
    def fallback(par, nq, nqn):
        k.e("s_nop 7")
        for qb in range(nq):
            rowmax(par, qb, 21)
            k.e("v_max_f32 v21, 0, v21")
            for r in range(16): k.e(f"v_sub_f32 v{Sr(par,qb,0)+r}, v{Sr(par,qb,0)+r}, v21")
            if qb < nqn:
                for r in range(16): k.e(f"v_sub_f32 v{Sr(par^1,qb,0)+r}, v{Sr(par^1,qb,0)+r}, v21")
            for r in range(4): k.e(f"v_sub_f32 v{NEGM+4*qb+r}, v{NEGM+4*qb+r}, v21")
            k.e("v_exp_f32 v22, -v21")
            for r in range(4): k.e(f"v_mul_f32 v{LS+4*qb+r}, v{LS+4*qb+r}, v22")
            for r0 in range(0, 32, 8):
                for r in range(8): k.e(f"v_accvgpr_read_b32 v{ET+r}, a{O(qb,0)+r0+r}")
                for r in range(8): k.e(f"v_mul_f32 v{ET+r}, v{ET+r}, v22")
                for r in range(8): k.e(f"v_accvgpr_write_b32 a{O(qb,0)+r0+r}, v{ET+r}")
        for ks in range(2):
            for (s0, s1, pd) in sm_pairs(par, nq, ks):
                k.e(f"v_exp_f32 v{ET}, v{s0}")
                k.e(f"v_exp_f32 v{ET+1}, v{s1}")
                k.e(f"v_cvt_pk_bf16_f32 v{pd}, v{ET}, v{ET+1}")
        k.e("s_nop 1")
    SPLIT = {4: (32, 16, 8), 3: (36, 18, 9), 2: (17, 8, 4), 1: (16, 8, 4), 0: (0, 0, 0)}
    def tile_sm(par, nq, start, check):
        sm = SM(sm_pairs(par, nq, 0) + sm_pairs(par, nq, 1), True, check)
        sm.ne, sm.nc, sm.no = start; sm.e_done = sm.ne
        return sm
    def pack(ngaps, vmg, dsl, sm, limit, last_sm, pre):
        plan = {}
        dsl = list(dsl)
        def exp_ok(): return sm.exp_ready() and (limit is None or sm.ne < limit[0])
        def plain_n():
            n = min(sm.e_done // 2, len(sm.pairs), limit[1] if limit else 1 << 30) - sm.nc
            n += min(sm.nc // 2, limit[2] if limit else 1 << 30) - sm.no
            if limit is None and sm.no == len(sm.pairs) // 2: n += len(sm.tail)
            return n + len(sm.extra)
        def take_plain():
            if limit is not None:
                c_ok = sm.nc < min(sm.e_done // 2, limit[1]); o_ok = sm.no < min(sm.nc // 2, limit[2])
                if not c_ok and not o_ok: return sm.extra.pop(0) if sm.extra else None
                if not c_ok:
                    keep = sm.e_done; sm.e_done = 2 * sm.nc; x = sm.plain(); sm.e_done = keep; return x
            return sm.plain()
        for g in range(-1 if pre else 0, ngaps):
            if g in vmg: sm.tick(); continue
            sm.tick()
            ops = []
            smok = g <= last_sm
            av = [d for d in dsl if d[2] <= g]
            free_to = lambda dl: len([x for x in range(g, dl + 1) if x not in vmg])
            urgent = any(sum(1 for d in dsl if d[3] <= e[3]) >= 2 * free_to(e[3]) - 1 for e in av)
            pn = plain_n() if smok else 0
            if smok and exp_ok() and not urgent and not (av and pn) and not (pn >= 3):
                ops.append((sm.exp(), None))
            else:
                slots = 2
                if av and g >= 0:
                    d = av.pop(0); dsl.remove(d); ops.append((d[0], d[1])); slots -= 1
                    if av and (pn == 0 or sum(1 for x in dsl if x[3] <= av[0][3]) >= 2 * free_to(av[0][3]) - 1):
                        d = av.pop(0); dsl.remove(d); ops.append((d[0], d[1])); slots -= 1
                while slots and smok:
                    x = take_plain()
                    if not x: break
                    ops.append((x, None)); slots -= 1
                if not ops and smok and exp_ok(): ops.append((sm.exp(), None))
            plan[g] = ops
            if g == last_sm:
                while (limit is None and not sm.done()) or (limit is not None and ((sm.ne, sm.nc, sm.no) != limit or sm.extra)):
                    sm.tick()
                    x = sm.exp() if exp_ok() else take_plain()
                    plan[g].append((x, None)); k.overflow += 1
        assert not dsl, dsl
        return plan
    k.overflow = 0
    SLK = int(opt.get('slk', -1))
    def emit_phase(mf, plan, vmg, scal, bg=None, vtag=None, sbg=None):
        for s_, tg in plan.get(-1, []): k.e(s_, tag=tg)
        for g, m in enumerate(mf):
            k.e(m)
            for x in scal.get(g, []):
                if isinstance(x, tuple) and x[0] == 'u': k.use(x[1])
                elif isinstance(x, tuple) and x[0] == 'call': x[1]()
                elif isinstance(x, tuple): k.wait_ds(x[1])
                elif x.endswith(':'): k.label(x[:-1])
                else: k.e(x)
            if sbg and g > 0 and g not in scal and g not in vmg and sbg.items and sbg.items[0][0] != 'at':
                it = sbg.items.pop(0)
                for x in ([it[1]] if it[0] == 'i' else it[1]): k.e(x)
                if sbg.items[0][0] == 'i' and len(plan.get(g, [])) < 2: k.e(sbg.items.pop(0)[1])
            if g in vmg: k.e(vmg[g], tag=(vtag if ('s39' in vmg[g] or ' s3 ' in vmg[g]) else None))
            else:
                for s_, tg in plan.get(g, []): k.e(s_, tag=tg)
                if bg and not plan.get(g) and g not in scal: bg.fill(k, 99, 3)
    p4s = p4_setup(opt)
    def starts(groups):
        out = [0]
        for g in groups: out.append(out[-1] + len(g))
        return out
    def iteration(par, nq, nqn, mask, name, tail):
        kreg, koff = (VX, 32768) if par == 0 else (VY, 0)
        vreg, voff = (VX, 16384) if par == 0 else (VX, 49152)
        nreg, noff = (VY, 0) if par == 0 else (VY, 32768)
        last = nqn == 1
        k.hot = nqn >= 2
        ov0 = k.overflow
        fb, fr = f"L_k2_fb_{name}", f"L_k2_fbr_{name}"
        ool.append((fb, lambda: fallback(par, nq, nqn), fr))
        sm = tile_sm(par, nq, SPLIT[nq], True)
        if par == 0:
            k.e(f"v_xor_b32 v{VX}, 65536, v{VX}")
            k.e(f"v_xor_b32 v{VY}, 65536, v{VY}")
        if nqn:
            k.dq = ['k1'] * 4
            if nq == 4 and WARM: sm.extra = ["v_lshl_add_u64 v[28:29], s[40:41], 0, v[28:29]"]
            grp = qk_mfmas(par ^ 1, nqn); st_ = starts(grp); n1 = st_[-1]
            slack = SLK if nqn <= 2 else 4
            dsl = [(x, 'k2', 0, st_[1] + slack) for x in kread(kreg, koff, 2)] + [(x, 'k3', 0, st_[2] + slack) for x in kread(kreg, koff, 3)] + \
                  [(x, 'v0', st_[1], st_[3] + slack) for x in vread(vreg, voff, 0)] + [(x, 'v1', st_[2], n1 - 1) for x in vread(vreg, voff, 1)]
            scal = {}
            add = lambda g, xs: scal.setdefault(g, []).extend(xs)
            add(st_[1] - 1, [('w', 'k1')]); add(st_[2] - 1, [('w', 'k2')]); add(st_[3] - 1, [('w', 'k3')])
            vmw = f"s_waitcnt vmcnt({12 + min(int(opt.get('fp1', 4)), 3)})" if last else "s_waitcnt vmcnt(12)"
            if nq == 2:
                add(n1 - 7, ["s_cmp_lt_u32 s37, s52"])
                add(n1 - 6, [f"s_cbranch_scc1 L_nw_{name}", vmw, f"L_nw_{name}:"])
            else:
                add(n1 - 5, [vmw])
            if mask and mask[1]: add(n1 - 4, [f"s_cmp_eq_u32 s37, s{mask[1]}"])
            add(n1 - 3, ([] if 'nochk' in opt else [('u', f'V{par}'), ('u', 'c19' if par == 0 else 'c21'), ('u', 'c20' if par == 0 else 'c22')]) + ["s_barrier"]); add(n1 - 2, [('w', 'v0')]); add(n1 - 1, [f"s_cbranch_vccnz {fb}", fr + ":"])
            vmg = {}
            if last:
                fops = ffn_issue()
                for q in (1, 5, 8, 12)[:int(opt.get('fp1', 4))]:
                    pre, ld = fops.pop(0)
                    vmg[q] = ld; scal.setdefault(q - 1, []).extend(pre)
            else:
                step = (n1 - 8) / 4
                for j in range(4):
                    q = int(1 + j * step)
                    while q in scal or (j == 0 and q - 1 in scal): q += 1
                    vmg[q] = f"buffer_load_dwordx4 v{VDMA}, s[12:15], s38 offen offset:{j*1024}{kv_ld} lds"
                    if j == 0: scal[q - 1] = ["s_mov_b32 m0, s53" if par == 0 else "s_add_u32 m0, s53, 32768"]
            plan = pack(n1, vmg, dsl, sm, None, n1 - 2, par == 1)
            emit_phase(sum(grp, []), plan, vmg, scal, None, 'ffn')
        else:
            k.dq = ['v1'] * 4
            sm.drain()
            k.e(f"s_cbranch_vccnz {fb}")
            k.label(fr)
        grp = pv_mfmas(par, nq); st_ = starts(grp); n2 = st_[-1]
        slack = SLK if nq <= 2 else 4
        dsl = [(x, 'v2', 0, st_[1] + slack) for x in vread(vreg, voff, 2)] + [(x, 'v3', 0, st_[2] + slack) for x in vread(vreg, voff, 3)]
        scal = {st_[1] - 1: [('w', 'v1')], st_[2] - 1: [('w', 'v2')], st_[3] - 1: [('w', 'v3')]}
        vmg = {}
        if nqn:
            nx = [vread(VX, 49152, 0), vread(VX, 49152, 1)] if last else [kread(nreg, noff, 0), kread(nreg, noff, 1)]
            dsl += [(x, 'k0', st_[1], st_[3] + slack - 1) for x in nx[0]] + [(x, 'k1', st_[2], n2 - 2) for x in nx[1]]
            if mask:
                mb, mr = f"L_k2_mk_{name}", f"L_k2_mkr_{name}"
                if mask[1]: scal[0] = [f"s_cbranch_scc1 {mb}", mr + ":"]
                else: scal[0] = [('call', lambda: mask_block(par ^ 1, mask[0]))]
            scal[n2 - 2] = [('w', 'k0')]
            if tail: scal[n2 - 3] = [tail[0]]; scal[n2 - 1] = [tail[1]]
            def put(x, lo):
                q = lo
                while q in scal or q in vmg: q += 1
                assert q < n2 - 3, (x, q)
                scal[q] = [x]
            if last:
                for j, (pre, ld) in enumerate(fops):
                    q = 2 + (j * (n2 - 4)) // len(fops)
                    vmg[q] = ld
                    scal.setdefault(q - 1, []).extend(pre)
                    if q in scal: scal[q - 1].extend(scal.pop(q))
            else:
                mv = "s_add_u32 m0, s54, 49152" if par == 0 else "s_add_u32 m0, s53, 16384"
                vm = [f"buffer_load_dwordx4 v{VDMA}, s[12:15], s39 offen offset:{j*1024}{kv_ld} lds" for j in range(4)]
                if nq == 4 and WARM: vm.append("global_load_dword v30, v[28:29], off")
                step = (n2 - 4) / len(vm)
                pos = []
                for j in range(len(vm)):
                    q = int(2 + j * step)
                    while q in scal or q in vmg or (j == 0 and q - 1 in scal): q += 1
                    vmg[q] = vm[j]; pos.append(q)
                    if j == 0: scal[q - 1] = [mv]
                if name == "ne":
                    q = 3
                    while any(x in scal or x in vmg for x in (q, q + 1)): q += 1
                    scal[q] = ["s_cmp_eq_u32 s37, s52"]; scal[q + 1] = ["s_cbranch_scc1 L_pubB", "L_pubBr:"]
                    put("s_add_u32 s37, s37, 1", q + 2)
                else:
                    put("s_add_u32 s37, s37, 1", 1)
                put(f"s_add_u32 s38, s38, {KV_TILE}", 1)
                if par == 1:
                    put("s_xor_b32 s53, s53, 65536", pos[0]); put("s_xor_b32 s54, s54, 65536", pos[0])
                put(f"s_add_u32 s39, s39, {KV_TILE}", pos[3] + 1)
        sm = tile_sm(par ^ 1, nqn, (0, 0, 0), False)
        lastg = n2 - 2 if nqn else n2 - 1
        while lastg in vmg: lastg -= 1
        plan = pack(n2 - 1 if nqn else n2, vmg, dsl, sm, SPLIT[nqn], lastg, False)
        emit_phase(sum(grp, []), plan, vmg, scal, None if nqn else p4s, 'ffn' if last else f'V{par}', p4s if last else None)
        print(f"iteration {name}: overflow ops {k.overflow - ov0}")
        k.hot = False
    def epilogue(q0, srow):
        k.e(f"s_lshl_b32 s3, s{srow}, 20")
        k.e("s_lshl_b32 s47, s33, 15")
        k.e("s_add_u32 s3, s3, s47")
        k.e("s_lshl_b32 s47, s32, 10")
        k.e("v_lshlrev_b32 v248, 4, v0")
        k.e("v_add_u32 v249, s47, v248")
        k.e("s_sub_u32 s47, 7168, s47")
        k.e("v_add_u32 v248, s47, v248")
        for qq in range(2):
            k.e(f"v_rcp_f32 v{250+2*qq}, v{LS+4*(q0+qq)}")
        for qq in range(2):
            k.e(f"v_mov_b32 v{251+2*qq}, v{250+2*qq}")
        for s_ in range(4):
            for qq in (1, 0):
                o = O(q0 + qq, 2 * s_)
                d = 24 + 4 * qq
                for r in range(8): k.e(f"v_accvgpr_read_b32 v{240+r}, a{o+r}")
                for r in range(0, 8, 2): k.e(f"v_pk_mul_f32 {V(240+r,2)}, {V(240+r,2)}, {V(250+2*qq,2)}")
                for r in range(4): k.e(f"v_cvt_pk_bf16_f32 v{d+r}, v{240+2*r}, v{240+2*r+1}")
                k.e(f"buffer_store_dwordx4 {V(d,4)}, v{248+qq}, s[16:19], s3 offen{opt.get('ctx_st',' sc1')}")
            if s_ < 3: k.e("s_add_u32 s3, s3, 8192")

    for kb in range(2, 4):
        for s in kread(VY, 0, kb): k.e(s, tag=f'k{kb}')
    def first_max(o, qb):
        rowmax(0, qb, 22, o)
        if PKM:
            o.e("v_sub_f32 v22, 0, v22"); o.e("v_mov_b32 v23, v22")
            for r in range(0, 16, 2): o.e(f"v_pk_add_f32 {V(Sr(0,qb,0)+r,2)}, {V(Sr(0,qb,0)+r,2)}, v[22:23]")
            for r in range(4): o.e(f"v_mov_b32 v{NEGM+4*qb+r}, v22")
        else:
            for r in range(16): o.e(f"v_sub_f32 v{Sr(0,qb,0)+r}, v{Sr(0,qb,0)+r}, v22")
            for r in range(4): o.e(f"v_sub_f32 v{NEGM+4*qb+r}, 0, v22")
    c = b2
    c.items += conv_items(2) + conv_items(3) + zrest
    for r in list(range(XR(30, 0), XR(30, 0) + 16)) + list(range(XR(31, 0), XR(31, 0) + 16)): c.e(f"v_accvgpr_write_b32 a{r}, 0")
    for r in range(4): c.e(f"v_mov_b32 v{ONES+r}, 0x3f803f80")
    c.e(f"v_mov_b32 v{NINF}, 0xff800000")
    first_max(c, 0); first_max(c, 1)
    for qb in range(4):
        while any(it[0] == 'mark' and it[1] == f'conv{qb}' for it in c.items): c.fill(k, 99, 2)
        for kb in range(4):
            k.wait_ds(f'k{kb}')
            if qb == 3 and kb == 2:
                k.e(f"s_waitcnt vmcnt({min(k.vm_n('c18'), k.vm_n('c17'))})")
                assert k.vm_n('wts') is None
                k.use('c17'); k.use('c18')
                k.e("s_barrier")
                if WOT:
                    k.e("s_mov_b64 exec, 1")
                    k.e("buffer_store_dword v24, v25, s[20:23], s52 offen sc1")
                    k.e("s_mov_b64 exec, -1")
                k.e("s_add_u32 s53, s44, 65536")
                if TK:
                    k.e("v_mov_b32 v27, 1")
                    k.e("v_mov_b32 v26, 0")
                    k.e("s_cmp_eq_u32 s32, 0")
                    k.e("s_cselect_b32 s3, 128, s64")
                    k.e("s_mov_b64 exec, 1")
                    k.e("buffer_atomic_add v27, v26, s[28:31], s3 offen sc0 sc1")
                    k.e("s_mov_b64 exec, -1")
            for s_ in range(4):
                d = V(Sr(0, qb, kb), 4)
                k.e(mfma(d, A(FR(kb, s_), 4), A(Q(qb, s_), 4), d if s_ else "0"))
                if qb == 3 and kb >= 2: k.e(kread(VY, 32768, kb - 2)[s_], tag=f'n{kb-2}')
                c.fill(k, 99, int(opt.get('pslots', 4)))
    c.drain(k)
    k.e(f"s_mov_b32 s38, {4*KV_TILE}")
    k.e(f"s_mov_b32 s39, {3*KV_TILE + KV_CH}")
    k.e("s_cmp_lg_u32 s34, 0")
    k.e("s_cbranch_scc1 L_k2_nomask0")
    mask_block(0, 3)
    k.label("L_k2_nomask0")
    k.e("s_mov_b32 s37, 0")
    first_max(k, 2); first_max(k, 3)
    SM(sm_pairs(0, 4, 0), True, False).drain()
    k.e("s_waitcnt lgkmcnt(4)")
    k.stamp(ST or SA)

    k.e("s_cmp_eq_u32 s34, 0")
    k.e("s_cbranch_scc1 L_k2_wlast")
    k.e("s_branch L_k2_wloop")
    for nm, qb in (("wo", 3), ("tr", 1), ("no", 1)):
        k.label(f"L_k2_mk_{nm}"); k.win = []
        mask_block(0, qb)
        k.e(f"s_branch L_k2_mkr_{nm}")
    k.label("L_pubB"); k.win = []
    k.e("v_mov_b32 v24, 1"); k.e("v_mov_b32 v25, 0")
    k.e("s_mov_b64 exec, 1")
    k.e("buffer_store_dword v24, v25, s[20:23], s64 offen sc1")
    k.e("s_mov_b64 exec, -1")
    k.e("s_branch L_pubBr")
    k.label("L_k2_wloop")
    iteration(0, 4, 4, None, "we", [])
    iteration(1, 4, 4, (3, 46), "wo", ["s_cmp_lg_u32 s37, s35", "s_cbranch_scc1 L_k2_wloop"])
    k.label("L_k2_wlast")
    iteration(0, 4, 3, (2, None), "wl", [])
    iteration(1, 3, 2, (1, 45), "tr", [])
    k.stamp(SA)
    if '4' in CPF: emit(code_prefetch("L_k2_fin", "L_p4_end", 32, 56, 160, 164))
    k.e("s_waitcnt vmcnt(9)")
    if TK:
        k.e("v_mov_b32 v26, 131072")
        k.e("s_cmp_lg_u32 s32, 0")
        k.e("s_cbranch_scc1 L_notk")
        k.e("s_mov_b64 exec, 1")
        k.e("ds_write_b32 v26, v27")
        k.e("s_mov_b64 exec, -1")
        k.e("s_waitcnt lgkmcnt(0)")
        k.label("L_notk")
        k.e("s_barrier")
        k.e("ds_read_b32 v23, v26")
    epilogue(2, 34)
    k.e("s_add_u32 s52, s37, 2")
    k.raw(";@b:2")
    for s in p4_ptr_loads(): k.e(s)
    k.e("s_waitcnt vmcnt(8) lgkmcnt(0)")
    if TK: k.e("v_readfirstlane_b32 s93, v23")
    else:
        k.e("s_add_u32 s93, s2, 224")
        k.e("s_and_b32 s93, s93, 255")
    k.e("s_nop 0")
    k.e("s_mul_i32 s92, s93, 2341")
    k.e("s_lshr_b32 s92, s92, 16")
    k.e("s_mul_i32 s47, s92, 28")
    k.e("s_sub_u32 s4, s93, s47")
    k.e(f"s_mul_i32 s5, s92, {128*7168}")
    k.e("s_lshl_b32 s47, s4, 8")
    k.e("s_add_u32 s5, s5, s47")
    k.stamp(SA)
    k.e("s_cmp_eq_u32 s34, 7")
    k.e("s_cbranch_scc1 L_k2_fin")
    k.label("L_k2_nloop")
    nl0 = len(k.lines)
    iteration(0, 2, 2, None, "ne", [])
    iteration(1, 2, 2, (1, 45), "no", ["s_cmp_lg_u32 s37, s36", "s_cbranch_scc1 L_k2_nloop"])
    if 'dbg_drop' in opt:
        drop = opt['dbg_drop'].split(',')
        k.lines[nl0:] = [x for x in k.lines[nl0:] if not any(d in x and not x.endswith(':') for d in drop)]
    k.label("L_k2_fin")
    k.stamp(SA)
    iteration(0, 2, 1, (0, None), "nl", [])
    iteration(1, 1, 0, None, "fi", [])
    k.stamp(ST or SA)
    k.e("s_nop 7")
    epilogue(0, 55)
    k.stamp(SA)
    k.e("s_cmp_ge_u32 s93, 224")
    k.e("s_cbranch_scc1 L_noffn")
    ffn_finish()
    k.label("L_noffn")
    p4s.drain(k)
    k.stamp(SA)
    k.e("v_mov_b32 v24, 1")
    k.e("v_mul_u32_u24 v25, s65, v0")
    k.e("s_waitcnt vmcnt(0)")
    k.e("s_barrier")
    k.e("s_mov_b64 exec, 3")
    k.e("buffer_store_dword v24, v25, s[20:23], s64 offen sc1")
    k.e("s_mov_b64 exec, -1")
    ffn_store()
    k.stamp(ST or SA)
    phase4(k, opt, ool, ST, SA)
    k.stamp_dump('stamp' in opt, 66, 0, 32)
    if 'hold' in opt:
        k.e("s_lshl_b32 s3, s32, 8")
        k.e("s_or_b32 s3, s2, s3")
        k.e(f"s_cmp_lg_u32 s3, {opt.get('holdwg', 0)}")
        if opt.get('holdwg') != '999': k.e("s_cbranch_scc1 L_k2_end")
        k.label("L_hold")
        k.e("s_memrealtime s[4:5]")
        k.e("s_waitcnt lgkmcnt(0)")
        k.e(f"s_sub_u32 s3, s4, s{73 + 2 * int(opt.get('holdk', 0))}")
        k.e(f"s_cmp_lt_u32 s3, {int(opt['hold']) * 100}")
        k.e("s_cbranch_scc1 L_hold")
    k.label("L_k2_end")
    k.e("s_endpgm")
    hotool = [x for x in ool if x[0].startswith(("L_f2", "L_c3", "L_spinC", "L_yA", "L_yB", "L_yC"))]
    for lab, fn, ret in hotool + [("L_p4_end", None, None)] + [x for x in ool if x not in hotool]:
        k.label(lab)
        if fn is None: continue
        k.win = []; k.dq = []
        fn()
        k.e(f"s_branch {ret}")
    return k.wrap(256, 256), f"; @launch {'kernel=' + KNAME + ' ' if 'aslist' in opt else ''}grid=(256,1,1) block=(256,1,1) lds={K12_LDS}"
```

```python
from check import parse, need

def R(p, a, n=1):
    return f"{p}[{a}:{a+n-1}]" if n > 1 else f"{p}{a}"
def V(a, n=1): return R('v', a, n)
def A(a, n=1): return R('a', a, n)
def S(a, n=1): return R('s', a, n)

class Asm:
    def __init__(self, name):
        self.name = name
        self.lines = []
        self.win = []
        self.nl = 0
        self.ni = 0
        self.hot = False
        self.hot_nops = 0
        self.vq = []
        self.dq = []
    def raw(self, s): self.lines.append(s)
    def c(self, s): self.lines.append("  ; " + s)
    def e(self, s, tag=None):
        i = parse(s, 0)
        if i.cls == 'ds' and len(self.dq) >= 15: self.e('s_waitcnt lgkmcnt(9)')
        pad = 0
        for p, d in self.win:
            n = need(p, i)
            if n - d > pad: pad = n - d
        if pad:
            if self.hot:
                self.hot_nops += 1
                print(f"[{self.name}] hot nop({pad}) before: {s}")
            self._adv(parse(f"s_nop {pad-1}", 0), f"s_nop {pad-1}")
        self._adv(i, s)
        if i.cls == 'vmem' and tag and tag != '!': self.lines[-1] += f" ;@d:{tag.lstrip('!')}"
        if i.cls == 'vmem':
            if not (tag and tag.startswith('!')): self.vq.append(tag)
        elif i.cls == 'ds': self.dq.append(tag)
        elif i.cls == 'wait':
            if i.vm is not None and len(self.vq) > i.vm: self.vq = self.vq[len(self.vq) - i.vm:] if i.vm else []
            if i.lgkm is not None and len(self.dq) > i.lgkm: self.dq = self.dq[len(self.dq) - i.lgkm:] if i.lgkm else []
    def _adv(self, i, s):
        self.lines.append("  " + s)
        self.ni += 1
        self.win = [(p, d + i.states) for p, d in self.win if d + i.states < 13]
        if i.cls in ('mfma', 'valu', 'trans', 'salu') or (i.cls == 'vmem' and i.wide):
            self.win.append((i, 0))
    def vm_n(self, tag):
        idx = [n for n, t in enumerate(self.vq) if t == tag]
        return None if not idx else len(self.vq) - 1 - idx[-1]
    def ds_n(self, tag):
        idx = [n for n, t in enumerate(self.dq) if t == tag]
        return None if not idx else len(self.dq) - 1 - idx[-1]
    def wait_vm(self, tag):
        n = self.vm_n(tag)
        if n is not None: self.e(f"s_waitcnt vmcnt({min(n, 63)})")
        self.use(tag)
    def use(self, tag):
        self.lines.append(f';@u:{tag}')
    def wait_ds(self, tag):
        n = self.ds_n(tag)
        if n is not None: self.e(f"s_waitcnt lgkmcnt({min(n, 15)})")
    def label(self, l):
        self.lines.append(l + ":")
    def newlabel(self, base):
        self.nl += 1
        return f"L_{getattr(self, 'short', self.name)}_{base}{self.nl}"
    def srd(self, d, base, nbytes, add=None):
        if add is not None and add != 0:
            self.e(f"s_add_u32 s{d}, s{base}, {add}")
            self.e(f"s_addc_u32 s{d+1}, s{base+1}, 0")
            self.e(f"s_and_b32 s{d+1}, s{d+1}, 0xffff")
        else:
            self.e(f"s_mov_b32 s{d}, s{base}")
            self.e(f"s_and_b32 s{d+1}, s{base+1}, 0xffff")
        self.e(f"s_mov_b32 s{d+2}, {nbytes}")
        self.e(f"s_mov_b32 s{d+3}, 0x20000")
    def stamp(self, on):
        if not on: return
        n = getattr(self, 'nstamp', 0); self.nstamp = n + 1
        assert n < 10
        self.e("s_memtime s[96:97]")
        self.e("s_memrealtime s[98:99]")
        self.e("s_waitcnt lgkmcnt(0)")
        self.e(f"s_mov_b32 s{72+2*n}, s96")
        self.e(f"s_mov_b32 s{73+2*n}, s98")
    def stamp_dump(self, on, wsptr, kidx, wave_sgpr, n=None):
        if not on: return
        n = n or self.nstamp
        L = self.newlabel("nodump")
        self.e(f"s_cmp_lg_u32 s{wave_sgpr}, 0")
        self.e(f"s_cbranch_scc1 {L}")
        self.srd(96, wsptr, 65536, (64 << 20) + kidx * 65536)
        self.e("s_lshl_b32 s3, s2, 7")
        self.e("v_mov_b32 v0, s3")
        self.e("s_mov_b64 exec, 1")
        for j in range(n):
            self.e(f"v_mov_b32 v2, s{72+2*j}")
            self.e(f"v_mov_b32 v3, s{73+2*j}")
            self.e(f"buffer_store_dwordx2 v[2:3], v0, s[96:99], 0 offen offset:{8*j}")
        self.label(L)
    def wrap(self, arch_vgprs, agprs, sgprs=102):
        acc = (arch_vgprs + 3) // 4 * 4
        nfv = acc + agprs if agprs else arch_vgprs
        n = self.name
        code = [f".globl {n}", ".p2align 8", f".type {n},@function", f"{n}:"] + self.lines
        kd = [".p2align 6", f".amdhsa_kernel {n}", f"  .amdhsa_next_free_vgpr {nfv}", f"  .amdhsa_next_free_sgpr {sgprs}",
              f"  .amdhsa_accum_offset {acc}", "  .amdhsa_group_segment_fixed_size 0", "  .amdhsa_kernarg_size 112",
              "  .amdhsa_user_sgpr_count 2", "  .amdhsa_user_sgpr_kernarg_segment_ptr 1",
              "  .amdhsa_system_sgpr_workgroup_id_x 1", ".end_amdhsa_kernel"]
        return "\n".join(code), "\n".join(kd)

def mfma(d, a, b, c):
    return f"v_mfma_f32_16x16x32_bf16 {d}, {a}, {b}, {c}"

def build(parts, launches):
    out = ["; generated by gen/gen2.py"] + launches
    out += ['.amdgcn_target "amdgcn-amd-amdhsa--gfx950"', ".text"]
    out += [p[0] for p in parts]
    out.append('.section .rodata,"a"')
    out += [p[1] for p in parts]
    return "\n".join(out) + "\n"


class Rec:
    def __init__(self): self.items = []
    def e(self, s, tag=None): self.items.append(('i', s, tag))
    def blk(self, lst): self.items.append(('b', lst, None))
    def wait_vm(self, tag): self.items.append(('wv', tag, None))
    def wait_ds(self, tag): self.items.append(('wd', tag, None))
    def check_clear(self, tag): self.items.append(('cc', tag, None))
    def at(self, n): self.items.append(('at', n, None))
    def cost(self, it):
        if it[0] != 'i': return 0
        c = parse(it[1], 0).cls
        return {'trans': 2, 'valu': 1, 'ds': 1, 'vmem': 2}.get(c, 0)
    def fill(self, k, step, slots=2):
        nscal = 0; usedv = False
        while self.items:
            it = self.items[0]
            if it[0] == 'at':
                if step < it[1]: return
                self.items.pop(0); continue
            if it[0] == 'mark': self.items.pop(0); return
            if it[0] == 'log': print(it[1], 'at step', step); self.items.pop(0); continue
            if it[0] == 'before':
                assert step < it[1], (step, it[1])
                self.items.pop(0); continue
            if it[0] == 'fn':
                assert it[1](), 'stream ordering assumption violated'
                self.items.pop(0); continue
            if it[0] == 'cc':
                assert k.vm_n(it[1]) is None, it[1]
                k.use(it[1])
                self.items.pop(0); continue
            if it[0] == 'wv': self.items.pop(0); k.wait_vm(it[1]); continue
            if it[0] == 'wd': self.items.pop(0); k.wait_ds(it[1]); continue
            if it[0] == 'b':
                if usedv: return
                self.items.pop(0)
                for x in it[1]:
                    if isinstance(x, tuple): k.e(x[0], tag=x[1])
                    elif x.endswith(':'): k.label(x[:-1])
                    else: k.e(x)
                return
            c = self.cost(it)
            cls = parse(it[1], 0).cls
            if c == 0:
                if usedv or nscal >= 3: return
                nscal += 1
                if nscal > 1: slots -= 1
            else:
                if c > slots: return
                if cls == 'vmem' and (usedv or nscal): return
                if cls == 'ds' and usedv == 'v': return
                slots -= c
                usedv = 'v' if cls in ('valu', 'trans') else (usedv or 'd')
            self.items.pop(0)
            k.e(it[1], tag=it[2])
            if slots <= 0: return
    def drain(self, k):
        while self.items: self.fill(k, 1 << 30, 2)


_cp = [0]
def code_prefetch(start, end, wave_sgpr, sp, va, vd, whole=False):
    _cp[0] += 1
    L = f"L_cpf{_cp[0]}"
    if whole:
        return [f"s_getpc_b64 s[{sp}:{sp+1}]", f"{L}:",
                f"s_add_u32 s{sp}, s{sp}, ({start}-{L})&0xffffffff",
                f"s_addc_u32 s{sp+1}, s{sp+1}, (({start}-{L})>>32)&0xffffffff",
                f"s_lshl_b32 s{sp+2}, s{wave_sgpr}, 13",
                f"v_lshlrev_b32 v{va+2}, 7, v0", f"v_add_u32 v{va+2}, s{sp+2}, v{va+2}",
                f"v_min_u32 v{va+2}, {end}-{start}-4, v{va+2}",
                f"v_mov_b32 v{va+1}, s{sp+1}",
                f"v_add_co_u32 v{va}, vcc, s{sp}, v{va+2}",
                f"v_addc_co_u32 v{va+1}, vcc, 0, v{va+1}, vcc",
                f"global_load_dword v{vd}, v[{va}:{va+1}], off"]
    return [f"s_getpc_b64 s[{sp}:{sp+1}]", f"{L}:",
            f"s_add_u32 s{sp}, s{sp}, ({start}-{L})&0xffffffff",
            f"s_addc_u32 s{sp+1}, s{sp+1}, (({start}-{L})>>32)&0xffffffff",
            f"s_lshr_b32 s{sp+2}, s2, 3", f"s_lshl_b32 s{sp+2}, s{sp+2}, 2", f"s_add_u32 s{sp+2}, s{sp+2}, s{wave_sgpr}",
            f"s_lshl_b32 s{sp+2}, s{sp+2}, 10",
            f"v_and_b32 v{va+2}, 7, v0", f"v_lshlrev_b32 v{va+2}, 7, v{va+2}", f"v_add_u32 v{va+2}, s{sp+2}, v{va+2}",
            f"v_min_u32 v{va+2}, {end}-{start}-4, v{va+2}",
            f"v_mov_b32 v{va+1}, s{sp+1}",
            f"v_add_co_u32 v{va}, vcc, s{sp}, v{va+2}",
            f"v_addc_co_u32 v{va+1}, vcc, 0, v{va+1}, vcc",
            f"global_load_dword v{vd}, v[{va}:{va+1}], off"]
```

```python
from fw import *
from layout import *
import p4, p4b, p4c
KNAME = 'recurrent_scan__compressed_kv_cla__moe_arch_mod__prompt_kernel'

K12_LDS = 163840
QSCALE = 0x3e0293ee
BIG = 0x7ff00000

def gen_k12(opt):
    k = Asm(KNAME)
    k.short = "f"
    P4 = {'0': p4, '1': p4b, '2': p4c}[opt.get('s2', '2')]
    p4_ptr_loads, p4_setup, phase4 = P4.p4_ptr_loads, P4.p4_setup, P4.phase4
    ST = opt.get('stamp') == '1'
    S1 = opt.get('stamp') == 'p1'
    S2 = opt.get('stamp') == 'p2'
    SA = opt.get('stamp') == 'a'
    S0 = opt.get('stamp') == 'p0'
    w_ld, a_ld, x_ld = opt.get('w_ld', ''), opt.get('a_ld', ''), opt.get('x_ld', '')
    wq_ld, kv_ld, ffn_ld = opt.get('wq_ld', ''), opt.get('kv_ld', ' sc1'), opt.get('ffn_ld', '')
    MAP = int(opt.get('map', 4))
    WOT = opt.get('wot', '0') == '1'
    TK = opt.get('tk', '0') == '1'
    VOA, VOW, AD, PFO = 2, 6, 10, 47
    AA = [[10, 11], [12, 13]]
    WA = [list(range(16, 24)), [14, 15] + list(range(24, 30))]
    FA = lambda it, ks: 224 + (it % 4) * 8 + 4 * ks
    FW = lambda buf, jd, ks: 64 * buf + 8 * jd + 4 * ks
    def frag_of(isV, it, jd):
        return ((it >> 1) * 8 + jd, it & 1) if isV else (it * 4 + (jd >> 1), jd & 1)
    SRC = lambda n: ('v', 48 + 8 * n) if n < 26 else ('a', 128 + 8 * (n - 26))
    def acc(isV, it, jd):
        n, h = frag_of(isV, it, jd)
        p, r = SRC(n)
        return R(p, r + 4 * h, 4)
    PK = lambda n: 24 + 4 * (n if n < 26 else n - 26)
    VX, VY, VDMA, VRA, VRB, ORR, T0 = 2, 3, 4, 5, 6, 7, 1
    WV, XV, TA = 8, 10, 16
    ET = 8
    ONES, NINF = 16, 20
    NEGM, LS, PB, SB = 32, 48, 64, 128
    P = lambda par, qb, ks: PB + 32 * par + (qb * 2 + ks) * 4
    Sr = lambda par, qb, kb: SB + 64 * par + (qb * 4 + kb) * 4
    O = lambda qb, db: (qb * 8 + db) * 4
    Q = lambda qb, s: 128 + (qb * 4 + s) * 4
    FR = lambda grp, j: 192 + 16 * grp + 4 * j
    QA = lambda db, qb: 128 + (qb * 8 + db) * 4
    XR = lambda kk, qb: ((kk % 8) * 4 + qb) * 4
    P2C = opt.get('p2ch', '0') == '1'
    WF = lambda ks, db: 192 + db * 8 + ks * 4 if P2C else 192 + ks * 32 + db * 4

    k.e("s_cmp_ge_u32 s2, 256")
    k.e("s_cbranch_scc1 L_k2_end")
    k.stamp(ST or S0)
    k.e("s_load_dwordx4 s[4:7], s[0:1], 0")
    k.e("s_load_dwordx2 s[44:45], s[0:1], 56")
    k.e("s_load_dwordx4 s[40:43], s[0:1], 24")
    k.e("s_load_dwordx4 s[64:67], s[0:1], 96")
    k.e("v_lshrrev_b32 v1, 6, v0")
    k.e("v_and_b32 v0, 63, v0")
    k.e("v_readfirstlane_b32 s32, v1")
    def emit(lst, o=None):
        for x in lst:
            if x.endswith(':'): k.label(x[:-1])
            else: k.e(x, tag='cpf')
    CPF = opt.get('cpf', '12346')
    if '1' in CPF: emit(code_prefetch(KNAME, "L_k2_fin", 32, 68, 120, 124))
    k.e("v_lshrrev_b32 v33, 5, v0")
    k.e("v_and_b32 v31, 31, v0")
    k.e("v_lshlrev_b32 v36, 4, v31")
    k.e("v_lshl_add_u32 v35, v33, 11, v36")
    k.e("s_lshl_b32 s36, s2, 14")
    k.e("s_lshl_b32 s37, s32, 12")
    k.e("s_add_u32 s36, s36, s37")
    k.e("s_mov_b32 s18, 4194304")
    k.e("s_mov_b32 s19, 0x20000")
    k.e("s_bfe_u32 s33, s2, 0x30003")
    k.e("s_lshr_b32 s35, s2, 7")
    k.e("s_bfe_u32 s3, s2, 0x10006")
    k.e("s_and_b32 s34, s2, 7")
    k.e("s_lshl_b32 s34, s34, 1")
    k.e("s_add_u32 s34, s34, s3")
    k.e("s_waitcnt lgkmcnt(0)")
    k.stamp(S0)
    k.e("s_mov_b32 s16, s4")
    k.e("s_and_b32 s17, s5, 0xffff")
    XP, WR, XF = 48, 64, 80
    for i in range(4):
        k.e(f"buffer_load_dwordx4 {V(XP+4*i,4)}, v35, s[16:19], s36 offen offset:{i*512}{x_ld}", tag='x')
    k.e("s_cmp_eq_u32 s35, 0")
    k.e("s_cselect_b32 s40, s40, s42")
    k.e("s_cselect_b32 s41, s41, s43")
    k.e("s_lshl_b32 s3, s34, 9")
    k.srd(12, 40, 0, "s3")
    k.e("s_sub_u32 s14, 4194304, s3")
    k.e("s_lshl_b32 s3, s33, 18")
    k.srd(8, 6, 262144, "s3")
    KX = int(opt.get('kx', 7))
    k.e(f"s_and_b32 s58, s2, {KX}")
    def dma_ops(buf):
        ops = []
        for (base, vo, so, srd, fl) in ((57, VOW, 52, 12, w_ld), (56, VOA, 48, 8, a_ld)):
            for hi in range(2):
                ops.append(('s', f"s_add_u32 m0, s{base}, {buf*65536 + hi*4096}"))
                for lo in range(4):
                    ops.append(('g', f"buffer_load_dwordx4 v{vo + (lo&1) + 2*hi}, {S(srd,4)}, s{so+lo} offen offset:{lo*1024}{fl} lds"))
        return ops
    def adv_ops(j):
        x = j ^ (j + 1)
        return [f"v_xor_b32 v{VOW+q}, {x << 19}, v{VOW+q}" for q in range(4)] + [f"v_xor_b32 v{VOA+q}, {x << 7}, v{VOA+q}" for q in range(4)]
    PF0 = int(opt.get('pf0', 2))
    pfc = [PF0]
    def pf_ops():
        j = pfc[0]; pfc[0] += 1
        return [f"buffer_load_dword v1, v{PFO}, s[60:63], 0 offen{opt.get('pf_ld', '')}",
                f"s_mul_i32 vcc_lo, s59, {(j ^ (j + 1)) & 7}", f"v_xor_b32 v{PFO}, vcc_lo, v{PFO}"]
    def setup_P():
        k.e("s_cmp_lt_u32 s32, 2")
        for j in range(3): k.e(f"s_cselect_b32 s{60+j}, s{8+j}, s{12+j}")
        k.e("s_mov_b32 s63, 0x20000")
        k.e(f"s_mov_b32 s59, {64*8192}")
        k.e("s_cselect_b32 s59, 128, s59")
        k.e("s_cselect_b64 vcc, -1, 0")
        k.e("s_cselect_b32 s38, 32, 16")
        k.e("s_lshr_b32 s3, s2, 6")
        k.e("s_cmp_lt_u32 s32, 2")
        k.e("s_cselect_b32 s3, s3, s33")
        k.e("s_lshl_b32 s3, s3, 1")
        k.e("s_and_b32 s39, s32, 1")
        k.e("s_add_u32 s3, s3, s39")
        k.e("s_lshl_b32 s3, s3, 15")
        k.e(f"s_xor_b32 s39, s58, {PF0}")
        k.e("s_mul_i32 s39, s39, s59")
        k.e("s_add_u32 s3, s3, s39")
        k.e("v_lshlrev_b32 v37, 10, v0")
        k.e("v_lshrrev_b32 v38, 2, v0")
        k.e("v_lshlrev_b32 v38, 13, v38")
        k.e("v_and_b32 v39, 3, v0")
        k.e("v_lshl_add_u32 v38, v39, 7, v38")
        k.e(f"v_cndmask_b32 v{PFO}, v38, v37, vcc")
        k.e(f"v_add_u32 v{PFO}, s3, v{PFO}")
        k.e("v_cmp_gt_u32 vcc, s38, v0")
        k.e(f"v_mov_b32 v37, {BIG}")
        k.e(f"v_cndmask_b32 v{PFO}, v37, v{PFO}, vcc")
    def setup_W():
        for j in range(4): k.e(f"s_mov_b32 s{52+j}, {j*15360}")
        k.e("s_lshl_b32 s57, s32, 13")
        k.e("s_add_u32 s56, s57, 32768")
        k.e("s_lshl_b32 s3, s58, 2")
        k.e("s_add_u32 s3, s3, s32")
        k.e("s_lshl_b32 s3, s3, 4")
        k.e("v_add_u32 v30, s3, v33")
        k.e("v_lshlrev_b32 v30, 13, v30")
        k.e("v_lshlrev_b32 v34, 5, v33")
        k.e("v_xor_b32 v34, v34, v36")
        k.e(f"v_add_u32 v{VOW}, v34, v30")
        k.e(f"v_xor_b32 v{VOW+1}, 64, v{VOW}")
        k.e(f"v_xor_b32 v{VOW+2}, {8*8192 + 128}, v{VOW}")
        k.e(f"v_xor_b32 v{VOW+3}, {8*8192 + 192}, v{VOW}")
    def setup_A():
        for j in range(4): k.e(f"s_mov_b32 s{48+j}, {j*7168}")
        k.e("v_lshrrev_b32 v30, 3, v0")
        k.e("v_lshlrev_b32 v30, 10, v30")
        k.e("s_lshl_b32 s3, s32, 16")
        k.e("s_lshl_b32 s39, s58, 7")
        k.e("s_add_u32 s3, s3, s39")
        k.e("v_and_b32 v31, 7, v0")
        k.e("v_lshrrev_b32 v32, 4, v0")
        k.e("v_xor_b32 v31, v31, v32")
        k.e("v_lshl_add_u32 v30, v31, 4, v30")
        k.e(f"v_add_u32 v{VOA}, s3, v30")
        k.e(f"v_xor_b32 v{VOA+1}, 64, v{VOA}")
        k.e(f"v_xor_b32 v{VOA+2}, 32768, v{VOA}")
        k.e(f"v_xor_b32 v{VOA+3}, {32768 + 64}, v{VOA}")
    def setup_D():
        k.srd(20, 66, 8 << 20)
        k.srd(24, 66, 32 * KV_HEAD, WS_KV)
        k.e("v_lshrrev_b32 v32, 4, v0")
        k.e("v_and_b32 v30, 15, v0")
        k.e("s_lshr_b32 s3, s32, 1")
        k.e("s_lshl_b32 s3, s3, 14")
        k.e("s_add_u32 s3, s3, 32768")
        k.e("v_lshlrev_b32 v31, 7, v30")
        k.e("v_add_u32 v31, s3, v31")
        k.e("v_lshrrev_b32 v34, 1, v30")
        k.e("v_xor_b32 v34, v34, v32")
        k.e(f"v_lshl_add_u32 v{AA[0][0]}, v34, 4, v31")
        k.e(f"v_xor_b32 v{AA[0][1]}, 64, v{AA[0][0]}")
        k.e("v_lshrrev_b32 v30, 2, v30")
        k.e("v_lshl_add_u32 v31, v32, 3, v30")
        k.e("v_lshlrev_b32 v31, 9, v31")
        k.e("v_and_b32 v34, 3, v0")
        k.e("v_lshl_add_u32 v31, v34, 3, v31")
        k.e("s_and_b32 s3, s32, 1")
        k.e("s_lshl_b32 s3, s3, 8")
        k.e("v_add_u32 v31, s3, v31")
        k.e("v_and_b32 v34, 1, v32")
        k.e("v_lshl_add_u32 v30, v34, 2, v30")
        k.e(f"v_lshl_add_u32 v{WA[0][0]}, v30, 5, v31")
        for jj in range(1, 8): k.e(f"v_xor_b32 v{WA[0][jj]}, {jj*32}, v{WA[0][0]}")
        for x0, x1 in zip(AA[0] + WA[0], AA[1] + WA[1]): k.e(f"v_add_u32 v{x1}, 65536, v{x0}")
    def act(seq):
        for x in seq.split(','):
            if not x: continue
            if x in 'PWAD': {'P': setup_P, 'W': setup_W, 'A': setup_A, 'D': setup_D}[x]()
            elif x == 'p':
                for s in pf_ops(): k.e(s, tag='pf')
            elif x == 'r':
                k.srd(28, 44, 2048)
                for i in range(4):
                    k.e(f"buffer_load_dwordx4 {V(WR+4*i,4)}, v36, s[28:31], 0 offen offset:{i*512}", tag='wr')
            else:
                st = int(x[1]); h = 0 if x[0] == 'w' else 1
                for t, s in dma_ops(st)[10*h:10*h+10]: k.e(s, tag=x + 'd')
                for s in adv_ops(st)[4*h:4*h+4]: k.e(s)
    PRO = opt.get('pro', 'W,w0,A,P,D,r/a0///').split('/')
    act(PRO[0])
    k.stamp(S0)
    def sum32(v, t):
        for m in ["quad_perm:[1,0,3,2]", "quad_perm:[2,3,0,1]", "row_half_mirror", "row_mirror"]:
            k.e(f"v_add_f32_dpp v{v}, v{v}, v{v} {m} row_mask:0xf bank_mask:0xf")
        k.e(f"v_mov_b32 v{t}, v{v}")
        k.e(f"v_permlane16_swap_b32 v{t}, v{v}")
        k.e(f"v_add_f32 v{v}, v{v}, v{t}")
    k.wait_vm('x')
    k.stamp(S0)
    for i in range(16):
        k.e(f"v_lshlrev_b32 v{XF+2*i}, 16, v{XP+i}")
        k.e(f"v_and_b32 v{XF+2*i+1}, 0xffff0000, v{XP+i}")
    k.e(f"v_pk_add_f32 v[40:41], {V(XF,2)}, {V(XF+2,2)}")
    k.e(f"v_pk_add_f32 v[42:43], {V(XF+4,2)}, {V(XF+6,2)}")
    for i in range(4, 16):
        d = 40 + 2 * (i & 1)
        k.e(f"v_pk_add_f32 {V(d,2)}, {V(d,2)}, {V(XF+2*i,2)}")
    k.e("v_pk_add_f32 v[40:41], v[40:41], v[42:43]")
    k.e("v_add_f32 v38, v40, v41")
    sum32(38, 37)
    k.stamp(S0)
    act(PRO[1])
    k.e("v_mul_f32 v38, 0xba800000, v38")
    k.e("v_mov_b32 v39, v38")
    T = 112
    for i in range(16):
        k.e(f"v_pk_add_f32 {V(T+2*(i&3),2)}, {V(XF+2*i,2)}, v[38:39]")
        d = 40 + 2 * (i & 1)
        if i < 2: k.e(f"v_pk_mul_f32 {V(d,2)}, {V(T+2*(i&3),2)}, {V(T+2*(i&3),2)}")
        else: k.e(f"v_pk_fma_f32 {V(d,2)}, {V(T+2*(i&3),2)}, {V(T+2*(i&3),2)}, {V(d,2)}")
    k.e("v_pk_add_f32 v[40:41], v[40:41], v[42:43]")
    k.e("v_add_f32 v40, v40, v41")
    sum32(40, 37)
    act(PRO[2])
    k.stamp(S0)
    k.e("v_mul_f32 v40, 0x3a800000, v40")
    k.e("v_cvt_pk_bf16_f32 v44, v38, v40")
    k.e("v_lshlrev_b32 v38, 16, v44")
    k.e("v_and_b32 v40, 0xffff0000, v44")
    k.e("v_add_f32 v40, 0x3727c5ac, v40")
    k.e("v_cvt_pk_bf16_f32 v44, v40, v40")
    k.e("v_lshlrev_b32 v40, 16, v44")
    k.e("v_sqrt_f32 v40, v40")
    k.e("v_mov_b32 v39, v38")
    k.e("v_cvt_pk_bf16_f32 v44, v40, v40")
    k.e("v_lshlrev_b32 v44, 16, v44")
    k.e("v_rcp_f32 v40, v44")
    for i in range(16):
        k.e(f"v_pk_add_f32 {V(XF+2*i,2)}, {V(XF+2*i,2)}, v[38:39]")
    k.e("v_fma_f32 v45, -v44, v40, 1.0")
    k.e("v_fma_f32 v40, v45, v40, v40")
    k.e("v_mov_b32 v41, v40")
    for i in range(16):
        k.e(f"v_cvt_pk_bf16_f32 v{XP+i}, v{XF+2*i}, v{XF+2*i+1}")
    for i in range(16):
        k.e(f"v_lshlrev_b32 v{XF+2*i}, 16, v{XP+i}")
        k.e(f"v_and_b32 v{XF+2*i+1}, 0xffff0000, v{XP+i}")
    for i in range(16):
        k.e(f"v_pk_mul_f32 {V(XF+2*i,2)}, {V(XF+2*i,2)}, v[40:41]")
    for i in range(16):
        k.e(f"v_cvt_pk_bf16_f32 v{XP+i}, v{XF+2*i}, v{XF+2*i+1}")
    k.e("s_mul_i32 s3, s32, 4128")
    k.e("s_add_u32 s3, s3, 131072")
    k.e("v_mul_u32_u24 v42, 2064, v33")
    k.e("v_add3_u32 v42, v42, v36, s3")
    for i in range(4):
        k.e(f"ds_write_b128 v42, {V(XP+4*i,4)} offset:{i*512}")
    act(PRO[3])
    k.stamp(S0)
    k.wait_vm('wr')
    k.stamp(S0)
    for i in range(16):
        k.e(f"v_lshlrev_b32 v{XF+2*i}, 16, v{XP+i}")
        k.e(f"v_and_b32 v{XF+2*i+1}, 0xffff0000, v{XP+i}")
        k.e(f"v_lshlrev_b32 v{T+2*(i&3)}, 16, v{WR+i}")
        k.e(f"v_and_b32 v{T+2*(i&3)+1}, 0xffff0000, v{WR+i}")
        d = 42 + 2 * (i & 1)
        if i < 2: k.e(f"v_pk_mul_f32 {V(d,2)}, {V(XF+2*i,2)}, {V(T+2*(i&3),2)}")
        else: k.e(f"v_pk_fma_f32 {V(d,2)}, {V(XF+2*i,2)}, {V(T+2*(i&3),2)}, {V(d,2)}")
    k.e("v_pk_add_f32 v[42:43], v[42:43], v[44:45]")
    k.e("v_add_f32 v45, v42, v43")
    sum32(45, 37)
    k.e("v_cvt_pk_bf16_f32 v45, v45, v45")
    k.e("v_ashrrev_i32 v46, 31, v45")
    k.e("v_or_b32 v46, 0x80000000, v46")
    k.e("v_xor_b32 v45, v45, v46")
    k.e("v_and_b32 v45, 0xffff0000, v45")
    k.e("s_lshr_b32 s3, s36, 11")
    k.e("v_add_u32 v46, s3, v33")
    k.e("v_sub_u32 v44, 0xffff, v46")
    k.e("v_or_b32 v45, v45, v44")
    k.e("v_lshlrev_b32 v44, 2, v46")
    k.e("v_lshlrev_b32 v46, 3, v46")
    k.e("v_xor_b32 v38, 0x80000000, v38")
    k.e("v_mov_b32 v39, v40")
    k.e(f"s_mov_b32 s3, {WS_KEYS}")
    k.e(f"s_mov_b32 s39, {WS_STATS}")
    k.e("s_mov_b32 exec_lo, 1")
    k.e("s_mov_b32 exec_hi, 1")
    k.e("buffer_store_dword v45, v44, s[20:23], s3 offen sc1", tag='ln')
    k.e("buffer_store_dwordx2 v[38:39], v46, s[20:23], s39 offen sc1", tag='ln')
    k.e("s_mov_b64 exec, -1")
    k.e("s_load_dwordx2 s[4:5], s[0:1], 16")
    k.e("s_load_dwordx4 s[40:43], s[0:1], 64")
    k.e("s_load_dwordx2 s[92:93], s[0:1], 40")
    k.e("s_load_dwordx2 s[94:95], s[0:1], 80")
    k.e("s_load_dwordx2 s[100:101], s[0:1], 0")
    act(PRO[4])
    PFN = pfc[0] - 2
    k.srd(28, 64, 256)

    def areads(st, pr):
        return [f"ds_read_b128 {A(FA(it,ks),4)}, v{AA[st & 1][ks]} offset:{it*2048}" for it in (2 * pr, 2 * pr + 1) for ks in range(2)]
    def wfreads(st):
        return [[f"ds_read_b64_tr_b16 {A(FW(st & 1,j,ks)+2*rd,2)}, v{WA[st & 1][j]} offset:{ks*16384+rd*2048}" for rd in range(2)]
                for j in range(8) for ks in range(2)]
    k.stamp(S0)
    k.wait_vm('w0d'); k.wait_vm('a0d')
    k.e("s_waitcnt lgkmcnt(0)")
    k.e("s_barrier")
    k.stamp(ST or S0)
    for s in areads(0, 0): k.e(s, tag='A0_0')
    for n, grp in enumerate(wfreads(0)):
        for s in grp: k.e(s, tag=f'W0_{n // 2}')
    k.e("s_cmp_lg_u32 s35, 0")
    k.e("s_cbranch_scc1 L_k1_vpath")

    def chunk_ops(c):
        kind, j = c
        slot = {'w': j % 4, 'kv': (j + 4) % 8}[kind]
        ops = [('s', f"s_add_u32 m0, s44, {slot * 16384}")]
        if kind == 'w':
            for q in range(4):
                ops.append(('g', f"buffer_load_dwordx4 v{WV + (q >> 1)}, s[8:11], s{48+q} offen offset:{q*1024}{wq_ld} lds"))
            ops.append(('v', f"v_xor_b32 v{WV}, {((j ^ (j + 1)) & 15) << 19}, v{WV}"))
            ops.append(('v', f"v_xor_b32 v{WV+1}, {((j ^ (j + 1)) & 15) << 19}, v{WV+1}"))
        elif kind == 'f':
            for q in range(4):
                ops.append(('g', f"buffer_load_dwordx4 v{12 + (q >> 1) + 2 * (j & 1)}, {S(60 + 8 * (j >> 1), 4)}, s{52+q} offen offset:{q*1024}{ffn_ld} lds"))
        else:
            ops.append(('s', f"s_mov_b32 s7, {j * KV_CH}"))
            for q in range(4):
                ops.append(('g', f"buffer_load_dwordx4 v{VDMA}, s[12:15], s7 offen offset:{q*1024}{kv_ld} lds"))
        return ops
    QX = int(opt.get('qx', -1))
    def xn_ops(kk):
        ops = []
        for qb in range(4):
            so = "s52" if qb & 1 else "s53"
            ops.append(('g', f"buffer_load_dwordx4 {A(XR(kk,qb),4)}, v{XV + (qb >> 1)}, s[20:23], {so} offen offset:{(kk % 2)*1024}{opt.get('xn_ld', ' sc1')}"))
        if kk % 2 == 1 and kk < 31:
            st = kk // 2
            ops.append(('v', f"s_xor_b32 s52, s52, {(st ^ (st + 1)) << 11}"))
            ops.append(('v', "s_add_u32 s53, s52, s58"))
        return ops
    def wreads(kk):
        st = kk // 2
        return [[f"ds_read_b64_tr_b16 {A(WF(ks,db)+2*rd,2)}, v{TA+db} offset:{(st % 4)*16384 + ks*8192 + rd*1024}" for rd in range(2)]
                for db, ks in ([(d, q) for d in range(4 * (kk & 1), 4 * (kk & 1) + 4) for q in range(2)] if P2C else [(d, kk & 1) for d in range(8)])]
    ool = []
    def spin(lab, ret, off, target, vd, vz, sv, sc):
        def fn():
            k.e(f"s_mov_b32 s{sc}, 0x400000")
            k.label(lab + "_l")
            k.e(f"s_sleep {opt.get('slp', 8)}")
            k.e(f"buffer_load_dword v{vd}, v{vz}, s[28:31], {off} offen sc1")
            k.e("s_waitcnt vmcnt(0)")
            k.e(f"v_readfirstlane_b32 s{sv}, v{vd}")
            k.e(f"s_sub_u32 s{sc}, s{sc}, 1")
            k.e(f"s_cmp_eq_u32 s{sc}, 0")
            k.e(f"s_cbranch_scc1 {ret}")
            k.e(f"s_cmp_lt_u32 s{sv}, {target}")
            k.e(f"s_cbranch_scc1 {lab}_l")
        ool.append((lab, fn, ret))
    def srd_rec(b, d, base, nbytes, add=None):
        if add is None:
            b.e(f"s_mov_b32 s{d}, s{base}"); b.e(f"s_and_b32 s{d+1}, s{base+1}, 0xffff")
        else:
            b.blk([f"s_add_u32 s{d}, s{base}, {add}", f"s_addc_u32 s{d+1}, s{base+1}, 0", f"s_and_b32 s{d+1}, s{d+1}, 0xffff"])
        b.e(f"s_mov_b32 s{d+2}, {nbytes}"); b.e(f"s_mov_b32 s{d+3}, 0x20000")

    def phase1_stream(isV):
        b = Rec()
        tg = 'v' if isV else 'k'
        b.e("v_and_b32 v46, 7, v0")
        b.e("v_lshrrev_b32 v1, 3, v0") if False else None
        b.e("v_mul_u32_u24 v30, 2064, v46")
        b.e("v_lshrrev_b32 v31, 3, v0")
        b.e("s_lshl_b32 s3, s32, 9")
        b.e("s_add_u32 s3, s3, 131072")
        b.e("v_lshl_add_u32 v30, v31, 4, v30")
        b.e("v_add_u32 v30, s3, v30")
        b.e("v_lshlrev_b32 v31, 8, v31")
        b.e("v_lshl_add_u32 v46, v46, 4, v31")
        for i in (1, 2, 3, 0):
            b.e(f"ds_read_b128 {V(30+4*i,4)}, v30 offset:{i*128}", tag='xs')
        b.e("s_lshr_b32 s3, s2, 1")
        b.e(f"s_mul_i32 s3, s3, {XN_RB}")
        b.e("s_add_u32 s3, s3, s57")
        b.e("s_and_b32 s39, s2, 1")
        b.e("s_lshl_b32 s39, s39, 7")
        b.e("s_add_u32 s3, s3, s39")
        b.e("s_add_u32 s39, s3, 4096")
        b.at(2)
        for i in range(4):
            b.e(f"buffer_store_dwordx4 {V(30+4*i,4)}, v46, s[20:23], s{3 if i < 2 else 39} offen offset:{(i&1)*2048} sc1", tag='ln')
        b.e("s_lshl_b32 s3, s34, 1")
        b.e("s_and_b32 s36, s32, 1")
        b.e("s_add_u32 s3, s3, s36")
        b.e(f"s_mul_i32 s3, s3, {KV_HEAD}")
        b.e(f"s_mul_i32 s36, s33, {4*KV_TILE}")
        b.e("s_add_u32 s3, s3, s36")
        b.e("s_lshr_b32 s36, s32, 1")
        b.e(f"s_mul_i32 s36, s36, {2*KV_TILE}")
        b.e("s_add_u32 s3, s3, s36")
        b.e(f"s_add_u32 s38, s3, {KV_CH if isV else 0}")
        b.e("s_lshl_b32 s39, s34, 7")
        b.e("s_lshl_b32 s36, s33, 2")
        b.e("s_add_u32 s39, s39, s36")
        b.e(f"s_add_u32 s39, s39, {WS_FLG + (32 if isV else 0)}")
        b.e("v_mov_b32 v30, 1")
        b.e("v_mov_b32 v31, 0")
        b.blk(["s_cmp_eq_u32 s32, 0", f"s_cselect_b32 s39, s39, {BIG}"])
        b.blk(["s_mov_b64 exec, 1", ("buffer_store_dword v31, v31, s[20:23], s39 offen sc1", 'ln'), "s_mov_b64 exec, -1"])
        if MAP == 4:
            b.e("s_and_b32 s33, s2, 7")
            b.e("s_lshl_b32 s33, s33, 2")
            b.e("s_bfe_u32 s3, s2, 0x20003")
            b.e("s_add_u32 s33, s33, s3")
            b.e("s_lshr_b32 s34, s2, 5")
        else:
            b.e("s_and_b32 s33, s2, 6")
            b.e("s_lshl_b32 s33, s33, 2")
            b.e("s_bfe_u32 s3, s2, 0x30003")
            b.e("s_add_u32 s33, s33, s3")
            b.e("s_lshr_b32 s34, s2, 6")
            b.e("s_lshl_b32 s34, s34, 1")
            b.e("s_and_b32 s3, s2, 1")
            b.e("s_add_u32 s34, s34, s3")
        b.e("s_lshl_b32 s64, s34, 7")
        b.e("s_lshl_b32 s3, s33, 2")
        b.e("s_add_u32 s64, s64, s3")
        b.e(f"s_add_u32 s64, s64, {WS_CFL}")
        b.e("s_lshl_b32 s65, s34, 8")
        b.e("s_sub_u32 s65, 1920, s65")
        b.e("v_mul_u32_u24 v32, s65, v0")
        b.blk(["s_cmp_eq_u32 s32, 0", f"s_cselect_b32 s64, s64, {BIG}"])
        b.blk(["s_mov_b64 exec, 3", ("buffer_store_dword v31, v32, s[20:23], s64 offen sc1", 'ln'), "s_mov_b64 exec, -1"])
        b.e("s_lshl_b32 s3, s2, 2")
        b.e(f"s_add_u32 s3, s3, {WS_HFL}")
        b.e("v_lshlrev_b32 v32, 10, v0")
        b.blk(["s_cmp_eq_u32 s32, 0", f"s_cselect_b32 s3, s3, {BIG}"])
        b.blk(["s_mov_b64 exec, 0x1ff", ("buffer_store_dword v31, v32, s[20:23], s3 offen sc1", 'ln'), "s_mov_b64 exec, -1"])
        b.e("s_lshl_b32 s35, s34, 1")
        b.e("s_sub_u32 s36, 32, s35")
        b.e("s_add_u32 s35, s35, 2")
        b.e("s_lshl_b32 s44, s32, 12")
        b.e("s_lshl_b32 s58, s32, 1")
        b.e("s_sub_u32 s58, 7, s58")
        b.e(f"s_mul_i32 s58, s58, {XN_RB}")
        b.e("s_sub_u32 s3, 15, s34")
        b.e("s_lshl_b32 s45, s3, 3")
        b.e("s_add_u32 s45, s45, s32")
        b.e("s_lshl_b32 s46, s34, 3")
        b.e("s_add_u32 s46, s46, s32")
        srd_rec(b, 68, 42, 7340032)
        b.blk(["s_cmp_eq_u32 s32, 0", f"s_cselect_b32 s37, 0, {BIG}"])
        b.e("s_lshl_b32 s3, s33, 8")
        srd_rec(b, 16, 4, 0, "s3")
        b.e("s_sub_u32 s18, 8388608, s3")
        WQN = int(opt.get('wqn', 4))
        ln_ = (64 if MAP == 4 else 128) // WQN
        b.e(f"v_and_b32 v33, {ln_ - 1}, v0")
        b.e("v_lshrrev_b32 v32, 1, v33")
        b.e("v_and_b32 v33, 1, v0")
        b.e("v_lshlrev_b32 v32, 13, v32")
        b.e("v_lshl_add_u32 v45, v33, 7, v32")
        b.e("s_lshl_b32 s3, s32, 3")
        b.e("s_add_u32 s3, s3, s34")
        if MAP != 4: b.e("s_lshr_b32 s3, s3, 1")
        b.e(f"s_mul_i32 s47, s3, {ln_ // 2 * 8192}")
        WQ0 = int(opt.get('wq0', 6))
        ev = []
        for j in range(WQN): ev.append((WQ0 + j * float(opt.get('wqs', 2)), 'pf', j))
        NS = int(opt.get('cas', 4))
        for j in range(NS): ev.append((5.2 + j * float(opt.get('cad', 1.2)), 'ca', j))
        b.e(f"s_bfe_u32 s6, s2, {(NS.bit_length() - 1) << 16 | 3}")
        b.e("s_lshl_b32 s3, s32, 8")
        b.e("s_or_b32 s6, s6, s3")
        WOP = WOT
        if WOP:
            b.e("v_bfe_u32 v39, v0, 3, 1")
            b.e("v_and_b32 v33, 7, v0")
            b.e("v_lshlrev_b32 v39, 11, v39")
            b.e("v_lshl_add_u32 v39, v33, 7, v39")
            b.e("s_lshr_b32 s3, s2, 1")
            b.e("s_lshl_b32 s3, s3, 16")
            b.e("v_add_u32 v39, s3, v39")
            b.e("s_and_b32 s3, s2, 1")
            b.e("s_lshl_b32 s3, s3, 10")
            b.e("v_add_u32 v39, s3, v39")
            b.e("s_lshl_b32 s3, s32, 14")
            b.e("v_add_u32 v39, s3, v39")
            ev.append((5.99, 'srd', 0))
            for j in range(4): ev.append((float(opt.get('wop0', 6)) + j * 2 + 0.01, 'wo', j))
        late = []
        for step, kind, j in sorted(ev):
            o = b
            if step >= 12:
                o = Rec(); late.append(o)
            o.at(step)
            if kind == 'ca':
                o.check_clear('ln')
                o.blk([f"s_cmp_eq_u32 s6, {j}", f"s_cselect_b32 s3, 0, {BIG}"])
                o.blk(["s_mov_b64 exec, 1", "buffer_atomic_add v30, v31, s[28:31], s3 offen sc1", "s_mov_b64 exec, -1"])
            elif kind == 'srd':
                srd_rec(o, 60, 92, 8388608)
            elif kind == 'wo':
                o.e("buffer_load_dword v44, v39, s[60:63], 0 offen", tag='pf')
                o.e("v_add_u32 v39, 4096, v39")
            else:
                o.e(f"buffer_load_dword v44, v45, s[{16 if step < 12 else 8}:{19 if step < 12 else 11}], s47 offen{opt.get('wqpf_ld', '')}", tag='pf')
                o.e(f"s_add_u32 s47, s47, {1024 // WQN * 8192}")
        b.e("v_lshrrev_b32 v32, 4, v0")
        b.e("v_and_b32 v33, 15, v0")
        b.e("s_lshl_b32 s3, s32, 4")
        b.e("v_add_u32 v34, s3, v32")
        b.e("v_lshlrev_b32 v36, 1, v32")
        b.e("v_xor_b32 v36, v36, v33")
        b.e("v_xor_b32 v37, 8, v36")
        if '2' in CPF:
            b.at(10.1)
            cp = code_prefetch("L_phase2", "L_k2_fin", 32, 6, 40, 38)
            cp = [x.replace("s8", "s3") for x in cp]
            b.blk(cp[:4])
            for x in cp[4:-3]: b.e(x)
            b.blk(cp[-3:-1])
            b.e(cp[-1])
        b.at(12)
        b.e("buffer_load_dword v1, v31, s[28:31], s37 offen sc1", tag='poll')
        for j in range(3): b.e(f"s_mov_b32 s{8+j}, s{16+j}")
        srd_rec(b, 16, 66, 16 << 20, WS_CTX)
        for j in range(4): b.e(f"s_mov_b32 s{48+j}, {j*31744}")
        b.e("v_lshlrev_b32 v35, 13, v34")
        b.e(f"s_and_b32 s52, s33, {3 if QX >= 0 else 0}")
        b.e(f"s_lshl_b32 s3, s52, {19 + max(QX, 0)}")
        b.e(f"s_lshl_b32 s52, s52, {11 + max(QX, 0)}")
        b.e("s_add_u32 s53, s52, s58")
        b.e("v_add_u32 v35, s3, v35")
        b.e(f"v_lshl_add_u32 v{WV}, v36, 4, v35")
        b.e(f"v_lshl_add_u32 v{WV+1}, v37, 4, v35")
        b.e(f"v_lshlrev_b32 v{VX}, 4, v0")
        b.e(f"v_add_u32 v{VY}, 65536, v{VX}")
        b.e(f"v_add_u32 v{VDMA}, s44, v{VX}")
        b.e("v_mov_b32 v7, 0")
        b.e("v_lshlrev_b32 v35, 2, v32")
        b.e("v_sub_u32 v35, v33, v35")
        b.e("s_lshl_b32 s3, s32, 4")
        b.e(f"v_add_u32 v{VRA}, s3, v35")
        b.e("s_sub_u32 s3, 48, s3")
        b.e(f"v_add_u32 v{VRB}, s3, v35")
        b.e(f"s_mul_i32 s3, s33, {KV_HEAD}")
        b.e(f"s_add_u32 s3, s3, {WS_KV}")
        srd_rec(b, 12, 66, 0, "s3")
        b.e(f"s_mul_i32 s14, s36, {KV_TILE}")
        for o in late: b.items += o.items
        ta_setup(b)
        b.at(13.4)
        b.e(f"s_mul_i32 s3, s45, {XN_RB}")
        b.e(f"v_add_u32 v{XV}, s3, v{VX}")
        b.e(f"s_mul_i32 s3, s46, {XN_RB}")
        b.e(f"v_add_u32 v{XV+1}, s3, v{VX}")
        if '6' in CPF:
            b.at(14)
            b.e("v_mov_b32 v14, v40"); b.e("v_mov_b32 v15, v41")
        if 'dbg_noxn' in opt:
            b.e(f"v_mov_b32 v{XV}, {BIG}"); b.e(f"v_mov_b32 v{XV+1}, {BIG}")
        if 'dbg_nowq' in opt: b.e("s_mov_b32 s10, 0")
        if 'dbg_nost' in opt: b.e("s_mov_b32 s26, 0")
        spin(f"L_spinA{tg}", f"L_spinAr{tg}", 0, 256, 1, 7, 3, 47)
        return b
    def ta_setup(b):
        b.e("v_lshrrev_b32 v42, 2, v33")
        b.e("v_lshl_add_u32 v43, v32, 3, v42")
        b.e("v_lshlrev_b32 v43, 8, v43")
        b.e("v_and_b32 v46, 3, v0")
        b.e("v_lshl_add_u32 v43, v46, 3, v43")
        b.e("v_and_b32 v46, 1, v32")
        b.e("v_lshl_add_u32 v42, v46, 2, v42")
        b.e(f"v_lshl_add_u32 v{TA}, v42, 5, v43")
        for db in range(1, 8): b.e(f"v_xor_b32 v{TA+db}, {32*db}, v{TA}")

    NS7 = int(opt.get('ns7', 6))
    def kvstore_ops(n):
        off = (n >> 4) * KV_TILE + (n & 15) * 1024
        return ([f"s_add_u32 s59, s38, {off}"] if n % 4 == 0 else []) + \
               [f"buffer_store_dwordx4 {V(PK(n),4)}, v{VX}, s[24:27], s59 offen offset:{(n % 4)*1024}{opt.get('kv_st', ' sc1')}"]
    def place_vm(g, gt, scal, ops, start, step):
        gi = start
        for t, s, tg in ops:
            if t == 's': scal.setdefault(gi - 1, []).append(s)
            elif t == 'g':
                assert gi not in g and gi < 128, gi
                g[gi] = [s]; gt[gi] = tg; gi += step
            else:
                q = gi - step + 1
                while (q in g and (len(g[q]) >= 2 or g[q][-1].startswith(('buffer', 'ds_read_b64')))) or ((q - start) % step == 0 and q < 127): q += 1
                g.setdefault(min(q, 127), []).append(s)
    vq0, dq0 = list(k.vq), list(k.dq)
    for isV in (0, 1):
        if isV:
            k.label("L_k1_vpath"); k.win = []; k.vq = list(vq0); k.dq = list(dq0)
        b = phase1_stream(isV)
        if S1: k.nstamp = 0
        for st in range(8):
            p = st & 1
            k.stamp(S1)
            g = {}; gt = {}; scal = {}
            for pr in range(4):
                s2, p2 = (st, pr + 1) if pr < 3 else (st + 1, 0)
                if s2 < 8:
                    for q, s in enumerate(areads(s2, p2)):
                        x = 32 * pr + 3 + 4 * q
                        g[x] = [s]; gt[x] = f'A{s2}_{p2}'
                    scal.setdefault(32 * pr + 30, []).append(('w', f'A{s2}_{p2}'))
            if st < 7:
                free = [x for x in range(65, 122, 2) if x not in g]
                for n, grp in enumerate(wfreads(st + 1)):
                    x = free[(n * len(free)) // 16]
                    g[x] = grp; gt[x] = f'W{st+1}'
                scal.setdefault(127, []).append(('w', f'W{st+1}'))
                scal.setdefault(61, []).append(('v', f'w{st+1}d')); scal.setdefault(62, []).append("s_barrier")
                scal.setdefault(93, []).append(('v', f'a{st+1}d')); scal.setdefault(94, []).append("s_barrier")
            if st == 0:
                ops = []
                for h, nm in enumerate(('w1', 'a1')):
                    if nm not in '/'.join(PRO):
                        ops += [(t, s, nm + 'd') for t, s in dma_ops(1)[10*h:10*h+10]] + [('v', s, None) for s in adv_ops(1)[4*h:4*h+4]]
                place_vm(g, gt, scal, ops, 2, int(opt.get('st1s', 2)))
                pfc[0] = 2 + PFN
                for q in range(int(opt.get('pfk', 1))):
                    po = pf_ops()
                    assert 44 + 4 * q not in g
                    g[44 + 4 * q] = [po[0]]; gt[44 + 4 * q] = 'pf'; g[45 + 4 * q] = po[1:] + g.get(45 + 4 * q, [])
            if st < 6:
                d = dma_ops(p); adv = adv_ops(st + 2) if st < 5 else []
                ops = [(t, s, f'w{st+2}d') for t, s in d[:10]] + [('v', s, None) for s in adv[:4]] + \
                      [(t, s, f'a{st+2}d') for t, s in d[10:]] + [('v', s, None) for s in adv[4:]]
                place_vm(g, gt, scal, ops, 64, 4)
                if pfc[0] < 8:
                    po = pf_ops()
                    g[126] = [po[0]] + g.get(126, []); gt[126] = 'pf'
                    g[127] = [po[1]] + g.get(127, []) + [po[2]]
            elif st == 6:
                ops = []
                for c in range(4): ops += [(t, s, f'w{c}') for t, s in chunk_ops(('w', c))]
                place_vm(g, gt, scal, ops, 64, 4)
            else:
                XB = int(opt.get('xb', 28))
                tg = 'v' if isV else 'k'
                scal.setdefault(XB - 2, []).append(('v', 'w0'))
                scal.setdefault(XB, []).extend(["v_readfirstlane_b32 s3, v1", "s_nop 0", "s_or_b32 s3, s3, s37", "s_cmp_lt_u32 s3, 256",
                                                f"s_cbranch_scc1 L_spinA{tg}", f"L_spinAr{tg}:", "s_barrier"])
                ops = []
                for kk in range(4): ops += [(t, s, f'x{kk}') for t, s in xn_ops(kk)]
                place_vm(g, gt, scal, ops, XB + 4, int(opt.get('xs7', 6)) & ~1)
                for n, grp in enumerate(wreads(0)):
                    assert 105 + 2 * n not in g
                    g[105 + 2 * n] = grp
                for n in range(26):
                    b.at(14 + (4 * n + 8) / 64.0)
                    r = SRC(n)[1]
                    for q in range(4): b.e(f"v_cvt_pk_bf16_f32 v{PK(n)+q}, v{r+2*q}, v{r+2*q+1}")
                    m_ = (n * NS7) // 26
                    if (n + 1) * NS7 // 26 > m_:
                        for x in kvstore_ops(m_): b.e(x, tag='kvst')
            if isV: order = [(2 * pr + h, jd, ks) for pr in range(4) for jd in range(8) for h in range(2) for ks in range(2)]
            else: order = [(it, jd, ks) for it in range(8) for jd in range(8) for ks in range(2)]
            for n, (it, jd, ks) in enumerate(order):
                if st == 0:
                    k.wait_ds('A0_0'); k.wait_ds(f'W0_{jd}')
                fa, fw_ = A(FA(it, ks), 4), A(FW(p, jd, ks), 4)
                d = acc(isV, it, jd)
                c = "0" if (st == 0 and ks == 0) else d
                k.e(mfma(d, fa, fw_, c) if isV else mfma(d, fw_, fa, c))
                for x in scal.get(n, []):
                    if isinstance(x, tuple): (k.wait_ds if x[0] == 'w' else k.wait_vm)(x[1])
                    elif x.endswith(':'): k.label(x[:-1])
                    else: k.e(x)
                if n in g:
                    for s in g[n]: k.e(s, tag=gt.get(n))
                elif n not in scal:
                    b.fill(k, 2 * st + n / 64.0)
        print(f"phase1 isV={isV}: items left {len(b.items)}")
        k.stamp(S1)
        b.drain(k)
        k.stamp(S1)
        if not isV:
            k.e("s_branch L_phase2")
            vqK = list(k.vq)
    assert vqK == k.vq
    k.label("L_phase2")
    k.win = []
    k.e("s_nop 7")
    k.stamp(ST)

    b = Rec()
    KY = 56
    SPK = float(opt.get('spk', 1.2))
    def kvstore(n):
        if n < NS7: return
        b.at((n - NS7) / SPK)
        for x in kvstore_ops(n): b.e(x, tag='kvst')
    for n in range(26):
        kvstore(n)
        if 8 <= n < 14:
            m = n + 18
            for q in range(8): b.e(f"v_accvgpr_read_b32 v{48+q}, a{SRC(m)[1]+q}")
            for q in range(4): b.e(f"v_cvt_pk_bf16_f32 v{PK(m)+q}, v{48+2*q}, v{49+2*q}")
    for n in range(26, 32): kvstore(n)
    b.e("v_mov_b32 v12, 1")
    b.e("v_and_b32 v1, 15, v0")
    b.e("v_lshlrev_b32 v1, 2, v1")
    b.e("s_lshr_b32 s6, s33, 1")
    b.e("s_lshl_b32 s6, s6, 7")
    b.e(f"s_add_u32 s6, s6, {WS_FLG}")
    b.blk(["s_cmp_eq_u32 s32, 0", f"s_cselect_b32 s6, s6, {BIG}"])
    SIG = int(opt.get('sig', 25))
    POL = float(opt.get('pol', 27.3))
    b.at(SIG)
    b.blk(["s_mov_b64 exec, 1", "buffer_store_dword v12, v7, s[20:23], s39 offen sc1", "s_mov_b64 exec, -1"])
    b.at(POL)
    b.e("buffer_load_dword v12, v1, s[20:23], s6 offen sc1", tag='poll')
    CK = int(opt.get('ck', 29))
    n_ = 0
    for j in (0, 2, 1, 3, 4, 5, 6):
        for t, s in chunk_ops(('kv', j)):
            if t == 'g':
                b.at(max(CK + n_ * float(opt.get('kvp', 0.09)), {4: 25, 5: 27, 6: 29}.get(j, 0))); n_ += 1
            b.e(s, tag=f'c{16+j}')
    def spinB():
        k.e("s_mov_b32 s59, 0x400000")
        k.label("L_spinB_l")
        k.e(f"s_sleep {opt.get('slp', 4)}")
        k.e("buffer_load_dword v12, v1, s[20:23], s6 offen sc1")
        k.e("s_sub_u32 s59, s59, 1")
        k.e("s_cmp_eq_u32 s59, 0")
        k.e("s_cbranch_scc1 L_spinBx")
        k.e("s_waitcnt vmcnt(0)")
        k.e("v_cmp_ne_u32 vcc, 1, v12")
        k.e("s_cbranch_vccnz L_spinB_l")
        k.label("L_spinBx")
        k.e("s_waitcnt vmcnt(0)")
    ool.append(("L_spinB", spinB, "L_spinBr"))

    b1 = b
    b = Rec()
    srd_rec(b, 60, 40, 7340032)
    RT = [float(x) for x in opt.get('rt', '0,5').split(',')] if '6' in CPF else []
    for x in RT:
        b.at(x)
        b.e("global_load_dword v13, v[14:15], off", tag='keys')
    KT = int((10 - NS7) / SPK) + 3
    b.at(KT)
    b.items.append(('fn', lambda: not any(x in str(it[1]) for it in b1.items for x in ('v[56:59]', 'v[60:63]', 'v[64:67]')), None))
    b.e("s_lshl_b32 s3, s32, 11")
    b.e(f"s_add_u32 s3, s3, {WS_KEYS}")
    for i in range(2):
        b.e(f"buffer_load_dwordx4 {V(KY+4*i,4)}, v{VX}, s[20:23], s3 offen offset:{i*1024} sc1", tag='keys')
    def top2_lane():
        b.e(f"v_max_u32 v14, v{KY}, v{KY+1}")
        b.e(f"v_min_u32 v15, v{KY}, v{KY+1}")
        for i in range(2, 8):
            b.e(f"v_med3_u32 v15, v14, v15, v{KY+i}"); b.e(f"v_max_u32 v14, v14, v{KY+i}")
    b.at(KT + 6)
    b.wait_vm('keys')
    top2_lane()
    b.e("s_lshl_b32 s3, s32, 9")
    b.e("s_add_u32 s3, s3, 131072")
    b.e("v_lshlrev_b32 v13, 3, v0")
    b.e(f"v_add_u32 v{KY}, s3, v13")
    b.e("v_add_u32 v13, 131072, v13")
    b.e(f"ds_write_b64 v{KY}, v[14:15]")
    KB = (KT + 8) | 1
    b.items.append(('before', KB, None))
    b.at(KB)
    for w in range(4): b.e(f"ds_read_b64 {V(KY+2*w,2)}, v13 offset:{w*512}", tag='kx')
    b.at(KB + 0.3)
    b.wait_ds('kx')
    top2_lane()
    def wmax(v, sdst):
        for m in ["quad_perm:[1,0,3,2]", "quad_perm:[2,3,0,1]", "row_half_mirror", "row_mirror"]:
            b.blk([f"v_max_u32_dpp {v}, {v}, {v} {m} row_mask:0xf bank_mask:0xf"])
        b.blk([f"v_readlane_b32 s3, {v}, 0", f"v_readlane_b32 s47, {v}, 16"])
        b.blk([f"v_readlane_b32 s4, {v}, 32", f"v_readlane_b32 s5, {v}, 48"])
        b.blk(["s_max_u32 s3, s3, s47", "s_max_u32 s4, s4, s5", f"s_max_u32 s{sdst}, s3, s4"])
    b.e("v_mov_b32 v13, v14")
    wmax("v13", 40)
    b.blk(["v_cmp_eq_u32 vcc, s40, v14"])
    b.blk(["v_cndmask_b32 v13, v14, v15, vcc"])
    wmax("v13", 41)
    for t in range(2):
        b.e(f"s_and_b32 s3, s{40+t}, 0xffff")
        b.e(f"s_sub_u32 s{42+t}, 0xffff, s3")
    for t in range(2):
        b.e(f"v_mov_b32 v60, s{40+t}")
        b.e("v_not_b32 v61, v60")
        b.e("v_ashrrev_i32 v61, 31, v61")
        b.e("v_or_b32 v61, 0x80000000, v61")
        b.e("v_xor_b32 v60, v60, v61")
        b.e("v_and_b32 v60, 0xffff0000, v60")
        b.e("v_mul_f32 v60, 0xbfb8aa3b, v60")
        b.e("v_exp_f32 v60, v60")
        b.e("v_add_f32 v60, 1.0, v60")
        b.e("v_rcp_f32 v60, v60")
        b.e("v_cvt_pk_bf16_f32 v60, v60, v60")
        b.e(f"v_and_b32 v{64+t}, 0xffff0000, v60")
    b.items.append(('fn', lambda: not any('accvgpr_read' in str(it[1]) or 'cvt' in str(it[1]) for it in b1.items), None))
    for r in range(16): b.e(f"v_mov_b32 v{LS+r}, 0")
    WARM = opt.get('warm', '1') == '1'
    if WARM:
        b.at((28 - NS7) / SPK + 0.5)
        b.items.append(('fn', lambda: not any('v[28:31]' in str(it[1]) for it in b1.items), None))
        WC = int(opt.get('wc', 4))
        upc = 64 - WC * WC
        seg = upc * 32 * 4 * 128
        bufs = [(94, 7340032)] + ([(100, 4194304)] if x_ld else []) + [(60, 7340032), (68, 7340032)] + ([] if WOT else [(92, 8388608)])
        b.e("s_mul_i32 s3, s34, s34")
        b.e(f"s_mul_i32 s47, s33, {upc}")
        b.e("s_add_u32 s3, s3, s47")
        b.e("s_lshl_b32 s3, s3, 2")
        b.e("s_add_u32 s3, s3, s32")
        b.e("s_lshl_b32 s3, s3, 7")
        b.e(f"s_sub_u32 s3, s3, {512 + WC * WC * 512}")
        b.blk([f"s_cmp_ge_u32 s34, {WC}", "s_cselect_b32 s3, s3, 0", "s_cselect_b32 s40, 512, 0", f"s_cselect_b32 s47, {seg}, 0"])
        first = 0
        for j, (lo, size) in enumerate(bufs):
            b.e(f"v_subrev_u32 v31, {first}, v0")
            b.e("v_mul_lo_u32 v31, v31, s47")
            b.e(f"v_min_u32 v31, {size - seg}, v31")
            if j == 0:
                b.e(f"v_mov_b32 v28, s{lo}"); b.e(f"v_mov_b32 v29, s{lo+1}"); b.e("v_mov_b32 v30, v31")
            else:
                b.e(f"v_mov_b32 v14, s{lo}"); b.e(f"v_mov_b32 v15, s{lo+1}")
                b.blk([f"v_cmp_le_u32 vcc, {first}, v0"])
                b.blk(["v_cndmask_b32 v28, v28, v14, vcc", "v_cndmask_b32 v29, v29, v15, vcc"])
                b.blk(["v_cndmask_b32 v30, v30, v31, vcc"])
            first += -(-size // seg)
        assert first <= 64, first
        b.e("v_add_u32 v30, s3, v30")
        b.e("v_ashrrev_i32 v31, 31, v30")
        b.e("v_lshl_add_u64 v[28:29], v[30:31], 0, v[28:29]")
        b.e("s_mov_b32 s41, 0")
    b.e("v_readfirstlane_b32 s100, v64")
    b.e("v_readfirstlane_b32 s101, v65")
    b.at(SIG)
    for j in range(3): b.e(f"s_mov_b32 s{24+j}, s{60+j}")
    b.e(f"s_mov_b32 s94, {QSCALE}")
    b.e(f"s_mov_b32 s95, {QSCALE}")
    b.e("s_sub_u32 s55, 15, s34")
    b.e("s_sub_u32 s45, s36, 3")
    b.e("s_sub_u32 s46, s35, 3")
    b.e("s_mov_b32 s54, s44")
    b.e("s_sub_u32 s35, s35, 2")
    b.e("s_sub_u32 s36, s36, 2")
    b2 = b
    b3 = Rec()
    WT0 = float(opt.get('wt0', 18))
    WTB = int(opt.get('wtb', 23))
    WTG = int(opt.get('wtg', 8))
    b3.e("s_lshr_b32 s52, s2, 1")
    b3.e("s_lshl_b32 s52, s52, 16")
    b3.e("s_and_b32 s53, s2, 1")
    b3.e("s_lshl_b32 s53, s53, 10")
    b3.e("s_add_u32 s52, s52, s53")
    b3.e("s_lshl_b32 s53, s32, 14")
    b3.e("s_add_u32 s52, s52, s53")
    srd_rec(b3, 28, 92, 8388608)
    for j in range(8):
        b3.at(WT0 + 2 * (j // WTG))
        b3.blk([f"s_add_u32 m0, s57, {65536 + j * 1024}", f"v_xor_b32 v88, {j * 32}, v{VX}",
                (f"buffer_load_dwordx4 v88, s[28:31], s52 offen{opt.get('wo_ld', '')} lds", 'wo'), "s_add_u32 s52, s52, 2048"])
    b3.e("v_lshrrev_b32 v89, 2, v0")
    b3.e("v_lshlrev_b32 v89, 10, v89")
    b3.e("s_lshl_b32 s53, s32, 8")
    b3.e("s_add_u32 s53, s53, 65536")
    b3.e("v_add_u32 v89, s53, v89")
    b3.e("v_mov_b32 v90, 0xff")
    srd_rec(b3, 28, 66, 16 * WO_NT, WS_WOT)
    b3.e("s_and_b32 s52, s2, 1")
    b3.e("s_lshl_b32 s52, s52, 2")
    b3.e("s_add_u32 s52, s52, s32")
    b3.e(f"s_mul_i32 s52, s52, {2 * WO_NT}")
    b3.e("s_lshr_b32 s53, s2, 1")
    b3.e("s_lshl_b32 s53, s53, 12")
    b3.e("s_add_u32 s52, s52, s53")
    b3.at(WTB)
    for q in range(8):
        b3.e(f"v_and_or_b32 v{92 + (q & 1)}, v{TA+q}, v90, v89")
        for rd in range(2):
            b3.e(f"ds_read_b64_tr_b16 {V(96 + 4*q + 2*rd, 2)}, v{92 + (q & 1)} offset:{rd*16384}", tag='wt')
    for q in range(8):
        b3.at(WTB + 1.2 + 0.5 * q)
        b3.wait_ds('wt')
        b3.e(f"buffer_store_dwordx4 {V(96 + 4*q, 4)}, v{VX}, s[28:31], s52 offen offset:{(q & 3)*1024} sc1", tag='wts')
        if q == 3: b3.e(f"s_add_u32 s52, s52, {WO_NT}")
    b3.e("s_and_b32 s52, s2, 1")
    b3.e("s_lshl_b32 s52, s52, 9")
    b3.e("s_lshr_b32 s93, s2, 1")
    b3.e("s_lshl_b32 s93, s93, 2")
    b3.e("s_add_u32 s52, s52, s93")
    b3.e(f"s_add_u32 s52, s52, {WS_WFL}")
    b3.blk(["s_cmp_eq_u32 s32, 0", f"s_cselect_b32 s52, s52, {BIG}"])
    b3.e("v_mov_b32 v24, 1")
    b3.e("v_mov_b32 v25, 0")
    if not WOT: b3.items = []
    PKM = opt.get('pkm', '0') == '1'
    def conv_items(qb):
        r_ = Rec()
        for s_ in range(4):
            r = QA(2 * s_, qb)
            if PKM:
                for e_ in range(0, 8, 2): r_.e(f"v_pk_mul_f32 {V(r+e_,2)}, {V(r+e_,2)}, s[94:95]")
            else:
                for e_ in range(8): r_.e(f"v_mul_f32 v{r+e_}, s94, v{r+e_}")
            for e_ in range(4): r_.e(f"v_cvt_pk_bf16_f32 v{r+e_}, v{r+2*e_}, v{r+2*e_+1}")
            for e_ in range(4): r_.e(f"v_accvgpr_write_b32 a{Q(qb,s_)+e_}, v{r+e_}")
        r_.items.append(('mark', f'conv{qb}', None))
        return r_.items
    p2_start = len(k.lines)
    XLA = int(opt.get('xla', 5))
    xsched = {}; nx_ = 4
    for kk in range(32):
        xsched[kk] = []
        while nx_ < 32 and nx_ <= min(kk + XLA, (kk & ~1) + 7) and len(xsched[kk]) < 2:
            xsched[kk].append(nx_); nx_ += 1
    def boundary_wait(kk):
        st, ks = kk // 2, kk & 1
        need = [f'x{kk | 1}' if P2C else f'x{kk}']
        if ks == 1 and st < 15: need.append(f'w{st+1}')
        if kk == SIG:
            assert not any(it[2] == 'kvst' for it in b1.items), "stores not all issued before SIG"
            need.append('kvst')
        if kk == WTB:
            assert not any(it[0] == 'b' and any(isinstance(x, tuple) for x in it[1]) for it in b3.items)
            need.append('wo')
        if kk == CK:
            assert not b3.items
            need.append('poll')
        if kk == 31: need.append('c16')
        w = [x for x in (k.vm_n(t) for t in need) if x is not None]
        k.e("s_waitcnt " + (f"vmcnt({min(w)}) " if w else "") + "lgkmcnt(0)")
        for t in need: k.use(t)
    def boundary_bar(kk):
        st, ks = kk // 2, kk & 1
        if kk == CK:
            assert not any('vcc' in str(it[1]) for it in b2.items)
            k.e("s_cmp_lg_u32 s32, 0")
            k.e("s_cbranch_scc1 L_spinBr")
            k.e("v_cmp_ne_u32 vcc, 1, v12")
            k.e("s_cbranch_vccnz L_spinB")
            k.label("L_spinBr")
        if ks == 1: k.e("s_barrier")
    for kk in range(32):
        st, ks = kk // 2, kk & 1
        k.stamp(S2 and kk in (0, 4, 8, 12, 16, 20, 24, 28, 31))
        if kk == 0: boundary_wait(0)
        g = {}; gt = {}
        if kk + 1 < 32:
            for n, grp in enumerate(wreads(kk + 1)):
                g[1 + 3 * n] = (["s_waitcnt lgkmcnt(6)"] if n == 5 else []) + grp
        vm = []
        wv = []
        if ks == 1 and st + 4 < 16: wv = [(t, s, f'w{st+4}') for t, s in chunk_ops(('w', st + 4))[:3]]
        if ks == 0 and 4 <= st + 3 < 16: wv = [(t, s, f'w{st+3}') for t, s in chunk_ops(('w', st + 3))[3:]]
        xv_ = []
        for x in xsched.get(kk, []): xv_ += [(t, s, f'x{x}') for t, s in xn_ops(x)]
        vm = wv + xv_
        ng = sum(1 for x in vm if x[0] == 'g')
        free = [x for x in range(2, 29) if x not in g]
        pick = [free[(j * len(free)) // ng] for j in range(ng)] if ng else []
        j = 0
        for t, s, tg in vm:
            if t == 'g': g[pick[j]] = [s]; gt[pick[j]] = tg; j += 1
            elif t == 's':
                q = pick[j] - 1
                if q in gt: g[q].append(s)
                else: g.setdefault(q, []).insert(0, s)
            else:
                q = pick[j - 1] + 1
                while q in pick or (q in g and len([y for y in g[q] if not y.startswith('s_')]) >= 2): q += 1
                g.setdefault(q, []).append(s)
        dbs, qs = (range(4 * ks, 4 * ks + 4), range(2)) if P2C else (range(8), [ks])
        order = [(db, qb, q) for db in dbs for qb in range(4) for q in qs]
        if kk == 31:
            order = [(db, qb, q) for qb in range(4) for db in dbs for q in qs]
            assert all('accvgpr_write' in it[1] for it in b2.items)
            zrest = b2.items; b2.items = []
            for kb in range(2):
                for s_ in range(4): b2.e(f"ds_read_b128 {A(FR(kb,s_),4)}, v{VY} offset:{(kb*4+s_)*1024}", tag=f'k{kb}')
            b2.at(31 + 12 / 32.0)
            b2.items += conv_items(0) + conv_items(1)
        elif kk > (25 if P2C else 24):
            for x in (([kk - 2] if kk < 30 else [28, 29]) if P2C else [kk - 1]):
                for r in range(16): b2.e(f"v_accvgpr_write_b32 a{XR(x,0)+r}, 0")
        for n, (db, qb, q) in enumerate(order):
            k.e(mfma(V(QA(db, qb), 4), A(WF(q, db), 4), A(XR(2 * st + q, qb), 4), V(QA(db, qb), 4) if (st or q) else "0"))
            if kk < 31 and n == 30: boundary_wait(kk + 1)
            if kk < 31 and n == 31: boundary_bar(kk + 1)
            if n in g:
                for s in g[n]: k.e(s, tag=gt.get(n))
            elif kk < 31 and n >= 29:
                for o in (b1, b2):
                    if o.items and o.items[0][0] == 'i' and o.items[0][1].startswith('v_'):
                        it = o.items.pop(0); k.e(it[1])
                        if o.items and o.items[0][0] == 'i' and o.items[0][1].startswith('v_') and o.cost(it) + o.cost(o.items[0]) <= 2:
                            k.e(o.items.pop(0)[1])
                        break
            else:
                nl = k.ni
                b1.fill(k, kk + n / 32.0)
                if k.ni == nl: b3.fill(k, kk + n / 32.0)
                if k.ni == nl: b2.fill(k, kk + n / 32.0)
    print("phase2 items left", len(b1.items), len(b2.items))
    b1.drain(k)
    grp_ = None
    for ln in k.lines[p2_start:] + ["s_mov_b32 m0, 0"]:
        if ' m0,' in ln:
            assert grp_ is None or (len(set(grp_)) == 1 and len(grp_) == (1 if grp_[0] == 's[28:31]' else 4)), grp_
            grp_ = []
        elif ' lds' in ln: grp_.append(ln.split(', ')[1])
    k.stamp(ST or S2)
    XS = 160
    def ffn_issue():
        for t in range(2):
            k.e(f"s_lshr_b32 s3, s{42+t}, 4")
            k.e(f"s_mul_i32 s3, s3, {XN_RB}")
            k.e(f"s_and_b32 s47, s{42+t}, 15")
            k.e("s_lshl_b32 s47, s47, 4")
            k.e("s_add_u32 s3, s3, s47")
            k.e(f"v_mov_b32 v{28+t}, s3")
        k.e("v_lshrrev_b32 v24, 4, v0")
        k.e("v_and_b32 v25, 15, v0")
        k.e("v_cmp_eq_u32 vcc, 1, v25")
        k.e("s_lshl_b32 s3, s32, 4")
        k.e("v_add_u32 v26, s3, v24")
        k.e("v_cndmask_b32 v28, v28, v29, vcc")
        k.e("v_lshl_add_u32 v28, v24, 8, v28")
        k.e("v_mul_u32_u24 v26, 7168, v26")
        k.e("v_lshlrev_b32 v24, 1, v24")
        k.e("v_xor_b32 v24, v24, v25")
        k.e("v_xor_b32 v25, 8, v24")
        k.e("v_lshl_add_u32 v24, v24, 4, v26")
        k.e("v_lshl_add_u32 v25, v25, 4, v26")
        k.e("s_lshl_b32 s3, s92, 12")
        for q in range(4):
            k.e(f"buffer_load_dwordx4 {A(XS+4*q,4)}, v28, s[20:23], s3 offen offset:{q*1024} sc1")
        ops = []
        for m, srd in enumerate((24, 68)):
            for h in range(2):
                for q in range(4):
                    pre = [f"s_add_u32 m0, s54, {m*32768 + h*16384}"] if q == 0 else []
                    ops.append((pre + [f"s_add_u32 s3, s5, {h*64*7168 + q*27648}"],
                                f"buffer_load_dwordx4 v{24 + (q >> 1)}, {S(srd,4)}, s3 offen offset:{q*1024}{ffn_ld} lds"))
        return ops
    def ffn_finish():
        k.e("v_lshrrev_b32 v24, 4, v0")
        k.e("v_bfe_u32 v25, v0, 2, 2")
        k.e("v_lshl_add_u32 v26, v24, 3, v25")
        k.e("v_lshlrev_b32 v26, 8, v26")
        k.e("v_and_b32 v27, 3, v0")
        k.e("v_lshl_add_u32 v26, v27, 3, v26")
        k.e("v_and_b32 v27, 1, v24")
        k.e("v_lshl_add_u32 v25, v27, 2, v25")
        k.e("s_lshl_b32 s3, s32, 1")
        k.e("v_xor_b32 v25, s3, v25")
        k.e("v_lshl_add_u32 v26, v25, 5, v26")
        k.e("s_sub_u32 s3, s54, s44")
        k.e("v_add_u32 v26, s3, v26")
        k.e("v_xor_b32 v27, 32, v26")
        k.e("s_waitcnt vmcnt(8) lgkmcnt(0)")
        k.use('ffn')
        k.e("s_barrier")
        for m in range(2):
            for q in range(4):
                for j in range(2):
                    for rd in range(2):
                        k.e(f"ds_read_b64_tr_b16 {V(128 + 32*m + 8*q + 4*j + 2*rd, 2)}, v{26+j} offset:{m*32768 + q*8192 + rd*1024}", tag=f'f{m}')
        k.e("v_and_b32 v25, 15, v0")
        k.e("v_mul_u32_u24 v28, 14336, v25")
        k.e("v_lshl_add_u32 v28, v24, 4, v28")
        k.e(f"v_mov_b32 v29, {BIG}")
        k.e("v_cmp_gt_u32 vcc, 2, v25")
        k.e(f"s_mul_i32 s3, s92, {4*14336}")
        k.e("s_lshl_b32 s47, s4, 9")
        k.e("s_add_u32 s3, s3, s47")
        k.e("v_cndmask_b32 v28, v29, v28, vcc")
        k.e("s_lshl_b32 s47, s32, 7")
        k.e("s_add_u32 s3, s3, s47")
        k.e(f"s_add_u32 s3, s3, {WS_HP}")
        for m in range(2):
            k.wait_ds(f'f{m}')
            for q in range(4):
                for j in range(2):
                    d = V(224 + 8 * m + 4 * j, 4)
                    k.e(mfma(d, V(128 + 32*m + 8*q + 4*j, 4), A(XS + 4*q, 4), d if q else "0"))
    def ffn_store():
        k.e("s_cmp_lt_u32 s93, 224")
        k.e(f"s_cselect_b32 s3, s3, {1 << 23}")
        k.e(f"s_add_u32 s7, s3, {2*14336}")
        for m in range(2):
            for j in range(2):
                k.e(f"buffer_store_dwordx4 {V(224 + 8*m + 4*j, 4)}, v28, s[20:23], s{7 if m else 3} offen offset:{j*64} sc1", tag='hps')

    def kread(reg, off, kb):
        return [f"ds_read_b128 {A(FR(kb,s_),4)}, v{reg} offset:{off + (kb*4+s_)*1024}" for s_ in range(4)]
    def vread(reg, off, vg):
        return [f"ds_read_b128 {A(FR(vg,j),4)}, v{reg} offset:{off + ((j & 1)*8 + 2*vg + (j >> 1))*1024}" for j in range(4)]
    def qk_mfmas(par, nq, zero=False):
        out = []
        for kb in range(4):
            grp = []
            for qb in range(nq):
                d = V(Sr(par, qb, kb), 4)
                for s_ in range(4):
                    c = d if s_ else ("0" if zero else V(NEGM + 4 * qb, 4))
                    grp.append(mfma(d, A(FR(kb, s_), 4), A(Q(qb, s_), 4), c))
            out.append(grp)
        return out
    def pv_mfmas(par, nq):
        out = []
        for vg in range(4):
            grp = []
            for dd in range(2):
                for qb in range(nq):
                    for ks in range(2):
                        o = A(O(qb, 2 * vg + dd), 4)
                        grp.append(mfma(o, A(FR(vg, 2 * dd + ks), 4), V(P(par, qb, ks), 4), o))
            if vg < nq:
                for ks in range(2):
                    l = V(LS + 4 * vg, 4)
                    grp.append(mfma(l, V(ONES, 4), V(P(par, vg, ks), 4), l))
            out.append(grp)
        return out
    def sm_pairs(par, nq, ks):
        out = []
        for kq in range(2):
            for qb in range(nq):
                s0 = Sr(par, qb, 2 * ks + kq)
                for h in range(2):
                    out.append((s0 + 2 * h, s0 + 2 * h + 1, P(par, qb, ks) + 2 * kq + h))
        return out
    class SM:
        def __init__(self, pairs, first, check):
            self.pairs = pairs; self.ne = 0; self.nc = 0; self.no = 0; self.first = first
            self.tail = [f"v_and_b32 v{T0}, 0x40004000, v{ORR}", f"v_cmp_ne_u32 vcc, 0, v{T0}"] if check else []
            self.e_done = 0; self.extra = []
        def tick(self): self.e_done = self.ne
        def exp_ready(self): return self.ne < 2 * len(self.pairs) and self.ne // 2 - self.nc < 4
        def exp(self):
            j, h = self.ne // 2, self.ne & 1; self.ne += 1
            return f"v_exp_f32 v{ET + 2*(j % 4) + h}, v{self.pairs[j][h]}"
        def plain_avail(self):
            n = min(self.e_done // 2, len(self.pairs)) - self.nc
            n += self.nc // 2 - self.no
            if self.no == len(self.pairs) // 2: n += len(self.tail)
            return n + len(self.extra)
        def plain(self):
            if self.nc < min(self.e_done // 2, len(self.pairs)):
                j = self.nc; self.nc += 1
                return f"v_cvt_pk_bf16_f32 v{self.pairs[j][2]}, v{ET + 2*(j % 4)}, v{ET + 2*(j % 4) + 1}"
            if self.no < self.nc // 2:
                j = self.no; self.no += 1
                a, b = self.pairs[2 * j][2], self.pairs[2 * j + 1][2]
                if self.first and j == 0: return f"v_or_b32 v{ORR}, v{a}, v{b}"
                return f"v_or3_b32 v{ORR}, v{ORR}, v{a}, v{b}"
            if self.no == len(self.pairs) // 2 and self.tail: return self.tail.pop(0)
            if self.extra: return self.extra.pop(0)
            return None
        def left_exp(self): return 2 * len(self.pairs) - self.ne
        def left_plain(self): return len(self.pairs) - self.nc + len(self.pairs) // 2 - self.no + len(self.tail) + len(self.extra)
        def done(self): return self.left_exp() == 0 and self.left_plain() == 0
        def drain(self):
            while not self.done():
                self.tick()
                if self.exp_ready():
                    k.e(self.exp())
                    if self.exp_ready(): k.e(self.exp())
                    x = self.plain()
                    if x: k.e(x)
                else:
                    k.e(self.plain())
    def phase(groups, gtags, reads, rtags, sm, vm, nexttag):
        total = sum(len(g) for g in groups)
        vmpos = {}
        if vm:
            step = max(2, (total - 2) // len(vm))
            for j, x in enumerate(vm): vmpos[1 + j * step] = x
        n = 0
        k.wait_ds(gtags[0])
        for gi, grp in enumerate(groups):
            rq = list(reads[gi])
            for mi, m in enumerate(grp):
                k.e(m)
                sm.tick()
                scal = []
                if n + 1 in vmpos: scal += vmpos[n + 1][0]
                lastm = mi == len(grp) - 1
                if n in vmpos:
                    for s in scal: k.e(s)
                    k.e(vmpos[n][1], tag='kv')
                    slots = 0
                else:
                    for s in scal: k.e(s)
                    if lastm:
                        nt = gtags[gi + 1] if gi + 1 < len(groups) else nexttag
                        if nt: k.wait_ds(nt)
                    slots = 2
                    gaps_left = len([x for x in range(n, n + len(grp) - mi) if x not in vmpos])
                    want_d = len(rq) > 0 and (sm.plain_avail() > 0 or not sm.exp_ready() or len(rq) >= gaps_left - 1)
                    if want_d:
                        k.e(rq.pop(0), tag=rtags[gi]); slots -= 1
                        if rq and (sm.plain_avail() == 0 or len(rq) >= gaps_left):
                            k.e(rq.pop(0), tag=rtags[gi]); slots -= 1
                    if slots == 2 and sm.exp_ready() and not (sm.plain_avail() >= 3 and not rq):
                        k.e(sm.exp()); slots = 0
                    while slots > 0:
                        x = sm.plain()
                        if not x: break
                        k.e(x); slots -= 1
                if lastm:
                    for s in rq: k.e(s, tag=rtags[gi])
                    nt = gtags[gi + 1] if gi + 1 < len(groups) else nexttag
                    if nt: k.wait_ds(nt)
                n += 1
        sm.drain()

    def mask_block(par, qb):
        vr = VRA if qb & 1 else VRB
        for kb in range(4):
            for r in range(4): k.e(f"v_cmp_gt_i32 s[{56+2*r}:{57+2*r}], {16*kb + r}, v{vr}")
            if kb == 0: k.e("s_nop 3")
            for r in range(4):
                x = Sr(par, qb, kb) + r
                k.e(f"v_cndmask_b32 v{x}, v{x}, v{NINF}, s[{56+2*r}:{57+2*r}]")
    def rowmax(par, qb, d, o=k):
        s0 = Sr(par, qb, 0)
        o.e(f"v_max3_f32 v{d}, v{s0}, v{s0+1}, v{s0+2}")
        for r in range(3, 15, 2): o.e(f"v_max3_f32 v{d}, v{d}, v{s0+r}, v{s0+r+1}")
        o.e(f"v_max_f32 v{d}, v{d}, v{s0+15}")
        o.e(f"v_mov_b32 v{T0}, v{d}")
        o.e(f"v_permlane16_swap_b32 v{T0}, v{d}")
        o.e(f"v_max_f32 v{d}, v{d}, v{T0}")
        o.e(f"v_mov_b32 v{T0}, v{d}")
        o.e(f"v_permlane32_swap_b32 v{T0}, v{d}")
        o.e(f"v_max_f32 v{d}, v{d}, v{T0}")
        o.e(f"v_add_f32 v{d}, {opt.get('moff', '0x41f80000')}, v{d}")
    def fallback(par, nq, nqn):
        k.e("s_nop 7")
        for qb in range(nq):
            rowmax(par, qb, 21)
            k.e("v_max_f32 v21, 0, v21")
            for r in range(16): k.e(f"v_sub_f32 v{Sr(par,qb,0)+r}, v{Sr(par,qb,0)+r}, v21")
            if qb < nqn:
                for r in range(16): k.e(f"v_sub_f32 v{Sr(par^1,qb,0)+r}, v{Sr(par^1,qb,0)+r}, v21")
            for r in range(4): k.e(f"v_sub_f32 v{NEGM+4*qb+r}, v{NEGM+4*qb+r}, v21")
            k.e("v_exp_f32 v22, -v21")
            for r in range(4): k.e(f"v_mul_f32 v{LS+4*qb+r}, v{LS+4*qb+r}, v22")
            for r0 in range(0, 32, 8):
                for r in range(8): k.e(f"v_accvgpr_read_b32 v{ET+r}, a{O(qb,0)+r0+r}")
                for r in range(8): k.e(f"v_mul_f32 v{ET+r}, v{ET+r}, v22")
                for r in range(8): k.e(f"v_accvgpr_write_b32 a{O(qb,0)+r0+r}, v{ET+r}")
        for ks in range(2):
            for (s0, s1, pd) in sm_pairs(par, nq, ks):
                k.e(f"v_exp_f32 v{ET}, v{s0}")
                k.e(f"v_exp_f32 v{ET+1}, v{s1}")
                k.e(f"v_cvt_pk_bf16_f32 v{pd}, v{ET}, v{ET+1}")
        k.e("s_nop 1")
    SPLIT = {4: (32, 16, 8), 3: (36, 18, 9), 2: (17, 8, 4), 1: (16, 8, 4), 0: (0, 0, 0)}
    def tile_sm(par, nq, start, check):
        sm = SM(sm_pairs(par, nq, 0) + sm_pairs(par, nq, 1), True, check)
        sm.ne, sm.nc, sm.no = start; sm.e_done = sm.ne
        return sm
    def pack(ngaps, vmg, dsl, sm, limit, last_sm, pre):
        plan = {}
        dsl = list(dsl)
        def exp_ok(): return sm.exp_ready() and (limit is None or sm.ne < limit[0])
        def plain_n():
            n = min(sm.e_done // 2, len(sm.pairs), limit[1] if limit else 1 << 30) - sm.nc
            n += min(sm.nc // 2, limit[2] if limit else 1 << 30) - sm.no
            if limit is None and sm.no == len(sm.pairs) // 2: n += len(sm.tail)
            return n + len(sm.extra)
        def take_plain():
            if limit is not None:
                c_ok = sm.nc < min(sm.e_done // 2, limit[1]); o_ok = sm.no < min(sm.nc // 2, limit[2])
                if not c_ok and not o_ok: return sm.extra.pop(0) if sm.extra else None
                if not c_ok:
                    keep = sm.e_done; sm.e_done = 2 * sm.nc; x = sm.plain(); sm.e_done = keep; return x
            return sm.plain()
        for g in range(-1 if pre else 0, ngaps):
            if g in vmg: sm.tick(); continue
            sm.tick()
            ops = []
            smok = g <= last_sm
            av = [d for d in dsl if d[2] <= g]
            free_to = lambda dl: len([x for x in range(g, dl + 1) if x not in vmg])
            urgent = any(sum(1 for d in dsl if d[3] <= e[3]) >= 2 * free_to(e[3]) - 1 for e in av)
            pn = plain_n() if smok else 0
            if smok and exp_ok() and not urgent and not (av and pn) and not (pn >= 3):
                ops.append((sm.exp(), None))
            else:
                slots = 2
                if av and g >= 0:
                    d = av.pop(0); dsl.remove(d); ops.append((d[0], d[1])); slots -= 1
                    if av and (pn == 0 or sum(1 for x in dsl if x[3] <= av[0][3]) >= 2 * free_to(av[0][3]) - 1):
                        d = av.pop(0); dsl.remove(d); ops.append((d[0], d[1])); slots -= 1
                while slots and smok:
                    x = take_plain()
                    if not x: break
                    ops.append((x, None)); slots -= 1
                if not ops and smok and exp_ok(): ops.append((sm.exp(), None))
            plan[g] = ops
            if g == last_sm:
                while (limit is None and not sm.done()) or (limit is not None and ((sm.ne, sm.nc, sm.no) != limit or sm.extra)):
                    sm.tick()
                    x = sm.exp() if exp_ok() else take_plain()
                    plan[g].append((x, None)); k.overflow += 1
        assert not dsl, dsl
        return plan
    k.overflow = 0
    SLK = int(opt.get('slk', -1))
    def emit_phase(mf, plan, vmg, scal, bg=None, vtag=None, sbg=None):
        for s_, tg in plan.get(-1, []): k.e(s_, tag=tg)
        for g, m in enumerate(mf):
            k.e(m)
            for x in scal.get(g, []):
                if isinstance(x, tuple) and x[0] == 'u': k.use(x[1])
                elif isinstance(x, tuple) and x[0] == 'call': x[1]()
                elif isinstance(x, tuple): k.wait_ds(x[1])
                elif x.endswith(':'): k.label(x[:-1])
                else: k.e(x)
            if sbg and g > 0 and g not in scal and g not in vmg and sbg.items and sbg.items[0][0] != 'at':
                it = sbg.items.pop(0)
                for x in ([it[1]] if it[0] == 'i' else it[1]): k.e(x)
                if sbg.items[0][0] == 'i' and len(plan.get(g, [])) < 2: k.e(sbg.items.pop(0)[1])
            if g in vmg: k.e(vmg[g], tag=(vtag if ('s39' in vmg[g] or ' s3 ' in vmg[g]) else None))
            else:
                for s_, tg in plan.get(g, []): k.e(s_, tag=tg)
                if bg and not plan.get(g) and g not in scal: bg.fill(k, 99, 3)
    p4s = p4_setup(opt)
    def starts(groups):
        out = [0]
        for g in groups: out.append(out[-1] + len(g))
        return out
    def iteration(par, nq, nqn, mask, name, tail):
        kreg, koff = (VX, 32768) if par == 0 else (VY, 0)
        vreg, voff = (VX, 16384) if par == 0 else (VX, 49152)
        nreg, noff = (VY, 0) if par == 0 else (VY, 32768)
        last = nqn == 1
        k.hot = nqn >= 2
        ov0 = k.overflow
        fb, fr = f"L_k2_fb_{name}", f"L_k2_fbr_{name}"
        ool.append((fb, lambda: fallback(par, nq, nqn), fr))
        sm = tile_sm(par, nq, SPLIT[nq], True)
        if par == 0:
            k.e(f"v_xor_b32 v{VX}, 65536, v{VX}")
            k.e(f"v_xor_b32 v{VY}, 65536, v{VY}")
        if nqn:
            k.dq = ['k1'] * 4
            if nq == 4 and WARM: sm.extra = ["v_lshl_add_u64 v[28:29], s[40:41], 0, v[28:29]"]
            grp = qk_mfmas(par ^ 1, nqn); st_ = starts(grp); n1 = st_[-1]
            slack = SLK if nqn <= 2 else 4
            dsl = [(x, 'k2', 0, st_[1] + slack) for x in kread(kreg, koff, 2)] + [(x, 'k3', 0, st_[2] + slack) for x in kread(kreg, koff, 3)] + \
                  [(x, 'v0', st_[1], st_[3] + slack) for x in vread(vreg, voff, 0)] + [(x, 'v1', st_[2], n1 - 1) for x in vread(vreg, voff, 1)]
            scal = {}
            add = lambda g, xs: scal.setdefault(g, []).extend(xs)
            add(st_[1] - 1, [('w', 'k1')]); add(st_[2] - 1, [('w', 'k2')]); add(st_[3] - 1, [('w', 'k3')])
            vmw = f"s_waitcnt vmcnt({12 + min(int(opt.get('fp1', 4)), 3)})" if last else "s_waitcnt vmcnt(12)"
            if nq == 2:
                add(n1 - 7, ["s_cmp_lt_u32 s37, s52"])
                add(n1 - 6, [f"s_cbranch_scc1 L_nw_{name}", vmw, f"L_nw_{name}:"])
            else:
                add(n1 - 5, [vmw])
            if mask and mask[1]: add(n1 - 4, [f"s_cmp_eq_u32 s37, s{mask[1]}"])
            add(n1 - 3, ([] if 'nochk' in opt else [('u', f'V{par}'), ('u', 'c19' if par == 0 else 'c21'), ('u', 'c20' if par == 0 else 'c22')]) + ["s_barrier"]); add(n1 - 2, [('w', 'v0')]); add(n1 - 1, [f"s_cbranch_vccnz {fb}", fr + ":"])
            vmg = {}
            if last:
                fops = ffn_issue()
                for q in (1, 5, 8, 12)[:int(opt.get('fp1', 4))]:
                    pre, ld = fops.pop(0)
                    vmg[q] = ld; scal.setdefault(q - 1, []).extend(pre)
            else:
                step = (n1 - 8) / 4
                for j in range(4):
                    q = int(1 + j * step)
                    while q in scal or (j == 0 and q - 1 in scal): q += 1
                    vmg[q] = f"buffer_load_dwordx4 v{VDMA}, s[12:15], s38 offen offset:{j*1024}{kv_ld} lds"
                    if j == 0: scal[q - 1] = ["s_mov_b32 m0, s53" if par == 0 else "s_add_u32 m0, s53, 32768"]
            plan = pack(n1, vmg, dsl, sm, None, n1 - 2, par == 1)
            emit_phase(sum(grp, []), plan, vmg, scal, None, 'ffn')
        else:
            k.dq = ['v1'] * 4
            sm.drain()
            k.e(f"s_cbranch_vccnz {fb}")
            k.label(fr)
        grp = pv_mfmas(par, nq); st_ = starts(grp); n2 = st_[-1]
        slack = SLK if nq <= 2 else 4
        dsl = [(x, 'v2', 0, st_[1] + slack) for x in vread(vreg, voff, 2)] + [(x, 'v3', 0, st_[2] + slack) for x in vread(vreg, voff, 3)]
        scal = {st_[1] - 1: [('w', 'v1')], st_[2] - 1: [('w', 'v2')], st_[3] - 1: [('w', 'v3')]}
        vmg = {}
        if nqn:
            nx = [vread(VX, 49152, 0), vread(VX, 49152, 1)] if last else [kread(nreg, noff, 0), kread(nreg, noff, 1)]
            dsl += [(x, 'k0', st_[1], st_[3] + slack - 1) for x in nx[0]] + [(x, 'k1', st_[2], n2 - 2) for x in nx[1]]
            if mask:
                mb, mr = f"L_k2_mk_{name}", f"L_k2_mkr_{name}"
                if mask[1]: scal[0] = [f"s_cbranch_scc1 {mb}", mr + ":"]
                else: scal[0] = [('call', lambda: mask_block(par ^ 1, mask[0]))]
            scal[n2 - 2] = [('w', 'k0')]
            if tail: scal[n2 - 3] = [tail[0]]; scal[n2 - 1] = [tail[1]]
            def put(x, lo):
                q = lo
                while q in scal or q in vmg: q += 1
                assert q < n2 - 3, (x, q)
                scal[q] = [x]
            if last:
                for j, (pre, ld) in enumerate(fops):
                    q = 2 + (j * (n2 - 4)) // len(fops)
                    vmg[q] = ld
                    scal.setdefault(q - 1, []).extend(pre)
                    if q in scal: scal[q - 1].extend(scal.pop(q))
            else:
                mv = "s_add_u32 m0, s54, 49152" if par == 0 else "s_add_u32 m0, s53, 16384"
                vm = [f"buffer_load_dwordx4 v{VDMA}, s[12:15], s39 offen offset:{j*1024}{kv_ld} lds" for j in range(4)]
                if nq == 4 and WARM: vm.append("global_load_dword v30, v[28:29], off")
                step = (n2 - 4) / len(vm)
                pos = []
                for j in range(len(vm)):
                    q = int(2 + j * step)
                    while q in scal or q in vmg or (j == 0 and q - 1 in scal): q += 1
                    vmg[q] = vm[j]; pos.append(q)
                    if j == 0: scal[q - 1] = [mv]
                if name == "ne":
                    q = 3
                    while any(x in scal or x in vmg for x in (q, q + 1)): q += 1
                    scal[q] = ["s_cmp_eq_u32 s37, s52"]; scal[q + 1] = ["s_cbranch_scc1 L_pubB", "L_pubBr:"]
                    put("s_add_u32 s37, s37, 1", q + 2)
                else:
                    put("s_add_u32 s37, s37, 1", 1)
                put(f"s_add_u32 s38, s38, {KV_TILE}", 1)
                if par == 1:
                    put("s_xor_b32 s53, s53, 65536", pos[0]); put("s_xor_b32 s54, s54, 65536", pos[0])
                put(f"s_add_u32 s39, s39, {KV_TILE}", pos[3] + 1)
        sm = tile_sm(par ^ 1, nqn, (0, 0, 0), False)
        lastg = n2 - 2 if nqn else n2 - 1
        while lastg in vmg: lastg -= 1
        plan = pack(n2 - 1 if nqn else n2, vmg, dsl, sm, SPLIT[nqn], lastg, False)
        emit_phase(sum(grp, []), plan, vmg, scal, None if nqn else p4s, 'ffn' if last else f'V{par}', p4s if last else None)
        print(f"iteration {name}: overflow ops {k.overflow - ov0}")
        k.hot = False
    def epilogue(q0, srow):
        k.e(f"s_lshl_b32 s3, s{srow}, 20")
        k.e("s_lshl_b32 s47, s33, 15")
        k.e("s_add_u32 s3, s3, s47")
        k.e("s_lshl_b32 s47, s32, 10")
        k.e("v_lshlrev_b32 v248, 4, v0")
        k.e("v_add_u32 v249, s47, v248")
        k.e("s_sub_u32 s47, 7168, s47")
        k.e("v_add_u32 v248, s47, v248")
        for qq in range(2):
            k.e(f"v_rcp_f32 v{250+2*qq}, v{LS+4*(q0+qq)}")
        for qq in range(2):
            k.e(f"v_mov_b32 v{251+2*qq}, v{250+2*qq}")
        for s_ in range(4):
            for qq in (1, 0):
                o = O(q0 + qq, 2 * s_)
                d = 24 + 4 * qq
                for r in range(8): k.e(f"v_accvgpr_read_b32 v{240+r}, a{o+r}")
                for r in range(0, 8, 2): k.e(f"v_pk_mul_f32 {V(240+r,2)}, {V(240+r,2)}, {V(250+2*qq,2)}")
                for r in range(4): k.e(f"v_cvt_pk_bf16_f32 v{d+r}, v{240+2*r}, v{240+2*r+1}")
                k.e(f"buffer_store_dwordx4 {V(d,4)}, v{248+qq}, s[16:19], s3 offen{opt.get('ctx_st',' sc1')}")
            if s_ < 3: k.e("s_add_u32 s3, s3, 8192")

    for kb in range(2, 4):
        for s in kread(VY, 0, kb): k.e(s, tag=f'k{kb}')
    def first_max(o, qb):
        rowmax(0, qb, 22, o)
        if PKM:
            o.e("v_sub_f32 v22, 0, v22"); o.e("v_mov_b32 v23, v22")
            for r in range(0, 16, 2): o.e(f"v_pk_add_f32 {V(Sr(0,qb,0)+r,2)}, {V(Sr(0,qb,0)+r,2)}, v[22:23]")
            for r in range(4): o.e(f"v_mov_b32 v{NEGM+4*qb+r}, v22")
        else:
            for r in range(16): o.e(f"v_sub_f32 v{Sr(0,qb,0)+r}, v{Sr(0,qb,0)+r}, v22")
            for r in range(4): o.e(f"v_sub_f32 v{NEGM+4*qb+r}, 0, v22")
    c = b2
    c.items += conv_items(2) + conv_items(3) + zrest
    for r in list(range(XR(30, 0), XR(30, 0) + 16)) + list(range(XR(31, 0), XR(31, 0) + 16)): c.e(f"v_accvgpr_write_b32 a{r}, 0")
    for r in range(4): c.e(f"v_mov_b32 v{ONES+r}, 0x3f803f80")
    c.e(f"v_mov_b32 v{NINF}, 0xff800000")
    first_max(c, 0); first_max(c, 1)
    for qb in range(4):
        while any(it[0] == 'mark' and it[1] == f'conv{qb}' for it in c.items): c.fill(k, 99, 2)
        for kb in range(4):
            k.wait_ds(f'k{kb}')
            if qb == 3 and kb == 2:
                k.e(f"s_waitcnt vmcnt({min(k.vm_n('c18'), k.vm_n('c17'))})")
                assert k.vm_n('wts') is None
                k.use('c17'); k.use('c18')
                k.e("s_barrier")
                if WOT:
                    k.e("s_mov_b64 exec, 1")
                    k.e("buffer_store_dword v24, v25, s[20:23], s52 offen sc1")
                    k.e("s_mov_b64 exec, -1")
                k.e("s_add_u32 s53, s44, 65536")
                if TK:
                    k.e("v_mov_b32 v27, 1")
                    k.e("v_mov_b32 v26, 0")
                    k.e("s_cmp_eq_u32 s32, 0")
                    k.e("s_cselect_b32 s3, 128, s64")
                    k.e("s_mov_b64 exec, 1")
                    k.e("buffer_atomic_add v27, v26, s[28:31], s3 offen sc0 sc1")
                    k.e("s_mov_b64 exec, -1")
            for s_ in range(4):
                d = V(Sr(0, qb, kb), 4)
                k.e(mfma(d, A(FR(kb, s_), 4), A(Q(qb, s_), 4), d if s_ else "0"))
                if qb == 3 and kb >= 2: k.e(kread(VY, 32768, kb - 2)[s_], tag=f'n{kb-2}')
                c.fill(k, 99, int(opt.get('pslots', 4)))
    c.drain(k)
    k.e(f"s_mov_b32 s38, {4*KV_TILE}")
    k.e(f"s_mov_b32 s39, {3*KV_TILE + KV_CH}")
    k.e("s_cmp_lg_u32 s34, 0")
    k.e("s_cbranch_scc1 L_k2_nomask0")
    mask_block(0, 3)
    k.label("L_k2_nomask0")
    k.e("s_mov_b32 s37, 0")
    first_max(k, 2); first_max(k, 3)
    SM(sm_pairs(0, 4, 0), True, False).drain()
    k.e("s_waitcnt lgkmcnt(4)")
    k.stamp(ST or SA)

    k.e("s_cmp_eq_u32 s34, 0")
    k.e("s_cbranch_scc1 L_k2_wlast")
    k.e("s_branch L_k2_wloop")
    for nm, qb in (("wo", 3), ("tr", 1), ("no", 1)):
        k.label(f"L_k2_mk_{nm}"); k.win = []
        mask_block(0, qb)
        k.e(f"s_branch L_k2_mkr_{nm}")
    k.label("L_pubB"); k.win = []
    k.e("v_mov_b32 v24, 1"); k.e("v_mov_b32 v25, 0")
    k.e("s_mov_b64 exec, 1")
    k.e("buffer_store_dword v24, v25, s[20:23], s64 offen sc1")
    k.e("s_mov_b64 exec, -1")
    k.e("s_branch L_pubBr")
    k.label("L_k2_wloop")
    iteration(0, 4, 4, None, "we", [])
    iteration(1, 4, 4, (3, 46), "wo", ["s_cmp_lg_u32 s37, s35", "s_cbranch_scc1 L_k2_wloop"])
    k.label("L_k2_wlast")
    iteration(0, 4, 3, (2, None), "wl", [])
    iteration(1, 3, 2, (1, 45), "tr", [])
    k.stamp(SA)
    if '4' in CPF: emit(code_prefetch("L_k2_fin", "L_p4_end", 32, 56, 160, 164))
    k.e("s_waitcnt vmcnt(9)")
    if TK:
        k.e("v_mov_b32 v26, 131072")
        k.e("s_cmp_lg_u32 s32, 0")
        k.e("s_cbranch_scc1 L_notk")
        k.e("s_mov_b64 exec, 1")
        k.e("ds_write_b32 v26, v27")
        k.e("s_mov_b64 exec, -1")
        k.e("s_waitcnt lgkmcnt(0)")
        k.label("L_notk")
        k.e("s_barrier")
        k.e("ds_read_b32 v23, v26")
    epilogue(2, 34)
    k.e("s_add_u32 s52, s37, 2")
    k.raw(";@b:2")
    for s in p4_ptr_loads(): k.e(s)
    k.e("s_waitcnt vmcnt(8) lgkmcnt(0)")
    if TK: k.e("v_readfirstlane_b32 s93, v23")
    else:
        k.e("s_add_u32 s93, s2, 224")
        k.e("s_and_b32 s93, s93, 255")
    k.e("s_nop 0")
    k.e("s_mul_i32 s92, s93, 2341")
    k.e("s_lshr_b32 s92, s92, 16")
    k.e("s_mul_i32 s47, s92, 28")
    k.e("s_sub_u32 s4, s93, s47")
    k.e(f"s_mul_i32 s5, s92, {128*7168}")
    k.e("s_lshl_b32 s47, s4, 8")
    k.e("s_add_u32 s5, s5, s47")
    k.stamp(SA)
    k.e("s_cmp_eq_u32 s34, 7")
    k.e("s_cbranch_scc1 L_k2_fin")
    k.label("L_k2_nloop")
    nl0 = len(k.lines)
    iteration(0, 2, 2, None, "ne", [])
    iteration(1, 2, 2, (1, 45), "no", ["s_cmp_lg_u32 s37, s36", "s_cbranch_scc1 L_k2_nloop"])
    if 'dbg_drop' in opt:
        drop = opt['dbg_drop'].split(',')
        k.lines[nl0:] = [x for x in k.lines[nl0:] if not any(d in x and not x.endswith(':') for d in drop)]
    k.label("L_k2_fin")
    k.stamp(SA)
    iteration(0, 2, 1, (0, None), "nl", [])
    iteration(1, 1, 0, None, "fi", [])
    k.stamp(ST or SA)
    k.e("s_nop 7")
    epilogue(0, 55)
    k.stamp(SA)
    k.e("s_cmp_ge_u32 s93, 224")
    k.e("s_cbranch_scc1 L_noffn")
    ffn_finish()
    k.label("L_noffn")
    p4s.drain(k)
    k.stamp(SA)
    k.e("v_mov_b32 v24, 1")
    k.e("v_mul_u32_u24 v25, s65, v0")
    k.e("s_waitcnt vmcnt(0)")
    k.e("s_barrier")
    k.e("s_mov_b64 exec, 3")
    k.e("buffer_store_dword v24, v25, s[20:23], s64 offen sc1")
    k.e("s_mov_b64 exec, -1")
    ffn_store()
    k.stamp(ST or SA)
    phase4(k, opt, ool, ST, SA)
    k.stamp_dump('stamp' in opt, 66, 0, 32)
    if 'hold' in opt:
        k.e("s_lshl_b32 s3, s32, 8")
        k.e("s_or_b32 s3, s2, s3")
        k.e(f"s_cmp_lg_u32 s3, {opt.get('holdwg', 0)}")
        if 'holdcls' in opt:
            k.e("s_lshr_b32 s3, s2, 5")
            k.e(f"s_cmp_lg_u32 s3, {opt['holdcls']}")
        if opt.get('holdwg') != '999': k.e("s_cbranch_scc1 L_k2_end")
        k.label("L_hold")
        k.e("s_memrealtime s[4:5]")
        k.e("s_waitcnt lgkmcnt(0)")
        k.e(f"s_sub_u32 s3, s4, s{73 + 2 * int(opt.get('holdk', 0))}")
        k.e(f"s_cmp_lt_u32 s3, {int(opt['hold']) * 100}")
        k.e("s_cbranch_scc1 L_hold")
    k.label("L_k2_end")
    k.e("s_endpgm")
    hotool = [x for x in ool if x[0].startswith(("L_f2", "L_c3", "L_spinC", "L_yA", "L_yB", "L_yC"))]
    for lab, fn, ret in hotool + [("L_p4_end", None, None)] + [x for x in ool if x not in hotool]:
        k.label(lab)
        if fn is None: continue
        k.win = []; k.dq = []
        fn()
        k.e(f"s_branch {ret}")
    return k.wrap(256, 256), f"; @launch {'kernel=' + KNAME + ' ' if 'aslist' in opt else ''}grid=(256,1,1) block=(256,1,1) lds={K12_LDS}"
```

```python
from check import parse, need

def R(p, a, n=1):
    return f"{p}[{a}:{a+n-1}]" if n > 1 else f"{p}{a}"
def V(a, n=1): return R('v', a, n)
def A(a, n=1): return R('a', a, n)
def S(a, n=1): return R('s', a, n)

class Asm:
    def __init__(self, name):
        self.name = name
        self.lines = []
        self.win = []
        self.nl = 0
        self.ni = 0
        self.hot = False
        self.hot_nops = 0
        self.vq = []
        self.dq = []
    def raw(self, s): self.lines.append(s)
    def c(self, s): self.lines.append("  ; " + s)
    def e(self, s, tag=None):
        i = parse(s, 0)
        if i.cls == 'ds' and len(self.dq) >= 15: self.e('s_waitcnt lgkmcnt(9)')
        pad = 0
        for p, d in self.win:
            n = need(p, i)
            if n - d > pad: pad = n - d
        if pad:
            if self.hot:
                self.hot_nops += 1
                print(f"[{self.name}] hot nop({pad}) before: {s}")
            self._adv(parse(f"s_nop {pad-1}", 0), f"s_nop {pad-1}")
        self._adv(i, s)
        if i.cls == 'vmem' and tag and tag != '!': self.lines[-1] += f" ;@d:{tag.lstrip('!')}"
        if i.cls == 'vmem':
            if not (tag and tag.startswith('!')): self.vq.append(tag)
        elif i.cls == 'ds': self.dq.append(tag)
        elif i.cls == 'wait':
            if i.vm is not None and len(self.vq) > i.vm: self.vq = self.vq[len(self.vq) - i.vm:] if i.vm else []
            if i.lgkm is not None and len(self.dq) > i.lgkm: self.dq = self.dq[len(self.dq) - i.lgkm:] if i.lgkm else []
    def _adv(self, i, s):
        self.lines.append("  " + s)
        self.ni += 1
        self.win = [(p, d + i.states) for p, d in self.win if d + i.states < 13]
        if i.cls in ('mfma', 'valu', 'trans', 'salu') or (i.cls == 'vmem' and i.wide):
            self.win.append((i, 0))
    def vm_n(self, tag):
        idx = [n for n, t in enumerate(self.vq) if t == tag]
        return None if not idx else len(self.vq) - 1 - idx[-1]
    def ds_n(self, tag):
        idx = [n for n, t in enumerate(self.dq) if t == tag]
        return None if not idx else len(self.dq) - 1 - idx[-1]
    def wait_vm(self, tag):
        n = self.vm_n(tag)
        if n is not None: self.e(f"s_waitcnt vmcnt({min(n, 63)})")
        self.use(tag)
    def use(self, tag):
        self.lines.append(f';@u:{tag}')
    def wait_ds(self, tag):
        n = self.ds_n(tag)
        if n is not None: self.e(f"s_waitcnt lgkmcnt({min(n, 15)})")
    def label(self, l):
        self.lines.append(l + ":")
    def newlabel(self, base):
        self.nl += 1
        return f"L_{getattr(self, 'short', self.name)}_{base}{self.nl}"
    def srd(self, d, base, nbytes, add=None):
        if add is not None and add != 0:
            self.e(f"s_add_u32 s{d}, s{base}, {add}")
            self.e(f"s_addc_u32 s{d+1}, s{base+1}, 0")
            self.e(f"s_and_b32 s{d+1}, s{d+1}, 0xffff")
        else:
            self.e(f"s_mov_b32 s{d}, s{base}")
            self.e(f"s_and_b32 s{d+1}, s{base+1}, 0xffff")
        self.e(f"s_mov_b32 s{d+2}, {nbytes}")
        self.e(f"s_mov_b32 s{d+3}, 0x20000")
    def stamp(self, on):
        if not on: return
        n = getattr(self, 'nstamp', 0); self.nstamp = n + 1
        assert n < 10
        self.e("s_memtime s[96:97]")
        self.e("s_memrealtime s[98:99]")
        self.e("s_waitcnt lgkmcnt(0)")
        self.e(f"s_mov_b32 s{72+2*n}, s96")
        self.e(f"s_mov_b32 s{73+2*n}, s98")
    def stamp_dump(self, on, wsptr, kidx, wave_sgpr, n=None):
        if not on: return
        n = n or self.nstamp
        L = self.newlabel("nodump")
        self.e(f"s_cmp_lg_u32 s{wave_sgpr}, 0")
        self.e(f"s_cbranch_scc1 {L}")
        self.srd(96, wsptr, 65536, (64 << 20) + kidx * 65536)
        self.e("s_lshl_b32 s3, s2, 7")
        self.e("v_mov_b32 v0, s3")
        self.e("s_mov_b64 exec, 1")
        for j in range(n):
            self.e(f"v_mov_b32 v2, s{72+2*j}")
            self.e(f"v_mov_b32 v3, s{73+2*j}")
            self.e(f"buffer_store_dwordx2 v[2:3], v0, s[96:99], 0 offen offset:{8*j}")
        self.label(L)
    def wrap(self, arch_vgprs, agprs, sgprs=102):
        acc = (arch_vgprs + 3) // 4 * 4
        nfv = acc + agprs if agprs else arch_vgprs
        n = self.name
        code = [f".globl {n}", ".p2align 8", f".type {n},@function", f"{n}:"] + self.lines
        kd = [".p2align 6", f".amdhsa_kernel {n}", f"  .amdhsa_next_free_vgpr {nfv}", f"  .amdhsa_next_free_sgpr {sgprs}",
              f"  .amdhsa_accum_offset {acc}", "  .amdhsa_group_segment_fixed_size 0", "  .amdhsa_kernarg_size 112",
              "  .amdhsa_user_sgpr_count 2", "  .amdhsa_user_sgpr_kernarg_segment_ptr 1",
              "  .amdhsa_system_sgpr_workgroup_id_x 1", ".end_amdhsa_kernel"]
        return "\n".join(code), "\n".join(kd)

def mfma(d, a, b, c):
    return f"v_mfma_f32_16x16x32_bf16 {d}, {a}, {b}, {c}"

def build(parts, launches):
    out = ["; generated by gen/gen2.py"] + launches
    out += ['.amdgcn_target "amdgcn-amd-amdhsa--gfx950"', ".text"]
    out += [p[0] for p in parts]
    out.append('.section .rodata,"a"')
    out += [p[1] for p in parts]
    return "\n".join(out) + "\n"


class Rec:
    def __init__(self): self.items = []
    def e(self, s, tag=None): self.items.append(('i', s, tag))
    def blk(self, lst): self.items.append(('b', lst, None))
    def wait_vm(self, tag): self.items.append(('wv', tag, None))
    def wait_ds(self, tag): self.items.append(('wd', tag, None))
    def check_clear(self, tag): self.items.append(('cc', tag, None))
    def at(self, n): self.items.append(('at', n, None))
    def cost(self, it):
        if it[0] != 'i': return 0
        c = parse(it[1], 0).cls
        return {'trans': 2, 'valu': 1, 'ds': 1, 'vmem': 2}.get(c, 0)
    def fill(self, k, step, slots=2):
        nscal = 0; usedv = False
        while self.items:
            it = self.items[0]
            if it[0] == 'at':
                if step < it[1]: return
                self.items.pop(0); continue
            if it[0] == 'mark': self.items.pop(0); return
            if it[0] == 'log': print(it[1], 'at step', step); self.items.pop(0); continue
            if it[0] == 'before':
                assert step < it[1], (step, it[1])
                self.items.pop(0); continue
            if it[0] == 'fn':
                assert it[1](), 'stream ordering assumption violated'
                self.items.pop(0); continue
            if it[0] == 'nextbar': return
            if it[0] == 'skip':
                if it[1] <= 0: self.items.pop(0); continue
                self.items[0] = ('skip', it[1] - 1, None); return
            if it[0] == 'rel': self.items[0] = ('at', step + it[1], None); return
            if it[0] == 'cc':
                assert k.vm_n(it[1]) is None, it[1]
                k.use(it[1])
                self.items.pop(0); continue
            if it[0] == 'wv': self.items.pop(0); k.wait_vm(it[1]); continue
            if it[0] == 'wd': self.items.pop(0); k.wait_ds(it[1]); continue
            if it[0] == 'b':
                if usedv: return
                self.items.pop(0)
                for x in it[1]:
                    if isinstance(x, tuple): k.e(x[0], tag=x[1])
                    elif x.endswith(':'): k.label(x[:-1])
                    else: k.e(x)
                return
            c = self.cost(it)
            cls = parse(it[1], 0).cls
            if c == 0:
                if usedv or nscal >= 3: return
                nscal += 1
                if nscal > 1: slots -= 1
            else:
                if c > slots: return
                if cls == 'vmem' and (usedv or nscal): return
                if cls == 'ds' and usedv == 'v': return
                slots -= c
                usedv = 'v' if cls in ('valu', 'trans') else (usedv or 'd')
            self.items.pop(0)
            k.e(it[1], tag=it[2])
            if slots <= 0: return
    def drain(self, k):
        while self.items: self.fill(k, 1 << 30, 2)


_cp = [0]
def code_prefetch(start, end, wave_sgpr, sp, va, vd, whole=False):
    _cp[0] += 1
    L = f"L_cpf{_cp[0]}"
    if whole:
        return [f"s_getpc_b64 s[{sp}:{sp+1}]", f"{L}:",
                f"s_add_u32 s{sp}, s{sp}, ({start}-{L})&0xffffffff",
                f"s_addc_u32 s{sp+1}, s{sp+1}, (({start}-{L})>>32)&0xffffffff",
                f"s_lshl_b32 s{sp+2}, s{wave_sgpr}, 13",
                f"v_lshlrev_b32 v{va+2}, 7, v0", f"v_add_u32 v{va+2}, s{sp+2}, v{va+2}",
                f"v_min_u32 v{va+2}, {end}-{start}-4, v{va+2}",
                f"v_mov_b32 v{va+1}, s{sp+1}",
                f"v_add_co_u32 v{va}, vcc, s{sp}, v{va+2}",
                f"v_addc_co_u32 v{va+1}, vcc, 0, v{va+1}, vcc",
                f"global_load_dword v{vd}, v[{va}:{va+1}], off"]
    return [f"s_getpc_b64 s[{sp}:{sp+1}]", f"{L}:",
            f"s_add_u32 s{sp}, s{sp}, ({start}-{L})&0xffffffff",
            f"s_addc_u32 s{sp+1}, s{sp+1}, (({start}-{L})>>32)&0xffffffff",
            f"s_lshr_b32 s{sp+2}, s2, 3", f"s_lshl_b32 s{sp+2}, s{sp+2}, 2", f"s_add_u32 s{sp+2}, s{sp+2}, s{wave_sgpr}",
            f"s_lshl_b32 s{sp+2}, s{sp+2}, 10",
            f"v_and_b32 v{va+2}, 7, v0", f"v_lshlrev_b32 v{va+2}, 7, v{va+2}", f"v_add_u32 v{va+2}, s{sp+2}, v{va+2}",
            f"v_min_u32 v{va+2}, {end}-{start}-4, v{va+2}",
            f"v_mov_b32 v{va+1}, s{sp+1}",
            f"v_add_co_u32 v{va}, vcc, s{sp}, v{va+2}",
            f"v_addc_co_u32 v{va+1}, vcc, 0, v{va+1}, vcc",
            f"global_load_dword v{vd}, v[{va}:{va+1}], off"]
```

```python
from fw import *
from layout import *
from p4 import rbf2, silu_n, srd_rec, p4_ptr_loads
BIG = 0x7ff00000
VC, VWB, VW, TA, VO, VROW, G, L7, L3, T1, T2, VZ, VF = 112, 113, 114, 115, 119, 120, 121, 122, 123, 124, 125, 126, 127
GTMP, XP, STT, GT, YB = 2, 18, 34, 42, 80
SPARE = 131072

def p4_setup(opt):
    b = Rec()
    srd_rec(b, 60, 8, 7340032)
    srd_rec(b, 56, 40, 4194304)
    b.e("s_bfe_u32 s6, s2, 0x20001")
    b.e("s_lshr_b32 s7, s34, 1")
    b.e("s_lshl_b32 s45, s7, 2")
    b.e("s_add_u32 s46, s45, s6")
    b.e("s_sub_u32 s46, 15, s46")
    b.e("s_sub_u32 s45, 12, s45")
    b.e("s_add_u32 s45, s45, s6")
    b.blk(["s_cmp_lt_u32 s7, 2", "s_cselect_b32 s45, s46, s45"])
    b.e("s_and_b32 s46, s2, 1")
    b.e("s_bfe_u32 s6, s2, 0x30003")
    if opt.get('xm', '1') == '1': b.e("s_lshl_b32 s6, s6, 1")
    else: b.e("s_lshl_b32 s46, s46, 3")
    b.e("s_add_u32 s46, s46, s6")
    for j in range(4): b.e(f"s_mov_b32 s{48+j}, {j*15360}")
    b.e("s_lshl_b32 s35, s32, 13")
    b.e(f"s_add_u32 s35, s35, {SPARE}")
    b.e("s_and_b32 s52, s46, 1")
    b.e("s_lshl_b32 s37, s45, 20")
    b.e("s_lshl_b32 s7, s52, 19")
    b.e("s_add_u32 s37, s37, s7")
    b.e(f"s_add_u32 s37, s37, {WS_CTX}")
    b.e("s_lshr_b32 s7, s46, 1")
    b.e("s_lshl_b32 s7, s7, 8")
    b.e("s_lshl_b32 s6, s52, 22")
    b.e("s_add_u32 s6, s6, s7")
    srd_rec(b, 12, 94, 0, "s6")
    b.e("s_sub_u32 s14, 4194304, s7")
    srd_rec(b, 28, 94, 8388608)
    b.e("s_lshl_b32 s7, s46, 7")
    b.e("s_lshl_b32 s36, s45, 18")
    b.e("s_add_u32 s36, s36, s7")
    b.e("s_and_b32 s94, s7, 128")
    b.e("s_lshl_b32 s38, s45, 7")
    b.e("s_lshl_b32 s6, s52, 6")
    b.e("s_add_u32 s38, s38, s6")
    b.e(f"s_add_u32 s38, s38, {WS_CFL}")
    b.e("s_lshl_b32 s52, s32, 11")
    b.e("s_lshl_b32 s6, s32, 16")
    b.e("s_add_u32 s6, s6, s94")
    b.e("s_xor_b32 s6, s6, 128")
    b.e("s_lshl_b32 s7, s32, 5")
    b.at(1)
    srd_rec(b, 68, 10, 4194304)
    srd_rec(b, 8, 66, 524288, "s37")
    b.e(f"v_lshlrev_b32 v{VC}, 4, v0")
    b.e(f"v_lshrrev_b32 v{G}, 4, v0")
    b.e(f"v_and_b32 v{L7}, 7, v0")
    b.e(f"v_lshrrev_b32 v{L3}, 3, v0")
    b.e(f"v_lshlrev_b32 v{T1}, 1, v{G}")
    b.e(f"v_xor_b32 v{T1}, v{T1}, v{L7}")
    b.e(f"v_lshlrev_b32 v{T1}, 4, v{T1}")
    b.e(f"v_lshl_add_u32 v{VWB}, v{L3}, 11, v{T1}")
    b.e(f"v_add_u32 v{VW}, s6, v{VWB}")
    b.e(f"v_lshrrev_b32 v{T1}, 2, v0")
    b.e(f"v_bfe_u32 v{VZ}, v0, 3, 2")
    b.e(f"v_lshlrev_b32 v{T1}, 7, v{T1}")
    b.e(f"v_and_b32 v{T2}, 3, v0")
    b.e(f"v_lshl_add_u32 v{T1}, v{T2}, 3, v{T1}")
    b.e(f"v_lshl_add_u32 v{TA}, v{VZ}, 5, v{T1}")
    for cb in range(1, 4): b.e(f"v_xor_b32 v{TA+cb}, {cb*32}, v{TA}")
    b.e(f"v_add_u32 v{VROW}, s7, v{L3}")
    b.e(f"v_lshlrev_b32 v{VO}, 11, v{VROW}")
    b.e(f"v_lshl_add_u32 v{VO}, v{L7}, 4, v{VO}")
    b.e(f"v_mov_b32 v{VZ}, 0")
    b.e(f"v_lshlrev_b32 v{VF}, 2, v{L7}")
    return b

def phase4(k, opt, ool, ST, SA):
    N1 = int(opt.get('n1', 32))
    N2 = 64 - N1
    assert N1 % 4 == 0 and N2 % 4 == 0 and N2 <= 32
    units = [(n + q, s_) for n in range(0, N1, 4) for s_ in (1, 0) for q in range(4)] + [(n, 1) for n in range(N1, 64)] + [(n, 0) for n in range(N1, 64)]
    NS = 32
    XM = opt.get('xm', '1') == '1'
    PX = 4 if XM else 32
    SP = N1 // 2 + N2 // 4
    ACC = lambda side, rb, cb: 128 + ((side * 2 + rb) * 4 + cb) * 4
    WF = lambda u, cb: 192 + cb * 16 + (u & 3) * 4
    XI = 160
    FL = int(opt.get('fl', 2))
    CF = lambda n, rb: (n % 32) * 8 + rb * 4
    TB = 12
    WDI = int(opt.get('wdi', 3))
    CDI = int(opt.get('cdi', 3))
    def w_ops(st):
        if st >= NS: return []
        ops = [('s', f"s_add_u32 m0, s44, {(st % 8)*16384}")]
        ops += [('g', f"buffer_load_dwordx4 v{VW}, s[12:15], s{48+j} offen offset:{j*1024} lds") for j in range(4)]
        if st + 1 == SP: ops += [('s2', "s_xor_b32 s95, s95, 128"), ('v', f"v_add_u32 v{VW}, s95, v{VWB}")]
        elif st < N1 // 2:
            ops.append(('v', f"v_xor_b32 v{VW}, 128, v{VW}"))
            if st & 1: ops.append(('v', f"v_add_u32 v{VW}, {4 * 65536}, v{VW}"))
        else: ops.append(('v', f"v_add_u32 v{VW}, {4 * 65536}, v{VW}"))
        return ops
    def c_ops(n):
        return [('g', f"buffer_load_dwordx4 {A(CF(n,rb),4)}, v{VC}, s[8:11], s52 offen offset:{rb*1024} sc1") for rb in range(2)] + \
               [('s2', "s_add_u32 s52, s52, 8192")]
    def ksteps_of(st):
        if st == 0: return [0, 1, 2, 3]
        if st < N1 // 2: return [2 * st + 2, 2 * st + 3]
        if st >= SP: return []
        n0 = N1 + 4 * (st - N1 // 2)
        return [n for n in range(n0 + (2 if st == N1 // 2 else 0), n0 + 4)]
    def wread(u):
        st = u // 4
        base = TA if (st % 8) < 4 else TB
        return [[f"ds_read_b64_tr_b16 {V(WF(u,cb)+2*rd,2)}, v{base+cb} offset:{(st % 4)*16384 + (u % 4)*4096 + rd*2048}" for rd in range(2)] for cb in range(4)]
    def col3(part):
        k.e("s_bfe_u32 s3, s2, 0x40003")
        k.e("s_lshl_b32 s3, s3, 2")
        k.e("s_add_u32 s3, s3, s32")
        k.e("s_lshl_b32 s3, s3, 15")
        k.e("s_and_b32 s7, s2, 1")
        k.e(f"s_lshl_b32 s7, s7, {22 if XM else 10}")
        k.e("s_add_u32 s3, s3, s7")
        k.e(f"s_add_u32 s3, s3, {384 + part * 1024 * 2048}")
        k.e("v_and_b32 v1, 15, v0")
        k.e("v_lshlrev_b32 v1, 11, v1")
        k.e("v_lshrrev_b32 v11, 5, v0")
        k.e(f"v_lshl_add_u32 v1, v11, {10 if XM else 22}, v1")
        k.e("buffer_load_dword v11, v1, s[28:31], s3 offen")
    def gates(o, p, ysrc=None):
        g0 = GT + 8 * p
        if o is not k and opt.get('gpk', '0') == '0': return gates_plain(o, p)
        pr = lambda r: V(r, 2)
        st_ = V(STT + 2 * p, 2)
        for d in range(4):
            o.e(f"v_lshlrev_b32 v{g0+2*d}, 16, v{XP+4*p+d}")
            o.e(f"v_and_b32 v{g0+2*d+1}, 0xffff0000, v{XP+4*p+d}")
        for d in range(4): o.e(f"v_pk_add_f32 {pr(g0+2*d)}, {pr(g0+2*d)}, {st_} op_sel_hi:[1,0] neg_lo:[0,1] neg_hi:[0,1]")
        for d in range(4): rbf2(o, g0 + 2*d, g0 + 2*d + 1, GTMP + d)
        for d in range(4): o.e(f"v_pk_mul_f32 {pr(g0+2*d)}, {pr(g0+2*d)}, {st_} op_sel:[0,1] op_sel_hi:[1,1]")
        for d in range(4): rbf2(o, g0 + 2*d, g0 + 2*d + 1, GTMP + d)
        if ysrc is not None:
            for d in range(4): o.e(f"v_pk_add_f32 {pr(g0+2*d)}, {pr(g0+2*d)}, {pr(ysrc+2*d)}")
            for d in range(4): rbf2(o, g0 + 2*d, g0 + 2*d + 1, GTMP + d)
        for e_ in range(8): o.e(f"v_mul_f32 v{GTMP+e_}, 0xbfb8aa3b, v{g0+e_}")
        for e_ in range(8): o.e(f"v_exp_f32 v{GTMP+e_}, v{GTMP+e_}")
        for e_ in range(8): o.e(f"v_add_f32 v{GTMP+e_}, 1.0, v{GTMP+e_}")
        for e_ in range(8): o.e(f"v_rcp_f32 v{GTMP+e_}, v{GTMP+e_}")
        for d in range(4): o.e(f"v_pk_mul_f32 {pr(g0+2*d)}, {pr(g0+2*d)}, {pr(GTMP+2*d)}")
        for d in range(4): rbf2(o, g0 + 2*d, g0 + 2*d + 1, GTMP + d)
    def gates_plain(o, p):
        g0 = GT + 8 * p
        for d in range(4):
            o.e(f"v_lshlrev_b32 v{g0+2*d}, 16, v{XP+4*p+d}")
            o.e(f"v_and_b32 v{g0+2*d+1}, 0xffff0000, v{XP+4*p+d}")
        for e_ in range(8): o.e(f"v_sub_f32 v{g0+e_}, v{g0+e_}, v{STT+2*p}")
        for d in range(4): rbf2(o, g0 + 2*d, g0 + 2*d + 1, GTMP + d)
        for e_ in range(8): o.e(f"v_mul_f32 v{g0+e_}, v{g0+e_}, v{STT+2*p+1}")
        for d in range(4): rbf2(o, g0 + 2*d, g0 + 2*d + 1, GTMP + d)
        silu_n(o, [g0 + e_ for e_ in range(8)], [GTMP + e_ for e_ in range(8)])
        for d in range(4): rbf2(o, g0 + 2*d, g0 + 2*d + 1, GTMP + d)
    def poll_loop(lab, off, vo, vd, slp=8):
        k.e("s_mov_b32 s47, 0x400000")
        k.label(lab)
        k.e(f"buffer_load_dword v{vd}, v{vo}, s[20:23], {off} offen sc1")
        k.e("s_sub_u32 s47, s47, 1")
        k.e("s_waitcnt vmcnt(0)")
        k.e("s_cmp_eq_u32 s47, 0")
        k.e(f"s_cbranch_scc1 {lab}x")
        k.e(f"v_cmp_ne_u32 vcc, 1, v{vd}")
        k.e(f"s_cbranch_vccz {lab}x")
        k.e(f"s_sleep {slp}")
        k.e(f"s_branch {lab}")
        k.label(lab + "x")

    C3 = int(opt.get('c3', 2))
    k.e("s_mov_b32 s3, s36")
    for p in range(4):
        k.e(f"buffer_load_dwordx4 {V(XP+4*p,4)}, v{VO}, s[56:59], s3 offen", tag='x')
        if p < 3: k.e("s_add_u32 s3, s3, 16384")
    k.e("s_lshl_b32 s3, s45, 10")
    k.e(f"s_add_u32 s3, s3, {WS_STATS}")
    k.e(f"v_lshlrev_b32 v{T1}, 3, v{VROW}")
    for p in range(4):
        k.e(f"buffer_load_dwordx2 {V(STT+2*p,2)}, v{T1}, s[20:23], s3 offen offset:{p*64} sc1", tag='x')
    k.e("v_and_b32 v10, 15, v0")
    k.e("v_lshlrev_b32 v10, 2, v10")
    k.e(f"s_add_u32 s95, s32, {N1}")
    k.e("s_lshl_b32 s95, s95, 16")
    k.e("s_add_u32 s95, s95, s94")
    k.e("s_xor_b32 s95, s95, 128")
    WE = int(opt.get('we', 2))
    for st in range(WE):
        for t, s in w_ops(st): k.e(s, tag=f'w{st}')
    k.e(f"buffer_load_dword v{T1}, v10, s[20:23], s38 offen sc1", tag='cp')
    for cb in range(4): k.e(f"v_add_u32 v{TB+cb}, 65536, v{TA+cb}")
    k.e("s_and_b32 s39, s93, 15")
    k.e("s_lshr_b32 s37, s93, 4")
    k.e("s_lshl_b32 s54, s37, 2")
    k.e("s_add_u32 s54, s54, s32")
    k.e("s_lshl_b32 s3, s54, 17")
    k.e("s_lshl_b32 s7, s39, 7")
    k.e("s_add_u32 s3, s3, s7")
    k.e("s_cmp_lt_u32 s93, 224")
    k.e(f"s_cselect_b32 s3, s3, {BIG}")
    k.e(f"v_add_u32 v{T2}, s3, v{VWB}")
    def wd_dma():
        n0 = len(k.vq)
        for q in range(2):
            k.e(f"s_add_u32 m0, s35, {q*4096}")
            for j in range(4):
                k.e(f"buffer_load_dwordx4 v{T2}, s[60:63], s{48+j} offen offset:{j*1024} lds", tag='wd')
            if q == 0: k.e(f"v_add_u32 v{T2}, 65536, v{T2}")
        del k.vq[n0:]
    k.e("s_mov_b32 s40, 0")
    k.wait_vm('x')
    GE = int(opt.get('ge', 1)); GM = int(opt.get('gm', 2))
    for p in range(GE): gates(k, p)
    k.wait_vm('cp')
    k.e(f"v_cmp_ne_u32 vcc, 1, v{T1}")
    k.e("s_cbranch_vccnz L_spinC")
    k.label("L_spinCr")
    def spinC():
        wd_dma()
        k.e("s_mov_b32 s40, 1")
        poll_loop("L_spinC_l", "s38", 10, T1, opt.get('slpc', 4))
    ool.append(("L_spinC", spinC, "L_spinCr"))
    SO = opt.get('stamp') == 'o'
    k.stamp(ST or SA or SO)
    for st in range(max(CDI, WDI)):
        if st < CDI:
            for n in ksteps_of(st):
                for t, s in c_ops(n): k.e(s, tag=f'c{n}')
        if WE <= st < WDI:
            for t, s in w_ops(st): k.e(s, tag=f'w{st}')
        if st == 1:
            for p in range(GE, GE + GM): gates(k, p)
    k.e("s_cmp_lg_u32 s40, 0")
    k.e("s_cbranch_scc1 L_nowd")
    wd_dma()
    k.label("L_nowd")
    if C3:
        k.e("s_cmp_lt_u32 s2, 128")
        k.e("s_cbranch_scc1 L_noc3")
        col3(0)
        k.vq.pop()
        k.label("L_noc3")

    b = Rec()
    b.e(f"v_mov_b32 v{T2}, 1")
    b.e("s_lshl_b32 s6, s4, 3")
    b.e("s_add_u32 s6, s6, s92")
    b.e("s_lshl_b32 s6, s6, 2")
    b.e(f"s_add_u32 s6, s6, {WS_HFL}")
    b.blk(["s_cmp_eq_u32 s32, 0", "s_cselect_b32 s6, s6, s64", "s_cmp_lt_u32 s93, 224", f"s_cselect_b32 s6, s6, {BIG}"])
    b.blk(["s_mov_b64 exec, 1", f"buffer_store_dword v{T2}, v{VZ}, s[20:23], s6 offen sc1", "s_mov_b64 exec, -1"])
    b.e("s_lshl_b32 s40, s45, 2")
    b.e("s_add_u32 s40, s40, s32")
    b.blk(["s_lshr_b32 s3, s42, 5", "s_lshr_b32 s47, s43, 5", "s_cmp_eq_u32 s3, s40", "s_cselect_b32 s53, 1, 0",
           "s_cmp_eq_u32 s47, s40", "s_cselect_b32 s53, 1, s53", "s_mov_b32 s40, 0"])
    b.e("s_lshl_b32 s41, s46, 7")
    b.e(f"s_add_u32 s41, s41, {WS_YFL}")
    b.e("s_lshl_b32 s55, s46, 13")
    b.e(f"s_add_u32 s55, s55, {WS_YP}")
    srd_rec(b, 16, 66, 8 << 20, WS_XCH)
    b.e("s_lshl_b32 s24, s2, 2")
    b.e("s_add_u32 s24, s24, s32")
    b.e("s_lshl_b32 s25, s24, 13")
    b.e(f"s_xor_b32 s26, s25, {PX << 13}")
    b.e("s_lshl_b32 s24, s24, 2")
    b.e(f"s_xor_b32 s27, s24, {PX * 4}")
    b.e(f"s_add_u32 s24, s24, {WS_XFL}")
    b.e(f"s_add_u32 s27, s27, {WS_XFL}")
    F2 = float(opt.get('f2', 5)); FD = float(opt.get('f2d', 2.4))
    b0 = Rec()
    ev = [(F2 + j * FD, "s_cmp_lt_u32 s93, 224", f"L_f2{x}") for j, x in enumerate("AB")]
    if C3: ev.append((float(opt.get('c3t', 9.5)), "s_cmp_ge_u32 s2, 128", "L_c31")); ool.append(("L_c31", lambda: col3(1), "L_c31r"))
    for t_, c_, l_ in sorted(ev):
        b0.at(t_); b0.blk([c_, f"s_cbranch_scc1 {l_}", l_ + "r:"])
    H0 = 74
    WN = int(opt.get('f2w', 16))
    for cb in range(4): b.e(f"v_add_u32 v{106+cb}, s35, v{TA+cb}")
    b.e(f"v_and_b32 v2, 1, v{G}")
    b.e("v_lshlrev_b32 v2, 8, v2")
    b.e("v_and_b32 v3, 15, v0")
    b.e("v_lshl_add_u32 v2, v3, 3, v2")
    b.e("v_add_u32 v2, s35, v2")
    b.e("v_and_b32 v4, 1, v0")
    b.e("v_lshlrev_b32 v4, 8, v4")
    b.e("v_add_u32 v4, s35, v4")
    b.e(f"v_lshl_add_u32 v3, v{G}, 3, v4")
    b.e(f"v_lshl_add_u32 v4, v{G}, 4, v4")
    b.e("v_lshlrev_b32 v5, 3, v0")
    b.e(f"v_add_u32 v6, {SPARE + 2048}, v5")
    b.e("v_mov_b32 v7, 1")
    b.e("s_lshl_b32 s4, s39, 4")
    b.e("s_add_u32 s4, s4, s37")
    b.e("s_lshl_b32 s4, s4, 9")
    b.e(f"s_add_u32 s4, s4, {WS_YP}")
    b.e("s_lshl_b32 s6, s39, 5")
    b.e("s_add_u32 s6, s6, s37")
    b.e("s_lshl_b32 s6, s6, 2")
    b.e(f"s_add_u32 s6, s6, {WS_YFL}")
    b.blk(["s_cmp_eq_u32 s32, 0", "s_cselect_b32 s4, s4, s64", "s_cselect_b32 s6, s6, s64"])
    b.blk(["s_cmp_lt_u32 s93, 224", f"s_cselect_b32 s4, s4, {BIG}", f"s_cselect_b32 s6, s6, {BIG}"])
    b.at(F2 + 2 * FD)
    b.e(f"s_waitcnt vmcnt({WN})")
    b.items.append(('fn', lambda: k.use('wd') is None, None))
    for j in range(1, 8):
        for r in range(4): b.e(f"v_add_f32 v{H0+r}, v{H0+r}, v{H0+4*j+r}")
    for cb in range(4):
        for rd in range(2):
            b.e(f"ds_read_b64_tr_b16 {V(90 + 4*cb + 2*rd, 2)}, v{106+cb} offset:{rd*2048}", tag='d0')
    for r in range(0, 4, 2): rbf2(b, H0 + r, H0 + r + 1, 8)
    for r in range(4): b.e(f"v_mov_b32 v{78+r}, v{H0+r}")
    for r in range(4): b.e(f"v_permlane32_swap_b32 v{78+r}, v{H0+r}")
    silu_n(b, [78 + r for r in range(4)], [82 + r for r in range(4)])
    for r in range(0, 4, 2): rbf2(b, 78 + r, 79 + r, 8)
    for r in range(4): b.e(f"v_mul_f32 v{H0+r}, v{H0+r}, v{78+r}")
    for r in range(2): b.e(f"v_cvt_pk_bf16_f32 v{8+r}, v{H0+2*r}, v{H0+2*r+1}")
    b.e("ds_write_b64 v2, v[8:9]")
    for q in range(2):
        for rd in range(2):
            b.e(f"ds_read_b64 {V(H0 + 4*q + 2*rd, 2)}, v3 offset:{q*64 + rd*32}", tag='hf')
    b.items.append(('skip', 2, None))
    b.wait_ds('hf')
    for half in range(2):
        for c2 in range(2):
            cb = 2 * half + c2
            b.blk([mfma(V(82 + 4 * c2, 4), V(90 + 4 * cb, 4), V(H0, 4), "0")])
        for c2 in range(2):
            cb = 2 * half + c2
            for rd in range(2):
                b.e(f"ds_read_b64_tr_b16 {V(90 + 4*cb + 2*rd, 2)}, v{106+cb} offset:{4096 + rd*2048}", tag=f'd1{half}')
        b.items.append(('skip', 2, None))
        b.wait_ds(f'd1{half}')
        for c2 in range(2):
            b.blk([mfma(V(82 + 4 * c2, 4), V(90 + 4 * (2 * half + c2), 4), V(H0 + 4, 4), V(82 + 4 * c2, 4))])
        b.items.append(('skip', 1, None))
        for c2 in range(2):
            b.e(f"ds_write_b128 v4, {V(82 + 4*c2, 4)} offset:{2048 + (2*half + c2)*64}", tag='yw')
        b.items.append(('skip', 2, None))
        b.wait_ds('yw')
    b.items.append(('nextbar', None, None))
    for w in range(4): b.e(f"ds_read_b64 {V(74+2*w,2)}, v6 offset:{w*8192}", tag='yr')
    b.items.append(('skip', 2, None))
    b.wait_ds('yr')
    for r in range(2):
        b.e(f"v_add_f32 v{74+r}, v{74+r}, v{76+r}"); b.e(f"v_add_f32 v{78+r}, v{78+r}, v{80+r}")
    for r in range(2): b.e(f"v_add_f32 v{74+r}, v{74+r}, v{78+r}")
    b.e("buffer_store_dwordx2 v[74:75], v5, s[20:23], s4 offen sc1", tag='yp')
    b.items.append(('log', 'y partial stored', None))
    b.items.append(('rel', float(opt.get('f2e', 2.0)), None))
    b.wait_vm('yp')
    b.blk(["s_mov_b64 exec, 1", f"buffer_store_dword v7, v{VZ}, s[20:23], s6 offen sc1", "s_mov_b64 exec, -1"])
    b.items.append(('log', 'y flag', None))
    for p in range(GE + GM, 4): gates(b, p)
    b.items.append(('log', 'gates done', None))
    PS = float(opt.get('k3_poll', 25.5))
    b.at(PS + 4.0)
    b.blk(["s_cmp_lg_u32 s40, 0", "s_cbranch_scc1 L_yC", "L_yCr:"])
    b0.at(PS)
    b0.blk(["s_cmp_lg_u32 s53, 0", "s_cbranch_scc1 L_yA", "L_yAr:"])
    b0.at(PS + 2.2)
    b0.blk(["s_cmp_lg_u32 s53, 0", "s_cbranch_scc1 L_yB", "L_yBr:"])
    b0.at(SP + 0.15)
    b0.e(f"v_add_u32 v10, 4096, v{VC}")
    for j in range(8):
        b0.e(f"buffer_store_dwordx4 {V(ACC(1, 0, 0) + 4*j, 4)}, v{VC if j < 4 else 10}, s[16:19], s26 offen offset:{(j & 3)*1024} sc1", tag='xs')
    b0.e("v_mov_b32 v16, 1")
    b0.at(SP + float(opt.get('xf', 3.2)))
    b0.wait_vm('xs')
    b0.blk(["s_mov_b64 exec, 1", f"buffer_store_dword v16, v{VZ}, s[20:23], s27 offen sc1", "s_mov_b64 exec, -1"])
    b0.at(SP + float(opt.get('xpl', 4.6)))
    b0.e(f"buffer_load_dword v17, v{VZ}, s[20:23], s24 offen sc1", tag='xp')
    b0.at(SP + float(opt.get('xck', 5.8)))
    b0.wait_vm('xp')
    b0.blk(["v_cmp_ne_u32 vcc, 1, v17", "s_mov_b32 s33, 0", "s_cbranch_vccnz L_xno"] +
           [(f"buffer_load_dwordx4 {V(XI + 4*j, 4)}, v{VC if j < 4 else 10}, s[16:19], s25 offen offset:{(j & 3)*1024} sc1", '!') for j in range(8)] +
           ["s_mov_b32 s33, 1", "L_xno:"])

    grp_ = []
    for it in b0.items:
        if it[0] == 'at': grp_.append([])
        grp_[-1].append(it)
    b0.items = [it for g_ in sorted(grp_, key=lambda x: x[0][1]) for it in g_]
    k.wait_vm('w0')
    k.use('hps')
    k.e("s_barrier")
    for cb in range(2):
        for u in range(4):
            for s in wread(u)[cb]: k.e(s, tag=f'f0_{cb}')
    BS = int(opt.get('k3_bs', 3))
    wnext = WDI
    for st in range(NS):
        k.stamp(SO and st % 4 == 0)
        vm = []
        for _ in range(int(opt.get('wq', 3)) if st >= SP - CDI else 1):
            if wnext < NS and wnext <= st + 6:
                vm += [(t, s, f'w{wnext}') for t, s in w_ops(wnext)]; wnext += 1
        for n in ksteps_of(st + CDI): vm += [(t, s, f'c{n}') for t, s in c_ops(n)]
        g = {}; gt = {}; scal = {}
        for cb in range(4):
            s2, c2 = (st, cb + 2) if cb < 2 else (st + 1, cb - 2)
            if s2 < NS:
                for q in range(4):
                    g[8 * cb + 2 * q] = wread(4 * s2 + q)[c2]; gt[8 * cb + 2 * q] = f'f{s2}_{c2}'
        free = [x for x in range(32) if x not in g]
        ng = sum(1 for x in vm if x[0] == 'g')
        pick = [free[(2 * j + 1) * len(free) // (2 * ng)] for j in range(ng)] if ng else []
        j = 0
        for t, s, tg in vm:
            if t == 'g': g[pick[j]] = [s]; gt[pick[j]] = tg; j += 1
            elif t == 's': scal.setdefault(pick[j] - 1, []).append(s)
            else: g[pick[j - 1]].append(s)
        seq = [(4 * st + q, cb, rb) for cb in range(4) for rb in range(2) for q in range(4)]
        for m, (u, cb, rb) in enumerate(seq):
            if True:
                if True:
                    n, side = units[u]
                    if m == 0: k.wait_vm(f'c{units[u + 3][0]}')
                    k.wait_ds(f'f{st}_{cb}')
                    d = V(ACC(side, rb, cb), 4)
                    k.e(mfma(d, V(WF(u, cb), 4), A(CF(n, rb), 4), "0" if n == 0 else d))
                    if m == 12 and st + 1 < NS: k.wait_vm(f'w{st+1}')
                    if m == 14 and st + 1 < NS:
                        k.e("s_barrier")
                        if b.items and b.items[0][0] == 'nextbar': b.items.pop(0)
                    if m % 8 == 4 and m != 12 or m == 10:
                        k.wait_ds(f'f{st}_{cb+1}' if cb < 3 else f'f{st+1}_0')
                    if m == 30 and st + 1 < NS: k.wait_vm(f'c{units[4 * st + 7][0]}')
                    for s in scal.get(m, []): k.e(s)
                    if m in g:
                        for s in g[m]: k.e(s, tag=gt.get(m))
                        if int(opt.get('k3_ds', 1)) and st < SP - CDI and g[m][0].startswith('ds_') and b.items and b.items[0][0] == 'i' and b.cost(b.items[0]) == 1 \
                                and b.items[0][1].startswith('v_'):
                            b.fill(k, st + m / 32.0, int(opt.get('k3_ds', 1)))
                    else:
                        nl = k.ni
                        b0.fill(k, st + m / 32.0, 2)
                        if k.ni == nl: b.fill(k, st + m / 32.0, BS if st < SP - CDI else 2)
    print("phase4 items left", len(b.items), len(b0.items))
    b0.drain(k); b.drain(k)
    k.stamp(ST or SO)
    k.e("s_cmp_lg_u32 s53, s40")
    k.e("s_cbranch_scc1 L_ysl")
    k.label("L_yslr")
    k.e(f"v_and_b32 v{T1}, 15, v0")
    k.e(f"v_lshlrev_b32 v74, 8, v{T1}")
    k.e("v_add_u32 v74, s35, v74")
    k.e(f"v_xor_b32 v{T1}, v{T1}, v{G}")
    k.e(f"v_lshl_add_u32 v74, v{T1}, 4, v74")
    for cb in range(1, 4): k.e(f"v_xor_b32 v{74+cb}, {64*cb}, v74")
    k.e(f"v_lshlrev_b32 v{T2}, 1, v{L7}")
    k.e(f"v_xor_b32 v{T1}, v{L3}, v{T2}")
    k.e(f"v_lshlrev_b32 v12, 8, v{L3}")
    k.e("v_add_u32 v12, s35, v12")
    k.e(f"v_lshl_add_u32 v12, v{T1}, 4, v12")
    k.e("v_xor_b32 v13, 16, v12")
    k.e("v_xor_b32 v14, 128, v12")
    k.e("v_xor_b32 v15, 144, v12")
    k.e("s_cmp_eq_u32 s33, 0")
    k.e("s_cbranch_scc1 L_spinX")
    k.label("L_spinXr")
    def spinX():
        poll_loop("L_spinXl", "s24", VZ, 17, 1)
        for j in range(8):
            k.e(f"buffer_load_dwordx4 {V(XI + 4*j, 4)}, v{VC if j < 4 else 10}, s[16:19], s25 offen offset:{(j & 3)*1024} sc1")
    ool.append(("L_spinX", spinX, "L_spinXr"))
    XU = 80
    for p in range(4):
        for d in range(4):
            k.e(f"v_lshlrev_b32 v{XU+8*p+2*d}, 16, v{XP+4*p+d}")
            k.e(f"v_and_b32 v{XU+8*p+2*d+1}, 0xffff0000, v{XP+4*p+d}")
    k.e("s_waitcnt vmcnt(0)")
    for j in range(8):
        a = ACC(0, 0, 0) + 4 * j
        for e_ in (0, 2): k.e(f"v_pk_add_f32 {V(a+e_,2)}, {V(a+e_,2)}, {V(XI+4*j+e_,2)}")
        k.e(f"ds_write_b128 v{74 + (j & 3)}, {V(a,4)} offset:{(j >> 2)*4096}")
    for p in range(4):
        for h in range(2):
            k.e(f"ds_read_b128 {V(192 + 8*p + 4*h, 4)}, v{12 + h + 2*(p & 1)} offset:{p*2048}", tag=f'r{p}')
    for p in range(4):
        b_ = 192 + 8 * p; t_ = 224 + 4 * p
        k.wait_ds(f'r{p}')
        for d in range(4): rbf2(k, b_ + 2*d, b_ + 2*d + 1, t_ + d)
        for e_ in range(0, 8, 2): k.e(f"v_pk_mul_f32 {V(b_+e_,2)}, {V(b_+e_,2)}, {V(GT+8*p+e_,2)}")
        for d in range(4): rbf2(k, b_ + 2*d, b_ + 2*d + 1, t_ + d)
        for e_ in range(0, 8, 2): k.e(f"v_pk_add_f32 {V(b_+e_,2)}, {V(b_+e_,2)}, {V(XU+8*p+e_,2)}")
        for d in range(4): k.e(f"v_cvt_pk_bf16_f32 v{t_+d}, v{b_+2*d}, v{b_+2*d+1}")
        k.e(f"buffer_store_dwordx4 {V(t_,4)}, v{VO}, s[68:71], s36 offen{opt.get('out_st', ' sc1')}")
        if p < 3: k.e("s_add_u32 s36, s36, 16384")
    k.stamp(ST or SA)

    def f2A():
        k.e("s_lshr_b32 s5, s54, 1")
        k.e("s_lshl_b32 s5, s5, 5")
        k.e(f"s_add_u32 s5, s5, {WS_HFL}")
        k.e(f"buffer_load_dword v{T2}, v{VF}, s[20:23], s5 offen sc1")
    def f2B():
        k.e(f"s_waitcnt vmcnt({WN})")
        k.e(f"v_cmp_ne_u32 vcc, 1, v{T2}")
        k.e("s_cbranch_vccz L_f2lx")
        poll_loop("L_f2l", "s5", VF, T2)
        k.e("s_lshl_b32 s3, s54, 8")
        k.e(f"s_add_u32 s3, s3, {WS_HP}")
        k.e(f"v_mul_u32_u24 v{T1}, 14336, v{G}")
        k.e(f"v_and_b32 v{T2}, 15, v0")
        k.e(f"v_lshl_add_u32 v{T1}, v{T2}, 4, v{T1}")
        for j in range(8):
            k.e(f"buffer_load_dwordx4 {V(H0 + 4*j, 4)}, v{T1}, s[20:23], s3 offen sc1")
            if j < 7: k.e(f"s_add_u32 s3, s3, {4*14336}")
    for nm, fn in (("A", f2A), ("B", f2B)): ool.append((f"L_f2{nm}", fn, f"L_f2{nm}r"))
    YR = lambda t: 76 + 18 * t
    def own_tok(t, skip):
        k.e("s_lshl_b32 s7, s45, 2")
        k.e("s_add_u32 s7, s7, s32")
        k.e(f"s_lshr_b32 s3, s{42+t}, 5")
        k.e("s_cmp_lg_u32 s3, s7")
        k.e(f"s_cbranch_scc1 {skip}")
    def yloads():
        k.e(f"v_lshlrev_b32 v{T1}, 2, v0")
        k.e(f"v_lshlrev_b32 v{T2}, 1, v0")
        for t in range(2):
            L = k.newlabel("yl")
            own_tok(t, L)
            k.e(f"s_add_u32 s3, s55, {t*256}")
            k.e("s_add_u32 s7, s3, 4096")
            for j in range(14):
                k.e(f"buffer_load_dword v{YR(t)+j}, v{T1}, s[20:23], s{3 if j < 8 else 7} offen offset:{(j & 7)*512} sc1")
            k.e(f"s_lshl_b32 s3, s{42+t}, 11")
            k.e("s_lshl_b32 s7, s46, 7")
            k.e("s_add_u32 s3, s3, s7")
            k.e(f"buffer_load_ushort v{YR(t)+14}, v{T2}, s[56:59], s3 offen")
            k.e(f"s_lshl_b32 s3, s{42+t}, 3")
            k.e(f"s_add_u32 s3, s3, {WS_STATS}")
            k.e(f"buffer_load_dwordx2 {V(YR(t)+16,2)}, v{VZ}, s[20:23], s3 offen sc1")
            k.label(L)
    def rb1(r):
        k.e(f"v_cvt_pk_bf16_f32 v{r}, v{r}, v{r}")
        k.e(f"v_lshlrev_b32 v{r}, 16, v{r}")
    def selblock():
        for t in range(2):
            L = k.newlabel("ys")
            y, x = YR(t), YR(t) + 14
            own_tok(t, L)
            for j in range(2, 14, 2): k.e(f"v_pk_add_f32 {V(y,2)}, {V(y,2)}, {V(y+j,2)}")
            k.e(f"v_add_f32 v{y}, v{y}, v{y+1}")
            k.e(f"v_lshlrev_b32 v{x}, 16, v{x}")
            k.e(f"v_sub_f32 v{x}, v{x}, v{x+2}")
            rb1(y); rb1(x)
            k.e(f"v_mul_f32 v{y}, s{100+t}, v{y}")
            k.e(f"v_mul_f32 v{x}, v{x}, v{x+3}")
            rb1(y); rb1(x)
            k.e(f"v_add_f32 v{x}, v{x}, v{y}")
            rb1(x)
            silu_n(k, [x], [y])
            rb1(x)
            k.e(f"v_lshlrev_b32 v{T1}, 2, v0")
            k.e(f"v_add_u32 v{T1}, s35, v{T1}")
            k.e(f"v_lshlrev_b32 v{T2}, 5, v{L7}")
            k.e(f"v_add_u32 v{T2}, s35, v{T2}")
            k.e("s_waitcnt lgkmcnt(0)")
            k.e(f"ds_write_b32 v{T1}, v{x}")
            k.e(f"s_and_b32 s3, s{42+t}, 7")
            k.e("s_lshl_b32 s3, s3, 3")
            k.e("s_lshl_b64 s[4:5], 0xff, s3")
            k.e(f"s_bfe_u32 s3, s{42+t}, 0x20003")
            k.e("s_mov_b64 exec, s[4:5]")
            for p in range(4):
                L2 = k.newlabel("yp")
                k.e(f"s_cmp_lg_u32 s3, {p}")
                k.e(f"s_cbranch_scc1 {L2}")
                k.e(f"ds_read_b64 {V(GT+8*p,2)}, v{T2}")
                k.e(f"ds_read_b64 {V(GT+8*p+2,2)}, v{T2} offset:8")
                k.e(f"ds_read_b64 {V(GT+8*p+4,2)}, v{T2} offset:16")
                k.e(f"ds_read_b64 {V(GT+8*p+6,2)}, v{T2} offset:24")
                k.label(L2)
            k.e("s_mov_b64 exec, -1")
            k.e("s_waitcnt lgkmcnt(0)")
            k.label(L)
    def yA():
        k.e(f"v_min_u32 v{VF}, 13, v0")
        k.e(f"v_lshlrev_b32 v{VF}, 2, v{VF}")
        k.e(f"buffer_load_dword v74, v{VF}, s[20:23], s41 offen sc1")
    def yB():
        k.e(f"s_waitcnt vmcnt({opt.get('ybw', 1)})")
        k.e("v_cmp_ne_u32 vcc, 1, v74")
        k.e("s_cbranch_vccnz L_yBr")
        k.e("s_mov_b32 s40, 1")
        yloads()
    def yC():
        k.e(f"s_waitcnt vmcnt({opt.get('ycw', 1)})")
        selblock()
    def ysl():
        poll_loop("L_ysll", "s41", VF, T1)
        yloads()
        k.e("s_waitcnt vmcnt(0)")
        selblock()
    ool.append(("L_yA", yA, "L_yAr")); ool.append(("L_yB", yB, "L_yBr")); ool.append(("L_yC", yC, "L_yCr")); ool.append(("L_ysl", ysl, "L_yslr"))
```

```python
from fw import *
from layout import *
import p4, p4b, p4c
KNAME = 'recurrent_scan__compressed_kv_cla__moe_arch_mod__prompt_kernel'

K12_LDS = 163840
QSCALE = 0x3e0293ee
BIG = 0x7ff00000

def gen_k12(opt):
    k = Asm(KNAME)
    k.short = "f"
    P4 = {'0': p4, '1': p4b, '2': p4c}[opt.get('s2', '2')]
    p4_ptr_loads, p4_setup, phase4 = P4.p4_ptr_loads, P4.p4_setup, P4.phase4
    ST = opt.get('stamp') == '1'
    S1 = opt.get('stamp') == 'p1'
    S2 = opt.get('stamp') == 'p2'
    SA = opt.get('stamp') == 'a'
    S0 = opt.get('stamp') == 'p0'
    w_ld, a_ld, x_ld = opt.get('w_ld', ''), opt.get('a_ld', ''), opt.get('x_ld', '')
    wq_ld, kv_ld, ffn_ld = opt.get('wq_ld', ''), opt.get('kv_ld', ' sc1'), opt.get('ffn_ld', '')
    MAP = int(opt.get('map', 4))
    WOT = opt.get('wot', '0') == '1'
    TK = opt.get('tk', '0') == '1'
    VOA, VOW, AD, PFO = 2, 6, 10, 47
    AA = [[10, 11], [12, 13]]
    WA = [list(range(16, 24)), [14, 15] + list(range(24, 30))]
    FA = lambda it, ks: 224 + (it % 4) * 8 + 4 * ks
    FW = lambda buf, jd, ks: 64 * buf + 8 * jd + 4 * ks
    def frag_of(isV, it, jd):
        return ((it >> 1) * 8 + jd, it & 1) if isV else (it * 4 + (jd >> 1), jd & 1)
    SRC = lambda n: ('v', 48 + 8 * n) if n < 26 else ('a', 128 + 8 * (n - 26))
    def acc(isV, it, jd):
        n, h = frag_of(isV, it, jd)
        p, r = SRC(n)
        return R(p, r + 4 * h, 4)
    PK = lambda n: 24 + 4 * (n if n < 26 else n - 26)
    VX, VY, VDMA, VRA, VRB, ORR, T0 = 2, 3, 4, 5, 6, 7, 1
    WV, XV, TA = 8, 10, 16
    ET = 8
    ONES, NINF = 16, 20
    NEGM, LS, PB, SB = 32, 48, 64, 128
    P = lambda par, qb, ks: PB + 32 * par + (qb * 2 + ks) * 4
    Sr = lambda par, qb, kb: SB + 64 * par + (qb * 4 + kb) * 4
    O = lambda qb, db: (qb * 8 + db) * 4
    Q = lambda qb, s: 128 + (qb * 4 + s) * 4
    FR = lambda grp, j: 192 + 16 * grp + 4 * j
    QA = lambda db, qb: 128 + (qb * 8 + db) * 4
    XR = lambda kk, qb: ((kk % 8) * 4 + qb) * 4
    P2C = opt.get('p2ch', '0') == '1'
    WF = lambda ks, db: 192 + db * 8 + ks * 4 if P2C else 192 + ks * 32 + db * 4

    k.e("s_cmp_ge_u32 s2, 256")
    k.e("s_cbranch_scc1 L_k2_end")
    k.stamp(ST or S0)
    k.e("s_load_dwordx4 s[4:7], s[0:1], 0")
    k.e("s_load_dwordx2 s[44:45], s[0:1], 56")
    k.e("s_load_dwordx4 s[40:43], s[0:1], 24")
    k.e("s_load_dwordx4 s[64:67], s[0:1], 96")
    k.e("v_lshrrev_b32 v1, 6, v0")
    k.e("v_and_b32 v0, 63, v0")
    k.e("v_readfirstlane_b32 s32, v1")
    def emit(lst, o=None):
        for x in lst:
            if x.endswith(':'): k.label(x[:-1])
            else: k.e(x, tag='cpf')
    CPF = opt.get('cpf', '12346')
    if '1' in CPF: emit(code_prefetch(KNAME, "L_k2_fin", 32, 68, 120, 124))
    k.e("v_lshrrev_b32 v33, 5, v0")
    k.e("v_and_b32 v31, 31, v0")
    k.e("v_lshlrev_b32 v36, 4, v31")
    k.e("v_lshl_add_u32 v35, v33, 11, v36")
    k.e("s_lshl_b32 s36, s2, 14")
    k.e("s_lshl_b32 s37, s32, 12")
    k.e("s_add_u32 s36, s36, s37")
    k.e("s_mov_b32 s18, 4194304")
    k.e("s_mov_b32 s19, 0x20000")
    k.e("s_bfe_u32 s33, s2, 0x30003")
    k.e("s_lshr_b32 s35, s2, 7")
    k.e("s_bfe_u32 s3, s2, 0x10006")
    k.e("s_and_b32 s34, s2, 7")
    k.e("s_lshl_b32 s34, s34, 1")
    k.e("s_add_u32 s34, s34, s3")
    k.e("s_waitcnt lgkmcnt(0)")
    k.stamp(S0)
    k.e("s_mov_b32 s16, s4")
    k.e("s_and_b32 s17, s5, 0xffff")
    XP, WR, XF = 48, 64, 80
    for i in range(4):
        k.e(f"buffer_load_dwordx4 {V(XP+4*i,4)}, v35, s[16:19], s36 offen offset:{i*512}{x_ld}", tag='x')
    k.e("s_cmp_eq_u32 s35, 0")
    k.e("s_cselect_b32 s40, s40, s42")
    k.e("s_cselect_b32 s41, s41, s43")
    k.e("s_lshl_b32 s3, s34, 9")
    k.srd(12, 40, 0, "s3")
    k.e("s_sub_u32 s14, 4194304, s3")
    k.e("s_lshl_b32 s3, s33, 18")
    k.srd(8, 6, 262144, "s3")
    KX = int(opt.get('kx', 7))
    k.e(f"s_and_b32 s58, s2, {KX}")
    def dma_ops(buf):
        ops = []
        for (base, vo, so, srd, fl) in ((57, VOW, 52, 12, w_ld), (56, VOA, 48, 8, a_ld)):
            for hi in range(2):
                ops.append(('s', f"s_add_u32 m0, s{base}, {buf*65536 + hi*4096}"))
                for lo in range(4):
                    ops.append(('g', f"buffer_load_dwordx4 v{vo + (lo&1) + 2*hi}, {S(srd,4)}, s{so+lo} offen offset:{lo*1024}{fl} lds"))
        return ops
    def adv_ops(j):
        x = j ^ (j + 1)
        return [f"v_xor_b32 v{VOW+q}, {x << 19}, v{VOW+q}" for q in range(4)] + [f"v_xor_b32 v{VOA+q}, {x << 7}, v{VOA+q}" for q in range(4)]
    PF0 = int(opt.get('pf0', 2))
    pfc = [PF0]
    def pf_ops():
        j = pfc[0]; pfc[0] += 1
        return [f"buffer_load_dword v1, v{PFO}, s[60:63], 0 offen{opt.get('pf_ld', '')}",
                f"s_mul_i32 vcc_lo, s59, {(j ^ (j + 1)) & 7}", f"v_xor_b32 v{PFO}, vcc_lo, v{PFO}"]
    def setup_P():
        k.e("s_cmp_lt_u32 s32, 2")
        for j in range(3): k.e(f"s_cselect_b32 s{60+j}, s{8+j}, s{12+j}")
        k.e("s_mov_b32 s63, 0x20000")
        k.e(f"s_mov_b32 s59, {64*8192}")
        k.e("s_cselect_b32 s59, 128, s59")
        k.e("s_cselect_b64 vcc, -1, 0")
        k.e("s_cselect_b32 s38, 32, 16")
        k.e("s_lshr_b32 s3, s2, 6")
        k.e("s_cmp_lt_u32 s32, 2")
        k.e("s_cselect_b32 s3, s3, s33")
        k.e("s_lshl_b32 s3, s3, 1")
        k.e("s_and_b32 s39, s32, 1")
        k.e("s_add_u32 s3, s3, s39")
        k.e("s_lshl_b32 s3, s3, 15")
        k.e(f"s_xor_b32 s39, s58, {PF0}")
        k.e("s_mul_i32 s39, s39, s59")
        k.e("s_add_u32 s3, s3, s39")
        k.e("v_lshlrev_b32 v37, 10, v0")
        k.e("v_lshrrev_b32 v38, 2, v0")
        k.e("v_lshlrev_b32 v38, 13, v38")
        k.e("v_and_b32 v39, 3, v0")
        k.e("v_lshl_add_u32 v38, v39, 7, v38")
        k.e(f"v_cndmask_b32 v{PFO}, v38, v37, vcc")
        k.e(f"v_add_u32 v{PFO}, s3, v{PFO}")
        k.e("v_cmp_gt_u32 vcc, s38, v0")
        k.e(f"v_mov_b32 v37, {BIG}")
        k.e(f"v_cndmask_b32 v{PFO}, v37, v{PFO}, vcc")
    def setup_W():
        for j in range(4): k.e(f"s_mov_b32 s{52+j}, {j*15360}")
        k.e("s_lshl_b32 s57, s32, 13")
        k.e("s_add_u32 s56, s57, 32768")
        k.e("s_lshl_b32 s3, s58, 2")
        k.e("s_add_u32 s3, s3, s32")
        k.e("s_lshl_b32 s3, s3, 4")
        k.e("v_add_u32 v30, s3, v33")
        k.e("v_lshlrev_b32 v30, 13, v30")
        k.e("v_lshlrev_b32 v34, 5, v33")
        k.e("v_xor_b32 v34, v34, v36")
        k.e(f"v_add_u32 v{VOW}, v34, v30")
        k.e(f"v_xor_b32 v{VOW+1}, 64, v{VOW}")
        k.e(f"v_xor_b32 v{VOW+2}, {8*8192 + 128}, v{VOW}")
        k.e(f"v_xor_b32 v{VOW+3}, {8*8192 + 192}, v{VOW}")
    def setup_A():
        for j in range(4): k.e(f"s_mov_b32 s{48+j}, {j*7168}")
        k.e("v_lshrrev_b32 v30, 3, v0")
        k.e("v_lshlrev_b32 v30, 10, v30")
        k.e("s_lshl_b32 s3, s32, 16")
        k.e("s_lshl_b32 s39, s58, 7")
        k.e("s_add_u32 s3, s3, s39")
        k.e("v_and_b32 v31, 7, v0")
        k.e("v_lshrrev_b32 v32, 4, v0")
        k.e("v_xor_b32 v31, v31, v32")
        k.e("v_lshl_add_u32 v30, v31, 4, v30")
        k.e(f"v_add_u32 v{VOA}, s3, v30")
        k.e(f"v_xor_b32 v{VOA+1}, 64, v{VOA}")
        k.e(f"v_xor_b32 v{VOA+2}, 32768, v{VOA}")
        k.e(f"v_xor_b32 v{VOA+3}, {32768 + 64}, v{VOA}")
    def setup_D():
        k.srd(20, 66, 8 << 20)
        k.srd(24, 66, 32 * KV_HEAD, WS_KV)
        k.e("v_lshrrev_b32 v32, 4, v0")
        k.e("v_and_b32 v30, 15, v0")
        k.e("s_lshr_b32 s3, s32, 1")
        k.e("s_lshl_b32 s3, s3, 14")
        k.e("s_add_u32 s3, s3, 32768")
        k.e("v_lshlrev_b32 v31, 7, v30")
        k.e("v_add_u32 v31, s3, v31")
        k.e("v_lshrrev_b32 v34, 1, v30")
        k.e("v_xor_b32 v34, v34, v32")
        k.e(f"v_lshl_add_u32 v{AA[0][0]}, v34, 4, v31")
        k.e(f"v_xor_b32 v{AA[0][1]}, 64, v{AA[0][0]}")
        k.e("v_lshrrev_b32 v30, 2, v30")
        k.e("v_lshl_add_u32 v31, v32, 3, v30")
        k.e("v_lshlrev_b32 v31, 9, v31")
        k.e("v_and_b32 v34, 3, v0")
        k.e("v_lshl_add_u32 v31, v34, 3, v31")
        k.e("s_and_b32 s3, s32, 1")
        k.e("s_lshl_b32 s3, s3, 8")
        k.e("v_add_u32 v31, s3, v31")
        k.e("v_and_b32 v34, 1, v32")
        k.e("v_lshl_add_u32 v30, v34, 2, v30")
        k.e(f"v_lshl_add_u32 v{WA[0][0]}, v30, 5, v31")
        for jj in range(1, 8): k.e(f"v_xor_b32 v{WA[0][jj]}, {jj*32}, v{WA[0][0]}")
        for x0, x1 in zip(AA[0] + WA[0], AA[1] + WA[1]): k.e(f"v_add_u32 v{x1}, 65536, v{x0}")
    def act(seq):
        for x in seq.split(','):
            if not x: continue
            if x in 'PWAD': {'P': setup_P, 'W': setup_W, 'A': setup_A, 'D': setup_D}[x]()
            elif x == 'p':
                for s in pf_ops(): k.e(s, tag='pf')
            elif x == 'r':
                k.srd(28, 44, 2048)
                for i in range(4):
                    k.e(f"buffer_load_dwordx4 {V(WR+4*i,4)}, v36, s[28:31], 0 offen offset:{i*512}", tag='wr')
            else:
                st = int(x[1]); h = 0 if x[0] == 'w' else 1
                for t, s in dma_ops(st)[10*h:10*h+10]: k.e(s, tag=x + 'd')
                for s in adv_ops(st)[4*h:4*h+4]: k.e(s)
    PRO = opt.get('pro', 'W,w0,A,P,D,r/a0///').split('/')
    act(PRO[0])
    k.stamp(S0)
    def sum32(v, t):
        for m in ["quad_perm:[1,0,3,2]", "quad_perm:[2,3,0,1]", "row_half_mirror", "row_mirror"]:
            k.e(f"v_add_f32_dpp v{v}, v{v}, v{v} {m} row_mask:0xf bank_mask:0xf")
        k.e(f"v_mov_b32 v{t}, v{v}")
        k.e(f"v_permlane16_swap_b32 v{t}, v{v}")
        k.e(f"v_add_f32 v{v}, v{v}, v{t}")
    k.wait_vm('x')
    k.stamp(S0)
    for i in range(16):
        k.e(f"v_lshlrev_b32 v{XF+2*i}, 16, v{XP+i}")
        k.e(f"v_and_b32 v{XF+2*i+1}, 0xffff0000, v{XP+i}")
    k.e(f"v_pk_add_f32 v[40:41], {V(XF,2)}, {V(XF+2,2)}")
    k.e(f"v_pk_add_f32 v[42:43], {V(XF+4,2)}, {V(XF+6,2)}")
    for i in range(4, 16):
        d = 40 + 2 * (i & 1)
        k.e(f"v_pk_add_f32 {V(d,2)}, {V(d,2)}, {V(XF+2*i,2)}")
    k.e("v_pk_add_f32 v[40:41], v[40:41], v[42:43]")
    k.e("v_add_f32 v38, v40, v41")
    sum32(38, 37)
    k.stamp(S0)
    act(PRO[1])
    k.e("v_mul_f32 v38, 0xba800000, v38")
    k.e("v_mov_b32 v39, v38")
    T = 112
    for i in range(16):
        k.e(f"v_pk_add_f32 {V(T+2*(i&3),2)}, {V(XF+2*i,2)}, v[38:39]")
        d = 40 + 2 * (i & 1)
        if i < 2: k.e(f"v_pk_mul_f32 {V(d,2)}, {V(T+2*(i&3),2)}, {V(T+2*(i&3),2)}")
        else: k.e(f"v_pk_fma_f32 {V(d,2)}, {V(T+2*(i&3),2)}, {V(T+2*(i&3),2)}, {V(d,2)}")
    k.e("v_pk_add_f32 v[40:41], v[40:41], v[42:43]")
    k.e("v_add_f32 v40, v40, v41")
    sum32(40, 37)
    act(PRO[2])
    k.stamp(S0)
    k.e("v_mul_f32 v40, 0x3a800000, v40")
    k.e("v_cvt_pk_bf16_f32 v44, v38, v40")
    k.e("v_lshlrev_b32 v38, 16, v44")
    k.e("v_and_b32 v40, 0xffff0000, v44")
    k.e("v_add_f32 v40, 0x3727c5ac, v40")
    k.e("v_cvt_pk_bf16_f32 v44, v40, v40")
    k.e("v_lshlrev_b32 v40, 16, v44")
    k.e("v_sqrt_f32 v40, v40")
    k.e("v_mov_b32 v39, v38")
    k.e("v_cvt_pk_bf16_f32 v44, v40, v40")
    k.e("v_lshlrev_b32 v44, 16, v44")
    k.e("v_rcp_f32 v40, v44")
    for i in range(16):
        k.e(f"v_pk_add_f32 {V(XF+2*i,2)}, {V(XF+2*i,2)}, v[38:39]")
    k.e("v_fma_f32 v45, -v44, v40, 1.0")
    k.e("v_fma_f32 v40, v45, v40, v40")
    k.e("v_mov_b32 v41, v40")
    for i in range(16):
        k.e(f"v_cvt_pk_bf16_f32 v{XP+i}, v{XF+2*i}, v{XF+2*i+1}")
    for i in range(16):
        k.e(f"v_lshlrev_b32 v{XF+2*i}, 16, v{XP+i}")
        k.e(f"v_and_b32 v{XF+2*i+1}, 0xffff0000, v{XP+i}")
    for i in range(16):
        k.e(f"v_pk_mul_f32 {V(XF+2*i,2)}, {V(XF+2*i,2)}, v[40:41]")
    for i in range(16):
        k.e(f"v_cvt_pk_bf16_f32 v{XP+i}, v{XF+2*i}, v{XF+2*i+1}")
    k.e("s_mul_i32 s3, s32, 4128")
    k.e("s_add_u32 s3, s3, 131072")
    k.e("v_mul_u32_u24 v42, 2064, v33")
    k.e("v_add3_u32 v42, v42, v36, s3")
    for i in range(4):
        k.e(f"ds_write_b128 v42, {V(XP+4*i,4)} offset:{i*512}")
    act(PRO[3])
    k.stamp(S0)
    k.wait_vm('wr')
    k.stamp(S0)
    for i in range(16):
        k.e(f"v_lshlrev_b32 v{XF+2*i}, 16, v{XP+i}")
        k.e(f"v_and_b32 v{XF+2*i+1}, 0xffff0000, v{XP+i}")
        k.e(f"v_lshlrev_b32 v{T+2*(i&3)}, 16, v{WR+i}")
        k.e(f"v_and_b32 v{T+2*(i&3)+1}, 0xffff0000, v{WR+i}")
        d = 42 + 2 * (i & 1)
        if i < 2: k.e(f"v_pk_mul_f32 {V(d,2)}, {V(XF+2*i,2)}, {V(T+2*(i&3),2)}")
        else: k.e(f"v_pk_fma_f32 {V(d,2)}, {V(XF+2*i,2)}, {V(T+2*(i&3),2)}, {V(d,2)}")
    k.e("v_pk_add_f32 v[42:43], v[42:43], v[44:45]")
    k.e("v_add_f32 v45, v42, v43")
    sum32(45, 37)
    k.e("v_cvt_pk_bf16_f32 v45, v45, v45")
    k.e("v_ashrrev_i32 v46, 31, v45")
    k.e("v_or_b32 v46, 0x80000000, v46")
    k.e("v_xor_b32 v45, v45, v46")
    k.e("v_and_b32 v45, 0xffff0000, v45")
    k.e("s_lshr_b32 s3, s36, 11")
    k.e("v_add_u32 v46, s3, v33")
    k.e("v_sub_u32 v44, 0xffff, v46")
    k.e("v_or_b32 v45, v45, v44")
    k.e("v_lshlrev_b32 v44, 2, v46")
    k.e("v_lshlrev_b32 v46, 3, v46")
    k.e("v_xor_b32 v38, 0x80000000, v38")
    k.e("v_mov_b32 v39, v40")
    k.e(f"s_mov_b32 s3, {WS_KEYS}")
    k.e(f"s_mov_b32 s39, {WS_STATS}")
    k.e("s_mov_b32 exec_lo, 1")
    k.e("s_mov_b32 exec_hi, 1")
    k.e("buffer_store_dword v45, v44, s[20:23], s3 offen sc1", tag='ln')
    k.e("buffer_store_dwordx2 v[38:39], v46, s[20:23], s39 offen sc1", tag='ln')
    k.e("s_mov_b64 exec, -1")
    k.e("s_load_dwordx2 s[4:5], s[0:1], 16")
    k.e("s_load_dwordx4 s[40:43], s[0:1], 64")
    k.e("s_load_dwordx2 s[92:93], s[0:1], 40")
    k.e("s_load_dwordx2 s[94:95], s[0:1], 80")
    k.e("s_load_dwordx2 s[100:101], s[0:1], 0")
    act(PRO[4])
    PFN = pfc[0] - 2
    k.srd(28, 64, 256)

    def areads(st, pr):
        return [f"ds_read_b128 {A(FA(it,ks),4)}, v{AA[st & 1][ks]} offset:{it*2048}" for it in (2 * pr, 2 * pr + 1) for ks in range(2)]
    def wfreads(st):
        return [[f"ds_read_b64_tr_b16 {A(FW(st & 1,j,ks)+2*rd,2)}, v{WA[st & 1][j]} offset:{ks*16384+rd*2048}" for rd in range(2)]
                for j in range(8) for ks in range(2)]
    k.stamp(S0)
    k.wait_vm('w0d'); k.wait_vm('a0d')
    k.e("s_waitcnt lgkmcnt(0)")
    k.e("s_barrier")
    k.stamp(ST or S0)
    for s in areads(0, 0): k.e(s, tag='A0_0')
    for n, grp in enumerate(wfreads(0)):
        for s in grp: k.e(s, tag=f'W0_{n // 2}')
    k.e("s_cmp_lg_u32 s35, 0")
    k.e("s_cbranch_scc1 L_k1_vpath")

    def chunk_ops(c):
        kind, j = c
        slot = {'w': j % 4, 'kv': (j + 4) % 8}[kind]
        ops = [('s', f"s_add_u32 m0, s44, {slot * 16384}")]
        if kind == 'w':
            for q in range(4):
                ops.append(('g', f"buffer_load_dwordx4 v{WV + (q >> 1)}, s[8:11], s{48+q} offen offset:{q*1024}{wq_ld} lds"))
            ops.append(('v', f"v_xor_b32 v{WV}, {((j ^ (j + 1)) & 15) << 19}, v{WV}"))
            ops.append(('v', f"v_xor_b32 v{WV+1}, {((j ^ (j + 1)) & 15) << 19}, v{WV+1}"))
        elif kind == 'f':
            for q in range(4):
                ops.append(('g', f"buffer_load_dwordx4 v{12 + (q >> 1) + 2 * (j & 1)}, {S(60 + 8 * (j >> 1), 4)}, s{52+q} offen offset:{q*1024}{ffn_ld} lds"))
        else:
            ops.append(('s', f"s_mov_b32 s7, {j * KV_CH}"))
            for q in range(4):
                ops.append(('g', f"buffer_load_dwordx4 v{VDMA}, s[12:15], s7 offen offset:{q*1024}{kv_ld} lds"))
        return ops
    QX = int(opt.get('qx', -1))
    def xn_ops(kk):
        ops = []
        for qb in range(4):
            so = "s52" if qb & 1 else "s53"
            ops.append(('g', f"buffer_load_dwordx4 {A(XR(kk,qb),4)}, v{XV + (qb >> 1)}, s[20:23], {so} offen offset:{(kk % 2)*1024}{opt.get('xn_ld', ' sc1')}"))
        if kk % 2 == 1 and kk < 31:
            st = kk // 2
            ops.append(('v', f"s_xor_b32 s52, s52, {(st ^ (st + 1)) << 11}"))
            ops.append(('v', "s_add_u32 s53, s52, s58"))
        return ops
    def wreads(kk):
        st = kk // 2
        return [[f"ds_read_b64_tr_b16 {A(WF(ks,db)+2*rd,2)}, v{TA+db} offset:{(st % 4)*16384 + ks*8192 + rd*1024}" for rd in range(2)]
                for db, ks in ([(d, q) for d in range(4 * (kk & 1), 4 * (kk & 1) + 4) for q in range(2)] if P2C else [(d, kk & 1) for d in range(8)])]
    ool = []
    def spin(lab, ret, off, target, vd, vz, sv, sc):
        def fn():
            k.e(f"s_mov_b32 s{sc}, 0x400000")
            k.label(lab + "_l")
            k.e(f"s_sleep {opt.get('slp', 8)}")
            k.e(f"buffer_load_dword v{vd}, v{vz}, s[28:31], {off} offen sc1")
            k.e("s_waitcnt vmcnt(0)")
            k.e(f"v_readfirstlane_b32 s{sv}, v{vd}")
            k.e(f"s_sub_u32 s{sc}, s{sc}, 1")
            k.e(f"s_cmp_eq_u32 s{sc}, 0")
            k.e(f"s_cbranch_scc1 {ret}")
            k.e(f"s_cmp_lt_u32 s{sv}, {target}")
            k.e(f"s_cbranch_scc1 {lab}_l")
        ool.append((lab, fn, ret))
    def srd_rec(b, d, base, nbytes, add=None):
        if add is None:
            b.e(f"s_mov_b32 s{d}, s{base}"); b.e(f"s_and_b32 s{d+1}, s{base+1}, 0xffff")
        else:
            b.blk([f"s_add_u32 s{d}, s{base}, {add}", f"s_addc_u32 s{d+1}, s{base+1}, 0", f"s_and_b32 s{d+1}, s{d+1}, 0xffff"])
        b.e(f"s_mov_b32 s{d+2}, {nbytes}"); b.e(f"s_mov_b32 s{d+3}, 0x20000")

    def phase1_stream(isV):
        b = Rec()
        tg = 'v' if isV else 'k'
        b.e("v_and_b32 v46, 7, v0")
        b.e("v_lshrrev_b32 v1, 3, v0") if False else None
        b.e("v_mul_u32_u24 v30, 2064, v46")
        b.e("v_lshrrev_b32 v31, 3, v0")
        b.e("s_lshl_b32 s3, s32, 9")
        b.e("s_add_u32 s3, s3, 131072")
        b.e("v_lshl_add_u32 v30, v31, 4, v30")
        b.e("v_add_u32 v30, s3, v30")
        b.e("v_lshlrev_b32 v31, 8, v31")
        b.e("v_lshl_add_u32 v46, v46, 4, v31")
        for i in (1, 2, 3, 0):
            b.e(f"ds_read_b128 {V(30+4*i,4)}, v30 offset:{i*128}", tag='xs')
        b.e("s_lshr_b32 s3, s2, 1")
        b.e(f"s_mul_i32 s3, s3, {XN_RB}")
        b.e("s_add_u32 s3, s3, s57")
        b.e("s_and_b32 s39, s2, 1")
        b.e("s_lshl_b32 s39, s39, 7")
        b.e("s_add_u32 s3, s3, s39")
        b.e("s_add_u32 s39, s3, 4096")
        b.at(2)
        for i in range(4):
            b.e(f"buffer_store_dwordx4 {V(30+4*i,4)}, v46, s[20:23], s{3 if i < 2 else 39} offen offset:{(i&1)*2048} sc1", tag='ln')
        b.e("s_lshl_b32 s3, s34, 1")
        b.e("s_and_b32 s36, s32, 1")
        b.e("s_add_u32 s3, s3, s36")
        b.e(f"s_mul_i32 s3, s3, {KV_HEAD}")
        b.e(f"s_mul_i32 s36, s33, {4*KV_TILE}")
        b.e("s_add_u32 s3, s3, s36")
        b.e("s_lshr_b32 s36, s32, 1")
        b.e(f"s_mul_i32 s36, s36, {2*KV_TILE}")
        b.e("s_add_u32 s3, s3, s36")
        b.e(f"s_add_u32 s38, s3, {KV_CH if isV else 0}")
        b.e("s_lshl_b32 s39, s34, 7")
        b.e("s_lshl_b32 s36, s33, 2")
        b.e("s_add_u32 s39, s39, s36")
        b.e(f"s_add_u32 s39, s39, {WS_FLG + (32 if isV else 0)}")
        b.e("v_mov_b32 v30, 1")
        b.e("v_mov_b32 v31, 0")
        b.blk(["s_cmp_eq_u32 s32, 0", f"s_cselect_b32 s39, s39, {BIG}"])
        b.blk(["s_mov_b64 exec, 1", ("buffer_store_dword v31, v31, s[20:23], s39 offen sc1", 'ln'), "s_mov_b64 exec, -1"])
        if MAP == 4:
            b.e("s_and_b32 s33, s2, 7")
            b.e("s_lshl_b32 s33, s33, 2")
            b.e("s_bfe_u32 s3, s2, 0x20003")
            b.e("s_add_u32 s33, s33, s3")
            b.e("s_lshr_b32 s34, s2, 5")
        else:
            b.e("s_and_b32 s33, s2, 6")
            b.e("s_lshl_b32 s33, s33, 2")
            b.e("s_bfe_u32 s3, s2, 0x30003")
            b.e("s_add_u32 s33, s33, s3")
            b.e("s_lshr_b32 s34, s2, 6")
            b.e("s_lshl_b32 s34, s34, 1")
            b.e("s_and_b32 s3, s2, 1")
            b.e("s_add_u32 s34, s34, s3")
        b.e("s_lshl_b32 s64, s34, 7")
        b.e("s_lshl_b32 s3, s33, 2")
        b.e("s_add_u32 s64, s64, s3")
        b.e(f"s_add_u32 s64, s64, {WS_CFL}")
        b.e("s_lshl_b32 s65, s34, 8")
        b.e("s_sub_u32 s65, 1920, s65")
        b.e("v_mul_u32_u24 v32, s65, v0")
        b.blk(["s_cmp_eq_u32 s32, 0", f"s_cselect_b32 s64, s64, {BIG}"])
        b.blk(["s_mov_b64 exec, 3", ("buffer_store_dword v31, v32, s[20:23], s64 offen sc1", 'ln'), "s_mov_b64 exec, -1"])
        b.e("s_lshl_b32 s3, s2, 2")
        b.e(f"s_add_u32 s3, s3, {WS_HFL}")
        b.e("v_lshlrev_b32 v32, 10, v0")
        b.blk(["s_cmp_eq_u32 s32, 0", f"s_cselect_b32 s3, s3, {BIG}"])
        b.blk(["s_mov_b64 exec, 0x1ff", ("buffer_store_dword v31, v32, s[20:23], s3 offen sc1", 'ln'), "s_mov_b64 exec, -1"])
        b.e("s_lshl_b32 s35, s34, 1")
        b.e("s_sub_u32 s36, 32, s35")
        b.e("s_add_u32 s35, s35, 2")
        b.e("s_lshl_b32 s44, s32, 12")
        b.e("s_lshl_b32 s58, s32, 1")
        b.e("s_sub_u32 s58, 7, s58")
        b.e(f"s_mul_i32 s58, s58, {XN_RB}")
        b.e("s_sub_u32 s3, 15, s34")
        b.e("s_lshl_b32 s45, s3, 3")
        b.e("s_add_u32 s45, s45, s32")
        b.e("s_lshl_b32 s46, s34, 3")
        b.e("s_add_u32 s46, s46, s32")
        srd_rec(b, 68, 42, 7340032)
        b.blk(["s_cmp_eq_u32 s32, 0", f"s_cselect_b32 s37, 0, {BIG}"])
        b.e("s_lshl_b32 s3, s33, 8")
        srd_rec(b, 16, 4, 0, "s3")
        b.e("s_sub_u32 s18, 8388608, s3")
        WQN = int(opt.get('wqn', 4))
        ln_ = (64 if MAP == 4 else 128) // WQN
        b.e(f"v_and_b32 v33, {ln_ - 1}, v0")
        b.e("v_lshrrev_b32 v32, 1, v33")
        b.e("v_and_b32 v33, 1, v0")
        b.e("v_lshlrev_b32 v32, 13, v32")
        b.e("v_lshl_add_u32 v45, v33, 7, v32")
        b.e("s_lshl_b32 s3, s32, 3")
        b.e("s_add_u32 s3, s3, s34")
        if MAP != 4: b.e("s_lshr_b32 s3, s3, 1")
        b.e(f"s_mul_i32 s47, s3, {ln_ // 2 * 8192}")
        WQ0 = int(opt.get('wq0', 6))
        ev = []
        for j in range(WQN): ev.append((WQ0 + j * float(opt.get('wqs', 2)), 'pf', j))
        NS = int(opt.get('cas', 4))
        for j in range(NS): ev.append((5.2 + j * float(opt.get('cad', 1.2)), 'ca', j))
        b.e(f"s_bfe_u32 s6, s2, {(NS.bit_length() - 1) << 16 | 3}")
        b.e("s_lshl_b32 s3, s32, 8")
        b.e("s_or_b32 s6, s6, s3")
        WOP = WOT
        if WOP:
            b.e("v_bfe_u32 v39, v0, 3, 1")
            b.e("v_and_b32 v33, 7, v0")
            b.e("v_lshlrev_b32 v39, 11, v39")
            b.e("v_lshl_add_u32 v39, v33, 7, v39")
            b.e("s_lshr_b32 s3, s2, 1")
            b.e("s_lshl_b32 s3, s3, 16")
            b.e("v_add_u32 v39, s3, v39")
            b.e("s_and_b32 s3, s2, 1")
            b.e("s_lshl_b32 s3, s3, 10")
            b.e("v_add_u32 v39, s3, v39")
            b.e("s_lshl_b32 s3, s32, 14")
            b.e("v_add_u32 v39, s3, v39")
            ev.append((5.99, 'srd', 0))
            for j in range(4): ev.append((float(opt.get('wop0', 6)) + j * 2 + 0.01, 'wo', j))
        late = []
        for step, kind, j in sorted(ev):
            o = b
            if step >= 12:
                o = Rec(); late.append(o)
            o.at(step)
            if kind == 'ca':
                o.check_clear('ln')
                o.blk([f"s_cmp_eq_u32 s6, {j}", f"s_cselect_b32 s3, 0, {BIG}"])
                o.blk(["s_mov_b64 exec, 1", "buffer_atomic_add v30, v31, s[28:31], s3 offen sc1", "s_mov_b64 exec, -1"])
            elif kind == 'srd':
                srd_rec(o, 60, 92, 8388608)
            elif kind == 'wo':
                o.e("buffer_load_dword v44, v39, s[60:63], 0 offen", tag='pf')
                o.e("v_add_u32 v39, 4096, v39")
            else:
                o.e(f"buffer_load_dword v44, v45, s[{16 if step < 12 else 8}:{19 if step < 12 else 11}], s47 offen{opt.get('wqpf_ld', '')}", tag='pf')
                o.e(f"s_add_u32 s47, s47, {1024 // WQN * 8192}")
        b.e("v_lshrrev_b32 v32, 4, v0")
        b.e("v_and_b32 v33, 15, v0")
        b.e("s_lshl_b32 s3, s32, 4")
        b.e("v_add_u32 v34, s3, v32")
        b.e("v_lshlrev_b32 v36, 1, v32")
        b.e("v_xor_b32 v36, v36, v33")
        b.e("v_xor_b32 v37, 8, v36")
        if '2' in CPF:
            b.at(10.1)
            cp = code_prefetch("L_phase2", "L_k2_fin", 32, 6, 40, 38)
            cp = [x.replace("s8", "s3") for x in cp]
            b.blk(cp[:4])
            for x in cp[4:-3]: b.e(x)
            b.blk(cp[-3:-1])
            b.e(cp[-1])
        b.at(12)
        b.e("buffer_load_dword v1, v31, s[28:31], s37 offen sc1", tag='poll')
        for j in range(3): b.e(f"s_mov_b32 s{8+j}, s{16+j}")
        srd_rec(b, 16, 66, 16 << 20, WS_CTX)
        for j in range(4): b.e(f"s_mov_b32 s{48+j}, {j*31744}")
        b.e("v_lshlrev_b32 v35, 13, v34")
        b.e(f"s_and_b32 s52, s33, {3 if QX >= 0 else 0}")
        b.e(f"s_lshl_b32 s3, s52, {19 + max(QX, 0)}")
        b.e(f"s_lshl_b32 s52, s52, {11 + max(QX, 0)}")
        b.e("s_add_u32 s53, s52, s58")
        b.e("v_add_u32 v35, s3, v35")
        b.e(f"v_lshl_add_u32 v{WV}, v36, 4, v35")
        b.e(f"v_lshl_add_u32 v{WV+1}, v37, 4, v35")
        b.e(f"v_lshlrev_b32 v{VX}, 4, v0")
        b.e(f"v_add_u32 v{VY}, 65536, v{VX}")
        b.e(f"v_add_u32 v{VDMA}, s44, v{VX}")
        b.e("v_mov_b32 v7, 0")
        b.e("v_lshlrev_b32 v35, 2, v32")
        b.e("v_sub_u32 v35, v33, v35")
        b.e("s_lshl_b32 s3, s32, 4")
        b.e(f"v_add_u32 v{VRA}, s3, v35")
        b.e("s_sub_u32 s3, 48, s3")
        b.e(f"v_add_u32 v{VRB}, s3, v35")
        b.e(f"s_mul_i32 s3, s33, {KV_HEAD}")
        b.e(f"s_add_u32 s3, s3, {WS_KV}")
        srd_rec(b, 12, 66, 0, "s3")
        b.e(f"s_mul_i32 s14, s36, {KV_TILE}")
        for o in late: b.items += o.items
        ta_setup(b)
        b.at(13.4)
        b.e(f"s_mul_i32 s3, s45, {XN_RB}")
        b.e(f"v_add_u32 v{XV}, s3, v{VX}")
        b.e(f"s_mul_i32 s3, s46, {XN_RB}")
        b.e(f"v_add_u32 v{XV+1}, s3, v{VX}")
        if '6' in CPF:
            b.at(14)
            b.e("v_mov_b32 v14, v40"); b.e("v_mov_b32 v15, v41")
        if 'dbg_noxn' in opt:
            b.e(f"v_mov_b32 v{XV}, {BIG}"); b.e(f"v_mov_b32 v{XV+1}, {BIG}")
        if 'dbg_nowq' in opt: b.e("s_mov_b32 s10, 0")
        if 'dbg_nost' in opt: b.e("s_mov_b32 s26, 0")
        spin(f"L_spinA{tg}", f"L_spinAr{tg}", 0, 256, 1, 7, 3, 47)
        return b
    def ta_setup(b):
        b.e("v_lshrrev_b32 v42, 2, v33")
        b.e("v_lshl_add_u32 v43, v32, 3, v42")
        b.e("v_lshlrev_b32 v43, 8, v43")
        b.e("v_and_b32 v46, 3, v0")
        b.e("v_lshl_add_u32 v43, v46, 3, v43")
        b.e("v_and_b32 v46, 1, v32")
        b.e("v_lshl_add_u32 v42, v46, 2, v42")
        b.e(f"v_lshl_add_u32 v{TA}, v42, 5, v43")
        for db in range(1, 8): b.e(f"v_xor_b32 v{TA+db}, {32*db}, v{TA}")

    NS7 = int(opt.get('ns7', 6))
    def kvstore_ops(n):
        off = (n >> 4) * KV_TILE + (n & 15) * 1024
        return ([f"s_add_u32 s59, s38, {off}"] if n % 4 == 0 else []) + \
               [f"buffer_store_dwordx4 {V(PK(n),4)}, v{VX}, s[24:27], s59 offen offset:{(n % 4)*1024}{opt.get('kv_st', ' sc1')}"]
    def place_vm(g, gt, scal, ops, start, step):
        gi = start
        for t, s, tg in ops:
            if t == 's': scal.setdefault(gi - 1, []).append(s)
            elif t == 'g':
                assert gi not in g and gi < 128, gi
                g[gi] = [s]; gt[gi] = tg; gi += step
            else:
                q = gi - step + 1
                while (q in g and (len(g[q]) >= 2 or g[q][-1].startswith(('buffer', 'ds_read_b64')))) or ((q - start) % step == 0 and q < 127): q += 1
                g.setdefault(min(q, 127), []).append(s)
    vq0, dq0 = list(k.vq), list(k.dq)
    for isV in (0, 1):
        if isV:
            k.label("L_k1_vpath"); k.win = []; k.vq = list(vq0); k.dq = list(dq0)
        b = phase1_stream(isV)
        if S1: k.nstamp = 0
        for st in range(8):
            p = st & 1
            k.stamp(S1)
            g = {}; gt = {}; scal = {}
            for pr in range(4):
                s2, p2 = (st, pr + 1) if pr < 3 else (st + 1, 0)
                if s2 < 8:
                    for q, s in enumerate(areads(s2, p2)):
                        x = 32 * pr + 3 + 4 * q
                        g[x] = [s]; gt[x] = f'A{s2}_{p2}'
                    scal.setdefault(32 * pr + 30, []).append(('w', f'A{s2}_{p2}'))
            if st < 7:
                free = [x for x in range(65, 122, 2) if x not in g]
                for n, grp in enumerate(wfreads(st + 1)):
                    x = free[(n * len(free)) // 16]
                    g[x] = grp; gt[x] = f'W{st+1}'
                scal.setdefault(127, []).append(('w', f'W{st+1}'))
                scal.setdefault(61, []).append(('v', f'w{st+1}d')); scal.setdefault(62, []).append("s_barrier")
                scal.setdefault(93, []).append(('v', f'a{st+1}d')); scal.setdefault(94, []).append("s_barrier")
            if st == 0:
                ops = []
                for h, nm in enumerate(('w1', 'a1')):
                    if nm not in '/'.join(PRO):
                        ops += [(t, s, nm + 'd') for t, s in dma_ops(1)[10*h:10*h+10]] + [('v', s, None) for s in adv_ops(1)[4*h:4*h+4]]
                place_vm(g, gt, scal, ops, 2, int(opt.get('st1s', 2)))
                pfc[0] = 2 + PFN
                for q in range(int(opt.get('pfk', 1))):
                    po = pf_ops()
                    assert 44 + 4 * q not in g
                    g[44 + 4 * q] = [po[0]]; gt[44 + 4 * q] = 'pf'; g[45 + 4 * q] = po[1:] + g.get(45 + 4 * q, [])
            if st < 6:
                d = dma_ops(p); adv = adv_ops(st + 2) if st < 5 else []
                ops = [(t, s, f'w{st+2}d') for t, s in d[:10]] + [('v', s, None) for s in adv[:4]] + \
                      [(t, s, f'a{st+2}d') for t, s in d[10:]] + [('v', s, None) for s in adv[4:]]
                place_vm(g, gt, scal, ops, 64, 4)
                if pfc[0] < 8:
                    po = pf_ops()
                    g[126] = [po[0]] + g.get(126, []); gt[126] = 'pf'
                    g[127] = [po[1]] + g.get(127, []) + [po[2]]
            elif st == 6:
                ops = []
                for c in range(4): ops += [(t, s, f'w{c}') for t, s in chunk_ops(('w', c))]
                place_vm(g, gt, scal, ops, 64, 4)
            else:
                XB = int(opt.get('xb', 28))
                tg = 'v' if isV else 'k'
                scal.setdefault(XB - 2, []).append(('v', 'w0'))
                scal.setdefault(XB, []).extend(["v_readfirstlane_b32 s3, v1", "s_nop 0", "s_or_b32 s3, s3, s37", "s_cmp_lt_u32 s3, 256",
                                                f"s_cbranch_scc1 L_spinA{tg}", f"L_spinAr{tg}:", "s_barrier"])
                ops = []
                for kk in range(4): ops += [(t, s, f'x{kk}') for t, s in xn_ops(kk)]
                place_vm(g, gt, scal, ops, XB + 4, int(opt.get('xs7', 6)) & ~1)
                for n, grp in enumerate(wreads(0)):
                    assert 105 + 2 * n not in g
                    g[105 + 2 * n] = grp
                for n in range(26):
                    b.at(14 + (4 * n + 8) / 64.0)
                    r = SRC(n)[1]
                    for q in range(4): b.e(f"v_cvt_pk_bf16_f32 v{PK(n)+q}, v{r+2*q}, v{r+2*q+1}")
                    m_ = (n * NS7) // 26
                    if (n + 1) * NS7 // 26 > m_:
                        for x in kvstore_ops(m_): b.e(x, tag='kvst')
            if isV: order = [(2 * pr + h, jd, ks) for pr in range(4) for jd in range(8) for h in range(2) for ks in range(2)]
            else: order = [(it, jd, ks) for it in range(8) for jd in range(8) for ks in range(2)]
            for n, (it, jd, ks) in enumerate(order):
                if st == 0:
                    k.wait_ds('A0_0'); k.wait_ds(f'W0_{jd}')
                fa, fw_ = A(FA(it, ks), 4), A(FW(p, jd, ks), 4)
                d = acc(isV, it, jd)
                c = "0" if (st == 0 and ks == 0) else d
                k.e(mfma(d, fa, fw_, c) if isV else mfma(d, fw_, fa, c))
                for x in scal.get(n, []):
                    if isinstance(x, tuple): (k.wait_ds if x[0] == 'w' else k.wait_vm)(x[1])
                    elif x.endswith(':'): k.label(x[:-1])
                    else: k.e(x)
                if n in g:
                    for s in g[n]: k.e(s, tag=gt.get(n))
                elif n not in scal:
                    b.fill(k, 2 * st + n / 64.0)
        print(f"phase1 isV={isV}: items left {len(b.items)}")
        k.stamp(S1)
        b.drain(k)
        k.stamp(S1)
        if not isV:
            k.e("s_branch L_phase2")
            vqK = list(k.vq)
    assert vqK == k.vq
    k.label("L_phase2")
    k.win = []
    k.e("s_nop 7")
    k.stamp(ST)

    b = Rec()
    KY = 56
    SPK = float(opt.get('spk', 1.2))
    def kvstore(n):
        if n < NS7: return
        b.at((n - NS7) / SPK)
        for x in kvstore_ops(n): b.e(x, tag='kvst')
    for n in range(26):
        kvstore(n)
        if 8 <= n < 14:
            m = n + 18
            for q in range(8): b.e(f"v_accvgpr_read_b32 v{48+q}, a{SRC(m)[1]+q}")
            for q in range(4): b.e(f"v_cvt_pk_bf16_f32 v{PK(m)+q}, v{48+2*q}, v{49+2*q}")
    for n in range(26, 32): kvstore(n)
    b.e("v_mov_b32 v12, 1")
    b.e("v_and_b32 v1, 15, v0")
    b.e("v_lshlrev_b32 v1, 2, v1")
    b.e("s_lshr_b32 s6, s33, 1")
    b.e("s_lshl_b32 s6, s6, 7")
    b.e(f"s_add_u32 s6, s6, {WS_FLG}")
    b.blk(["s_cmp_eq_u32 s32, 0", f"s_cselect_b32 s6, s6, {BIG}"])
    SIG = int(opt.get('sig', 25))
    POL = float(opt.get('pol', 27.3))
    b.at(SIG)
    b.blk(["s_mov_b64 exec, 1", "buffer_store_dword v12, v7, s[20:23], s39 offen sc1", "s_mov_b64 exec, -1"])
    b.at(POL)
    b.e("buffer_load_dword v12, v1, s[20:23], s6 offen sc1", tag='poll')
    CK = int(opt.get('ck', 29))
    n_ = 0
    for j in (0, 2, 1, 3, 4, 5, 6):
        for t, s in chunk_ops(('kv', j)):
            if t == 'g':
                b.at(max(CK + n_ * float(opt.get('kvp', 0.09)), {4: 25, 5: 27, 6: 29}.get(j, 0))); n_ += 1
            b.e(s, tag=f'c{16+j}')
    def spinB():
        k.e("s_mov_b32 s59, 0x400000")
        k.label("L_spinB_l")
        k.e(f"s_sleep {opt.get('slp', 4)}")
        k.e("buffer_load_dword v12, v1, s[20:23], s6 offen sc1")
        k.e("s_sub_u32 s59, s59, 1")
        k.e("s_cmp_eq_u32 s59, 0")
        k.e("s_cbranch_scc1 L_spinBx")
        k.e("s_waitcnt vmcnt(0)")
        k.e("v_cmp_ne_u32 vcc, 1, v12")
        k.e("s_cbranch_vccnz L_spinB_l")
        k.label("L_spinBx")
        k.e("s_waitcnt vmcnt(0)")
    ool.append(("L_spinB", spinB, "L_spinBr"))

    b1 = b
    b = Rec()
    srd_rec(b, 60, 40, 7340032)
    RT = [float(x) for x in opt.get('rt', '0,5').split(',')] if '6' in CPF else []
    for x in RT:
        b.at(x)
        b.e("global_load_dword v13, v[14:15], off", tag='keys')
    KT = int((10 - NS7) / SPK) + 3
    b.at(KT)
    b.items.append(('fn', lambda: not any(x in str(it[1]) for it in b1.items for x in ('v[56:59]', 'v[60:63]', 'v[64:67]')), None))
    b.e("s_lshl_b32 s3, s32, 11")
    b.e(f"s_add_u32 s3, s3, {WS_KEYS}")
    for i in range(2):
        b.e(f"buffer_load_dwordx4 {V(KY+4*i,4)}, v{VX}, s[20:23], s3 offen offset:{i*1024} sc1", tag='keys')
    def top2_lane():
        b.e(f"v_max_u32 v14, v{KY}, v{KY+1}")
        b.e(f"v_min_u32 v15, v{KY}, v{KY+1}")
        for i in range(2, 8):
            b.e(f"v_med3_u32 v15, v14, v15, v{KY+i}"); b.e(f"v_max_u32 v14, v14, v{KY+i}")
    b.at(KT + 6)
    b.wait_vm('keys')
    top2_lane()
    b.e("s_lshl_b32 s3, s32, 9")
    b.e("s_add_u32 s3, s3, 131072")
    b.e("v_lshlrev_b32 v13, 3, v0")
    b.e(f"v_add_u32 v{KY}, s3, v13")
    b.e("v_add_u32 v13, 131072, v13")
    b.e(f"ds_write_b64 v{KY}, v[14:15]")
    KB = (KT + 8) | 1
    b.items.append(('before', KB, None))
    b.at(KB)
    for w in range(4): b.e(f"ds_read_b64 {V(KY+2*w,2)}, v13 offset:{w*512}", tag='kx')
    b.at(KB + 0.3)
    b.wait_ds('kx')
    top2_lane()
    def wmax(v, sdst):
        for m in ["quad_perm:[1,0,3,2]", "quad_perm:[2,3,0,1]", "row_half_mirror", "row_mirror"]:
            b.blk([f"v_max_u32_dpp {v}, {v}, {v} {m} row_mask:0xf bank_mask:0xf"])
        b.blk([f"v_readlane_b32 s3, {v}, 0", f"v_readlane_b32 s47, {v}, 16"])
        b.blk([f"v_readlane_b32 s4, {v}, 32", f"v_readlane_b32 s5, {v}, 48"])
        b.blk(["s_max_u32 s3, s3, s47", "s_max_u32 s4, s4, s5", f"s_max_u32 s{sdst}, s3, s4"])
    b.e("v_mov_b32 v13, v14")
    wmax("v13", 40)
    b.blk(["v_cmp_eq_u32 vcc, s40, v14"])
    b.blk(["v_cndmask_b32 v13, v14, v15, vcc"])
    wmax("v13", 41)
    for t in range(2):
        b.e(f"s_and_b32 s3, s{40+t}, 0xffff")
        b.e(f"s_sub_u32 s{42+t}, 0xffff, s3")
    for t in range(2):
        b.e(f"v_mov_b32 v60, s{40+t}")
        b.e("v_not_b32 v61, v60")
        b.e("v_ashrrev_i32 v61, 31, v61")
        b.e("v_or_b32 v61, 0x80000000, v61")
        b.e("v_xor_b32 v60, v60, v61")
        b.e("v_and_b32 v60, 0xffff0000, v60")
        b.e("v_mul_f32 v60, 0xbfb8aa3b, v60")
        b.e("v_exp_f32 v60, v60")
        b.e("v_add_f32 v60, 1.0, v60")
        b.e("v_rcp_f32 v60, v60")
        b.e("v_cvt_pk_bf16_f32 v60, v60, v60")
        b.e(f"v_and_b32 v{64+t}, 0xffff0000, v60")
    b.items.append(('fn', lambda: not any('accvgpr_read' in str(it[1]) or 'cvt' in str(it[1]) for it in b1.items), None))
    for r in range(16): b.e(f"v_mov_b32 v{LS+r}, 0")
    WARM = opt.get('warm', '1') == '1'
    if WARM:
        b.at((28 - NS7) / SPK + 0.5)
        b.items.append(('fn', lambda: not any('v[28:31]' in str(it[1]) for it in b1.items), None))
        WC = int(opt.get('wc', 4))
        upc = 64 - WC * WC
        seg = upc * 32 * 4 * 128
        bufs = [(94, 7340032)] + ([(100, 4194304)] if x_ld else []) + [(60, 7340032), (68, 7340032)] + ([] if WOT else [(92, 8388608)])
        b.e("s_mul_i32 s3, s34, s34")
        b.e(f"s_mul_i32 s47, s33, {upc}")
        b.e("s_add_u32 s3, s3, s47")
        b.e("s_lshl_b32 s3, s3, 2")
        b.e("s_add_u32 s3, s3, s32")
        b.e("s_lshl_b32 s3, s3, 7")
        b.e(f"s_sub_u32 s3, s3, {512 + WC * WC * 512}")
        b.blk([f"s_cmp_ge_u32 s34, {WC}", "s_cselect_b32 s3, s3, 0", "s_cselect_b32 s40, 512, 0", f"s_cselect_b32 s47, {seg}, 0"])
        first = 0
        for j, (lo, size) in enumerate(bufs):
            b.e(f"v_subrev_u32 v31, {first}, v0")
            b.e("v_mul_lo_u32 v31, v31, s47")
            b.e(f"v_min_u32 v31, {size - seg}, v31")
            if j == 0:
                b.e(f"v_mov_b32 v28, s{lo}"); b.e(f"v_mov_b32 v29, s{lo+1}"); b.e("v_mov_b32 v30, v31")
            else:
                b.e(f"v_mov_b32 v14, s{lo}"); b.e(f"v_mov_b32 v15, s{lo+1}")
                b.blk([f"v_cmp_le_u32 vcc, {first}, v0"])
                b.blk(["v_cndmask_b32 v28, v28, v14, vcc", "v_cndmask_b32 v29, v29, v15, vcc"])
                b.blk(["v_cndmask_b32 v30, v30, v31, vcc"])
            first += -(-size // seg)
        assert first <= 64, first
        b.e("v_add_u32 v30, s3, v30")
        b.e("v_ashrrev_i32 v31, 31, v30")
        b.e("v_lshl_add_u64 v[28:29], v[30:31], 0, v[28:29]")
        b.e("s_mov_b32 s41, 0")
    b.e("v_readfirstlane_b32 s100, v64")
    b.e("v_readfirstlane_b32 s101, v65")
    b.at(SIG)
    for j in range(3): b.e(f"s_mov_b32 s{24+j}, s{60+j}")
    b.e(f"s_mov_b32 s94, {QSCALE}")
    b.e(f"s_mov_b32 s95, {QSCALE}")
    b.e("s_sub_u32 s55, 15, s34")
    b.e("s_sub_u32 s45, s36, 3")
    b.e("s_sub_u32 s46, s35, 3")
    b.e("s_mov_b32 s54, s44")
    b.e("s_sub_u32 s35, s35, 2")
    b.e("s_sub_u32 s36, s36, 2")
    b2 = b
    b3 = Rec()
    WT0 = float(opt.get('wt0', 18))
    WTB = int(opt.get('wtb', 23))
    WTG = int(opt.get('wtg', 8))
    b3.e("s_lshr_b32 s52, s2, 1")
    b3.e("s_lshl_b32 s52, s52, 16")
    b3.e("s_and_b32 s53, s2, 1")
    b3.e("s_lshl_b32 s53, s53, 10")
    b3.e("s_add_u32 s52, s52, s53")
    b3.e("s_lshl_b32 s53, s32, 14")
    b3.e("s_add_u32 s52, s52, s53")
    srd_rec(b3, 28, 92, 8388608)
    for j in range(8):
        b3.at(WT0 + 2 * (j // WTG))
        b3.blk([f"s_add_u32 m0, s57, {65536 + j * 1024}", f"v_xor_b32 v88, {j * 32}, v{VX}",
                (f"buffer_load_dwordx4 v88, s[28:31], s52 offen{opt.get('wo_ld', '')} lds", 'wo'), "s_add_u32 s52, s52, 2048"])
    b3.e("v_lshrrev_b32 v89, 2, v0")
    b3.e("v_lshlrev_b32 v89, 10, v89")
    b3.e("s_lshl_b32 s53, s32, 8")
    b3.e("s_add_u32 s53, s53, 65536")
    b3.e("v_add_u32 v89, s53, v89")
    b3.e("v_mov_b32 v90, 0xff")
    srd_rec(b3, 28, 66, 16 * WO_NT, WS_WOT)
    b3.e("s_and_b32 s52, s2, 1")
    b3.e("s_lshl_b32 s52, s52, 2")
    b3.e("s_add_u32 s52, s52, s32")
    b3.e(f"s_mul_i32 s52, s52, {2 * WO_NT}")
    b3.e("s_lshr_b32 s53, s2, 1")
    b3.e("s_lshl_b32 s53, s53, 12")
    b3.e("s_add_u32 s52, s52, s53")
    b3.at(WTB)
    for q in range(8):
        b3.e(f"v_and_or_b32 v{92 + (q & 1)}, v{TA+q}, v90, v89")
        for rd in range(2):
            b3.e(f"ds_read_b64_tr_b16 {V(96 + 4*q + 2*rd, 2)}, v{92 + (q & 1)} offset:{rd*16384}", tag='wt')
    for q in range(8):
        b3.at(WTB + 1.2 + 0.5 * q)
        b3.wait_ds('wt')
        b3.e(f"buffer_store_dwordx4 {V(96 + 4*q, 4)}, v{VX}, s[28:31], s52 offen offset:{(q & 3)*1024} sc1", tag='wts')
        if q == 3: b3.e(f"s_add_u32 s52, s52, {WO_NT}")
    b3.e("s_and_b32 s52, s2, 1")
    b3.e("s_lshl_b32 s52, s52, 9")
    b3.e("s_lshr_b32 s93, s2, 1")
    b3.e("s_lshl_b32 s93, s93, 2")
    b3.e("s_add_u32 s52, s52, s93")
    b3.e(f"s_add_u32 s52, s52, {WS_WFL}")
    b3.blk(["s_cmp_eq_u32 s32, 0", f"s_cselect_b32 s52, s52, {BIG}"])
    b3.e("v_mov_b32 v24, 1")
    b3.e("v_mov_b32 v25, 0")
    if not WOT: b3.items = []
    PKM = opt.get('pkm', '0') == '1'
    def conv_items(qb):
        r_ = Rec()
        for s_ in range(4):
            r = QA(2 * s_, qb)
            if PKM:
                for e_ in range(0, 8, 2): r_.e(f"v_pk_mul_f32 {V(r+e_,2)}, {V(r+e_,2)}, s[94:95]")
            else:
                for e_ in range(8): r_.e(f"v_mul_f32 v{r+e_}, s94, v{r+e_}")
            for e_ in range(4): r_.e(f"v_cvt_pk_bf16_f32 v{r+e_}, v{r+2*e_}, v{r+2*e_+1}")
            for e_ in range(4): r_.e(f"v_accvgpr_write_b32 a{Q(qb,s_)+e_}, v{r+e_}")
        r_.items.append(('mark', f'conv{qb}', None))
        return r_.items
    p2_start = len(k.lines)
    XLA = int(opt.get('xla', 5))
    xsched = {}; nx_ = 4
    for kk in range(32):
        xsched[kk] = []
        while nx_ < 32 and nx_ <= min(kk + XLA, (kk & ~1) + 7) and len(xsched[kk]) < 2:
            xsched[kk].append(nx_); nx_ += 1
    def boundary_wait(kk):
        st, ks = kk // 2, kk & 1
        need = [f'x{kk | 1}' if P2C else f'x{kk}']
        if ks == 1 and st < 15: need.append(f'w{st+1}')
        if kk == SIG:
            assert not any(it[2] == 'kvst' for it in b1.items), "stores not all issued before SIG"
            need.append('kvst')
        if kk == WTB:
            assert not any(it[0] == 'b' and any(isinstance(x, tuple) for x in it[1]) for it in b3.items)
            need.append('wo')
        if kk == CK:
            assert not b3.items
            need.append('poll')
        if kk == 31: need.append('c16')
        w = [x for x in (k.vm_n(t) for t in need) if x is not None]
        k.e("s_waitcnt " + (f"vmcnt({min(w)}) " if w else "") + "lgkmcnt(0)")
        for t in need: k.use(t)
    def boundary_bar(kk):
        st, ks = kk // 2, kk & 1
        if kk == CK:
            assert not any('vcc' in str(it[1]) for it in b2.items)
            k.e("s_cmp_lg_u32 s32, 0")
            k.e("s_cbranch_scc1 L_spinBr")
            k.e("v_cmp_ne_u32 vcc, 1, v12")
            k.e("s_cbranch_vccnz L_spinB")
            k.label("L_spinBr")
        if ks == 1: k.e("s_barrier")
    for kk in range(32):
        st, ks = kk // 2, kk & 1
        k.stamp(S2 and kk in (0, 4, 8, 12, 16, 20, 24, 28, 31))
        if kk == 0: boundary_wait(0)
        g = {}; gt = {}
        if kk + 1 < 32:
            for n, grp in enumerate(wreads(kk + 1)):
                g[1 + 3 * n] = (["s_waitcnt lgkmcnt(6)"] if n == 5 else []) + grp
        vm = []
        wv = []
        if ks == 1 and st + 4 < 16: wv = [(t, s, f'w{st+4}') for t, s in chunk_ops(('w', st + 4))[:3]]
        if ks == 0 and 4 <= st + 3 < 16: wv = [(t, s, f'w{st+3}') for t, s in chunk_ops(('w', st + 3))[3:]]
        xv_ = []
        for x in xsched.get(kk, []): xv_ += [(t, s, f'x{x}') for t, s in xn_ops(x)]
        vm = wv + xv_
        ng = sum(1 for x in vm if x[0] == 'g')
        free = [x for x in range(2, 29) if x not in g]
        pick = [free[(j * len(free)) // ng] for j in range(ng)] if ng else []
        j = 0
        for t, s, tg in vm:
            if t == 'g': g[pick[j]] = [s]; gt[pick[j]] = tg; j += 1
            elif t == 's':
                q = pick[j] - 1
                if q in gt: g[q].append(s)
                else: g.setdefault(q, []).insert(0, s)
            else:
                q = pick[j - 1] + 1
                while q in pick or (q in g and len([y for y in g[q] if not y.startswith('s_')]) >= 2): q += 1
                g.setdefault(q, []).append(s)
        dbs, qs = (range(4 * ks, 4 * ks + 4), range(2)) if P2C else (range(8), [ks])
        order = [(db, qb, q) for db in dbs for qb in range(4) for q in qs]
        if kk == 31:
            order = [(db, qb, q) for qb in range(4) for db in dbs for q in qs]
            assert all('accvgpr_write' in it[1] for it in b2.items)
            zrest = b2.items; b2.items = []
            for kb in range(2):
                for s_ in range(4): b2.e(f"ds_read_b128 {A(FR(kb,s_),4)}, v{VY} offset:{(kb*4+s_)*1024}", tag=f'k{kb}')
            b2.at(31 + 12 / 32.0)
            b2.items += conv_items(0) + conv_items(1)
        elif kk > (25 if P2C else 24):
            for x in (([kk - 2] if kk < 30 else [28, 29]) if P2C else [kk - 1]):
                for r in range(16): b2.e(f"v_accvgpr_write_b32 a{XR(x,0)+r}, 0")
        for n, (db, qb, q) in enumerate(order):
            k.e(mfma(V(QA(db, qb), 4), A(WF(q, db), 4), A(XR(2 * st + q, qb), 4), V(QA(db, qb), 4) if (st or q) else "0"))
            if kk < 31 and n == 30: boundary_wait(kk + 1)
            if kk < 31 and n == 31: boundary_bar(kk + 1)
            if n in g:
                for s in g[n]: k.e(s, tag=gt.get(n))
            elif kk < 31 and n >= 29:
                for o in (b1, b2):
                    if o.items and o.items[0][0] == 'i' and o.items[0][1].startswith('v_'):
                        it = o.items.pop(0); k.e(it[1])
                        if o.items and o.items[0][0] == 'i' and o.items[0][1].startswith('v_') and o.cost(it) + o.cost(o.items[0]) <= 2:
                            k.e(o.items.pop(0)[1])
                        break
            else:
                nl = k.ni
                b1.fill(k, kk + n / 32.0)
                if k.ni == nl: b3.fill(k, kk + n / 32.0)
                if k.ni == nl: b2.fill(k, kk + n / 32.0)
    print("phase2 items left", len(b1.items), len(b2.items))
    b1.drain(k)
    grp_ = None
    for ln in k.lines[p2_start:] + ["s_mov_b32 m0, 0"]:
        if ' m0,' in ln:
            assert grp_ is None or (len(set(grp_)) == 1 and len(grp_) == (1 if grp_[0] == 's[28:31]' else 4)), grp_
            grp_ = []
        elif ' lds' in ln: grp_.append(ln.split(', ')[1])
    k.stamp(ST or S2)
    XS = 160
    def ffn_ids(item):
        k.e(f"s_mul_i32 s92, s{item}, 2341")
        k.e("s_lshr_b32 s92, s92, 16")
        k.e("s_mul_i32 s47, s92, 28")
        k.e(f"s_sub_u32 s4, s{item}, s47")
        k.e(f"s_mul_i32 s5, s92, {128*7168}")
        k.e("s_lshl_b32 s47, s4, 8")
        k.e("s_add_u32 s5, s5, s47")
    FX = int(opt.get('fx', 2))
    def ffn_issue(up=68):
        for t in range(2):
            k.e(f"s_lshr_b32 s3, s{42+t}, 4")
            k.e(f"s_mul_i32 s3, s3, {XN_RB}")
            k.e(f"s_and_b32 s47, s{42+t}, 15")
            k.e("s_lshl_b32 s47, s47, 4")
            k.e("s_add_u32 s3, s3, s47")
            k.e(f"v_mov_b32 v{28+t}, s3")
        k.e("v_lshrrev_b32 v24, 4, v0")
        k.e("v_and_b32 v25, 15, v0")
        k.e("v_cmp_eq_u32 vcc, 1, v25")
        k.e("s_lshl_b32 s3, s32, 4")
        k.e("v_add_u32 v26, s3, v24")
        k.e("v_cndmask_b32 v28, v28, v29, vcc")
        k.e("v_lshl_add_u32 v28, v24, 8, v28")
        k.e("v_mul_u32_u24 v26, 7168, v26")
        k.e("v_lshlrev_b32 v24, 1, v24")
        k.e("v_xor_b32 v24, v24, v25")
        k.e("v_xor_b32 v25, 8, v24")
        k.e("v_lshl_add_u32 v24, v24, 4, v26")
        k.e("v_lshl_add_u32 v25, v25, 4, v26")
        k.e("s_lshl_b32 s3, s92, 12")
        for q in range(4):
            k.e(f"buffer_load_dwordx4 {A(XS+4*q,4)}, v28, s[20:23], s3 offen offset:{q*1024} sc1")
        ops = []
        for m, srd in enumerate((24, up)):
            for h in range(2):
                for q in range(4):
                    pre = [f"s_add_u32 m0, s54, {m*32768 + h*16384}"] if q == 0 else []
                    ops.append((pre + [f"s_add_u32 s3, s5, {h*64*7168 + q*27648}"],
                                f"buffer_load_dwordx4 v{24 + (q >> 1)}, {S(srd,4)}, s3 offen offset:{q*1024}{ffn_ld} lds"))
        return ops
    def ffn_finish(nv=8):
        k.e("v_lshrrev_b32 v24, 4, v0")
        k.e("v_bfe_u32 v25, v0, 2, 2")
        k.e("v_lshl_add_u32 v26, v24, 3, v25")
        k.e("v_lshlrev_b32 v26, 8, v26")
        k.e("v_and_b32 v27, 3, v0")
        k.e("v_lshl_add_u32 v26, v27, 3, v26")
        k.e("v_and_b32 v27, 1, v24")
        k.e("v_lshl_add_u32 v25, v27, 2, v25")
        k.e("s_lshl_b32 s3, s32, 1")
        k.e("v_xor_b32 v25, s3, v25")
        k.e("v_lshl_add_u32 v26, v25, 5, v26")
        k.e("s_sub_u32 s3, s54, s44")
        k.e("v_add_u32 v26, s3, v26")
        k.e("v_xor_b32 v27, 32, v26")
        k.e(f"s_waitcnt vmcnt({nv}) lgkmcnt(0)")
        k.use('ffn')
        k.e("s_barrier")
        for m in range(2):
            for q in range(4):
                for j in range(2):
                    for rd in range(2):
                        k.e(f"ds_read_b64_tr_b16 {V(128 + 32*m + 8*q + 4*j + 2*rd, 2)}, v{26+j} offset:{m*32768 + q*8192 + rd*1024}", tag=f'f{m}')
        k.e("v_and_b32 v25, 15, v0")
        k.e("v_mul_u32_u24 v28, 14336, v25")
        k.e("v_lshl_add_u32 v28, v24, 4, v28")
        k.e(f"v_mov_b32 v29, {BIG}")
        k.e("v_cmp_gt_u32 vcc, 2, v25")
        k.e(f"s_mul_i32 s3, s92, {4*14336}")
        k.e("s_lshl_b32 s47, s4, 9")
        k.e("s_add_u32 s3, s3, s47")
        k.e("v_cndmask_b32 v28, v29, v28, vcc")
        k.e("s_lshl_b32 s47, s32, 7")
        k.e("s_add_u32 s3, s3, s47")
        k.e(f"s_add_u32 s3, s3, {WS_HP}")
        for m in range(2):
            k.wait_ds(f'f{m}')
            for q in range(4):
                for j in range(2):
                    d = V(224 + 8 * m + 4 * j, 4)
                    k.e(mfma(d, V(128 + 32*m + 8*q + 4*j, 4), A(XS + 4*q, 4), d if q else "0"))
    def ffn_store():
        k.e(f"s_cmp_ge_u32 s34, {FX}")
        k.e(f"s_cselect_b32 s3, s3, {1 << 23}")
        k.e(f"s_add_u32 s7, s3, {2*14336}")
        for m in range(2):
            for j in range(2):
                k.e(f"buffer_store_dwordx4 {V(224 + 8*m + 4*j, 4)}, v28, s[20:23], s{7 if m else 3} offen offset:{j*64} sc1", tag='hps')

    def kread(reg, off, kb):
        return [f"ds_read_b128 {A(FR(kb,s_),4)}, v{reg} offset:{off + (kb*4+s_)*1024}" for s_ in range(4)]
    def vread(reg, off, vg):
        return [f"ds_read_b128 {A(FR(vg,j),4)}, v{reg} offset:{off + ((j & 1)*8 + 2*vg + (j >> 1))*1024}" for j in range(4)]
    def qk_mfmas(par, nq, zero=False):
        out = []
        for kb in range(4):
            grp = []
            for qb in range(nq):
                d = V(Sr(par, qb, kb), 4)
                for s_ in range(4):
                    c = d if s_ else ("0" if zero else V(NEGM + 4 * qb, 4))
                    grp.append(mfma(d, A(FR(kb, s_), 4), A(Q(qb, s_), 4), c))
            out.append(grp)
        return out
    def pv_mfmas(par, nq):
        out = []
        for vg in range(4):
            grp = []
            for dd in range(2):
                for qb in range(nq):
                    for ks in range(2):
                        o = A(O(qb, 2 * vg + dd), 4)
                        grp.append(mfma(o, A(FR(vg, 2 * dd + ks), 4), V(P(par, qb, ks), 4), o))
            if vg < nq:
                for ks in range(2):
                    l = V(LS + 4 * vg, 4)
                    grp.append(mfma(l, V(ONES, 4), V(P(par, vg, ks), 4), l))
            out.append(grp)
        return out
    def sm_pairs(par, nq, ks):
        out = []
        for kq in range(2):
            for qb in range(nq):
                s0 = Sr(par, qb, 2 * ks + kq)
                for h in range(2):
                    out.append((s0 + 2 * h, s0 + 2 * h + 1, P(par, qb, ks) + 2 * kq + h))
        return out
    class SM:
        def __init__(self, pairs, first, check):
            self.pairs = pairs; self.ne = 0; self.nc = 0; self.no = 0; self.first = first
            self.tail = [f"v_and_b32 v{T0}, 0x40004000, v{ORR}", f"v_cmp_ne_u32 vcc, 0, v{T0}"] if check else []
            self.e_done = 0; self.extra = []
        def tick(self): self.e_done = self.ne
        def exp_ready(self): return self.ne < 2 * len(self.pairs) and self.ne // 2 - self.nc < 4
        def exp(self):
            j, h = self.ne // 2, self.ne & 1; self.ne += 1
            return f"v_exp_f32 v{ET + 2*(j % 4) + h}, v{self.pairs[j][h]}"
        def plain_avail(self):
            n = min(self.e_done // 2, len(self.pairs)) - self.nc
            n += self.nc // 2 - self.no
            if self.no == len(self.pairs) // 2: n += len(self.tail)
            return n + len(self.extra)
        def plain(self):
            if self.nc < min(self.e_done // 2, len(self.pairs)):
                j = self.nc; self.nc += 1
                return f"v_cvt_pk_bf16_f32 v{self.pairs[j][2]}, v{ET + 2*(j % 4)}, v{ET + 2*(j % 4) + 1}"
            if self.no < self.nc // 2:
                j = self.no; self.no += 1
                a, b = self.pairs[2 * j][2], self.pairs[2 * j + 1][2]
                if self.first and j == 0: return f"v_or_b32 v{ORR}, v{a}, v{b}"
                return f"v_or3_b32 v{ORR}, v{ORR}, v{a}, v{b}"
            if self.no == len(self.pairs) // 2 and self.tail: return self.tail.pop(0)
            if self.extra: return self.extra.pop(0)
            return None
        def left_exp(self): return 2 * len(self.pairs) - self.ne
        def left_plain(self): return len(self.pairs) - self.nc + len(self.pairs) // 2 - self.no + len(self.tail) + len(self.extra)
        def done(self): return self.left_exp() == 0 and self.left_plain() == 0
        def drain(self):
            while not self.done():
                self.tick()
                if self.exp_ready():
                    k.e(self.exp())
                    if self.exp_ready(): k.e(self.exp())
                    x = self.plain()
                    if x: k.e(x)
                else:
                    k.e(self.plain())
    def phase(groups, gtags, reads, rtags, sm, vm, nexttag):
        total = sum(len(g) for g in groups)
        vmpos = {}
        if vm:
            step = max(2, (total - 2) // len(vm))
            for j, x in enumerate(vm): vmpos[1 + j * step] = x
        n = 0
        k.wait_ds(gtags[0])
        for gi, grp in enumerate(groups):
            rq = list(reads[gi])
            for mi, m in enumerate(grp):
                k.e(m)
                sm.tick()
                scal = []
                if n + 1 in vmpos: scal += vmpos[n + 1][0]
                lastm = mi == len(grp) - 1
                if n in vmpos:
                    for s in scal: k.e(s)
                    k.e(vmpos[n][1], tag='kv')
                    slots = 0
                else:
                    for s in scal: k.e(s)
                    if lastm:
                        nt = gtags[gi + 1] if gi + 1 < len(groups) else nexttag
                        if nt: k.wait_ds(nt)
                    slots = 2
                    gaps_left = len([x for x in range(n, n + len(grp) - mi) if x not in vmpos])
                    want_d = len(rq) > 0 and (sm.plain_avail() > 0 or not sm.exp_ready() or len(rq) >= gaps_left - 1)
                    if want_d:
                        k.e(rq.pop(0), tag=rtags[gi]); slots -= 1
                        if rq and (sm.plain_avail() == 0 or len(rq) >= gaps_left):
                            k.e(rq.pop(0), tag=rtags[gi]); slots -= 1
                    if slots == 2 and sm.exp_ready() and not (sm.plain_avail() >= 3 and not rq):
                        k.e(sm.exp()); slots = 0
                    while slots > 0:
                        x = sm.plain()
                        if not x: break
                        k.e(x); slots -= 1
                if lastm:
                    for s in rq: k.e(s, tag=rtags[gi])
                    nt = gtags[gi + 1] if gi + 1 < len(groups) else nexttag
                    if nt: k.wait_ds(nt)
                n += 1
        sm.drain()

    def mask_block(par, qb):
        vr = VRA if qb & 1 else VRB
        for kb in range(4):
            for r in range(4): k.e(f"v_cmp_gt_i32 s[{56+2*r}:{57+2*r}], {16*kb + r}, v{vr}")
            if kb == 0: k.e("s_nop 3")
            for r in range(4):
                x = Sr(par, qb, kb) + r
                k.e(f"v_cndmask_b32 v{x}, v{x}, v{NINF}, s[{56+2*r}:{57+2*r}]")
    def rowmax(par, qb, d, o=k):
        s0 = Sr(par, qb, 0)
        o.e(f"v_max3_f32 v{d}, v{s0}, v{s0+1}, v{s0+2}")
        for r in range(3, 15, 2): o.e(f"v_max3_f32 v{d}, v{d}, v{s0+r}, v{s0+r+1}")
        o.e(f"v_max_f32 v{d}, v{d}, v{s0+15}")
        o.e(f"v_mov_b32 v{T0}, v{d}")
        o.e(f"v_permlane16_swap_b32 v{T0}, v{d}")
        o.e(f"v_max_f32 v{d}, v{d}, v{T0}")
        o.e(f"v_mov_b32 v{T0}, v{d}")
        o.e(f"v_permlane32_swap_b32 v{T0}, v{d}")
        o.e(f"v_max_f32 v{d}, v{d}, v{T0}")
        o.e(f"v_add_f32 v{d}, {opt.get('moff', '0x41f80000')}, v{d}")
    def fallback(par, nq, nqn):
        k.e("s_nop 7")
        for qb in range(nq):
            rowmax(par, qb, 21)
            k.e("v_max_f32 v21, 0, v21")
            for r in range(16): k.e(f"v_sub_f32 v{Sr(par,qb,0)+r}, v{Sr(par,qb,0)+r}, v21")
            if qb < nqn:
                for r in range(16): k.e(f"v_sub_f32 v{Sr(par^1,qb,0)+r}, v{Sr(par^1,qb,0)+r}, v21")
            for r in range(4): k.e(f"v_sub_f32 v{NEGM+4*qb+r}, v{NEGM+4*qb+r}, v21")
            k.e("v_exp_f32 v22, -v21")
            for r in range(4): k.e(f"v_mul_f32 v{LS+4*qb+r}, v{LS+4*qb+r}, v22")
            for r0 in range(0, 32, 8):
                for r in range(8): k.e(f"v_accvgpr_read_b32 v{ET+r}, a{O(qb,0)+r0+r}")
                for r in range(8): k.e(f"v_mul_f32 v{ET+r}, v{ET+r}, v22")
                for r in range(8): k.e(f"v_accvgpr_write_b32 a{O(qb,0)+r0+r}, v{ET+r}")
        for ks in range(2):
            for (s0, s1, pd) in sm_pairs(par, nq, ks):
                k.e(f"v_exp_f32 v{ET}, v{s0}")
                k.e(f"v_exp_f32 v{ET+1}, v{s1}")
                k.e(f"v_cvt_pk_bf16_f32 v{pd}, v{ET}, v{ET+1}")
        k.e("s_nop 1")
    SPLIT = {4: (32, 16, 8), 3: (36, 18, 9), 2: (17, 8, 4), 1: (16, 8, 4), 0: (0, 0, 0)}
    def tile_sm(par, nq, start, check):
        sm = SM(sm_pairs(par, nq, 0) + sm_pairs(par, nq, 1), True, check)
        sm.ne, sm.nc, sm.no = start; sm.e_done = sm.ne
        return sm
    def pack(ngaps, vmg, dsl, sm, limit, last_sm, pre):
        plan = {}
        dsl = list(dsl)
        def exp_ok(): return sm.exp_ready() and (limit is None or sm.ne < limit[0])
        def plain_n():
            n = min(sm.e_done // 2, len(sm.pairs), limit[1] if limit else 1 << 30) - sm.nc
            n += min(sm.nc // 2, limit[2] if limit else 1 << 30) - sm.no
            if limit is None and sm.no == len(sm.pairs) // 2: n += len(sm.tail)
            return n + len(sm.extra)
        def take_plain():
            if limit is not None:
                c_ok = sm.nc < min(sm.e_done // 2, limit[1]); o_ok = sm.no < min(sm.nc // 2, limit[2])
                if not c_ok and not o_ok: return sm.extra.pop(0) if sm.extra else None
                if not c_ok:
                    keep = sm.e_done; sm.e_done = 2 * sm.nc; x = sm.plain(); sm.e_done = keep; return x
            return sm.plain()
        for g in range(-1 if pre else 0, ngaps):
            if g in vmg: sm.tick(); continue
            sm.tick()
            ops = []
            smok = g <= last_sm
            av = [d for d in dsl if d[2] <= g]
            free_to = lambda dl: len([x for x in range(g, dl + 1) if x not in vmg])
            urgent = any(sum(1 for d in dsl if d[3] <= e[3]) >= 2 * free_to(e[3]) - 1 for e in av)
            pn = plain_n() if smok else 0
            if smok and exp_ok() and not urgent and not (av and pn) and not (pn >= 3):
                ops.append((sm.exp(), None))
            else:
                slots = 2
                if av and g >= 0:
                    d = av.pop(0); dsl.remove(d); ops.append((d[0], d[1])); slots -= 1
                    if av and (pn == 0 or sum(1 for x in dsl if x[3] <= av[0][3]) >= 2 * free_to(av[0][3]) - 1):
                        d = av.pop(0); dsl.remove(d); ops.append((d[0], d[1])); slots -= 1
                while slots and smok:
                    x = take_plain()
                    if not x: break
                    ops.append((x, None)); slots -= 1
                if not ops and smok and exp_ok(): ops.append((sm.exp(), None))
            plan[g] = ops
            if g == last_sm:
                while (limit is None and not sm.done()) or (limit is not None and ((sm.ne, sm.nc, sm.no) != limit or sm.extra)):
                    sm.tick()
                    x = sm.exp() if exp_ok() else take_plain()
                    plan[g].append((x, None)); k.overflow += 1
        assert not dsl, dsl
        return plan
    k.overflow = 0
    SLK = int(opt.get('slk', -1))
    def emit_phase(mf, plan, vmg, scal, bg=None, vtag=None, sbg=None):
        for s_, tg in plan.get(-1, []): k.e(s_, tag=tg)
        for g, m in enumerate(mf):
            k.e(m)
            for x in scal.get(g, []):
                if isinstance(x, tuple) and x[0] == 'u': k.use(x[1])
                elif isinstance(x, tuple) and x[0] == 'call': x[1]()
                elif isinstance(x, tuple): k.wait_ds(x[1])
                elif x.endswith(':'): k.label(x[:-1])
                else: k.e(x)
            if sbg and g > 0 and g not in scal and g not in vmg and sbg.items and sbg.items[0][0] != 'at':
                it = sbg.items.pop(0)
                for x in ([it[1]] if it[0] == 'i' else it[1]): k.e(x)
                if sbg.items[0][0] == 'i' and len(plan.get(g, [])) < 2: k.e(sbg.items.pop(0)[1])
            if g in vmg: k.e(vmg[g], tag=(vtag if ('s39' in vmg[g] or ' s3 ' in vmg[g]) else None))
            else:
                for s_, tg in plan.get(g, []): k.e(s_, tag=tg)
                if bg and not plan.get(g) and g not in scal: bg.fill(k, 99, 3)
    p4s = p4_setup(opt)
    def starts(groups):
        out = [0]
        for g in groups: out.append(out[-1] + len(g))
        return out
    def iteration(par, nq, nqn, mask, name, tail):
        kreg, koff = (VX, 32768) if par == 0 else (VY, 0)
        vreg, voff = (VX, 16384) if par == 0 else (VX, 49152)
        nreg, noff = (VY, 0) if par == 0 else (VY, 32768)
        last = nqn == 1
        k.hot = nqn >= 2
        ov0 = k.overflow
        fb, fr = f"L_k2_fb_{name}", f"L_k2_fbr_{name}"
        ool.append((fb, lambda: fallback(par, nq, nqn), fr))
        sm = tile_sm(par, nq, SPLIT[nq], True)
        if par == 0:
            k.e(f"v_xor_b32 v{VX}, 65536, v{VX}")
            k.e(f"v_xor_b32 v{VY}, 65536, v{VY}")
        if nqn:
            k.dq = ['k1'] * 4
            if nq == 4 and WARM: sm.extra = ["v_lshl_add_u64 v[28:29], s[40:41], 0, v[28:29]"]
            grp = qk_mfmas(par ^ 1, nqn); st_ = starts(grp); n1 = st_[-1]
            slack = SLK if nqn <= 2 else 4
            dsl = [(x, 'k2', 0, st_[1] + slack) for x in kread(kreg, koff, 2)] + [(x, 'k3', 0, st_[2] + slack) for x in kread(kreg, koff, 3)] + \
                  [(x, 'v0', st_[1], st_[3] + slack) for x in vread(vreg, voff, 0)] + [(x, 'v1', st_[2], n1 - 1) for x in vread(vreg, voff, 1)]
            scal = {}
            add = lambda g, xs: scal.setdefault(g, []).extend(xs)
            add(st_[1] - 1, [('w', 'k1')]); add(st_[2] - 1, [('w', 'k2')]); add(st_[3] - 1, [('w', 'k3')])
            vmw = f"s_waitcnt vmcnt({12 + min(int(opt.get('fp1', 4)), 3)})" if last else "s_waitcnt vmcnt(12)"
            if nq == 2:
                add(n1 - 7, ["s_cmp_lt_u32 s37, s52"])
                add(n1 - 6, [f"s_cbranch_scc1 L_nw_{name}", vmw, f"L_nw_{name}:"])
            else:
                add(n1 - 5, [vmw])
            if mask and mask[1]: add(n1 - 4, [f"s_cmp_eq_u32 s37, s{mask[1]}"])
            add(n1 - 3, ([] if 'nochk' in opt else [('u', f'V{par}'), ('u', 'c19' if par == 0 else 'c21'), ('u', 'c20' if par == 0 else 'c22')]) + ["s_barrier"]); add(n1 - 2, [('w', 'v0')]); add(n1 - 1, [f"s_cbranch_vccnz {fb}", fr + ":"])
            vmg = {}
            if last:
                fops = ffn_issue()
                for q in (1, 5, 8, 12)[:int(opt.get('fp1', 4))]:
                    pre, ld = fops.pop(0)
                    vmg[q] = ld; scal.setdefault(q - 1, []).extend(pre)
            else:
                step = (n1 - 8) / 4
                for j in range(4):
                    q = int(1 + j * step)
                    while q in scal or (j == 0 and q - 1 in scal): q += 1
                    vmg[q] = f"buffer_load_dwordx4 v{VDMA}, s[12:15], s38 offen offset:{j*1024}{kv_ld} lds"
                    if j == 0: scal[q - 1] = ["s_mov_b32 m0, s53" if par == 0 else "s_add_u32 m0, s53, 32768"]
            plan = pack(n1, vmg, dsl, sm, None, n1 - 2, par == 1)
            emit_phase(sum(grp, []), plan, vmg, scal, None, 'ffn')
        else:
            k.dq = ['v1'] * 4
            sm.drain()
            k.e(f"s_cbranch_vccnz {fb}")
            k.label(fr)
        grp = pv_mfmas(par, nq); st_ = starts(grp); n2 = st_[-1]
        slack = SLK if nq <= 2 else 4
        dsl = [(x, 'v2', 0, st_[1] + slack) for x in vread(vreg, voff, 2)] + [(x, 'v3', 0, st_[2] + slack) for x in vread(vreg, voff, 3)]
        scal = {st_[1] - 1: [('w', 'v1')], st_[2] - 1: [('w', 'v2')], st_[3] - 1: [('w', 'v3')]}
        vmg = {}
        if nqn:
            nx = [vread(VX, 49152, 0), vread(VX, 49152, 1)] if last else [kread(nreg, noff, 0), kread(nreg, noff, 1)]
            dsl += [(x, 'k0', st_[1], st_[3] + slack - 1) for x in nx[0]] + [(x, 'k1', st_[2], n2 - 2) for x in nx[1]]
            if mask:
                mb, mr = f"L_k2_mk_{name}", f"L_k2_mkr_{name}"
                if mask[1]: scal[0] = [f"s_cbranch_scc1 {mb}", mr + ":"]
                else: scal[0] = [('call', lambda: mask_block(par ^ 1, mask[0]))]
            scal[n2 - 2] = [('w', 'k0')]
            if tail: scal[n2 - 3] = [tail[0]]; scal[n2 - 1] = [tail[1]]
            def put(x, lo):
                q = lo
                while q in scal or q in vmg: q += 1
                assert q < n2 - 3, (x, q)
                scal[q] = [x]
            if last:
                for j, (pre, ld) in enumerate(fops):
                    q = 2 + (j * (n2 - 4)) // len(fops)
                    vmg[q] = ld
                    scal.setdefault(q - 1, []).extend(pre)
                    if q in scal: scal[q - 1].extend(scal.pop(q))
            else:
                mv = "s_add_u32 m0, s54, 49152" if par == 0 else "s_add_u32 m0, s53, 16384"
                vm = [f"buffer_load_dwordx4 v{VDMA}, s[12:15], s39 offen offset:{j*1024}{kv_ld} lds" for j in range(4)]
                if nq == 4 and WARM: vm.append("global_load_dword v30, v[28:29], off")
                step = (n2 - 4) / len(vm)
                pos = []
                for j in range(len(vm)):
                    q = int(2 + j * step)
                    while q in scal or q in vmg or (j == 0 and q - 1 in scal): q += 1
                    vmg[q] = vm[j]; pos.append(q)
                    if j == 0: scal[q - 1] = [mv]
                if name == "ne":
                    q = 3
                    while any(x in scal or x in vmg for x in (q, q + 1)): q += 1
                    scal[q] = ["s_cmp_eq_u32 s37, s52"]; scal[q + 1] = ["s_cbranch_scc1 L_pubB", "L_pubBr:"]
                    put("s_add_u32 s37, s37, 1", q + 2)
                else:
                    put("s_add_u32 s37, s37, 1", 1)
                put(f"s_add_u32 s38, s38, {KV_TILE}", 1)
                if par == 1:
                    put("s_xor_b32 s53, s53, 65536", pos[0]); put("s_xor_b32 s54, s54, 65536", pos[0])
                put(f"s_add_u32 s39, s39, {KV_TILE}", pos[3] + 1)
        sm = tile_sm(par ^ 1, nqn, (0, 0, 0), False)
        lastg = n2 - 2 if nqn else n2 - 1
        while lastg in vmg: lastg -= 1
        plan = pack(n2 - 1 if nqn else n2, vmg, dsl, sm, SPLIT[nqn], lastg, False)
        emit_phase(sum(grp, []), plan, vmg, scal, None if nqn else p4s, 'ffn' if last else f'V{par}', p4s if last else None)
        print(f"iteration {name}: overflow ops {k.overflow - ov0}")
        k.hot = False
    def epilogue(q0, srow):
        k.e(f"s_lshl_b32 s3, s{srow}, 20")
        k.e("s_lshl_b32 s47, s33, 15")
        k.e("s_add_u32 s3, s3, s47")
        k.e("s_lshl_b32 s47, s32, 10")
        k.e("v_lshlrev_b32 v248, 4, v0")
        k.e("v_add_u32 v249, s47, v248")
        k.e("s_sub_u32 s47, 7168, s47")
        k.e("v_add_u32 v248, s47, v248")
        for qq in range(2):
            k.e(f"v_rcp_f32 v{250+2*qq}, v{LS+4*(q0+qq)}")
        for qq in range(2):
            k.e(f"v_mov_b32 v{251+2*qq}, v{250+2*qq}")
        for s_ in range(4):
            for qq in (1, 0):
                o = O(q0 + qq, 2 * s_)
                d = 24 + 4 * qq
                for r in range(8): k.e(f"v_accvgpr_read_b32 v{240+r}, a{o+r}")
                for r in range(0, 8, 2): k.e(f"v_pk_mul_f32 {V(240+r,2)}, {V(240+r,2)}, {V(250+2*qq,2)}")
                for r in range(4): k.e(f"v_cvt_pk_bf16_f32 v{d+r}, v{240+2*r}, v{240+2*r+1}")
                k.e(f"buffer_store_dwordx4 {V(d,4)}, v{248+qq}, s[16:19], s3 offen{opt.get('ctx_st',' sc1')}")
            if s_ < 3: k.e("s_add_u32 s3, s3, 8192")

    for kb in range(2, 4):
        for s in kread(VY, 0, kb): k.e(s, tag=f'k{kb}')
    def first_max(o, qb):
        rowmax(0, qb, 22, o)
        if PKM:
            o.e("v_sub_f32 v22, 0, v22"); o.e("v_mov_b32 v23, v22")
            for r in range(0, 16, 2): o.e(f"v_pk_add_f32 {V(Sr(0,qb,0)+r,2)}, {V(Sr(0,qb,0)+r,2)}, v[22:23]")
            for r in range(4): o.e(f"v_mov_b32 v{NEGM+4*qb+r}, v22")
        else:
            for r in range(16): o.e(f"v_sub_f32 v{Sr(0,qb,0)+r}, v{Sr(0,qb,0)+r}, v22")
            for r in range(4): o.e(f"v_sub_f32 v{NEGM+4*qb+r}, 0, v22")
    c = b2
    c.items += conv_items(2) + conv_items(3) + zrest
    for r in list(range(XR(30, 0), XR(30, 0) + 16)) + list(range(XR(31, 0), XR(31, 0) + 16)): c.e(f"v_accvgpr_write_b32 a{r}, 0")
    for r in range(4): c.e(f"v_mov_b32 v{ONES+r}, 0x3f803f80")
    c.e(f"v_mov_b32 v{NINF}, 0xff800000")
    first_max(c, 0); first_max(c, 1)
    for qb in range(4):
        while any(it[0] == 'mark' and it[1] == f'conv{qb}' for it in c.items): c.fill(k, 99, 2)
        for kb in range(4):
            k.wait_ds(f'k{kb}')
            if qb == 3 and kb == 2:
                k.e(f"s_waitcnt vmcnt({min(k.vm_n('c18'), k.vm_n('c17'))})")
                assert k.vm_n('wts') is None
                k.use('c17'); k.use('c18')
                k.e("s_barrier")
                if WOT:
                    k.e("s_mov_b64 exec, 1")
                    k.e("buffer_store_dword v24, v25, s[20:23], s52 offen sc1")
                    k.e("s_mov_b64 exec, -1")
                k.e("s_add_u32 s53, s44, 65536")
                if TK:
                    k.e("v_mov_b32 v27, 1")
                    k.e("v_mov_b32 v26, 0")
                    k.e("s_cmp_eq_u32 s32, 0")
                    k.e("s_cselect_b32 s3, 128, s64")
                    k.e("s_mov_b64 exec, 1")
                    k.e("buffer_atomic_add v27, v26, s[28:31], s3 offen sc0 sc1")
                    k.e("s_mov_b64 exec, -1")
            for s_ in range(4):
                d = V(Sr(0, qb, kb), 4)
                k.e(mfma(d, A(FR(kb, s_), 4), A(Q(qb, s_), 4), d if s_ else "0"))
                if qb == 3 and kb >= 2: k.e(kread(VY, 32768, kb - 2)[s_], tag=f'n{kb-2}')
                c.fill(k, 99, int(opt.get('pslots', 4)))
    c.drain(k)
    k.e(f"s_mov_b32 s38, {4*KV_TILE}")
    k.e(f"s_mov_b32 s39, {3*KV_TILE + KV_CH}")
    k.e("s_cmp_lg_u32 s34, 0")
    k.e("s_cbranch_scc1 L_k2_nomask0")
    mask_block(0, 3)
    k.label("L_k2_nomask0")
    k.e("s_mov_b32 s37, 0")
    first_max(k, 2); first_max(k, 3)
    SM(sm_pairs(0, 4, 0), True, False).drain()
    k.e("s_waitcnt lgkmcnt(4)")
    k.stamp(ST or SA)

    k.e("s_cmp_eq_u32 s34, 0")
    k.e("s_cbranch_scc1 L_k2_wlast")
    k.e("s_branch L_k2_wloop")
    for nm, qb in (("wo", 3), ("tr", 1), ("no", 1)):
        k.label(f"L_k2_mk_{nm}"); k.win = []
        mask_block(0, qb)
        k.e(f"s_branch L_k2_mkr_{nm}")
    k.label("L_pubB"); k.win = []
    k.e("v_mov_b32 v24, 1"); k.e("v_mov_b32 v25, 0")
    k.e("s_mov_b64 exec, 1")
    k.e("buffer_store_dword v24, v25, s[20:23], s64 offen sc1")
    k.e("s_mov_b64 exec, -1")
    k.e("s_branch L_pubBr")
    k.label("L_k2_wloop")
    iteration(0, 4, 4, None, "we", [])
    iteration(1, 4, 4, (3, 46), "wo", ["s_cmp_lg_u32 s37, s35", "s_cbranch_scc1 L_k2_wloop"])
    k.label("L_k2_wlast")
    iteration(0, 4, 3, (2, None), "wl", [])
    iteration(1, 3, 2, (1, 45), "tr", [])
    k.stamp(SA)
    if '4' in CPF: emit(code_prefetch("L_k2_fin", "L_p4_end", 32, 56, 160, 164))
    k.e("s_waitcnt vmcnt(9)")
    if TK:
        k.e("v_mov_b32 v26, 131072")
        k.e("s_cmp_lg_u32 s32, 0")
        k.e("s_cbranch_scc1 L_notk")
        k.e("s_mov_b64 exec, 1")
        k.e("ds_write_b32 v26, v27")
        k.e("s_mov_b64 exec, -1")
        k.e("s_waitcnt lgkmcnt(0)")
        k.label("L_notk")
        k.e("s_barrier")
        k.e("ds_read_b32 v23, v26")
    epilogue(2, 34)
    k.e("s_add_u32 s52, s37, 2")
    k.raw(";@b:2")
    for s in p4_ptr_loads(): k.e(s)
    k.e("s_waitcnt vmcnt(8) lgkmcnt(0)")
    if TK: k.e("v_readfirstlane_b32 s93, v23")
    else:
        k.e("s_add_u32 s93, s2, 224")
        k.e("s_and_b32 s93, s93, 255")
    k.e("s_nop 0")
    ffn_ids(93)
    k.e(f"s_cmp_ge_u32 s34, {FX}")
    k.e(f"s_cselect_b32 s5, s5, {1 << 23}")
    k.stamp(SA)
    k.e("s_cmp_eq_u32 s34, 7")
    k.e("s_cbranch_scc1 L_k2_fin")
    k.label("L_k2_nloop")
    nl0 = len(k.lines)
    iteration(0, 2, 2, None, "ne", [])
    iteration(1, 2, 2, (1, 45), "no", ["s_cmp_lg_u32 s37, s36", "s_cbranch_scc1 L_k2_nloop"])
    if 'dbg_drop' in opt:
        drop = opt['dbg_drop'].split(',')
        k.lines[nl0:] = [x for x in k.lines[nl0:] if not any(d in x and not x.endswith(':') for d in drop)]
    k.label("L_k2_fin")
    k.stamp(SA)
    iteration(0, 2, 1, (0, None), "nl", [])
    iteration(1, 1, 0, None, "fi", [])
    k.stamp(ST or SA)
    k.e("s_nop 7")
    epilogue(0, 55)
    k.stamp(SA)
    k.e(f"s_cmp_lt_u32 s34, {FX}")
    k.e("s_cbranch_scc1 L_noffn")
    ffn_finish()
    k.label("L_noffn")
    p4s.drain(k)
    k.stamp(SA)
    k.e("v_mov_b32 v24, 1")
    k.e("v_mul_u32_u24 v25, s65, v0")
    k.e("s_waitcnt vmcnt(0)")
    k.e("s_barrier")
    k.e("s_mov_b64 exec, 3")
    k.e("buffer_store_dword v24, v25, s[20:23], s64 offen sc1")
    k.e("s_mov_b64 exec, -1")
    ffn_store()
    k.e("s_lshl_b32 s33, s4, 3")
    k.e("s_add_u32 s33, s33, s92")
    k.e("s_mov_b32 s65, s33")
    k.stamp(ST or SA)
    if FX == 2:
        k.e("s_cmp_eq_u32 s34, 7")
        k.e("s_cbranch_scc1 L_f1x")
        k.label("L_f1xr")
        def f1x():
            k.e("s_load_dwordx2 s[6:7], s[0:1], 72")
            k.e("s_and_b32 s65, s93, 31")
            ffn_ids(65)
            k.e("s_waitcnt lgkmcnt(0)")
            k.srd(16, 6, 7340032)
            for pre, ld in ffn_issue(16):
                for x in pre: k.e(x)
                k.e(ld, tag='ffn')
            ffn_finish(0)
            k.e("s_barrier")
            ffn_store()
            k.e("s_lshl_b32 s65, s4, 3")
            k.e("s_add_u32 s65, s65, s92")
        ool.append(("L_f1x", f1x, "L_f1xr"))
    phase4(k, opt, ool, ST, SA)
    k.stamp_dump('stamp' in opt, 66, 0, 32)
    if 'hold' in opt:
        k.e("s_lshl_b32 s3, s32, 8")
        k.e("s_or_b32 s3, s2, s3")
        k.e(f"s_cmp_lg_u32 s3, {opt.get('holdwg', 0)}")
        if 'holdcls' in opt:
            k.e("s_lshr_b32 s3, s2, 5")
            k.e(f"s_cmp_lg_u32 s3, {opt['holdcls']}")
        if opt.get('holdwg') != '999': k.e("s_cbranch_scc1 L_k2_end")
        k.label("L_hold")
        k.e("s_memrealtime s[4:5]")
        k.e("s_waitcnt lgkmcnt(0)")
        k.e(f"s_sub_u32 s3, s4, s{73 + 2 * int(opt.get('holdk', 0))}")
        k.e(f"s_cmp_lt_u32 s3, {int(opt['hold']) * 100}")
        k.e("s_cbranch_scc1 L_hold")
    k.label("L_k2_end")
    k.e("s_endpgm")
    hotool = [x for x in ool if x[0].startswith(("L_f1", "L_f2", "L_c3", "L_spinC", "L_yA", "L_yB", "L_yC"))]
    for lab, fn, ret in hotool + [("L_p4_end", None, None)] + [x for x in ool if x not in hotool]:
        k.label(lab)
        if fn is None: continue
        k.win = []; k.dq = []
        fn()
        k.e(f"s_branch {ret}")
    return k.wrap(256, 256), f"; @launch {'kernel=' + KNAME + ' ' if 'aslist' in opt else ''}grid=(256,1,1) block=(256,1,1) lds={K12_LDS}"
```

```python
from fw import *
from layout import *
from p4 import rbf2, silu_n, srd_rec, p4_ptr_loads
BIG = 0x7ff00000
VC, VWB, VW, TA, VO, VROW, G, L7, L3, T1, T2, VZ, VF = 112, 113, 114, 115, 119, 120, 121, 122, 123, 124, 125, 126, 127
GTMP, XP, STT, GT, YB = 2, 18, 34, 42, 80
SPARE = 131072

def p4_setup(opt):
    b = Rec()
    srd_rec(b, 60, 8, 7340032)
    srd_rec(b, 56, 40, 4194304)
    b.e("s_bfe_u32 s6, s2, 0x20001")
    b.e("s_lshr_b32 s7, s34, 1")
    b.e("s_lshl_b32 s45, s7, 2")
    b.e("s_add_u32 s46, s45, s6")
    b.e("s_sub_u32 s46, 15, s46")
    b.e("s_sub_u32 s45, 12, s45")
    b.e("s_add_u32 s45, s45, s6")
    b.blk(["s_cmp_lt_u32 s7, 2", "s_cselect_b32 s45, s46, s45"])
    b.e("s_and_b32 s46, s2, 1")
    b.e("s_bfe_u32 s6, s2, 0x30003")
    if opt.get('xm', '1') == '1': b.e("s_lshl_b32 s6, s6, 1")
    else: b.e("s_lshl_b32 s46, s46, 3")
    b.e("s_add_u32 s46, s46, s6")
    for j in range(4): b.e(f"s_mov_b32 s{48+j}, {j*15360}")
    b.e("s_lshl_b32 s35, s32, 13")
    b.e(f"s_add_u32 s35, s35, {SPARE}")
    b.e("s_and_b32 s52, s46, 1")
    b.e("s_lshl_b32 s37, s45, 20")
    b.e("s_lshl_b32 s7, s52, 19")
    b.e("s_add_u32 s37, s37, s7")
    b.e(f"s_add_u32 s37, s37, {WS_CTX}")
    b.e("s_lshr_b32 s7, s46, 1")
    b.e("s_lshl_b32 s7, s7, 8")
    b.e("s_lshl_b32 s6, s52, 22")
    b.e("s_add_u32 s6, s6, s7")
    srd_rec(b, 12, 94, 0, "s6")
    b.e("s_sub_u32 s14, 4194304, s7")
    srd_rec(b, 28, 94, 8388608)
    b.e("s_lshl_b32 s7, s46, 7")
    b.e("s_lshl_b32 s36, s45, 18")
    b.e("s_add_u32 s36, s36, s7")
    b.e("s_and_b32 s94, s7, 128")
    b.e("s_lshl_b32 s38, s45, 7")
    b.e("s_lshl_b32 s6, s52, 6")
    b.e("s_add_u32 s38, s38, s6")
    b.e(f"s_add_u32 s38, s38, {WS_CFL}")
    b.e("s_lshl_b32 s52, s32, 11")
    b.e("s_lshl_b32 s6, s32, 16")
    b.e("s_add_u32 s6, s6, s94")
    b.e("s_xor_b32 s6, s6, 128")
    b.e("s_lshl_b32 s7, s32, 5")
    b.at(1)
    srd_rec(b, 68, 10, 4194304)
    srd_rec(b, 8, 66, 524288, "s37")
    b.e(f"v_lshlrev_b32 v{VC}, 4, v0")
    b.e(f"v_lshrrev_b32 v{G}, 4, v0")
    b.e(f"v_and_b32 v{L7}, 7, v0")
    b.e(f"v_lshrrev_b32 v{L3}, 3, v0")
    b.e(f"v_lshlrev_b32 v{T1}, 1, v{G}")
    b.e(f"v_xor_b32 v{T1}, v{T1}, v{L7}")
    b.e(f"v_lshlrev_b32 v{T1}, 4, v{T1}")
    b.e(f"v_lshl_add_u32 v{VWB}, v{L3}, 11, v{T1}")
    b.e(f"v_add_u32 v{VW}, s6, v{VWB}")
    b.e(f"v_lshrrev_b32 v{T1}, 2, v0")
    b.e(f"v_bfe_u32 v{VZ}, v0, 3, 2")
    b.e(f"v_lshlrev_b32 v{T1}, 7, v{T1}")
    b.e(f"v_and_b32 v{T2}, 3, v0")
    b.e(f"v_lshl_add_u32 v{T1}, v{T2}, 3, v{T1}")
    b.e(f"v_lshl_add_u32 v{TA}, v{VZ}, 5, v{T1}")
    for cb in range(1, 4): b.e(f"v_xor_b32 v{TA+cb}, {cb*32}, v{TA}")
    b.e(f"v_add_u32 v{VROW}, s7, v{L3}")
    b.e(f"v_lshlrev_b32 v{VO}, 11, v{VROW}")
    b.e(f"v_lshl_add_u32 v{VO}, v{L7}, 4, v{VO}")
    b.e(f"v_mov_b32 v{VZ}, 0")
    b.e(f"v_lshlrev_b32 v{VF}, 2, v{L7}")
    return b

def phase4(k, opt, ool, ST, SA):
    N1 = int(opt.get('n1', 32))
    N2 = 64 - N1
    assert N1 % 4 == 0 and N2 % 4 == 0 and N2 <= 32
    units = [(n + q, s_) for n in range(0, N1, 4) for s_ in (1, 0) for q in range(4)] + [(n, 1) for n in range(N1, 64)] + [(n, 0) for n in range(N1, 64)]
    NS = 32
    XM = opt.get('xm', '1') == '1'
    PX = 4 if XM else 32
    SP = N1 // 2 + N2 // 4
    ACC = lambda side, rb, cb: 128 + ((side * 2 + rb) * 4 + cb) * 4
    WF = lambda u, cb: 192 + cb * 16 + (u & 3) * 4
    XI = 160
    FL = int(opt.get('fl', 2))
    CF = lambda n, rb: (n % 32) * 8 + rb * 4
    TB = 12
    WDI = int(opt.get('wdi', 3))
    CDI = int(opt.get('cdi', 3))
    def w_ops(st):
        if st >= NS: return []
        ops = [('s', f"s_add_u32 m0, s44, {(st % 8)*16384}")]
        ops += [('g', f"buffer_load_dwordx4 v{VW}, s[12:15], s{48+j} offen offset:{j*1024} lds") for j in range(4)]
        if st + 1 == SP: ops += [('s2', "s_xor_b32 s95, s95, 128"), ('v', f"v_add_u32 v{VW}, s95, v{VWB}")]
        elif st < N1 // 2:
            ops.append(('v', f"v_xor_b32 v{VW}, 128, v{VW}"))
            if st & 1: ops.append(('v', f"v_add_u32 v{VW}, {4 * 65536}, v{VW}"))
        else: ops.append(('v', f"v_add_u32 v{VW}, {4 * 65536}, v{VW}"))
        return ops
    def c_ops(n):
        return [('g', f"buffer_load_dwordx4 {A(CF(n,rb),4)}, v{VC}, s[8:11], s52 offen offset:{rb*1024} sc1") for rb in range(2)] + \
               [('s2', "s_add_u32 s52, s52, 8192")]
    def ksteps_of(st):
        if st == 0: return [0, 1, 2, 3]
        if st < N1 // 2: return [2 * st + 2, 2 * st + 3]
        if st >= SP: return []
        n0 = N1 + 4 * (st - N1 // 2)
        return [n for n in range(n0 + (2 if st == N1 // 2 else 0), n0 + 4)]
    def wread(u):
        st = u // 4
        base = TA if (st % 8) < 4 else TB
        return [[f"ds_read_b64_tr_b16 {V(WF(u,cb)+2*rd,2)}, v{base+cb} offset:{(st % 4)*16384 + (u % 4)*4096 + rd*2048}" for rd in range(2)] for cb in range(4)]
    def col3(part):
        k.e("s_bfe_u32 s3, s2, 0x40003")
        k.e("s_lshl_b32 s3, s3, 2")
        k.e("s_add_u32 s3, s3, s32")
        k.e("s_lshl_b32 s3, s3, 15")
        k.e("s_and_b32 s7, s2, 1")
        k.e(f"s_lshl_b32 s7, s7, {22 if XM else 10}")
        k.e("s_add_u32 s3, s3, s7")
        k.e(f"s_add_u32 s3, s3, {384 + part * 1024 * 2048}")
        k.e("v_and_b32 v1, 15, v0")
        k.e("v_lshlrev_b32 v1, 11, v1")
        k.e("v_lshrrev_b32 v11, 5, v0")
        k.e(f"v_lshl_add_u32 v1, v11, {10 if XM else 22}, v1")
        k.e("buffer_load_dword v11, v1, s[28:31], s3 offen")
    def gates(o, p, ysrc=None):
        g0 = GT + 8 * p
        if o is not k and opt.get('gpk', '0') == '0': return gates_plain(o, p)
        pr = lambda r: V(r, 2)
        st_ = V(STT + 2 * p, 2)
        for d in range(4):
            o.e(f"v_lshlrev_b32 v{g0+2*d}, 16, v{XP+4*p+d}")
            o.e(f"v_and_b32 v{g0+2*d+1}, 0xffff0000, v{XP+4*p+d}")
        for d in range(4): o.e(f"v_pk_add_f32 {pr(g0+2*d)}, {pr(g0+2*d)}, {st_} op_sel_hi:[1,0] neg_lo:[0,1] neg_hi:[0,1]")
        for d in range(4): rbf2(o, g0 + 2*d, g0 + 2*d + 1, GTMP + d)
        for d in range(4): o.e(f"v_pk_mul_f32 {pr(g0+2*d)}, {pr(g0+2*d)}, {st_} op_sel:[0,1] op_sel_hi:[1,1]")
        for d in range(4): rbf2(o, g0 + 2*d, g0 + 2*d + 1, GTMP + d)
        if ysrc is not None:
            for d in range(4): o.e(f"v_pk_add_f32 {pr(g0+2*d)}, {pr(g0+2*d)}, {pr(ysrc+2*d)}")
            for d in range(4): rbf2(o, g0 + 2*d, g0 + 2*d + 1, GTMP + d)
        for e_ in range(8): o.e(f"v_mul_f32 v{GTMP+e_}, 0xbfb8aa3b, v{g0+e_}")
        for e_ in range(8): o.e(f"v_exp_f32 v{GTMP+e_}, v{GTMP+e_}")
        for e_ in range(8): o.e(f"v_add_f32 v{GTMP+e_}, 1.0, v{GTMP+e_}")
        for e_ in range(8): o.e(f"v_rcp_f32 v{GTMP+e_}, v{GTMP+e_}")
        for d in range(4): o.e(f"v_pk_mul_f32 {pr(g0+2*d)}, {pr(g0+2*d)}, {pr(GTMP+2*d)}")
        for d in range(4): rbf2(o, g0 + 2*d, g0 + 2*d + 1, GTMP + d)
    def gates_plain(o, p):
        g0 = GT + 8 * p
        for d in range(4):
            o.e(f"v_lshlrev_b32 v{g0+2*d}, 16, v{XP+4*p+d}")
            o.e(f"v_and_b32 v{g0+2*d+1}, 0xffff0000, v{XP+4*p+d}")
        for e_ in range(8): o.e(f"v_sub_f32 v{g0+e_}, v{g0+e_}, v{STT+2*p}")
        for d in range(4): rbf2(o, g0 + 2*d, g0 + 2*d + 1, GTMP + d)
        for e_ in range(8): o.e(f"v_mul_f32 v{g0+e_}, v{g0+e_}, v{STT+2*p+1}")
        for d in range(4): rbf2(o, g0 + 2*d, g0 + 2*d + 1, GTMP + d)
        silu_n(o, [g0 + e_ for e_ in range(8)], [GTMP + e_ for e_ in range(8)])
        for d in range(4): rbf2(o, g0 + 2*d, g0 + 2*d + 1, GTMP + d)
    def poll_loop(lab, off, vo, vd, slp=8):
        k.e("s_mov_b32 s47, 0x400000")
        k.label(lab)
        k.e(f"buffer_load_dword v{vd}, v{vo}, s[20:23], {off} offen sc1")
        k.e("s_sub_u32 s47, s47, 1")
        k.e("s_waitcnt vmcnt(0)")
        k.e("s_cmp_eq_u32 s47, 0")
        k.e(f"s_cbranch_scc1 {lab}x")
        k.e(f"v_cmp_ne_u32 vcc, 1, v{vd}")
        k.e(f"s_cbranch_vccz {lab}x")
        k.e(f"s_sleep {slp}")
        k.e(f"s_branch {lab}")
        k.label(lab + "x")

    C3 = int(opt.get('c3', 2))
    k.e("s_mov_b32 s3, s36")
    for p in range(4):
        k.e(f"buffer_load_dwordx4 {V(XP+4*p,4)}, v{VO}, s[56:59], s3 offen", tag='x')
        if p < 3: k.e("s_add_u32 s3, s3, 16384")
    k.e("s_lshl_b32 s3, s45, 10")
    k.e(f"s_add_u32 s3, s3, {WS_STATS}")
    k.e(f"v_lshlrev_b32 v{T1}, 3, v{VROW}")
    for p in range(4):
        k.e(f"buffer_load_dwordx2 {V(STT+2*p,2)}, v{T1}, s[20:23], s3 offen offset:{p*64} sc1", tag='x')
    k.e("v_and_b32 v10, 15, v0")
    k.e("v_lshlrev_b32 v10, 2, v10")
    k.e(f"s_add_u32 s95, s32, {N1}")
    k.e("s_lshl_b32 s95, s95, 16")
    k.e("s_add_u32 s95, s95, s94")
    k.e("s_xor_b32 s95, s95, 128")
    WE = int(opt.get('we', 2))
    for st in range(WE):
        for t, s in w_ops(st): k.e(s, tag=f'w{st}')
    k.e(f"buffer_load_dword v{T1}, v10, s[20:23], s38 offen sc1", tag='cp')
    for cb in range(4): k.e(f"v_add_u32 v{TB+cb}, 65536, v{TA+cb}")
    k.e("s_and_b32 s39, s93, 15")
    k.e("s_lshr_b32 s37, s93, 4")
    k.e("s_lshl_b32 s54, s37, 2")
    k.e("s_add_u32 s54, s54, s32")
    k.e("s_lshl_b32 s3, s54, 17")
    k.e("s_lshl_b32 s7, s39, 7")
    k.e("s_add_u32 s3, s3, s7")
    k.e("s_cmp_lt_u32 s93, 224")
    k.e(f"s_cselect_b32 s3, s3, {BIG}")
    k.e(f"v_add_u32 v{T2}, s3, v{VWB}")
    def wd_dma():
        n0 = len(k.vq)
        for q in range(2):
            k.e(f"s_add_u32 m0, s35, {q*4096}")
            for j in range(4):
                k.e(f"buffer_load_dwordx4 v{T2}, s[60:63], s{48+j} offen offset:{j*1024} lds", tag='wd')
            if q == 0: k.e(f"v_add_u32 v{T2}, 65536, v{T2}")
        del k.vq[n0:]
    k.e("s_mov_b32 s40, 0")
    k.wait_vm('x')
    GE = int(opt.get('ge', 1)); GM = int(opt.get('gm', 2))
    for p in range(GE): gates(k, p)
    k.wait_vm('cp')
    k.e(f"v_cmp_ne_u32 vcc, 1, v{T1}")
    k.e("s_cbranch_vccnz L_spinC")
    k.label("L_spinCr")
    def spinC():
        wd_dma()
        k.e("s_mov_b32 s40, 1")
        poll_loop("L_spinC_l", "s38", 10, T1, opt.get('slpc', 4))
    ool.append(("L_spinC", spinC, "L_spinCr"))
    SO = opt.get('stamp') == 'o'
    k.stamp(ST or SA or SO)
    for st in range(max(CDI, WDI)):
        if st < CDI:
            for n in ksteps_of(st):
                for t, s in c_ops(n): k.e(s, tag=f'c{n}')
        if WE <= st < WDI:
            for t, s in w_ops(st): k.e(s, tag=f'w{st}')
        if st == 1:
            for p in range(GE, GE + GM): gates(k, p)
    k.e("s_cmp_lg_u32 s40, 0")
    k.e("s_cbranch_scc1 L_nowd")
    wd_dma()
    k.label("L_nowd")
    if C3:
        k.e("s_cmp_lt_u32 s2, 128")
        k.e("s_cbranch_scc1 L_noc3")
        col3(0)
        k.vq.pop()
        k.label("L_noc3")

    b = Rec()
    b.e(f"v_mov_b32 v{T2}, 1")
    b.e("s_sub_u32 s65, s65, s33")
    b.e("s_lshl_b32 s65, s65, 2")
    b.e(f"v_mul_lo_u32 v{T1}, v0, s65")
    b.e("s_lshl_b32 s6, s33, 2")
    b.e(f"v_add_u32 v{T1}, s6, v{T1}")
    b.e(f"s_mov_b32 s6, {WS_HFL}")
    b.blk(["s_cmp_eq_u32 s32, 0", "s_cselect_b32 s6, s6, s64", f"s_cmp_ge_u32 s34, {opt.get('fx', 1)}", f"s_cselect_b32 s6, s6, {BIG}"])
    b.blk(["s_mov_b64 exec, 3", f"buffer_store_dword v{T2}, v{T1}, s[20:23], s6 offen sc1", "s_mov_b64 exec, -1"])
    b.e("s_lshl_b32 s40, s45, 2")
    b.e("s_add_u32 s40, s40, s32")
    b.blk(["s_lshr_b32 s3, s42, 5", "s_lshr_b32 s47, s43, 5", "s_cmp_eq_u32 s3, s40", "s_cselect_b32 s53, 1, 0",
           "s_cmp_eq_u32 s47, s40", "s_cselect_b32 s53, 1, s53", "s_mov_b32 s40, 0"])
    b.e("s_lshl_b32 s41, s46, 7")
    b.e(f"s_add_u32 s41, s41, {WS_YFL}")
    b.e("s_lshl_b32 s55, s46, 13")
    b.e(f"s_add_u32 s55, s55, {WS_YP}")
    srd_rec(b, 16, 66, 8 << 20, WS_XCH)
    b.e("s_lshl_b32 s24, s2, 2")
    b.e("s_add_u32 s24, s24, s32")
    b.e("s_lshl_b32 s25, s24, 13")
    b.e(f"s_xor_b32 s26, s25, {PX << 13}")
    b.e("s_lshl_b32 s24, s24, 2")
    b.e(f"s_xor_b32 s27, s24, {PX * 4}")
    b.e(f"s_add_u32 s24, s24, {WS_XFL}")
    b.e(f"s_add_u32 s27, s27, {WS_XFL}")
    F2 = float(opt.get('f2', 5)); FD = float(opt.get('f2d', 2.4))
    b0 = Rec()
    ev = [(F2 + j * FD, "s_cmp_lt_u32 s93, 224", f"L_f2{x}") for j, x in enumerate("AB")]
    if C3: ev.append((float(opt.get('c3t', 9.5)), "s_cmp_ge_u32 s2, 128", "L_c31")); ool.append(("L_c31", lambda: col3(1), "L_c31r"))
    for t_, c_, l_ in sorted(ev):
        b0.at(t_); b0.blk([c_, f"s_cbranch_scc1 {l_}", l_ + "r:"])
    H0 = 74
    WN = int(opt.get('f2w', 16))
    for cb in range(4): b.e(f"v_add_u32 v{106+cb}, s35, v{TA+cb}")
    b.e(f"v_and_b32 v2, 1, v{G}")
    b.e("v_lshlrev_b32 v2, 8, v2")
    b.e("v_and_b32 v3, 15, v0")
    b.e("v_lshl_add_u32 v2, v3, 3, v2")
    b.e("v_add_u32 v2, s35, v2")
    b.e("v_and_b32 v4, 1, v0")
    b.e("v_lshlrev_b32 v4, 8, v4")
    b.e("v_add_u32 v4, s35, v4")
    b.e(f"v_lshl_add_u32 v3, v{G}, 3, v4")
    b.e(f"v_lshl_add_u32 v4, v{G}, 4, v4")
    b.e("v_lshlrev_b32 v5, 3, v0")
    b.e(f"v_add_u32 v6, {SPARE + 2048}, v5")
    b.e("v_mov_b32 v7, 1")
    b.e("s_lshl_b32 s4, s39, 4")
    b.e("s_add_u32 s4, s4, s37")
    b.e("s_lshl_b32 s4, s4, 9")
    b.e(f"s_add_u32 s4, s4, {WS_YP}")
    b.e("s_lshl_b32 s6, s39, 5")
    b.e("s_add_u32 s6, s6, s37")
    b.e("s_lshl_b32 s6, s6, 2")
    b.e(f"s_add_u32 s6, s6, {WS_YFL}")
    b.blk(["s_cmp_eq_u32 s32, 0", "s_cselect_b32 s4, s4, s64", "s_cselect_b32 s6, s6, s64"])
    b.blk(["s_cmp_lt_u32 s93, 224", f"s_cselect_b32 s4, s4, {BIG}", f"s_cselect_b32 s6, s6, {BIG}"])
    b.at(F2 + 2 * FD)
    b.e(f"s_waitcnt vmcnt({WN})")
    b.items.append(('fn', lambda: k.use('wd') is None, None))
    for j in range(1, 8):
        for r in range(4): b.e(f"v_add_f32 v{H0+r}, v{H0+r}, v{H0+4*j+r}")
    for cb in range(4):
        for rd in range(2):
            b.e(f"ds_read_b64_tr_b16 {V(90 + 4*cb + 2*rd, 2)}, v{106+cb} offset:{rd*2048}", tag='d0')
    for r in range(0, 4, 2): rbf2(b, H0 + r, H0 + r + 1, 8)
    for r in range(4): b.e(f"v_mov_b32 v{78+r}, v{H0+r}")
    for r in range(4): b.e(f"v_permlane32_swap_b32 v{78+r}, v{H0+r}")
    silu_n(b, [78 + r for r in range(4)], [82 + r for r in range(4)])
    for r in range(0, 4, 2): rbf2(b, 78 + r, 79 + r, 8)
    for r in range(4): b.e(f"v_mul_f32 v{H0+r}, v{H0+r}, v{78+r}")
    for r in range(2): b.e(f"v_cvt_pk_bf16_f32 v{8+r}, v{H0+2*r}, v{H0+2*r+1}")
    b.e("ds_write_b64 v2, v[8:9]")
    for q in range(2):
        for rd in range(2):
            b.e(f"ds_read_b64 {V(H0 + 4*q + 2*rd, 2)}, v3 offset:{q*64 + rd*32}", tag='hf')
    b.items.append(('skip', 2, None))
    b.wait_ds('hf')
    for half in range(2):
        for c2 in range(2):
            cb = 2 * half + c2
            b.blk([mfma(V(82 + 4 * c2, 4), V(90 + 4 * cb, 4), V(H0, 4), "0")])
        for c2 in range(2):
            cb = 2 * half + c2
            for rd in range(2):
                b.e(f"ds_read_b64_tr_b16 {V(90 + 4*cb + 2*rd, 2)}, v{106+cb} offset:{4096 + rd*2048}", tag=f'd1{half}')
        b.items.append(('skip', 2, None))
        b.wait_ds(f'd1{half}')
        for c2 in range(2):
            b.blk([mfma(V(82 + 4 * c2, 4), V(90 + 4 * (2 * half + c2), 4), V(H0 + 4, 4), V(82 + 4 * c2, 4))])
        b.items.append(('skip', 1, None))
        for c2 in range(2):
            b.e(f"ds_write_b128 v4, {V(82 + 4*c2, 4)} offset:{2048 + (2*half + c2)*64}", tag='yw')
        b.items.append(('skip', 2, None))
        b.wait_ds('yw')
    b.items.append(('nextbar', None, None))
    for w in range(4): b.e(f"ds_read_b64 {V(74+2*w,2)}, v6 offset:{w*8192}", tag='yr')
    b.items.append(('skip', 2, None))
    b.wait_ds('yr')
    for r in range(2):
        b.e(f"v_add_f32 v{74+r}, v{74+r}, v{76+r}"); b.e(f"v_add_f32 v{78+r}, v{78+r}, v{80+r}")
    for r in range(2): b.e(f"v_add_f32 v{74+r}, v{74+r}, v{78+r}")
    b.e("buffer_store_dwordx2 v[74:75], v5, s[20:23], s4 offen sc1", tag='yp')
    b.items.append(('log', 'y partial stored', None))
    b.items.append(('rel', float(opt.get('f2e', 2.0)), None))
    b.wait_vm('yp')
    b.blk(["s_mov_b64 exec, 1", f"buffer_store_dword v7, v{VZ}, s[20:23], s6 offen sc1", "s_mov_b64 exec, -1"])
    b.items.append(('log', 'y flag', None))
    for p in range(GE + GM, 4): gates(b, p)
    b.items.append(('log', 'gates done', None))
    PS = float(opt.get('k3_poll', 25.5))
    b.at(PS + 4.0)
    b.blk(["s_cmp_lg_u32 s40, 0", "s_cbranch_scc1 L_yC", "L_yCr:"])
    b0.at(PS)
    b0.blk(["s_cmp_lg_u32 s53, 0", "s_cbranch_scc1 L_yA", "L_yAr:"])
    b0.at(PS + 2.2)
    b0.blk(["s_cmp_lg_u32 s53, 0", "s_cbranch_scc1 L_yB", "L_yBr:"])
    b0.at(SP + 0.15)
    b0.e(f"v_add_u32 v10, 4096, v{VC}")
    for j in range(8):
        b0.e(f"buffer_store_dwordx4 {V(ACC(1, 0, 0) + 4*j, 4)}, v{VC if j < 4 else 10}, s[16:19], s26 offen offset:{(j & 3)*1024} sc1", tag='xs')
    b0.e("v_mov_b32 v16, 1")
    b0.at(SP + float(opt.get('xf', 3.2)))
    b0.wait_vm('xs')
    b0.blk(["s_mov_b64 exec, 1", f"buffer_store_dword v16, v{VZ}, s[20:23], s27 offen sc1", "s_mov_b64 exec, -1"])
    b0.at(SP + float(opt.get('xpl', 4.6)))
    b0.e(f"buffer_load_dword v17, v{VZ}, s[20:23], s24 offen sc1", tag='xp')
    b0.at(SP + float(opt.get('xck', 5.8)))
    b0.wait_vm('xp')
    b0.blk(["v_cmp_ne_u32 vcc, 1, v17", "s_mov_b32 s33, 0", "s_cbranch_vccnz L_xno"] +
           [(f"buffer_load_dwordx4 {V(XI + 4*j, 4)}, v{VC if j < 4 else 10}, s[16:19], s25 offen offset:{(j & 3)*1024} sc1", '!') for j in range(8)] +
           ["s_mov_b32 s33, 1", "L_xno:"])

    grp_ = []
    for it in b0.items:
        if it[0] == 'at': grp_.append([])
        grp_[-1].append(it)
    b0.items = [it for g_ in sorted(grp_, key=lambda x: x[0][1]) for it in g_]
    k.wait_vm('w0')
    k.use('hps')
    k.e("s_barrier")
    for cb in range(2):
        for u in range(4):
            for s in wread(u)[cb]: k.e(s, tag=f'f0_{cb}')
    BS = int(opt.get('k3_bs', 3))
    wnext = WDI
    for st in range(NS):
        k.stamp(SO and st % 4 == 0)
        vm = []
        for _ in range(int(opt.get('wq', 3)) if st >= SP - CDI else 1):
            if wnext < NS and wnext <= st + 6:
                vm += [(t, s, f'w{wnext}') for t, s in w_ops(wnext)]; wnext += 1
        for n in ksteps_of(st + CDI): vm += [(t, s, f'c{n}') for t, s in c_ops(n)]
        g = {}; gt = {}; scal = {}
        for cb in range(4):
            s2, c2 = (st, cb + 2) if cb < 2 else (st + 1, cb - 2)
            if s2 < NS:
                for q in range(4):
                    g[8 * cb + 2 * q] = wread(4 * s2 + q)[c2]; gt[8 * cb + 2 * q] = f'f{s2}_{c2}'
        free = [x for x in range(32) if x not in g]
        ng = sum(1 for x in vm if x[0] == 'g')
        pick = [free[(2 * j + 1) * len(free) // (2 * ng)] for j in range(ng)] if ng else []
        j = 0
        for t, s, tg in vm:
            if t == 'g': g[pick[j]] = [s]; gt[pick[j]] = tg; j += 1
            elif t == 's': scal.setdefault(pick[j] - 1, []).append(s)
            else: g[pick[j - 1]].append(s)
        seq = [(4 * st + q, cb, rb) for cb in range(4) for rb in range(2) for q in range(4)]
        for m, (u, cb, rb) in enumerate(seq):
            if True:
                if True:
                    n, side = units[u]
                    if m == 0: k.wait_vm(f'c{units[u + 3][0]}')
                    k.wait_ds(f'f{st}_{cb}')
                    d = V(ACC(side, rb, cb), 4)
                    k.e(mfma(d, V(WF(u, cb), 4), A(CF(n, rb), 4), "0" if n == 0 else d))
                    if m == 12 and st + 1 < NS: k.wait_vm(f'w{st+1}')
                    if m == 14 and st + 1 < NS:
                        k.e("s_barrier")
                        if b.items and b.items[0][0] == 'nextbar': b.items.pop(0)
                    if m % 8 == 4 and m != 12 or m == 10:
                        k.wait_ds(f'f{st}_{cb+1}' if cb < 3 else f'f{st+1}_0')
                    if m == 30 and st + 1 < NS: k.wait_vm(f'c{units[4 * st + 7][0]}')
                    for s in scal.get(m, []): k.e(s)
                    if m in g:
                        for s in g[m]: k.e(s, tag=gt.get(m))
                        if int(opt.get('k3_ds', 1)) and st < SP - CDI and g[m][0].startswith('ds_') and b.items and b.items[0][0] == 'i' and b.cost(b.items[0]) == 1 \
                                and b.items[0][1].startswith('v_'):
                            b.fill(k, st + m / 32.0, int(opt.get('k3_ds', 1)))
                    else:
                        nl = k.ni
                        b0.fill(k, st + m / 32.0, 2)
                        if k.ni == nl: b.fill(k, st + m / 32.0, BS if st < SP - CDI else 2)
    print("phase4 items left", len(b.items), len(b0.items))
    b0.drain(k); b.drain(k)
    k.stamp(ST or SO)
    k.e("s_cmp_lg_u32 s53, s40")
    k.e("s_cbranch_scc1 L_ysl")
    k.label("L_yslr")
    k.e(f"v_and_b32 v{T1}, 15, v0")
    k.e(f"v_lshlrev_b32 v74, 8, v{T1}")
    k.e("v_add_u32 v74, s35, v74")
    k.e(f"v_xor_b32 v{T1}, v{T1}, v{G}")
    k.e(f"v_lshl_add_u32 v74, v{T1}, 4, v74")
    for cb in range(1, 4): k.e(f"v_xor_b32 v{74+cb}, {64*cb}, v74")
    k.e(f"v_lshlrev_b32 v{T2}, 1, v{L7}")
    k.e(f"v_xor_b32 v{T1}, v{L3}, v{T2}")
    k.e(f"v_lshlrev_b32 v12, 8, v{L3}")
    k.e("v_add_u32 v12, s35, v12")
    k.e(f"v_lshl_add_u32 v12, v{T1}, 4, v12")
    k.e("v_xor_b32 v13, 16, v12")
    k.e("v_xor_b32 v14, 128, v12")
    k.e("v_xor_b32 v15, 144, v12")
    k.e("s_cmp_eq_u32 s33, 0")
    k.e("s_cbranch_scc1 L_spinX")
    k.label("L_spinXr")
    def spinX():
        poll_loop("L_spinXl", "s24", VZ, 17, 1)
        for j in range(8):
            k.e(f"buffer_load_dwordx4 {V(XI + 4*j, 4)}, v{VC if j < 4 else 10}, s[16:19], s25 offen offset:{(j & 3)*1024} sc1")
    ool.append(("L_spinX", spinX, "L_spinXr"))
    XU = 80
    for p in range(4):
        for d in range(4):
            k.e(f"v_lshlrev_b32 v{XU+8*p+2*d}, 16, v{XP+4*p+d}")
            k.e(f"v_and_b32 v{XU+8*p+2*d+1}, 0xffff0000, v{XP+4*p+d}")
    k.e("s_waitcnt vmcnt(0)")
    for j in range(8):
        a = ACC(0, 0, 0) + 4 * j
        for e_ in (0, 2): k.e(f"v_pk_add_f32 {V(a+e_,2)}, {V(a+e_,2)}, {V(XI+4*j+e_,2)}")
        k.e(f"ds_write_b128 v{74 + (j & 3)}, {V(a,4)} offset:{(j >> 2)*4096}")
    for p in range(4):
        for h in range(2):
            k.e(f"ds_read_b128 {V(192 + 8*p + 4*h, 4)}, v{12 + h + 2*(p & 1)} offset:{p*2048}", tag=f'r{p}')
    for p in range(4):
        b_ = 192 + 8 * p; t_ = 224 + 4 * p
        k.wait_ds(f'r{p}')
        for d in range(4): rbf2(k, b_ + 2*d, b_ + 2*d + 1, t_ + d)
        for e_ in range(0, 8, 2): k.e(f"v_pk_mul_f32 {V(b_+e_,2)}, {V(b_+e_,2)}, {V(GT+8*p+e_,2)}")
        for d in range(4): rbf2(k, b_ + 2*d, b_ + 2*d + 1, t_ + d)
        for e_ in range(0, 8, 2): k.e(f"v_pk_add_f32 {V(b_+e_,2)}, {V(b_+e_,2)}, {V(XU+8*p+e_,2)}")
        for d in range(4): k.e(f"v_cvt_pk_bf16_f32 v{t_+d}, v{b_+2*d}, v{b_+2*d+1}")
        k.e(f"buffer_store_dwordx4 {V(t_,4)}, v{VO}, s[68:71], s36 offen{opt.get('out_st', ' sc1')}")
        if p < 3: k.e("s_add_u32 s36, s36, 16384")
    k.stamp(ST or SA)

    def f2A():
        k.e("s_lshr_b32 s5, s54, 1")
        k.e("s_lshl_b32 s5, s5, 5")
        k.e(f"s_add_u32 s5, s5, {WS_HFL}")
        k.e(f"buffer_load_dword v{T2}, v{VF}, s[20:23], s5 offen sc1")
    def f2B():
        k.e(f"s_waitcnt vmcnt({WN})")
        k.e(f"v_cmp_ne_u32 vcc, 1, v{T2}")
        k.e("s_cbranch_vccz L_f2lx")
        poll_loop("L_f2l", "s5", VF, T2)
        k.e("s_lshl_b32 s3, s54, 8")
        k.e(f"s_add_u32 s3, s3, {WS_HP}")
        k.e(f"v_mul_u32_u24 v{T1}, 14336, v{G}")
        k.e(f"v_and_b32 v{T2}, 15, v0")
        k.e(f"v_lshl_add_u32 v{T1}, v{T2}, 4, v{T1}")
        for j in range(8):
            k.e(f"buffer_load_dwordx4 {V(H0 + 4*j, 4)}, v{T1}, s[20:23], s3 offen sc1")
            if j < 7: k.e(f"s_add_u32 s3, s3, {4*14336}")
    for nm, fn in (("A", f2A), ("B", f2B)): ool.append((f"L_f2{nm}", fn, f"L_f2{nm}r"))
    YR = lambda t: 76 + 18 * t
    def own_tok(t, skip):
        k.e("s_lshl_b32 s7, s45, 2")
        k.e("s_add_u32 s7, s7, s32")
        k.e(f"s_lshr_b32 s3, s{42+t}, 5")
        k.e("s_cmp_lg_u32 s3, s7")
        k.e(f"s_cbranch_scc1 {skip}")
    def yloads():
        k.e(f"v_lshlrev_b32 v{T1}, 2, v0")
        k.e(f"v_lshlrev_b32 v{T2}, 1, v0")
        for t in range(2):
            L = k.newlabel("yl")
            own_tok(t, L)
            k.e(f"s_add_u32 s3, s55, {t*256}")
            k.e("s_add_u32 s7, s3, 4096")
            for j in range(14):
                k.e(f"buffer_load_dword v{YR(t)+j}, v{T1}, s[20:23], s{3 if j < 8 else 7} offen offset:{(j & 7)*512} sc1")
            k.e(f"s_lshl_b32 s3, s{42+t}, 11")
            k.e("s_lshl_b32 s7, s46, 7")
            k.e("s_add_u32 s3, s3, s7")
            k.e(f"buffer_load_ushort v{YR(t)+14}, v{T2}, s[56:59], s3 offen")
            k.e(f"s_lshl_b32 s3, s{42+t}, 3")
            k.e(f"s_add_u32 s3, s3, {WS_STATS}")
            k.e(f"buffer_load_dwordx2 {V(YR(t)+16,2)}, v{VZ}, s[20:23], s3 offen sc1")
            k.label(L)
    def rb1(r):
        k.e(f"v_cvt_pk_bf16_f32 v{r}, v{r}, v{r}")
        k.e(f"v_lshlrev_b32 v{r}, 16, v{r}")
    def selblock():
        for t in range(2):
            L = k.newlabel("ys")
            y, x = YR(t), YR(t) + 14
            own_tok(t, L)
            for j in range(2, 14, 2): k.e(f"v_pk_add_f32 {V(y,2)}, {V(y,2)}, {V(y+j,2)}")
            k.e(f"v_add_f32 v{y}, v{y}, v{y+1}")
            k.e(f"v_lshlrev_b32 v{x}, 16, v{x}")
            k.e(f"v_sub_f32 v{x}, v{x}, v{x+2}")
            rb1(y); rb1(x)
            k.e(f"v_mul_f32 v{y}, s{100+t}, v{y}")
            k.e(f"v_mul_f32 v{x}, v{x}, v{x+3}")
            rb1(y); rb1(x)
            k.e(f"v_add_f32 v{x}, v{x}, v{y}")
            rb1(x)
            silu_n(k, [x], [y])
            rb1(x)
            k.e(f"v_lshlrev_b32 v{T1}, 2, v0")
            k.e(f"v_add_u32 v{T1}, s35, v{T1}")
            k.e(f"v_lshlrev_b32 v{T2}, 5, v{L7}")
            k.e(f"v_add_u32 v{T2}, s35, v{T2}")
            k.e("s_waitcnt lgkmcnt(0)")
            k.e(f"ds_write_b32 v{T1}, v{x}")
            k.e(f"s_and_b32 s3, s{42+t}, 7")
            k.e("s_lshl_b32 s3, s3, 3")
            k.e("s_lshl_b64 s[4:5], 0xff, s3")
            k.e(f"s_bfe_u32 s3, s{42+t}, 0x20003")
            k.e("s_mov_b64 exec, s[4:5]")
            for p in range(4):
                L2 = k.newlabel("yp")
                k.e(f"s_cmp_lg_u32 s3, {p}")
                k.e(f"s_cbranch_scc1 {L2}")
                k.e(f"ds_read_b64 {V(GT+8*p,2)}, v{T2}")
                k.e(f"ds_read_b64 {V(GT+8*p+2,2)}, v{T2} offset:8")
                k.e(f"ds_read_b64 {V(GT+8*p+4,2)}, v{T2} offset:16")
                k.e(f"ds_read_b64 {V(GT+8*p+6,2)}, v{T2} offset:24")
                k.label(L2)
            k.e("s_mov_b64 exec, -1")
            k.e("s_waitcnt lgkmcnt(0)")
            k.label(L)
    def yA():
        k.e(f"v_min_u32 v{VF}, 13, v0")
        k.e(f"v_lshlrev_b32 v{VF}, 2, v{VF}")
        k.e(f"buffer_load_dword v74, v{VF}, s[20:23], s41 offen sc1")
    def yB():
        k.e(f"s_waitcnt vmcnt({opt.get('ybw', 1)})")
        k.e("v_cmp_ne_u32 vcc, 1, v74")
        k.e("s_cbranch_vccnz L_yBr")
        k.e("s_mov_b32 s40, 1")
        yloads()
    def yC():
        k.e(f"s_waitcnt vmcnt({opt.get('ycw', 1)})")
        selblock()
    def ysl():
        poll_loop("L_ysll", "s41", VF, T1)
        yloads()
        k.e("s_waitcnt vmcnt(0)")
        selblock()
    ool.append(("L_yA", yA, "L_yAr")); ool.append(("L_yB", yB, "L_yBr")); ool.append(("L_yC", yC, "L_yCr")); ool.append(("L_ysl", ysl, "L_yslr"))
```

```python
from fw import *
from layout import *
import p4, p4b, p4c
KNAME = 'recurrent_scan__compressed_kv_cla__moe_arch_mod__prompt_kernel'

K12_LDS = 163840
QSCALE = 0x3e0293ee
BIG = 0x7ff00000

def gen_k12(opt):
    k = Asm(KNAME)
    k.short = "f"
    P4 = {'0': p4, '1': p4b, '2': p4c}[opt.get('s2', '2')]
    p4_ptr_loads, p4_setup, phase4 = P4.p4_ptr_loads, P4.p4_setup, P4.phase4
    ST = opt.get('stamp') == '1'
    S1 = opt.get('stamp') == 'p1'
    S2 = opt.get('stamp') == 'p2'
    SA = opt.get('stamp') == 'a'
    S0 = opt.get('stamp') == 'p0'
    w_ld, a_ld, x_ld = opt.get('w_ld', ''), opt.get('a_ld', ''), opt.get('x_ld', '')
    wq_ld, kv_ld, ffn_ld = opt.get('wq_ld', ''), opt.get('kv_ld', ' sc1'), opt.get('ffn_ld', '')
    MAP = int(opt.get('map', 4))
    WOT = opt.get('wot', '0') == '1'
    TK = opt.get('tk', '0') == '1'
    VOA, VOW, AD, PFO = 2, 6, 10, 47
    AA = [[10, 11], [12, 13]]
    WA = [list(range(16, 24)), [14, 15] + list(range(24, 30))]
    FA = lambda it, ks: 224 + (it % 4) * 8 + 4 * ks
    FW = lambda buf, jd, ks: 64 * buf + 8 * jd + 4 * ks
    def frag_of(isV, it, jd):
        return ((it >> 1) * 8 + jd, it & 1) if isV else (it * 4 + (jd >> 1), jd & 1)
    SRC = lambda n: ('v', 48 + 8 * n) if n < 26 else ('a', 128 + 8 * (n - 26))
    def acc(isV, it, jd):
        n, h = frag_of(isV, it, jd)
        p, r = SRC(n)
        return R(p, r + 4 * h, 4)
    PK = lambda n: 24 + 4 * (n if n < 26 else n - 26)
    VX, VY, VDMA, VRA, VRB, ORR, T0 = 2, 3, 4, 5, 6, 7, 1
    WV, XV, TA = 8, 10, 16
    ET = 8
    ONES, NINF = 16, 20
    NEGM, LS, PB, SB = 32, 48, 64, 128
    P = lambda par, qb, ks: PB + 32 * par + (qb * 2 + ks) * 4
    Sr = lambda par, qb, kb: SB + 64 * par + (qb * 4 + kb) * 4
    O = lambda qb, db: (qb * 8 + db) * 4
    Q = lambda qb, s: 128 + (qb * 4 + s) * 4
    FR = lambda grp, j: 192 + 16 * grp + 4 * j
    QA = lambda db, qb: 128 + (qb * 8 + db) * 4
    XR = lambda kk, qb: ((kk % 8) * 4 + qb) * 4
    P2C = opt.get('p2ch', '0') == '1'
    WF = lambda ks, db: 192 + db * 8 + ks * 4 if P2C else 192 + ks * 32 + db * 4

    k.e("s_cmp_ge_u32 s2, 256")
    k.e("s_cbranch_scc1 L_k2_end")
    k.stamp(ST or S0)
    k.e("s_load_dwordx4 s[4:7], s[0:1], 0")
    k.e("s_load_dwordx2 s[44:45], s[0:1], 56")
    k.e("s_load_dwordx4 s[40:43], s[0:1], 24")
    k.e("s_load_dwordx4 s[64:67], s[0:1], 96")
    k.e("v_lshrrev_b32 v1, 6, v0")
    k.e("v_and_b32 v0, 63, v0")
    k.e("v_readfirstlane_b32 s32, v1")
    def emit(lst, o=None):
        for x in lst:
            if x.endswith(':'): k.label(x[:-1])
            else: k.e(x, tag='cpf')
    CPF = opt.get('cpf', '12346')
    if '1' in CPF: emit(code_prefetch(KNAME, "L_k2_fin", 32, 68, 120, 124))
    k.e("v_lshrrev_b32 v33, 5, v0")
    k.e("v_and_b32 v31, 31, v0")
    k.e("v_lshlrev_b32 v36, 4, v31")
    k.e("v_lshl_add_u32 v35, v33, 11, v36")
    k.e("s_lshl_b32 s36, s2, 14")
    k.e("s_lshl_b32 s37, s32, 12")
    k.e("s_add_u32 s36, s36, s37")
    k.e("s_mov_b32 s18, 4194304")
    k.e("s_mov_b32 s19, 0x20000")
    k.e("s_bfe_u32 s33, s2, 0x30003")
    k.e("s_lshr_b32 s35, s2, 7")
    k.e("s_bfe_u32 s3, s2, 0x10006")
    k.e("s_and_b32 s34, s2, 7")
    k.e("s_lshl_b32 s34, s34, 1")
    k.e("s_add_u32 s34, s34, s3")
    k.e("s_waitcnt lgkmcnt(0)")
    k.stamp(S0)
    k.e("s_mov_b32 s16, s4")
    k.e("s_and_b32 s17, s5, 0xffff")
    XP, WR, XF = 48, 64, 80
    for i in range(4):
        k.e(f"buffer_load_dwordx4 {V(XP+4*i,4)}, v35, s[16:19], s36 offen offset:{i*512}{x_ld}", tag='x')
    k.e("s_cmp_eq_u32 s35, 0")
    k.e("s_cselect_b32 s40, s40, s42")
    k.e("s_cselect_b32 s41, s41, s43")
    k.e("s_lshl_b32 s3, s34, 9")
    k.srd(12, 40, 0, "s3")
    k.e("s_sub_u32 s14, 4194304, s3")
    k.e("s_lshl_b32 s3, s33, 18")
    k.srd(8, 6, 262144, "s3")
    KX = int(opt.get('kx', 7))
    k.e(f"s_and_b32 s58, s2, {KX}")
    def dma_ops(buf):
        ops = []
        for (base, vo, so, srd, fl) in ((57, VOW, 52, 12, w_ld), (56, VOA, 48, 8, a_ld)):
            for hi in range(2):
                ops.append(('s', f"s_add_u32 m0, s{base}, {buf*65536 + hi*4096}"))
                for lo in range(4):
                    ops.append(('g', f"buffer_load_dwordx4 v{vo + (lo&1) + 2*hi}, {S(srd,4)}, s{so+lo} offen offset:{lo*1024}{fl} lds"))
        return ops
    def adv_ops(j):
        x = j ^ (j + 1)
        return [f"v_xor_b32 v{VOW+q}, {x << 19}, v{VOW+q}" for q in range(4)] + [f"v_xor_b32 v{VOA+q}, {x << 7}, v{VOA+q}" for q in range(4)]
    PF0 = int(opt.get('pf0', 2))
    pfc = [PF0]
    def pf_ops():
        j = pfc[0]; pfc[0] += 1
        return [f"buffer_load_dword v1, v{PFO}, s[60:63], 0 offen{opt.get('pf_ld', '')}",
                f"s_mul_i32 vcc_lo, s59, {(j ^ (j + 1)) & 7}", f"v_xor_b32 v{PFO}, vcc_lo, v{PFO}"]
    def setup_P():
        k.e("s_cmp_lt_u32 s32, 2")
        for j in range(3): k.e(f"s_cselect_b32 s{60+j}, s{8+j}, s{12+j}")
        k.e("s_mov_b32 s63, 0x20000")
        k.e(f"s_mov_b32 s59, {64*8192}")
        k.e("s_cselect_b32 s59, 128, s59")
        k.e("s_cselect_b64 vcc, -1, 0")
        k.e("s_cselect_b32 s38, 32, 16")
        k.e("s_lshr_b32 s3, s2, 6")
        k.e("s_cmp_lt_u32 s32, 2")
        k.e("s_cselect_b32 s3, s3, s33")
        k.e("s_lshl_b32 s3, s3, 1")
        k.e("s_and_b32 s39, s32, 1")
        k.e("s_add_u32 s3, s3, s39")
        k.e("s_lshl_b32 s3, s3, 15")
        k.e(f"s_xor_b32 s39, s58, {PF0}")
        k.e("s_mul_i32 s39, s39, s59")
        k.e("s_add_u32 s3, s3, s39")
        k.e("v_lshlrev_b32 v37, 10, v0")
        k.e("v_lshrrev_b32 v38, 2, v0")
        k.e("v_lshlrev_b32 v38, 13, v38")
        k.e("v_and_b32 v39, 3, v0")
        k.e("v_lshl_add_u32 v38, v39, 7, v38")
        k.e(f"v_cndmask_b32 v{PFO}, v38, v37, vcc")
        k.e(f"v_add_u32 v{PFO}, s3, v{PFO}")
        k.e("v_cmp_gt_u32 vcc, s38, v0")
        k.e(f"v_mov_b32 v37, {BIG}")
        k.e(f"v_cndmask_b32 v{PFO}, v37, v{PFO}, vcc")
    def setup_W():
        for j in range(4): k.e(f"s_mov_b32 s{52+j}, {j*15360}")
        k.e("s_lshl_b32 s57, s32, 13")
        k.e("s_add_u32 s56, s57, 32768")
        k.e("s_lshl_b32 s3, s58, 2")
        k.e("s_add_u32 s3, s3, s32")
        k.e("s_lshl_b32 s3, s3, 4")
        k.e("v_add_u32 v30, s3, v33")
        k.e("v_lshlrev_b32 v30, 13, v30")
        k.e("v_lshlrev_b32 v34, 5, v33")
        k.e("v_xor_b32 v34, v34, v36")
        k.e(f"v_add_u32 v{VOW}, v34, v30")
        k.e(f"v_xor_b32 v{VOW+1}, 64, v{VOW}")
        k.e(f"v_xor_b32 v{VOW+2}, {8*8192 + 128}, v{VOW}")
        k.e(f"v_xor_b32 v{VOW+3}, {8*8192 + 192}, v{VOW}")
    def setup_A():
        for j in range(4): k.e(f"s_mov_b32 s{48+j}, {j*7168}")
        k.e("v_lshrrev_b32 v30, 3, v0")
        k.e("v_lshlrev_b32 v30, 10, v30")
        k.e("s_lshl_b32 s3, s32, 16")
        k.e("s_lshl_b32 s39, s58, 7")
        k.e("s_add_u32 s3, s3, s39")
        k.e("v_and_b32 v31, 7, v0")
        k.e("v_lshrrev_b32 v32, 4, v0")
        k.e("v_xor_b32 v31, v31, v32")
        k.e("v_lshl_add_u32 v30, v31, 4, v30")
        k.e(f"v_add_u32 v{VOA}, s3, v30")
        k.e(f"v_xor_b32 v{VOA+1}, 64, v{VOA}")
        k.e(f"v_xor_b32 v{VOA+2}, 32768, v{VOA}")
        k.e(f"v_xor_b32 v{VOA+3}, {32768 + 64}, v{VOA}")
    def setup_D():
        k.srd(20, 66, 8 << 20)
        k.srd(24, 66, 32 * KV_HEAD, WS_KV)
        k.e("v_lshrrev_b32 v32, 4, v0")
        k.e("v_and_b32 v30, 15, v0")
        k.e("s_lshr_b32 s3, s32, 1")
        k.e("s_lshl_b32 s3, s3, 14")
        k.e("s_add_u32 s3, s3, 32768")
        k.e("v_lshlrev_b32 v31, 7, v30")
        k.e("v_add_u32 v31, s3, v31")
        k.e("v_lshrrev_b32 v34, 1, v30")
        k.e("v_xor_b32 v34, v34, v32")
        k.e(f"v_lshl_add_u32 v{AA[0][0]}, v34, 4, v31")
        k.e(f"v_xor_b32 v{AA[0][1]}, 64, v{AA[0][0]}")
        k.e("v_lshrrev_b32 v30, 2, v30")
        k.e("v_lshl_add_u32 v31, v32, 3, v30")
        k.e("v_lshlrev_b32 v31, 9, v31")
        k.e("v_and_b32 v34, 3, v0")
        k.e("v_lshl_add_u32 v31, v34, 3, v31")
        k.e("s_and_b32 s3, s32, 1")
        k.e("s_lshl_b32 s3, s3, 8")
        k.e("v_add_u32 v31, s3, v31")
        k.e("v_and_b32 v34, 1, v32")
        k.e("v_lshl_add_u32 v30, v34, 2, v30")
        k.e(f"v_lshl_add_u32 v{WA[0][0]}, v30, 5, v31")
        for jj in range(1, 8): k.e(f"v_xor_b32 v{WA[0][jj]}, {jj*32}, v{WA[0][0]}")
        for x0, x1 in zip(AA[0] + WA[0], AA[1] + WA[1]): k.e(f"v_add_u32 v{x1}, 65536, v{x0}")
    def act(seq):
        for x in seq.split(','):
            if not x: continue
            if x in 'PWAD': {'P': setup_P, 'W': setup_W, 'A': setup_A, 'D': setup_D}[x]()
            elif x == 'p':
                for s in pf_ops(): k.e(s, tag='pf')
            elif x == 'r':
                k.srd(28, 44, 2048)
                for i in range(4):
                    k.e(f"buffer_load_dwordx4 {V(WR+4*i,4)}, v36, s[28:31], 0 offen offset:{i*512}", tag='wr')
            else:
                st = int(x[1]); h = 0 if x[0] == 'w' else 1
                for t, s in dma_ops(st)[10*h:10*h+10]: k.e(s, tag=x + 'd')
                for s in adv_ops(st)[4*h:4*h+4]: k.e(s)
    PRO = opt.get('pro', 'W,w0,A,P,D,r/a0///').split('/')
    act(PRO[0])
    k.stamp(S0)
    def sum32(v, t):
        for m in ["quad_perm:[1,0,3,2]", "quad_perm:[2,3,0,1]", "row_half_mirror", "row_mirror"]:
            k.e(f"v_add_f32_dpp v{v}, v{v}, v{v} {m} row_mask:0xf bank_mask:0xf")
        k.e(f"v_mov_b32 v{t}, v{v}")
        k.e(f"v_permlane16_swap_b32 v{t}, v{v}")
        k.e(f"v_add_f32 v{v}, v{v}, v{t}")
    k.wait_vm('x')
    k.stamp(S0)
    for i in range(16):
        k.e(f"v_lshlrev_b32 v{XF+2*i}, 16, v{XP+i}")
        k.e(f"v_and_b32 v{XF+2*i+1}, 0xffff0000, v{XP+i}")
    k.e(f"v_pk_add_f32 v[40:41], {V(XF,2)}, {V(XF+2,2)}")
    k.e(f"v_pk_add_f32 v[42:43], {V(XF+4,2)}, {V(XF+6,2)}")
    for i in range(4, 16):
        d = 40 + 2 * (i & 1)
        k.e(f"v_pk_add_f32 {V(d,2)}, {V(d,2)}, {V(XF+2*i,2)}")
    k.e("v_pk_add_f32 v[40:41], v[40:41], v[42:43]")
    k.e("v_add_f32 v38, v40, v41")
    sum32(38, 37)
    k.stamp(S0)
    act(PRO[1])
    k.e("v_mul_f32 v38, 0xba800000, v38")
    k.e("v_mov_b32 v39, v38")
    T = 112
    for i in range(16):
        k.e(f"v_pk_add_f32 {V(T+2*(i&3),2)}, {V(XF+2*i,2)}, v[38:39]")
        d = 40 + 2 * (i & 1)
        if i < 2: k.e(f"v_pk_mul_f32 {V(d,2)}, {V(T+2*(i&3),2)}, {V(T+2*(i&3),2)}")
        else: k.e(f"v_pk_fma_f32 {V(d,2)}, {V(T+2*(i&3),2)}, {V(T+2*(i&3),2)}, {V(d,2)}")
    k.e("v_pk_add_f32 v[40:41], v[40:41], v[42:43]")
    k.e("v_add_f32 v40, v40, v41")
    sum32(40, 37)
    act(PRO[2])
    k.stamp(S0)
    k.e("v_mul_f32 v40, 0x3a800000, v40")
    k.e("v_cvt_pk_bf16_f32 v44, v38, v40")
    k.e("v_lshlrev_b32 v38, 16, v44")
    k.e("v_and_b32 v40, 0xffff0000, v44")
    k.e("v_add_f32 v40, 0x3727c5ac, v40")
    k.e("v_cvt_pk_bf16_f32 v44, v40, v40")
    k.e("v_lshlrev_b32 v40, 16, v44")
    k.e("v_sqrt_f32 v40, v40")
    k.e("v_mov_b32 v39, v38")
    k.e("v_cvt_pk_bf16_f32 v44, v40, v40")
    k.e("v_lshlrev_b32 v44, 16, v44")
    k.e("v_rcp_f32 v40, v44")
    for i in range(16):
        k.e(f"v_pk_add_f32 {V(XF+2*i,2)}, {V(XF+2*i,2)}, v[38:39]")
    k.e("v_fma_f32 v45, -v44, v40, 1.0")
    k.e("v_fma_f32 v40, v45, v40, v40")
    k.e("v_mov_b32 v41, v40")
    for i in range(16):
        k.e(f"v_cvt_pk_bf16_f32 v{XP+i}, v{XF+2*i}, v{XF+2*i+1}")
    for i in range(16):
        k.e(f"v_lshlrev_b32 v{XF+2*i}, 16, v{XP+i}")
        k.e(f"v_and_b32 v{XF+2*i+1}, 0xffff0000, v{XP+i}")
    for i in range(16):
        k.e(f"v_pk_mul_f32 {V(XF+2*i,2)}, {V(XF+2*i,2)}, v[40:41]")
    for i in range(16):
        k.e(f"v_cvt_pk_bf16_f32 v{XP+i}, v{XF+2*i}, v{XF+2*i+1}")
    k.e("s_mul_i32 s3, s32, 4128")
    k.e("s_add_u32 s3, s3, 131072")
    k.e("v_mul_u32_u24 v42, 2064, v33")
    k.e("v_add3_u32 v42, v42, v36, s3")
    for i in range(4):
        k.e(f"ds_write_b128 v42, {V(XP+4*i,4)} offset:{i*512}")
    act(PRO[3])
    k.stamp(S0)
    k.wait_vm('wr')
    k.stamp(S0)
    for i in range(16):
        k.e(f"v_lshlrev_b32 v{XF+2*i}, 16, v{XP+i}")
        k.e(f"v_and_b32 v{XF+2*i+1}, 0xffff0000, v{XP+i}")
        k.e(f"v_lshlrev_b32 v{T+2*(i&3)}, 16, v{WR+i}")
        k.e(f"v_and_b32 v{T+2*(i&3)+1}, 0xffff0000, v{WR+i}")
        d = 42 + 2 * (i & 1)
        if i < 2: k.e(f"v_pk_mul_f32 {V(d,2)}, {V(XF+2*i,2)}, {V(T+2*(i&3),2)}")
        else: k.e(f"v_pk_fma_f32 {V(d,2)}, {V(XF+2*i,2)}, {V(T+2*(i&3),2)}, {V(d,2)}")
    k.e("v_pk_add_f32 v[42:43], v[42:43], v[44:45]")
    k.e("v_add_f32 v45, v42, v43")
    sum32(45, 37)
    k.e("v_cvt_pk_bf16_f32 v45, v45, v45")
    k.e("v_ashrrev_i32 v46, 31, v45")
    k.e("v_or_b32 v46, 0x80000000, v46")
    k.e("v_xor_b32 v45, v45, v46")
    k.e("v_and_b32 v45, 0xffff0000, v45")
    k.e("s_lshr_b32 s3, s36, 11")
    k.e("v_add_u32 v46, s3, v33")
    k.e("v_sub_u32 v44, 0xffff, v46")
    k.e("v_or_b32 v45, v45, v44")
    k.e("v_lshlrev_b32 v44, 2, v46")
    k.e("v_lshlrev_b32 v46, 3, v46")
    k.e("v_xor_b32 v38, 0x80000000, v38")
    k.e("v_mov_b32 v39, v40")
    k.e(f"s_mov_b32 s3, {WS_KEYS}")
    k.e(f"s_mov_b32 s39, {WS_STATS}")
    k.e("s_mov_b32 exec_lo, 1")
    k.e("s_mov_b32 exec_hi, 1")
    k.e("buffer_store_dword v45, v44, s[20:23], s3 offen sc1", tag='ln')
    k.e("buffer_store_dwordx2 v[38:39], v46, s[20:23], s39 offen sc1", tag='ln')
    k.e("s_mov_b64 exec, -1")
    k.e("s_load_dwordx2 s[4:5], s[0:1], 16")
    k.e("s_load_dwordx4 s[40:43], s[0:1], 64")
    k.e("s_load_dwordx2 s[92:93], s[0:1], 40")
    k.e("s_load_dwordx2 s[94:95], s[0:1], 80")
    k.e("s_load_dwordx2 s[100:101], s[0:1], 0")
    act(PRO[4])
    PFN = pfc[0] - 2
    k.srd(28, 64, 256)

    def areads(st, pr):
        return [f"ds_read_b128 {A(FA(it,ks),4)}, v{AA[st & 1][ks]} offset:{it*2048}" for it in (2 * pr, 2 * pr + 1) for ks in range(2)]
    def wfreads(st):
        return [[f"ds_read_b64_tr_b16 {A(FW(st & 1,j,ks)+2*rd,2)}, v{WA[st & 1][j]} offset:{ks*16384+rd*2048}" for rd in range(2)]
                for j in range(8) for ks in range(2)]
    k.stamp(S0)
    k.wait_vm('w0d'); k.wait_vm('a0d')
    k.e("s_waitcnt lgkmcnt(0)")
    k.e("s_barrier")
    k.stamp(ST or S0)
    for s in areads(0, 0): k.e(s, tag='A0_0')
    for n, grp in enumerate(wfreads(0)):
        for s in grp: k.e(s, tag=f'W0_{n // 2}')
    k.e("s_cmp_lg_u32 s35, 0")
    k.e("s_cbranch_scc1 L_k1_vpath")

    def chunk_ops(c):
        kind, j = c
        slot = {'w': j % 4, 'kv': (j + 4) % 8}[kind]
        ops = [('s', f"s_add_u32 m0, s44, {slot * 16384}")]
        if kind == 'w':
            for q in range(4):
                ops.append(('g', f"buffer_load_dwordx4 v{WV + (q >> 1)}, s[8:11], s{48+q} offen offset:{q*1024}{wq_ld} lds"))
            ops.append(('v', f"v_xor_b32 v{WV}, {((j ^ (j + 1)) & 15) << 19}, v{WV}"))
            ops.append(('v', f"v_xor_b32 v{WV+1}, {((j ^ (j + 1)) & 15) << 19}, v{WV+1}"))
        elif kind == 'f':
            for q in range(4):
                ops.append(('g', f"buffer_load_dwordx4 v{12 + (q >> 1) + 2 * (j & 1)}, {S(60 + 8 * (j >> 1), 4)}, s{52+q} offen offset:{q*1024}{ffn_ld} lds"))
        else:
            ops.append(('s', f"s_mov_b32 s7, {j * KV_CH}"))
            for q in range(4):
                ops.append(('g', f"buffer_load_dwordx4 v{VDMA}, s[12:15], s7 offen offset:{q*1024}{kv_ld} lds"))
        return ops
    QX = int(opt.get('qx', -1))
    def xn_ops(kk):
        ops = []
        for qb in range(4):
            so = "s52" if qb & 1 else "s53"
            ops.append(('g', f"buffer_load_dwordx4 {A(XR(kk,qb),4)}, v{XV + (qb >> 1)}, s[20:23], {so} offen offset:{(kk % 2)*1024}{opt.get('xn_ld', ' sc1')}"))
        if kk % 2 == 1 and kk < 31:
            st = kk // 2
            ops.append(('v', f"s_xor_b32 s52, s52, {(st ^ (st + 1)) << 11}"))
            ops.append(('v', "s_add_u32 s53, s52, s58"))
        return ops
    def wreads(kk):
        st = kk // 2
        return [[f"ds_read_b64_tr_b16 {A(WF(ks,db)+2*rd,2)}, v{TA+db} offset:{(st % 4)*16384 + ks*8192 + rd*1024}" for rd in range(2)]
                for db, ks in ([(d, q) for d in range(4 * (kk & 1), 4 * (kk & 1) + 4) for q in range(2)] if P2C else [(d, kk & 1) for d in range(8)])]
    ool = []
    def spin(lab, ret, off, target, vd, vz, sv, sc):
        def fn():
            k.e(f"s_mov_b32 s{sc}, 0x400000")
            k.label(lab + "_l")
            k.e(f"s_sleep {opt.get('slp', 8)}")
            k.e(f"buffer_load_dword v{vd}, v{vz}, s[28:31], {off} offen sc1")
            k.e("s_waitcnt vmcnt(0)")
            k.e(f"v_readfirstlane_b32 s{sv}, v{vd}")
            k.e(f"s_sub_u32 s{sc}, s{sc}, 1")
            k.e(f"s_cmp_eq_u32 s{sc}, 0")
            k.e(f"s_cbranch_scc1 {ret}")
            k.e(f"s_cmp_lt_u32 s{sv}, {target}")
            k.e(f"s_cbranch_scc1 {lab}_l")
        ool.append((lab, fn, ret))
    def srd_rec(b, d, base, nbytes, add=None):
        if add is None:
            b.e(f"s_mov_b32 s{d}, s{base}"); b.e(f"s_and_b32 s{d+1}, s{base+1}, 0xffff")
        else:
            b.blk([f"s_add_u32 s{d}, s{base}, {add}", f"s_addc_u32 s{d+1}, s{base+1}, 0", f"s_and_b32 s{d+1}, s{d+1}, 0xffff"])
        b.e(f"s_mov_b32 s{d+2}, {nbytes}"); b.e(f"s_mov_b32 s{d+3}, 0x20000")

    def phase1_stream(isV):
        b = Rec()
        tg = 'v' if isV else 'k'
        b.e("v_and_b32 v46, 7, v0")
        b.e("v_lshrrev_b32 v1, 3, v0") if False else None
        b.e("v_mul_u32_u24 v30, 2064, v46")
        b.e("v_lshrrev_b32 v31, 3, v0")
        b.e("s_lshl_b32 s3, s32, 9")
        b.e("s_add_u32 s3, s3, 131072")
        b.e("v_lshl_add_u32 v30, v31, 4, v30")
        b.e("v_add_u32 v30, s3, v30")
        b.e("v_lshlrev_b32 v31, 8, v31")
        b.e("v_lshl_add_u32 v46, v46, 4, v31")
        for i in (1, 2, 3, 0):
            b.e(f"ds_read_b128 {V(30+4*i,4)}, v30 offset:{i*128}", tag='xs')
        b.e("s_lshr_b32 s3, s2, 1")
        b.e(f"s_mul_i32 s3, s3, {XN_RB}")
        b.e("s_add_u32 s3, s3, s57")
        b.e("s_and_b32 s39, s2, 1")
        b.e("s_lshl_b32 s39, s39, 7")
        b.e("s_add_u32 s3, s3, s39")
        b.e("s_add_u32 s39, s3, 4096")
        b.at(2)
        for i in range(4):
            b.e(f"buffer_store_dwordx4 {V(30+4*i,4)}, v46, s[20:23], s{3 if i < 2 else 39} offen offset:{(i&1)*2048} sc1", tag='ln')
        b.e("s_lshl_b32 s3, s34, 1")
        b.e("s_and_b32 s36, s32, 1")
        b.e("s_add_u32 s3, s3, s36")
        b.e(f"s_mul_i32 s3, s3, {KV_HEAD}")
        b.e(f"s_mul_i32 s36, s33, {4*KV_TILE}")
        b.e("s_add_u32 s3, s3, s36")
        b.e("s_lshr_b32 s36, s32, 1")
        b.e(f"s_mul_i32 s36, s36, {2*KV_TILE}")
        b.e("s_add_u32 s3, s3, s36")
        b.e(f"s_add_u32 s38, s3, {KV_CH if isV else 0}")
        b.e("s_lshl_b32 s39, s34, 7")
        b.e("s_lshl_b32 s36, s33, 2")
        b.e("s_add_u32 s39, s39, s36")
        b.e(f"s_add_u32 s39, s39, {WS_FLG + (32 if isV else 0)}")
        b.e("v_mov_b32 v30, 1")
        b.e("v_mov_b32 v31, 0")
        b.blk(["s_cmp_eq_u32 s32, 0", f"s_cselect_b32 s39, s39, {BIG}"])
        b.blk(["s_mov_b64 exec, 1", ("buffer_store_dword v31, v31, s[20:23], s39 offen sc1", 'ln'), "s_mov_b64 exec, -1"])
        if MAP == 4:
            b.e("s_and_b32 s33, s2, 7")
            b.e("s_lshl_b32 s33, s33, 2")
            b.e("s_bfe_u32 s3, s2, 0x20003")
            b.e("s_add_u32 s33, s33, s3")
            b.e("s_lshr_b32 s34, s2, 5")
        else:
            b.e("s_and_b32 s33, s2, 6")
            b.e("s_lshl_b32 s33, s33, 2")
            b.e("s_bfe_u32 s3, s2, 0x30003")
            b.e("s_add_u32 s33, s33, s3")
            b.e("s_lshr_b32 s34, s2, 6")
            b.e("s_lshl_b32 s34, s34, 1")
            b.e("s_and_b32 s3, s2, 1")
            b.e("s_add_u32 s34, s34, s3")
        b.e("s_lshl_b32 s64, s34, 7")
        b.e("s_lshl_b32 s3, s33, 2")
        b.e("s_add_u32 s64, s64, s3")
        b.e(f"s_add_u32 s64, s64, {WS_CFL}")
        b.e("s_lshl_b32 s65, s34, 8")
        b.e("s_sub_u32 s65, 1920, s65")
        b.e("v_mul_u32_u24 v32, s65, v0")
        b.blk(["s_cmp_eq_u32 s32, 0", f"s_cselect_b32 s64, s64, {BIG}"])
        b.blk(["s_mov_b64 exec, 3", ("buffer_store_dword v31, v32, s[20:23], s64 offen sc1", 'ln'), "s_mov_b64 exec, -1"])
        b.e("s_lshl_b32 s3, s2, 2")
        b.e(f"s_add_u32 s3, s3, {WS_HFL}")
        b.e("v_lshlrev_b32 v32, 10, v0")
        b.blk(["s_cmp_eq_u32 s32, 0", f"s_cselect_b32 s3, s3, {BIG}"])
        b.blk(["s_mov_b64 exec, 0x1ff", ("buffer_store_dword v31, v32, s[20:23], s3 offen sc1", 'ln'), "s_mov_b64 exec, -1"])
        b.e("s_lshl_b32 s35, s34, 1")
        b.e("s_sub_u32 s36, 32, s35")
        b.e("s_add_u32 s35, s35, 2")
        b.e("s_lshl_b32 s44, s32, 12")
        b.e("s_lshl_b32 s58, s32, 1")
        b.e("s_sub_u32 s58, 7, s58")
        b.e(f"s_mul_i32 s58, s58, {XN_RB}")
        b.e("s_sub_u32 s3, 15, s34")
        b.e("s_lshl_b32 s45, s3, 3")
        b.e("s_add_u32 s45, s45, s32")
        b.e("s_lshl_b32 s46, s34, 3")
        b.e("s_add_u32 s46, s46, s32")
        srd_rec(b, 68, 42, 7340032)
        b.blk(["s_cmp_eq_u32 s32, 0", f"s_cselect_b32 s37, 0, {BIG}"])
        b.e("s_lshl_b32 s3, s33, 8")
        srd_rec(b, 16, 4, 0, "s3")
        b.e("s_sub_u32 s18, 8388608, s3")
        WQN = int(opt.get('wqn', 4))
        ln_ = (64 if MAP == 4 else 128) // WQN
        b.e(f"v_and_b32 v33, {ln_ - 1}, v0")
        b.e("v_lshrrev_b32 v32, 1, v33")
        b.e("v_and_b32 v33, 1, v0")
        b.e("v_lshlrev_b32 v32, 13, v32")
        b.e("v_lshl_add_u32 v45, v33, 7, v32")
        b.e("s_lshl_b32 s3, s32, 3")
        b.e("s_add_u32 s3, s3, s34")
        if MAP != 4: b.e("s_lshr_b32 s3, s3, 1")
        b.e(f"s_mul_i32 s47, s3, {ln_ // 2 * 8192}")
        WQ0 = int(opt.get('wq0', 6))
        ev = []
        for j in range(WQN): ev.append((WQ0 + j * float(opt.get('wqs', 2)), 'pf', j))
        NS = int(opt.get('cas', 4))
        for j in range(NS): ev.append((5.2 + j * float(opt.get('cad', 1.2)), 'ca', j))
        b.e(f"s_bfe_u32 s6, s2, {(NS.bit_length() - 1) << 16 | 3}")
        b.e("s_lshl_b32 s3, s32, 8")
        b.e("s_or_b32 s6, s6, s3")
        WOP = WOT
        if WOP:
            b.e("v_bfe_u32 v39, v0, 3, 1")
            b.e("v_and_b32 v33, 7, v0")
            b.e("v_lshlrev_b32 v39, 11, v39")
            b.e("v_lshl_add_u32 v39, v33, 7, v39")
            b.e("s_lshr_b32 s3, s2, 1")
            b.e("s_lshl_b32 s3, s3, 16")
            b.e("v_add_u32 v39, s3, v39")
            b.e("s_and_b32 s3, s2, 1")
            b.e("s_lshl_b32 s3, s3, 10")
            b.e("v_add_u32 v39, s3, v39")
            b.e("s_lshl_b32 s3, s32, 14")
            b.e("v_add_u32 v39, s3, v39")
            ev.append((5.99, 'srd', 0))
            for j in range(4): ev.append((float(opt.get('wop0', 6)) + j * 2 + 0.01, 'wo', j))
        late = []
        for step, kind, j in sorted(ev):
            o = b
            if step >= 12:
                o = Rec(); late.append(o)
            o.at(step)
            if kind == 'ca':
                o.check_clear('ln')
                o.blk([f"s_cmp_eq_u32 s6, {j}", f"s_cselect_b32 s3, 0, {BIG}"])
                o.blk(["s_mov_b64 exec, 1", "buffer_atomic_add v30, v31, s[28:31], s3 offen sc1", "s_mov_b64 exec, -1"])
            elif kind == 'srd':
                srd_rec(o, 60, 92, 8388608)
            elif kind == 'wo':
                o.e("buffer_load_dword v44, v39, s[60:63], 0 offen", tag='pf')
                o.e("v_add_u32 v39, 4096, v39")
            else:
                o.e(f"buffer_load_dword v44, v45, s[{16 if step < 12 else 8}:{19 if step < 12 else 11}], s47 offen{opt.get('wqpf_ld', '')}", tag='pf')
                o.e(f"s_add_u32 s47, s47, {1024 // WQN * 8192}")
        b.e("v_lshrrev_b32 v32, 4, v0")
        b.e("v_and_b32 v33, 15, v0")
        b.e("s_lshl_b32 s3, s32, 4")
        b.e("v_add_u32 v34, s3, v32")
        b.e("v_lshlrev_b32 v36, 1, v32")
        b.e("v_xor_b32 v36, v36, v33")
        b.e("v_xor_b32 v37, 8, v36")
        if '2' in CPF:
            b.at(10.1)
            cp = code_prefetch("L_phase2", "L_k2_fin", 32, 6, 40, 38)
            cp = [x.replace("s8", "s3") for x in cp]
            b.blk(cp[:4])
            for x in cp[4:-3]: b.e(x)
            b.blk(cp[-3:-1])
            b.e(cp[-1])
        b.at(12)
        b.e("buffer_load_dword v1, v31, s[28:31], s37 offen sc1", tag='poll')
        for j in range(3): b.e(f"s_mov_b32 s{8+j}, s{16+j}")
        srd_rec(b, 16, 66, 16 << 20, WS_CTX)
        for j in range(4): b.e(f"s_mov_b32 s{48+j}, {j*31744}")
        b.e("v_lshlrev_b32 v35, 13, v34")
        b.e(f"s_and_b32 s52, s33, {3 if QX >= 0 else 0}")
        b.e(f"s_lshl_b32 s3, s52, {19 + max(QX, 0)}")
        b.e(f"s_lshl_b32 s52, s52, {11 + max(QX, 0)}")
        b.e("s_add_u32 s53, s52, s58")
        b.e("v_add_u32 v35, s3, v35")
        b.e(f"v_lshl_add_u32 v{WV}, v36, 4, v35")
        b.e(f"v_lshl_add_u32 v{WV+1}, v37, 4, v35")
        b.e(f"v_lshlrev_b32 v{VX}, 4, v0")
        b.e(f"v_add_u32 v{VY}, 65536, v{VX}")
        b.e(f"v_add_u32 v{VDMA}, s44, v{VX}")
        b.e("v_mov_b32 v7, 0")
        b.e("v_lshlrev_b32 v35, 2, v32")
        b.e("v_sub_u32 v35, v33, v35")
        b.e("s_lshl_b32 s3, s32, 4")
        b.e(f"v_add_u32 v{VRA}, s3, v35")
        b.e("s_sub_u32 s3, 48, s3")
        b.e(f"v_add_u32 v{VRB}, s3, v35")
        b.e(f"s_mul_i32 s3, s33, {KV_HEAD}")
        b.e(f"s_add_u32 s3, s3, {WS_KV}")
        srd_rec(b, 12, 66, 0, "s3")
        b.e(f"s_mul_i32 s14, s36, {KV_TILE}")
        for o in late: b.items += o.items
        ta_setup(b)
        b.at(13.4)
        b.e(f"s_mul_i32 s3, s45, {XN_RB}")
        b.e(f"v_add_u32 v{XV}, s3, v{VX}")
        b.e(f"s_mul_i32 s3, s46, {XN_RB}")
        b.e(f"v_add_u32 v{XV+1}, s3, v{VX}")
        if '6' in CPF:
            b.at(14)
            b.e("v_mov_b32 v14, v40"); b.e("v_mov_b32 v15, v41")
        if 'dbg_noxn' in opt:
            b.e(f"v_mov_b32 v{XV}, {BIG}"); b.e(f"v_mov_b32 v{XV+1}, {BIG}")
        if 'dbg_nowq' in opt: b.e("s_mov_b32 s10, 0")
        if 'dbg_nost' in opt: b.e("s_mov_b32 s26, 0")
        spin(f"L_spinA{tg}", f"L_spinAr{tg}", 0, 256, 1, 7, 3, 47)
        return b
    def ta_setup(b):
        b.e("v_lshrrev_b32 v42, 2, v33")
        b.e("v_lshl_add_u32 v43, v32, 3, v42")
        b.e("v_lshlrev_b32 v43, 8, v43")
        b.e("v_and_b32 v46, 3, v0")
        b.e("v_lshl_add_u32 v43, v46, 3, v43")
        b.e("v_and_b32 v46, 1, v32")
        b.e("v_lshl_add_u32 v42, v46, 2, v42")
        b.e(f"v_lshl_add_u32 v{TA}, v42, 5, v43")
        for db in range(1, 8): b.e(f"v_xor_b32 v{TA+db}, {32*db}, v{TA}")

    NS7 = int(opt.get('ns7', 6))
    def kvstore_ops(n):
        off = (n >> 4) * KV_TILE + (n & 15) * 1024
        return ([f"s_add_u32 s59, s38, {off}"] if n % 4 == 0 else []) + \
               [f"buffer_store_dwordx4 {V(PK(n),4)}, v{VX}, s[24:27], s59 offen offset:{(n % 4)*1024}{opt.get('kv_st', ' sc1')}"]
    def place_vm(g, gt, scal, ops, start, step):
        gi = start
        for t, s, tg in ops:
            if t == 's': scal.setdefault(gi - 1, []).append(s)
            elif t == 'g':
                assert gi not in g and gi < 128, gi
                g[gi] = [s]; gt[gi] = tg; gi += step
            else:
                q = gi - step + 1
                while (q in g and (len(g[q]) >= 2 or g[q][-1].startswith(('buffer', 'ds_read_b64')))) or ((q - start) % step == 0 and q < 127): q += 1
                g.setdefault(min(q, 127), []).append(s)
    vq0, dq0 = list(k.vq), list(k.dq)
    for isV in (0, 1):
        if isV:
            k.label("L_k1_vpath"); k.win = []; k.vq = list(vq0); k.dq = list(dq0)
        b = phase1_stream(isV)
        if S1: k.nstamp = 0
        for st in range(8):
            p = st & 1
            k.stamp(S1)
            g = {}; gt = {}; scal = {}
            for pr in range(4):
                s2, p2 = (st, pr + 1) if pr < 3 else (st + 1, 0)
                if s2 < 8:
                    for q, s in enumerate(areads(s2, p2)):
                        x = 32 * pr + 3 + 4 * q
                        g[x] = [s]; gt[x] = f'A{s2}_{p2}'
                    scal.setdefault(32 * pr + 30, []).append(('w', f'A{s2}_{p2}'))
            if st < 7:
                free = [x for x in range(65, 122, 2) if x not in g]
                for n, grp in enumerate(wfreads(st + 1)):
                    x = free[(n * len(free)) // 16]
                    g[x] = grp; gt[x] = f'W{st+1}'
                scal.setdefault(127, []).append(('w', f'W{st+1}'))
                scal.setdefault(61, []).append(('v', f'w{st+1}d')); scal.setdefault(62, []).append("s_barrier")
                scal.setdefault(93, []).append(('v', f'a{st+1}d')); scal.setdefault(94, []).append("s_barrier")
            if st == 0:
                ops = []
                for h, nm in enumerate(('w1', 'a1')):
                    if nm not in '/'.join(PRO):
                        ops += [(t, s, nm + 'd') for t, s in dma_ops(1)[10*h:10*h+10]] + [('v', s, None) for s in adv_ops(1)[4*h:4*h+4]]
                place_vm(g, gt, scal, ops, 2, int(opt.get('st1s', 2)))
                pfc[0] = 2 + PFN
                for q in range(int(opt.get('pfk', 1))):
                    po = pf_ops()
                    assert 44 + 4 * q not in g
                    g[44 + 4 * q] = [po[0]]; gt[44 + 4 * q] = 'pf'; g[45 + 4 * q] = po[1:] + g.get(45 + 4 * q, [])
            if st < 6:
                d = dma_ops(p); adv = adv_ops(st + 2) if st < 5 else []
                ops = [(t, s, f'w{st+2}d') for t, s in d[:10]] + [('v', s, None) for s in adv[:4]] + \
                      [(t, s, f'a{st+2}d') for t, s in d[10:]] + [('v', s, None) for s in adv[4:]]
                place_vm(g, gt, scal, ops, 64, 4)
                if pfc[0] < 8:
                    po = pf_ops()
                    g[126] = [po[0]] + g.get(126, []); gt[126] = 'pf'
                    g[127] = [po[1]] + g.get(127, []) + [po[2]]
            elif st == 6:
                ops = []
                for c in range(4): ops += [(t, s, f'w{c}') for t, s in chunk_ops(('w', c))]
                place_vm(g, gt, scal, ops, 64, 4)
            else:
                XB = int(opt.get('xb', 28))
                tg = 'v' if isV else 'k'
                scal.setdefault(XB - 2, []).append(('v', 'w0'))
                scal.setdefault(XB, []).extend(["v_readfirstlane_b32 s3, v1", "s_nop 0", "s_or_b32 s3, s3, s37", "s_cmp_lt_u32 s3, 256",
                                                f"s_cbranch_scc1 L_spinA{tg}", f"L_spinAr{tg}:", "s_barrier"])
                ops = []
                for kk in range(4): ops += [(t, s, f'x{kk}') for t, s in xn_ops(kk)]
                place_vm(g, gt, scal, ops, XB + 4, int(opt.get('xs7', 6)) & ~1)
                for n, grp in enumerate(wreads(0)):
                    assert 105 + 2 * n not in g
                    g[105 + 2 * n] = grp
                for n in range(26):
                    b.at(14 + (4 * n + 8) / 64.0)
                    r = SRC(n)[1]
                    for q in range(4): b.e(f"v_cvt_pk_bf16_f32 v{PK(n)+q}, v{r+2*q}, v{r+2*q+1}")
                    m_ = (n * NS7) // 26
                    if (n + 1) * NS7 // 26 > m_:
                        for x in kvstore_ops(m_): b.e(x, tag='kvst')
            if isV: order = [(2 * pr + h, jd, ks) for pr in range(4) for jd in range(8) for h in range(2) for ks in range(2)]
            else: order = [(it, jd, ks) for it in range(8) for jd in range(8) for ks in range(2)]
            for n, (it, jd, ks) in enumerate(order):
                if st == 0:
                    k.wait_ds('A0_0'); k.wait_ds(f'W0_{jd}')
                fa, fw_ = A(FA(it, ks), 4), A(FW(p, jd, ks), 4)
                d = acc(isV, it, jd)
                c = "0" if (st == 0 and ks == 0) else d
                k.e(mfma(d, fa, fw_, c) if isV else mfma(d, fw_, fa, c))
                for x in scal.get(n, []):
                    if isinstance(x, tuple): (k.wait_ds if x[0] == 'w' else k.wait_vm)(x[1])
                    elif x.endswith(':'): k.label(x[:-1])
                    else: k.e(x)
                if n in g:
                    for s in g[n]: k.e(s, tag=gt.get(n))
                elif n not in scal:
                    b.fill(k, 2 * st + n / 64.0)
        print(f"phase1 isV={isV}: items left {len(b.items)}")
        k.stamp(S1)
        b.drain(k)
        k.stamp(S1)
        if not isV:
            k.e("s_branch L_phase2")
            vqK = list(k.vq)
    assert vqK == k.vq
    k.label("L_phase2")
    k.win = []
    k.e("s_nop 7")
    k.stamp(ST)

    b = Rec()
    KY = 56
    SPK = float(opt.get('spk', 1.2))
    def kvstore(n):
        if n < NS7: return
        b.at((n - NS7) / SPK)
        for x in kvstore_ops(n): b.e(x, tag='kvst')
    for n in range(26):
        kvstore(n)
        if 8 <= n < 14:
            m = n + 18
            for q in range(8): b.e(f"v_accvgpr_read_b32 v{48+q}, a{SRC(m)[1]+q}")
            for q in range(4): b.e(f"v_cvt_pk_bf16_f32 v{PK(m)+q}, v{48+2*q}, v{49+2*q}")
    for n in range(26, 32): kvstore(n)
    b.e("v_mov_b32 v12, 1")
    b.e("v_and_b32 v1, 15, v0")
    b.e("v_lshlrev_b32 v1, 2, v1")
    b.e("s_lshr_b32 s6, s33, 1")
    b.e("s_lshl_b32 s6, s6, 7")
    b.e(f"s_add_u32 s6, s6, {WS_FLG}")
    b.blk(["s_cmp_eq_u32 s32, 0", f"s_cselect_b32 s6, s6, {BIG}"])
    SIG = int(opt.get('sig', 25))
    POL = float(opt.get('pol', 27.3))
    b.at(SIG)
    b.blk(["s_mov_b64 exec, 1", "buffer_store_dword v12, v7, s[20:23], s39 offen sc1", "s_mov_b64 exec, -1"])
    b.at(POL)
    b.e("buffer_load_dword v12, v1, s[20:23], s6 offen sc1", tag='poll')
    CK = int(opt.get('ck', 29))
    n_ = 0
    for j in (0, 2, 1, 3, 4, 5, 6):
        for t, s in chunk_ops(('kv', j)):
            if t == 'g':
                b.at(max(CK + n_ * float(opt.get('kvp', 0.09)), {4: 25, 5: 27, 6: 29}.get(j, 0))); n_ += 1
            b.e(s, tag=f'c{16+j}')
    def spinB():
        k.e("s_mov_b32 s59, 0x400000")
        k.label("L_spinB_l")
        k.e(f"s_sleep {opt.get('slp', 4)}")
        k.e("buffer_load_dword v12, v1, s[20:23], s6 offen sc1")
        k.e("s_sub_u32 s59, s59, 1")
        k.e("s_cmp_eq_u32 s59, 0")
        k.e("s_cbranch_scc1 L_spinBx")
        k.e("s_waitcnt vmcnt(0)")
        k.e("v_cmp_ne_u32 vcc, 1, v12")
        k.e("s_cbranch_vccnz L_spinB_l")
        k.label("L_spinBx")
        k.e("s_waitcnt vmcnt(0)")
    ool.append(("L_spinB", spinB, "L_spinBr"))

    b1 = b
    b = Rec()
    srd_rec(b, 60, 40, 7340032)
    RT = [float(x) for x in opt.get('rt', '0,5').split(',')] if '6' in CPF else []
    for x in RT:
        b.at(x)
        b.e("global_load_dword v13, v[14:15], off", tag='keys')
    KT = int((10 - NS7) / SPK) + 3
    b.at(KT)
    b.items.append(('fn', lambda: not any(x in str(it[1]) for it in b1.items for x in ('v[56:59]', 'v[60:63]', 'v[64:67]')), None))
    b.e("s_lshl_b32 s3, s32, 11")
    b.e(f"s_add_u32 s3, s3, {WS_KEYS}")
    for i in range(2):
        b.e(f"buffer_load_dwordx4 {V(KY+4*i,4)}, v{VX}, s[20:23], s3 offen offset:{i*1024} sc1", tag='keys')
    def top2_lane():
        b.e(f"v_max_u32 v14, v{KY}, v{KY+1}")
        b.e(f"v_min_u32 v15, v{KY}, v{KY+1}")
        for i in range(2, 8):
            b.e(f"v_med3_u32 v15, v14, v15, v{KY+i}"); b.e(f"v_max_u32 v14, v14, v{KY+i}")
    b.at(KT + 6)
    b.wait_vm('keys')
    top2_lane()
    b.e("s_lshl_b32 s3, s32, 9")
    b.e("s_add_u32 s3, s3, 131072")
    b.e("v_lshlrev_b32 v13, 3, v0")
    b.e(f"v_add_u32 v{KY}, s3, v13")
    b.e("v_add_u32 v13, 131072, v13")
    b.e(f"ds_write_b64 v{KY}, v[14:15]")
    KB = (KT + 8) | 1
    b.items.append(('before', KB, None))
    b.at(KB)
    for w in range(4): b.e(f"ds_read_b64 {V(KY+2*w,2)}, v13 offset:{w*512}", tag='kx')
    b.at(KB + 0.3)
    b.wait_ds('kx')
    top2_lane()
    def wmax(v, sdst):
        for m in ["quad_perm:[1,0,3,2]", "quad_perm:[2,3,0,1]", "row_half_mirror", "row_mirror"]:
            b.blk([f"v_max_u32_dpp {v}, {v}, {v} {m} row_mask:0xf bank_mask:0xf"])
        b.blk([f"v_readlane_b32 s3, {v}, 0", f"v_readlane_b32 s47, {v}, 16"])
        b.blk([f"v_readlane_b32 s4, {v}, 32", f"v_readlane_b32 s5, {v}, 48"])
        b.blk(["s_max_u32 s3, s3, s47", "s_max_u32 s4, s4, s5", f"s_max_u32 s{sdst}, s3, s4"])
    b.e("v_mov_b32 v13, v14")
    wmax("v13", 40)
    b.blk(["v_cmp_eq_u32 vcc, s40, v14"])
    b.blk(["v_cndmask_b32 v13, v14, v15, vcc"])
    wmax("v13", 41)
    for t in range(2):
        b.e(f"s_and_b32 s3, s{40+t}, 0xffff")
        b.e(f"s_sub_u32 s{42+t}, 0xffff, s3")
    for t in range(2):
        b.e(f"v_mov_b32 v60, s{40+t}")
        b.e("v_not_b32 v61, v60")
        b.e("v_ashrrev_i32 v61, 31, v61")
        b.e("v_or_b32 v61, 0x80000000, v61")
        b.e("v_xor_b32 v60, v60, v61")
        b.e("v_and_b32 v60, 0xffff0000, v60")
        b.e("v_mul_f32 v60, 0xbfb8aa3b, v60")
        b.e("v_exp_f32 v60, v60")
        b.e("v_add_f32 v60, 1.0, v60")
        b.e("v_rcp_f32 v60, v60")
        b.e("v_cvt_pk_bf16_f32 v60, v60, v60")
        b.e(f"v_and_b32 v{64+t}, 0xffff0000, v60")
    b.items.append(('fn', lambda: not any('accvgpr_read' in str(it[1]) or 'cvt' in str(it[1]) for it in b1.items), None))
    for r in range(16): b.e(f"v_mov_b32 v{LS+r}, 0")
    WARM = opt.get('warm', '1') == '1'
    if WARM:
        b.at((28 - NS7) / SPK + 0.5)
        b.items.append(('fn', lambda: not any('v[28:31]' in str(it[1]) for it in b1.items), None))
        WC = int(opt.get('wc', 4))
        upc = 64 - WC * WC
        seg = upc * 32 * 4 * 128
        bufs = [(94, 7340032)] + ([(100, 4194304)] if x_ld else []) + [(60, 7340032), (68, 7340032)] + ([] if WOT else [(92, 8388608)])
        b.e("s_mul_i32 s3, s34, s34")
        b.e(f"s_mul_i32 s47, s33, {upc}")
        b.e("s_add_u32 s3, s3, s47")
        b.e("s_lshl_b32 s3, s3, 2")
        b.e("s_add_u32 s3, s3, s32")
        b.e("s_lshl_b32 s3, s3, 7")
        b.e(f"s_sub_u32 s3, s3, {512 + WC * WC * 512}")
        b.blk([f"s_cmp_ge_u32 s34, {WC}", "s_cselect_b32 s3, s3, 0", "s_cselect_b32 s40, 512, 0", f"s_cselect_b32 s47, {seg}, 0"])
        first = 0
        for j, (lo, size) in enumerate(bufs):
            b.e(f"v_subrev_u32 v31, {first}, v0")
            b.e("v_mul_lo_u32 v31, v31, s47")
            b.e(f"v_min_u32 v31, {size - seg}, v31")
            if j == 0:
                b.e(f"v_mov_b32 v28, s{lo}"); b.e(f"v_mov_b32 v29, s{lo+1}"); b.e("v_mov_b32 v30, v31")
            else:
                b.e(f"v_mov_b32 v14, s{lo}"); b.e(f"v_mov_b32 v15, s{lo+1}")
                b.blk([f"v_cmp_le_u32 vcc, {first}, v0"])
                b.blk(["v_cndmask_b32 v28, v28, v14, vcc", "v_cndmask_b32 v29, v29, v15, vcc"])
                b.blk(["v_cndmask_b32 v30, v30, v31, vcc"])
            first += -(-size // seg)
        assert first <= 64, first
        b.e("v_add_u32 v30, s3, v30")
        b.e("v_ashrrev_i32 v31, 31, v30")
        b.e("v_lshl_add_u64 v[28:29], v[30:31], 0, v[28:29]")
        b.e("s_mov_b32 s41, 0")
    b.e("v_readfirstlane_b32 s100, v64")
    b.e("v_readfirstlane_b32 s101, v65")
    b.at(SIG)
    for j in range(3): b.e(f"s_mov_b32 s{24+j}, s{60+j}")
    b.e(f"s_mov_b32 s94, {QSCALE}")
    b.e(f"s_mov_b32 s95, {QSCALE}")
    b.e("s_sub_u32 s55, 15, s34")
    b.e("s_sub_u32 s45, s36, 3")
    b.e("s_sub_u32 s46, s35, 3")
    b.e("s_mov_b32 s54, s44")
    b.e("s_sub_u32 s35, s35, 2")
    b.e("s_sub_u32 s36, s36, 2")
    b2 = b
    b3 = Rec()
    WT0 = float(opt.get('wt0', 18))
    WTB = int(opt.get('wtb', 23))
    WTG = int(opt.get('wtg', 8))
    b3.e("s_lshr_b32 s52, s2, 1")
    b3.e("s_lshl_b32 s52, s52, 16")
    b3.e("s_and_b32 s53, s2, 1")
    b3.e("s_lshl_b32 s53, s53, 10")
    b3.e("s_add_u32 s52, s52, s53")
    b3.e("s_lshl_b32 s53, s32, 14")
    b3.e("s_add_u32 s52, s52, s53")
    srd_rec(b3, 28, 92, 8388608)
    for j in range(8):
        b3.at(WT0 + 2 * (j // WTG))
        b3.blk([f"s_add_u32 m0, s57, {65536 + j * 1024}", f"v_xor_b32 v88, {j * 32}, v{VX}",
                (f"buffer_load_dwordx4 v88, s[28:31], s52 offen{opt.get('wo_ld', '')} lds", 'wo'), "s_add_u32 s52, s52, 2048"])
    b3.e("v_lshrrev_b32 v89, 2, v0")
    b3.e("v_lshlrev_b32 v89, 10, v89")
    b3.e("s_lshl_b32 s53, s32, 8")
    b3.e("s_add_u32 s53, s53, 65536")
    b3.e("v_add_u32 v89, s53, v89")
    b3.e("v_mov_b32 v90, 0xff")
    srd_rec(b3, 28, 66, 16 * WO_NT, WS_WOT)
    b3.e("s_and_b32 s52, s2, 1")
    b3.e("s_lshl_b32 s52, s52, 2")
    b3.e("s_add_u32 s52, s52, s32")
    b3.e(f"s_mul_i32 s52, s52, {2 * WO_NT}")
    b3.e("s_lshr_b32 s53, s2, 1")
    b3.e("s_lshl_b32 s53, s53, 12")
    b3.e("s_add_u32 s52, s52, s53")
    b3.at(WTB)
    for q in range(8):
        b3.e(f"v_and_or_b32 v{92 + (q & 1)}, v{TA+q}, v90, v89")
        for rd in range(2):
            b3.e(f"ds_read_b64_tr_b16 {V(96 + 4*q + 2*rd, 2)}, v{92 + (q & 1)} offset:{rd*16384}", tag='wt')
    for q in range(8):
        b3.at(WTB + 1.2 + 0.5 * q)
        b3.wait_ds('wt')
        b3.e(f"buffer_store_dwordx4 {V(96 + 4*q, 4)}, v{VX}, s[28:31], s52 offen offset:{(q & 3)*1024} sc1", tag='wts')
        if q == 3: b3.e(f"s_add_u32 s52, s52, {WO_NT}")
    b3.e("s_and_b32 s52, s2, 1")
    b3.e("s_lshl_b32 s52, s52, 9")
    b3.e("s_lshr_b32 s93, s2, 1")
    b3.e("s_lshl_b32 s93, s93, 2")
    b3.e("s_add_u32 s52, s52, s93")
    b3.e(f"s_add_u32 s52, s52, {WS_WFL}")
    b3.blk(["s_cmp_eq_u32 s32, 0", f"s_cselect_b32 s52, s52, {BIG}"])
    b3.e("v_mov_b32 v24, 1")
    b3.e("v_mov_b32 v25, 0")
    if not WOT: b3.items = []
    PKM = opt.get('pkm', '0') == '1'
    def conv_items(qb):
        r_ = Rec()
        for s_ in range(4):
            r = QA(2 * s_, qb)
            if PKM:
                for e_ in range(0, 8, 2): r_.e(f"v_pk_mul_f32 {V(r+e_,2)}, {V(r+e_,2)}, s[94:95]")
            else:
                for e_ in range(8): r_.e(f"v_mul_f32 v{r+e_}, s94, v{r+e_}")
            for e_ in range(4): r_.e(f"v_cvt_pk_bf16_f32 v{r+e_}, v{r+2*e_}, v{r+2*e_+1}")
            for e_ in range(4): r_.e(f"v_accvgpr_write_b32 a{Q(qb,s_)+e_}, v{r+e_}")
        r_.items.append(('mark', f'conv{qb}', None))
        return r_.items
    p2_start = len(k.lines)
    XLA = int(opt.get('xla', 5))
    xsched = {}; nx_ = 4
    for kk in range(32):
        xsched[kk] = []
        while nx_ < 32 and nx_ <= min(kk + XLA, (kk & ~1) + 7) and len(xsched[kk]) < 2:
            xsched[kk].append(nx_); nx_ += 1
    def boundary_wait(kk):
        st, ks = kk // 2, kk & 1
        need = [f'x{kk | 1}' if P2C else f'x{kk}']
        if ks == 1 and st < 15: need.append(f'w{st+1}')
        if kk == SIG:
            assert not any(it[2] == 'kvst' for it in b1.items), "stores not all issued before SIG"
            need.append('kvst')
        if kk == WTB:
            assert not any(it[0] == 'b' and any(isinstance(x, tuple) for x in it[1]) for it in b3.items)
            need.append('wo')
        if kk == CK:
            assert not b3.items
            need.append('poll')
        if kk == 31: need.append('c16')
        w = [x for x in (k.vm_n(t) for t in need) if x is not None]
        k.e("s_waitcnt " + (f"vmcnt({min(w)}) " if w else "") + "lgkmcnt(0)")
        for t in need: k.use(t)
    def boundary_bar(kk):
        st, ks = kk // 2, kk & 1
        if kk == CK:
            assert not any('vcc' in str(it[1]) for it in b2.items)
            k.e("s_cmp_lg_u32 s32, 0")
            k.e("s_cbranch_scc1 L_spinBr")
            k.e("v_cmp_ne_u32 vcc, 1, v12")
            k.e("s_cbranch_vccnz L_spinB")
            k.label("L_spinBr")
        if ks == 1: k.e("s_barrier")
    for kk in range(32):
        st, ks = kk // 2, kk & 1
        k.stamp(S2 and kk in (0, 4, 8, 12, 16, 20, 24, 28, 31))
        if kk == 0: boundary_wait(0)
        g = {}; gt = {}
        if kk + 1 < 32:
            for n, grp in enumerate(wreads(kk + 1)):
                g[1 + 3 * n] = (["s_waitcnt lgkmcnt(6)"] if n == 5 else []) + grp
        vm = []
        wv = []
        if ks == 1 and st + 4 < 16: wv = [(t, s, f'w{st+4}') for t, s in chunk_ops(('w', st + 4))[:3]]
        if ks == 0 and 4 <= st + 3 < 16: wv = [(t, s, f'w{st+3}') for t, s in chunk_ops(('w', st + 3))[3:]]
        xv_ = []
        for x in xsched.get(kk, []): xv_ += [(t, s, f'x{x}') for t, s in xn_ops(x)]
        vm = wv + xv_
        ng = sum(1 for x in vm if x[0] == 'g')
        free = [x for x in range(2, 29) if x not in g]
        pick = [free[(j * len(free)) // ng] for j in range(ng)] if ng else []
        j = 0
        for t, s, tg in vm:
            if t == 'g': g[pick[j]] = [s]; gt[pick[j]] = tg; j += 1
            elif t == 's':
                q = pick[j] - 1
                if q in gt: g[q].append(s)
                else: g.setdefault(q, []).insert(0, s)
            else:
                q = pick[j - 1] + 1
                while q in pick or (q in g and len([y for y in g[q] if not y.startswith('s_')]) >= 2): q += 1
                g.setdefault(q, []).append(s)
        dbs, qs = (range(4 * ks, 4 * ks + 4), range(2)) if P2C else (range(8), [ks])
        order = [(db, qb, q) for db in dbs for qb in range(4) for q in qs]
        if kk == 31:
            order = [(db, qb, q) for qb in range(4) for db in dbs for q in qs]
            assert all('accvgpr_write' in it[1] for it in b2.items)
            zrest = b2.items; b2.items = []
            for kb in range(2):
                for s_ in range(4): b2.e(f"ds_read_b128 {A(FR(kb,s_),4)}, v{VY} offset:{(kb*4+s_)*1024}", tag=f'k{kb}')
            b2.at(31 + 12 / 32.0)
            b2.items += conv_items(0) + conv_items(1)
        elif kk > (25 if P2C else 24):
            for x in (([kk - 2] if kk < 30 else [28, 29]) if P2C else [kk - 1]):
                for r in range(16): b2.e(f"v_accvgpr_write_b32 a{XR(x,0)+r}, 0")
        for n, (db, qb, q) in enumerate(order):
            k.e(mfma(V(QA(db, qb), 4), A(WF(q, db), 4), A(XR(2 * st + q, qb), 4), V(QA(db, qb), 4) if (st or q) else "0"))
            if kk < 31 and n == 30: boundary_wait(kk + 1)
            if kk < 31 and n == 31: boundary_bar(kk + 1)
            if n in g:
                for s in g[n]: k.e(s, tag=gt.get(n))
            elif kk < 31 and n >= 29:
                for o in (b1, b2):
                    if o.items and o.items[0][0] == 'i' and o.items[0][1].startswith('v_'):
                        it = o.items.pop(0); k.e(it[1])
                        if o.items and o.items[0][0] == 'i' and o.items[0][1].startswith('v_') and o.cost(it) + o.cost(o.items[0]) <= 2:
                            k.e(o.items.pop(0)[1])
                        break
            else:
                nl = k.ni
                b1.fill(k, kk + n / 32.0)
                if k.ni == nl: b3.fill(k, kk + n / 32.0)
                if k.ni == nl: b2.fill(k, kk + n / 32.0)
    print("phase2 items left", len(b1.items), len(b2.items))
    b1.drain(k)
    grp_ = None
    for ln in k.lines[p2_start:] + ["s_mov_b32 m0, 0"]:
        if ' m0,' in ln:
            assert grp_ is None or (len(set(grp_)) == 1 and len(grp_) == (1 if grp_[0] == 's[28:31]' else 4)), grp_
            grp_ = []
        elif ' lds' in ln: grp_.append(ln.split(', ')[1])
    k.stamp(ST or S2)
    XS = 160
    def ffn_ids(item):
        k.e(f"s_mul_i32 s92, s{item}, 2341")
        k.e("s_lshr_b32 s92, s92, 16")
        k.e("s_mul_i32 s47, s92, 28")
        k.e(f"s_sub_u32 s4, s{item}, s47")
        k.e(f"s_mul_i32 s5, s92, {128*7168}")
        k.e("s_lshl_b32 s47, s4, 8")
        k.e("s_add_u32 s5, s5, s47")
    FX = int(opt.get('fx', 1))
    def ffn_issue(up=68):
        for t in range(2):
            k.e(f"s_lshr_b32 s3, s{42+t}, 4")
            k.e(f"s_mul_i32 s3, s3, {XN_RB}")
            k.e(f"s_and_b32 s47, s{42+t}, 15")
            k.e("s_lshl_b32 s47, s47, 4")
            k.e("s_add_u32 s3, s3, s47")
            k.e(f"v_mov_b32 v{28+t}, s3")
        k.e("v_lshrrev_b32 v24, 4, v0")
        k.e("v_and_b32 v25, 15, v0")
        k.e("v_cmp_eq_u32 vcc, 1, v25")
        k.e("s_lshl_b32 s3, s32, 4")
        k.e("v_add_u32 v26, s3, v24")
        k.e("v_cndmask_b32 v28, v28, v29, vcc")
        k.e("v_lshl_add_u32 v28, v24, 8, v28")
        k.e("v_mul_u32_u24 v26, 7168, v26")
        k.e("v_lshlrev_b32 v24, 1, v24")
        k.e("v_xor_b32 v24, v24, v25")
        k.e("v_xor_b32 v25, 8, v24")
        k.e("v_lshl_add_u32 v24, v24, 4, v26")
        k.e("v_lshl_add_u32 v25, v25, 4, v26")
        k.e("s_lshl_b32 s3, s92, 12")
        for q in range(4):
            k.e(f"buffer_load_dwordx4 {A(XS+4*q,4)}, v28, s[20:23], s3 offen offset:{q*1024} sc1")
        ops = []
        for m, srd in enumerate((24, up)):
            for h in range(2):
                for q in range(4):
                    pre = [f"s_add_u32 m0, s54, {m*32768 + h*16384}"] if q == 0 else []
                    ops.append((pre + [f"s_add_u32 s3, s5, {h*64*7168 + q*27648}"],
                                f"buffer_load_dwordx4 v{24 + (q >> 1)}, {S(srd,4)}, s3 offen offset:{q*1024}{ffn_ld} lds"))
        return ops
    def ffn_finish(nv=8):
        k.e("v_lshrrev_b32 v24, 4, v0")
        k.e("v_bfe_u32 v25, v0, 2, 2")
        k.e("v_lshl_add_u32 v26, v24, 3, v25")
        k.e("v_lshlrev_b32 v26, 8, v26")
        k.e("v_and_b32 v27, 3, v0")
        k.e("v_lshl_add_u32 v26, v27, 3, v26")
        k.e("v_and_b32 v27, 1, v24")
        k.e("v_lshl_add_u32 v25, v27, 2, v25")
        k.e("s_lshl_b32 s3, s32, 1")
        k.e("v_xor_b32 v25, s3, v25")
        k.e("v_lshl_add_u32 v26, v25, 5, v26")
        k.e("s_sub_u32 s3, s54, s44")
        k.e("v_add_u32 v26, s3, v26")
        k.e("v_xor_b32 v27, 32, v26")
        k.e(f"s_waitcnt vmcnt({nv}) lgkmcnt(0)")
        k.use('ffn')
        k.e("s_barrier")
        for m in range(2):
            for q in range(4):
                for j in range(2):
                    for rd in range(2):
                        k.e(f"ds_read_b64_tr_b16 {V(128 + 32*m + 8*q + 4*j + 2*rd, 2)}, v{26+j} offset:{m*32768 + q*8192 + rd*1024}", tag=f'f{m}')
        k.e("v_and_b32 v25, 15, v0")
        k.e("v_mul_u32_u24 v28, 14336, v25")
        k.e("v_lshl_add_u32 v28, v24, 4, v28")
        k.e(f"v_mov_b32 v29, {BIG}")
        k.e("v_cmp_gt_u32 vcc, 2, v25")
        k.e(f"s_mul_i32 s3, s92, {4*14336}")
        k.e("s_lshl_b32 s47, s4, 9")
        k.e("s_add_u32 s3, s3, s47")
        k.e("v_cndmask_b32 v28, v29, v28, vcc")
        k.e("s_lshl_b32 s47, s32, 7")
        k.e("s_add_u32 s3, s3, s47")
        k.e(f"s_add_u32 s3, s3, {WS_HP}")
        for m in range(2):
            k.wait_ds(f'f{m}')
            for q in range(4):
                for j in range(2):
                    d = V(224 + 8 * m + 4 * j, 4)
                    k.e(mfma(d, V(128 + 32*m + 8*q + 4*j, 4), A(XS + 4*q, 4), d if q else "0"))
    def ffn_store(lo=FX):
        k.e(f"s_cmp_ge_u32 s34, {lo}")
        k.e(f"s_cselect_b32 s3, s3, {1 << 23}")
        k.e(f"s_add_u32 s7, s3, {2*14336}")
        for m in range(2):
            for j in range(2):
                k.e(f"buffer_store_dwordx4 {V(224 + 8*m + 4*j, 4)}, v28, s[20:23], s{7 if m else 3} offen offset:{j*64} sc1", tag='hps')

    def kread(reg, off, kb):
        return [f"ds_read_b128 {A(FR(kb,s_),4)}, v{reg} offset:{off + (kb*4+s_)*1024}" for s_ in range(4)]
    def vread(reg, off, vg):
        return [f"ds_read_b128 {A(FR(vg,j),4)}, v{reg} offset:{off + ((j & 1)*8 + 2*vg + (j >> 1))*1024}" for j in range(4)]
    def qk_mfmas(par, nq, zero=False):
        out = []
        for kb in range(4):
            grp = []
            for qb in range(nq):
                d = V(Sr(par, qb, kb), 4)
                for s_ in range(4):
                    c = d if s_ else ("0" if zero else V(NEGM + 4 * qb, 4))
                    grp.append(mfma(d, A(FR(kb, s_), 4), A(Q(qb, s_), 4), c))
            out.append(grp)
        return out
    def pv_mfmas(par, nq):
        out = []
        for vg in range(4):
            grp = []
            for dd in range(2):
                for qb in range(nq):
                    for ks in range(2):
                        o = A(O(qb, 2 * vg + dd), 4)
                        grp.append(mfma(o, A(FR(vg, 2 * dd + ks), 4), V(P(par, qb, ks), 4), o))
            if vg < nq:
                for ks in range(2):
                    l = V(LS + 4 * vg, 4)
                    grp.append(mfma(l, V(ONES, 4), V(P(par, vg, ks), 4), l))
            out.append(grp)
        return out
    def sm_pairs(par, nq, ks):
        out = []
        for kq in range(2):
            for qb in range(nq):
                s0 = Sr(par, qb, 2 * ks + kq)
                for h in range(2):
                    out.append((s0 + 2 * h, s0 + 2 * h + 1, P(par, qb, ks) + 2 * kq + h))
        return out
    class SM:
        def __init__(self, pairs, first, check):
            self.pairs = pairs; self.ne = 0; self.nc = 0; self.no = 0; self.first = first
            self.tail = [f"v_and_b32 v{T0}, 0x40004000, v{ORR}", f"v_cmp_ne_u32 vcc, 0, v{T0}"] if check else []
            self.e_done = 0; self.extra = []
        def tick(self): self.e_done = self.ne
        def exp_ready(self): return self.ne < 2 * len(self.pairs) and self.ne // 2 - self.nc < 4
        def exp(self):
            j, h = self.ne // 2, self.ne & 1; self.ne += 1
            return f"v_exp_f32 v{ET + 2*(j % 4) + h}, v{self.pairs[j][h]}"
        def plain_avail(self):
            n = min(self.e_done // 2, len(self.pairs)) - self.nc
            n += self.nc // 2 - self.no
            if self.no == len(self.pairs) // 2: n += len(self.tail)
            return n + len(self.extra)
        def plain(self):
            if self.nc < min(self.e_done // 2, len(self.pairs)):
                j = self.nc; self.nc += 1
                return f"v_cvt_pk_bf16_f32 v{self.pairs[j][2]}, v{ET + 2*(j % 4)}, v{ET + 2*(j % 4) + 1}"
            if self.no < self.nc // 2:
                j = self.no; self.no += 1
                a, b = self.pairs[2 * j][2], self.pairs[2 * j + 1][2]
                if self.first and j == 0: return f"v_or_b32 v{ORR}, v{a}, v{b}"
                return f"v_or3_b32 v{ORR}, v{ORR}, v{a}, v{b}"
            if self.no == len(self.pairs) // 2 and self.tail: return self.tail.pop(0)
            if self.extra: return self.extra.pop(0)
            return None
        def left_exp(self): return 2 * len(self.pairs) - self.ne
        def left_plain(self): return len(self.pairs) - self.nc + len(self.pairs) // 2 - self.no + len(self.tail) + len(self.extra)
        def done(self): return self.left_exp() == 0 and self.left_plain() == 0
        def drain(self):
            while not self.done():
                self.tick()
                if self.exp_ready():
                    k.e(self.exp())
                    if self.exp_ready(): k.e(self.exp())
                    x = self.plain()
                    if x: k.e(x)
                else:
                    k.e(self.plain())
    def phase(groups, gtags, reads, rtags, sm, vm, nexttag):
        total = sum(len(g) for g in groups)
        vmpos = {}
        if vm:
            step = max(2, (total - 2) // len(vm))
            for j, x in enumerate(vm): vmpos[1 + j * step] = x
        n = 0
        k.wait_ds(gtags[0])
        for gi, grp in enumerate(groups):
            rq = list(reads[gi])
            for mi, m in enumerate(grp):
                k.e(m)
                sm.tick()
                scal = []
                if n + 1 in vmpos: scal += vmpos[n + 1][0]
                lastm = mi == len(grp) - 1
                if n in vmpos:
                    for s in scal: k.e(s)
                    k.e(vmpos[n][1], tag='kv')
                    slots = 0
                else:
                    for s in scal: k.e(s)
                    if lastm:
                        nt = gtags[gi + 1] if gi + 1 < len(groups) else nexttag
                        if nt: k.wait_ds(nt)
                    slots = 2
                    gaps_left = len([x for x in range(n, n + len(grp) - mi) if x not in vmpos])
                    want_d = len(rq) > 0 and (sm.plain_avail() > 0 or not sm.exp_ready() or len(rq) >= gaps_left - 1)
                    if want_d:
                        k.e(rq.pop(0), tag=rtags[gi]); slots -= 1
                        if rq and (sm.plain_avail() == 0 or len(rq) >= gaps_left):
                            k.e(rq.pop(0), tag=rtags[gi]); slots -= 1
                    if slots == 2 and sm.exp_ready() and not (sm.plain_avail() >= 3 and not rq):
                        k.e(sm.exp()); slots = 0
                    while slots > 0:
                        x = sm.plain()
                        if not x: break
                        k.e(x); slots -= 1
                if lastm:
                    for s in rq: k.e(s, tag=rtags[gi])
                    nt = gtags[gi + 1] if gi + 1 < len(groups) else nexttag
                    if nt: k.wait_ds(nt)
                n += 1
        sm.drain()

    def mask_block(par, qb):
        vr = VRA if qb & 1 else VRB
        for kb in range(4):
            for r in range(4): k.e(f"v_cmp_gt_i32 s[{56+2*r}:{57+2*r}], {16*kb + r}, v{vr}")
            if kb == 0: k.e("s_nop 3")
            for r in range(4):
                x = Sr(par, qb, kb) + r
                k.e(f"v_cndmask_b32 v{x}, v{x}, v{NINF}, s[{56+2*r}:{57+2*r}]")
    def rowmax(par, qb, d, o=k):
        s0 = Sr(par, qb, 0)
        o.e(f"v_max3_f32 v{d}, v{s0}, v{s0+1}, v{s0+2}")
        for r in range(3, 15, 2): o.e(f"v_max3_f32 v{d}, v{d}, v{s0+r}, v{s0+r+1}")
        o.e(f"v_max_f32 v{d}, v{d}, v{s0+15}")
        o.e(f"v_mov_b32 v{T0}, v{d}")
        o.e(f"v_permlane16_swap_b32 v{T0}, v{d}")
        o.e(f"v_max_f32 v{d}, v{d}, v{T0}")
        o.e(f"v_mov_b32 v{T0}, v{d}")
        o.e(f"v_permlane32_swap_b32 v{T0}, v{d}")
        o.e(f"v_max_f32 v{d}, v{d}, v{T0}")
        o.e(f"v_add_f32 v{d}, {opt.get('moff', '0x41f80000')}, v{d}")
    def fallback(par, nq, nqn):
        k.e("s_nop 7")
        for qb in range(nq):
            rowmax(par, qb, 21)
            k.e("v_max_f32 v21, 0, v21")
            for r in range(16): k.e(f"v_sub_f32 v{Sr(par,qb,0)+r}, v{Sr(par,qb,0)+r}, v21")
            if qb < nqn:
                for r in range(16): k.e(f"v_sub_f32 v{Sr(par^1,qb,0)+r}, v{Sr(par^1,qb,0)+r}, v21")
            for r in range(4): k.e(f"v_sub_f32 v{NEGM+4*qb+r}, v{NEGM+4*qb+r}, v21")
            k.e("v_exp_f32 v22, -v21")
            for r in range(4): k.e(f"v_mul_f32 v{LS+4*qb+r}, v{LS+4*qb+r}, v22")
            for r0 in range(0, 32, 8):
                for r in range(8): k.e(f"v_accvgpr_read_b32 v{ET+r}, a{O(qb,0)+r0+r}")
                for r in range(8): k.e(f"v_mul_f32 v{ET+r}, v{ET+r}, v22")
                for r in range(8): k.e(f"v_accvgpr_write_b32 a{O(qb,0)+r0+r}, v{ET+r}")
        for ks in range(2):
            for (s0, s1, pd) in sm_pairs(par, nq, ks):
                k.e(f"v_exp_f32 v{ET}, v{s0}")
                k.e(f"v_exp_f32 v{ET+1}, v{s1}")
                k.e(f"v_cvt_pk_bf16_f32 v{pd}, v{ET}, v{ET+1}")
        k.e("s_nop 1")
    SPLIT = {4: (32, 16, 8), 3: (36, 18, 9), 2: (17, 8, 4), 1: (16, 8, 4), 0: (0, 0, 0)}
    def tile_sm(par, nq, start, check):
        sm = SM(sm_pairs(par, nq, 0) + sm_pairs(par, nq, 1), True, check)
        sm.ne, sm.nc, sm.no = start; sm.e_done = sm.ne
        return sm
    def pack(ngaps, vmg, dsl, sm, limit, last_sm, pre):
        plan = {}
        dsl = list(dsl)
        def exp_ok(): return sm.exp_ready() and (limit is None or sm.ne < limit[0])
        def plain_n():
            n = min(sm.e_done // 2, len(sm.pairs), limit[1] if limit else 1 << 30) - sm.nc
            n += min(sm.nc // 2, limit[2] if limit else 1 << 30) - sm.no
            if limit is None and sm.no == len(sm.pairs) // 2: n += len(sm.tail)
            return n + len(sm.extra)
        def take_plain():
            if limit is not None:
                c_ok = sm.nc < min(sm.e_done // 2, limit[1]); o_ok = sm.no < min(sm.nc // 2, limit[2])
                if not c_ok and not o_ok: return sm.extra.pop(0) if sm.extra else None
                if not c_ok:
                    keep = sm.e_done; sm.e_done = 2 * sm.nc; x = sm.plain(); sm.e_done = keep; return x
            return sm.plain()
        for g in range(-1 if pre else 0, ngaps):
            if g in vmg: sm.tick(); continue
            sm.tick()
            ops = []
            smok = g <= last_sm
            av = [d for d in dsl if d[2] <= g]
            free_to = lambda dl: len([x for x in range(g, dl + 1) if x not in vmg])
            urgent = any(sum(1 for d in dsl if d[3] <= e[3]) >= 2 * free_to(e[3]) - 1 for e in av)
            pn = plain_n() if smok else 0
            if smok and exp_ok() and not urgent and not (av and pn) and not (pn >= 3):
                ops.append((sm.exp(), None))
            else:
                slots = 2
                if av and g >= 0:
                    d = av.pop(0); dsl.remove(d); ops.append((d[0], d[1])); slots -= 1
                    if av and (pn == 0 or sum(1 for x in dsl if x[3] <= av[0][3]) >= 2 * free_to(av[0][3]) - 1):
                        d = av.pop(0); dsl.remove(d); ops.append((d[0], d[1])); slots -= 1
                while slots and smok:
                    x = take_plain()
                    if not x: break
                    ops.append((x, None)); slots -= 1
                if not ops and smok and exp_ok(): ops.append((sm.exp(), None))
            plan[g] = ops
            if g == last_sm:
                while (limit is None and not sm.done()) or (limit is not None and ((sm.ne, sm.nc, sm.no) != limit or sm.extra)):
                    sm.tick()
                    x = sm.exp() if exp_ok() else take_plain()
                    plan[g].append((x, None)); k.overflow += 1
        assert not dsl, dsl
        return plan
    k.overflow = 0
    SLK = int(opt.get('slk', -1))
    def emit_phase(mf, plan, vmg, scal, bg=None, vtag=None, sbg=None):
        for s_, tg in plan.get(-1, []): k.e(s_, tag=tg)
        for g, m in enumerate(mf):
            k.e(m)
            for x in scal.get(g, []):
                if isinstance(x, tuple) and x[0] == 'u': k.use(x[1])
                elif isinstance(x, tuple) and x[0] == 'call': x[1]()
                elif isinstance(x, tuple): k.wait_ds(x[1])
                elif x.endswith(':'): k.label(x[:-1])
                else: k.e(x)
            if sbg and g > 0 and g not in scal and g not in vmg and sbg.items and sbg.items[0][0] != 'at':
                it = sbg.items.pop(0)
                for x in ([it[1]] if it[0] == 'i' else it[1]): k.e(x)
                if sbg.items[0][0] == 'i' and len(plan.get(g, [])) < 2: k.e(sbg.items.pop(0)[1])
            if g in vmg: k.e(vmg[g], tag=(vtag if ('s39' in vmg[g] or ' s3 ' in vmg[g]) else None))
            else:
                for s_, tg in plan.get(g, []): k.e(s_, tag=tg)
                if bg and not plan.get(g) and g not in scal: bg.fill(k, 99, 3)
    p4s = p4_setup(opt)
    def starts(groups):
        out = [0]
        for g in groups: out.append(out[-1] + len(g))
        return out
    def iteration(par, nq, nqn, mask, name, tail):
        kreg, koff = (VX, 32768) if par == 0 else (VY, 0)
        vreg, voff = (VX, 16384) if par == 0 else (VX, 49152)
        nreg, noff = (VY, 0) if par == 0 else (VY, 32768)
        last = nqn == 1
        k.hot = nqn >= 2
        ov0 = k.overflow
        fb, fr = f"L_k2_fb_{name}", f"L_k2_fbr_{name}"
        ool.append((fb, lambda: fallback(par, nq, nqn), fr))
        sm = tile_sm(par, nq, SPLIT[nq], True)
        if par == 0:
            k.e(f"v_xor_b32 v{VX}, 65536, v{VX}")
            k.e(f"v_xor_b32 v{VY}, 65536, v{VY}")
        if nqn:
            k.dq = ['k1'] * 4
            if nq == 4 and WARM: sm.extra = ["v_lshl_add_u64 v[28:29], s[40:41], 0, v[28:29]"]
            grp = qk_mfmas(par ^ 1, nqn); st_ = starts(grp); n1 = st_[-1]
            slack = SLK if nqn <= 2 else 4
            dsl = [(x, 'k2', 0, st_[1] + slack) for x in kread(kreg, koff, 2)] + [(x, 'k3', 0, st_[2] + slack) for x in kread(kreg, koff, 3)] + \
                  [(x, 'v0', st_[1], st_[3] + slack) for x in vread(vreg, voff, 0)] + [(x, 'v1', st_[2], n1 - 1) for x in vread(vreg, voff, 1)]
            scal = {}
            add = lambda g, xs: scal.setdefault(g, []).extend(xs)
            add(st_[1] - 1, [('w', 'k1')]); add(st_[2] - 1, [('w', 'k2')]); add(st_[3] - 1, [('w', 'k3')])
            vmw = f"s_waitcnt vmcnt({12 + min(int(opt.get('fp1', 4)), 3)})" if last else "s_waitcnt vmcnt(12)"
            if nq == 2:
                add(n1 - 7, ["s_cmp_lt_u32 s37, s52"])
                add(n1 - 6, [f"s_cbranch_scc1 L_nw_{name}", vmw, f"L_nw_{name}:"])
            else:
                add(n1 - 5, [vmw])
            if mask and mask[1]: add(n1 - 4, [f"s_cmp_eq_u32 s37, s{mask[1]}"])
            add(n1 - 3, ([] if 'nochk' in opt else [('u', f'V{par}'), ('u', 'c19' if par == 0 else 'c21'), ('u', 'c20' if par == 0 else 'c22')]) + ["s_barrier"]); add(n1 - 2, [('w', 'v0')]); add(n1 - 1, [f"s_cbranch_vccnz {fb}", fr + ":"])
            vmg = {}
            if last:
                fops = ffn_issue()
                for q in (1, 5, 8, 12)[:int(opt.get('fp1', 4))]:
                    pre, ld = fops.pop(0)
                    vmg[q] = ld; scal.setdefault(q - 1, []).extend(pre)
            else:
                step = (n1 - 8) / 4
                for j in range(4):
                    q = int(1 + j * step)
                    while q in scal or (j == 0 and q - 1 in scal): q += 1
                    vmg[q] = f"buffer_load_dwordx4 v{VDMA}, s[12:15], s38 offen offset:{j*1024}{kv_ld} lds"
                    if j == 0: scal[q - 1] = ["s_mov_b32 m0, s53" if par == 0 else "s_add_u32 m0, s53, 32768"]
            plan = pack(n1, vmg, dsl, sm, None, n1 - 2, par == 1)
            emit_phase(sum(grp, []), plan, vmg, scal, None, 'ffn')
        else:
            k.dq = ['v1'] * 4
            sm.drain()
            k.e(f"s_cbranch_vccnz {fb}")
            k.label(fr)
        grp = pv_mfmas(par, nq); st_ = starts(grp); n2 = st_[-1]
        slack = SLK if nq <= 2 else 4
        dsl = [(x, 'v2', 0, st_[1] + slack) for x in vread(vreg, voff, 2)] + [(x, 'v3', 0, st_[2] + slack) for x in vread(vreg, voff, 3)]
        scal = {st_[1] - 1: [('w', 'v1')], st_[2] - 1: [('w', 'v2')], st_[3] - 1: [('w', 'v3')]}
        vmg = {}
        if nqn:
            nx = [vread(VX, 49152, 0), vread(VX, 49152, 1)] if last else [kread(nreg, noff, 0), kread(nreg, noff, 1)]
            dsl += [(x, 'k0', st_[1], st_[3] + slack - 1) for x in nx[0]] + [(x, 'k1', st_[2], n2 - 2) for x in nx[1]]
            if mask:
                mb, mr = f"L_k2_mk_{name}", f"L_k2_mkr_{name}"
                if mask[1]: scal[0] = [f"s_cbranch_scc1 {mb}", mr + ":"]
                else: scal[0] = [('call', lambda: mask_block(par ^ 1, mask[0]))]
            scal[n2 - 2] = [('w', 'k0')]
            if tail: scal[n2 - 3] = [tail[0]]; scal[n2 - 1] = [tail[1]]
            def put(x, lo):
                q = lo
                while q in scal or q in vmg: q += 1
                assert q < n2 - 3, (x, q)
                scal[q] = [x]
            if last:
                for j, (pre, ld) in enumerate(fops):
                    q = 2 + (j * (n2 - 4)) // len(fops)
                    vmg[q] = ld
                    scal.setdefault(q - 1, []).extend(pre)
                    if q in scal: scal[q - 1].extend(scal.pop(q))
            else:
                mv = "s_add_u32 m0, s54, 49152" if par == 0 else "s_add_u32 m0, s53, 16384"
                vm = [f"buffer_load_dwordx4 v{VDMA}, s[12:15], s39 offen offset:{j*1024}{kv_ld} lds" for j in range(4)]
                if nq == 4 and WARM: vm.append("global_load_dword v30, v[28:29], off")
                step = (n2 - 4) / len(vm)
                pos = []
                for j in range(len(vm)):
                    q = int(2 + j * step)
                    while q in scal or q in vmg or (j == 0 and q - 1 in scal): q += 1
                    vmg[q] = vm[j]; pos.append(q)
                    if j == 0: scal[q - 1] = [mv]
                if name == "ne":
                    q = 3
                    while any(x in scal or x in vmg for x in (q, q + 1)): q += 1
                    scal[q] = ["s_cmp_eq_u32 s37, s52"]; scal[q + 1] = ["s_cbranch_scc1 L_pubB", "L_pubBr:"]
                    put("s_add_u32 s37, s37, 1", q + 2)
                else:
                    put("s_add_u32 s37, s37, 1", 1)
                put(f"s_add_u32 s38, s38, {KV_TILE}", 1)
                if par == 1:
                    put("s_xor_b32 s53, s53, 65536", pos[0]); put("s_xor_b32 s54, s54, 65536", pos[0])
                put(f"s_add_u32 s39, s39, {KV_TILE}", pos[3] + 1)
        sm = tile_sm(par ^ 1, nqn, (0, 0, 0), False)
        lastg = n2 - 2 if nqn else n2 - 1
        while lastg in vmg: lastg -= 1
        plan = pack(n2 - 1 if nqn else n2, vmg, dsl, sm, SPLIT[nqn], lastg, False)
        emit_phase(sum(grp, []), plan, vmg, scal, None if nqn else p4s, 'ffn' if last else f'V{par}', p4s if last else None)
        print(f"iteration {name}: overflow ops {k.overflow - ov0}")
        k.hot = False
    def epilogue(q0, srow):
        k.e(f"s_lshl_b32 s3, s{srow}, 20")
        k.e("s_lshl_b32 s47, s33, 15")
        k.e("s_add_u32 s3, s3, s47")
        k.e("s_lshl_b32 s47, s32, 10")
        k.e("v_lshlrev_b32 v248, 4, v0")
        k.e("v_add_u32 v249, s47, v248")
        k.e("s_sub_u32 s47, 7168, s47")
        k.e("v_add_u32 v248, s47, v248")
        for qq in range(2):
            k.e(f"v_rcp_f32 v{250+2*qq}, v{LS+4*(q0+qq)}")
        for qq in range(2):
            k.e(f"v_mov_b32 v{251+2*qq}, v{250+2*qq}")
        for s_ in range(4):
            for qq in (1, 0):
                o = O(q0 + qq, 2 * s_)
                d = 24 + 4 * qq
                for r in range(8): k.e(f"v_accvgpr_read_b32 v{240+r}, a{o+r}")
                for r in range(0, 8, 2): k.e(f"v_pk_mul_f32 {V(240+r,2)}, {V(240+r,2)}, {V(250+2*qq,2)}")
                for r in range(4): k.e(f"v_cvt_pk_bf16_f32 v{d+r}, v{240+2*r}, v{240+2*r+1}")
                k.e(f"buffer_store_dwordx4 {V(d,4)}, v{248+qq}, s[16:19], s3 offen{opt.get('ctx_st',' sc1')}")
            if s_ < 3: k.e("s_add_u32 s3, s3, 8192")

    for kb in range(2, 4):
        for s in kread(VY, 0, kb): k.e(s, tag=f'k{kb}')
    def first_max(o, qb):
        rowmax(0, qb, 22, o)
        if PKM:
            o.e("v_sub_f32 v22, 0, v22"); o.e("v_mov_b32 v23, v22")
            for r in range(0, 16, 2): o.e(f"v_pk_add_f32 {V(Sr(0,qb,0)+r,2)}, {V(Sr(0,qb,0)+r,2)}, v[22:23]")
            for r in range(4): o.e(f"v_mov_b32 v{NEGM+4*qb+r}, v22")
        else:
            for r in range(16): o.e(f"v_sub_f32 v{Sr(0,qb,0)+r}, v{Sr(0,qb,0)+r}, v22")
            for r in range(4): o.e(f"v_sub_f32 v{NEGM+4*qb+r}, 0, v22")
    c = b2
    c.items += conv_items(2) + conv_items(3) + zrest
    for r in list(range(XR(30, 0), XR(30, 0) + 16)) + list(range(XR(31, 0), XR(31, 0) + 16)): c.e(f"v_accvgpr_write_b32 a{r}, 0")
    for r in range(4): c.e(f"v_mov_b32 v{ONES+r}, 0x3f803f80")
    c.e(f"v_mov_b32 v{NINF}, 0xff800000")
    first_max(c, 0); first_max(c, 1)
    for qb in range(4):
        while any(it[0] == 'mark' and it[1] == f'conv{qb}' for it in c.items): c.fill(k, 99, 2)
        for kb in range(4):
            k.wait_ds(f'k{kb}')
            if qb == 3 and kb == 2:
                k.e(f"s_waitcnt vmcnt({min(k.vm_n('c18'), k.vm_n('c17'))})")
                assert k.vm_n('wts') is None
                k.use('c17'); k.use('c18')
                k.e("s_barrier")
                if WOT:
                    k.e("s_mov_b64 exec, 1")
                    k.e("buffer_store_dword v24, v25, s[20:23], s52 offen sc1")
                    k.e("s_mov_b64 exec, -1")
                k.e("s_add_u32 s53, s44, 65536")
                if TK:
                    k.e("v_mov_b32 v27, 1")
                    k.e("v_mov_b32 v26, 0")
                    k.e("s_cmp_eq_u32 s32, 0")
                    k.e("s_cselect_b32 s3, 128, s64")
                    k.e("s_mov_b64 exec, 1")
                    k.e("buffer_atomic_add v27, v26, s[28:31], s3 offen sc0 sc1")
                    k.e("s_mov_b64 exec, -1")
            for s_ in range(4):
                d = V(Sr(0, qb, kb), 4)
                k.e(mfma(d, A(FR(kb, s_), 4), A(Q(qb, s_), 4), d if s_ else "0"))
                if qb == 3 and kb >= 2: k.e(kread(VY, 32768, kb - 2)[s_], tag=f'n{kb-2}')
                c.fill(k, 99, int(opt.get('pslots', 4)))
    c.drain(k)
    k.e(f"s_mov_b32 s38, {4*KV_TILE}")
    k.e(f"s_mov_b32 s39, {3*KV_TILE + KV_CH}")
    k.e("s_cmp_lg_u32 s34, 0")
    k.e("s_cbranch_scc1 L_k2_nomask0")
    mask_block(0, 3)
    k.label("L_k2_nomask0")
    k.e("s_mov_b32 s37, 0")
    first_max(k, 2); first_max(k, 3)
    SM(sm_pairs(0, 4, 0), True, False).drain()
    k.e("s_waitcnt lgkmcnt(4)")
    k.stamp(ST or SA)

    k.e("s_cmp_eq_u32 s34, 0")
    k.e("s_cbranch_scc1 L_k2_wlast")
    k.e("s_branch L_k2_wloop")
    for nm, qb in (("wo", 3), ("tr", 1), ("no", 1)):
        k.label(f"L_k2_mk_{nm}"); k.win = []
        mask_block(0, qb)
        k.e(f"s_branch L_k2_mkr_{nm}")
    k.label("L_pubB"); k.win = []
    k.e("v_mov_b32 v24, 1"); k.e("v_mov_b32 v25, 0")
    k.e("s_mov_b64 exec, 1")
    k.e("buffer_store_dword v24, v25, s[20:23], s64 offen sc1")
    k.e("s_mov_b64 exec, -1")
    k.e("s_branch L_pubBr")
    k.label("L_k2_wloop")
    iteration(0, 4, 4, None, "we", [])
    iteration(1, 4, 4, (3, 46), "wo", ["s_cmp_lg_u32 s37, s35", "s_cbranch_scc1 L_k2_wloop"])
    k.label("L_k2_wlast")
    iteration(0, 4, 3, (2, None), "wl", [])
    iteration(1, 3, 2, (1, 45), "tr", [])
    k.stamp(SA)
    if '4' in CPF: emit(code_prefetch("L_k2_fin", "L_p4_end", 32, 56, 160, 164))
    k.e("s_waitcnt vmcnt(9)")
    if TK:
        k.e("v_mov_b32 v26, 131072")
        k.e("s_cmp_lg_u32 s32, 0")
        k.e("s_cbranch_scc1 L_notk")
        k.e("s_mov_b64 exec, 1")
        k.e("ds_write_b32 v26, v27")
        k.e("s_mov_b64 exec, -1")
        k.e("s_waitcnt lgkmcnt(0)")
        k.label("L_notk")
        k.e("s_barrier")
        k.e("ds_read_b32 v23, v26")
    epilogue(2, 34)
    k.e("s_add_u32 s52, s37, 2")
    k.raw(";@b:2")
    for s in p4_ptr_loads(): k.e(s)
    k.e("s_waitcnt vmcnt(8) lgkmcnt(0)")
    if TK: k.e("v_readfirstlane_b32 s93, v23")
    else:
        k.e("s_add_u32 s93, s2, 224")
        k.e("s_and_b32 s93, s93, 255")
    k.e("s_nop 0")
    ffn_ids(93)
    k.e(f"s_cmp_ge_u32 s34, {FX}")
    k.e(f"s_cselect_b32 s5, s5, {1 << 23}")
    k.stamp(SA)
    k.e("s_cmp_eq_u32 s34, 7")
    k.e("s_cbranch_scc1 L_k2_fin")
    k.label("L_k2_nloop")
    nl0 = len(k.lines)
    iteration(0, 2, 2, None, "ne", [])
    iteration(1, 2, 2, (1, 45), "no", ["s_cmp_lg_u32 s37, s36", "s_cbranch_scc1 L_k2_nloop"])
    if 'dbg_drop' in opt:
        drop = opt['dbg_drop'].split(',')
        k.lines[nl0:] = [x for x in k.lines[nl0:] if not any(d in x and not x.endswith(':') for d in drop)]
    k.label("L_k2_fin")
    k.stamp(SA)
    iteration(0, 2, 1, (0, None), "nl", [])
    iteration(1, 1, 0, None, "fi", [])
    k.stamp(ST or SA)
    k.e("s_nop 7")
    epilogue(0, 55)
    k.stamp(SA)
    k.e(f"s_cmp_lt_u32 s34, {FX}")
    k.e("s_cbranch_scc1 L_noffn")
    ffn_finish()
    k.label("L_noffn")
    p4s.drain(k)
    k.stamp(SA)
    k.e("v_mov_b32 v24, 1")
    k.e("v_mul_u32_u24 v25, s65, v0")
    k.e("s_waitcnt vmcnt(0)")
    k.e("s_barrier")
    k.e("s_mov_b64 exec, 3")
    k.e("buffer_store_dword v24, v25, s[20:23], s64 offen sc1")
    k.e("s_mov_b64 exec, -1")
    ffn_store()
    k.e("s_lshl_b32 s33, s4, 3")
    k.e("s_add_u32 s33, s33, s92")
    k.e("s_mov_b32 s65, s33")
    k.stamp(ST or SA)
    if FX >= 2:
        k.e("s_sub_u32 s47, s34, 1")
        k.e(f"s_cmp_lt_u32 s47, {FX - 1}")
        k.e("s_cbranch_scc1 L_f1x")
        k.label("L_f1xr")
        def f1x():
            k.e("s_load_dwordx2 s[6:7], s[0:1], 72")
            ffn_ids(93)
            k.e("s_waitcnt lgkmcnt(0)")
            k.srd(16, 6, 7340032)
            for pre, ld in ffn_issue(16):
                for x in pre: k.e(x)
                k.e(ld, tag='ffn')
            ffn_finish(0)
            k.e("s_barrier")
            ffn_store(0)
        ool.append(("L_f1x", f1x, "L_f1xr"))
    phase4(k, opt, ool, ST, SA)
    k.stamp_dump('stamp' in opt, 66, 0, 32)
    if 'hold' in opt:
        k.e("s_lshl_b32 s3, s32, 8")
        k.e("s_or_b32 s3, s2, s3")
        k.e(f"s_cmp_lg_u32 s3, {opt.get('holdwg', 0)}")
        if 'holdcls' in opt:
            k.e("s_lshr_b32 s3, s2, 5")
            k.e(f"s_cmp_lg_u32 s3, {opt['holdcls']}")
        if opt.get('holdwg') != '999': k.e("s_cbranch_scc1 L_k2_end")
        k.label("L_hold")
        k.e("s_memrealtime s[4:5]")
        k.e("s_waitcnt lgkmcnt(0)")
        k.e(f"s_sub_u32 s3, s4, s{73 + 2 * int(opt.get('holdk', 0))}")
        k.e(f"s_cmp_lt_u32 s3, {int(opt['hold']) * 100}")
        k.e("s_cbranch_scc1 L_hold")
    k.label("L_k2_end")
    k.e("s_endpgm")
    hotool = [x for x in ool if x[0].startswith(("L_f1", "L_f2", "L_c3", "L_spinC", "L_yA", "L_yB", "L_yC"))]
    for lab, fn, ret in hotool + [("L_p4_end", None, None)] + [x for x in ool if x not in hotool]:
        k.label(lab)
        if fn is None: continue
        k.win = []; k.dq = []
        fn()
        k.e(f"s_branch {ret}")
    return k.wrap(256, 256), f"; @launch {'kernel=' + KNAME + ' ' if 'aslist' in opt else ''}grid=(256,1,1) block=(256,1,1) lds={K12_LDS}"
```

```python
from fw import *
from layout import *
import p4, p4b, p4c
KNAME = 'recurrent_scan__compressed_kv_cla__moe_arch_mod__prompt_kernel'

K12_LDS = 163840
QSCALE = 0x3e0293ee
BIG = 0x7ff00000

def gen_k12(opt):
    k = Asm(KNAME)
    k.short = "f"
    P4 = {'0': p4, '1': p4b, '2': p4c}[opt.get('s2', '2')]
    p4_ptr_loads, p4_setup, phase4 = P4.p4_ptr_loads, P4.p4_setup, P4.phase4
    ST = opt.get('stamp') == '1'
    S1 = opt.get('stamp') == 'p1'
    S2 = opt.get('stamp') == 'p2'
    SA = opt.get('stamp') == 'a'
    S0 = opt.get('stamp') == 'p0'
    w_ld, a_ld, x_ld = opt.get('w_ld', ''), opt.get('a_ld', ''), opt.get('x_ld', '')
    wq_ld, kv_ld, ffn_ld = opt.get('wq_ld', ''), opt.get('kv_ld', ' sc1'), opt.get('ffn_ld', '')
    MAP = int(opt.get('map', 4))
    WOT = opt.get('wot', '0') == '1'
    TK = opt.get('tk', '0') == '1'
    VOA, VOW, AD, PFO = 2, 6, 10, 47
    AA = [[10, 11], [12, 13]]
    WA = [list(range(16, 24)), [14, 15] + list(range(24, 30))]
    FA = lambda it, ks: 224 + (it % 4) * 8 + 4 * ks
    FW = lambda buf, jd, ks: 64 * buf + 8 * jd + 4 * ks
    def frag_of(isV, it, jd):
        return ((it >> 1) * 8 + jd, it & 1) if isV else (it * 4 + (jd >> 1), jd & 1)
    SRC = lambda n: ('v', 48 + 8 * n) if n < 26 else ('a', 128 + 8 * (n - 26))
    def acc(isV, it, jd):
        n, h = frag_of(isV, it, jd)
        p, r = SRC(n)
        return R(p, r + 4 * h, 4)
    PK = lambda n: 24 + 4 * (n if n < 26 else n - 26)
    VX, VY, VDMA, VRA, VRB, ORR, T0 = 2, 3, 4, 5, 6, 7, 1
    WV, XV, TA = 8, 10, 16
    ET = 8
    ONES, NINF = 16, 20
    NEGM, LS, PB, SB = 32, 48, 64, 128
    P = lambda par, qb, ks: PB + 32 * par + (qb * 2 + ks) * 4
    Sr = lambda par, qb, kb: SB + 64 * par + (qb * 4 + kb) * 4
    O = lambda qb, db: (qb * 8 + db) * 4
    Q = lambda qb, s: 128 + (qb * 4 + s) * 4
    FR = lambda grp, j: 192 + 16 * grp + 4 * j
    QA = lambda db, qb: 128 + (qb * 8 + db) * 4
    XR = lambda kk, qb: ((kk % 8) * 4 + qb) * 4
    P2C = opt.get('p2ch', '0') == '1'
    WF = lambda ks, db: 192 + db * 8 + ks * 4 if P2C else 192 + ks * 32 + db * 4

    k.e("s_cmp_ge_u32 s2, 256")
    k.e("s_cbranch_scc1 L_k2_end")
    k.stamp(ST or S0)
    k.e("s_load_dwordx4 s[4:7], s[0:1], 0")
    k.e("s_load_dwordx2 s[44:45], s[0:1], 56")
    k.e("s_load_dwordx4 s[40:43], s[0:1], 24")
    k.e("s_load_dwordx4 s[64:67], s[0:1], 96")
    k.e("v_lshrrev_b32 v1, 6, v0")
    k.e("v_and_b32 v0, 63, v0")
    k.e("v_readfirstlane_b32 s32, v1")
    def emit(lst, o=None):
        for x in lst:
            if x.endswith(':'): k.label(x[:-1])
            else: k.e(x, tag='cpf')
    CPF = opt.get('cpf', '12346')
    if '1' in CPF: emit(code_prefetch(KNAME, "L_k2_fin", 32, 68, 120, 124))
    k.e("v_lshrrev_b32 v33, 5, v0")
    k.e("v_and_b32 v31, 31, v0")
    k.e("v_lshlrev_b32 v36, 4, v31")
    k.e("v_lshl_add_u32 v35, v33, 11, v36")
    k.e("s_lshl_b32 s36, s2, 14")
    k.e("s_lshl_b32 s37, s32, 12")
    k.e("s_add_u32 s36, s36, s37")
    k.e("s_mov_b32 s18, 4194304")
    k.e("s_mov_b32 s19, 0x20000")
    k.e("s_bfe_u32 s33, s2, 0x30003")
    k.e("s_lshr_b32 s35, s2, 7")
    k.e("s_bfe_u32 s3, s2, 0x10006")
    k.e("s_and_b32 s34, s2, 7")
    k.e("s_lshl_b32 s34, s34, 1")
    k.e("s_add_u32 s34, s34, s3")
    k.e("s_waitcnt lgkmcnt(0)")
    k.stamp(S0)
    k.e("s_mov_b32 s16, s4")
    k.e("s_and_b32 s17, s5, 0xffff")
    XP, WR, XF = 48, 64, 80
    for i in range(4):
        k.e(f"buffer_load_dwordx4 {V(XP+4*i,4)}, v35, s[16:19], s36 offen offset:{i*512}{x_ld}", tag='x')
    k.e("s_cmp_eq_u32 s35, 0")
    k.e("s_cselect_b32 s40, s40, s42")
    k.e("s_cselect_b32 s41, s41, s43")
    k.e("s_lshl_b32 s3, s34, 9")
    k.srd(12, 40, 0, "s3")
    k.e("s_sub_u32 s14, 4194304, s3")
    k.e("s_lshl_b32 s3, s33, 18")
    k.srd(8, 6, 262144, "s3")
    KX = int(opt.get('kx', 7))
    k.e(f"s_and_b32 s58, s2, {KX}")
    def dma_ops(buf):
        ops = []
        for (base, vo, so, srd, fl) in ((57, VOW, 52, 12, w_ld), (56, VOA, 48, 8, a_ld)):
            for hi in range(2):
                ops.append(('s', f"s_add_u32 m0, s{base}, {buf*65536 + hi*4096}"))
                for lo in range(4):
                    ops.append(('g', f"buffer_load_dwordx4 v{vo + (lo&1) + 2*hi}, {S(srd,4)}, s{so+lo} offen offset:{lo*1024}{fl} lds"))
        return ops
    def adv_ops(j):
        x = j ^ (j + 1)
        return [f"v_xor_b32 v{VOW+q}, {x << 19}, v{VOW+q}" for q in range(4)] + [f"v_xor_b32 v{VOA+q}, {x << 7}, v{VOA+q}" for q in range(4)]
    PF0 = int(opt.get('pf0', 2))
    pfc = [PF0]
    def pf_ops():
        j = pfc[0]; pfc[0] += 1
        return [f"buffer_load_dword v1, v{PFO}, s[60:63], 0 offen{opt.get('pf_ld', '')}",
                f"s_mul_i32 vcc_lo, s59, {(j ^ (j + 1)) & 7}", f"v_xor_b32 v{PFO}, vcc_lo, v{PFO}"]
    def setup_P():
        k.e("s_cmp_lt_u32 s32, 2")
        for j in range(3): k.e(f"s_cselect_b32 s{60+j}, s{8+j}, s{12+j}")
        k.e("s_mov_b32 s63, 0x20000")
        k.e(f"s_mov_b32 s59, {64*8192}")
        k.e("s_cselect_b32 s59, 128, s59")
        k.e("s_cselect_b64 vcc, -1, 0")
        k.e("s_cselect_b32 s38, 32, 16")
        k.e("s_lshr_b32 s3, s2, 6")
        k.e("s_cmp_lt_u32 s32, 2")
        k.e("s_cselect_b32 s3, s3, s33")
        k.e("s_lshl_b32 s3, s3, 1")
        k.e("s_and_b32 s39, s32, 1")
        k.e("s_add_u32 s3, s3, s39")
        k.e("s_lshl_b32 s3, s3, 15")
        k.e(f"s_xor_b32 s39, s58, {PF0}")
        k.e("s_mul_i32 s39, s39, s59")
        k.e("s_add_u32 s3, s3, s39")
        k.e("v_lshlrev_b32 v37, 10, v0")
        k.e("v_lshrrev_b32 v38, 2, v0")
        k.e("v_lshlrev_b32 v38, 13, v38")
        k.e("v_and_b32 v39, 3, v0")
        k.e("v_lshl_add_u32 v38, v39, 7, v38")
        k.e(f"v_cndmask_b32 v{PFO}, v38, v37, vcc")
        k.e(f"v_add_u32 v{PFO}, s3, v{PFO}")
        k.e("v_cmp_gt_u32 vcc, s38, v0")
        k.e(f"v_mov_b32 v37, {BIG}")
        k.e(f"v_cndmask_b32 v{PFO}, v37, v{PFO}, vcc")
    def setup_W():
        for j in range(4): k.e(f"s_mov_b32 s{52+j}, {j*15360}")
        k.e("s_lshl_b32 s57, s32, 13")
        k.e("s_add_u32 s56, s57, 32768")
        k.e("s_lshl_b32 s3, s58, 2")
        k.e("s_add_u32 s3, s3, s32")
        k.e("s_lshl_b32 s3, s3, 4")
        k.e("v_add_u32 v30, s3, v33")
        k.e("v_lshlrev_b32 v30, 13, v30")
        k.e("v_lshlrev_b32 v34, 5, v33")
        k.e("v_xor_b32 v34, v34, v36")
        k.e(f"v_add_u32 v{VOW}, v34, v30")
        k.e(f"v_xor_b32 v{VOW+1}, 64, v{VOW}")
        k.e(f"v_xor_b32 v{VOW+2}, {8*8192 + 128}, v{VOW}")
        k.e(f"v_xor_b32 v{VOW+3}, {8*8192 + 192}, v{VOW}")
    def setup_A():
        for j in range(4): k.e(f"s_mov_b32 s{48+j}, {j*7168}")
        k.e("v_lshrrev_b32 v30, 3, v0")
        k.e("v_lshlrev_b32 v30, 10, v30")
        k.e("s_lshl_b32 s3, s32, 16")
        k.e("s_lshl_b32 s39, s58, 7")
        k.e("s_add_u32 s3, s3, s39")
        k.e("v_and_b32 v31, 7, v0")
        k.e("v_lshrrev_b32 v32, 4, v0")
        k.e("v_xor_b32 v31, v31, v32")
        k.e("v_lshl_add_u32 v30, v31, 4, v30")
        k.e(f"v_add_u32 v{VOA}, s3, v30")
        k.e(f"v_xor_b32 v{VOA+1}, 64, v{VOA}")
        k.e(f"v_xor_b32 v{VOA+2}, 32768, v{VOA}")
        k.e(f"v_xor_b32 v{VOA+3}, {32768 + 64}, v{VOA}")
    def setup_D():
        k.srd(20, 66, 8 << 20)
        k.srd(24, 66, 32 * KV_HEAD, WS_KV)
        k.e("v_lshrrev_b32 v32, 4, v0")
        k.e("v_and_b32 v30, 15, v0")
        k.e("s_lshr_b32 s3, s32, 1")
        k.e("s_lshl_b32 s3, s3, 14")
        k.e("s_add_u32 s3, s3, 32768")
        k.e("v_lshlrev_b32 v31, 7, v30")
        k.e("v_add_u32 v31, s3, v31")
        k.e("v_lshrrev_b32 v34, 1, v30")
        k.e("v_xor_b32 v34, v34, v32")
        k.e(f"v_lshl_add_u32 v{AA[0][0]}, v34, 4, v31")
        k.e(f"v_xor_b32 v{AA[0][1]}, 64, v{AA[0][0]}")
        k.e("v_lshrrev_b32 v30, 2, v30")
        k.e("v_lshl_add_u32 v31, v32, 3, v30")
        k.e("v_lshlrev_b32 v31, 9, v31")
        k.e("v_and_b32 v34, 3, v0")
        k.e("v_lshl_add_u32 v31, v34, 3, v31")
        k.e("s_and_b32 s3, s32, 1")
        k.e("s_lshl_b32 s3, s3, 8")
        k.e("v_add_u32 v31, s3, v31")
        k.e("v_and_b32 v34, 1, v32")
        k.e("v_lshl_add_u32 v30, v34, 2, v30")
        k.e(f"v_lshl_add_u32 v{WA[0][0]}, v30, 5, v31")
        for jj in range(1, 8): k.e(f"v_xor_b32 v{WA[0][jj]}, {jj*32}, v{WA[0][0]}")
        for x0, x1 in zip(AA[0] + WA[0], AA[1] + WA[1]): k.e(f"v_add_u32 v{x1}, 65536, v{x0}")
    def act(seq):
        for x in seq.split(','):
            if not x: continue
            if x in 'PWAD': {'P': setup_P, 'W': setup_W, 'A': setup_A, 'D': setup_D}[x]()
            elif x == 'p':
                for s in pf_ops(): k.e(s, tag='pf')
            elif x == 'r':
                k.srd(28, 44, 2048)
                for i in range(4):
                    k.e(f"buffer_load_dwordx4 {V(WR+4*i,4)}, v36, s[28:31], 0 offen offset:{i*512}", tag='wr')
            else:
                st = int(x[1]); h = 0 if x[0] == 'w' else 1
                for t, s in dma_ops(st)[10*h:10*h+10]: k.e(s, tag=x + 'd')
                for s in adv_ops(st)[4*h:4*h+4]: k.e(s)
    PRO = opt.get('pro', 'W,w0,A,P,D,r/a0///').split('/')
    act(PRO[0])
    k.stamp(S0)
    def sum32(v, t):
        for m in ["quad_perm:[1,0,3,2]", "quad_perm:[2,3,0,1]", "row_half_mirror", "row_mirror"]:
            k.e(f"v_add_f32_dpp v{v}, v{v}, v{v} {m} row_mask:0xf bank_mask:0xf")
        k.e(f"v_mov_b32 v{t}, v{v}")
        k.e(f"v_permlane16_swap_b32 v{t}, v{v}")
        k.e(f"v_add_f32 v{v}, v{v}, v{t}")
    k.wait_vm('x')
    k.stamp(S0)
    for i in range(16):
        k.e(f"v_lshlrev_b32 v{XF+2*i}, 16, v{XP+i}")
        k.e(f"v_and_b32 v{XF+2*i+1}, 0xffff0000, v{XP+i}")
    k.e(f"v_pk_add_f32 v[40:41], {V(XF,2)}, {V(XF+2,2)}")
    k.e(f"v_pk_add_f32 v[42:43], {V(XF+4,2)}, {V(XF+6,2)}")
    for i in range(4, 16):
        d = 40 + 2 * (i & 1)
        k.e(f"v_pk_add_f32 {V(d,2)}, {V(d,2)}, {V(XF+2*i,2)}")
    k.e("v_pk_add_f32 v[40:41], v[40:41], v[42:43]")
    k.e("v_add_f32 v38, v40, v41")
    sum32(38, 37)
    k.stamp(S0)
    act(PRO[1])
    k.e("v_mul_f32 v38, 0xba800000, v38")
    k.e("v_mov_b32 v39, v38")
    T = 112
    for i in range(16):
        k.e(f"v_pk_add_f32 {V(T+2*(i&3),2)}, {V(XF+2*i,2)}, v[38:39]")
        d = 40 + 2 * (i & 1)
        if i < 2: k.e(f"v_pk_mul_f32 {V(d,2)}, {V(T+2*(i&3),2)}, {V(T+2*(i&3),2)}")
        else: k.e(f"v_pk_fma_f32 {V(d,2)}, {V(T+2*(i&3),2)}, {V(T+2*(i&3),2)}, {V(d,2)}")
    k.e("v_pk_add_f32 v[40:41], v[40:41], v[42:43]")
    k.e("v_add_f32 v40, v40, v41")
    sum32(40, 37)
    act(PRO[2])
    k.stamp(S0)
    k.e("v_mul_f32 v40, 0x3a800000, v40")
    k.e("v_cvt_pk_bf16_f32 v44, v38, v40")
    k.e("v_lshlrev_b32 v38, 16, v44")
    k.e("v_and_b32 v40, 0xffff0000, v44")
    k.e("v_add_f32 v40, 0x3727c5ac, v40")
    k.e("v_cvt_pk_bf16_f32 v44, v40, v40")
    k.e("v_lshlrev_b32 v40, 16, v44")
    k.e("v_sqrt_f32 v40, v40")
    k.e("v_mov_b32 v39, v38")
    k.e("v_cvt_pk_bf16_f32 v44, v40, v40")
    k.e("v_lshlrev_b32 v44, 16, v44")
    k.e("v_rcp_f32 v40, v44")
    for i in range(16):
        k.e(f"v_pk_add_f32 {V(XF+2*i,2)}, {V(XF+2*i,2)}, v[38:39]")
    k.e("v_fma_f32 v45, -v44, v40, 1.0")
    k.e("v_fma_f32 v40, v45, v40, v40")
    k.e("v_mov_b32 v41, v40")
    for i in range(16):
        k.e(f"v_cvt_pk_bf16_f32 v{XP+i}, v{XF+2*i}, v{XF+2*i+1}")
    for i in range(16):
        k.e(f"v_lshlrev_b32 v{XF+2*i}, 16, v{XP+i}")
        k.e(f"v_and_b32 v{XF+2*i+1}, 0xffff0000, v{XP+i}")
    for i in range(16):
        k.e(f"v_pk_mul_f32 {V(XF+2*i,2)}, {V(XF+2*i,2)}, v[40:41]")
    for i in range(16):
        k.e(f"v_cvt_pk_bf16_f32 v{XP+i}, v{XF+2*i}, v{XF+2*i+1}")
    k.e("s_mul_i32 s3, s32, 4128")
    k.e("s_add_u32 s3, s3, 131072")
    k.e("v_mul_u32_u24 v42, 2064, v33")
    k.e("v_add3_u32 v42, v42, v36, s3")
    for i in range(4):
        k.e(f"ds_write_b128 v42, {V(XP+4*i,4)} offset:{i*512}")
    act(PRO[3])
    k.stamp(S0)
    k.wait_vm('wr')
    k.stamp(S0)
    for i in range(16):
        k.e(f"v_lshlrev_b32 v{XF+2*i}, 16, v{XP+i}")
        k.e(f"v_and_b32 v{XF+2*i+1}, 0xffff0000, v{XP+i}")
        k.e(f"v_lshlrev_b32 v{T+2*(i&3)}, 16, v{WR+i}")
        k.e(f"v_and_b32 v{T+2*(i&3)+1}, 0xffff0000, v{WR+i}")
        d = 42 + 2 * (i & 1)
        if i < 2: k.e(f"v_pk_mul_f32 {V(d,2)}, {V(XF+2*i,2)}, {V(T+2*(i&3),2)}")
        else: k.e(f"v_pk_fma_f32 {V(d,2)}, {V(XF+2*i,2)}, {V(T+2*(i&3),2)}, {V(d,2)}")
    k.e("v_pk_add_f32 v[42:43], v[42:43], v[44:45]")
    k.e("v_add_f32 v45, v42, v43")
    sum32(45, 37)
    k.e("v_cvt_pk_bf16_f32 v45, v45, v45")
    k.e("v_ashrrev_i32 v46, 31, v45")
    k.e("v_or_b32 v46, 0x80000000, v46")
    k.e("v_xor_b32 v45, v45, v46")
    k.e("v_and_b32 v45, 0xffff0000, v45")
    k.e("s_lshr_b32 s3, s36, 11")
    k.e("v_add_u32 v46, s3, v33")
    k.e("v_sub_u32 v44, 0xffff, v46")
    k.e("v_or_b32 v45, v45, v44")
    k.e("v_lshlrev_b32 v44, 2, v46")
    k.e("v_lshlrev_b32 v46, 3, v46")
    k.e("v_xor_b32 v38, 0x80000000, v38")
    k.e("v_mov_b32 v39, v40")
    k.e(f"s_mov_b32 s3, {WS_KEYS}")
    k.e(f"s_mov_b32 s39, {WS_STATS}")
    k.e("s_mov_b32 exec_lo, 1")
    k.e("s_mov_b32 exec_hi, 1")
    k.e("buffer_store_dword v45, v44, s[20:23], s3 offen sc1", tag='ln')
    k.e("buffer_store_dwordx2 v[38:39], v46, s[20:23], s39 offen sc1", tag='ln')
    k.e("s_mov_b64 exec, -1")
    k.e("s_load_dwordx2 s[4:5], s[0:1], 16")
    k.e("s_load_dwordx4 s[40:43], s[0:1], 64")
    k.e("s_load_dwordx2 s[92:93], s[0:1], 40")
    k.e("s_load_dwordx2 s[94:95], s[0:1], 80")
    k.e("s_load_dwordx2 s[100:101], s[0:1], 0")
    act(PRO[4])
    PFN = pfc[0] - 2
    k.srd(28, 64, 256)

    def areads(st, pr):
        return [f"ds_read_b128 {A(FA(it,ks),4)}, v{AA[st & 1][ks]} offset:{it*2048}" for it in (2 * pr, 2 * pr + 1) for ks in range(2)]
    def wfreads(st):
        return [[f"ds_read_b64_tr_b16 {A(FW(st & 1,j,ks)+2*rd,2)}, v{WA[st & 1][j]} offset:{ks*16384+rd*2048}" for rd in range(2)]
                for j in range(8) for ks in range(2)]
    k.stamp(S0)
    k.wait_vm('w0d'); k.wait_vm('a0d')
    k.e("s_waitcnt lgkmcnt(0)")
    k.e("s_barrier")
    k.stamp(ST or S0)
    for s in areads(0, 0): k.e(s, tag='A0_0')
    for n, grp in enumerate(wfreads(0)):
        for s in grp: k.e(s, tag=f'W0_{n // 2}')
    k.e("s_cmp_lg_u32 s35, 0")
    k.e("s_cbranch_scc1 L_k1_vpath")

    def chunk_ops(c):
        kind, j = c
        slot = {'w': j % 4, 'kv': (j + 4) % 8}[kind]
        ops = [('s', f"s_add_u32 m0, s44, {slot * 16384}")]
        if kind == 'w':
            for q in range(4):
                ops.append(('g', f"buffer_load_dwordx4 v{WV + (q >> 1)}, s[8:11], s{48+q} offen offset:{q*1024}{wq_ld} lds"))
            ops.append(('v', f"v_xor_b32 v{WV}, {((j ^ (j + 1)) & 15) << 19}, v{WV}"))
            ops.append(('v', f"v_xor_b32 v{WV+1}, {((j ^ (j + 1)) & 15) << 19}, v{WV+1}"))
        elif kind == 'f':
            for q in range(4):
                ops.append(('g', f"buffer_load_dwordx4 v{12 + (q >> 1) + 2 * (j & 1)}, {S(60 + 8 * (j >> 1), 4)}, s{52+q} offen offset:{q*1024}{ffn_ld} lds"))
        else:
            ops.append(('s', f"s_mov_b32 s7, {j * KV_CH}"))
            for q in range(4):
                ops.append(('g', f"buffer_load_dwordx4 v{VDMA}, s[12:15], s7 offen offset:{q*1024}{kv_ld} lds"))
        return ops
    QX = int(opt.get('qx', -1))
    def xn_ops(kk):
        ops = []
        for qb in range(4):
            so = "s52" if qb & 1 else "s53"
            ops.append(('g', f"buffer_load_dwordx4 {A(XR(kk,qb),4)}, v{XV + (qb >> 1)}, s[20:23], {so} offen offset:{(kk % 2)*1024}{opt.get('xn_ld', ' sc1')}"))
        if kk % 2 == 1 and kk < 31:
            st = kk // 2
            ops.append(('v', f"s_xor_b32 s52, s52, {(st ^ (st + 1)) << 11}"))
            ops.append(('v', "s_add_u32 s53, s52, s58"))
        return ops
    def wreads(kk):
        st = kk // 2
        return [[f"ds_read_b64_tr_b16 {A(WF(ks,db)+2*rd,2)}, v{TA+db} offset:{(st % 4)*16384 + ks*8192 + rd*1024}" for rd in range(2)]
                for db, ks in ([(d, q) for d in range(4 * (kk & 1), 4 * (kk & 1) + 4) for q in range(2)] if P2C else [(d, kk & 1) for d in range(8)])]
    ool = []
    def spin(lab, ret, off, target, vd, vz, sv, sc):
        def fn():
            k.e(f"s_mov_b32 s{sc}, 0x400000")
            k.label(lab + "_l")
            k.e(f"s_sleep {opt.get('slp', 8)}")
            k.e(f"buffer_load_dword v{vd}, v{vz}, s[28:31], {off} offen sc1")
            k.e("s_waitcnt vmcnt(0)")
            k.e(f"v_readfirstlane_b32 s{sv}, v{vd}")
            k.e(f"s_sub_u32 s{sc}, s{sc}, 1")
            k.e(f"s_cmp_eq_u32 s{sc}, 0")
            k.e(f"s_cbranch_scc1 {ret}")
            k.e(f"s_cmp_lt_u32 s{sv}, {target}")
            k.e(f"s_cbranch_scc1 {lab}_l")
        ool.append((lab, fn, ret))
    def srd_rec(b, d, base, nbytes, add=None):
        if add is None:
            b.e(f"s_mov_b32 s{d}, s{base}"); b.e(f"s_and_b32 s{d+1}, s{base+1}, 0xffff")
        else:
            b.blk([f"s_add_u32 s{d}, s{base}, {add}", f"s_addc_u32 s{d+1}, s{base+1}, 0", f"s_and_b32 s{d+1}, s{d+1}, 0xffff"])
        b.e(f"s_mov_b32 s{d+2}, {nbytes}"); b.e(f"s_mov_b32 s{d+3}, 0x20000")

    def phase1_stream(isV):
        b = Rec()
        tg = 'v' if isV else 'k'
        b.e("v_and_b32 v46, 7, v0")
        b.e("v_lshrrev_b32 v1, 3, v0") if False else None
        b.e("v_mul_u32_u24 v30, 2064, v46")
        b.e("v_lshrrev_b32 v31, 3, v0")
        b.e("s_lshl_b32 s3, s32, 9")
        b.e("s_add_u32 s3, s3, 131072")
        b.e("v_lshl_add_u32 v30, v31, 4, v30")
        b.e("v_add_u32 v30, s3, v30")
        b.e("v_lshlrev_b32 v31, 8, v31")
        b.e("v_lshl_add_u32 v46, v46, 4, v31")
        for i in (1, 2, 3, 0):
            b.e(f"ds_read_b128 {V(30+4*i,4)}, v30 offset:{i*128}", tag='xs')
        b.e("s_lshr_b32 s3, s2, 1")
        b.e(f"s_mul_i32 s3, s3, {XN_RB}")
        b.e("s_add_u32 s3, s3, s57")
        b.e("s_and_b32 s39, s2, 1")
        b.e("s_lshl_b32 s39, s39, 7")
        b.e("s_add_u32 s3, s3, s39")
        b.e("s_add_u32 s39, s3, 4096")
        b.at(2)
        for i in range(4):
            b.e(f"buffer_store_dwordx4 {V(30+4*i,4)}, v46, s[20:23], s{3 if i < 2 else 39} offen offset:{(i&1)*2048} sc1", tag='ln')
        b.e("s_lshl_b32 s3, s34, 1")
        b.e("s_and_b32 s36, s32, 1")
        b.e("s_add_u32 s3, s3, s36")
        b.e(f"s_mul_i32 s3, s3, {KV_HEAD}")
        b.e(f"s_mul_i32 s36, s33, {4*KV_TILE}")
        b.e("s_add_u32 s3, s3, s36")
        b.e("s_lshr_b32 s36, s32, 1")
        b.e(f"s_mul_i32 s36, s36, {2*KV_TILE}")
        b.e("s_add_u32 s3, s3, s36")
        b.e(f"s_add_u32 s38, s3, {KV_CH if isV else 0}")
        b.e("s_lshl_b32 s39, s34, 7")
        b.e("s_lshl_b32 s36, s33, 2")
        b.e("s_add_u32 s39, s39, s36")
        b.e(f"s_add_u32 s39, s39, {WS_FLG + (32 if isV else 0)}")
        b.e("v_mov_b32 v30, 1")
        b.e("v_mov_b32 v31, 0")
        b.blk(["s_cmp_eq_u32 s32, 0", f"s_cselect_b32 s39, s39, {BIG}"])
        b.blk(["s_mov_b64 exec, 1", ("buffer_store_dword v31, v31, s[20:23], s39 offen sc1", 'ln'), "s_mov_b64 exec, -1"])
        if MAP == 4:
            b.e("s_and_b32 s33, s2, 7")
            b.e("s_lshl_b32 s33, s33, 2")
            b.e("s_bfe_u32 s3, s2, 0x20003")
            b.e("s_add_u32 s33, s33, s3")
            b.e("s_lshr_b32 s34, s2, 5")
        else:
            b.e("s_and_b32 s33, s2, 6")
            b.e("s_lshl_b32 s33, s33, 2")
            b.e("s_bfe_u32 s3, s2, 0x30003")
            b.e("s_add_u32 s33, s33, s3")
            b.e("s_lshr_b32 s34, s2, 6")
            b.e("s_lshl_b32 s34, s34, 1")
            b.e("s_and_b32 s3, s2, 1")
            b.e("s_add_u32 s34, s34, s3")
        b.e("s_lshl_b32 s64, s34, 7")
        b.e("s_lshl_b32 s3, s33, 2")
        b.e("s_add_u32 s64, s64, s3")
        b.e(f"s_add_u32 s64, s64, {WS_CFL}")
        b.e("s_lshl_b32 s65, s34, 8")
        b.e("s_sub_u32 s65, 1920, s65")
        b.e("v_mul_u32_u24 v32, s65, v0")
        b.blk(["s_cmp_eq_u32 s32, 0", f"s_cselect_b32 s64, s64, {BIG}"])
        b.blk(["s_mov_b64 exec, 3", ("buffer_store_dword v31, v32, s[20:23], s64 offen sc1", 'ln'), "s_mov_b64 exec, -1"])
        b.e("s_lshl_b32 s3, s2, 2")
        b.e(f"s_add_u32 s3, s3, {WS_HFL}")
        b.e("v_lshlrev_b32 v32, 10, v0")
        b.blk(["s_cmp_eq_u32 s32, 0", f"s_cselect_b32 s3, s3, {BIG}"])
        b.blk(["s_mov_b64 exec, 0x1ff", ("buffer_store_dword v31, v32, s[20:23], s3 offen sc1", 'ln'), "s_mov_b64 exec, -1"])
        b.e("s_lshl_b32 s35, s34, 1")
        b.e("s_sub_u32 s36, 32, s35")
        b.e("s_add_u32 s35, s35, 2")
        b.e("s_lshl_b32 s44, s32, 12")
        b.e("s_lshl_b32 s58, s32, 1")
        b.e("s_sub_u32 s58, 7, s58")
        b.e(f"s_mul_i32 s58, s58, {XN_RB}")
        b.e("s_sub_u32 s3, 15, s34")
        b.e("s_lshl_b32 s45, s3, 3")
        b.e("s_add_u32 s45, s45, s32")
        b.e("s_lshl_b32 s46, s34, 3")
        b.e("s_add_u32 s46, s46, s32")
        srd_rec(b, 68, 42, 7340032)
        b.blk(["s_cmp_eq_u32 s32, 0", f"s_cselect_b32 s37, 0, {BIG}"])
        b.e("s_lshl_b32 s3, s33, 8")
        srd_rec(b, 16, 4, 0, "s3")
        b.e("s_sub_u32 s18, 8388608, s3")
        WQN = int(opt.get('wqn', 4))
        ln_ = (64 if MAP == 4 else 128) // WQN
        b.e(f"v_and_b32 v33, {ln_ - 1}, v0")
        b.e("v_lshrrev_b32 v32, 1, v33")
        b.e("v_and_b32 v33, 1, v0")
        b.e("v_lshlrev_b32 v32, 13, v32")
        b.e("v_lshl_add_u32 v45, v33, 7, v32")
        b.e("s_lshl_b32 s3, s32, 3")
        b.e("s_add_u32 s3, s3, s34")
        if MAP != 4: b.e("s_lshr_b32 s3, s3, 1")
        b.e(f"s_mul_i32 s47, s3, {ln_ // 2 * 8192}")
        WQ0 = int(opt.get('wq0', 6))
        ev = []
        for j in range(WQN): ev.append((WQ0 + j * float(opt.get('wqs', 2)), 'pf', j))
        NS = int(opt.get('cas', 4))
        for j in range(NS): ev.append((5.2 + j * float(opt.get('cad', 1.2)), 'ca', j))
        b.e(f"s_bfe_u32 s6, s2, {(NS.bit_length() - 1) << 16 | 3}")
        b.e("s_lshl_b32 s3, s32, 8")
        b.e("s_or_b32 s6, s6, s3")
        WOP = WOT
        if WOP:
            b.e("v_bfe_u32 v39, v0, 3, 1")
            b.e("v_and_b32 v33, 7, v0")
            b.e("v_lshlrev_b32 v39, 11, v39")
            b.e("v_lshl_add_u32 v39, v33, 7, v39")
            b.e("s_lshr_b32 s3, s2, 1")
            b.e("s_lshl_b32 s3, s3, 16")
            b.e("v_add_u32 v39, s3, v39")
            b.e("s_and_b32 s3, s2, 1")
            b.e("s_lshl_b32 s3, s3, 10")
            b.e("v_add_u32 v39, s3, v39")
            b.e("s_lshl_b32 s3, s32, 14")
            b.e("v_add_u32 v39, s3, v39")
            ev.append((5.99, 'srd', 0))
            for j in range(4): ev.append((float(opt.get('wop0', 6)) + j * 2 + 0.01, 'wo', j))
        late = []
        for step, kind, j in sorted(ev):
            o = b
            if step >= 12:
                o = Rec(); late.append(o)
            o.at(step)
            if kind == 'ca':
                o.check_clear('ln')
                o.blk([f"s_cmp_eq_u32 s6, {j}", f"s_cselect_b32 s3, 0, {BIG}"])
                o.blk(["s_mov_b64 exec, 1", "buffer_atomic_add v30, v31, s[28:31], s3 offen sc1", "s_mov_b64 exec, -1"])
            elif kind == 'srd':
                srd_rec(o, 60, 92, 8388608)
            elif kind == 'wo':
                o.e("buffer_load_dword v44, v39, s[60:63], 0 offen", tag='pf')
                o.e("v_add_u32 v39, 4096, v39")
            else:
                o.e(f"buffer_load_dword v44, v45, s[{16 if step < 12 else 8}:{19 if step < 12 else 11}], s47 offen{opt.get('wqpf_ld', '')}", tag='pf')
                o.e(f"s_add_u32 s47, s47, {1024 // WQN * 8192}")
        b.e("v_lshrrev_b32 v32, 4, v0")
        b.e("v_and_b32 v33, 15, v0")
        b.e("s_lshl_b32 s3, s32, 4")
        b.e("v_add_u32 v34, s3, v32")
        b.e("v_lshlrev_b32 v36, 1, v32")
        b.e("v_xor_b32 v36, v36, v33")
        b.e("v_xor_b32 v37, 8, v36")
        if '2' in CPF:
            b.at(10.1)
            cp = code_prefetch("L_phase2", "L_k2_fin", 32, 6, 40, 38)
            cp = [x.replace("s8", "s3") for x in cp]
            b.blk(cp[:4])
            for x in cp[4:-3]: b.e(x)
            b.blk(cp[-3:-1])
            b.e(cp[-1])
        b.at(12)
        b.e("buffer_load_dword v1, v31, s[28:31], s37 offen sc1", tag='poll')
        for j in range(3): b.e(f"s_mov_b32 s{8+j}, s{16+j}")
        srd_rec(b, 16, 66, 16 << 20, WS_CTX)
        for j in range(4): b.e(f"s_mov_b32 s{48+j}, {j*31744}")
        b.e("v_lshlrev_b32 v35, 13, v34")
        b.e(f"s_and_b32 s52, s33, {3 if QX >= 0 else 0}")
        b.e(f"s_lshl_b32 s3, s52, {19 + max(QX, 0)}")
        b.e(f"s_lshl_b32 s52, s52, {11 + max(QX, 0)}")
        b.e("s_add_u32 s53, s52, s58")
        b.e("v_add_u32 v35, s3, v35")
        b.e(f"v_lshl_add_u32 v{WV}, v36, 4, v35")
        b.e(f"v_lshl_add_u32 v{WV+1}, v37, 4, v35")
        b.e(f"v_lshlrev_b32 v{VX}, 4, v0")
        b.e(f"v_add_u32 v{VY}, 65536, v{VX}")
        b.e(f"v_add_u32 v{VDMA}, s44, v{VX}")
        b.e("v_mov_b32 v7, 0")
        b.e("v_lshlrev_b32 v35, 2, v32")
        b.e("v_sub_u32 v35, v33, v35")
        b.e("s_lshl_b32 s3, s32, 4")
        b.e(f"v_add_u32 v{VRA}, s3, v35")
        b.e("s_sub_u32 s3, 48, s3")
        b.e(f"v_add_u32 v{VRB}, s3, v35")
        b.e(f"s_mul_i32 s3, s33, {KV_HEAD}")
        b.e(f"s_add_u32 s3, s3, {WS_KV}")
        srd_rec(b, 12, 66, 0, "s3")
        b.e(f"s_mul_i32 s14, s36, {KV_TILE}")
        for o in late: b.items += o.items
        ta_setup(b)
        b.at(13.4)
        b.e(f"s_mul_i32 s3, s45, {XN_RB}")
        b.e(f"v_add_u32 v{XV}, s3, v{VX}")
        b.e(f"s_mul_i32 s3, s46, {XN_RB}")
        b.e(f"v_add_u32 v{XV+1}, s3, v{VX}")
        if '6' in CPF:
            b.at(14)
            b.e("v_mov_b32 v14, v40"); b.e("v_mov_b32 v15, v41")
        if 'dbg_noxn' in opt:
            b.e(f"v_mov_b32 v{XV}, {BIG}"); b.e(f"v_mov_b32 v{XV+1}, {BIG}")
        if 'dbg_nowq' in opt: b.e("s_mov_b32 s10, 0")
        if 'dbg_nost' in opt: b.e("s_mov_b32 s26, 0")
        spin(f"L_spinA{tg}", f"L_spinAr{tg}", 0, 256, 1, 7, 3, 47)
        return b
    def ta_setup(b):
        b.e("v_lshrrev_b32 v42, 2, v33")
        b.e("v_lshl_add_u32 v43, v32, 3, v42")
        b.e("v_lshlrev_b32 v43, 8, v43")
        b.e("v_and_b32 v46, 3, v0")
        b.e("v_lshl_add_u32 v43, v46, 3, v43")
        b.e("v_and_b32 v46, 1, v32")
        b.e("v_lshl_add_u32 v42, v46, 2, v42")
        b.e(f"v_lshl_add_u32 v{TA}, v42, 5, v43")
        for db in range(1, 8): b.e(f"v_xor_b32 v{TA+db}, {32*db}, v{TA}")

    NS7 = int(opt.get('ns7', 6))
    def kvstore_ops(n):
        off = (n >> 4) * KV_TILE + (n & 15) * 1024
        return ([f"s_add_u32 s59, s38, {off}"] if n % 4 == 0 else []) + \
               [f"buffer_store_dwordx4 {V(PK(n),4)}, v{VX}, s[24:27], s59 offen offset:{(n % 4)*1024}{opt.get('kv_st', ' sc1')}"]
    def place_vm(g, gt, scal, ops, start, step):
        gi = start
        for t, s, tg in ops:
            if t == 's': scal.setdefault(gi - 1, []).append(s)
            elif t == 'g':
                assert gi not in g and gi < 128, gi
                g[gi] = [s]; gt[gi] = tg; gi += step
            else:
                q = gi - step + 1
                while (q in g and (len(g[q]) >= 2 or g[q][-1].startswith(('buffer', 'ds_read_b64')))) or ((q - start) % step == 0 and q < 127): q += 1
                g.setdefault(min(q, 127), []).append(s)
    vq0, dq0 = list(k.vq), list(k.dq)
    for isV in (0, 1):
        if isV:
            k.label("L_k1_vpath"); k.win = []; k.vq = list(vq0); k.dq = list(dq0)
        b = phase1_stream(isV)
        if S1: k.nstamp = 0
        for st in range(8):
            p = st & 1
            k.stamp(S1)
            g = {}; gt = {}; scal = {}
            for pr in range(4):
                s2, p2 = (st, pr + 1) if pr < 3 else (st + 1, 0)
                if s2 < 8:
                    for q, s in enumerate(areads(s2, p2)):
                        x = 32 * pr + 3 + 4 * q
                        g[x] = [s]; gt[x] = f'A{s2}_{p2}'
                    scal.setdefault(32 * pr + 30, []).append(('w', f'A{s2}_{p2}'))
            if st < 7:
                free = [x for x in range(65, 122, 2) if x not in g]
                for n, grp in enumerate(wfreads(st + 1)):
                    x = free[(n * len(free)) // 16]
                    g[x] = grp; gt[x] = f'W{st+1}'
                scal.setdefault(127, []).append(('w', f'W{st+1}'))
                scal.setdefault(61, []).append(('v', f'w{st+1}d')); scal.setdefault(62, []).append("s_barrier")
                scal.setdefault(93, []).append(('v', f'a{st+1}d')); scal.setdefault(94, []).append("s_barrier")
            if st == 0:
                ops = []
                for h, nm in enumerate(('w1', 'a1')):
                    if nm not in '/'.join(PRO):
                        ops += [(t, s, nm + 'd') for t, s in dma_ops(1)[10*h:10*h+10]] + [('v', s, None) for s in adv_ops(1)[4*h:4*h+4]]
                place_vm(g, gt, scal, ops, 2, int(opt.get('st1s', 2)))
                pfc[0] = 2 + PFN
                for q in range(int(opt.get('pfk', 1))):
                    po = pf_ops()
                    assert 44 + 4 * q not in g
                    g[44 + 4 * q] = [po[0]]; gt[44 + 4 * q] = 'pf'; g[45 + 4 * q] = po[1:] + g.get(45 + 4 * q, [])
            if st < 6:
                d = dma_ops(p); adv = adv_ops(st + 2) if st < 5 else []
                ops = [(t, s, f'w{st+2}d') for t, s in d[:10]] + [('v', s, None) for s in adv[:4]] + \
                      [(t, s, f'a{st+2}d') for t, s in d[10:]] + [('v', s, None) for s in adv[4:]]
                place_vm(g, gt, scal, ops, 64, 4)
                if pfc[0] < 8:
                    po = pf_ops()
                    g[126] = [po[0]] + g.get(126, []); gt[126] = 'pf'
                    g[127] = [po[1]] + g.get(127, []) + [po[2]]
            elif st == 6:
                ops = []
                for c in range(4): ops += [(t, s, f'w{c}') for t, s in chunk_ops(('w', c))]
                place_vm(g, gt, scal, ops, 64, 4)
            else:
                XB = int(opt.get('xb', 28))
                tg = 'v' if isV else 'k'
                scal.setdefault(XB - 2, []).append(('v', 'w0'))
                scal.setdefault(XB, []).extend(["v_readfirstlane_b32 s3, v1", "s_nop 0", "s_or_b32 s3, s3, s37", "s_cmp_lt_u32 s3, 256",
                                                f"s_cbranch_scc1 L_spinA{tg}", f"L_spinAr{tg}:", "s_barrier"])
                ops = []
                for kk in range(4): ops += [(t, s, f'x{kk}') for t, s in xn_ops(kk)]
                place_vm(g, gt, scal, ops, XB + 4, int(opt.get('xs7', 6)) & ~1)
                for n, grp in enumerate(wreads(0)):
                    assert 105 + 2 * n not in g
                    g[105 + 2 * n] = grp
                for n in range(26):
                    b.at(14 + (4 * n + 8) / 64.0)
                    r = SRC(n)[1]
                    for q in range(4): b.e(f"v_cvt_pk_bf16_f32 v{PK(n)+q}, v{r+2*q}, v{r+2*q+1}")
                    m_ = (n * NS7) // 26
                    if (n + 1) * NS7 // 26 > m_:
                        for x in kvstore_ops(m_): b.e(x, tag='kvst')
            if isV: order = [(2 * pr + h, jd, ks) for pr in range(4) for jd in range(8) for h in range(2) for ks in range(2)]
            else: order = [(it, jd, ks) for it in range(8) for jd in range(8) for ks in range(2)]
            for n, (it, jd, ks) in enumerate(order):
                if st == 0:
                    k.wait_ds('A0_0'); k.wait_ds(f'W0_{jd}')
                fa, fw_ = A(FA(it, ks), 4), A(FW(p, jd, ks), 4)
                d = acc(isV, it, jd)
                c = "0" if (st == 0 and ks == 0) else d
                k.e(mfma(d, fa, fw_, c) if isV else mfma(d, fw_, fa, c))
                for x in scal.get(n, []):
                    if isinstance(x, tuple): (k.wait_ds if x[0] == 'w' else k.wait_vm)(x[1])
                    elif x.endswith(':'): k.label(x[:-1])
                    else: k.e(x)
                if n in g:
                    for s in g[n]: k.e(s, tag=gt.get(n))
                elif n not in scal:
                    b.fill(k, 2 * st + n / 64.0)
        print(f"phase1 isV={isV}: items left {len(b.items)}")
        k.stamp(S1)
        b.drain(k)
        k.stamp(S1)
        if not isV:
            k.e("s_branch L_phase2")
            vqK = list(k.vq)
    assert vqK == k.vq
    k.label("L_phase2")
    k.win = []
    k.e("s_nop 7")
    k.stamp(ST)

    b = Rec()
    KY = 56
    SPK = float(opt.get('spk', 1.2))
    def kvstore(n):
        if n < NS7: return
        b.at((n - NS7) / SPK)
        for x in kvstore_ops(n): b.e(x, tag='kvst')
    for n in range(26):
        kvstore(n)
        if 8 <= n < 14:
            m = n + 18
            for q in range(8): b.e(f"v_accvgpr_read_b32 v{48+q}, a{SRC(m)[1]+q}")
            for q in range(4): b.e(f"v_cvt_pk_bf16_f32 v{PK(m)+q}, v{48+2*q}, v{49+2*q}")
    for n in range(26, 32): kvstore(n)
    b.e("v_mov_b32 v12, 1")
    b.e("v_and_b32 v1, 15, v0")
    b.e("v_lshlrev_b32 v1, 2, v1")
    b.e("s_lshr_b32 s6, s33, 1")
    b.e("s_lshl_b32 s6, s6, 7")
    b.e(f"s_add_u32 s6, s6, {WS_FLG}")
    b.blk(["s_cmp_eq_u32 s32, 0", f"s_cselect_b32 s6, s6, {BIG}"])
    SIG = int(opt.get('sig', 25))
    POL = float(opt.get('pol', 27.3))
    b.at(SIG)
    b.blk(["s_mov_b64 exec, 1", "buffer_store_dword v12, v7, s[20:23], s39 offen sc1", "s_mov_b64 exec, -1"])
    b.at(POL)
    b.e("buffer_load_dword v12, v1, s[20:23], s6 offen sc1", tag='poll')
    CK = int(opt.get('ck', 29))
    n_ = 0
    for j in (0, 2, 1, 3, 4, 5, 6):
        for t, s in chunk_ops(('kv', j)):
            if t == 'g':
                b.at(max(CK + n_ * float(opt.get('kvp', 0.09)), {4: 25, 5: 27, 6: 29}.get(j, 0))); n_ += 1
            b.e(s, tag=f'c{16+j}')
    def spinB():
        k.e("s_mov_b32 s59, 0x400000")
        k.label("L_spinB_l")
        k.e(f"s_sleep {opt.get('slp', 4)}")
        k.e("buffer_load_dword v12, v1, s[20:23], s6 offen sc1")
        k.e("s_sub_u32 s59, s59, 1")
        k.e("s_cmp_eq_u32 s59, 0")
        k.e("s_cbranch_scc1 L_spinBx")
        k.e("s_waitcnt vmcnt(0)")
        k.e("v_cmp_ne_u32 vcc, 1, v12")
        k.e("s_cbranch_vccnz L_spinB_l")
        k.label("L_spinBx")
        k.e("s_waitcnt vmcnt(0)")
    ool.append(("L_spinB", spinB, "L_spinBr"))

    b1 = b
    b = Rec()
    srd_rec(b, 60, 40, 7340032)
    RT = [float(x) for x in opt.get('rt', '0,5').split(',')] if '6' in CPF else []
    for x in RT:
        b.at(x)
        b.e("global_load_dword v13, v[14:15], off", tag='keys')
    KT = int((10 - NS7) / SPK) + 3
    b.at(KT)
    b.items.append(('fn', lambda: not any(x in str(it[1]) for it in b1.items for x in ('v[56:59]', 'v[60:63]', 'v[64:67]')), None))
    b.e("s_lshl_b32 s3, s32, 11")
    b.e(f"s_add_u32 s3, s3, {WS_KEYS}")
    for i in range(2):
        b.e(f"buffer_load_dwordx4 {V(KY+4*i,4)}, v{VX}, s[20:23], s3 offen offset:{i*1024} sc1", tag='keys')
    def top2_lane():
        b.e(f"v_max_u32 v14, v{KY}, v{KY+1}")
        b.e(f"v_min_u32 v15, v{KY}, v{KY+1}")
        for i in range(2, 8):
            b.e(f"v_med3_u32 v15, v14, v15, v{KY+i}"); b.e(f"v_max_u32 v14, v14, v{KY+i}")
    b.at(KT + 6)
    b.wait_vm('keys')
    top2_lane()
    b.e("s_lshl_b32 s3, s32, 9")
    b.e("s_add_u32 s3, s3, 131072")
    b.e("v_lshlrev_b32 v13, 3, v0")
    b.e(f"v_add_u32 v{KY}, s3, v13")
    b.e("v_add_u32 v13, 131072, v13")
    b.e(f"ds_write_b64 v{KY}, v[14:15]")
    KB = (KT + 8) | 1
    b.items.append(('before', KB, None))
    b.at(KB)
    for w in range(4): b.e(f"ds_read_b64 {V(KY+2*w,2)}, v13 offset:{w*512}", tag='kx')
    b.at(KB + 0.3)
    b.wait_ds('kx')
    top2_lane()
    def wmax(v, sdst):
        for m in ["quad_perm:[1,0,3,2]", "quad_perm:[2,3,0,1]", "row_half_mirror", "row_mirror"]:
            b.blk([f"v_max_u32_dpp {v}, {v}, {v} {m} row_mask:0xf bank_mask:0xf"])
        b.blk([f"v_readlane_b32 s3, {v}, 0", f"v_readlane_b32 s47, {v}, 16"])
        b.blk([f"v_readlane_b32 s4, {v}, 32", f"v_readlane_b32 s5, {v}, 48"])
        b.blk(["s_max_u32 s3, s3, s47", "s_max_u32 s4, s4, s5", f"s_max_u32 s{sdst}, s3, s4"])
    b.e("v_mov_b32 v13, v14")
    wmax("v13", 40)
    b.blk(["v_cmp_eq_u32 vcc, s40, v14"])
    b.blk(["v_cndmask_b32 v13, v14, v15, vcc"])
    wmax("v13", 41)
    for t in range(2):
        b.e(f"s_and_b32 s3, s{40+t}, 0xffff")
        b.e(f"s_sub_u32 s{42+t}, 0xffff, s3")
    for t in range(2):
        b.e(f"v_mov_b32 v60, s{40+t}")
        b.e("v_not_b32 v61, v60")
        b.e("v_ashrrev_i32 v61, 31, v61")
        b.e("v_or_b32 v61, 0x80000000, v61")
        b.e("v_xor_b32 v60, v60, v61")
        b.e("v_and_b32 v60, 0xffff0000, v60")
        b.e("v_mul_f32 v60, 0xbfb8aa3b, v60")
        b.e("v_exp_f32 v60, v60")
        b.e("v_add_f32 v60, 1.0, v60")
        b.e("v_rcp_f32 v60, v60")
        b.e("v_cvt_pk_bf16_f32 v60, v60, v60")
        b.e(f"v_and_b32 v{64+t}, 0xffff0000, v60")
    b.items.append(('fn', lambda: not any('accvgpr_read' in str(it[1]) or 'cvt' in str(it[1]) for it in b1.items), None))
    for r in range(16): b.e(f"v_mov_b32 v{LS+r}, 0")
    WARM = opt.get('warm', '1') == '1'
    if WARM:
        b.at((28 - NS7) / SPK + 0.5)
        b.items.append(('fn', lambda: not any('v[28:31]' in str(it[1]) for it in b1.items), None))
        WC = int(opt.get('wc', 4))
        upc = 64 - WC * WC
        seg = upc * 32 * 4 * 128
        bufs = [(94, 7340032)] + ([(100, 4194304)] if x_ld else []) + ([] if opt.get('gearly', '1') == '1' else [(60, 7340032)]) + [(68, 7340032)] + ([] if WOT else [(92, 8388608)])
        b.e("s_mul_i32 s3, s34, s34")
        b.e(f"s_mul_i32 s47, s33, {upc}")
        b.e("s_add_u32 s3, s3, s47")
        b.e("s_lshl_b32 s3, s3, 2")
        b.e("s_add_u32 s3, s3, s32")
        b.e("s_lshl_b32 s3, s3, 7")
        b.e(f"s_sub_u32 s3, s3, {512 + WC * WC * 512}")
        b.blk([f"s_cmp_ge_u32 s34, {WC}", "s_cselect_b32 s3, s3, 0", "s_cselect_b32 s40, 512, 0", f"s_cselect_b32 s47, {seg}, 0"])
        first = 0
        for j, (lo, size) in enumerate(bufs):
            b.e(f"v_subrev_u32 v31, {first}, v0")
            b.e("v_mul_lo_u32 v31, v31, s47")
            b.e(f"v_min_u32 v31, {size - seg}, v31")
            if j == 0:
                b.e(f"v_mov_b32 v28, s{lo}"); b.e(f"v_mov_b32 v29, s{lo+1}"); b.e("v_mov_b32 v30, v31")
            else:
                b.e(f"v_mov_b32 v14, s{lo}"); b.e(f"v_mov_b32 v15, s{lo+1}")
                b.blk([f"v_cmp_le_u32 vcc, {first}, v0"])
                b.blk(["v_cndmask_b32 v28, v28, v14, vcc", "v_cndmask_b32 v29, v29, v15, vcc"])
                b.blk(["v_cndmask_b32 v30, v30, v31, vcc"])
            first += -(-size // seg)
        assert first <= 64, first
        b.e("v_add_u32 v30, s3, v30")
        b.e("v_ashrrev_i32 v31, 31, v30")
        b.e("v_lshl_add_u64 v[28:29], v[30:31], 0, v[28:29]")
        b.e("s_mov_b32 s41, 0")
    b.e("v_readfirstlane_b32 s100, v64")
    b.e("v_readfirstlane_b32 s101, v65")
    b.at(SIG)
    for j in range(3): b.e(f"s_mov_b32 s{24+j}, s{60+j}")
    b.e("s_add_u32 s93, s2, 224")
    b.e("s_and_b32 s93, s93, 255")
    b.e("s_mul_i32 s92, s93, 2341")
    b.e("s_lshr_b32 s92, s92, 16")
    b.e("s_mul_i32 s47, s92, 28")
    b.e("s_sub_u32 s4, s93, s47")
    b.e(f"s_mul_i32 s5, s92, {128*7168}")
    b.e("s_lshl_b32 s47, s4, 8")
    b.e("s_add_u32 s5, s5, s47")
    b.e("v_lshrrev_b32 v24, 4, v0")
    b.e("v_and_b32 v25, 15, v0")
    b.e("s_lshl_b32 s3, s32, 4")
    b.e("v_add_u32 v26, s3, v24")
    b.e("v_mul_u32_u24 v26, 7168, v26")
    b.e("v_lshlrev_b32 v24, 1, v24")
    b.e("v_xor_b32 v24, v24, v25")
    b.e("v_lshl_add_u32 v24, v24, 4, v26")
    b.e("v_xor_b32 v25, 128, v24")
    b.e(f"s_mov_b32 s94, {QSCALE}")
    b.e(f"s_mov_b32 s95, {QSCALE}")
    b.e("s_sub_u32 s55, 15, s34")
    b.e("s_sub_u32 s45, s36, 3")
    b.e("s_sub_u32 s46, s35, 3")
    b.e("s_mov_b32 s54, s44")
    b.e("s_sub_u32 s35, s35, 2")
    b.e("s_sub_u32 s36, s36, 2")
    b2 = b
    b3 = Rec()
    WT0 = float(opt.get('wt0', 18))
    WTB = int(opt.get('wtb', 23))
    WTG = int(opt.get('wtg', 8))
    b3.e("s_lshr_b32 s52, s2, 1")
    b3.e("s_lshl_b32 s52, s52, 16")
    b3.e("s_and_b32 s53, s2, 1")
    b3.e("s_lshl_b32 s53, s53, 10")
    b3.e("s_add_u32 s52, s52, s53")
    b3.e("s_lshl_b32 s53, s32, 14")
    b3.e("s_add_u32 s52, s52, s53")
    srd_rec(b3, 28, 92, 8388608)
    for j in range(8):
        b3.at(WT0 + 2 * (j // WTG))
        b3.blk([f"s_add_u32 m0, s57, {65536 + j * 1024}", f"v_xor_b32 v88, {j * 32}, v{VX}",
                (f"buffer_load_dwordx4 v88, s[28:31], s52 offen{opt.get('wo_ld', '')} lds", 'wo'), "s_add_u32 s52, s52, 2048"])
    b3.e("v_lshrrev_b32 v89, 2, v0")
    b3.e("v_lshlrev_b32 v89, 10, v89")
    b3.e("s_lshl_b32 s53, s32, 8")
    b3.e("s_add_u32 s53, s53, 65536")
    b3.e("v_add_u32 v89, s53, v89")
    b3.e("v_mov_b32 v90, 0xff")
    srd_rec(b3, 28, 66, 16 * WO_NT, WS_WOT)
    b3.e("s_and_b32 s52, s2, 1")
    b3.e("s_lshl_b32 s52, s52, 2")
    b3.e("s_add_u32 s52, s52, s32")
    b3.e(f"s_mul_i32 s52, s52, {2 * WO_NT}")
    b3.e("s_lshr_b32 s53, s2, 1")
    b3.e("s_lshl_b32 s53, s53, 12")
    b3.e("s_add_u32 s52, s52, s53")
    b3.at(WTB)
    for q in range(8):
        b3.e(f"v_and_or_b32 v{92 + (q & 1)}, v{TA+q}, v90, v89")
        for rd in range(2):
            b3.e(f"ds_read_b64_tr_b16 {V(96 + 4*q + 2*rd, 2)}, v{92 + (q & 1)} offset:{rd*16384}", tag='wt')
    for q in range(8):
        b3.at(WTB + 1.2 + 0.5 * q)
        b3.wait_ds('wt')
        b3.e(f"buffer_store_dwordx4 {V(96 + 4*q, 4)}, v{VX}, s[28:31], s52 offen offset:{(q & 3)*1024} sc1", tag='wts')
        if q == 3: b3.e(f"s_add_u32 s52, s52, {WO_NT}")
    b3.e("s_and_b32 s52, s2, 1")
    b3.e("s_lshl_b32 s52, s52, 9")
    b3.e("s_lshr_b32 s93, s2, 1")
    b3.e("s_lshl_b32 s93, s93, 2")
    b3.e("s_add_u32 s52, s52, s93")
    b3.e(f"s_add_u32 s52, s52, {WS_WFL}")
    b3.blk(["s_cmp_eq_u32 s32, 0", f"s_cselect_b32 s52, s52, {BIG}"])
    b3.e("v_mov_b32 v24, 1")
    b3.e("v_mov_b32 v25, 0")
    if not WOT: b3.items = []
    PKM = opt.get('pkm', '0') == '1'
    def conv_items(qb):
        r_ = Rec()
        for s_ in range(4):
            r = QA(2 * s_, qb)
            if PKM:
                for e_ in range(0, 8, 2): r_.e(f"v_pk_mul_f32 {V(r+e_,2)}, {V(r+e_,2)}, s[94:95]")
            else:
                for e_ in range(8): r_.e(f"v_mul_f32 v{r+e_}, s94, v{r+e_}")
            for e_ in range(4): r_.e(f"v_cvt_pk_bf16_f32 v{r+e_}, v{r+2*e_}, v{r+2*e_+1}")
            for e_ in range(4): r_.e(f"v_accvgpr_write_b32 a{Q(qb,s_)+e_}, v{r+e_}")
        r_.items.append(('mark', f'conv{qb}', None))
        return r_.items
    p2_start = len(k.lines)
    XLA = int(opt.get('xla', 5))
    xsched = {}; nx_ = 4
    for kk in range(32):
        xsched[kk] = []
        while nx_ < 32 and nx_ <= min(kk + XLA, (kk & ~1) + 7) and len(xsched[kk]) < 2:
            xsched[kk].append(nx_); nx_ += 1
    def boundary_wait(kk):
        st, ks = kk // 2, kk & 1
        need = [f'x{kk | 1}' if P2C else f'x{kk}']
        if ks == 1 and st < 15: need.append(f'w{st+1}')
        if kk == SIG:
            assert not any(it[2] == 'kvst' for it in b1.items), "stores not all issued before SIG"
            need.append('kvst')
        if kk == WTB:
            assert not any(it[0] == 'b' and any(isinstance(x, tuple) for x in it[1]) for it in b3.items)
            need.append('wo')
        if kk == CK:
            assert not b3.items
            need.append('poll')
        if kk == 31: need.append('c16')
        w = [x for x in (k.vm_n(t) for t in need) if x is not None]
        k.e("s_waitcnt " + (f"vmcnt({min(w)}) " if w else "") + "lgkmcnt(0)")
        for t in need: k.use(t)
    def boundary_bar(kk):
        st, ks = kk // 2, kk & 1
        if kk == CK:
            assert not any('vcc' in str(it[1]) for it in b2.items)
            k.e("s_cmp_lg_u32 s32, 0")
            k.e("s_cbranch_scc1 L_spinBr")
            k.e("v_cmp_ne_u32 vcc, 1, v12")
            k.e("s_cbranch_vccnz L_spinB")
            k.label("L_spinBr")
        if ks == 1: k.e("s_barrier")
    for kk in range(32):
        st, ks = kk // 2, kk & 1
        k.stamp(S2 and kk in (0, 4, 8, 12, 16, 20, 24, 28, 31))
        if kk == 0: boundary_wait(0)
        g = {}; gt = {}
        if kk + 1 < 32:
            for n, grp in enumerate(wreads(kk + 1)):
                g[1 + 3 * n] = (["s_waitcnt lgkmcnt(6)"] if n == 5 else []) + grp
        vm = []
        wv = []
        if ks == 1 and st + 4 < 16: wv = [(t, s, f'w{st+4}') for t, s in chunk_ops(('w', st + 4))[:3]]
        if ks == 0 and 4 <= st + 3 < 16: wv = [(t, s, f'w{st+3}') for t, s in chunk_ops(('w', st + 3))[3:]]
        xv_ = []
        for x in xsched.get(kk, []): xv_ += [(t, s, f'x{x}') for t, s in xn_ops(x)]
        vm = wv + xv_
        ng = sum(1 for x in vm if x[0] == 'g')
        free = [x for x in range(2, 29) if x not in g]
        pick = [free[(j * len(free)) // ng] for j in range(ng)] if ng else []
        j = 0
        for t, s, tg in vm:
            if t == 'g': g[pick[j]] = [s]; gt[pick[j]] = tg; j += 1
            elif t == 's':
                q = pick[j] - 1
                if q in gt: g[q].append(s)
                else: g.setdefault(q, []).insert(0, s)
            else:
                q = pick[j - 1] + 1
                while q in pick or (q in g and len([y for y in g[q] if not y.startswith('s_')]) >= 2): q += 1
                g.setdefault(q, []).append(s)
        dbs, qs = (range(4 * ks, 4 * ks + 4), range(2)) if P2C else (range(8), [ks])
        order = [(db, qb, q) for db in dbs for qb in range(4) for q in qs]
        if kk == 31:
            order = [(db, qb, q) for qb in range(4) for db in dbs for q in qs]
            assert all('accvgpr_write' in it[1] for it in b2.items)
            zrest = b2.items; b2.items = []
            for kb in range(2):
                for s_ in range(4): b2.e(f"ds_read_b128 {A(FR(kb,s_),4)}, v{VY} offset:{(kb*4+s_)*1024}", tag=f'k{kb}')
            b2.at(31 + 12 / 32.0)
            b2.items += conv_items(0) + conv_items(1)
        elif kk > (25 if P2C else 24):
            for x in (([kk - 2] if kk < 30 else [28, 29]) if P2C else [kk - 1]):
                for r in range(16): b2.e(f"v_accvgpr_write_b32 a{XR(x,0)+r}, 0")
        for n, (db, qb, q) in enumerate(order):
            k.e(mfma(V(QA(db, qb), 4), A(WF(q, db), 4), A(XR(2 * st + q, qb), 4), V(QA(db, qb), 4) if (st or q) else "0"))
            if kk < 31 and n == 30: boundary_wait(kk + 1)
            if kk < 31 and n == 31: boundary_bar(kk + 1)
            if n in g:
                for s in g[n]: k.e(s, tag=gt.get(n))
            elif kk < 31 and n >= 29:
                for o in (b1, b2):
                    if o.items and o.items[0][0] == 'i' and o.items[0][1].startswith('v_'):
                        it = o.items.pop(0); k.e(it[1])
                        if o.items and o.items[0][0] == 'i' and o.items[0][1].startswith('v_') and o.cost(it) + o.cost(o.items[0]) <= 2:
                            k.e(o.items.pop(0)[1])
                        break
            else:
                nl = k.ni
                b1.fill(k, kk + n / 32.0)
                if k.ni == nl: b3.fill(k, kk + n / 32.0)
                if k.ni == nl: b2.fill(k, kk + n / 32.0)
    print("phase2 items left", len(b1.items), len(b2.items))
    b1.drain(k)
    grp_ = None
    for ln in k.lines[p2_start:] + ["s_mov_b32 m0, 0"]:
        if ' m0,' in ln:
            assert grp_ is None or (len(set(grp_)) == 1 and len(grp_) == (1 if grp_[0] == 's[28:31]' else 4)), grp_
            grp_ = []
        elif ' lds' in ln: grp_.append(ln.split(', ')[1])
    k.stamp(ST or S2)
    XS = 160
    def ffn_ids(item):
        k.e(f"s_mul_i32 s92, s{item}, 2341")
        k.e("s_lshr_b32 s92, s92, 16")
        k.e("s_mul_i32 s47, s92, 28")
        k.e(f"s_sub_u32 s4, s{item}, s47")
        k.e(f"s_mul_i32 s5, s92, {128*7168}")
        k.e("s_lshl_b32 s47, s4, 8")
        k.e("s_add_u32 s5, s5, s47")
    GE_ = opt.get('gearly', '1') == '1'
    FX = int(opt.get('fx', 1))
    def ffn_issue(up=68):
        for t in range(2):
            k.e(f"s_lshr_b32 s3, s{42+t}, 4")
            k.e(f"s_mul_i32 s3, s3, {XN_RB}")
            k.e(f"s_and_b32 s47, s{42+t}, 15")
            k.e("s_lshl_b32 s47, s47, 4")
            k.e("s_add_u32 s3, s3, s47")
            k.e(f"v_mov_b32 v{28+t}, s3")
        k.e("v_lshrrev_b32 v24, 4, v0")
        k.e("v_and_b32 v25, 15, v0")
        k.e("v_cmp_eq_u32 vcc, 1, v25")
        k.e("s_lshl_b32 s3, s32, 4")
        k.e("v_add_u32 v26, s3, v24")
        k.e("v_cndmask_b32 v28, v28, v29, vcc")
        k.e("v_lshl_add_u32 v28, v24, 8, v28")
        k.e("v_mul_u32_u24 v26, 7168, v26")
        k.e("v_lshlrev_b32 v24, 1, v24")
        k.e("v_xor_b32 v24, v24, v25")
        k.e("v_xor_b32 v25, 8, v24")
        k.e("v_lshl_add_u32 v24, v24, 4, v26")
        k.e("v_lshl_add_u32 v25, v25, 4, v26")
        k.e("s_lshl_b32 s3, s92, 12")
        for q in range(4):
            k.e(f"buffer_load_dwordx4 {A(XS+4*q,4)}, v28, s[20:23], s3 offen offset:{q*1024} sc1")
        return ([] if GE_ else ffn_dma(24, "s54", 32768)) + ffn_dma(up, "s54", 0)
    def ffn_dma(srd, base, off):
        ops = []
        for h in range(2):
            for q in range(4):
                pre = [f"s_add_u32 m0, {base}, {off + h*16384}"] if q == 0 else []
                ops.append((pre + [f"s_add_u32 s3, s5, {h*64*7168 + q*27648}"],
                            f"buffer_load_dwordx4 v{24 + (q >> 1)}, {S(srd,4)}, s3 offen offset:{q*1024}{ffn_ld} lds"))
        return ops
    def ffn_finish(nv=8):
        k.e("v_lshrrev_b32 v24, 4, v0")
        k.e("v_bfe_u32 v25, v0, 2, 2")
        k.e("v_lshl_add_u32 v26, v24, 3, v25")
        k.e("v_lshlrev_b32 v26, 8, v26")
        k.e("v_and_b32 v27, 3, v0")
        k.e("v_lshl_add_u32 v26, v27, 3, v26")
        k.e("v_and_b32 v27, 1, v24")
        k.e("v_lshl_add_u32 v25, v27, 2, v25")
        k.e("s_lshl_b32 s3, s32, 1")
        k.e("v_xor_b32 v25, s3, v25")
        k.e("v_lshl_add_u32 v26, v25, 5, v26")
        k.e("s_sub_u32 s3, s54, s44")
        k.e("v_add_u32 v30, s3, v26")
        k.e("v_xor_b32 v31, 32, v30")
        k.e("v_add_u32 v26, 131072, v26" if GE_ else "v_add_u32 v26, 32768, v30")
        k.e("v_xor_b32 v27, 32, v26")
        k.e(f"s_waitcnt vmcnt({nv}) lgkmcnt(0)")
        k.use('ffn')
        k.e("s_barrier")
        for m in range(2):
            for q in range(4):
                for j in range(2):
                    for rd in range(2):
                        k.e(f"ds_read_b64_tr_b16 {V(128 + 32*m + 8*q + 4*j + 2*rd, 2)}, v{26+4*m+j} offset:{q*8192 + rd*1024}", tag=f'f{m}')
        k.e("v_and_b32 v25, 15, v0")
        k.e("v_mul_u32_u24 v28, 14336, v25")
        k.e("v_lshl_add_u32 v28, v24, 4, v28")
        k.e(f"v_mov_b32 v29, {BIG}")
        k.e("v_cmp_gt_u32 vcc, 2, v25")
        k.e(f"s_mul_i32 s3, s92, {4*14336}")
        k.e("s_lshl_b32 s47, s4, 9")
        k.e("s_add_u32 s3, s3, s47")
        k.e("v_cndmask_b32 v28, v29, v28, vcc")
        k.e("s_lshl_b32 s47, s32, 7")
        k.e("s_add_u32 s3, s3, s47")
        k.e(f"s_add_u32 s3, s3, {WS_HP}")
        for m in range(2):
            k.wait_ds(f'f{m}')
            for q in range(4):
                for j in range(2):
                    d = V(224 + 8 * m + 4 * j, 4)
                    k.e(mfma(d, V(128 + 32*m + 8*q + 4*j, 4), A(XS + 4*q, 4), d if q else "0"))
    def ffn_store():
        k.e(f"s_cmp_ge_u32 s34, {FX}")
        k.e(f"s_cselect_b32 s3, s3, {1 << 23}")
        k.e(f"s_add_u32 s7, s3, {2*14336}")
        for m in range(2):
            for j in range(2):
                k.e(f"buffer_store_dwordx4 {V(224 + 8*m + 4*j, 4)}, v28, s[20:23], s{7 if m else 3} offen offset:{j*64} sc1", tag='hps')

    def kread(reg, off, kb):
        return [f"ds_read_b128 {A(FR(kb,s_),4)}, v{reg} offset:{off + (kb*4+s_)*1024}" for s_ in range(4)]
    def vread(reg, off, vg):
        return [f"ds_read_b128 {A(FR(vg,j),4)}, v{reg} offset:{off + ((j & 1)*8 + 2*vg + (j >> 1))*1024}" for j in range(4)]
    def qk_mfmas(par, nq, zero=False):
        out = []
        for kb in range(4):
            grp = []
            for qb in range(nq):
                d = V(Sr(par, qb, kb), 4)
                for s_ in range(4):
                    c = d if s_ else ("0" if zero else V(NEGM + 4 * qb, 4))
                    grp.append(mfma(d, A(FR(kb, s_), 4), A(Q(qb, s_), 4), c))
            out.append(grp)
        return out
    def pv_mfmas(par, nq):
        out = []
        for vg in range(4):
            grp = []
            for dd in range(2):
                for qb in range(nq):
                    for ks in range(2):
                        o = A(O(qb, 2 * vg + dd), 4)
                        grp.append(mfma(o, A(FR(vg, 2 * dd + ks), 4), V(P(par, qb, ks), 4), o))
            if vg < nq:
                for ks in range(2):
                    l = V(LS + 4 * vg, 4)
                    grp.append(mfma(l, V(ONES, 4), V(P(par, vg, ks), 4), l))
            out.append(grp)
        return out
    def sm_pairs(par, nq, ks):
        out = []
        for kq in range(2):
            for qb in range(nq):
                s0 = Sr(par, qb, 2 * ks + kq)
                for h in range(2):
                    out.append((s0 + 2 * h, s0 + 2 * h + 1, P(par, qb, ks) + 2 * kq + h))
        return out
    class SM:
        def __init__(self, pairs, first, check):
            self.pairs = pairs; self.ne = 0; self.nc = 0; self.no = 0; self.first = first
            self.tail = [f"v_and_b32 v{T0}, 0x40004000, v{ORR}", f"v_cmp_ne_u32 vcc, 0, v{T0}"] if check else []
            self.e_done = 0; self.extra = []
        def tick(self): self.e_done = self.ne
        def exp_ready(self): return self.ne < 2 * len(self.pairs) and self.ne // 2 - self.nc < 4
        def exp(self):
            j, h = self.ne // 2, self.ne & 1; self.ne += 1
            return f"v_exp_f32 v{ET + 2*(j % 4) + h}, v{self.pairs[j][h]}"
        def plain_avail(self):
            n = min(self.e_done // 2, len(self.pairs)) - self.nc
            n += self.nc // 2 - self.no
            if self.no == len(self.pairs) // 2: n += len(self.tail)
            return n + len(self.extra)
        def plain(self):
            if self.nc < min(self.e_done // 2, len(self.pairs)):
                j = self.nc; self.nc += 1
                return f"v_cvt_pk_bf16_f32 v{self.pairs[j][2]}, v{ET + 2*(j % 4)}, v{ET + 2*(j % 4) + 1}"
            if self.no < self.nc // 2:
                j = self.no; self.no += 1
                a, b = self.pairs[2 * j][2], self.pairs[2 * j + 1][2]
                if self.first and j == 0: return f"v_or_b32 v{ORR}, v{a}, v{b}"
                return f"v_or3_b32 v{ORR}, v{ORR}, v{a}, v{b}"
            if self.no == len(self.pairs) // 2 and self.tail: return self.tail.pop(0)
            if self.extra: return self.extra.pop(0)
            return None
        def left_exp(self): return 2 * len(self.pairs) - self.ne
        def left_plain(self): return len(self.pairs) - self.nc + len(self.pairs) // 2 - self.no + len(self.tail) + len(self.extra)
        def done(self): return self.left_exp() == 0 and self.left_plain() == 0
        def drain(self):
            while not self.done():
                self.tick()
                if self.exp_ready():
                    k.e(self.exp())
                    if self.exp_ready(): k.e(self.exp())
                    x = self.plain()
                    if x: k.e(x)
                else:
                    k.e(self.plain())
    def phase(groups, gtags, reads, rtags, sm, vm, nexttag):
        total = sum(len(g) for g in groups)
        vmpos = {}
        if vm:
            step = max(2, (total - 2) // len(vm))
            for j, x in enumerate(vm): vmpos[1 + j * step] = x
        n = 0
        k.wait_ds(gtags[0])
        for gi, grp in enumerate(groups):
            rq = list(reads[gi])
            for mi, m in enumerate(grp):
                k.e(m)
                sm.tick()
                scal = []
                if n + 1 in vmpos: scal += vmpos[n + 1][0]
                lastm = mi == len(grp) - 1
                if n in vmpos:
                    for s in scal: k.e(s)
                    k.e(vmpos[n][1], tag='kv')
                    slots = 0
                else:
                    for s in scal: k.e(s)
                    if lastm:
                        nt = gtags[gi + 1] if gi + 1 < len(groups) else nexttag
                        if nt: k.wait_ds(nt)
                    slots = 2
                    gaps_left = len([x for x in range(n, n + len(grp) - mi) if x not in vmpos])
                    want_d = len(rq) > 0 and (sm.plain_avail() > 0 or not sm.exp_ready() or len(rq) >= gaps_left - 1)
                    if want_d:
                        k.e(rq.pop(0), tag=rtags[gi]); slots -= 1
                        if rq and (sm.plain_avail() == 0 or len(rq) >= gaps_left):
                            k.e(rq.pop(0), tag=rtags[gi]); slots -= 1
                    if slots == 2 and sm.exp_ready() and not (sm.plain_avail() >= 3 and not rq):
                        k.e(sm.exp()); slots = 0
                    while slots > 0:
                        x = sm.plain()
                        if not x: break
                        k.e(x); slots -= 1
                if lastm:
                    for s in rq: k.e(s, tag=rtags[gi])
                    nt = gtags[gi + 1] if gi + 1 < len(groups) else nexttag
                    if nt: k.wait_ds(nt)
                n += 1
        sm.drain()

    def mask_block(par, qb):
        vr = VRA if qb & 1 else VRB
        for kb in range(4):
            for r in range(4): k.e(f"v_cmp_gt_i32 s[{56+2*r}:{57+2*r}], {16*kb + r}, v{vr}")
            if kb == 0: k.e("s_nop 3")
            for r in range(4):
                x = Sr(par, qb, kb) + r
                k.e(f"v_cndmask_b32 v{x}, v{x}, v{NINF}, s[{56+2*r}:{57+2*r}]")
    def rowmax(par, qb, d, o=k):
        s0 = Sr(par, qb, 0)
        o.e(f"v_max3_f32 v{d}, v{s0}, v{s0+1}, v{s0+2}")
        for r in range(3, 15, 2): o.e(f"v_max3_f32 v{d}, v{d}, v{s0+r}, v{s0+r+1}")
        o.e(f"v_max_f32 v{d}, v{d}, v{s0+15}")
        o.e(f"v_mov_b32 v{T0}, v{d}")
        o.e(f"v_permlane16_swap_b32 v{T0}, v{d}")
        o.e(f"v_max_f32 v{d}, v{d}, v{T0}")
        o.e(f"v_mov_b32 v{T0}, v{d}")
        o.e(f"v_permlane32_swap_b32 v{T0}, v{d}")
        o.e(f"v_max_f32 v{d}, v{d}, v{T0}")
        o.e(f"v_add_f32 v{d}, {opt.get('moff', '0x41f80000')}, v{d}")
    def fallback(par, nq, nqn):
        k.e("s_nop 7")
        for qb in range(nq):
            rowmax(par, qb, 21)
            k.e("v_max_f32 v21, 0, v21")
            for r in range(16): k.e(f"v_sub_f32 v{Sr(par,qb,0)+r}, v{Sr(par,qb,0)+r}, v21")
            if qb < nqn:
                for r in range(16): k.e(f"v_sub_f32 v{Sr(par^1,qb,0)+r}, v{Sr(par^1,qb,0)+r}, v21")
            for r in range(4): k.e(f"v_sub_f32 v{NEGM+4*qb+r}, v{NEGM+4*qb+r}, v21")
            k.e("v_exp_f32 v22, -v21")
            for r in range(4): k.e(f"v_mul_f32 v{LS+4*qb+r}, v{LS+4*qb+r}, v22")
            for r0 in range(0, 32, 8):
                for r in range(8): k.e(f"v_accvgpr_read_b32 v{ET+r}, a{O(qb,0)+r0+r}")
                for r in range(8): k.e(f"v_mul_f32 v{ET+r}, v{ET+r}, v22")
                for r in range(8): k.e(f"v_accvgpr_write_b32 a{O(qb,0)+r0+r}, v{ET+r}")
        for ks in range(2):
            for (s0, s1, pd) in sm_pairs(par, nq, ks):
                k.e(f"v_exp_f32 v{ET}, v{s0}")
                k.e(f"v_exp_f32 v{ET+1}, v{s1}")
                k.e(f"v_cvt_pk_bf16_f32 v{pd}, v{ET}, v{ET+1}")
        k.e("s_nop 1")
    SPLIT = {4: (32, 16, 8), 3: (36, 18, 9), 2: (17, 8, 4), 1: (16, 8, 4), 0: (0, 0, 0)}
    def tile_sm(par, nq, start, check):
        sm = SM(sm_pairs(par, nq, 0) + sm_pairs(par, nq, 1), True, check)
        sm.ne, sm.nc, sm.no = start; sm.e_done = sm.ne
        return sm
    def pack(ngaps, vmg, dsl, sm, limit, last_sm, pre):
        plan = {}
        dsl = list(dsl)
        def exp_ok(): return sm.exp_ready() and (limit is None or sm.ne < limit[0])
        def plain_n():
            n = min(sm.e_done // 2, len(sm.pairs), limit[1] if limit else 1 << 30) - sm.nc
            n += min(sm.nc // 2, limit[2] if limit else 1 << 30) - sm.no
            if limit is None and sm.no == len(sm.pairs) // 2: n += len(sm.tail)
            return n + len(sm.extra)
        def take_plain():
            if limit is not None:
                c_ok = sm.nc < min(sm.e_done // 2, limit[1]); o_ok = sm.no < min(sm.nc // 2, limit[2])
                if not c_ok and not o_ok: return sm.extra.pop(0) if sm.extra else None
                if not c_ok:
                    keep = sm.e_done; sm.e_done = 2 * sm.nc; x = sm.plain(); sm.e_done = keep; return x
            return sm.plain()
        for g in range(-1 if pre else 0, ngaps):
            if g in vmg: sm.tick(); continue
            sm.tick()
            ops = []
            smok = g <= last_sm
            av = [d for d in dsl if d[2] <= g]
            free_to = lambda dl: len([x for x in range(g, dl + 1) if x not in vmg])
            urgent = any(sum(1 for d in dsl if d[3] <= e[3]) >= 2 * free_to(e[3]) - 1 for e in av)
            pn = plain_n() if smok else 0
            if smok and exp_ok() and not urgent and not (av and pn) and not (pn >= 3):
                ops.append((sm.exp(), None))
            else:
                slots = 2
                if av and g >= 0:
                    d = av.pop(0); dsl.remove(d); ops.append((d[0], d[1])); slots -= 1
                    if av and (pn == 0 or sum(1 for x in dsl if x[3] <= av[0][3]) >= 2 * free_to(av[0][3]) - 1):
                        d = av.pop(0); dsl.remove(d); ops.append((d[0], d[1])); slots -= 1
                while slots and smok:
                    x = take_plain()
                    if not x: break
                    ops.append((x, None)); slots -= 1
                if not ops and smok and exp_ok(): ops.append((sm.exp(), None))
            plan[g] = ops
            if g == last_sm:
                while (limit is None and not sm.done()) or (limit is not None and ((sm.ne, sm.nc, sm.no) != limit or sm.extra)):
                    sm.tick()
                    x = sm.exp() if exp_ok() else take_plain()
                    plan[g].append((x, None)); k.overflow += 1
        assert not dsl, dsl
        return plan
    k.overflow = 0
    SLK = int(opt.get('slk', -1))
    def emit_phase(mf, plan, vmg, scal, bg=None, vtag=None, sbg=None):
        for s_, tg in plan.get(-1, []): k.e(s_, tag=tg)
        for g, m in enumerate(mf):
            k.e(m)
            for x in scal.get(g, []):
                if isinstance(x, tuple) and x[0] == 'u': k.use(x[1])
                elif isinstance(x, tuple) and x[0] == 'call': x[1]()
                elif isinstance(x, tuple): k.wait_ds(x[1])
                elif x.endswith(':'): k.label(x[:-1])
                else: k.e(x)
            if sbg and g > 0 and g not in scal and g not in vmg and sbg.items and sbg.items[0][0] != 'at':
                it = sbg.items.pop(0)
                for x in ([it[1]] if it[0] == 'i' else it[1]): k.e(x)
                if sbg.items[0][0] == 'i' and len(plan.get(g, [])) < 2: k.e(sbg.items.pop(0)[1])
            if g in vmg: k.e(vmg[g], tag=('ffn' if ' s3 ' in vmg[g] else vtag if 's39' in vmg[g] else None))
            else:
                for s_, tg in plan.get(g, []): k.e(s_, tag=tg)
                if bg and not plan.get(g) and g not in scal: bg.fill(k, 99, 3)
    p4s = p4_setup(opt)
    def starts(groups):
        out = [0]
        for g in groups: out.append(out[-1] + len(g))
        return out
    def iteration(par, nq, nqn, mask, name, tail):
        kreg, koff = (VX, 32768) if par == 0 else (VY, 0)
        vreg, voff = (VX, 16384) if par == 0 else (VX, 49152)
        nreg, noff = (VY, 0) if par == 0 else (VY, 32768)
        last = nqn == 1
        k.hot = nqn >= 2
        ov0 = k.overflow
        fb, fr = f"L_k2_fb_{name}", f"L_k2_fbr_{name}"
        ool.append((fb, lambda: fallback(par, nq, nqn), fr))
        sm = tile_sm(par, nq, SPLIT[nq], True)
        if par == 0:
            k.e(f"v_xor_b32 v{VX}, 65536, v{VX}")
            k.e(f"v_xor_b32 v{VY}, 65536, v{VY}")
        if nqn:
            k.dq = ['k1'] * 4
            if nq == 4 and WARM: sm.extra = ["v_lshl_add_u64 v[28:29], s[40:41], 0, v[28:29]"]
            grp = qk_mfmas(par ^ 1, nqn); st_ = starts(grp); n1 = st_[-1]
            slack = SLK if nqn <= 2 else 4
            dsl = [(x, 'k2', 0, st_[1] + slack) for x in kread(kreg, koff, 2)] + [(x, 'k3', 0, st_[2] + slack) for x in kread(kreg, koff, 3)] + \
                  [(x, 'v0', st_[1], st_[3] + slack) for x in vread(vreg, voff, 0)] + [(x, 'v1', st_[2], n1 - 1) for x in vread(vreg, voff, 1)]
            scal = {}
            add = lambda g, xs: scal.setdefault(g, []).extend(xs)
            add(st_[1] - 1, [('w', 'k1')]); add(st_[2] - 1, [('w', 'k2')]); add(st_[3] - 1, [('w', 'k3')])
            vmw = f"s_waitcnt vmcnt({12 + min(int(opt.get('fp1', 4)), 3)})" if last else "s_waitcnt vmcnt(12)"
            if nq == 2:
                add(n1 - 7, ["s_cmp_lt_u32 s37, s52"])
                add(n1 - 6, [f"s_cbranch_scc1 L_nw_{name}", vmw, f"L_nw_{name}:"])
            else:
                add(n1 - 5, [vmw])
            if mask and mask[1]: add(n1 - 4, [f"s_cmp_eq_u32 s37, s{mask[1]}"])
            add(n1 - 3, ([] if 'nochk' in opt else [('u', f'V{par}'), ('u', 'c19' if par == 0 else 'c21'), ('u', 'c20' if par == 0 else 'c22')]) + ["s_barrier"]); add(n1 - 2, [('w', 'v0')]); add(n1 - 1, [f"s_cbranch_vccnz {fb}", fr + ":"])
            vmg = {}
            if last:
                fops = ffn_issue()
                for q in (1, 5, 8, 12)[:int(opt.get('fp1', 4))]:
                    pre, ld = fops.pop(0)
                    vmg[q] = ld; scal.setdefault(q - 1, []).extend(pre)
            else:
                step = (n1 - 8) / 4
                for j in range(4):
                    q = int(1 + j * step)
                    while q in scal or (j == 0 and q - 1 in scal): q += 1
                    vmg[q] = f"buffer_load_dwordx4 v{VDMA}, s[12:15], s38 offen offset:{j*1024}{kv_ld} lds"
                    if j == 0: scal[q - 1] = ["s_mov_b32 m0, s53" if par == 0 else "s_add_u32 m0, s53, 32768"]
            plan = pack(n1, vmg, dsl, sm, None, n1 - 2, par == 1)
            emit_phase(sum(grp, []), plan, vmg, scal, None, 'ffn')
        else:
            k.dq = ['v1'] * 4
            sm.drain()
            k.e(f"s_cbranch_vccnz {fb}")
            k.label(fr)
        grp = pv_mfmas(par, nq); st_ = starts(grp); n2 = st_[-1]
        slack = SLK if nq <= 2 else 4
        dsl = [(x, 'v2', 0, st_[1] + slack) for x in vread(vreg, voff, 2)] + [(x, 'v3', 0, st_[2] + slack) for x in vread(vreg, voff, 3)]
        scal = {st_[1] - 1: [('w', 'v1')], st_[2] - 1: [('w', 'v2')], st_[3] - 1: [('w', 'v3')]}
        vmg = {}
        if nqn:
            nx = [vread(VX, 49152, 0), vread(VX, 49152, 1)] if last else [kread(nreg, noff, 0), kread(nreg, noff, 1)]
            dsl += [(x, 'k0', st_[1], st_[3] + slack - 1) for x in nx[0]] + [(x, 'k1', st_[2], n2 - 2) for x in nx[1]]
            if mask:
                mb, mr = f"L_k2_mk_{name}", f"L_k2_mkr_{name}"
                if mask[1]: scal[0] = [f"s_cbranch_scc1 {mb}", mr + ":"]
                else: scal[0] = [('call', lambda: mask_block(par ^ 1, mask[0]))]
            scal[n2 - 2] = [('w', 'k0')]
            if tail: scal[n2 - 3] = [tail[0]]; scal[n2 - 1] = [tail[1]]
            def put(x, lo):
                q = lo
                while q in scal or q in vmg: q += 1
                assert q < n2 - 3, (x, q)
                scal[q] = [x]
            if last:
                for j, (pre, ld) in enumerate(fops):
                    q = 2 + (j * (n2 - 4)) // len(fops)
                    vmg[q] = ld
                    scal.setdefault(q - 1, []).extend(pre)
                    if q in scal: scal[q - 1].extend(scal.pop(q))
            else:
                mv = "s_add_u32 m0, s54, 49152" if par == 0 else "s_add_u32 m0, s53, 16384"
                vm = [f"buffer_load_dwordx4 v{VDMA}, s[12:15], s39 offen offset:{j*1024}{kv_ld} lds" for j in range(4)]
                if nq == 4 and WARM: vm.append("global_load_dword v30, v[28:29], off")
                pres = {0: [mv]}
                if name == "wl" and GE_:
                    for pre, ld in ffn_dma(24, "s44", 131072):
                        pres[len(vm)] = pre; vm.append(ld)
                step = (n2 - 4) / len(vm)
                pos = []
                for j in range(len(vm)):
                    q = int(2 + j * step)
                    while q in scal or q in vmg or (j in pres and q - 1 in scal): q += 1
                    vmg[q] = vm[j]; pos.append(q)
                    if j in pres: scal[q - 1] = pres[j]
                if name == "ne":
                    q = 3
                    while any(x in scal or x in vmg for x in (q, q + 1)): q += 1
                    scal[q] = ["s_cmp_eq_u32 s37, s52"]; scal[q + 1] = ["s_cbranch_scc1 L_pubB", "L_pubBr:"]
                    put("s_add_u32 s37, s37, 1", q + 2)
                else:
                    put("s_add_u32 s37, s37, 1", 1)
                put(f"s_add_u32 s38, s38, {KV_TILE}", 1)
                if par == 1:
                    put("s_xor_b32 s53, s53, 65536", pos[0]); put("s_xor_b32 s54, s54, 65536", pos[0])
                put(f"s_add_u32 s39, s39, {KV_TILE}", pos[3] + 1)
        sm = tile_sm(par ^ 1, nqn, (0, 0, 0), False)
        lastg = n2 - 2 if nqn else n2 - 1
        while lastg in vmg: lastg -= 1
        plan = pack(n2 - 1 if nqn else n2, vmg, dsl, sm, SPLIT[nqn], lastg, False)
        emit_phase(sum(grp, []), plan, vmg, scal, None if nqn else p4s, 'ffn' if last else f'V{par}', p4s if last else None)
        print(f"iteration {name}: overflow ops {k.overflow - ov0}")
        k.hot = False
    def epilogue(q0, srow):
        k.e(f"s_lshl_b32 s3, s{srow}, 20")
        k.e("s_lshl_b32 s47, s33, 15")
        k.e("s_add_u32 s3, s3, s47")
        k.e("s_lshl_b32 s47, s32, 10")
        k.e("v_lshlrev_b32 v248, 4, v0")
        k.e("v_add_u32 v249, s47, v248")
        k.e("s_sub_u32 s47, 7168, s47")
        k.e("v_add_u32 v248, s47, v248")
        for qq in range(2):
            k.e(f"v_rcp_f32 v{250+2*qq}, v{LS+4*(q0+qq)}")
        for qq in range(2):
            k.e(f"v_mov_b32 v{251+2*qq}, v{250+2*qq}")
        for s_ in range(4):
            for qq in (1, 0):
                o = O(q0 + qq, 2 * s_)
                d = 24 + 4 * qq
                for r in range(8): k.e(f"v_accvgpr_read_b32 v{240+r}, a{o+r}")
                for r in range(0, 8, 2): k.e(f"v_pk_mul_f32 {V(240+r,2)}, {V(240+r,2)}, {V(250+2*qq,2)}")
                for r in range(4): k.e(f"v_cvt_pk_bf16_f32 v{d+r}, v{240+2*r}, v{240+2*r+1}")
                k.e(f"buffer_store_dwordx4 {V(d,4)}, v{248+qq}, s[16:19], s3 offen{opt.get('ctx_st',' sc1')}")
            if s_ < 3: k.e("s_add_u32 s3, s3, 8192")

    for kb in range(2, 4):
        for s in kread(VY, 0, kb): k.e(s, tag=f'k{kb}')
    def first_max(o, qb):
        rowmax(0, qb, 22, o)
        if PKM:
            o.e("v_sub_f32 v22, 0, v22"); o.e("v_mov_b32 v23, v22")
            for r in range(0, 16, 2): o.e(f"v_pk_add_f32 {V(Sr(0,qb,0)+r,2)}, {V(Sr(0,qb,0)+r,2)}, v[22:23]")
            for r in range(4): o.e(f"v_mov_b32 v{NEGM+4*qb+r}, v22")
        else:
            for r in range(16): o.e(f"v_sub_f32 v{Sr(0,qb,0)+r}, v{Sr(0,qb,0)+r}, v22")
            for r in range(4): o.e(f"v_sub_f32 v{NEGM+4*qb+r}, 0, v22")
    c = b2
    c.items += conv_items(2) + conv_items(3) + zrest
    for r in list(range(XR(30, 0), XR(30, 0) + 16)) + list(range(XR(31, 0), XR(31, 0) + 16)): c.e(f"v_accvgpr_write_b32 a{r}, 0")
    for r in range(4): c.e(f"v_mov_b32 v{ONES+r}, 0x3f803f80")
    c.e(f"v_mov_b32 v{NINF}, 0xff800000")
    first_max(c, 0); first_max(c, 1)
    for qb in range(4):
        while any(it[0] == 'mark' and it[1] == f'conv{qb}' for it in c.items): c.fill(k, 99, 2)
        for kb in range(4):
            k.wait_ds(f'k{kb}')
            if qb == 3 and kb == 2:
                k.e(f"s_waitcnt vmcnt({min(k.vm_n('c18'), k.vm_n('c17'))})")
                assert k.vm_n('wts') is None
                k.use('c17'); k.use('c18')
                k.e("s_barrier")
                if WOT:
                    k.e("s_mov_b64 exec, 1")
                    k.e("buffer_store_dword v24, v25, s[20:23], s52 offen sc1")
                    k.e("s_mov_b64 exec, -1")
                k.e("s_add_u32 s53, s44, 65536")
                if TK:
                    k.e("v_mov_b32 v27, 1")
                    k.e("v_mov_b32 v26, 0")
                    k.e("s_cmp_eq_u32 s32, 0")
                    k.e("s_cselect_b32 s3, 128, s64")
                    k.e("s_mov_b64 exec, 1")
                    k.e("buffer_atomic_add v27, v26, s[28:31], s3 offen sc0 sc1")
                    k.e("s_mov_b64 exec, -1")
            for s_ in range(4):
                d = V(Sr(0, qb, kb), 4)
                k.e(mfma(d, A(FR(kb, s_), 4), A(Q(qb, s_), 4), d if s_ else "0"))
                if qb == 3 and kb >= 2: k.e(kread(VY, 32768, kb - 2)[s_], tag=f'n{kb-2}')
                c.fill(k, 99, int(opt.get('pslots', 4)))
    c.drain(k)
    k.e(f"s_mov_b32 s38, {4*KV_TILE}")
    k.e(f"s_mov_b32 s39, {3*KV_TILE + KV_CH}")
    k.e("s_cmp_lg_u32 s34, 0")
    k.e("s_cbranch_scc1 L_k2_nomask0")
    mask_block(0, 3)
    k.label("L_k2_nomask0")
    k.e("s_mov_b32 s37, 0")
    first_max(k, 2); first_max(k, 3)
    SM(sm_pairs(0, 4, 0), True, False).drain()
    k.e("s_waitcnt lgkmcnt(4)")
    k.stamp(ST or SA)

    k.e("s_cmp_eq_u32 s34, 0")
    k.e("s_cbranch_scc1 L_k2_wlast")
    k.e("s_branch L_k2_wloop")
    for nm, qb in (("wo", 3), ("tr", 1), ("no", 1)):
        k.label(f"L_k2_mk_{nm}"); k.win = []
        mask_block(0, qb)
        k.e(f"s_branch L_k2_mkr_{nm}")
    k.label("L_pubB"); k.win = []
    k.e("v_mov_b32 v24, 1"); k.e("v_mov_b32 v25, 0")
    k.e("s_mov_b64 exec, 1")
    k.e("buffer_store_dword v24, v25, s[20:23], s64 offen sc1")
    k.e("s_mov_b64 exec, -1")
    k.e("s_branch L_pubBr")
    k.label("L_k2_wloop")
    iteration(0, 4, 4, None, "we", [])
    iteration(1, 4, 4, (3, 46), "wo", ["s_cmp_lg_u32 s37, s35", "s_cbranch_scc1 L_k2_wloop"])
    k.label("L_k2_wlast")
    iteration(0, 4, 3, (2, None), "wl", [])
    iteration(1, 3, 2, (1, 45), "tr", [])
    k.stamp(SA)
    if '4' in CPF: emit(code_prefetch("L_k2_fin", "L_p4_end", 32, 56, 160, 164))
    k.e("s_waitcnt vmcnt(9)")
    if TK:
        k.e("v_mov_b32 v26, 131072")
        k.e("s_cmp_lg_u32 s32, 0")
        k.e("s_cbranch_scc1 L_notk")
        k.e("s_mov_b64 exec, 1")
        k.e("ds_write_b32 v26, v27")
        k.e("s_mov_b64 exec, -1")
        k.e("s_waitcnt lgkmcnt(0)")
        k.label("L_notk")
        k.e("s_barrier")
        k.e("ds_read_b32 v23, v26")
    epilogue(2, 34)
    k.e("s_add_u32 s52, s37, 2")
    k.raw(";@b:2")
    for s in p4_ptr_loads(): k.e(s)
    k.e("s_waitcnt vmcnt(8) lgkmcnt(0)")
    k.stamp(SA)
    k.e("s_cmp_eq_u32 s34, 7")
    k.e("s_cbranch_scc1 L_k2_fin")
    k.label("L_k2_nloop")
    nl0 = len(k.lines)
    iteration(0, 2, 2, None, "ne", [])
    iteration(1, 2, 2, (1, 45), "no", ["s_cmp_lg_u32 s37, s36", "s_cbranch_scc1 L_k2_nloop"])
    if 'dbg_drop' in opt:
        drop = opt['dbg_drop'].split(',')
        k.lines[nl0:] = [x for x in k.lines[nl0:] if not any(d in x and not x.endswith(':') for d in drop)]
    k.label("L_k2_fin")
    k.stamp(SA)
    iteration(0, 2, 1, (0, None), "nl", [])
    iteration(1, 1, 0, None, "fi", [])
    k.stamp(ST or SA)
    k.e("s_nop 7")
    epilogue(0, 55)
    k.stamp(SA)
    k.e(f"s_cmp_lt_u32 s34, {FX}")
    k.e("s_cbranch_scc1 L_noffn")
    ffn_finish()
    k.label("L_noffn")
    p4s.drain(k)
    k.stamp(SA)
    k.e("v_mov_b32 v24, 1")
    k.e("v_mul_u32_u24 v25, s65, v0")
    k.e("s_waitcnt vmcnt(0)")
    k.e("s_barrier")
    k.e("s_mov_b64 exec, 3")
    k.e("buffer_store_dword v24, v25, s[20:23], s64 offen sc1")
    k.e("s_mov_b64 exec, -1")
    ffn_store()
    k.e("s_lshl_b32 s33, s4, 3")
    k.e("s_add_u32 s33, s33, s92")
    k.e("s_mov_b32 s65, s33")
    k.stamp(ST or SA)
    if FX == 2:
        k.e("s_cmp_eq_u32 s34, 7")
        k.e("s_cbranch_scc1 L_f1x")
        k.label("L_f1xr")
        def f1x():
            k.e("s_load_dwordx2 s[6:7], s[0:1], 72")
            k.e("s_and_b32 s65, s93, 31")
            ffn_ids(65)
            k.e("s_waitcnt lgkmcnt(0)")
            k.srd(16, 6, 7340032)
            for pre, ld in ffn_issue(16):
                for x in pre: k.e(x)
                k.e(ld, tag='ffn')
            ffn_finish(0)
            k.e("s_barrier")
            ffn_store()
            k.e("s_lshl_b32 s65, s4, 3")
            k.e("s_add_u32 s65, s65, s92")
        ool.append(("L_f1x", f1x, "L_f1xr"))
    phase4(k, opt, ool, ST, SA)
    k.stamp_dump('stamp' in opt, 66, 0, 32)
    if 'hold' in opt:
        k.e("s_lshl_b32 s3, s32, 8")
        k.e("s_or_b32 s3, s2, s3")
        k.e(f"s_cmp_lg_u32 s3, {opt.get('holdwg', 0)}")
        if 'holdcls' in opt:
            k.e("s_lshr_b32 s3, s2, 5")
            k.e(f"s_cmp_lg_u32 s3, {opt['holdcls']}")
        if opt.get('holdwg') != '999': k.e("s_cbranch_scc1 L_k2_end")
        k.label("L_hold")
        k.e("s_memrealtime s[4:5]")
        k.e("s_waitcnt lgkmcnt(0)")
        k.e(f"s_sub_u32 s3, s4, s{73 + 2 * int(opt.get('holdk', 0))}")
        k.e(f"s_cmp_lt_u32 s3, {int(opt['hold']) * 100}")
        k.e("s_cbranch_scc1 L_hold")
    k.label("L_k2_end")
    k.e("s_endpgm")
    hotool = [x for x in ool if x[0].startswith(("L_f1", "L_f2", "L_c3", "L_spinC", "L_yA", "L_yB", "L_yC"))]
    for lab, fn, ret in hotool + [("L_p4_end", None, None)] + [x for x in ool if x not in hotool]:
        k.label(lab)
        if fn is None: continue
        k.win = []; k.dq = []
        fn()
        k.e(f"s_branch {ret}")
    return k.wrap(256, 256), f"; @launch {'kernel=' + KNAME + ' ' if 'aslist' in opt else ''}grid=(256,1,1) block=(256,1,1) lds={K12_LDS}"
```

```python
from fw import *
from layout import *
from p4 import rbf2, silu_n, srd_rec, p4_ptr_loads
BIG = 0x7ff00000
VC, VWB, VW, TA, VO, VROW, G, L7, L3, T1, T2, VZ, VF = 112, 113, 114, 115, 119, 120, 121, 122, 123, 124, 125, 126, 127
GTMP, XP, STT, GT, YB = 2, 18, 34, 42, 80
SPARE = 131072

def p4_setup(opt):
    b = Rec()
    srd_rec(b, 60, 8, 7340032)
    srd_rec(b, 56, 40, 4194304)
    b.e("s_bfe_u32 s6, s2, 0x20001")
    b.e("s_lshr_b32 s7, s34, 1")
    b.e("s_lshl_b32 s45, s7, 2")
    b.e("s_add_u32 s46, s45, s6")
    b.e("s_sub_u32 s46, 15, s46")
    b.e("s_sub_u32 s45, 12, s45")
    b.e("s_add_u32 s45, s45, s6")
    b.blk(["s_cmp_lt_u32 s7, 2", "s_cselect_b32 s45, s46, s45"])
    b.e("s_and_b32 s46, s2, 1")
    b.e("s_bfe_u32 s6, s2, 0x30003")
    if opt.get('xm', '1') == '1': b.e("s_lshl_b32 s6, s6, 1")
    else: b.e("s_lshl_b32 s46, s46, 3")
    b.e("s_add_u32 s46, s46, s6")
    for j in range(4): b.e(f"s_mov_b32 s{48+j}, {j*15360}")
    b.e("s_lshl_b32 s35, s32, 13")
    b.e(f"s_add_u32 s35, s35, {SPARE}")
    b.e("s_and_b32 s52, s46, 1")
    b.e("s_lshl_b32 s37, s45, 20")
    b.e("s_lshl_b32 s7, s52, 19")
    b.e("s_add_u32 s37, s37, s7")
    b.e(f"s_add_u32 s37, s37, {WS_CTX}")
    b.e("s_lshr_b32 s7, s46, 1")
    b.e("s_lshl_b32 s7, s7, 8")
    b.e("s_lshl_b32 s6, s52, 22")
    b.e("s_add_u32 s6, s6, s7")
    srd_rec(b, 12, 94, 0, "s6")
    b.e("s_sub_u32 s14, 4194304, s7")
    srd_rec(b, 28, 94, 8388608)
    b.e("s_lshl_b32 s7, s46, 7")
    b.e("s_lshl_b32 s36, s45, 18")
    b.e("s_add_u32 s36, s36, s7")
    b.e("s_and_b32 s94, s7, 128")
    b.e("s_lshl_b32 s38, s45, 7")
    b.e("s_lshl_b32 s6, s52, 6")
    b.e("s_add_u32 s38, s38, s6")
    b.e(f"s_add_u32 s38, s38, {WS_CFL}")
    b.e("s_lshl_b32 s52, s32, 11")
    b.e("s_lshl_b32 s6, s32, 16")
    b.e("s_add_u32 s6, s6, s94")
    b.e("s_xor_b32 s6, s6, 128")
    b.e("s_lshl_b32 s7, s32, 5")
    b.at(1)
    srd_rec(b, 68, 10, 4194304)
    srd_rec(b, 8, 66, 524288, "s37")
    b.e(f"v_lshlrev_b32 v{VC}, 4, v0")
    b.e(f"v_lshrrev_b32 v{G}, 4, v0")
    b.e(f"v_and_b32 v{L7}, 7, v0")
    b.e(f"v_lshrrev_b32 v{L3}, 3, v0")
    b.e(f"v_lshlrev_b32 v{T1}, 1, v{G}")
    b.e(f"v_xor_b32 v{T1}, v{T1}, v{L7}")
    b.e(f"v_lshlrev_b32 v{T1}, 4, v{T1}")
    b.e(f"v_lshl_add_u32 v{VWB}, v{L3}, 11, v{T1}")
    b.e(f"v_add_u32 v{VW}, s6, v{VWB}")
    b.e(f"v_lshrrev_b32 v{T1}, 2, v0")
    b.e(f"v_bfe_u32 v{VZ}, v0, 3, 2")
    b.e(f"v_lshlrev_b32 v{T1}, 7, v{T1}")
    b.e(f"v_and_b32 v{T2}, 3, v0")
    b.e(f"v_lshl_add_u32 v{T1}, v{T2}, 3, v{T1}")
    b.e(f"v_lshl_add_u32 v{TA}, v{VZ}, 5, v{T1}")
    for cb in range(1, 4): b.e(f"v_xor_b32 v{TA+cb}, {cb*32}, v{TA}")
    b.e(f"v_add_u32 v{VROW}, s7, v{L3}")
    b.e(f"v_lshlrev_b32 v{VO}, 11, v{VROW}")
    b.e(f"v_lshl_add_u32 v{VO}, v{L7}, 4, v{VO}")
    b.e(f"v_mov_b32 v{VZ}, 0")
    b.e(f"v_lshlrev_b32 v{VF}, 2, v{L7}")
    return b

def phase4(k, opt, ool, ST, SA):
    N1 = int(opt.get('n1', 32))
    N2 = 64 - N1
    assert N1 % 4 == 0 and N2 % 4 == 0 and N2 <= 32
    units = [(n + q, s_) for n in range(0, N1, 4) for s_ in (1, 0) for q in range(4)] + [(n, 1) for n in range(N1, 64)] + [(n, 0) for n in range(N1, 64)]
    NS = 32
    XM = opt.get('xm', '1') == '1'
    PX = 4 if XM else 32
    SP = N1 // 2 + N2 // 4
    ACC = lambda side, rb, cb: 128 + ((side * 2 + rb) * 4 + cb) * 4
    WF = lambda u, cb: 192 + cb * 16 + (u & 3) * 4
    XI = 160
    FL = int(opt.get('fl', 2))
    CF = lambda n, rb: (n % 32) * 8 + rb * 4
    TB = 12
    WDI = int(opt.get('wdi', 3))
    CDI = int(opt.get('cdi', 3))
    def w_ops(st):
        if st >= NS: return []
        ops = [('s', f"s_add_u32 m0, s44, {(st % 8)*16384}")]
        ops += [('g', f"buffer_load_dwordx4 v{VW}, s[12:15], s{48+j} offen offset:{j*1024} lds") for j in range(4)]
        if st + 1 == SP: ops += [('s2', "s_xor_b32 s95, s95, 128"), ('v', f"v_add_u32 v{VW}, s95, v{VWB}")]
        elif st < N1 // 2:
            ops.append(('v', f"v_xor_b32 v{VW}, 128, v{VW}"))
            if st & 1: ops.append(('v', f"v_add_u32 v{VW}, {4 * 65536}, v{VW}"))
        else: ops.append(('v', f"v_add_u32 v{VW}, {4 * 65536}, v{VW}"))
        return ops
    def c_ops(n):
        return [('g', f"buffer_load_dwordx4 {A(CF(n,rb),4)}, v{VC}, s[8:11], s52 offen offset:{rb*1024} sc1") for rb in range(2)] + \
               [('s2', "s_add_u32 s52, s52, 8192")]
    def ksteps_of(st):
        if st == 0: return [0, 1, 2, 3]
        if st < N1 // 2: return [2 * st + 2, 2 * st + 3]
        if st >= SP: return []
        n0 = N1 + 4 * (st - N1 // 2)
        return [n for n in range(n0 + (2 if st == N1 // 2 else 0), n0 + 4)]
    def wread(u):
        st = u // 4
        base = TA if (st % 8) < 4 else TB
        return [[f"ds_read_b64_tr_b16 {V(WF(u,cb)+2*rd,2)}, v{base+cb} offset:{(st % 4)*16384 + (u % 4)*4096 + rd*2048}" for rd in range(2)] for cb in range(4)]
    def col3(part):
        k.e("s_bfe_u32 s3, s2, 0x40003")
        k.e("s_lshl_b32 s3, s3, 2")
        k.e("s_add_u32 s3, s3, s32")
        k.e("s_lshl_b32 s3, s3, 15")
        k.e("s_and_b32 s7, s2, 1")
        k.e(f"s_lshl_b32 s7, s7, {22 if XM else 10}")
        k.e("s_add_u32 s3, s3, s7")
        k.e(f"s_add_u32 s3, s3, {384 + part * 1024 * 2048}")
        k.e("v_and_b32 v1, 15, v0")
        k.e("v_lshlrev_b32 v1, 11, v1")
        k.e("v_lshrrev_b32 v11, 5, v0")
        k.e(f"v_lshl_add_u32 v1, v11, {10 if XM else 22}, v1")
        k.e("buffer_load_dword v11, v1, s[28:31], s3 offen")
    def gates(o, p, ysrc=None):
        g0 = GT + 8 * p
        if o is not k and opt.get('gpk', '0') == '0': return gates_plain(o, p)
        pr = lambda r: V(r, 2)
        st_ = V(STT + 2 * p, 2)
        for d in range(4):
            o.e(f"v_lshlrev_b32 v{g0+2*d}, 16, v{XP+4*p+d}")
            o.e(f"v_and_b32 v{g0+2*d+1}, 0xffff0000, v{XP+4*p+d}")
        for d in range(4): o.e(f"v_pk_add_f32 {pr(g0+2*d)}, {pr(g0+2*d)}, {st_} op_sel_hi:[1,0] neg_lo:[0,1] neg_hi:[0,1]")
        for d in range(4): rbf2(o, g0 + 2*d, g0 + 2*d + 1, GTMP + d)
        for d in range(4): o.e(f"v_pk_mul_f32 {pr(g0+2*d)}, {pr(g0+2*d)}, {st_} op_sel:[0,1] op_sel_hi:[1,1]")
        for d in range(4): rbf2(o, g0 + 2*d, g0 + 2*d + 1, GTMP + d)
        if ysrc is not None:
            for d in range(4): o.e(f"v_pk_add_f32 {pr(g0+2*d)}, {pr(g0+2*d)}, {pr(ysrc+2*d)}")
            for d in range(4): rbf2(o, g0 + 2*d, g0 + 2*d + 1, GTMP + d)
        for e_ in range(8): o.e(f"v_mul_f32 v{GTMP+e_}, 0xbfb8aa3b, v{g0+e_}")
        for e_ in range(8): o.e(f"v_exp_f32 v{GTMP+e_}, v{GTMP+e_}")
        for e_ in range(8): o.e(f"v_add_f32 v{GTMP+e_}, 1.0, v{GTMP+e_}")
        for e_ in range(8): o.e(f"v_rcp_f32 v{GTMP+e_}, v{GTMP+e_}")
        for d in range(4): o.e(f"v_pk_mul_f32 {pr(g0+2*d)}, {pr(g0+2*d)}, {pr(GTMP+2*d)}")
        for d in range(4): rbf2(o, g0 + 2*d, g0 + 2*d + 1, GTMP + d)
    def gates_plain(o, p):
        g0 = GT + 8 * p
        for d in range(4):
            o.e(f"v_lshlrev_b32 v{g0+2*d}, 16, v{XP+4*p+d}")
            o.e(f"v_and_b32 v{g0+2*d+1}, 0xffff0000, v{XP+4*p+d}")
        for e_ in range(8): o.e(f"v_sub_f32 v{g0+e_}, v{g0+e_}, v{STT+2*p}")
        for d in range(4): rbf2(o, g0 + 2*d, g0 + 2*d + 1, GTMP + d)
        for e_ in range(8): o.e(f"v_mul_f32 v{g0+e_}, v{g0+e_}, v{STT+2*p+1}")
        for d in range(4): rbf2(o, g0 + 2*d, g0 + 2*d + 1, GTMP + d)
        silu_n(o, [g0 + e_ for e_ in range(8)], [GTMP + e_ for e_ in range(8)])
        for d in range(4): rbf2(o, g0 + 2*d, g0 + 2*d + 1, GTMP + d)
    def poll_loop(lab, off, vo, vd, slp=8):
        k.e("s_mov_b32 s47, 0x400000")
        k.label(lab)
        k.e(f"buffer_load_dword v{vd}, v{vo}, s[20:23], {off} offen sc1")
        k.e("s_sub_u32 s47, s47, 1")
        k.e("s_waitcnt vmcnt(0)")
        k.e("s_cmp_eq_u32 s47, 0")
        k.e(f"s_cbranch_scc1 {lab}x")
        k.e(f"v_cmp_ne_u32 vcc, 1, v{vd}")
        k.e(f"s_cbranch_vccz {lab}x")
        k.e(f"s_sleep {slp}")
        k.e(f"s_branch {lab}")
        k.label(lab + "x")

    C3 = int(opt.get('c3', 2))
    k.e("s_mov_b32 s3, s36")
    for p in range(4):
        k.e(f"buffer_load_dwordx4 {V(XP+4*p,4)}, v{VO}, s[56:59], s3 offen", tag='x')
        if p < 3: k.e("s_add_u32 s3, s3, 16384")
    k.e("s_lshl_b32 s3, s45, 10")
    k.e(f"s_add_u32 s3, s3, {WS_STATS}")
    k.e(f"v_lshlrev_b32 v{T1}, 3, v{VROW}")
    for p in range(4):
        k.e(f"buffer_load_dwordx2 {V(STT+2*p,2)}, v{T1}, s[20:23], s3 offen offset:{p*64} sc1", tag='x')
    k.e("v_and_b32 v10, 15, v0")
    k.e("v_lshlrev_b32 v10, 2, v10")
    k.e(f"s_add_u32 s95, s32, {N1}")
    k.e("s_lshl_b32 s95, s95, 16")
    k.e("s_add_u32 s95, s95, s94")
    k.e("s_xor_b32 s95, s95, 128")
    WE = int(opt.get('we', 2))
    WP = int(opt.get('wp', 2))
    for st in range(WE):
        if st == WP: k.e(f"buffer_load_dword v{T1}, v10, s[20:23], s38 offen sc1", tag='cp')
        for t, s in w_ops(st): k.e(s, tag=f'w{st}')
    if WE <= WP: k.e(f"buffer_load_dword v{T1}, v10, s[20:23], s38 offen sc1", tag='cp')
    for cb in range(4): k.e(f"v_add_u32 v{TB+cb}, 65536, v{TA+cb}")
    k.e("s_and_b32 s39, s93, 15")
    k.e("s_lshr_b32 s37, s93, 4")
    k.e("s_lshl_b32 s54, s37, 2")
    k.e("s_add_u32 s54, s54, s32")
    k.e("s_lshl_b32 s3, s54, 17")
    k.e("s_lshl_b32 s7, s39, 7")
    k.e("s_add_u32 s3, s3, s7")
    k.e("s_cmp_lt_u32 s93, 224")
    k.e(f"s_cselect_b32 s3, s3, {BIG}")
    k.e(f"v_add_u32 v{T2}, s3, v{VWB}")
    def wd_dma():
        n0 = len(k.vq)
        for q in range(2):
            k.e(f"s_add_u32 m0, s35, {q*4096}")
            for j in range(4):
                k.e(f"buffer_load_dwordx4 v{T2}, s[60:63], s{48+j} offen offset:{j*1024} lds", tag='wd')
            if q == 0: k.e(f"v_add_u32 v{T2}, 65536, v{T2}")
        del k.vq[n0:]
    k.e("s_mov_b32 s40, 0")
    k.wait_vm('x')
    GE = int(opt.get('ge', 1)); GM = int(opt.get('gm', 2))
    for p in range(GE): gates(k, p)
    k.wait_vm('cp')
    k.e(f"v_cmp_ne_u32 vcc, 1, v{T1}")
    k.e("s_cbranch_vccnz L_spinC")
    k.label("L_spinCr")
    def spinC():
        wd_dma()
        k.e("s_mov_b32 s40, 1")
        poll_loop("L_spinC_l", "s38", 10, T1, opt.get('slpc', 4))
    ool.append(("L_spinC", spinC, "L_spinCr"))
    SO = opt.get('stamp') == 'o'
    k.stamp(ST or SA or SO)
    for st in range(max(CDI, WDI)):
        if st < CDI:
            for n in ksteps_of(st):
                for t, s in c_ops(n): k.e(s, tag=f'c{n}')
        if WE <= st < WDI:
            for t, s in w_ops(st): k.e(s, tag=f'w{st}')
        if st == 1:
            for p in range(GE, GE + GM): gates(k, p)
    k.e("s_cmp_lg_u32 s40, 0")
    k.e("s_cbranch_scc1 L_nowd")
    wd_dma()
    k.label("L_nowd")
    if C3:
        k.e("s_cmp_lt_u32 s2, 128")
        k.e("s_cbranch_scc1 L_noc3")
        col3(0)
        k.vq.pop()
        k.label("L_noc3")

    b = Rec()
    b.e(f"v_mov_b32 v{T2}, 1")
    b.e("s_sub_u32 s65, s65, s33")
    b.e("s_lshl_b32 s65, s65, 2")
    b.e(f"v_mul_lo_u32 v{T1}, v0, s65")
    b.e("s_lshl_b32 s6, s33, 2")
    b.e(f"v_add_u32 v{T1}, s6, v{T1}")
    b.e(f"s_mov_b32 s6, {WS_HFL}")
    b.blk(["s_cmp_eq_u32 s32, 0", "s_cselect_b32 s6, s6, s64", f"s_cmp_ge_u32 s34, {opt.get('fx', 1)}", f"s_cselect_b32 s6, s6, {BIG}"])
    b.blk(["s_mov_b64 exec, 3", f"buffer_store_dword v{T2}, v{T1}, s[20:23], s6 offen sc1", "s_mov_b64 exec, -1"])
    b.e("s_lshl_b32 s40, s45, 2")
    b.e("s_add_u32 s40, s40, s32")
    b.blk(["s_lshr_b32 s3, s42, 5", "s_lshr_b32 s47, s43, 5", "s_cmp_eq_u32 s3, s40", "s_cselect_b32 s53, 1, 0",
           "s_cmp_eq_u32 s47, s40", "s_cselect_b32 s53, 1, s53", "s_mov_b32 s40, 0"])
    b.e("s_lshl_b32 s41, s46, 7")
    b.e(f"s_add_u32 s41, s41, {WS_YFL}")
    b.e("s_lshl_b32 s55, s46, 13")
    b.e(f"s_add_u32 s55, s55, {WS_YP}")
    srd_rec(b, 16, 66, 8 << 20, WS_XCH)
    b.e("s_lshl_b32 s24, s2, 2")
    b.e("s_add_u32 s24, s24, s32")
    b.e("s_lshl_b32 s25, s24, 13")
    b.e(f"s_xor_b32 s26, s25, {PX << 13}")
    b.e("s_lshl_b32 s24, s24, 2")
    b.e(f"s_xor_b32 s27, s24, {PX * 4}")
    b.e(f"s_add_u32 s24, s24, {WS_XFL}")
    b.e(f"s_add_u32 s27, s27, {WS_XFL}")
    F2 = float(opt.get('f2', 5)); FD = float(opt.get('f2d', 2.4))
    b0 = Rec()
    ev = [(F2 + j * FD, "s_cmp_lt_u32 s93, 224", f"L_f2{x}") for j, x in enumerate("AB")]
    if C3: ev.append((float(opt.get('c3t', 9.5)), "s_cmp_ge_u32 s2, 128", "L_c31")); ool.append(("L_c31", lambda: col3(1), "L_c31r"))
    for t_, c_, l_ in sorted(ev):
        b0.at(t_); b0.blk([c_, f"s_cbranch_scc1 {l_}", l_ + "r:"])
    H0 = 74
    WN = int(opt.get('f2w', 16))
    for cb in range(4): b.e(f"v_add_u32 v{106+cb}, s35, v{TA+cb}")
    b.e(f"v_and_b32 v2, 1, v{G}")
    b.e("v_lshlrev_b32 v2, 8, v2")
    b.e("v_and_b32 v3, 15, v0")
    b.e("v_lshl_add_u32 v2, v3, 3, v2")
    b.e("v_add_u32 v2, s35, v2")
    b.e("v_and_b32 v4, 1, v0")
    b.e("v_lshlrev_b32 v4, 8, v4")
    b.e("v_add_u32 v4, s35, v4")
    b.e(f"v_lshl_add_u32 v3, v{G}, 3, v4")
    b.e(f"v_lshl_add_u32 v4, v{G}, 4, v4")
    b.e("v_lshlrev_b32 v5, 3, v0")
    b.e(f"v_add_u32 v6, {SPARE + 2048}, v5")
    b.e("v_mov_b32 v7, 1")
    b.e("s_lshl_b32 s4, s39, 4")
    b.e("s_add_u32 s4, s4, s37")
    b.e("s_lshl_b32 s4, s4, 9")
    b.e(f"s_add_u32 s4, s4, {WS_YP}")
    b.e("s_lshl_b32 s6, s39, 5")
    b.e("s_add_u32 s6, s6, s37")
    b.e("s_lshl_b32 s6, s6, 2")
    b.e(f"s_add_u32 s6, s6, {WS_YFL}")
    b.blk(["s_cmp_eq_u32 s32, 0", "s_cselect_b32 s4, s4, s64", "s_cselect_b32 s6, s6, s64"])
    b.blk(["s_cmp_lt_u32 s93, 224", f"s_cselect_b32 s4, s4, {BIG}", f"s_cselect_b32 s6, s6, {BIG}"])
    b.at(F2 + 2 * FD)
    b.e(f"s_waitcnt vmcnt({WN})")
    b.items.append(('fn', lambda: k.use('wd') is None, None))
    for j in range(1, 8):
        for r in range(4): b.e(f"v_add_f32 v{H0+r}, v{H0+r}, v{H0+4*j+r}")
    for cb in range(4):
        for rd in range(2):
            b.e(f"ds_read_b64_tr_b16 {V(90 + 4*cb + 2*rd, 2)}, v{106+cb} offset:{rd*2048}", tag='d0')
    for r in range(0, 4, 2): rbf2(b, H0 + r, H0 + r + 1, 8)
    for r in range(4): b.e(f"v_mov_b32 v{78+r}, v{H0+r}")
    for r in range(4): b.e(f"v_permlane32_swap_b32 v{78+r}, v{H0+r}")
    silu_n(b, [78 + r for r in range(4)], [82 + r for r in range(4)])
    for r in range(0, 4, 2): rbf2(b, 78 + r, 79 + r, 8)
    for r in range(4): b.e(f"v_mul_f32 v{H0+r}, v{H0+r}, v{78+r}")
    for r in range(2): b.e(f"v_cvt_pk_bf16_f32 v{8+r}, v{H0+2*r}, v{H0+2*r+1}")
    b.e("ds_write_b64 v2, v[8:9]")
    for q in range(2):
        for rd in range(2):
            b.e(f"ds_read_b64 {V(H0 + 4*q + 2*rd, 2)}, v3 offset:{q*64 + rd*32}", tag='hf')
    b.items.append(('skip', 2, None))
    b.wait_ds('hf')
    for half in range(2):
        for c2 in range(2):
            cb = 2 * half + c2
            b.blk([mfma(V(82 + 4 * c2, 4), V(90 + 4 * cb, 4), V(H0, 4), "0")])
        for c2 in range(2):
            cb = 2 * half + c2
            for rd in range(2):
                b.e(f"ds_read_b64_tr_b16 {V(90 + 4*cb + 2*rd, 2)}, v{106+cb} offset:{4096 + rd*2048}", tag=f'd1{half}')
        b.items.append(('skip', 2, None))
        b.wait_ds(f'd1{half}')
        for c2 in range(2):
            b.blk([mfma(V(82 + 4 * c2, 4), V(90 + 4 * (2 * half + c2), 4), V(H0 + 4, 4), V(82 + 4 * c2, 4))])
        b.items.append(('skip', 1, None))
        for c2 in range(2):
            b.e(f"ds_write_b128 v4, {V(82 + 4*c2, 4)} offset:{2048 + (2*half + c2)*64}", tag='yw')
        b.items.append(('skip', 2, None))
        b.wait_ds('yw')
    b.items.append(('nextbar', None, None))
    for w in range(4): b.e(f"ds_read_b64 {V(74+2*w,2)}, v6 offset:{w*8192}", tag='yr')
    b.items.append(('skip', 2, None))
    b.wait_ds('yr')
    for r in range(2):
        b.e(f"v_add_f32 v{74+r}, v{74+r}, v{76+r}"); b.e(f"v_add_f32 v{78+r}, v{78+r}, v{80+r}")
    for r in range(2): b.e(f"v_add_f32 v{74+r}, v{74+r}, v{78+r}")
    b.e("buffer_store_dwordx2 v[74:75], v5, s[20:23], s4 offen sc1", tag='yp')
    b.items.append(('log', 'y partial stored', None))
    b.items.append(('rel', float(opt.get('f2e', 2.0)), None))
    b.wait_vm('yp')
    b.blk(["s_mov_b64 exec, 1", f"buffer_store_dword v7, v{VZ}, s[20:23], s6 offen sc1", "s_mov_b64 exec, -1"])
    b.items.append(('log', 'y flag', None))
    for p in range(GE + GM, 4): gates(b, p)
    b.items.append(('log', 'gates done', None))
    PS = float(opt.get('k3_poll', 25.5))
    b.at(PS + 4.0)
    b.blk(["s_cmp_lg_u32 s40, 0", "s_cbranch_scc1 L_yC", "L_yCr:"])
    b0.at(PS)
    b0.blk(["s_cmp_lg_u32 s53, 0", "s_cbranch_scc1 L_yA", "L_yAr:"])
    b0.at(PS + 2.2)
    b0.blk(["s_cmp_lg_u32 s53, 0", "s_cbranch_scc1 L_yB", "L_yBr:"])
    b0.at(SP + 0.15)
    b0.e(f"v_add_u32 v10, 4096, v{VC}")
    for j in range(8):
        b0.e(f"buffer_store_dwordx4 {V(ACC(1, 0, 0) + 4*j, 4)}, v{VC if j < 4 else 10}, s[16:19], s26 offen offset:{(j & 3)*1024} sc1", tag='xs')
    b0.e("v_mov_b32 v16, 1")
    b0.at(SP + float(opt.get('xf', 3.2)))
    b0.wait_vm('xs')
    b0.blk(["s_mov_b64 exec, 1", f"buffer_store_dword v16, v{VZ}, s[20:23], s27 offen sc1", "s_mov_b64 exec, -1"])
    b0.at(SP + float(opt.get('xpl', 4.6)))
    b0.e(f"buffer_load_dword v17, v{VZ}, s[20:23], s24 offen sc1", tag='xp')
    b0.at(SP + float(opt.get('xck', 5.8)))
    b0.wait_vm('xp')
    b0.blk(["v_cmp_ne_u32 vcc, 1, v17", "s_mov_b32 s33, 0", "s_cbranch_vccnz L_xno"] +
           [(f"buffer_load_dwordx4 {V(XI + 4*j, 4)}, v{VC if j < 4 else 10}, s[16:19], s25 offen offset:{(j & 3)*1024} sc1", '!') for j in range(8)] +
           ["s_mov_b32 s33, 1", "L_xno:"])

    grp_ = []
    for it in b0.items:
        if it[0] == 'at': grp_.append([])
        grp_[-1].append(it)
    b0.items = [it for g_ in sorted(grp_, key=lambda x: x[0][1]) for it in g_]
    k.wait_vm('w0')
    k.use('hps')
    k.e("s_barrier")
    for cb in range(2):
        for u in range(4):
            for s in wread(u)[cb]: k.e(s, tag=f'f0_{cb}')
    BS = int(opt.get('k3_bs', 3))
    wnext = max(WDI, WE)
    for st in range(NS):
        k.stamp(SO and st % 4 == 0)
        vm = []
        for _ in range(int(opt.get('wq', 3)) if st >= SP - CDI else 1):
            if wnext < NS and wnext <= st + (6 if st >= SP - CDI else WDI):
                vm += [(t, s, f'w{wnext}') for t, s in w_ops(wnext)]; wnext += 1
        for n in ksteps_of(st + CDI): vm += [(t, s, f'c{n}') for t, s in c_ops(n)]
        g = {}; gt = {}; scal = {}
        for cb in range(4):
            s2, c2 = (st, cb + 2) if cb < 2 else (st + 1, cb - 2)
            if s2 < NS:
                for q in range(4):
                    g[8 * cb + 2 * q] = wread(4 * s2 + q)[c2]; gt[8 * cb + 2 * q] = f'f{s2}_{c2}'
        free = [x for x in range(32) if x not in g]
        ng = sum(1 for x in vm if x[0] == 'g')
        pick = [free[(2 * j + 1) * len(free) // (2 * ng)] for j in range(ng)] if ng else []
        j = 0
        for t, s, tg in vm:
            if t == 'g': g[pick[j]] = [s]; gt[pick[j]] = tg; j += 1
            elif t == 's': scal.setdefault(pick[j] - 1, []).append(s)
            else: g[pick[j - 1]].append(s)
        seq = [(4 * st + q, cb, rb) for cb in range(4) for rb in range(2) for q in range(4)]
        for m, (u, cb, rb) in enumerate(seq):
            if True:
                if True:
                    n, side = units[u]
                    if m == 0: k.wait_vm(f'c{units[u + 3][0]}')
                    k.wait_ds(f'f{st}_{cb}')
                    d = V(ACC(side, rb, cb), 4)
                    k.e(mfma(d, V(WF(u, cb), 4), A(CF(n, rb), 4), "0" if n == 0 else d))
                    if m == 12 and st + 1 < NS: k.wait_vm(f'w{st+1}')
                    if m == 14 and st + 1 < NS:
                        k.e("s_barrier")
                        if b.items and b.items[0][0] == 'nextbar': b.items.pop(0)
                    if m % 8 == 4 and m != 12 or m == 10:
                        k.wait_ds(f'f{st}_{cb+1}' if cb < 3 else f'f{st+1}_0')
                    if m == 30 and st + 1 < NS: k.wait_vm(f'c{units[4 * st + 7][0]}')
                    for s in scal.get(m, []): k.e(s)
                    if m in g:
                        for s in g[m]: k.e(s, tag=gt.get(m))
                        if int(opt.get('k3_ds', 1)) and st < SP - CDI and g[m][0].startswith('ds_') and b.items and b.items[0][0] == 'i' and b.cost(b.items[0]) == 1 \
                                and b.items[0][1].startswith('v_'):
                            b.fill(k, st + m / 32.0, int(opt.get('k3_ds', 1)))
                    else:
                        nl = k.ni
                        b0.fill(k, st + m / 32.0, 2)
                        if k.ni == nl: b.fill(k, st + m / 32.0, BS if st < SP - CDI else 2)
    print("phase4 items left", len(b.items), len(b0.items))
    b0.drain(k); b.drain(k)
    k.stamp(ST or SO)
    k.e("s_cmp_lg_u32 s53, s40")
    k.e("s_cbranch_scc1 L_ysl")
    k.label("L_yslr")
    k.e(f"v_and_b32 v{T1}, 15, v0")
    k.e(f"v_lshlrev_b32 v74, 8, v{T1}")
    k.e("v_add_u32 v74, s35, v74")
    k.e(f"v_xor_b32 v{T1}, v{T1}, v{G}")
    k.e(f"v_lshl_add_u32 v74, v{T1}, 4, v74")
    for cb in range(1, 4): k.e(f"v_xor_b32 v{74+cb}, {64*cb}, v74")
    k.e(f"v_lshlrev_b32 v{T2}, 1, v{L7}")
    k.e(f"v_xor_b32 v{T1}, v{L3}, v{T2}")
    k.e(f"v_lshlrev_b32 v12, 8, v{L3}")
    k.e("v_add_u32 v12, s35, v12")
    k.e(f"v_lshl_add_u32 v12, v{T1}, 4, v12")
    k.e("v_xor_b32 v13, 16, v12")
    k.e("v_xor_b32 v14, 128, v12")
    k.e("v_xor_b32 v15, 144, v12")
    k.e("s_cmp_eq_u32 s33, 0")
    k.e("s_cbranch_scc1 L_spinX")
    k.label("L_spinXr")
    def spinX():
        poll_loop("L_spinXl", "s24", VZ, 17, 1)
        for j in range(8):
            k.e(f"buffer_load_dwordx4 {V(XI + 4*j, 4)}, v{VC if j < 4 else 10}, s[16:19], s25 offen offset:{(j & 3)*1024} sc1")
    ool.append(("L_spinX", spinX, "L_spinXr"))
    XU = 80
    for p in range(4):
        for d in range(4):
            k.e(f"v_lshlrev_b32 v{XU+8*p+2*d}, 16, v{XP+4*p+d}")
            k.e(f"v_and_b32 v{XU+8*p+2*d+1}, 0xffff0000, v{XP+4*p+d}")
    k.e("s_waitcnt vmcnt(0)")
    for j in range(8):
        a = ACC(0, 0, 0) + 4 * j
        for e_ in (0, 2): k.e(f"v_pk_add_f32 {V(a+e_,2)}, {V(a+e_,2)}, {V(XI+4*j+e_,2)}")
        k.e(f"ds_write_b128 v{74 + (j & 3)}, {V(a,4)} offset:{(j >> 2)*4096}")
    for p in range(4):
        for h in range(2):
            k.e(f"ds_read_b128 {V(192 + 8*p + 4*h, 4)}, v{12 + h + 2*(p & 1)} offset:{p*2048}", tag=f'r{p}')
    for p in range(4):
        b_ = 192 + 8 * p; t_ = 224 + 4 * p
        k.wait_ds(f'r{p}')
        for d in range(4): rbf2(k, b_ + 2*d, b_ + 2*d + 1, t_ + d)
        for e_ in range(0, 8, 2): k.e(f"v_pk_mul_f32 {V(b_+e_,2)}, {V(b_+e_,2)}, {V(GT+8*p+e_,2)}")
        for d in range(4): rbf2(k, b_ + 2*d, b_ + 2*d + 1, t_ + d)
        for e_ in range(0, 8, 2): k.e(f"v_pk_add_f32 {V(b_+e_,2)}, {V(b_+e_,2)}, {V(XU+8*p+e_,2)}")
        for d in range(4): k.e(f"v_cvt_pk_bf16_f32 v{t_+d}, v{b_+2*d}, v{b_+2*d+1}")
        k.e(f"buffer_store_dwordx4 {V(t_,4)}, v{VO}, s[68:71], s36 offen{opt.get('out_st', ' sc1')}")
        if p < 3: k.e("s_add_u32 s36, s36, 16384")
    k.stamp(ST or SA)

    def f2A():
        k.e("s_lshr_b32 s5, s54, 1")
        k.e("s_lshl_b32 s5, s5, 5")
        k.e(f"s_add_u32 s5, s5, {WS_HFL}")
        k.e(f"buffer_load_dword v{T2}, v{VF}, s[20:23], s5 offen sc1")
    def f2B():
        k.e(f"s_waitcnt vmcnt({WN})")
        k.e(f"v_cmp_ne_u32 vcc, 1, v{T2}")
        k.e("s_cbranch_vccz L_f2lx")
        poll_loop("L_f2l", "s5", VF, T2)
        k.e("s_lshl_b32 s3, s54, 8")
        k.e(f"s_add_u32 s3, s3, {WS_HP}")
        k.e(f"v_mul_u32_u24 v{T1}, 14336, v{G}")
        k.e(f"v_and_b32 v{T2}, 15, v0")
        k.e(f"v_lshl_add_u32 v{T1}, v{T2}, 4, v{T1}")
        for j in range(8):
            k.e(f"buffer_load_dwordx4 {V(H0 + 4*j, 4)}, v{T1}, s[20:23], s3 offen sc1")
            if j < 7: k.e(f"s_add_u32 s3, s3, {4*14336}")
    for nm, fn in (("A", f2A), ("B", f2B)): ool.append((f"L_f2{nm}", fn, f"L_f2{nm}r"))
    YR = lambda t: 76 + 18 * t
    def own_tok(t, skip):
        k.e("s_lshl_b32 s7, s45, 2")
        k.e("s_add_u32 s7, s7, s32")
        k.e(f"s_lshr_b32 s3, s{42+t}, 5")
        k.e("s_cmp_lg_u32 s3, s7")
        k.e(f"s_cbranch_scc1 {skip}")
    def yloads():
        k.e(f"v_lshlrev_b32 v{T1}, 2, v0")
        k.e(f"v_lshlrev_b32 v{T2}, 1, v0")
        for t in range(2):
            L = k.newlabel("yl")
            own_tok(t, L)
            k.e(f"s_add_u32 s3, s55, {t*256}")
            k.e("s_add_u32 s7, s3, 4096")
            for j in range(14):
                k.e(f"buffer_load_dword v{YR(t)+j}, v{T1}, s[20:23], s{3 if j < 8 else 7} offen offset:{(j & 7)*512} sc1")
            k.e(f"s_lshl_b32 s3, s{42+t}, 11")
            k.e("s_lshl_b32 s7, s46, 7")
            k.e("s_add_u32 s3, s3, s7")
            k.e(f"buffer_load_ushort v{YR(t)+14}, v{T2}, s[56:59], s3 offen")
            k.e(f"s_lshl_b32 s3, s{42+t}, 3")
            k.e(f"s_add_u32 s3, s3, {WS_STATS}")
            k.e(f"buffer_load_dwordx2 {V(YR(t)+16,2)}, v{VZ}, s[20:23], s3 offen sc1")
            k.label(L)
    def rb1(r):
        k.e(f"v_cvt_pk_bf16_f32 v{r}, v{r}, v{r}")
        k.e(f"v_lshlrev_b32 v{r}, 16, v{r}")
    def selblock():
        for t in range(2):
            L = k.newlabel("ys")
            y, x = YR(t), YR(t) + 14
            own_tok(t, L)
            for j in range(2, 14, 2): k.e(f"v_pk_add_f32 {V(y,2)}, {V(y,2)}, {V(y+j,2)}")
            k.e(f"v_add_f32 v{y}, v{y}, v{y+1}")
            k.e(f"v_lshlrev_b32 v{x}, 16, v{x}")
            k.e(f"v_sub_f32 v{x}, v{x}, v{x+2}")
            rb1(y); rb1(x)
            k.e(f"v_mul_f32 v{y}, s{100+t}, v{y}")
            k.e(f"v_mul_f32 v{x}, v{x}, v{x+3}")
            rb1(y); rb1(x)
            k.e(f"v_add_f32 v{x}, v{x}, v{y}")
            rb1(x)
            silu_n(k, [x], [y])
            rb1(x)
            k.e(f"v_lshlrev_b32 v{T1}, 2, v0")
            k.e(f"v_add_u32 v{T1}, s35, v{T1}")
            k.e(f"v_lshlrev_b32 v{T2}, 5, v{L7}")
            k.e(f"v_add_u32 v{T2}, s35, v{T2}")
            k.e("s_waitcnt lgkmcnt(0)")
            k.e(f"ds_write_b32 v{T1}, v{x}")
            k.e(f"s_and_b32 s3, s{42+t}, 7")
            k.e("s_lshl_b32 s3, s3, 3")
            k.e("s_lshl_b64 s[4:5], 0xff, s3")
            k.e(f"s_bfe_u32 s3, s{42+t}, 0x20003")
            k.e("s_mov_b64 exec, s[4:5]")
            for p in range(4):
                L2 = k.newlabel("yp")
                k.e(f"s_cmp_lg_u32 s3, {p}")
                k.e(f"s_cbranch_scc1 {L2}")
                k.e(f"ds_read_b64 {V(GT+8*p,2)}, v{T2}")
                k.e(f"ds_read_b64 {V(GT+8*p+2,2)}, v{T2} offset:8")
                k.e(f"ds_read_b64 {V(GT+8*p+4,2)}, v{T2} offset:16")
                k.e(f"ds_read_b64 {V(GT+8*p+6,2)}, v{T2} offset:24")
                k.label(L2)
            k.e("s_mov_b64 exec, -1")
            k.e("s_waitcnt lgkmcnt(0)")
            k.label(L)
    def yA():
        k.e(f"v_min_u32 v{VF}, 13, v0")
        k.e(f"v_lshlrev_b32 v{VF}, 2, v{VF}")
        k.e(f"buffer_load_dword v74, v{VF}, s[20:23], s41 offen sc1")
    def yB():
        k.e(f"s_waitcnt vmcnt({opt.get('ybw', 1)})")
        k.e("v_cmp_ne_u32 vcc, 1, v74")
        k.e("s_cbranch_vccnz L_yBr")
        k.e("s_mov_b32 s40, 1")
        yloads()
    def yC():
        k.e(f"s_waitcnt vmcnt({opt.get('ycw', 1)})")
        selblock()
    def ysl():
        poll_loop("L_ysll", "s41", VF, T1)
        yloads()
        k.e("s_waitcnt vmcnt(0)")
        selblock()
    ool.append(("L_yA", yA, "L_yAr")); ool.append(("L_yB", yB, "L_yBr")); ool.append(("L_yC", yC, "L_yCr")); ool.append(("L_ysl", ysl, "L_yslr"))
```

```python
from fw import *
from layout import *
import p4, p4b, p4c, p4d
KNAME = 'recurrent_scan__compressed_kv_cla__moe_arch_mod__prompt_kernel'

K12_LDS = 163840
QSCALE = 0x3e0293ee
BIG = 0x7ff00000

def gen_k12(opt):
    k = Asm(KNAME)
    k.short = "f"
    P4 = {'0': p4, '1': p4b, '2': p4c, '3': p4d}[opt.get('s2', '2')]
    p4_ptr_loads, p4_setup, phase4 = P4.p4_ptr_loads, P4.p4_setup, P4.phase4
    ST = opt.get('stamp') == '1'
    S1 = opt.get('stamp') == 'p1'
    S2 = opt.get('stamp') == 'p2'
    SA = opt.get('stamp') == 'a'
    S0 = opt.get('stamp') == 'p0'
    w_ld, a_ld, x_ld = opt.get('w_ld', ''), opt.get('a_ld', ''), opt.get('x_ld', '')
    wq_ld, kv_ld, ffn_ld = opt.get('wq_ld', ''), opt.get('kv_ld', ' sc1'), opt.get('ffn_ld', '')
    MAP = int(opt.get('map', 4))
    WOT = opt.get('wot', '0') == '1'
    TK = opt.get('tk', '0') == '1'
    VOA, VOW, AD, PFO = 2, 6, 10, 47
    AA = [[10, 11], [12, 13]]
    WA = [list(range(16, 24)), [14, 15] + list(range(24, 30))]
    FA = lambda it, ks: 224 + (it % 4) * 8 + 4 * ks
    FW = lambda buf, jd, ks: 64 * buf + 8 * jd + 4 * ks
    def frag_of(isV, it, jd):
        return ((it >> 1) * 8 + jd, it & 1) if isV else (it * 4 + (jd >> 1), jd & 1)
    SRC = lambda n: ('v', 48 + 8 * n) if n < 26 else ('a', 128 + 8 * (n - 26))
    def acc(isV, it, jd):
        n, h = frag_of(isV, it, jd)
        p, r = SRC(n)
        return R(p, r + 4 * h, 4)
    PK = lambda n: 24 + 4 * (n if n < 26 else n - 26)
    VX, VY, VDMA, VRA, VRB, ORR, T0 = 2, 3, 4, 5, 6, 7, 1
    WV, XV, TA = 8, 10, 16
    ET = 8
    ONES, NINF = 16, 20
    NEGM, LS, PB, SB = 32, 48, 64, 128
    P = lambda par, qb, ks: PB + 32 * par + (qb * 2 + ks) * 4
    Sr = lambda par, qb, kb: SB + 64 * par + (qb * 4 + kb) * 4
    O = lambda qb, db: (qb * 8 + db) * 4
    Q = lambda qb, s: 128 + (qb * 4 + s) * 4
    FR = lambda grp, j: 192 + 16 * grp + 4 * j
    QA = lambda db, qb: 128 + (qb * 8 + db) * 4
    XR = lambda kk, qb: ((kk % 8) * 4 + qb) * 4
    P2C = opt.get('p2ch', '0') == '1'
    WF = lambda ks, db: 192 + db * 8 + ks * 4 if P2C else 192 + ks * 32 + db * 4

    k.e("s_cmp_ge_u32 s2, 256")
    k.e("s_cbranch_scc1 L_k2_end")
    k.stamp(ST or S0)
    k.e("s_load_dwordx4 s[4:7], s[0:1], 0")
    k.e("s_load_dwordx2 s[44:45], s[0:1], 56")
    k.e("s_load_dwordx4 s[40:43], s[0:1], 24")
    k.e("s_load_dwordx4 s[64:67], s[0:1], 96")
    k.e("v_lshrrev_b32 v1, 6, v0")
    k.e("v_and_b32 v0, 63, v0")
    k.e("v_readfirstlane_b32 s32, v1")
    def emit(lst, o=None):
        for x in lst:
            if x.endswith(':'): k.label(x[:-1])
            else: k.e(x, tag='cpf')
    CPF = opt.get('cpf', '123456')
    if '1' in CPF: emit(code_prefetch(KNAME, "L_k2_fin", 32, 68, 120, 124))
    k.e("v_lshrrev_b32 v33, 5, v0")
    k.e("v_and_b32 v31, 31, v0")
    k.e("v_lshlrev_b32 v36, 4, v31")
    k.e("v_lshl_add_u32 v35, v33, 11, v36")
    k.e("s_lshl_b32 s36, s2, 14")
    k.e("s_lshl_b32 s37, s32, 12")
    k.e("s_add_u32 s36, s36, s37")
    k.e("s_mov_b32 s18, 4194304")
    k.e("s_mov_b32 s19, 0x20000")
    k.e("s_bfe_u32 s33, s2, 0x30003")
    k.e("s_lshr_b32 s35, s2, 7")
    k.e("s_bfe_u32 s3, s2, 0x10006")
    k.e("s_and_b32 s34, s2, 7")
    k.e("s_lshl_b32 s34, s34, 1")
    k.e("s_add_u32 s34, s34, s3")
    k.e("s_waitcnt lgkmcnt(0)")
    k.stamp(S0)
    k.e("s_mov_b32 s16, s4")
    k.e("s_and_b32 s17, s5, 0xffff")
    XP, WR, XF = 48, 64, 80
    for i in range(4):
        k.e(f"buffer_load_dwordx4 {V(XP+4*i,4)}, v35, s[16:19], s36 offen offset:{i*512}{x_ld}", tag='x')
    k.e("s_cmp_eq_u32 s35, 0")
    k.e("s_cselect_b32 s40, s40, s42")
    k.e("s_cselect_b32 s41, s41, s43")
    k.e("s_lshl_b32 s3, s34, 9")
    k.srd(12, 40, 0, "s3")
    k.e("s_sub_u32 s14, 4194304, s3")
    k.e("s_lshl_b32 s3, s33, 18")
    k.srd(8, 6, 262144, "s3")
    KX = int(opt.get('kx', 7))
    k.e(f"s_and_b32 s58, s2, {KX}")
    def dma_ops(buf):
        ops = []
        for (base, vo, so, srd, fl) in ((57, VOW, 52, 12, w_ld), (56, VOA, 48, 8, a_ld)):
            for hi in range(2):
                ops.append(('s', f"s_add_u32 m0, s{base}, {buf*65536 + hi*4096}"))
                for lo in range(4):
                    ops.append(('g', f"buffer_load_dwordx4 v{vo + (lo&1) + 2*hi}, {S(srd,4)}, s{so+lo} offen offset:{lo*1024}{fl} lds"))
        return ops
    def adv_ops(j):
        x = j ^ (j + 1)
        return [f"v_xor_b32 v{VOW+q}, {x << 19}, v{VOW+q}" for q in range(4)] + [f"v_xor_b32 v{VOA+q}, {x << 7}, v{VOA+q}" for q in range(4)]
    PF0 = int(opt.get('pf0', 2))
    pfc = [PF0]
    def pf_ops():
        j = pfc[0]; pfc[0] += 1
        return [f"buffer_load_dword v1, v{PFO}, s[60:63], 0 offen{opt.get('pf_ld', '')}",
                f"s_mul_i32 vcc_lo, s59, {(j ^ (j + 1)) & 7}", f"v_xor_b32 v{PFO}, vcc_lo, v{PFO}"]
    def setup_P():
        k.e("s_cmp_lt_u32 s32, 2")
        for j in range(3): k.e(f"s_cselect_b32 s{60+j}, s{8+j}, s{12+j}")
        k.e("s_mov_b32 s63, 0x20000")
        k.e(f"s_mov_b32 s59, {64*8192}")
        k.e("s_cselect_b32 s59, 128, s59")
        k.e("s_cselect_b64 vcc, -1, 0")
        k.e("s_cselect_b32 s38, 32, 16")
        k.e("s_lshr_b32 s3, s2, 6")
        k.e("s_cmp_lt_u32 s32, 2")
        k.e("s_cselect_b32 s3, s3, s33")
        k.e("s_lshl_b32 s3, s3, 1")
        k.e("s_and_b32 s39, s32, 1")
        k.e("s_add_u32 s3, s3, s39")
        k.e("s_lshl_b32 s3, s3, 15")
        k.e(f"s_xor_b32 s39, s58, {PF0}")
        k.e("s_mul_i32 s39, s39, s59")
        k.e("s_add_u32 s3, s3, s39")
        k.e("v_lshlrev_b32 v37, 10, v0")
        k.e("v_lshrrev_b32 v38, 2, v0")
        k.e("v_lshlrev_b32 v38, 13, v38")
        k.e("v_and_b32 v39, 3, v0")
        k.e("v_lshl_add_u32 v38, v39, 7, v38")
        k.e(f"v_cndmask_b32 v{PFO}, v38, v37, vcc")
        k.e(f"v_add_u32 v{PFO}, s3, v{PFO}")
        k.e("v_cmp_gt_u32 vcc, s38, v0")
        k.e(f"v_mov_b32 v37, {BIG}")
        k.e(f"v_cndmask_b32 v{PFO}, v37, v{PFO}, vcc")
    def setup_W():
        for j in range(4): k.e(f"s_mov_b32 s{52+j}, {j*15360}")
        k.e("s_lshl_b32 s57, s32, 13")
        k.e("s_add_u32 s56, s57, 32768")
        k.e("s_lshl_b32 s3, s58, 2")
        k.e("s_add_u32 s3, s3, s32")
        k.e("s_lshl_b32 s3, s3, 4")
        k.e("v_add_u32 v30, s3, v33")
        k.e("v_lshlrev_b32 v30, 13, v30")
        k.e("v_lshlrev_b32 v34, 5, v33")
        k.e("v_xor_b32 v34, v34, v36")
        k.e(f"v_add_u32 v{VOW}, v34, v30")
        k.e(f"v_xor_b32 v{VOW+1}, 64, v{VOW}")
        k.e(f"v_xor_b32 v{VOW+2}, {8*8192 + 128}, v{VOW}")
        k.e(f"v_xor_b32 v{VOW+3}, {8*8192 + 192}, v{VOW}")
    def setup_A():
        for j in range(4): k.e(f"s_mov_b32 s{48+j}, {j*7168}")
        k.e("v_lshrrev_b32 v30, 3, v0")
        k.e("v_lshlrev_b32 v30, 10, v30")
        k.e("s_lshl_b32 s3, s32, 16")
        k.e("s_lshl_b32 s39, s58, 7")
        k.e("s_add_u32 s3, s3, s39")
        k.e("v_and_b32 v31, 7, v0")
        k.e("v_lshrrev_b32 v32, 4, v0")
        k.e("v_xor_b32 v31, v31, v32")
        k.e("v_lshl_add_u32 v30, v31, 4, v30")
        k.e(f"v_add_u32 v{VOA}, s3, v30")
        k.e(f"v_xor_b32 v{VOA+1}, 64, v{VOA}")
        k.e(f"v_xor_b32 v{VOA+2}, 32768, v{VOA}")
        k.e(f"v_xor_b32 v{VOA+3}, {32768 + 64}, v{VOA}")
    def setup_D():
        k.srd(20, 66, 8 << 20)
        k.srd(24, 66, 32 * KV_HEAD, WS_KV)
        k.e("v_lshrrev_b32 v32, 4, v0")
        k.e("v_and_b32 v30, 15, v0")
        k.e("s_lshr_b32 s3, s32, 1")
        k.e("s_lshl_b32 s3, s3, 14")
        k.e("s_add_u32 s3, s3, 32768")
        k.e("v_lshlrev_b32 v31, 7, v30")
        k.e("v_add_u32 v31, s3, v31")
        k.e("v_lshrrev_b32 v34, 1, v30")
        k.e("v_xor_b32 v34, v34, v32")
        k.e(f"v_lshl_add_u32 v{AA[0][0]}, v34, 4, v31")
        k.e(f"v_xor_b32 v{AA[0][1]}, 64, v{AA[0][0]}")
        k.e("v_lshrrev_b32 v30, 2, v30")
        k.e("v_lshl_add_u32 v31, v32, 3, v30")
        k.e("v_lshlrev_b32 v31, 9, v31")
        k.e("v_and_b32 v34, 3, v0")
        k.e("v_lshl_add_u32 v31, v34, 3, v31")
        k.e("s_and_b32 s3, s32, 1")
        k.e("s_lshl_b32 s3, s3, 8")
        k.e("v_add_u32 v31, s3, v31")
        k.e("v_and_b32 v34, 1, v32")
        k.e("v_lshl_add_u32 v30, v34, 2, v30")
        k.e(f"v_lshl_add_u32 v{WA[0][0]}, v30, 5, v31")
        for jj in range(1, 8): k.e(f"v_xor_b32 v{WA[0][jj]}, {jj*32}, v{WA[0][0]}")
        for x0, x1 in zip(AA[0] + WA[0], AA[1] + WA[1]): k.e(f"v_add_u32 v{x1}, 65536, v{x0}")
    def act(seq):
        for x in seq.split(','):
            if not x: continue
            if x in 'PWAD': {'P': setup_P, 'W': setup_W, 'A': setup_A, 'D': setup_D}[x]()
            elif x == 'p':
                for s in pf_ops(): k.e(s, tag='pf')
            elif x == 'r':
                k.srd(28, 44, 2048)
                for i in range(4):
                    k.e(f"buffer_load_dwordx4 {V(WR+4*i,4)}, v36, s[28:31], 0 offen offset:{i*512}", tag='wr')
            else:
                st = int(x[1]); h = 0 if x[0] == 'w' else 1
                for t, s in dma_ops(st)[10*h:10*h+10]: k.e(s, tag=x + 'd')
                for s in adv_ops(st)[4*h:4*h+4]: k.e(s)
    PRO = opt.get('pro', 'W,w0,A,P,D,r/a0///').split('/')
    act(PRO[0])
    k.stamp(S0)
    def sum32(v, t):
        for m in ["quad_perm:[1,0,3,2]", "quad_perm:[2,3,0,1]", "row_half_mirror", "row_mirror"]:
            k.e(f"v_add_f32_dpp v{v}, v{v}, v{v} {m} row_mask:0xf bank_mask:0xf")
        k.e(f"v_mov_b32 v{t}, v{v}")
        k.e(f"v_permlane16_swap_b32 v{t}, v{v}")
        k.e(f"v_add_f32 v{v}, v{v}, v{t}")
    k.wait_vm('x')
    k.stamp(S0)
    for i in range(16):
        k.e(f"v_lshlrev_b32 v{XF+2*i}, 16, v{XP+i}")
        k.e(f"v_and_b32 v{XF+2*i+1}, 0xffff0000, v{XP+i}")
    k.e(f"v_pk_add_f32 v[40:41], {V(XF,2)}, {V(XF+2,2)}")
    k.e(f"v_pk_add_f32 v[42:43], {V(XF+4,2)}, {V(XF+6,2)}")
    for i in range(4, 16):
        d = 40 + 2 * (i & 1)
        k.e(f"v_pk_add_f32 {V(d,2)}, {V(d,2)}, {V(XF+2*i,2)}")
    k.e("v_pk_add_f32 v[40:41], v[40:41], v[42:43]")
    k.e("v_add_f32 v38, v40, v41")
    sum32(38, 37)
    k.stamp(S0)
    act(PRO[1])
    k.e("v_mul_f32 v38, 0xba800000, v38")
    k.e("v_mov_b32 v39, v38")
    T = 112
    for i in range(16):
        k.e(f"v_pk_add_f32 {V(T+2*(i&3),2)}, {V(XF+2*i,2)}, v[38:39]")
        d = 40 + 2 * (i & 1)
        if i < 2: k.e(f"v_pk_mul_f32 {V(d,2)}, {V(T+2*(i&3),2)}, {V(T+2*(i&3),2)}")
        else: k.e(f"v_pk_fma_f32 {V(d,2)}, {V(T+2*(i&3),2)}, {V(T+2*(i&3),2)}, {V(d,2)}")
    k.e("v_pk_add_f32 v[40:41], v[40:41], v[42:43]")
    k.e("v_add_f32 v40, v40, v41")
    sum32(40, 37)
    act(PRO[2])
    k.stamp(S0)
    k.e("v_mul_f32 v40, 0x3a800000, v40")
    k.e("v_cvt_pk_bf16_f32 v44, v38, v40")
    k.e("v_lshlrev_b32 v38, 16, v44")
    k.e("v_and_b32 v40, 0xffff0000, v44")
    k.e("v_add_f32 v40, 0x3727c5ac, v40")
    k.e("v_cvt_pk_bf16_f32 v44, v40, v40")
    k.e("v_lshlrev_b32 v40, 16, v44")
    k.e("v_sqrt_f32 v40, v40")
    k.e("v_mov_b32 v39, v38")
    k.e("v_cvt_pk_bf16_f32 v44, v40, v40")
    k.e("v_lshlrev_b32 v44, 16, v44")
    k.e("v_rcp_f32 v40, v44")
    for i in range(16):
        k.e(f"v_pk_add_f32 {V(XF+2*i,2)}, {V(XF+2*i,2)}, v[38:39]")
    k.e("v_fma_f32 v45, -v44, v40, 1.0")
    k.e("v_fma_f32 v40, v45, v40, v40")
    k.e("v_mov_b32 v41, v40")
    for i in range(16):
        k.e(f"v_cvt_pk_bf16_f32 v{XP+i}, v{XF+2*i}, v{XF+2*i+1}")
    for i in range(16):
        k.e(f"v_lshlrev_b32 v{XF+2*i}, 16, v{XP+i}")
        k.e(f"v_and_b32 v{XF+2*i+1}, 0xffff0000, v{XP+i}")
    for i in range(16):
        k.e(f"v_pk_mul_f32 {V(XF+2*i,2)}, {V(XF+2*i,2)}, v[40:41]")
    for i in range(16):
        k.e(f"v_cvt_pk_bf16_f32 v{XP+i}, v{XF+2*i}, v{XF+2*i+1}")
    k.e("s_mul_i32 s3, s32, 4128")
    k.e("s_add_u32 s3, s3, 131072")
    k.e("v_mul_u32_u24 v42, 2064, v33")
    k.e("v_add3_u32 v42, v42, v36, s3")
    for i in range(4):
        k.e(f"ds_write_b128 v42, {V(XP+4*i,4)} offset:{i*512}")
    act(PRO[3])
    k.stamp(S0)
    k.wait_vm('wr')
    k.stamp(S0)
    for i in range(16):
        k.e(f"v_lshlrev_b32 v{XF+2*i}, 16, v{XP+i}")
        k.e(f"v_and_b32 v{XF+2*i+1}, 0xffff0000, v{XP+i}")
        k.e(f"v_lshlrev_b32 v{T+2*(i&3)}, 16, v{WR+i}")
        k.e(f"v_and_b32 v{T+2*(i&3)+1}, 0xffff0000, v{WR+i}")
        d = 42 + 2 * (i & 1)
        if i < 2: k.e(f"v_pk_mul_f32 {V(d,2)}, {V(XF+2*i,2)}, {V(T+2*(i&3),2)}")
        else: k.e(f"v_pk_fma_f32 {V(d,2)}, {V(XF+2*i,2)}, {V(T+2*(i&3),2)}, {V(d,2)}")
    k.e("v_pk_add_f32 v[42:43], v[42:43], v[44:45]")
    k.e("v_add_f32 v45, v42, v43")
    sum32(45, 37)
    k.e("v_cvt_pk_bf16_f32 v45, v45, v45")
    k.e("v_ashrrev_i32 v46, 31, v45")
    k.e("v_or_b32 v46, 0x80000000, v46")
    k.e("v_xor_b32 v45, v45, v46")
    k.e("v_and_b32 v45, 0xffff0000, v45")
    k.e("s_lshr_b32 s3, s36, 11")
    k.e("v_add_u32 v46, s3, v33")
    k.e("v_sub_u32 v44, 0xffff, v46")
    k.e("v_or_b32 v45, v45, v44")
    k.e("v_lshlrev_b32 v44, 2, v46")
    k.e("v_lshlrev_b32 v46, 3, v46")
    k.e("v_xor_b32 v38, 0x80000000, v38")
    k.e("v_mov_b32 v39, v40")
    k.e(f"s_mov_b32 s3, {WS_KEYS}")
    k.e(f"s_mov_b32 s39, {WS_STATS}")
    k.e("s_mov_b32 exec_lo, 1")
    k.e("s_mov_b32 exec_hi, 1")
    k.e("buffer_store_dword v45, v44, s[20:23], s3 offen sc1", tag='ln')
    k.e("buffer_store_dwordx2 v[38:39], v46, s[20:23], s39 offen sc1", tag='ln')
    k.e("s_mov_b64 exec, -1")
    k.e("s_load_dwordx2 s[4:5], s[0:1], 16")
    k.e("s_load_dwordx4 s[40:43], s[0:1], 64")
    k.e("s_load_dwordx2 s[92:93], s[0:1], 40")
    k.e("s_load_dwordx2 s[94:95], s[0:1], 80")
    k.e("s_load_dwordx2 s[100:101], s[0:1], 0")
    act(PRO[4])
    PFN = pfc[0] - 2
    k.srd(28, 64, 256)

    def areads(st, pr):
        return [f"ds_read_b128 {A(FA(it,ks),4)}, v{AA[st & 1][ks]} offset:{it*2048}" for it in (2 * pr, 2 * pr + 1) for ks in range(2)]
    def wfreads(st):
        return [[f"ds_read_b64_tr_b16 {A(FW(st & 1,j,ks)+2*rd,2)}, v{WA[st & 1][j]} offset:{ks*16384+rd*2048}" for rd in range(2)]
                for j in range(8) for ks in range(2)]
    k.stamp(S0)
    k.wait_vm('w0d'); k.wait_vm('a0d')
    k.e("s_waitcnt lgkmcnt(0)")
    k.e("s_barrier")
    k.stamp(ST or S0)
    for s in areads(0, 0): k.e(s, tag='A0_0')
    for n, grp in enumerate(wfreads(0)):
        for s in grp: k.e(s, tag=f'W0_{n // 2}')
    k.e("s_cmp_lg_u32 s35, 0")
    k.e("s_cbranch_scc1 L_k1_vpath")

    def chunk_ops(c):
        kind, j = c
        slot = {'w': j % 4, 'kv': (j + 4) % 8}[kind]
        ops = [('s', f"s_add_u32 m0, s44, {slot * 16384}")]
        if kind == 'w':
            for q in range(4):
                ops.append(('g', f"buffer_load_dwordx4 v{WV + (q >> 1)}, s[8:11], s{48+q} offen offset:{q*1024}{wq_ld} lds"))
            ops.append(('v', f"v_xor_b32 v{WV}, {((j ^ (j + 1)) & 15) << 19}, v{WV}"))
            ops.append(('v', f"v_xor_b32 v{WV+1}, {((j ^ (j + 1)) & 15) << 19}, v{WV+1}"))
        elif kind == 'f':
            for q in range(4):
                ops.append(('g', f"buffer_load_dwordx4 v{12 + (q >> 1) + 2 * (j & 1)}, {S(60 + 8 * (j >> 1), 4)}, s{52+q} offen offset:{q*1024}{ffn_ld} lds"))
        else:
            ops.append(('s', f"s_mov_b32 s7, {j * KV_CH}"))
            for q in range(4):
                ops.append(('g', f"buffer_load_dwordx4 v{VDMA}, s[12:15], s7 offen offset:{q*1024}{kv_ld} lds"))
        return ops
    QX = int(opt.get('qx', -1))
    def xn_ops(kk):
        ops = []
        for qb in range(4):
            so = "s52" if qb & 1 else "s53"
            ops.append(('g', f"buffer_load_dwordx4 {A(XR(kk,qb),4)}, v{XV + (qb >> 1)}, s[20:23], {so} offen offset:{(kk % 2)*1024}{opt.get('xn_ld', ' sc1')}"))
        if kk % 2 == 1 and kk < 31:
            st = kk // 2
            ops.append(('v', f"s_xor_b32 s52, s52, {(st ^ (st + 1)) << 11}"))
            ops.append(('v', "s_add_u32 s53, s52, s58"))
        return ops
    def wreads(kk):
        st = kk // 2
        return [[f"ds_read_b64_tr_b16 {A(WF(ks,db)+2*rd,2)}, v{TA+db} offset:{(st % 4)*16384 + ks*8192 + rd*1024}" for rd in range(2)]
                for db, ks in ([(d, q) for d in range(4 * (kk & 1), 4 * (kk & 1) + 4) for q in range(2)] if P2C else [(d, kk & 1) for d in range(8)])]
    ool = []
    def spin(lab, ret, off, target, vd, vz, sv, sc):
        def fn():
            k.e(f"s_mov_b32 s{sc}, 0x400000")
            k.label(lab + "_l")
            k.e(f"s_sleep {opt.get('slp', 8)}")
            k.e(f"buffer_load_dword v{vd}, v{vz}, s[28:31], {off} offen sc1")
            k.e("s_waitcnt vmcnt(0)")
            k.e(f"v_readfirstlane_b32 s{sv}, v{vd}")
            k.e(f"s_sub_u32 s{sc}, s{sc}, 1")
            k.e(f"s_cmp_eq_u32 s{sc}, 0")
            k.e(f"s_cbranch_scc1 {ret}")
            k.e(f"s_cmp_lt_u32 s{sv}, {target}")
            k.e(f"s_cbranch_scc1 {lab}_l")
        ool.append((lab, fn, ret))
    def srd_rec(b, d, base, nbytes, add=None):
        if add is None:
            b.e(f"s_mov_b32 s{d}, s{base}"); b.e(f"s_and_b32 s{d+1}, s{base+1}, 0xffff")
        else:
            b.blk([f"s_add_u32 s{d}, s{base}, {add}", f"s_addc_u32 s{d+1}, s{base+1}, 0", f"s_and_b32 s{d+1}, s{d+1}, 0xffff"])
        b.e(f"s_mov_b32 s{d+2}, {nbytes}"); b.e(f"s_mov_b32 s{d+3}, 0x20000")

    def phase1_stream(isV):
        b = Rec()
        tg = 'v' if isV else 'k'
        b.e("v_and_b32 v46, 7, v0")
        b.e("v_lshrrev_b32 v1, 3, v0") if False else None
        b.e("v_mul_u32_u24 v30, 2064, v46")
        b.e("v_lshrrev_b32 v31, 3, v0")
        b.e("s_lshl_b32 s3, s32, 9")
        b.e("s_add_u32 s3, s3, 131072")
        b.e("v_lshl_add_u32 v30, v31, 4, v30")
        b.e("v_add_u32 v30, s3, v30")
        b.e("v_lshlrev_b32 v31, 8, v31")
        b.e("v_lshl_add_u32 v46, v46, 4, v31")
        for i in (1, 2, 3, 0):
            b.e(f"ds_read_b128 {V(30+4*i,4)}, v30 offset:{i*128}", tag='xs')
        b.e("s_lshr_b32 s3, s2, 1")
        b.e(f"s_mul_i32 s3, s3, {XN_RB}")
        b.e("s_add_u32 s3, s3, s57")
        b.e("s_and_b32 s39, s2, 1")
        b.e("s_lshl_b32 s39, s39, 7")
        b.e("s_add_u32 s3, s3, s39")
        b.e("s_add_u32 s39, s3, 4096")
        b.at(2)
        for i in range(4):
            b.e(f"buffer_store_dwordx4 {V(30+4*i,4)}, v46, s[20:23], s{3 if i < 2 else 39} offen offset:{(i&1)*2048} sc1", tag='ln')
        b.e("s_lshl_b32 s3, s34, 1")
        b.e("s_and_b32 s36, s32, 1")
        b.e("s_add_u32 s3, s3, s36")
        b.e(f"s_mul_i32 s3, s3, {KV_HEAD}")
        b.e(f"s_mul_i32 s36, s33, {4*KV_TILE}")
        b.e("s_add_u32 s3, s3, s36")
        b.e("s_lshr_b32 s36, s32, 1")
        b.e(f"s_mul_i32 s36, s36, {2*KV_TILE}")
        b.e("s_add_u32 s3, s3, s36")
        b.e(f"s_add_u32 s38, s3, {KV_CH if isV else 0}")
        b.e("s_lshl_b32 s39, s34, 7")
        b.e("s_lshl_b32 s36, s33, 2")
        b.e("s_add_u32 s39, s39, s36")
        b.e(f"s_add_u32 s39, s39, {WS_FLG + (32 if isV else 0)}")
        b.e("v_mov_b32 v30, 1")
        b.e("v_mov_b32 v31, 0")
        b.blk(["s_cmp_eq_u32 s32, 0", f"s_cselect_b32 s39, s39, {BIG}"])
        b.blk(["s_mov_b64 exec, 1", ("buffer_store_dword v31, v31, s[20:23], s39 offen sc1", 'ln'), "s_mov_b64 exec, -1"])
        if MAP == 4:
            b.e("s_and_b32 s33, s2, 7")
            b.e("s_lshl_b32 s33, s33, 2")
            b.e("s_bfe_u32 s3, s2, 0x20003")
            b.e("s_add_u32 s33, s33, s3")
            b.e("s_lshr_b32 s34, s2, 5")
        else:
            b.e("s_and_b32 s33, s2, 6")
            b.e("s_lshl_b32 s33, s33, 2")
            b.e("s_bfe_u32 s3, s2, 0x30003")
            b.e("s_add_u32 s33, s33, s3")
            b.e("s_lshr_b32 s34, s2, 6")
            b.e("s_lshl_b32 s34, s34, 1")
            b.e("s_and_b32 s3, s2, 1")
            b.e("s_add_u32 s34, s34, s3")
        b.e("s_lshl_b32 s64, s34, 7")
        b.e("s_lshl_b32 s3, s33, 2")
        b.e("s_add_u32 s64, s64, s3")
        b.e(f"s_add_u32 s64, s64, {WS_CFL}")
        b.e("s_lshl_b32 s65, s34, 8")
        b.e("s_sub_u32 s65, 1920, s65")
        b.e("v_mul_u32_u24 v32, s65, v0")
        b.blk(["s_cmp_eq_u32 s32, 0", f"s_cselect_b32 s64, s64, {BIG}"])
        b.blk(["s_mov_b64 exec, 3", ("buffer_store_dword v31, v32, s[20:23], s64 offen sc1", 'ln'), "s_mov_b64 exec, -1"])
        b.e("s_lshl_b32 s3, s2, 2")
        b.e(f"s_add_u32 s3, s3, {WS_HFL}")
        b.e("v_lshlrev_b32 v32, 10, v0")
        b.blk(["s_cmp_eq_u32 s32, 0", f"s_cselect_b32 s3, s3, {BIG}"])
        b.blk(["s_mov_b64 exec, 0x1ff", ("buffer_store_dword v31, v32, s[20:23], s3 offen sc1", 'ln'), "s_mov_b64 exec, -1"])
        b.e("s_lshl_b32 s35, s34, 1")
        b.e("s_sub_u32 s36, 32, s35")
        b.e("s_add_u32 s35, s35, 2")
        b.e("s_lshl_b32 s44, s32, 12")
        b.e("s_lshl_b32 s58, s32, 1")
        b.e("s_sub_u32 s58, 7, s58")
        b.e(f"s_mul_i32 s58, s58, {XN_RB}")
        b.e("s_sub_u32 s3, 15, s34")
        b.e("s_lshl_b32 s45, s3, 3")
        b.e("s_add_u32 s45, s45, s32")
        b.e("s_lshl_b32 s46, s34, 3")
        b.e("s_add_u32 s46, s46, s32")
        srd_rec(b, 68, 42, 7340032)
        b.blk(["s_cmp_eq_u32 s32, 0", f"s_cselect_b32 s37, 0, {BIG}"])
        b.e("s_lshl_b32 s3, s33, 8")
        srd_rec(b, 16, 4, 0, "s3")
        b.e("s_sub_u32 s18, 8388608, s3")
        WQN = int(opt.get('wqn', 4))
        ln_ = (64 if MAP == 4 else 128) // WQN
        b.e(f"v_and_b32 v33, {ln_ - 1}, v0")
        b.e("v_lshrrev_b32 v32, 1, v33")
        b.e("v_and_b32 v33, 1, v0")
        b.e("v_lshlrev_b32 v32, 13, v32")
        b.e("v_lshl_add_u32 v45, v33, 7, v32")
        b.e("s_lshl_b32 s3, s32, 3")
        b.e("s_add_u32 s3, s3, s34")
        if MAP != 4: b.e("s_lshr_b32 s3, s3, 1")
        b.e(f"s_mul_i32 s47, s3, {ln_ // 2 * 8192}")
        WQ0 = int(opt.get('wq0', 6))
        ev = []
        for j in range(WQN): ev.append((WQ0 + j * float(opt.get('wqs', 2)), 'pf', j))
        NS = int(opt.get('cas', 4))
        for j in range(NS): ev.append((5.2 + j * float(opt.get('cad', 1.2)), 'ca', j))
        b.e(f"s_bfe_u32 s6, s2, {(NS.bit_length() - 1) << 16 | 3}")
        b.e("s_lshl_b32 s3, s32, 8")
        b.e("s_or_b32 s6, s6, s3")
        WOP = WOT
        if WOP:
            b.e("v_bfe_u32 v39, v0, 3, 1")
            b.e("v_and_b32 v33, 7, v0")
            b.e("v_lshlrev_b32 v39, 11, v39")
            b.e("v_lshl_add_u32 v39, v33, 7, v39")
            b.e("s_lshr_b32 s3, s2, 1")
            b.e("s_lshl_b32 s3, s3, 16")
            b.e("v_add_u32 v39, s3, v39")
            b.e("s_and_b32 s3, s2, 1")
            b.e("s_lshl_b32 s3, s3, 10")
            b.e("v_add_u32 v39, s3, v39")
            b.e("s_lshl_b32 s3, s32, 14")
            b.e("v_add_u32 v39, s3, v39")
            ev.append((5.99, 'srd', 0))
            for j in range(4): ev.append((float(opt.get('wop0', 6)) + j * 2 + 0.01, 'wo', j))
        late = []
        for step, kind, j in sorted(ev):
            o = b
            if step >= 12:
                o = Rec(); late.append(o)
            o.at(step)
            if kind == 'ca':
                o.check_clear('ln')
                o.blk([f"s_cmp_eq_u32 s6, {j}", f"s_cselect_b32 s3, 0, {BIG}"])
                o.blk(["s_mov_b64 exec, 1", "buffer_atomic_add v30, v31, s[28:31], s3 offen sc1", "s_mov_b64 exec, -1"])
            elif kind == 'srd':
                srd_rec(o, 60, 92, 8388608)
            elif kind == 'wo':
                o.e("buffer_load_dword v44, v39, s[60:63], 0 offen", tag='pf')
                o.e("v_add_u32 v39, 4096, v39")
            else:
                o.e(f"buffer_load_dword v44, v45, s[{16 if step < 12 else 8}:{19 if step < 12 else 11}], s47 offen{opt.get('wqpf_ld', '')}", tag='pf')
                o.e(f"s_add_u32 s47, s47, {1024 // WQN * 8192}")
        b.e("v_lshrrev_b32 v32, 4, v0")
        b.e("v_and_b32 v33, 15, v0")
        b.e("s_lshl_b32 s3, s32, 4")
        b.e("v_add_u32 v34, s3, v32")
        b.e("v_lshlrev_b32 v36, 1, v32")
        b.e("v_xor_b32 v36, v36, v33")
        b.e("v_xor_b32 v37, 8, v36")
        if '2' in CPF:
            b.at(10.1)
            cp = code_prefetch("L_phase2", "L_k2_fin", 32, 6, 40, 38)
            cp = [x.replace("s8", "s3") for x in cp]
            b.blk(cp[:4])
            for x in cp[4:-3]: b.e(x)
            b.blk(cp[-3:-1])
            b.e(cp[-1])
        b.at(12)
        b.e("buffer_load_dword v1, v31, s[28:31], s37 offen sc1", tag='poll')
        for j in range(3): b.e(f"s_mov_b32 s{8+j}, s{16+j}")
        srd_rec(b, 16, 66, 16 << 20, WS_CTX)
        for j in range(4): b.e(f"s_mov_b32 s{48+j}, {j*31744}")
        b.e("v_lshlrev_b32 v35, 13, v34")
        b.e(f"s_and_b32 s52, s33, {3 if QX >= 0 else 0}")
        b.e(f"s_lshl_b32 s3, s52, {19 + max(QX, 0)}")
        b.e(f"s_lshl_b32 s52, s52, {11 + max(QX, 0)}")
        b.e("s_add_u32 s53, s52, s58")
        b.e("v_add_u32 v35, s3, v35")
        b.e(f"v_lshl_add_u32 v{WV}, v36, 4, v35")
        b.e(f"v_lshl_add_u32 v{WV+1}, v37, 4, v35")
        b.e(f"v_lshlrev_b32 v{VX}, 4, v0")
        b.e(f"v_add_u32 v{VY}, 65536, v{VX}")
        b.e(f"v_add_u32 v{VDMA}, s44, v{VX}")
        b.e("v_mov_b32 v7, 0")
        b.e("v_lshlrev_b32 v35, 2, v32")
        b.e("v_sub_u32 v35, v33, v35")
        b.e("s_lshl_b32 s3, s32, 4")
        b.e(f"v_add_u32 v{VRA}, s3, v35")
        b.e("s_sub_u32 s3, 48, s3")
        b.e(f"v_add_u32 v{VRB}, s3, v35")
        b.e(f"s_mul_i32 s3, s33, {KV_HEAD}")
        b.e(f"s_add_u32 s3, s3, {WS_KV}")
        srd_rec(b, 12, 66, 0, "s3")
        b.e(f"s_mul_i32 s14, s36, {KV_TILE}")
        for o in late: b.items += o.items
        ta_setup(b)
        b.at(13.4)
        b.e(f"s_mul_i32 s3, s45, {XN_RB}")
        b.e(f"v_add_u32 v{XV}, s3, v{VX}")
        b.e(f"s_mul_i32 s3, s46, {XN_RB}")
        b.e(f"v_add_u32 v{XV+1}, s3, v{VX}")
        if '6' in CPF:
            b.at(14)
            b.e("v_mov_b32 v14, v40"); b.e("v_mov_b32 v15, v41")
        if 'dbg_noxn' in opt:
            b.e(f"v_mov_b32 v{XV}, {BIG}"); b.e(f"v_mov_b32 v{XV+1}, {BIG}")
        if 'dbg_nowq' in opt: b.e("s_mov_b32 s10, 0")
        if 'dbg_nost' in opt: b.e("s_mov_b32 s26, 0")
        spin(f"L_spinA{tg}", f"L_spinAr{tg}", 0, 256, 1, 7, 3, 47)
        return b
    def ta_setup(b):
        b.e("v_lshrrev_b32 v42, 2, v33")
        b.e("v_lshl_add_u32 v43, v32, 3, v42")
        b.e("v_lshlrev_b32 v43, 8, v43")
        b.e("v_and_b32 v46, 3, v0")
        b.e("v_lshl_add_u32 v43, v46, 3, v43")
        b.e("v_and_b32 v46, 1, v32")
        b.e("v_lshl_add_u32 v42, v46, 2, v42")
        b.e(f"v_lshl_add_u32 v{TA}, v42, 5, v43")
        for db in range(1, 8): b.e(f"v_xor_b32 v{TA+db}, {32*db}, v{TA}")

    NS7 = int(opt.get('ns7', 6))
    def kvstore_ops(n):
        off = (n >> 4) * KV_TILE + (n & 15) * 1024
        return ([f"s_add_u32 s59, s38, {off}"] if n % 4 == 0 else []) + \
               [f"buffer_store_dwordx4 {V(PK(n),4)}, v{VX}, s[24:27], s59 offen offset:{(n % 4)*1024}{opt.get('kv_st', ' sc1')}"]
    def place_vm(g, gt, scal, ops, start, step):
        gi = start
        for t, s, tg in ops:
            if t == 's': scal.setdefault(gi - 1, []).append(s)
            elif t == 'g':
                assert gi not in g and gi < 128, gi
                g[gi] = [s]; gt[gi] = tg; gi += step
            else:
                q = gi - step + 1
                while (q in g and (len(g[q]) >= 2 or g[q][-1].startswith(('buffer', 'ds_read_b64')))) or ((q - start) % step == 0 and q < 127): q += 1
                g.setdefault(min(q, 127), []).append(s)
    vq0, dq0 = list(k.vq), list(k.dq)
    for isV in (0, 1):
        if isV:
            k.label("L_k1_vpath"); k.win = []; k.vq = list(vq0); k.dq = list(dq0)
        b = phase1_stream(isV)
        if S1: k.nstamp = 0
        for st in range(8):
            p = st & 1
            k.stamp(S1)
            g = {}; gt = {}; scal = {}
            for pr in range(4):
                s2, p2 = (st, pr + 1) if pr < 3 else (st + 1, 0)
                if s2 < 8:
                    for q, s in enumerate(areads(s2, p2)):
                        x = 32 * pr + 3 + 4 * q
                        g[x] = [s]; gt[x] = f'A{s2}_{p2}'
                    scal.setdefault(32 * pr + 30, []).append(('w', f'A{s2}_{p2}'))
            if st < 7:
                free = [x for x in range(65, 122, 2) if x not in g]
                for n, grp in enumerate(wfreads(st + 1)):
                    x = free[(n * len(free)) // 16]
                    g[x] = grp; gt[x] = f'W{st+1}'
                scal.setdefault(127, []).append(('w', f'W{st+1}'))
                scal.setdefault(61, []).append(('v', f'w{st+1}d')); scal.setdefault(62, []).append("s_barrier")
                scal.setdefault(93, []).append(('v', f'a{st+1}d')); scal.setdefault(94, []).append("s_barrier")
            if st == 0:
                ops = []
                for h, nm in enumerate(('w1', 'a1')):
                    if nm not in '/'.join(PRO):
                        ops += [(t, s, nm + 'd') for t, s in dma_ops(1)[10*h:10*h+10]] + [('v', s, None) for s in adv_ops(1)[4*h:4*h+4]]
                place_vm(g, gt, scal, ops, 2, int(opt.get('st1s', 2)))
                pfc[0] = 2 + PFN
                for q in range(int(opt.get('pfk', 1))):
                    po = pf_ops()
                    assert 44 + 4 * q not in g
                    g[44 + 4 * q] = [po[0]]; gt[44 + 4 * q] = 'pf'; g[45 + 4 * q] = po[1:] + g.get(45 + 4 * q, [])
            if st < 6:
                d = dma_ops(p); adv = adv_ops(st + 2) if st < 5 else []
                ops = [(t, s, f'w{st+2}d') for t, s in d[:10]] + [('v', s, None) for s in adv[:4]] + \
                      [(t, s, f'a{st+2}d') for t, s in d[10:]] + [('v', s, None) for s in adv[4:]]
                place_vm(g, gt, scal, ops, 64, 4)
                if pfc[0] < 8:
                    po = pf_ops()
                    g[126] = [po[0]] + g.get(126, []); gt[126] = 'pf'
                    g[127] = [po[1]] + g.get(127, []) + [po[2]]
            elif st == 6:
                ops = []
                for c in range(4): ops += [(t, s, f'w{c}') for t, s in chunk_ops(('w', c))]
                place_vm(g, gt, scal, ops, 64, 4)
            else:
                XB = int(opt.get('xb', 28))
                tg = 'v' if isV else 'k'
                scal.setdefault(XB - 2, []).append(('v', 'w0'))
                scal.setdefault(XB, []).extend(["v_readfirstlane_b32 s3, v1", "s_nop 0", "s_or_b32 s3, s3, s37", "s_cmp_lt_u32 s3, 256",
                                                f"s_cbranch_scc1 L_spinA{tg}", f"L_spinAr{tg}:", "s_barrier"])
                ops = []
                for kk in range(4): ops += [(t, s, f'x{kk}') for t, s in xn_ops(kk)]
                place_vm(g, gt, scal, ops, XB + 4, int(opt.get('xs7', 6)) & ~1)
                for n, grp in enumerate(wreads(0)):
                    assert 105 + 2 * n not in g
                    g[105 + 2 * n] = grp
                for n in range(26):
                    b.at(14 + (4 * n + 8) / 64.0)
                    r = SRC(n)[1]
                    for q in range(4): b.e(f"v_cvt_pk_bf16_f32 v{PK(n)+q}, v{r+2*q}, v{r+2*q+1}")
                    m_ = (n * NS7) // 26
                    if (n + 1) * NS7 // 26 > m_:
                        for x in kvstore_ops(m_): b.e(x, tag='kvst')
            if isV: order = [(2 * pr + h, jd, ks) for pr in range(4) for jd in range(8) for h in range(2) for ks in range(2)]
            else: order = [(it, jd, ks) for it in range(8) for jd in range(8) for ks in range(2)]
            for n, (it, jd, ks) in enumerate(order):
                if st == 0:
                    k.wait_ds('A0_0'); k.wait_ds(f'W0_{jd}')
                fa, fw_ = A(FA(it, ks), 4), A(FW(p, jd, ks), 4)
                d = acc(isV, it, jd)
                c = "0" if (st == 0 and ks == 0) else d
                k.e(mfma(d, fa, fw_, c) if isV else mfma(d, fw_, fa, c))
                for x in scal.get(n, []):
                    if isinstance(x, tuple): (k.wait_ds if x[0] == 'w' else k.wait_vm)(x[1])
                    elif x.endswith(':'): k.label(x[:-1])
                    else: k.e(x)
                if n in g:
                    for s in g[n]: k.e(s, tag=gt.get(n))
                elif n not in scal:
                    b.fill(k, 2 * st + n / 64.0)
        print(f"phase1 isV={isV}: items left {len(b.items)}")
        k.stamp(S1)
        b.drain(k)
        k.stamp(S1)
        if not isV:
            k.e("s_branch L_phase2")
            vqK = list(k.vq)
    assert vqK == k.vq
    k.label("L_phase2")
    k.win = []
    k.e("s_nop 7")
    k.stamp(ST)

    b = Rec()
    KY = 56
    SPK = float(opt.get('spk', 1.2))
    def kvstore(n):
        if n < NS7: return
        b.at((n - NS7) / SPK)
        for x in kvstore_ops(n): b.e(x, tag='kvst')
    for n in range(26):
        kvstore(n)
        if 8 <= n < 14:
            m = n + 18
            for q in range(8): b.e(f"v_accvgpr_read_b32 v{48+q}, a{SRC(m)[1]+q}")
            for q in range(4): b.e(f"v_cvt_pk_bf16_f32 v{PK(m)+q}, v{48+2*q}, v{49+2*q}")
    for n in range(26, 32): kvstore(n)
    b.e("v_mov_b32 v12, 1")
    b.e("v_and_b32 v1, 15, v0")
    b.e("v_lshlrev_b32 v1, 2, v1")
    b.e("s_lshr_b32 s6, s33, 1")
    b.e("s_lshl_b32 s6, s6, 7")
    b.e(f"s_add_u32 s6, s6, {WS_FLG}")
    b.blk(["s_cmp_eq_u32 s32, 0", f"s_cselect_b32 s6, s6, {BIG}"])
    SIG = int(opt.get('sig', 25))
    POL = float(opt.get('pol', 27.3))
    b.at(SIG)
    b.blk(["s_mov_b64 exec, 1", "buffer_store_dword v12, v7, s[20:23], s39 offen sc1", "s_mov_b64 exec, -1"])
    b.at(POL)
    b.e("buffer_load_dword v12, v1, s[20:23], s6 offen sc1", tag='poll')
    CK = int(opt.get('ck', 29))
    n_ = 0
    for j in (0, 2, 1, 3, 4, 5, 6):
        for t, s in chunk_ops(('kv', j)):
            if t == 'g':
                b.at(max(CK + n_ * float(opt.get('kvp', 0.09)), {4: 25, 5: 27, 6: 29}.get(j, 0))); n_ += 1
            b.e(s, tag=f'c{16+j}')
    def spinB():
        k.e("s_mov_b32 s59, 0x400000")
        k.label("L_spinB_l")
        k.e(f"s_sleep {opt.get('slp', 4)}")
        k.e("buffer_load_dword v12, v1, s[20:23], s6 offen sc1")
        k.e("s_sub_u32 s59, s59, 1")
        k.e("s_cmp_eq_u32 s59, 0")
        k.e("s_cbranch_scc1 L_spinBx")
        k.e("s_waitcnt vmcnt(0)")
        k.e("v_cmp_ne_u32 vcc, 1, v12")
        k.e("s_cbranch_vccnz L_spinB_l")
        k.label("L_spinBx")
        k.e("s_waitcnt vmcnt(0)")
    ool.append(("L_spinB", spinB, "L_spinBr"))

    b1 = b
    b = Rec()
    srd_rec(b, 60, 40, 7340032)
    RT = [float(x) for x in opt.get('rt', '0,5').split(',')] if '6' in CPF else []
    for x in RT:
        b.at(x)
        b.e("global_load_dword v13, v[14:15], off", tag='keys')
    KT = int((10 - NS7) / SPK) + 3
    b.at(KT)
    b.items.append(('fn', lambda: not any(x in str(it[1]) for it in b1.items for x in ('v[56:59]', 'v[60:63]', 'v[64:67]')), None))
    b.e("s_lshl_b32 s3, s32, 11")
    b.e(f"s_add_u32 s3, s3, {WS_KEYS}")
    for i in range(2):
        b.e(f"buffer_load_dwordx4 {V(KY+4*i,4)}, v{VX}, s[20:23], s3 offen offset:{i*1024} sc1", tag='keys')
    def top2_lane():
        b.e(f"v_max_u32 v14, v{KY}, v{KY+1}")
        b.e(f"v_min_u32 v15, v{KY}, v{KY+1}")
        for i in range(2, 8):
            b.e(f"v_med3_u32 v15, v14, v15, v{KY+i}"); b.e(f"v_max_u32 v14, v14, v{KY+i}")
    b.at(KT + 6)
    b.wait_vm('keys')
    top2_lane()
    b.e("s_lshl_b32 s3, s32, 9")
    b.e("s_add_u32 s3, s3, 131072")
    b.e("v_lshlrev_b32 v13, 3, v0")
    b.e(f"v_add_u32 v{KY}, s3, v13")
    b.e("v_add_u32 v13, 131072, v13")
    b.e(f"ds_write_b64 v{KY}, v[14:15]")
    KB = (KT + 8) | 1
    b.items.append(('before', KB, None))
    b.at(KB)
    for w in range(4): b.e(f"ds_read_b64 {V(KY+2*w,2)}, v13 offset:{w*512}", tag='kx')
    b.at(KB + 0.3)
    b.wait_ds('kx')
    top2_lane()
    def wmax(v, sdst):
        for m in ["quad_perm:[1,0,3,2]", "quad_perm:[2,3,0,1]", "row_half_mirror", "row_mirror"]:
            b.blk([f"v_max_u32_dpp {v}, {v}, {v} {m} row_mask:0xf bank_mask:0xf"])
        b.blk([f"v_readlane_b32 s3, {v}, 0", f"v_readlane_b32 s47, {v}, 16"])
        b.blk([f"v_readlane_b32 s4, {v}, 32", f"v_readlane_b32 s5, {v}, 48"])
        b.blk(["s_max_u32 s3, s3, s47", "s_max_u32 s4, s4, s5", f"s_max_u32 s{sdst}, s3, s4"])
    b.e("v_mov_b32 v13, v14")
    wmax("v13", 40)
    b.blk(["v_cmp_eq_u32 vcc, s40, v14"])
    b.blk(["v_cndmask_b32 v13, v14, v15, vcc"])
    wmax("v13", 41)
    for t in range(2):
        b.e(f"s_and_b32 s3, s{40+t}, 0xffff")
        b.e(f"s_sub_u32 s{42+t}, 0xffff, s3")
    for t in range(2):
        b.e(f"v_mov_b32 v60, s{40+t}")
        b.e("v_not_b32 v61, v60")
        b.e("v_ashrrev_i32 v61, 31, v61")
        b.e("v_or_b32 v61, 0x80000000, v61")
        b.e("v_xor_b32 v60, v60, v61")
        b.e("v_and_b32 v60, 0xffff0000, v60")
        b.e("v_mul_f32 v60, 0xbfb8aa3b, v60")
        b.e("v_exp_f32 v60, v60")
        b.e("v_add_f32 v60, 1.0, v60")
        b.e("v_rcp_f32 v60, v60")
        b.e("v_cvt_pk_bf16_f32 v60, v60, v60")
        b.e(f"v_and_b32 v{64+t}, 0xffff0000, v60")
    b.items.append(('fn', lambda: not any('accvgpr_read' in str(it[1]) or 'cvt' in str(it[1]) for it in b1.items), None))
    for r in range(16): b.e(f"v_mov_b32 v{LS+r}, 0")
    WARM = opt.get('warm', '1') == '1'
    if WARM:
        b.at((28 - NS7) / SPK + 0.5)
        b.items.append(('fn', lambda: not any('v[28:31]' in str(it[1]) for it in b1.items), None))
        WC = int(opt.get('wc', 4))
        upc = 64 - WC * WC
        seg = upc * 32 * 4 * 128
        bufs = [(94, 7340032)] + ([(100, 4194304)] if x_ld else []) + ([] if opt.get('gearly', '1') == '1' else [(60, 7340032)]) + [(68, 7340032)] + ([] if WOT else [(92, 8388608)])
        b.e("s_mul_i32 s3, s34, s34")
        b.e(f"s_mul_i32 s47, s33, {upc}")
        b.e("s_add_u32 s3, s3, s47")
        b.e("s_lshl_b32 s3, s3, 2")
        b.e("s_add_u32 s3, s3, s32")
        b.e("s_lshl_b32 s3, s3, 7")
        b.e(f"s_sub_u32 s3, s3, {512 + WC * WC * 512}")
        b.blk([f"s_cmp_ge_u32 s34, {WC}", "s_cselect_b32 s3, s3, 0", "s_cselect_b32 s40, 512, 0", f"s_cselect_b32 s47, {seg}, 0"])
        first = 0
        for j, (lo, size) in enumerate(bufs):
            b.e(f"v_subrev_u32 v31, {first}, v0")
            b.e("v_mul_lo_u32 v31, v31, s47")
            b.e(f"v_min_u32 v31, {size - seg}, v31")
            if j == 0:
                b.e(f"v_mov_b32 v28, s{lo}"); b.e(f"v_mov_b32 v29, s{lo+1}"); b.e("v_mov_b32 v30, v31")
            else:
                b.e(f"v_mov_b32 v14, s{lo}"); b.e(f"v_mov_b32 v15, s{lo+1}")
                b.blk([f"v_cmp_le_u32 vcc, {first}, v0"])
                b.blk(["v_cndmask_b32 v28, v28, v14, vcc", "v_cndmask_b32 v29, v29, v15, vcc"])
                b.blk(["v_cndmask_b32 v30, v30, v31, vcc"])
            first += -(-size // seg)
        assert first <= 64, first
        b.e("v_add_u32 v30, s3, v30")
        b.e("v_ashrrev_i32 v31, 31, v30")
        b.e("v_lshl_add_u64 v[28:29], v[30:31], 0, v[28:29]")
        b.e("s_mov_b32 s41, 0")
    b.e("v_readfirstlane_b32 s100, v64")
    b.e("v_readfirstlane_b32 s101, v65")
    b.at(SIG)
    for j in range(3): b.e(f"s_mov_b32 s{24+j}, s{60+j}")
    b.e("s_add_u32 s93, s2, 224")
    b.e("s_and_b32 s93, s93, 255")
    b.e("s_mul_i32 s92, s93, 2341")
    b.e("s_lshr_b32 s92, s92, 16")
    b.e("s_mul_i32 s47, s92, 28")
    b.e("s_sub_u32 s4, s93, s47")
    b.e(f"s_mul_i32 s5, s92, {128*7168}")
    b.e("s_lshl_b32 s47, s4, 8")
    b.e("s_add_u32 s5, s5, s47")
    b.e("v_lshrrev_b32 v24, 4, v0")
    b.e("v_and_b32 v25, 15, v0")
    b.e("s_lshl_b32 s3, s32, 4")
    b.e("v_add_u32 v26, s3, v24")
    b.e("v_mul_u32_u24 v26, 7168, v26")
    b.e("v_lshlrev_b32 v24, 1, v24")
    b.e("v_xor_b32 v24, v24, v25")
    b.e("v_lshl_add_u32 v24, v24, 4, v26")
    b.e("v_xor_b32 v25, 128, v24")
    b.e(f"s_mov_b32 s94, {QSCALE}")
    b.e(f"s_mov_b32 s95, {QSCALE}")
    b.e("s_sub_u32 s55, 15, s34")
    b.e("s_sub_u32 s45, s36, 3")
    b.e("s_sub_u32 s46, s35, 3")
    b.e("s_mov_b32 s54, s44")
    b.e("s_sub_u32 s35, s35, 2")
    b.e("s_sub_u32 s36, s36, 2")
    b2 = b
    b3 = Rec()
    WT0 = float(opt.get('wt0', 18))
    WTB = int(opt.get('wtb', 23))
    WTG = int(opt.get('wtg', 8))
    b3.e("s_lshr_b32 s52, s2, 1")
    b3.e("s_lshl_b32 s52, s52, 16")
    b3.e("s_and_b32 s53, s2, 1")
    b3.e("s_lshl_b32 s53, s53, 10")
    b3.e("s_add_u32 s52, s52, s53")
    b3.e("s_lshl_b32 s53, s32, 14")
    b3.e("s_add_u32 s52, s52, s53")
    srd_rec(b3, 28, 92, 8388608)
    for j in range(8):
        b3.at(WT0 + 2 * (j // WTG))
        b3.blk([f"s_add_u32 m0, s57, {65536 + j * 1024}", f"v_xor_b32 v88, {j * 32}, v{VX}",
                (f"buffer_load_dwordx4 v88, s[28:31], s52 offen{opt.get('wo_ld', '')} lds", 'wo'), "s_add_u32 s52, s52, 2048"])
    b3.e("v_lshrrev_b32 v89, 2, v0")
    b3.e("v_lshlrev_b32 v89, 10, v89")
    b3.e("s_lshl_b32 s53, s32, 8")
    b3.e("s_add_u32 s53, s53, 65536")
    b3.e("v_add_u32 v89, s53, v89")
    b3.e("v_mov_b32 v90, 0xff")
    srd_rec(b3, 28, 66, 16 * WO_NT, WS_WOT)
    b3.e("s_and_b32 s52, s2, 1")
    b3.e("s_lshl_b32 s52, s52, 2")
    b3.e("s_add_u32 s52, s52, s32")
    b3.e(f"s_mul_i32 s52, s52, {2 * WO_NT}")
    b3.e("s_lshr_b32 s53, s2, 1")
    b3.e("s_lshl_b32 s53, s53, 12")
    b3.e("s_add_u32 s52, s52, s53")
    b3.at(WTB)
    for q in range(8):
        b3.e(f"v_and_or_b32 v{92 + (q & 1)}, v{TA+q}, v90, v89")
        for rd in range(2):
            b3.e(f"ds_read_b64_tr_b16 {V(96 + 4*q + 2*rd, 2)}, v{92 + (q & 1)} offset:{rd*16384}", tag='wt')
    for q in range(8):
        b3.at(WTB + 1.2 + 0.5 * q)
        b3.wait_ds('wt')
        b3.e(f"buffer_store_dwordx4 {V(96 + 4*q, 4)}, v{VX}, s[28:31], s52 offen offset:{(q & 3)*1024} sc1", tag='wts')
        if q == 3: b3.e(f"s_add_u32 s52, s52, {WO_NT}")
    b3.e("s_and_b32 s52, s2, 1")
    b3.e("s_lshl_b32 s52, s52, 9")
    b3.e("s_lshr_b32 s93, s2, 1")
    b3.e("s_lshl_b32 s93, s93, 2")
    b3.e("s_add_u32 s52, s52, s93")
    b3.e(f"s_add_u32 s52, s52, {WS_WFL}")
    b3.blk(["s_cmp_eq_u32 s32, 0", f"s_cselect_b32 s52, s52, {BIG}"])
    b3.e("v_mov_b32 v24, 1")
    b3.e("v_mov_b32 v25, 0")
    if not WOT: b3.items = []
    PKM = opt.get('pkm', '0') == '1'
    def conv_items(qb):
        r_ = Rec()
        for s_ in range(4):
            r = QA(2 * s_, qb)
            if PKM:
                for e_ in range(0, 8, 2): r_.e(f"v_pk_mul_f32 {V(r+e_,2)}, {V(r+e_,2)}, s[94:95]")
            else:
                for e_ in range(8): r_.e(f"v_mul_f32 v{r+e_}, s94, v{r+e_}")
            for e_ in range(4): r_.e(f"v_cvt_pk_bf16_f32 v{r+e_}, v{r+2*e_}, v{r+2*e_+1}")
            for e_ in range(4): r_.e(f"v_accvgpr_write_b32 a{Q(qb,s_)+e_}, v{r+e_}")
        r_.items.append(('mark', f'conv{qb}', None))
        return r_.items
    p2_start = len(k.lines)
    XLA = int(opt.get('xla', 5))
    xsched = {}; nx_ = 4
    for kk in range(32):
        xsched[kk] = []
        while nx_ < 32 and nx_ <= min(kk + XLA, (kk & ~1) + 7) and len(xsched[kk]) < 2:
            xsched[kk].append(nx_); nx_ += 1
    def boundary_wait(kk):
        st, ks = kk // 2, kk & 1
        need = [f'x{kk | 1}' if P2C else f'x{kk}']
        if ks == 1 and st < 15: need.append(f'w{st+1}')
        if kk == SIG:
            assert not any(it[2] == 'kvst' for it in b1.items), "stores not all issued before SIG"
            need.append('kvst')
        if kk == WTB:
            assert not any(it[0] == 'b' and any(isinstance(x, tuple) for x in it[1]) for it in b3.items)
            need.append('wo')
        if kk == CK:
            assert not b3.items
            need.append('poll')
        if kk == 31: need.append('c16')
        w = [x for x in (k.vm_n(t) for t in need) if x is not None]
        k.e("s_waitcnt " + (f"vmcnt({min(w)}) " if w else "") + "lgkmcnt(0)")
        for t in need: k.use(t)
    def boundary_bar(kk):
        st, ks = kk // 2, kk & 1
        if kk == CK:
            assert not any('vcc' in str(it[1]) for it in b2.items)
            k.e("s_cmp_lg_u32 s32, 0")
            k.e("s_cbranch_scc1 L_spinBr")
            k.e("v_cmp_ne_u32 vcc, 1, v12")
            k.e("s_cbranch_vccnz L_spinB")
            k.label("L_spinBr")
        if ks == 1: k.e("s_barrier")
    for kk in range(32):
        st, ks = kk // 2, kk & 1
        k.stamp(S2 and kk in (0, 4, 8, 12, 16, 20, 24, 28, 31))
        if kk == 0: boundary_wait(0)
        g = {}; gt = {}
        if kk + 1 < 32:
            for n, grp in enumerate(wreads(kk + 1)):
                g[1 + 3 * n] = (["s_waitcnt lgkmcnt(6)"] if n == 5 else []) + grp
        vm = []
        wv = []
        if ks == 1 and st + 4 < 16: wv = [(t, s, f'w{st+4}') for t, s in chunk_ops(('w', st + 4))[:3]]
        if ks == 0 and 4 <= st + 3 < 16: wv = [(t, s, f'w{st+3}') for t, s in chunk_ops(('w', st + 3))[3:]]
        xv_ = []
        for x in xsched.get(kk, []): xv_ += [(t, s, f'x{x}') for t, s in xn_ops(x)]
        vm = wv + xv_
        ng = sum(1 for x in vm if x[0] == 'g')
        free = [x for x in range(2, 29) if x not in g]
        pick = [free[(j * len(free)) // ng] for j in range(ng)] if ng else []
        j = 0
        for t, s, tg in vm:
            if t == 'g': g[pick[j]] = [s]; gt[pick[j]] = tg; j += 1
            elif t == 's':
                q = pick[j] - 1
                if q in gt: g[q].append(s)
                else: g.setdefault(q, []).insert(0, s)
            else:
                q = pick[j - 1] + 1
                while q in pick or (q in g and len([y for y in g[q] if not y.startswith('s_')]) >= 2): q += 1
                g.setdefault(q, []).append(s)
        dbs, qs = (range(4 * ks, 4 * ks + 4), range(2)) if P2C else (range(8), [ks])
        order = [(db, qb, q) for db in dbs for qb in range(4) for q in qs]
        if kk == 31:
            order = [(db, qb, q) for qb in range(4) for db in dbs for q in qs]
            assert all('accvgpr_write' in it[1] for it in b2.items)
            zrest = b2.items; b2.items = []
            for kb in range(2):
                for s_ in range(4): b2.e(f"ds_read_b128 {A(FR(kb,s_),4)}, v{VY} offset:{(kb*4+s_)*1024}", tag=f'k{kb}')
            b2.at(31 + 12 / 32.0)
            b2.items += conv_items(0) + conv_items(1)
        elif kk > (25 if P2C else 24):
            for x in (([kk - 2] if kk < 30 else [28, 29]) if P2C else [kk - 1]):
                for r in range(16): b2.e(f"v_accvgpr_write_b32 a{XR(x,0)+r}, 0")
        for n, (db, qb, q) in enumerate(order):
            k.e(mfma(V(QA(db, qb), 4), A(WF(q, db), 4), A(XR(2 * st + q, qb), 4), V(QA(db, qb), 4) if (st or q) else "0"))
            if kk < 31 and n == 30: boundary_wait(kk + 1)
            if kk < 31 and n == 31: boundary_bar(kk + 1)
            if n in g:
                for s in g[n]: k.e(s, tag=gt.get(n))
            elif kk < 31 and n >= 29:
                for o in (b1, b2):
                    if o.items and o.items[0][0] == 'i' and o.items[0][1].startswith('v_'):
                        it = o.items.pop(0); k.e(it[1])
                        if o.items and o.items[0][0] == 'i' and o.items[0][1].startswith('v_') and o.cost(it) + o.cost(o.items[0]) <= 2:
                            k.e(o.items.pop(0)[1])
                        break
            else:
                nl = k.ni
                b1.fill(k, kk + n / 32.0)
                if k.ni == nl: b3.fill(k, kk + n / 32.0)
                if k.ni == nl: b2.fill(k, kk + n / 32.0)
    print("phase2 items left", len(b1.items), len(b2.items))
    b1.drain(k)
    grp_ = None
    for ln in k.lines[p2_start:] + ["s_mov_b32 m0, 0"]:
        if ' m0,' in ln:
            assert grp_ is None or (len(set(grp_)) == 1 and len(grp_) == (1 if grp_[0] == 's[28:31]' else 4)), grp_
            grp_ = []
        elif ' lds' in ln: grp_.append(ln.split(', ')[1])
    k.stamp(ST or S2)
    XS = 160
    def ffn_ids(item):
        k.e(f"s_mul_i32 s92, s{item}, 2341")
        k.e("s_lshr_b32 s92, s92, 16")
        k.e("s_mul_i32 s47, s92, 28")
        k.e(f"s_sub_u32 s4, s{item}, s47")
        k.e(f"s_mul_i32 s5, s92, {128*7168}")
        k.e("s_lshl_b32 s47, s4, 8")
        k.e("s_add_u32 s5, s5, s47")
    GE_ = opt.get('gearly', '1') == '1'
    FX = int(opt.get('fx', 1))
    def ffn_issue(up=68):
        for t in range(2):
            k.e(f"s_lshr_b32 s3, s{42+t}, 4")
            k.e(f"s_mul_i32 s3, s3, {XN_RB}")
            k.e(f"s_and_b32 s47, s{42+t}, 15")
            k.e("s_lshl_b32 s47, s47, 4")
            k.e("s_add_u32 s3, s3, s47")
            k.e(f"v_mov_b32 v{28+t}, s3")
        k.e("v_lshrrev_b32 v24, 4, v0")
        k.e("v_and_b32 v25, 15, v0")
        k.e("v_cmp_eq_u32 vcc, 1, v25")
        k.e("s_lshl_b32 s3, s32, 4")
        k.e("v_add_u32 v26, s3, v24")
        k.e("v_cndmask_b32 v28, v28, v29, vcc")
        k.e("v_lshl_add_u32 v28, v24, 8, v28")
        k.e("v_mul_u32_u24 v26, 7168, v26")
        k.e("v_lshlrev_b32 v24, 1, v24")
        k.e("v_xor_b32 v24, v24, v25")
        k.e("v_xor_b32 v25, 8, v24")
        k.e("v_lshl_add_u32 v24, v24, 4, v26")
        k.e("v_lshl_add_u32 v25, v25, 4, v26")
        k.e("s_lshl_b32 s3, s92, 12")
        for q in range(4):
            k.e(f"buffer_load_dwordx4 {A(XS+4*q,4)}, v28, s[20:23], s3 offen offset:{q*1024} sc1")
        return ([] if GE_ else ffn_dma(24, "s54", 32768)) + ffn_dma(up, "s54", 0)
    def ffn_dma(srd, base, off):
        ops = []
        for h in range(2):
            for q in range(4):
                pre = [f"s_add_u32 m0, {base}, {off + h*16384}"] if q == 0 else []
                ops.append((pre + [f"s_add_u32 s3, s5, {h*64*7168 + q*27648}"],
                            f"buffer_load_dwordx4 v{24 + (q >> 1)}, {S(srd,4)}, s3 offen offset:{q*1024}{ffn_ld} lds"))
        return ops
    def ffn_finish(nv=8):
        k.e("v_lshrrev_b32 v24, 4, v0")
        k.e("v_bfe_u32 v25, v0, 2, 2")
        k.e("v_lshl_add_u32 v26, v24, 3, v25")
        k.e("v_lshlrev_b32 v26, 8, v26")
        k.e("v_and_b32 v27, 3, v0")
        k.e("v_lshl_add_u32 v26, v27, 3, v26")
        k.e("v_and_b32 v27, 1, v24")
        k.e("v_lshl_add_u32 v25, v27, 2, v25")
        k.e("s_lshl_b32 s3, s32, 1")
        k.e("v_xor_b32 v25, s3, v25")
        k.e("v_lshl_add_u32 v26, v25, 5, v26")
        k.e("s_sub_u32 s3, s54, s44")
        k.e("v_add_u32 v30, s3, v26")
        k.e("v_xor_b32 v31, 32, v30")
        k.e("v_add_u32 v26, 131072, v26" if GE_ else "v_add_u32 v26, 32768, v30")
        k.e("v_xor_b32 v27, 32, v26")
        k.e(f"s_waitcnt vmcnt({nv}) lgkmcnt(0)")
        k.use('ffn')
        k.e("s_barrier")
        for m in range(2):
            for q in range(4):
                for j in range(2):
                    for rd in range(2):
                        k.e(f"ds_read_b64_tr_b16 {V(128 + 32*m + 8*q + 4*j + 2*rd, 2)}, v{26+4*m+j} offset:{q*8192 + rd*1024}", tag=f'f{m}')
        k.e("v_and_b32 v25, 15, v0")
        k.e("v_mul_u32_u24 v28, 14336, v25")
        k.e("v_lshl_add_u32 v28, v24, 4, v28")
        k.e(f"v_mov_b32 v29, {BIG}")
        k.e("v_cmp_gt_u32 vcc, 2, v25")
        k.e(f"s_mul_i32 s3, s92, {4*14336}")
        k.e("s_lshl_b32 s47, s4, 9")
        k.e("s_add_u32 s3, s3, s47")
        k.e("v_cndmask_b32 v28, v29, v28, vcc")
        k.e("s_lshl_b32 s47, s32, 7")
        k.e("s_add_u32 s3, s3, s47")
        k.e(f"s_add_u32 s3, s3, {WS_HP}")
        for m in range(2):
            k.wait_ds(f'f{m}')
            for q in range(4):
                for j in range(2):
                    d = V(224 + 8 * m + 4 * j, 4)
                    k.e(mfma(d, V(128 + 32*m + 8*q + 4*j, 4), A(XS + 4*q, 4), d if q else "0"))
    def ffn_store():
        k.e(f"s_cmp_ge_u32 s34, {FX}")
        k.e(f"s_cselect_b32 s3, s3, {1 << 23}")
        k.e(f"s_add_u32 s7, s3, {2*14336}")
        for m in range(2):
            for j in range(2):
                k.e(f"buffer_store_dwordx4 {V(224 + 8*m + 4*j, 4)}, v28, s[20:23], s{7 if m else 3} offen offset:{j*64} sc1", tag='hps')

    def kread(reg, off, kb):
        return [f"ds_read_b128 {A(FR(kb,s_),4)}, v{reg} offset:{off + (kb*4+s_)*1024}" for s_ in range(4)]
    def vread(reg, off, vg):
        return [f"ds_read_b128 {A(FR(vg,j),4)}, v{reg} offset:{off + ((j & 1)*8 + 2*vg + (j >> 1))*1024}" for j in range(4)]
    def qk_mfmas(par, nq, zero=False):
        out = []
        for kb in range(4):
            grp = []
            for qb in range(nq):
                d = V(Sr(par, qb, kb), 4)
                for s_ in range(4):
                    c = d if s_ else ("0" if zero else V(NEGM + 4 * qb, 4))
                    grp.append(mfma(d, A(FR(kb, s_), 4), A(Q(qb, s_), 4), c))
            out.append(grp)
        return out
    def pv_mfmas(par, nq):
        out = []
        for vg in range(4):
            grp = []
            for dd in range(2):
                for qb in range(nq):
                    for ks in range(2):
                        o = A(O(qb, 2 * vg + dd), 4)
                        grp.append(mfma(o, A(FR(vg, 2 * dd + ks), 4), V(P(par, qb, ks), 4), o))
            if vg < nq:
                for ks in range(2):
                    l = V(LS + 4 * vg, 4)
                    grp.append(mfma(l, V(ONES, 4), V(P(par, vg, ks), 4), l))
            out.append(grp)
        return out
    def sm_pairs(par, nq, ks):
        out = []
        for kq in range(2):
            for qb in range(nq):
                s0 = Sr(par, qb, 2 * ks + kq)
                for h in range(2):
                    out.append((s0 + 2 * h, s0 + 2 * h + 1, P(par, qb, ks) + 2 * kq + h))
        return out
    class SM:
        def __init__(self, pairs, first, check):
            self.pairs = pairs; self.ne = 0; self.nc = 0; self.no = 0; self.first = first
            self.tail = [f"v_and_b32 v{T0}, 0x40004000, v{ORR}", f"v_cmp_ne_u32 vcc, 0, v{T0}"] if check else []
            self.e_done = 0; self.extra = []
        def tick(self): self.e_done = self.ne
        def exp_ready(self): return self.ne < 2 * len(self.pairs) and self.ne // 2 - self.nc < 4
        def exp(self):
            j, h = self.ne // 2, self.ne & 1; self.ne += 1
            return f"v_exp_f32 v{ET + 2*(j % 4) + h}, v{self.pairs[j][h]}"
        def plain_avail(self):
            n = min(self.e_done // 2, len(self.pairs)) - self.nc
            n += self.nc // 2 - self.no
            if self.no == len(self.pairs) // 2: n += len(self.tail)
            return n + len(self.extra)
        def plain(self):
            if self.nc < min(self.e_done // 2, len(self.pairs)):
                j = self.nc; self.nc += 1
                return f"v_cvt_pk_bf16_f32 v{self.pairs[j][2]}, v{ET + 2*(j % 4)}, v{ET + 2*(j % 4) + 1}"
            if self.no < self.nc // 2:
                j = self.no; self.no += 1
                a, b = self.pairs[2 * j][2], self.pairs[2 * j + 1][2]
                if self.first and j == 0: return f"v_or_b32 v{ORR}, v{a}, v{b}"
                return f"v_or3_b32 v{ORR}, v{ORR}, v{a}, v{b}"
            if self.no == len(self.pairs) // 2 and self.tail: return self.tail.pop(0)
            if self.extra: return self.extra.pop(0)
            return None
        def left_exp(self): return 2 * len(self.pairs) - self.ne
        def left_plain(self): return len(self.pairs) - self.nc + len(self.pairs) // 2 - self.no + len(self.tail) + len(self.extra)
        def done(self): return self.left_exp() == 0 and self.left_plain() == 0
        def drain(self):
            while not self.done():
                self.tick()
                if self.exp_ready():
                    k.e(self.exp())
                    if self.exp_ready(): k.e(self.exp())
                    x = self.plain()
                    if x: k.e(x)
                else:
                    k.e(self.plain())
    def phase(groups, gtags, reads, rtags, sm, vm, nexttag):
        total = sum(len(g) for g in groups)
        vmpos = {}
        if vm:
            step = max(2, (total - 2) // len(vm))
            for j, x in enumerate(vm): vmpos[1 + j * step] = x
        n = 0
        k.wait_ds(gtags[0])
        for gi, grp in enumerate(groups):
            rq = list(reads[gi])
            for mi, m in enumerate(grp):
                k.e(m)
                sm.tick()
                scal = []
                if n + 1 in vmpos: scal += vmpos[n + 1][0]
                lastm = mi == len(grp) - 1
                if n in vmpos:
                    for s in scal: k.e(s)
                    k.e(vmpos[n][1], tag='kv')
                    slots = 0
                else:
                    for s in scal: k.e(s)
                    if lastm:
                        nt = gtags[gi + 1] if gi + 1 < len(groups) else nexttag
                        if nt: k.wait_ds(nt)
                    slots = 2
                    gaps_left = len([x for x in range(n, n + len(grp) - mi) if x not in vmpos])
                    want_d = len(rq) > 0 and (sm.plain_avail() > 0 or not sm.exp_ready() or len(rq) >= gaps_left - 1)
                    if want_d:
                        k.e(rq.pop(0), tag=rtags[gi]); slots -= 1
                        if rq and (sm.plain_avail() == 0 or len(rq) >= gaps_left):
                            k.e(rq.pop(0), tag=rtags[gi]); slots -= 1
                    if slots == 2 and sm.exp_ready() and not (sm.plain_avail() >= 3 and not rq):
                        k.e(sm.exp()); slots = 0
                    while slots > 0:
                        x = sm.plain()
                        if not x: break
                        k.e(x); slots -= 1
                if lastm:
                    for s in rq: k.e(s, tag=rtags[gi])
                    nt = gtags[gi + 1] if gi + 1 < len(groups) else nexttag
                    if nt: k.wait_ds(nt)
                n += 1
        sm.drain()

    def mask_block(par, qb):
        vr = VRA if qb & 1 else VRB
        for kb in range(4):
            for r in range(4): k.e(f"v_cmp_gt_i32 s[{56+2*r}:{57+2*r}], {16*kb + r}, v{vr}")
            if kb == 0: k.e("s_nop 3")
            for r in range(4):
                x = Sr(par, qb, kb) + r
                k.e(f"v_cndmask_b32 v{x}, v{x}, v{NINF}, s[{56+2*r}:{57+2*r}]")
    def rowmax(par, qb, d, o=k):
        s0 = Sr(par, qb, 0)
        o.e(f"v_max3_f32 v{d}, v{s0}, v{s0+1}, v{s0+2}")
        for r in range(3, 15, 2): o.e(f"v_max3_f32 v{d}, v{d}, v{s0+r}, v{s0+r+1}")
        o.e(f"v_max_f32 v{d}, v{d}, v{s0+15}")
        o.e(f"v_mov_b32 v{T0}, v{d}")
        o.e(f"v_permlane16_swap_b32 v{T0}, v{d}")
        o.e(f"v_max_f32 v{d}, v{d}, v{T0}")
        o.e(f"v_mov_b32 v{T0}, v{d}")
        o.e(f"v_permlane32_swap_b32 v{T0}, v{d}")
        o.e(f"v_max_f32 v{d}, v{d}, v{T0}")
        o.e(f"v_add_f32 v{d}, {opt.get('moff', '0x41f80000')}, v{d}")
    def fallback(par, nq, nqn):
        k.e("s_nop 7")
        for qb in range(nq):
            rowmax(par, qb, 21)
            k.e("v_max_f32 v21, 0, v21")
            for r in range(16): k.e(f"v_sub_f32 v{Sr(par,qb,0)+r}, v{Sr(par,qb,0)+r}, v21")
            if qb < nqn:
                for r in range(16): k.e(f"v_sub_f32 v{Sr(par^1,qb,0)+r}, v{Sr(par^1,qb,0)+r}, v21")
            for r in range(4): k.e(f"v_sub_f32 v{NEGM+4*qb+r}, v{NEGM+4*qb+r}, v21")
            k.e("v_exp_f32 v22, -v21")
            for r in range(4): k.e(f"v_mul_f32 v{LS+4*qb+r}, v{LS+4*qb+r}, v22")
            for r0 in range(0, 32, 8):
                for r in range(8): k.e(f"v_accvgpr_read_b32 v{ET+r}, a{O(qb,0)+r0+r}")
                for r in range(8): k.e(f"v_mul_f32 v{ET+r}, v{ET+r}, v22")
                for r in range(8): k.e(f"v_accvgpr_write_b32 a{O(qb,0)+r0+r}, v{ET+r}")
        for ks in range(2):
            for (s0, s1, pd) in sm_pairs(par, nq, ks):
                k.e(f"v_exp_f32 v{ET}, v{s0}")
                k.e(f"v_exp_f32 v{ET+1}, v{s1}")
                k.e(f"v_cvt_pk_bf16_f32 v{pd}, v{ET}, v{ET+1}")
        k.e("s_nop 1")
    SPLIT = {4: (32, 16, 8), 3: (36, 18, 9), 2: (17, 8, 4), 1: (16, 8, 4), 0: (0, 0, 0)}
    def tile_sm(par, nq, start, check):
        sm = SM(sm_pairs(par, nq, 0) + sm_pairs(par, nq, 1), True, check)
        sm.ne, sm.nc, sm.no = start; sm.e_done = sm.ne
        return sm
    def pack(ngaps, vmg, dsl, sm, limit, last_sm, pre):
        plan = {}
        dsl = list(dsl)
        def exp_ok(): return sm.exp_ready() and (limit is None or sm.ne < limit[0])
        def plain_n():
            n = min(sm.e_done // 2, len(sm.pairs), limit[1] if limit else 1 << 30) - sm.nc
            n += min(sm.nc // 2, limit[2] if limit else 1 << 30) - sm.no
            if limit is None and sm.no == len(sm.pairs) // 2: n += len(sm.tail)
            return n + len(sm.extra)
        def take_plain():
            if limit is not None:
                c_ok = sm.nc < min(sm.e_done // 2, limit[1]); o_ok = sm.no < min(sm.nc // 2, limit[2])
                if not c_ok and not o_ok: return sm.extra.pop(0) if sm.extra else None
                if not c_ok:
                    keep = sm.e_done; sm.e_done = 2 * sm.nc; x = sm.plain(); sm.e_done = keep; return x
            return sm.plain()
        for g in range(-1 if pre else 0, ngaps):
            if g in vmg: sm.tick(); continue
            sm.tick()
            ops = []
            smok = g <= last_sm
            av = [d for d in dsl if d[2] <= g]
            free_to = lambda dl: len([x for x in range(g, dl + 1) if x not in vmg])
            urgent = any(sum(1 for d in dsl if d[3] <= e[3]) >= 2 * free_to(e[3]) - 1 for e in av)
            pn = plain_n() if smok else 0
            if smok and exp_ok() and not urgent and not (av and pn) and not (pn >= 3):
                ops.append((sm.exp(), None))
            else:
                slots = 2
                if av and g >= 0:
                    d = av.pop(0); dsl.remove(d); ops.append((d[0], d[1])); slots -= 1
                    if av and (pn == 0 or sum(1 for x in dsl if x[3] <= av[0][3]) >= 2 * free_to(av[0][3]) - 1):
                        d = av.pop(0); dsl.remove(d); ops.append((d[0], d[1])); slots -= 1
                while slots and smok:
                    x = take_plain()
                    if not x: break
                    ops.append((x, None)); slots -= 1
                if not ops and smok and exp_ok(): ops.append((sm.exp(), None))
            plan[g] = ops
            if g == last_sm:
                while (limit is None and not sm.done()) or (limit is not None and ((sm.ne, sm.nc, sm.no) != limit or sm.extra)):
                    sm.tick()
                    x = sm.exp() if exp_ok() else take_plain()
                    plan[g].append((x, None)); k.overflow += 1
        assert not dsl, dsl
        return plan
    k.overflow = 0
    SLK = int(opt.get('slk', -1))
    def emit_phase(mf, plan, vmg, scal, bg=None, vtag=None, sbg=None):
        for s_, tg in plan.get(-1, []): k.e(s_, tag=tg)
        for g, m in enumerate(mf):
            k.e(m)
            for x in scal.get(g, []):
                if isinstance(x, tuple) and x[0] == 'u': k.use(x[1])
                elif isinstance(x, tuple) and x[0] == 'call': x[1]()
                elif isinstance(x, tuple): k.wait_ds(x[1])
                elif x.endswith(':'): k.label(x[:-1])
                else: k.e(x)
            if sbg and g > 0 and g not in scal and g not in vmg and sbg.items and sbg.items[0][0] != 'at':
                it = sbg.items.pop(0)
                for x in ([it[1]] if it[0] == 'i' else it[1]): k.e(x)
                if sbg.items[0][0] == 'i' and len(plan.get(g, [])) < 2: k.e(sbg.items.pop(0)[1])
            if g in vmg: k.e(vmg[g], tag=('ffn' if ' s3 ' in vmg[g] else vtag if 's39' in vmg[g] else None))
            else:
                for s_, tg in plan.get(g, []): k.e(s_, tag=tg)
                if bg and not plan.get(g) and g not in scal: bg.fill(k, 99, 3)
    p4s = p4_setup(opt)
    def starts(groups):
        out = [0]
        for g in groups: out.append(out[-1] + len(g))
        return out
    def iteration(par, nq, nqn, mask, name, tail):
        kreg, koff = (VX, 32768) if par == 0 else (VY, 0)
        vreg, voff = (VX, 16384) if par == 0 else (VX, 49152)
        nreg, noff = (VY, 0) if par == 0 else (VY, 32768)
        last = nqn == 1
        k.hot = nqn >= 2
        ov0 = k.overflow
        fb, fr = f"L_k2_fb_{name}", f"L_k2_fbr_{name}"
        ool.append((fb, lambda: fallback(par, nq, nqn), fr))
        sm = tile_sm(par, nq, SPLIT[nq], True)
        if par == 0:
            k.e(f"v_xor_b32 v{VX}, 65536, v{VX}")
            k.e(f"v_xor_b32 v{VY}, 65536, v{VY}")
        if nqn:
            k.dq = ['k1'] * 4
            if nq == 4 and WARM: sm.extra = ["v_lshl_add_u64 v[28:29], s[40:41], 0, v[28:29]"]
            grp = qk_mfmas(par ^ 1, nqn); st_ = starts(grp); n1 = st_[-1]
            slack = SLK if nqn <= 2 else 4
            dsl = [(x, 'k2', 0, st_[1] + slack) for x in kread(kreg, koff, 2)] + [(x, 'k3', 0, st_[2] + slack) for x in kread(kreg, koff, 3)] + \
                  [(x, 'v0', st_[1], st_[3] + slack) for x in vread(vreg, voff, 0)] + [(x, 'v1', st_[2], n1 - 1) for x in vread(vreg, voff, 1)]
            scal = {}
            add = lambda g, xs: scal.setdefault(g, []).extend(xs)
            add(st_[1] - 1, [('w', 'k1')]); add(st_[2] - 1, [('w', 'k2')]); add(st_[3] - 1, [('w', 'k3')])
            vmw = f"s_waitcnt vmcnt({12 + min(int(opt.get('fp1', 4)), 3)})" if last else "s_waitcnt vmcnt(12)"
            if nq == 2:
                add(n1 - 7, ["s_cmp_lt_u32 s37, s52"])
                add(n1 - 6, [f"s_cbranch_scc1 L_nw_{name}", vmw, f"L_nw_{name}:"])
            else:
                add(n1 - 5, [vmw])
            if mask and mask[1]: add(n1 - 4, [f"s_cmp_eq_u32 s37, s{mask[1]}"])
            add(n1 - 3, ([] if 'nochk' in opt else [('u', f'V{par}'), ('u', 'c19' if par == 0 else 'c21'), ('u', 'c20' if par == 0 else 'c22')]) + ["s_barrier"]); add(n1 - 2, [('w', 'v0')]); add(n1 - 1, [f"s_cbranch_vccnz {fb}", fr + ":"])
            vmg = {}
            if last:
                fops = ffn_issue()
                for q in (1, 5, 8, 12)[:int(opt.get('fp1', 4))]:
                    pre, ld = fops.pop(0)
                    vmg[q] = ld; scal.setdefault(q - 1, []).extend(pre)
            else:
                step = (n1 - 8) / 4
                for j in range(4):
                    q = int(1 + j * step)
                    while q in scal or (j == 0 and q - 1 in scal): q += 1
                    vmg[q] = f"buffer_load_dwordx4 v{VDMA}, s[12:15], s38 offen offset:{j*1024}{kv_ld} lds"
                    if j == 0: scal[q - 1] = ["s_mov_b32 m0, s53" if par == 0 else "s_add_u32 m0, s53, 32768"]
            plan = pack(n1, vmg, dsl, sm, None, n1 - 2, par == 1)
            emit_phase(sum(grp, []), plan, vmg, scal, None, 'ffn')
        else:
            k.dq = ['v1'] * 4
            sm.drain()
            k.e(f"s_cbranch_vccnz {fb}")
            k.label(fr)
        grp = pv_mfmas(par, nq); st_ = starts(grp); n2 = st_[-1]
        slack = SLK if nq <= 2 else 4
        dsl = [(x, 'v2', 0, st_[1] + slack) for x in vread(vreg, voff, 2)] + [(x, 'v3', 0, st_[2] + slack) for x in vread(vreg, voff, 3)]
        scal = {st_[1] - 1: [('w', 'v1')], st_[2] - 1: [('w', 'v2')], st_[3] - 1: [('w', 'v3')]}
        vmg = {}
        if nqn:
            nx = [vread(VX, 49152, 0), vread(VX, 49152, 1)] if last else [kread(nreg, noff, 0), kread(nreg, noff, 1)]
            dsl += [(x, 'k0', st_[1], st_[3] + slack - 1) for x in nx[0]] + [(x, 'k1', st_[2], n2 - 2) for x in nx[1]]
            if mask:
                mb, mr = f"L_k2_mk_{name}", f"L_k2_mkr_{name}"
                if mask[1]: scal[0] = [f"s_cbranch_scc1 {mb}", mr + ":"]
                else: scal[0] = [('call', lambda: mask_block(par ^ 1, mask[0]))]
            scal[n2 - 2] = [('w', 'k0')]
            if tail: scal[n2 - 3] = [tail[0]]; scal[n2 - 1] = [tail[1]]
            def put(x, lo):
                q = lo
                while q in scal or q in vmg: q += 1
                assert q < n2 - 3, (x, q)
                scal[q] = [x]
            if last:
                for j, (pre, ld) in enumerate(fops):
                    q = 2 + (j * (n2 - 4)) // len(fops)
                    vmg[q] = ld
                    scal.setdefault(q - 1, []).extend(pre)
                    if q in scal: scal[q - 1].extend(scal.pop(q))
            else:
                mv = "s_add_u32 m0, s54, 49152" if par == 0 else "s_add_u32 m0, s53, 16384"
                vm = [f"buffer_load_dwordx4 v{VDMA}, s[12:15], s39 offen offset:{j*1024}{kv_ld} lds" for j in range(4)]
                if nq == 4 and WARM: vm.append("global_load_dword v30, v[28:29], off")
                pres = {0: [mv]}
                if name == "wl" and GE_:
                    for pre, ld in ffn_dma(24, "s44", 131072):
                        pres[len(vm)] = pre; vm.append(ld)
                step = (n2 - 4) / len(vm)
                pos = []
                for j in range(len(vm)):
                    q = int(2 + j * step)
                    while q in scal or q in vmg or (j in pres and q - 1 in scal): q += 1
                    vmg[q] = vm[j]; pos.append(q)
                    if j in pres: scal[q - 1] = pres[j]
                if name == "ne":
                    q = 3
                    while any(x in scal or x in vmg for x in (q, q + 1)): q += 1
                    scal[q] = ["s_cmp_eq_u32 s37, s52"]; scal[q + 1] = ["s_cbranch_scc1 L_pubB", "L_pubBr:"]
                    put("s_add_u32 s37, s37, 1", q + 2)
                else:
                    put("s_add_u32 s37, s37, 1", 1)
                put(f"s_add_u32 s38, s38, {KV_TILE}", 1)
                if par == 1:
                    put("s_xor_b32 s53, s53, 65536", pos[0]); put("s_xor_b32 s54, s54, 65536", pos[0])
                put(f"s_add_u32 s39, s39, {KV_TILE}", pos[3] + 1)
        sm = tile_sm(par ^ 1, nqn, (0, 0, 0), False)
        lastg = n2 - 2 if nqn else n2 - 1
        while lastg in vmg: lastg -= 1
        plan = pack(n2 - 1 if nqn else n2, vmg, dsl, sm, SPLIT[nqn], lastg, False)
        emit_phase(sum(grp, []), plan, vmg, scal, None if nqn else p4s, 'ffn' if last else f'V{par}', p4s if last else None)
        print(f"iteration {name}: overflow ops {k.overflow - ov0}")
        k.hot = False
    def epilogue(q0, srow):
        k.e(f"s_lshl_b32 s3, s{srow}, 20")
        k.e("s_lshl_b32 s47, s33, 15")
        k.e("s_add_u32 s3, s3, s47")
        k.e("s_lshl_b32 s47, s32, 10")
        k.e("v_lshlrev_b32 v248, 4, v0")
        k.e("v_add_u32 v249, s47, v248")
        k.e("s_sub_u32 s47, 7168, s47")
        k.e("v_add_u32 v248, s47, v248")
        for qq in range(2):
            k.e(f"v_rcp_f32 v{250+2*qq}, v{LS+4*(q0+qq)}")
        for qq in range(2):
            k.e(f"v_mov_b32 v{251+2*qq}, v{250+2*qq}")
        for s_ in range(4):
            for qq in (1, 0):
                o = O(q0 + qq, 2 * s_)
                d = 24 + 4 * qq
                for r in range(8): k.e(f"v_accvgpr_read_b32 v{240+r}, a{o+r}")
                for r in range(0, 8, 2): k.e(f"v_pk_mul_f32 {V(240+r,2)}, {V(240+r,2)}, {V(250+2*qq,2)}")
                for r in range(4): k.e(f"v_cvt_pk_bf16_f32 v{d+r}, v{240+2*r}, v{240+2*r+1}")
                k.e(f"buffer_store_dwordx4 {V(d,4)}, v{248+qq}, s[16:19], s3 offen{opt.get('ctx_st',' sc1')}")
            if s_ < 3: k.e("s_add_u32 s3, s3, 8192")

    for kb in range(2, 4):
        for s in kread(VY, 0, kb): k.e(s, tag=f'k{kb}')
    def first_max(o, qb):
        rowmax(0, qb, 22, o)
        if PKM:
            o.e("v_sub_f32 v22, 0, v22"); o.e("v_mov_b32 v23, v22")
            for r in range(0, 16, 2): o.e(f"v_pk_add_f32 {V(Sr(0,qb,0)+r,2)}, {V(Sr(0,qb,0)+r,2)}, v[22:23]")
            for r in range(4): o.e(f"v_mov_b32 v{NEGM+4*qb+r}, v22")
        else:
            for r in range(16): o.e(f"v_sub_f32 v{Sr(0,qb,0)+r}, v{Sr(0,qb,0)+r}, v22")
            for r in range(4): o.e(f"v_sub_f32 v{NEGM+4*qb+r}, 0, v22")
    c = b2
    c.items += conv_items(2) + conv_items(3) + zrest
    for r in list(range(XR(30, 0), XR(30, 0) + 16)) + list(range(XR(31, 0), XR(31, 0) + 16)): c.e(f"v_accvgpr_write_b32 a{r}, 0")
    for r in range(4): c.e(f"v_mov_b32 v{ONES+r}, 0x3f803f80")
    c.e(f"v_mov_b32 v{NINF}, 0xff800000")
    first_max(c, 0); first_max(c, 1)
    for qb in range(4):
        while any(it[0] == 'mark' and it[1] == f'conv{qb}' for it in c.items): c.fill(k, 99, 2)
        for kb in range(4):
            k.wait_ds(f'k{kb}')
            if qb == 3 and kb == 2:
                k.e(f"s_waitcnt vmcnt({min(k.vm_n('c18'), k.vm_n('c17'))})")
                assert k.vm_n('wts') is None
                k.use('c17'); k.use('c18')
                k.e("s_barrier")
                if WOT:
                    k.e("s_mov_b64 exec, 1")
                    k.e("buffer_store_dword v24, v25, s[20:23], s52 offen sc1")
                    k.e("s_mov_b64 exec, -1")
                k.e("s_add_u32 s53, s44, 65536")
                if TK:
                    k.e("v_mov_b32 v27, 1")
                    k.e("v_mov_b32 v26, 0")
                    k.e("s_cmp_eq_u32 s32, 0")
                    k.e("s_cselect_b32 s3, 128, s64")
                    k.e("s_mov_b64 exec, 1")
                    k.e("buffer_atomic_add v27, v26, s[28:31], s3 offen sc0 sc1")
                    k.e("s_mov_b64 exec, -1")
            for s_ in range(4):
                d = V(Sr(0, qb, kb), 4)
                k.e(mfma(d, A(FR(kb, s_), 4), A(Q(qb, s_), 4), d if s_ else "0"))
                if qb == 3 and kb >= 2: k.e(kread(VY, 32768, kb - 2)[s_], tag=f'n{kb-2}')
                c.fill(k, 99, int(opt.get('pslots', 4)))
    c.drain(k)
    k.e(f"s_mov_b32 s38, {4*KV_TILE}")
    k.e(f"s_mov_b32 s39, {3*KV_TILE + KV_CH}")
    k.e("s_cmp_lg_u32 s34, 0")
    k.e("s_cbranch_scc1 L_k2_nomask0")
    mask_block(0, 3)
    k.label("L_k2_nomask0")
    k.e("s_mov_b32 s37, 0")
    first_max(k, 2); first_max(k, 3)
    SM(sm_pairs(0, 4, 0), True, False).drain()
    k.e("s_waitcnt lgkmcnt(4)")
    k.stamp(ST or SA)

    k.e("s_cmp_eq_u32 s34, 0")
    k.e("s_cbranch_scc1 L_k2_wlast")
    k.e("s_branch L_k2_wloop")
    for nm, qb in (("wo", 3), ("tr", 1), ("no", 1)):
        k.label(f"L_k2_mk_{nm}"); k.win = []
        mask_block(0, qb)
        k.e(f"s_branch L_k2_mkr_{nm}")
    k.label("L_pubB"); k.win = []
    k.e("v_mov_b32 v24, 1"); k.e("v_mov_b32 v25, 0")
    k.e("s_mov_b64 exec, 1")
    k.e("buffer_store_dword v24, v25, s[20:23], s64 offen sc1")
    k.e("s_mov_b64 exec, -1")
    k.e("s_branch L_pubBr")
    k.label("L_k2_wloop")
    iteration(0, 4, 4, None, "we", [])
    iteration(1, 4, 4, (3, 46), "wo", ["s_cmp_lg_u32 s37, s35", "s_cbranch_scc1 L_k2_wloop"])
    k.label("L_k2_wlast")
    iteration(0, 4, 3, (2, None), "wl", [])
    iteration(1, 3, 2, (1, 45), "tr", [])
    k.stamp(SA)
    if '4' in CPF: emit(code_prefetch("L_k2_fin", "L_p4_end", 32, 56, 160, 164))
    k.e("s_waitcnt vmcnt(9)")
    if TK:
        k.e("v_mov_b32 v26, 131072")
        k.e("s_cmp_lg_u32 s32, 0")
        k.e("s_cbranch_scc1 L_notk")
        k.e("s_mov_b64 exec, 1")
        k.e("ds_write_b32 v26, v27")
        k.e("s_mov_b64 exec, -1")
        k.e("s_waitcnt lgkmcnt(0)")
        k.label("L_notk")
        k.e("s_barrier")
        k.e("ds_read_b32 v23, v26")
    epilogue(2, 34)
    k.e("s_add_u32 s52, s37, 2")
    k.raw(";@b:2")
    for s in p4_ptr_loads(): k.e(s)
    k.e("s_waitcnt vmcnt(8) lgkmcnt(0)")
    k.stamp(SA)
    k.e("s_cmp_eq_u32 s34, 7")
    k.e("s_cbranch_scc1 L_k2_fin")
    k.label("L_k2_nloop")
    nl0 = len(k.lines)
    iteration(0, 2, 2, None, "ne", [])
    iteration(1, 2, 2, (1, 45), "no", ["s_cmp_lg_u32 s37, s36", "s_cbranch_scc1 L_k2_nloop"])
    if 'dbg_drop' in opt:
        drop = opt['dbg_drop'].split(',')
        k.lines[nl0:] = [x for x in k.lines[nl0:] if not any(d in x and not x.endswith(':') for d in drop)]
    k.label("L_k2_fin")
    k.stamp(SA)
    if '5' in CPF: emit(code_prefetch("L_p4_entry", "L_p4_end", 32, 56, 160, 164, whole=True))
    iteration(0, 2, 1, (0, None), "nl", [])
    iteration(1, 1, 0, None, "fi", [])
    k.stamp(ST or SA)
    k.e("s_nop 7")
    epilogue(0, 55)
    k.stamp(SA)
    k.e(f"s_cmp_lt_u32 s34, {FX}")
    k.e("s_cbranch_scc1 L_noffn")
    ffn_finish()
    k.label("L_noffn")
    p4s.drain(k)
    k.stamp(SA)
    k.e("v_mov_b32 v24, 1")
    k.e("v_mul_u32_u24 v25, s65, v0")
    k.e("s_waitcnt vmcnt(0)")
    k.e("s_barrier")
    k.e("s_mov_b64 exec, 3")
    k.e("buffer_store_dword v24, v25, s[20:23], s64 offen sc1")
    k.e("s_mov_b64 exec, -1")
    k.label("L_p4_entry")
    ffn_store()
    k.e("s_lshl_b32 s33, s4, 3")
    k.e("s_add_u32 s33, s33, s92")
    k.e("s_mov_b32 s65, s33")
    k.stamp(ST or SA)
    if FX == 2:
        k.e("s_cmp_eq_u32 s34, 7")
        k.e("s_cbranch_scc1 L_f1x")
        k.label("L_f1xr")
        def f1x():
            k.e("s_load_dwordx2 s[6:7], s[0:1], 72")
            k.e("s_and_b32 s65, s93, 31")
            ffn_ids(65)
            k.e("s_waitcnt lgkmcnt(0)")
            k.srd(16, 6, 7340032)
            for pre, ld in ffn_issue(16):
                for x in pre: k.e(x)
                k.e(ld, tag='ffn')
            ffn_finish(0)
            k.e("s_barrier")
            ffn_store()
            k.e("s_lshl_b32 s65, s4, 3")
            k.e("s_add_u32 s65, s65, s92")
        ool.append(("L_f1x", f1x, "L_f1xr"))
    phase4(k, opt, ool, ST, SA)
    k.stamp_dump('stamp' in opt, 66, 0, 32)
    if 'hold' in opt:
        k.e("s_lshl_b32 s3, s32, 8")
        k.e("s_or_b32 s3, s2, s3")
        k.e(f"s_cmp_lg_u32 s3, {opt.get('holdwg', 0)}")
        if 'holdcls' in opt:
            k.e("s_lshr_b32 s3, s2, 5")
            k.e(f"s_cmp_lg_u32 s3, {opt['holdcls']}")
        if opt.get('holdwg') != '999': k.e("s_cbranch_scc1 L_k2_end")
        k.label("L_hold")
        k.e("s_memrealtime s[4:5]")
        k.e("s_waitcnt lgkmcnt(0)")
        k.e(f"s_sub_u32 s3, s4, s{73 + 2 * int(opt.get('holdk', 0))}")
        k.e(f"s_cmp_lt_u32 s3, {int(opt['hold']) * 100}")
        k.e("s_cbranch_scc1 L_hold")
    k.label("L_k2_end")
    k.e("s_endpgm")
    hotool = [x for x in ool if x[0].startswith(("L_f1", "L_f2", "L_c3", "L_spinC", "L_spinD", "L_yA", "L_yB", "L_yC"))]
    for lab, fn, ret in hotool + [("L_p4_end", None, None)] + [x for x in ool if x not in hotool]:
        k.label(lab)
        if fn is None: continue
        k.win = []; k.dq = []
        fn()
        k.e(f"s_branch {ret}")
    return k.wrap(256, 256), f"; @launch {'kernel=' + KNAME + ' ' if 'aslist' in opt else ''}grid=(256,1,1) block=(256,1,1) lds={K12_LDS}"
```

```python
from fw import *
from layout import *
from p4 import rbf2, silu_n, srd_rec, p4_ptr_loads
BIG = 0x7ff00000
VC, VWB, VW, TA, VO, VROW, G, L7, L3, T1, T2, VZ, VF = 112, 113, 114, 115, 119, 120, 121, 122, 123, 124, 125, 126, 127
GTMP, XP, STT, GT, YB = 2, 18, 34, 42, 80
SPARE = 131072

def p4_setup(opt):
    b = Rec()
    srd_rec(b, 60, 8, 7340032)
    srd_rec(b, 56, 40, 4194304)
    b.e("s_bfe_u32 s6, s2, 0x20001")
    b.e("s_lshr_b32 s7, s34, 1")
    b.e(f"s_xor_b32 s7, s7, {opt.get('jx', 2)}")
    b.e("s_lshl_b32 s45, s7, 2")
    b.e("s_add_u32 s46, s45, s6")
    b.e("s_sub_u32 s46, 15, s46")
    b.e("s_sub_u32 s45, 12, s45")
    b.e("s_add_u32 s45, s45, s6")
    b.blk(["s_cmp_lt_u32 s7, 2", "s_cselect_b32 s45, s46, s45"])
    b.e("s_and_b32 s46, s2, 1")
    b.e("s_bfe_u32 s6, s2, 0x30003")
    if opt.get('xm', '1') == '1': b.e("s_lshl_b32 s6, s6, 1")
    else: b.e("s_lshl_b32 s46, s46, 3")
    b.e("s_add_u32 s46, s46, s6")
    for j in range(4): b.e(f"s_mov_b32 s{48+j}, {j*15360}")
    b.e("s_lshl_b32 s35, s32, 13")
    b.e(f"s_add_u32 s35, s35, {SPARE}")
    b.e("s_and_b32 s52, s46, 1")
    b.e("s_lshl_b32 s37, s45, 20")
    b.e("s_lshl_b32 s7, s52, 19")
    b.e("s_add_u32 s37, s37, s7")
    b.e(f"s_add_u32 s37, s37, {WS_CTX}")
    b.e("s_lshr_b32 s7, s46, 1")
    b.e("s_lshl_b32 s7, s7, 8")
    b.e("s_lshl_b32 s6, s52, 22")
    b.e("s_add_u32 s6, s6, s7")
    srd_rec(b, 12, 94, 0, "s6")
    b.e("s_sub_u32 s14, 4194304, s7")
    srd_rec(b, 28, 94, 8388608)
    b.e("s_lshl_b32 s7, s46, 7")
    b.e("s_lshl_b32 s36, s45, 18")
    b.e("s_add_u32 s36, s36, s7")
    b.e("s_and_b32 s94, s7, 128")
    b.e("s_lshl_b32 s38, s45, 7")
    b.e("s_lshl_b32 s6, s52, 6")
    b.e("s_add_u32 s38, s38, s6")
    b.e(f"s_add_u32 s38, s38, {WS_CFL}")
    b.e("s_lshl_b32 s52, s32, 11")
    b.e("s_lshl_b32 s6, s32, 16")
    b.e("s_add_u32 s6, s6, s94")
    b.e("s_xor_b32 s6, s6, 128")
    b.e("s_lshl_b32 s7, s32, 5")
    b.at(1)
    srd_rec(b, 68, 10, 4194304)
    srd_rec(b, 8, 66, 524288, "s37")
    b.e(f"v_lshlrev_b32 v{VC}, 4, v0")
    b.e(f"v_lshrrev_b32 v{G}, 4, v0")
    b.e(f"v_and_b32 v{L7}, 7, v0")
    b.e(f"v_lshrrev_b32 v{L3}, 3, v0")
    b.e(f"v_lshlrev_b32 v{T1}, 1, v{G}")
    b.e(f"v_xor_b32 v{T1}, v{T1}, v{L7}")
    b.e(f"v_lshlrev_b32 v{T1}, 4, v{T1}")
    b.e(f"v_lshl_add_u32 v{VWB}, v{L3}, 11, v{T1}")
    b.e(f"v_add_u32 v{VW}, s6, v{VWB}")
    b.e(f"v_lshrrev_b32 v{T1}, 2, v0")
    b.e(f"v_bfe_u32 v{VZ}, v0, 3, 2")
    b.e(f"v_lshlrev_b32 v{T1}, 7, v{T1}")
    b.e(f"v_and_b32 v{T2}, 3, v0")
    b.e(f"v_lshl_add_u32 v{T1}, v{T2}, 3, v{T1}")
    b.e(f"v_lshl_add_u32 v{TA}, v{VZ}, 5, v{T1}")
    for cb in range(1, 4): b.e(f"v_xor_b32 v{TA+cb}, {cb*32}, v{TA}")
    b.e(f"v_add_u32 v{VROW}, s7, v{L3}")
    b.e(f"v_lshlrev_b32 v{VO}, 11, v{VROW}")
    b.e(f"v_lshl_add_u32 v{VO}, v{L7}, 4, v{VO}")
    b.e(f"v_mov_b32 v{VZ}, 0")
    b.e(f"v_lshlrev_b32 v{VF}, 2, v{L7}")
    return b

def phase4(k, opt, ool, ST, SA):
    N1 = int(opt.get('n1', 32))
    N2 = 64 - N1
    assert N1 % 4 == 0 and N2 % 4 == 0 and N2 <= 32
    units = [(n + q, s_) for n in range(0, N1, 4) for s_ in (1, 0) for q in range(4)] + [(n, 1) for n in range(N1, 64)] + [(n, 0) for n in range(N1, 64)]
    NS = 32
    XM = opt.get('xm', '1') == '1'
    PX = 4 if XM else 32
    SP = N1 // 2 + N2 // 4
    ACC = lambda side, rb, cb: 128 + ((side * 2 + rb) * 4 + cb) * 4
    WF = lambda u, cb: 192 + cb * 16 + (u & 3) * 4
    XI = 160
    FL = int(opt.get('fl', 2))
    CF = lambda n, rb: (n % 32) * 8 + rb * 4
    TB = 12
    WDI = int(opt.get('wdi', 3))
    CDI = int(opt.get('cdi', 3))
    def w_ops(st):
        if st >= NS: return []
        ops = [('s', f"s_add_u32 m0, s44, {(st % 8)*16384}")]
        ops += [('g', f"buffer_load_dwordx4 v{VW}, s[12:15], s{48+j} offen offset:{j*1024} lds") for j in range(4)]
        if st + 1 == SP: ops += [('s2', "s_xor_b32 s95, s95, 128"), ('v', f"v_add_u32 v{VW}, s95, v{VWB}")]
        elif st < N1 // 2:
            ops.append(('v', f"v_xor_b32 v{VW}, 128, v{VW}"))
            if st & 1: ops.append(('v', f"v_add_u32 v{VW}, {4 * 65536}, v{VW}"))
        else: ops.append(('v', f"v_add_u32 v{VW}, {4 * 65536}, v{VW}"))
        return ops
    def c_ops(n):
        return [('g', f"buffer_load_dwordx4 {A(CF(n,rb),4)}, v{VC}, s[8:11], s52 offen offset:{rb*1024} sc1") for rb in range(2)] + \
               [('s2', "s_add_u32 s52, s52, 8192")]
    def ksteps_of(st):
        if st == 0: return [0, 1, 2, 3]
        if st < N1 // 2: return [2 * st + 2, 2 * st + 3]
        if st >= SP: return []
        n0 = N1 + 4 * (st - N1 // 2)
        return [n for n in range(n0 + (2 if st == N1 // 2 else 0), n0 + 4)]
    def wread(u):
        st = u // 4
        base = TA if (st % 8) < 4 else TB
        return [[f"ds_read_b64_tr_b16 {V(WF(u,cb)+2*rd,2)}, v{base+cb} offset:{(st % 4)*16384 + (u % 4)*4096 + rd*2048}" for rd in range(2)] for cb in range(4)]
    def col3(part):
        k.e("s_bfe_u32 s3, s2, 0x40003")
        k.e("s_lshl_b32 s3, s3, 2")
        k.e("s_add_u32 s3, s3, s32")
        k.e("s_lshl_b32 s3, s3, 15")
        k.e("s_and_b32 s7, s2, 1")
        k.e(f"s_lshl_b32 s7, s7, {22 if XM else 10}")
        k.e("s_add_u32 s3, s3, s7")
        k.e(f"s_add_u32 s3, s3, {384 + part * 1024 * 2048}")
        k.e("v_and_b32 v1, 15, v0")
        k.e("v_lshlrev_b32 v1, 11, v1")
        k.e("v_lshrrev_b32 v11, 5, v0")
        k.e(f"v_lshl_add_u32 v1, v11, {10 if XM else 22}, v1")
        k.e("buffer_load_dword v11, v1, s[28:31], s3 offen")
    def gates(o, p, ysrc=None):
        g0 = GT + 8 * p
        if o is not k and opt.get('gpk', '0') == '0': return gates_plain(o, p)
        pr = lambda r: V(r, 2)
        st_ = V(STT + 2 * p, 2)
        for d in range(4):
            o.e(f"v_lshlrev_b32 v{g0+2*d}, 16, v{XP+4*p+d}")
            o.e(f"v_and_b32 v{g0+2*d+1}, 0xffff0000, v{XP+4*p+d}")
        for d in range(4): o.e(f"v_pk_add_f32 {pr(g0+2*d)}, {pr(g0+2*d)}, {st_} op_sel_hi:[1,0] neg_lo:[0,1] neg_hi:[0,1]")
        for d in range(4): rbf2(o, g0 + 2*d, g0 + 2*d + 1, GTMP + d)
        for d in range(4): o.e(f"v_pk_mul_f32 {pr(g0+2*d)}, {pr(g0+2*d)}, {st_} op_sel:[0,1] op_sel_hi:[1,1]")
        for d in range(4): rbf2(o, g0 + 2*d, g0 + 2*d + 1, GTMP + d)
        if ysrc is not None:
            for d in range(4): o.e(f"v_pk_add_f32 {pr(g0+2*d)}, {pr(g0+2*d)}, {pr(ysrc+2*d)}")
            for d in range(4): rbf2(o, g0 + 2*d, g0 + 2*d + 1, GTMP + d)
        for e_ in range(8): o.e(f"v_mul_f32 v{GTMP+e_}, 0xbfb8aa3b, v{g0+e_}")
        for e_ in range(8): o.e(f"v_exp_f32 v{GTMP+e_}, v{GTMP+e_}")
        for e_ in range(8): o.e(f"v_add_f32 v{GTMP+e_}, 1.0, v{GTMP+e_}")
        for e_ in range(8): o.e(f"v_rcp_f32 v{GTMP+e_}, v{GTMP+e_}")
        for d in range(4): o.e(f"v_pk_mul_f32 {pr(g0+2*d)}, {pr(g0+2*d)}, {pr(GTMP+2*d)}")
        for d in range(4): rbf2(o, g0 + 2*d, g0 + 2*d + 1, GTMP + d)
    def gates_plain(o, p):
        g0 = GT + 8 * p
        for d in range(4):
            o.e(f"v_lshlrev_b32 v{g0+2*d}, 16, v{XP+4*p+d}")
            o.e(f"v_and_b32 v{g0+2*d+1}, 0xffff0000, v{XP+4*p+d}")
        for e_ in range(8): o.e(f"v_sub_f32 v{g0+e_}, v{g0+e_}, v{STT+2*p}")
        for d in range(4): rbf2(o, g0 + 2*d, g0 + 2*d + 1, GTMP + d)
        for e_ in range(8): o.e(f"v_mul_f32 v{g0+e_}, v{g0+e_}, v{STT+2*p+1}")
        for d in range(4): rbf2(o, g0 + 2*d, g0 + 2*d + 1, GTMP + d)
        silu_n(o, [g0 + e_ for e_ in range(8)], [GTMP + e_ for e_ in range(8)])
        for d in range(4): rbf2(o, g0 + 2*d, g0 + 2*d + 1, GTMP + d)
    def poll_loop(lab, off, vo, vd, slp=8):
        k.e("s_mov_b32 s47, 0x400000")
        k.label(lab)
        k.e(f"buffer_load_dword v{vd}, v{vo}, s[20:23], {off} offen sc1")
        k.e("s_sub_u32 s47, s47, 1")
        k.e("s_waitcnt vmcnt(0)")
        k.e("s_cmp_eq_u32 s47, 0")
        k.e(f"s_cbranch_scc1 {lab}x")
        k.e(f"v_cmp_ne_u32 vcc, 1, v{vd}")
        k.e(f"s_cbranch_vccz {lab}x")
        k.e(f"s_sleep {slp}")
        k.e(f"s_branch {lab}")
        k.label(lab + "x")

    C3 = int(opt.get('c3', 2))
    k.e("s_mov_b32 s3, s36")
    for p in range(4):
        k.e(f"buffer_load_dwordx4 {V(XP+4*p,4)}, v{VO}, s[56:59], s3 offen", tag='x')
        if p < 3: k.e("s_add_u32 s3, s3, 16384")
    k.e("s_lshl_b32 s3, s45, 10")
    k.e(f"s_add_u32 s3, s3, {WS_STATS}")
    k.e(f"v_lshlrev_b32 v{T1}, 3, v{VROW}")
    for p in range(4):
        k.e(f"buffer_load_dwordx2 {V(STT+2*p,2)}, v{T1}, s[20:23], s3 offen offset:{p*64} sc1", tag='x')
    k.e("v_and_b32 v10, 15, v0")
    k.e("v_lshlrev_b32 v10, 2, v10")
    k.e(f"s_add_u32 s95, s32, {N1}")
    k.e("s_lshl_b32 s95, s95, 16")
    k.e("s_add_u32 s95, s95, s94")
    k.e("s_xor_b32 s95, s95, 128")
    WE = int(opt.get('we', 2))
    WP = int(opt.get('wp', 2))
    for st in range(WE):
        if st == WP: k.e(f"buffer_load_dword v{T1}, v10, s[20:23], s38 offen sc1", tag='cp')
        for t, s in w_ops(st): k.e(s, tag=f'w{st}')
    if WE <= WP: k.e(f"buffer_load_dword v{T1}, v10, s[20:23], s38 offen sc1", tag='cp')
    for cb in range(4): k.e(f"v_add_u32 v{TB+cb}, 65536, v{TA+cb}")
    k.e("s_and_b32 s39, s93, 15")
    k.e("s_lshr_b32 s37, s93, 4")
    k.e("s_lshl_b32 s54, s37, 2")
    k.e("s_add_u32 s54, s54, s32")
    k.e("s_lshl_b32 s3, s54, 17")
    k.e("s_lshl_b32 s7, s39, 7")
    k.e("s_add_u32 s3, s3, s7")
    k.e("s_cmp_lt_u32 s93, 224")
    k.e(f"s_cselect_b32 s3, s3, {BIG}")
    k.e(f"v_add_u32 v{T2}, s3, v{VWB}")
    def wd_dma():
        n0 = len(k.vq)
        for q in range(2):
            k.e(f"s_add_u32 m0, s35, {q*4096}")
            for j in range(4):
                k.e(f"buffer_load_dwordx4 v{T2}, s[60:63], s{48+j} offen offset:{j*1024} lds", tag='wd')
            if q == 0: k.e(f"v_add_u32 v{T2}, 65536, v{T2}")
        del k.vq[n0:]
    k.e("s_mov_b32 s40, 0")
    k.wait_vm('x')
    GE = int(opt.get('ge', 1)); GM = int(opt.get('gm', 2))
    for p in range(GE): gates(k, p)
    k.wait_vm('cp')
    k.e(f"v_cmp_ne_u32 vcc, 1, v{T1}")
    k.e("s_cbranch_vccnz L_spinC")
    k.label("L_spinCr")
    SPN = opt.get('spn', '0') == '1'
    def c3_first(x):
        if not C3: return
        k.e("s_cmp_lt_u32 s2, 128")
        k.e(f"s_cbranch_scc1 L_noc3{x}")
        col3(0)
        k.vq.pop()
        k.label(f"L_noc3{x}")
    def spinC():
        wd_dma()
        if SPN:
            c3_first("a")
            for p in range(GE, GE + GM): gates(k, p)
        k.e("s_mov_b32 s40, 1")
        poll_loop("L_spinC_l", "s38", 10, T1, opt.get('slpc', 4))
    ool.append(("L_spinC", spinC, "L_spinCr"))
    SO = opt.get('stamp') == 'o'
    k.stamp(ST or SA or SO)
    for st in range(max(CDI, WDI)):
        if st < CDI:
            for n in ksteps_of(st):
                for t, s in c_ops(n): k.e(s, tag=f'c{n}')
        if WE <= st < WDI:
            for t, s in w_ops(st): k.e(s, tag=f'w{st}')
        if st == 1:
            if SPN:
                k.e("s_cmp_lg_u32 s40, 0")
                k.e("s_cbranch_scc1 L_nogt")
            for p in range(GE, GE + GM): gates(k, p)
            k.label("L_nogt")
    k.e("s_cmp_lg_u32 s40, 0")
    k.e("s_cbranch_scc1 L_nowd")
    wd_dma()
    if SPN: c3_first("b")
    k.label("L_nowd")
    if not SPN: c3_first("b")

    b = Rec()
    b.e(f"v_mov_b32 v{T2}, 1")
    b.e("s_sub_u32 s65, s65, s33")
    b.e("s_lshl_b32 s65, s65, 2")
    b.e(f"v_mul_lo_u32 v{T1}, v0, s65")
    b.e("s_lshl_b32 s6, s33, 2")
    b.e(f"v_add_u32 v{T1}, s6, v{T1}")
    b.e(f"s_mov_b32 s6, {WS_HFL}")
    b.blk(["s_cmp_eq_u32 s32, 0", "s_cselect_b32 s6, s6, s64", f"s_cmp_ge_u32 s34, {opt.get('fx', 1)}", f"s_cselect_b32 s6, s6, {BIG}"])
    b.blk(["s_mov_b64 exec, 3", f"buffer_store_dword v{T2}, v{T1}, s[20:23], s6 offen sc1", "s_mov_b64 exec, -1"])
    b.e("s_lshl_b32 s40, s45, 2")
    b.e("s_add_u32 s40, s40, s32")
    b.blk(["s_lshr_b32 s3, s42, 5", "s_lshr_b32 s47, s43, 5", "s_cmp_eq_u32 s3, s40", "s_cselect_b32 s53, 1, 0",
           "s_cmp_eq_u32 s47, s40", "s_cselect_b32 s53, 1, s53", "s_mov_b32 s40, 0"])
    b.e("s_lshl_b32 s41, s46, 7")
    b.e(f"s_add_u32 s41, s41, {WS_YFL}")
    b.e("s_lshl_b32 s55, s46, 13")
    b.e(f"s_add_u32 s55, s55, {WS_YP}")
    srd_rec(b, 16, 66, 8 << 20, WS_XCH)
    b.e("s_lshl_b32 s24, s2, 2")
    b.e("s_add_u32 s24, s24, s32")
    b.e("s_lshl_b32 s25, s24, 13")
    b.e(f"s_xor_b32 s26, s25, {PX << 13}")
    b.e("s_lshl_b32 s24, s24, 2")
    b.e(f"s_xor_b32 s27, s24, {PX * 4}")
    b.e(f"s_add_u32 s24, s24, {WS_XFL}")
    b.e(f"s_add_u32 s27, s27, {WS_XFL}")
    F2 = float(opt.get('f2', 5)); FD = float(opt.get('f2d', 2.4))
    b0 = Rec()
    ev = [(F2 + j * FD, "s_cmp_lt_u32 s93, 224", f"L_f2{x}") for j, x in enumerate("AB")]
    if C3: ev.append((float(opt.get('c3t', 9.5)), "s_cmp_ge_u32 s2, 128", "L_c31")); ool.append(("L_c31", lambda: col3(1), "L_c31r"))
    for t_, c_, l_ in sorted(ev):
        b0.at(t_); b0.blk([c_, f"s_cbranch_scc1 {l_}", l_ + "r:"])
    H0 = 74
    WN = int(opt.get('f2w', 16))
    for cb in range(4): b.e(f"v_add_u32 v{106+cb}, s35, v{TA+cb}")
    b.e(f"v_and_b32 v2, 1, v{G}")
    b.e("v_lshlrev_b32 v2, 8, v2")
    b.e("v_and_b32 v3, 15, v0")
    b.e("v_lshl_add_u32 v2, v3, 3, v2")
    b.e("v_add_u32 v2, s35, v2")
    b.e("v_and_b32 v4, 1, v0")
    b.e("v_lshlrev_b32 v4, 8, v4")
    b.e("v_add_u32 v4, s35, v4")
    b.e(f"v_lshl_add_u32 v3, v{G}, 3, v4")
    b.e(f"v_lshl_add_u32 v4, v{G}, 4, v4")
    b.e("v_lshlrev_b32 v5, 3, v0")
    b.e(f"v_add_u32 v6, {SPARE + 2048}, v5")
    b.e("v_mov_b32 v7, 1")
    b.e("s_lshl_b32 s4, s39, 4")
    b.e("s_add_u32 s4, s4, s37")
    b.e("s_lshl_b32 s4, s4, 9")
    b.e(f"s_add_u32 s4, s4, {WS_YP}")
    b.e("s_lshl_b32 s6, s39, 5")
    b.e("s_add_u32 s6, s6, s37")
    b.e("s_lshl_b32 s6, s6, 2")
    b.e(f"s_add_u32 s6, s6, {WS_YFL}")
    b.blk(["s_cmp_eq_u32 s32, 0", "s_cselect_b32 s4, s4, s64", "s_cselect_b32 s6, s6, s64"])
    b.blk(["s_cmp_lt_u32 s93, 224", f"s_cselect_b32 s4, s4, {BIG}", f"s_cselect_b32 s6, s6, {BIG}"])
    b.at(F2 + 2 * FD)
    b.e(f"s_waitcnt vmcnt({WN})")
    b.items.append(('fn', lambda: k.use('wd') is None, None))
    for j in range(1, 8):
        for r in range(4): b.e(f"v_add_f32 v{H0+r}, v{H0+r}, v{H0+4*j+r}")
    for cb in range(4):
        for rd in range(2):
            b.e(f"ds_read_b64_tr_b16 {V(90 + 4*cb + 2*rd, 2)}, v{106+cb} offset:{rd*2048}", tag='d0')
    for r in range(0, 4, 2): rbf2(b, H0 + r, H0 + r + 1, 8)
    for r in range(4): b.e(f"v_mov_b32 v{78+r}, v{H0+r}")
    for r in range(4): b.e(f"v_permlane32_swap_b32 v{78+r}, v{H0+r}")
    silu_n(b, [78 + r for r in range(4)], [82 + r for r in range(4)])
    for r in range(0, 4, 2): rbf2(b, 78 + r, 79 + r, 8)
    for r in range(4): b.e(f"v_mul_f32 v{H0+r}, v{H0+r}, v{78+r}")
    for r in range(2): b.e(f"v_cvt_pk_bf16_f32 v{8+r}, v{H0+2*r}, v{H0+2*r+1}")
    b.e("ds_write_b64 v2, v[8:9]")
    for q in range(2):
        for rd in range(2):
            b.e(f"ds_read_b64 {V(H0 + 4*q + 2*rd, 2)}, v3 offset:{q*64 + rd*32}", tag='hf')
    b.items.append(('skip', 2, None))
    b.wait_ds('hf')
    for half in range(2):
        for c2 in range(2):
            cb = 2 * half + c2
            b.blk([mfma(V(82 + 4 * c2, 4), V(90 + 4 * cb, 4), V(H0, 4), "0")])
        for c2 in range(2):
            cb = 2 * half + c2
            for rd in range(2):
                b.e(f"ds_read_b64_tr_b16 {V(90 + 4*cb + 2*rd, 2)}, v{106+cb} offset:{4096 + rd*2048}", tag=f'd1{half}')
        b.items.append(('skip', 2, None))
        b.wait_ds(f'd1{half}')
        for c2 in range(2):
            b.blk([mfma(V(82 + 4 * c2, 4), V(90 + 4 * (2 * half + c2), 4), V(H0 + 4, 4), V(82 + 4 * c2, 4))])
        b.items.append(('skip', 1, None))
        for c2 in range(2):
            b.e(f"ds_write_b128 v4, {V(82 + 4*c2, 4)} offset:{2048 + (2*half + c2)*64}", tag='yw')
        b.items.append(('skip', 2, None))
        b.wait_ds('yw')
    b.items.append(('nextbar', None, None))
    for w in range(4): b.e(f"ds_read_b64 {V(74+2*w,2)}, v6 offset:{w*8192}", tag='yr')
    b.items.append(('skip', 2, None))
    b.wait_ds('yr')
    for r in range(2):
        b.e(f"v_add_f32 v{74+r}, v{74+r}, v{76+r}"); b.e(f"v_add_f32 v{78+r}, v{78+r}, v{80+r}")
    for r in range(2): b.e(f"v_add_f32 v{74+r}, v{74+r}, v{78+r}")
    b.e("buffer_store_dwordx2 v[74:75], v5, s[20:23], s4 offen sc1", tag='yp')
    b.items.append(('log', 'y partial stored', None))
    b.items.append(('rel', float(opt.get('f2e', 2.0)), None))
    b.wait_vm('yp')
    b.blk(["s_mov_b64 exec, 1", f"buffer_store_dword v7, v{VZ}, s[20:23], s6 offen sc1", "s_mov_b64 exec, -1"])
    b.items.append(('log', 'y flag', None))
    for p in range(GE + GM, 4): gates(b, p)
    b.items.append(('log', 'gates done', None))
    PS = float(opt.get('k3_poll', 25.5))
    b.at(PS + 4.0)
    b.blk(["s_cmp_lg_u32 s40, 0", "s_cbranch_scc1 L_yC", "L_yCr:"])
    b0.at(PS)
    b0.blk(["s_cmp_lg_u32 s53, 0", "s_cbranch_scc1 L_yA", "L_yAr:"])
    b0.at(PS + 2.2)
    b0.blk(["s_cmp_lg_u32 s53, 0", "s_cbranch_scc1 L_yB", "L_yBr:"])
    b0.at(SP + 0.15)
    b0.e(f"v_add_u32 v10, 4096, v{VC}")
    for j in range(8):
        b0.e(f"buffer_store_dwordx4 {V(ACC(1, 0, 0) + 4*j, 4)}, v{VC if j < 4 else 10}, s[16:19], s26 offen offset:{(j & 3)*1024} sc1", tag='xs')
    b0.e("v_mov_b32 v16, 1")
    b0.at(SP + float(opt.get('xf', 3.2)))
    b0.wait_vm('xs')
    b0.blk(["s_mov_b64 exec, 1", f"buffer_store_dword v16, v{VZ}, s[20:23], s27 offen sc1", "s_mov_b64 exec, -1"])
    b0.at(SP + float(opt.get('xpl', 4.6)))
    b0.e(f"buffer_load_dword v17, v{VZ}, s[20:23], s24 offen sc1", tag='xp')
    b0.at(SP + float(opt.get('xck', 5.8)))
    b0.wait_vm('xp')
    b0.blk(["v_cmp_ne_u32 vcc, 1, v17", "s_mov_b32 s33, 0", "s_cbranch_vccnz L_xno"] +
           [(f"buffer_load_dwordx4 {V(XI + 4*j, 4)}, v{VC if j < 4 else 10}, s[16:19], s25 offen offset:{(j & 3)*1024} sc1", '!') for j in range(8)] +
           ["s_mov_b32 s33, 1", "L_xno:"])

    grp_ = []
    for it in b0.items:
        if it[0] == 'at': grp_.append([])
        grp_[-1].append(it)
    b0.items = [it for g_ in sorted(grp_, key=lambda x: x[0][1]) for it in g_]
    k.wait_vm('w0')
    k.use('hps')
    k.e("s_barrier")
    for cb in range(2):
        for u in range(4):
            for s in wread(u)[cb]: k.e(s, tag=f'f0_{cb}')
    BS = int(opt.get('k3_bs', 3))
    wnext = max(WDI, WE)
    for st in range(NS):
        k.stamp(SO and st % 4 == 0)
        vm = []
        for _ in range(int(opt.get('wq', 3)) if st >= SP - CDI else 1):
            if wnext < NS and wnext <= st + (6 if st >= SP - CDI else WDI):
                vm += [(t, s, f'w{wnext}') for t, s in w_ops(wnext)]; wnext += 1
        for n in ksteps_of(st + CDI): vm += [(t, s, f'c{n}') for t, s in c_ops(n)]
        g = {}; gt = {}; scal = {}
        for cb in range(4):
            s2, c2 = (st, cb + 2) if cb < 2 else (st + 1, cb - 2)
            if s2 < NS:
                for q in range(4):
                    g[8 * cb + 2 * q] = wread(4 * s2 + q)[c2]; gt[8 * cb + 2 * q] = f'f{s2}_{c2}'
        free = [x for x in range(32) if x not in g]
        ng = sum(1 for x in vm if x[0] == 'g')
        pick = [free[(2 * j + 1) * len(free) // (2 * ng)] for j in range(ng)] if ng else []
        j = 0
        for t, s, tg in vm:
            if t == 'g': g[pick[j]] = [s]; gt[pick[j]] = tg; j += 1
            elif t == 's': scal.setdefault(pick[j] - 1, []).append(s)
            else: g[pick[j - 1]].append(s)
        seq = [(4 * st + q, cb, rb) for cb in range(4) for rb in range(2) for q in range(4)]
        for m, (u, cb, rb) in enumerate(seq):
            if True:
                if True:
                    n, side = units[u]
                    if m == 0: k.wait_vm(f'c{units[u + 3][0]}')
                    k.wait_ds(f'f{st}_{cb}')
                    d = V(ACC(side, rb, cb), 4)
                    k.e(mfma(d, V(WF(u, cb), 4), A(CF(n, rb), 4), "0" if n == 0 else d))
                    if m == 12 and st + 1 < NS: k.wait_vm(f'w{st+1}')
                    if m == 14 and st + 1 < NS:
                        k.e("s_barrier")
                        if b.items and b.items[0][0] == 'nextbar': b.items.pop(0)
                    if m % 8 == 4 and m != 12 or m == 10:
                        k.wait_ds(f'f{st}_{cb+1}' if cb < 3 else f'f{st+1}_0')
                    if m == 30 and st + 1 < NS: k.wait_vm(f'c{units[4 * st + 7][0]}')
                    for s in scal.get(m, []): k.e(s)
                    if m in g:
                        for s in g[m]: k.e(s, tag=gt.get(m))
                        if int(opt.get('k3_ds', 1)) and st < SP - CDI and g[m][0].startswith('ds_') and b.items and b.items[0][0] == 'i' and b.cost(b.items[0]) == 1 \
                                and b.items[0][1].startswith('v_'):
                            b.fill(k, st + m / 32.0, int(opt.get('k3_ds', 1)))
                    else:
                        nl = k.ni
                        b0.fill(k, st + m / 32.0, 2)
                        if k.ni == nl: b.fill(k, st + m / 32.0, BS if st < SP - CDI else 2)
    print("phase4 items left", len(b.items), len(b0.items))
    b0.drain(k); b.drain(k)
    k.stamp(ST or SO)
    k.e("s_cmp_lg_u32 s53, s40")
    k.e("s_cbranch_scc1 L_ysl")
    k.label("L_yslr")
    k.e(f"v_and_b32 v{T1}, 15, v0")
    k.e(f"v_lshlrev_b32 v74, 8, v{T1}")
    k.e("v_add_u32 v74, s35, v74")
    k.e(f"v_xor_b32 v{T1}, v{T1}, v{G}")
    k.e(f"v_lshl_add_u32 v74, v{T1}, 4, v74")
    for cb in range(1, 4): k.e(f"v_xor_b32 v{74+cb}, {64*cb}, v74")
    k.e(f"v_lshlrev_b32 v{T2}, 1, v{L7}")
    k.e(f"v_xor_b32 v{T1}, v{L3}, v{T2}")
    k.e(f"v_lshlrev_b32 v12, 8, v{L3}")
    k.e("v_add_u32 v12, s35, v12")
    k.e(f"v_lshl_add_u32 v12, v{T1}, 4, v12")
    k.e("v_xor_b32 v13, 16, v12")
    k.e("v_xor_b32 v14, 128, v12")
    k.e("v_xor_b32 v15, 144, v12")
    k.e("s_cmp_eq_u32 s33, 0")
    k.e("s_cbranch_scc1 L_spinX")
    k.label("L_spinXr")
    def spinX():
        poll_loop("L_spinXl", "s24", VZ, 17, 1)
        for j in range(8):
            k.e(f"buffer_load_dwordx4 {V(XI + 4*j, 4)}, v{VC if j < 4 else 10}, s[16:19], s25 offen offset:{(j & 3)*1024} sc1")
    ool.append(("L_spinX", spinX, "L_spinXr"))
    XU = 80
    for p in range(4):
        for d in range(4):
            k.e(f"v_lshlrev_b32 v{XU+8*p+2*d}, 16, v{XP+4*p+d}")
            k.e(f"v_and_b32 v{XU+8*p+2*d+1}, 0xffff0000, v{XP+4*p+d}")
    k.e("s_waitcnt vmcnt(0)")
    for j in range(8):
        a = ACC(0, 0, 0) + 4 * j
        for e_ in (0, 2): k.e(f"v_pk_add_f32 {V(a+e_,2)}, {V(a+e_,2)}, {V(XI+4*j+e_,2)}")
        k.e(f"ds_write_b128 v{74 + (j & 3)}, {V(a,4)} offset:{(j >> 2)*4096}")
    for p in range(4):
        for h in range(2):
            k.e(f"ds_read_b128 {V(192 + 8*p + 4*h, 4)}, v{12 + h + 2*(p & 1)} offset:{p*2048}", tag=f'r{p}')
    for p in range(4):
        b_ = 192 + 8 * p; t_ = 224 + 4 * p
        k.wait_ds(f'r{p}')
        for d in range(4): rbf2(k, b_ + 2*d, b_ + 2*d + 1, t_ + d)
        for e_ in range(0, 8, 2): k.e(f"v_pk_mul_f32 {V(b_+e_,2)}, {V(b_+e_,2)}, {V(GT+8*p+e_,2)}")
        for d in range(4): rbf2(k, b_ + 2*d, b_ + 2*d + 1, t_ + d)
        for e_ in range(0, 8, 2): k.e(f"v_pk_add_f32 {V(b_+e_,2)}, {V(b_+e_,2)}, {V(XU+8*p+e_,2)}")
        for d in range(4): k.e(f"v_cvt_pk_bf16_f32 v{t_+d}, v{b_+2*d}, v{b_+2*d+1}")
        k.e(f"buffer_store_dwordx4 {V(t_,4)}, v{VO}, s[68:71], s36 offen{opt.get('out_st', ' sc1')}")
        if p < 3: k.e("s_add_u32 s36, s36, 16384")
    k.stamp(ST or SA)

    def f2A():
        k.e("s_lshr_b32 s5, s54, 1")
        k.e("s_lshl_b32 s5, s5, 5")
        k.e(f"s_add_u32 s5, s5, {WS_HFL}")
        k.e(f"buffer_load_dword v{T2}, v{VF}, s[20:23], s5 offen sc1")
    def f2B():
        k.e(f"s_waitcnt vmcnt({WN})")
        k.e(f"v_cmp_ne_u32 vcc, 1, v{T2}")
        k.e("s_cbranch_vccz L_f2lx")
        poll_loop("L_f2l", "s5", VF, T2)
        k.e("s_lshl_b32 s3, s54, 8")
        k.e(f"s_add_u32 s3, s3, {WS_HP}")
        k.e(f"v_mul_u32_u24 v{T1}, 14336, v{G}")
        k.e(f"v_and_b32 v{T2}, 15, v0")
        k.e(f"v_lshl_add_u32 v{T1}, v{T2}, 4, v{T1}")
        for j in range(8):
            k.e(f"buffer_load_dwordx4 {V(H0 + 4*j, 4)}, v{T1}, s[20:23], s3 offen sc1")
            if j < 7: k.e(f"s_add_u32 s3, s3, {4*14336}")
    for nm, fn in (("A", f2A), ("B", f2B)): ool.append((f"L_f2{nm}", fn, f"L_f2{nm}r"))
    YR = lambda t: 76 + 18 * t
    def own_tok(t, skip):
        k.e("s_lshl_b32 s7, s45, 2")
        k.e("s_add_u32 s7, s7, s32")
        k.e(f"s_lshr_b32 s3, s{42+t}, 5")
        k.e("s_cmp_lg_u32 s3, s7")
        k.e(f"s_cbranch_scc1 {skip}")
    def yloads():
        k.e(f"v_lshlrev_b32 v{T1}, 2, v0")
        k.e(f"v_lshlrev_b32 v{T2}, 1, v0")
        for t in range(2):
            L = k.newlabel("yl")
            own_tok(t, L)
            k.e(f"s_add_u32 s3, s55, {t*256}")
            k.e("s_add_u32 s7, s3, 4096")
            for j in range(14):
                k.e(f"buffer_load_dword v{YR(t)+j}, v{T1}, s[20:23], s{3 if j < 8 else 7} offen offset:{(j & 7)*512} sc1")
            k.e(f"s_lshl_b32 s3, s{42+t}, 11")
            k.e("s_lshl_b32 s7, s46, 7")
            k.e("s_add_u32 s3, s3, s7")
            k.e(f"buffer_load_ushort v{YR(t)+14}, v{T2}, s[56:59], s3 offen")
            k.e(f"s_lshl_b32 s3, s{42+t}, 3")
            k.e(f"s_add_u32 s3, s3, {WS_STATS}")
            k.e(f"buffer_load_dwordx2 {V(YR(t)+16,2)}, v{VZ}, s[20:23], s3 offen sc1")
            k.label(L)
    def rb1(r):
        k.e(f"v_cvt_pk_bf16_f32 v{r}, v{r}, v{r}")
        k.e(f"v_lshlrev_b32 v{r}, 16, v{r}")
    def selblock():
        for t in range(2):
            L = k.newlabel("ys")
            y, x = YR(t), YR(t) + 14
            own_tok(t, L)
            for j in range(2, 14, 2): k.e(f"v_pk_add_f32 {V(y,2)}, {V(y,2)}, {V(y+j,2)}")
            k.e(f"v_add_f32 v{y}, v{y}, v{y+1}")
            k.e(f"v_lshlrev_b32 v{x}, 16, v{x}")
            k.e(f"v_sub_f32 v{x}, v{x}, v{x+2}")
            rb1(y); rb1(x)
            k.e(f"v_mul_f32 v{y}, s{100+t}, v{y}")
            k.e(f"v_mul_f32 v{x}, v{x}, v{x+3}")
            rb1(y); rb1(x)
            k.e(f"v_add_f32 v{x}, v{x}, v{y}")
            rb1(x)
            silu_n(k, [x], [y])
            rb1(x)
            k.e(f"v_lshlrev_b32 v{T1}, 2, v0")
            k.e(f"v_add_u32 v{T1}, s35, v{T1}")
            k.e(f"v_lshlrev_b32 v{T2}, 5, v{L7}")
            k.e(f"v_add_u32 v{T2}, s35, v{T2}")
            k.e("s_waitcnt lgkmcnt(0)")
            k.e(f"ds_write_b32 v{T1}, v{x}")
            k.e(f"s_and_b32 s3, s{42+t}, 7")
            k.e("s_lshl_b32 s3, s3, 3")
            k.e("s_lshl_b64 s[4:5], 0xff, s3")
            k.e(f"s_bfe_u32 s3, s{42+t}, 0x20003")
            k.e("s_mov_b64 exec, s[4:5]")
            for p in range(4):
                L2 = k.newlabel("yp")
                k.e(f"s_cmp_lg_u32 s3, {p}")
                k.e(f"s_cbranch_scc1 {L2}")
                k.e(f"ds_read_b64 {V(GT+8*p,2)}, v{T2}")
                k.e(f"ds_read_b64 {V(GT+8*p+2,2)}, v{T2} offset:8")
                k.e(f"ds_read_b64 {V(GT+8*p+4,2)}, v{T2} offset:16")
                k.e(f"ds_read_b64 {V(GT+8*p+6,2)}, v{T2} offset:24")
                k.label(L2)
            k.e("s_mov_b64 exec, -1")
            k.e("s_waitcnt lgkmcnt(0)")
            k.label(L)
    def yA():
        k.e(f"v_min_u32 v{VF}, 13, v0")
        k.e(f"v_lshlrev_b32 v{VF}, 2, v{VF}")
        k.e(f"buffer_load_dword v74, v{VF}, s[20:23], s41 offen sc1")
    def yB():
        k.e(f"s_waitcnt vmcnt({opt.get('ybw', 1)})")
        k.e("v_cmp_ne_u32 vcc, 1, v74")
        k.e("s_cbranch_vccnz L_yBr")
        k.e("s_mov_b32 s40, 1")
        yloads()
    def yC():
        k.e(f"s_waitcnt vmcnt({opt.get('ycw', 1)})")
        selblock()
    def ysl():
        poll_loop("L_ysll", "s41", VF, T1)
        yloads()
        k.e("s_waitcnt vmcnt(0)")
        selblock()
    ool.append(("L_yA", yA, "L_yAr")); ool.append(("L_yB", yB, "L_yBr")); ool.append(("L_yC", yC, "L_yCr")); ool.append(("L_ysl", ysl, "L_yslr"))
```

```python
from fw import *
from layout import *
from p4 import rbf2, silu_n, srd_rec, p4_ptr_loads
BIG = 0x7ff00000
VC, VWB, VW, TA, VO, VROW, G, L7, L3, T1, T2, VZ, VF = 112, 113, 114, 115, 119, 120, 121, 122, 123, 124, 125, 126, 127
GTMP, XP, STT, GT, YB = 2, 18, 34, 42, 80
SPARE = 131072

def p4_setup(opt):
    b = Rec()
    srd_rec(b, 60, 8, 7340032)
    srd_rec(b, 56, 40, 4194304)
    b.e("s_bfe_u32 s6, s2, 0x20001")
    b.e("s_lshr_b32 s7, s2, 7")
    b.e("s_lshl_b32 s7, s7, 2")
    b.e("s_add_u32 s38, s6, s7")
    b.e("s_bfe_u32 s6, s2, 0x10006")
    b.e("s_lshl_b32 s6, s6, 2")
    b.e("s_add_u32 s36, s6, s32")
    b.e("s_lshl_b32 s45, s38, 3")
    b.e("s_add_u32 s45, s45, s36")
    b.e("s_and_b32 s46, s2, 1")
    b.e("s_bfe_u32 s6, s2, 0x30003")
    if opt.get('xm', '1') == '1': b.e("s_lshl_b32 s6, s6, 1")
    else: b.e("s_lshl_b32 s46, s46, 3")
    b.e("s_add_u32 s46, s46, s6")
    for j in range(4): b.e(f"s_mov_b32 s{48+j}, {j*15360}")
    b.e("s_lshl_b32 s35, s32, 13")
    b.e(f"s_add_u32 s35, s35, {SPARE}")
    b.e("s_and_b32 s52, s46, 1")
    b.e("s_lshl_b32 s37, s38, 20")
    b.e("s_lshl_b32 s7, s52, 19")
    b.e("s_add_u32 s37, s37, s7")
    b.e("s_lshl_b32 s7, s36, 10")
    b.e("s_add_u32 s37, s37, s7")
    b.e("s_sub_u32 s39, 16777216, s37")
    b.e(f"s_add_u32 s37, s37, {WS_CTX}")
    b.e("s_lshr_b32 s7, s46, 1")
    b.e("s_lshl_b32 s7, s7, 8")
    b.e("s_lshl_b32 s6, s52, 22")
    b.e("s_add_u32 s6, s6, s7")
    srd_rec(b, 12, 94, 0, "s6")
    b.e("s_sub_u32 s14, 4194304, s7")
    srd_rec(b, 28, 94, 8388608)
    b.e("s_lshl_b32 s7, s46, 7")
    b.e("s_lshl_b32 s36, s45, 15")
    b.e("s_add_u32 s36, s36, s7")
    b.e("s_and_b32 s94, s7, 128")
    b.e("s_lshl_b32 s53, s38, 1")
    b.e("s_sub_u32 s53, 15, s53")
    b.e("s_lshl_b32 s38, s38, 7")
    b.e("s_lshl_b32 s6, s52, 6")
    b.e("s_add_u32 s38, s38, s6")
    b.e(f"s_add_u32 s38, s38, {WS_CFL}")
    b.e("s_lshl_b32 s6, s32, 16")
    b.e("s_add_u32 s6, s6, s94")
    b.e("s_xor_b32 s6, s6, 128")
    b.e("s_lshl_b32 s7, s53, 20")
    b.at(1)
    srd_rec(b, 68, 10, 4194304)
    srd_rec(b, 8, 66, 0, "s37")
    b.e("s_mov_b32 s10, s39")
    b.e(f"v_lshlrev_b32 v{VC}, 4, v0")
    b.e(f"v_lshrrev_b32 v{G}, 4, v0")
    b.e(f"v_and_b32 v{L7}, 7, v0")
    b.e(f"v_lshrrev_b32 v{L3}, 3, v0")
    b.e(f"v_lshlrev_b32 v{T1}, 1, v{G}")
    b.e(f"v_xor_b32 v{T1}, v{T1}, v{L7}")
    b.e(f"v_lshlrev_b32 v{T1}, 4, v{T1}")
    b.e(f"v_lshl_add_u32 v{VWB}, v{L3}, 11, v{T1}")
    b.e(f"v_add_u32 v{VW}, s6, v{VWB}")
    b.e(f"v_lshrrev_b32 v{T1}, 2, v0")
    b.e(f"v_bfe_u32 v{VZ}, v0, 3, 2")
    b.e(f"v_lshlrev_b32 v{T1}, 7, v{T1}")
    b.e(f"v_and_b32 v{T2}, 3, v0")
    b.e(f"v_lshl_add_u32 v{T1}, v{T2}, 3, v{T1}")
    b.e(f"v_lshl_add_u32 v{TA}, v{VZ}, 5, v{T1}")
    for cb in range(1, 4): b.e(f"v_xor_b32 v{TA+cb}, {cb*32}, v{TA}")
    b.e(f"v_add_u32 v{VROW}, s7, v{VC}")
    b.e(f"v_lshlrev_b32 v{VO}, 11, v{L3}")
    b.e(f"v_lshl_add_u32 v{VO}, v{L7}, 4, v{VO}")
    b.e(f"v_mov_b32 v{VZ}, 0")
    b.e(f"v_lshlrev_b32 v{VF}, 2, v{L7}")
    return b

def phase4(k, opt, ool, ST, SA):
    N1 = int(opt.get('n1', 32))
    N2 = 64 - N1
    assert N1 % 4 == 0 and N2 % 4 == 0 and N2 <= 32
    units = [(n + q, s_) for n in range(0, N1, 4) for s_ in (1, 0) for q in range(4)] + [(n, 1) for n in range(N1, 64)] + [(n, 0) for n in range(N1, 64)]
    NS = 32
    XM = opt.get('xm', '1') == '1'
    PX = 4 if XM else 32
    SP = N1 // 2 + N2 // 4
    ACC = lambda side, rb, cb: 128 + ((side * 2 + rb) * 4 + cb) * 4
    WF = lambda u, cb: 192 + cb * 16 + (u & 3) * 4
    XI = 160
    FL = int(opt.get('fl', 2))
    CF = lambda n, rb: (n % 32) * 8 + rb * 4
    TB = 12
    WDI = int(opt.get('wdi', 3))
    CDI = int(opt.get('cdi', 3))
    def w_ops(st):
        if st >= NS: return []
        ops = [('s', f"s_add_u32 m0, s44, {(st % 8)*16384}")]
        ops += [('g', f"buffer_load_dwordx4 v{VW}, s[12:15], s{48+j} offen offset:{j*1024} lds") for j in range(4)]
        if st + 1 == SP: ops += [('s2', "s_xor_b32 s95, s95, 128"), ('v', f"v_add_u32 v{VW}, s95, v{VWB}")]
        elif st < N1 // 2:
            ops.append(('v', f"v_xor_b32 v{VW}, 128, v{VW}"))
            if st & 1: ops.append(('v', f"v_add_u32 v{VW}, {4 * 65536}, v{VW}"))
        else: ops.append(('v', f"v_add_u32 v{VW}, {4 * 65536}, v{VW}"))
        return ops
    def c_ops(n, rb):
        return [('s', f"s_mov_b32 s52, {n*8192}"),
                ('g', f"buffer_load_dwordx4 {A(CF(n,rb),4)}, v{VROW if rb else VC}, s[8:11], s52 offen sc1")]
    need_st = lambda n: (n // 4) * 2 if n < N1 else N1 // 2 + (n - N1) // 4
    free_st = lambda n: 0 if n < 32 else ((n - 32) // 4) * 2 + 2
    def wread(u):
        st = u // 4
        base = TA if (st % 8) < 4 else TB
        return [[f"ds_read_b64_tr_b16 {V(WF(u,cb)+2*rd,2)}, v{base+cb} offset:{(st % 4)*16384 + (u % 4)*4096 + rd*2048}" for rd in range(2)] for cb in range(4)]
    def col3(part):
        k.e("s_bfe_u32 s3, s2, 0x40003")
        k.e("s_lshl_b32 s3, s3, 2")
        k.e("s_add_u32 s3, s3, s32")
        k.e("s_lshl_b32 s3, s3, 15")
        k.e("s_and_b32 s7, s2, 1")
        k.e(f"s_lshl_b32 s7, s7, {22 if XM else 10}")
        k.e("s_add_u32 s3, s3, s7")
        k.e(f"s_add_u32 s3, s3, {384 + part * 1024 * 2048}")
        k.e("v_and_b32 v1, 15, v0")
        k.e("v_lshlrev_b32 v1, 11, v1")
        k.e("v_lshrrev_b32 v11, 5, v0")
        k.e(f"v_lshl_add_u32 v1, v11, {10 if XM else 22}, v1")
        k.e("buffer_load_dword v11, v1, s[28:31], s3 offen")
    def gates(o, p, ysrc=None):
        g0 = GT + 8 * p
        if o is not k and opt.get('gpk', '0') == '0': return gates_plain(o, p)
        pr = lambda r: V(r, 2)
        st_ = V(STT + 2 * p, 2)
        for d in range(4):
            o.e(f"v_lshlrev_b32 v{g0+2*d}, 16, v{XP+4*p+d}")
            o.e(f"v_and_b32 v{g0+2*d+1}, 0xffff0000, v{XP+4*p+d}")
        for d in range(4): o.e(f"v_pk_add_f32 {pr(g0+2*d)}, {pr(g0+2*d)}, {st_} op_sel_hi:[1,0] neg_lo:[0,1] neg_hi:[0,1]")
        for d in range(4): rbf2(o, g0 + 2*d, g0 + 2*d + 1, GTMP + d)
        for d in range(4): o.e(f"v_pk_mul_f32 {pr(g0+2*d)}, {pr(g0+2*d)}, {st_} op_sel:[0,1] op_sel_hi:[1,1]")
        for d in range(4): rbf2(o, g0 + 2*d, g0 + 2*d + 1, GTMP + d)
        if ysrc is not None:
            for d in range(4): o.e(f"v_pk_add_f32 {pr(g0+2*d)}, {pr(g0+2*d)}, {pr(ysrc+2*d)}")
            for d in range(4): rbf2(o, g0 + 2*d, g0 + 2*d + 1, GTMP + d)
        for e_ in range(8): o.e(f"v_mul_f32 v{GTMP+e_}, 0xbfb8aa3b, v{g0+e_}")
        for e_ in range(8): o.e(f"v_exp_f32 v{GTMP+e_}, v{GTMP+e_}")
        for e_ in range(8): o.e(f"v_add_f32 v{GTMP+e_}, 1.0, v{GTMP+e_}")
        for e_ in range(8): o.e(f"v_rcp_f32 v{GTMP+e_}, v{GTMP+e_}")
        for d in range(4): o.e(f"v_pk_mul_f32 {pr(g0+2*d)}, {pr(g0+2*d)}, {pr(GTMP+2*d)}")
        for d in range(4): rbf2(o, g0 + 2*d, g0 + 2*d + 1, GTMP + d)
    def gates_plain(o, p):
        g0 = GT + 8 * p
        for d in range(4):
            o.e(f"v_lshlrev_b32 v{g0+2*d}, 16, v{XP+4*p+d}")
            o.e(f"v_and_b32 v{g0+2*d+1}, 0xffff0000, v{XP+4*p+d}")
        for e_ in range(8): o.e(f"v_sub_f32 v{g0+e_}, v{g0+e_}, v{STT+2*p}")
        for d in range(4): rbf2(o, g0 + 2*d, g0 + 2*d + 1, GTMP + d)
        for e_ in range(8): o.e(f"v_mul_f32 v{g0+e_}, v{g0+e_}, v{STT+2*p+1}")
        for d in range(4): rbf2(o, g0 + 2*d, g0 + 2*d + 1, GTMP + d)
        silu_n(o, [g0 + e_ for e_ in range(8)], [GTMP + e_ for e_ in range(8)])
        for d in range(4): rbf2(o, g0 + 2*d, g0 + 2*d + 1, GTMP + d)
    def poll_loop(lab, off, vo, vd, slp=8):
        k.e("s_mov_b32 s47, 0x400000")
        k.label(lab)
        k.e(f"buffer_load_dword v{vd}, v{vo}, s[20:23], {off} offen sc1")
        k.e("s_sub_u32 s47, s47, 1")
        k.e("s_waitcnt vmcnt(0)")
        k.e("s_cmp_eq_u32 s47, 0")
        k.e(f"s_cbranch_scc1 {lab}x")
        k.e(f"v_cmp_ne_u32 vcc, 1, v{vd}")
        k.e(f"s_cbranch_vccz {lab}x")
        k.e(f"s_sleep {slp}")
        k.e(f"s_branch {lab}")
        k.label(lab + "x")

    C3 = int(opt.get('c3', 2))
    NB = int(opt.get('nb', 28))
    WE = int(opt.get('we', 5))
    k.e("s_lshl_b32 s65, s53, 3")
    k.e("s_add_u32 s65, s65, s45")
    k.e("v_and_b32 v10, 15, v0")
    k.e("v_lshlrev_b32 v10, 2, v10")
    k.e(f"buffer_load_dword v{T1}, v10, s[20:23], s38 offen sc1", tag='cp')
    k.e("s_lshl_b32 s47, s53, 18")
    for p in range(4):
        k.e(["s_mov_b32 s3, s36", "s_add_u32 s3, s36, 16384", "s_add_u32 s3, s36, s47", "s_add_u32 s3, s3, 16384"][p])
        k.e(f"buffer_load_dwordx4 {V(XP+4*p,4)}, v{VO}, s[56:59], s3 offen", tag='x')
    k.e(f"v_lshlrev_b32 v{T2}, 3, v{L3}")
    for p in range(4):
        if p % 2 == 0:
            k.e(f"s_lshl_b32 s3, s{65 if p else 45}, 7")
            k.e(f"s_add_u32 s3, s3, {WS_STATS}")
        k.e(f"buffer_load_dwordx2 {V(STT+2*p,2)}, v{T2}, s[20:23], s3 offen offset:{(p & 1)*64} sc1", tag='x')
    k.e(f"s_add_u32 s95, s32, {N1}")
    k.e("s_lshl_b32 s95, s95, 16")
    k.e("s_add_u32 s95, s95, s94")
    k.e("s_xor_b32 s95, s95, 128")
    for t, s in w_ops(0): k.e(s, tag='w0')
    for cb in range(4): k.e(f"v_add_u32 v{TB+cb}, 65536, v{TA+cb}")
    k.e("s_and_b32 s39, s93, 15")
    k.e("s_lshr_b32 s37, s93, 4")
    k.e("s_lshl_b32 s54, s37, 2")
    k.e("s_add_u32 s54, s54, s32")
    k.e("s_lshl_b32 s3, s54, 17")
    k.e("s_lshl_b32 s7, s39, 7")
    k.e("s_add_u32 s3, s3, s7")
    k.e("s_cmp_lt_u32 s93, 224")
    k.e(f"s_cselect_b32 s3, s3, {BIG}")
    k.e(f"v_add_u32 v{T2}, s3, v{VWB}")
    k.wait_vm('cp')
    k.e(f"v_cmp_ne_u32 vcc, 1, v{T1}")
    k.e("s_cbranch_vccnz L_spinD")
    k.label("L_spinDr")
    ool.append(("L_spinD", lambda: poll_loop("L_spinD_l", "s38", 10, T1, opt.get('slpc', 4)), "L_spinDr"))
    k.e("s_lshl_b32 s3, s53, 7")
    k.e("s_add_u32 s38, s38, s3")
    pre = []
    for st in range(1, 8):
        for n in range(4 * (st - 1), min(4 * st, NB)): pre.append([(t, s, f'b{n}') for t, s in c_ops(n, 0)])
        if st < WE: pre.append([(t, s, f'w{st}') for t, s in w_ops(st)])
    for n in range(28, NB): pre.append([(t, s, f'b{n}') for t, s in c_ops(n, 0)])
    for q in range(2):
        pre.append([('s', f"s_add_u32 m0, s35, {q*4096}", None)] +
                   [('g', f"buffer_load_dwordx4 v{T2}, s[60:63], s{48+j} offen offset:{j*1024} lds", 'wd') for j in range(4)] +
                   ([('v', f"v_add_u32 v{T2}, 65536, v{T2}", None)] if q == 0 else []))
    flat = [x for g_ in pre for x in g_]
    GE = int(opt.get('ge', 4)); GM = 0
    tot = sum(1 for x in flat if x[0] == 'g'); cnt = 0; gp = 0
    for t, s, tg in flat:
        if t == 'g' and cnt == tot - int(opt.get('pb', 8)):
            k.e(f"buffer_load_dword v{T1}, v10, s[20:23], s38 offen sc1", tag='cq')
        if t == 'g' and len(k.vq) >= 44: k.e("s_waitcnt vmcnt(36)")
        k.e(s, tag=tg)
        if t == 'g':
            cnt += 1
            if gp < GE and cnt == (gp + 1) * tot // (GE + 1):
                k.wait_vm('x'); gates(k, gp); gp += 1
    if C3:
        k.e("s_cmp_lt_u32 s2, 128")
        k.e("s_cbranch_scc1 L_noc3")
        col3(0)
        k.vq.pop()
        k.label("L_noc3")
    k.wait_vm('cq')
    k.e(f"v_cmp_ne_u32 vcc, 1, v{T1}")
    k.e("s_cbranch_vccnz L_spinC")
    k.label("L_spinCr")
    ool.append(("L_spinC", lambda: poll_loop("L_spinC_l", "s38", 10, T1, opt.get('slpc', 4)), "L_spinCr"))
    SO = opt.get('stamp') == 'o'
    k.stamp(ST or SA or SO)
    cq = sorted([(n, 1) for n in range(64)] + [(n, 0) for n in range(NB, 64)])
    while need_st(cq[0][0]) < CDI:
        n, rb = cq.pop(0)
        for t, s in c_ops(n, rb): k.e(s, tag=f"{'a' if rb else 'b'}{n}")

    b = Rec()
    b.e(f"v_mov_b32 v{T2}, 1")
    b.e("s_lshl_b32 s6, s33, 2")
    b.e(f"s_add_u32 s6, s6, {WS_HFL}")
    b.blk(["s_cmp_eq_u32 s32, 0", "s_cselect_b32 s6, s6, s64", "s_cmp_ge_u32 s34, 1", f"s_cselect_b32 s6, s6, {BIG}"])
    b.blk(["s_mov_b64 exec, 1", f"buffer_store_dword v{T2}, v{VZ}, s[20:23], s6 offen sc1", "s_mov_b64 exec, -1"])
    b.e("s_lshr_b32 s3, s42, 4")
    b.e("s_lshr_b32 s47, s43, 4")
    b.e("s_mov_b32 s40, 0")
    b.blk(["s_cmp_eq_u32 s3, s45", "s_cselect_b32 s53, 1, 0", "s_cmp_eq_u32 s47, s45", "s_cselect_b32 s53, 1, s53"])
    b.blk(["s_cmp_eq_u32 s3, s65", "s_cselect_b32 s53, 1, s53", "s_cmp_eq_u32 s47, s65", "s_cselect_b32 s53, 1, s53"])
    b.e("s_lshl_b32 s41, s46, 7")
    b.e(f"s_add_u32 s41, s41, {WS_YFL}")
    b.e("s_lshl_b32 s55, s46, 13")
    b.e(f"s_add_u32 s55, s55, {WS_YP}")
    srd_rec(b, 16, 66, 8 << 20, WS_XCH)
    b.e("s_lshl_b32 s24, s2, 2")
    b.e("s_add_u32 s24, s24, s32")
    b.e("s_lshl_b32 s25, s24, 13")
    b.e(f"s_xor_b32 s26, s25, {PX << 13}")
    b.e("s_lshl_b32 s24, s24, 2")
    b.e(f"s_xor_b32 s27, s24, {PX * 4}")
    b.e(f"s_add_u32 s24, s24, {WS_XFL}")
    b.e(f"s_add_u32 s27, s27, {WS_XFL}")
    F2 = float(opt.get('f2', 5)); FD = float(opt.get('f2d', 2.4))
    b0 = Rec()
    ev = [(F2 + j * FD, "s_cmp_lt_u32 s93, 224", f"L_f2{x}") for j, x in enumerate("AB")]
    if C3: ev.append((float(opt.get('c3t', 9.5)), "s_cmp_ge_u32 s2, 128", "L_c31")); ool.append(("L_c31", lambda: col3(1), "L_c31r"))
    for t_, c_, l_ in sorted(ev):
        b0.at(t_); b0.blk([c_, f"s_cbranch_scc1 {l_}", l_ + "r:"])
    H0 = 74
    WN = int(opt.get('f2w', 16))
    for cb in range(4): b.e(f"v_add_u32 v{106+cb}, s35, v{TA+cb}")
    b.e(f"v_and_b32 v2, 1, v{G}")
    b.e("v_lshlrev_b32 v2, 8, v2")
    b.e("v_and_b32 v3, 15, v0")
    b.e("v_lshl_add_u32 v2, v3, 3, v2")
    b.e("v_add_u32 v2, s35, v2")
    b.e("v_and_b32 v4, 1, v0")
    b.e("v_lshlrev_b32 v4, 8, v4")
    b.e("v_add_u32 v4, s35, v4")
    b.e(f"v_lshl_add_u32 v3, v{G}, 3, v4")
    b.e(f"v_lshl_add_u32 v4, v{G}, 4, v4")
    b.e("v_lshlrev_b32 v5, 3, v0")
    b.e(f"v_add_u32 v6, {SPARE + 2048}, v5")
    b.e("v_mov_b32 v7, 1")
    b.e("s_lshl_b32 s4, s39, 4")
    b.e("s_add_u32 s4, s4, s37")
    b.e("s_lshl_b32 s4, s4, 9")
    b.e(f"s_add_u32 s4, s4, {WS_YP}")
    b.e("s_lshl_b32 s6, s39, 5")
    b.e("s_add_u32 s6, s6, s37")
    b.e("s_lshl_b32 s6, s6, 2")
    b.e(f"s_add_u32 s6, s6, {WS_YFL}")
    b.blk(["s_cmp_eq_u32 s32, 0", "s_cselect_b32 s4, s4, s64", "s_cselect_b32 s6, s6, s64"])
    b.blk(["s_cmp_lt_u32 s93, 224", f"s_cselect_b32 s4, s4, {BIG}", f"s_cselect_b32 s6, s6, {BIG}"])
    b.at(F2 + 2 * FD)
    b.e(f"s_waitcnt vmcnt({WN})")
    b.items.append(('fn', lambda: k.use('wd') is None, None))
    for j in range(1, 8):
        for r in range(4): b.e(f"v_add_f32 v{H0+r}, v{H0+r}, v{H0+4*j+r}")
    for cb in range(4):
        for rd in range(2):
            b.e(f"ds_read_b64_tr_b16 {V(90 + 4*cb + 2*rd, 2)}, v{106+cb} offset:{rd*2048}", tag='d0')
    for r in range(0, 4, 2): rbf2(b, H0 + r, H0 + r + 1, 8)
    for r in range(4): b.e(f"v_mov_b32 v{78+r}, v{H0+r}")
    for r in range(4): b.e(f"v_permlane32_swap_b32 v{78+r}, v{H0+r}")
    silu_n(b, [78 + r for r in range(4)], [82 + r for r in range(4)])
    for r in range(0, 4, 2): rbf2(b, 78 + r, 79 + r, 8)
    for r in range(4): b.e(f"v_mul_f32 v{H0+r}, v{H0+r}, v{78+r}")
    for r in range(2): b.e(f"v_cvt_pk_bf16_f32 v{8+r}, v{H0+2*r}, v{H0+2*r+1}")
    b.e("ds_write_b64 v2, v[8:9]")
    for q in range(2):
        for rd in range(2):
            b.e(f"ds_read_b64 {V(H0 + 4*q + 2*rd, 2)}, v3 offset:{q*64 + rd*32}", tag='hf')
    b.items.append(('skip', 2, None))
    b.wait_ds('hf')
    for half in range(2):
        for c2 in range(2):
            cb = 2 * half + c2
            b.blk([mfma(V(82 + 4 * c2, 4), V(90 + 4 * cb, 4), V(H0, 4), "0")])
        for c2 in range(2):
            cb = 2 * half + c2
            for rd in range(2):
                b.e(f"ds_read_b64_tr_b16 {V(90 + 4*cb + 2*rd, 2)}, v{106+cb} offset:{4096 + rd*2048}", tag=f'd1{half}')
        b.items.append(('skip', 2, None))
        b.wait_ds(f'd1{half}')
        for c2 in range(2):
            b.blk([mfma(V(82 + 4 * c2, 4), V(90 + 4 * (2 * half + c2), 4), V(H0 + 4, 4), V(82 + 4 * c2, 4))])
        b.items.append(('skip', 1, None))
        for c2 in range(2):
            b.e(f"ds_write_b128 v4, {V(82 + 4*c2, 4)} offset:{2048 + (2*half + c2)*64}", tag='yw')
        b.items.append(('skip', 2, None))
        b.wait_ds('yw')
    b.items.append(('nextbar', None, None))
    for w in range(4): b.e(f"ds_read_b64 {V(74+2*w,2)}, v6 offset:{w*8192}", tag='yr')
    b.items.append(('skip', 2, None))
    b.wait_ds('yr')
    for r in range(2):
        b.e(f"v_add_f32 v{74+r}, v{74+r}, v{76+r}"); b.e(f"v_add_f32 v{78+r}, v{78+r}, v{80+r}")
    for r in range(2): b.e(f"v_add_f32 v{74+r}, v{74+r}, v{78+r}")
    b.e("buffer_store_dwordx2 v[74:75], v5, s[20:23], s4 offen sc1", tag='yp')
    b.items.append(('log', 'y partial stored', None))
    b.items.append(('rel', float(opt.get('f2e', 2.0)), None))
    b.wait_vm('yp')
    b.blk(["s_mov_b64 exec, 1", f"buffer_store_dword v7, v{VZ}, s[20:23], s6 offen sc1", "s_mov_b64 exec, -1"])
    b.items.append(('log', 'y flag', None))
    for p in range(GE + GM, 4): gates(b, p)
    b.items.append(('log', 'gates done', None))
    PS = float(opt.get('k3_poll', 25.5))
    b.at(PS + 4.0)
    b.blk(["s_cmp_lg_u32 s40, 0", "s_cbranch_scc1 L_yC", "L_yCr:"])
    b0.at(PS)
    b0.blk(["s_cmp_lg_u32 s53, 0", "s_cbranch_scc1 L_yA", "L_yAr:"])
    b0.at(PS + 2.2)
    b0.blk(["s_cmp_lg_u32 s53, 0", "s_cbranch_scc1 L_yB", "L_yBr:"])
    b0.at(SP + 0.15)
    b0.e(f"v_add_u32 v10, 4096, v{VC}")
    for j in range(8):
        b0.e(f"buffer_store_dwordx4 {V(ACC(1, 0, 0) + 4*j, 4)}, v{VC if j < 4 else 10}, s[16:19], s26 offen offset:{(j & 3)*1024} sc1", tag='xs')
    b0.e("v_mov_b32 v16, 1")
    b0.at(SP + float(opt.get('xf', 3.2)))
    b0.wait_vm('xs')
    b0.blk(["s_mov_b64 exec, 1", f"buffer_store_dword v16, v{VZ}, s[20:23], s27 offen sc1", "s_mov_b64 exec, -1"])
    b0.at(SP + float(opt.get('xpl', 4.6)))
    b0.e(f"buffer_load_dword v17, v{VZ}, s[20:23], s24 offen sc1", tag='xp')
    b0.at(SP + float(opt.get('xck', 5.8)))
    b0.wait_vm('xp')
    b0.blk(["v_cmp_ne_u32 vcc, 1, v17", "s_mov_b32 s33, 0", "s_cbranch_vccnz L_xno"] +
           [(f"buffer_load_dwordx4 {V(XI + 4*j, 4)}, v{VC if j < 4 else 10}, s[16:19], s25 offen offset:{(j & 3)*1024} sc1", '!') for j in range(8)] +
           ["s_mov_b32 s33, 1", "L_xno:"])

    grp_ = []
    for it in b0.items:
        if it[0] == 'at': grp_.append([])
        grp_[-1].append(it)
    b0.items = [it for g_ in sorted(grp_, key=lambda x: x[0][1]) for it in g_]
    k.wait_vm('w0')
    k.use('hps')
    k.e("s_barrier")
    for cb in range(2):
        for u in range(4):
            for s in wread(u)[cb]: k.e(s, tag=f'f0_{cb}')
    BS = int(opt.get('k3_bs', 3))
    wnext = WE
    VQ = int(opt.get('vq', 8)); cend = None
    assert WE >= WDI
    for st in range(NS):
        k.stamp(SO and st % 4 == 0)
        vm = []
        for _ in range(int(opt.get('wq', 2)) if cend is not None else 1):
            if wnext < NS and wnext <= st + (6 if cend is not None else WDI):
                vm += [(t, s, f'w{wnext}') for t, s in w_ops(wnext)]; wnext += 1
        nv = sum(1 for x in vm if x[0] == 'g')
        while cq and free_st(cq[0][0]) <= st and (nv < VQ or need_st(cq[0][0]) <= st + CDI):
            n, rb = cq.pop(0); nv += 1
            vm += [(t, s, f"{'a' if rb else 'b'}{n}") for t, s in c_ops(n, rb)]
        if not cq and cend is None: cend = st + 1
        g = {}; gt = {}; scal = {}
        for cb in range(4):
            s2, c2 = (st, cb + 2) if cb < 2 else (st + 1, cb - 2)
            if s2 < NS:
                for q in range(4):
                    g[8 * cb + 2 * q] = wread(4 * s2 + q)[c2]; gt[8 * cb + 2 * q] = f'f{s2}_{c2}'
        free = [x for x in range(32) if x not in g]
        ng = sum(1 for x in vm if x[0] == 'g')
        pick = [free[(2 * j + 1) * len(free) // (2 * ng)] for j in range(ng)] if ng else []
        j = 0
        for t, s, tg in vm:
            if t == 'g': g[pick[j]] = [s]; gt[pick[j]] = tg; j += 1
            elif t == 's': scal.setdefault(pick[j] - 1, []).append(s)
            else: g[pick[j - 1]].append(s)
        seq = [(4 * st + q, cb, rb) for cb in range(4) for rb in range(2) for q in range(4)]
        for m, (u, cb, rb) in enumerate(seq):
            if True:
                if True:
                    n, side = units[u]
                    if m == 0: k.wait_vm(f'a{units[u + 3][0]}'); k.wait_vm(f'b{units[u + 3][0]}')
                    k.wait_ds(f'f{st}_{cb}')
                    d = V(ACC(side, rb, cb), 4)
                    k.e(mfma(d, V(WF(u, cb), 4), A(CF(n, rb), 4), "0" if n == 0 else d))
                    if m == 12 and st + 1 < NS: k.wait_vm(f'w{st+1}')
                    if m == 14 and st + 1 < NS:
                        k.e("s_barrier")
                        if b.items and b.items[0][0] == 'nextbar': b.items.pop(0)
                    if m % 8 == 4 and m != 12 or m == 10:
                        k.wait_ds(f'f{st}_{cb+1}' if cb < 3 else f'f{st+1}_0')
                    if m == 30 and st + 1 < NS: k.wait_vm(f'a{units[4 * st + 7][0]}')
                    for s in scal.get(m, []): k.e(s)
                    if m in g:
                        for s in g[m]: k.e(s, tag=gt.get(m))
                        if int(opt.get('k3_ds', 1)) and st < SP - CDI and g[m][0].startswith('ds_') and b.items and b.items[0][0] == 'i' and b.cost(b.items[0]) == 1 \
                                and b.items[0][1].startswith('v_'):
                            b.fill(k, st + m / 32.0, int(opt.get('k3_ds', 1)))
                    else:
                        nl = k.ni
                        b0.fill(k, st + m / 32.0, 2)
                        if k.ni == nl: b.fill(k, st + m / 32.0, BS if st < SP - CDI else 2)
    print("phase4 items left", len(b.items), len(b0.items), "ctx loads end at stage", cend)
    b0.drain(k); b.drain(k)
    k.stamp(ST or SO)
    k.e("s_cmp_lg_u32 s53, s40")
    k.e("s_cbranch_scc1 L_ysl")
    k.label("L_yslr")
    k.e(f"v_and_b32 v{T1}, 15, v0")
    k.e(f"v_lshlrev_b32 v74, 8, v{T1}")
    k.e("v_add_u32 v74, s35, v74")
    k.e(f"v_xor_b32 v{T1}, v{T1}, v{G}")
    k.e(f"v_lshl_add_u32 v74, v{T1}, 4, v74")
    for cb in range(1, 4): k.e(f"v_xor_b32 v{74+cb}, {64*cb}, v74")
    k.e(f"v_lshlrev_b32 v{T2}, 1, v{L7}")
    k.e(f"v_xor_b32 v{T1}, v{L3}, v{T2}")
    k.e(f"v_lshlrev_b32 v12, 8, v{L3}")
    k.e("v_add_u32 v12, s35, v12")
    k.e(f"v_lshl_add_u32 v12, v{T1}, 4, v12")
    k.e("v_xor_b32 v13, 16, v12")
    k.e("v_xor_b32 v14, 128, v12")
    k.e("v_xor_b32 v15, 144, v12")
    k.e("s_cmp_eq_u32 s33, 0")
    k.e("s_cbranch_scc1 L_spinX")
    k.label("L_spinXr")
    def spinX():
        poll_loop("L_spinXl", "s24", VZ, 17, 1)
        for j in range(8):
            k.e(f"buffer_load_dwordx4 {V(XI + 4*j, 4)}, v{VC if j < 4 else 10}, s[16:19], s25 offen offset:{(j & 3)*1024} sc1")
    ool.append(("L_spinX", spinX, "L_spinXr"))
    XU = 80
    for p in range(4):
        for d in range(4):
            k.e(f"v_lshlrev_b32 v{XU+8*p+2*d}, 16, v{XP+4*p+d}")
            k.e(f"v_and_b32 v{XU+8*p+2*d+1}, 0xffff0000, v{XP+4*p+d}")
    k.e("s_waitcnt vmcnt(0)")
    for j in range(8):
        a = ACC(0, 0, 0) + 4 * j
        for e_ in (0, 2): k.e(f"v_pk_add_f32 {V(a+e_,2)}, {V(a+e_,2)}, {V(XI+4*j+e_,2)}")
        k.e(f"ds_write_b128 v{74 + (j & 3)}, {V(a,4)} offset:{(j >> 2)*4096}")
    for p in range(4):
        for h in range(2):
            k.e(f"ds_read_b128 {V(192 + 8*p + 4*h, 4)}, v{12 + h + 2*(p & 1)} offset:{p*2048}", tag=f'r{p}')
    for p in range(4):
        b_ = 192 + 8 * p; t_ = 224 + 4 * p
        k.wait_ds(f'r{p}')
        for d in range(4): rbf2(k, b_ + 2*d, b_ + 2*d + 1, t_ + d)
        for e_ in range(0, 8, 2): k.e(f"v_pk_mul_f32 {V(b_+e_,2)}, {V(b_+e_,2)}, {V(GT+8*p+e_,2)}")
        for d in range(4): rbf2(k, b_ + 2*d, b_ + 2*d + 1, t_ + d)
        for e_ in range(0, 8, 2): k.e(f"v_pk_add_f32 {V(b_+e_,2)}, {V(b_+e_,2)}, {V(XU+8*p+e_,2)}")
        for d in range(4): k.e(f"v_cvt_pk_bf16_f32 v{t_+d}, v{b_+2*d}, v{b_+2*d+1}")
        k.e(f"buffer_store_dwordx4 {V(t_,4)}, v{VO}, s[68:71], s36 offen{opt.get('out_st', ' sc1')}")
        if p == 1:
            k.e("s_sub_u32 s3, s65, s45")
            k.e("s_lshl_b32 s3, s3, 15")
            k.e("s_add_u32 s36, s36, s3")
            k.e("s_sub_u32 s36, s36, 16384")
        elif p < 3: k.e("s_add_u32 s36, s36, 16384")
    k.stamp(ST or SA)

    def f2A():
        k.e("s_lshr_b32 s5, s54, 1")
        k.e("s_lshl_b32 s5, s5, 5")
        k.e(f"s_add_u32 s5, s5, {WS_HFL}")
        k.e(f"buffer_load_dword v{T2}, v{VF}, s[20:23], s5 offen sc1")
    def f2B():
        k.e(f"s_waitcnt vmcnt({WN})")
        k.e(f"v_cmp_ne_u32 vcc, 1, v{T2}")
        k.e("s_cbranch_vccz L_f2lx")
        poll_loop("L_f2l", "s5", VF, T2)
        k.e("s_lshl_b32 s3, s54, 8")
        k.e(f"s_add_u32 s3, s3, {WS_HP}")
        k.e(f"v_mul_u32_u24 v{T1}, 14336, v{G}")
        k.e(f"v_and_b32 v{T2}, 15, v0")
        k.e(f"v_lshl_add_u32 v{T1}, v{T2}, 4, v{T1}")
        for j in range(8):
            k.e(f"buffer_load_dwordx4 {V(H0 + 4*j, 4)}, v{T1}, s[20:23], s3 offen sc1")
            if j < 7: k.e(f"s_add_u32 s3, s3, {4*14336}")
    for nm, fn in (("A", f2A), ("B", f2B)): ool.append((f"L_f2{nm}", fn, f"L_f2{nm}r"))
    YR = lambda t: 76 + 18 * t
    def own_tok(t, skip):
        k.e(f"s_lshr_b32 s3, s{42+t}, 4")
        k.e("s_cmp_eq_u32 s3, s45")
        k.e("s_cselect_b32 s7, 0, 4")
        k.e("s_cmp_eq_u32 s3, s65")
        k.e("s_cselect_b32 s7, 2, s7")
        k.e("s_cmp_eq_u32 s7, 4")
        k.e(f"s_cbranch_scc1 {skip}")
    def yloads():
        k.e(f"v_lshlrev_b32 v{T1}, 2, v0")
        k.e(f"v_lshlrev_b32 v{T2}, 1, v0")
        for t in range(2):
            L = k.newlabel("yl")
            own_tok(t, L)
            k.e(f"s_add_u32 s3, s55, {t*256}")
            k.e("s_add_u32 s7, s3, 4096")
            for j in range(14):
                k.e(f"buffer_load_dword v{YR(t)+j}, v{T1}, s[20:23], s{3 if j < 8 else 7} offen offset:{(j & 7)*512} sc1")
            k.e(f"s_lshl_b32 s3, s{42+t}, 11")
            k.e("s_lshl_b32 s7, s46, 7")
            k.e("s_add_u32 s3, s3, s7")
            k.e(f"buffer_load_ushort v{YR(t)+14}, v{T2}, s[56:59], s3 offen")
            k.e(f"s_lshl_b32 s3, s{42+t}, 3")
            k.e(f"s_add_u32 s3, s3, {WS_STATS}")
            k.e(f"buffer_load_dwordx2 {V(YR(t)+16,2)}, v{VZ}, s[20:23], s3 offen sc1")
            k.label(L)
    def rb1(r):
        k.e(f"v_cvt_pk_bf16_f32 v{r}, v{r}, v{r}")
        k.e(f"v_lshlrev_b32 v{r}, 16, v{r}")
    def selblock():
        for t in range(2):
            L = k.newlabel("ys")
            y, x = YR(t), YR(t) + 14
            own_tok(t, L)
            for j in range(2, 14, 2): k.e(f"v_pk_add_f32 {V(y,2)}, {V(y,2)}, {V(y+j,2)}")
            k.e(f"v_add_f32 v{y}, v{y}, v{y+1}")
            k.e(f"v_lshlrev_b32 v{x}, 16, v{x}")
            k.e(f"v_sub_f32 v{x}, v{x}, v{x+2}")
            rb1(y); rb1(x)
            k.e(f"v_mul_f32 v{y}, s{100+t}, v{y}")
            k.e(f"v_mul_f32 v{x}, v{x}, v{x+3}")
            rb1(y); rb1(x)
            k.e(f"v_add_f32 v{x}, v{x}, v{y}")
            rb1(x)
            silu_n(k, [x], [y])
            rb1(x)
            k.e(f"v_lshlrev_b32 v{T1}, 2, v0")
            k.e(f"v_add_u32 v{T1}, s35, v{T1}")
            k.e(f"v_lshlrev_b32 v{T2}, 5, v{L7}")
            k.e(f"v_add_u32 v{T2}, s35, v{T2}")
            k.e("s_waitcnt lgkmcnt(0)")
            k.e(f"ds_write_b32 v{T1}, v{x}")
            k.e(f"s_and_b32 s3, s{42+t}, 7")
            k.e("s_lshl_b32 s3, s3, 3")
            k.e("s_lshl_b64 s[4:5], 0xff, s3")
            k.e(f"s_bfe_u32 s3, s{42+t}, 0x10003")
            k.e("s_add_u32 s3, s3, s7")
            k.e("s_mov_b64 exec, s[4:5]")
            for p in range(4):
                L2 = k.newlabel("yp")
                k.e(f"s_cmp_lg_u32 s3, {p}")
                k.e(f"s_cbranch_scc1 {L2}")
                k.e(f"ds_read_b64 {V(GT+8*p,2)}, v{T2}")
                k.e(f"ds_read_b64 {V(GT+8*p+2,2)}, v{T2} offset:8")
                k.e(f"ds_read_b64 {V(GT+8*p+4,2)}, v{T2} offset:16")
                k.e(f"ds_read_b64 {V(GT+8*p+6,2)}, v{T2} offset:24")
                k.label(L2)
            k.e("s_mov_b64 exec, -1")
            k.e("s_waitcnt lgkmcnt(0)")
            k.label(L)
    def yA():
        k.e(f"v_min_u32 v{VF}, 13, v0")
        k.e(f"v_lshlrev_b32 v{VF}, 2, v{VF}")
        k.e(f"buffer_load_dword v74, v{VF}, s[20:23], s41 offen sc1")
    def yB():
        k.e(f"s_waitcnt vmcnt({opt.get('ybw', 1)})")
        k.e("v_cmp_ne_u32 vcc, 1, v74")
        k.e("s_cbranch_vccnz L_yBr")
        k.e("s_mov_b32 s40, 1")
        yloads()
    def yC():
        k.e(f"s_waitcnt vmcnt({opt.get('ycw', 1)})")
        selblock()
    def ysl():
        poll_loop("L_ysll", "s41", VF, T1)
        yloads()
        k.e("s_waitcnt vmcnt(0)")
        selblock()
    ool.append(("L_yA", yA, "L_yAr")); ool.append(("L_yB", yB, "L_yBr")); ool.append(("L_yC", yC, "L_yCr")); ool.append(("L_ysl", ysl, "L_yslr"))
```

```python
from fw import *
from layout import *
import p4, p4b, p4c, p4d
KNAME = 'recurrent_scan__compressed_kv_cla__moe_arch_mod__prompt_kernel'

K12_LDS = 163840
QSCALE = 0x3e0293ee
BIG = 0x7ff00000

def gen_k12(opt):
    k = Asm(KNAME)
    k.short = "f"
    P4 = {'0': p4, '1': p4b, '2': p4c, '3': p4d}[opt.get('s2', '2')]
    p4_ptr_loads, p4_setup, phase4 = P4.p4_ptr_loads, P4.p4_setup, P4.phase4
    ST = opt.get('stamp') == '1'
    S1 = opt.get('stamp') == 'p1'
    S2 = opt.get('stamp') == 'p2'
    SA = opt.get('stamp') == 'a'
    S0 = opt.get('stamp') == 'p0'
    w_ld, a_ld, x_ld = opt.get('w_ld', ''), opt.get('a_ld', ''), opt.get('x_ld', '')
    wq_ld, kv_ld, ffn_ld = opt.get('wq_ld', ''), opt.get('kv_ld', ' sc1'), opt.get('ffn_ld', '')
    MAP = int(opt.get('map', 4))
    WOT = opt.get('wot', '0') == '1'
    TK = opt.get('tk', '0') == '1'
    VOA, VOW, AD, PFO = 2, 6, 10, 47
    AA = [[10, 11], [12, 13]]
    WA = [list(range(16, 24)), [14, 15] + list(range(24, 30))]
    FA = lambda it, ks: 224 + (it % 4) * 8 + 4 * ks
    FW = lambda buf, jd, ks: 64 * buf + 8 * jd + 4 * ks
    def frag_of(isV, it, jd):
        return ((it >> 1) * 8 + jd, it & 1) if isV else (it * 4 + (jd >> 1), jd & 1)
    SRC = lambda n: ('v', 48 + 8 * n) if n < 26 else ('a', 128 + 8 * (n - 26))
    def acc(isV, it, jd):
        n, h = frag_of(isV, it, jd)
        p, r = SRC(n)
        return R(p, r + 4 * h, 4)
    PK = lambda n: 24 + 4 * (n if n < 26 else n - 26)
    VX, VY, VDMA, VRA, VRB, ORR, T0 = 2, 3, 4, 5, 6, 7, 1
    WV, XV, TA = 8, 10, 16
    ET = 8
    ONES, NINF = 16, 20
    NEGM, LS, PB, SB = 32, 48, 64, 128
    P = lambda par, qb, ks: PB + 32 * par + (qb * 2 + ks) * 4
    Sr = lambda par, qb, kb: SB + 64 * par + (qb * 4 + kb) * 4
    O = lambda qb, db: (qb * 8 + db) * 4
    Q = lambda qb, s: 128 + (qb * 4 + s) * 4
    FR = lambda grp, j: 192 + 16 * grp + 4 * j
    QA = lambda db, qb: 128 + (qb * 8 + db) * 4
    XR = lambda kk, qb: ((kk % 8) * 4 + qb) * 4
    P2C = opt.get('p2ch', '1') == '1'
    WF = lambda ks, db: 192 + db * 8 + ks * 4 if P2C else 192 + ks * 32 + db * 4

    k.e("s_cmp_ge_u32 s2, 256")
    k.e("s_cbranch_scc1 L_k2_end")
    k.stamp(ST or S0)
    k.e("s_load_dwordx4 s[4:7], s[0:1], 0")
    k.e("s_load_dwordx2 s[44:45], s[0:1], 56")
    k.e("s_load_dwordx4 s[40:43], s[0:1], 24")
    k.e("s_load_dwordx4 s[64:67], s[0:1], 96")
    k.e("v_lshrrev_b32 v1, 6, v0")
    k.e("v_and_b32 v0, 63, v0")
    k.e("v_readfirstlane_b32 s32, v1")
    def emit(lst, o=None):
        for x in lst:
            if x.endswith(':'): k.label(x[:-1])
            else: k.e(x, tag='cpf')
    CPF = opt.get('cpf', '123456')
    if '1' in CPF: emit(code_prefetch(KNAME, "L_k2_fin", 32, 68, 120, 124))
    k.e("v_lshrrev_b32 v33, 5, v0")
    k.e("v_and_b32 v31, 31, v0")
    k.e("v_lshlrev_b32 v36, 4, v31")
    k.e("v_lshl_add_u32 v35, v33, 11, v36")
    k.e("s_lshl_b32 s36, s2, 14")
    k.e("s_lshl_b32 s37, s32, 12")
    k.e("s_add_u32 s36, s36, s37")
    k.e("s_mov_b32 s18, 4194304")
    k.e("s_mov_b32 s19, 0x20000")
    k.e("s_bfe_u32 s33, s2, 0x30003")
    k.e("s_lshr_b32 s35, s2, 7")
    k.e("s_bfe_u32 s3, s2, 0x10006")
    k.e("s_and_b32 s34, s2, 7")
    k.e("s_lshl_b32 s34, s34, 1")
    k.e("s_add_u32 s34, s34, s3")
    k.e("s_waitcnt lgkmcnt(0)")
    k.stamp(S0)
    k.e("s_mov_b32 s16, s4")
    k.e("s_and_b32 s17, s5, 0xffff")
    XP, WR, XF = 48, 64, 80
    for i in range(4):
        k.e(f"buffer_load_dwordx4 {V(XP+4*i,4)}, v35, s[16:19], s36 offen offset:{i*512}{x_ld}", tag='x')
    k.e("s_cmp_eq_u32 s35, 0")
    k.e("s_cselect_b32 s40, s40, s42")
    k.e("s_cselect_b32 s41, s41, s43")
    k.e("s_lshl_b32 s3, s34, 9")
    k.srd(12, 40, 0, "s3")
    k.e("s_sub_u32 s14, 4194304, s3")
    k.e("s_lshl_b32 s3, s33, 18")
    k.srd(8, 6, 262144, "s3")
    KX = int(opt.get('kx', 7))
    k.e(f"s_and_b32 s58, s2, {KX}")
    def dma_ops(buf):
        ops = []
        for (base, vo, so, srd, fl) in ((57, VOW, 52, 12, w_ld), (56, VOA, 48, 8, a_ld)):
            for hi in range(2):
                ops.append(('s', f"s_add_u32 m0, s{base}, {buf*65536 + hi*4096}"))
                for lo in range(4):
                    ops.append(('g', f"buffer_load_dwordx4 v{vo + (lo&1) + 2*hi}, {S(srd,4)}, s{so+lo} offen offset:{lo*1024}{fl} lds"))
        return ops
    def adv_ops(j):
        x = j ^ (j + 1)
        return [f"v_xor_b32 v{VOW+q}, {x << 19}, v{VOW+q}" for q in range(4)] + [f"v_xor_b32 v{VOA+q}, {x << 7}, v{VOA+q}" for q in range(4)]
    PF0 = int(opt.get('pf0', 2))
    pfc = [PF0]
    def pf_ops():
        j = pfc[0]; pfc[0] += 1
        return [f"buffer_load_dword v1, v{PFO}, s[60:63], 0 offen{opt.get('pf_ld', '')}",
                f"s_mul_i32 vcc_lo, s59, {(j ^ (j + 1)) & 7}", f"v_xor_b32 v{PFO}, vcc_lo, v{PFO}"]
    def setup_P():
        k.e("s_cmp_lt_u32 s32, 2")
        for j in range(3): k.e(f"s_cselect_b32 s{60+j}, s{8+j}, s{12+j}")
        k.e("s_mov_b32 s63, 0x20000")
        k.e(f"s_mov_b32 s59, {64*8192}")
        k.e("s_cselect_b32 s59, 128, s59")
        k.e("s_cselect_b64 vcc, -1, 0")
        k.e("s_cselect_b32 s38, 32, 16")
        k.e("s_lshr_b32 s3, s2, 6")
        k.e("s_cmp_lt_u32 s32, 2")
        k.e("s_cselect_b32 s3, s3, s33")
        k.e("s_lshl_b32 s3, s3, 1")
        k.e("s_and_b32 s39, s32, 1")
        k.e("s_add_u32 s3, s3, s39")
        k.e("s_lshl_b32 s3, s3, 15")
        k.e(f"s_xor_b32 s39, s58, {PF0}")
        k.e("s_mul_i32 s39, s39, s59")
        k.e("s_add_u32 s3, s3, s39")
        k.e("v_lshlrev_b32 v37, 10, v0")
        k.e("v_lshrrev_b32 v38, 2, v0")
        k.e("v_lshlrev_b32 v38, 13, v38")
        k.e("v_and_b32 v39, 3, v0")
        k.e("v_lshl_add_u32 v38, v39, 7, v38")
        k.e(f"v_cndmask_b32 v{PFO}, v38, v37, vcc")
        k.e(f"v_add_u32 v{PFO}, s3, v{PFO}")
        k.e("v_cmp_gt_u32 vcc, s38, v0")
        k.e(f"v_mov_b32 v37, {BIG}")
        k.e(f"v_cndmask_b32 v{PFO}, v37, v{PFO}, vcc")
    def setup_W():
        for j in range(4): k.e(f"s_mov_b32 s{52+j}, {j*15360}")
        k.e("s_lshl_b32 s57, s32, 13")
        k.e("s_add_u32 s56, s57, 32768")
        k.e("s_lshl_b32 s3, s58, 2")
        k.e("s_add_u32 s3, s3, s32")
        k.e("s_lshl_b32 s3, s3, 4")
        k.e("v_add_u32 v30, s3, v33")
        k.e("v_lshlrev_b32 v30, 13, v30")
        k.e("v_lshlrev_b32 v34, 5, v33")
        k.e("v_xor_b32 v34, v34, v36")
        k.e(f"v_add_u32 v{VOW}, v34, v30")
        k.e(f"v_xor_b32 v{VOW+1}, 64, v{VOW}")
        k.e(f"v_xor_b32 v{VOW+2}, {8*8192 + 128}, v{VOW}")
        k.e(f"v_xor_b32 v{VOW+3}, {8*8192 + 192}, v{VOW}")
    def setup_A():
        for j in range(4): k.e(f"s_mov_b32 s{48+j}, {j*7168}")
        k.e("v_lshrrev_b32 v30, 3, v0")
        k.e("v_lshlrev_b32 v30, 10, v30")
        k.e("s_lshl_b32 s3, s32, 16")
        k.e("s_lshl_b32 s39, s58, 7")
        k.e("s_add_u32 s3, s3, s39")
        k.e("v_and_b32 v31, 7, v0")
        k.e("v_lshrrev_b32 v32, 4, v0")
        k.e("v_xor_b32 v31, v31, v32")
        k.e("v_lshl_add_u32 v30, v31, 4, v30")
        k.e(f"v_add_u32 v{VOA}, s3, v30")
        k.e(f"v_xor_b32 v{VOA+1}, 64, v{VOA}")
        k.e(f"v_xor_b32 v{VOA+2}, 32768, v{VOA}")
        k.e(f"v_xor_b32 v{VOA+3}, {32768 + 64}, v{VOA}")
    def setup_D():
        k.srd(20, 66, 8 << 20)
        k.srd(24, 66, 32 * KV_HEAD, WS_KV)
        k.e("v_lshrrev_b32 v32, 4, v0")
        k.e("v_and_b32 v30, 15, v0")
        k.e("s_lshr_b32 s3, s32, 1")
        k.e("s_lshl_b32 s3, s3, 14")
        k.e("s_add_u32 s3, s3, 32768")
        k.e("v_lshlrev_b32 v31, 7, v30")
        k.e("v_add_u32 v31, s3, v31")
        k.e("v_lshrrev_b32 v34, 1, v30")
        k.e("v_xor_b32 v34, v34, v32")
        k.e(f"v_lshl_add_u32 v{AA[0][0]}, v34, 4, v31")
        k.e(f"v_xor_b32 v{AA[0][1]}, 64, v{AA[0][0]}")
        k.e("v_lshrrev_b32 v30, 2, v30")
        k.e("v_lshl_add_u32 v31, v32, 3, v30")
        k.e("v_lshlrev_b32 v31, 9, v31")
        k.e("v_and_b32 v34, 3, v0")
        k.e("v_lshl_add_u32 v31, v34, 3, v31")
        k.e("s_and_b32 s3, s32, 1")
        k.e("s_lshl_b32 s3, s3, 8")
        k.e("v_add_u32 v31, s3, v31")
        k.e("v_and_b32 v34, 1, v32")
        k.e("v_lshl_add_u32 v30, v34, 2, v30")
        k.e(f"v_lshl_add_u32 v{WA[0][0]}, v30, 5, v31")
        for jj in range(1, 8): k.e(f"v_xor_b32 v{WA[0][jj]}, {jj*32}, v{WA[0][0]}")
        for x0, x1 in zip(AA[0] + WA[0], AA[1] + WA[1]): k.e(f"v_add_u32 v{x1}, 65536, v{x0}")
    def act(seq):
        for x in seq.split(','):
            if not x: continue
            if x in 'PWAD': {'P': setup_P, 'W': setup_W, 'A': setup_A, 'D': setup_D}[x]()
            elif x == 'p':
                for s in pf_ops(): k.e(s, tag='pf')
            elif x == 'r':
                k.srd(28, 44, 2048)
                for i in range(4):
                    k.e(f"buffer_load_dwordx4 {V(WR+4*i,4)}, v36, s[28:31], 0 offen offset:{i*512}", tag='wr')
            else:
                st = int(x[1]); h = 0 if x[0] == 'w' else 1
                for t, s in dma_ops(st)[10*h:10*h+10]: k.e(s, tag=x + 'd')
                for s in adv_ops(st)[4*h:4*h+4]: k.e(s)
    PRO = opt.get('pro', 'W,w0,A,P,D,r/a0///').split('/')
    act(PRO[0])
    k.stamp(S0)
    def sum32(v, t):
        for m in ["quad_perm:[1,0,3,2]", "quad_perm:[2,3,0,1]", "row_half_mirror", "row_mirror"]:
            k.e(f"v_add_f32_dpp v{v}, v{v}, v{v} {m} row_mask:0xf bank_mask:0xf")
        k.e(f"v_mov_b32 v{t}, v{v}")
        k.e(f"v_permlane16_swap_b32 v{t}, v{v}")
        k.e(f"v_add_f32 v{v}, v{v}, v{t}")
    k.wait_vm('x')
    k.stamp(S0)
    for i in range(16):
        k.e(f"v_lshlrev_b32 v{XF+2*i}, 16, v{XP+i}")
        k.e(f"v_and_b32 v{XF+2*i+1}, 0xffff0000, v{XP+i}")
    k.e(f"v_pk_add_f32 v[40:41], {V(XF,2)}, {V(XF+2,2)}")
    k.e(f"v_pk_add_f32 v[42:43], {V(XF+4,2)}, {V(XF+6,2)}")
    for i in range(4, 16):
        d = 40 + 2 * (i & 1)
        k.e(f"v_pk_add_f32 {V(d,2)}, {V(d,2)}, {V(XF+2*i,2)}")
    k.e("v_pk_add_f32 v[40:41], v[40:41], v[42:43]")
    k.e("v_add_f32 v38, v40, v41")
    sum32(38, 37)
    k.stamp(S0)
    act(PRO[1])
    k.e("v_mul_f32 v38, 0xba800000, v38")
    k.e("v_mov_b32 v39, v38")
    T = 112
    for i in range(16):
        k.e(f"v_pk_add_f32 {V(T+2*(i&3),2)}, {V(XF+2*i,2)}, v[38:39]")
        d = 40 + 2 * (i & 1)
        if i < 2: k.e(f"v_pk_mul_f32 {V(d,2)}, {V(T+2*(i&3),2)}, {V(T+2*(i&3),2)}")
        else: k.e(f"v_pk_fma_f32 {V(d,2)}, {V(T+2*(i&3),2)}, {V(T+2*(i&3),2)}, {V(d,2)}")
    k.e("v_pk_add_f32 v[40:41], v[40:41], v[42:43]")
    k.e("v_add_f32 v40, v40, v41")
    sum32(40, 37)
    act(PRO[2])
    k.stamp(S0)
    k.e("v_mul_f32 v40, 0x3a800000, v40")
    k.e("v_cvt_pk_bf16_f32 v44, v38, v40")
    k.e("v_lshlrev_b32 v38, 16, v44")
    k.e("v_and_b32 v40, 0xffff0000, v44")
    k.e("v_add_f32 v40, 0x3727c5ac, v40")
    k.e("v_cvt_pk_bf16_f32 v44, v40, v40")
    k.e("v_lshlrev_b32 v40, 16, v44")
    k.e("v_sqrt_f32 v40, v40")
    k.e("v_mov_b32 v39, v38")
    k.e("v_cvt_pk_bf16_f32 v44, v40, v40")
    k.e("v_lshlrev_b32 v44, 16, v44")
    k.e("v_rcp_f32 v40, v44")
    for i in range(16):
        k.e(f"v_pk_add_f32 {V(XF+2*i,2)}, {V(XF+2*i,2)}, v[38:39]")
    k.e("v_fma_f32 v45, -v44, v40, 1.0")
    k.e("v_fma_f32 v40, v45, v40, v40")
    k.e("v_mov_b32 v41, v40")
    for i in range(16):
        k.e(f"v_cvt_pk_bf16_f32 v{XP+i}, v{XF+2*i}, v{XF+2*i+1}")
    for i in range(16):
        k.e(f"v_lshlrev_b32 v{XF+2*i}, 16, v{XP+i}")
        k.e(f"v_and_b32 v{XF+2*i+1}, 0xffff0000, v{XP+i}")
    for i in range(16):
        k.e(f"v_pk_mul_f32 {V(XF+2*i,2)}, {V(XF+2*i,2)}, v[40:41]")
    for i in range(16):
        k.e(f"v_cvt_pk_bf16_f32 v{XP+i}, v{XF+2*i}, v{XF+2*i+1}")
    k.e("s_mul_i32 s3, s32, 4128")
    k.e("s_add_u32 s3, s3, 131072")
    k.e("v_mul_u32_u24 v42, 2064, v33")
    k.e("v_add3_u32 v42, v42, v36, s3")
    for i in range(4):
        k.e(f"ds_write_b128 v42, {V(XP+4*i,4)} offset:{i*512}")
    act(PRO[3])
    k.stamp(S0)
    k.wait_vm('wr')
    k.stamp(S0)
    for i in range(16):
        k.e(f"v_lshlrev_b32 v{XF+2*i}, 16, v{XP+i}")
        k.e(f"v_and_b32 v{XF+2*i+1}, 0xffff0000, v{XP+i}")
        k.e(f"v_lshlrev_b32 v{T+2*(i&3)}, 16, v{WR+i}")
        k.e(f"v_and_b32 v{T+2*(i&3)+1}, 0xffff0000, v{WR+i}")
        d = 42 + 2 * (i & 1)
        if i < 2: k.e(f"v_pk_mul_f32 {V(d,2)}, {V(XF+2*i,2)}, {V(T+2*(i&3),2)}")
        else: k.e(f"v_pk_fma_f32 {V(d,2)}, {V(XF+2*i,2)}, {V(T+2*(i&3),2)}, {V(d,2)}")
    k.e("v_pk_add_f32 v[42:43], v[42:43], v[44:45]")
    k.e("v_add_f32 v45, v42, v43")
    sum32(45, 37)
    k.e("v_cvt_pk_bf16_f32 v45, v45, v45")
    k.e("v_ashrrev_i32 v46, 31, v45")
    k.e("v_or_b32 v46, 0x80000000, v46")
    k.e("v_xor_b32 v45, v45, v46")
    k.e("v_and_b32 v45, 0xffff0000, v45")
    k.e("s_lshr_b32 s3, s36, 11")
    k.e("v_add_u32 v46, s3, v33")
    k.e("v_sub_u32 v44, 0xffff, v46")
    k.e("v_or_b32 v45, v45, v44")
    k.e("v_lshlrev_b32 v44, 2, v46")
    k.e("v_lshlrev_b32 v46, 3, v46")
    k.e("v_xor_b32 v38, 0x80000000, v38")
    k.e("v_mov_b32 v39, v40")
    k.e(f"s_mov_b32 s3, {WS_KEYS}")
    k.e(f"s_mov_b32 s39, {WS_STATS}")
    k.e("s_mov_b32 exec_lo, 1")
    k.e("s_mov_b32 exec_hi, 1")
    k.e("buffer_store_dword v45, v44, s[20:23], s3 offen sc1", tag='ln')
    k.e("buffer_store_dwordx2 v[38:39], v46, s[20:23], s39 offen sc1", tag='ln')
    k.e("s_mov_b64 exec, -1")
    k.e("s_load_dwordx2 s[4:5], s[0:1], 16")
    k.e("s_load_dwordx4 s[40:43], s[0:1], 64")
    k.e("s_load_dwordx2 s[92:93], s[0:1], 40")
    k.e("s_load_dwordx2 s[94:95], s[0:1], 80")
    k.e("s_load_dwordx2 s[100:101], s[0:1], 0")
    act(PRO[4])
    PFN = pfc[0] - 2
    k.srd(28, 64, 256)

    def areads(st, pr):
        return [f"ds_read_b128 {A(FA(it,ks),4)}, v{AA[st & 1][ks]} offset:{it*2048}" for it in (2 * pr, 2 * pr + 1) for ks in range(2)]
    def wfreads(st):
        return [[f"ds_read_b64_tr_b16 {A(FW(st & 1,j,ks)+2*rd,2)}, v{WA[st & 1][j]} offset:{ks*16384+rd*2048}" for rd in range(2)]
                for j in range(8) for ks in range(2)]
    k.stamp(S0)
    k.wait_vm('w0d'); k.wait_vm('a0d')
    k.e("s_waitcnt lgkmcnt(0)")
    k.e("s_barrier")
    k.stamp(ST or S0)
    for s in areads(0, 0): k.e(s, tag='A0_0')
    for n, grp in enumerate(wfreads(0)):
        for s in grp: k.e(s, tag=f'W0_{n // 2}')
    k.e("s_cmp_lg_u32 s35, 0")
    k.e("s_cbranch_scc1 L_k1_vpath")

    def chunk_ops(c):
        kind, j = c
        slot = {'w': j % 4, 'kv': (j + 4) % 8}[kind]
        ops = [('s', f"s_add_u32 m0, s44, {slot * 16384}")]
        if kind == 'w':
            for q in range(4):
                ops.append(('g', f"buffer_load_dwordx4 v{WV + (q >> 1)}, s[8:11], s{48+q} offen offset:{q*1024}{wq_ld} lds"))
            ops.append(('v', f"v_xor_b32 v{WV}, {((j ^ (j + 1)) & 15) << 19}, v{WV}"))
            ops.append(('v', f"v_xor_b32 v{WV+1}, {((j ^ (j + 1)) & 15) << 19}, v{WV+1}"))
        elif kind == 'f':
            for q in range(4):
                ops.append(('g', f"buffer_load_dwordx4 v{12 + (q >> 1) + 2 * (j & 1)}, {S(60 + 8 * (j >> 1), 4)}, s{52+q} offen offset:{q*1024}{ffn_ld} lds"))
        else:
            ops.append(('s', f"s_mov_b32 s7, {j * KV_CH}"))
            for q in range(4):
                ops.append(('g', f"buffer_load_dwordx4 v{VDMA}, s[12:15], s7 offen offset:{q*1024}{kv_ld} lds"))
        return ops
    QX = int(opt.get('qx', -1))
    def xn_ops(kk):
        ops = []
        for qb in range(4):
            so = "s52" if qb & 1 else "s53"
            ops.append(('g', f"buffer_load_dwordx4 {A(XR(kk,qb),4)}, v{XV + (qb >> 1)}, s[20:23], {so} offen offset:{(kk % 2)*1024}{opt.get('xn_ld', ' sc1')}"))
        if kk % 2 == 1 and kk < 31:
            st = kk // 2
            ops.append(('v', f"s_xor_b32 s52, s52, {(st ^ (st + 1)) << 11}"))
            ops.append(('v', "s_add_u32 s53, s52, s58"))
        return ops
    def wreads(kk):
        st = kk // 2
        return [[f"ds_read_b64_tr_b16 {A(WF(ks,db)+2*rd,2)}, v{TA+db} offset:{(st % 4)*16384 + ks*8192 + rd*1024}" for rd in range(2)]
                for db, ks in ([(d, q) for d in range(4 * (kk & 1), 4 * (kk & 1) + 4) for q in range(2)] if P2C else [(d, kk & 1) for d in range(8)])]
    ool = []
    def spin(lab, ret, off, target, vd, vz, sv, sc):
        def fn():
            k.e(f"s_mov_b32 s{sc}, 0x400000")
            k.label(lab + "_l")
            k.e(f"s_sleep {opt.get('slp', 8)}")
            k.e(f"buffer_load_dword v{vd}, v{vz}, s[28:31], {off} offen sc1")
            k.e("s_waitcnt vmcnt(0)")
            k.e(f"v_readfirstlane_b32 s{sv}, v{vd}")
            k.e(f"s_sub_u32 s{sc}, s{sc}, 1")
            k.e(f"s_cmp_eq_u32 s{sc}, 0")
            k.e(f"s_cbranch_scc1 {ret}")
            k.e(f"s_cmp_lt_u32 s{sv}, {target}")
            k.e(f"s_cbranch_scc1 {lab}_l")
        ool.append((lab, fn, ret))
    def srd_rec(b, d, base, nbytes, add=None):
        if add is None:
            b.e(f"s_mov_b32 s{d}, s{base}"); b.e(f"s_and_b32 s{d+1}, s{base+1}, 0xffff")
        else:
            b.blk([f"s_add_u32 s{d}, s{base}, {add}", f"s_addc_u32 s{d+1}, s{base+1}, 0", f"s_and_b32 s{d+1}, s{d+1}, 0xffff"])
        b.e(f"s_mov_b32 s{d+2}, {nbytes}"); b.e(f"s_mov_b32 s{d+3}, 0x20000")

    def phase1_stream(isV):
        b = Rec()
        tg = 'v' if isV else 'k'
        b.e("v_and_b32 v46, 7, v0")
        b.e("v_lshrrev_b32 v1, 3, v0") if False else None
        b.e("v_mul_u32_u24 v30, 2064, v46")
        b.e("v_lshrrev_b32 v31, 3, v0")
        b.e("s_lshl_b32 s3, s32, 9")
        b.e("s_add_u32 s3, s3, 131072")
        b.e("v_lshl_add_u32 v30, v31, 4, v30")
        b.e("v_add_u32 v30, s3, v30")
        b.e("v_lshlrev_b32 v31, 8, v31")
        b.e("v_lshl_add_u32 v46, v46, 4, v31")
        for i in (1, 2, 3, 0):
            b.e(f"ds_read_b128 {V(30+4*i,4)}, v30 offset:{i*128}", tag='xs')
        b.e("s_lshr_b32 s3, s2, 1")
        b.e(f"s_mul_i32 s3, s3, {XN_RB}")
        b.e("s_add_u32 s3, s3, s57")
        b.e("s_and_b32 s39, s2, 1")
        b.e("s_lshl_b32 s39, s39, 7")
        b.e("s_add_u32 s3, s3, s39")
        b.e("s_add_u32 s39, s3, 4096")
        b.at(2)
        for i in range(4):
            b.e(f"buffer_store_dwordx4 {V(30+4*i,4)}, v46, s[20:23], s{3 if i < 2 else 39} offen offset:{(i&1)*2048} sc1", tag='ln')
        b.e("s_lshl_b32 s3, s34, 1")
        b.e("s_and_b32 s36, s32, 1")
        b.e("s_add_u32 s3, s3, s36")
        b.e(f"s_mul_i32 s3, s3, {KV_HEAD}")
        b.e(f"s_mul_i32 s36, s33, {4*KV_TILE}")
        b.e("s_add_u32 s3, s3, s36")
        b.e("s_lshr_b32 s36, s32, 1")
        b.e(f"s_mul_i32 s36, s36, {2*KV_TILE}")
        b.e("s_add_u32 s3, s3, s36")
        b.e(f"s_add_u32 s38, s3, {KV_CH if isV else 0}")
        b.e("s_lshl_b32 s39, s34, 7")
        b.e("s_lshl_b32 s36, s33, 2")
        b.e("s_add_u32 s39, s39, s36")
        b.e(f"s_add_u32 s39, s39, {WS_FLG + (32 if isV else 0)}")
        b.e("v_mov_b32 v30, 1")
        b.e("v_mov_b32 v31, 0")
        b.blk(["s_cmp_eq_u32 s32, 0", f"s_cselect_b32 s39, s39, {BIG}"])
        b.blk(["s_mov_b64 exec, 1", ("buffer_store_dword v31, v31, s[20:23], s39 offen sc1", 'ln'), "s_mov_b64 exec, -1"])
        if MAP == 4:
            b.e("s_and_b32 s33, s2, 7")
            b.e("s_lshl_b32 s33, s33, 2")
            b.e("s_bfe_u32 s3, s2, 0x20003")
            b.e("s_add_u32 s33, s33, s3")
            b.e("s_lshr_b32 s34, s2, 5")
        else:
            b.e("s_and_b32 s33, s2, 6")
            b.e("s_lshl_b32 s33, s33, 2")
            b.e("s_bfe_u32 s3, s2, 0x30003")
            b.e("s_add_u32 s33, s33, s3")
            b.e("s_lshr_b32 s34, s2, 6")
            b.e("s_lshl_b32 s34, s34, 1")
            b.e("s_and_b32 s3, s2, 1")
            b.e("s_add_u32 s34, s34, s3")
        b.e("s_lshl_b32 s64, s34, 7")
        b.e("s_lshl_b32 s3, s33, 2")
        b.e("s_add_u32 s64, s64, s3")
        b.e(f"s_add_u32 s64, s64, {WS_CFL}")
        b.e("s_lshl_b32 s65, s34, 8")
        b.e("s_sub_u32 s65, 1920, s65")
        b.e("v_mul_u32_u24 v32, s65, v0")
        b.blk(["s_cmp_eq_u32 s32, 0", f"s_cselect_b32 s64, s64, {BIG}"])
        b.blk(["s_mov_b64 exec, 3", ("buffer_store_dword v31, v32, s[20:23], s64 offen sc1", 'ln'), "s_mov_b64 exec, -1"])
        b.e("s_lshl_b32 s3, s2, 2")
        b.e(f"s_add_u32 s3, s3, {WS_HFL}")
        b.e("v_lshlrev_b32 v32, 10, v0")
        b.blk(["s_cmp_eq_u32 s32, 0", f"s_cselect_b32 s3, s3, {BIG}"])
        b.blk(["s_mov_b64 exec, 0x1ff", ("buffer_store_dword v31, v32, s[20:23], s3 offen sc1", 'ln'), "s_mov_b64 exec, -1"])
        b.e("s_lshl_b32 s35, s34, 1")
        b.e("s_sub_u32 s36, 32, s35")
        b.e("s_add_u32 s35, s35, 2")
        b.e("s_lshl_b32 s44, s32, 12")
        b.e("s_lshl_b32 s58, s32, 1")
        b.e("s_sub_u32 s58, 7, s58")
        b.e(f"s_mul_i32 s58, s58, {XN_RB}")
        b.e("s_sub_u32 s3, 15, s34")
        b.e("s_lshl_b32 s45, s3, 3")
        b.e("s_add_u32 s45, s45, s32")
        b.e("s_lshl_b32 s46, s34, 3")
        b.e("s_add_u32 s46, s46, s32")
        srd_rec(b, 68, 42, 7340032)
        b.blk(["s_cmp_eq_u32 s32, 0", f"s_cselect_b32 s37, 0, {BIG}"])
        b.e("s_lshl_b32 s3, s33, 8")
        srd_rec(b, 16, 4, 0, "s3")
        b.e("s_sub_u32 s18, 8388608, s3")
        WQN = int(opt.get('wqn', 4))
        ln_ = (64 if MAP == 4 else 128) // WQN
        b.e(f"v_and_b32 v33, {ln_ - 1}, v0")
        b.e("v_lshrrev_b32 v32, 1, v33")
        b.e("v_and_b32 v33, 1, v0")
        b.e("v_lshlrev_b32 v32, 13, v32")
        b.e("v_lshl_add_u32 v45, v33, 7, v32")
        b.e("s_lshl_b32 s3, s32, 3")
        b.e("s_add_u32 s3, s3, s34")
        if MAP != 4: b.e("s_lshr_b32 s3, s3, 1")
        b.e(f"s_mul_i32 s47, s3, {ln_ // 2 * 8192}")
        WQ0 = int(opt.get('wq0', 6))
        ev = []
        for j in range(WQN): ev.append((WQ0 + j * float(opt.get('wqs', 2)), 'pf', j))
        NS = int(opt.get('cas', 4))
        for j in range(NS): ev.append((5.2 + j * float(opt.get('cad', 1.2)), 'ca', j))
        b.e(f"s_bfe_u32 s6, s2, {(NS.bit_length() - 1) << 16 | 3}")
        b.e("s_lshl_b32 s3, s32, 8")
        b.e("s_or_b32 s6, s6, s3")
        WOP = WOT
        if WOP:
            b.e("v_bfe_u32 v39, v0, 3, 1")
            b.e("v_and_b32 v33, 7, v0")
            b.e("v_lshlrev_b32 v39, 11, v39")
            b.e("v_lshl_add_u32 v39, v33, 7, v39")
            b.e("s_lshr_b32 s3, s2, 1")
            b.e("s_lshl_b32 s3, s3, 16")
            b.e("v_add_u32 v39, s3, v39")
            b.e("s_and_b32 s3, s2, 1")
            b.e("s_lshl_b32 s3, s3, 10")
            b.e("v_add_u32 v39, s3, v39")
            b.e("s_lshl_b32 s3, s32, 14")
            b.e("v_add_u32 v39, s3, v39")
            ev.append((5.99, 'srd', 0))
            for j in range(4): ev.append((float(opt.get('wop0', 6)) + j * 2 + 0.01, 'wo', j))
        late = []
        for step, kind, j in sorted(ev):
            o = b
            if step >= 12:
                o = Rec(); late.append(o)
            o.at(step)
            if kind == 'ca':
                o.check_clear('ln')
                o.blk([f"s_cmp_eq_u32 s6, {j}", f"s_cselect_b32 s3, 0, {BIG}"])
                o.blk(["s_mov_b64 exec, 1", "buffer_atomic_add v30, v31, s[28:31], s3 offen sc1", "s_mov_b64 exec, -1"])
            elif kind == 'srd':
                srd_rec(o, 60, 92, 8388608)
            elif kind == 'wo':
                o.e("buffer_load_dword v44, v39, s[60:63], 0 offen", tag='pf')
                o.e("v_add_u32 v39, 4096, v39")
            else:
                o.e(f"buffer_load_dword v44, v45, s[{16 if step < 12 else 8}:{19 if step < 12 else 11}], s47 offen{opt.get('wqpf_ld', '')}", tag='pf')
                o.e(f"s_add_u32 s47, s47, {1024 // WQN * 8192}")
        b.e("v_lshrrev_b32 v32, 4, v0")
        b.e("v_and_b32 v33, 15, v0")
        b.e("s_lshl_b32 s3, s32, 4")
        b.e("v_add_u32 v34, s3, v32")
        b.e("v_lshlrev_b32 v36, 1, v32")
        b.e("v_xor_b32 v36, v36, v33")
        b.e("v_xor_b32 v37, 8, v36")
        if '2' in CPF:
            b.at(10.1)
            cp = code_prefetch("L_phase2", "L_k2_fin", 32, 6, 40, 38)
            cp = [x.replace("s8", "s3") for x in cp]
            b.blk(cp[:4])
            for x in cp[4:-3]: b.e(x)
            b.blk(cp[-3:-1])
            b.e(cp[-1])
        b.at(12)
        b.e("buffer_load_dword v1, v31, s[28:31], s37 offen sc1", tag='poll')
        for j in range(3): b.e(f"s_mov_b32 s{8+j}, s{16+j}")
        srd_rec(b, 16, 66, 16 << 20, WS_CTX)
        for j in range(4): b.e(f"s_mov_b32 s{48+j}, {j*31744}")
        b.e("v_lshlrev_b32 v35, 13, v34")
        b.e(f"s_and_b32 s52, s33, {3 if QX >= 0 else 0}")
        b.e(f"s_lshl_b32 s3, s52, {19 + max(QX, 0)}")
        b.e(f"s_lshl_b32 s52, s52, {11 + max(QX, 0)}")
        b.e("s_add_u32 s53, s52, s58")
        b.e("v_add_u32 v35, s3, v35")
        b.e(f"v_lshl_add_u32 v{WV}, v36, 4, v35")
        b.e(f"v_lshl_add_u32 v{WV+1}, v37, 4, v35")
        b.e(f"v_lshlrev_b32 v{VX}, 4, v0")
        b.e(f"v_add_u32 v{VY}, 65536, v{VX}")
        b.e(f"v_add_u32 v{VDMA}, s44, v{VX}")
        b.e("v_mov_b32 v7, 0")
        b.e("v_lshlrev_b32 v35, 2, v32")
        b.e("v_sub_u32 v35, v33, v35")
        b.e("s_lshl_b32 s3, s32, 4")
        b.e(f"v_add_u32 v{VRA}, s3, v35")
        b.e("s_sub_u32 s3, 48, s3")
        b.e(f"v_add_u32 v{VRB}, s3, v35")
        b.e(f"s_mul_i32 s3, s33, {KV_HEAD}")
        b.e(f"s_add_u32 s3, s3, {WS_KV}")
        srd_rec(b, 12, 66, 0, "s3")
        b.e(f"s_mul_i32 s14, s36, {KV_TILE}")
        for o in late: b.items += o.items
        ta_setup(b)
        b.at(13.4)
        b.e(f"s_mul_i32 s3, s45, {XN_RB}")
        b.e(f"v_add_u32 v{XV}, s3, v{VX}")
        b.e(f"s_mul_i32 s3, s46, {XN_RB}")
        b.e(f"v_add_u32 v{XV+1}, s3, v{VX}")
        if '6' in CPF:
            b.at(14)
            b.e("v_mov_b32 v14, v40"); b.e("v_mov_b32 v15, v41")
        if 'dbg_noxn' in opt:
            b.e(f"v_mov_b32 v{XV}, {BIG}"); b.e(f"v_mov_b32 v{XV+1}, {BIG}")
        if 'dbg_nowq' in opt: b.e("s_mov_b32 s10, 0")
        if 'dbg_nost' in opt: b.e("s_mov_b32 s26, 0")
        spin(f"L_spinA{tg}", f"L_spinAr{tg}", 0, 256, 1, 7, 3, 47)
        return b
    def ta_setup(b):
        b.e("v_lshrrev_b32 v42, 2, v33")
        b.e("v_lshl_add_u32 v43, v32, 3, v42")
        b.e("v_lshlrev_b32 v43, 8, v43")
        b.e("v_and_b32 v46, 3, v0")
        b.e("v_lshl_add_u32 v43, v46, 3, v43")
        b.e("v_and_b32 v46, 1, v32")
        b.e("v_lshl_add_u32 v42, v46, 2, v42")
        b.e(f"v_lshl_add_u32 v{TA}, v42, 5, v43")
        for db in range(1, 8): b.e(f"v_xor_b32 v{TA+db}, {32*db}, v{TA}")

    NS7 = int(opt.get('ns7', 6))
    def kvstore_ops(n):
        off = (n >> 4) * KV_TILE + (n & 15) * 1024
        return ([f"s_add_u32 s59, s38, {off}"] if n % 4 == 0 else []) + \
               [f"buffer_store_dwordx4 {V(PK(n),4)}, v{VX}, s[24:27], s59 offen offset:{(n % 4)*1024}{opt.get('kv_st', ' sc1')}"]
    def place_vm(g, gt, scal, ops, start, step):
        gi = start
        for t, s, tg in ops:
            if t == 's': scal.setdefault(gi - 1, []).append(s)
            elif t == 'g':
                assert gi not in g and gi < 128, gi
                g[gi] = [s]; gt[gi] = tg; gi += step
            else:
                q = gi - step + 1
                while (q in g and (len(g[q]) >= 2 or g[q][-1].startswith(('buffer', 'ds_read_b64')))) or ((q - start) % step == 0 and q < 127): q += 1
                g.setdefault(min(q, 127), []).append(s)
    vq0, dq0 = list(k.vq), list(k.dq)
    for isV in (0, 1):
        if isV:
            k.label("L_k1_vpath"); k.win = []; k.vq = list(vq0); k.dq = list(dq0)
        b = phase1_stream(isV)
        if S1: k.nstamp = 0
        for st in range(8):
            p = st & 1
            k.stamp(S1)
            g = {}; gt = {}; scal = {}
            for pr in range(4):
                s2, p2 = (st, pr + 1) if pr < 3 else (st + 1, 0)
                if s2 < 8:
                    for q, s in enumerate(areads(s2, p2)):
                        x = 32 * pr + 3 + 4 * q
                        g[x] = [s]; gt[x] = f'A{s2}_{p2}'
                    scal.setdefault(32 * pr + 30, []).append(('w', f'A{s2}_{p2}'))
            if st < 7:
                free = [x for x in range(65, 122, 2) if x not in g]
                for n, grp in enumerate(wfreads(st + 1)):
                    x = free[(n * len(free)) // 16]
                    g[x] = grp; gt[x] = f'W{st+1}'
                scal.setdefault(127, []).append(('w', f'W{st+1}'))
                scal.setdefault(61, []).append(('v', f'w{st+1}d')); scal.setdefault(62, []).append("s_barrier")
                scal.setdefault(93, []).append(('v', f'a{st+1}d')); scal.setdefault(94, []).append("s_barrier")
            if st == 0:
                ops = []
                for h, nm in enumerate(('w1', 'a1')):
                    if nm not in '/'.join(PRO):
                        ops += [(t, s, nm + 'd') for t, s in dma_ops(1)[10*h:10*h+10]] + [('v', s, None) for s in adv_ops(1)[4*h:4*h+4]]
                place_vm(g, gt, scal, ops, 2, int(opt.get('st1s', 2)))
                pfc[0] = 2 + PFN
                for q in range(int(opt.get('pfk', 1))):
                    po = pf_ops()
                    assert 44 + 4 * q not in g
                    g[44 + 4 * q] = [po[0]]; gt[44 + 4 * q] = 'pf'; g[45 + 4 * q] = po[1:] + g.get(45 + 4 * q, [])
            if st < 6:
                d = dma_ops(p); adv = adv_ops(st + 2) if st < 5 else []
                ops = [(t, s, f'w{st+2}d') for t, s in d[:10]] + [('v', s, None) for s in adv[:4]] + \
                      [(t, s, f'a{st+2}d') for t, s in d[10:]] + [('v', s, None) for s in adv[4:]]
                place_vm(g, gt, scal, ops, 64, 4)
                if pfc[0] < 8:
                    po = pf_ops()
                    g[126] = [po[0]] + g.get(126, []); gt[126] = 'pf'
                    g[127] = [po[1]] + g.get(127, []) + [po[2]]
            elif st == 6:
                ops = []
                for c in range(4): ops += [(t, s, f'w{c}') for t, s in chunk_ops(('w', c))]
                place_vm(g, gt, scal, ops, 64, 4)
            else:
                XB = int(opt.get('xb', 28))
                tg = 'v' if isV else 'k'
                scal.setdefault(XB - 2, []).append(('v', 'w0'))
                scal.setdefault(XB, []).extend(["v_readfirstlane_b32 s3, v1", "s_nop 0", "s_or_b32 s3, s3, s37", "s_cmp_lt_u32 s3, 256",
                                                f"s_cbranch_scc1 L_spinA{tg}", f"L_spinAr{tg}:", "s_barrier"])
                ops = []
                for kk in range(4): ops += [(t, s, f'x{kk}') for t, s in xn_ops(kk)]
                place_vm(g, gt, scal, ops, XB + 4, int(opt.get('xs7', 6)) & ~1)
                for n, grp in enumerate(wreads(0)):
                    assert 105 + 2 * n not in g
                    g[105 + 2 * n] = grp
                for n in range(26):
                    b.at(14 + (4 * n + 8) / 64.0)
                    r = SRC(n)[1]
                    for q in range(4): b.e(f"v_cvt_pk_bf16_f32 v{PK(n)+q}, v{r+2*q}, v{r+2*q+1}")
                    m_ = (n * NS7) // 26
                    if (n + 1) * NS7 // 26 > m_:
                        for x in kvstore_ops(m_): b.e(x, tag='kvst')
            if isV: order = [(2 * pr + h, jd, ks) for pr in range(4) for jd in range(8) for h in range(2) for ks in range(2)]
            else: order = [(it, jd, ks) for it in range(8) for jd in range(8) for ks in range(2)]
            for n, (it, jd, ks) in enumerate(order):
                if st == 0:
                    k.wait_ds('A0_0'); k.wait_ds(f'W0_{jd}')
                fa, fw_ = A(FA(it, ks), 4), A(FW(p, jd, ks), 4)
                d = acc(isV, it, jd)
                c = "0" if (st == 0 and ks == 0) else d
                k.e(mfma(d, fa, fw_, c) if isV else mfma(d, fw_, fa, c))
                for x in scal.get(n, []):
                    if isinstance(x, tuple): (k.wait_ds if x[0] == 'w' else k.wait_vm)(x[1])
                    elif x.endswith(':'): k.label(x[:-1])
                    else: k.e(x)
                if n in g:
                    for s in g[n]: k.e(s, tag=gt.get(n))
                elif n not in scal:
                    b.fill(k, 2 * st + n / 64.0)
        print(f"phase1 isV={isV}: items left {len(b.items)}")
        k.stamp(S1)
        b.drain(k)
        k.stamp(S1)
        if not isV:
            k.e("s_branch L_phase2")
            vqK = list(k.vq)
    assert vqK == k.vq
    k.label("L_phase2")
    k.win = []
    k.e("s_nop 7")
    k.stamp(ST)

    b = Rec()
    KY = 56
    SPK = float(opt.get('spk', 1.2))
    def kvstore(n):
        if n < NS7: return
        b.at((n - NS7) / SPK)
        for x in kvstore_ops(n): b.e(x, tag='kvst')
    for n in range(26):
        kvstore(n)
        if 8 <= n < 14:
            m = n + 18
            for q in range(8): b.e(f"v_accvgpr_read_b32 v{48+q}, a{SRC(m)[1]+q}")
            for q in range(4): b.e(f"v_cvt_pk_bf16_f32 v{PK(m)+q}, v{48+2*q}, v{49+2*q}")
    for n in range(26, 32): kvstore(n)
    b.e("v_mov_b32 v12, 1")
    b.e("v_and_b32 v1, 15, v0")
    b.e("v_lshlrev_b32 v1, 2, v1")
    b.e("s_lshr_b32 s6, s33, 1")
    b.e("s_lshl_b32 s6, s6, 7")
    b.e(f"s_add_u32 s6, s6, {WS_FLG}")
    b.blk(["s_cmp_eq_u32 s32, 0", f"s_cselect_b32 s6, s6, {BIG}"])
    SIG = int(opt.get('sig', 25))
    POL = float(opt.get('pol', 27.3))
    b.at(SIG)
    b.blk(["s_mov_b64 exec, 1", "buffer_store_dword v12, v7, s[20:23], s39 offen sc1", "s_mov_b64 exec, -1"])
    b.at(POL)
    b.e("buffer_load_dword v12, v1, s[20:23], s6 offen sc1", tag='poll')
    CK = int(opt.get('ck', 29))
    n_ = 0
    for j in (0, 2, 1, 3, 4, 5, 6):
        for t, s in chunk_ops(('kv', j)):
            if t == 'g':
                b.at(max(CK + n_ * float(opt.get('kvp', 0.09)), {4: 25, 5: 27, 6: 29}.get(j, 0))); n_ += 1
            b.e(s, tag=f'c{16+j}')
    def spinB():
        k.e("s_mov_b32 s59, 0x400000")
        k.label("L_spinB_l")
        k.e(f"s_sleep {opt.get('slp', 4)}")
        k.e("buffer_load_dword v12, v1, s[20:23], s6 offen sc1")
        k.e("s_sub_u32 s59, s59, 1")
        k.e("s_cmp_eq_u32 s59, 0")
        k.e("s_cbranch_scc1 L_spinBx")
        k.e("s_waitcnt vmcnt(0)")
        k.e("v_cmp_ne_u32 vcc, 1, v12")
        k.e("s_cbranch_vccnz L_spinB_l")
        k.label("L_spinBx")
        k.e("s_waitcnt vmcnt(0)")
    ool.append(("L_spinB", spinB, "L_spinBr"))

    b1 = b
    b = Rec()
    srd_rec(b, 60, 40, 7340032)
    RT = [float(x) for x in opt.get('rt', '0,5').split(',')] if '6' in CPF else []
    for x in RT:
        b.at(x)
        b.e("global_load_dword v13, v[14:15], off", tag='keys')
    KT = int((10 - NS7) / SPK) + 3
    b.at(KT)
    b.items.append(('fn', lambda: not any(x in str(it[1]) for it in b1.items for x in ('v[56:59]', 'v[60:63]', 'v[64:67]')), None))
    b.e("s_lshl_b32 s3, s32, 11")
    b.e(f"s_add_u32 s3, s3, {WS_KEYS}")
    for i in range(2):
        b.e(f"buffer_load_dwordx4 {V(KY+4*i,4)}, v{VX}, s[20:23], s3 offen offset:{i*1024} sc1", tag='keys')
    def top2_lane():
        b.e(f"v_max_u32 v14, v{KY}, v{KY+1}")
        b.e(f"v_min_u32 v15, v{KY}, v{KY+1}")
        for i in range(2, 8):
            b.e(f"v_med3_u32 v15, v14, v15, v{KY+i}"); b.e(f"v_max_u32 v14, v14, v{KY+i}")
    b.at(KT + 6)
    b.wait_vm('keys')
    top2_lane()
    b.e("s_lshl_b32 s3, s32, 9")
    b.e("s_add_u32 s3, s3, 131072")
    b.e("v_lshlrev_b32 v13, 3, v0")
    b.e(f"v_add_u32 v{KY}, s3, v13")
    b.e("v_add_u32 v13, 131072, v13")
    b.e(f"ds_write_b64 v{KY}, v[14:15]")
    KB = (KT + 8) | 1
    b.items.append(('before', KB, None))
    b.at(KB)
    for w in range(4): b.e(f"ds_read_b64 {V(KY+2*w,2)}, v13 offset:{w*512}", tag='kx')
    b.at(KB + 0.3)
    b.wait_ds('kx')
    top2_lane()
    def wmax(v, sdst):
        for m in ["quad_perm:[1,0,3,2]", "quad_perm:[2,3,0,1]", "row_half_mirror", "row_mirror"]:
            b.blk([f"v_max_u32_dpp {v}, {v}, {v} {m} row_mask:0xf bank_mask:0xf"])
        b.blk([f"v_readlane_b32 s3, {v}, 0", f"v_readlane_b32 s47, {v}, 16"])
        b.blk([f"v_readlane_b32 s4, {v}, 32", f"v_readlane_b32 s5, {v}, 48"])
        b.blk(["s_max_u32 s3, s3, s47", "s_max_u32 s4, s4, s5", f"s_max_u32 s{sdst}, s3, s4"])
    b.e("v_mov_b32 v13, v14")
    wmax("v13", 40)
    b.blk(["v_cmp_eq_u32 vcc, s40, v14"])
    b.blk(["v_cndmask_b32 v13, v14, v15, vcc"])
    wmax("v13", 41)
    for t in range(2):
        b.e(f"s_and_b32 s3, s{40+t}, 0xffff")
        b.e(f"s_sub_u32 s{42+t}, 0xffff, s3")
    for t in range(2):
        b.e(f"v_mov_b32 v60, s{40+t}")
        b.e("v_not_b32 v61, v60")
        b.e("v_ashrrev_i32 v61, 31, v61")
        b.e("v_or_b32 v61, 0x80000000, v61")
        b.e("v_xor_b32 v60, v60, v61")
        b.e("v_and_b32 v60, 0xffff0000, v60")
        b.e("v_mul_f32 v60, 0xbfb8aa3b, v60")
        b.e("v_exp_f32 v60, v60")
        b.e("v_add_f32 v60, 1.0, v60")
        b.e("v_rcp_f32 v60, v60")
        b.e("v_cvt_pk_bf16_f32 v60, v60, v60")
        b.e(f"v_and_b32 v{64+t}, 0xffff0000, v60")
    b.items.append(('fn', lambda: not any('accvgpr_read' in str(it[1]) or 'cvt' in str(it[1]) for it in b1.items), None))
    for r in range(16): b.e(f"v_mov_b32 v{LS+r}, 0")
    WARM = opt.get('warm', '1') == '1'
    if WARM:
        b.at((28 - NS7) / SPK + 0.5)
        b.items.append(('fn', lambda: not any('v[28:31]' in str(it[1]) for it in b1.items), None))
        WC = int(opt.get('wc', 4))
        upc = 64 - WC * WC
        seg = upc * 32 * 4 * 128
        bufs = [(94, 7340032)] + ([(100, 4194304)] if x_ld else []) + ([] if opt.get('gearly', '1') == '1' else [(60, 7340032)]) + [(68, 7340032)] + ([] if WOT else [(92, 8388608)])
        b.e("s_mul_i32 s3, s34, s34")
        b.e(f"s_mul_i32 s47, s33, {upc}")
        b.e("s_add_u32 s3, s3, s47")
        b.e("s_lshl_b32 s3, s3, 2")
        b.e("s_add_u32 s3, s3, s32")
        b.e("s_lshl_b32 s3, s3, 7")
        b.e(f"s_sub_u32 s3, s3, {512 + WC * WC * 512}")
        b.blk([f"s_cmp_ge_u32 s34, {WC}", "s_cselect_b32 s3, s3, 0", "s_cselect_b32 s40, 512, 0", f"s_cselect_b32 s47, {seg}, 0"])
        first = 0
        for j, (lo, size) in enumerate(bufs):
            b.e(f"v_subrev_u32 v31, {first}, v0")
            b.e("v_mul_lo_u32 v31, v31, s47")
            b.e(f"v_min_u32 v31, {size - seg}, v31")
            if j == 0:
                b.e(f"v_mov_b32 v28, s{lo}"); b.e(f"v_mov_b32 v29, s{lo+1}"); b.e("v_mov_b32 v30, v31")
            else:
                b.e(f"v_mov_b32 v14, s{lo}"); b.e(f"v_mov_b32 v15, s{lo+1}")
                b.blk([f"v_cmp_le_u32 vcc, {first}, v0"])
                b.blk(["v_cndmask_b32 v28, v28, v14, vcc", "v_cndmask_b32 v29, v29, v15, vcc"])
                b.blk(["v_cndmask_b32 v30, v30, v31, vcc"])
            first += -(-size // seg)
        assert first <= 64, first
        b.e("v_add_u32 v30, s3, v30")
        b.e("v_ashrrev_i32 v31, 31, v30")
        b.e("v_lshl_add_u64 v[28:29], v[30:31], 0, v[28:29]")
        b.e("s_mov_b32 s41, 0")
    b.e("v_readfirstlane_b32 s100, v64")
    b.e("v_readfirstlane_b32 s101, v65")
    b.at(SIG)
    for j in range(3): b.e(f"s_mov_b32 s{24+j}, s{60+j}")
    b.e("s_add_u32 s93, s2, 224")
    b.e("s_and_b32 s93, s93, 255")
    b.e("s_mul_i32 s92, s93, 2341")
    b.e("s_lshr_b32 s92, s92, 16")
    b.e("s_mul_i32 s47, s92, 28")
    b.e("s_sub_u32 s4, s93, s47")
    b.e(f"s_mul_i32 s5, s92, {128*7168}")
    b.e("s_lshl_b32 s47, s4, 8")
    b.e("s_add_u32 s5, s5, s47")
    b.e("v_lshrrev_b32 v24, 4, v0")
    b.e("v_and_b32 v25, 15, v0")
    b.e("s_lshl_b32 s3, s32, 4")
    b.e("v_add_u32 v26, s3, v24")
    b.e("v_mul_u32_u24 v26, 7168, v26")
    b.e("v_lshlrev_b32 v24, 1, v24")
    b.e("v_xor_b32 v24, v24, v25")
    b.e("v_lshl_add_u32 v24, v24, 4, v26")
    b.e("v_xor_b32 v25, 128, v24")
    b.e(f"s_mov_b32 s94, {QSCALE}")
    b.e(f"s_mov_b32 s95, {QSCALE}")
    b.e("s_sub_u32 s55, 15, s34")
    b.e("s_sub_u32 s45, s36, 3")
    b.e("s_sub_u32 s46, s35, 3")
    b.e("s_mov_b32 s54, s44")
    b.e("s_sub_u32 s35, s35, 2")
    b.e("s_sub_u32 s36, s36, 2")
    b2 = b
    b3 = Rec()
    WT0 = float(opt.get('wt0', 18))
    WTB = int(opt.get('wtb', 23))
    WTG = int(opt.get('wtg', 8))
    b3.e("s_lshr_b32 s52, s2, 1")
    b3.e("s_lshl_b32 s52, s52, 16")
    b3.e("s_and_b32 s53, s2, 1")
    b3.e("s_lshl_b32 s53, s53, 10")
    b3.e("s_add_u32 s52, s52, s53")
    b3.e("s_lshl_b32 s53, s32, 14")
    b3.e("s_add_u32 s52, s52, s53")
    srd_rec(b3, 28, 92, 8388608)
    for j in range(8):
        b3.at(WT0 + 2 * (j // WTG))
        b3.blk([f"s_add_u32 m0, s57, {65536 + j * 1024}", f"v_xor_b32 v88, {j * 32}, v{VX}",
                (f"buffer_load_dwordx4 v88, s[28:31], s52 offen{opt.get('wo_ld', '')} lds", 'wo'), "s_add_u32 s52, s52, 2048"])
    b3.e("v_lshrrev_b32 v89, 2, v0")
    b3.e("v_lshlrev_b32 v89, 10, v89")
    b3.e("s_lshl_b32 s53, s32, 8")
    b3.e("s_add_u32 s53, s53, 65536")
    b3.e("v_add_u32 v89, s53, v89")
    b3.e("v_mov_b32 v90, 0xff")
    srd_rec(b3, 28, 66, 16 * WO_NT, WS_WOT)
    b3.e("s_and_b32 s52, s2, 1")
    b3.e("s_lshl_b32 s52, s52, 2")
    b3.e("s_add_u32 s52, s52, s32")
    b3.e(f"s_mul_i32 s52, s52, {2 * WO_NT}")
    b3.e("s_lshr_b32 s53, s2, 1")
    b3.e("s_lshl_b32 s53, s53, 12")
    b3.e("s_add_u32 s52, s52, s53")
    b3.at(WTB)
    for q in range(8):
        b3.e(f"v_and_or_b32 v{92 + (q & 1)}, v{TA+q}, v90, v89")
        for rd in range(2):
            b3.e(f"ds_read_b64_tr_b16 {V(96 + 4*q + 2*rd, 2)}, v{92 + (q & 1)} offset:{rd*16384}", tag='wt')
    for q in range(8):
        b3.at(WTB + 1.2 + 0.5 * q)
        b3.wait_ds('wt')
        b3.e(f"buffer_store_dwordx4 {V(96 + 4*q, 4)}, v{VX}, s[28:31], s52 offen offset:{(q & 3)*1024} sc1", tag='wts')
        if q == 3: b3.e(f"s_add_u32 s52, s52, {WO_NT}")
    b3.e("s_and_b32 s52, s2, 1")
    b3.e("s_lshl_b32 s52, s52, 9")
    b3.e("s_lshr_b32 s93, s2, 1")
    b3.e("s_lshl_b32 s93, s93, 2")
    b3.e("s_add_u32 s52, s52, s93")
    b3.e(f"s_add_u32 s52, s52, {WS_WFL}")
    b3.blk(["s_cmp_eq_u32 s32, 0", f"s_cselect_b32 s52, s52, {BIG}"])
    b3.e("v_mov_b32 v24, 1")
    b3.e("v_mov_b32 v25, 0")
    if not WOT: b3.items = []
    PKM = opt.get('pkm', '0') == '1'
    def conv_items(qb):
        r_ = Rec()
        for s_ in range(4):
            r = QA(2 * s_, qb)
            if PKM:
                for e_ in range(0, 8, 2): r_.e(f"v_pk_mul_f32 {V(r+e_,2)}, {V(r+e_,2)}, s[94:95]")
            else:
                for e_ in range(8): r_.e(f"v_mul_f32 v{r+e_}, s94, v{r+e_}")
            for e_ in range(4): r_.e(f"v_cvt_pk_bf16_f32 v{r+e_}, v{r+2*e_}, v{r+2*e_+1}")
            for e_ in range(4): r_.e(f"v_accvgpr_write_b32 a{Q(qb,s_)+e_}, v{r+e_}")
        r_.items.append(('mark', f'conv{qb}', None))
        return r_.items
    p2_start = len(k.lines)
    XLA = int(opt.get('xla', 5))
    xsched = {}; nx_ = 4
    for kk in range(32):
        xsched[kk] = []
        while nx_ < 32 and nx_ <= min(kk + XLA, (kk & ~1) + 7) and len(xsched[kk]) < 2:
            xsched[kk].append(nx_); nx_ += 1
    def boundary_wait(kk):
        st, ks = kk // 2, kk & 1
        need = [f'x{kk | 1}' if P2C else f'x{kk}']
        if ks == 1 and st < 15: need.append(f'w{st+1}')
        if kk == SIG:
            assert not any(it[2] == 'kvst' for it in b1.items), "stores not all issued before SIG"
            need.append('kvst')
        if kk == WTB:
            assert not any(it[0] == 'b' and any(isinstance(x, tuple) for x in it[1]) for it in b3.items)
            need.append('wo')
        if kk == CK:
            assert not b3.items
            need.append('poll')
        if kk == 31: need.append('c16')
        w = [x for x in (k.vm_n(t) for t in need) if x is not None]
        k.e("s_waitcnt " + (f"vmcnt({min(w)}) " if w else "") + "lgkmcnt(0)")
        for t in need: k.use(t)
    def boundary_bar(kk):
        st, ks = kk // 2, kk & 1
        if kk == CK:
            assert not any('vcc' in str(it[1]) for it in b2.items)
            k.e("s_cmp_lg_u32 s32, 0")
            k.e("s_cbranch_scc1 L_spinBr")
            k.e("v_cmp_ne_u32 vcc, 1, v12")
            k.e("s_cbranch_vccnz L_spinB")
            k.label("L_spinBr")
        if ks == 1: k.e("s_barrier")
    for kk in range(32):
        st, ks = kk // 2, kk & 1
        k.stamp(S2 and kk in (0, 4, 8, 12, 16, 20, 24, 28, 31))
        if kk == 0: boundary_wait(0)
        g = {}; gt = {}
        if kk + 1 < 32:
            for n, grp in enumerate(wreads(kk + 1)):
                g[1 + 3 * n] = (["s_waitcnt lgkmcnt(6)"] if n == 5 else []) + grp
        vm = []
        wv = []
        if ks == 1 and st + 4 < 16: wv = [(t, s, f'w{st+4}') for t, s in chunk_ops(('w', st + 4))[:3]]
        if ks == 0 and 4 <= st + 3 < 16: wv = [(t, s, f'w{st+3}') for t, s in chunk_ops(('w', st + 3))[3:]]
        xv_ = []
        for x in xsched.get(kk, []): xv_ += [(t, s, f'x{x}') for t, s in xn_ops(x)]
        vm = wv + xv_
        ng = sum(1 for x in vm if x[0] == 'g')
        free = [x for x in range(2, 29) if x not in g]
        pick = [free[(j * len(free)) // ng] for j in range(ng)] if ng else []
        j = 0
        for t, s, tg in vm:
            if t == 'g': g[pick[j]] = [s]; gt[pick[j]] = tg; j += 1
            elif t == 's':
                q = pick[j] - 1
                if q in gt: g[q].append(s)
                else: g.setdefault(q, []).insert(0, s)
            else:
                q = pick[j - 1] + 1
                while q in pick or (q in g and len([y for y in g[q] if not y.startswith('s_')]) >= 2): q += 1
                g.setdefault(q, []).append(s)
        dbs, qs = (range(4 * ks, 4 * ks + 4), range(2)) if P2C else (range(8), [ks])
        order = [(db, qb, q) for db in dbs for qb in range(4) for q in qs]
        if kk == 31:
            order = [(db, qb, q) for qb in range(4) for db in dbs for q in qs]
            assert all('accvgpr_write' in it[1] for it in b2.items)
            zrest = b2.items; b2.items = []
            for kb in range(2):
                for s_ in range(4): b2.e(f"ds_read_b128 {A(FR(kb,s_),4)}, v{VY} offset:{(kb*4+s_)*1024}", tag=f'k{kb}')
            b2.at(31 + 12 / 32.0)
            b2.items += conv_items(0) + conv_items(1)
        elif kk > (25 if P2C else 24):
            for x in (([kk - 2] if kk < 30 else [28, 29]) if P2C else [kk - 1]):
                for r in range(16): b2.e(f"v_accvgpr_write_b32 a{XR(x,0)+r}, 0")
        for n, (db, qb, q) in enumerate(order):
            k.e(mfma(V(QA(db, qb), 4), A(WF(q, db), 4), A(XR(2 * st + q, qb), 4), V(QA(db, qb), 4) if (st or q) else "0"))
            if kk < 31 and n == 30: boundary_wait(kk + 1)
            if kk < 31 and n == 31: boundary_bar(kk + 1)
            if n in g:
                for s in g[n]: k.e(s, tag=gt.get(n))
            elif kk < 31 and n >= 29:
                for o in (b1, b2):
                    if o.items and o.items[0][0] == 'i' and o.items[0][1].startswith('v_'):
                        it = o.items.pop(0); k.e(it[1])
                        if o.items and o.items[0][0] == 'i' and o.items[0][1].startswith('v_') and o.cost(it) + o.cost(o.items[0]) <= 2:
                            k.e(o.items.pop(0)[1])
                        break
            else:
                nl = k.ni
                b1.fill(k, kk + n / 32.0)
                if k.ni == nl: b3.fill(k, kk + n / 32.0)
                if k.ni == nl: b2.fill(k, kk + n / 32.0)
    print("phase2 items left", len(b1.items), len(b2.items))
    b1.drain(k)
    grp_ = None
    for ln in k.lines[p2_start:] + ["s_mov_b32 m0, 0"]:
        if ' m0,' in ln:
            assert grp_ is None or (len(set(grp_)) == 1 and len(grp_) == (1 if grp_[0] == 's[28:31]' else 4)), grp_
            grp_ = []
        elif ' lds' in ln: grp_.append(ln.split(', ')[1])
    k.stamp(ST or S2)
    XS = 160
    def ffn_ids(item):
        k.e(f"s_mul_i32 s92, s{item}, 2341")
        k.e("s_lshr_b32 s92, s92, 16")
        k.e("s_mul_i32 s47, s92, 28")
        k.e(f"s_sub_u32 s4, s{item}, s47")
        k.e(f"s_mul_i32 s5, s92, {128*7168}")
        k.e("s_lshl_b32 s47, s4, 8")
        k.e("s_add_u32 s5, s5, s47")
    GE_ = opt.get('gearly', '1') == '1'
    FX = int(opt.get('fx', 1))
    def ffn_issue(up=68):
        for t in range(2):
            k.e(f"s_lshr_b32 s3, s{42+t}, 4")
            k.e(f"s_mul_i32 s3, s3, {XN_RB}")
            k.e(f"s_and_b32 s47, s{42+t}, 15")
            k.e("s_lshl_b32 s47, s47, 4")
            k.e("s_add_u32 s3, s3, s47")
            k.e(f"v_mov_b32 v{28+t}, s3")
        k.e("v_lshrrev_b32 v24, 4, v0")
        k.e("v_and_b32 v25, 15, v0")
        k.e("v_cmp_eq_u32 vcc, 1, v25")
        k.e("s_lshl_b32 s3, s32, 4")
        k.e("v_add_u32 v26, s3, v24")
        k.e("v_cndmask_b32 v28, v28, v29, vcc")
        k.e("v_lshl_add_u32 v28, v24, 8, v28")
        k.e("v_mul_u32_u24 v26, 7168, v26")
        k.e("v_lshlrev_b32 v24, 1, v24")
        k.e("v_xor_b32 v24, v24, v25")
        k.e("v_xor_b32 v25, 8, v24")
        k.e("v_lshl_add_u32 v24, v24, 4, v26")
        k.e("v_lshl_add_u32 v25, v25, 4, v26")
        k.e("s_lshl_b32 s3, s92, 12")
        for q in range(4):
            k.e(f"buffer_load_dwordx4 {A(XS+4*q,4)}, v28, s[20:23], s3 offen offset:{q*1024} sc1")
        return ([] if GE_ else ffn_dma(24, "s54", 32768)) + ffn_dma(up, "s54", 0)
    def ffn_dma(srd, base, off):
        ops = []
        for h in range(2):
            for q in range(4):
                pre = [f"s_add_u32 m0, {base}, {off + h*16384}"] if q == 0 else []
                ops.append((pre + [f"s_add_u32 s3, s5, {h*64*7168 + q*27648}"],
                            f"buffer_load_dwordx4 v{24 + (q >> 1)}, {S(srd,4)}, s3 offen offset:{q*1024}{ffn_ld} lds"))
        return ops
    def ffn_finish(nv=8):
        k.e("v_lshrrev_b32 v24, 4, v0")
        k.e("v_bfe_u32 v25, v0, 2, 2")
        k.e("v_lshl_add_u32 v26, v24, 3, v25")
        k.e("v_lshlrev_b32 v26, 8, v26")
        k.e("v_and_b32 v27, 3, v0")
        k.e("v_lshl_add_u32 v26, v27, 3, v26")
        k.e("v_and_b32 v27, 1, v24")
        k.e("v_lshl_add_u32 v25, v27, 2, v25")
        k.e("s_lshl_b32 s3, s32, 1")
        k.e("v_xor_b32 v25, s3, v25")
        k.e("v_lshl_add_u32 v26, v25, 5, v26")
        k.e("s_sub_u32 s3, s54, s44")
        k.e("v_add_u32 v30, s3, v26")
        k.e("v_xor_b32 v31, 32, v30")
        k.e("v_add_u32 v26, 131072, v26" if GE_ else "v_add_u32 v26, 32768, v30")
        k.e("v_xor_b32 v27, 32, v26")
        k.e(f"s_waitcnt vmcnt({nv}) lgkmcnt(0)")
        k.use('ffn')
        k.e("s_barrier")
        for m in range(2):
            for q in range(4):
                for j in range(2):
                    for rd in range(2):
                        k.e(f"ds_read_b64_tr_b16 {V(128 + 32*m + 8*q + 4*j + 2*rd, 2)}, v{26+4*m+j} offset:{q*8192 + rd*1024}", tag=f'f{m}')
        k.e("v_and_b32 v25, 15, v0")
        k.e("v_mul_u32_u24 v28, 14336, v25")
        k.e("v_lshl_add_u32 v28, v24, 4, v28")
        k.e(f"v_mov_b32 v29, {BIG}")
        k.e("v_cmp_gt_u32 vcc, 2, v25")
        k.e(f"s_mul_i32 s3, s92, {4*14336}")
        k.e("s_lshl_b32 s47, s4, 9")
        k.e("s_add_u32 s3, s3, s47")
        k.e("v_cndmask_b32 v28, v29, v28, vcc")
        k.e("s_lshl_b32 s47, s32, 7")
        k.e("s_add_u32 s3, s3, s47")
        k.e(f"s_add_u32 s3, s3, {WS_HP}")
        for m in range(2):
            k.wait_ds(f'f{m}')
            for q in range(4):
                for j in range(2):
                    d = V(224 + 8 * m + 4 * j, 4)
                    k.e(mfma(d, V(128 + 32*m + 8*q + 4*j, 4), A(XS + 4*q, 4), d if q else "0"))
    def ffn_store():
        k.e(f"s_cmp_ge_u32 s34, {FX}")
        k.e(f"s_cselect_b32 s3, s3, {1 << 23}")
        k.e(f"s_add_u32 s7, s3, {2*14336}")
        for m in range(2):
            for j in range(2):
                k.e(f"buffer_store_dwordx4 {V(224 + 8*m + 4*j, 4)}, v28, s[20:23], s{7 if m else 3} offen offset:{j*64} sc1", tag='hps')

    def kread(reg, off, kb):
        return [f"ds_read_b128 {A(FR(kb,s_),4)}, v{reg} offset:{off + (kb*4+s_)*1024}" for s_ in range(4)]
    def vread(reg, off, vg):
        return [f"ds_read_b128 {A(FR(vg,j),4)}, v{reg} offset:{off + ((j & 1)*8 + 2*vg + (j >> 1))*1024}" for j in range(4)]
    def qk_mfmas(par, nq, zero=False):
        out = []
        for kb in range(4):
            grp = []
            for qb in range(nq):
                d = V(Sr(par, qb, kb), 4)
                for s_ in range(4):
                    c = d if s_ else ("0" if zero else V(NEGM + 4 * qb, 4))
                    grp.append(mfma(d, A(FR(kb, s_), 4), A(Q(qb, s_), 4), c))
            out.append(grp)
        return out
    def pv_mfmas(par, nq):
        out = []
        for vg in range(4):
            grp = []
            for dd in range(2):
                for qb in range(nq):
                    for ks in range(2):
                        o = A(O(qb, 2 * vg + dd), 4)
                        grp.append(mfma(o, A(FR(vg, 2 * dd + ks), 4), V(P(par, qb, ks), 4), o))
            if vg < nq:
                for ks in range(2):
                    l = V(LS + 4 * vg, 4)
                    grp.append(mfma(l, V(ONES, 4), V(P(par, vg, ks), 4), l))
            out.append(grp)
        return out
    def sm_pairs(par, nq, ks):
        out = []
        for kq in range(2):
            for qb in range(nq):
                s0 = Sr(par, qb, 2 * ks + kq)
                for h in range(2):
                    out.append((s0 + 2 * h, s0 + 2 * h + 1, P(par, qb, ks) + 2 * kq + h))
        return out
    class SM:
        def __init__(self, pairs, first, check):
            self.pairs = pairs; self.ne = 0; self.nc = 0; self.no = 0; self.first = first
            self.tail = [f"v_and_b32 v{T0}, 0x40004000, v{ORR}", f"v_cmp_ne_u32 vcc, 0, v{T0}"] if check else []
            self.e_done = 0; self.extra = []
        def tick(self): self.e_done = self.ne
        def exp_ready(self): return self.ne < 2 * len(self.pairs) and self.ne // 2 - self.nc < 4
        def exp(self):
            j, h = self.ne // 2, self.ne & 1; self.ne += 1
            return f"v_exp_f32 v{ET + 2*(j % 4) + h}, v{self.pairs[j][h]}"
        def plain_avail(self):
            n = min(self.e_done // 2, len(self.pairs)) - self.nc
            n += self.nc // 2 - self.no
            if self.no == len(self.pairs) // 2: n += len(self.tail)
            return n + len(self.extra)
        def plain(self):
            if self.nc < min(self.e_done // 2, len(self.pairs)):
                j = self.nc; self.nc += 1
                return f"v_cvt_pk_bf16_f32 v{self.pairs[j][2]}, v{ET + 2*(j % 4)}, v{ET + 2*(j % 4) + 1}"
            if self.no < self.nc // 2:
                j = self.no; self.no += 1
                a, b = self.pairs[2 * j][2], self.pairs[2 * j + 1][2]
                if self.first and j == 0: return f"v_or_b32 v{ORR}, v{a}, v{b}"
                return f"v_or3_b32 v{ORR}, v{ORR}, v{a}, v{b}"
            if self.no == len(self.pairs) // 2 and self.tail: return self.tail.pop(0)
            if self.extra: return self.extra.pop(0)
            return None
        def left_exp(self): return 2 * len(self.pairs) - self.ne
        def left_plain(self): return len(self.pairs) - self.nc + len(self.pairs) // 2 - self.no + len(self.tail) + len(self.extra)
        def done(self): return self.left_exp() == 0 and self.left_plain() == 0
        def drain(self):
            while not self.done():
                self.tick()
                if self.exp_ready():
                    k.e(self.exp())
                    if self.exp_ready(): k.e(self.exp())
                    x = self.plain()
                    if x: k.e(x)
                else:
                    k.e(self.plain())
    def phase(groups, gtags, reads, rtags, sm, vm, nexttag):
        total = sum(len(g) for g in groups)
        vmpos = {}
        if vm:
            step = max(2, (total - 2) // len(vm))
            for j, x in enumerate(vm): vmpos[1 + j * step] = x
        n = 0
        k.wait_ds(gtags[0])
        for gi, grp in enumerate(groups):
            rq = list(reads[gi])
            for mi, m in enumerate(grp):
                k.e(m)
                sm.tick()
                scal = []
                if n + 1 in vmpos: scal += vmpos[n + 1][0]
                lastm = mi == len(grp) - 1
                if n in vmpos:
                    for s in scal: k.e(s)
                    k.e(vmpos[n][1], tag='kv')
                    slots = 0
                else:
                    for s in scal: k.e(s)
                    if lastm:
                        nt = gtags[gi + 1] if gi + 1 < len(groups) else nexttag
                        if nt: k.wait_ds(nt)
                    slots = 2
                    gaps_left = len([x for x in range(n, n + len(grp) - mi) if x not in vmpos])
                    want_d = len(rq) > 0 and (sm.plain_avail() > 0 or not sm.exp_ready() or len(rq) >= gaps_left - 1)
                    if want_d:
                        k.e(rq.pop(0), tag=rtags[gi]); slots -= 1
                        if rq and (sm.plain_avail() == 0 or len(rq) >= gaps_left):
                            k.e(rq.pop(0), tag=rtags[gi]); slots -= 1
                    if slots == 2 and sm.exp_ready() and not (sm.plain_avail() >= 3 and not rq):
                        k.e(sm.exp()); slots = 0
                    while slots > 0:
                        x = sm.plain()
                        if not x: break
                        k.e(x); slots -= 1
                if lastm:
                    for s in rq: k.e(s, tag=rtags[gi])
                    nt = gtags[gi + 1] if gi + 1 < len(groups) else nexttag
                    if nt: k.wait_ds(nt)
                n += 1
        sm.drain()

    def mask_block(par, qb):
        vr = VRA if qb & 1 else VRB
        for kb in range(4):
            for r in range(4): k.e(f"v_cmp_gt_i32 s[{56+2*r}:{57+2*r}], {16*kb + r}, v{vr}")
            if kb == 0: k.e("s_nop 3")
            for r in range(4):
                x = Sr(par, qb, kb) + r
                k.e(f"v_cndmask_b32 v{x}, v{x}, v{NINF}, s[{56+2*r}:{57+2*r}]")
    def rowmax(par, qb, d, o=k):
        s0 = Sr(par, qb, 0)
        o.e(f"v_max3_f32 v{d}, v{s0}, v{s0+1}, v{s0+2}")
        for r in range(3, 15, 2): o.e(f"v_max3_f32 v{d}, v{d}, v{s0+r}, v{s0+r+1}")
        o.e(f"v_max_f32 v{d}, v{d}, v{s0+15}")
        o.e(f"v_mov_b32 v{T0}, v{d}")
        o.e(f"v_permlane16_swap_b32 v{T0}, v{d}")
        o.e(f"v_max_f32 v{d}, v{d}, v{T0}")
        o.e(f"v_mov_b32 v{T0}, v{d}")
        o.e(f"v_permlane32_swap_b32 v{T0}, v{d}")
        o.e(f"v_max_f32 v{d}, v{d}, v{T0}")
        o.e(f"v_add_f32 v{d}, {opt.get('moff', '0x41f80000')}, v{d}")
    def fallback(par, nq, nqn):
        k.e("s_nop 7")
        for qb in range(nq):
            rowmax(par, qb, 21)
            k.e("v_max_f32 v21, 0, v21")
            for r in range(16): k.e(f"v_sub_f32 v{Sr(par,qb,0)+r}, v{Sr(par,qb,0)+r}, v21")
            if qb < nqn:
                for r in range(16): k.e(f"v_sub_f32 v{Sr(par^1,qb,0)+r}, v{Sr(par^1,qb,0)+r}, v21")
            for r in range(4): k.e(f"v_sub_f32 v{NEGM+4*qb+r}, v{NEGM+4*qb+r}, v21")
            k.e("v_exp_f32 v22, -v21")
            for r in range(4): k.e(f"v_mul_f32 v{LS+4*qb+r}, v{LS+4*qb+r}, v22")
            for r0 in range(0, 32, 8):
                for r in range(8): k.e(f"v_accvgpr_read_b32 v{ET+r}, a{O(qb,0)+r0+r}")
                for r in range(8): k.e(f"v_mul_f32 v{ET+r}, v{ET+r}, v22")
                for r in range(8): k.e(f"v_accvgpr_write_b32 a{O(qb,0)+r0+r}, v{ET+r}")
        for ks in range(2):
            for (s0, s1, pd) in sm_pairs(par, nq, ks):
                k.e(f"v_exp_f32 v{ET}, v{s0}")
                k.e(f"v_exp_f32 v{ET+1}, v{s1}")
                k.e(f"v_cvt_pk_bf16_f32 v{pd}, v{ET}, v{ET+1}")
        k.e("s_nop 1")
    SPLIT = {4: (32, 16, 8), 3: (36, 18, 9), 2: (17, 8, 4), 1: (16, 8, 4), 0: (0, 0, 0)}
    def tile_sm(par, nq, start, check):
        sm = SM(sm_pairs(par, nq, 0) + sm_pairs(par, nq, 1), True, check)
        sm.ne, sm.nc, sm.no = start; sm.e_done = sm.ne
        return sm
    def pack(ngaps, vmg, dsl, sm, limit, last_sm, pre):
        plan = {}
        dsl = list(dsl)
        def exp_ok(): return sm.exp_ready() and (limit is None or sm.ne < limit[0])
        def plain_n():
            n = min(sm.e_done // 2, len(sm.pairs), limit[1] if limit else 1 << 30) - sm.nc
            n += min(sm.nc // 2, limit[2] if limit else 1 << 30) - sm.no
            if limit is None and sm.no == len(sm.pairs) // 2: n += len(sm.tail)
            return n + len(sm.extra)
        def take_plain():
            if limit is not None:
                c_ok = sm.nc < min(sm.e_done // 2, limit[1]); o_ok = sm.no < min(sm.nc // 2, limit[2])
                if not c_ok and not o_ok: return sm.extra.pop(0) if sm.extra else None
                if not c_ok:
                    keep = sm.e_done; sm.e_done = 2 * sm.nc; x = sm.plain(); sm.e_done = keep; return x
            return sm.plain()
        for g in range(-1 if pre else 0, ngaps):
            if g in vmg: sm.tick(); continue
            sm.tick()
            ops = []
            smok = g <= last_sm
            av = [d for d in dsl if d[2] <= g]
            free_to = lambda dl: len([x for x in range(g, dl + 1) if x not in vmg])
            urgent = any(sum(1 for d in dsl if d[3] <= e[3]) >= 2 * free_to(e[3]) - 1 for e in av)
            pn = plain_n() if smok else 0
            if smok and exp_ok() and not urgent and not (av and pn) and not (pn >= 3):
                ops.append((sm.exp(), None))
            else:
                slots = 2
                if av and g >= 0:
                    d = av.pop(0); dsl.remove(d); ops.append((d[0], d[1])); slots -= 1
                    if av and (pn == 0 or sum(1 for x in dsl if x[3] <= av[0][3]) >= 2 * free_to(av[0][3]) - 1):
                        d = av.pop(0); dsl.remove(d); ops.append((d[0], d[1])); slots -= 1
                while slots and smok:
                    x = take_plain()
                    if not x: break
                    ops.append((x, None)); slots -= 1
                if not ops and smok and exp_ok(): ops.append((sm.exp(), None))
            plan[g] = ops
            if g == last_sm:
                while (limit is None and not sm.done()) or (limit is not None and ((sm.ne, sm.nc, sm.no) != limit or sm.extra)):
                    sm.tick()
                    x = sm.exp() if exp_ok() else take_plain()
                    plan[g].append((x, None)); k.overflow += 1
        assert not dsl, dsl
        return plan
    k.overflow = 0
    SLK = int(opt.get('slk', -1))
    def emit_phase(mf, plan, vmg, scal, bg=None, vtag=None, sbg=None):
        for s_, tg in plan.get(-1, []): k.e(s_, tag=tg)
        for g, m in enumerate(mf):
            k.e(m)
            for x in scal.get(g, []):
                if isinstance(x, tuple) and x[0] == 'u': k.use(x[1])
                elif isinstance(x, tuple) and x[0] == 'call': x[1]()
                elif isinstance(x, tuple): k.wait_ds(x[1])
                elif x.endswith(':'): k.label(x[:-1])
                else: k.e(x)
            if sbg and g > 0 and g not in scal and g not in vmg and sbg.items and sbg.items[0][0] != 'at':
                it = sbg.items.pop(0)
                for x in ([it[1]] if it[0] == 'i' else it[1]): k.e(x)
                if sbg.items[0][0] == 'i' and len(plan.get(g, [])) < 2: k.e(sbg.items.pop(0)[1])
            if g in vmg: k.e(vmg[g], tag=('ffn' if ' s3 ' in vmg[g] else vtag if 's39' in vmg[g] else None))
            else:
                for s_, tg in plan.get(g, []): k.e(s_, tag=tg)
                if bg and not plan.get(g) and g not in scal: bg.fill(k, 99, 3)
    p4s = p4_setup(opt)
    def starts(groups):
        out = [0]
        for g in groups: out.append(out[-1] + len(g))
        return out
    def iteration(par, nq, nqn, mask, name, tail):
        kreg, koff = (VX, 32768) if par == 0 else (VY, 0)
        vreg, voff = (VX, 16384) if par == 0 else (VX, 49152)
        nreg, noff = (VY, 0) if par == 0 else (VY, 32768)
        last = nqn == 1
        k.hot = nqn >= 2
        ov0 = k.overflow
        fb, fr = f"L_k2_fb_{name}", f"L_k2_fbr_{name}"
        ool.append((fb, lambda: fallback(par, nq, nqn), fr))
        sm = tile_sm(par, nq, SPLIT[nq], True)
        if par == 0:
            k.e(f"v_xor_b32 v{VX}, 65536, v{VX}")
            k.e(f"v_xor_b32 v{VY}, 65536, v{VY}")
        if nqn:
            k.dq = ['k1'] * 4
            if nq == 4 and WARM: sm.extra = ["v_lshl_add_u64 v[28:29], s[40:41], 0, v[28:29]"]
            grp = qk_mfmas(par ^ 1, nqn); st_ = starts(grp); n1 = st_[-1]
            slack = SLK if nqn <= 2 else 4
            dsl = [(x, 'k2', 0, st_[1] + slack) for x in kread(kreg, koff, 2)] + [(x, 'k3', 0, st_[2] + slack) for x in kread(kreg, koff, 3)] + \
                  [(x, 'v0', st_[1], st_[3] + slack) for x in vread(vreg, voff, 0)] + [(x, 'v1', st_[2], n1 - 1) for x in vread(vreg, voff, 1)]
            scal = {}
            add = lambda g, xs: scal.setdefault(g, []).extend(xs)
            add(st_[1] - 1, [('w', 'k1')]); add(st_[2] - 1, [('w', 'k2')]); add(st_[3] - 1, [('w', 'k3')])
            vmw = f"s_waitcnt vmcnt({12 + min(int(opt.get('fp1', 4)), 3)})" if last else "s_waitcnt vmcnt(12)"
            if nq == 2:
                add(n1 - 7, ["s_cmp_lt_u32 s37, s52"])
                add(n1 - 6, [f"s_cbranch_scc1 L_nw_{name}", vmw, f"L_nw_{name}:"])
            else:
                add(n1 - 5, [vmw])
            if mask and mask[1]: add(n1 - 4, [f"s_cmp_eq_u32 s37, s{mask[1]}"])
            add(n1 - 3, ([] if 'nochk' in opt else [('u', f'V{par}'), ('u', 'c19' if par == 0 else 'c21'), ('u', 'c20' if par == 0 else 'c22')]) + ["s_barrier"]); add(n1 - 2, [('w', 'v0')]); add(n1 - 1, [f"s_cbranch_vccnz {fb}", fr + ":"])
            vmg = {}
            if last:
                fops = ffn_issue()
                for q in (1, 5, 8, 12)[:int(opt.get('fp1', 4))]:
                    pre, ld = fops.pop(0)
                    vmg[q] = ld; scal.setdefault(q - 1, []).extend(pre)
            else:
                step = (n1 - 8) / 4
                for j in range(4):
                    q = int(1 + j * step)
                    while q in scal or (j == 0 and q - 1 in scal): q += 1
                    vmg[q] = f"buffer_load_dwordx4 v{VDMA}, s[12:15], s38 offen offset:{j*1024}{kv_ld} lds"
                    if j == 0: scal[q - 1] = ["s_mov_b32 m0, s53" if par == 0 else "s_add_u32 m0, s53, 32768"]
            plan = pack(n1, vmg, dsl, sm, None, n1 - 2, par == 1)
            emit_phase(sum(grp, []), plan, vmg, scal, None, 'ffn')
        else:
            k.dq = ['v1'] * 4
            sm.drain()
            k.e(f"s_cbranch_vccnz {fb}")
            k.label(fr)
        grp = pv_mfmas(par, nq); st_ = starts(grp); n2 = st_[-1]
        slack = SLK if nq <= 2 else 4
        dsl = [(x, 'v2', 0, st_[1] + slack) for x in vread(vreg, voff, 2)] + [(x, 'v3', 0, st_[2] + slack) for x in vread(vreg, voff, 3)]
        scal = {st_[1] - 1: [('w', 'v1')], st_[2] - 1: [('w', 'v2')], st_[3] - 1: [('w', 'v3')]}
        vmg = {}
        if nqn:
            nx = [vread(VX, 49152, 0), vread(VX, 49152, 1)] if last else [kread(nreg, noff, 0), kread(nreg, noff, 1)]
            dsl += [(x, 'k0', st_[1], st_[3] + slack - 1) for x in nx[0]] + [(x, 'k1', st_[2], n2 - 2) for x in nx[1]]
            if mask:
                mb, mr = f"L_k2_mk_{name}", f"L_k2_mkr_{name}"
                if mask[1]: scal[0] = [f"s_cbranch_scc1 {mb}", mr + ":"]
                else: scal[0] = [('call', lambda: mask_block(par ^ 1, mask[0]))]
            scal[n2 - 2] = [('w', 'k0')]
            if tail: scal[n2 - 3] = [tail[0]]; scal[n2 - 1] = [tail[1]]
            def put(x, lo):
                q = lo
                while q in scal or q in vmg: q += 1
                assert q < n2 - 3, (x, q)
                scal[q] = [x]
            if last:
                for j, (pre, ld) in enumerate(fops):
                    q = 2 + (j * (n2 - 4)) // len(fops)
                    vmg[q] = ld
                    scal.setdefault(q - 1, []).extend(pre)
                    if q in scal: scal[q - 1].extend(scal.pop(q))
            else:
                mv = "s_add_u32 m0, s54, 49152" if par == 0 else "s_add_u32 m0, s53, 16384"
                vm = [f"buffer_load_dwordx4 v{VDMA}, s[12:15], s39 offen offset:{j*1024}{kv_ld} lds" for j in range(4)]
                if nq == 4 and WARM: vm.append("global_load_dword v30, v[28:29], off")
                pres = {0: [mv]}
                if name == "wl" and GE_:
                    for pre, ld in ffn_dma(24, "s44", 131072):
                        pres[len(vm)] = pre; vm.append(ld)
                step = (n2 - 4) / len(vm)
                pos = []
                for j in range(len(vm)):
                    q = int(2 + j * step)
                    while q in scal or q in vmg or (j in pres and q - 1 in scal): q += 1
                    vmg[q] = vm[j]; pos.append(q)
                    if j in pres: scal[q - 1] = pres[j]
                if name == "ne":
                    q = 3
                    while any(x in scal or x in vmg for x in (q, q + 1)): q += 1
                    scal[q] = ["s_cmp_eq_u32 s37, s52"]; scal[q + 1] = ["s_cbranch_scc1 L_pubB", "L_pubBr:"]
                    put("s_add_u32 s37, s37, 1", q + 2)
                else:
                    put("s_add_u32 s37, s37, 1", 1)
                put(f"s_add_u32 s38, s38, {KV_TILE}", 1)
                if par == 1:
                    put("s_xor_b32 s53, s53, 65536", pos[0]); put("s_xor_b32 s54, s54, 65536", pos[0])
                put(f"s_add_u32 s39, s39, {KV_TILE}", pos[3] + 1)
        sm = tile_sm(par ^ 1, nqn, (0, 0, 0), False)
        lastg = n2 - 2 if nqn else n2 - 1
        while lastg in vmg: lastg -= 1
        plan = pack(n2 - 1 if nqn else n2, vmg, dsl, sm, SPLIT[nqn], lastg, False)
        emit_phase(sum(grp, []), plan, vmg, scal, None if nqn else p4s, 'ffn' if last else f'V{par}', p4s if last else None)
        print(f"iteration {name}: overflow ops {k.overflow - ov0}")
        k.hot = False
    def epilogue(q0, srow):
        k.e(f"s_lshl_b32 s3, s{srow}, 20")
        k.e("s_lshl_b32 s47, s33, 15")
        k.e("s_add_u32 s3, s3, s47")
        k.e("s_lshl_b32 s47, s32, 10")
        k.e("v_lshlrev_b32 v248, 4, v0")
        k.e("v_add_u32 v249, s47, v248")
        k.e("s_sub_u32 s47, 7168, s47")
        k.e("v_add_u32 v248, s47, v248")
        for qq in range(2):
            k.e(f"v_rcp_f32 v{250+2*qq}, v{LS+4*(q0+qq)}")
        for qq in range(2):
            k.e(f"v_mov_b32 v{251+2*qq}, v{250+2*qq}")
        for s_ in range(4):
            for qq in (1, 0):
                o = O(q0 + qq, 2 * s_)
                d = 24 + 4 * qq
                for r in range(8): k.e(f"v_accvgpr_read_b32 v{240+r}, a{o+r}")
                for r in range(0, 8, 2): k.e(f"v_pk_mul_f32 {V(240+r,2)}, {V(240+r,2)}, {V(250+2*qq,2)}")
                for r in range(4): k.e(f"v_cvt_pk_bf16_f32 v{d+r}, v{240+2*r}, v{240+2*r+1}")
                k.e(f"buffer_store_dwordx4 {V(d,4)}, v{248+qq}, s[16:19], s3 offen{opt.get('ctx_st',' sc1')}")
            if s_ < 3: k.e("s_add_u32 s3, s3, 8192")

    for kb in range(2, 4):
        for s in kread(VY, 0, kb): k.e(s, tag=f'k{kb}')
    def first_max(o, qb):
        rowmax(0, qb, 22, o)
        if PKM:
            o.e("v_sub_f32 v22, 0, v22"); o.e("v_mov_b32 v23, v22")
            for r in range(0, 16, 2): o.e(f"v_pk_add_f32 {V(Sr(0,qb,0)+r,2)}, {V(Sr(0,qb,0)+r,2)}, v[22:23]")
            for r in range(4): o.e(f"v_mov_b32 v{NEGM+4*qb+r}, v22")
        else:
            for r in range(16): o.e(f"v_sub_f32 v{Sr(0,qb,0)+r}, v{Sr(0,qb,0)+r}, v22")
            for r in range(4): o.e(f"v_sub_f32 v{NEGM+4*qb+r}, 0, v22")
    c = b2
    c.items += conv_items(2) + conv_items(3) + zrest
    for r in list(range(XR(30, 0), XR(30, 0) + 16)) + list(range(XR(31, 0), XR(31, 0) + 16)): c.e(f"v_accvgpr_write_b32 a{r}, 0")
    if opt.get('sp1', '1') == '1':
        c.e(f"v_and_b32 v{ONES}, 3, v0")
        c.e(f"v_subrev_u32 v{ONES}, 1, v{ONES}")
        c.e(f"v_ashrrev_i32 v{ONES}, 31, v{ONES}")
        c.e(f"v_and_b32 v{ONES}, 0x3f803f80, v{ONES}")
        for r in range(1, 4): c.e(f"v_mov_b32 v{ONES+r}, v{ONES}")
    else:
        for r in range(4): c.e(f"v_mov_b32 v{ONES+r}, 0x3f803f80")
    c.e(f"v_mov_b32 v{NINF}, 0xff800000")
    first_max(c, 0); first_max(c, 1)
    for qb in range(4):
        while any(it[0] == 'mark' and it[1] == f'conv{qb}' for it in c.items): c.fill(k, 99, 2)
        for kb in range(4):
            k.wait_ds(f'k{kb}')
            if qb == 3 and kb == 2:
                k.e(f"s_waitcnt vmcnt({min(k.vm_n('c18'), k.vm_n('c17'))})")
                assert k.vm_n('wts') is None
                k.use('c17'); k.use('c18')
                k.e("s_barrier")
                if WOT:
                    k.e("s_mov_b64 exec, 1")
                    k.e("buffer_store_dword v24, v25, s[20:23], s52 offen sc1")
                    k.e("s_mov_b64 exec, -1")
                k.e("s_add_u32 s53, s44, 65536")
                if TK:
                    k.e("v_mov_b32 v27, 1")
                    k.e("v_mov_b32 v26, 0")
                    k.e("s_cmp_eq_u32 s32, 0")
                    k.e("s_cselect_b32 s3, 128, s64")
                    k.e("s_mov_b64 exec, 1")
                    k.e("buffer_atomic_add v27, v26, s[28:31], s3 offen sc0 sc1")
                    k.e("s_mov_b64 exec, -1")
            for s_ in range(4):
                d = V(Sr(0, qb, kb), 4)
                k.e(mfma(d, A(FR(kb, s_), 4), A(Q(qb, s_), 4), d if s_ else "0"))
                if qb == 3 and kb >= 2: k.e(kread(VY, 32768, kb - 2)[s_], tag=f'n{kb-2}')
                c.fill(k, 99, int(opt.get('pslots', 4)))
    c.drain(k)
    k.e(f"s_mov_b32 s38, {4*KV_TILE}")
    k.e(f"s_mov_b32 s39, {3*KV_TILE + KV_CH}")
    k.e("s_cmp_lg_u32 s34, 0")
    k.e("s_cbranch_scc1 L_k2_nomask0")
    mask_block(0, 3)
    k.label("L_k2_nomask0")
    k.e("s_mov_b32 s37, 0")
    first_max(k, 2); first_max(k, 3)
    SM(sm_pairs(0, 4, 0), True, False).drain()
    k.e("s_waitcnt lgkmcnt(4)")
    k.stamp(ST or SA)

    k.e("s_cmp_eq_u32 s34, 0")
    k.e("s_cbranch_scc1 L_k2_wlast")
    k.e("s_branch L_k2_wloop")
    for nm, qb in (("wo", 3), ("tr", 1), ("no", 1)):
        k.label(f"L_k2_mk_{nm}"); k.win = []
        mask_block(0, qb)
        k.e(f"s_branch L_k2_mkr_{nm}")
    k.label("L_pubB"); k.win = []
    k.e("v_mov_b32 v24, 1"); k.e("v_mov_b32 v25, 0")
    k.e("s_mov_b64 exec, 1")
    k.e("buffer_store_dword v24, v25, s[20:23], s64 offen sc1")
    k.e("s_mov_b64 exec, -1")
    k.e("s_branch L_pubBr")
    k.label("L_k2_wloop")
    iteration(0, 4, 4, None, "we", [])
    iteration(1, 4, 4, (3, 46), "wo", ["s_cmp_lg_u32 s37, s35", "s_cbranch_scc1 L_k2_wloop"])
    k.label("L_k2_wlast")
    iteration(0, 4, 3, (2, None), "wl", [])
    iteration(1, 3, 2, (1, 45), "tr", [])
    k.stamp(SA)
    if '4' in CPF: emit(code_prefetch("L_k2_fin", "L_p4_end", 32, 56, 160, 164))
    k.e("s_waitcnt vmcnt(9)")
    if TK:
        k.e("v_mov_b32 v26, 131072")
        k.e("s_cmp_lg_u32 s32, 0")
        k.e("s_cbranch_scc1 L_notk")
        k.e("s_mov_b64 exec, 1")
        k.e("ds_write_b32 v26, v27")
        k.e("s_mov_b64 exec, -1")
        k.e("s_waitcnt lgkmcnt(0)")
        k.label("L_notk")
        k.e("s_barrier")
        k.e("ds_read_b32 v23, v26")
    epilogue(2, 34)
    k.e("s_add_u32 s52, s37, 2")
    k.raw(";@b:2")
    for s in p4_ptr_loads(): k.e(s)
    k.e("s_waitcnt vmcnt(8) lgkmcnt(0)")
    k.stamp(SA)
    k.e("s_cmp_eq_u32 s34, 7")
    k.e("s_cbranch_scc1 L_k2_fin")
    k.label("L_k2_nloop")
    nl0 = len(k.lines)
    iteration(0, 2, 2, None, "ne", [])
    iteration(1, 2, 2, (1, 45), "no", ["s_cmp_lg_u32 s37, s36", "s_cbranch_scc1 L_k2_nloop"])
    if 'dbg_drop' in opt:
        drop = opt['dbg_drop'].split(',')
        k.lines[nl0:] = [x for x in k.lines[nl0:] if not any(d in x and not x.endswith(':') for d in drop)]
    k.label("L_k2_fin")
    k.stamp(SA)
    if '5' in CPF: emit(code_prefetch("L_p4_entry", "L_p4_end", 32, 56, 160, 164, whole=True))
    iteration(0, 2, 1, (0, None), "nl", [])
    iteration(1, 1, 0, None, "fi", [])
    k.stamp(ST or SA)
    k.e("s_nop 7")
    epilogue(0, 55)
    k.stamp(SA)
    k.e(f"s_cmp_lt_u32 s34, {FX}")
    k.e("s_cbranch_scc1 L_noffn")
    ffn_finish()
    k.label("L_noffn")
    p4s.drain(k)
    k.stamp(SA)
    k.e("v_mov_b32 v24, 1")
    k.e("v_mul_u32_u24 v25, s65, v0")
    k.e("s_waitcnt vmcnt(0)")
    k.e("s_barrier")
    k.e("s_mov_b64 exec, 3")
    k.e("buffer_store_dword v24, v25, s[20:23], s64 offen sc1")
    k.e("s_mov_b64 exec, -1")
    k.label("L_p4_entry")
    ffn_store()
    k.e("s_lshl_b32 s33, s4, 3")
    k.e("s_add_u32 s33, s33, s92")
    k.e("s_mov_b32 s65, s33")
    k.stamp(ST or SA)
    if FX == 2:
        k.e("s_cmp_eq_u32 s34, 7")
        k.e("s_cbranch_scc1 L_f1x")
        k.label("L_f1xr")
        def f1x():
            k.e("s_load_dwordx2 s[6:7], s[0:1], 72")
            k.e("s_and_b32 s65, s93, 31")
            ffn_ids(65)
            k.e("s_waitcnt lgkmcnt(0)")
            k.srd(16, 6, 7340032)
            for pre, ld in ffn_issue(16):
                for x in pre: k.e(x)
                k.e(ld, tag='ffn')
            ffn_finish(0)
            k.e("s_barrier")
            ffn_store()
            k.e("s_lshl_b32 s65, s4, 3")
            k.e("s_add_u32 s65, s65, s92")
        ool.append(("L_f1x", f1x, "L_f1xr"))
    phase4(k, opt, ool, ST, SA)
    k.stamp_dump('stamp' in opt, 66, 0, 32)
    if 'hold' in opt:
        k.e("s_lshl_b32 s3, s32, 8")
        k.e("s_or_b32 s3, s2, s3")
        k.e(f"s_cmp_lg_u32 s3, {opt.get('holdwg', 0)}")
        if 'holdcls' in opt:
            k.e("s_lshr_b32 s3, s2, 5")
            k.e(f"s_cmp_lg_u32 s3, {opt['holdcls']}")
        if opt.get('holdwg') != '999': k.e("s_cbranch_scc1 L_k2_end")
        k.label("L_hold")
        k.e("s_memrealtime s[4:5]")
        k.e("s_waitcnt lgkmcnt(0)")
        k.e(f"s_sub_u32 s3, s4, s{73 + 2 * int(opt.get('holdk', 0))}")
        k.e(f"s_cmp_lt_u32 s3, {int(opt['hold']) * 100}")
        k.e("s_cbranch_scc1 L_hold")
    k.label("L_k2_end")
    k.e("s_endpgm")
    hotool = [x for x in ool if x[0].startswith(("L_f1", "L_f2", "L_c3", "L_spinC", "L_spinD", "L_yA", "L_yB", "L_yC"))]
    for lab, fn, ret in hotool + [("L_p4_end", None, None)] + [x for x in ool if x not in hotool]:
        k.label(lab)
        if fn is None: continue
        k.win = []; k.dq = []
        fn()
        k.e(f"s_branch {ret}")
    return k.wrap(256, 256), f"; @launch {'kernel=' + KNAME + ' ' if 'aslist' in opt else ''}grid=(256,1,1) block=(256,1,1) lds={K12_LDS}"
```
